```python
import torch

def _softmax(x, axis=-1):
    return torch.softmax(x, dim=axis)
def _gelu(x):
    return torch.nn.functional.gelu(x, approximate="tanh")
def _silu(x):
    return torch.nn.functional.silu(x)
def _sigmoid(x):
    return torch.sigmoid(x)
def _layernorm(x, axis=-1, eps=1e-5):
    m = x.mean(dim=axis, keepdim=True)
    v = x.var(dim=axis, keepdim=True, unbiased=False)
    return (x - m) / torch.sqrt(v + eps)
def _scatter_add(tgt, idx, src, axis=0):
    return tgt.clone().index_add_(axis, idx, src)
def _segment_sum(src, seg, n):
    out = torch.zeros((n,) + src.shape[1:], dtype=src.dtype)
    return out.index_add_(0, seg, src)
def _pad(x, pw):
    flat = tuple(v for pair in reversed(pw) for v in pair)
    return torch.nn.functional.pad(x, flat)

kernel_name = 'standalone__dense_activation_squared_relu__sampling'

def setup_inputs():

    _w = (lambda a: (lambda t: t.to(torch.bfloat16) if t.is_floating_point() else t)(torch.as_tensor(a)))
    B, S, D, F = 32, 16, 576, 4608
    return {
        "x": _w((lambda *s: torch.randn(*s, dtype=torch.bfloat16) * 0.05)(B, S, D)),
        "w1": _w((lambda *s: torch.randn(*s, dtype=torch.bfloat16) * 0.05)(D, F)),
        "b1": _w((lambda *s: torch.randn(*s, dtype=torch.bfloat16) * 0.05)(F)),
        "w2": _w((lambda *s: torch.randn(*s, dtype=torch.bfloat16) * 0.05)(F, D)),
        "b2": _w((lambda *s: torch.randn(*s, dtype=torch.bfloat16) * 0.05)(D)),
    }

def reference(x, w1, b1, w2, b2):
    h = torch.einsum("bsd,df->bsf", x, w1) + b1
    zero = torch.zeros_like(h)
    r = torch.where(h > zero, h, zero)
    h = r * r
    out = torch.einsum("bsf,fd->bsd", h, w2) + b2
    return out
```

```python
import sys, argparse

KN = "standalone__dense_activation_squared_relu__sampling_kernel"

WS_H = 0x0
WS_IN = 0x1000000
WS_FL = 0x1800000
WS_TS = 0x8000000
SPIN_MAX = 100000
LSPIN_MAX = 4000000
L_PROG = 0x0
L_CONS = 0x100
L_HD = 0x600


class Asm:
    def __init__(self):
        self.L = []
        self.n = 0

    def __call__(self, s):
        self.L.append("    " + s)

    def label(self, s):
        self.L.append(s + ":")

    def c(self, s):
        self.L.append("    ; " + s)

    def uid(self):
        self.n += 1
        return self.n

    def text(self):
        return "\n".join(self.L)


def build(cfg):
    A = Asm()
    TS = cfg.ts
    passes = cfg.passes
    D = cfg.depth

    stages, blocks, order = [], {}, []

    def blk(name, **kw):
        blocks[name] = dict(name=name, **kw)
        return name

    def add_stage(units, breads):
        q = len(stages)
        stages.append(dict(units=units, breads=breads, q=q))
        for (bb, _kb) in breads:
            b = blocks[bb]
            b["need"] = b["last"] = q
            if b["kind"] != "Hown":
                order.append(bb)
        for (_t, wb, _kb, _first) in units:
            b = blocks[wb]
            if "need" not in b:
                b["need"] = q
                order.append(wb)
            b["last"] = q
        return q

    epi_after = {}
    pass_of_line = {}
    for pi, lines in enumerate(passes):
        grp = 1 if (len(lines) > 1 or pi == 0) else cfg.grp1
        for t0 in range(0, 9, grp):
            units, breads = [], []
            for t in range(t0, t0 + grp):
                if pi == 0:
                    breads.append((blk(f"X{t}", kind="X", t=t), t))
                for l in lines:
                    units.append((l, blk(f"W{t}_{l}", kind="W1", t=t, l=l), t, False))
            q = add_stage(units, breads)
        epi_after[q] = (pi, list(lines))
        for l in lines:
            pass_of_line[l] = pi
    n_g1 = len(stages)
    kbidx = {}
    first = {0: True, 1: True, 2: True}
    cnt2 = {0: 0, 1: 0, 2: 0}
    epi2_after = {}
    for stg in cfg.g2:
        units, breads = [], []
        for (d, lk, lines) in stg:
            if (d, lk) not in kbidx:
                kbidx[(d, lk)] = len(kbidx)
                breads.append((blk(f"H{d}_{lk}", kind="Hown" if d == 0 else "H", d=d, lk=lk), kbidx[(d, lk)]))
            for l in lines:
                units.append((l, blk(f"V{d}_{lk}_{l}", kind="W2", d=d, lk=lk, l=l), kbidx[(d, lk)], first[l]))
                first[l] = False
                cnt2[l] += 1
        q = add_stage(units, breads)
        done = [l for l in range(3) if cnt2[l] == 9 and not any(l in v for v in epi2_after.values())]
        if done:
            epi2_after[q] = done
    assert all(v == 9 for v in cnt2.values())
    NQ = len(stages)
    hown_w = {}
    for q, (pi, lines) in epi_after.items():
        for l in lines:
            hown_w[l] = q

    free_at = {s: -1 for s in range(1, 20)}
    INF = 10 ** 6
    events = [(blocks[nm]["need"], 1, k, nm) for k, nm in enumerate(order)]
    for l, qw in hown_w.items():
        events.append((qw - cfg.hres, 0, l, f"H0_{l}"))
    events.sort()
    for ev in events:
        b = blocks[ev[3]]
        if b["kind"] == "X":
            cand = [16, 17, 18, 19]
        elif b["kind"] in ("W1", "W2") and b["need"] < cfg.xfree:
            cand = list(range(1, 16))
        else:
            cand = list(range(1, 20))
        s = min(cand, key=lambda s: (free_at[s], s))
        assert free_at[s] < INF
        b["slot"] = s
        b["free"] = free_at[s]
        if b["kind"] == "Hown":
            free_at[s] = INF
        else:
            assert b["free"] < b["need"], (b, )
            free_at[s] = b["last"]
    for l, qw in hown_w.items():
        b = blocks[f"H0_{l}"]
        if b["free"] >= 0:
            ok = any(o["kind"] != "Hown" and o["need"] <= qw and o["free"] >= b["free"] for o in blocks.values())
            assert ok, ("own-H slot not provably free", b)
    if cfg.verbose:
        for ev in events:
            b = blocks[ev[3]]
            print(b["name"], "slot", b["slot"], "free", b["free"], "need", b["need"], "last", b["last"], file=sys.stderr)

    sX, sW1, sB1, sW2, sB2, sOUT, sDBG, sWS = 16, 18, 20, 22, 24, 26, 28, 30
    sJ, sR, sMT, sI, sWV, sWK = 32, 33, 34, 35, 36, 37
    SRD0, SRD1, SRD2 = 40, 44, 48
    sT0, sT1, sT2, sT3, sT4, sT5 = 52, 53, 54, 55, 56, 57
    sCNT, sLC = 58, 3
    sTS = 64
    tsn = [0]

    def stamp():
        if TS:
            k = tsn[0]
            assert k < 16
            A(f"s_memtime s[{sTS+2*k}:{sTS+2*k+1}]")
            tsn[0] += 1

    def srd(d, p, nbytes):
        A(f"s_mov_b32 s{d}, s{p}")
        A(f"s_mov_b32 s{d+1}, s{p+1}")
        A(f"s_mov_b32 s{d+2}, {nbytes}")
        A(f"s_mov_b32 s{d+3}, 0x00020000")

    def stamp_flush():
        if not TS:
            return
        n = tsn[0]
        A("s_waitcnt lgkmcnt(0)")
        srd(SRD2, sWS, 0x10000000)
        A(f"s_lshl_b32 s{sT0}, s2, 9")
        A(f"s_lshl_b32 s{sT1}, s{sWV}, 6")
        A(f"s_add_u32 s{sT0}, s{sT0}, s{sT1}")
        A(f"s_add_u32 s{sT0}, s{sT0}, {WS_TS}")
        A(f"v_mov_b32 v2, s{sT0}")
        A("s_mov_b64 exec, 1")
        for k in range(n):
            A(f"v_mov_b32 v3, s{sTS+2*k}")
            A(f"buffer_store_dword v3, v2, s[{SRD2}:{SRD2+3}], 0 offen offset:{4*k}")
        A("s_mov_b64 exec, -1")

    def gspin(load, cmp_instr):
        k = A.uid()
        A(f"s_mov_b32 s{sCNT}, 0")
        A.label(f"L_g{k}")
        A(load)
        A(f"s_add_u32 s{sCNT}, s{sCNT}, 1")
        A("s_waitcnt vmcnt(0)")
        A(cmp_instr)
        A(f"s_cmp_gt_u32 s{sCNT}, {SPIN_MAX}")
        A(f"s_cbranch_scc1 L_gd{k}")
        A(f"s_cbranch_vccnz L_g{k}")
        A.label(f"L_gd{k}")

    def lspin4(vz, vf, off, val, sleep=0):
        k = A.uid()
        A.label(f"L_l{k}")
        A(f"ds_read_b128 v[{vf}:{vf+3}], v{vz} offset:{off}")
        A(f"s_add_u32 s{sLC}, s{sLC}, 1")
        A("s_waitcnt lgkmcnt(0)")
        A(f"v_min3_u32 v{vf}, v{vf}, v{vf+1}, v{vf+2}")
        A(f"v_min_u32 v{vf}, v{vf}, v{vf+3}")
        A(f"v_cmp_gt_u32 vcc, {val}, v{vf}")
        A(f"s_cmp_gt_u32 s{sLC}, {LSPIN_MAX}")
        A(f"s_cbranch_scc1 L_ld{k}")
        A(f"s_cbranch_vccnz L_l{k}")
        A.label(f"L_ld{k}")

    A("s_cmp_ge_u32 s2, 256")
    A("s_cbranch_scc1 L_end")
    A("s_load_dwordx16 s[16:31], s[0:1], 0")
    if TS:
        A("s_memrealtime s[96:97]")
    stamp()
    A("v_and_b32 v1, 63, v0")
    A("v_lshrrev_b32 v2, 6, v0")
    A(f"s_and_b32 s{sJ}, s2, 7")
    A(f"v_readfirstlane_b32 s{sWV}, v2")
    A(f"s_lshr_b32 s{sR}, s2, 3")
    A(f"s_mov_b32 s{sLC}, 0")
    A(f"s_cmp_lt_u32 s{sR}, 8")
    A("s_cbranch_scc1 L_helper")
    A(f"s_sub_u32 s{sR}, s{sR}, 8")
    A(f"s_mul_i32 s{sMT}, s{sR}, 21846")
    A(f"s_lshr_b32 s{sMT}, s{sMT}, 16")
    A(f"s_mul_i32 s{sT0}, s{sMT}, 3")
    A(f"s_sub_u32 s{sI}, s{sR}, s{sT0}")
    A(f"s_mul_i32 s{sWK}, s{sJ}, 24")
    A(f"s_add_u32 s{sWK}, s{sWK}, s{sR}")
    A(f"s_cmp_lt_u32 s{sWV}, 4")
    A("s_cbranch_scc1 L_compute")
    A(f"s_cmp_eq_u32 s{sWV}, 6")
    A("s_cbranch_scc1 L_xh")
    A(f"s_cmp_eq_u32 s{sWV}, 7")
    A("s_cbranch_scc1 L_pub")
    ts_base = tsn[0]

    def loader_stream(kinds, per_block, issue_fn, progoff, pre_issue=None):
        mine = [blocks[nm] for nm in order if blocks[nm]["kind"] in kinds]
        outstanding, pend = [], list(mine)
        known_free = [-1]

        signalled = [0]

        def signal(val):
            if val > signalled[0]:
                signalled[0] = val
                A(f"v_mov_b32 v14, {val}")
                A(f"ds_write_b32 v15, v14 offset:{progoff}")

        def issue_upto(fq, q):
            while pend and pend[0]["free"] <= fq:
                b = pend.pop(0)
                if pre_issue is not None and pre_issue(b, "blocks"):
                    if outstanding:
                        A("s_waitcnt vmcnt(0)")
                        outstanding.clear()
                        signal(b["need"])
                    pre_issue(b, "do")
                if b["free"] > known_free[0]:
                    lspin4(13, 20, L_CONS, b["free"] + 1)
                    known_free[0] = b["free"]
                if (len(outstanding) + 1) * per_block > 63:
                    keep = 63 // per_block - 1
                    A(f"s_waitcnt vmcnt({keep*per_block})")
                    del outstanding[:len(outstanding) - keep]
                issue_fn(b)
                outstanding.append(b["name"])

        issue_upto(-1, -1)
        A("s_barrier")
        for q in range(NQ):
            assert not any(b["need"] <= q for b in pend), (q, pend[0])
            if any(b["need"] == q for b in mine):
                need = [i for i, nm in enumerate(outstanding) if blocks[nm]["need"] <= q]
                if need:
                    idx = max(need)
                    A(f"s_waitcnt vmcnt({(len(outstanding)-1-idx)*per_block})")
                    del outstanding[:idx + 1]
                signal(q + 1)
                if q in cfg.tsq:
                    stamp()
            issue_upto(q - 1, q)
        assert not pend

    A.c("---- weight loaders (waves 4,5)")
    sHW = sT5
    A(f"s_sub_u32 s{sHW}, s{sWV}, 4")
    A("v_lshrrev_b32 v2, 3, v1")
    A("v_and_b32 v3, 7, v1")
    A("v_bfe_u32 v4, v1, 4, 1")
    A("v_lshlrev_b32 v4, 2, v4")
    A("v_xor_b32 v3, v3, v4")
    A("v_lshlrev_b32 v3, 4, v3")
    A("v_lshrrev_b32 v4, 2, v2")
    A("v_and_b32 v5, 3, v2")
    A("v_lshl_add_u32 v4, v4, 3, v5")
    A(f"s_lshl_b32 s{sT0}, s{sHW}, 5")
    A(f"v_add_u32 v4, s{sT0}, v4")
    A("v_mul_u32_u24 v4, 9216, v4")
    A("v_add_u32 v4, v4, v3")
    for c in range(1, 4):
        A(f"v_add_u32 v{4+c}, {(16*(c>>1)+4*(c&1))*9216 - 1024*c}, v4")
    sLW, sC1 = sT4, 38
    A(f"s_lshl_b32 s{sLW}, s{sHW}, 12")
    A(f"s_mul_i32 s{sC1}, s{sJ}, 1152")
    A(f"s_mul_i32 s{sT1}, s{sI}, 384")
    A(f"s_add_u32 s{sC1}, s{sC1}, s{sT1}")
    A("s_waitcnt lgkmcnt(0)")
    srd(SRD0, sW1, 5308416)
    sV = [62, 63, 59]
    late_setup = [False]

    def w2_setup():
        A(f"s_lshl_b32 s{sT0}, s{sHW}, 5")
        A(f"v_add_u32 v8, s{sT0}, v2")
        A("v_mul_u32_u24 v8, 1152, v8")
        A("v_add_u32 v8, v8, v3")
        for c in range(1, 4):
            A(f"v_add_u32 v{8+c}, {8*c*1152 - 1024*c}, v8")
        A(f"s_mul_i32 s39, s{sJ}, {576*1152}")
        A(f"s_mul_i32 s{sT0}, s{sI}, 384")
        A(f"s_add_u32 s39, s39, s{sT0}")
        for d in range(3):
            A(f"s_add_u32 s{sT1}, s{sI}, {d}")
            A(f"s_cmp_ge_u32 s{sT1}, 3")
            A(f"s_cselect_b32 s{sT2}, 3, 0")
            A(f"s_sub_u32 s{sT1}, s{sT1}, s{sT2}")
            A(f"s_mul_i32 s{sT1}, s{sT1}, {192*1152}")
            A(f"s_add_u32 s{sV[d]}, s39, s{sT1}")
        srd(SRD1, sW2, 5308416)
        A("v_mov_b32 v13, 0")
        A("v_lshlrev_b32 v15, 4, v1")
        A("v_add_u32 v15, 0x1000, v15")
        A("v_cmp_eq_u32 vcc, 0, v1")
        A(f"s_lshl_b32 s{sT0}, s{sHW}, 2")
        A("s_nop 0")
        A("v_cndmask_b32 v15, v15, v13, vcc")
        A(f"v_add_u32 v15, s{sT0}, v15")

    wcount = [0]

    def issue_w(b):
        A(f"s_add_u32 m0, s{sLW}, {b['slot']*8192}")
        if b["kind"] == "W1":
            A(f"s_add_u32 s{sT0}, s{sC1}, {64*b['t']*9216 + 128*b['l']}")
            vb, sr = 4, SRD0
        else:
            A(f"s_add_u32 s{sT0}, s{sV[b['d']]}, {64*b['lk']*1152 + 128*b['l']}")
            vb, sr = 8, SRD1
        for c in range(4):
            A(f"buffer_load_dwordx4 v{vb+c}, s[{sr}:{sr+3}], s{sT0} offen offset:{1024*c} lds")
        wcount[0] += 1
        if wcount[0] == 6:
            w2_setup()

    loader_stream(("W1", "W2"), 4, issue_w, L_PROG)
    A("s_branch L_reduce")
    ts_w = tsn[0]

    A.label("L_xh")
    tsn[0] = ts_base
    A("v_lshrrev_b32 v2, 3, v1")
    A("v_and_b32 v3, 7, v1")
    A("v_lshrrev_b32 v4, 4, v1")
    A("v_xor_b32 v3, v3, v4")
    A("v_lshlrev_b32 v3, 4, v3")
    A("v_mul_u32_u24 v4, 1152, v2")
    A("v_add_u32 v8, v4, v3")
    A("v_xor_b32 v5, 64, v8")
    A(f"v_add_u32 v9, {8*1152 - 1024}, v5")
    A(f"v_add_u32 v10, {16*1152 - 2048}, v8")
    A(f"v_add_u32 v11, {24*1152 - 3072}, v5")
    sXB = 38
    A(f"s_mul_i32 s{sXB}, s{sMT}, {64*1152}")
    A("s_waitcnt lgkmcnt(0)")
    srd(SRD0, sX, 589824)
    sH = [0, 62, 63]
    sF = [0, 59, 39]

    def xh_setup():
        A("v_lshlrev_b32 v12, 4, v1")
        A(f"s_sub_u32 s{sT0}, s{sWK}, s{sI}")
        for d in (1, 2):
            A(f"s_add_u32 s{sT1}, s{sI}, {d}")
            A(f"s_cmp_ge_u32 s{sT1}, 3")
            A(f"s_cselect_b32 s{sT2}, 3, 0")
            A(f"s_sub_u32 s{sT1}, s{sT1}, s{sT2}")
            A(f"s_add_u32 s{sT1}, s{sT1}, s{sT0}")
            A(f"s_mul_i32 s{sH[d]}, s{sT1}, 24576")
            A(f"s_lshl_b32 s{sF[d]}, s{sT1}, 9")
            A(f"s_add_u32 s{sF[d]}, s{sF[d]}, {WS_FL}")
        A("v_mov_b32 v13, 0")
        srd(SRD1, sWS, 0x10000000)
        srd(SRD2, sDBG, 256)
        A("v_add_u32 v15, 0x1000, v12")
        A("v_cmp_eq_u32 vcc, 0, v1")
        A(f"v_mov_b32 v16, s{sF[1]}")
        A(f"v_mov_b32 v17, s{sF[2]}")
        A("v_cndmask_b32 v15, v15, v13, vcc")
        A("v_cndmask_b32 v16, v16, v17, vcc")

    go1 = [False]
    seen = set()
    xcount = [0]

    def pre_xh(b, what):
        if b["kind"] == "X":
            return False
        key = pass_of_line[b["lk"]]
        if what == "blocks":
            return key not in seen
        seen.add(key)
        if not go1[0]:
            go1[0] = True
            A(f"s_lshl_b32 s{sT3}, s{sJ}, 2")
            gspin(f"buffer_load_dword v14, v13, s[{SRD2}:{SRD2+3}], s{sT3} offen sc1", "v_cmp_eq_u32 vcc, 0, v14")
        gspin(f"buffer_load_dword v14, v16, s[{SRD1}:{SRD1+3}], 0 offen offset:{128*key} sc1", "v_cmp_ne_u32 vcc, 1, v14")
        stamp()
        return True

    def issue_xh(b):
        for h in range(2):
            A(f"s_mov_b32 m0, {b['slot']*8192 + 4096*h}")
            if b["kind"] == "X":
                A(f"s_add_u32 s{sT0}, s{sXB}, {128*b['t'] + 32*1152*h}")
                for c in range(4):
                    A(f"buffer_load_dwordx4 v{8+c}, s[{SRD0}:{SRD0+3}], s{sT0} offen offset:{1024*c} lds")
            else:
                A(f"s_add_u32 s{sT0}, s{sH[b['d']]}, {WS_H + 8192*b['lk'] + 4096*h}")
                for c in range(4):
                    A(f"buffer_load_dwordx4 v12, s[{SRD1}:{SRD1+3}], s{sT0} offen offset:{1024*c} sc1 lds")
        xcount[0] += 1
        if xcount[0] == 4:
            xh_setup()

    loader_stream(("X", "H"), 8, issue_xh, L_PROG + 8, pre_xh)
    A("s_branch L_reduce")
    ts_xh = tsn[0]

    A.label("L_pub")
    tsn[0] = ts_base
    A("v_lshlrev_b32 v12, 4, v1")
    A("v_mov_b32 v4, 0")
    A("v_mov_b32 v5, 0")
    A("v_mov_b32 v6, 0")
    A("v_mov_b32 v7, 0")
    A("v_mov_b32 v13, 0")
    A("ds_write_b128 v12, v[4:7]")
    A("ds_write_b128 v12, v[4:7] offset:1024")
    A("v_add_u32 v10, 0x10000, v12")
    A("v_add_u32 v11, 0x20000, v12")
    A("v_mov_b32 v15, 1")
    sHP, sFP = 38, 39
    A(f"s_mul_i32 s{sHP}, s{sWK}, 24576")
    A(f"s_lshl_b32 s{sFP}, s{sWK}, 9")
    A(f"s_add_u32 s{sFP}, s{sFP}, {WS_FL}")
    A("s_waitcnt lgkmcnt(0)")
    A("s_barrier")
    srd(SRD1, sWS, 0x10000000)
    srd(SRD2, sDBG, 256)
    lspin4(13, 20, L_CONS, cfg.go_at)
    A(f"s_lshl_b32 s{sT3}, s{sJ}, 2")
    gspin(f"buffer_load_dword v14, v13, s[{SRD2}:{SRD2+3}], s{sT3} offen sc1", "v_cmp_eq_u32 vcc, 0, v14")
    stamp()
    for pi, ls in enumerate(passes):
        lspin4(13, 20, L_HD, pi + 1)
        stamp()
        for x, l in enumerate(ls):
            addr = blocks[f"H0_{l}"]["slot"] * 8192
            va = [12, 10, 11][addr >> 16]
            for c in range(8):
                r = 32 + 32 * x + 4 * c
                A(f"ds_read_b128 v[{r}:{r+3}], v{va} offset:{(addr & 0xffff) + 1024*c}")
            for c in range(8):
                r = 32 + 32 * x + 4 * c
                A(f"s_waitcnt lgkmcnt({7-c})")
                if c % 4 == 0:
                    A(f"s_add_u32 s{sT0}, s{sHP}, {WS_H + 8192*l + 1024*c}")
                A(f"buffer_store_dwordx4 v[{r}:{r+3}], v12, s[{SRD1}:{SRD1+3}], s{sT0} offen offset:{1024*(c%4)} sc1")
        A("s_waitcnt vmcnt(0)")
        A("s_mov_b64 exec, 1")
        A(f"buffer_store_dword v15, v13, s[{SRD1}:{SRD1+3}], s{sFP} offen offset:{128*pi} sc1")
        A("s_mov_b64 exec, -1")
        stamp()
    A(f"s_lshl_b32 s{sT3}, s{sMT}, 2")
    A(f"s_add_u32 s{sT3}, s{sT3}, 32")
    gspin(f"buffer_load_dword v14, v13, s[{SRD2}:{SRD2+3}], s{sT3} offen sc1", "v_cmp_ne_u32 vcc, 8, v14")
    A(f"v_mov_b32 v14, 64")
    A("s_mov_b64 exec, 1")
    A(f"ds_write_b32 v13, v14 offset:{L_PROG+12}")
    A("s_mov_b64 exec, -1")
    stamp()
    stamp_flush()
    A("s_branch L_end")

    A.label("L_reduce")
    tsn[0] = max(ts_w, ts_xh)
    srd(SRD1, sWS, 0x10000000)
    sC = sT4
    A(f"s_sub_u32 s{sC}, s{sWV}, 4")
    A(f"s_mul_i32 s{sT0}, s{sWK}, {8*3072}")
    A(f"s_lshl_b32 s{sT1}, s{sC}, 10")
    A(f"s_add_u32 s{sT0}, s{sT0}, s{sT1}")
    A(f"s_add_u32 s{sT0}, s{sT0}, {WS_IN}")
    A("v_lshlrev_b32 v2, 4, v1")
    if cfg.rmap == "A":
        A(f"s_and_b32 s{sT1}, s{sJ}, 1")
        A(f"s_mul_i32 s{sT1}, s{sT1}, 3")
        A(f"s_add_u32 s{sT1}, s{sT1}, s{sC}")
        A(f"s_lshr_b32 s{sT2}, s{sT1}, 1")
        A(f"s_lshl_b32 s{sT2}, s{sT2}, 6")
        A(f"s_and_b32 s{sT1}, s{sT1}, 1")
        A(f"s_lshl_b32 s{sT1}, s{sT1}, 4")
    else:
        A(f"s_lshl_b32 s{sT2}, s{sC}, 6")
        A(f"s_and_b32 s{sT1}, s{sJ}, 1")
        A(f"s_lshl_b32 s{sT1}, s{sT1}, 4")
    A(f"s_add_u32 s{sT2}, s{sT2}, s{sT1}")
    A(f"s_lshr_b32 s{sT1}, s{sJ}, 2")
    A(f"s_lshl_b32 s{sT1}, s{sT1}, 5")
    A(f"s_add_u32 s{sT2}, s{sT2}, s{sT1}")
    A(f"s_mul_i32 s{sT1}, s{sI}, 192")
    A(f"s_add_u32 s{sT2}, s{sT2}, s{sT1}")
    A(f"s_lshl_b32 s{sT2}, s{sT2}, 1")
    A("v_lshrrev_b32 v3, 5, v1")
    A("v_lshlrev_b32 v3, 3, v3")
    srd(SRD0, sB2, 1152)
    A(f"buffer_load_dwordx2 v[4:5], v3, s[{SRD0}:{SRD0+3}], s{sT2} offen")
    A(f"buffer_load_dwordx2 v[6:7], v3, s[{SRD0}:{SRD0+3}], s{sT2} offen offset:16")
    A(f"s_bfe_u32 s{sT1}, s{sJ}, 0x10001")
    A(f"s_lshl_b32 s{sT1}, s{sT1}, 5")
    A(f"s_lshl_b32 s{sT3}, s{sMT}, 6")
    A(f"s_add_u32 s{sT1}, s{sT1}, s{sT3}")
    A(f"s_mul_i32 s{sT1}, s{sT1}, 1152")
    A(f"s_add_u32 s{sT2}, s{sT2}, s{sT1}")
    A("v_and_b32 v8, 31, v1")
    A("v_mul_u32_u24 v8, 1152, v8")
    A("v_add_u32 v8, v8, v3")
    k = A.uid()
    A.label(f"L_l{k}")
    A(f"ds_read_b32 v20, v13 offset:{L_PROG+12}")
    A(f"s_add_u32 s{sLC}, s{sLC}, 1")
    A("s_waitcnt lgkmcnt(0)")
    A("v_cmp_eq_u32 vcc, 0, v20")
    A(f"s_cmp_gt_u32 s{sLC}, {LSPIN_MAX}")
    A(f"s_cbranch_scc1 L_ld{k}")
    A(f"s_cbranch_vccnz L_l{k}")
    A.label(f"L_ld{k}")
    A("s_waitcnt vmcnt(0)")
    for k in range(4):
        A(f"v_lshlrev_b32 v{24+2*k}, 16, v{4+k}")
        A(f"v_and_b32 v{25+2*k}, 0xffff0000, v{4+k}")
    sP = sT5
    A(f"s_mov_b32 s{sP}, 0xff")
    A(f"s_mov_b32 s{sCNT}, 0")
    stamp()
    A.label("L_rpoll")
    for s in range(8):
        A(f"s_bitcmp0_b32 s{sP}, {s}")
        A(f"s_cbranch_scc1 L_rl{s}")
        A(f"s_add_u32 s{sT1}, s{sT0}, {3072*s}")
        A(f"buffer_load_dwordx4 v[{32+4*s}:{35+4*s}], v2, s[{SRD1}:{SRD1+3}], s{sT1} offen sc1")
        A.label(f"L_rl{s}")
    A(f"s_add_u32 s{sCNT}, s{sCNT}, 1")
    A("s_waitcnt vmcnt(0)")
    for s in range(8):
        r = 32 + 4 * s
        A(f"s_bitcmp0_b32 s{sP}, {s}")
        A(f"s_cbranch_scc1 L_ra{s}")
        A(f"v_max3_u32 v9, v{r}, v{r+1}, v{r+2}")
        A(f"v_max_u32 v9, v9, v{r+3}")
        A("v_cmp_eq_u32 vcc, -1, v9")
        A(f"s_cbranch_vccnz L_ra{s}")
        A(f"s_bitset0_b32 s{sP}, {s}")
        for k in range(4):
            A(f"v_lshlrev_b32 v10, 16, v{r+k}")
            A(f"v_and_b32 v11, 0xffff0000, v{r+k}")
            A(f"v_pk_add_f32 v[{24+2*k}:{25+2*k}], v[{24+2*k}:{25+2*k}], v[10:11]")
        A.label(f"L_ra{s}")
    A(f"s_cmp_gt_u32 s{sCNT}, {SPIN_MAX}")
    A("s_cbranch_scc1 L_rdone")
    A(f"s_cmp_lg_u32 s{sP}, 0")
    A("s_cbranch_scc1 L_rpoll")
    A.label("L_rdone")
    stamp()
    for k in range(4):
        A(f"v_cvt_pk_bf16_f32 v{24+k}, v{24+2*k}, v{25+2*k}")
    srd(SRD0, sOUT, 589824)
    A(f"buffer_store_dwordx2 v[24:25], v8, s[{SRD0}:{SRD0+3}], s{sT2} offen")
    A(f"buffer_store_dwordx2 v[26:27], v8, s[{SRD0}:{SRD0+3}], s{sT2} offen offset:16")
    if TS:
        A("s_waitcnt vmcnt(0)")
        stamp()
        A("s_memrealtime s[98:99]")
        A("s_waitcnt lgkmcnt(0)")
        A(f"s_mov_b32 s{sTS+26}, s96"); A(f"s_mov_b32 s{sTS+28}, s98"); A(f"s_mov_b32 s{sTS+30}, s{sCNT}")
        assert tsn[0] <= 13
        tsn[0] = 16
        stamp_flush()
    A("s_branch L_end")

    A.label("L_compute")
    tsn[0] = ts_base
    vACC, vAB, vXB, vT = 16, 64, 96, 240
    nAB = D + 1
    vA, vBX, vBH, vHW = [2, 3, 4], [5, 6, 7, 8], [9, 10, 11], [12, 13, 14]
    vZ, vCW, vF, vFV = 15, vT + 8, vT, vT + 9
    assert vAB + 4 * nAB <= vXB
    sA, sBq = sT4, sT5
    A(f"s_and_b32 s{sA}, s{sWV}, 1")
    A(f"s_lshr_b32 s{sBq}, s{sWV}, 1")
    A(f"v_lshrrev_b32 v{vT}, 5, v1")
    A(f"s_mul_i32 s{sT0}, s{sJ}, 1152")
    A(f"s_mul_i32 s{sT1}, s{sI}, 384")
    A(f"s_add_u32 s{sT0}, s{sT0}, s{sT1}")
    A(f"s_lshl_b32 s{sT1}, s{sBq}, 6")
    A(f"s_add_u32 s{sT0}, s{sT0}, s{sT1}")
    A(f"v_lshlrev_b32 v{vT+4}, 3, v{vT}")
    A("s_waitcnt lgkmcnt(0)")
    srd(SRD0, sB1, 9216)
    for l in range(3):
        for g in range(4):
            r = vXB + 2 * (4 * l + g)
            A(f"buffer_load_dwordx2 v[{r}:{r+1}], v{vT+4}, s[{SRD0}:{SRD0+3}], s{sT0} offen offset:{128*l+16*g}")
    srd(SRD1, sWS, 0x10000000)
    A(f"v_bfe_u32 v{vT+1}, v1, 2, 2")
    A(f"v_lshl_add_u32 v{vT+2}, v{vT}, 2, v{vT+1}")
    A(f"v_lshlrev_b32 v{vT+2}, 7, v{vT+2}")
    A(f"v_bfe_u32 v{vT+3}, v1, 3, 1")
    A(f"v_xor_b32 v{vT+3}, s{sBq}, v{vT+3}")
    A(f"v_lshl_add_u32 v{vT+2}, v{vT+3}, 6, v{vT+2}")
    A(f"v_bfe_u32 v{vT+3}, v1, 4, 1")
    A(f"v_lshl_add_u32 v{vT+2}, v{vT+3}, 5, v{vT+2}")
    A(f"v_and_b32 v{vT+3}, 3, v1")
    A(f"v_lshl_add_u32 v{vA[0]}, v{vT+3}, 3, v{vT+2}")
    A(f"v_add_u32 v{vA[1]}, 0x10000, v{vA[0]}")
    A(f"v_add_u32 v{vA[2]}, 0x20000, v{vA[0]}")
    A(f"v_and_b32 v{vT+1}, 31, v1")
    A(f"v_bfe_u32 v{vT+2}, v1, 1, 3")
    A(f"v_xor_b32 v{vT+2}, v{vT}, v{vT+2}")
    A(f"v_lshlrev_b32 v{vT+2}, 4, v{vT+2}")
    A(f"v_lshl_add_u32 v{vT+2}, v{vT+1}, 7, v{vT+2}")
    A(f"s_lshl_b32 s{sT0}, s{sA}, 12")
    A(f"s_add_u32 s{sT1}, s{sT0}, 0x20000")
    A(f"v_add_u32 v{vBX[0]}, s{sT1}, v{vT+2}")
    for sp in range(1, 4):
        A(f"v_xor_b32 v{vBX[sp]}, {32*sp}, v{vBX[0]}")
    A(f"v_lshl_add_u32 v{vBH[0]}, v1, 4, s{sT0}")
    A(f"v_add_u32 v{vBH[1]}, 0x10000, v{vBH[0]}")
    A(f"v_add_u32 v{vBH[2]}, 0x20000, v{vBH[0]}")
    A(f"s_lshl_b32 s{sT1}, s{sBq}, 11")
    for k in range(3):
        A(f"v_add_u32 v{vHW[k]}, s{sT1}, v{vBH[k]}")
    A(f"v_mov_b32 v{vZ}, 0")
    A(f"s_lshl_b32 s{sT1}, s{sWV}, 2")
    A(f"v_lshl_add_u32 v{vCW}, v1, 4, s{sT1}")
    sI0, sI1 = 38, 39
    if cfg.rmap == "A":
        A(f"s_mul_i32 s{sI0}, s{sWV}, 48")
    else:
        A(f"s_mul_i32 s{sI0}, s{sWV}, 48")
    A(f"s_add_u32 s{sI0}, s{sI0}, s{sR}")
    A(f"s_lshl_b32 s{sI0}, s{sI0}, 3")
    A(f"s_add_u32 s{sI0}, s{sI0}, s{sJ}")
    A(f"s_mul_i32 s{sI0}, s{sI0}, 3072")
    A(f"s_add_u32 s{sI0}, s{sI0}, {WS_IN}")
    A(f"s_add_u32 s{sI1}, s{sI0}, {24*8*3072}")
    A(f"v_lshlrev_b32 v{vT+10}, 4, v1")
    A(f"s_mov_b32 s{sT2}, 0xfffffffe")
    A("s_waitcnt vmcnt(0)")
    for l in range(3):
        for g in range(4):
            r = vXB + 2 * (4 * l + g)
            d = vACC + 16 * l + 4 * g
            A(f"v_lshlrev_b32 v{d}, 16, v{r}")
            A(f"v_and_b32 v{d+1}, 0xffff0000, v{r}")
            A(f"v_lshlrev_b32 v{d+2}, 16, v{r+1}")
            A(f"v_and_b32 v{d+3}, 0xffff0000, v{r+1}")
    A("s_barrier")
    stamp()

    items = []
    for st in stages:
        bykb = {}
        for u in st["units"]:
            bykb.setdefault(u[2], []).append(u)
        for kb, us in bykb.items():
            for sp in range(4):
                for (t, wb, _kb, fst) in us:
                    items.append(dict(q=st["q"], tile=t, wb=wb, kb=kb, sp=sp, first=(fst and sp == 0)))
    NI = len(items)
    first_item = {}
    last_item = {}
    for n, it in enumerate(items):
        first_item.setdefault(it["q"], n)
        last_item[it["q"]] = n
    bread_of = {}
    for st in stages:
        for (bb, kb) in st["breads"]:
            bread_of[(st["q"], kb)] = bb

    lg = []

    def ds_issue(instr, tag):
        cap = 11 if TS else 15
        if len(lg) >= cap:
            A(f"s_waitcnt lgkmcnt({cap-2})")
            del lg[:len(lg) - (cap - 2)]
        A(instr)
        lg.append(tag)

    def ds_need(tags):
        idx = max([i for i, t in enumerate(lg) if t in tags], default=-1)
        if idx >= 0:
            A(f"s_waitcnt lgkmcnt({len(lg) - 1 - idx})")
            del lg[:idx + 1]

    def reqs(q):
        st = stages[q]
        words = []
        if any(blocks[u[1]]["need"] == q for u in st["units"]):
            words += [0, 1]
        if any(blocks[bb]["kind"] != "Hown" for bb, _ in st["breads"]):
            words.append(2)
        if q == min(epi2_after):
            words.append(3)
        hd = max([pass_of_line[blocks[bb]["lk"]] + 1 for bb, _ in st["breads"] if blocks[bb]["kind"] == "Hown"], default=0)
        return words, hd

    def flag_reads(q, track):
        words, hd = reqs(q)
        ins = []
        if words:
            ins.append(f"ds_read_b128 v[{vF}:{vF+3}], v{vZ} offset:{L_PROG}")
        if hd:
            ins.append(f"ds_read_b128 v[{vF+4}:{vF+7}], v{vZ} offset:{L_HD}")
        for x in ins:
            if track:
                ds_issue(x, ("F", q))
            else:
                A(x)

    def flag_eval(q):
        words, hd = reqs(q)
        w = [vF + k for k in words]
        if len(w) >= 3:
            A(f"v_min3_u32 v{vF}, v{w[0]}, v{w[1]}, v{w[2]}")
            if len(w) == 4:
                A(f"v_min_u32 v{vF}, v{vF}, v{w[3]}")
            m = vF
        elif len(w) == 2:
            A(f"v_min_u32 v{vF}, v{w[0]}, v{w[1]}")
            m = vF
        elif len(w) == 1:
            m = w[0]
        else:
            m = None
        if hd:
            A(f"v_min3_u32 v{vF+4}, v{vF+4}, v{vF+5}, v{vF+6}")
            A(f"v_min_u32 v{vF+4}, v{vF+4}, v{vF+7}")
            if m is not None:
                A(f"v_add_u32 v{vF+4}, {q+1-hd}, v{vF+4}")
                A(f"v_min_u32 v{vF}, v{m}, v{vF+4}")
                m = vF
            else:
                A(f"v_cmp_gt_u32 vcc, {hd}, v{vF+4}")
                return
        A(f"v_cmp_gt_u32 vcc, {q+1}, v{m}")

    checked = [-1]
    fissued = set()

    def check_stage(q):
        words, hd = reqs(q)
        if not words and not hd:
            return
        if q not in fissued:
            fissued.add(q)
            flag_reads(q, True)
        ds_need({("F", q)})
        flag_eval(q)
        k = A.uid()
        A(f"s_cbranch_vccz L_ok{k}")
        A.label(f"L_sp{k}")
        flag_reads(q, False)
        A(f"s_add_u32 s{sLC}, s{sLC}, 1")
        A("s_waitcnt lgkmcnt(0)")
        flag_eval(q)
        A(f"s_cmp_gt_u32 s{sLC}, {LSPIN_MAX}")
        A(f"s_cbranch_scc1 L_ok{k}")
        A(f"s_cbranch_vccnz L_sp{k}")
        A.label(f"L_ok{k}")

    bdone = set()

    def issue_reads(n):
        it = items[n]
        q = it["q"]
        if q > checked[0]:
            check_stage(q)
            checked[0] = q
            if q in cfg.tsq:
                stamp()
        key = (q, it["kb"])
        if key in bread_of and (key, it["sp"]) not in bdone:
            bdone.add((key, it["sp"]))
            bb = blocks[bread_of[key]]
            addr = bb["slot"] * 8192
            r = vXB + 16 * it["kb"] + 4 * it["sp"]
            if bb["kind"] == "X":
                assert addr >> 16 == 2
                ds_issue(f"ds_read_b128 v[{r}:{r+3}], v{vBX[it['sp']]} offset:{addr & 0xffff}", ("B", it["kb"], it["sp"]))
            else:
                ds_issue(f"ds_read_b128 v[{r}:{r+3}], v{vBH[addr >> 16]} offset:{(addr & 0xffff) + 1024*it['sp']}",
                         ("B", it["kb"], it["sp"]))
        wb = blocks[it["wb"]]
        addr = wb["slot"] * 8192 + 2048 * it["sp"]
        r = vAB + 4 * (n % nAB)
        ds_issue(f"ds_read_b64_tr_b16 v[{r}:{r+1}], v{vA[addr >> 16]} offset:{addr & 0xffff}", ("A", n))
        ds_issue(f"ds_read_b64_tr_b16 v[{r+2}:{r+3}], v{vA[addr >> 16]} offset:{(addr & 0xffff) + 1024}", ("A", n))
        if n == last_item[q] and any(b.get("free", -1) >= q and b["kind"] != "Hown" for b in blocks.values()) or \
           (n == last_item[q] and q + 1 == cfg.go_at):
            A(f"v_mov_b32 v{vFV}, {q+1}")
            ds_issue(f"ds_write_b32 v{vCW}, v{vFV} offset:{L_CONS}", "cw")
        if q + 1 < NQ and n == max(first_item[q], last_item[q] - cfg.chk) and (q + 1) not in fissued and (q + 1) != n_g1:
            w, h = reqs(q + 1)
            if w or h:
                fissued.add(q + 1)
                flag_reads(q + 1, True)

    def epi1_instrs(pi, lines):
        out = []
        for l in lines:
            a = vACC + 16 * l
            addr = blocks[f"H0_{l}"]["slot"] * 8192
            for half in range(2):
                base = a + 8 * half
                for k in range(8):
                    out.append(("v", f"v_max_f32 v{base+k}, 0, v{base+k}"))
                for k in range(0, 8, 2):
                    out.append(("v", f"v_pk_mul_f32 v[{base+k}:{base+k+1}], v[{base+k}:{base+k+1}], v[{base+k}:{base+k+1}]"))
                for k in range(4):
                    out.append(("v", f"v_cvt_pk_bf16_f32 v{base+k}, v{base+2*k}, v{base+2*k+1}"))
                out.append(("w", f"ds_write_b128 v{vHW[addr >> 16]}, v[{base}:{base+3}] offset:{(addr & 0xffff) + 1024*half}"))
        out.append(("v", f"v_mov_b32 v{vFV+2}, {pi+1}"))
        out.append(("w", f"ds_write_b32 v{vCW}, v{vFV+2} offset:{L_HD}"))
        return out

    def epi2_instrs(lines):
        out = []
        for l in lines:
            for u in range(2):
                idx6 = 2 * l + u
                base = vACC + 8 * idx6
                for k in range(4):
                    out.append(("v", f"v_cvt_pk_bf16_f32 v{base+k}, v{base+2*k}, v{base+2*k+1}"))
                for k in range(4):
                    out.append(("v", f"v_min_u32 v{base+k}, s{sT2}, v{base+k}"))
                if cfg.rmap == "A":
                    so, c = (sI0 if idx6 < 3 else sI1), idx6 % 3
                else:
                    so, c = (sI0 if u == 0 else sI1), l
                out.append(("v", f"buffer_store_dwordx4 v[{base}:{base+3}], v{vT+10}, s[{SRD1}:{SRD1+3}], s{so} offen offset:{1024*c} sc1"))
        return out

    fillers = []
    fill_start = 0
    fill_tiles = set()
    mfma_pos = {}
    fill_fresh = [False]

    def states_since(pos):
        c = 0
        for ln in A.L[pos + 1:]:
            t = ln.strip()
            if t.endswith(":") or t.startswith(";"):
                continue
            if t.startswith("s_cbranch") or t.startswith("s_branch"):
                return c + 1
            c += int(t.split()[1]) + 1 if t.startswith("s_nop") else 1
        return c

    def states_since2(pos):
        c = 0
        skip = None
        for ln in A.L[pos + 1:]:
            t = ln.strip()
            if skip:
                if t == skip + ":":
                    skip = None
                continue
            if t.endswith(":") or t.startswith(";"):
                continue
            c += int(t.split()[1]) + 1 if t.startswith("s_nop") else 1
            if t.startswith("s_cbranch_vccz L_ok"):
                skip = t.split()[1]
        return c

    def emit(kind, t):
        if fill_fresh[0]:
            fill_fresh[0] = False
            have = min(states_since2(mfma_pos[tl]) for tl in fill_tiles)
            if have < 12:
                A(f"s_nop {12 - have - 1}")
        if kind == "w":
            ds_issue(t, "hw")
        else:
            A(t)

    def flush_fillers(n_now):
        nonlocal fillers
        for (kind, t) in fillers:
            emit(kind, t)
        fillers = []
        fill_tiles.clear()

    nread = 0
    for n in range(NI):
        it = items[n]
        lim = min(NI - 1, n + D)
        while nread <= lim:
            nx = items[nread]
            w, h = reqs(nx["q"])
            if nx["q"] > checked[0] and h:
                produced = sum(1 for qq in epi_after if last_item[qq] < n) if not fillers else \
                    sum(1 for qq in epi_after if last_item[qq] < n) - 1
                if produced < h:
                    if nread > n:
                        break
                    flush_fillers(n)
            key = (nx["q"], nx["kb"])
            if key in bread_of and (key, nx["sp"]) not in bdone:
                if any(items[m]["kb"] == nx["kb"] and items[m]["sp"] == nx["sp"] for m in range(n, nread)):
                    break
            issue_reads(nread)
            nread += 1
        assert nread > n
        if it["tile"] in fill_tiles:
            flush_fillers(n)
            A("s_nop 1")
        ds_need({("A", n), ("B", it["kb"], it["sp"])})
        if it["first"]:
            ds_need({"hw"})
        ra = vAB + 4 * (n % nAB)
        rb = vXB + 16 * it["kb"] + 4 * it["sp"]
        acc = vACC + 16 * it["tile"]
        c = "0" if it["first"] else f"v[{acc}:{acc+15}]"
        A(f"v_mfma_f32_32x32x16_bf16 v[{acc}:{acc+15}], v[{ra}:{ra+3}], v[{rb}:{rb+3}], {c}")
        mfma_pos[it["tile"]] = len(A.L) - 1
        k = 0
        while fillers and k < cfg.fill and n >= fill_start:
            kind, t = fillers.pop(0)
            emit(kind, t)
            k += 1
        if not fillers:
            fill_tiles.clear()
        if n == last_item[it["q"]]:
            q = it["q"]
            new = []
            if q in epi_after:
                pi, lines = epi_after[q]
                new = epi1_instrs(pi, lines)
                tl = lines
            elif q in epi2_after:
                new = epi2_instrs(epi2_after[q])
                tl = epi2_after[q]
            if new:
                stamp()
                flush_fillers(n)
                fillers = new
                fill_tiles.update(tl)
                fill_fresh[0] = True
                fill_start = n + 3
    flush_fillers(NI - 1)
    stamp()
    if TS:
        A("s_waitcnt vmcnt(0)")
        stamp()
        stamp_flush()
    A("s_branch L_end")

    A.label("L_helper")
    A("s_waitcnt lgkmcnt(0)")
    srd(SRD1, sWS, 0x10000000)
    srd(SRD2, sDBG, 256)
    A("v_mov_b32 v13, 0")
    A("v_mov_b32 v15, 1")
    A(f"s_or_b32 s{sT0}, s{sR}, s{sWV}")
    A(f"s_cmp_lg_u32 s{sT0}, 0")
    A("s_cbranch_scc1 L_hclear")
    A("v_lshlrev_b32 v2, 7, v1")
    A(f"s_mul_i32 s{sT0}, s{sJ}, {24*512}")
    A(f"s_add_u32 s{sT0}, s{sT0}, {WS_FL}")
    A(f"s_add_u32 s{sT1}, s{sT0}, 4096")
    A(f"buffer_store_dword v13, v2, s[{SRD1}:{SRD1+3}], s{sT0} offen sc1")
    A(f"buffer_store_dword v13, v2, s[{SRD1}:{SRD1+3}], s{sT1} offen sc1")
    A("s_waitcnt vmcnt(0)")
    A(f"s_lshl_b32 s{sT3}, s{sJ}, 2")
    A("s_mov_b64 exec, 1")
    A(f"buffer_atomic_add v15, v13, s[{SRD2}:{SRD2+3}], s{sT3} offen sc1")
    A("s_mov_b64 exec, -1")
    A.label("L_hclear")
    for k in range(4, 8):
        A(f"v_mov_b32 v{k}, -1")
    A("v_lshlrev_b32 v2, 4, v1")
    A(f"s_mul_i32 s{sT0}, s{sJ}, 24")
    A(f"s_mul_i32 s{sT1}, s{sR}, 3")
    A(f"s_add_u32 s{sT0}, s{sT0}, s{sT1}")
    A(f"s_mul_i32 s{sT0}, s{sT0}, 24576")
    A(f"s_mul_i32 s{sT1}, s{sWV}, 9216")
    A(f"s_add_u32 s{sT0}, s{sT0}, s{sT1}")
    A(f"s_add_u32 s{sT0}, s{sT0}, {WS_IN}")
    for c in range(9):
        if c % 4 == 0 and c:
            A(f"s_add_u32 s{sT0}, s{sT0}, 4096")
        A(f"buffer_store_dwordx4 v[4:7], v2, s[{SRD1}:{SRD1+3}], s{sT0} offen offset:{1024*(c%4)} sc1")
    A("s_waitcnt vmcnt(0)")
    A("s_barrier")
    A(f"s_cmp_lg_u32 s{sWV}, 0")
    A("s_cbranch_scc1 L_end")
    A(f"s_lshl_b32 s{sT3}, s{sR}, 2")
    A(f"s_add_u32 s{sT3}, s{sT3}, 32")
    A("s_mov_b64 exec, 1")
    A(f"buffer_atomic_add v15, v13, s[{SRD2}:{SRD2+3}], s{sT3} offen sc1")
    A.label("L_end")

    hdr = f"""; Fused MLP (x@w1+b1 -> relu^2 -> @w2+b2), generated by a python script (work/gen2.py)
; @launch grid=(256,1,1) block=(512,1,1) lds=163840
.amdgcn_target "amdgcn-amd-amdhsa--gfx950"
.text
.globl {KN}
.p2align 8
.type {KN},@function
{KN}:
"""
    ftr = f"""
    s_endpgm
.section .rodata,"a"
.p2align 6
.amdhsa_kernel {KN}
  .amdhsa_next_free_vgpr 256
  .amdhsa_next_free_sgpr 102
  .amdhsa_accum_offset 256
  .amdhsa_group_segment_fixed_size 0
  .amdhsa_kernarg_size 64
  .amdhsa_user_sgpr_count 2
  .amdhsa_user_sgpr_kernarg_segment_ptr 1
  .amdhsa_system_sgpr_workgroup_id_x 1
.end_amdhsa_kernel
"""
    return hdr + A.text() + ftr


def parse_g2(s):
    out = []
    for stg in s.split(","):
        us = []
        for u in stg.split("+"):
            a, b = u.split(":")
            us.append((int(a[0]), int(a[1]), [int(c) for c in b]))
        out.append(us)
    return out


def main():
    ap = argparse.ArgumentParser()
    ap.add_argument("-o", default="k2.s")
    ap.add_argument("--ts", action="store_true")
    ap.add_argument("--passes", default="012")
    ap.add_argument("--depth", type=int, default=5)
    ap.add_argument("--fill", type=int, default=4)
    ap.add_argument("--chk", type=int, default=4)
    ap.add_argument("--grp1", type=int, default=3)
    ap.add_argument("--hres", type=float, default=3.5)
    ap.add_argument("--xfree", type=int, default=11)
    ap.add_argument("--go_at", type=int, default=3)
    ap.add_argument("--g2", default="")
    ap.add_argument("--rmap", default="B")
    ap.add_argument("--tsq", default="")
    ap.add_argument("--verbose", action="store_true")
    cfg = ap.parse_args()
    cfg.passes = [[int(c) for c in p] for p in cfg.passes.split(",")]
    if not cfg.g2:
        cfg.g2 = ",".join(f"{d}{l}:012" for d in range(3) for l in range(3))
    cfg.g2 = parse_g2(cfg.g2)
    cfg.tsq = [int(x) for x in cfg.tsq.split(",")] if cfg.tsq else []
    open(cfg.o, "w").write(build(cfg))


main()
```

```python
import sys, argparse

KN = "standalone__dense_activation_squared_relu__sampling_kernel"

WS_H = 0x0
WS_IN = 0x1000000
WS_FL = 0x1800000
WS_TS = 0x8000000
SPIN_MAX = 100000
LSPIN_MAX = 4000000
L_PROG = 0x0
L_CONS = 0x100
L_HD = 0x600


class Asm:
    def __init__(self):
        self.L = []
        self.n = 0

    def __call__(self, s):
        self.L.append("    " + s)

    def label(self, s):
        self.L.append(s + ":")

    def c(self, s):
        self.L.append("    ; " + s)

    def uid(self):
        self.n += 1
        return self.n

    def text(self):
        return "\n".join(self.L)


def build(cfg):
    A = Asm()
    TS = cfg.ts
    passes = cfg.passes
    D = cfg.depth

    stages, blocks, order = [], {}, []

    def blk(name, **kw):
        blocks[name] = dict(name=name, **kw)
        return name

    def add_stage(units, breads):
        q = len(stages)
        stages.append(dict(units=units, breads=breads, q=q))
        for (bb, _kb) in breads:
            b = blocks[bb]
            b["need"] = b["last"] = q
            if b["kind"] != "Hown":
                order.append(bb)
        for (_t, wb, _kb, _first) in units:
            b = blocks[wb]
            if "need" not in b:
                b["need"] = q
                order.append(wb)
            b["last"] = q
        return q

    epi_after = {}
    pass_of_line = {}
    for pi, lines in enumerate(passes):
        grp = 1 if (len(lines) > 1 or pi == 0) else cfg.grp1
        for t0 in range(0, 9, grp):
            units, breads = [], []
            for t in range(t0, t0 + grp):
                if pi == 0:
                    breads.append((blk(f"X{t}", kind="X", t=t), t))
                for l in lines:
                    units.append((l, blk(f"W{t}_{l}", kind="W1", t=t, l=l), t, False))
            q = add_stage(units, breads)
        epi_after[q] = (pi, list(lines))
        for l in lines:
            pass_of_line[l] = pi
    n_g1 = len(stages)
    kbidx = {}
    first = {0: True, 1: True, 2: True}
    cnt2 = {0: 0, 1: 0, 2: 0}
    epi2_after = {}
    for stg in cfg.g2:
        units, breads = [], []
        for (d, lk, lines) in stg:
            if (d, lk) not in kbidx:
                kbidx[(d, lk)] = len(kbidx)
                breads.append((blk(f"H{d}_{lk}", kind="Hown" if d == 0 else "H", d=d, lk=lk), kbidx[(d, lk)]))
            for l in lines:
                units.append((l, blk(f"V{d}_{lk}_{l}", kind="W2", d=d, lk=lk, l=l), kbidx[(d, lk)], first[l]))
                first[l] = False
                cnt2[l] += 1
        q = add_stage(units, breads)
        done = [l for l in range(3) if cnt2[l] == 9 and not any(l in v for v in epi2_after.values())]
        if done:
            epi2_after[q] = done
    assert all(v == 9 for v in cnt2.values())
    NQ = len(stages)
    hown_w = {}
    for q, (pi, lines) in epi_after.items():
        for l in lines:
            hown_w[l] = q

    free_at = {s: -1 for s in range(1, 20)}
    INF = 10 ** 6
    events = [(blocks[nm]["need"], 1, k, nm) for k, nm in enumerate(order)]
    for l, qw in hown_w.items():
        events.append((qw - cfg.hres, 0, l, f"H0_{l}"))
    events.sort()
    for ev in events:
        b = blocks[ev[3]]
        if b["kind"] == "X":
            cand = [16, 17, 18, 19]
        elif b["kind"] in ("W1", "W2") and b["need"] < cfg.xfree:
            cand = list(range(1, 16))
        else:
            cand = list(range(1, 20))
        s = min(cand, key=lambda s: (free_at[s], s))
        assert free_at[s] < INF
        b["slot"] = s
        b["free"] = free_at[s]
        if b["kind"] == "Hown":
            free_at[s] = INF
        else:
            assert b["free"] < b["need"], (b, )
            free_at[s] = b["last"]
    for l, qw in hown_w.items():
        b = blocks[f"H0_{l}"]
        if b["free"] >= 0:
            ok = any(o["kind"] != "Hown" and o["need"] <= qw and o["free"] >= b["free"] for o in blocks.values())
            assert ok, ("own-H slot not provably free", b)
    if cfg.verbose:
        for ev in events:
            b = blocks[ev[3]]
            print(b["name"], "slot", b["slot"], "free", b["free"], "need", b["need"], "last", b["last"], file=sys.stderr)

    sX, sW1, sB1, sW2, sB2, sOUT, sDBG, sWS = 16, 18, 20, 22, 24, 26, 28, 30
    sJ, sR, sMT, sI, sWV, sWK = 32, 33, 34, 35, 36, 37
    SRD0, SRD1, SRD2 = 40, 44, 48
    sT0, sT1, sT2, sT3, sT4, sT5 = 52, 53, 54, 55, 56, 57
    sCNT, sLC = 58, 3
    sTS = 64
    tsn = [0]

    def stamp():
        if TS:
            k = tsn[0]
            assert k < 16
            A(f"s_memtime s[{sTS+2*k}:{sTS+2*k+1}]")
            tsn[0] += 1

    def srd(d, p, nbytes):
        A(f"s_mov_b32 s{d}, s{p}")
        A(f"s_mov_b32 s{d+1}, s{p+1}")
        A(f"s_mov_b32 s{d+2}, {nbytes}")
        A(f"s_mov_b32 s{d+3}, 0x00020000")

    def stamp_flush():
        if not TS:
            return
        n = tsn[0]
        A("s_waitcnt lgkmcnt(0)")
        srd(SRD2, sWS, 0x10000000)
        A(f"s_lshl_b32 s{sT0}, s2, 9")
        A(f"s_lshl_b32 s{sT1}, s{sWV}, 6")
        A(f"s_add_u32 s{sT0}, s{sT0}, s{sT1}")
        A(f"s_add_u32 s{sT0}, s{sT0}, {WS_TS}")
        A(f"v_mov_b32 v2, s{sT0}")
        A("s_mov_b64 exec, 1")
        for k in range(n):
            A(f"v_mov_b32 v3, s{sTS+2*k}")
            A(f"buffer_store_dword v3, v2, s[{SRD2}:{SRD2+3}], 0 offen offset:{4*k}")
        A("s_mov_b64 exec, -1")

    def gspin(load, cmp_instr):
        k = A.uid()
        A(f"s_mov_b32 s{sCNT}, 0")
        A.label(f"L_g{k}")
        A(load)
        A(f"s_add_u32 s{sCNT}, s{sCNT}, 1")
        A("s_waitcnt vmcnt(0)")
        A(cmp_instr)
        A(f"s_cmp_gt_u32 s{sCNT}, {SPIN_MAX}")
        A(f"s_cbranch_scc1 L_gd{k}")
        A(f"s_cbranch_vccnz L_g{k}")
        A.label(f"L_gd{k}")

    def lspin4(vz, vf, off, val, sleep=0):
        k = A.uid()
        A.label(f"L_l{k}")
        A(f"ds_read_b128 v[{vf}:{vf+3}], v{vz} offset:{off}")
        A(f"s_add_u32 s{sLC}, s{sLC}, 1")
        A("s_waitcnt lgkmcnt(0)")
        A(f"v_min3_u32 v{vf}, v{vf}, v{vf+1}, v{vf+2}")
        A(f"v_min_u32 v{vf}, v{vf}, v{vf+3}")
        A(f"v_cmp_gt_u32 vcc, {val}, v{vf}")
        A(f"s_cmp_gt_u32 s{sLC}, {LSPIN_MAX}")
        A(f"s_cbranch_scc1 L_ld{k}")
        A(f"s_cbranch_vccnz L_l{k}")
        A.label(f"L_ld{k}")

    A("s_cmp_ge_u32 s2, 256")
    A("s_cbranch_scc1 L_end")
    A("s_load_dwordx16 s[16:31], s[0:1], 0")
    if TS:
        A("s_memrealtime s[96:97]")
    stamp()
    A("v_and_b32 v1, 63, v0")
    A("v_lshrrev_b32 v2, 6, v0")
    A(f"s_and_b32 s{sJ}, s2, 7")
    A(f"v_readfirstlane_b32 s{sWV}, v2")
    A(f"s_lshr_b32 s{sR}, s2, 3")
    A(f"s_mov_b32 s{sLC}, 0")
    A(f"s_cmp_lt_u32 s{sR}, 8")
    A("s_cbranch_scc1 L_helper")
    A(f"s_sub_u32 s{sR}, s{sR}, 8")
    A(f"s_mul_i32 s{sMT}, s{sR}, 21846")
    A(f"s_lshr_b32 s{sMT}, s{sMT}, 16")
    A(f"s_mul_i32 s{sT0}, s{sMT}, 3")
    A(f"s_sub_u32 s{sI}, s{sR}, s{sT0}")
    A(f"s_mul_i32 s{sWK}, s{sJ}, 24")
    A(f"s_add_u32 s{sWK}, s{sWK}, s{sR}")
    A(f"s_cmp_lt_u32 s{sWV}, 4")
    A("s_cbranch_scc1 L_compute")
    A(f"s_cmp_eq_u32 s{sWV}, 6")
    A("s_cbranch_scc1 L_xh")
    A(f"s_cmp_eq_u32 s{sWV}, 7")
    A("s_cbranch_scc1 L_pub")
    ts_base = tsn[0]

    def loader_stream(kinds, per_block, issue_fn, progoff, pre_issue=None):
        mine = [blocks[nm] for nm in order if blocks[nm]["kind"] in kinds]
        outstanding, pend = [], list(mine)
        known_free = [-1]

        signalled = [0]

        def signal(val):
            if val > signalled[0]:
                signalled[0] = val
                A(f"v_mov_b32 v14, {val}")
                A(f"ds_write_b32 v15, v14 offset:{progoff}")

        def issue_upto(fq, q):
            while pend and pend[0]["free"] <= fq:
                b = pend.pop(0)
                if pre_issue is not None and pre_issue(b, "blocks"):
                    if outstanding:
                        A("s_waitcnt vmcnt(0)")
                        outstanding.clear()
                        signal(b["need"])
                    pre_issue(b, "do")
                if b["free"] > known_free[0]:
                    lspin4(13, 20, L_CONS, b["free"] + 1)
                    known_free[0] = b["free"]
                if (len(outstanding) + 1) * per_block > 63:
                    keep = 63 // per_block - 1
                    A(f"s_waitcnt vmcnt({keep*per_block})")
                    del outstanding[:len(outstanding) - keep]
                issue_fn(b)
                outstanding.append(b["name"])

        issue_upto(-1, -1)
        A("s_barrier")
        for q in range(NQ):
            assert not any(b["need"] <= q for b in pend), (q, pend[0])
            if any(b["need"] == q for b in mine):
                need = [i for i, nm in enumerate(outstanding) if blocks[nm]["need"] <= q]
                if need:
                    idx = max(need)
                    A(f"s_waitcnt vmcnt({(len(outstanding)-1-idx)*per_block})")
                    del outstanding[:idx + 1]
                signal(q + 1)
                if q in cfg.tsq:
                    stamp()
            issue_upto(q - 1, q)
        assert not pend

    A.c("---- weight loaders (waves 4,5)")
    sHW = sT5
    A(f"s_sub_u32 s{sHW}, s{sWV}, 4")
    A("v_lshrrev_b32 v2, 3, v1")
    A("v_and_b32 v3, 7, v1")
    A("v_bfe_u32 v4, v1, 4, 1")
    A("v_lshlrev_b32 v4, 2, v4")
    A("v_xor_b32 v3, v3, v4")
    A("v_lshlrev_b32 v3, 4, v3")
    A("v_lshrrev_b32 v4, 2, v2")
    A("v_and_b32 v5, 3, v2")
    A("v_lshl_add_u32 v4, v4, 3, v5")
    A(f"s_lshl_b32 s{sT0}, s{sHW}, 5")
    A(f"v_add_u32 v4, s{sT0}, v4")
    A("v_mul_u32_u24 v4, 9216, v4")
    A("v_add_u32 v4, v4, v3")
    for c in range(1, 4):
        A(f"v_add_u32 v{4+c}, {(16*(c>>1)+4*(c&1))*9216 - 1024*c}, v4")
    sLW, sC1 = sT4, 38
    A(f"s_lshl_b32 s{sLW}, s{sHW}, 12")
    A(f"s_mul_i32 s{sC1}, s{sJ}, 1152")
    A(f"s_mul_i32 s{sT1}, s{sI}, 384")
    A(f"s_add_u32 s{sC1}, s{sC1}, s{sT1}")
    A("s_waitcnt lgkmcnt(0)")
    srd(SRD0, sW1, 5308416)
    sV = [62, 63, 59]
    late_setup = [False]

    def w2_setup():
        A(f"s_lshl_b32 s{sT0}, s{sHW}, 5")
        A(f"v_add_u32 v8, s{sT0}, v2")
        A("v_mul_u32_u24 v8, 1152, v8")
        A("v_add_u32 v8, v8, v3")
        for c in range(1, 4):
            A(f"v_add_u32 v{8+c}, {8*c*1152 - 1024*c}, v8")
        A(f"s_mul_i32 s39, s{sJ}, {576*1152}")
        A(f"s_mul_i32 s{sT0}, s{sI}, 384")
        A(f"s_add_u32 s39, s39, s{sT0}")
        for d in range(3):
            A(f"s_add_u32 s{sT1}, s{sI}, {d}")
            A(f"s_cmp_ge_u32 s{sT1}, 3")
            A(f"s_cselect_b32 s{sT2}, 3, 0")
            A(f"s_sub_u32 s{sT1}, s{sT1}, s{sT2}")
            A(f"s_mul_i32 s{sT1}, s{sT1}, {192*1152}")
            A(f"s_add_u32 s{sV[d]}, s39, s{sT1}")
        srd(SRD1, sW2, 5308416)
        A("v_mov_b32 v13, 0")
        A("v_lshlrev_b32 v15, 4, v1")
        A("v_add_u32 v15, 0x1000, v15")
        A("v_cmp_eq_u32 vcc, 0, v1")
        A(f"s_lshl_b32 s{sT0}, s{sHW}, 2")
        A("s_nop 0")
        A("v_cndmask_b32 v15, v15, v13, vcc")
        A(f"v_add_u32 v15, s{sT0}, v15")

    wcount = [0]

    def issue_w(b):
        A(f"s_add_u32 m0, s{sLW}, {b['slot']*8192}")
        if b["kind"] == "W1":
            A(f"s_add_u32 s{sT0}, s{sC1}, {64*b['t']*9216 + 128*b['l']}")
            vb, sr = 4, SRD0
        else:
            A(f"s_add_u32 s{sT0}, s{sV[b['d']]}, {64*b['lk']*1152 + 128*b['l']}")
            vb, sr = 8, SRD1
        for c in range(4):
            A(f"buffer_load_dwordx4 v{vb+c}, s[{sr}:{sr+3}], s{sT0} offen offset:{1024*c} lds")
        wcount[0] += 1
        if wcount[0] == 6:
            w2_setup()

    loader_stream(("W1", "W2"), 4, issue_w, L_PROG)
    A("s_branch L_reduce")
    ts_w = tsn[0]

    A.label("L_xh")
    tsn[0] = ts_base
    A("v_lshrrev_b32 v2, 3, v1")
    A("v_and_b32 v3, 7, v1")
    A("v_lshrrev_b32 v4, 4, v1")
    A("v_xor_b32 v3, v3, v4")
    A("v_lshlrev_b32 v3, 4, v3")
    A("v_mul_u32_u24 v4, 1152, v2")
    A("v_add_u32 v8, v4, v3")
    A("v_xor_b32 v5, 64, v8")
    A(f"v_add_u32 v9, {8*1152 - 1024}, v5")
    A(f"v_add_u32 v10, {16*1152 - 2048}, v8")
    A(f"v_add_u32 v11, {24*1152 - 3072}, v5")
    sXB = 38
    A(f"s_mul_i32 s{sXB}, s{sMT}, {64*1152}")
    A("s_waitcnt lgkmcnt(0)")
    srd(SRD0, sX, 589824)
    sH = [0, 62, 63]
    sF = [0, 59, 39]

    def xh_setup():
        A("v_lshlrev_b32 v12, 4, v1")
        A(f"s_sub_u32 s{sT0}, s{sWK}, s{sI}")
        for d in (1, 2):
            A(f"s_add_u32 s{sT1}, s{sI}, {d}")
            A(f"s_cmp_ge_u32 s{sT1}, 3")
            A(f"s_cselect_b32 s{sT2}, 3, 0")
            A(f"s_sub_u32 s{sT1}, s{sT1}, s{sT2}")
            A(f"s_add_u32 s{sT1}, s{sT1}, s{sT0}")
            A(f"s_mul_i32 s{sH[d]}, s{sT1}, 24576")
            A(f"s_lshl_b32 s{sF[d]}, s{sT1}, 9")
            A(f"s_add_u32 s{sF[d]}, s{sF[d]}, {WS_FL}")
        A("v_mov_b32 v13, 0")
        srd(SRD1, sWS, 0x10000000)
        srd(SRD2, sDBG, 256)
        A("v_add_u32 v15, 0x1000, v12")
        A("v_cmp_eq_u32 vcc, 0, v1")
        A(f"v_mov_b32 v16, s{sF[1]}")
        A(f"v_mov_b32 v17, s{sF[2]}")
        A("v_cndmask_b32 v15, v15, v13, vcc")
        A("v_cndmask_b32 v16, v16, v17, vcc")

    go1 = [False]
    seen = set()
    xcount = [0]

    def pre_xh(b, what):
        if b["kind"] == "X":
            return False
        key = pass_of_line[b["lk"]]
        if what == "blocks":
            return key not in seen
        seen.add(key)
        if not go1[0]:
            go1[0] = True
            A(f"s_lshl_b32 s{sT3}, s{sJ}, 2")
            gspin(f"buffer_load_dword v14, v13, s[{SRD2}:{SRD2+3}], s{sT3} offen offset:128 sc1", "v_cmp_eq_u32 vcc, 0, v14")
        gspin(f"buffer_load_dword v14, v16, s[{SRD1}:{SRD1+3}], 0 offen offset:{128*key} sc1", "v_cmp_ne_u32 vcc, 1, v14")
        stamp()
        return True

    def issue_xh(b):
        for h in range(2):
            A(f"s_mov_b32 m0, {b['slot']*8192 + 4096*h}")
            if b["kind"] == "X":
                A(f"s_add_u32 s{sT0}, s{sXB}, {128*b['t'] + 32*1152*h}")
                for c in range(4):
                    A(f"buffer_load_dwordx4 v{8+c}, s[{SRD0}:{SRD0+3}], s{sT0} offen offset:{1024*c} lds")
            else:
                A(f"s_add_u32 s{sT0}, s{sH[b['d']]}, {WS_H + 8192*b['lk'] + 4096*h}")
                for c in range(4):
                    A(f"buffer_load_dwordx4 v12, s[{SRD1}:{SRD1+3}], s{sT0} offen offset:{1024*c} sc1 lds")
        xcount[0] += 1
        if xcount[0] == 4:
            xh_setup()

    loader_stream(("X", "H"), 8, issue_xh, L_PROG + 8, pre_xh)
    A("s_branch L_reduce")
    ts_xh = tsn[0]

    A.label("L_pub")
    tsn[0] = ts_base
    A("v_lshlrev_b32 v12, 4, v1")
    A("v_mov_b32 v4, 0")
    A("v_mov_b32 v5, 0")
    A("v_mov_b32 v6, 0")
    A("v_mov_b32 v7, 0")
    A("v_mov_b32 v13, 0")
    A("ds_write_b128 v12, v[4:7]")
    A("ds_write_b128 v12, v[4:7] offset:1024")
    A("v_add_u32 v10, 0x10000, v12")
    A("v_add_u32 v11, 0x20000, v12")
    A("v_mov_b32 v15, 1")
    sHP, sFP = 38, 39
    A(f"s_mul_i32 s{sHP}, s{sWK}, 24576")
    A(f"s_lshl_b32 s{sFP}, s{sWK}, 9")
    A(f"s_add_u32 s{sFP}, s{sFP}, {WS_FL}")
    A("s_waitcnt lgkmcnt(0)")
    A("s_barrier")
    srd(SRD1, sWS, 0x10000000)
    srd(SRD2, sDBG, 256)
    lspin4(13, 20, L_CONS, cfg.go_at)
    A(f"s_lshl_b32 s{sT3}, s{sJ}, 2")
    gspin(f"buffer_load_dword v14, v13, s[{SRD2}:{SRD2+3}], s{sT3} offen offset:128 sc1", "v_cmp_eq_u32 vcc, 0, v14")
    stamp()
    for pi, ls in enumerate(passes):
        lspin4(13, 20, L_HD, pi + 1)
        stamp()
        for x, l in enumerate(ls):
            addr = blocks[f"H0_{l}"]["slot"] * 8192
            va = [12, 10, 11][addr >> 16]
            for c in range(8):
                r = 32 + 32 * x + 4 * c
                A(f"ds_read_b128 v[{r}:{r+3}], v{va} offset:{(addr & 0xffff) + 1024*c}")
            for c in range(8):
                r = 32 + 32 * x + 4 * c
                A(f"s_waitcnt lgkmcnt({7-c})")
                if c % 4 == 0:
                    A(f"s_add_u32 s{sT0}, s{sHP}, {WS_H + 8192*l + 1024*c}")
                A(f"buffer_store_dwordx4 v[{r}:{r+3}], v12, s[{SRD1}:{SRD1+3}], s{sT0} offen offset:{1024*(c%4)} sc1")
        A("s_waitcnt vmcnt(0)")
        A("s_mov_b64 exec, 1")
        A(f"buffer_store_dword v15, v13, s[{SRD1}:{SRD1+3}], s{sFP} offen offset:{128*pi} sc1")
        A("s_mov_b64 exec, -1")
        stamp()
    A(f"s_lshl_b32 s{sT3}, s{sMT}, 2")
    gspin(f"buffer_load_dword v14, v13, s[{SRD2}:{SRD2+3}], s{sT3} offen offset:160 sc1", "v_cmp_gt_u32 vcc, 8, v14")
    A(f"v_mov_b32 v14, 64")
    A("s_mov_b64 exec, 1")
    A(f"ds_write_b32 v13, v14 offset:{L_PROG+12}")
    A("s_mov_b64 exec, -1")
    stamp()
    stamp_flush()
    A("s_branch L_end")

    A.label("L_reduce")
    tsn[0] = max(ts_w, ts_xh)
    srd(SRD1, sWS, 0x10000000)
    sC = sT4
    A(f"s_sub_u32 s{sC}, s{sWV}, 4")
    A(f"s_mul_i32 s{sT0}, s{sWK}, {8*3072}")
    A(f"s_lshl_b32 s{sT1}, s{sC}, 10")
    A(f"s_add_u32 s{sT0}, s{sT0}, s{sT1}")
    A(f"s_add_u32 s{sT0}, s{sT0}, {WS_IN}")
    A("v_lshlrev_b32 v2, 4, v1")
    if cfg.rmap == "A":
        A(f"s_and_b32 s{sT1}, s{sJ}, 1")
        A(f"s_mul_i32 s{sT1}, s{sT1}, 3")
        A(f"s_add_u32 s{sT1}, s{sT1}, s{sC}")
        A(f"s_lshr_b32 s{sT2}, s{sT1}, 1")
        A(f"s_lshl_b32 s{sT2}, s{sT2}, 6")
        A(f"s_and_b32 s{sT1}, s{sT1}, 1")
        A(f"s_lshl_b32 s{sT1}, s{sT1}, 4")
    else:
        A(f"s_lshl_b32 s{sT2}, s{sC}, 6")
        A(f"s_and_b32 s{sT1}, s{sJ}, 1")
        A(f"s_lshl_b32 s{sT1}, s{sT1}, 4")
    A(f"s_add_u32 s{sT2}, s{sT2}, s{sT1}")
    A(f"s_lshr_b32 s{sT1}, s{sJ}, 2")
    A(f"s_lshl_b32 s{sT1}, s{sT1}, 5")
    A(f"s_add_u32 s{sT2}, s{sT2}, s{sT1}")
    A(f"s_mul_i32 s{sT1}, s{sI}, 192")
    A(f"s_add_u32 s{sT2}, s{sT2}, s{sT1}")
    A(f"s_lshl_b32 s{sT2}, s{sT2}, 1")
    A("v_lshrrev_b32 v3, 5, v1")
    A("v_lshlrev_b32 v3, 3, v3")
    srd(SRD0, sB2, 1152)
    A(f"buffer_load_dwordx2 v[4:5], v3, s[{SRD0}:{SRD0+3}], s{sT2} offen")
    A(f"buffer_load_dwordx2 v[6:7], v3, s[{SRD0}:{SRD0+3}], s{sT2} offen offset:16")
    A(f"s_bfe_u32 s{sT1}, s{sJ}, 0x10001")
    A(f"s_lshl_b32 s{sT1}, s{sT1}, 5")
    A(f"s_lshl_b32 s{sT3}, s{sMT}, 6")
    A(f"s_add_u32 s{sT1}, s{sT1}, s{sT3}")
    A(f"s_mul_i32 s{sT1}, s{sT1}, 1152")
    A(f"s_add_u32 s{sT2}, s{sT2}, s{sT1}")
    A("v_and_b32 v8, 31, v1")
    A("v_mul_u32_u24 v8, 1152, v8")
    A("v_add_u32 v8, v8, v3")
    k = A.uid()
    A.label(f"L_l{k}")
    A(f"ds_read_b32 v20, v13 offset:{L_PROG+12}")
    A(f"s_add_u32 s{sLC}, s{sLC}, 1")
    A("s_waitcnt lgkmcnt(0)")
    A("v_cmp_eq_u32 vcc, 0, v20")
    A(f"s_cmp_gt_u32 s{sLC}, {LSPIN_MAX}")
    A(f"s_cbranch_scc1 L_ld{k}")
    A(f"s_cbranch_vccnz L_l{k}")
    A.label(f"L_ld{k}")
    A("s_waitcnt vmcnt(0)")
    for k in range(4):
        A(f"v_lshlrev_b32 v{24+2*k}, 16, v{4+k}")
        A(f"v_and_b32 v{25+2*k}, 0xffff0000, v{4+k}")
    sP = sT5
    A(f"s_mov_b32 s{sP}, 0xff")
    A(f"s_mov_b32 s{sCNT}, 0")
    stamp()
    A.label("L_rpoll")
    for s in range(8):
        A(f"s_bitcmp0_b32 s{sP}, {s}")
        A(f"s_cbranch_scc1 L_rl{s}")
        A(f"s_add_u32 s{sT1}, s{sT0}, {3072*s}")
        A(f"buffer_load_dwordx4 v[{32+4*s}:{35+4*s}], v2, s[{SRD1}:{SRD1+3}], s{sT1} offen sc1")
        A.label(f"L_rl{s}")
    A(f"s_add_u32 s{sCNT}, s{sCNT}, 1")
    A("s_waitcnt vmcnt(0)")
    for s in range(8):
        r = 32 + 4 * s
        A(f"s_bitcmp0_b32 s{sP}, {s}")
        A(f"s_cbranch_scc1 L_ra{s}")
        A(f"v_max3_u32 v9, v{r}, v{r+1}, v{r+2}")
        A(f"v_max_u32 v9, v9, v{r+3}")
        A("v_cmp_eq_u32 vcc, -1, v9")
        A(f"s_cbranch_vccnz L_ra{s}")
        A(f"s_bitset0_b32 s{sP}, {s}")
        for k in range(4):
            A(f"v_lshlrev_b32 v10, 16, v{r+k}")
            A(f"v_and_b32 v11, 0xffff0000, v{r+k}")
            A(f"v_pk_add_f32 v[{24+2*k}:{25+2*k}], v[{24+2*k}:{25+2*k}], v[10:11]")
        A.label(f"L_ra{s}")
    A(f"s_cmp_gt_u32 s{sCNT}, {SPIN_MAX}")
    A("s_cbranch_scc1 L_rdone")
    A(f"s_cmp_lg_u32 s{sP}, 0")
    A("s_cbranch_scc1 L_rpoll")
    A.label("L_rdone")
    stamp()
    for k in range(4):
        A(f"v_cvt_pk_bf16_f32 v{24+k}, v{24+2*k}, v{25+2*k}")
    srd(SRD0, sOUT, 589824)
    A(f"buffer_store_dwordx2 v[24:25], v8, s[{SRD0}:{SRD0+3}], s{sT2} offen")
    A(f"buffer_store_dwordx2 v[26:27], v8, s[{SRD0}:{SRD0+3}], s{sT2} offen offset:16")
    if TS:
        A("s_waitcnt vmcnt(0)")
        stamp()
        A("s_memrealtime s[98:99]")
        A("s_waitcnt lgkmcnt(0)")
        A(f"s_mov_b32 s{sTS+26}, s96"); A(f"s_mov_b32 s{sTS+28}, s98"); A(f"s_mov_b32 s{sTS+30}, s{sCNT}")
        assert tsn[0] <= 13
        tsn[0] = 16
        stamp_flush()
        if cfg.dbgts:
            srd(SRD2, sDBG, 256)
            A("s_not_b32 s96, s96")
            A("v_mov_b32 v4, s96")
            A("v_mov_b32 v5, s98")
            A("s_mov_b64 exec, 1")
            A(f"buffer_atomic_umax v4, v13, s[{SRD2}:{SRD2+3}], 0 offen sc1")
            A(f"buffer_atomic_umax v5, v13, s[{SRD2}:{SRD2+3}], 0 offen offset:4 sc1")
    A("s_branch L_end")

    A.label("L_compute")
    tsn[0] = ts_base
    vACC, vAB, vXB, vT = 16, 64, 96, 240
    nAB = D + 1
    vA, vBX, vBH, vHW = [2, 3, 4], [5, 6, 7, 8], [9, 10, 11], [12, 13, 14]
    vZ, vCW, vF, vFV = 15, vT + 8, vT, vT + 9
    assert vAB + 4 * nAB <= vXB
    sA, sBq = sT4, sT5
    A(f"s_and_b32 s{sA}, s{sWV}, 1")
    A(f"s_lshr_b32 s{sBq}, s{sWV}, 1")
    A(f"v_lshrrev_b32 v{vT}, 5, v1")
    A(f"s_mul_i32 s{sT0}, s{sJ}, 1152")
    A(f"s_mul_i32 s{sT1}, s{sI}, 384")
    A(f"s_add_u32 s{sT0}, s{sT0}, s{sT1}")
    A(f"s_lshl_b32 s{sT1}, s{sBq}, 6")
    A(f"s_add_u32 s{sT0}, s{sT0}, s{sT1}")
    A(f"v_lshlrev_b32 v{vT+4}, 3, v{vT}")
    A("s_waitcnt lgkmcnt(0)")
    srd(SRD0, sB1, 9216)
    for l in range(3):
        for g in range(4):
            r = vXB + 2 * (4 * l + g)
            A(f"buffer_load_dwordx2 v[{r}:{r+1}], v{vT+4}, s[{SRD0}:{SRD0+3}], s{sT0} offen offset:{128*l+16*g}")
    srd(SRD1, sWS, 0x10000000)
    A(f"v_bfe_u32 v{vT+1}, v1, 2, 2")
    A(f"v_lshl_add_u32 v{vT+2}, v{vT}, 2, v{vT+1}")
    A(f"v_lshlrev_b32 v{vT+2}, 7, v{vT+2}")
    A(f"v_bfe_u32 v{vT+3}, v1, 3, 1")
    A(f"v_xor_b32 v{vT+3}, s{sBq}, v{vT+3}")
    A(f"v_lshl_add_u32 v{vT+2}, v{vT+3}, 6, v{vT+2}")
    A(f"v_bfe_u32 v{vT+3}, v1, 4, 1")
    A(f"v_lshl_add_u32 v{vT+2}, v{vT+3}, 5, v{vT+2}")
    A(f"v_and_b32 v{vT+3}, 3, v1")
    A(f"v_lshl_add_u32 v{vA[0]}, v{vT+3}, 3, v{vT+2}")
    A(f"v_add_u32 v{vA[1]}, 0x10000, v{vA[0]}")
    A(f"v_add_u32 v{vA[2]}, 0x20000, v{vA[0]}")
    A(f"v_and_b32 v{vT+1}, 31, v1")
    A(f"v_bfe_u32 v{vT+2}, v1, 1, 3")
    A(f"v_xor_b32 v{vT+2}, v{vT}, v{vT+2}")
    A(f"v_lshlrev_b32 v{vT+2}, 4, v{vT+2}")
    A(f"v_lshl_add_u32 v{vT+2}, v{vT+1}, 7, v{vT+2}")
    A(f"s_lshl_b32 s{sT0}, s{sA}, 12")
    A(f"s_add_u32 s{sT1}, s{sT0}, 0x20000")
    A(f"v_add_u32 v{vBX[0]}, s{sT1}, v{vT+2}")
    for sp in range(1, 4):
        A(f"v_xor_b32 v{vBX[sp]}, {32*sp}, v{vBX[0]}")
    A(f"v_lshl_add_u32 v{vBH[0]}, v1, 4, s{sT0}")
    A(f"v_add_u32 v{vBH[1]}, 0x10000, v{vBH[0]}")
    A(f"v_add_u32 v{vBH[2]}, 0x20000, v{vBH[0]}")
    A(f"s_lshl_b32 s{sT1}, s{sBq}, 11")
    for k in range(3):
        A(f"v_add_u32 v{vHW[k]}, s{sT1}, v{vBH[k]}")
    A(f"v_mov_b32 v{vZ}, 0")
    A(f"s_lshl_b32 s{sT1}, s{sWV}, 2")
    A(f"v_lshl_add_u32 v{vCW}, v1, 4, s{sT1}")
    sI0, sI1 = 38, 39
    if cfg.rmap == "A":
        A(f"s_mul_i32 s{sI0}, s{sWV}, 48")
    else:
        A(f"s_mul_i32 s{sI0}, s{sWV}, 48")
    A(f"s_add_u32 s{sI0}, s{sI0}, s{sR}")
    A(f"s_lshl_b32 s{sI0}, s{sI0}, 3")
    A(f"s_add_u32 s{sI0}, s{sI0}, s{sJ}")
    A(f"s_mul_i32 s{sI0}, s{sI0}, 3072")
    A(f"s_add_u32 s{sI0}, s{sI0}, {WS_IN}")
    A(f"s_add_u32 s{sI1}, s{sI0}, {24*8*3072}")
    A(f"v_lshlrev_b32 v{vT+10}, 4, v1")
    A(f"s_mov_b32 s{sT2}, 0xfffffffe")
    A("s_waitcnt vmcnt(0)")
    for l in range(3):
        for g in range(4):
            r = vXB + 2 * (4 * l + g)
            d = vACC + 16 * l + 4 * g
            A(f"v_lshlrev_b32 v{d}, 16, v{r}")
            A(f"v_and_b32 v{d+1}, 0xffff0000, v{r}")
            A(f"v_lshlrev_b32 v{d+2}, 16, v{r+1}")
            A(f"v_and_b32 v{d+3}, 0xffff0000, v{r+1}")
    A("s_barrier")
    stamp()

    items = []
    for st in stages:
        bykb = {}
        for u in st["units"]:
            bykb.setdefault(u[2], []).append(u)
        for kb, us in bykb.items():
            for sp in range(4):
                for (t, wb, _kb, fst) in us:
                    items.append(dict(q=st["q"], tile=t, wb=wb, kb=kb, sp=sp, first=(fst and sp == 0)))
    NI = len(items)
    first_item = {}
    last_item = {}
    for n, it in enumerate(items):
        first_item.setdefault(it["q"], n)
        last_item[it["q"]] = n
    bread_of = {}
    for st in stages:
        for (bb, kb) in st["breads"]:
            bread_of[(st["q"], kb)] = bb

    lg = []

    def ds_issue(instr, tag):
        cap = 11 if TS else 15
        if len(lg) >= cap:
            A(f"s_waitcnt lgkmcnt({cap-2})")
            del lg[:len(lg) - (cap - 2)]
        A(instr)
        lg.append(tag)

    def ds_need(tags):
        idx = max([i for i, t in enumerate(lg) if t in tags], default=-1)
        if idx >= 0:
            A(f"s_waitcnt lgkmcnt({len(lg) - 1 - idx})")
            del lg[:idx + 1]

    def reqs(q):
        st = stages[q]
        words = []
        if any(blocks[u[1]]["need"] == q for u in st["units"]):
            words += [0, 1]
        if any(blocks[bb]["kind"] != "Hown" for bb, _ in st["breads"]):
            words.append(2)
        if q == min(epi2_after):
            words.append(3)
        hd = max([pass_of_line[blocks[bb]["lk"]] + 1 for bb, _ in st["breads"] if blocks[bb]["kind"] == "Hown"], default=0)
        return words, hd

    def flag_reads(q, track):
        words, hd = reqs(q)
        ins = []
        if words:
            ins.append(f"ds_read_b128 v[{vF}:{vF+3}], v{vZ} offset:{L_PROG}")
        if hd:
            ins.append(f"ds_read_b128 v[{vF+4}:{vF+7}], v{vZ} offset:{L_HD}")
        for x in ins:
            if track:
                ds_issue(x, ("F", q))
            else:
                A(x)

    def flag_eval(q):
        words, hd = reqs(q)
        w = [vF + k for k in words]
        if len(w) >= 3:
            A(f"v_min3_u32 v{vF}, v{w[0]}, v{w[1]}, v{w[2]}")
            if len(w) == 4:
                A(f"v_min_u32 v{vF}, v{vF}, v{w[3]}")
            m = vF
        elif len(w) == 2:
            A(f"v_min_u32 v{vF}, v{w[0]}, v{w[1]}")
            m = vF
        elif len(w) == 1:
            m = w[0]
        else:
            m = None
        if hd:
            A(f"v_min3_u32 v{vF+4}, v{vF+4}, v{vF+5}, v{vF+6}")
            A(f"v_min_u32 v{vF+4}, v{vF+4}, v{vF+7}")
            if m is not None:
                A(f"v_add_u32 v{vF+4}, {q+1-hd}, v{vF+4}")
                A(f"v_min_u32 v{vF}, v{m}, v{vF+4}")
                m = vF
            else:
                A(f"v_cmp_gt_u32 vcc, {hd}, v{vF+4}")
                return
        A(f"v_cmp_gt_u32 vcc, {q+1}, v{m}")

    checked = [-1]
    fissued = set()

    def check_stage(q):
        words, hd = reqs(q)
        if not words and not hd:
            return
        if q not in fissued:
            fissued.add(q)
            flag_reads(q, True)
        ds_need({("F", q)})
        flag_eval(q)
        k = A.uid()
        A(f"s_cbranch_vccz L_ok{k}")
        A.label(f"L_sp{k}")
        flag_reads(q, False)
        A(f"s_add_u32 s{sLC}, s{sLC}, 1")
        A("s_waitcnt lgkmcnt(0)")
        flag_eval(q)
        A(f"s_cmp_gt_u32 s{sLC}, {LSPIN_MAX}")
        A(f"s_cbranch_scc1 L_ok{k}")
        A(f"s_cbranch_vccnz L_sp{k}")
        A.label(f"L_ok{k}")

    bdone = set()

    def issue_reads(n):
        it = items[n]
        q = it["q"]
        if q > checked[0]:
            check_stage(q)
            checked[0] = q
            if q in cfg.tsq:
                stamp()
        key = (q, it["kb"])
        if key in bread_of and (key, it["sp"]) not in bdone:
            bdone.add((key, it["sp"]))
            bb = blocks[bread_of[key]]
            addr = bb["slot"] * 8192
            r = vXB + 16 * it["kb"] + 4 * it["sp"]
            if bb["kind"] == "X":
                assert addr >> 16 == 2
                ds_issue(f"ds_read_b128 v[{r}:{r+3}], v{vBX[it['sp']]} offset:{addr & 0xffff}", ("B", it["kb"], it["sp"]))
            else:
                ds_issue(f"ds_read_b128 v[{r}:{r+3}], v{vBH[addr >> 16]} offset:{(addr & 0xffff) + 1024*it['sp']}",
                         ("B", it["kb"], it["sp"]))
        wb = blocks[it["wb"]]
        addr = wb["slot"] * 8192 + 2048 * it["sp"]
        r = vAB + 4 * (n % nAB)
        ds_issue(f"ds_read_b64_tr_b16 v[{r}:{r+1}], v{vA[addr >> 16]} offset:{addr & 0xffff}", ("A", n))
        ds_issue(f"ds_read_b64_tr_b16 v[{r+2}:{r+3}], v{vA[addr >> 16]} offset:{(addr & 0xffff) + 1024}", ("A", n))
        if n == last_item[q] and any(b.get("free", -1) >= q and b["kind"] != "Hown" for b in blocks.values()) or \
           (n == last_item[q] and q + 1 == cfg.go_at):
            A(f"v_mov_b32 v{vFV}, {q+1}")
            ds_issue(f"ds_write_b32 v{vCW}, v{vFV} offset:{L_CONS}", "cw")
        if q + 1 < NQ and n == max(first_item[q], last_item[q] - cfg.chk) and (q + 1) not in fissued and (q + 1) != n_g1:
            w, h = reqs(q + 1)
            if w or h:
                fissued.add(q + 1)
                flag_reads(q + 1, True)

    def epi1_instrs(pi, lines):
        out = []
        for l in lines:
            a = vACC + 16 * l
            addr = blocks[f"H0_{l}"]["slot"] * 8192
            for half in range(2):
                base = a + 8 * half
                for k in range(8):
                    out.append(("v", f"v_max_f32 v{base+k}, 0, v{base+k}"))
                for k in range(0, 8, 2):
                    out.append(("v", f"v_pk_mul_f32 v[{base+k}:{base+k+1}], v[{base+k}:{base+k+1}], v[{base+k}:{base+k+1}]"))
                for k in range(4):
                    out.append(("v", f"v_cvt_pk_bf16_f32 v{base+k}, v{base+2*k}, v{base+2*k+1}"))
                out.append(("w", f"ds_write_b128 v{vHW[addr >> 16]}, v[{base}:{base+3}] offset:{(addr & 0xffff) + 1024*half}"))
        out.append(("v", f"v_mov_b32 v{vFV+2}, {pi+1}"))
        out.append(("w", f"ds_write_b32 v{vCW}, v{vFV+2} offset:{L_HD}"))
        return out

    def epi2_instrs(lines):
        out = []
        for l in lines:
            for u in range(2):
                idx6 = 2 * l + u
                base = vACC + 8 * idx6
                for k in range(4):
                    out.append(("v", f"v_cvt_pk_bf16_f32 v{base+k}, v{base+2*k}, v{base+2*k+1}"))
                for k in range(4):
                    out.append(("v", f"v_min_u32 v{base+k}, s{sT2}, v{base+k}"))
                if cfg.rmap == "A":
                    so, c = (sI0 if idx6 < 3 else sI1), idx6 % 3
                else:
                    so, c = (sI0 if u == 0 else sI1), l
                out.append(("v", f"buffer_store_dwordx4 v[{base}:{base+3}], v{vT+10}, s[{SRD1}:{SRD1+3}], s{so} offen offset:{1024*c} sc1"))
        return out

    fillers = []
    fill_start = 0
    fill_tiles = set()
    mfma_pos = {}
    fill_fresh = [False]

    def states_since(pos):
        c = 0
        for ln in A.L[pos + 1:]:
            t = ln.strip()
            if t.endswith(":") or t.startswith(";"):
                continue
            if t.startswith("s_cbranch") or t.startswith("s_branch"):
                return c + 1
            c += int(t.split()[1]) + 1 if t.startswith("s_nop") else 1
        return c

    def states_since2(pos):
        c = 0
        skip = None
        for ln in A.L[pos + 1:]:
            t = ln.strip()
            if skip:
                if t == skip + ":":
                    skip = None
                continue
            if t.endswith(":") or t.startswith(";"):
                continue
            c += int(t.split()[1]) + 1 if t.startswith("s_nop") else 1
            if t.startswith("s_cbranch_vccz L_ok"):
                skip = t.split()[1]
        return c

    def emit(kind, t):
        if fill_fresh[0]:
            fill_fresh[0] = False
            have = min(states_since2(mfma_pos[tl]) for tl in fill_tiles)
            if have < 12:
                A(f"s_nop {12 - have - 1}")
        if kind == "w":
            ds_issue(t, "hw")
        else:
            A(t)

    def flush_fillers(n_now):
        nonlocal fillers
        for (kind, t) in fillers:
            emit(kind, t)
        fillers = []
        fill_tiles.clear()

    nread = 0
    for n in range(NI):
        it = items[n]
        lim = min(NI - 1, n + D)
        while nread <= lim:
            nx = items[nread]
            w, h = reqs(nx["q"])
            if nx["q"] > checked[0] and h:
                produced = sum(1 for qq in epi_after if last_item[qq] < n) if not fillers else \
                    sum(1 for qq in epi_after if last_item[qq] < n) - 1
                if produced < h:
                    if nread > n:
                        break
                    flush_fillers(n)
            key = (nx["q"], nx["kb"])
            if key in bread_of and (key, nx["sp"]) not in bdone:
                if any(items[m]["kb"] == nx["kb"] and items[m]["sp"] == nx["sp"] for m in range(n, nread)):
                    break
            issue_reads(nread)
            nread += 1
        assert nread > n
        if it["tile"] in fill_tiles:
            flush_fillers(n)
            A("s_nop 1")
        ds_need({("A", n), ("B", it["kb"], it["sp"])})
        if it["first"]:
            ds_need({"hw"})
        ra = vAB + 4 * (n % nAB)
        rb = vXB + 16 * it["kb"] + 4 * it["sp"]
        acc = vACC + 16 * it["tile"]
        c = "0" if it["first"] else f"v[{acc}:{acc+15}]"
        A(f"v_mfma_f32_32x32x16_bf16 v[{acc}:{acc+15}], v[{ra}:{ra+3}], v[{rb}:{rb+3}], {c}")
        mfma_pos[it["tile"]] = len(A.L) - 1
        k = 0
        while fillers and k < cfg.fill and n >= fill_start:
            kind, t = fillers.pop(0)
            emit(kind, t)
            k += 1
        if not fillers:
            fill_tiles.clear()
        if n == last_item[it["q"]]:
            q = it["q"]
            new = []
            if q in epi_after:
                pi, lines = epi_after[q]
                new = epi1_instrs(pi, lines)
                tl = lines
            elif q in epi2_after:
                new = epi2_instrs(epi2_after[q])
                tl = epi2_after[q]
            if new:
                stamp()
                flush_fillers(n)
                fillers = new
                fill_tiles.update(tl)
                fill_fresh[0] = True
                fill_start = n + 3
    flush_fillers(NI - 1)
    stamp()
    if TS:
        A("s_waitcnt vmcnt(0)")
        stamp()
        stamp_flush()
        if cfg.dbgts:
            A(f"s_lshl_b32 s{sT0}, s{sWV}, 8")
            A(f"s_add_u32 s{sT0}, s{sT0}, s2")
            A(f"s_cmp_lg_u32 s{sT0}, 100")
            A("s_cbranch_scc1 L_end")
            srd(SRD2, sDBG, 256)
            A("s_mov_b64 exec, 1")
            for k in range(1, min(tsn[0], 15)):
                A(f"s_sub_u32 s{sT0}, s{sTS+2*k}, s{sTS}")
                A(f"v_mov_b32 v3, s{sT0}")
                A(f"buffer_store_dword v3, v{vZ}, s[{SRD2}:{SRD2+3}], 0 offen offset:{4+4*k}")
    A("s_branch L_end")

    A.label("L_helper")
    A("s_waitcnt lgkmcnt(0)")
    srd(SRD1, sWS, 0x10000000)
    srd(SRD2, sDBG, 256)
    A("v_mov_b32 v13, 0")
    A("v_mov_b32 v15, 1")
    A(f"s_or_b32 s{sT0}, s{sR}, s{sWV}")
    A(f"s_cmp_lg_u32 s{sT0}, 0")
    A("s_cbranch_scc1 L_hclear")
    A("v_lshlrev_b32 v2, 7, v1")
    A(f"s_mul_i32 s{sT0}, s{sJ}, {24*512}")
    A(f"s_add_u32 s{sT0}, s{sT0}, {WS_FL}")
    A(f"s_add_u32 s{sT1}, s{sT0}, 4096")
    A(f"buffer_store_dword v13, v2, s[{SRD1}:{SRD1+3}], s{sT0} offen sc1")
    A(f"buffer_store_dword v13, v2, s[{SRD1}:{SRD1+3}], s{sT1} offen sc1")
    A("s_waitcnt vmcnt(0)")
    A(f"s_lshl_b32 s{sT3}, s{sJ}, 2")
    A("s_mov_b64 exec, 1")
    A(f"buffer_atomic_add v15, v13, s[{SRD2}:{SRD2+3}], s{sT3} offen offset:128 sc1")
    A("s_mov_b64 exec, -1")
    A.label("L_hclear")
    for k in range(4, 8):
        A(f"v_mov_b32 v{k}, -1")
    A("v_lshlrev_b32 v2, 4, v1")
    A(f"s_mul_i32 s{sT0}, s{sJ}, 24")
    A(f"s_mul_i32 s{sT1}, s{sR}, 3")
    A(f"s_add_u32 s{sT0}, s{sT0}, s{sT1}")
    A(f"s_mul_i32 s{sT0}, s{sT0}, 24576")
    A(f"s_mul_i32 s{sT1}, s{sWV}, 9216")
    A(f"s_add_u32 s{sT0}, s{sT0}, s{sT1}")
    A(f"s_add_u32 s{sT0}, s{sT0}, {WS_IN}")
    for c in range(9):
        if c % 4 == 0 and c:
            A(f"s_add_u32 s{sT0}, s{sT0}, 4096")
        A(f"buffer_store_dwordx4 v[4:7], v2, s[{SRD1}:{SRD1+3}], s{sT0} offen offset:{1024*(c%4)} sc1")
    A("s_waitcnt vmcnt(0)")
    A("s_barrier")
    A(f"s_cmp_lg_u32 s{sWV}, 0")
    A("s_cbranch_scc1 L_end")
    A(f"s_lshl_b32 s{sT3}, s{sR}, 2")
    A("s_mov_b64 exec, 1")
    A(f"buffer_atomic_add v15, v13, s[{SRD2}:{SRD2+3}], s{sT3} offen offset:160 sc1")
    A.label("L_end")

    hdr = f"""; Fused MLP (x@w1+b1 -> relu^2 -> @w2+b2), generated by a python script (work/gen2.py)
; @launch grid=(256,1,1) block=(512,1,1) lds=163840
.amdgcn_target "amdgcn-amd-amdhsa--gfx950"
.text
.globl {KN}
.p2align 8
.type {KN},@function
{KN}:
"""
    ftr = f"""
    s_endpgm
.section .rodata,"a"
.p2align 6
.amdhsa_kernel {KN}
  .amdhsa_next_free_vgpr 256
  .amdhsa_next_free_sgpr 102
  .amdhsa_accum_offset 256
  .amdhsa_group_segment_fixed_size 0
  .amdhsa_kernarg_size 64
  .amdhsa_user_sgpr_count 2
  .amdhsa_user_sgpr_kernarg_segment_ptr 1
  .amdhsa_system_sgpr_workgroup_id_x 1
.end_amdhsa_kernel
"""
    return hdr + A.text() + ftr


def parse_g2(s):
    out = []
    for stg in s.split(","):
        us = []
        for u in stg.split("+"):
            a, b = u.split(":")
            us.append((int(a[0]), int(a[1]), [int(c) for c in b]))
        out.append(us)
    return out


def main():
    ap = argparse.ArgumentParser()
    ap.add_argument("-o", default="k2.s")
    ap.add_argument("--ts", action="store_true")
    ap.add_argument("--passes", default="012")
    ap.add_argument("--depth", type=int, default=5)
    ap.add_argument("--fill", type=int, default=4)
    ap.add_argument("--chk", type=int, default=4)
    ap.add_argument("--grp1", type=int, default=3)
    ap.add_argument("--hres", type=float, default=3.5)
    ap.add_argument("--xfree", type=int, default=11)
    ap.add_argument("--go_at", type=int, default=3)
    ap.add_argument("--g2", default="")
    ap.add_argument("--rmap", default="B")
    ap.add_argument("--tsq", default="")
    ap.add_argument("--verbose", action="store_true")
    ap.add_argument("--dbgts", action="store_true")
    cfg = ap.parse_args()
    cfg.passes = [[int(c) for c in p] for p in cfg.passes.split(",")]
    if not cfg.g2:
        cfg.g2 = ",".join(f"{d}{l}:012" for d in range(3) for l in range(3))
    cfg.g2 = parse_g2(cfg.g2)
    cfg.tsq = [int(x) for x in cfg.tsq.split(",")] if cfg.tsq else []
    open(cfg.o, "w").write(build(cfg))


main()
```

```python
import sys, argparse

KN = "standalone__dense_activation_squared_relu__sampling_kernel"

WS_H = 0x0
WS_IN = 0x1000000
WS_CD = 0x1840000
WS_EP = 0x1850000
WS_TS = 0x8000000
SPIN_MAX = 100000
SGNMASK = 0x6A9956A5


class Asm:
    def __init__(self):
        self.L = []
        self.n = 0

    def __call__(self, s):
        self.L.append("    " + s)

    def label(self, s):
        self.L.append(s + ":")

    def c(self, s):
        self.L.append("    ; " + s)

    def uid(self):
        self.n += 1
        return self.n

    def text(self):
        return "\n".join(self.L)


def build(cfg):
    A = Asm()
    TS = cfg.ts
    passes = cfg.passes
    D = cfg.depth

    stages, blocks, order = [], {}, []

    def blk(name, **kw):
        blocks[name] = dict(name=name, **kw)
        return name

    def add_stage(units, breads):
        q = len(stages)
        stages.append(dict(units=units, breads=breads, q=q))
        for (bb, _kb) in breads:
            b = blocks[bb]
            b["need"] = b["last"] = q
            if b["kind"] != "Hown":
                order.append(bb)
        for (_t, wb, _kb, _first) in units:
            b = blocks[wb]
            if "need" not in b:
                b["need"] = q
                order.append(wb)
            b["last"] = q
        return q

    epi_after, pass_of_line = {}, {}
    for pi, lines in enumerate(passes):
        grp = 1 if (len(lines) > 1 or pi == 0) else cfg.grp1
        for t0 in range(0, 9, grp):
            units, breads = [], []
            for t in range(t0, t0 + grp):
                if pi == 0:
                    breads.append((blk(f"X{t}", kind="X", t=t), t))
                for l in lines:
                    units.append((l, blk(f"W{t}_{l}", kind="W1", t=t, l=l), t, False))
            q = add_stage(units, breads)
        epi_after[q] = (pi, list(lines))
        for l in lines:
            pass_of_line[l] = pi
    n_g1 = len(stages)
    kbidx = {}
    first = {0: True, 1: True, 2: True}
    cnt2 = {0: 0, 1: 0, 2: 0}
    epi2_after = {}
    for stg in cfg.g2:
        units, breads = [], []
        for (d, lk, lines) in stg:
            if (d, lk) not in kbidx:
                kbidx[(d, lk)] = len(kbidx)
                breads.append((blk(f"H{d}_{lk}", kind="Hown" if d == 0 else f"H{d}", d=d, lk=lk), kbidx[(d, lk)]))
            for l in lines:
                units.append((l, blk(f"V{d}_{lk}_{l}", kind="W2", d=d, lk=lk, l=l), kbidx[(d, lk)], first[l]))
                first[l] = False
                cnt2[l] += 1
        q = add_stage(units, breads)
        done = [l for l in range(3) if cnt2[l] == 9 and not any(l in v for v in epi2_after.values())]
        if done:
            epi2_after[q] = done
    assert all(v == 9 for v in cnt2.values())
    NQ = len(stages)
    hown_w = {l: q for q, (pi, lines) in epi_after.items() for l in lines}
    hown_vis = {l: (q + 1 if q == n_g1 - 1 else q + 2) for l, q in hown_w.items()}
    for l in hown_w:
        assert blocks[f"H0_{l}"]["need"] >= hown_vis[l]
    hfetch = {l: hown_vis[l] + cfg.hdel for l in hown_w}

    free_at = {s: -10 for s in range(20)}
    events = [(blocks[nm]["need"] - (cfg.hearly if blocks[nm]["kind"] in ("H1", "H2") else 0), 1, k, nm) for k, nm in enumerate(order)]
    for l, qw in hown_w.items():
        events.append((qw - cfg.hres, 0, l, f"H0_{l}"))
    events.sort()
    for ev in events:
        b = blocks[ev[3]]
        if b["kind"] == "X":
            cand = [16, 17, 18, 19]
        elif ev[0] < cfg.xfree:
            cand = list(range(0, 16))
        else:
            cand = list(range(0, 20))
        s = min(cand, key=lambda s: (free_at[s], s))
        b["slot"] = s
        b["free"] = free_at[s]
        if b["kind"] == "Hown":
            assert b["free"] + 2 <= hown_w[b["lk"]], b
        else:
            assert b["free"] + 2 < b["need"], b
        free_at[s] = b["last"]
    if cfg.verbose:
        print(" | ".join(f"{blocks[e[3]]['name']}:s{blocks[e[3]]['slot']} f{blocks[e[3]]['free']} n{blocks[e[3]]['need']}" for e in events), file=sys.stderr)
    for k, nm in enumerate(order):
        blocks[nm]["pos"] = k
    cum = [sum(1 for nm in order if blocks[nm]["need"] <= q) for q in range(NQ)]

    sX, sW1, sB1, sW2, sB2, sOUT, sDBG, sWS = 16, 18, 20, 22, 24, 26, 28, 30
    sJ, sR, sMT, sI, sWV, sWK = 32, 33, 34, 35, 36, 37
    SRD0, SRD1, SRD2 = 40, 44, 48
    sT0, sT1, sT2, sT3, sT4, sT5 = 52, 53, 54, 55, 56, 57
    sCNT = 58
    sTAG, sPB = 6, 8
    sTS = 64
    tsn = [0]

    def stamp():
        if TS:
            k = tsn[0]
            assert k < 16
            A(f"s_memtime s[{sTS+2*k}:{sTS+2*k+1}]")
            tsn[0] += 1

    def srd(d, p, nbytes):
        A(f"s_mov_b32 s{d}, s{p}")
        A(f"s_mov_b32 s{d+1}, s{p+1}")
        A(f"s_mov_b32 s{d+2}, {nbytes}")
        A(f"s_mov_b32 s{d+3}, 0x00020000")

    def stamp_flush():
        if not TS:
            return
        n = tsn[0]
        A("s_waitcnt lgkmcnt(0)")
        srd(SRD2, sWS, 0x10000000)
        A(f"s_lshl_b32 s{sT0}, s2, 9")
        A(f"s_lshl_b32 s{sT1}, s{sWV}, 6")
        A(f"s_add_u32 s{sT0}, s{sT0}, s{sT1}")
        A(f"s_add_u32 s{sT0}, s{sT0}, {WS_TS}")
        A(f"v_mov_b32 v2, s{sT0}")
        A("s_mov_b64 exec, 1")
        for k in range(n):
            A(f"v_mov_b32 v3, s{sTS+2*k}")
            A(f"buffer_store_dword v3, v2, s[{SRD2}:{SRD2+3}], 0 offen offset:{4*k}")
        A("s_mov_b64 exec, -1")

    def epoch_load(smt):
        A(f"s_lshl_b32 s{sT0}, s{smt}, 7")
        A(f"s_add_u32 s{sT0}, s{sT0}, {WS_EP}")
        A(f"s_load_dwordx2 s[{sTAG}:{sTAG+1}], s[{sWS}:{sWS+1}], s{sT0}")

    def epoch_fin():
        A("s_waitcnt lgkmcnt(0)")
        A(f"s_add_u32 s{sTAG}, s{sTAG}, 1")

    def sign_reg(vd, vt):
        A(f"s_bitcmp1_b32 s{sTAG}, 0")
        A(f"s_cselect_b32 s{sT0}, -1, 0")
        A(f"s_xor_b32 s{sT0}, s{sT0}, {SGNMASK}")
        A(f"v_and_b32 v{vt}, 31, v1")
        A(f"v_lshrrev_b32 v{vt}, v{vt}, s{sT0}")
        A(f"v_bfe_i32 v{vt}, v{vt}, 0, 1")
        A(f"v_and_b32 v{vd}, 0x80008000, v{vt}")

    def sspin(loads, npairs, base):
        k = A.uid()
        A(f"s_mov_b32 s{sCNT}, 0")
        A.label(f"L_s{k}")
        for x in loads:
            A(x)
        A(f"s_add_u32 s{sCNT}, s{sCNT}, 1")
        A("s_waitcnt lgkmcnt(0)")
        A(f"s_cmp_gt_u32 s{sCNT}, {SPIN_MAX}")
        A(f"s_cbranch_scc1 L_sd{k}")
        for n in range(npairs):
            A(f"s_cmp_lg_u64 s[{base+2*n}:{base+2*n+1}], s[{sTAG}:{sTAG+1}]")
            A(f"s_cbranch_scc1 L_s{k}")
        A.label(f"L_sd{k}")

    def mod3add(dst, d, tmp):
        A(f"s_add_u32 s{dst}, s{sI}, {d}")
        A(f"s_cmp_ge_u32 s{dst}, 3")
        A(f"s_cselect_b32 s{tmp}, 3, 0")
        A(f"s_sub_u32 s{dst}, s{dst}, s{tmp}")

    A("s_cmp_ge_u32 s2, 256")
    A("s_cbranch_scc1 L_end")
    A("s_load_dwordx16 s[16:31], s[0:1], 0")
    if cfg.ctouch:
        A("s_getpc_b64 s[4:5]")
        A.label("L_pc")
        A("v_lshlrev_b32 v2, 7, v0")
        A("v_min_u32 v2, L_end-L_pc, v2")
        A("v_and_b32 v2, 0xfffffffc, v2")
        A("global_load_dword v255, v2, s[4:5]")
    if TS:
        A("s_memrealtime s[96:97]")
    stamp()
    A("v_and_b32 v1, 63, v0")
    A("v_lshrrev_b32 v2, 6, v0")
    A(f"s_and_b32 s{sJ}, s2, 7")
    A(f"v_readfirstlane_b32 s{sWV}, v2")
    A(f"s_lshr_b32 s{sR}, s2, 3")
    A(f"s_cmp_lt_u32 s{sR}, 8")
    A("s_cbranch_scc1 L_helper")
    A(f"s_sub_u32 s{sR}, s{sR}, 8")
    A(f"s_mul_i32 s{sMT}, s{sR}, 21846")
    A(f"s_lshr_b32 s{sMT}, s{sMT}, 16")
    A(f"s_mul_i32 s{sT0}, s{sMT}, 3")
    A(f"s_sub_u32 s{sI}, s{sR}, s{sT0}")
    A(f"s_mul_i32 s{sWK}, s{sJ}, 24")
    A(f"s_add_u32 s{sWK}, s{sWK}, s{sR}")
    A(f"s_cmp_lt_u32 s{sWV}, 4")
    A("s_cbranch_scc1 L_compute")
    A(f"s_cmp_eq_u32 s{sWV}, 6")
    A("s_cbranch_scc1 L_xh")
    A(f"s_cmp_eq_u32 s{sWV}, 7")
    A("s_cbranch_scc1 L_h2")
    ts_base = tsn[0]

    def loader_stream(kinds, per_block, issue_fn, setup_fn, cap, group=False, validate=None, before_bar=None):
        mine = [blocks[nm] for nm in order if blocks[nm]["kind"] in kinds]
        outstanding, pend = [], list(mine)

        def ok(b, q):
            if b["free"] + 2 > q:
                return False
            if b["kind"] in ("H1", "H2") and q < min(hfetch[b["lk"]], b["need"] - 1):
                return False
            return True

        def issue_upto(q, ahead, cap):
            n = 0
            lim = cum[q] + ahead if q >= 0 else ahead
            while pend and ok(pend[0], q):
                must = pend[0]["need"] <= q + 1 or pend[0]["pos"] < lim
                if not must and n >= cap:
                    break
                grp = [pend.pop(0)]
                while group and pend and ok(pend[0], q) and pend[0]["need"] == grp[0]["need"] and len(grp) < 3 \
                        and (pend[0]["pos"] < lim or n + len(grp) < cap or pend[0]["need"] <= q + 1):
                    grp.append(pend.pop(0))
                if (len(outstanding) + len(grp)) * per_block > 63:
                    keep = 63 // per_block - len(grp)
                    A(f"s_waitcnt vmcnt({keep*per_block})")
                    del outstanding[:len(outstanding) - keep]
                issue_fn(grp if group else grp[0])
                outstanding.extend(x["name"] for x in grp)
                n += len(grp)

        issue_upto(-1, 4, 0)
        setup_fn()
        issue_upto(-1, cfg.ahead0, 0)
        for q in range(NQ):
            assert not any(b["need"] <= q for b in pend), (q, pend[0])
            for b in mine:
                if b["need"] == q:
                    if b["name"] in outstanding:
                        idx = max(i for i, nm in enumerate(outstanding) if blocks[nm]["need"] <= q) if validate is None \
                            else outstanding.index(b["name"])
                        A(f"s_waitcnt vmcnt({(len(outstanding)-1-idx)*per_block})")
                        del outstanding[:idx + 1]
                    if validate is not None and b["kind"] != "X":
                        validate(b)
            if before_bar is not None:
                before_bar(q)
            if q in cfg.tsq:
                stamp()
            A("s_barrier")
            if q in cfg.pause:
                issue_upto(q, 0, 0)
            else:
                issue_upto(q, cfg.ahead, 99 if q in cfg.burst else (cap if q >= cfg.capfrom else 0))
        assert not pend

    A.c("---- weight loaders (waves 4,5)")
    sHW = sT5
    A(f"s_sub_u32 s{sHW}, s{sWV}, 4")
    A("v_lshrrev_b32 v2, 3, v1")
    A("v_and_b32 v3, 7, v1")
    A("v_bfe_u32 v4, v1, 4, 1")
    A("v_lshlrev_b32 v4, 2, v4")
    A("v_xor_b32 v3, v3, v4")
    A("v_lshlrev_b32 v3, 4, v3")
    A("v_lshrrev_b32 v4, 2, v2")
    A("v_and_b32 v5, 3, v2")
    A("v_lshl_add_u32 v4, v4, 3, v5")
    A(f"s_lshl_b32 s{sT0}, s{sHW}, 5")
    A(f"v_add_u32 v4, s{sT0}, v4")
    A("v_mul_u32_u24 v4, 9216, v4")
    A("v_add_u32 v4, v4, v3")
    for c in range(1, 4):
        A(f"v_add_u32 v{4+c}, {(16*(c>>1)+4*(c&1))*9216 - 1024*c}, v4")
    sLW, sC1 = sT4, 38
    A(f"s_lshl_b32 s{sLW}, s{sHW}, 12")
    A(f"s_mul_i32 s{sC1}, s{sJ}, 1152")
    A(f"s_mul_i32 s{sT1}, s{sI}, 384")
    A(f"s_add_u32 s{sC1}, s{sC1}, s{sT1}")
    A("s_waitcnt lgkmcnt(0)")
    srd(SRD0, sW1, 5308416)
    sV = [62, 63, 59]

    def w2_setup():
        epoch_load(sMT)
        A(f"s_lshl_b32 s{sT0}, s{sHW}, 5")
        A(f"v_add_u32 v8, s{sT0}, v2")
        A("v_mul_u32_u24 v8, 1152, v8")
        A("v_add_u32 v8, v8, v3")
        for c in range(1, 4):
            A(f"v_add_u32 v{8+c}, {8*c*1152 - 1024*c}, v8")
        A(f"s_mul_i32 s39, s{sJ}, {576*1152}")
        A(f"s_mul_i32 s{sT0}, s{sI}, 384")
        A(f"s_add_u32 s39, s39, s{sT0}")
        for d in range(3):
            mod3add(sT1, d, sT2)
            A(f"s_mul_i32 s{sT1}, s{sT1}, {192*1152}")
            A(f"s_add_u32 s{sV[d]}, s39, s{sT1}")
        srd(SRD1, sW2, 5308416)

    def issue_w(grp):
        for b in grp:
            A(f"s_add_u32 m0, s{sLW}, {b['slot']*8192}")
            if b["kind"] == "W1":
                A(f"s_add_u32 s{sT0}, s{sC1}, {64*b['t']*9216 + 128*b['l']}")
                vb, sr = 4, SRD0
            else:
                A(f"s_add_u32 s{sT0}, s{sV[b['d']]}, {64*b['lk']*1152 + 128*b['l']}")
                vb, sr = 8, SRD1
            for c in range(4):
                A(f"buffer_load_dwordx4 v{vb+c}, s[{sr}:{sr+3}], s{sT0} offen offset:{1024*c} {cfg.wfl} lds")

    loader_stream(("W1", "W2"), 4, issue_w, w2_setup, cfg.capw, group=True)
    epoch_fin()
    A("s_branch L_reduce")
    ts_max = tsn[0]

    sXB, sH = 38, 39

    def h_setup(d):
        A("v_lshlrev_b32 v12, 4, v1")
        A("v_add_u32 v13, 0x10000, v12")
        A("v_add_u32 v14, 0x20000, v12")
        mod3add(sT1, d, sT2)
        A(f"s_sub_u32 s{sT0}, s{sWK}, s{sI}")
        A(f"s_add_u32 s{sT1}, s{sT1}, s{sT0}")
        A(f"s_mul_i32 s{sH}, s{sT1}, 24576")
        srd(SRD1, sWS, 0x10000000)
        epoch_load(sMT)

    def issue_xh(b):
        for h in range(2):
            A(f"s_mov_b32 m0, {b['slot']*8192 + 4096*h}")
            if b["kind"] == "X":
                A(f"s_add_u32 s{sT0}, s{sXB}, {128*b['t'] + 32*1152*h}")
                for c in range(4):
                    A(f"buffer_load_dwordx4 v{8+c}, s[{SRD0}:{SRD0+3}], s{sT0} offen offset:{1024*c} lds")
            else:
                A(f"s_add_u32 s{sT0}, s{sH}, {WS_H + 8192*b['lk'] + 4096*h}")
                for c in range(4):
                    A(f"buffer_load_dwordx4 v12, s[{SRD1}:{SRD1+3}], s{sT0} offen offset:{1024*c} sc1 lds")

    def validate(b):
        k = A.uid()
        addr = b["slot"] * 8192
        va = 12 + (addr >> 16)
        A(f"s_branch L_v{k}")
        A.label(f"L_vr{k}")
        issue_xh(b)
        A(f"s_add_u32 s{sCNT}, s{sCNT}, 1")
        A("s_waitcnt vmcnt(0)")
        A.label(f"L_v{k}")
        for c in range(8):
            A(f"ds_read_b128 v[{32+4*c}:{35+4*c}], v{va} offset:{(addr & 0xffff) + 1024*c}")
        for c in range(8):
            r = 32 + 4 * c
            A(f"s_waitcnt lgkmcnt({7-c})" if not TS else "s_waitcnt lgkmcnt(0)")
            if c == 0:
                A(f"v_or3_b32 v16, v{r}, v{r+1}, v{r+2}")
                A(f"v_bitop3_b32 v17, v{r}, v{r+1}, v{r+2} bitop3:0x80")
                A(f"v_or_b32 v16, v16, v{r+3}")
                A(f"v_and_b32 v17, v17, v{r+3}")
            else:
                A(f"v_or3_b32 v16, v16, v{r}, v{r+1}")
                A(f"v_bitop3_b32 v17, v17, v{r}, v{r+1} bitop3:0x80")
                A(f"v_or3_b32 v16, v16, v{r+2}, v{r+3}")
                A(f"v_bitop3_b32 v17, v17, v{r+2}, v{r+3} bitop3:0x80")
        A("v_xor_b32 v16, v16, v15")
        A("v_xor_b32 v17, v17, v15")
        A("v_or_b32 v16, v16, v17")
        A("v_and_b32 v16, 0x80008000, v16")
        A("v_cmp_ne_u32 vcc, 0, v16")
        A(f"s_cmp_gt_u32 s{sCNT}, {SPIN_MAX}")
        A(f"s_cbranch_scc1 L_vd{k}")
        A(f"s_cbranch_vccnz L_vr{k}")
        A.label(f"L_vd{k}")

    def bb_tag(q):
        if q == 2:
            epoch_fin()
            sign_reg(15, 16)
            A(f"s_mov_b32 s{sCNT}, 0")

    A.label("L_xh")
    tsn[0] = ts_base
    A("v_lshrrev_b32 v2, 3, v1")
    A("v_and_b32 v3, 7, v1")
    A("v_lshrrev_b32 v4, 4, v1")
    A("v_xor_b32 v3, v3, v4")
    A("v_lshlrev_b32 v3, 4, v3")
    A("v_mul_u32_u24 v4, 1152, v2")
    A("v_add_u32 v8, v4, v3")
    A("v_xor_b32 v5, 64, v8")
    A(f"v_add_u32 v9, {8*1152 - 1024}, v5")
    A(f"v_add_u32 v10, {16*1152 - 2048}, v8")
    A(f"v_add_u32 v11, {24*1152 - 3072}, v5")
    A(f"s_mul_i32 s{sXB}, s{sMT}, {64*1152}")
    A("s_waitcnt lgkmcnt(0)")
    srd(SRD0, sX, 589824)
    loader_stream(("X", "H1"), 8, issue_xh, lambda: h_setup(1), cfg.capx, validate=validate, before_bar=bb_tag)
    if TS:
        A(f"s_mov_b32 s{sTS+24}, s{sCNT}")
    A("s_branch L_reduce")
    ts_max = max(ts_max, tsn[0])

    A.label("L_h2")
    tsn[0] = ts_base
    A("s_waitcnt lgkmcnt(0)")
    q_go2 = min(epi2_after)

    def bb_h2(q):
        bb_tag(q)
        if q == 2:
            A(f"s_lshl_b32 s{sT3}, s{sMT}, 3")
            A(f"s_add_u32 s{sT3}, s{sT3}, s{sJ}")
            A(f"s_lshl_b32 s{sT3}, s{sT3}, 7")
            A(f"s_add_u32 s{sT3}, s{sT3}, {WS_CD}")
            A(f"s_add_u32 s{sPB}, s{sWS}, s{sT3}")
            A(f"s_addc_u32 s{sPB+1}, s{sWS+1}, 0")
        if q == q_go2 - cfg.go2lead:
            A(f"s_load_dwordx16 s[80:95], s[{sPB}:{sPB+1}], 0 glc")
        if q == q_go2:
            k = A.uid()
            A("s_waitcnt lgkmcnt(0)")
            A(f"s_mov_b32 s{sT0}, 0")
            for n in range(8):
                A(f"s_cmp_lg_u64 s[{80+2*n}:{81+2*n}], s[{sTAG}:{sTAG+1}]")
                A(f"s_addc_u32 s{sT0}, s{sT0}, 0")
            A(f"s_cmp_eq_u32 s{sT0}, 0")
            A(f"s_cbranch_scc1 L_go{k}")
            sspin([f"s_load_dwordx16 s[80:95], s[{sPB}:{sPB+1}], 0 glc"], 8, 80)
            A.label(f"L_go{k}")

    loader_stream(("H2",), 8, issue_xh, lambda: h_setup(2), cfg.capx, validate=validate, before_bar=bb_h2)
    assert tsn[0] <= 8
    stamp_flush()
    A("s_branch L_end")

    A.label("L_reduce")
    tsn[0] = ts_max
    srd(SRD1, sWS, 0x10000000)
    sC = sT4
    A(f"s_sub_u32 s{sC}, s{sWV}, 4")
    A("v_lshlrev_b32 v2, 4, v1")
    A(f"s_lshl_b32 s{sT2}, s{sC}, 6")
    A(f"s_and_b32 s{sT1}, s{sJ}, 1")
    A(f"s_lshl_b32 s{sT1}, s{sT1}, 4")
    A(f"s_add_u32 s{sT2}, s{sT2}, s{sT1}")
    A(f"s_lshr_b32 s{sT1}, s{sJ}, 2")
    A(f"s_lshl_b32 s{sT1}, s{sT1}, 5")
    A(f"s_add_u32 s{sT2}, s{sT2}, s{sT1}")
    A(f"s_mul_i32 s{sT1}, s{sI}, 192")
    A(f"s_add_u32 s{sT2}, s{sT2}, s{sT1}")
    A(f"s_lshl_b32 s{sT2}, s{sT2}, 1")
    A("v_lshrrev_b32 v3, 5, v1")
    A("v_lshlrev_b32 v3, 3, v3")
    srd(SRD0, sB2, 1152)
    A(f"buffer_load_dwordx2 v[4:5], v3, s[{SRD0}:{SRD0+3}], s{sT2} offen")
    A(f"buffer_load_dwordx2 v[6:7], v3, s[{SRD0}:{SRD0+3}], s{sT2} offen offset:16")
    A(f"s_bfe_u32 s{sT1}, s{sJ}, 0x10001")
    A(f"s_lshl_b32 s{sT1}, s{sT1}, 5")
    A(f"s_lshl_b32 s{sT3}, s{sMT}, 6")
    A(f"s_add_u32 s{sT1}, s{sT1}, s{sT3}")
    A(f"s_mul_i32 s{sT1}, s{sT1}, 1152")
    A(f"s_add_u32 s{sT2}, s{sT2}, s{sT1}")
    A("v_and_b32 v8, 31, v1")
    A("v_mul_u32_u24 v8, 1152, v8")
    A("v_add_u32 v8, v8, v3")
    sign_reg(15, 16)
    A(f"s_mul_i32 s{sT0}, s{sWK}, {8*3072}")
    A(f"s_lshl_b32 s{sT1}, s{sC}, 10")
    A(f"s_add_u32 s{sT0}, s{sT0}, s{sT1}")
    A(f"s_add_u32 s{sT0}, s{sT0}, {WS_IN}")
    A("v_mov_b32 v13, 0")
    A("s_waitcnt vmcnt(0)")
    for k in range(4):
        A(f"v_xor_b32 v{4+k}, v{4+k}, v15")
        A(f"v_lshlrev_b32 v{24+2*k}, 16, v{4+k}")
        A(f"v_and_b32 v{25+2*k}, 0xffff0000, v{4+k}")
    sP = sT5
    A(f"s_mov_b32 s{sP}, 0xff")
    A(f"s_mov_b32 s{sCNT}, 0")
    if cfg.rsleep:
        A(f"s_sleep {cfg.rsleep}")
    stamp()
    A.label("L_rpoll")
    for s in range(8):
        A(f"s_bitcmp0_b32 s{sP}, {s}")
        A(f"s_cbranch_scc1 L_rl{s}")
        A(f"s_add_u32 s{sT1}, s{sT0}, {3072*s}")
        A(f"buffer_load_dwordx4 v[{32+4*s}:{35+4*s}], v2, s[{SRD1}:{SRD1+3}], s{sT1} offen {cfg.rfl}")
        A.label(f"L_rl{s}")
    A(f"s_add_u32 s{sCNT}, s{sCNT}, 1")
    A("s_waitcnt vmcnt(0)")
    for s in range(8):
        r = 32 + 4 * s
        A(f"s_bitcmp0_b32 s{sP}, {s}")
        A(f"s_cbranch_scc1 L_ra{s}")
        A(f"v_max3_u32 v9, v{r}, v{r+1}, v{r+2}")
        A(f"v_max_u32 v9, v9, v{r+3}")
        A("v_cmp_eq_u32 vcc, -1, v9")
        A(f"s_cbranch_vccnz L_ra{s}")
        A(f"s_bitset0_b32 s{sP}, {s}")
        for k in range(4):
            A(f"v_lshlrev_b32 v10, 16, v{r+k}")
            A(f"v_and_b32 v11, 0xffff0000, v{r+k}")
            A(f"v_pk_add_f32 v[{24+2*k}:{25+2*k}], v[{24+2*k}:{25+2*k}], v[10:11]")
        A.label(f"L_ra{s}")
    A(f"s_cmp_gt_u32 s{sCNT}, {SPIN_MAX}")
    A("s_cbranch_scc1 L_rdone")
    A(f"s_cmp_lg_u32 s{sP}, 0")
    A("s_cbranch_scc1 L_rpoll")
    A.label("L_rdone")
    stamp()
    for k in range(4):
        A(f"v_cvt_pk_bf16_f32 v{24+k}, v{24+2*k}, v{25+2*k}")
        A(f"v_xor_b32 v{24+k}, v{24+k}, v15")
    srd(SRD0, sOUT, 589824)
    A(f"buffer_store_dwordx2 v[24:25], v8, s[{SRD0}:{SRD0+3}], s{sT2} offen")
    A(f"buffer_store_dwordx2 v[26:27], v8, s[{SRD0}:{SRD0+3}], s{sT2} offen offset:16")
    A(f"s_or_b32 s{sT0}, s{sJ}, s{sI}")
    A(f"s_or_b32 s{sT0}, s{sT0}, s{sC}")
    A(f"s_cmp_lg_u32 s{sT0}, 0")
    A("s_cbranch_scc1 L_noep")
    A(f"v_mov_b32 v16, s{sTAG}")
    A(f"v_mov_b32 v17, s{sTAG+1}")
    A(f"s_lshl_b32 s{sT0}, s{sMT}, 7")
    A(f"s_add_u32 s{sT0}, s{sT0}, {WS_EP}")
    A("s_mov_b64 exec, 1")
    A(f"buffer_store_dwordx2 v[16:17], v13, s[{SRD1}:{SRD1+3}], s{sT0} offen sc1")
    A("s_mov_b64 exec, -1")
    A.label("L_noep")
    if TS:
        A("s_waitcnt vmcnt(0)")
        stamp()
        A("s_memrealtime s[98:99]")
        A("s_waitcnt lgkmcnt(0)")
        A(f"s_mov_b32 s{sTS+26}, s96"); A(f"s_mov_b32 s{sTS+28}, s98"); A(f"s_mov_b32 s{sTS+30}, s{sCNT}")
        assert tsn[0] <= 12
        tsn[0] = 16
        stamp_flush()
    A("s_branch L_end")

    A.label("L_compute")
    tsn[0] = ts_base
    vACC, vAB, vXB, vT = 16, 64, 96, 240
    nAB = D + 1
    vA, vBX, vBH, vHW = [2, 3, 4], [5, 6, 7, 8], [9, 10, 11], [12, 13, 14]
    vSG, vL16 = 15, vT + 10
    assert vAB + 4 * nAB <= vXB
    sA, sBq = sT4, sT5
    A(f"s_and_b32 s{sA}, s{sWV}, 1")
    A(f"s_lshr_b32 s{sBq}, s{sWV}, 1")
    A(f"v_lshrrev_b32 v{vT}, 5, v1")
    A(f"s_mul_i32 s60, s{sJ}, 1152")
    A(f"s_mul_i32 s{sT1}, s{sI}, 384")
    A(f"s_add_u32 s60, s60, s{sT1}")
    A(f"s_lshl_b32 s{sT1}, s{sBq}, 6")
    A(f"s_add_u32 s61, s60, s{sT1}")
    A(f"v_lshlrev_b32 v{vT+4}, 3, v{vT}")
    if cfg.sa:
        A(f"s_add_u32 s{sT3}, s{sWV}, 1")
        A(f"v_and_b32 v{vT+5}, 7, v1")
        A(f"v_mul_u32_u24 v{vT+5}, 9216, v{vT+5}")
        A(f"v_lshrrev_b32 v{vT+6}, 3, v1")
        A(f"v_min_u32 v{vT+6}, 2, v{vT+6}")
        A(f"v_lshl_add_u32 v{vT+5}, v{vT+6}, 7, v{vT+5}")
        A(f"s_lshl_b32 s{sT1}, s{sT3}, 3")
        A(f"s_add_u32 s{sT1}, s{sT1}, s{sMT}")
        A(f"s_mul_i32 s{sT1}, s{sT1}, {8*9216}")
        A(f"s_add_u32 s{sT1}, s{sT1}, s60")
        A(f"s_mul_i32 s{sT2}, s{sI}, 22")
        A(f"v_min_u32 v{vT+6}, 21, v1")
        A(f"v_add_u32 v{vT+6}, s{sT2}, v{vT+6}")
        A(f"v_min_u32 v{vT+6}, 63, v{vT+6}")
        A(f"v_mul_u32_u24 v{vT+6}, 1152, v{vT+6}")
        A(f"s_mul_i32 s{sT2}, s{sMT}, {64*1152}")
        A(f"s_lshl_b32 s{sT3}, s{sT3}, 7")
        A(f"s_add_u32 s{sT2}, s{sT2}, s{sT3}")
    A("s_waitcnt lgkmcnt(0)")
    srd(SRD0, sB1, 9216)
    for l in range(3):
        for g in range(4):
            r = vXB + 2 * (4 * l + g)
            A(f"buffer_load_dwordx2 v[{r}:{r+1}], v{vT+4}, s[{SRD0}:{SRD0+3}], s61 offen offset:{128*l+16*g}")
    if cfg.sa:
        srd(SRD1, sW1, 5308416)
        srd(SRD2, sX, 589824)
        A(f"s_cmp_ge_u32 s{sWV}, {cfg.sa}")
        A("s_cbranch_scc1 L_tdone")
        A(f"buffer_load_dword v255, v{vT+5}, s[{SRD1}:{SRD1+3}], s{sT1} offen nt")
        A(f"buffer_load_dword v255, v{vT+6}, s[{SRD2}:{SRD2+3}], s{sT2} offen")
        A.label("L_tdone")
    epoch_load(sMT)
    srd(SRD1, sWS, 0x10000000)
    A(f"v_bfe_u32 v{vT+1}, v1, 2, 2")
    A(f"v_lshl_add_u32 v{vT+2}, v{vT}, 2, v{vT+1}")
    A(f"v_lshlrev_b32 v{vT+2}, 7, v{vT+2}")
    A(f"v_bfe_u32 v{vT+3}, v1, 3, 1")
    A(f"v_xor_b32 v{vT+3}, s{sBq}, v{vT+3}")
    A(f"v_lshl_add_u32 v{vT+2}, v{vT+3}, 6, v{vT+2}")
    A(f"v_bfe_u32 v{vT+3}, v1, 4, 1")
    A(f"v_lshl_add_u32 v{vT+2}, v{vT+3}, 5, v{vT+2}")
    A(f"v_and_b32 v{vT+3}, 3, v1")
    A(f"v_lshl_add_u32 v{vA[0]}, v{vT+3}, 3, v{vT+2}")
    A(f"v_add_u32 v{vA[1]}, 0x10000, v{vA[0]}")
    A(f"v_add_u32 v{vA[2]}, 0x20000, v{vA[0]}")
    A(f"v_and_b32 v{vT+1}, 31, v1")
    A(f"v_bfe_u32 v{vT+2}, v1, 1, 3")
    A(f"v_xor_b32 v{vT+2}, v{vT}, v{vT+2}")
    A(f"v_lshlrev_b32 v{vT+2}, 4, v{vT+2}")
    A(f"v_lshl_add_u32 v{vT+2}, v{vT+1}, 7, v{vT+2}")
    A(f"s_lshl_b32 s{sT0}, s{sA}, 12")
    A(f"s_add_u32 s{sT1}, s{sT0}, 0x20000")
    A(f"v_add_u32 v{vBX[0]}, s{sT1}, v{vT+2}")
    for sp in range(1, 4):
        A(f"v_xor_b32 v{vBX[sp]}, {32*sp}, v{vBX[0]}")
    A(f"v_lshl_add_u32 v{vBH[0]}, v1, 4, s{sT0}")
    A(f"v_add_u32 v{vBH[1]}, 0x10000, v{vBH[0]}")
    A(f"v_add_u32 v{vBH[2]}, 0x20000, v{vBH[0]}")
    A(f"s_lshl_b32 s{sT1}, s{sBq}, 11")
    for k in range(3):
        A(f"v_add_u32 v{vHW[k]}, s{sT1}, v{vBH[k]}")
    sI0, sI1 = 38, 39
    sHS = [60, 61, 62]
    A(f"s_mul_i32 s{sI0}, s{sWV}, 48")
    A(f"s_add_u32 s{sI0}, s{sI0}, s{sR}")
    A(f"s_lshl_b32 s{sI0}, s{sI0}, 3")
    A(f"s_add_u32 s{sI0}, s{sI0}, s{sJ}")
    A(f"s_mul_i32 s{sI0}, s{sI0}, 3072")
    A(f"s_add_u32 s{sI0}, s{sI0}, {WS_IN}")
    A(f"s_add_u32 s{sI1}, s{sI0}, {24*8*3072}")
    A(f"s_mul_i32 s{sHS[0]}, s{sWK}, 24576")
    if WS_H:
        A(f"s_add_u32 s{sHS[0]}, s{sHS[0]}, {WS_H}")
    A(f"s_add_u32 s{sHS[1]}, s{sHS[0]}, 8192")
    A(f"s_add_u32 s{sHS[2]}, s{sHS[0]}, 16384")
    A(f"v_lshlrev_b32 v{vL16}, 4, v1")
    epoch_fin()
    sign_reg(vSG, vT + 1)
    A(f"s_mov_b32 s{sT2}, 0xfffffffe")
    A("s_waitcnt vmcnt(0)" if not cfg.sa else "s_waitcnt vmcnt(2)")
    if cfg.sa:
        A(f"s_cmp_lt_u32 s{sWV}, {cfg.sa}")
        A("s_cbranch_scc1 L_bw")
        A("s_waitcnt vmcnt(0)")
        A.label("L_bw")
    for l in range(3):
        for g in range(4):
            r = vXB + 2 * (4 * l + g)
            d = vACC + 16 * l + 4 * g
            A(f"v_lshlrev_b32 v{d}, 16, v{r}")
            A(f"v_and_b32 v{d+1}, 0xffff0000, v{r}")
            A(f"v_lshlrev_b32 v{d+2}, 16, v{r+1}")
            A(f"v_and_b32 v{d+3}, 0xffff0000, v{r+1}")
    stamp()

    items = []
    for st in stages:
        bykb = {}
        for u in st["units"]:
            bykb.setdefault(u[2], []).append(u)
        for kb, us in bykb.items():
            for sp in range(4):
                for (t, wb, _kb, fst) in us:
                    items.append(dict(q=st["q"], tile=t, wb=wb, kb=kb, sp=sp, first=(fst and sp == 0)))
    NI = len(items)
    last_item = {}
    for n, it in enumerate(items):
        last_item[it["q"]] = n
    bread_of = {(st["q"], kb): bb for st in stages for (bb, kb) in st["breads"]}
    lg = []

    def ds_issue(instr, tag):
        cap = 11 if TS else 15
        if len(lg) >= cap:
            A(f"s_waitcnt lgkmcnt({cap-2})")
            del lg[:len(lg) - (cap - 2)]
        A(instr)
        lg.append(tag)

    def ds_need(tags):
        idx = max([i for i, t in enumerate(lg) if t in tags], default=-1)
        if idx >= 0:
            A(f"s_waitcnt lgkmcnt({len(lg) - 1 - idx})")
            del lg[:idx + 1]

    checked = [-1]
    bdone = set()

    def issue_reads(n):
        it = items[n]
        q = it["q"]
        if q > checked[0]:
            ds_need({"hw"})
            A("s_barrier")
            checked[0] = q
            if q in cfg.tsq:
                stamp()
        key = (q, it["kb"])
        if key in bread_of and (key, it["sp"]) not in bdone:
            bdone.add((key, it["sp"]))
            bb = blocks[bread_of[key]]
            addr = bb["slot"] * 8192
            r = vXB + 16 * it["kb"] + 4 * it["sp"]
            if bb["kind"] == "X":
                assert addr >> 16 == 2
                ds_issue(f"ds_read_b128 v[{r}:{r+3}], v{vBX[it['sp']]} offset:{addr & 0xffff}", ("B", it["kb"], it["sp"]))
            else:
                ds_issue(f"ds_read_b128 v[{r}:{r+3}], v{vBH[addr >> 16]} offset:{(addr & 0xffff) + 1024*it['sp']}",
                         ("B", it["kb"], it["sp"]))
        wb = blocks[it["wb"]]
        addr = wb["slot"] * 8192 + 2048 * it["sp"]
        r = vAB + 4 * (n % nAB)
        ds_issue(f"ds_read_b64_tr_b16 v[{r}:{r+1}], v{vA[addr >> 16]} offset:{addr & 0xffff}", ("A", n))
        ds_issue(f"ds_read_b64_tr_b16 v[{r+2}:{r+3}], v{vA[addr >> 16]} offset:{(addr & 0xffff) + 1024}", ("A", n))

    def epi1_instrs(pi, lines):
        out = []
        for l in lines:
            a = vACC + 16 * l
            addr = blocks[f"H0_{l}"]["slot"] * 8192
            for half in range(2):
                base = a + 8 * half
                for k in range(8):
                    out.append(("v", f"v_max_f32 v{base+k}, 0, v{base+k}"))
                for k in range(0, 8, 2):
                    out.append(("v", f"v_pk_mul_f32 v[{base+k}:{base+k+1}], v[{base+k}:{base+k+1}], v[{base+k}:{base+k+1}]"))
                for k in range(4):
                    out.append(("v", f"v_cvt_pk_bf16_f32 v{base+k}, v{base+2*k}, v{base+2*k+1}"))
                for k in range(4):
                    out.append(("v", f"v_or_b32 v{base+k}, v{base+k}, v{vSG}"))
                out.append(("v", f"buffer_store_dwordx4 v[{base}:{base+3}], v{vHW[0]}, s[{SRD1}:{SRD1+3}], s{sHS[l]} offen offset:{1024*half} sc1"))
                out.append(("w", f"ds_write_b128 v{vHW[addr >> 16]}, v[{base}:{base+3}] offset:{(addr & 0xffff) + 1024*half}"))
        return out

    def epi2_instrs(lines):
        out = []
        for l in lines:
            for u in range(2):
                base = vACC + 8 * (2 * l + u)
                for k in range(4):
                    out.append(("v", f"v_cvt_pk_bf16_f32 v{base+k}, v{base+2*k}, v{base+2*k+1}"))
                for k in range(4):
                    out.append(("v", f"v_min_u32 v{base+k}, s{sT2}, v{base+k}"))
                so = sI0 if u == 0 else sI1
                out.append(("v", f"buffer_store_dwordx4 v[{base}:{base+3}], v{vL16}, s[{SRD1}:{SRD1+3}], s{so} offen offset:{1024*l} sc1"))
        return out

    fillers = []
    fill_start = 0
    fill_tiles = set()
    mfma_pos = {}
    fill_fresh = [False]

    def states_since(pos):
        c = 0
        for ln in A.L[pos + 1:]:
            t = ln.strip()
            if t.endswith(":") or t.startswith(";"):
                continue
            c += int(t.split()[1]) + 1 if t.startswith("s_nop") else 1
        return c

    def emit(kind, t):
        if fill_fresh[0]:
            fill_fresh[0] = False
            have = min(states_since(mfma_pos[tl]) for tl in fill_tiles)
            if have < 12:
                A(f"s_nop {12 - have - 1}")
        if kind == "w":
            ds_issue(t, "hw")
        else:
            A(t)

    def flush_fillers():
        nonlocal fillers
        for (kind, t) in fillers:
            emit(kind, t)
        fillers = []
        fill_tiles.clear()

    nread = 0
    for n in range(NI):
        it = items[n]
        lim = min(NI - 1, n + D)
        while nread <= lim:
            nx = items[nread]
            if nx["q"] > checked[0]:
                due = [l for l, v in hown_vis.items() if v == nx["q"]]
                if due:
                    if last_item[hown_w[due[0]]] >= n:
                        break
                    flush_fillers()
            key = (nx["q"], nx["kb"])
            if key in bread_of and (key, nx["sp"]) not in bdone:
                if any(items[m]["kb"] == nx["kb"] and items[m]["sp"] == nx["sp"] for m in range(n, nread)):
                    break
            issue_reads(nread)
            nread += 1
        assert nread > n
        if it["tile"] in fill_tiles:
            flush_fillers()
            A("s_nop 1")
        ds_need({("A", n), ("B", it["kb"], it["sp"])})
        if it["first"]:
            ds_need({"hw"})
        ra = vAB + 4 * (n % nAB)
        rb = vXB + 16 * it["kb"] + 4 * it["sp"]
        acc = vACC + 16 * it["tile"]
        c = "0" if it["first"] else f"v[{acc}:{acc+15}]"
        A(f"v_mfma_f32_32x32x16_bf16 v[{acc}:{acc+15}], v[{ra}:{ra+3}], v[{rb}:{rb+3}], {c}")
        mfma_pos[it["tile"]] = len(A.L) - 1
        k = 0
        while fillers and k < cfg.fill and n >= fill_start:
            kind, t = fillers.pop(0)
            emit(kind, t)
            k += 1
        if not fillers:
            fill_tiles.clear()
        if n == last_item[it["q"]]:
            q = it["q"]
            new = []
            if q in epi_after:
                new, tl = epi1_instrs(*epi_after[q]), epi_after[q][1]
            elif q in epi2_after:
                new, tl = epi2_instrs(epi2_after[q]), epi2_after[q]
            if new:
                stamp()
                flush_fillers()
                fillers = new
                fill_tiles.update(tl)
                fill_fresh[0] = True
                fill_start = n + 3
    flush_fillers()
    stamp()
    if TS:
        A("s_waitcnt vmcnt(0)")
        stamp()
        stamp_flush()
    A("s_branch L_end")

    A.label("L_helper")
    sG = 38
    A(f"s_lshl_b32 s{sG}, s{sWV}, 3")
    A(f"s_add_u32 s{sG}, s{sG}, s{sR}")
    A("v_mul_u32_u24 v8, 9216, v1")
    A("v_mul_u32_u24 v9, 1152, v1")
    A(f"s_mul_i32 s39, s{sJ}, 1152")
    A("s_waitcnt lgkmcnt(0)")

    def sdiv(dst, src, d):
        A(f"s_mul_i32 s{dst}, s{src}, {(65536 + d - 1) // d}")
        A(f"s_lshr_b32 s{dst}, s{dst}, 16")

    if cfg.touch:
        srd(SRD0, sW1, 5308416)
        srd(SRD1, sX, 589824)
        phases, base = [], 0
        for pi, ls in enumerate(passes):
            t0 = cfg.sa + 1 if pi == 0 else 0
            c = 3 * len(ls) + (8 if pi == 0 else 0)
            phases.append((base, (9 - t0) * c, t0, c, ls))
            base += (9 - t0) * c
        for rnd in range((base + 63) // 64):
            k = A.uid()
            A(f"s_add_u32 s{sT0}, s{sG}, {64*rnd}")
            for (pb, cnt, t0, c, ls) in phases:
                if pb + cnt <= 64 * rnd or pb >= 64 * rnd + 64:
                    continue
                k2 = A.uid()
                A(f"s_cmp_ge_u32 s{sT0}, {pb+cnt}")
                A(f"s_cbranch_scc1 L_hp{k2}")
                if pb:
                    A(f"s_sub_u32 s{sT0}, s{sT0}, {pb}")
                sdiv(sT1, sT0, c)
                A(f"s_mul_i32 s{sT2}, s{sT1}, {c}")
                A(f"s_sub_u32 s{sT2}, s{sT0}, s{sT2}")
                if t0:
                    A(f"s_add_u32 s{sT1}, s{sT1}, {t0}")
                nw = 3 * len(ls)
                if c > nw:
                    A(f"s_cmp_ge_u32 s{sT2}, {nw}")
                    A(f"s_cbranch_scc1 L_hx{k2}")
                if len(ls) != 3:
                    if len(ls) == 1:
                        A(f"s_mul_i32 s{sT2}, s{sT2}, 3")
                    else:
                        A(f"s_lshr_b32 s{sT3}, s{sT2}, 1")
                        A(f"s_add_u32 s{sT2}, s{sT2}, s{sT3}")
                    if ls[0]:
                        A(f"s_add_u32 s{sT2}, s{sT2}, {ls[0]}")
                A(f"s_mul_i32 s{sT1}, s{sT1}, {64*9216}")
                A(f"s_lshl_b32 s{sT2}, s{sT2}, 7")
                A(f"s_add_u32 s{sT1}, s{sT1}, s{sT2}")
                A(f"s_add_u32 s{sT1}, s{sT1}, s39")
                A(f"buffer_load_dword v255, v8, s[{SRD0}:{SRD0+3}], s{sT1} offen nt")
                A(f"s_branch L_ht{k}")
                if c > nw:
                    A.label(f"L_hx{k2}")
                    A(f"s_sub_u32 s{sT2}, s{sT2}, {nw}")
                    A(f"s_mul_i32 s{sT2}, s{sT2}, {64*1152}")
                    A(f"s_lshl_b32 s{sT1}, s{sT1}, 7")
                    A(f"s_add_u32 s{sT1}, s{sT1}, s{sT2}")
                    A(f"buffer_load_dword v255, v9, s[{SRD1}:{SRD1+3}], s{sT1} offen")
                    A(f"s_branch L_ht{k}")
                A.label(f"L_hp{k2}")
            A.label(f"L_ht{k}")
    srd(SRD1, sWS, 0x10000000)
    epoch_load(sR)
    if cfg.touch:
        srd(SRD0, sW2, 5308416)
        A(f"s_mul_i32 s39, s{sJ}, 663552")
        korder = sorted(kbidx, key=lambda x: kbidx[x])
        tabD = sum(d << (2 * u) for u, (d, lk) in enumerate(korder))
        tabL = sum(lk << (2 * u) for u, (d, lk) in enumerate(korder))
        for rnd in range(2):
            k = A.uid()
            A(f"s_add_u32 s{sT0}, s{sG}, {64*rnd}")
            A(f"s_cmp_ge_u32 s{sT0}, 81")
            A(f"s_cbranch_scc1 L_ht{k}")
            sdiv(sT1, sT0, 9)
            A(f"s_mul_i32 s{sT2}, s{sT1}, 9")
            A(f"s_sub_u32 s{sT2}, s{sT0}, s{sT2}")
            sdiv(sT3, sT2, 3)
            A(f"s_lshl_b32 s{sT1}, s{sT1}, 1")
            A(f"s_lshr_b32 s{sT0}, {tabD}, s{sT1}")
            A(f"s_and_b32 s{sT0}, s{sT0}, 3")
            A(f"s_add_u32 s{sT0}, s{sT0}, s{sT3}")
            A(f"s_cmp_ge_u32 s{sT0}, 3")
            A(f"s_cselect_b32 s{sT3}, 3, 0")
            A(f"s_sub_u32 s{sT0}, s{sT0}, s{sT3}")
            A(f"s_lshr_b32 s{sT3}, {tabL}, s{sT1}")
            A(f"s_and_b32 s{sT3}, s{sT3}, 3")
            A(f"s_mul_i32 s{sT0}, s{sT0}, {192*1152}")
            A(f"s_mul_i32 s{sT3}, s{sT3}, {64*1152}")
            A(f"s_add_u32 s{sT0}, s{sT0}, s{sT3}")
            A(f"s_lshl_b32 s{sT2}, s{sT2}, 7")
            A(f"s_add_u32 s{sT0}, s{sT0}, s{sT2}")
            A(f"s_add_u32 s{sT0}, s{sT0}, s39")
            A(f"buffer_load_dword v255, v9, s[{SRD0}:{SRD0+3}], s{sT0} offen nt")
            A.label(f"L_ht{k}")
        if cfg.clrwait:
            A("s_waitcnt vmcnt(0)")
            A("s_barrier")
    tsn[0] = 1
    stamp()
    for k in range(4, 8):
        A(f"v_mov_b32 v{k}, -1")
    A("v_lshlrev_b32 v2, 4, v1")
    A(f"s_mul_i32 s{sT0}, s{sJ}, 24")
    A(f"s_mul_i32 s{sT1}, s{sR}, 3")
    A(f"s_add_u32 s{sT0}, s{sT0}, s{sT1}")
    A(f"s_mul_i32 s{sT0}, s{sT0}, 24576")
    A(f"s_mul_i32 s{sT1}, s{sWV}, 9216")
    A(f"s_add_u32 s{sT0}, s{sT0}, s{sT1}")
    A(f"s_add_u32 s{sT0}, s{sT0}, {WS_IN}")
    for c in range(9):
        if c % 4 == 0 and c:
            A(f"s_add_u32 s{sT0}, s{sT0}, 4096")
        A(f"buffer_store_dwordx4 v[4:7], v2, s[{SRD1}:{SRD1+3}], s{sT0} offen offset:{1024*(c%4)} sc1")
    A("s_waitcnt vmcnt(0)")
    stamp()
    stamp_flush()
    A("s_barrier")
    A(f"s_cmp_lg_u32 s{sWV}, 0")
    A("s_cbranch_scc1 L_end")
    epoch_fin()
    A(f"v_mov_b32 v16, s{sTAG}")
    A(f"v_mov_b32 v17, s{sTAG+1}")
    A("v_lshlrev_b32 v2, 7, v1")
    A(f"s_lshl_b32 s{sT0}, s{sR}, 10")
    A(f"s_lshl_b32 s{sT1}, s{sJ}, 3")
    A(f"s_add_u32 s{sT0}, s{sT0}, s{sT1}")
    A(f"s_add_u32 s{sT0}, s{sT0}, {WS_CD}")
    A("s_mov_b64 exec, 0xff")
    A(f"buffer_store_dwordx2 v[16:17], v2, s[{SRD1}:{SRD1+3}], s{sT0} offen sc1")
    A.label("L_end")

    hdr = f"""; Fused MLP (x@w1+b1 -> relu^2 -> @w2+b2), generated by a python script (work/gen4.py)
; @launch grid=(256,1,1) block=(512,1,1) lds=163840
.amdgcn_target "amdgcn-amd-amdhsa--gfx950"
.text
.globl {KN}
.p2align 8
.type {KN},@function
{KN}:
"""
    ftr = f"""
    s_endpgm
.section .rodata,"a"
.p2align 6
.amdhsa_kernel {KN}
  .amdhsa_next_free_vgpr 256
  .amdhsa_next_free_sgpr 102
  .amdhsa_accum_offset 256
  .amdhsa_group_segment_fixed_size 0
  .amdhsa_kernarg_size 64
  .amdhsa_user_sgpr_count 2
  .amdhsa_user_sgpr_kernarg_segment_ptr 1
  .amdhsa_system_sgpr_workgroup_id_x 1
.end_amdhsa_kernel
"""
    return hdr + A.text() + ftr


def parse_g2(s):
    out = []
    for stg in s.split(","):
        us = []
        for u in stg.split("+"):
            a, b = u.split(":")
            us.append((int(a[0]), int(a[1]), [int(c) for c in b]))
        out.append(us)
    return out


def ilist(s):
    return [int(x) for x in s.split(",")] if s else []


def main():
    ap = argparse.ArgumentParser()
    ap.add_argument("-o", default="k8.s")
    ap.add_argument("--ts", action="store_true")
    ap.add_argument("--passes", default="012")
    ap.add_argument("--depth", type=int, default=5)
    ap.add_argument("--fill", type=int, default=4)
    ap.add_argument("--grp1", type=int, default=3)
    ap.add_argument("--hres", type=float, default=2.5)
    ap.add_argument("--hearly", type=float, default=1.5)
    ap.add_argument("--hdel", type=int, default=1)
    ap.add_argument("--xfree", type=int, default=11)
    ap.add_argument("--g2", default="00:012,01:012,02:012,10:012,20:012,11:012,21:012,12:012,22:012")
    ap.add_argument("--tsq", default="")
    ap.add_argument("--verbose", action="store_true")
    ap.add_argument("--ahead", type=int, default=8)
    ap.add_argument("--ahead0", type=int, default=8)
    ap.add_argument("--capfrom", type=int, default=8)
    ap.add_argument("--capw", type=int, default=4)
    ap.add_argument("--capx", type=int, default=3)
    ap.add_argument("--burst", default="")
    ap.add_argument("--pause", default="")
    ap.add_argument("--go2lead", type=int, default=3)
    ap.add_argument("--sa", type=int, default=1)
    ap.add_argument("--ctouch", type=int, default=1)
    ap.add_argument("--wfl", default="")
    ap.add_argument("--rfl", default="sc1")
    ap.add_argument("--rsleep", type=int, default=0)
    ap.add_argument("--touch", type=int, default=1)
    ap.add_argument("--clrwait", type=int, default=1)
    cfg = ap.parse_args()
    cfg.passes = [[int(c) for c in p] for p in cfg.passes.split(",")]
    cfg.g2 = parse_g2(cfg.g2)
    cfg.tsq, cfg.burst, cfg.pause = ilist(cfg.tsq), ilist(cfg.burst), ilist(cfg.pause)
    open(cfg.o, "w").write(build(cfg))


main()
```

```python
import sys, argparse

KN = "standalone__dense_activation_squared_relu__sampling_kernel"

WS_H = 0x0
WS_IN = 0x1000000
WS_CD = 0x1840000
WS_EP = 0x1850000
WS_TS = 0x8000000
SPIN_MAX = 100000
SGNMASK = 0x6A9956A5


class Asm:
    def __init__(self):
        self.L = []
        self.n = 0

    def __call__(self, s):
        self.L.append("    " + s)

    def label(self, s):
        self.L.append(s + ":")

    def c(self, s):
        self.L.append("    ; " + s)

    def uid(self):
        self.n += 1
        return self.n

    def text(self):
        return "\n".join(self.L)


def build(cfg):
    A = Asm()
    TS = cfg.ts
    passes = cfg.passes
    D = cfg.depth

    stages, blocks, order = [], {}, []

    def blk(name, **kw):
        blocks[name] = dict(name=name, **kw)
        return name

    def add_stage(units, breads):
        q = len(stages)
        stages.append(dict(units=units, breads=breads, q=q))
        for (bb, _kb) in breads:
            b = blocks[bb]
            b["need"] = b["last"] = q
            if b["kind"] != "Hown":
                order.append(bb)
        for (_t, wb, _kb, _first) in units:
            b = blocks[wb]
            if "need" not in b:
                b["need"] = q
                order.append(wb)
            b["last"] = q
        return q

    epi_after, pass_of_line = {}, {}
    for pi, lines in enumerate(passes):
        grp = 1 if (len(lines) > 1 or pi == 0) else cfg.grp1
        for t0 in range(0, 9, grp):
            units, breads = [], []
            for t in range(t0, t0 + grp):
                if pi == 0:
                    breads.append((blk(f"X{t}", kind="X", t=t), t))
                for l in lines:
                    units.append((l, blk(f"W{t}_{l}", kind="W1", t=t, l=l), t, False))
            q = add_stage(units, breads)
        epi_after[q] = (pi, list(lines))
        for l in lines:
            pass_of_line[l] = pi
    n_g1 = len(stages)
    kbidx = {}
    first = {0: True, 1: True, 2: True}
    cnt2 = {0: 0, 1: 0, 2: 0}
    epi2_after = {}
    for stg in cfg.g2:
        units, breads = [], []
        for (d, lk, lines) in stg:
            if (d, lk) not in kbidx:
                kbidx[(d, lk)] = len(kbidx)
                breads.append((blk(f"H{d}_{lk}", kind="Hown" if d == 0 else f"H{d}", d=d, lk=lk), kbidx[(d, lk)]))
            for l in lines:
                units.append((l, blk(f"V{d}_{lk}_{l}", kind="W2", d=d, lk=lk, l=l), kbidx[(d, lk)], first[l]))
                first[l] = False
                cnt2[l] += 1
        q = add_stage(units, breads)
        done = [l for l in range(3) if cnt2[l] == 9 and not any(l in v for v in epi2_after.values())]
        if done:
            epi2_after[q] = done
    assert all(v == 9 for v in cnt2.values())
    NQ = len(stages)
    hown_w = {l: q for q, (pi, lines) in epi_after.items() for l in lines}
    hown_vis = {l: (q + 1 if q == n_g1 - 1 else q + 2) for l, q in hown_w.items()}
    for l in hown_w:
        assert blocks[f"H0_{l}"]["need"] >= hown_vis[l]
    hfetch = {l: hown_vis[l] + cfg.hdel for l in hown_w}

    free_at = {s: -10 for s in range(20)}
    events = [(blocks[nm]["need"] - (cfg.hearly if blocks[nm]["kind"] in ("H1", "H2") else 0), 1, k, nm) for k, nm in enumerate(order)]
    for l, qw in hown_w.items():
        events.append((qw - cfg.hres, 0, l, f"H0_{l}"))
    events.sort()
    for ev in events:
        b = blocks[ev[3]]
        if b["kind"] == "X":
            cand = [16, 17, 18, 19]
        elif ev[0] < cfg.xfree:
            cand = list(range(0, 16))
        else:
            cand = list(range(0, 20))
        s = min(cand, key=lambda s: (free_at[s], s))
        b["slot"] = s
        b["free"] = free_at[s]
        if b["kind"] == "Hown":
            assert b["free"] + 2 <= hown_w[b["lk"]], b
        else:
            assert b["free"] + 2 < b["need"], b
        free_at[s] = b["last"]
    if cfg.verbose:
        print(" | ".join(f"{blocks[e[3]]['name']}:s{blocks[e[3]]['slot']} f{blocks[e[3]]['free']} n{blocks[e[3]]['need']}" for e in events), file=sys.stderr)
    for k, nm in enumerate(order):
        blocks[nm]["pos"] = k
    cum = [sum(1 for nm in order if blocks[nm]["need"] <= q) for q in range(NQ)]

    sX, sW1, sB1, sW2, sB2, sOUT, sDBG, sWS = 16, 18, 20, 22, 24, 26, 28, 30
    sJ, sR, sMT, sI, sWV, sWK = 32, 33, 34, 35, 36, 37
    SRD0, SRD1, SRD2 = 40, 44, 48
    sT0, sT1, sT2, sT3, sT4, sT5 = 52, 53, 54, 55, 56, 57
    sCNT = 58
    sTAG, sPB = 6, 8
    sTS = 64
    tsn = [0]

    def stamp():
        if TS:
            k = tsn[0]
            assert k < 16
            A(f"s_memtime s[{sTS+2*k}:{sTS+2*k+1}]")
            tsn[0] += 1

    def srd(d, p, nbytes):
        A(f"s_mov_b32 s{d}, s{p}")
        A(f"s_mov_b32 s{d+1}, s{p+1}")
        A(f"s_mov_b32 s{d+2}, {nbytes}")
        A(f"s_mov_b32 s{d+3}, 0x00020000")

    def stamp_flush():
        if not TS:
            return
        n = tsn[0]
        A("s_waitcnt lgkmcnt(0)")
        srd(SRD2, sWS, 0x10000000)
        A(f"s_lshl_b32 s{sT0}, s2, 9")
        A(f"s_lshl_b32 s{sT1}, s{sWV}, 6")
        A(f"s_add_u32 s{sT0}, s{sT0}, s{sT1}")
        A(f"s_add_u32 s{sT0}, s{sT0}, {WS_TS}")
        A(f"v_mov_b32 v2, s{sT0}")
        A("s_mov_b64 exec, 1")
        for k in range(n):
            A(f"v_mov_b32 v3, s{sTS+2*k}")
            A(f"buffer_store_dword v3, v2, s[{SRD2}:{SRD2+3}], 0 offen offset:{4*k}")
        A("s_mov_b64 exec, -1")

    def epoch_load(smt):
        A(f"s_lshl_b32 s{sT0}, s{smt}, 7")
        A(f"s_add_u32 s{sT0}, s{sT0}, {WS_EP}")
        A(f"s_load_dwordx2 s[{sTAG}:{sTAG+1}], s[{sWS}:{sWS+1}], s{sT0}")

    def epoch_fin():
        A("s_waitcnt lgkmcnt(0)")
        A(f"s_add_u32 s{sTAG}, s{sTAG}, 1")

    def sign_reg(vd, vt):
        A(f"s_bitcmp1_b32 s{sTAG}, 0")
        A(f"s_cselect_b32 s{sT0}, -1, 0")
        A(f"s_xor_b32 s{sT0}, s{sT0}, {SGNMASK}")
        A(f"v_and_b32 v{vt}, 31, v1")
        A(f"v_lshrrev_b32 v{vt}, v{vt}, s{sT0}")
        A(f"v_bfe_i32 v{vt}, v{vt}, 0, 1")
        A(f"v_and_b32 v{vd}, 0x80008000, v{vt}")

    def sspin(loads, npairs, base):
        k = A.uid()
        A(f"s_mov_b32 s{sCNT}, 0")
        A.label(f"L_s{k}")
        for x in loads:
            A(x)
        A(f"s_add_u32 s{sCNT}, s{sCNT}, 1")
        A("s_waitcnt lgkmcnt(0)")
        A(f"s_cmp_gt_u32 s{sCNT}, {SPIN_MAX}")
        A(f"s_cbranch_scc1 L_sd{k}")
        for n in range(npairs):
            A(f"s_cmp_lg_u64 s[{base+2*n}:{base+2*n+1}], s[{sTAG}:{sTAG+1}]")
            A(f"s_cbranch_scc1 L_s{k}")
        A.label(f"L_sd{k}")

    def mod3add(dst, d, tmp):
        A(f"s_add_u32 s{dst}, s{sI}, {d}")
        A(f"s_cmp_ge_u32 s{dst}, 3")
        A(f"s_cselect_b32 s{tmp}, 3, 0")
        A(f"s_sub_u32 s{dst}, s{dst}, s{tmp}")

    A("s_cmp_ge_u32 s2, 256")
    A("s_cbranch_scc1 L_end")
    A("s_load_dwordx16 s[16:31], s[0:1], 0")
    if cfg.ctouch:
        A("s_getpc_b64 s[4:5]")
        A.label("L_pc")
        A("v_lshlrev_b32 v2, 7, v0")
        A("v_min_u32 v2, L_end-L_pc, v2")
        A("v_and_b32 v2, 0xfffffffc, v2")
        A("global_load_dword v255, v2, s[4:5]")
    if TS:
        A("s_memrealtime s[96:97]")
    stamp()
    A("v_and_b32 v1, 63, v0")
    A("v_lshrrev_b32 v2, 6, v0")
    A(f"s_and_b32 s{sJ}, s2, 7")
    A(f"v_readfirstlane_b32 s{sWV}, v2")
    A(f"s_lshr_b32 s{sR}, s2, 3")
    A(f"s_cmp_lt_u32 s{sR}, 8")
    A("s_cbranch_scc1 L_helper")
    A(f"s_sub_u32 s{sR}, s{sR}, 8")
    A(f"s_mul_i32 s{sMT}, s{sR}, 21846")
    A(f"s_lshr_b32 s{sMT}, s{sMT}, 16")
    A(f"s_mul_i32 s{sT0}, s{sMT}, 3")
    A(f"s_sub_u32 s{sI}, s{sR}, s{sT0}")
    A(f"s_mul_i32 s{sWK}, s{sJ}, 24")
    A(f"s_add_u32 s{sWK}, s{sWK}, s{sR}")
    A(f"s_cmp_lt_u32 s{sWV}, 4")
    A("s_cbranch_scc1 L_compute")
    A(f"s_cmp_eq_u32 s{sWV}, 6")
    A("s_cbranch_scc1 L_xh")
    A(f"s_cmp_eq_u32 s{sWV}, 7")
    A("s_cbranch_scc1 L_h2")
    ts_base = tsn[0]

    def loader_stream(kinds, per_block, issue_fn, setup_fn, cap, group=False, validate=None, before_bar=None):
        mine = [blocks[nm] for nm in order if blocks[nm]["kind"] in kinds]
        outstanding, pend = [], list(mine)

        def ok(b, q):
            if b["free"] + 2 > q:
                return False
            if b["kind"] in ("H1", "H2") and q < min(hfetch[b["lk"]], b["need"] - 1):
                return False
            return True

        def issue_upto(q, ahead, cap):
            n = 0
            lim = cum[q] + ahead if q >= 0 else ahead
            while pend and ok(pend[0], q):
                must = pend[0]["need"] <= q + 1 or pend[0]["pos"] < lim
                if not must and n >= cap:
                    break
                grp = [pend.pop(0)]
                while group and pend and ok(pend[0], q) and pend[0]["need"] == grp[0]["need"] and len(grp) < 3 \
                        and (pend[0]["pos"] < lim or n + len(grp) < cap or pend[0]["need"] <= q + 1):
                    grp.append(pend.pop(0))
                if (len(outstanding) + len(grp)) * per_block > 63:
                    keep = 63 // per_block - len(grp)
                    A(f"s_waitcnt vmcnt({keep*per_block})")
                    del outstanding[:len(outstanding) - keep]
                issue_fn(grp if group else grp[0])
                outstanding.extend(x["name"] for x in grp)
                n += len(grp)

        issue_upto(-1, 4, 0)
        setup_fn()
        issue_upto(-1, cfg.ahead0, 0)
        for q in range(NQ):
            assert not any(b["need"] <= q for b in pend), (q, pend[0])
            for b in mine:
                if b["need"] == q:
                    if b["name"] in outstanding:
                        idx = max(i for i, nm in enumerate(outstanding) if blocks[nm]["need"] <= q) if validate is None \
                            else outstanding.index(b["name"])
                        A(f"s_waitcnt vmcnt({(len(outstanding)-1-idx)*per_block})")
                        del outstanding[:idx + 1]
                    if validate is not None and b["kind"] != "X":
                        validate(b)
            if before_bar is not None:
                before_bar(q)
            if q in cfg.tsq:
                stamp()
            A("s_barrier")
            if q in cfg.pause:
                issue_upto(q, 0, 0)
            else:
                issue_upto(q, cfg.ahead, 99 if q in cfg.burst else (cap if q >= cfg.capfrom else 0))
        assert not pend

    A.c("---- weight loaders (waves 4,5)")
    sHW = sT5
    A(f"s_sub_u32 s{sHW}, s{sWV}, 4")
    A("v_lshrrev_b32 v2, 3, v1")
    A("v_and_b32 v3, 7, v1")
    A("v_bfe_u32 v4, v1, 4, 1")
    A("v_lshlrev_b32 v4, 2, v4")
    A("v_xor_b32 v3, v3, v4")
    A("v_lshlrev_b32 v3, 4, v3")
    A("v_lshrrev_b32 v4, 2, v2")
    A("v_and_b32 v5, 3, v2")
    A("v_lshl_add_u32 v4, v4, 3, v5")
    A(f"s_lshl_b32 s{sT0}, s{sHW}, 5")
    A(f"v_add_u32 v4, s{sT0}, v4")
    A("v_mul_u32_u24 v4, 9216, v4")
    A("v_add_u32 v4, v4, v3")
    for c in range(1, 4):
        A(f"v_add_u32 v{4+c}, {(16*(c>>1)+4*(c&1))*9216 - 1024*c}, v4")
    sLW, sC1 = sT4, 38
    A(f"s_lshl_b32 s{sLW}, s{sHW}, 12")
    A(f"s_mul_i32 s{sC1}, s{sJ}, 1152")
    A(f"s_mul_i32 s{sT1}, s{sI}, 384")
    A(f"s_add_u32 s{sC1}, s{sC1}, s{sT1}")
    A("s_waitcnt lgkmcnt(0)")
    srd(SRD0, sW1, 5308416)
    sV = [62, 63, 59]

    def w2_setup():
        epoch_load(sMT)
        A(f"s_lshl_b32 s{sT0}, s{sHW}, 5")
        A(f"v_add_u32 v8, s{sT0}, v2")
        A("v_mul_u32_u24 v8, 1152, v8")
        A("v_add_u32 v8, v8, v3")
        for c in range(1, 4):
            A(f"v_add_u32 v{8+c}, {8*c*1152 - 1024*c}, v8")
        A(f"s_mul_i32 s39, s{sJ}, {576*1152}")
        A(f"s_mul_i32 s{sT0}, s{sI}, 384")
        A(f"s_add_u32 s39, s39, s{sT0}")
        for d in range(3):
            mod3add(sT1, d, sT2)
            A(f"s_mul_i32 s{sT1}, s{sT1}, {192*1152}")
            A(f"s_add_u32 s{sV[d]}, s39, s{sT1}")
        srd(SRD1, sW2, 5308416)

    def issue_w(grp):
        for b in grp:
            A(f"s_add_u32 m0, s{sLW}, {b['slot']*8192}")
            if b["kind"] == "W1":
                A(f"s_add_u32 s{sT0}, s{sC1}, {64*b['t']*9216 + 128*b['l']}")
                vb, sr = 4, SRD0
            else:
                A(f"s_add_u32 s{sT0}, s{sV[b['d']]}, {64*b['lk']*1152 + 128*b['l']}")
                vb, sr = 8, SRD1
            for c in range(4):
                A(f"buffer_load_dwordx4 v{vb+c}, s[{sr}:{sr+3}], s{sT0} offen offset:{1024*c} {cfg.wfl} lds")

    loader_stream(("W1", "W2"), 4, issue_w, w2_setup, cfg.capw, group=True)
    epoch_fin()
    A("s_branch L_reduce")
    ts_max = tsn[0]

    sXB, sH = 38, 39

    def h_setup(d):
        A("v_lshlrev_b32 v12, 4, v1")
        A("v_add_u32 v13, 0x10000, v12")
        A("v_add_u32 v14, 0x20000, v12")
        mod3add(sT1, d, sT2)
        A(f"s_sub_u32 s{sT0}, s{sWK}, s{sI}")
        A(f"s_add_u32 s{sT1}, s{sT1}, s{sT0}")
        A(f"s_mul_i32 s{sH}, s{sT1}, 24576")
        srd(SRD1, sWS, 0x10000000)
        epoch_load(sMT)

    def issue_xh(b):
        for h in range(2):
            A(f"s_mov_b32 m0, {b['slot']*8192 + 4096*h}")
            if b["kind"] == "X":
                A(f"s_add_u32 s{sT0}, s{sXB}, {128*b['t'] + 32*1152*h}")
                for c in range(4):
                    A(f"buffer_load_dwordx4 v{8+c}, s[{SRD0}:{SRD0+3}], s{sT0} offen offset:{1024*c} lds")
            else:
                A(f"s_add_u32 s{sT0}, s{sH}, {WS_H + 8192*b['lk'] + 4096*h}")
                for c in range(4):
                    A(f"buffer_load_dwordx4 v12, s[{SRD1}:{SRD1+3}], s{sT0} offen offset:{1024*c} sc1 lds")

    def validate(b):
        k = A.uid()
        addr = b["slot"] * 8192
        va = 12 + (addr >> 16)
        A(f"s_branch L_v{k}")
        A.label(f"L_vr{k}")
        issue_xh(b)
        A(f"s_add_u32 s{sCNT}, s{sCNT}, 1")
        A("s_waitcnt vmcnt(0)")
        A.label(f"L_v{k}")
        for c in range(8):
            A(f"ds_read_b128 v[{32+4*c}:{35+4*c}], v{va} offset:{(addr & 0xffff) + 1024*c}")
        for c in range(8):
            r = 32 + 4 * c
            A(f"s_waitcnt lgkmcnt({7-c})" if not TS else "s_waitcnt lgkmcnt(0)")
            if c == 0:
                A(f"v_or3_b32 v16, v{r}, v{r+1}, v{r+2}")
                A(f"v_bitop3_b32 v17, v{r}, v{r+1}, v{r+2} bitop3:0x80")
                A(f"v_or_b32 v16, v16, v{r+3}")
                A(f"v_and_b32 v17, v17, v{r+3}")
            else:
                A(f"v_or3_b32 v16, v16, v{r}, v{r+1}")
                A(f"v_bitop3_b32 v17, v17, v{r}, v{r+1} bitop3:0x80")
                A(f"v_or3_b32 v16, v16, v{r+2}, v{r+3}")
                A(f"v_bitop3_b32 v17, v17, v{r+2}, v{r+3} bitop3:0x80")
        A("v_xor_b32 v16, v16, v15")
        A("v_xor_b32 v17, v17, v15")
        A("v_or_b32 v16, v16, v17")
        A("v_and_b32 v16, 0x80008000, v16")
        A("v_cmp_ne_u32 vcc, 0, v16")
        A(f"s_cmp_gt_u32 s{sCNT}, {SPIN_MAX}")
        A(f"s_cbranch_scc1 L_vd{k}")
        A(f"s_cbranch_vccnz L_vr{k}")
        A.label(f"L_vd{k}")

    def bb_tag(q):
        if q == 2:
            epoch_fin()
            sign_reg(15, 16)
            A(f"s_mov_b32 s{sCNT}, 0")

    A.label("L_xh")
    tsn[0] = ts_base
    A("v_lshrrev_b32 v2, 3, v1")
    A("v_and_b32 v3, 7, v1")
    A("v_lshrrev_b32 v4, 4, v1")
    A("v_xor_b32 v3, v3, v4")
    A("v_lshlrev_b32 v3, 4, v3")
    A("v_mul_u32_u24 v4, 1152, v2")
    A("v_add_u32 v8, v4, v3")
    A("v_xor_b32 v5, 64, v8")
    A(f"v_add_u32 v9, {8*1152 - 1024}, v5")
    A(f"v_add_u32 v10, {16*1152 - 2048}, v8")
    A(f"v_add_u32 v11, {24*1152 - 3072}, v5")
    A(f"s_mul_i32 s{sXB}, s{sMT}, {64*1152}")
    A("s_waitcnt lgkmcnt(0)")
    srd(SRD0, sX, 589824)
    loader_stream(("X", "H1"), 8, issue_xh, lambda: h_setup(1), cfg.capx, validate=validate, before_bar=bb_tag)
    if TS:
        A(f"s_mov_b32 s{sTS+24}, s{sCNT}")
    A("s_branch L_reduce")
    ts_max = max(ts_max, tsn[0])

    A.label("L_h2")
    tsn[0] = ts_base
    for k in range(4, 8):
        A(f"v_mov_b32 v{k}, -1")
    A("v_lshlrev_b32 v2, 4, v1")
    A(f"s_mul_i32 s{sT0}, s{sWK}, 24576")
    A(f"s_add_u32 s{sT0}, s{sT0}, {WS_IN}")
    A("s_waitcnt lgkmcnt(0)")
    srd(SRD1, sWS, 0x10000000)

    def do_clear():
        A(f"s_mul_i32 s{sT0}, s{sWK}, 24576")
        A(f"s_add_u32 s{sT0}, s{sT0}, {WS_IN}")
        for c in range(24):
            if c % 4 == 0 and c:
                A(f"s_add_u32 s{sT0}, s{sT0}, 4096")
            A(f"buffer_store_dwordx4 v[4:7], v2, s[{SRD1}:{SRD1+3}], s{sT0} offen offset:{1024*(c%4)} sc1")
    if cfg.clrq < 0:
        do_clear()
    q_go2 = min(epi2_after)

    def bb_h2(q):
        bb_tag(q)
        if q == cfg.clrq + 1 and cfg.clrq >= 0:
            do_clear()
        if q == 2:
            A(f"s_lshl_b32 s{sT3}, s{sR}, 7")
            A(f"s_add_u32 s{sT3}, s{sT3}, {WS_CD}")
            A(f"s_add_u32 s{sPB}, s{sWS}, s{sT3}")
            A(f"s_addc_u32 s{sPB+1}, s{sWS+1}, 0")
            A(f"s_lshl_b32 s{sT2}, s{sJ}, 3")
            A(f"s_add_u32 s60, s{sT3}, s{sT2}")
            A(f"v_mov_b32 v18, s{sTAG}")
            A(f"v_mov_b32 v19, s{sTAG+1}")
            A("v_mov_b32 v20, 0")
        if q == cfg.cdq + 1:
            A("s_waitcnt vmcnt(0)")
            A("s_mov_b64 exec, 1")
            A(f"buffer_store_dwordx2 v[18:19], v20, s[{SRD1}:{SRD1+3}], s60 offen sc1")
            A("s_mov_b64 exec, -1")
        if q == q_go2 - cfg.go2lead:
            A(f"s_load_dwordx16 s[80:95], s[{sPB}:{sPB+1}], 0 glc")
        if q == q_go2:
            k = A.uid()
            A("s_waitcnt lgkmcnt(0)")
            A(f"s_mov_b32 s{sT0}, 0")
            for n in range(8):
                A(f"s_cmp_lg_u64 s[{80+2*n}:{81+2*n}], s[{sTAG}:{sTAG+1}]")
                A(f"s_addc_u32 s{sT0}, s{sT0}, 0")
            A(f"s_cmp_eq_u32 s{sT0}, 0")
            A(f"s_cbranch_scc1 L_go{k}")
            sspin([f"s_load_dwordx16 s[80:95], s[{sPB}:{sPB+1}], 0 glc"], 8, 80)
            A.label(f"L_go{k}")

    assert cfg.cdq + 1 <= min(hfetch.values())
    loader_stream(("H2",), 8, issue_xh, lambda: h_setup(2), cfg.capx, validate=validate, before_bar=bb_h2)
    assert tsn[0] <= 8
    stamp_flush()
    A("s_branch L_end")

    A.label("L_reduce")
    tsn[0] = ts_max
    srd(SRD1, sWS, 0x10000000)
    sC = sT4
    A(f"s_sub_u32 s{sC}, s{sWV}, 4")
    A("v_lshlrev_b32 v2, 4, v1")
    A(f"s_lshl_b32 s{sT2}, s{sC}, 6")
    A(f"s_and_b32 s{sT1}, s{sJ}, 1")
    A(f"s_lshl_b32 s{sT1}, s{sT1}, 4")
    A(f"s_add_u32 s{sT2}, s{sT2}, s{sT1}")
    A(f"s_lshr_b32 s{sT1}, s{sJ}, 2")
    A(f"s_lshl_b32 s{sT1}, s{sT1}, 5")
    A(f"s_add_u32 s{sT2}, s{sT2}, s{sT1}")
    A(f"s_mul_i32 s{sT1}, s{sI}, 192")
    A(f"s_add_u32 s{sT2}, s{sT2}, s{sT1}")
    A(f"s_lshl_b32 s{sT2}, s{sT2}, 1")
    A("v_lshrrev_b32 v3, 5, v1")
    A("v_lshlrev_b32 v3, 3, v3")
    srd(SRD0, sB2, 1152)
    A(f"buffer_load_dwordx2 v[4:5], v3, s[{SRD0}:{SRD0+3}], s{sT2} offen")
    A(f"buffer_load_dwordx2 v[6:7], v3, s[{SRD0}:{SRD0+3}], s{sT2} offen offset:16")
    A(f"s_bfe_u32 s{sT1}, s{sJ}, 0x10001")
    A(f"s_lshl_b32 s{sT1}, s{sT1}, 5")
    A(f"s_lshl_b32 s{sT3}, s{sMT}, 6")
    A(f"s_add_u32 s{sT1}, s{sT1}, s{sT3}")
    A(f"s_mul_i32 s{sT1}, s{sT1}, 1152")
    A(f"s_add_u32 s{sT2}, s{sT2}, s{sT1}")
    A("v_and_b32 v8, 31, v1")
    A("v_mul_u32_u24 v8, 1152, v8")
    A("v_add_u32 v8, v8, v3")
    sign_reg(15, 16)
    A(f"s_mul_i32 s{sT0}, s{sWK}, {8*3072}")
    A(f"s_lshl_b32 s{sT1}, s{sC}, 10")
    A(f"s_add_u32 s{sT0}, s{sT0}, s{sT1}")
    A(f"s_add_u32 s{sT0}, s{sT0}, {WS_IN}")
    A("v_mov_b32 v13, 0")
    A("s_waitcnt vmcnt(0)")
    for k in range(4):
        A(f"v_xor_b32 v{4+k}, v{4+k}, v15")
        A(f"v_lshlrev_b32 v{24+2*k}, 16, v{4+k}")
        A(f"v_and_b32 v{25+2*k}, 0xffff0000, v{4+k}")
    sP = sT5
    A(f"s_mov_b32 s{sP}, 0xff")
    A(f"s_mov_b32 s{sCNT}, 0")
    if cfg.rbar:
        A("s_barrier")
    stamp()
    A.label("L_rpoll")
    for s in range(8):
        A(f"s_bitcmp0_b32 s{sP}, {s}")
        A(f"s_cbranch_scc1 L_rl{s}")
        A(f"s_add_u32 s{sT1}, s{sT0}, {3072*s}")
        A(f"buffer_load_dwordx4 v[{32+4*s}:{35+4*s}], v2, s[{SRD1}:{SRD1+3}], s{sT1} offen {cfg.rfl}")
        A.label(f"L_rl{s}")
    A(f"s_add_u32 s{sCNT}, s{sCNT}, 1")
    A("s_waitcnt vmcnt(0)")
    for s in range(8):
        r = 32 + 4 * s
        A(f"s_bitcmp0_b32 s{sP}, {s}")
        A(f"s_cbranch_scc1 L_ra{s}")
        A(f"v_max3_u32 v9, v{r}, v{r+1}, v{r+2}")
        A(f"v_max_u32 v9, v9, v{r+3}")
        A("v_cmp_eq_u32 vcc, -1, v9")
        A(f"s_cbranch_vccnz L_ra{s}")
        A(f"s_bitset0_b32 s{sP}, {s}")
        for k in range(4):
            A(f"v_lshlrev_b32 v10, 16, v{r+k}")
            A(f"v_and_b32 v11, 0xffff0000, v{r+k}")
            A(f"v_pk_add_f32 v[{24+2*k}:{25+2*k}], v[{24+2*k}:{25+2*k}], v[10:11]")
        A.label(f"L_ra{s}")
    A(f"s_cmp_gt_u32 s{sCNT}, {SPIN_MAX}")
    A("s_cbranch_scc1 L_rdone")
    A(f"s_cmp_lg_u32 s{sP}, 0")
    A("s_cbranch_scc1 L_rpoll")
    A.label("L_rdone")
    stamp()
    for k in range(4):
        A(f"v_cvt_pk_bf16_f32 v{24+k}, v{24+2*k}, v{25+2*k}")
        A(f"v_xor_b32 v{24+k}, v{24+k}, v15")
    srd(SRD0, sOUT, 589824)
    A(f"buffer_store_dwordx2 v[24:25], v8, s[{SRD0}:{SRD0+3}], s{sT2} offen")
    A(f"buffer_store_dwordx2 v[26:27], v8, s[{SRD0}:{SRD0+3}], s{sT2} offen offset:16")
    A(f"s_or_b32 s{sT0}, s{sJ}, s{sI}")
    A(f"s_or_b32 s{sT0}, s{sT0}, s{sC}")
    A(f"s_cmp_lg_u32 s{sT0}, 0")
    A("s_cbranch_scc1 L_noep")
    A(f"v_mov_b32 v16, s{sTAG}")
    A(f"v_mov_b32 v17, s{sTAG+1}")
    A(f"s_lshl_b32 s{sT0}, s{sMT}, 7")
    A(f"s_add_u32 s{sT0}, s{sT0}, {WS_EP}")
    A("s_mov_b64 exec, 1")
    A(f"buffer_store_dwordx2 v[16:17], v13, s[{SRD1}:{SRD1+3}], s{sT0} offen sc1")
    A("s_mov_b64 exec, -1")
    A.label("L_noep")
    if TS:
        A("s_waitcnt vmcnt(0)")
        stamp()
        A("s_memrealtime s[98:99]")
        A("s_waitcnt lgkmcnt(0)")
        A(f"s_mov_b32 s{sTS+26}, s96"); A(f"s_mov_b32 s{sTS+28}, s98"); A(f"s_mov_b32 s{sTS+30}, s{sCNT}")
        assert tsn[0] <= 12
        tsn[0] = 16
        stamp_flush()
    A("s_branch L_end")

    A.label("L_compute")
    tsn[0] = ts_base
    vACC, vAB, vXB, vT = 16, 64, 96, 240
    nAB = D + 1
    vA, vBX, vBH, vHW = [2, 3, 4], [5, 6, 7, 8], [9, 10, 11], [12, 13, 14]
    vSG, vL16 = 15, vT + 10
    assert vAB + 4 * nAB <= vXB
    sA, sBq = sT4, sT5
    A(f"s_and_b32 s{sA}, s{sWV}, 1")
    A(f"s_lshr_b32 s{sBq}, s{sWV}, 1")
    A(f"v_lshrrev_b32 v{vT}, 5, v1")
    A(f"s_mul_i32 s60, s{sJ}, 1152")
    A(f"s_mul_i32 s{sT1}, s{sI}, 384")
    A(f"s_add_u32 s60, s60, s{sT1}")
    A(f"s_lshl_b32 s{sT1}, s{sBq}, 6")
    A(f"s_add_u32 s61, s60, s{sT1}")
    A(f"v_lshlrev_b32 v{vT+4}, 3, v{vT}")
    if cfg.sa:
        A(f"s_add_u32 s{sT3}, s{sWV}, 1")
        A(f"v_and_b32 v{vT+5}, 7, v1")
        A(f"v_mul_u32_u24 v{vT+5}, 9216, v{vT+5}")
        A(f"v_lshrrev_b32 v{vT+6}, 3, v1")
        A(f"v_min_u32 v{vT+6}, 2, v{vT+6}")
        A(f"v_lshl_add_u32 v{vT+5}, v{vT+6}, 7, v{vT+5}")
        A(f"s_lshl_b32 s{sT1}, s{sT3}, 3")
        A(f"s_add_u32 s{sT1}, s{sT1}, s{sMT}")
        A(f"s_mul_i32 s{sT1}, s{sT1}, {8*9216}")
        A(f"s_add_u32 s{sT1}, s{sT1}, s60")
        A(f"s_mul_i32 s{sT2}, s{sI}, 22")
        A(f"v_min_u32 v{vT+6}, 21, v1")
        A(f"v_add_u32 v{vT+6}, s{sT2}, v{vT+6}")
        A(f"v_min_u32 v{vT+6}, 63, v{vT+6}")
        A(f"v_mul_u32_u24 v{vT+6}, 1152, v{vT+6}")
        A(f"s_mul_i32 s{sT2}, s{sMT}, {64*1152}")
        A(f"s_lshl_b32 s{sT3}, s{sT3}, 7")
        A(f"s_add_u32 s{sT2}, s{sT2}, s{sT3}")
    A("s_waitcnt lgkmcnt(0)")
    srd(SRD0, sB1, 9216)
    for l in range(3):
        for g in range(4):
            r = vXB + 2 * (4 * l + g)
            A(f"buffer_load_dwordx2 v[{r}:{r+1}], v{vT+4}, s[{SRD0}:{SRD0+3}], s61 offen offset:{128*l+16*g}")
    if cfg.sa:
        srd(SRD1, sW1, 5308416)
        srd(SRD2, sX, 589824)
        A(f"s_cmp_ge_u32 s{sWV}, {cfg.sa}")
        A("s_cbranch_scc1 L_tdone")
        A(f"buffer_load_dword v255, v{vT+5}, s[{SRD1}:{SRD1+3}], s{sT1} offen {cfg.tfl}")
        A(f"buffer_load_dword v255, v{vT+6}, s[{SRD2}:{SRD2+3}], s{sT2} offen")
        A.label("L_tdone")
    epoch_load(sMT)
    srd(SRD1, sWS, 0x10000000)
    A(f"v_bfe_u32 v{vT+1}, v1, 2, 2")
    A(f"v_lshl_add_u32 v{vT+2}, v{vT}, 2, v{vT+1}")
    A(f"v_lshlrev_b32 v{vT+2}, 7, v{vT+2}")
    A(f"v_bfe_u32 v{vT+3}, v1, 3, 1")
    A(f"v_xor_b32 v{vT+3}, s{sBq}, v{vT+3}")
    A(f"v_lshl_add_u32 v{vT+2}, v{vT+3}, 6, v{vT+2}")
    A(f"v_bfe_u32 v{vT+3}, v1, 4, 1")
    A(f"v_lshl_add_u32 v{vT+2}, v{vT+3}, 5, v{vT+2}")
    A(f"v_and_b32 v{vT+3}, 3, v1")
    A(f"v_lshl_add_u32 v{vA[0]}, v{vT+3}, 3, v{vT+2}")
    A(f"v_add_u32 v{vA[1]}, 0x10000, v{vA[0]}")
    A(f"v_add_u32 v{vA[2]}, 0x20000, v{vA[0]}")
    A(f"v_and_b32 v{vT+1}, 31, v1")
    A(f"v_bfe_u32 v{vT+2}, v1, 1, 3")
    A(f"v_xor_b32 v{vT+2}, v{vT}, v{vT+2}")
    A(f"v_lshlrev_b32 v{vT+2}, 4, v{vT+2}")
    A(f"v_lshl_add_u32 v{vT+2}, v{vT+1}, 7, v{vT+2}")
    A(f"s_lshl_b32 s{sT0}, s{sA}, 12")
    A(f"s_add_u32 s{sT1}, s{sT0}, 0x20000")
    A(f"v_add_u32 v{vBX[0]}, s{sT1}, v{vT+2}")
    for sp in range(1, 4):
        A(f"v_xor_b32 v{vBX[sp]}, {32*sp}, v{vBX[0]}")
    A(f"v_lshl_add_u32 v{vBH[0]}, v1, 4, s{sT0}")
    A(f"v_add_u32 v{vBH[1]}, 0x10000, v{vBH[0]}")
    A(f"v_add_u32 v{vBH[2]}, 0x20000, v{vBH[0]}")
    A(f"s_lshl_b32 s{sT1}, s{sBq}, 11")
    for k in range(3):
        A(f"v_add_u32 v{vHW[k]}, s{sT1}, v{vBH[k]}")
    sI0, sI1 = 38, 39
    sHS = [60, 61, 62]
    A(f"s_mul_i32 s{sI0}, s{sWV}, 48")
    A(f"s_add_u32 s{sI0}, s{sI0}, s{sR}")
    A(f"s_lshl_b32 s{sI0}, s{sI0}, 3")
    A(f"s_add_u32 s{sI0}, s{sI0}, s{sJ}")
    A(f"s_mul_i32 s{sI0}, s{sI0}, 3072")
    A(f"s_add_u32 s{sI0}, s{sI0}, {WS_IN}")
    A(f"s_add_u32 s{sI1}, s{sI0}, {24*8*3072}")
    A(f"s_mul_i32 s{sHS[0]}, s{sWK}, 24576")
    if WS_H:
        A(f"s_add_u32 s{sHS[0]}, s{sHS[0]}, {WS_H}")
    A(f"s_add_u32 s{sHS[1]}, s{sHS[0]}, 8192")
    A(f"s_add_u32 s{sHS[2]}, s{sHS[0]}, 16384")
    A(f"v_lshlrev_b32 v{vL16}, 4, v1")
    epoch_fin()
    sign_reg(vSG, vT + 1)
    A(f"s_mov_b32 s{sT2}, 0xfffffffe")
    A("s_waitcnt vmcnt(0)" if not cfg.sa else "s_waitcnt vmcnt(2)")
    if cfg.sa:
        A(f"s_cmp_lt_u32 s{sWV}, {cfg.sa}")
        A("s_cbranch_scc1 L_bw")
        A("s_waitcnt vmcnt(0)")
        A.label("L_bw")
    for l in range(3):
        for g in range(4):
            r = vXB + 2 * (4 * l + g)
            d = vACC + 16 * l + 4 * g
            A(f"v_lshlrev_b32 v{d}, 16, v{r}")
            A(f"v_and_b32 v{d+1}, 0xffff0000, v{r}")
            A(f"v_lshlrev_b32 v{d+2}, 16, v{r+1}")
            A(f"v_and_b32 v{d+3}, 0xffff0000, v{r+1}")
    stamp()

    items = []
    for st in stages:
        bykb = {}
        for u in st["units"]:
            bykb.setdefault(u[2], []).append(u)
        for kb, us in bykb.items():
            for sp in range(4):
                for (t, wb, _kb, fst) in us:
                    items.append(dict(q=st["q"], tile=t, wb=wb, kb=kb, sp=sp, first=(fst and sp == 0)))
    NI = len(items)
    last_item = {}
    for n, it in enumerate(items):
        last_item[it["q"]] = n
    bread_of = {(st["q"], kb): bb for st in stages for (bb, kb) in st["breads"]}
    lg = []

    def ds_issue(instr, tag):
        cap = 11 if TS else 15
        if len(lg) >= cap:
            A(f"s_waitcnt lgkmcnt({cap-2})")
            del lg[:len(lg) - (cap - 2)]
        A(instr)
        lg.append(tag)

    def ds_need(tags):
        idx = max([i for i, t in enumerate(lg) if t in tags], default=-1)
        if idx >= 0:
            A(f"s_waitcnt lgkmcnt({len(lg) - 1 - idx})")
            del lg[:idx + 1]

    checked = [-1]
    bdone = set()

    def issue_reads(n):
        it = items[n]
        q = it["q"]
        if q > checked[0]:
            ds_need({"hw"})
            A("s_barrier")
            checked[0] = q
            if q in cfg.tsq:
                stamp()
        key = (q, it["kb"])
        if key in bread_of and (key, it["sp"]) not in bdone:
            bdone.add((key, it["sp"]))
            bb = blocks[bread_of[key]]
            addr = bb["slot"] * 8192
            r = vXB + 16 * it["kb"] + 4 * it["sp"]
            if bb["kind"] == "X":
                assert addr >> 16 == 2
                ds_issue(f"ds_read_b128 v[{r}:{r+3}], v{vBX[it['sp']]} offset:{addr & 0xffff}", ("B", it["kb"], it["sp"]))
            else:
                ds_issue(f"ds_read_b128 v[{r}:{r+3}], v{vBH[addr >> 16]} offset:{(addr & 0xffff) + 1024*it['sp']}",
                         ("B", it["kb"], it["sp"]))
        wb = blocks[it["wb"]]
        addr = wb["slot"] * 8192 + 2048 * it["sp"]
        r = vAB + 4 * (n % nAB)
        ds_issue(f"ds_read_b64_tr_b16 v[{r}:{r+1}], v{vA[addr >> 16]} offset:{addr & 0xffff}", ("A", n))
        ds_issue(f"ds_read_b64_tr_b16 v[{r+2}:{r+3}], v{vA[addr >> 16]} offset:{(addr & 0xffff) + 1024}", ("A", n))

    def epi1_instrs(pi, lines):
        out = []
        for l in lines:
            a = vACC + 16 * l
            addr = blocks[f"H0_{l}"]["slot"] * 8192
            for half in range(2):
                base = a + 8 * half
                for k in range(8):
                    out.append(("v", f"v_max_f32 v{base+k}, 0, v{base+k}"))
                for k in range(0, 8, 2):
                    out.append(("v", f"v_pk_mul_f32 v[{base+k}:{base+k+1}], v[{base+k}:{base+k+1}], v[{base+k}:{base+k+1}]"))
                for k in range(4):
                    out.append(("v", f"v_cvt_pk_bf16_f32 v{base+k}, v{base+2*k}, v{base+2*k+1}"))
                for k in range(4):
                    out.append(("v", f"v_or_b32 v{base+k}, v{base+k}, v{vSG}"))
                out.append(("v", f"buffer_store_dwordx4 v[{base}:{base+3}], v{vHW[0]}, s[{SRD1}:{SRD1+3}], s{sHS[l]} offen offset:{1024*half} sc1"))
                out.append(("w", f"ds_write_b128 v{vHW[addr >> 16]}, v[{base}:{base+3}] offset:{(addr & 0xffff) + 1024*half}"))
        return out

    def epi2_instrs(lines):
        out = []
        for l in lines:
            for u in range(2):
                base = vACC + 8 * (2 * l + u)
                for k in range(4):
                    out.append(("v", f"v_cvt_pk_bf16_f32 v{base+k}, v{base+2*k}, v{base+2*k+1}"))
                for k in range(4):
                    out.append(("v", f"v_min_u32 v{base+k}, s{sT2}, v{base+k}"))
                so = sI0 if u == 0 else sI1
                out.append(("v", f"buffer_store_dwordx4 v[{base}:{base+3}], v{vL16}, s[{SRD1}:{SRD1+3}], s{so} offen offset:{1024*l} sc1"))
        return out

    fillers = []
    fill_start = 0
    fill_tiles = set()
    mfma_pos = {}
    fill_fresh = [False]

    def states_since(pos):
        c = 0
        for ln in A.L[pos + 1:]:
            t = ln.strip()
            if t.endswith(":") or t.startswith(";"):
                continue
            c += int(t.split()[1]) + 1 if t.startswith("s_nop") else 1
        return c

    def emit(kind, t):
        if fill_fresh[0]:
            fill_fresh[0] = False
            have = min(states_since(mfma_pos[tl]) for tl in fill_tiles)
            if have < 12:
                A(f"s_nop {12 - have - 1}")
        if kind == "w":
            ds_issue(t, "hw")
        else:
            A(t)

    def flush_fillers():
        nonlocal fillers
        for (kind, t) in fillers:
            emit(kind, t)
        fillers = []
        fill_tiles.clear()

    nread = 0
    for n in range(NI):
        it = items[n]
        lim = min(NI - 1, n + D)
        while nread <= lim:
            nx = items[nread]
            if nx["q"] > checked[0]:
                due = [l for l, v in hown_vis.items() if v == nx["q"]]
                if due:
                    if last_item[hown_w[due[0]]] >= n:
                        break
                    flush_fillers()
            key = (nx["q"], nx["kb"])
            if key in bread_of and (key, nx["sp"]) not in bdone:
                if any(items[m]["kb"] == nx["kb"] and items[m]["sp"] == nx["sp"] for m in range(n, nread)):
                    break
            issue_reads(nread)
            nread += 1
        assert nread > n
        if it["tile"] in fill_tiles:
            flush_fillers()
            A("s_nop 1")
        ds_need({("A", n), ("B", it["kb"], it["sp"])})
        if it["first"]:
            ds_need({"hw"})
        ra = vAB + 4 * (n % nAB)
        rb = vXB + 16 * it["kb"] + 4 * it["sp"]
        acc = vACC + 16 * it["tile"]
        c = "0" if it["first"] else f"v[{acc}:{acc+15}]"
        A(f"v_mfma_f32_32x32x16_bf16 v[{acc}:{acc+15}], v[{ra}:{ra+3}], v[{rb}:{rb+3}], {c}")
        mfma_pos[it["tile"]] = len(A.L) - 1
        k = 0
        while fillers and k < cfg.fill and n >= fill_start:
            kind, t = fillers.pop(0)
            emit(kind, t)
            k += 1
        if not fillers:
            fill_tiles.clear()
        if n == last_item[it["q"]]:
            q = it["q"]
            new = []
            if q in epi_after:
                new, tl = epi1_instrs(*epi_after[q]), epi_after[q][1]
            elif q in epi2_after:
                new, tl = epi2_instrs(epi2_after[q]), epi2_after[q]
            if new:
                stamp()
                flush_fillers()
                fillers = new
                fill_tiles.update(tl)
                fill_fresh[0] = True
                fill_start = n + 3
    flush_fillers()
    stamp()
    if cfg.rbar:
        A(f"s_waitcnt vmcnt({cfg.rbar-1})")
        A("s_barrier")
    if TS:
        A("s_waitcnt vmcnt(0)")
        stamp()
        stamp_flush()
    A("s_branch L_end")

    A.label("L_helper")
    sG = 38
    A(f"s_lshl_b32 s{sG}, s{sWV}, 3")
    A(f"s_add_u32 s{sG}, s{sG}, s{sR}")
    A("v_mul_u32_u24 v8, 9216, v1")
    A("v_mul_u32_u24 v9, 1152, v1")
    A(f"s_mul_i32 s39, s{sJ}, 1152")
    A("s_waitcnt lgkmcnt(0)")
    NWT = 64

    def sdiv(dst, src, d):
        A(f"s_mul_i32 s{dst}, s{src}, {(65536 + d - 1) // d}")
        A(f"s_lshr_b32 s{dst}, s{dst}, 16")

    if cfg.touch:
        srd(SRD0, sW1, 5308416)
        srd(SRD1, sX, 589824)
        phases, base = [], 0
        for pi, ls in enumerate(passes):
            t0 = cfg.sa + 1 if pi == 0 else 0
            c = 3 * len(ls) + (8 if pi == 0 else 0)
            phases.append((base, (9 - t0) * c, t0, c, ls))
            base += (9 - t0) * c
        for rnd in range((base + NWT - 1) // NWT):
            k = A.uid()
            A(f"s_add_u32 s{sT0}, s{sG}, {NWT*rnd}")
            for (pb, cnt, t0, c, ls) in phases:
                if pb + cnt <= NWT * rnd or pb >= NWT * rnd + NWT:
                    continue
                k2 = A.uid()
                A(f"s_cmp_ge_u32 s{sT0}, {pb+cnt}")
                A(f"s_cbranch_scc1 L_hp{k2}")
                if pb:
                    A(f"s_sub_u32 s{sT0}, s{sT0}, {pb}")
                sdiv(sT1, sT0, c)
                A(f"s_mul_i32 s{sT2}, s{sT1}, {c}")
                A(f"s_sub_u32 s{sT2}, s{sT0}, s{sT2}")
                if t0:
                    A(f"s_add_u32 s{sT1}, s{sT1}, {t0}")
                nw = 3 * len(ls)
                if c > nw:
                    A(f"s_cmp_ge_u32 s{sT2}, {nw}")
                    A(f"s_cbranch_scc1 L_hx{k2}")
                if len(ls) != 3:
                    if len(ls) == 1:
                        A(f"s_mul_i32 s{sT2}, s{sT2}, 3")
                    else:
                        A(f"s_lshr_b32 s{sT3}, s{sT2}, 1")
                        A(f"s_add_u32 s{sT2}, s{sT2}, s{sT3}")
                    if ls[0]:
                        A(f"s_add_u32 s{sT2}, s{sT2}, {ls[0]}")
                A(f"s_mul_i32 s{sT1}, s{sT1}, {64*9216}")
                A(f"s_lshl_b32 s{sT2}, s{sT2}, 7")
                A(f"s_add_u32 s{sT1}, s{sT1}, s{sT2}")
                A(f"s_add_u32 s{sT1}, s{sT1}, s39")
                A(f"buffer_load_dword v255, v8, s[{SRD0}:{SRD0+3}], s{sT1} offen {cfg.tfl}")
                A(f"s_branch L_ht{k}")
                if c > nw:
                    A.label(f"L_hx{k2}")
                    A(f"s_sub_u32 s{sT2}, s{sT2}, {nw}")
                    A(f"s_mul_i32 s{sT2}, s{sT2}, {64*1152}")
                    A(f"s_lshl_b32 s{sT1}, s{sT1}, 7")
                    A(f"s_add_u32 s{sT1}, s{sT1}, s{sT2}")
                    A(f"buffer_load_dword v255, v9, s[{SRD1}:{SRD1+3}], s{sT1} offen")
                    A(f"s_branch L_ht{k}")
                A.label(f"L_hp{k2}")
            A.label(f"L_ht{k}")
    if cfg.touch:
        srd(SRD0, sW2, 5308416)
        A(f"s_mul_i32 s39, s{sJ}, 663552")
        korder = sorted(kbidx, key=lambda x: kbidx[x])
        tabD = sum(d << (2 * u) for u, (d, lk) in enumerate(korder))
        tabL = sum(lk << (2 * u) for u, (d, lk) in enumerate(korder))
        for rnd in range(2):
            k = A.uid()
            A(f"s_add_u32 s{sT0}, s{sG}, {NWT*rnd}")
            A(f"s_cmp_ge_u32 s{sT0}, 81")
            A(f"s_cbranch_scc1 L_ht{k}")
            sdiv(sT1, sT0, 9)
            A(f"s_mul_i32 s{sT2}, s{sT1}, 9")
            A(f"s_sub_u32 s{sT2}, s{sT0}, s{sT2}")
            sdiv(sT3, sT2, 3)
            A(f"s_lshl_b32 s{sT1}, s{sT1}, 1")
            A(f"s_lshr_b32 s{sT0}, {tabD}, s{sT1}")
            A(f"s_and_b32 s{sT0}, s{sT0}, 3")
            A(f"s_add_u32 s{sT0}, s{sT0}, s{sT3}")
            A(f"s_cmp_ge_u32 s{sT0}, 3")
            A(f"s_cselect_b32 s{sT3}, 3, 0")
            A(f"s_sub_u32 s{sT0}, s{sT0}, s{sT3}")
            A(f"s_lshr_b32 s{sT3}, {tabL}, s{sT1}")
            A(f"s_and_b32 s{sT3}, s{sT3}, 3")
            A(f"s_mul_i32 s{sT0}, s{sT0}, {192*1152}")
            A(f"s_mul_i32 s{sT3}, s{sT3}, {64*1152}")
            A(f"s_add_u32 s{sT0}, s{sT0}, s{sT3}")
            A(f"s_lshl_b32 s{sT2}, s{sT2}, 7")
            A(f"s_add_u32 s{sT0}, s{sT0}, s{sT2}")
            A(f"s_add_u32 s{sT0}, s{sT0}, s39")
            A(f"buffer_load_dword v255, v9, s[{SRD0}:{SRD0+3}], s{sT0} offen {cfg.tfl}")
            A.label(f"L_ht{k}")
    if TS:
        tsn[0] = 1
        A("s_waitcnt vmcnt(0)")
        stamp()
        stamp()
        stamp_flush()
    A.label("L_end")

    hdr = f"""; Fused MLP (x@w1+b1 -> relu^2 -> @w2+b2), generated by a python script (work/gen4.py)
; @launch grid=(256,1,1) block=(512,1,1) lds=163840
.amdgcn_target "amdgcn-amd-amdhsa--gfx950"
.text
.globl {KN}
.p2align 8
.type {KN},@function
{KN}:
"""
    ftr = f"""
    s_endpgm
.section .rodata,"a"
.p2align 6
.amdhsa_kernel {KN}
  .amdhsa_next_free_vgpr 256
  .amdhsa_next_free_sgpr 102
  .amdhsa_accum_offset 256
  .amdhsa_group_segment_fixed_size 0
  .amdhsa_kernarg_size 64
  .amdhsa_user_sgpr_count 2
  .amdhsa_user_sgpr_kernarg_segment_ptr 1
  .amdhsa_system_sgpr_workgroup_id_x 1
.end_amdhsa_kernel
"""
    return hdr + A.text() + ftr


def parse_g2(s):
    out = []
    for stg in s.split(","):
        us = []
        for u in stg.split("+"):
            a, b = u.split(":")
            us.append((int(a[0]), int(a[1]), [int(c) for c in b]))
        out.append(us)
    return out


def ilist(s):
    return [int(x) for x in s.split(",")] if s else []


def main():
    ap = argparse.ArgumentParser()
    ap.add_argument("-o", default="k8.s")
    ap.add_argument("--ts", action="store_true")
    ap.add_argument("--passes", default="012")
    ap.add_argument("--depth", type=int, default=5)
    ap.add_argument("--fill", type=int, default=4)
    ap.add_argument("--grp1", type=int, default=3)
    ap.add_argument("--hres", type=float, default=2.5)
    ap.add_argument("--hearly", type=float, default=1.5)
    ap.add_argument("--hdel", type=int, default=1)
    ap.add_argument("--xfree", type=int, default=11)
    ap.add_argument("--g2", default="00:012,01:012,02:012,10:012,20:012,11:012,21:012,12:012,22:012")
    ap.add_argument("--tsq", default="")
    ap.add_argument("--verbose", action="store_true")
    ap.add_argument("--ahead", type=int, default=8)
    ap.add_argument("--ahead0", type=int, default=8)
    ap.add_argument("--capfrom", type=int, default=8)
    ap.add_argument("--capw", type=int, default=4)
    ap.add_argument("--capx", type=int, default=3)
    ap.add_argument("--burst", default="")
    ap.add_argument("--pause", default="")
    ap.add_argument("--go2lead", type=int, default=3)
    ap.add_argument("--sa", type=int, default=0)
    ap.add_argument("--ctouch", type=int, default=1)
    ap.add_argument("--wfl", default="")
    ap.add_argument("--tfl", default="")
    ap.add_argument("--rfl", default="sc1")
    ap.add_argument("--rsleep", type=int, default=0)
    ap.add_argument("--touch", type=int, default=1)
    ap.add_argument("--clrq", type=int, default=-1)
    ap.add_argument("--cdq", type=int, default=9)
    ap.add_argument("--rbar", type=int, default=0)
    cfg = ap.parse_args()
    cfg.passes = [[int(c) for c in p] for p in cfg.passes.split(",")]
    cfg.g2 = parse_g2(cfg.g2)
    cfg.tsq, cfg.burst, cfg.pause = ilist(cfg.tsq), ilist(cfg.burst), ilist(cfg.pause)
    open(cfg.o, "w").write(build(cfg))


main()
```

```python
import sys, argparse

KN = "standalone__dense_activation_squared_relu__sampling_kernel"

WS_H = 0x0
WS_IN = 0x1000000
WS_CD = 0x1840000
WS_EP = 0x1850000
WS_TS = 0x8000000
SPIN_MAX = 100000
SGNMASK = 0x6A9956A5


class Asm:
    def __init__(self):
        self.L = []
        self.n = 0

    def __call__(self, s):
        self.L.append("    " + s)

    def label(self, s):
        self.L.append(s + ":")

    def c(self, s):
        self.L.append("    ; " + s)

    def uid(self):
        self.n += 1
        return self.n

    def head(self, role):
        self.L.append(f"@@HEAD {role}")

    def tail(self, role):
        self.L.append(f"@@TAIL {role}")

    def text(self, horder, torder):
        pro, heads, tails, cur = [], {}, {}, None
        cur = pro
        for ln in self.L:
            if ln.startswith("@@HEAD"):
                cur = heads.setdefault(ln.split()[1], [])
            elif ln.startswith("@@TAIL"):
                r = ln.split()[1]
                if r in heads:
                    heads[r].append(f"    s_branch L_tail_{r}")
                cur = tails.setdefault(r, [f"L_tail_{r}:"])
            else:
                cur.append(ln)
        assert sorted(heads) == sorted(horder) and sorted(tails) == sorted(torder), (heads.keys(), tails.keys())
        out = pro
        for r in horder:
            out += heads[r]
        out.append("L_heads_end:")
        for r in torder:
            out += tails[r]
        return "\n".join(out)


def build(cfg):
    A = Asm()
    TS = cfg.ts
    passes = cfg.passes
    D = cfg.depth

    stages, blocks, order = [], {}, []

    def blk(name, **kw):
        blocks[name] = dict(name=name, **kw)
        return name

    def add_stage(units, breads):
        q = len(stages)
        stages.append(dict(units=units, breads=breads, q=q))
        for (bb, _kb) in breads:
            b = blocks[bb]
            b["need"] = b["last"] = q
            if b["kind"] != "Hown":
                order.append(bb)
        for (_t, wb, _kb, _first) in units:
            b = blocks[wb]
            if "need" not in b:
                b["need"] = q
                order.append(wb)
            b["last"] = q
        return q

    epi_after, pass_of_line = {}, {}
    for pi, lines in enumerate(passes):
        grp = 1 if (len(lines) > 1 or pi == 0) else cfg.grp1
        for t0 in range(0, 9, grp):
            units, breads = [], []
            for t in range(t0, t0 + grp):
                if pi == 0:
                    breads.append((blk(f"X{t}", kind="X", t=t), t))
                for l in lines:
                    units.append((l, blk(f"W{t}_{l}", kind="W1", t=t, l=l), t, False))
            q = add_stage(units, breads)
        epi_after[q] = (pi, list(lines))
        for l in lines:
            pass_of_line[l] = pi
    n_g1 = len(stages)
    kbidx = {}
    first = {0: True, 1: True, 2: True}
    cnt2 = {0: 0, 1: 0, 2: 0}
    epi2_after = {}
    for stg in cfg.g2:
        units, breads = [], []
        for (d, lk, lines) in stg:
            if (d, lk) not in kbidx:
                kbidx[(d, lk)] = len(kbidx)
                breads.append((blk(f"H{d}_{lk}", kind="Hown" if d == 0 else f"H{d}", d=d, lk=lk), kbidx[(d, lk)]))
            for l in lines:
                units.append((l, blk(f"V{d}_{lk}_{l}", kind="W2", d=d, lk=lk, l=l), kbidx[(d, lk)], first[l]))
                first[l] = False
                cnt2[l] += 1
        q = add_stage(units, breads)
        done = [l for l in range(3) if cnt2[l] == 9 and not any(l in v for v in epi2_after.values())]
        if done:
            epi2_after[q] = done
    assert all(v == 9 for v in cnt2.values())
    NQ = len(stages)
    hown_w = {l: q for q, (pi, lines) in epi_after.items() for l in lines}
    hown_vis = {l: (q + 1 if q == n_g1 - 1 else q + 2) for l, q in hown_w.items()}
    for l in hown_w:
        assert blocks[f"H0_{l}"]["need"] >= hown_vis[l]
    hfetch = {l: hown_vis[l] + cfg.hdel for l in hown_w}

    free_at = {s: -10 for s in range(20)}
    events = [(blocks[nm]["need"] - (cfg.hearly if blocks[nm]["kind"] in ("H1", "H2") else 0), 1, k, nm) for k, nm in enumerate(order)]
    for l, qw in hown_w.items():
        events.append((qw - cfg.hres, 0, l, f"H0_{l}"))
    events.sort()
    for ev in events:
        b = blocks[ev[3]]
        if b["kind"] == "X":
            cand = [16, 17, 18, 19]
        elif ev[0] < cfg.xfree:
            cand = list(range(0, 16))
        else:
            cand = list(range(0, 20))
        s = min(cand, key=lambda s: (free_at[s], s))
        b["slot"] = s
        b["free"] = free_at[s]
        if b["kind"] == "Hown":
            assert b["free"] + cfg.hfree <= hown_w[b["lk"]], b
        else:
            assert b["free"] + 2 < b["need"], b
        free_at[s] = b["last"]
    if cfg.verbose:
        print(" | ".join(f"{blocks[e[3]]['name']}:s{blocks[e[3]]['slot']} f{blocks[e[3]]['free']} n{blocks[e[3]]['need']}" for e in events), file=sys.stderr)
    for k, nm in enumerate(order):
        blocks[nm]["pos"] = k
    cum = [sum(1 for nm in order if blocks[nm]["need"] <= q) for q in range(NQ)]

    sX, sW1, sB1, sW2, sB2, sOUT, sDBG, sWS = 16, 18, 20, 22, 24, 26, 28, 30
    sJ, sR, sMT, sI, sWV, sWK = 32, 33, 34, 35, 36, 37
    SRD0, SRD1, SRD2 = 40, 44, 48
    sT0, sT1, sT2, sT3, sT4, sT5 = 52, 53, 54, 55, 56, 57
    sCNT = 58
    sTAG, sPB = 6, 8
    sTS = 64
    tsn = [0]

    def stamp():
        if TS:
            k = tsn[0]
            assert k < 16
            A(f"s_memtime s[{sTS+2*k}:{sTS+2*k+1}]")
            tsn[0] += 1

    def srd(d, p, nbytes):
        A(f"s_mov_b32 s{d}, s{p}")
        A(f"s_mov_b32 s{d+1}, s{p+1}")
        A(f"s_mov_b32 s{d+2}, {nbytes}")
        A(f"s_mov_b32 s{d+3}, 0x00020000")

    def stamp_flush():
        if not TS:
            return
        n = tsn[0]
        A("s_waitcnt lgkmcnt(0)")
        srd(SRD2, sWS, 0x10000000)
        A(f"s_lshl_b32 s{sT0}, s2, 9")
        A(f"s_lshl_b32 s{sT1}, s{sWV}, 6")
        A(f"s_add_u32 s{sT0}, s{sT0}, s{sT1}")
        A(f"s_add_u32 s{sT0}, s{sT0}, {WS_TS}")
        A(f"v_mov_b32 v2, s{sT0}")
        A("s_mov_b64 exec, 1")
        for k in range(n):
            A(f"v_mov_b32 v3, s{sTS+2*k}")
            A(f"buffer_store_dword v3, v2, s[{SRD2}:{SRD2+3}], 0 offen offset:{4*k}")
        A("s_mov_b64 exec, -1")

    def epoch_load(smt):
        A(f"s_lshl_b32 s{sT0}, s{smt}, 7")
        A(f"s_add_u32 s{sT0}, s{sT0}, {WS_EP}")
        A(f"s_load_dword s{sTAG}, s[{sWS}:{sWS+1}], s{sT0}")

    def epoch_fin():
        A("s_waitcnt lgkmcnt(0)")
        A(f"s_add_u32 s{sTAG}, s{sTAG}, 1")
        A(f"s_mul_i32 s{sTAG+1}, s{sTAG}, 0x02020202")
        A(f"s_and_b32 s{sTAG+1}, s{sTAG+1}, 0xeeeeeeee")
        A(f"s_or_b32 s{sTAG+1}, s{sTAG+1}, 0x10101010")

    def tag_regs(vd, vt):
        A(f"v_and_b32 v{vt}, 3, v1")
        A(f"v_lshlrev_b32 v{vt}, 3, v{vt}")
        A(f"v_lshrrev_b32 v{vt}, v{vt}, s{sTAG+1}")
        for k in range(4):
            A(f"v_bfe_u32 v{vd+k}, v{vt}, {2*k}, 2")
            A(f"v_mul_u32_u24 v{vd+k}, 0x8001, v{vd+k}")
            A(f"v_and_b32 v{vd+k}, 0x10001, v{vd+k}")
            A(f"v_lshl_or_b32 v{vd+k}, v{vd+k}, 15, v{vd+k}")

    def sign_reg(vd, vt):
        A(f"s_bitcmp1_b32 s{sTAG}, 0")
        A(f"s_cselect_b32 s{sT0}, -1, 0")
        A(f"s_xor_b32 s{sT0}, s{sT0}, {SGNMASK}")
        A(f"v_and_b32 v{vt}, 31, v1")
        A(f"v_lshrrev_b32 v{vt}, v{vt}, s{sT0}")
        A(f"v_bfe_i32 v{vt}, v{vt}, 0, 1")
        A(f"v_and_b32 v{vd}, 0x80008000, v{vt}")

    def sspin(loads, npairs, base):
        k = A.uid()
        A(f"s_mov_b32 s{sCNT}, 0")
        A.label(f"L_s{k}")
        for x in loads:
            A(x)
        A(f"s_add_u32 s{sCNT}, s{sCNT}, 1")
        A("s_waitcnt lgkmcnt(0)")
        A(f"s_cmp_gt_u32 s{sCNT}, {SPIN_MAX}")
        A(f"s_cbranch_scc1 L_sd{k}")
        for n in range(npairs):
            A(f"s_cmp_lg_u64 s[{base+2*n}:{base+2*n+1}], s[{sTAG}:{sTAG+1}]")
            A(f"s_cbranch_scc1 L_s{k}")
        A.label(f"L_sd{k}")

    def mod3add(dst, d, tmp):
        A(f"s_add_u32 s{dst}, s{sI}, {d}")
        A(f"s_cmp_ge_u32 s{dst}, 3")
        A(f"s_cselect_b32 s{tmp}, 3, 0")
        A(f"s_sub_u32 s{dst}, s{dst}, s{tmp}")

    A("s_cmp_ge_u32 s2, 256")
    A("s_cbranch_scc1 L_end")
    A("s_load_dwordx16 s[16:31], s[0:1], 0")
    if cfg.ctouch == 1:
        A("s_getpc_b64 s[4:5]")
        A.label("L_pc")
        A("v_lshlrev_b32 v2, 7, v0")
        A("v_min_u32 v2, L_end-L_pc, v2")
        A("v_and_b32 v2, 0xfffffffc, v2")
        A("global_load_dword v255, v2, s[4:5]")
    elif cfg.ctouch == 2:
        A("s_getpc_b64 s[4:5]")
        A.label("L_pc")
        A("s_lshr_b32 s3, s2, 3")
        A("s_lshl_b32 s3, s3, 11")
        A("v_lshrrev_b32 v2, 5, v0")
        A("v_lshl_add_u32 v2, v2, 7, s3")
        A("v_min_u32 v2, L_end-L_pc, v2")
        A("v_and_b32 v2, 0xfffffffc, v2")
        A("global_load_dword v255, v2, s[4:5]")
    if TS:
        A("s_memrealtime s[96:97]")
    stamp()
    A("v_and_b32 v1, 63, v0")
    A("v_lshrrev_b32 v2, 6, v0")
    A(f"s_and_b32 s{sJ}, s2, 7")
    A(f"v_readfirstlane_b32 s{sWV}, v2")
    A(f"s_lshr_b32 s{sR}, s2, 3")
    A(f"s_cmp_lt_u32 s{sR}, 8")
    A("s_cbranch_scc1 L_helper")
    A(f"s_sub_u32 s{sR}, s{sR}, 8")
    A(f"s_mul_i32 s{sMT}, s{sR}, 21846")
    A(f"s_lshr_b32 s{sMT}, s{sMT}, 16")
    A(f"s_mul_i32 s{sT0}, s{sMT}, 3")
    A(f"s_sub_u32 s{sI}, s{sR}, s{sT0}")
    A(f"s_mul_i32 s{sWK}, s{sJ}, 24")
    A(f"s_add_u32 s{sWK}, s{sWK}, s{sR}")
    ROT = [int(c) for c in cfg.rot]
    ROTTAB = sum(r << (4 * m) for m, r in enumerate(ROT))
    sROT, sLO, sHI = 10, 11, 12
    if any(ROT):
        A(f"s_lshl_b32 s{sROT}, s{sMT}, 2")
        A(f"s_lshr_b32 s{sROT}, {ROTTAB}, s{sROT}")
        A(f"s_and_b32 s{sROT}, s{sROT}, 15")

    def rot_setup(sbase, stride):
        if any(ROT):
            A(f"s_mul_i32 s{sLO}, s{sROT}, {stride}")
            A(f"s_add_u32 s{sLO}, s{sLO}, s{sbase}")
            A(f"s_sub_u32 s{sHI}, s{sLO}, {9*stride}")

    def rot_addr(dst, sbase, t, stride, extra):
        if any(ROT):
            if t + max(ROT) < 9:
                A(f"s_add_u32 s{dst}, s{sLO}, {t*stride + extra}")
            else:
                A(f"s_cmp_lt_u32 s{sROT}, {9-t}")
                A(f"s_cselect_b32 s{dst}, s{sLO}, s{sHI}")
                A(f"s_add_u32 s{dst}, s{dst}, {t*stride + extra}")
        else:
            A(f"s_add_u32 s{dst}, s{sbase}, {t*stride + extra}")
    A(f"s_cmp_lt_u32 s{sWV}, 4")
    A("s_cbranch_scc1 L_compute")
    A(f"s_cmp_eq_u32 s{sWV}, 6")
    A("s_cbranch_scc1 L_xh")
    A(f"s_cmp_eq_u32 s{sWV}, 7")
    A("s_cbranch_scc1 L_h2")
    ts_base = tsn[0]

    def loader_stream(kinds, per_block, issue_fn, setup_fn, cap, group=False, validate=None, before_bar=None, role=None):
        mine = [blocks[nm] for nm in order if blocks[nm]["kind"] in kinds]
        outstanding, pend = [], list(mine)
        nb = lambda nm: per_block(blocks[nm]) if callable(per_block) else per_block
        cnt = lambda lst: sum(nb(x) for x in lst)

        def ok(b, q):
            if b["free"] + 2 > q:
                return False
            if b["kind"] in ("H1", "H2") and q < min(hfetch[b["lk"]], b["need"] - 1):
                return False
            return True

        def issue_upto(q, ahead, cap):
            n = 0
            lim = cum[q] + ahead if q >= 0 else ahead
            while pend and ok(pend[0], q):
                must = pend[0]["need"] <= q + 1 or pend[0]["pos"] < lim
                if not must and n >= cap:
                    break
                grp = [pend.pop(0)]
                while group and pend and ok(pend[0], q) and pend[0]["need"] == grp[0]["need"] and len(grp) < 3 \
                        and (pend[0]["pos"] < lim or n + len(grp) < cap or pend[0]["need"] <= q + 1):
                    grp.append(pend.pop(0))
                need_n = sum(nb(x["name"]) for x in grp)
                if cnt(outstanding) + need_n > 63:
                    while cnt(outstanding) + need_n > 63:
                        del outstanding[0]
                    A(f"s_waitcnt vmcnt({cnt(outstanding)})")
                issue_fn(grp if group else grp[0])
                if cfg.verbose:
                    print(f"   after B{q}: " + " ".join(x["name"] for x in grp), file=sys.stderr)
                outstanding.extend(x["name"] for x in grp)
                n += len(grp)

        issue_upto(-1, cfg.first, 0)
        if cfg.ts0:
            stamp()
        A.tail(role)
        setup_fn()
        issue_upto(-1, cfg.ahead0, 0)
        for q in range(NQ):
            assert not any(b["need"] <= q for b in pend), (q, pend[0])
            for b in mine:
                if b["need"] == q:
                    if b["name"] in outstanding:
                        idx = max(i for i, nm in enumerate(outstanding) if blocks[nm]["need"] <= q) if validate is None \
                            else outstanding.index(b["name"])
                        del outstanding[:idx + 1]
                        A(f"s_waitcnt vmcnt({cnt(outstanding)})")
                    if validate is not None and b["kind"] != "X":
                        validate(b)
            if before_bar is not None:
                before_bar(q)
            if q in cfg.tsq:
                stamp()
            A("s_barrier")
            if q in cfg.pause:
                issue_upto(q, 0, 0)
            else:
                issue_upto(q, cfg.ahead, 99 if q in cfg.burst else (cap if q >= cfg.capfrom else 0))
        assert not pend

    A.head("w")
    sHW = sT5
    A(f"s_sub_u32 s{sHW}, s{sWV}, 4")
    A("v_lshrrev_b32 v2, 3, v1")
    A("v_and_b32 v3, 7, v1")
    A("v_bfe_u32 v4, v1, 4, 1")
    A("v_lshlrev_b32 v4, 2, v4")
    A("v_xor_b32 v3, v3, v4")
    A("v_lshlrev_b32 v3, 4, v3")
    A("v_lshrrev_b32 v4, 2, v2")
    A("v_and_b32 v5, 3, v2")
    A("v_lshl_add_u32 v4, v4, 3, v5")
    A(f"s_lshl_b32 s{sT0}, s{sHW}, 5")
    A(f"v_add_u32 v4, s{sT0}, v4")
    A("v_mul_u32_u24 v4, 9216, v4")
    A("v_add_u32 v4, v4, v3")
    for c in range(1, 4):
        A(f"v_add_u32 v{4+c}, {(16*(c>>1)+4*(c&1))*9216 - 1024*c}, v4")
    sLW, sC1 = sT4, 38
    A(f"s_lshl_b32 s{sLW}, s{sHW}, 12")
    A(f"s_mul_i32 s{sC1}, s{sJ}, 1152")
    A(f"s_mul_i32 s{sT1}, s{sI}, 384")
    A(f"s_add_u32 s{sC1}, s{sC1}, s{sT1}")
    rot_setup(sC1, 64*9216)
    if cfg.wt:
        A("v_and_b32 v12, 7, v1")
        A("v_lshrrev_b32 v13, 5, v1")
        A("v_lshl_add_u32 v12, v13, 6, v12")
        A("v_mul_u32_u24 v12, 9216, v12")
        A("v_bfe_u32 v13, v1, 3, 2")
        A("v_lshl_add_u32 v12, v13, 7, v12")
        A(f"s_lshl_b32 s{sT0}, s{sHW}, 4")
        A(f"s_add_u32 s{sT0}, s{sT0}, s{sMT}")
        A(f"s_mul_i32 s{sT0}, s{sT0}, {8*9216}")
        A(f"s_add_u32 s{sT0}, s{sT0}, s{sC1}")
        msk = [sum(0xffffff << (32 * h) for h in range(2) if 2 * w + h < cfg.wt) for w in range(2)]
        A(f"s_mov_b32 exec_lo, {msk[0] & 0xffffffff}")
        A(f"s_mov_b32 exec_hi, {msk[0] >> 32}")
        if msk[1] != msk[0]:
            A(f"s_cmp_eq_u32 s{sHW}, 0")
            A(f"s_cselect_b32 exec_lo, exec_lo, {(msk[1] & 0xffffffff) or 1}")
            A(f"s_cselect_b32 exec_hi, exec_hi, {msk[1] >> 32}")
    A("s_waitcnt lgkmcnt(0)")
    if cfg.ts0:
        stamp()
    srd(SRD0, sW1, 5308416)
    if cfg.wt:
        A(f"buffer_load_dword v255, v12, s[{SRD0}:{SRD0+3}], s{sT0} offen")
        A("s_mov_b64 exec, -1")
    sV = [62, 63, 59]

    def w2_setup():
        epoch_load(sMT)
        A(f"s_lshl_b32 s{sT0}, s{sHW}, 5")
        A(f"v_add_u32 v8, s{sT0}, v2")
        A("v_mul_u32_u24 v8, 1152, v8")
        A("v_add_u32 v8, v8, v3")
        for c in range(1, 4):
            A(f"v_add_u32 v{8+c}, {8*c*1152 - 1024*c}, v8")
        A(f"s_mul_i32 s39, s{sJ}, {576*1152}")
        A(f"s_mul_i32 s{sT0}, s{sI}, 384")
        A(f"s_add_u32 s39, s39, s{sT0}")
        for d in range(3):
            mod3add(sT1, d, sT2)
            A(f"s_mul_i32 s{sT1}, s{sT1}, {192*1152}")
            A(f"s_add_u32 s{sV[d]}, s39, s{sT1}")
        srd(SRD1, sW2, 5308416)

    def issue_w(grp):
        for b in grp:
            A(f"s_add_u32 m0, s{sLW}, {b['slot']*8192}")
            if b["kind"] == "W1":
                rot_addr(sT0, sC1, b['t'], 64*9216, 128*b['l'])
                vb, sr = 4, SRD0
            else:
                A(f"s_add_u32 s{sT0}, s{sV[b['d']]}, {64*b['lk']*1152 + 128*b['l']}")
                vb, sr = 8, SRD1
            for c in range(4):
                A(f"buffer_load_dwordx4 v{vb+c}, s[{sr}:{sr+3}], s{sT0} offen offset:{1024*c} {cfg.wfl} lds")

    loader_stream(("W1", "W2"), 4, issue_w, w2_setup, cfg.capw, group=True,
                  before_bar=lambda q: epoch_fin() if q == 2 else None, role="w")
    A("s_branch L_reduce")
    ts_max = tsn[0]

    sXB = 38
    sH = {1: 39, 2: 59}
    HALF = [0]

    def h_setup(half):
        A("v_lshlrev_b32 v12, 4, v1")
        A("v_add_u32 v13, 0x10000, v12")
        A("v_add_u32 v14, 0x20000, v12")
        A(f"s_sub_u32 s{sT0}, s{sWK}, s{sI}")
        for d in (1, 2):
            mod3add(sT1, d, sT2)
            A(f"s_add_u32 s{sT1}, s{sT1}, s{sT0}")
            A(f"s_mul_i32 s{sH[d]}, s{sT1}, 24576")
        srd(SRD1, sWS, 0x10000000)
        epoch_load(sMT)

    def issue_xh(b):
        for h in (range(2) if b["kind"] == "X" else HALF):
            A(f"s_mov_b32 m0, {b['slot']*8192 + 4096*h}")
            if b["kind"] == "X":
                rot_addr(sT0, sXB, b['t'], 128, 32*1152*h)
                for c in range(4):
                    A(f"buffer_load_dwordx4 v{8+c}, s[{SRD0}:{SRD0+3}], s{sT0} offen offset:{1024*c} lds")
            else:
                A(f"s_add_u32 s{sT0}, s{sH[b['d']]}, {WS_H + 8192*b['lk'] + 4096*h}")
                for c in range(4):
                    A(f"buffer_load_dwordx4 v12, s[{SRD1}:{SRD1+3}], s{sT0} offen offset:{1024*c} {cfg.hlf} lds")

    retry_code = []

    def validate(b):
        k = A.uid()
        addr = b["slot"] * 8192 + 4096 * HALF[0]
        va = 12 + (addr >> 16)
        A.label(f"L_v{k}")
        for c in range(4):
            A(f"ds_read_b128 v[{32+4*c}:{35+4*c}], v{va} offset:{(addr & 0xffff) + 1024*c}")
        for c in range(4):
            r = 32 + 4 * c
            A(f"s_waitcnt lgkmcnt({3-c})")
            for kk in range(4):
                if c == 0 and kk < 2:
                    A(f"v_xor_b32 v{16+kk}, v{r+kk}, v{20+kk}")
                else:
                    A(f"v_bitop3_b32 v{16+(kk&1)}, v{16+(kk&1)}, v{r+kk}, v{20+kk} bitop3:0xf6")
        A("v_bitop3_b32 v16, v16, v17, v24 bitop3:0xa8")
        A("v_cmp_ne_u32 vcc, 0, v16")
        A(f"s_cbranch_vccnz L_vr{k}")
        A.label(f"L_vd{k}")
        n0 = len(A.L)
        A.label(f"L_vr{k}")
        A(f"s_cmp_gt_u32 s{sCNT}, {SPIN_MAX}")
        A(f"s_cbranch_scc1 L_vd{k}")
        issue_xh(b)
        A(f"s_add_u32 s{sCNT}, s{sCNT}, 1")
        A("s_waitcnt vmcnt(0)")
        A(f"s_branch L_v{k}")
        retry_code.extend(A.L[n0:])
        del A.L[n0:]

    def flush_retry():
        A.L.extend(retry_code)
        retry_code.clear()

    def bb_tag(q):
        if q == 2:
            epoch_fin()
            tag_regs(20, 16)
            A("v_mov_b32 v24, 0x80008000")
            A(f"s_mov_b32 s{sCNT}, 0")

    A.head("x")
    A.label("L_xh")
    tsn[0] = ts_base
    A("v_lshrrev_b32 v2, 3, v1")
    A("v_and_b32 v3, 7, v1")
    A("v_lshrrev_b32 v4, 4, v1")
    A("v_xor_b32 v3, v3, v4")
    A("v_lshlrev_b32 v3, 4, v3")
    A("v_mul_u32_u24 v4, 1152, v2")
    A("v_add_u32 v8, v4, v3")
    A("v_xor_b32 v5, 64, v8")
    A(f"v_add_u32 v9, {8*1152 - 1024}, v5")
    A(f"v_add_u32 v10, {16*1152 - 2048}, v8")
    A(f"v_add_u32 v11, {24*1152 - 3072}, v5")
    A(f"s_mul_i32 s{sXB}, s{sMT}, {64*1152}")
    rot_setup(sXB, 128)

    def x_touch_pre(st0):
        A(f"s_mul_i32 s{sT0}, s{sI}, 22")
        A("v_and_b32 v12, 31, v1")
        A(f"v_add_u32 v12, s{sT0}, v12")
        A("v_min_u32 v12, 63, v12")
        A("v_mul_u32_u24 v12, 1152, v12")
        A("v_lshrrev_b32 v13, 5, v1")
        A("v_lshl_add_u32 v12, v13, 7, v12")
        A("s_mov_b32 exec_lo, 0x3fffff")
        A(f"s_mov_b32 exec_hi, {0x3fffff if cfg.wt > st0 + 1 else 0}")

    def x_touch(st0):
        A(f"buffer_load_dword v255, v12, s[{SRD0}:{SRD0+3}], s{sXB} offen offset:{128*st0}")
        A("s_mov_b64 exec, -1")
    if cfg.wt:
        x_touch_pre(0)
    A("s_waitcnt lgkmcnt(0)")
    if cfg.ts0:
        stamp()
    srd(SRD0, sX, 589824)
    if cfg.wt:
        x_touch(0)
    nbx = lambda b: 8 if b["kind"] == "X" else 4
    loader_stream(("X", "H1", "H2"), nbx, issue_xh, lambda: h_setup(0), cfg.capx, validate=validate, before_bar=bb_tag, role="x")
    if TS:
        A(f"s_mov_b32 s{sTS+24}, s{sCNT}")
    A("s_branch L_reduce")
    flush_retry()
    ts_max = max(ts_max, tsn[0])

    A.head("h2")
    A.label("L_h2")
    tsn[0] = ts_base
    if cfg.wt > 2:
        A(f"s_mul_i32 s{sXB}, s{sMT}, {64*1152}")
        x_touch_pre(2)
    A("s_waitcnt lgkmcnt(0)")
    if cfg.wt > 2:
        srd(SRD0, sX, 589824)
        x_touch(2)
    srd(SRD1, sWS, 0x10000000)
    if cfg.hpre == 3:
        A("v_lshlrev_b32 v3, 7, v1")
        A(f"s_mul_i32 s{sT1}, s{sWK}, 24576")
        for c in range(3):
            A(f"buffer_load_dword v255, v3, s[{SRD1}:{SRD1+3}], s{sT1} offen")
            A(f"s_add_u32 s{sT1}, s{sT1}, 8192")

    def w7_touch():
        st = list(range(cfg.ta, cfg.ta + cfg.tn))
        srd(SRD0, sX, 589824)
        srd(SRD2, sW1, 5308416)
        A(f"s_mul_i32 s{sXB}, s{sMT}, {64*1152}")
        A(f"s_mul_i32 s{sT0}, s{sI}, 22")
        A("v_and_b32 v2, 31, v1")
        A(f"v_add_u32 v2, s{sT0}, v2")
        A("v_min_u32 v2, 63, v2")
        A("v_mul_u32_u24 v2, 1152, v2")
        A("v_lshrrev_b32 v4, 5, v1")
        A("v_lshl_add_u32 v2, v4, 7, v2")
        A("v_and_b32 v3, 7, v1")
        A("v_lshl_add_u32 v3, v4, 6, v3")
        A("v_mul_u32_u24 v3, 9216, v3")
        A("v_bfe_u32 v4, v1, 3, 2")
        A("v_lshl_add_u32 v3, v4, 7, v3")
        A(f"s_mul_i32 s{sT0}, s{sMT}, {8*9216}")
        A(f"s_mul_i32 s{sT1}, s{sJ}, 1152")
        A(f"s_add_u32 s{sT0}, s{sT0}, s{sT1}")
        A(f"s_mul_i32 s{sT1}, s{sI}, 384")
        A(f"s_add_u32 s{sT0}, s{sT0}, s{sT1}")
        for p in range(0, len(st), 2):
            two = p + 1 < len(st)
            A(f"s_add_u32 s{sT1}, s{sT0}, {st[p]*64*9216}")
            A("s_mov_b32 exec_lo, 0xffffff")
            A(f"s_mov_b32 exec_hi, {0xffffff if two else 0}")
            A(f"buffer_load_dword v255, v3, s[{SRD2}:{SRD2+3}], s{sT1} offen")
            A("s_mov_b32 exec_lo, 0x3fffff")
            A(f"s_mov_b32 exec_hi, {0x3fffff if two else 0}")
            A(f"buffer_load_dword v255, v2, s[{SRD0}:{SRD0+3}], s{sXB} offen offset:{128*st[p]}")
        A("s_mov_b64 exec, -1")
    if cfg.tn and cfg.tpos == 0:
        w7_touch()

    def bb_h2(q):
        if cfg.tn and cfg.tpos == 1 and q == 0:
            A("s_waitcnt lgkmcnt(0)")
            w7_touch()
        if cfg.tn and cfg.tpos >= 2 and q == cfg.tpos - 1:
            w7_touch()
        if cfg.tn and q == 7:
            A("s_waitcnt vmcnt(0)")
        bb_tag(q)
        if q == 2 and (cfg.hpre == 3 or cfg.wt > 2):
            A("s_waitcnt vmcnt(0)")

    HALF[0] = 1
    loader_stream(("H1", "H2"), nbx, issue_xh, lambda: h_setup(1), cfg.capx, validate=validate, before_bar=bb_h2, role="h2")
    stamp_flush()
    A("s_branch L_end")
    flush_retry()

    A.tail("red")
    A.label("L_reduce")
    tsn[0] = ts_max
    srd(SRD1, sWS, 0x10000000)
    sC = sT4
    A(f"s_sub_u32 s{sC}, s{sWV}, 4")
    A("v_lshlrev_b32 v2, 4, v1")
    A(f"s_lshl_b32 s{sT2}, s{sC}, 7")
    A(f"s_mul_i32 s{sT1}, s{sI}, 384")
    A(f"s_add_u32 s{sT2}, s{sT2}, s{sT1}")
    A("v_lshrrev_b32 v3, 5, v1")
    A("v_bfe_u32 v4, v1, 3, 2")
    A("v_lshlrev_b32 v4, 5, v4")
    A("v_lshl_add_u32 v8, v3, 4, v4")
    A("v_lshl_add_u32 v3, v3, 3, v4")
    srd(SRD0, sB2, 1152)
    A(f"buffer_load_dwordx2 v[4:5], v3, s[{SRD0}:{SRD0+3}], s{sT2} offen")
    A(f"buffer_load_dwordx2 v[6:7], v3, s[{SRD0}:{SRD0+3}], s{sT2} offen offset:16")
    A(f"s_lshl_b32 s{sT1}, s{sJ}, 3")
    A(f"s_lshl_b32 s{sT3}, s{sMT}, 6")
    A(f"s_add_u32 s{sT1}, s{sT1}, s{sT3}")
    A(f"s_mul_i32 s{sT1}, s{sT1}, 1152")
    A(f"s_add_u32 s{sT2}, s{sT2}, s{sT1}")
    A("v_and_b32 v9, 7, v1")
    A("v_mul_u32_u24 v9, 1152, v9")
    A("v_add_u32 v8, v8, v9")
    tag_regs(20, 16)
    A(f"s_mul_i32 s{sT0}, s{sWK}, {8*3072}")
    A(f"s_lshl_b32 s{sT1}, s{sC}, 10")
    A(f"s_add_u32 s{sT0}, s{sT0}, s{sT1}")
    A(f"s_add_u32 s{sT0}, s{sT0}, {WS_IN}")
    A("v_mov_b32 v14, 0")
    A("s_waitcnt vmcnt(0)")
    for k in range(4):
        A(f"v_lshlrev_b32 v{24+2*k}, 16, v{4+k}")
        A(f"v_and_b32 v{25+2*k}, 0xffff0000, v{4+k}")
    sP = sT5
    A(f"s_mov_b32 s{sP}, 0xff")
    A(f"s_mov_b32 s{sCNT}, 0")
    srd(SRD0, sOUT, 589824)
    if cfg.rfast:
        for s_ in range(1, 8):
            A(f"s_add_u32 s{79+s_}, s{sT0}, {3072*s_}") if not TS else None
    if cfg.rbar:
        A("s_barrier")
    stamp()
    if cfg.rfast:
        for s_ in range(8):
            so = sT0 if s_ == 0 else 79 + s_
            if TS and s_:
                A(f"s_add_u32 s{sT1}, s{sT0}, {3072*s_}")
                so = sT1
            A(f"buffer_load_dwordx4 v[{32+4*s_}:{35+4*s_}], v2, s[{SRD1}:{SRD1+3}], s{so} offen {cfg.rfl}")
        for s_ in range(8):
            r = 32 + 4 * s_
            A(f"s_waitcnt vmcnt({7-s_})")
            for k in range(4):
                if s_ == 0 and k == 0:
                    A(f"v_xor_b32 v9, v{r}, v20")
                else:
                    A(f"v_bitop3_b32 v9, v9, v{r+k}, v{20+k} bitop3:0xf6")
                A(f"v_lshlrev_b32 v{10+2*(k&1)}, 16, v{r+k}")
                A(f"v_and_b32 v{11+2*(k&1)}, 0xffff0000, v{r+k}")
                A(f"v_pk_add_f32 v[{24+2*k}:{25+2*k}], v[{24+2*k}:{25+2*k}], v[{10+2*(k&1)}:{11+2*(k&1)}]")
        A("v_and_b32 v9, 0x10001, v9")
        A("v_cmp_ne_u32 vcc, 0, v9")
        A("s_cbranch_vccz L_rdone")
        for k in range(4):
            A(f"v_lshlrev_b32 v{24+2*k}, 16, v{4+k}")
            A(f"v_and_b32 v{25+2*k}, 0xffff0000, v{4+k}")
        A("s_branch L_rchk")
    A.label("L_rpoll")
    for s_ in range(8):
        A(f"s_bitcmp0_b32 s{sP}, {s_}")
        A(f"s_cbranch_scc1 L_rl{s_}")
        A(f"s_add_u32 s{sT1}, s{sT0}, {3072*s_}")
        A(f"buffer_load_dwordx4 v[{32+4*s_}:{35+4*s_}], v2, s[{SRD1}:{SRD1+3}], s{sT1} offen {cfg.rfl}")
        A.label(f"L_rl{s_}")
    A("s_waitcnt vmcnt(0)")
    A.label("L_rchk")
    A(f"s_add_u32 s{sCNT}, s{sCNT}, 1")
    for s_ in range(8):
        r = 32 + 4 * s_
        A(f"s_bitcmp0_b32 s{sP}, {s_}")
        A(f"s_cbranch_scc1 L_ra{s_}")
        A(f"v_xor_b32 v9, v{r}, v20")
        for k in range(1, 4):
            A(f"v_bitop3_b32 v9, v9, v{r+k}, v{20+k} bitop3:0xf6")
        A("v_and_b32 v9, 0x10001, v9")
        A("v_cmp_ne_u32 vcc, 0, v9")
        A(f"s_cbranch_vccnz L_ra{s_}")
        A(f"s_bitset0_b32 s{sP}, {s_}")
        for k in range(4):
            A(f"v_lshlrev_b32 v10, 16, v{r+k}")
            A(f"v_and_b32 v11, 0xffff0000, v{r+k}")
            A(f"v_pk_add_f32 v[{24+2*k}:{25+2*k}], v[{24+2*k}:{25+2*k}], v[10:11]")
        A.label(f"L_ra{s_}")
    A(f"s_cmp_gt_u32 s{sCNT}, {SPIN_MAX}")
    A("s_cbranch_scc1 L_rdone")
    A(f"s_cmp_lg_u32 s{sP}, 0")
    A("s_cbranch_scc1 L_rpoll")
    A.label("L_rdone")
    stamp()
    for k in range(4):
        A(f"v_cvt_pk_bf16_f32 v{24+k}, v{24+2*k}, v{25+2*k}")
    A("s_nop 1")
    A("v_permlane32_swap_b32 v24, v26")
    A("v_permlane32_swap_b32 v25, v27")
    A(f"s_or_b32 s{sT0}, s{sJ}, s{sI}")
    A(f"s_or_b32 s{sT0}, s{sT0}, s{sC}")
    A(f"buffer_store_dwordx4 v[24:27], v8, s[{SRD0}:{SRD0+3}], s{sT2} offen {cfg.ofl}")
    A(f"s_cmp_lg_u32 s{sT0}, 0")
    A("s_cbranch_scc1 L_noep")
    A(f"v_mov_b32 v16, s{sTAG}")
    A(f"s_lshl_b32 s{sT0}, s{sMT}, 7")
    A(f"s_add_u32 s{sT0}, s{sT0}, {WS_EP}")
    A("s_mov_b64 exec, 1")
    A(f"buffer_store_dword v16, v14, s[{SRD1}:{SRD1+3}], s{sT0} offen sc1")
    A("s_mov_b64 exec, -1")
    A.label("L_noep")
    if TS:
        A("s_waitcnt vmcnt(0)")
        stamp()
        A("s_memrealtime s[98:99]")
        A("s_waitcnt lgkmcnt(0)")
        A(f"s_mov_b32 s{sTS+26}, s96"); A(f"s_mov_b32 s{sTS+28}, s98"); A(f"s_mov_b32 s{sTS+30}, s{sCNT}")
        assert tsn[0] <= 12
        tsn[0] = 16
        stamp_flush()
    A("s_branch L_end")

    A.head("c")
    A.label("L_compute")
    tsn[0] = ts_base
    vACC, vAB, vXB, vT = 16, 64, 96, 240
    nAB = D + 1
    vA, vBX, vBH, vHW = [2, 3, 4], [5, 6, 7, 8], [9, 10, 11], [12, 13, 14]
    vTG, vL16 = vT + 11, vT + 10
    assert vAB + 4 * nAB <= vXB
    sA, sBq = sT4, sT5
    A(f"s_and_b32 s{sA}, s{sWV}, 1")
    A(f"s_lshr_b32 s{sBq}, s{sWV}, 1")
    A(f"v_lshrrev_b32 v{vT}, 5, v1")
    A(f"s_mul_i32 s60, s{sJ}, 1152")
    A(f"s_mul_i32 s{sT1}, s{sI}, 384")
    A(f"s_add_u32 s60, s60, s{sT1}")
    A(f"s_lshl_b32 s{sT1}, s{sBq}, 6")
    A(f"s_add_u32 s61, s60, s{sT1}")
    A(f"v_lshlrev_b32 v{vT+4}, 3, v{vT}")
    if cfg.sa:
        A(f"s_add_u32 s{sT3}, s{sWV}, 1")
        A(f"v_and_b32 v{vT+5}, 7, v1")
        A(f"v_mul_u32_u24 v{vT+5}, 9216, v{vT+5}")
        A(f"v_lshrrev_b32 v{vT+6}, 3, v1")
        A(f"v_min_u32 v{vT+6}, 2, v{vT+6}")
        A(f"v_lshl_add_u32 v{vT+5}, v{vT+6}, 7, v{vT+5}")
        A(f"s_lshl_b32 s{sT1}, s{sT3}, 3")
        A(f"s_add_u32 s{sT1}, s{sT1}, s{sMT}")
        A(f"s_mul_i32 s{sT1}, s{sT1}, {8*9216}")
        A(f"s_add_u32 s{sT1}, s{sT1}, s60")
        A(f"s_mul_i32 s{sT2}, s{sI}, 22")
        A(f"v_min_u32 v{vT+6}, 21, v1")
        A(f"v_add_u32 v{vT+6}, s{sT2}, v{vT+6}")
        A(f"v_min_u32 v{vT+6}, 63, v{vT+6}")
        A(f"v_mul_u32_u24 v{vT+6}, 1152, v{vT+6}")
        A(f"s_mul_i32 s{sT2}, s{sMT}, {64*1152}")
        A(f"s_lshl_b32 s{sT3}, s{sT3}, 7")
        A(f"s_add_u32 s{sT2}, s{sT2}, s{sT3}")
    A("s_waitcnt lgkmcnt(0)")
    srd(SRD0, sB1, 9216)
    for l in range(3):
        for g in range(4):
            r = vXB + 2 * (4 * l + g)
            A(f"buffer_load_dwordx2 v[{r}:{r+1}], v{vT+4}, s[{SRD0}:{SRD0+3}], s61 offen offset:{128*l+16*g}")
    if cfg.sa:
        srd(SRD1, sW1, 5308416)
        srd(SRD2, sX, 589824)
        A(f"s_cmp_ge_u32 s{sWV}, {cfg.sa}")
        A("s_cbranch_scc1 L_tdone")
        A(f"buffer_load_dword v255, v{vT+5}, s[{SRD1}:{SRD1+3}], s{sT1} offen {cfg.tfl}")
        A(f"buffer_load_dword v255, v{vT+6}, s[{SRD2}:{SRD2+3}], s{sT2} offen")
        A.label("L_tdone")
    epoch_load(sMT)
    A.tail("c")
    srd(SRD1, sWS, 0x10000000)
    A(f"v_bfe_u32 v{vT+1}, v1, 2, 2")
    A(f"v_lshl_add_u32 v{vT+2}, v{vT}, 2, v{vT+1}")
    A(f"v_lshlrev_b32 v{vT+2}, 7, v{vT+2}")
    A(f"v_bfe_u32 v{vT+3}, v1, 3, 1")
    A(f"v_xor_b32 v{vT+3}, s{sBq}, v{vT+3}")
    A(f"v_lshl_add_u32 v{vT+2}, v{vT+3}, 6, v{vT+2}")
    A(f"v_bfe_u32 v{vT+3}, v1, 4, 1")
    A(f"v_lshl_add_u32 v{vT+2}, v{vT+3}, 5, v{vT+2}")
    A(f"v_and_b32 v{vT+3}, 3, v1")
    A(f"v_lshl_add_u32 v{vA[0]}, v{vT+3}, 3, v{vT+2}")
    A(f"v_add_u32 v{vA[1]}, 0x10000, v{vA[0]}")
    A(f"v_add_u32 v{vA[2]}, 0x20000, v{vA[0]}")
    A(f"v_and_b32 v{vT+1}, 31, v1")
    A(f"v_bfe_u32 v{vT+2}, v1, 1, 3")
    A(f"v_xor_b32 v{vT+2}, v{vT}, v{vT+2}")
    A(f"v_lshlrev_b32 v{vT+2}, 4, v{vT+2}")
    A(f"v_lshl_add_u32 v{vT+2}, v{vT+1}, 7, v{vT+2}")
    A(f"s_lshl_b32 s{sT0}, s{sA}, 12")
    A(f"s_add_u32 s{sT1}, s{sT0}, 0x20000")
    A(f"v_add_u32 v{vBX[0]}, s{sT1}, v{vT+2}")
    for sp in range(1, 4):
        A(f"v_xor_b32 v{vBX[sp]}, {32*sp}, v{vBX[0]}")
    A(f"v_lshl_add_u32 v{vBH[0]}, v1, 4, s{sT0}")
    A(f"v_add_u32 v{vBH[1]}, 0x10000, v{vBH[0]}")
    A(f"v_add_u32 v{vBH[2]}, 0x20000, v{vBH[0]}")
    A(f"s_lshl_b32 s{sT1}, s{sBq}, 11")
    for k in range(3):
        A(f"v_add_u32 v{vHW[k]}, s{sT1}, v{vBH[k]}")
    sI0 = 38
    sMS, sML, sMC = 39, 63, 59
    sHS = [60, 61, 62]
    A(f"s_mul_i32 s{sI0}, s{sA}, 96")
    A(f"s_add_u32 s{sI0}, s{sI0}, s{sR}")
    A(f"s_lshl_b32 s{sI0}, s{sI0}, 3")
    A(f"s_add_u32 s{sI0}, s{sI0}, s{sJ}")
    A(f"s_mul_i32 s{sI0}, s{sI0}, 3072")
    A(f"s_add_u32 s{sI0}, s{sI0}, {WS_IN}")
    A(f"s_lshl_b32 s{sT1}, s{sBq}, 8")
    A(f"s_add_u32 s{sI0}, s{sI0}, s{sT1}")
    A(f"v_bfe_u32 v{vT+1}, v1, 3, 2")
    A(f"v_mul_u32_u24 v{vT+1}, {24*8*3072}, v{vT+1}")
    A(f"v_and_b32 v{vT+2}, 7, v1")
    A(f"v_lshl_add_u32 v{vT+1}, v{vT+2}, 4, v{vT+1}")
    A(f"v_lshl_add_u32 v{vL16}, v{vT}, 9, v{vT+1}")
    A(f"s_mov_b32 s{sMS}, 0x80008000")
    A(f"s_mov_b32 s{sML}, 0x00010001")
    A(f"s_mov_b32 s{sMC}, 0x7fff7fff")
    A(f"s_mul_i32 s{sHS[0]}, s{sWK}, 24576")
    if WS_H:
        A(f"s_add_u32 s{sHS[0]}, s{sHS[0]}, {WS_H}")
    A(f"s_add_u32 s{sHS[1]}, s{sHS[0]}, 8192")
    A(f"s_add_u32 s{sHS[2]}, s{sHS[0]}, 16384")
    epoch_fin()
    tag_regs(vTG, vT + 1)
    A("s_waitcnt vmcnt(0)" if not cfg.sa else "s_waitcnt vmcnt(2)")
    if cfg.sa:
        A(f"s_cmp_lt_u32 s{sWV}, {cfg.sa}")
        A("s_cbranch_scc1 L_bw")
        A("s_waitcnt vmcnt(0)")
        A.label("L_bw")
    for l in range(3):
        for g in range(4):
            r = vXB + 2 * (4 * l + g)
            d = vACC + 16 * l + 4 * g
            A(f"v_lshlrev_b32 v{d}, 16, v{r}")
            A(f"v_and_b32 v{d+1}, 0xffff0000, v{r}")
            A(f"v_lshlrev_b32 v{d+2}, 16, v{r+1}")
            A(f"v_and_b32 v{d+3}, 0xffff0000, v{r+1}")
    stamp()

    items = []
    for st in stages:
        bykb = {}
        for u in st["units"]:
            bykb.setdefault(u[2], []).append(u)
        for kb, us in bykb.items():
            for sp in range(4):
                for (t, wb, _kb, fst) in us:
                    items.append(dict(q=st["q"], tile=t, wb=wb, kb=kb, sp=sp, first=(fst and sp == 0)))
    NI = len(items)
    last_item = {}
    for n, it in enumerate(items):
        last_item[it["q"]] = n
    bread_of = {(st["q"], kb): bb for st in stages for (bb, kb) in st["breads"]}
    lg = []

    def ds_issue(instr, tag):
        cap = 11 if TS else 15
        if len(lg) >= cap:
            A(f"s_waitcnt lgkmcnt({cap-2})")
            del lg[:len(lg) - (cap - 2)]
        A(instr)
        lg.append(tag)

    def ds_need(tags):
        idx = max([i for i, t in enumerate(lg) if t in tags], default=-1)
        if idx >= 0:
            A(f"s_waitcnt lgkmcnt({len(lg) - 1 - idx})")
            del lg[:idx + 1]

    checked = [-1]
    bdone = set()
    dirty, clean_pos = {}, {}

    def clean(m):
        key = (items[m]["kb"], items[m]["sp"])
        if key in dirty and dirty[key] == m:
            del dirty[key]
            ds_need({("B",) + key})
            r = vXB + 16 * key[0] + 4 * key[1]
            for k in range(4):
                A(f"v_and_b32 v{r+k}, s{sMC}, v{r+k}")
            clean_pos[m] = len(A.L) - 1

    def issue_reads(n):
        it = items[n]
        q = it["q"]
        if q > checked[0]:
            ds_need({"hw"})
            A("s_barrier")
            checked[0] = q
            if q in cfg.tsq:
                stamp()
        key = (q, it["kb"])
        if key in bread_of and (key, it["sp"]) not in bdone:
            bdone.add((key, it["sp"]))
            bb = blocks[bread_of[key]]
            addr = bb["slot"] * 8192
            r = vXB + 16 * it["kb"] + 4 * it["sp"]
            if bb["kind"] == "X":
                assert addr >> 16 == 2
                ds_issue(f"ds_read_b128 v[{r}:{r+3}], v{vBX[it['sp']]} offset:{addr & 0xffff}", ("B", it["kb"], it["sp"]))
            else:
                ds_issue(f"ds_read_b128 v[{r}:{r+3}], v{vBH[addr >> 16]} offset:{(addr & 0xffff) + 1024*it['sp']}",
                         ("B", it["kb"], it["sp"]))
                if bb["kind"] != "Hown":
                    dirty[(it["kb"], it["sp"])] = n
        wb = blocks[it["wb"]]
        addr = wb["slot"] * 8192 + 2048 * it["sp"]
        r = vAB + 4 * (n % nAB)
        ds_issue(f"ds_read_b64_tr_b16 v[{r}:{r+1}], v{vA[addr >> 16]} offset:{addr & 0xffff}", ("A", n))
        ds_issue(f"ds_read_b64_tr_b16 v[{r+2}:{r+3}], v{vA[addr >> 16]} offset:{(addr & 0xffff) + 1024}", ("A", n))

    post = []

    def epi1_instrs(pi, lines):
        out, late = [], []
        for l in lines:
            a = vACC + 16 * l
            addr = blocks[f"H0_{l}"]["slot"] * 8192
            for half in range(2):
                base = a + 8 * half
                for k in range(8):
                    out.append(("v", f"v_max_f32 v{base+k}, 0, v{base+k}"))
                for k in range(0, 8, 2):
                    out.append(("v", f"v_pk_mul_f32 v[{base+k}:{base+k+1}], v[{base+k}:{base+k+1}], v[{base+k}:{base+k+1}]"))
                for k in range(4):
                    out.append(("v", f"v_cvt_pk_bf16_f32 v{base+k}, v{base+2*k}, v{base+2*k+1}"))
                for k in range(4):
                    out.append(("v", f"v_and_or_b32 v{base+4+k}, v{vTG+k}, s{sMS}, v{base+k}"))
                out.append(("v", f"buffer_store_dwordx4 v[{base+4}:{base+7}], v{vHW[0]}, s[{SRD1}:{SRD1+3}], s{sHS[l]} offen offset:{1024*half} {cfg.hsf}"))
                out.append(("w", f"ds_write_b128 v{vHW[addr >> 16]}, v[{base}:{base+3}] offset:{(addr & 0xffff) + 1024*half}"))
                t = ("v", f"buffer_load_dword v255, v{vHW[0]}, s[{SRD1}:{SRD1+3}], s{sHS[l]} offen offset:{1024*half} {cfg.stf}")
                if cfg.stouch == 1:
                    out.append(t)
                elif cfg.stouch == 2:
                    late.append(t)
                elif cfg.stouch == 3:
                    post.append(t)
        return out + late

    def epi2_instrs(lines):
        out = []
        for l in lines:
            for u in range(2):
                base = vACC + 8 * (2 * l + u)
                for k in range(4):
                    out.append(("v", f"v_cvt_pk_bf16_f32 v{base+k}, v{base+2*k}, v{base+2*k+1}"))
                for k in range(4):
                    out.append(("v", f"v_bfi_b32 v{base+k}, s{sML}, v{vTG+k}, v{base+k}"))
                out.append(("v", f"buffer_store_dwordx4 v[{base}:{base+3}], v{vL16}, s[{SRD1}:{SRD1+3}], s{sI0} offen offset:{1024*l+128*u} sc1"))
        return out

    fillers = []
    fill_start = 0
    fill_tiles = set()
    mfma_pos = {}
    fill_fresh = [False]

    def states_since(pos):
        c = 0
        for ln in A.L[pos + 1:]:
            t = ln.strip()
            if t.endswith(":") or t.startswith(";") or t.startswith("@@"):
                continue
            c += int(t.split()[1]) + 1 if t.startswith("s_nop") else 1
        return c

    def emit(kind, t):
        if fill_fresh[0]:
            fill_fresh[0] = False
            have = min(states_since(mfma_pos[tl]) for tl in fill_tiles)
            if have < 12:
                A(f"s_nop {12 - have - 1}")
        if kind == "w":
            ds_issue(t, "hw")
        else:
            A(t)

    def flush_fillers():
        nonlocal fillers
        for (kind, t) in fillers:
            emit(kind, t)
        fillers = []
        fill_tiles.clear()

    nread = 0
    for n in range(NI):
        it = items[n]
        lim = min(NI - 1, n + D)
        while nread <= lim:
            nx = items[nread]
            if nx["q"] > checked[0]:
                due = [l for l, v in hown_vis.items() if v == nx["q"]]
                if due:
                    if last_item[hown_w[due[0]]] >= n:
                        break
                    flush_fillers()
            key = (nx["q"], nx["kb"])
            if key in bread_of and (key, nx["sp"]) not in bdone:
                if any(items[m]["kb"] == nx["kb"] and items[m]["sp"] == nx["sp"] for m in range(n, nread)):
                    break
            issue_reads(nread)
            nread += 1
        assert nread > n
        if it["tile"] in fill_tiles:
            flush_fillers()
            A("s_nop 1")
        clean(n)
        ds_need({("A", n), ("B", it["kb"], it["sp"])})
        if it["first"]:
            ds_need({"hw"})
        if n in clean_pos and states_since(clean_pos[n]) < 2:
            A(f"s_nop {1 - states_since(clean_pos[n])}")
        ra = vAB + 4 * (n % nAB)
        rb = vXB + 16 * it["kb"] + 4 * it["sp"]
        acc = vACC + 16 * it["tile"]
        c = "0" if it["first"] else f"v[{acc}:{acc+15}]"
        A(f"v_mfma_f32_32x32x16_bf16 v[{acc}:{acc+15}], v[{ra}:{ra+3}], v[{rb}:{rb+3}], {c}")
        mfma_pos[it["tile"]] = len(A.L) - 1
        if n + 1 < nread:
            clean(n + 1)
        k = 0
        while fillers and k < cfg.fill and n >= fill_start:
            kind, t = fillers.pop(0)
            emit(kind, t)
            k += 1
        if not fillers:
            fill_tiles.clear()
            if post and it["q"] >= n_g1 and (n - last_item[n_g1 - 1]) >= cfg.stdel:
                A(post.pop(0)[1])
        if n == last_item[it["q"]]:
            q = it["q"]
            new = []
            if q in epi_after:
                new, tl = epi1_instrs(*epi_after[q]), epi_after[q][1]
            elif q in epi2_after:
                new, tl = epi2_instrs(epi2_after[q]), epi2_after[q]
            if new:
                stamp()
                flush_fillers()
                fillers = new
                fill_tiles.update(tl)
                fill_fresh[0] = True
                fill_start = n + 3
    flush_fillers()
    stamp()
    if cfg.rbar:
        A(f"s_waitcnt vmcnt({cfg.rbar-1})")
        A("s_barrier")
    if TS:
        A("s_waitcnt vmcnt(0)")
        stamp()
        stamp_flush()
    A("s_branch L_end")

    A.head("hl")
    A.label("L_helper")
    sG = 38
    A(f"s_lshl_b32 s{sG}, s{sWV}, 3")
    A(f"s_add_u32 s{sG}, s{sG}, s{sR}")
    A("v_mul_u32_u24 v8, 9216, v1")
    A("v_mul_u32_u24 v9, 1152, v1")
    A(f"s_mul_i32 s39, s{sJ}, 1152")
    A("s_waitcnt lgkmcnt(0)")
    NWT = 64

    def sdiv(dst, src, d):
        A(f"s_mul_i32 s{dst}, s{src}, {(65536 + d - 1) // d}")
        A(f"s_lshr_b32 s{dst}, s{dst}, 16")

    w2base = 0
    if cfg.touch and any(ROT):
        srd(SRD0, sW1, 5308416)
        srd(SRD1, sX, 589824)
        need = {kk: min((kk - r) % 9 for r in ROT) for kk in range(9)}
        kks = sorted([kk for kk in range(9) if need[kk] >= cfg.skipw], key=lambda kk: need[kk])
        KT = sum(kk << (4 * u) for u, kk in enumerate(kks))
        nW = 9 * len(kks)
        x0 = cfg.skipx
        nX = 8 * (9 - x0)
        tot = nW + nX
        for rnd in range((tot + NWT - 1) // NWT):
            if rnd == 1:
                A.tail("hl")
            k = A.uid()
            A(f"s_add_u32 s{sT0}, s{sG}, {NWT*rnd}")
            if NWT * rnd < nW:
                if NWT * rnd + NWT > nW:
                    A(f"s_cmp_ge_u32 s{sT0}, {nW}")
                    A(f"s_cbranch_scc1 L_hx{k}")
                sdiv(sT1, sT0, 9)
                A(f"s_mul_i32 s{sT2}, s{sT1}, 9")
                A(f"s_sub_u32 s{sT2}, s{sT0}, s{sT2}")
                A(f"s_lshl_b32 s{sT1}, s{sT1}, 2")
                A(f"s_lshr_b32 s{sT1}, {KT}, s{sT1}")
                A(f"s_and_b32 s{sT1}, s{sT1}, 15")
                A(f"s_mul_i32 s{sT1}, s{sT1}, {64*9216}")
                A(f"s_lshl_b32 s{sT2}, s{sT2}, 7")
                A(f"s_add_u32 s{sT1}, s{sT1}, s{sT2}")
                A(f"s_add_u32 s{sT1}, s{sT1}, s39")
                A(f"buffer_load_dword v255, v8, s[{SRD0}:{SRD0+3}], s{sT1} offen {cfg.tfl}")
                if NWT * rnd + NWT > nW:
                    A(f"s_branch L_ht{k}")
            if NWT * rnd + NWT > nW:
                A.label(f"L_hx{k}")
                if NWT * rnd + NWT > tot:
                    A(f"s_cmp_ge_u32 s{sT0}, {tot}")
                    A(f"s_cbranch_scc1 L_ht{k}")
                A(f"s_sub_u32 s{sT0}, s{sT0}, {nW - 8*x0}")
                A(f"s_and_b32 s{sT2}, s{sT0}, 7")
                A(f"s_lshr_b32 s{sT1}, s{sT0}, 3")
                A(f"s_lshl_b32 s{sT3}, s{sT2}, 2")
                A(f"s_lshr_b32 s{sT3}, {ROTTAB}, s{sT3}")
                A(f"s_and_b32 s{sT3}, s{sT3}, 15")
                A(f"s_add_u32 s{sT1}, s{sT1}, s{sT3}")
                A(f"s_cmp_ge_u32 s{sT1}, 9")
                A(f"s_cselect_b32 s{sT3}, 9, 0")
                A(f"s_sub_u32 s{sT1}, s{sT1}, s{sT3}")
                A(f"s_mul_i32 s{sT2}, s{sT2}, {64*1152}")
                A(f"s_lshl_b32 s{sT1}, s{sT1}, 7")
                A(f"s_add_u32 s{sT1}, s{sT1}, s{sT2}")
                A(f"buffer_load_dword v255, v9, s[{SRD1}:{SRD1+3}], s{sT1} offen")
            A.label(f"L_ht{k}")
        w2base = (NWT - tot % NWT) % NWT
    elif cfg.touch:
        srd(SRD0, sW1, 5308416)
        srd(SRD1, sX, 589824)
        phases, base = [], 0
        for pi, ls in enumerate(passes):
            t0 = cfg.ht0 if pi == 0 else 0
            c = 3 * len(ls) + (8 if pi == 0 else 0)
            phases.append((base, (9 - t0 - cfg.tn) * c, t0, c, ls))
            base += (9 - t0 - cfg.tn) * c
        w2base = (NWT - base % NWT) % NWT if cfg.w2rot else 0
        for rnd in range((base + NWT - 1) // NWT):
            if rnd == 1:
                A.tail("hl")
            k = A.uid()
            A(f"s_add_u32 s{sT0}, s{sG}, {NWT*rnd}")
            for (pb, cnt, t0, c, ls) in phases:
                if pb + cnt <= NWT * rnd or pb >= NWT * rnd + NWT:
                    continue
                k2 = A.uid()
                A(f"s_cmp_ge_u32 s{sT0}, {pb+cnt}")
                A(f"s_cbranch_scc1 L_hp{k2}")
                if pb:
                    A(f"s_sub_u32 s{sT0}, s{sT0}, {pb}")
                sdiv(sT1, sT0, c)
                A(f"s_mul_i32 s{sT2}, s{sT1}, {c}")
                A(f"s_sub_u32 s{sT2}, s{sT0}, s{sT2}")
                if t0:
                    A(f"s_add_u32 s{sT1}, s{sT1}, {t0}")
                if cfg.tn:
                    A(f"s_cmp_ge_u32 s{sT1}, {cfg.ta}")
                    A(f"s_cselect_b32 s{sT3}, {cfg.tn}, 0")
                    A(f"s_add_u32 s{sT1}, s{sT1}, s{sT3}")
                nw = 3 * len(ls)
                if c > nw:
                    A(f"s_cmp_ge_u32 s{sT2}, {nw}")
                    A(f"s_cbranch_scc1 L_hx{k2}")
                if len(ls) != 3:
                    if len(ls) == 1:
                        A(f"s_mul_i32 s{sT2}, s{sT2}, 3")
                    else:
                        A(f"s_lshr_b32 s{sT3}, s{sT2}, 1")
                        A(f"s_add_u32 s{sT2}, s{sT2}, s{sT3}")
                    if ls[0]:
                        A(f"s_add_u32 s{sT2}, s{sT2}, {ls[0]}")
                A(f"s_mul_i32 s{sT1}, s{sT1}, {64*9216}")
                A(f"s_lshl_b32 s{sT2}, s{sT2}, 7")
                A(f"s_add_u32 s{sT1}, s{sT1}, s{sT2}")
                A(f"s_add_u32 s{sT1}, s{sT1}, s39")
                A(f"buffer_load_dword v255, v8, s[{SRD0}:{SRD0+3}], s{sT1} offen {cfg.tfl}")
                A(f"s_branch L_ht{k}")
                if c > nw:
                    A.label(f"L_hx{k2}")
                    A(f"s_sub_u32 s{sT2}, s{sT2}, {nw}")
                    A(f"s_mul_i32 s{sT2}, s{sT2}, {64*1152}")
                    A(f"s_lshl_b32 s{sT1}, s{sT1}, 7")
                    A(f"s_add_u32 s{sT1}, s{sT1}, s{sT2}")
                    A(f"buffer_load_dword v255, v9, s[{SRD1}:{SRD1+3}], s{sT1} offen")
                    A(f"s_branch L_ht{k}")
                A.label(f"L_hp{k2}")
            A.label(f"L_ht{k}")
    def h_pretouch():
        srd(SRD1, sWS, 0x10000000)
        A("v_lshlrev_b32 v10, 7, v1")
        A(f"s_mul_i32 s{sT1}, s{sJ}, 589824")
        for rnd in range(2):
            k = A.uid()
            A(f"s_add_u32 s{sT0}, s{sG}, {NWT*rnd}")
            A(f"s_cmp_ge_u32 s{sT0}, 72")
            A(f"s_cbranch_scc1 L_ht{k}")
            A(f"s_lshl_b32 s{sT0}, s{sT0}, 13")
            A(f"s_add_u32 s{sT0}, s{sT0}, s{sT1}")
            A(f"buffer_load_dword v255, v10, s[{SRD1}:{SRD1+3}], s{sT0} offen")
            A.label(f"L_ht{k}")
    if cfg.hpre == 1:
        h_pretouch()
    if cfg.touch:
        srd(SRD0, sW2, 5308416)
        A(f"s_mul_i32 s39, s{sJ}, 663552")
        korder = sorted(kbidx, key=lambda x: kbidx[x])
        tabD = sum(d << (2 * u) for u, (d, lk) in enumerate(korder))
        tabL = sum(lk << (2 * u) for u, (d, lk) in enumerate(korder))
        if w2base:
            A(f"s_add_u32 s{sG}, s{sG}, {w2base}")
            A(f"s_and_b32 s{sG}, s{sG}, 63")
        for rnd in range(2):
            k = A.uid()
            A(f"s_add_u32 s{sT0}, s{sG}, {NWT*rnd}")
            A(f"s_cmp_ge_u32 s{sT0}, 81")
            A(f"s_cbranch_scc1 L_ht{k}")
            sdiv(sT1, sT0, 9)
            A(f"s_mul_i32 s{sT2}, s{sT1}, 9")
            A(f"s_sub_u32 s{sT2}, s{sT0}, s{sT2}")
            sdiv(sT3, sT2, 3)
            A(f"s_lshl_b32 s{sT1}, s{sT1}, 1")
            A(f"s_lshr_b32 s{sT0}, {tabD}, s{sT1}")
            A(f"s_and_b32 s{sT0}, s{sT0}, 3")
            A(f"s_add_u32 s{sT0}, s{sT0}, s{sT3}")
            A(f"s_cmp_ge_u32 s{sT0}, 3")
            A(f"s_cselect_b32 s{sT3}, 3, 0")
            A(f"s_sub_u32 s{sT0}, s{sT0}, s{sT3}")
            A(f"s_lshr_b32 s{sT3}, {tabL}, s{sT1}")
            A(f"s_and_b32 s{sT3}, s{sT3}, 3")
            A(f"s_mul_i32 s{sT0}, s{sT0}, {192*1152}")
            A(f"s_mul_i32 s{sT3}, s{sT3}, {64*1152}")
            A(f"s_add_u32 s{sT0}, s{sT0}, s{sT3}")
            A(f"s_lshl_b32 s{sT2}, s{sT2}, 7")
            A(f"s_add_u32 s{sT0}, s{sT0}, s{sT2}")
            A(f"s_add_u32 s{sT0}, s{sT0}, s39")
            A(f"buffer_load_dword v255, v9, s[{SRD0}:{SRD0+3}], s{sT0} offen {cfg.tfl}")
            A.label(f"L_ht{k}")
    if cfg.hpre == 2:
        h_pretouch()
    if TS:
        tsn[0] = 1
        A("s_waitcnt vmcnt(0)")
        stamp()
        stamp()
        stamp_flush()
    A("s_branch L_end")
    A.tail("end")
    A.label("L_end")

    hdr = f"""; Fused MLP (x@w1+b1 -> relu^2 -> @w2+b2), generated by a python script (work/gen4.py)
; @launch grid=(256,1,1) block=(512,1,1) lds=163840
.amdgcn_target "amdgcn-amd-amdhsa--gfx950"
.text
.globl {KN}
.p2align 8
.type {KN},@function
{KN}:
"""
    ftr = f"""
    s_endpgm
.section .rodata,"a"
.p2align 6
.amdhsa_kernel {KN}
  .amdhsa_next_free_vgpr 256
  .amdhsa_next_free_sgpr 102
  .amdhsa_accum_offset 256
  .amdhsa_group_segment_fixed_size 0
  .amdhsa_kernarg_size 64
  .amdhsa_user_sgpr_count 2
  .amdhsa_user_sgpr_kernarg_segment_ptr 1
  .amdhsa_system_sgpr_workgroup_id_x 1
.end_amdhsa_kernel
"""
    return hdr + A.text(cfg.horder.split(","), cfg.torder.split(",") + ["end"]) + ftr


def parse_g2(s):
    out = []
    for stg in s.split(","):
        us = []
        for u in stg.split("+"):
            a, b = u.split(":")
            us.append((int(a[0]), int(a[1]), [int(c) for c in b]))
        out.append(us)
    return out


def ilist(s):
    return [int(x) for x in s.split(",")] if s else []


def main():
    ap = argparse.ArgumentParser()
    ap.add_argument("-o", default="k8.s")
    ap.add_argument("--ts", action="store_true")
    ap.add_argument("--passes", default="012")
    ap.add_argument("--depth", type=int, default=5)
    ap.add_argument("--fill", type=int, default=4)
    ap.add_argument("--grp1", type=int, default=3)
    ap.add_argument("--hres", type=float, default=2.5)
    ap.add_argument("--hearly", type=float, default=1.5)
    ap.add_argument("--hdel", type=int, default=1)
    ap.add_argument("--xfree", type=int, default=11)
    ap.add_argument("--g2", default="00:012,01:012,02:012,10:012,20:012,11:012,21:012,12:012,22:012")
    ap.add_argument("--tsq", default="")
    ap.add_argument("--verbose", action="store_true")
    ap.add_argument("--ahead", type=int, default=8)
    ap.add_argument("--ahead0", type=int, default=8)
    ap.add_argument("--capfrom", type=int, default=8)
    ap.add_argument("--capw", type=int, default=4)
    ap.add_argument("--capx", type=int, default=3)
    ap.add_argument("--burst", default="")
    ap.add_argument("--pause", default="")
    ap.add_argument("--go2lead", type=int, default=3)
    ap.add_argument("--sa", type=int, default=0)
    ap.add_argument("--ctouch", type=int, default=1)
    ap.add_argument("--wfl", default="")
    ap.add_argument("--tfl", default="")
    ap.add_argument("--rfl", default="sc1")
    ap.add_argument("--rsleep", type=int, default=0)
    ap.add_argument("--touch", type=int, default=1)
    ap.add_argument("--clrq", type=int, default=-1)
    ap.add_argument("--cdq", type=int, default=9)
    ap.add_argument("--rbar", type=int, default=0)
    ap.add_argument("--hsf", default="sc1")
    ap.add_argument("--hlf", default="sc1")
    ap.add_argument("--ofl", default="")
    ap.add_argument("--hpre", type=int, default=0)
    ap.add_argument("--rot", default="00000000")
    ap.add_argument("--ts0", type=int, default=0)
    ap.add_argument("--hfree", type=int, default=2)
    ap.add_argument("--stouch", type=int, default=0)
    ap.add_argument("--stdel", type=int, default=1)
    ap.add_argument("--stf", default="")
    ap.add_argument("--ta", type=int, default=0)
    ap.add_argument("--tn", type=int, default=0)
    ap.add_argument("--tpos", type=int, default=0)
    ap.add_argument("--w2rot", type=int, default=1)
    ap.add_argument("--rfast", type=int, default=1)
    ap.add_argument("--wt", type=int, default=0)
    ap.add_argument("--horder", default="w,x,h2,hl,c")
    ap.add_argument("--ht0", type=int, default=1)
    ap.add_argument("--first", type=int, default=4)
    ap.add_argument("--torder", default="hl,w,x,h2,c,red")
    ap.add_argument("--skipw", type=int, default=1)
    ap.add_argument("--skipx", type=int, default=1)
    cfg = ap.parse_args()
    cfg.passes = [[int(c) for c in p] for p in cfg.passes.split(",")]
    cfg.g2 = parse_g2(cfg.g2)
    cfg.tsq, cfg.burst, cfg.pause = ilist(cfg.tsq), ilist(cfg.burst), ilist(cfg.pause)
    open(cfg.o, "w").write(build(cfg))


main()
```

```python
import sys, argparse

KN = "standalone__dense_activation_squared_relu__sampling_kernel"

WS_H = 0x0
WS_IN = 0x1000000
WS_CD = 0x1840000
WS_EP = 0x1850000
WS_TS = 0x8000000
SPIN_MAX = 100000
SGNMASK = 0x6A9956A5


class Asm:
    def __init__(self):
        self.L = []
        self.n = 0

    def __call__(self, s):
        self.L.append("    " + s)

    def label(self, s):
        self.L.append(s + ":")

    def c(self, s):
        self.L.append("    ; " + s)

    def uid(self):
        self.n += 1
        return self.n

    def head(self, role):
        self.L.append(f"@@HEAD {role}")

    def tail(self, role):
        self.L.append(f"@@TAIL {role}")

    def text(self, horder, torder):
        pro, heads, tails, cur = [], {}, {}, None
        cur = pro
        for ln in self.L:
            if ln.startswith("@@HEAD"):
                cur = heads.setdefault(ln.split()[1], [])
            elif ln.startswith("@@TAIL"):
                r = ln.split()[1]
                if r in heads:
                    heads[r].append(f"    s_branch L_tail_{r}")
                cur = tails.setdefault(r, [f"L_tail_{r}:"])
            else:
                cur.append(ln)
        assert sorted(heads) == sorted(horder) and sorted(tails) == sorted(torder), (heads.keys(), tails.keys())
        out = pro
        for r in horder:
            out += heads[r]
        out.append("L_heads_end:")
        for r in torder:
            out += tails[r]
        return "\n".join(out)


def build(cfg):
    A = Asm()
    TS = cfg.ts
    passes = cfg.passes
    D = cfg.depth

    stages, blocks, order = [], {}, []

    def blk(name, **kw):
        blocks[name] = dict(name=name, **kw)
        return name

    def add_stage(units, breads):
        q = len(stages)
        stages.append(dict(units=units, breads=breads, q=q))
        for (bb, _kb) in breads:
            b = blocks[bb]
            b["need"] = b["last"] = q
            if b["kind"] != "Hown":
                order.append(bb)
        for (_t, wb, _kb, _first) in units:
            b = blocks[wb]
            if "need" not in b:
                b["need"] = q
                order.append(wb)
            b["last"] = q
        return q

    epi_after, pass_of_line = {}, {}
    for pi, lines in enumerate(passes):
        grp = 1 if (len(lines) > 1 or pi == 0) else cfg.grp1
        for t0 in range(0, 9, grp):
            units, breads = [], []
            for t in range(t0, t0 + grp):
                if pi == 0:
                    breads.append((blk(f"X{t}", kind="X", t=t), t))
                for l in lines:
                    units.append((l, blk(f"W{t}_{l}", kind="W1", t=t, l=l), t, False))
            q = add_stage(units, breads)
        epi_after[q] = (pi, list(lines))
        for l in lines:
            pass_of_line[l] = pi
    n_g1 = len(stages)
    kbidx = {}
    first = {0: True, 1: True, 2: True}
    cnt2 = {0: 0, 1: 0, 2: 0}
    epi2_after = {}
    for stg in cfg.g2:
        units, breads = [], []
        for (d, lk, lines) in stg:
            if (d, lk) not in kbidx:
                kbidx[(d, lk)] = len(kbidx)
                breads.append((blk(f"H{d}_{lk}", kind="Hown" if d == 0 else f"H{d}", d=d, lk=lk), kbidx[(d, lk)]))
            for l in lines:
                units.append((l, blk(f"V{d}_{lk}_{l}", kind="W2", d=d, lk=lk, l=l), kbidx[(d, lk)], first[l]))
                first[l] = False
                cnt2[l] += 1
        q = add_stage(units, breads)
        done = [l for l in range(3) if cnt2[l] == 9 and not any(l in v for v in epi2_after.values())]
        if done:
            epi2_after[q] = done
    assert all(v == 9 for v in cnt2.values())
    NQ = len(stages)
    hown_w = {l: q for q, (pi, lines) in epi_after.items() for l in lines}
    hown_vis = {l: (q + 1 if q == n_g1 - 1 else q + 2) for l, q in hown_w.items()}
    for l in hown_w:
        assert blocks[f"H0_{l}"]["need"] >= hown_vis[l]
    hfetch = {l: hown_vis[l] + cfg.hdel for l in hown_w}

    free_at = {s: -10 for s in range(20)}
    events = [(blocks[nm]["need"] - (cfg.hearly if blocks[nm]["kind"] in ("H1", "H2") else 0), 1, k, nm) for k, nm in enumerate(order)]
    for l, qw in hown_w.items():
        events.append((qw - cfg.hres, 0, l, f"H0_{l}"))
    events.sort()
    for ev in events:
        b = blocks[ev[3]]
        if b["kind"] == "X":
            cand = [16, 17, 18, 19]
        elif ev[0] < cfg.xfree:
            cand = list(range(0, 16))
        else:
            cand = list(range(0, 20))
        s = min(cand, key=lambda s: (free_at[s], s))
        b["slot"] = s
        b["free"] = free_at[s]
        if b["kind"] == "Hown":
            assert b["free"] + cfg.hfree <= hown_w[b["lk"]], b
        else:
            assert b["free"] + 2 < b["need"], b
        free_at[s] = b["last"]
    if cfg.verbose:
        print(" | ".join(f"{blocks[e[3]]['name']}:s{blocks[e[3]]['slot']} f{blocks[e[3]]['free']} n{blocks[e[3]]['need']}" for e in events), file=sys.stderr)
    for k, nm in enumerate(order):
        blocks[nm]["pos"] = k
    cum = [sum(1 for nm in order if blocks[nm]["need"] <= q) for q in range(NQ)]

    sX, sW1, sB1, sW2, sB2, sOUT, sDBG, sWS = 16, 18, 20, 22, 24, 26, 28, 30
    sJ, sR, sMT, sI, sWV, sWK = 32, 33, 34, 35, 36, 37
    SRD0, SRD1, SRD2 = 40, 44, 48
    sT0, sT1, sT2, sT3, sT4, sT5 = 52, 53, 54, 55, 56, 57
    sCNT = 58
    sTAG, sPB = 6, 8
    sTS = 64
    tsn = [0]

    def stamp():
        if TS:
            k = tsn[0]
            assert k < 16
            A(f"s_memtime s[{sTS+2*k}:{sTS+2*k+1}]")
            tsn[0] += 1

    def srd(d, p, nbytes):
        A(f"s_mov_b32 s{d}, s{p}")
        A(f"s_mov_b32 s{d+1}, s{p+1}")
        A(f"s_mov_b32 s{d+2}, {nbytes}")
        A(f"s_mov_b32 s{d+3}, 0x00020000")

    def stamp_flush():
        if not TS:
            return
        n = tsn[0]
        A("s_waitcnt lgkmcnt(0)")
        srd(SRD2, sWS, 0x10000000)
        A(f"s_lshl_b32 s{sT0}, s2, 9")
        A(f"s_lshl_b32 s{sT1}, s{sWV}, 6")
        A(f"s_add_u32 s{sT0}, s{sT0}, s{sT1}")
        A(f"s_add_u32 s{sT0}, s{sT0}, {WS_TS}")
        A(f"v_mov_b32 v2, s{sT0}")
        A("s_mov_b64 exec, 1")
        for k in range(n):
            A(f"v_mov_b32 v3, s{sTS+2*k}")
            A(f"buffer_store_dword v3, v2, s[{SRD2}:{SRD2+3}], 0 offen offset:{4*k}")
        A("s_mov_b64 exec, -1")

    def epoch_load(smt):
        A(f"s_lshl_b32 s{sT0}, s{smt}, 7")
        A(f"s_add_u32 s{sT0}, s{sT0}, {WS_EP}")
        A(f"s_load_dword s{sTAG}, s[{sWS}:{sWS+1}], s{sT0}")

    def epoch_fin():
        A("s_waitcnt lgkmcnt(0)")
        A(f"s_add_u32 s{sTAG}, s{sTAG}, 1")
        A(f"s_mul_i32 s{sTAG+1}, s{sTAG}, 0x02020202")
        A(f"s_and_b32 s{sTAG+1}, s{sTAG+1}, 0xeeeeeeee")
        A(f"s_or_b32 s{sTAG+1}, s{sTAG+1}, 0x10101010")

    def tag_regs(vd, vt):
        A(f"v_and_b32 v{vt}, 3, v1")
        A(f"v_lshlrev_b32 v{vt}, 3, v{vt}")
        A(f"v_lshrrev_b32 v{vt}, v{vt}, s{sTAG+1}")
        for k in range(4):
            A(f"v_bfe_u32 v{vd+k}, v{vt}, {2*k}, 2")
            A(f"v_mul_u32_u24 v{vd+k}, 0x8001, v{vd+k}")
            A(f"v_and_b32 v{vd+k}, 0x10001, v{vd+k}")
            A(f"v_lshl_or_b32 v{vd+k}, v{vd+k}, 15, v{vd+k}")

    def sign_reg(vd, vt):
        A(f"s_bitcmp1_b32 s{sTAG}, 0")
        A(f"s_cselect_b32 s{sT0}, -1, 0")
        A(f"s_xor_b32 s{sT0}, s{sT0}, {SGNMASK}")
        A(f"v_and_b32 v{vt}, 31, v1")
        A(f"v_lshrrev_b32 v{vt}, v{vt}, s{sT0}")
        A(f"v_bfe_i32 v{vt}, v{vt}, 0, 1")
        A(f"v_and_b32 v{vd}, 0x80008000, v{vt}")

    def sspin(loads, npairs, base):
        k = A.uid()
        A(f"s_mov_b32 s{sCNT}, 0")
        A.label(f"L_s{k}")
        for x in loads:
            A(x)
        A(f"s_add_u32 s{sCNT}, s{sCNT}, 1")
        A("s_waitcnt lgkmcnt(0)")
        A(f"s_cmp_gt_u32 s{sCNT}, {SPIN_MAX}")
        A(f"s_cbranch_scc1 L_sd{k}")
        for n in range(npairs):
            A(f"s_cmp_lg_u64 s[{base+2*n}:{base+2*n+1}], s[{sTAG}:{sTAG+1}]")
            A(f"s_cbranch_scc1 L_s{k}")
        A.label(f"L_sd{k}")

    def mod3add(dst, d, tmp):
        A(f"s_add_u32 s{dst}, s{sI}, {d}")
        A(f"s_cmp_ge_u32 s{dst}, 3")
        A(f"s_cselect_b32 s{tmp}, 3, 0")
        A(f"s_sub_u32 s{dst}, s{dst}, s{tmp}")

    A("s_cmp_ge_u32 s2, 256")
    A("s_cbranch_scc1 L_end")
    A("s_load_dwordx16 s[16:31], s[0:1], 0")
    if cfg.ctouch == 1:
        A("s_getpc_b64 s[4:5]")
        A.label("L_pc")
        A("v_lshlrev_b32 v2, 7, v0")
        A("v_min_u32 v2, L_end-L_pc, v2")
        A("v_and_b32 v2, 0xfffffffc, v2")
        A("global_load_dword v255, v2, s[4:5]")
    elif cfg.ctouch == 2:
        A("s_getpc_b64 s[4:5]")
        A.label("L_pc")
        A("s_lshr_b32 s3, s2, 3")
        A("s_lshl_b32 s3, s3, 11")
        A("v_lshrrev_b32 v2, 5, v0")
        A("v_lshl_add_u32 v2, v2, 7, s3")
        A("v_min_u32 v2, L_end-L_pc, v2")
        A("v_and_b32 v2, 0xfffffffc, v2")
        A("global_load_dword v255, v2, s[4:5]")
    if TS:
        A("s_memrealtime s[96:97]")
    if cfg.enc:
        A("s_memrealtime s[96:97]")
        if cfg.enc == "none":
            A("s_memrealtime s[94:95]")

    def enc(p):
        if cfg.enc == p:
            A("s_memrealtime s[94:95]")
    stamp()
    A("v_and_b32 v1, 63, v0")
    A("v_lshrrev_b32 v2, 6, v0")
    A(f"s_and_b32 s{sJ}, s2, 7")
    A(f"v_readfirstlane_b32 s{sWV}, v2")
    A(f"s_lshr_b32 s{sR}, s2, 3")
    A(f"s_cmp_lt_u32 s{sR}, 8")
    A("s_cbranch_scc1 L_helper")
    A(f"s_sub_u32 s{sR}, s{sR}, 8")
    A(f"s_mul_i32 s{sMT}, s{sR}, 21846")
    A(f"s_lshr_b32 s{sMT}, s{sMT}, 16")
    A(f"s_mul_i32 s{sT0}, s{sMT}, 3")
    A(f"s_sub_u32 s{sI}, s{sR}, s{sT0}")
    A(f"s_mul_i32 s{sWK}, s{sJ}, 24")
    A(f"s_add_u32 s{sWK}, s{sWK}, s{sR}")
    ROT = [int(c) for c in cfg.rot]
    ROTTAB = sum(r << (4 * m) for m, r in enumerate(ROT))
    sROT, sLO, sHI = 10, 11, 12
    if any(ROT):
        A(f"s_lshl_b32 s{sROT}, s{sMT}, 2")
        A(f"s_lshr_b32 s{sROT}, {ROTTAB}, s{sROT}")
        A(f"s_and_b32 s{sROT}, s{sROT}, 15")

    def rot_setup(sbase, stride):
        if any(ROT):
            A(f"s_mul_i32 s{sLO}, s{sROT}, {stride}")
            A(f"s_add_u32 s{sLO}, s{sLO}, s{sbase}")
            A(f"s_sub_u32 s{sHI}, s{sLO}, {9*stride}")

    def rot_addr(dst, sbase, t, stride, extra):
        if any(ROT):
            if t + max(ROT) < 9:
                A(f"s_add_u32 s{dst}, s{sLO}, {t*stride + extra}")
            else:
                A(f"s_cmp_lt_u32 s{sROT}, {9-t}")
                A(f"s_cselect_b32 s{dst}, s{sLO}, s{sHI}")
                A(f"s_add_u32 s{dst}, s{dst}, {t*stride + extra}")
        else:
            A(f"s_add_u32 s{dst}, s{sbase}, {t*stride + extra}")
    A(f"s_cmp_lt_u32 s{sWV}, 4")
    A("s_cbranch_scc1 L_compute")
    A(f"s_cmp_eq_u32 s{sWV}, 6")
    A("s_cbranch_scc1 L_xh")
    A(f"s_cmp_eq_u32 s{sWV}, 7")
    A("s_cbranch_scc1 L_h2")
    ts_base = tsn[0]

    def loader_stream(kinds, per_block, issue_fn, setup_fn, cap, group=False, validate=None, before_bar=None, role=None):
        mine = [blocks[nm] for nm in order if blocks[nm]["kind"] in kinds]
        outstanding, pend = [], list(mine)
        nb = lambda nm: per_block(blocks[nm]) if callable(per_block) else per_block
        cnt = lambda lst: sum(nb(x) for x in lst)

        def ok(b, q):
            if b["free"] + 2 > q:
                return False
            if b["kind"] in ("H1", "H2") and q < min(hfetch[b["lk"]], b["need"] - 1):
                return False
            return True

        def issue_upto(q, ahead, cap):
            n = 0
            lim = cum[q] + ahead if q >= 0 else ahead
            while pend and ok(pend[0], q):
                must = pend[0]["need"] <= q + 1 or pend[0]["pos"] < lim
                if not must and n >= cap:
                    break
                grp = [pend.pop(0)]
                while group and pend and ok(pend[0], q) and pend[0]["need"] == grp[0]["need"] and len(grp) < 3 \
                        and (pend[0]["pos"] < lim or n + len(grp) < cap or pend[0]["need"] <= q + 1):
                    grp.append(pend.pop(0))
                need_n = sum(nb(x["name"]) for x in grp)
                if cnt(outstanding) + need_n > 63:
                    while cnt(outstanding) + need_n > 63:
                        del outstanding[0]
                    A(f"s_waitcnt vmcnt({cnt(outstanding)})")
                issue_fn(grp if group else grp[0])
                if cfg.verbose:
                    print(f"   after B{q}: " + " ".join(x["name"] for x in grp), file=sys.stderr)
                outstanding.extend(x["name"] for x in grp)
                n += len(grp)

        issue_upto(-1, cfg.first, 0)
        if cfg.ts0:
            stamp()
        if role == "w":
            enc("iss")
        A.tail(role)
        setup_fn()
        issue_upto(-1, cfg.ahead0, 0)
        for q in range(NQ):
            assert not any(b["need"] <= q for b in pend), (q, pend[0])
            for b in mine:
                if b["need"] == q:
                    if b["name"] in outstanding:
                        idx = max(i for i, nm in enumerate(outstanding) if blocks[nm]["need"] <= q) if validate is None \
                            else outstanding.index(b["name"])
                        del outstanding[:idx + 1]
                        A(f"s_waitcnt vmcnt({cnt(outstanding)})")
                    if validate is not None and b["kind"] != "X":
                        validate(b)
            if before_bar is not None:
                before_bar(q)
            if q in cfg.tsq:
                stamp()
            A("s_barrier")
            if role == "w":
                enc(f"B{q}")
            if q in cfg.pause:
                issue_upto(q, 0, 0)
            else:
                issue_upto(q, cfg.ahead, 99 if q in cfg.burst else (cap if q >= cfg.capfrom else 0))
        assert not pend

    A.head("w")
    sHW = sT5
    A(f"s_sub_u32 s{sHW}, s{sWV}, 4")
    A("v_lshrrev_b32 v2, 3, v1")
    A("v_and_b32 v3, 7, v1")
    A("v_bfe_u32 v4, v1, 4, 1")
    A("v_lshlrev_b32 v4, 2, v4")
    A("v_xor_b32 v3, v3, v4")
    A("v_lshlrev_b32 v3, 4, v3")
    A("v_lshrrev_b32 v4, 2, v2")
    A("v_and_b32 v5, 3, v2")
    A("v_lshl_add_u32 v4, v4, 3, v5")
    A(f"s_lshl_b32 s{sT0}, s{sHW}, 5")
    A(f"v_add_u32 v4, s{sT0}, v4")
    A("v_mul_u32_u24 v4, 9216, v4")
    A("v_add_u32 v4, v4, v3")
    for c in range(1, 4):
        A(f"v_add_u32 v{4+c}, {(16*(c>>1)+4*(c&1))*9216 - 1024*c}, v4")
    sLW, sC1 = sT4, 38
    A(f"s_lshl_b32 s{sLW}, s{sHW}, 12")
    A(f"s_mul_i32 s{sC1}, s{sJ}, 1152")
    A(f"s_mul_i32 s{sT1}, s{sI}, 384")
    A(f"s_add_u32 s{sC1}, s{sC1}, s{sT1}")
    rot_setup(sC1, 64*9216)
    if cfg.wt:
        A("v_and_b32 v12, 7, v1")
        A("v_lshrrev_b32 v13, 5, v1")
        A("v_lshl_add_u32 v12, v13, 6, v12")
        A("v_mul_u32_u24 v12, 9216, v12")
        A("v_bfe_u32 v13, v1, 3, 2")
        A("v_lshl_add_u32 v12, v13, 7, v12")
        A(f"s_lshl_b32 s{sT0}, s{sHW}, 4")
        A(f"s_add_u32 s{sT0}, s{sT0}, s{sMT}")
        A(f"s_mul_i32 s{sT0}, s{sT0}, {8*9216}")
        A(f"s_add_u32 s{sT0}, s{sT0}, s{sC1}")
        msk = [sum(0xffffff << (32 * h) for h in range(2) if 2 * w + h < cfg.wt) for w in range(2)]
        A(f"s_mov_b32 exec_lo, {msk[0] & 0xffffffff}")
        A(f"s_mov_b32 exec_hi, {msk[0] >> 32}")
        if msk[1] != msk[0]:
            A(f"s_cmp_eq_u32 s{sHW}, 0")
            A(f"s_cselect_b32 exec_lo, exec_lo, {(msk[1] & 0xffffffff) or 1}")
            A(f"s_cselect_b32 exec_hi, exec_hi, {msk[1] >> 32}")
    A("s_waitcnt lgkmcnt(0)")
    if cfg.ts0:
        stamp()
    srd(SRD0, sW1, 5308416)
    if cfg.wt:
        A(f"buffer_load_dword v255, v12, s[{SRD0}:{SRD0+3}], s{sT0} offen")
        A("s_mov_b64 exec, -1")
    sV = [62, 63, 59]

    def w2_setup():
        epoch_load(sMT)
        A(f"s_lshl_b32 s{sT0}, s{sHW}, 5")
        A(f"v_add_u32 v8, s{sT0}, v2")
        A("v_mul_u32_u24 v8, 1152, v8")
        A("v_add_u32 v8, v8, v3")
        for c in range(1, 4):
            A(f"v_add_u32 v{8+c}, {8*c*1152 - 1024*c}, v8")
        A(f"s_mul_i32 s39, s{sJ}, {576*1152}")
        A(f"s_mul_i32 s{sT0}, s{sI}, 384")
        A(f"s_add_u32 s39, s39, s{sT0}")
        for d in range(3):
            mod3add(sT1, d, sT2)
            A(f"s_mul_i32 s{sT1}, s{sT1}, {192*1152}")
            A(f"s_add_u32 s{sV[d]}, s39, s{sT1}")
        srd(SRD1, sW2, 5308416)

    def issue_w(grp):
        for b in grp:
            A(f"s_add_u32 m0, s{sLW}, {b['slot']*8192}")
            if b["kind"] == "W1":
                rot_addr(sT0, sC1, b['t'], 64*9216, 128*b['l'])
                vb, sr = 4, SRD0
            else:
                A(f"s_add_u32 s{sT0}, s{sV[b['d']]}, {64*b['lk']*1152 + 128*b['l']}")
                vb, sr = 8, SRD1
            for c in range(4):
                A(f"buffer_load_dwordx4 v{vb+c}, s[{sr}:{sr+3}], s{sT0} offen offset:{1024*c} {cfg.wfl} lds")

    loader_stream(("W1", "W2"), 4, issue_w, w2_setup, cfg.capw, group=True,
                  before_bar=lambda q: epoch_fin() if q == 2 else None, role="w")
    A("s_branch L_reduce")
    ts_max = tsn[0]

    sXB = 38
    sH = {1: 39, 2: 59}
    HALF = [0]

    def h_setup(half):
        A("v_lshlrev_b32 v12, 4, v1")
        A("v_add_u32 v13, 0x10000, v12")
        A("v_add_u32 v14, 0x20000, v12")
        A(f"s_sub_u32 s{sT0}, s{sWK}, s{sI}")
        for d in (1, 2):
            mod3add(sT1, d, sT2)
            A(f"s_add_u32 s{sT1}, s{sT1}, s{sT0}")
            A(f"s_mul_i32 s{sH[d]}, s{sT1}, 24576")
        srd(SRD1, sWS, 0x10000000)
        epoch_load(sMT)

    def issue_xh(b):
        for h in (range(2) if b["kind"] == "X" else HALF):
            A(f"s_mov_b32 m0, {b['slot']*8192 + 4096*h}")
            if b["kind"] == "X":
                rot_addr(sT0, sXB, b['t'], 128, 32*1152*h)
                for c in range(4):
                    A(f"buffer_load_dwordx4 v{8+c}, s[{SRD0}:{SRD0+3}], s{sT0} offen offset:{1024*c} lds")
            else:
                A(f"s_add_u32 s{sT0}, s{sH[b['d']]}, {WS_H + 8192*b['lk'] + 4096*h}")
                for c in range(4):
                    A(f"buffer_load_dwordx4 v12, s[{SRD1}:{SRD1+3}], s{sT0} offen offset:{1024*c} {cfg.hlf} lds")

    retry_code = []

    def validate(b):
        k = A.uid()
        addr = b["slot"] * 8192 + 4096 * HALF[0]
        va = 12 + (addr >> 16)
        A.label(f"L_v{k}")
        for c in range(4):
            A(f"ds_read_b128 v[{32+4*c}:{35+4*c}], v{va} offset:{(addr & 0xffff) + 1024*c}")
        for c in range(4):
            r = 32 + 4 * c
            A(f"s_waitcnt lgkmcnt({3-c})")
            for kk in range(4):
                if c == 0 and kk < 2:
                    A(f"v_xor_b32 v{16+kk}, v{r+kk}, v{20+kk}")
                else:
                    A(f"v_bitop3_b32 v{16+(kk&1)}, v{16+(kk&1)}, v{r+kk}, v{20+kk} bitop3:0xf6")
        A("v_bitop3_b32 v16, v16, v17, v24 bitop3:0xa8")
        A("v_cmp_ne_u32 vcc, 0, v16")
        A(f"s_cbranch_vccnz L_vr{k}")
        A.label(f"L_vd{k}")
        n0 = len(A.L)
        A.label(f"L_vr{k}")
        A(f"s_cmp_gt_u32 s{sCNT}, {SPIN_MAX}")
        A(f"s_cbranch_scc1 L_vd{k}")
        issue_xh(b)
        A(f"s_add_u32 s{sCNT}, s{sCNT}, 1")
        A("s_waitcnt vmcnt(0)")
        A(f"s_branch L_v{k}")
        retry_code.extend(A.L[n0:])
        del A.L[n0:]

    def flush_retry():
        A.L.extend(retry_code)
        retry_code.clear()

    def bb_tag(q):
        if q == 2:
            epoch_fin()
            tag_regs(20, 16)
            A("v_mov_b32 v24, 0x80008000")
            A(f"s_mov_b32 s{sCNT}, 0")

    A.head("x")
    A.label("L_xh")
    tsn[0] = ts_base
    A("v_lshrrev_b32 v2, 3, v1")
    A("v_and_b32 v3, 7, v1")
    A("v_lshrrev_b32 v4, 4, v1")
    A("v_xor_b32 v3, v3, v4")
    A("v_lshlrev_b32 v3, 4, v3")
    A("v_mul_u32_u24 v4, 1152, v2")
    A("v_add_u32 v8, v4, v3")
    A("v_xor_b32 v5, 64, v8")
    A(f"v_add_u32 v9, {8*1152 - 1024}, v5")
    A(f"v_add_u32 v10, {16*1152 - 2048}, v8")
    A(f"v_add_u32 v11, {24*1152 - 3072}, v5")
    A(f"s_mul_i32 s{sXB}, s{sMT}, {64*1152}")
    rot_setup(sXB, 128)

    def x_touch_pre(st0):
        A(f"s_mul_i32 s{sT0}, s{sI}, 22")
        A("v_and_b32 v12, 31, v1")
        A(f"v_add_u32 v12, s{sT0}, v12")
        A("v_min_u32 v12, 63, v12")
        A("v_mul_u32_u24 v12, 1152, v12")
        A("v_lshrrev_b32 v13, 5, v1")
        A("v_lshl_add_u32 v12, v13, 7, v12")
        A("s_mov_b32 exec_lo, 0x3fffff")
        A(f"s_mov_b32 exec_hi, {0x3fffff if cfg.wt > st0 + 1 else 0}")

    def x_touch(st0):
        A(f"buffer_load_dword v255, v12, s[{SRD0}:{SRD0+3}], s{sXB} offen offset:{128*st0}")
        A("s_mov_b64 exec, -1")
    if cfg.wt:
        x_touch_pre(0)
    A("s_waitcnt lgkmcnt(0)")
    if cfg.ts0:
        stamp()
    srd(SRD0, sX, 589824)
    if cfg.wt:
        x_touch(0)
    nbx = lambda b: 8 if b["kind"] == "X" else 4
    loader_stream(("X", "H1", "H2"), nbx, issue_xh, lambda: h_setup(0), cfg.capx, validate=validate, before_bar=bb_tag, role="x")
    if TS:
        A(f"s_mov_b32 s{sTS+24}, s{sCNT}")
    A("s_branch L_reduce")
    flush_retry()
    ts_max = max(ts_max, tsn[0])

    A.head("h2")
    A.label("L_h2")
    tsn[0] = ts_base
    if cfg.wt > 2:
        A(f"s_mul_i32 s{sXB}, s{sMT}, {64*1152}")
        x_touch_pre(2)
    A("s_waitcnt lgkmcnt(0)")
    if cfg.wt > 2:
        srd(SRD0, sX, 589824)
        x_touch(2)
    srd(SRD1, sWS, 0x10000000)
    if cfg.hpre == 3:
        A("v_lshlrev_b32 v3, 7, v1")
        A(f"s_mul_i32 s{sT1}, s{sWK}, 24576")
        for c in range(3):
            A(f"buffer_load_dword v255, v3, s[{SRD1}:{SRD1+3}], s{sT1} offen")
            A(f"s_add_u32 s{sT1}, s{sT1}, 8192")

    def w7_touch():
        st = list(range(cfg.ta, cfg.ta + cfg.tn))
        srd(SRD0, sX, 589824)
        srd(SRD2, sW1, 5308416)
        A(f"s_mul_i32 s{sXB}, s{sMT}, {64*1152}")
        A(f"s_mul_i32 s{sT0}, s{sI}, 22")
        A("v_and_b32 v2, 31, v1")
        A(f"v_add_u32 v2, s{sT0}, v2")
        A("v_min_u32 v2, 63, v2")
        A("v_mul_u32_u24 v2, 1152, v2")
        A("v_lshrrev_b32 v4, 5, v1")
        A("v_lshl_add_u32 v2, v4, 7, v2")
        A("v_and_b32 v3, 7, v1")
        A("v_lshl_add_u32 v3, v4, 6, v3")
        A("v_mul_u32_u24 v3, 9216, v3")
        A("v_bfe_u32 v4, v1, 3, 2")
        A("v_lshl_add_u32 v3, v4, 7, v3")
        A(f"s_mul_i32 s{sT0}, s{sMT}, {8*9216}")
        A(f"s_mul_i32 s{sT1}, s{sJ}, 1152")
        A(f"s_add_u32 s{sT0}, s{sT0}, s{sT1}")
        A(f"s_mul_i32 s{sT1}, s{sI}, 384")
        A(f"s_add_u32 s{sT0}, s{sT0}, s{sT1}")
        for p in range(0, len(st), 2):
            two = p + 1 < len(st)
            A(f"s_add_u32 s{sT1}, s{sT0}, {st[p]*64*9216}")
            A("s_mov_b32 exec_lo, 0xffffff")
            A(f"s_mov_b32 exec_hi, {0xffffff if two else 0}")
            A(f"buffer_load_dword v255, v3, s[{SRD2}:{SRD2+3}], s{sT1} offen")
            A("s_mov_b32 exec_lo, 0x3fffff")
            A(f"s_mov_b32 exec_hi, {0x3fffff if two else 0}")
            A(f"buffer_load_dword v255, v2, s[{SRD0}:{SRD0+3}], s{sXB} offen offset:{128*st[p]}")
        A("s_mov_b64 exec, -1")
    if cfg.tn and cfg.tpos == 0:
        w7_touch()

    def bb_h2(q):
        if cfg.tn and cfg.tpos == 1 and q == 0:
            A("s_waitcnt lgkmcnt(0)")
            w7_touch()
        if cfg.tn and cfg.tpos >= 2 and q == cfg.tpos - 1:
            w7_touch()
        if cfg.tn and q == 7:
            A("s_waitcnt vmcnt(0)")
        bb_tag(q)
        if q == 2 and (cfg.hpre == 3 or cfg.wt > 2):
            A("s_waitcnt vmcnt(0)")

    HALF[0] = 1
    loader_stream(("H1", "H2"), nbx, issue_xh, lambda: h_setup(1), cfg.capx, validate=validate, before_bar=bb_h2, role="h2")
    stamp_flush()
    A("s_branch L_end")
    flush_retry()

    A.tail("red")
    A.label("L_reduce")
    tsn[0] = ts_max
    srd(SRD1, sWS, 0x10000000)
    sC = sT4
    A(f"s_sub_u32 s{sC}, s{sWV}, 4")
    A("v_lshlrev_b32 v2, 4, v1")
    A(f"s_lshl_b32 s{sT2}, s{sC}, 7")
    A(f"s_mul_i32 s{sT1}, s{sI}, 384")
    A(f"s_add_u32 s{sT2}, s{sT2}, s{sT1}")
    A("v_lshrrev_b32 v3, 5, v1")
    A("v_bfe_u32 v4, v1, 3, 2")
    A("v_lshlrev_b32 v4, 5, v4")
    A("v_lshl_add_u32 v8, v3, 4, v4")
    A("v_lshl_add_u32 v3, v3, 3, v4")
    srd(SRD0, sB2, 1152)
    A(f"buffer_load_dwordx2 v[4:5], v3, s[{SRD0}:{SRD0+3}], s{sT2} offen")
    A(f"buffer_load_dwordx2 v[6:7], v3, s[{SRD0}:{SRD0+3}], s{sT2} offen offset:16")
    A(f"s_lshl_b32 s{sT1}, s{sJ}, 3")
    A(f"s_lshl_b32 s{sT3}, s{sMT}, 6")
    A(f"s_add_u32 s{sT1}, s{sT1}, s{sT3}")
    A(f"s_mul_i32 s{sT1}, s{sT1}, 1152")
    A(f"s_add_u32 s{sT2}, s{sT2}, s{sT1}")
    A("v_and_b32 v9, 7, v1")
    A("v_mul_u32_u24 v9, 1152, v9")
    A("v_add_u32 v8, v8, v9")
    tag_regs(20, 16)
    A(f"s_mul_i32 s{sT0}, s{sWK}, {8*3072}")
    A(f"s_lshl_b32 s{sT1}, s{sC}, 10")
    A(f"s_add_u32 s{sT0}, s{sT0}, s{sT1}")
    A(f"s_add_u32 s{sT0}, s{sT0}, {WS_IN}")
    A("v_mov_b32 v14, 0")
    A("s_waitcnt vmcnt(0)")
    for k in range(4):
        A(f"v_lshlrev_b32 v{24+2*k}, 16, v{4+k}")
        A(f"v_and_b32 v{25+2*k}, 0xffff0000, v{4+k}")
    sP = sT5
    A(f"s_mov_b32 s{sP}, 0xff")
    A(f"s_mov_b32 s{sCNT}, 0")
    srd(SRD0, sOUT, 589824)
    if cfg.rfast:
        for s_ in range(1, 8):
            A(f"s_add_u32 s{79+s_}, s{sT0}, {3072*s_}") if not TS else None
    if cfg.rbar:
        A("s_barrier")
    stamp()
    enc("rbar")
    if cfg.rfast:
        for s_ in range(8):
            so = sT0 if s_ == 0 else 79 + s_
            if TS and s_:
                A(f"s_add_u32 s{sT1}, s{sT0}, {3072*s_}")
                so = sT1
            A(f"buffer_load_dwordx4 v[{32+4*s_}:{35+4*s_}], v2, s[{SRD1}:{SRD1+3}], s{so} offen {cfg.rfl}")
        for s_ in range(8):
            r = 32 + 4 * s_
            A(f"s_waitcnt vmcnt({7-s_})")
            for k in range(4):
                if s_ == 0 and k == 0:
                    A(f"v_xor_b32 v9, v{r}, v20")
                else:
                    A(f"v_bitop3_b32 v9, v9, v{r+k}, v{20+k} bitop3:0xf6")
                A(f"v_lshlrev_b32 v{10+2*(k&1)}, 16, v{r+k}")
                A(f"v_and_b32 v{11+2*(k&1)}, 0xffff0000, v{r+k}")
                A(f"v_pk_add_f32 v[{24+2*k}:{25+2*k}], v[{24+2*k}:{25+2*k}], v[{10+2*(k&1)}:{11+2*(k&1)}]")
        A("v_and_b32 v9, 0x10001, v9")
        A("v_cmp_ne_u32 vcc, 0, v9")
        A("s_cbranch_vccz L_rdone")
        for k in range(4):
            A(f"v_lshlrev_b32 v{24+2*k}, 16, v{4+k}")
            A(f"v_and_b32 v{25+2*k}, 0xffff0000, v{4+k}")
        A("s_branch L_rchk")
    A.label("L_rpoll")
    for s_ in range(8):
        A(f"s_bitcmp0_b32 s{sP}, {s_}")
        A(f"s_cbranch_scc1 L_rl{s_}")
        A(f"s_add_u32 s{sT1}, s{sT0}, {3072*s_}")
        A(f"buffer_load_dwordx4 v[{32+4*s_}:{35+4*s_}], v2, s[{SRD1}:{SRD1+3}], s{sT1} offen {cfg.rfl}")
        A.label(f"L_rl{s_}")
    A("s_waitcnt vmcnt(0)")
    A.label("L_rchk")
    A(f"s_add_u32 s{sCNT}, s{sCNT}, 1")
    for s_ in range(8):
        r = 32 + 4 * s_
        A(f"s_bitcmp0_b32 s{sP}, {s_}")
        A(f"s_cbranch_scc1 L_ra{s_}")
        A(f"v_xor_b32 v9, v{r}, v20")
        for k in range(1, 4):
            A(f"v_bitop3_b32 v9, v9, v{r+k}, v{20+k} bitop3:0xf6")
        A("v_and_b32 v9, 0x10001, v9")
        A("v_cmp_ne_u32 vcc, 0, v9")
        A(f"s_cbranch_vccnz L_ra{s_}")
        A(f"s_bitset0_b32 s{sP}, {s_}")
        for k in range(4):
            A(f"v_lshlrev_b32 v10, 16, v{r+k}")
            A(f"v_and_b32 v11, 0xffff0000, v{r+k}")
            A(f"v_pk_add_f32 v[{24+2*k}:{25+2*k}], v[{24+2*k}:{25+2*k}], v[10:11]")
        A.label(f"L_ra{s_}")
    A(f"s_cmp_gt_u32 s{sCNT}, {SPIN_MAX}")
    A("s_cbranch_scc1 L_rdone")
    A(f"s_cmp_lg_u32 s{sP}, 0")
    A("s_cbranch_scc1 L_rpoll")
    A.label("L_rdone")
    stamp()
    enc("rdone")
    for k in range(4):
        A(f"v_cvt_pk_bf16_f32 v{24+k}, v{24+2*k}, v{25+2*k}")
    A("s_nop 1")
    A("v_permlane32_swap_b32 v24, v26")
    A("v_permlane32_swap_b32 v25, v27")
    A(f"s_or_b32 s{sT0}, s{sJ}, s{sI}")
    A(f"s_or_b32 s{sT0}, s{sT0}, s{sC}")
    A(f"buffer_store_dwordx4 v[24:27], v8, s[{SRD0}:{SRD0+3}], s{sT2} offen {cfg.ofl}")
    A(f"s_cmp_lg_u32 s{sT0}, 0")
    A("s_cbranch_scc1 L_noep")
    A(f"v_mov_b32 v16, s{sTAG}")
    A(f"s_lshl_b32 s{sT0}, s{sMT}, 7")
    A(f"s_add_u32 s{sT0}, s{sT0}, {WS_EP}")
    A("s_mov_b64 exec, 1")
    A(f"buffer_store_dword v16, v14, s[{SRD1}:{SRD1+3}], s{sT0} offen sc1")
    A("s_mov_b64 exec, -1")
    A.label("L_noep")
    if cfg.enc:
        if cfg.enc == "end":
            A("s_waitcnt vmcnt(0)")
            enc("end")
        A(f"s_cmp_lg_u32 s{sWV}, {cfg.encw}")
        A("s_cbranch_scc1 L_end")
        A("s_waitcnt lgkmcnt(0)")
        A("s_sub_u32 s94, s94, s96")
        A("s_mul_i32 s94, s94, 2")
        A("s_add_u32 s94, s94, 3000")
        A.label("L_dly")
        A("s_memrealtime s[98:99]")
        A("s_waitcnt lgkmcnt(0)")
        A("s_sub_u32 s98, s98, s96")
        A("s_cmp_lt_u32 s98, s94")
        A("s_cbranch_scc1 L_dly")
    if TS:
        A("s_waitcnt vmcnt(0)")
        stamp()
        A("s_memrealtime s[98:99]")
        A("s_waitcnt lgkmcnt(0)")
        A(f"s_mov_b32 s{sTS+26}, s96"); A(f"s_mov_b32 s{sTS+28}, s98"); A(f"s_mov_b32 s{sTS+30}, s{sCNT}")
        assert tsn[0] <= 12
        tsn[0] = 16
        stamp_flush()
    A("s_branch L_end")

    A.head("c")
    A.label("L_compute")
    tsn[0] = ts_base
    vACC, vAB, vXB, vT = 16, 64, 96, 240
    nAB = D + 1
    vA, vBX, vBH, vHW = [2, 3, 4], [5, 6, 7, 8], [9, 10, 11], [12, 13, 14]
    vTG, vL16 = vT + 11, vT + 10
    assert vAB + 4 * nAB <= vXB
    sA, sBq = sT4, sT5
    A(f"s_and_b32 s{sA}, s{sWV}, 1")
    A(f"s_lshr_b32 s{sBq}, s{sWV}, 1")
    A(f"v_lshrrev_b32 v{vT}, 5, v1")
    A(f"s_mul_i32 s60, s{sJ}, 1152")
    A(f"s_mul_i32 s{sT1}, s{sI}, 384")
    A(f"s_add_u32 s60, s60, s{sT1}")
    A(f"s_lshl_b32 s{sT1}, s{sBq}, 6")
    A(f"s_add_u32 s61, s60, s{sT1}")
    A(f"v_lshlrev_b32 v{vT+4}, 3, v{vT}")
    if cfg.sa:
        A(f"s_add_u32 s{sT3}, s{sWV}, 1")
        A(f"v_and_b32 v{vT+5}, 7, v1")
        A(f"v_mul_u32_u24 v{vT+5}, 9216, v{vT+5}")
        A(f"v_lshrrev_b32 v{vT+6}, 3, v1")
        A(f"v_min_u32 v{vT+6}, 2, v{vT+6}")
        A(f"v_lshl_add_u32 v{vT+5}, v{vT+6}, 7, v{vT+5}")
        A(f"s_lshl_b32 s{sT1}, s{sT3}, 3")
        A(f"s_add_u32 s{sT1}, s{sT1}, s{sMT}")
        A(f"s_mul_i32 s{sT1}, s{sT1}, {8*9216}")
        A(f"s_add_u32 s{sT1}, s{sT1}, s60")
        A(f"s_mul_i32 s{sT2}, s{sI}, 22")
        A(f"v_min_u32 v{vT+6}, 21, v1")
        A(f"v_add_u32 v{vT+6}, s{sT2}, v{vT+6}")
        A(f"v_min_u32 v{vT+6}, 63, v{vT+6}")
        A(f"v_mul_u32_u24 v{vT+6}, 1152, v{vT+6}")
        A(f"s_mul_i32 s{sT2}, s{sMT}, {64*1152}")
        A(f"s_lshl_b32 s{sT3}, s{sT3}, 7")
        A(f"s_add_u32 s{sT2}, s{sT2}, s{sT3}")
    A("s_waitcnt lgkmcnt(0)")
    srd(SRD0, sB1, 9216)
    for l in range(3):
        for g in range(4):
            r = vXB + 2 * (4 * l + g)
            A(f"buffer_load_dwordx2 v[{r}:{r+1}], v{vT+4}, s[{SRD0}:{SRD0+3}], s61 offen offset:{128*l+16*g}")
    if cfg.sa:
        srd(SRD1, sW1, 5308416)
        srd(SRD2, sX, 589824)
        A(f"s_cmp_ge_u32 s{sWV}, {cfg.sa}")
        A("s_cbranch_scc1 L_tdone")
        A(f"buffer_load_dword v255, v{vT+5}, s[{SRD1}:{SRD1+3}], s{sT1} offen {cfg.tfl}")
        A(f"buffer_load_dword v255, v{vT+6}, s[{SRD2}:{SRD2+3}], s{sT2} offen")
        A.label("L_tdone")
    epoch_load(sMT)
    A.tail("c")
    srd(SRD1, sWS, 0x10000000)
    A(f"v_bfe_u32 v{vT+1}, v1, 2, 2")
    A(f"v_lshl_add_u32 v{vT+2}, v{vT}, 2, v{vT+1}")
    A(f"v_lshlrev_b32 v{vT+2}, 7, v{vT+2}")
    A(f"v_bfe_u32 v{vT+3}, v1, 3, 1")
    A(f"v_xor_b32 v{vT+3}, s{sBq}, v{vT+3}")
    A(f"v_lshl_add_u32 v{vT+2}, v{vT+3}, 6, v{vT+2}")
    A(f"v_bfe_u32 v{vT+3}, v1, 4, 1")
    A(f"v_lshl_add_u32 v{vT+2}, v{vT+3}, 5, v{vT+2}")
    A(f"v_and_b32 v{vT+3}, 3, v1")
    A(f"v_lshl_add_u32 v{vA[0]}, v{vT+3}, 3, v{vT+2}")
    A(f"v_add_u32 v{vA[1]}, 0x10000, v{vA[0]}")
    A(f"v_add_u32 v{vA[2]}, 0x20000, v{vA[0]}")
    A(f"v_and_b32 v{vT+1}, 31, v1")
    A(f"v_bfe_u32 v{vT+2}, v1, 1, 3")
    A(f"v_xor_b32 v{vT+2}, v{vT}, v{vT+2}")
    A(f"v_lshlrev_b32 v{vT+2}, 4, v{vT+2}")
    A(f"v_lshl_add_u32 v{vT+2}, v{vT+1}, 7, v{vT+2}")
    A(f"s_lshl_b32 s{sT0}, s{sA}, 12")
    A(f"s_add_u32 s{sT1}, s{sT0}, 0x20000")
    A(f"v_add_u32 v{vBX[0]}, s{sT1}, v{vT+2}")
    for sp in range(1, 4):
        A(f"v_xor_b32 v{vBX[sp]}, {32*sp}, v{vBX[0]}")
    A(f"v_lshl_add_u32 v{vBH[0]}, v1, 4, s{sT0}")
    A(f"v_add_u32 v{vBH[1]}, 0x10000, v{vBH[0]}")
    A(f"v_add_u32 v{vBH[2]}, 0x20000, v{vBH[0]}")
    A(f"s_lshl_b32 s{sT1}, s{sBq}, 11")
    for k in range(3):
        A(f"v_add_u32 v{vHW[k]}, s{sT1}, v{vBH[k]}")
    sI0 = 38
    sMS, sML, sMC = 39, 63, 59
    sHS = [60, 61, 62]
    A(f"s_mul_i32 s{sI0}, s{sA}, 96")
    A(f"s_add_u32 s{sI0}, s{sI0}, s{sR}")
    A(f"s_lshl_b32 s{sI0}, s{sI0}, 3")
    A(f"s_add_u32 s{sI0}, s{sI0}, s{sJ}")
    A(f"s_mul_i32 s{sI0}, s{sI0}, 3072")
    A(f"s_add_u32 s{sI0}, s{sI0}, {WS_IN}")
    A(f"s_lshl_b32 s{sT1}, s{sBq}, 8")
    A(f"s_add_u32 s{sI0}, s{sI0}, s{sT1}")
    A(f"v_bfe_u32 v{vT+1}, v1, 3, 2")
    A(f"v_mul_u32_u24 v{vT+1}, {24*8*3072}, v{vT+1}")
    A(f"v_and_b32 v{vT+2}, 7, v1")
    A(f"v_lshl_add_u32 v{vT+1}, v{vT+2}, 4, v{vT+1}")
    A(f"v_lshl_add_u32 v{vL16}, v{vT}, 9, v{vT+1}")
    A(f"s_mov_b32 s{sMS}, 0x80008000")
    A(f"s_mov_b32 s{sML}, 0x00010001")
    A(f"s_mov_b32 s{sMC}, 0x7fff7fff")
    A(f"s_mul_i32 s{sHS[0]}, s{sWK}, 24576")
    if WS_H:
        A(f"s_add_u32 s{sHS[0]}, s{sHS[0]}, {WS_H}")
    A(f"s_add_u32 s{sHS[1]}, s{sHS[0]}, 8192")
    A(f"s_add_u32 s{sHS[2]}, s{sHS[0]}, 16384")
    epoch_fin()
    tag_regs(vTG, vT + 1)
    A("s_waitcnt vmcnt(0)" if not cfg.sa else "s_waitcnt vmcnt(2)")
    if cfg.sa:
        A(f"s_cmp_lt_u32 s{sWV}, {cfg.sa}")
        A("s_cbranch_scc1 L_bw")
        A("s_waitcnt vmcnt(0)")
        A.label("L_bw")
    for l in range(3):
        for g in range(4):
            r = vXB + 2 * (4 * l + g)
            d = vACC + 16 * l + 4 * g
            A(f"v_lshlrev_b32 v{d}, 16, v{r}")
            A(f"v_and_b32 v{d+1}, 0xffff0000, v{r}")
            A(f"v_lshlrev_b32 v{d+2}, 16, v{r+1}")
            A(f"v_and_b32 v{d+3}, 0xffff0000, v{r+1}")
    stamp()

    items = []
    for st in stages:
        bykb = {}
        for u in st["units"]:
            bykb.setdefault(u[2], []).append(u)
        for kb, us in bykb.items():
            for sp in range(4):
                for (t, wb, _kb, fst) in us:
                    items.append(dict(q=st["q"], tile=t, wb=wb, kb=kb, sp=sp, first=(fst and sp == 0)))
    NI = len(items)
    last_item = {}
    for n, it in enumerate(items):
        last_item[it["q"]] = n
    bread_of = {(st["q"], kb): bb for st in stages for (bb, kb) in st["breads"]}
    lg = []

    def ds_issue(instr, tag):
        cap = 11 if TS else 15
        if len(lg) >= cap:
            A(f"s_waitcnt lgkmcnt({cap-2})")
            del lg[:len(lg) - (cap - 2)]
        A(instr)
        lg.append(tag)

    def ds_need(tags):
        idx = max([i for i, t in enumerate(lg) if t in tags], default=-1)
        if idx >= 0:
            A(f"s_waitcnt lgkmcnt({len(lg) - 1 - idx})")
            del lg[:idx + 1]

    checked = [-1]
    bdone = set()
    dirty, clean_pos = {}, {}

    def clean(m):
        key = (items[m]["kb"], items[m]["sp"])
        if key in dirty and dirty[key] == m:
            del dirty[key]
            ds_need({("B",) + key})
            r = vXB + 16 * key[0] + 4 * key[1]
            for k in range(4):
                A(f"v_and_b32 v{r+k}, s{sMC}, v{r+k}")
            clean_pos[m] = len(A.L) - 1

    def issue_reads(n):
        it = items[n]
        q = it["q"]
        if q > checked[0]:
            ds_need({"hw"})
            A("s_barrier")
            checked[0] = q
            if q in cfg.tsq:
                stamp()
        key = (q, it["kb"])
        if key in bread_of and (key, it["sp"]) not in bdone:
            bdone.add((key, it["sp"]))
            bb = blocks[bread_of[key]]
            addr = bb["slot"] * 8192
            r = vXB + 16 * it["kb"] + 4 * it["sp"]
            if bb["kind"] == "X":
                assert addr >> 16 == 2
                ds_issue(f"ds_read_b128 v[{r}:{r+3}], v{vBX[it['sp']]} offset:{addr & 0xffff}", ("B", it["kb"], it["sp"]))
            else:
                ds_issue(f"ds_read_b128 v[{r}:{r+3}], v{vBH[addr >> 16]} offset:{(addr & 0xffff) + 1024*it['sp']}",
                         ("B", it["kb"], it["sp"]))
                if bb["kind"] != "Hown":
                    dirty[(it["kb"], it["sp"])] = n
        wb = blocks[it["wb"]]
        addr = wb["slot"] * 8192 + 2048 * it["sp"]
        r = vAB + 4 * (n % nAB)
        ds_issue(f"ds_read_b64_tr_b16 v[{r}:{r+1}], v{vA[addr >> 16]} offset:{addr & 0xffff}", ("A", n))
        ds_issue(f"ds_read_b64_tr_b16 v[{r+2}:{r+3}], v{vA[addr >> 16]} offset:{(addr & 0xffff) + 1024}", ("A", n))

    post = []

    def epi1_instrs(pi, lines):
        out, late = [], []
        for l in lines:
            a = vACC + 16 * l
            addr = blocks[f"H0_{l}"]["slot"] * 8192
            for half in range(2):
                base = a + 8 * half
                for k in range(8):
                    out.append(("v", f"v_max_f32 v{base+k}, 0, v{base+k}"))
                for k in range(0, 8, 2):
                    out.append(("v", f"v_pk_mul_f32 v[{base+k}:{base+k+1}], v[{base+k}:{base+k+1}], v[{base+k}:{base+k+1}]"))
                for k in range(4):
                    out.append(("v", f"v_cvt_pk_bf16_f32 v{base+k}, v{base+2*k}, v{base+2*k+1}"))
                for k in range(4):
                    out.append(("v", f"v_and_or_b32 v{base+4+k}, v{vTG+k}, s{sMS}, v{base+k}"))
                out.append(("v", f"buffer_store_dwordx4 v[{base+4}:{base+7}], v{vHW[0]}, s[{SRD1}:{SRD1+3}], s{sHS[l]} offen offset:{1024*half} {cfg.hsf}"))
                out.append(("w", f"ds_write_b128 v{vHW[addr >> 16]}, v[{base}:{base+3}] offset:{(addr & 0xffff) + 1024*half}"))
                t = ("v", f"buffer_load_dword v255, v{vHW[0]}, s[{SRD1}:{SRD1+3}], s{sHS[l]} offen offset:{1024*half} {cfg.stf}")
                if cfg.stouch == 1:
                    out.append(t)
                elif cfg.stouch == 2:
                    late.append(t)
                elif cfg.stouch == 3:
                    post.append(t)
        return out + late

    def epi2_instrs(lines):
        out = []
        for l in lines:
            for u in range(2):
                base = vACC + 8 * (2 * l + u)
                for k in range(4):
                    out.append(("v", f"v_cvt_pk_bf16_f32 v{base+k}, v{base+2*k}, v{base+2*k+1}"))
                for k in range(4):
                    out.append(("v", f"v_bfi_b32 v{base+k}, s{sML}, v{vTG+k}, v{base+k}"))
                out.append(("v", f"buffer_store_dwordx4 v[{base}:{base+3}], v{vL16}, s[{SRD1}:{SRD1+3}], s{sI0} offen offset:{1024*l+128*u} sc1"))
        return out

    fillers = []
    fill_start = 0
    fill_tiles = set()
    mfma_pos = {}
    fill_fresh = [False]

    def states_since(pos):
        c = 0
        for ln in A.L[pos + 1:]:
            t = ln.strip()
            if t.endswith(":") or t.startswith(";") or t.startswith("@@"):
                continue
            c += int(t.split()[1]) + 1 if t.startswith("s_nop") else 1
        return c

    def emit(kind, t):
        if fill_fresh[0]:
            fill_fresh[0] = False
            have = min(states_since(mfma_pos[tl]) for tl in fill_tiles)
            if have < 12:
                A(f"s_nop {12 - have - 1}")
        if kind == "w":
            ds_issue(t, "hw")
        else:
            A(t)

    def flush_fillers():
        nonlocal fillers
        for (kind, t) in fillers:
            emit(kind, t)
        fillers = []
        fill_tiles.clear()

    nread = 0
    for n in range(NI):
        it = items[n]
        lim = min(NI - 1, n + D)
        while nread <= lim:
            nx = items[nread]
            if nx["q"] > checked[0]:
                due = [l for l, v in hown_vis.items() if v == nx["q"]]
                if due:
                    if last_item[hown_w[due[0]]] >= n:
                        break
                    flush_fillers()
            key = (nx["q"], nx["kb"])
            if key in bread_of and (key, nx["sp"]) not in bdone:
                if any(items[m]["kb"] == nx["kb"] and items[m]["sp"] == nx["sp"] for m in range(n, nread)):
                    break
            issue_reads(nread)
            nread += 1
        assert nread > n
        if it["tile"] in fill_tiles:
            flush_fillers()
            A("s_nop 1")
        clean(n)
        ds_need({("A", n), ("B", it["kb"], it["sp"])})
        if it["first"]:
            ds_need({"hw"})
        if n in clean_pos and states_since(clean_pos[n]) < 2:
            A(f"s_nop {1 - states_since(clean_pos[n])}")
        ra = vAB + 4 * (n % nAB)
        rb = vXB + 16 * it["kb"] + 4 * it["sp"]
        acc = vACC + 16 * it["tile"]
        c = "0" if it["first"] else f"v[{acc}:{acc+15}]"
        A(f"v_mfma_f32_32x32x16_bf16 v[{acc}:{acc+15}], v[{ra}:{ra+3}], v[{rb}:{rb+3}], {c}")
        mfma_pos[it["tile"]] = len(A.L) - 1
        if n + 1 < nread:
            clean(n + 1)
        k = 0
        while fillers and k < cfg.fill and n >= fill_start:
            kind, t = fillers.pop(0)
            emit(kind, t)
            k += 1
        if not fillers:
            fill_tiles.clear()
            if post and it["q"] >= n_g1 and (n - last_item[n_g1 - 1]) >= cfg.stdel:
                A(post.pop(0)[1])
        if n == last_item[it["q"]]:
            q = it["q"]
            new = []
            if q in epi_after:
                new, tl = epi1_instrs(*epi_after[q]), epi_after[q][1]
            elif q in epi2_after:
                new, tl = epi2_instrs(epi2_after[q]), epi2_after[q]
            if new:
                stamp()
                flush_fillers()
                fillers = new
                fill_tiles.update(tl)
                fill_fresh[0] = True
                fill_start = n + 3
    flush_fillers()
    stamp()
    if cfg.rbar:
        A(f"s_waitcnt vmcnt({cfg.rbar-1})")
        A("s_barrier")
    if TS:
        A("s_waitcnt vmcnt(0)")
        stamp()
        stamp_flush()
    A("s_branch L_end")

    A.head("hl")
    A.label("L_helper")
    sG = 38
    A(f"s_lshl_b32 s{sG}, s{sWV}, 3")
    A(f"s_add_u32 s{sG}, s{sG}, s{sR}")
    A("v_mul_u32_u24 v8, 9216, v1")
    A("v_mul_u32_u24 v9, 1152, v1")
    A(f"s_mul_i32 s39, s{sJ}, 1152")
    A("s_waitcnt lgkmcnt(0)")
    NWT = 64

    def sdiv(dst, src, d):
        A(f"s_mul_i32 s{dst}, s{src}, {(65536 + d - 1) // d}")
        A(f"s_lshr_b32 s{dst}, s{dst}, 16")

    w2base = 0
    if cfg.touch and any(ROT):
        srd(SRD0, sW1, 5308416)
        srd(SRD1, sX, 589824)
        need = {kk: min((kk - r) % 9 for r in ROT) for kk in range(9)}
        kks = sorted([kk for kk in range(9) if need[kk] >= cfg.skipw], key=lambda kk: need[kk])
        KT = sum(kk << (4 * u) for u, kk in enumerate(kks))
        nW = 9 * len(kks)
        x0 = cfg.skipx
        nX = 8 * (9 - x0)
        tot = nW + nX
        for rnd in range((tot + NWT - 1) // NWT):
            if rnd == 1:
                A.tail("hl")
            k = A.uid()
            A(f"s_add_u32 s{sT0}, s{sG}, {NWT*rnd}")
            if NWT * rnd < nW:
                if NWT * rnd + NWT > nW:
                    A(f"s_cmp_ge_u32 s{sT0}, {nW}")
                    A(f"s_cbranch_scc1 L_hx{k}")
                sdiv(sT1, sT0, 9)
                A(f"s_mul_i32 s{sT2}, s{sT1}, 9")
                A(f"s_sub_u32 s{sT2}, s{sT0}, s{sT2}")
                A(f"s_lshl_b32 s{sT1}, s{sT1}, 2")
                A(f"s_lshr_b32 s{sT1}, {KT}, s{sT1}")
                A(f"s_and_b32 s{sT1}, s{sT1}, 15")
                A(f"s_mul_i32 s{sT1}, s{sT1}, {64*9216}")
                A(f"s_lshl_b32 s{sT2}, s{sT2}, 7")
                A(f"s_add_u32 s{sT1}, s{sT1}, s{sT2}")
                A(f"s_add_u32 s{sT1}, s{sT1}, s39")
                A(f"buffer_load_dword v255, v8, s[{SRD0}:{SRD0+3}], s{sT1} offen {cfg.tfl}")
                if NWT * rnd + NWT > nW:
                    A(f"s_branch L_ht{k}")
            if NWT * rnd + NWT > nW:
                A.label(f"L_hx{k}")
                if NWT * rnd + NWT > tot:
                    A(f"s_cmp_ge_u32 s{sT0}, {tot}")
                    A(f"s_cbranch_scc1 L_ht{k}")
                A(f"s_sub_u32 s{sT0}, s{sT0}, {nW - 8*x0}")
                A(f"s_and_b32 s{sT2}, s{sT0}, 7")
                A(f"s_lshr_b32 s{sT1}, s{sT0}, 3")
                A(f"s_lshl_b32 s{sT3}, s{sT2}, 2")
                A(f"s_lshr_b32 s{sT3}, {ROTTAB}, s{sT3}")
                A(f"s_and_b32 s{sT3}, s{sT3}, 15")
                A(f"s_add_u32 s{sT1}, s{sT1}, s{sT3}")
                A(f"s_cmp_ge_u32 s{sT1}, 9")
                A(f"s_cselect_b32 s{sT3}, 9, 0")
                A(f"s_sub_u32 s{sT1}, s{sT1}, s{sT3}")
                A(f"s_mul_i32 s{sT2}, s{sT2}, {64*1152}")
                A(f"s_lshl_b32 s{sT1}, s{sT1}, 7")
                A(f"s_add_u32 s{sT1}, s{sT1}, s{sT2}")
                A(f"buffer_load_dword v255, v9, s[{SRD1}:{SRD1+3}], s{sT1} offen")
            A.label(f"L_ht{k}")
        w2base = (NWT - tot % NWT) % NWT
    elif cfg.touch:
        srd(SRD0, sW1, 5308416)
        srd(SRD1, sX, 589824)
        phases, base = [], 0
        for pi, ls in enumerate(passes):
            t0 = cfg.ht0 if pi == 0 else 0
            c = 3 * len(ls) + (8 if pi == 0 else 0)
            phases.append((base, (9 - t0 - cfg.tn) * c, t0, c, ls))
            base += (9 - t0 - cfg.tn) * c
        w2base = (NWT - base % NWT) % NWT if cfg.w2rot else 0
        for rnd in range((base + NWT - 1) // NWT):
            if rnd == 1:
                A.tail("hl")
            k = A.uid()
            A(f"s_add_u32 s{sT0}, s{sG}, {NWT*rnd}")
            for (pb, cnt, t0, c, ls) in phases:
                if pb + cnt <= NWT * rnd or pb >= NWT * rnd + NWT:
                    continue
                k2 = A.uid()
                A(f"s_cmp_ge_u32 s{sT0}, {pb+cnt}")
                A(f"s_cbranch_scc1 L_hp{k2}")
                if pb:
                    A(f"s_sub_u32 s{sT0}, s{sT0}, {pb}")
                sdiv(sT1, sT0, c)
                A(f"s_mul_i32 s{sT2}, s{sT1}, {c}")
                A(f"s_sub_u32 s{sT2}, s{sT0}, s{sT2}")
                if t0:
                    A(f"s_add_u32 s{sT1}, s{sT1}, {t0}")
                if cfg.tn:
                    A(f"s_cmp_ge_u32 s{sT1}, {cfg.ta}")
                    A(f"s_cselect_b32 s{sT3}, {cfg.tn}, 0")
                    A(f"s_add_u32 s{sT1}, s{sT1}, s{sT3}")
                nw = 3 * len(ls)
                if c > nw:
                    A(f"s_cmp_ge_u32 s{sT2}, {nw}")
                    A(f"s_cbranch_scc1 L_hx{k2}")
                if len(ls) != 3:
                    if len(ls) == 1:
                        A(f"s_mul_i32 s{sT2}, s{sT2}, 3")
                    else:
                        A(f"s_lshr_b32 s{sT3}, s{sT2}, 1")
                        A(f"s_add_u32 s{sT2}, s{sT2}, s{sT3}")
                    if ls[0]:
                        A(f"s_add_u32 s{sT2}, s{sT2}, {ls[0]}")
                A(f"s_mul_i32 s{sT1}, s{sT1}, {64*9216}")
                A(f"s_lshl_b32 s{sT2}, s{sT2}, 7")
                A(f"s_add_u32 s{sT1}, s{sT1}, s{sT2}")
                A(f"s_add_u32 s{sT1}, s{sT1}, s39")
                A(f"buffer_load_dword v255, v8, s[{SRD0}:{SRD0+3}], s{sT1} offen {cfg.tfl}")
                A(f"s_branch L_ht{k}")
                if c > nw:
                    A.label(f"L_hx{k2}")
                    A(f"s_sub_u32 s{sT2}, s{sT2}, {nw}")
                    A(f"s_mul_i32 s{sT2}, s{sT2}, {64*1152}")
                    A(f"s_lshl_b32 s{sT1}, s{sT1}, 7")
                    A(f"s_add_u32 s{sT1}, s{sT1}, s{sT2}")
                    A(f"buffer_load_dword v255, v9, s[{SRD1}:{SRD1+3}], s{sT1} offen")
                    A(f"s_branch L_ht{k}")
                A.label(f"L_hp{k2}")
            A.label(f"L_ht{k}")
    def h_pretouch():
        srd(SRD1, sWS, 0x10000000)
        A("v_lshlrev_b32 v10, 7, v1")
        A(f"s_mul_i32 s{sT1}, s{sJ}, 589824")
        for rnd in range(2):
            k = A.uid()
            A(f"s_add_u32 s{sT0}, s{sG}, {NWT*rnd}")
            A(f"s_cmp_ge_u32 s{sT0}, 72")
            A(f"s_cbranch_scc1 L_ht{k}")
            A(f"s_lshl_b32 s{sT0}, s{sT0}, 13")
            A(f"s_add_u32 s{sT0}, s{sT0}, s{sT1}")
            A(f"buffer_load_dword v255, v10, s[{SRD1}:{SRD1+3}], s{sT0} offen")
            A.label(f"L_ht{k}")
    if cfg.hpre == 1:
        h_pretouch()
    if cfg.touch:
        srd(SRD0, sW2, 5308416)
        A(f"s_mul_i32 s39, s{sJ}, 663552")
        korder = sorted(kbidx, key=lambda x: kbidx[x])
        tabD = sum(d << (2 * u) for u, (d, lk) in enumerate(korder))
        tabL = sum(lk << (2 * u) for u, (d, lk) in enumerate(korder))
        if w2base:
            A(f"s_add_u32 s{sG}, s{sG}, {w2base}")
            A(f"s_and_b32 s{sG}, s{sG}, 63")
        for rnd in range(2):
            k = A.uid()
            A(f"s_add_u32 s{sT0}, s{sG}, {NWT*rnd}")
            A(f"s_cmp_ge_u32 s{sT0}, 81")
            A(f"s_cbranch_scc1 L_ht{k}")
            sdiv(sT1, sT0, 9)
            A(f"s_mul_i32 s{sT2}, s{sT1}, 9")
            A(f"s_sub_u32 s{sT2}, s{sT0}, s{sT2}")
            sdiv(sT3, sT2, 3)
            A(f"s_lshl_b32 s{sT1}, s{sT1}, 1")
            A(f"s_lshr_b32 s{sT0}, {tabD}, s{sT1}")
            A(f"s_and_b32 s{sT0}, s{sT0}, 3")
            A(f"s_add_u32 s{sT0}, s{sT0}, s{sT3}")
            A(f"s_cmp_ge_u32 s{sT0}, 3")
            A(f"s_cselect_b32 s{sT3}, 3, 0")
            A(f"s_sub_u32 s{sT0}, s{sT0}, s{sT3}")
            A(f"s_lshr_b32 s{sT3}, {tabL}, s{sT1}")
            A(f"s_and_b32 s{sT3}, s{sT3}, 3")
            A(f"s_mul_i32 s{sT0}, s{sT0}, {192*1152}")
            A(f"s_mul_i32 s{sT3}, s{sT3}, {64*1152}")
            A(f"s_add_u32 s{sT0}, s{sT0}, s{sT3}")
            A(f"s_lshl_b32 s{sT2}, s{sT2}, 7")
            A(f"s_add_u32 s{sT0}, s{sT0}, s{sT2}")
            A(f"s_add_u32 s{sT0}, s{sT0}, s39")
            A(f"buffer_load_dword v255, v9, s[{SRD0}:{SRD0+3}], s{sT0} offen {cfg.tfl}")
            A.label(f"L_ht{k}")
    if cfg.hpre == 2:
        h_pretouch()
    if TS:
        tsn[0] = 1
        A("s_waitcnt vmcnt(0)")
        stamp()
        stamp()
        stamp_flush()
    A("s_branch L_end")
    A.tail("end")
    A.label("L_end")

    hdr = f"""; Fused MLP (x@w1+b1 -> relu^2 -> @w2+b2), generated by a python script (work/gen4.py)
; @launch grid=(256,1,1) block=(512,1,1) lds=163840
.amdgcn_target "amdgcn-amd-amdhsa--gfx950"
.text
.globl {KN}
.p2align 8
.type {KN},@function
{KN}:
"""
    ftr = f"""
    s_endpgm
.section .rodata,"a"
.p2align 6
.amdhsa_kernel {KN}
  .amdhsa_next_free_vgpr 256
  .amdhsa_next_free_sgpr 102
  .amdhsa_accum_offset 256
  .amdhsa_group_segment_fixed_size 0
  .amdhsa_kernarg_size 64
  .amdhsa_user_sgpr_count 2
  .amdhsa_user_sgpr_kernarg_segment_ptr 1
  .amdhsa_system_sgpr_workgroup_id_x 1
.end_amdhsa_kernel
"""
    return hdr + A.text(cfg.horder.split(","), cfg.torder.split(",") + ["end"]) + ftr


def parse_g2(s):
    out = []
    for stg in s.split(","):
        us = []
        for u in stg.split("+"):
            a, b = u.split(":")
            us.append((int(a[0]), int(a[1]), [int(c) for c in b]))
        out.append(us)
    return out


def ilist(s):
    return [int(x) for x in s.split(",")] if s else []


def main():
    ap = argparse.ArgumentParser()
    ap.add_argument("-o", default="k8.s")
    ap.add_argument("--ts", action="store_true")
    ap.add_argument("--passes", default="012")
    ap.add_argument("--depth", type=int, default=5)
    ap.add_argument("--fill", type=int, default=4)
    ap.add_argument("--grp1", type=int, default=3)
    ap.add_argument("--hres", type=float, default=2.5)
    ap.add_argument("--hearly", type=float, default=1.5)
    ap.add_argument("--hdel", type=int, default=1)
    ap.add_argument("--xfree", type=int, default=11)
    ap.add_argument("--g2", default="00:012,01:012,02:012,10:012,20:012,11:012,21:012,12:012,22:012")
    ap.add_argument("--tsq", default="")
    ap.add_argument("--verbose", action="store_true")
    ap.add_argument("--ahead", type=int, default=8)
    ap.add_argument("--ahead0", type=int, default=8)
    ap.add_argument("--capfrom", type=int, default=8)
    ap.add_argument("--capw", type=int, default=4)
    ap.add_argument("--capx", type=int, default=3)
    ap.add_argument("--burst", default="")
    ap.add_argument("--pause", default="")
    ap.add_argument("--go2lead", type=int, default=3)
    ap.add_argument("--sa", type=int, default=0)
    ap.add_argument("--ctouch", type=int, default=1)
    ap.add_argument("--wfl", default="")
    ap.add_argument("--tfl", default="")
    ap.add_argument("--rfl", default="sc1")
    ap.add_argument("--rsleep", type=int, default=0)
    ap.add_argument("--touch", type=int, default=1)
    ap.add_argument("--clrq", type=int, default=-1)
    ap.add_argument("--cdq", type=int, default=9)
    ap.add_argument("--rbar", type=int, default=0)
    ap.add_argument("--hsf", default="sc1")
    ap.add_argument("--hlf", default="sc1")
    ap.add_argument("--ofl", default="")
    ap.add_argument("--hpre", type=int, default=0)
    ap.add_argument("--rot", default="00000000")
    ap.add_argument("--ts0", type=int, default=0)
    ap.add_argument("--enc", default="")
    ap.add_argument("--encw", type=int, default=4)
    ap.add_argument("--hfree", type=int, default=2)
    ap.add_argument("--stouch", type=int, default=0)
    ap.add_argument("--stdel", type=int, default=1)
    ap.add_argument("--stf", default="")
    ap.add_argument("--ta", type=int, default=0)
    ap.add_argument("--tn", type=int, default=0)
    ap.add_argument("--tpos", type=int, default=0)
    ap.add_argument("--w2rot", type=int, default=1)
    ap.add_argument("--rfast", type=int, default=1)
    ap.add_argument("--wt", type=int, default=0)
    ap.add_argument("--horder", default="w,x,h2,hl,c")
    ap.add_argument("--ht0", type=int, default=1)
    ap.add_argument("--first", type=int, default=4)
    ap.add_argument("--torder", default="hl,w,x,h2,c,red")
    ap.add_argument("--skipw", type=int, default=1)
    ap.add_argument("--skipx", type=int, default=1)
    cfg = ap.parse_args()
    cfg.passes = [[int(c) for c in p] for p in cfg.passes.split(",")]
    cfg.g2 = parse_g2(cfg.g2)
    cfg.tsq, cfg.burst, cfg.pause = ilist(cfg.tsq), ilist(cfg.burst), ilist(cfg.pause)
    open(cfg.o, "w").write(build(cfg))


main()
```

```python
import sys, argparse

KN = "standalone__dense_activation_squared_relu__sampling_kernel"

WS_H = 0x0
WS_IN = 0x1000000
WS_CD = 0x1840000
WS_EP = 0x1850000
WS_TS = 0x8000000
SPIN_MAX = 100000
SGNMASK = 0x6A9956A5


class Asm:
    def __init__(self):
        self.L = []
        self.n = 0

    def __call__(self, s):
        self.L.append("    " + s)

    def label(self, s):
        self.L.append(s + ":")

    def c(self, s):
        self.L.append("    ; " + s)

    def uid(self):
        self.n += 1
        return self.n

    def head(self, role):
        self.L.append(f"@@HEAD {role}")

    def tail(self, role):
        self.L.append(f"@@TAIL {role}")

    def text(self, horder, torder):
        pro, heads, tails, cur = [], {}, {}, None
        cur = pro
        for ln in self.L:
            if ln.startswith("@@HEAD"):
                cur = heads.setdefault(ln.split()[1], [])
            elif ln.startswith("@@TAIL"):
                r = ln.split()[1]
                if r in heads:
                    heads[r].append(f"    s_branch L_tail_{r}")
                cur = tails.setdefault(r, [f"L_tail_{r}:"])
            else:
                cur.append(ln)
        assert sorted(heads) == sorted(horder) and sorted(tails) == sorted(torder), (heads.keys(), tails.keys())
        out = pro
        for r in horder:
            out += heads[r]
        out.append("L_heads_end:")
        for r in torder:
            out += tails[r]
        return "\n".join(out)


def build(cfg):
    global WS_H, WS_IN, WS_EP
    WS_H = cfg.wsb
    WS_IN = cfg.wsb + 0x480000
    WS_EP = cfg.wsb + 0x900000
    A = Asm()
    TS = cfg.ts
    passes = cfg.passes
    D = cfg.depth

    stages, blocks, order = [], {}, []

    def blk(name, **kw):
        blocks[name] = dict(name=name, **kw)
        return name

    def add_stage(units, breads):
        q = len(stages)
        stages.append(dict(units=units, breads=breads, q=q))
        for (bb, _kb) in breads:
            b = blocks[bb]
            b["need"] = b["last"] = q
            if b["kind"] != "Hown":
                order.append(bb)
        for (_t, wb, _kb, _first) in units:
            b = blocks[wb]
            if "need" not in b:
                b["need"] = q
                order.append(wb)
            b["last"] = q
        return q

    epi_after, pass_of_line = {}, {}
    for pi, lines in enumerate(passes):
        grp = 1 if (len(lines) > 1 or pi == 0) else cfg.grp1
        for t0 in range(0, 9, grp):
            units, breads = [], []
            for t in range(t0, t0 + grp):
                if pi == 0:
                    breads.append((blk(f"X{t}", kind="X", t=t), t))
                for l in lines:
                    units.append((l, blk(f"W{t}_{l}", kind="W1", t=t, l=l), t, False))
            q = add_stage(units, breads)
        epi_after[q] = (pi, list(lines))
        for l in lines:
            pass_of_line[l] = pi
    n_g1 = len(stages)
    kbidx = {}
    first = {0: True, 1: True, 2: True}
    cnt2 = {0: 0, 1: 0, 2: 0}
    epi2_after = {}
    for stg in cfg.g2:
        units, breads = [], []
        for (d, lk, lines) in stg:
            if (d, lk) not in kbidx:
                kbidx[(d, lk)] = len(kbidx)
                breads.append((blk(f"H{d}_{lk}", kind="Hown" if d == 0 else f"H{d}", d=d, lk=lk), kbidx[(d, lk)]))
            for l in lines:
                units.append((l, blk(f"V{d}_{lk}_{l}", kind="W2", d=d, lk=lk, l=l), kbidx[(d, lk)], first[l]))
                first[l] = False
                cnt2[l] += 1
        q = add_stage(units, breads)
        done = [l for l in range(3) if cnt2[l] == 9 and not any(l in v for v in epi2_after.values())]
        if done:
            epi2_after[q] = done
    assert all(v == 9 for v in cnt2.values())
    NQ = len(stages)
    hown_w = {l: q for q, (pi, lines) in epi_after.items() for l in lines}
    hown_vis = {l: (q + 1 if q == n_g1 - 1 else q + 2) for l, q in hown_w.items()}
    for l in hown_w:
        assert blocks[f"H0_{l}"]["need"] >= hown_vis[l]
    hfetch = {l: hown_vis[l] + cfg.hdel for l in hown_w}

    free_at = {s: -10 for s in range(20)}
    events = [(blocks[nm]["need"] - (cfg.hearly if blocks[nm]["kind"] in ("H1", "H2") else 0), 1, k, nm) for k, nm in enumerate(order)]
    for l, qw in hown_w.items():
        events.append((qw - cfg.hres, 0, l, f"H0_{l}"))
    events.sort()
    for ev in events:
        b = blocks[ev[3]]
        if b["kind"] == "X":
            cand = [16, 17, 18, 19]
        elif ev[0] < cfg.xfree:
            cand = list(range(0, 16))
        else:
            cand = list(range(0, 20))
        s = min(cand, key=lambda s: (free_at[s], s))
        b["slot"] = s
        b["free"] = free_at[s]
        if b["kind"] == "Hown":
            assert b["free"] + cfg.hfree <= hown_w[b["lk"]], b
        else:
            assert b["free"] + 2 < b["need"], b
        free_at[s] = b["last"]
    if cfg.verbose:
        print(" | ".join(f"{blocks[e[3]]['name']}:s{blocks[e[3]]['slot']} f{blocks[e[3]]['free']} n{blocks[e[3]]['need']}" for e in events), file=sys.stderr)
    for k, nm in enumerate(order):
        blocks[nm]["pos"] = k
    cum = [sum(1 for nm in order if blocks[nm]["need"] <= q) for q in range(NQ)]

    sX, sW1, sB1, sW2, sB2, sOUT, sDBG, sWS = 16, 18, 20, 22, 24, 26, 28, 30
    sJ, sR, sMT, sI, sWV, sWK = 32, 33, 34, 35, 36, 37
    SRD0, SRD1, SRD2 = 40, 44, 48
    sT0, sT1, sT2, sT3, sT4, sT5 = 52, 53, 54, 55, 56, 57
    sCNT = 58
    sTAG, sPB = 6, 8
    sTS = 64
    tsn = [0]

    def stamp():
        if TS:
            k = tsn[0]
            assert k < 16
            A(f"s_memtime s[{sTS+2*k}:{sTS+2*k+1}]")
            tsn[0] += 1

    def srd(d, p, nbytes):
        A(f"s_mov_b32 s{d}, s{p}")
        A(f"s_mov_b32 s{d+1}, s{p+1}")
        A(f"s_mov_b32 s{d+2}, {nbytes}")
        A(f"s_mov_b32 s{d+3}, 0x00020000")

    def stamp_flush():
        if not TS:
            return
        n = tsn[0]
        A("s_waitcnt lgkmcnt(0)")
        srd(SRD2, sWS, 0x10000000)
        A(f"s_lshl_b32 s{sT0}, s2, 9")
        A(f"s_lshl_b32 s{sT1}, s{sWV}, 6")
        A(f"s_add_u32 s{sT0}, s{sT0}, s{sT1}")
        A(f"s_add_u32 s{sT0}, s{sT0}, {WS_TS}")
        A(f"v_mov_b32 v2, s{sT0}")
        A("s_mov_b64 exec, 1")
        for k in range(n):
            A(f"v_mov_b32 v3, s{sTS+2*k}")
            A(f"buffer_store_dword v3, v2, s[{SRD2}:{SRD2+3}], 0 offen offset:{4*k}")
        A("s_mov_b64 exec, -1")

    def epoch_load(smt):
        A(f"s_lshl_b32 s{sT0}, s{smt}, 7")
        A(f"s_add_u32 s{sT0}, s{sT0}, {WS_EP}")
        A(f"s_load_dword s{sTAG}, s[{sWS}:{sWS+1}], s{sT0}")

    def epoch_fin():
        A("s_waitcnt lgkmcnt(0)")
        A(f"s_add_u32 s{sTAG}, s{sTAG}, 1")
        A(f"s_mul_i32 s{sTAG+1}, s{sTAG}, 0x02020202")
        A(f"s_and_b32 s{sTAG+1}, s{sTAG+1}, 0xeeeeeeee")
        A(f"s_or_b32 s{sTAG+1}, s{sTAG+1}, 0x10101010")

    def tag_regs(vd, vt):
        A(f"v_and_b32 v{vt}, 3, v1")
        A(f"v_lshlrev_b32 v{vt}, 3, v{vt}")
        A(f"v_lshrrev_b32 v{vt}, v{vt}, s{sTAG+1}")
        for k in range(4):
            A(f"v_bfe_u32 v{vd+k}, v{vt}, {2*k}, 2")
            A(f"v_mul_u32_u24 v{vd+k}, 0x8001, v{vd+k}")
            A(f"v_and_b32 v{vd+k}, 0x10001, v{vd+k}")
            A(f"v_lshl_or_b32 v{vd+k}, v{vd+k}, 15, v{vd+k}")

    def sign_reg(vd, vt):
        A(f"s_bitcmp1_b32 s{sTAG}, 0")
        A(f"s_cselect_b32 s{sT0}, -1, 0")
        A(f"s_xor_b32 s{sT0}, s{sT0}, {SGNMASK}")
        A(f"v_and_b32 v{vt}, 31, v1")
        A(f"v_lshrrev_b32 v{vt}, v{vt}, s{sT0}")
        A(f"v_bfe_i32 v{vt}, v{vt}, 0, 1")
        A(f"v_and_b32 v{vd}, 0x80008000, v{vt}")

    def sspin(loads, npairs, base):
        k = A.uid()
        A(f"s_mov_b32 s{sCNT}, 0")
        A.label(f"L_s{k}")
        for x in loads:
            A(x)
        A(f"s_add_u32 s{sCNT}, s{sCNT}, 1")
        A("s_waitcnt lgkmcnt(0)")
        A(f"s_cmp_gt_u32 s{sCNT}, {SPIN_MAX}")
        A(f"s_cbranch_scc1 L_sd{k}")
        for n in range(npairs):
            A(f"s_cmp_lg_u64 s[{base+2*n}:{base+2*n+1}], s[{sTAG}:{sTAG+1}]")
            A(f"s_cbranch_scc1 L_s{k}")
        A.label(f"L_sd{k}")

    def mod3add(dst, d, tmp):
        A(f"s_add_u32 s{dst}, s{sI}, {d}")
        A(f"s_cmp_ge_u32 s{dst}, 3")
        A(f"s_cselect_b32 s{tmp}, 3, 0")
        A(f"s_sub_u32 s{dst}, s{dst}, s{tmp}")

    A("s_cmp_ge_u32 s2, 256")
    A("s_cbranch_scc1 L_end")
    A("s_load_dwordx16 s[16:31], s[0:1], 0")
    if cfg.ctouch == 1:
        A("s_getpc_b64 s[4:5]")
        A.label("L_pc")
        A("v_lshlrev_b32 v2, 7, v0")
        A("v_min_u32 v2, L_end-L_pc, v2")
        A("v_and_b32 v2, 0xfffffffc, v2")
        A("global_load_dword v255, v2, s[4:5]")
    elif cfg.ctouch == 2:
        A("s_getpc_b64 s[4:5]")
        A.label("L_pc")
        A("s_lshr_b32 s3, s2, 3")
        A("s_lshl_b32 s3, s3, 11")
        A("v_lshrrev_b32 v2, 5, v0")
        A("v_lshl_add_u32 v2, v2, 7, s3")
        A("v_min_u32 v2, L_end-L_pc, v2")
        A("v_and_b32 v2, 0xfffffffc, v2")
        A("global_load_dword v255, v2, s[4:5]")
    if TS:
        A("s_memrealtime s[96:97]")
    if cfg.enc:
        A("s_memrealtime s[96:97]")
        if cfg.enc == "none":
            A("s_memrealtime s[94:95]")

    def enc(p):
        if cfg.enc == p:
            A("s_memrealtime s[94:95]")
    stamp()
    A("v_and_b32 v1, 63, v0")
    A("v_lshrrev_b32 v2, 6, v0")
    A(f"s_and_b32 s{sJ}, s2, 7")
    A(f"v_readfirstlane_b32 s{sWV}, v2")
    A(f"s_lshr_b32 s{sR}, s2, 3")
    A(f"s_cmp_lt_u32 s{sR}, 8")
    A("s_cbranch_scc1 L_helper")
    A(f"s_sub_u32 s{sR}, s{sR}, 8")
    A(f"s_mul_i32 s{sMT}, s{sR}, 21846")
    A(f"s_lshr_b32 s{sMT}, s{sMT}, 16")
    A(f"s_mul_i32 s{sT0}, s{sMT}, 3")
    A(f"s_sub_u32 s{sI}, s{sR}, s{sT0}")
    A(f"s_mul_i32 s{sWK}, s{sJ}, 24")
    A(f"s_add_u32 s{sWK}, s{sWK}, s{sR}")
    ROT = [int(c) for c in cfg.rot]
    ROTTAB = sum(r << (4 * m) for m, r in enumerate(ROT))
    sROT, sLO, sHI = 10, 11, 12
    if any(ROT):
        A(f"s_lshl_b32 s{sROT}, s{sMT}, 2")
        A(f"s_lshr_b32 s{sROT}, {ROTTAB}, s{sROT}")
        A(f"s_and_b32 s{sROT}, s{sROT}, 15")

    def rot_setup(sbase, stride):
        if any(ROT):
            A(f"s_mul_i32 s{sLO}, s{sROT}, {stride}")
            A(f"s_add_u32 s{sLO}, s{sLO}, s{sbase}")
            A(f"s_sub_u32 s{sHI}, s{sLO}, {9*stride}")

    def rot_addr(dst, sbase, t, stride, extra):
        if any(ROT):
            if t + max(ROT) < 9:
                A(f"s_add_u32 s{dst}, s{sLO}, {t*stride + extra}")
            else:
                A(f"s_cmp_lt_u32 s{sROT}, {9-t}")
                A(f"s_cselect_b32 s{dst}, s{sLO}, s{sHI}")
                A(f"s_add_u32 s{dst}, s{dst}, {t*stride + extra}")
        else:
            A(f"s_add_u32 s{dst}, s{sbase}, {t*stride + extra}")
    A(f"s_cmp_lt_u32 s{sWV}, 4")
    A("s_cbranch_scc1 L_compute")
    A(f"s_cmp_eq_u32 s{sWV}, 6")
    A("s_cbranch_scc1 L_xh")
    A(f"s_cmp_eq_u32 s{sWV}, 7")
    A("s_cbranch_scc1 L_h2")
    ts_base = tsn[0]

    def loader_stream(kinds, per_block, issue_fn, setup_fn, cap, group=False, validate=None, before_bar=None, role=None):
        mine = [blocks[nm] for nm in order if blocks[nm]["kind"] in kinds]
        outstanding, pend = [], list(mine)
        nb = lambda nm: per_block(blocks[nm]) if callable(per_block) else per_block
        cnt = lambda lst: sum(nb(x) for x in lst)

        def ok(b, q):
            if b["free"] + 2 > q:
                return False
            if b["kind"] in ("H1", "H2") and q < min(hfetch[b["lk"]], b["need"] - 1):
                return False
            return True

        def issue_upto(q, ahead, cap):
            n = 0
            lim = cum[q] + ahead if q >= 0 else ahead
            while pend and ok(pend[0], q):
                must = pend[0]["need"] <= q + 1 or pend[0]["pos"] < lim
                if not must and n >= cap:
                    break
                grp = [pend.pop(0)]
                while group and pend and ok(pend[0], q) and pend[0]["need"] == grp[0]["need"] and len(grp) < 3 \
                        and (pend[0]["pos"] < lim or n + len(grp) < cap or pend[0]["need"] <= q + 1):
                    grp.append(pend.pop(0))
                need_n = sum(nb(x["name"]) for x in grp)
                if cnt(outstanding) + need_n > 63:
                    while cnt(outstanding) + need_n > 63:
                        del outstanding[0]
                    A(f"s_waitcnt vmcnt({cnt(outstanding)})")
                issue_fn(grp if group else grp[0])
                if cfg.verbose:
                    print(f"   after B{q}: " + " ".join(x["name"] for x in grp), file=sys.stderr)
                outstanding.extend(x["name"] for x in grp)
                n += len(grp)

        issue_upto(-1, cfg.first, 0)
        if cfg.ts0:
            stamp()
        if role == "w":
            enc("iss")
        A.tail(role)
        setup_fn()
        issue_upto(-1, cfg.ahead0, 0)
        for q in range(NQ):
            assert not any(b["need"] <= q for b in pend), (q, pend[0])
            for b in mine:
                if b["need"] == q:
                    if b["name"] in outstanding:
                        idx = max(i for i, nm in enumerate(outstanding) if blocks[nm]["need"] <= q) if validate is None \
                            else outstanding.index(b["name"])
                        del outstanding[:idx + 1]
                        A(f"s_waitcnt vmcnt({cnt(outstanding)})")
                    if validate is not None and b["kind"] != "X":
                        validate(b)
            if before_bar is not None:
                before_bar(q)
            if q in cfg.tsq:
                stamp()
            A("s_barrier")
            if role == "w":
                enc(f"B{q}")
            if q in cfg.pause:
                issue_upto(q, 0, 0)
            else:
                issue_upto(q, cfg.ahead, 99 if q in cfg.burst else (cap if q >= cfg.capfrom else 0))
        assert not pend

    A.head("w")
    sHW = sT5
    A(f"s_sub_u32 s{sHW}, s{sWV}, 4")
    A("v_lshrrev_b32 v2, 3, v1")
    A("v_and_b32 v3, 7, v1")
    A("v_bfe_u32 v4, v1, 4, 1")
    A("v_lshlrev_b32 v4, 2, v4")
    A("v_xor_b32 v3, v3, v4")
    A("v_lshlrev_b32 v3, 4, v3")
    A("v_lshrrev_b32 v4, 2, v2")
    A("v_and_b32 v5, 3, v2")
    A("v_lshl_add_u32 v4, v4, 3, v5")
    A(f"s_lshl_b32 s{sT0}, s{sHW}, 5")
    A(f"v_add_u32 v4, s{sT0}, v4")
    A("v_mul_u32_u24 v4, 9216, v4")
    A("v_add_u32 v4, v4, v3")
    for c in range(1, 4):
        A(f"v_add_u32 v{4+c}, {(16*(c>>1)+4*(c&1))*9216 - 1024*c}, v4")
    sLW, sC1 = sT4, 38
    A(f"s_lshl_b32 s{sLW}, s{sHW}, 12")
    A(f"s_mul_i32 s{sC1}, s{sJ}, 1152")
    A(f"s_mul_i32 s{sT1}, s{sI}, 384")
    A(f"s_add_u32 s{sC1}, s{sC1}, s{sT1}")
    rot_setup(sC1, 64*9216)
    if cfg.wt:
        A("v_and_b32 v12, 7, v1")
        A("v_lshrrev_b32 v13, 5, v1")
        A("v_lshl_add_u32 v12, v13, 6, v12")
        A("v_mul_u32_u24 v12, 9216, v12")
        A("v_bfe_u32 v13, v1, 3, 2")
        A("v_lshl_add_u32 v12, v13, 7, v12")
        A(f"s_lshl_b32 s{sT0}, s{sHW}, 4")
        A(f"s_add_u32 s{sT0}, s{sT0}, s{sMT}")
        A(f"s_mul_i32 s{sT0}, s{sT0}, {8*9216}")
        A(f"s_add_u32 s{sT0}, s{sT0}, s{sC1}")
        msk = [sum(0xffffff << (32 * h) for h in range(2) if 2 * w + h < cfg.wt) for w in range(2)]
        A(f"s_mov_b32 exec_lo, {msk[0] & 0xffffffff}")
        A(f"s_mov_b32 exec_hi, {msk[0] >> 32}")
        if msk[1] != msk[0]:
            A(f"s_cmp_eq_u32 s{sHW}, 0")
            A(f"s_cselect_b32 exec_lo, exec_lo, {(msk[1] & 0xffffffff) or 1}")
            A(f"s_cselect_b32 exec_hi, exec_hi, {msk[1] >> 32}")
    A("s_waitcnt lgkmcnt(0)")
    if cfg.ts0:
        stamp()
    srd(SRD0, sW1, 5308416)
    if cfg.wt:
        A(f"buffer_load_dword v255, v12, s[{SRD0}:{SRD0+3}], s{sT0} offen")
        A("s_mov_b64 exec, -1")
    sV = [62, 63, 59]

    def w2_setup():
        epoch_load(sMT)
        A(f"s_lshl_b32 s{sT0}, s{sHW}, 5")
        A(f"v_add_u32 v8, s{sT0}, v2")
        A("v_mul_u32_u24 v8, 1152, v8")
        A("v_add_u32 v8, v8, v3")
        for c in range(1, 4):
            A(f"v_add_u32 v{8+c}, {8*c*1152 - 1024*c}, v8")
        A(f"s_mul_i32 s39, s{sJ}, {576*1152}")
        A(f"s_mul_i32 s{sT0}, s{sI}, 384")
        A(f"s_add_u32 s39, s39, s{sT0}")
        for d in range(3):
            mod3add(sT1, d, sT2)
            A(f"s_mul_i32 s{sT1}, s{sT1}, {192*1152}")
            A(f"s_add_u32 s{sV[d]}, s39, s{sT1}")
        srd(SRD1, sW2, 5308416)

    def issue_w(grp):
        for b in grp:
            A(f"s_add_u32 m0, s{sLW}, {b['slot']*8192}")
            if b["kind"] == "W1":
                rot_addr(sT0, sC1, b['t'], 64*9216, 128*b['l'])
                vb, sr = 4, SRD0
            else:
                A(f"s_add_u32 s{sT0}, s{sV[b['d']]}, {64*b['lk']*1152 + 128*b['l']}")
                vb, sr = 8, SRD1
            for c in range(4):
                A(f"buffer_load_dwordx4 v{vb+c}, s[{sr}:{sr+3}], s{sT0} offen offset:{1024*c} {cfg.wfl} lds")

    loader_stream(("W1", "W2"), 4, issue_w, w2_setup, cfg.capw, group=True,
                  before_bar=lambda q: epoch_fin() if q == 2 else None, role="w")
    A("s_branch L_reduce")
    ts_max = tsn[0]

    sXB = 38
    sH = {1: 39, 2: 59}
    HALF = [0]

    def h_setup(half):
        A("v_lshlrev_b32 v12, 4, v1")
        A("v_add_u32 v13, 0x10000, v12")
        A("v_add_u32 v14, 0x20000, v12")
        A(f"s_sub_u32 s{sT0}, s{sWK}, s{sI}")
        for d in (1, 2):
            mod3add(sT1, d, sT2)
            A(f"s_add_u32 s{sT1}, s{sT1}, s{sT0}")
            A(f"s_mul_i32 s{sH[d]}, s{sT1}, 24576")
        srd(SRD1, sWS, 0x10000000)
        epoch_load(sMT)

    def issue_xh(b):
        for h in (range(2) if b["kind"] == "X" else HALF):
            A(f"s_mov_b32 m0, {b['slot']*8192 + 4096*h}")
            if b["kind"] == "X":
                rot_addr(sT0, sXB, b['t'], 128, 32*1152*h)
                for c in range(4):
                    A(f"buffer_load_dwordx4 v{8+c}, s[{SRD0}:{SRD0+3}], s{sT0} offen offset:{1024*c} lds")
            else:
                A(f"s_add_u32 s{sT0}, s{sH[b['d']]}, {WS_H + 8192*b['lk'] + 4096*h}")
                for c in range(4):
                    A(f"buffer_load_dwordx4 v12, s[{SRD1}:{SRD1+3}], s{sT0} offen offset:{1024*c} {cfg.hlf} lds")

    retry_code = []

    def validate(b):
        k = A.uid()
        addr = b["slot"] * 8192 + 4096 * HALF[0]
        va = 12 + (addr >> 16)
        A.label(f"L_v{k}")
        for c in range(4):
            A(f"ds_read_b128 v[{32+4*c}:{35+4*c}], v{va} offset:{(addr & 0xffff) + 1024*c}")
        for c in range(4):
            r = 32 + 4 * c
            A(f"s_waitcnt lgkmcnt({3-c})")
            for kk in range(4):
                if c == 0 and kk < 2:
                    A(f"v_xor_b32 v{16+kk}, v{r+kk}, v{20+kk}")
                else:
                    A(f"v_bitop3_b32 v{16+(kk&1)}, v{16+(kk&1)}, v{r+kk}, v{20+kk} bitop3:0xf6")
        A("v_bitop3_b32 v16, v16, v17, v24 bitop3:0xa8")
        A("v_cmp_ne_u32 vcc, 0, v16")
        A(f"s_cbranch_vccnz L_vr{k}")
        A.label(f"L_vd{k}")
        n0 = len(A.L)
        A.label(f"L_vr{k}")
        A(f"s_cmp_gt_u32 s{sCNT}, {SPIN_MAX}")
        A(f"s_cbranch_scc1 L_vd{k}")
        issue_xh(b)
        A(f"s_add_u32 s{sCNT}, s{sCNT}, 1")
        A("s_waitcnt vmcnt(0)")
        A(f"s_branch L_v{k}")
        retry_code.extend(A.L[n0:])
        del A.L[n0:]

    def flush_retry():
        A.L.extend(retry_code)
        retry_code.clear()

    def bb_tag(q):
        if q == 2:
            epoch_fin()
            tag_regs(20, 16)
            A("v_mov_b32 v24, 0x80008000")
            A(f"s_mov_b32 s{sCNT}, 0")

    A.head("x")
    A.label("L_xh")
    tsn[0] = ts_base
    A("v_lshrrev_b32 v2, 3, v1")
    A("v_and_b32 v3, 7, v1")
    A("v_lshrrev_b32 v4, 4, v1")
    A("v_xor_b32 v3, v3, v4")
    A("v_lshlrev_b32 v3, 4, v3")
    A("v_mul_u32_u24 v4, 1152, v2")
    A("v_add_u32 v8, v4, v3")
    A("v_xor_b32 v5, 64, v8")
    A(f"v_add_u32 v9, {8*1152 - 1024}, v5")
    A(f"v_add_u32 v10, {16*1152 - 2048}, v8")
    A(f"v_add_u32 v11, {24*1152 - 3072}, v5")
    A(f"s_mul_i32 s{sXB}, s{sMT}, {64*1152}")
    rot_setup(sXB, 128)

    def x_touch_pre(st0):
        A(f"s_mul_i32 s{sT0}, s{sI}, 22")
        A("v_and_b32 v12, 31, v1")
        A(f"v_add_u32 v12, s{sT0}, v12")
        A("v_min_u32 v12, 63, v12")
        A("v_mul_u32_u24 v12, 1152, v12")
        A("v_lshrrev_b32 v13, 5, v1")
        A("v_lshl_add_u32 v12, v13, 7, v12")
        A("s_mov_b32 exec_lo, 0x3fffff")
        A(f"s_mov_b32 exec_hi, {0x3fffff if cfg.wt > st0 + 1 else 0}")

    def x_touch(st0):
        A(f"buffer_load_dword v255, v12, s[{SRD0}:{SRD0+3}], s{sXB} offen offset:{128*st0}")
        A("s_mov_b64 exec, -1")
    if cfg.wt:
        x_touch_pre(0)
    A("s_waitcnt lgkmcnt(0)")
    if cfg.ts0:
        stamp()
    srd(SRD0, sX, 589824)
    if cfg.wt:
        x_touch(0)
    nbx = lambda b: 8 if b["kind"] == "X" else 4
    loader_stream(("X", "H1", "H2"), nbx, issue_xh, lambda: h_setup(0), cfg.capx, validate=validate, before_bar=bb_tag, role="x")
    if TS:
        A(f"s_mov_b32 s{sTS+24}, s{sCNT}")
    A("s_branch L_reduce")
    flush_retry()
    ts_max = max(ts_max, tsn[0])

    A.head("h2")
    A.label("L_h2")
    tsn[0] = ts_base
    if cfg.wt > 2:
        A(f"s_mul_i32 s{sXB}, s{sMT}, {64*1152}")
        x_touch_pre(2)
    A("s_waitcnt lgkmcnt(0)")
    if cfg.wt > 2:
        srd(SRD0, sX, 589824)
        x_touch(2)
    srd(SRD1, sWS, 0x10000000)
    if cfg.hpre == 3:
        A("v_lshlrev_b32 v3, 7, v1")
        A(f"s_mul_i32 s{sT1}, s{sWK}, 24576")
        for c in range(3):
            A(f"buffer_load_dword v255, v3, s[{SRD1}:{SRD1+3}], s{sT1} offen")
            A(f"s_add_u32 s{sT1}, s{sT1}, 8192")

    def w7_touch():
        st = list(range(cfg.ta, cfg.ta + cfg.tn))
        srd(SRD0, sX, 589824)
        srd(SRD2, sW1, 5308416)
        A(f"s_mul_i32 s{sXB}, s{sMT}, {64*1152}")
        A(f"s_mul_i32 s{sT0}, s{sI}, 22")
        A("v_and_b32 v2, 31, v1")
        A(f"v_add_u32 v2, s{sT0}, v2")
        A("v_min_u32 v2, 63, v2")
        A("v_mul_u32_u24 v2, 1152, v2")
        A("v_lshrrev_b32 v4, 5, v1")
        A("v_lshl_add_u32 v2, v4, 7, v2")
        A("v_and_b32 v3, 7, v1")
        A("v_lshl_add_u32 v3, v4, 6, v3")
        A("v_mul_u32_u24 v3, 9216, v3")
        A("v_bfe_u32 v4, v1, 3, 2")
        A("v_lshl_add_u32 v3, v4, 7, v3")
        A(f"s_mul_i32 s{sT0}, s{sMT}, {8*9216}")
        A(f"s_mul_i32 s{sT1}, s{sJ}, 1152")
        A(f"s_add_u32 s{sT0}, s{sT0}, s{sT1}")
        A(f"s_mul_i32 s{sT1}, s{sI}, 384")
        A(f"s_add_u32 s{sT0}, s{sT0}, s{sT1}")
        for p in range(0, len(st), 2):
            two = p + 1 < len(st)
            A(f"s_add_u32 s{sT1}, s{sT0}, {st[p]*64*9216}")
            A("s_mov_b32 exec_lo, 0xffffff")
            A(f"s_mov_b32 exec_hi, {0xffffff if two else 0}")
            A(f"buffer_load_dword v255, v3, s[{SRD2}:{SRD2+3}], s{sT1} offen")
            A("s_mov_b32 exec_lo, 0x3fffff")
            A(f"s_mov_b32 exec_hi, {0x3fffff if two else 0}")
            A(f"buffer_load_dword v255, v2, s[{SRD0}:{SRD0+3}], s{sXB} offen offset:{128*st[p]}")
        A("s_mov_b64 exec, -1")
    if cfg.tn and cfg.tpos == 0:
        w7_touch()

    def bb_h2(q):
        if cfg.tn and cfg.tpos == 1 and q == 0:
            A("s_waitcnt lgkmcnt(0)")
            w7_touch()
        if cfg.tn and cfg.tpos >= 2 and q == cfg.tpos - 1:
            w7_touch()
        if cfg.tn and q == 7:
            A("s_waitcnt vmcnt(0)")
        bb_tag(q)
        if q == 2 and (cfg.hpre == 3 or cfg.wt > 2):
            A("s_waitcnt vmcnt(0)")

    HALF[0] = 1
    loader_stream(("H1", "H2"), nbx, issue_xh, lambda: h_setup(1), cfg.capx, validate=validate, before_bar=bb_h2, role="h2")
    stamp_flush()
    A("s_branch L_end")
    flush_retry()

    A.tail("red")
    A.label("L_reduce")
    tsn[0] = ts_max
    srd(SRD1, sWS, 0x10000000)
    sC = sT4
    A(f"s_sub_u32 s{sC}, s{sWV}, 4")
    A("v_lshlrev_b32 v2, 4, v1")
    A(f"s_lshl_b32 s{sT2}, s{sC}, 7")
    A(f"s_mul_i32 s{sT1}, s{sI}, 384")
    A(f"s_add_u32 s{sT2}, s{sT2}, s{sT1}")
    A("v_lshrrev_b32 v3, 5, v1")
    A("v_bfe_u32 v4, v1, 3, 2")
    A("v_lshlrev_b32 v4, 5, v4")
    A("v_lshl_add_u32 v8, v3, 4, v4")
    A("v_lshl_add_u32 v3, v3, 3, v4")
    srd(SRD0, sB2, 1152)
    A(f"buffer_load_dwordx2 v[4:5], v3, s[{SRD0}:{SRD0+3}], s{sT2} offen")
    A(f"buffer_load_dwordx2 v[6:7], v3, s[{SRD0}:{SRD0+3}], s{sT2} offen offset:16")
    A(f"s_lshl_b32 s{sT1}, s{sJ}, 3")
    A(f"s_lshl_b32 s{sT3}, s{sMT}, 6")
    A(f"s_add_u32 s{sT1}, s{sT1}, s{sT3}")
    A(f"s_mul_i32 s{sT1}, s{sT1}, 1152")
    A(f"s_add_u32 s{sT2}, s{sT2}, s{sT1}")
    A("v_and_b32 v9, 7, v1")
    A("v_mul_u32_u24 v9, 1152, v9")
    A("v_add_u32 v8, v8, v9")
    tag_regs(20, 16)
    A(f"s_mul_i32 s{sT0}, s{sWK}, {8*3072}")
    A(f"s_lshl_b32 s{sT1}, s{sC}, 10")
    A(f"s_add_u32 s{sT0}, s{sT0}, s{sT1}")
    A(f"s_add_u32 s{sT0}, s{sT0}, {WS_IN}")
    A("v_mov_b32 v14, 0")
    A("s_waitcnt vmcnt(0)")
    for k in range(4):
        A(f"v_lshlrev_b32 v{24+2*k}, 16, v{4+k}")
        A(f"v_and_b32 v{25+2*k}, 0xffff0000, v{4+k}")
    sP = sT5
    A(f"s_mov_b32 s{sP}, 0xff")
    A(f"s_mov_b32 s{sCNT}, 0")
    srd(SRD0, sOUT, 589824)
    if cfg.rfast:
        for s_ in range(1, 8):
            A(f"s_add_u32 s{79+s_}, s{sT0}, {3072*s_}") if not TS else None
    if cfg.rbar:
        A("s_barrier")
    stamp()
    enc("rbar")
    if cfg.rfast:
        for s_ in range(8):
            so = sT0 if s_ == 0 else 79 + s_
            if TS and s_:
                A(f"s_add_u32 s{sT1}, s{sT0}, {3072*s_}")
                so = sT1
            A(f"buffer_load_dwordx4 v[{32+4*s_}:{35+4*s_}], v2, s[{SRD1}:{SRD1+3}], s{so} offen {cfg.rfl}")
        for s_ in range(8):
            r = 32 + 4 * s_
            A(f"s_waitcnt vmcnt({7-s_})")
            for k in range(4):
                if s_ == 0 and k == 0:
                    A(f"v_xor_b32 v9, v{r}, v20")
                else:
                    A(f"v_bitop3_b32 v9, v9, v{r+k}, v{20+k} bitop3:0xf6")
                A(f"v_lshlrev_b32 v{10+2*(k&1)}, 16, v{r+k}")
                A(f"v_and_b32 v{11+2*(k&1)}, 0xffff0000, v{r+k}")
                A(f"v_pk_add_f32 v[{24+2*k}:{25+2*k}], v[{24+2*k}:{25+2*k}], v[{10+2*(k&1)}:{11+2*(k&1)}]")
        A("v_and_b32 v9, 0x10001, v9")
        A("v_cmp_ne_u32 vcc, 0, v9")
        A("s_cbranch_vccz L_rdone")
        for k in range(4):
            A(f"v_lshlrev_b32 v{24+2*k}, 16, v{4+k}")
            A(f"v_and_b32 v{25+2*k}, 0xffff0000, v{4+k}")
        A("s_branch L_rchk")
    A.label("L_rpoll")
    for s_ in range(8):
        A(f"s_bitcmp0_b32 s{sP}, {s_}")
        A(f"s_cbranch_scc1 L_rl{s_}")
        A(f"s_add_u32 s{sT1}, s{sT0}, {3072*s_}")
        A(f"buffer_load_dwordx4 v[{32+4*s_}:{35+4*s_}], v2, s[{SRD1}:{SRD1+3}], s{sT1} offen {cfg.rfl}")
        A.label(f"L_rl{s_}")
    A("s_waitcnt vmcnt(0)")
    A.label("L_rchk")
    A(f"s_add_u32 s{sCNT}, s{sCNT}, 1")
    for s_ in range(8):
        r = 32 + 4 * s_
        A(f"s_bitcmp0_b32 s{sP}, {s_}")
        A(f"s_cbranch_scc1 L_ra{s_}")
        A(f"v_xor_b32 v9, v{r}, v20")
        for k in range(1, 4):
            A(f"v_bitop3_b32 v9, v9, v{r+k}, v{20+k} bitop3:0xf6")
        A("v_and_b32 v9, 0x10001, v9")
        A("v_cmp_ne_u32 vcc, 0, v9")
        A(f"s_cbranch_vccnz L_ra{s_}")
        A(f"s_bitset0_b32 s{sP}, {s_}")
        for k in range(4):
            A(f"v_lshlrev_b32 v10, 16, v{r+k}")
            A(f"v_and_b32 v11, 0xffff0000, v{r+k}")
            A(f"v_pk_add_f32 v[{24+2*k}:{25+2*k}], v[{24+2*k}:{25+2*k}], v[10:11]")
        A.label(f"L_ra{s_}")
    A(f"s_cmp_gt_u32 s{sCNT}, {SPIN_MAX}")
    A("s_cbranch_scc1 L_rdone")
    A(f"s_cmp_lg_u32 s{sP}, 0")
    A("s_cbranch_scc1 L_rpoll")
    A.label("L_rdone")
    stamp()
    enc("rdone")
    for k in range(4):
        A(f"v_cvt_pk_bf16_f32 v{24+k}, v{24+2*k}, v{25+2*k}")
    A("s_nop 1")
    A("v_permlane32_swap_b32 v24, v26")
    A("v_permlane32_swap_b32 v25, v27")
    A(f"s_or_b32 s{sT0}, s{sJ}, s{sI}")
    A(f"s_or_b32 s{sT0}, s{sT0}, s{sC}")
    A(f"buffer_store_dwordx4 v[24:27], v8, s[{SRD0}:{SRD0+3}], s{sT2} offen {cfg.ofl}")
    A(f"s_cmp_lg_u32 s{sT0}, 0")
    A("s_cbranch_scc1 L_noep")
    A(f"v_mov_b32 v16, s{sTAG}")
    A(f"s_lshl_b32 s{sT0}, s{sMT}, 7")
    A(f"s_add_u32 s{sT0}, s{sT0}, {WS_EP}")
    A("s_mov_b64 exec, 1")
    A(f"buffer_store_dword v16, v14, s[{SRD1}:{SRD1+3}], s{sT0} offen sc1")
    A("s_mov_b64 exec, -1")
    A.label("L_noep")
    if cfg.enc:
        if cfg.enc == "end":
            A("s_waitcnt vmcnt(0)")
            enc("end")
        A(f"s_cmp_lg_u32 s{sWV}, {cfg.encw}")
        A("s_cbranch_scc1 L_end")
        A("s_waitcnt lgkmcnt(0)")
        A("s_sub_u32 s94, s94, s96")
        A("s_mul_i32 s94, s94, 2")
        A("s_add_u32 s94, s94, 3000")
        A.label("L_dly")
        A("s_memrealtime s[98:99]")
        A("s_waitcnt lgkmcnt(0)")
        A("s_sub_u32 s98, s98, s96")
        A("s_cmp_lt_u32 s98, s94")
        A("s_cbranch_scc1 L_dly")
    if TS:
        A("s_waitcnt vmcnt(0)")
        stamp()
        A("s_memrealtime s[98:99]")
        A("s_waitcnt lgkmcnt(0)")
        A(f"s_mov_b32 s{sTS+26}, s96"); A(f"s_mov_b32 s{sTS+28}, s98"); A(f"s_mov_b32 s{sTS+30}, s{sCNT}")
        assert tsn[0] <= 12
        tsn[0] = 16
        stamp_flush()
    A("s_branch L_end")

    A.head("c")
    A.label("L_compute")
    tsn[0] = ts_base
    vACC, vAB, vXB, vT = 16, 64, 96, 240
    nAB = D + 1
    vA, vBX, vBH, vHW = [2, 3, 4], [5, 6, 7, 8], [9, 10, 11], [12, 13, 14]
    vTG, vL16 = vT + 11, vT + 10
    assert vAB + 4 * nAB <= vXB
    sA, sBq = sT4, sT5
    A(f"s_and_b32 s{sA}, s{sWV}, 1")
    A(f"s_lshr_b32 s{sBq}, s{sWV}, 1")
    A(f"v_lshrrev_b32 v{vT}, 5, v1")
    A(f"s_mul_i32 s60, s{sJ}, 1152")
    A(f"s_mul_i32 s{sT1}, s{sI}, 384")
    A(f"s_add_u32 s60, s60, s{sT1}")
    A(f"s_lshl_b32 s{sT1}, s{sBq}, 6")
    A(f"s_add_u32 s61, s60, s{sT1}")
    A(f"v_lshlrev_b32 v{vT+4}, 3, v{vT}")
    if cfg.sa:
        A(f"s_add_u32 s{sT3}, s{sWV}, 1")
        A(f"v_and_b32 v{vT+5}, 7, v1")
        A(f"v_mul_u32_u24 v{vT+5}, 9216, v{vT+5}")
        A(f"v_lshrrev_b32 v{vT+6}, 3, v1")
        A(f"v_min_u32 v{vT+6}, 2, v{vT+6}")
        A(f"v_lshl_add_u32 v{vT+5}, v{vT+6}, 7, v{vT+5}")
        A(f"s_lshl_b32 s{sT1}, s{sT3}, 3")
        A(f"s_add_u32 s{sT1}, s{sT1}, s{sMT}")
        A(f"s_mul_i32 s{sT1}, s{sT1}, {8*9216}")
        A(f"s_add_u32 s{sT1}, s{sT1}, s60")
        A(f"s_mul_i32 s{sT2}, s{sI}, 22")
        A(f"v_min_u32 v{vT+6}, 21, v1")
        A(f"v_add_u32 v{vT+6}, s{sT2}, v{vT+6}")
        A(f"v_min_u32 v{vT+6}, 63, v{vT+6}")
        A(f"v_mul_u32_u24 v{vT+6}, 1152, v{vT+6}")
        A(f"s_mul_i32 s{sT2}, s{sMT}, {64*1152}")
        A(f"s_lshl_b32 s{sT3}, s{sT3}, 7")
        A(f"s_add_u32 s{sT2}, s{sT2}, s{sT3}")
    A("s_waitcnt lgkmcnt(0)")
    srd(SRD0, sB1, 9216)
    for l in range(3):
        for g in range(4):
            r = vXB + 2 * (4 * l + g)
            A(f"buffer_load_dwordx2 v[{r}:{r+1}], v{vT+4}, s[{SRD0}:{SRD0+3}], s61 offen offset:{128*l+16*g}")
    if cfg.sa:
        srd(SRD1, sW1, 5308416)
        srd(SRD2, sX, 589824)
        A(f"s_cmp_ge_u32 s{sWV}, {cfg.sa}")
        A("s_cbranch_scc1 L_tdone")
        A(f"buffer_load_dword v255, v{vT+5}, s[{SRD1}:{SRD1+3}], s{sT1} offen {cfg.tfl}")
        A(f"buffer_load_dword v255, v{vT+6}, s[{SRD2}:{SRD2+3}], s{sT2} offen")
        A.label("L_tdone")
    epoch_load(sMT)
    A.tail("c")
    srd(SRD1, sWS, 0x10000000)
    A(f"v_bfe_u32 v{vT+1}, v1, 2, 2")
    A(f"v_lshl_add_u32 v{vT+2}, v{vT}, 2, v{vT+1}")
    A(f"v_lshlrev_b32 v{vT+2}, 7, v{vT+2}")
    A(f"v_bfe_u32 v{vT+3}, v1, 3, 1")
    A(f"v_xor_b32 v{vT+3}, s{sBq}, v{vT+3}")
    A(f"v_lshl_add_u32 v{vT+2}, v{vT+3}, 6, v{vT+2}")
    A(f"v_bfe_u32 v{vT+3}, v1, 4, 1")
    A(f"v_lshl_add_u32 v{vT+2}, v{vT+3}, 5, v{vT+2}")
    A(f"v_and_b32 v{vT+3}, 3, v1")
    A(f"v_lshl_add_u32 v{vA[0]}, v{vT+3}, 3, v{vT+2}")
    A(f"v_add_u32 v{vA[1]}, 0x10000, v{vA[0]}")
    A(f"v_add_u32 v{vA[2]}, 0x20000, v{vA[0]}")
    A(f"v_and_b32 v{vT+1}, 31, v1")
    A(f"v_bfe_u32 v{vT+2}, v1, 1, 3")
    A(f"v_xor_b32 v{vT+2}, v{vT}, v{vT+2}")
    A(f"v_lshlrev_b32 v{vT+2}, 4, v{vT+2}")
    A(f"v_lshl_add_u32 v{vT+2}, v{vT+1}, 7, v{vT+2}")
    A(f"s_lshl_b32 s{sT0}, s{sA}, 12")
    A(f"s_add_u32 s{sT1}, s{sT0}, 0x20000")
    A(f"v_add_u32 v{vBX[0]}, s{sT1}, v{vT+2}")
    for sp in range(1, 4):
        A(f"v_xor_b32 v{vBX[sp]}, {32*sp}, v{vBX[0]}")
    A(f"v_lshl_add_u32 v{vBH[0]}, v1, 4, s{sT0}")
    A(f"v_add_u32 v{vBH[1]}, 0x10000, v{vBH[0]}")
    A(f"v_add_u32 v{vBH[2]}, 0x20000, v{vBH[0]}")
    A(f"s_lshl_b32 s{sT1}, s{sBq}, 11")
    for k in range(3):
        A(f"v_add_u32 v{vHW[k]}, s{sT1}, v{vBH[k]}")
    sI0 = 38
    sMS, sML, sMC = 39, 63, 59
    sHS = [60, 61, 62]
    A(f"s_mul_i32 s{sI0}, s{sA}, 96")
    A(f"s_add_u32 s{sI0}, s{sI0}, s{sR}")
    A(f"s_lshl_b32 s{sI0}, s{sI0}, 3")
    A(f"s_add_u32 s{sI0}, s{sI0}, s{sJ}")
    A(f"s_mul_i32 s{sI0}, s{sI0}, 3072")
    A(f"s_add_u32 s{sI0}, s{sI0}, {WS_IN}")
    A(f"s_lshl_b32 s{sT1}, s{sBq}, 8")
    A(f"s_add_u32 s{sI0}, s{sI0}, s{sT1}")
    A(f"v_bfe_u32 v{vT+1}, v1, 3, 2")
    A(f"v_mul_u32_u24 v{vT+1}, {24*8*3072}, v{vT+1}")
    A(f"v_and_b32 v{vT+2}, 7, v1")
    A(f"v_lshl_add_u32 v{vT+1}, v{vT+2}, 4, v{vT+1}")
    A(f"v_lshl_add_u32 v{vL16}, v{vT}, 9, v{vT+1}")
    A(f"s_mov_b32 s{sMS}, 0x80008000")
    A(f"s_mov_b32 s{sML}, 0x00010001")
    A(f"s_mov_b32 s{sMC}, 0x7fff7fff")
    A(f"s_mul_i32 s{sHS[0]}, s{sWK}, 24576")
    if WS_H:
        A(f"s_add_u32 s{sHS[0]}, s{sHS[0]}, {WS_H}")
    A(f"s_add_u32 s{sHS[1]}, s{sHS[0]}, 8192")
    A(f"s_add_u32 s{sHS[2]}, s{sHS[0]}, 16384")
    epoch_fin()
    tag_regs(vTG, vT + 1)
    A("s_waitcnt vmcnt(0)" if not cfg.sa else "s_waitcnt vmcnt(2)")
    if cfg.sa:
        A(f"s_cmp_lt_u32 s{sWV}, {cfg.sa}")
        A("s_cbranch_scc1 L_bw")
        A("s_waitcnt vmcnt(0)")
        A.label("L_bw")
    for l in range(3):
        for g in range(4):
            r = vXB + 2 * (4 * l + g)
            d = vACC + 16 * l + 4 * g
            A(f"v_lshlrev_b32 v{d}, 16, v{r}")
            A(f"v_and_b32 v{d+1}, 0xffff0000, v{r}")
            A(f"v_lshlrev_b32 v{d+2}, 16, v{r+1}")
            A(f"v_and_b32 v{d+3}, 0xffff0000, v{r+1}")
    stamp()

    items = []
    for st in stages:
        bykb = {}
        for u in st["units"]:
            bykb.setdefault(u[2], []).append(u)
        for kb, us in bykb.items():
            for sp in range(4):
                for (t, wb, _kb, fst) in us:
                    items.append(dict(q=st["q"], tile=t, wb=wb, kb=kb, sp=sp, first=(fst and sp == 0)))
    NI = len(items)
    last_item = {}
    for n, it in enumerate(items):
        last_item[it["q"]] = n
    bread_of = {(st["q"], kb): bb for st in stages for (bb, kb) in st["breads"]}
    lg = []

    def ds_issue(instr, tag):
        cap = 11 if TS else 15
        if len(lg) >= cap:
            A(f"s_waitcnt lgkmcnt({cap-2})")
            del lg[:len(lg) - (cap - 2)]
        A(instr)
        lg.append(tag)

    def ds_need(tags):
        idx = max([i for i, t in enumerate(lg) if t in tags], default=-1)
        if idx >= 0:
            A(f"s_waitcnt lgkmcnt({len(lg) - 1 - idx})")
            del lg[:idx + 1]

    checked = [-1]
    bdone = set()
    dirty, clean_pos = {}, {}

    def clean(m):
        key = (items[m]["kb"], items[m]["sp"])
        if key in dirty and dirty[key] == m:
            del dirty[key]
            ds_need({("B",) + key})
            r = vXB + 16 * key[0] + 4 * key[1]
            for k in range(4):
                A(f"v_and_b32 v{r+k}, s{sMC}, v{r+k}")
            clean_pos[m] = len(A.L) - 1

    def issue_reads(n):
        it = items[n]
        q = it["q"]
        if q > checked[0]:
            ds_need({"hw"})
            A("s_barrier")
            checked[0] = q
            if q in cfg.tsq:
                stamp()
        key = (q, it["kb"])
        if key in bread_of and (key, it["sp"]) not in bdone:
            bdone.add((key, it["sp"]))
            bb = blocks[bread_of[key]]
            addr = bb["slot"] * 8192
            r = vXB + 16 * it["kb"] + 4 * it["sp"]
            if bb["kind"] == "X":
                assert addr >> 16 == 2
                ds_issue(f"ds_read_b128 v[{r}:{r+3}], v{vBX[it['sp']]} offset:{addr & 0xffff}", ("B", it["kb"], it["sp"]))
            else:
                ds_issue(f"ds_read_b128 v[{r}:{r+3}], v{vBH[addr >> 16]} offset:{(addr & 0xffff) + 1024*it['sp']}",
                         ("B", it["kb"], it["sp"]))
                if bb["kind"] != "Hown":
                    dirty[(it["kb"], it["sp"])] = n
        wb = blocks[it["wb"]]
        addr = wb["slot"] * 8192 + 2048 * it["sp"]
        r = vAB + 4 * (n % nAB)
        ds_issue(f"ds_read_b64_tr_b16 v[{r}:{r+1}], v{vA[addr >> 16]} offset:{addr & 0xffff}", ("A", n))
        ds_issue(f"ds_read_b64_tr_b16 v[{r+2}:{r+3}], v{vA[addr >> 16]} offset:{(addr & 0xffff) + 1024}", ("A", n))

    post = []

    def epi1_instrs(pi, lines):
        out, late = [], []
        for l in lines:
            a = vACC + 16 * l
            addr = blocks[f"H0_{l}"]["slot"] * 8192
            for half in range(2):
                base = a + 8 * half
                for k in range(8):
                    out.append(("v", f"v_max_f32 v{base+k}, 0, v{base+k}"))
                for k in range(0, 8, 2):
                    out.append(("v", f"v_pk_mul_f32 v[{base+k}:{base+k+1}], v[{base+k}:{base+k+1}], v[{base+k}:{base+k+1}]"))
                for k in range(4):
                    out.append(("v", f"v_cvt_pk_bf16_f32 v{base+k}, v{base+2*k}, v{base+2*k+1}"))
                for k in range(4):
                    out.append(("v", f"v_and_or_b32 v{base+4+k}, v{vTG+k}, s{sMS}, v{base+k}"))
                out.append(("v", f"buffer_store_dwordx4 v[{base+4}:{base+7}], v{vHW[0]}, s[{SRD1}:{SRD1+3}], s{sHS[l]} offen offset:{1024*half} {cfg.hsf}"))
                out.append(("w", f"ds_write_b128 v{vHW[addr >> 16]}, v[{base}:{base+3}] offset:{(addr & 0xffff) + 1024*half}"))
                t = ("v", f"buffer_load_dword v255, v{vHW[0]}, s[{SRD1}:{SRD1+3}], s{sHS[l]} offen offset:{1024*half} {cfg.stf}")
                if cfg.stouch == 1:
                    out.append(t)
                elif cfg.stouch == 2:
                    late.append(t)
                elif cfg.stouch == 3:
                    post.append(t)
        return out + late

    def epi2_instrs(lines):
        out = []
        for l in lines:
            for u in range(2):
                base = vACC + 8 * (2 * l + u)
                for k in range(4):
                    out.append(("v", f"v_cvt_pk_bf16_f32 v{base+k}, v{base+2*k}, v{base+2*k+1}"))
                for k in range(4):
                    out.append(("v", f"v_bfi_b32 v{base+k}, s{sML}, v{vTG+k}, v{base+k}"))
                out.append(("v", f"buffer_store_dwordx4 v[{base}:{base+3}], v{vL16}, s[{SRD1}:{SRD1+3}], s{sI0} offen offset:{1024*l+128*u} sc1"))
        return out

    fillers = []
    fill_start = 0
    fill_tiles = set()
    mfma_pos = {}
    fill_fresh = [False]

    def states_since(pos):
        c = 0
        for ln in A.L[pos + 1:]:
            t = ln.strip()
            if t.endswith(":") or t.startswith(";") or t.startswith("@@"):
                continue
            c += int(t.split()[1]) + 1 if t.startswith("s_nop") else 1
        return c

    def emit(kind, t):
        if fill_fresh[0]:
            fill_fresh[0] = False
            have = min(states_since(mfma_pos[tl]) for tl in fill_tiles)
            if have < 12:
                A(f"s_nop {12 - have - 1}")
        if kind == "w":
            ds_issue(t, "hw")
        else:
            A(t)

    def flush_fillers():
        nonlocal fillers
        for (kind, t) in fillers:
            emit(kind, t)
        fillers = []
        fill_tiles.clear()

    nread = 0
    for n in range(NI):
        it = items[n]
        lim = min(NI - 1, n + D)
        while nread <= lim:
            nx = items[nread]
            if nx["q"] > checked[0]:
                due = [l for l, v in hown_vis.items() if v == nx["q"]]
                if due:
                    if last_item[hown_w[due[0]]] >= n:
                        break
                    flush_fillers()
            key = (nx["q"], nx["kb"])
            if key in bread_of and (key, nx["sp"]) not in bdone:
                if any(items[m]["kb"] == nx["kb"] and items[m]["sp"] == nx["sp"] for m in range(n, nread)):
                    break
            issue_reads(nread)
            nread += 1
        assert nread > n
        if it["tile"] in fill_tiles:
            flush_fillers()
            A("s_nop 1")
        clean(n)
        ds_need({("A", n), ("B", it["kb"], it["sp"])})
        if it["first"]:
            ds_need({"hw"})
        if n in clean_pos and states_since(clean_pos[n]) < 2:
            A(f"s_nop {1 - states_since(clean_pos[n])}")
        ra = vAB + 4 * (n % nAB)
        rb = vXB + 16 * it["kb"] + 4 * it["sp"]
        acc = vACC + 16 * it["tile"]
        c = "0" if it["first"] else f"v[{acc}:{acc+15}]"
        A(f"v_mfma_f32_32x32x16_bf16 v[{acc}:{acc+15}], v[{ra}:{ra+3}], v[{rb}:{rb+3}], {c}")
        mfma_pos[it["tile"]] = len(A.L) - 1
        if n + 1 < nread:
            clean(n + 1)
        k = 0
        while fillers and k < cfg.fill and n >= fill_start:
            kind, t = fillers.pop(0)
            emit(kind, t)
            k += 1
        if not fillers:
            fill_tiles.clear()
            if post and it["q"] >= n_g1 and (n - last_item[n_g1 - 1]) >= cfg.stdel:
                A(post.pop(0)[1])
        if n == last_item[it["q"]]:
            q = it["q"]
            new = []
            if q in epi_after:
                new, tl = epi1_instrs(*epi_after[q]), epi_after[q][1]
            elif q in epi2_after:
                new, tl = epi2_instrs(epi2_after[q]), epi2_after[q]
            if new:
                stamp()
                flush_fillers()
                fillers = new
                fill_tiles.update(tl)
                fill_fresh[0] = True
                fill_start = n + 3
    flush_fillers()
    stamp()
    if cfg.rbar:
        A(f"s_waitcnt vmcnt({cfg.rbar-1})")
        A("s_barrier")
    if TS:
        A("s_waitcnt vmcnt(0)")
        stamp()
        stamp_flush()
    A("s_branch L_end")

    A.head("hl")
    A.label("L_helper")
    sG = 38
    A(f"s_lshl_b32 s{sG}, s{sWV}, 3")
    A(f"s_add_u32 s{sG}, s{sG}, s{sR}")
    A("v_mul_u32_u24 v8, 9216, v1")
    A("v_mul_u32_u24 v9, 1152, v1")
    A(f"s_mul_i32 s39, s{sJ}, 1152")
    A("s_waitcnt lgkmcnt(0)")
    NWT = 64

    def sdiv(dst, src, d):
        A(f"s_mul_i32 s{dst}, s{src}, {(65536 + d - 1) // d}")
        A(f"s_lshr_b32 s{dst}, s{dst}, 16")

    w2base = 0
    if cfg.touch and any(ROT):
        srd(SRD0, sW1, 5308416)
        srd(SRD1, sX, 589824)
        need = {kk: min((kk - r) % 9 for r in ROT) for kk in range(9)}
        kks = sorted([kk for kk in range(9) if need[kk] >= cfg.skipw], key=lambda kk: need[kk])
        KT = sum(kk << (4 * u) for u, kk in enumerate(kks))
        nW = 9 * len(kks)
        x0 = cfg.skipx
        nX = 8 * (9 - x0)
        tot = nW + nX
        for rnd in range((tot + NWT - 1) // NWT):
            if rnd == 1:
                A.tail("hl")
            k = A.uid()
            A(f"s_add_u32 s{sT0}, s{sG}, {NWT*rnd}")
            if NWT * rnd < nW:
                if NWT * rnd + NWT > nW:
                    A(f"s_cmp_ge_u32 s{sT0}, {nW}")
                    A(f"s_cbranch_scc1 L_hx{k}")
                sdiv(sT1, sT0, 9)
                A(f"s_mul_i32 s{sT2}, s{sT1}, 9")
                A(f"s_sub_u32 s{sT2}, s{sT0}, s{sT2}")
                A(f"s_lshl_b32 s{sT1}, s{sT1}, 2")
                A(f"s_lshr_b32 s{sT1}, {KT}, s{sT1}")
                A(f"s_and_b32 s{sT1}, s{sT1}, 15")
                A(f"s_mul_i32 s{sT1}, s{sT1}, {64*9216}")
                A(f"s_lshl_b32 s{sT2}, s{sT2}, 7")
                A(f"s_add_u32 s{sT1}, s{sT1}, s{sT2}")
                A(f"s_add_u32 s{sT1}, s{sT1}, s39")
                A(f"buffer_load_dword v255, v8, s[{SRD0}:{SRD0+3}], s{sT1} offen {cfg.tfl}")
                if NWT * rnd + NWT > nW:
                    A(f"s_branch L_ht{k}")
            if NWT * rnd + NWT > nW:
                A.label(f"L_hx{k}")
                if NWT * rnd + NWT > tot:
                    A(f"s_cmp_ge_u32 s{sT0}, {tot}")
                    A(f"s_cbranch_scc1 L_ht{k}")
                A(f"s_sub_u32 s{sT0}, s{sT0}, {nW - 8*x0}")
                A(f"s_and_b32 s{sT2}, s{sT0}, 7")
                A(f"s_lshr_b32 s{sT1}, s{sT0}, 3")
                A(f"s_lshl_b32 s{sT3}, s{sT2}, 2")
                A(f"s_lshr_b32 s{sT3}, {ROTTAB}, s{sT3}")
                A(f"s_and_b32 s{sT3}, s{sT3}, 15")
                A(f"s_add_u32 s{sT1}, s{sT1}, s{sT3}")
                A(f"s_cmp_ge_u32 s{sT1}, 9")
                A(f"s_cselect_b32 s{sT3}, 9, 0")
                A(f"s_sub_u32 s{sT1}, s{sT1}, s{sT3}")
                A(f"s_mul_i32 s{sT2}, s{sT2}, {64*1152}")
                A(f"s_lshl_b32 s{sT1}, s{sT1}, 7")
                A(f"s_add_u32 s{sT1}, s{sT1}, s{sT2}")
                A(f"buffer_load_dword v255, v9, s[{SRD1}:{SRD1+3}], s{sT1} offen")
            A.label(f"L_ht{k}")
        w2base = (NWT - tot % NWT) % NWT
    elif cfg.touch:
        srd(SRD0, sW1, 5308416)
        srd(SRD1, sX, 589824)
        phases, base = [], 0
        for pi, ls in enumerate(passes):
            t0 = cfg.ht0 if pi == 0 else 0
            c = 3 * len(ls) + (8 if pi == 0 else 0)
            phases.append((base, (9 - t0 - cfg.tn) * c, t0, c, ls))
            base += (9 - t0 - cfg.tn) * c
        w2base = (NWT - base % NWT) % NWT if cfg.w2rot else 0
        for rnd in range((base + NWT - 1) // NWT):
            if rnd == 1:
                A.tail("hl")
            k = A.uid()
            A(f"s_add_u32 s{sT0}, s{sG}, {NWT*rnd}")
            for (pb, cnt, t0, c, ls) in phases:
                if pb + cnt <= NWT * rnd or pb >= NWT * rnd + NWT:
                    continue
                k2 = A.uid()
                A(f"s_cmp_ge_u32 s{sT0}, {pb+cnt}")
                A(f"s_cbranch_scc1 L_hp{k2}")
                if pb:
                    A(f"s_sub_u32 s{sT0}, s{sT0}, {pb}")
                sdiv(sT1, sT0, c)
                A(f"s_mul_i32 s{sT2}, s{sT1}, {c}")
                A(f"s_sub_u32 s{sT2}, s{sT0}, s{sT2}")
                if t0:
                    A(f"s_add_u32 s{sT1}, s{sT1}, {t0}")
                if cfg.tn:
                    A(f"s_cmp_ge_u32 s{sT1}, {cfg.ta}")
                    A(f"s_cselect_b32 s{sT3}, {cfg.tn}, 0")
                    A(f"s_add_u32 s{sT1}, s{sT1}, s{sT3}")
                nw = 3 * len(ls)
                if c > nw:
                    A(f"s_cmp_ge_u32 s{sT2}, {nw}")
                    A(f"s_cbranch_scc1 L_hx{k2}")
                if len(ls) != 3:
                    if len(ls) == 1:
                        A(f"s_mul_i32 s{sT2}, s{sT2}, 3")
                    else:
                        A(f"s_lshr_b32 s{sT3}, s{sT2}, 1")
                        A(f"s_add_u32 s{sT2}, s{sT2}, s{sT3}")
                    if ls[0]:
                        A(f"s_add_u32 s{sT2}, s{sT2}, {ls[0]}")
                A(f"s_mul_i32 s{sT1}, s{sT1}, {64*9216}")
                A(f"s_lshl_b32 s{sT2}, s{sT2}, 7")
                A(f"s_add_u32 s{sT1}, s{sT1}, s{sT2}")
                A(f"s_add_u32 s{sT1}, s{sT1}, s39")
                A(f"buffer_load_dword v255, v8, s[{SRD0}:{SRD0+3}], s{sT1} offen {cfg.tfl}")
                A(f"s_branch L_ht{k}")
                if c > nw:
                    A.label(f"L_hx{k2}")
                    A(f"s_sub_u32 s{sT2}, s{sT2}, {nw}")
                    A(f"s_mul_i32 s{sT2}, s{sT2}, {64*1152}")
                    A(f"s_lshl_b32 s{sT1}, s{sT1}, 7")
                    A(f"s_add_u32 s{sT1}, s{sT1}, s{sT2}")
                    A(f"buffer_load_dword v255, v9, s[{SRD1}:{SRD1+3}], s{sT1} offen")
                    A(f"s_branch L_ht{k}")
                A.label(f"L_hp{k2}")
            A.label(f"L_ht{k}")
    def h_pretouch():
        srd(SRD1, sWS, 0x10000000)
        A("v_lshlrev_b32 v10, 7, v1")
        A(f"s_mul_i32 s{sT1}, s{sJ}, 589824")
        for rnd in range(2):
            k = A.uid()
            A(f"s_add_u32 s{sT0}, s{sG}, {NWT*rnd}")
            A(f"s_cmp_ge_u32 s{sT0}, 72")
            A(f"s_cbranch_scc1 L_ht{k}")
            A(f"s_lshl_b32 s{sT0}, s{sT0}, 13")
            A(f"s_add_u32 s{sT0}, s{sT0}, s{sT1}")
            A(f"buffer_load_dword v255, v10, s[{SRD1}:{SRD1+3}], s{sT0} offen")
            A.label(f"L_ht{k}")
    if cfg.hpre == 1:
        h_pretouch()
    if cfg.touch:
        srd(SRD0, sW2, 5308416)
        A(f"s_mul_i32 s39, s{sJ}, 663552")
        korder = sorted(kbidx, key=lambda x: kbidx[x])
        tabD = sum(d << (2 * u) for u, (d, lk) in enumerate(korder))
        tabL = sum(lk << (2 * u) for u, (d, lk) in enumerate(korder))
        if w2base:
            A(f"s_add_u32 s{sG}, s{sG}, {w2base}")
            A(f"s_and_b32 s{sG}, s{sG}, 63")
        for rnd in range(2):
            k = A.uid()
            A(f"s_add_u32 s{sT0}, s{sG}, {NWT*rnd}")
            A(f"s_cmp_ge_u32 s{sT0}, 81")
            A(f"s_cbranch_scc1 L_ht{k}")
            sdiv(sT1, sT0, 9)
            A(f"s_mul_i32 s{sT2}, s{sT1}, 9")
            A(f"s_sub_u32 s{sT2}, s{sT0}, s{sT2}")
            sdiv(sT3, sT2, 3)
            A(f"s_lshl_b32 s{sT1}, s{sT1}, 1")
            A(f"s_lshr_b32 s{sT0}, {tabD}, s{sT1}")
            A(f"s_and_b32 s{sT0}, s{sT0}, 3")
            A(f"s_add_u32 s{sT0}, s{sT0}, s{sT3}")
            A(f"s_cmp_ge_u32 s{sT0}, 3")
            A(f"s_cselect_b32 s{sT3}, 3, 0")
            A(f"s_sub_u32 s{sT0}, s{sT0}, s{sT3}")
            A(f"s_lshr_b32 s{sT3}, {tabL}, s{sT1}")
            A(f"s_and_b32 s{sT3}, s{sT3}, 3")
            A(f"s_mul_i32 s{sT0}, s{sT0}, {192*1152}")
            A(f"s_mul_i32 s{sT3}, s{sT3}, {64*1152}")
            A(f"s_add_u32 s{sT0}, s{sT0}, s{sT3}")
            A(f"s_lshl_b32 s{sT2}, s{sT2}, 7")
            A(f"s_add_u32 s{sT0}, s{sT0}, s{sT2}")
            A(f"s_add_u32 s{sT0}, s{sT0}, s39")
            A(f"buffer_load_dword v255, v9, s[{SRD0}:{SRD0+3}], s{sT0} offen {cfg.tfl}")
            A.label(f"L_ht{k}")
    if cfg.hpre == 2:
        h_pretouch()
    if TS:
        tsn[0] = 1
        A("s_waitcnt vmcnt(0)")
        stamp()
        stamp()
        stamp_flush()
    A("s_branch L_end")
    A.tail("end")
    A.label("L_end")

    hdr = f"""; Fused MLP (x@w1+b1 -> relu^2 -> @w2+b2), generated by a python script (work/gen4.py)
; @launch grid=(256,1,1) block=(512,1,1) lds=163840
.amdgcn_target "amdgcn-amd-amdhsa--gfx950"
.text
.globl {KN}
.p2align 8
.type {KN},@function
{KN}:
"""
    ftr = f"""
    s_endpgm
.section .rodata,"a"
.p2align 6
.amdhsa_kernel {KN}
  .amdhsa_next_free_vgpr 256
  .amdhsa_next_free_sgpr 102
  .amdhsa_accum_offset 256
  .amdhsa_group_segment_fixed_size 0
  .amdhsa_kernarg_size 64
  .amdhsa_user_sgpr_count 2
  .amdhsa_user_sgpr_kernarg_segment_ptr 1
  .amdhsa_system_sgpr_workgroup_id_x 1
.end_amdhsa_kernel
"""
    return hdr + A.text(cfg.horder.split(","), cfg.torder.split(",") + ["end"]) + ftr


def parse_g2(s):
    out = []
    for stg in s.split(","):
        us = []
        for u in stg.split("+"):
            a, b = u.split(":")
            us.append((int(a[0]), int(a[1]), [int(c) for c in b]))
        out.append(us)
    return out


def ilist(s):
    return [int(x) for x in s.split(",")] if s else []


def main():
    ap = argparse.ArgumentParser()
    ap.add_argument("-o", default="k8.s")
    ap.add_argument("--ts", action="store_true")
    ap.add_argument("--passes", default="012")
    ap.add_argument("--depth", type=int, default=5)
    ap.add_argument("--fill", type=int, default=4)
    ap.add_argument("--grp1", type=int, default=3)
    ap.add_argument("--hres", type=float, default=2.5)
    ap.add_argument("--hearly", type=float, default=1.5)
    ap.add_argument("--hdel", type=int, default=1)
    ap.add_argument("--xfree", type=int, default=11)
    ap.add_argument("--g2", default="00:012,01:012,02:012,10:012,20:012,11:012,21:012,12:012,22:012")
    ap.add_argument("--tsq", default="")
    ap.add_argument("--verbose", action="store_true")
    ap.add_argument("--ahead", type=int, default=8)
    ap.add_argument("--ahead0", type=int, default=8)
    ap.add_argument("--capfrom", type=int, default=8)
    ap.add_argument("--capw", type=int, default=4)
    ap.add_argument("--capx", type=int, default=3)
    ap.add_argument("--burst", default="")
    ap.add_argument("--pause", default="")
    ap.add_argument("--go2lead", type=int, default=3)
    ap.add_argument("--sa", type=int, default=0)
    ap.add_argument("--ctouch", type=int, default=1)
    ap.add_argument("--wfl", default="")
    ap.add_argument("--tfl", default="")
    ap.add_argument("--rfl", default="sc1")
    ap.add_argument("--rsleep", type=int, default=0)
    ap.add_argument("--touch", type=int, default=1)
    ap.add_argument("--clrq", type=int, default=-1)
    ap.add_argument("--cdq", type=int, default=9)
    ap.add_argument("--rbar", type=int, default=0)
    ap.add_argument("--hsf", default="sc1")
    ap.add_argument("--hlf", default="sc1")
    ap.add_argument("--ofl", default="")
    ap.add_argument("--hpre", type=int, default=0)
    ap.add_argument("--rot", default="00000000")
    ap.add_argument("--ts0", type=int, default=0)
    ap.add_argument("--wsb", type=lambda x: int(x, 0), default=0)
    ap.add_argument("--enc", default="")
    ap.add_argument("--encw", type=int, default=4)
    ap.add_argument("--hfree", type=int, default=2)
    ap.add_argument("--stouch", type=int, default=0)
    ap.add_argument("--stdel", type=int, default=1)
    ap.add_argument("--stf", default="")
    ap.add_argument("--ta", type=int, default=0)
    ap.add_argument("--tn", type=int, default=0)
    ap.add_argument("--tpos", type=int, default=0)
    ap.add_argument("--w2rot", type=int, default=1)
    ap.add_argument("--rfast", type=int, default=1)
    ap.add_argument("--wt", type=int, default=0)
    ap.add_argument("--horder", default="w,x,h2,hl,c")
    ap.add_argument("--ht0", type=int, default=1)
    ap.add_argument("--first", type=int, default=4)
    ap.add_argument("--torder", default="hl,w,x,h2,c,red")
    ap.add_argument("--skipw", type=int, default=1)
    ap.add_argument("--skipx", type=int, default=1)
    cfg = ap.parse_args()
    cfg.passes = [[int(c) for c in p] for p in cfg.passes.split(",")]
    cfg.g2 = parse_g2(cfg.g2)
    cfg.tsq, cfg.burst, cfg.pause = ilist(cfg.tsq), ilist(cfg.burst), ilist(cfg.pause)
    open(cfg.o, "w").write(build(cfg))


main()
```

```python
import sys, argparse

KN = "standalone__dense_activation_squared_relu__sampling_kernel"

WS_H = 0x0
WS_IN = 0x1000000
WS_CD = 0x1840000
WS_EP = 0x1850000
WS_TS = 0x8000000
SPIN_MAX = 100000
SGNMASK = 0x6A9956A5


class Asm:
    def __init__(self):
        self.L = []
        self.n = 0

    def __call__(self, s):
        self.L.append("    " + s)

    def label(self, s):
        self.L.append(s + ":")

    def c(self, s):
        self.L.append("    ; " + s)

    def uid(self):
        self.n += 1
        return self.n

    def head(self, role):
        self.L.append(f"@@HEAD {role}")

    def tail(self, role):
        self.L.append(f"@@TAIL {role}")

    def text(self, horder, torder):
        pro, heads, tails, cur = [], {}, {}, None
        cur = pro
        for ln in self.L:
            if ln.startswith("@@HEAD"):
                cur = heads.setdefault(ln.split()[1], [])
            elif ln.startswith("@@TAIL"):
                r = ln.split()[1]
                if r in heads:
                    heads[r].append(f"    s_branch L_tail_{r}")
                cur = tails.setdefault(r, [f"L_tail_{r}:"])
            else:
                cur.append(ln)
        assert sorted(heads) == sorted(horder) and sorted(tails) == sorted(torder), (heads.keys(), tails.keys())
        out = pro
        for r in horder:
            out += heads[r]
        out.append("L_heads_end:")
        for r in torder:
            out += tails[r]
        return "\n".join(out)


def build(cfg):
    global WS_H, WS_IN, WS_EP
    WS_H = cfg.wsb
    WS_IN = cfg.wsb + 0x480000
    WS_EP = cfg.wsb + 0x900000
    A = Asm()
    TS = cfg.ts
    passes = cfg.passes
    D = cfg.depth

    stages, blocks, order = [], {}, []

    def blk(name, **kw):
        blocks[name] = dict(name=name, **kw)
        return name

    def add_stage(units, breads):
        q = len(stages)
        stages.append(dict(units=units, breads=breads, q=q))
        for (bb, _kb) in breads:
            b = blocks[bb]
            b["need"] = b["last"] = q
            if b["kind"] != "Hown":
                order.append(bb)
        for (_t, wb, _kb, _first) in units:
            b = blocks[wb]
            if "need" not in b:
                b["need"] = q
                order.append(wb)
            b["last"] = q
        return q

    epi_after, pass_of_line = {}, {}
    for pi, lines in enumerate(passes):
        grp = 1 if (len(lines) > 1 or pi == 0) else cfg.grp1
        for t0 in range(0, 9, grp):
            units, breads = [], []
            for t in range(t0, t0 + grp):
                if pi == 0:
                    breads.append((blk(f"X{t}", kind="X", t=t), t))
                for l in lines:
                    units.append((l, blk(f"W{t}_{l}", kind="W1", t=t, l=l), t, False))
            q = add_stage(units, breads)
        epi_after[q] = (pi, list(lines))
        for l in lines:
            pass_of_line[l] = pi
    n_g1 = len(stages)
    kbidx = {}
    first = {0: True, 1: True, 2: True}
    cnt2 = {0: 0, 1: 0, 2: 0}
    epi2_after = {}
    for stg in cfg.g2:
        units, breads = [], []
        for (d, lk, lines) in stg:
            if (d, lk) not in kbidx:
                kbidx[(d, lk)] = len(kbidx)
                breads.append((blk(f"H{d}_{lk}", kind="Hown" if d == 0 else f"H{d}", d=d, lk=lk), kbidx[(d, lk)]))
            for l in lines:
                units.append((l, blk(f"V{d}_{lk}_{l}", kind="W2", d=d, lk=lk, l=l), kbidx[(d, lk)], first[l]))
                first[l] = False
                cnt2[l] += 1
        q = add_stage(units, breads)
        done = [l for l in range(3) if cnt2[l] == 9 and not any(l in v for v in epi2_after.values())]
        if done:
            epi2_after[q] = done
    assert all(v == 9 for v in cnt2.values())
    NQ = len(stages)
    hown_w = {l: q for q, (pi, lines) in epi_after.items() for l in lines}
    hown_vis = {l: (q + 1 if q == n_g1 - 1 else q + 2) for l, q in hown_w.items()}
    for l in hown_w:
        assert blocks[f"H0_{l}"]["need"] >= hown_vis[l]
    hfetch = {l: hown_vis[l] + cfg.hdel for l in hown_w}

    free_at = {s: -10 for s in range(20)}
    events = [(blocks[nm]["need"] - (cfg.hearly if blocks[nm]["kind"] in ("H1", "H2") else 0), 1, k, nm) for k, nm in enumerate(order)]
    for l, qw in hown_w.items():
        events.append((qw - cfg.hres, 0, l, f"H0_{l}"))
    events.sort()
    for ev in events:
        b = blocks[ev[3]]
        if b["kind"] == "X":
            cand = [16, 17, 18, 19]
        elif ev[0] < cfg.xfree:
            cand = list(range(0, 16))
        else:
            cand = list(range(0, 20))
        s = min(cand, key=lambda s: (free_at[s], s))
        b["slot"] = s
        b["free"] = free_at[s]
        if b["kind"] == "Hown":
            assert b["free"] + cfg.hfree <= hown_w[b["lk"]], b
        else:
            assert b["free"] + 2 < b["need"], b
        free_at[s] = b["last"]
    if cfg.verbose:
        print(" | ".join(f"{blocks[e[3]]['name']}:s{blocks[e[3]]['slot']} f{blocks[e[3]]['free']} n{blocks[e[3]]['need']}" for e in events), file=sys.stderr)
    for k, nm in enumerate(order):
        blocks[nm]["pos"] = k
    cum = [sum(1 for nm in order if blocks[nm]["need"] <= q) for q in range(NQ)]

    sX, sW1, sB1, sW2, sB2, sOUT, sDBG, sWS = 16, 18, 20, 22, 24, 26, 28, 30
    sJ, sR, sMT, sI, sWV, sWK = 32, 33, 34, 35, 36, 37
    SRD0, SRD1, SRD2 = 40, 44, 48
    sT0, sT1, sT2, sT3, sT4, sT5 = 52, 53, 54, 55, 56, 57
    sCNT = 58
    sTAG, sPB = 6, 8
    sTS = 64
    tsn = [0]

    def stamp():
        if TS:
            k = tsn[0]
            assert k < 16
            A(f"s_memtime s[{sTS+2*k}:{sTS+2*k+1}]")
            tsn[0] += 1

    def srd(d, p, nbytes):
        A(f"s_mov_b32 s{d}, s{p}")
        A(f"s_mov_b32 s{d+1}, s{p+1}")
        A(f"s_mov_b32 s{d+2}, {nbytes}")
        A(f"s_mov_b32 s{d+3}, 0x00020000")

    def stamp_flush():
        if not TS:
            return
        n = tsn[0]
        A("s_waitcnt lgkmcnt(0)")
        srd(SRD2, sWS, 0x10000000)
        A(f"s_lshl_b32 s{sT0}, s2, 9")
        A(f"s_lshl_b32 s{sT1}, s{sWV}, 6")
        A(f"s_add_u32 s{sT0}, s{sT0}, s{sT1}")
        A(f"s_add_u32 s{sT0}, s{sT0}, {WS_TS}")
        A(f"v_mov_b32 v2, s{sT0}")
        A("s_mov_b64 exec, 1")
        for k in range(n):
            A(f"v_mov_b32 v3, s{sTS+2*k}")
            A(f"buffer_store_dword v3, v2, s[{SRD2}:{SRD2+3}], 0 offen offset:{4*k}")
        A("s_mov_b64 exec, -1")

    def epoch_load(smt):
        A(f"s_lshl_b32 s{sT0}, s{smt}, 7")
        A(f"s_add_u32 s{sT0}, s{sT0}, {WS_EP}")
        A(f"s_load_dword s{sTAG}, s[{sWS}:{sWS+1}], s{sT0}")

    def epoch_fin():
        A("s_waitcnt lgkmcnt(0)")
        A(f"s_add_u32 s{sTAG}, s{sTAG}, 1")
        A(f"s_mul_i32 s{sTAG+1}, s{sTAG}, 0x02020202")
        A(f"s_and_b32 s{sTAG+1}, s{sTAG+1}, 0xeeeeeeee")
        A(f"s_or_b32 s{sTAG+1}, s{sTAG+1}, 0x10101010")

    def tag_regs(vd, vt):
        A(f"v_and_b32 v{vt}, 3, v1")
        A(f"v_lshlrev_b32 v{vt}, 3, v{vt}")
        A(f"v_lshrrev_b32 v{vt}, v{vt}, s{sTAG+1}")
        for k in range(4):
            A(f"v_bfe_u32 v{vd+k}, v{vt}, {2*k}, 2")
            A(f"v_mul_u32_u24 v{vd+k}, 0x8001, v{vd+k}")
            A(f"v_and_b32 v{vd+k}, 0x10001, v{vd+k}")
            A(f"v_lshl_or_b32 v{vd+k}, v{vd+k}, 15, v{vd+k}")

    def sign_reg(vd, vt):
        A(f"s_bitcmp1_b32 s{sTAG}, 0")
        A(f"s_cselect_b32 s{sT0}, -1, 0")
        A(f"s_xor_b32 s{sT0}, s{sT0}, {SGNMASK}")
        A(f"v_and_b32 v{vt}, 31, v1")
        A(f"v_lshrrev_b32 v{vt}, v{vt}, s{sT0}")
        A(f"v_bfe_i32 v{vt}, v{vt}, 0, 1")
        A(f"v_and_b32 v{vd}, 0x80008000, v{vt}")

    def sspin(loads, npairs, base):
        k = A.uid()
        A(f"s_mov_b32 s{sCNT}, 0")
        A.label(f"L_s{k}")
        for x in loads:
            A(x)
        A(f"s_add_u32 s{sCNT}, s{sCNT}, 1")
        A("s_waitcnt lgkmcnt(0)")
        A(f"s_cmp_gt_u32 s{sCNT}, {SPIN_MAX}")
        A(f"s_cbranch_scc1 L_sd{k}")
        for n in range(npairs):
            A(f"s_cmp_lg_u64 s[{base+2*n}:{base+2*n+1}], s[{sTAG}:{sTAG+1}]")
            A(f"s_cbranch_scc1 L_s{k}")
        A.label(f"L_sd{k}")

    def mod3add(dst, d, tmp):
        A(f"s_add_u32 s{dst}, s{sI}, {d}")
        A(f"s_cmp_ge_u32 s{dst}, 3")
        A(f"s_cselect_b32 s{tmp}, 3, 0")
        A(f"s_sub_u32 s{dst}, s{dst}, s{tmp}")

    A("s_cmp_ge_u32 s2, 256")
    A("s_cbranch_scc1 L_end")
    A("s_load_dwordx16 s[16:31], s[0:1], 0")
    if cfg.ctouch == 1:
        A("s_getpc_b64 s[4:5]")
        A.label("L_pc")
        A("v_lshlrev_b32 v2, 7, v0")
        A("v_min_u32 v2, L_end-L_pc, v2")
        A("v_and_b32 v2, 0xfffffffc, v2")
        A("global_load_dword v255, v2, s[4:5]")
    elif cfg.ctouch == 2:
        A("s_getpc_b64 s[4:5]")
        A.label("L_pc")
        A("s_lshr_b32 s3, s2, 3")
        A("s_lshl_b32 s3, s3, 11")
        A("v_lshrrev_b32 v2, 5, v0")
        A("v_lshl_add_u32 v2, v2, 7, s3")
        A("v_min_u32 v2, L_end-L_pc, v2")
        A("v_and_b32 v2, 0xfffffffc, v2")
        A("global_load_dword v255, v2, s[4:5]")
    if TS:
        A("s_memrealtime s[96:97]")
    if cfg.enc:
        A("s_memrealtime s[96:97]")
        if cfg.enc == "none":
            A("s_memrealtime s[94:95]")

    def enc(p):
        if cfg.enc == p:
            A("s_memrealtime s[94:95]")
    stamp()
    A("v_and_b32 v1, 63, v0")
    A("v_lshrrev_b32 v2, 6, v0")
    A(f"s_and_b32 s{sJ}, s2, 7")
    A(f"v_readfirstlane_b32 s{sWV}, v2")
    A(f"s_lshr_b32 s{sR}, s2, 3")
    A(f"s_cmp_lt_u32 s{sR}, 8")
    A("s_cbranch_scc1 L_helper")
    A(f"s_sub_u32 s{sR}, s{sR}, 8")
    A(f"s_mul_i32 s{sMT}, s{sR}, 21846")
    A(f"s_lshr_b32 s{sMT}, s{sMT}, 16")
    A(f"s_mul_i32 s{sT0}, s{sMT}, 3")
    A(f"s_sub_u32 s{sI}, s{sR}, s{sT0}")
    A(f"s_mul_i32 s{sWK}, s{sJ}, 24")
    A(f"s_add_u32 s{sWK}, s{sWK}, s{sR}")
    ROT = [int(c) for c in cfg.rot]
    ROTTAB = sum(r << (4 * m) for m, r in enumerate(ROT))
    sROT, sLO, sHI = 10, 11, 12
    if any(ROT):
        A(f"s_lshl_b32 s{sROT}, s{sMT}, 2")
        A(f"s_lshr_b32 s{sROT}, {ROTTAB}, s{sROT}")
        A(f"s_and_b32 s{sROT}, s{sROT}, 15")

    def rot_setup(sbase, stride):
        if any(ROT):
            A(f"s_mul_i32 s{sLO}, s{sROT}, {stride}")
            A(f"s_add_u32 s{sLO}, s{sLO}, s{sbase}")
            A(f"s_sub_u32 s{sHI}, s{sLO}, {9*stride}")

    def rot_addr(dst, sbase, t, stride, extra):
        if any(ROT):
            if t + max(ROT) < 9:
                A(f"s_add_u32 s{dst}, s{sLO}, {t*stride + extra}")
            else:
                A(f"s_cmp_lt_u32 s{sROT}, {9-t}")
                A(f"s_cselect_b32 s{dst}, s{sLO}, s{sHI}")
                A(f"s_add_u32 s{dst}, s{dst}, {t*stride + extra}")
        else:
            A(f"s_add_u32 s{dst}, s{sbase}, {t*stride + extra}")
    A(f"s_cmp_lt_u32 s{sWV}, 4")
    A("s_cbranch_scc1 L_compute")
    A(f"s_cmp_eq_u32 s{sWV}, 6")
    A("s_cbranch_scc1 L_xh")
    A(f"s_cmp_eq_u32 s{sWV}, 7")
    A("s_cbranch_scc1 L_h2")
    ts_base = tsn[0]

    def loader_stream(kinds, per_block, issue_fn, setup_fn, cap, group=False, validate=None, before_bar=None, role=None):
        mine = [blocks[nm] for nm in order if blocks[nm]["kind"] in kinds]
        outstanding, pend = [], list(mine)
        nb = lambda nm: blocks[nm]["n"] if blocks[nm]["kind"] == "extra" else (per_block(blocks[nm]) if callable(per_block) else per_block)
        cnt = lambda lst: sum(nb(x) for x in lst)

        def ok(b, q):
            if b["free"] + 2 > q:
                return False
            if b["kind"] in ("H1", "H2") and q < min(hfetch[b["lk"]], b["need"] - 1):
                return False
            return True

        def issue_upto(q, ahead, cap):
            n = 0
            lim = cum[q] + ahead if q >= 0 else ahead
            while pend and ok(pend[0], q):
                must = pend[0]["need"] <= q + 1 or pend[0]["pos"] < lim
                if not must and n >= cap:
                    break
                grp = [pend.pop(0)]
                while group and pend and ok(pend[0], q) and pend[0]["need"] == grp[0]["need"] and len(grp) < 3 \
                        and (pend[0]["pos"] < lim or n + len(grp) < cap or pend[0]["need"] <= q + 1):
                    grp.append(pend.pop(0))
                need_n = sum(nb(x["name"]) for x in grp)
                if cnt(outstanding) + need_n > 63:
                    while cnt(outstanding) + need_n > 63:
                        del outstanding[0]
                    A(f"s_waitcnt vmcnt({cnt(outstanding)})")
                issue_fn(grp if group else grp[0])
                if cfg.verbose:
                    print(f"   after B{q}: " + " ".join(x["name"] for x in grp), file=sys.stderr)
                outstanding.extend(x["name"] for x in grp)
                n += len(grp)

        issue_upto(-1, cfg.first, 0)
        if cfg.ts0:
            stamp()
        if role == "w":
            enc("iss")
        A.tail(role)
        setup_fn()
        issue_upto(-1, cfg.ahead0, 0)
        for q in range(NQ):
            assert not any(b["need"] <= q for b in pend), (q, pend[0])
            for b in mine:
                if b["need"] == q:
                    if b["name"] in outstanding:
                        idx = max(i for i, nm in enumerate(outstanding) if blocks[nm]["need"] <= q) if validate is None \
                            else outstanding.index(b["name"])
                        del outstanding[:idx + 1]
                        A(f"s_waitcnt vmcnt({cnt(outstanding)})")
                    if validate is not None and b["kind"] != "X":
                        validate(b)
            if before_bar is not None:
                ex = before_bar(q)
                if ex:
                    nm = f"extra{A.uid()}"
                    blocks[nm] = dict(name=nm, kind="extra", n=ex, need=99)
                    outstanding.append(nm)
            if q in cfg.tsq:
                stamp()
            A("s_barrier")
            if role == "w":
                enc(f"B{q}")
            if q in cfg.pause:
                issue_upto(q, 0, 0)
            else:
                issue_upto(q, cfg.ahead, 99 if q in cfg.burst else (cap if q >= cfg.capfrom else 0))
        assert not pend

    vRA, vRO, vRB, vRC, vRD, vRT, vRX, vRZ, vRG = 64, 65, 66, 72, 80, 112, 116, 117, 120
    sRI, sRO, sC = 60, 61, 13

    def vr(r, W):
        return f"v{r}" if W == 1 else f"v[{r}:{r+W-1}]"

    def dw(W):
        return "dword" if W == 1 else f"dwordx{W}"

    def red_pre(W):
        if W == 2:
            A(f"s_sub_u32 s{sC}, s{sWV}, 4")
            A(f"v_lshlrev_b32 v{vRA}, 3, v1")
            A(f"s_lshl_b32 s{sRO}, s{sC}, 6")
            A(f"s_lshl_b32 s{sRI}, s{sC}, 9")
            A(f"v_lshrrev_b32 v{vRT}, 4, v1")
            A(f"v_and_b32 v{vRT+1}, 1, v1")
            A(f"v_lshlrev_b32 v{vRT+1}, 3, v{vRT+1}")
            A(f"v_lshl_add_u32 v{vRT}, v{vRT}, 4, v{vRT+1}")
            A(f"v_bfe_u32 v{vRT+2}, v1, 1, 3")
            A(f"v_and_b32 v{vRT+3}, 7, v1")
            A(f"v_lshlrev_b32 v{vRT+3}, 2, v{vRT+3}")
        else:
            A(f"s_add_u32 s{sC}, s{sWV}, 8")
            A(f"v_lshlrev_b32 v{vRA}, 2, v1")
            A(f"s_lshl_b32 s{sRO}, s{sC}, 5")
            A(f"s_lshl_b32 s{sRI}, s{sC}, 8")
            A(f"v_lshrrev_b32 v{vRT}, 5, v1")
            A(f"v_and_b32 v{vRT+1}, 3, v1")
            A(f"v_lshlrev_b32 v{vRT+1}, 2, v{vRT+1}")
            A(f"v_lshl_add_u32 v{vRT}, v{vRT}, 4, v{vRT+1}")
            A(f"v_bfe_u32 v{vRT+2}, v1, 2, 3")
            A(f"v_and_b32 v{vRT+3}, 15, v1")
            A(f"v_lshlrev_b32 v{vRT+3}, 1, v{vRT+3}")
        A(f"s_mul_i32 s{sT1}, s{sI}, 384")
        A(f"s_add_u32 s{sRO}, s{sRO}, s{sT1}")
        if W == 2:
            srd(SRD2, sB2, 1152)
            A(f"buffer_load_{dw(W)} {vr(vRB, W)}, v{vRT}, s[{SRD2}:{SRD2+3}], s{sRO} offen")
        else:
            A(f"v_mov_b32 v{vRB}, v249")
        A(f"s_lshl_b32 s{sT1}, s{sJ}, 3")
        A(f"s_lshl_b32 s{sT3}, s{sMT}, 6")
        A(f"s_add_u32 s{sT1}, s{sT1}, s{sT3}")
        A(f"s_mul_i32 s{sT1}, s{sT1}, 1152")
        A(f"s_add_u32 s{sRO}, s{sRO}, s{sT1}")
        A(f"v_mul_u32_u24 v{vRT+2}, 1152, v{vRT+2}")
        A(f"v_add_u32 v{vRO}, v{vRT}, v{vRT+2}")
        A(f"s_mul_i32 s{sT1}, s{sWK}, {8*3072}")
        A(f"s_add_u32 s{sRI}, s{sRI}, s{sT1}")
        A(f"s_add_u32 s{sRI}, s{sRI}, {WS_IN}")
        A(f"v_mov_b32 v{vRZ}, 0")
        A(f"v_lshrrev_b32 v{vRT+3}, v{vRT+3}, s{sTAG+1}")
        for k in range(W):
            A(f"v_bfe_u32 v{vRG+k}, v{vRT+3}, {2*k}, 2")
            A(f"v_mul_u32_u24 v{vRG+k}, 0x8001, v{vRG+k}")
        A(f"v_mov_b32 v{vRG+4}, 0x10001")
        A(f"v_mov_b32 v{vRG+5}, 0xffff0000")
        return 1

    def red_init(W):
        for k in range(W):
            A(f"v_lshlrev_b32 v{vRC+2*k}, 16, v{vRB+k}")
            A(f"v_and_b32 v{vRC+1+2*k}, v{vRG+5}, v{vRB+k}")

    def bb_w(q):
        if q == 2:
            epoch_fin()
        if q == cfg.rpq:
            return red_pre(2)
        if q == cfg.rpq + 3:
            red_init(2)

    A.head("w")
    sHW = sT5
    A(f"s_sub_u32 s{sHW}, s{sWV}, 4")
    A("v_lshrrev_b32 v2, 3, v1")
    A("v_and_b32 v3, 7, v1")
    A("v_bfe_u32 v4, v1, 4, 1")
    A("v_lshlrev_b32 v4, 2, v4")
    A("v_xor_b32 v3, v3, v4")
    A("v_lshlrev_b32 v3, 4, v3")
    A("v_lshrrev_b32 v4, 2, v2")
    A("v_and_b32 v5, 3, v2")
    A("v_lshl_add_u32 v4, v4, 3, v5")
    A(f"s_lshl_b32 s{sT0}, s{sHW}, 5")
    A(f"v_add_u32 v4, s{sT0}, v4")
    A("v_mul_u32_u24 v4, 9216, v4")
    A("v_add_u32 v4, v4, v3")
    for c in range(1, 4):
        A(f"v_add_u32 v{4+c}, {(16*(c>>1)+4*(c&1))*9216 - 1024*c}, v4")
    sLW, sC1 = sT4, 38
    A(f"s_lshl_b32 s{sLW}, s{sHW}, 12")
    A(f"s_mul_i32 s{sC1}, s{sJ}, 1152")
    A(f"s_mul_i32 s{sT1}, s{sI}, 384")
    A(f"s_add_u32 s{sC1}, s{sC1}, s{sT1}")
    rot_setup(sC1, 64*9216)
    if cfg.wt:
        A("v_and_b32 v12, 7, v1")
        A("v_lshrrev_b32 v13, 5, v1")
        A("v_lshl_add_u32 v12, v13, 6, v12")
        A("v_mul_u32_u24 v12, 9216, v12")
        A("v_bfe_u32 v13, v1, 3, 2")
        A("v_lshl_add_u32 v12, v13, 7, v12")
        A(f"s_lshl_b32 s{sT0}, s{sHW}, 4")
        A(f"s_add_u32 s{sT0}, s{sT0}, s{sMT}")
        A(f"s_mul_i32 s{sT0}, s{sT0}, {8*9216}")
        A(f"s_add_u32 s{sT0}, s{sT0}, s{sC1}")
        msk = [sum(0xffffff << (32 * h) for h in range(2) if 2 * w + h < cfg.wt) for w in range(2)]
        A(f"s_mov_b32 exec_lo, {msk[0] & 0xffffffff}")
        A(f"s_mov_b32 exec_hi, {msk[0] >> 32}")
        if msk[1] != msk[0]:
            A(f"s_cmp_eq_u32 s{sHW}, 0")
            A(f"s_cselect_b32 exec_lo, exec_lo, {(msk[1] & 0xffffffff) or 1}")
            A(f"s_cselect_b32 exec_hi, exec_hi, {msk[1] >> 32}")
    A("s_waitcnt lgkmcnt(0)")
    if cfg.ts0:
        stamp()
    srd(SRD0, sW1, 5308416)
    if cfg.wt:
        A(f"buffer_load_dword v255, v12, s[{SRD0}:{SRD0+3}], s{sT0} offen")
        A("s_mov_b64 exec, -1")
    sV = [62, 63, 59]

    def w2_setup():
        epoch_load(sMT)
        A(f"s_lshl_b32 s{sT0}, s{sHW}, 5")
        A(f"v_add_u32 v8, s{sT0}, v2")
        A("v_mul_u32_u24 v8, 1152, v8")
        A("v_add_u32 v8, v8, v3")
        for c in range(1, 4):
            A(f"v_add_u32 v{8+c}, {8*c*1152 - 1024*c}, v8")
        A(f"s_mul_i32 s39, s{sJ}, {576*1152}")
        A(f"s_mul_i32 s{sT0}, s{sI}, 384")
        A(f"s_add_u32 s39, s39, s{sT0}")
        for d in range(3):
            mod3add(sT1, d, sT2)
            A(f"s_mul_i32 s{sT1}, s{sT1}, {192*1152}")
            A(f"s_add_u32 s{sV[d]}, s39, s{sT1}")
        srd(SRD1, sW2, 5308416)

    def issue_w(grp):
        for b in grp:
            A(f"s_add_u32 m0, s{sLW}, {b['slot']*8192}")
            if b["kind"] == "W1":
                rot_addr(sT0, sC1, b['t'], 64*9216, 128*b['l'])
                vb, sr = 4, SRD0
            else:
                A(f"s_add_u32 s{sT0}, s{sV[b['d']]}, {64*b['lk']*1152 + 128*b['l']}")
                vb, sr = 8, SRD1
            for c in range(4):
                A(f"buffer_load_dwordx4 v{vb+c}, s[{sr}:{sr+3}], s{sT0} offen offset:{1024*c} {cfg.wfl} lds")

    loader_stream(("W1", "W2"), 4, issue_w, w2_setup, cfg.capw, group=True,
                  before_bar=bb_w, role="w")
    A("s_branch L_reduce")
    ts_max = tsn[0]

    sXB = 38
    sH = {1: 39, 2: 59}
    HALF = [0]

    def h_setup(half):
        A("v_lshlrev_b32 v12, 4, v1")
        A("v_add_u32 v13, 0x10000, v12")
        A("v_add_u32 v14, 0x20000, v12")
        A(f"s_sub_u32 s{sT0}, s{sWK}, s{sI}")
        for d in (1, 2):
            mod3add(sT1, d, sT2)
            A(f"s_add_u32 s{sT1}, s{sT1}, s{sT0}")
            A(f"s_mul_i32 s{sH[d]}, s{sT1}, 24576")
        srd(SRD1, sWS, 0x10000000)
        epoch_load(sMT)

    def issue_xh(b):
        for h in (range(2) if b["kind"] == "X" else HALF):
            A(f"s_mov_b32 m0, {b['slot']*8192 + 4096*h}")
            if b["kind"] == "X":
                rot_addr(sT0, sXB, b['t'], 128, 32*1152*h)
                for c in range(4):
                    A(f"buffer_load_dwordx4 v{8+c}, s[{SRD0}:{SRD0+3}], s{sT0} offen offset:{1024*c} lds")
            else:
                A(f"s_add_u32 s{sT0}, s{sH[b['d']]}, {WS_H + 8192*b['lk'] + 4096*h}")
                for c in range(4):
                    A(f"buffer_load_dwordx4 v12, s[{SRD1}:{SRD1+3}], s{sT0} offen offset:{1024*c} {cfg.hlf} lds")

    retry_code = []

    def validate(b):
        k = A.uid()
        addr = b["slot"] * 8192 + 4096 * HALF[0]
        va = 12 + (addr >> 16)
        A.label(f"L_v{k}")
        for c in range(4):
            A(f"ds_read_b128 v[{32+4*c}:{35+4*c}], v{va} offset:{(addr & 0xffff) + 1024*c}")
        for c in range(4):
            r = 32 + 4 * c
            A(f"s_waitcnt lgkmcnt({3-c})")
            for kk in range(4):
                if c == 0 and kk < 2:
                    A(f"v_xor_b32 v{16+kk}, v{r+kk}, v{20+kk}")
                else:
                    A(f"v_bitop3_b32 v{16+(kk&1)}, v{16+(kk&1)}, v{r+kk}, v{20+kk} bitop3:0xf6")
        A("v_bitop3_b32 v16, v16, v17, v24 bitop3:0xa8")
        A("v_cmp_ne_u32 vcc, 0, v16")
        A(f"s_cbranch_vccnz L_vr{k}")
        A.label(f"L_vd{k}")
        n0 = len(A.L)
        A.label(f"L_vr{k}")
        A(f"s_cmp_gt_u32 s{sCNT}, {SPIN_MAX}")
        A(f"s_cbranch_scc1 L_vd{k}")
        issue_xh(b)
        A(f"s_add_u32 s{sCNT}, s{sCNT}, 1")
        A("s_waitcnt vmcnt(0)")
        A(f"s_branch L_v{k}")
        retry_code.extend(A.L[n0:])
        del A.L[n0:]

    def flush_retry():
        A.L.extend(retry_code)
        retry_code.clear()

    def bb_tag(q):
        if q == 2:
            epoch_fin()
            tag_regs(20, 16)
            A("v_mov_b32 v24, 0x80008000")
            A(f"s_mov_b32 s{sCNT}, 0")
        if q == cfg.rpq:
            return red_pre(2)
        if q == cfg.rpq + 3:
            red_init(2)

    A.head("x")
    A.label("L_xh")
    tsn[0] = ts_base
    A("v_lshrrev_b32 v2, 3, v1")
    A("v_and_b32 v3, 7, v1")
    A("v_lshrrev_b32 v4, 4, v1")
    A("v_xor_b32 v3, v3, v4")
    A("v_lshlrev_b32 v3, 4, v3")
    A("v_mul_u32_u24 v4, 1152, v2")
    A("v_add_u32 v8, v4, v3")
    A("v_xor_b32 v5, 64, v8")
    A(f"v_add_u32 v9, {8*1152 - 1024}, v5")
    A(f"v_add_u32 v10, {16*1152 - 2048}, v8")
    A(f"v_add_u32 v11, {24*1152 - 3072}, v5")
    A(f"s_mul_i32 s{sXB}, s{sMT}, {64*1152}")
    rot_setup(sXB, 128)

    def x_touch_pre(st0):
        A(f"s_mul_i32 s{sT0}, s{sI}, 22")
        A("v_and_b32 v12, 31, v1")
        A(f"v_add_u32 v12, s{sT0}, v12")
        A("v_min_u32 v12, 63, v12")
        A("v_mul_u32_u24 v12, 1152, v12")
        A("v_lshrrev_b32 v13, 5, v1")
        A("v_lshl_add_u32 v12, v13, 7, v12")
        A("s_mov_b32 exec_lo, 0x3fffff")
        A(f"s_mov_b32 exec_hi, {0x3fffff if cfg.wt > st0 + 1 else 0}")

    def x_touch(st0):
        A(f"buffer_load_dword v255, v12, s[{SRD0}:{SRD0+3}], s{sXB} offen offset:{128*st0}")
        A("s_mov_b64 exec, -1")
    if cfg.wt:
        x_touch_pre(0)
    A("s_waitcnt lgkmcnt(0)")
    if cfg.ts0:
        stamp()
    srd(SRD0, sX, 589824)
    if cfg.wt:
        x_touch(0)
    nbx = lambda b: 8 if b["kind"] == "X" else 4
    loader_stream(("X", "H1", "H2"), nbx, issue_xh, lambda: h_setup(0), cfg.capx, validate=validate, before_bar=bb_tag, role="x")
    if TS:
        A(f"s_mov_b32 s{sTS+24}, s{sCNT}")
    A("s_branch L_reduce")
    flush_retry()
    ts_max = max(ts_max, tsn[0])

    A.head("h2")
    A.label("L_h2")
    tsn[0] = ts_base
    if cfg.wt > 2:
        A(f"s_mul_i32 s{sXB}, s{sMT}, {64*1152}")
        x_touch_pre(2)
    A("s_waitcnt lgkmcnt(0)")
    if cfg.wt > 2:
        srd(SRD0, sX, 589824)
        x_touch(2)
    srd(SRD1, sWS, 0x10000000)
    if cfg.hpre == 3:
        A("v_lshlrev_b32 v3, 7, v1")
        A(f"s_mul_i32 s{sT1}, s{sWK}, 24576")
        for c in range(3):
            A(f"buffer_load_dword v255, v3, s[{SRD1}:{SRD1+3}], s{sT1} offen")
            A(f"s_add_u32 s{sT1}, s{sT1}, 8192")

    def w7_touch():
        st = list(range(cfg.ta, cfg.ta + cfg.tn))
        srd(SRD0, sX, 589824)
        srd(SRD2, sW1, 5308416)
        A(f"s_mul_i32 s{sXB}, s{sMT}, {64*1152}")
        A(f"s_mul_i32 s{sT0}, s{sI}, 22")
        A("v_and_b32 v2, 31, v1")
        A(f"v_add_u32 v2, s{sT0}, v2")
        A("v_min_u32 v2, 63, v2")
        A("v_mul_u32_u24 v2, 1152, v2")
        A("v_lshrrev_b32 v4, 5, v1")
        A("v_lshl_add_u32 v2, v4, 7, v2")
        A("v_and_b32 v3, 7, v1")
        A("v_lshl_add_u32 v3, v4, 6, v3")
        A("v_mul_u32_u24 v3, 9216, v3")
        A("v_bfe_u32 v4, v1, 3, 2")
        A("v_lshl_add_u32 v3, v4, 7, v3")
        A(f"s_mul_i32 s{sT0}, s{sMT}, {8*9216}")
        A(f"s_mul_i32 s{sT1}, s{sJ}, 1152")
        A(f"s_add_u32 s{sT0}, s{sT0}, s{sT1}")
        A(f"s_mul_i32 s{sT1}, s{sI}, 384")
        A(f"s_add_u32 s{sT0}, s{sT0}, s{sT1}")
        for p in range(0, len(st), 2):
            two = p + 1 < len(st)
            A(f"s_add_u32 s{sT1}, s{sT0}, {st[p]*64*9216}")
            A("s_mov_b32 exec_lo, 0xffffff")
            A(f"s_mov_b32 exec_hi, {0xffffff if two else 0}")
            A(f"buffer_load_dword v255, v3, s[{SRD2}:{SRD2+3}], s{sT1} offen")
            A("s_mov_b32 exec_lo, 0x3fffff")
            A(f"s_mov_b32 exec_hi, {0x3fffff if two else 0}")
            A(f"buffer_load_dword v255, v2, s[{SRD0}:{SRD0+3}], s{sXB} offen offset:{128*st[p]}")
        A("s_mov_b64 exec, -1")
    if cfg.tn and cfg.tpos == 0:
        w7_touch()

    def bb_h2(q):
        if cfg.tn and cfg.tpos == 1 and q == 0:
            A("s_waitcnt lgkmcnt(0)")
            w7_touch()
        if cfg.tn and cfg.tpos >= 2 and q == cfg.tpos - 1:
            w7_touch()
        if cfg.tn and q == 7:
            A("s_waitcnt vmcnt(0)")
        if q == 2 and (cfg.hpre == 3 or cfg.wt > 2):
            A("s_waitcnt vmcnt(0)")
        return bb_tag(q)

    HALF[0] = 1
    loader_stream(("H1", "H2"), nbx, issue_xh, lambda: h_setup(1), cfg.capx, validate=validate, before_bar=bb_h2, role="h2")
    ts_max = max(ts_max, tsn[0])
    A("s_branch L_reduce")
    flush_retry()

    A.tail("red")
    sM, sQ = sT5, sT4
    sVC = 16

    def reduce_code(W, nbar):
        x = f"{W}"
        srd(SRD1, sWS, 0x10000000)
        A(f"s_mov_b32 s{sCNT}, 0")
        srd(SRD0, sOUT, 589824)
        if W == 1:
            red_pre(1)
            red_init(1)
            A(f"s_waitcnt vmcnt({cfg.rw1})")

        def ld(s_):
            A(f"s_add_u32 s{sT1}, s{sRI}, {3072*s_}")
            A(f"buffer_load_{dw(W)} {vr(vRD+W*s_, W)}, v{vRA}, s[{SRD1}:{SRD1+3}], s{sT1} offen {cfg.rfl}")
        if W == 2 and cfg.r0early and nbar:
            A(f"s_cmp_ge_u32 s{sC}, 2")
            A("s_cbranch_scc1 L_rlate")
            stamp()
            tsn[0] -= 1 if TS else 0
            for s_ in range(8):
                ld(s_)
            A("s_barrier")
            A("s_branch L_rfirst")
            A.label("L_rlate")
        for _ in range(nbar):
            A("s_barrier")
        stamp()
        enc("rbar")

        def chk_i(s_, dst, t):
            r = vRD + W * s_
            if W == 1:
                o = [f"v_bitop3_b32 v{t}, v{r}, v{vRG}, v{vRG+4} bitop3:0x28"]
            else:
                o = [f"v_xor_b32 v{t}, v{r}, v{vRG}"]
                for k in range(1, W):
                    o.append(f"v_bitop3_b32 v{t}, v{t}, v{r+k}, v{vRG+k} bitop3:0xf6")
                o.append(f"v_and_b32 v{t}, v{vRG+4}, v{t}")
            o.append(f"v_cmp_ne_u32 {dst}, 0, v{t}")
            return o

        def acc_i(s_, t0):
            r = vRD + W * s_
            o = []
            for k in range(W):
                t = t0 + 2 * k
                o.append(f"v_lshlrev_b32 v{t}, 16, v{r+k}")
                o.append(f"v_and_b32 v{t+1}, v{vRG+5}, v{r+k}")
            for k in range(W):
                t = t0 + 2 * k
                o.append(f"v_pk_add_f32 v[{vRC+2*k}:{vRC+1+2*k}], v[{vRC+2*k}:{vRC+1+2*k}], v[{t}:{t+1}]")
            return o

        def masked(sm, fn, tag):
            for g in range(2):
                A(f"s_and_b32 s{sT0}, s{sm}, {0xf << (4*g)}")
                A(f"s_cbranch_scc0 L_{tag}{x}g{g}")
                for s_ in range(4 * g, 4 * g + 4):
                    A(f"s_bitcmp0_b32 s{sm}, {s_}")
                    A(f"s_cbranch_scc1 L_{tag}{x}s{s_}")
                    fn(s_)
                    A.label(f"L_{tag}{x}s{s_}")
                A.label(f"L_{tag}{x}g{g}")

        for s_ in range(8):
            ld(s_)
        for _ in range(nbar, cfg.rnb if W != 1 else 0):
            A("s_barrier")
        if W == 2:
            A.label("L_rfirst")
        for s_ in range(8):
            A(f"s_waitcnt vmcnt({7-s_})")
            c = chk_i(s_, f"s[{sVC+2*s_}:{sVC+2*s_+1}]", vRX)
            a_ = acc_i(s_, vRT)
            while c or a_:
                if c:
                    A(c.pop(0))
                if a_:
                    A(a_.pop(0))
            if s_ >= 2:
                A(f"s_or_b64 vcc, {'s[16:17]' if s_ == 2 else 'vcc'}, s[{sVC+2*s_-2}:{sVC+2*s_-1}]")
        A(f"s_or_b64 vcc, vcc, s[{sVC+14}:{sVC+15}]")
        A(f"s_cbranch_scc0 L_rdone{x}")
        A(f"s_mov_b32 s{sM}, 0")
        for s_ in range(7, -1, -1):
            A(f"s_cmp_lg_u64 s[{sVC+2*s_}:{sVC+2*s_+1}], 0")
            A(f"s_addc_u32 s{sM}, s{sM}, s{sM}")
        A(f"s_xor_b32 s{sQ}, s{sM}, 0xff")
        red_init(W)
        A.label(f"L_rtop{x}")
        masked(sM, ld, "rl")
        masked(sQ, lambda s_: [A(t) for t in acc_i(s_, vRT)], "ra")
        A(f"s_add_u32 s{sCNT}, s{sCNT}, 1")
        A(f"s_mov_b32 s{sQ}, s{sM}")
        A(f"s_cmp_gt_u32 s{sCNT}, {SPIN_MAX}")
        A(f"s_cbranch_scc1 L_rdone{x}")
        A("s_waitcnt vmcnt(0)")

        def chk2(s_):
            for t in chk_i(s_, "vcc", vRX):
                A(t)
            A(f"s_cbranch_vccnz L_rc{x}s{s_}")
            A(f"s_bitset0_b32 s{sM}, {s_}")
            for t in acc_i(s_, vRT):
                A(t)
        masked(sQ, chk2, "rc")
        A(f"s_mov_b32 s{sQ}, 0")
        A(f"s_cmp_lg_u32 s{sM}, 0")
        A(f"s_cbranch_scc1 L_rtop{x}")
        A.label(f"L_rdone{x}")
        stamp()
        enc("rdone")
        for k in range(W):
            A(f"v_cvt_pk_bf16_f32 v{vRC+k}, v{vRC+2*k}, v{vRC+1+2*k}")
        A(f"buffer_store_{dw(W)} {vr(vRC, W)}, v{vRO}, s[{SRD0}:{SRD0+3}], s{sRO} offen {cfg.ofl if W > 1 else cfg.ofl1}")
        if TS:
            A(f"s_mov_b32 s{sWS}, s{SRD1}")
            A(f"s_mov_b32 s{sWS+1}, s{SRD1+1}")

    A.label("L_reduce")
    tsn[0] = ts_max
    reduce_code(2, cfg.rb2)
    A(f"s_or_b32 s{sT0}, s{sJ}, s{sI}")
    A(f"s_or_b32 s{sT0}, s{sT0}, s{sC}")
    A(f"s_cmp_lg_u32 s{sT0}, 0")
    A("s_cbranch_scc1 L_noep")
    A(f"v_mov_b32 v16, s{sTAG}")
    A(f"s_lshl_b32 s{sT0}, s{sMT}, 7")
    A(f"s_add_u32 s{sT0}, s{sT0}, {WS_EP}")
    A("s_mov_b64 exec, 1")
    A(f"buffer_store_dword v16, v{vRZ}, s[{SRD1}:{SRD1+3}], s{sT0} offen sc1")
    A("s_mov_b64 exec, -1")
    A.label("L_noep")
    if cfg.enc:
        if cfg.enc == "end":
            A("s_waitcnt vmcnt(0)")
            enc("end")
        A(f"s_cmp_lg_u32 s{sWV}, {cfg.encw}")
        A("s_cbranch_scc1 L_end")
        A("s_waitcnt lgkmcnt(0)")
        A("s_sub_u32 s94, s94, s96")
        A("s_mul_i32 s94, s94, 2")
        A("s_add_u32 s94, s94, 3000")
        A.label("L_dly")
        A("s_memrealtime s[98:99]")
        A("s_waitcnt lgkmcnt(0)")
        A("s_sub_u32 s98, s98, s96")
        A("s_cmp_lt_u32 s98, s94")
        A("s_cbranch_scc1 L_dly")
    if TS:
        A("s_waitcnt vmcnt(0)")
        stamp()
        A("s_memrealtime s[98:99]")
        A("s_waitcnt lgkmcnt(0)")
        A(f"s_mov_b32 s{sTS+26}, s96"); A(f"s_mov_b32 s{sTS+28}, s98"); A(f"s_mov_b32 s{sTS+30}, s{sCNT}")
        assert tsn[0] <= 12
        tsn[0] = 16
        stamp_flush()
    A("s_branch L_end")

    A.head("c")
    A.label("L_compute")
    tsn[0] = ts_base
    vACC, vAB, vXB, vT = 16, 64, 96, 240
    nAB = D + 1
    vA, vBX, vBH, vHW = [2, 3, 4], [5, 6, 7, 8], [9, 10, 11], [12, 13, 14]
    vTG, vL16 = vT + 11, vT + 10
    assert vAB + 4 * nAB <= vXB
    sA, sBq = sT4, sT5
    A(f"s_and_b32 s{sA}, s{sWV}, 1")
    A(f"s_lshr_b32 s{sBq}, s{sWV}, 1")
    A(f"v_lshrrev_b32 v{vT}, 5, v1")
    A(f"s_mul_i32 s60, s{sJ}, 1152")
    A(f"s_mul_i32 s{sT1}, s{sI}, 384")
    A(f"s_add_u32 s60, s60, s{sT1}")
    A(f"s_lshl_b32 s{sT1}, s{sBq}, 6")
    A(f"s_add_u32 s61, s60, s{sT1}")
    A(f"v_lshlrev_b32 v{vT+4}, 3, v{vT}")
    if cfg.sa:
        A(f"s_add_u32 s{sT3}, s{sWV}, 1")
        A(f"v_and_b32 v{vT+5}, 7, v1")
        A(f"v_mul_u32_u24 v{vT+5}, 9216, v{vT+5}")
        A(f"v_lshrrev_b32 v{vT+6}, 3, v1")
        A(f"v_min_u32 v{vT+6}, 2, v{vT+6}")
        A(f"v_lshl_add_u32 v{vT+5}, v{vT+6}, 7, v{vT+5}")
        A(f"s_lshl_b32 s{sT1}, s{sT3}, 3")
        A(f"s_add_u32 s{sT1}, s{sT1}, s{sMT}")
        A(f"s_mul_i32 s{sT1}, s{sT1}, {8*9216}")
        A(f"s_add_u32 s{sT1}, s{sT1}, s60")
        A(f"s_mul_i32 s{sT2}, s{sI}, 22")
        A(f"v_min_u32 v{vT+6}, 21, v1")
        A(f"v_add_u32 v{vT+6}, s{sT2}, v{vT+6}")
        A(f"v_min_u32 v{vT+6}, 63, v{vT+6}")
        A(f"v_mul_u32_u24 v{vT+6}, 1152, v{vT+6}")
        A(f"s_mul_i32 s{sT2}, s{sMT}, {64*1152}")
        A(f"s_lshl_b32 s{sT3}, s{sT3}, 7")
        A(f"s_add_u32 s{sT2}, s{sT2}, s{sT3}")
    A("s_waitcnt lgkmcnt(0)")
    srd(SRD0, sB1, 9216)
    for l in range(3):
        for g in range(4):
            r = vXB + 2 * (4 * l + g)
            A(f"buffer_load_dwordx2 v[{r}:{r+1}], v{vT+4}, s[{SRD0}:{SRD0+3}], s61 offen offset:{128*l+16*g}")
    if cfg.sa:
        srd(SRD1, sW1, 5308416)
        srd(SRD2, sX, 589824)
        A(f"s_cmp_ge_u32 s{sWV}, {cfg.sa}")
        A("s_cbranch_scc1 L_tdone")
        A(f"buffer_load_dword v255, v{vT+5}, s[{SRD1}:{SRD1+3}], s{sT1} offen {cfg.tfl}")
        A(f"buffer_load_dword v255, v{vT+6}, s[{SRD2}:{SRD2+3}], s{sT2} offen")
        A.label("L_tdone")
    epoch_load(sMT)
    A.tail("c")
    srd(SRD2, sB2, 1152)
    A(f"v_and_b32 v{vT+1}, 3, v1")
    A(f"v_lshlrev_b32 v{vT+1}, 2, v{vT+1}")
    A(f"v_lshl_add_u32 v{vT+1}, v{vT}, 4, v{vT+1}")
    A(f"s_mul_i32 s{sT1}, s{sI}, 384")
    A(f"s_lshl_b32 s{sT0}, s{sWV}, 5")
    A(f"s_add_u32 s{sT1}, s{sT1}, s{sT0}")
    A(f"buffer_load_dword v249, v{vT+1}, s[{SRD2}:{SRD2+3}], s{sT1} offen offset:256")
    srd(SRD1, sWS, 0x10000000)
    A(f"v_bfe_u32 v{vT+1}, v1, 2, 2")
    A(f"v_lshl_add_u32 v{vT+2}, v{vT}, 2, v{vT+1}")
    A(f"v_lshlrev_b32 v{vT+2}, 7, v{vT+2}")
    A(f"v_bfe_u32 v{vT+3}, v1, 3, 1")
    A(f"v_xor_b32 v{vT+3}, s{sBq}, v{vT+3}")
    A(f"v_lshl_add_u32 v{vT+2}, v{vT+3}, 6, v{vT+2}")
    A(f"v_bfe_u32 v{vT+3}, v1, 4, 1")
    A(f"v_lshl_add_u32 v{vT+2}, v{vT+3}, 5, v{vT+2}")
    A(f"v_and_b32 v{vT+3}, 3, v1")
    A(f"v_lshl_add_u32 v{vA[0]}, v{vT+3}, 3, v{vT+2}")
    A(f"v_add_u32 v{vA[1]}, 0x10000, v{vA[0]}")
    A(f"v_add_u32 v{vA[2]}, 0x20000, v{vA[0]}")
    A(f"v_and_b32 v{vT+1}, 31, v1")
    A(f"v_bfe_u32 v{vT+2}, v1, 1, 3")
    A(f"v_xor_b32 v{vT+2}, v{vT}, v{vT+2}")
    A(f"v_lshlrev_b32 v{vT+2}, 4, v{vT+2}")
    A(f"v_lshl_add_u32 v{vT+2}, v{vT+1}, 7, v{vT+2}")
    A(f"s_lshl_b32 s{sT0}, s{sA}, 12")
    A(f"s_add_u32 s{sT1}, s{sT0}, 0x20000")
    A(f"v_add_u32 v{vBX[0]}, s{sT1}, v{vT+2}")
    for sp in range(1, 4):
        A(f"v_xor_b32 v{vBX[sp]}, {32*sp}, v{vBX[0]}")
    A(f"v_lshl_add_u32 v{vBH[0]}, v1, 4, s{sT0}")
    A(f"v_add_u32 v{vBH[1]}, 0x10000, v{vBH[0]}")
    A(f"v_add_u32 v{vBH[2]}, 0x20000, v{vBH[0]}")
    A(f"s_lshl_b32 s{sT1}, s{sBq}, 11")
    for k in range(3):
        A(f"v_add_u32 v{vHW[k]}, s{sT1}, v{vBH[k]}")
    sI0 = 38
    sMS, sML, sMC = 39, 63, 59
    sHS = [60, 61, 62]
    A(f"s_mul_i32 s{sI0}, s{sA}, 96")
    A(f"s_add_u32 s{sI0}, s{sI0}, s{sR}")
    A(f"s_lshl_b32 s{sI0}, s{sI0}, 3")
    A(f"s_add_u32 s{sI0}, s{sI0}, s{sJ}")
    A(f"s_mul_i32 s{sI0}, s{sI0}, 3072")
    A(f"s_add_u32 s{sI0}, s{sI0}, {WS_IN}")
    A(f"s_lshl_b32 s{sT1}, s{sBq}, 9")
    A(f"s_add_u32 s{sI0}, s{sI0}, s{sT1}")
    A(f"v_bfe_u32 v{vT+1}, v1, 3, 2")
    A(f"v_mul_u32_u24 v{vT+1}, {24*8*3072}, v{vT+1}")
    A(f"v_and_b32 v{vT+2}, 7, v1")
    A(f"v_lshl_add_u32 v{vT+1}, v{vT+2}, 4, v{vT+1}")
    A(f"v_lshl_add_u32 v{vL16}, v{vT}, 7, v{vT+1}")
    A(f"s_mov_b32 s{sMS}, 0x80008000")
    A(f"s_mov_b32 s{sML}, 0x00010001")
    A(f"s_mov_b32 s{sMC}, 0x7fff7fff")
    A(f"s_mul_i32 s{sHS[0]}, s{sWK}, 24576")
    if WS_H:
        A(f"s_add_u32 s{sHS[0]}, s{sHS[0]}, {WS_H}")
    A(f"s_add_u32 s{sHS[1]}, s{sHS[0]}, 8192")
    A(f"s_add_u32 s{sHS[2]}, s{sHS[0]}, 16384")
    epoch_fin()
    tag_regs(vTG, vT + 1)
    assert not cfg.sa
    A("s_waitcnt vmcnt(1)")
    if cfg.sa:
        A(f"s_cmp_lt_u32 s{sWV}, {cfg.sa}")
        A("s_cbranch_scc1 L_bw")
        A("s_waitcnt vmcnt(0)")
        A.label("L_bw")
    for l in range(3):
        for g in range(4):
            r = vXB + 2 * (4 * l + g)
            d = vACC + 16 * l + 4 * g
            A(f"v_lshlrev_b32 v{d}, 16, v{r}")
            A(f"v_and_b32 v{d+1}, 0xffff0000, v{r}")
            A(f"v_lshlrev_b32 v{d+2}, 16, v{r+1}")
            A(f"v_and_b32 v{d+3}, 0xffff0000, v{r+1}")
    stamp()

    items = []
    for st in stages:
        bykb = {}
        for u in st["units"]:
            bykb.setdefault(u[2], []).append(u)
        for kb, us in bykb.items():
            for sp in range(4):
                for (t, wb, _kb, fst) in us:
                    items.append(dict(q=st["q"], tile=t, wb=wb, kb=kb, sp=sp, first=(fst and sp == 0)))
    NI = len(items)
    last_item = {}
    for n, it in enumerate(items):
        last_item[it["q"]] = n
    bread_of = {(st["q"], kb): bb for st in stages for (bb, kb) in st["breads"]}
    lg = []

    def ds_issue(instr, tag):
        cap = 11 if TS else 15
        if len(lg) >= cap:
            A(f"s_waitcnt lgkmcnt({cap-2})")
            del lg[:len(lg) - (cap - 2)]
        A(instr)
        lg.append(tag)

    def ds_need(tags):
        idx = max([i for i, t in enumerate(lg) if t in tags], default=-1)
        if idx >= 0:
            A(f"s_waitcnt lgkmcnt({len(lg) - 1 - idx})")
            del lg[:idx + 1]

    checked = [-1]
    bdone = set()
    dirty, clean_pos = {}, {}

    def clean(m):
        key = (items[m]["kb"], items[m]["sp"])
        if key in dirty and dirty[key] == m:
            del dirty[key]
            ds_need({("B",) + key})
            r = vXB + 16 * key[0] + 4 * key[1]
            for k in range(4):
                A(f"v_and_b32 v{r+k}, s{sMC}, v{r+k}")
            clean_pos[m] = len(A.L) - 1

    def issue_reads(n):
        it = items[n]
        q = it["q"]
        if q > checked[0]:
            ds_need({"hw"})
            A("s_barrier")
            checked[0] = q
            if q in cfg.tsq:
                stamp()
        key = (q, it["kb"])
        if key in bread_of and (key, it["sp"]) not in bdone:
            bdone.add((key, it["sp"]))
            bb = blocks[bread_of[key]]
            addr = bb["slot"] * 8192
            r = vXB + 16 * it["kb"] + 4 * it["sp"]
            if bb["kind"] == "X":
                assert addr >> 16 == 2
                ds_issue(f"ds_read_b128 v[{r}:{r+3}], v{vBX[it['sp']]} offset:{addr & 0xffff}", ("B", it["kb"], it["sp"]))
            else:
                ds_issue(f"ds_read_b128 v[{r}:{r+3}], v{vBH[addr >> 16]} offset:{(addr & 0xffff) + 1024*it['sp']}",
                         ("B", it["kb"], it["sp"]))
                if bb["kind"] != "Hown":
                    dirty[(it["kb"], it["sp"])] = n
        wb = blocks[it["wb"]]
        addr = wb["slot"] * 8192 + 2048 * it["sp"]
        r = vAB + 4 * (n % nAB)
        ds_issue(f"ds_read_b64_tr_b16 v[{r}:{r+1}], v{vA[addr >> 16]} offset:{addr & 0xffff}", ("A", n))
        ds_issue(f"ds_read_b64_tr_b16 v[{r+2}:{r+3}], v{vA[addr >> 16]} offset:{(addr & 0xffff) + 1024}", ("A", n))

    post = []

    def epi1_instrs(pi, lines):
        out, late = [], []
        for l in lines:
            a = vACC + 16 * l
            addr = blocks[f"H0_{l}"]["slot"] * 8192
            for half in range(2):
                base = a + 8 * half
                for k in range(8):
                    out.append(("v", f"v_max_f32 v{base+k}, 0, v{base+k}"))
                for k in range(0, 8, 2):
                    out.append(("v", f"v_pk_mul_f32 v[{base+k}:{base+k+1}], v[{base+k}:{base+k+1}], v[{base+k}:{base+k+1}]"))
                for k in range(4):
                    out.append(("v", f"v_cvt_pk_bf16_f32 v{base+k}, v{base+2*k}, v{base+2*k+1}"))
                for k in range(4):
                    out.append(("v", f"v_and_or_b32 v{base+4+k}, v{vTG+k}, s{sMS}, v{base+k}"))
                out.append(("v", f"buffer_store_dwordx4 v[{base+4}:{base+7}], v{vHW[0]}, s[{SRD1}:{SRD1+3}], s{sHS[l]} offen offset:{1024*half} {cfg.hsf}"))
                out.append(("w", f"ds_write_b128 v{vHW[addr >> 16]}, v[{base}:{base+3}] offset:{(addr & 0xffff) + 1024*half}"))
                t = ("v", f"buffer_load_dword v255, v{vHW[0]}, s[{SRD1}:{SRD1+3}], s{sHS[l]} offen offset:{1024*half} {cfg.stf}")
                if cfg.stouch == 1:
                    out.append(t)
                elif cfg.stouch == 2:
                    late.append(t)
                elif cfg.stouch == 3:
                    post.append(t)
        return out + late

    def epi2_instrs(lines):
        out = []
        for l in lines:
            for u in range(2):
                base = vACC + 8 * (2 * l + u)
                for k in range(4):
                    out.append(("v", f"v_cvt_pk_bf16_f32 v{base+k}, v{base+2*k}, v{base+2*k+1}"))
                out.append(("v", "s_nop 1"))
                out.append(("v", f"v_permlane32_swap_b32 v{base}, v{base+2}"))
                out.append(("v", f"v_permlane32_swap_b32 v{base+1}, v{base+3}"))
                for k in (0, 2, 1, 3):
                    out.append(("v", f"v_bfi_b32 v{base+k}, s{sML}, v{vTG+k}, v{base+k}"))
                out.append(("v", f"buffer_store_dwordx4 v[{base}:{base+3}], v{vL16}, s[{SRD1}:{SRD1+3}], s{sI0} offen offset:{1024*l+256*u} sc1"))
        return out

    fillers = []
    fill_start = 0
    fill_tiles = set()
    mfma_pos = {}
    fill_fresh = [False]

    def states_since(pos):
        c = 0
        for ln in A.L[pos + 1:]:
            t = ln.strip()
            if t.endswith(":") or t.startswith(";") or t.startswith("@@"):
                continue
            c += int(t.split()[1]) + 1 if t.startswith("s_nop") else 1
        return c

    def emit(kind, t):
        if fill_fresh[0]:
            fill_fresh[0] = False
            have = min(states_since(mfma_pos[tl]) for tl in fill_tiles)
            if have < 12:
                A(f"s_nop {12 - have - 1}")
        if kind == "w":
            ds_issue(t, "hw")
        else:
            A(t)

    def flush_fillers():
        nonlocal fillers
        for (kind, t) in fillers:
            emit(kind, t)
        fillers = []
        fill_tiles.clear()

    nread = 0
    for n in range(NI):
        it = items[n]
        lim = min(NI - 1, n + D)
        while nread <= lim:
            nx = items[nread]
            if nx["q"] > checked[0]:
                due = [l for l, v in hown_vis.items() if v == nx["q"]]
                if due:
                    if last_item[hown_w[due[0]]] >= n:
                        break
                    flush_fillers()
            key = (nx["q"], nx["kb"])
            if key in bread_of and (key, nx["sp"]) not in bdone:
                if any(items[m]["kb"] == nx["kb"] and items[m]["sp"] == nx["sp"] for m in range(n, nread)):
                    break
            issue_reads(nread)
            nread += 1
        assert nread > n
        if it["tile"] in fill_tiles:
            flush_fillers()
            A("s_nop 1")
        clean(n)
        ds_need({("A", n), ("B", it["kb"], it["sp"])})
        if it["first"]:
            ds_need({"hw"})
        if n in clean_pos and states_since(clean_pos[n]) < 2:
            A(f"s_nop {1 - states_since(clean_pos[n])}")
        ra = vAB + 4 * (n % nAB)
        rb = vXB + 16 * it["kb"] + 4 * it["sp"]
        acc = vACC + 16 * it["tile"]
        c = "0" if it["first"] else f"v[{acc}:{acc+15}]"
        A(f"v_mfma_f32_32x32x16_bf16 v[{acc}:{acc+15}], v[{ra}:{ra+3}], v[{rb}:{rb+3}], {c}")
        mfma_pos[it["tile"]] = len(A.L) - 1
        if n + 1 < nread:
            clean(n + 1)
        k = 0
        while fillers and k < cfg.fill and n >= fill_start:
            kind, t = fillers.pop(0)
            emit(kind, t)
            k += 1
        if not fillers:
            fill_tiles.clear()
            if post and it["q"] >= n_g1 and (n - last_item[n_g1 - 1]) >= cfg.stdel:
                A(post.pop(0)[1])
        if n == last_item[it["q"]]:
            q = it["q"]
            new = []
            if q in epi_after:
                new, tl = epi1_instrs(*epi_after[q]), epi_after[q][1]
            elif q in epi2_after:
                new, tl = epi2_instrs(epi2_after[q]), epi2_after[q]
            if new:
                stamp()
                flush_fillers()
                fillers = new
                fill_tiles.update(tl)
                fill_fresh[0] = True
                fill_start = n + 3
    flush_fillers()
    stamp()
    if cfg.rnb >= 1:
        A("s_barrier")
    reduce_code(1, 0)
    if TS:
        A("s_waitcnt vmcnt(0)")
        A("s_memrealtime s[98:99]")
        A("s_waitcnt lgkmcnt(0)")
        assert tsn[0] <= 14, tsn[0]
        A(f"s_mov_b32 s{sTS+28}, s98"); A(f"s_mov_b32 s{sTS+30}, s{sCNT}")
        tsn[0] = 16
        stamp_flush()
    if cfg.enc and cfg.encw < 4:
        A("s_branch L_noep")
    A("s_branch L_end")

    A.head("hl")
    A.label("L_helper")
    sG = 38
    A(f"s_lshl_b32 s{sG}, s{sWV}, 3")
    A(f"s_add_u32 s{sG}, s{sG}, s{sR}")
    A("v_mul_u32_u24 v8, 9216, v1")
    A("v_mul_u32_u24 v9, 1152, v1")
    A(f"s_mul_i32 s39, s{sJ}, 1152")
    A("s_waitcnt lgkmcnt(0)")
    NWT = 64

    def sdiv(dst, src, d):
        A(f"s_mul_i32 s{dst}, s{src}, {(65536 + d - 1) // d}")
        A(f"s_lshr_b32 s{dst}, s{dst}, 16")

    w2base = 0
    if cfg.touch and any(ROT):
        srd(SRD0, sW1, 5308416)
        srd(SRD1, sX, 589824)
        need = {kk: min((kk - r) % 9 for r in ROT) for kk in range(9)}
        kks = sorted([kk for kk in range(9) if need[kk] >= cfg.skipw], key=lambda kk: need[kk])
        KT = sum(kk << (4 * u) for u, kk in enumerate(kks))
        nW = 9 * len(kks)
        x0 = cfg.skipx
        nX = 8 * (9 - x0)
        tot = nW + nX
        for rnd in range((tot + NWT - 1) // NWT):
            if rnd == 1:
                A.tail("hl")
            k = A.uid()
            A(f"s_add_u32 s{sT0}, s{sG}, {NWT*rnd}")
            if NWT * rnd < nW:
                if NWT * rnd + NWT > nW:
                    A(f"s_cmp_ge_u32 s{sT0}, {nW}")
                    A(f"s_cbranch_scc1 L_hx{k}")
                sdiv(sT1, sT0, 9)
                A(f"s_mul_i32 s{sT2}, s{sT1}, 9")
                A(f"s_sub_u32 s{sT2}, s{sT0}, s{sT2}")
                A(f"s_lshl_b32 s{sT1}, s{sT1}, 2")
                A(f"s_lshr_b32 s{sT1}, {KT}, s{sT1}")
                A(f"s_and_b32 s{sT1}, s{sT1}, 15")
                A(f"s_mul_i32 s{sT1}, s{sT1}, {64*9216}")
                A(f"s_lshl_b32 s{sT2}, s{sT2}, 7")
                A(f"s_add_u32 s{sT1}, s{sT1}, s{sT2}")
                A(f"s_add_u32 s{sT1}, s{sT1}, s39")
                A(f"buffer_load_dword v255, v8, s[{SRD0}:{SRD0+3}], s{sT1} offen {cfg.tfl}")
                if NWT * rnd + NWT > nW:
                    A(f"s_branch L_ht{k}")
            if NWT * rnd + NWT > nW:
                A.label(f"L_hx{k}")
                if NWT * rnd + NWT > tot:
                    A(f"s_cmp_ge_u32 s{sT0}, {tot}")
                    A(f"s_cbranch_scc1 L_ht{k}")
                A(f"s_sub_u32 s{sT0}, s{sT0}, {nW - 8*x0}")
                A(f"s_and_b32 s{sT2}, s{sT0}, 7")
                A(f"s_lshr_b32 s{sT1}, s{sT0}, 3")
                A(f"s_lshl_b32 s{sT3}, s{sT2}, 2")
                A(f"s_lshr_b32 s{sT3}, {ROTTAB}, s{sT3}")
                A(f"s_and_b32 s{sT3}, s{sT3}, 15")
                A(f"s_add_u32 s{sT1}, s{sT1}, s{sT3}")
                A(f"s_cmp_ge_u32 s{sT1}, 9")
                A(f"s_cselect_b32 s{sT3}, 9, 0")
                A(f"s_sub_u32 s{sT1}, s{sT1}, s{sT3}")
                A(f"s_mul_i32 s{sT2}, s{sT2}, {64*1152}")
                A(f"s_lshl_b32 s{sT1}, s{sT1}, 7")
                A(f"s_add_u32 s{sT1}, s{sT1}, s{sT2}")
                A(f"buffer_load_dword v255, v9, s[{SRD1}:{SRD1+3}], s{sT1} offen")
            A.label(f"L_ht{k}")
        w2base = (NWT - tot % NWT) % NWT
    elif cfg.touch:
        srd(SRD0, sW1, 5308416)
        srd(SRD1, sX, 589824)
        phases, base = [], 0
        for pi, ls in enumerate(passes):
            t0 = cfg.ht0 if pi == 0 else 0
            c = 3 * len(ls) + (8 if pi == 0 else 0)
            phases.append((base, (9 - t0 - cfg.tn) * c, t0, c, ls))
            base += (9 - t0 - cfg.tn) * c
        w2base = (NWT - base % NWT) % NWT if cfg.w2rot else 0
        for rnd in range((base + NWT - 1) // NWT):
            if rnd == 1:
                A.tail("hl")
            k = A.uid()
            A(f"s_add_u32 s{sT0}, s{sG}, {NWT*rnd}")
            for (pb, cnt, t0, c, ls) in phases:
                if pb + cnt <= NWT * rnd or pb >= NWT * rnd + NWT:
                    continue
                k2 = A.uid()
                A(f"s_cmp_ge_u32 s{sT0}, {pb+cnt}")
                A(f"s_cbranch_scc1 L_hp{k2}")
                if pb:
                    A(f"s_sub_u32 s{sT0}, s{sT0}, {pb}")
                sdiv(sT1, sT0, c)
                A(f"s_mul_i32 s{sT2}, s{sT1}, {c}")
                A(f"s_sub_u32 s{sT2}, s{sT0}, s{sT2}")
                if t0:
                    A(f"s_add_u32 s{sT1}, s{sT1}, {t0}")
                if cfg.tn:
                    A(f"s_cmp_ge_u32 s{sT1}, {cfg.ta}")
                    A(f"s_cselect_b32 s{sT3}, {cfg.tn}, 0")
                    A(f"s_add_u32 s{sT1}, s{sT1}, s{sT3}")
                nw = 3 * len(ls)
                if c > nw:
                    A(f"s_cmp_ge_u32 s{sT2}, {nw}")
                    A(f"s_cbranch_scc1 L_hx{k2}")
                if len(ls) != 3:
                    if len(ls) == 1:
                        A(f"s_mul_i32 s{sT2}, s{sT2}, 3")
                    else:
                        A(f"s_lshr_b32 s{sT3}, s{sT2}, 1")
                        A(f"s_add_u32 s{sT2}, s{sT2}, s{sT3}")
                    if ls[0]:
                        A(f"s_add_u32 s{sT2}, s{sT2}, {ls[0]}")
                A(f"s_mul_i32 s{sT1}, s{sT1}, {64*9216}")
                A(f"s_lshl_b32 s{sT2}, s{sT2}, 7")
                A(f"s_add_u32 s{sT1}, s{sT1}, s{sT2}")
                A(f"s_add_u32 s{sT1}, s{sT1}, s39")
                A(f"buffer_load_dword v255, v8, s[{SRD0}:{SRD0+3}], s{sT1} offen {cfg.tfl}")
                A(f"s_branch L_ht{k}")
                if c > nw:
                    A.label(f"L_hx{k2}")
                    A(f"s_sub_u32 s{sT2}, s{sT2}, {nw}")
                    A(f"s_mul_i32 s{sT2}, s{sT2}, {64*1152}")
                    A(f"s_lshl_b32 s{sT1}, s{sT1}, 7")
                    A(f"s_add_u32 s{sT1}, s{sT1}, s{sT2}")
                    A(f"buffer_load_dword v255, v9, s[{SRD1}:{SRD1+3}], s{sT1} offen")
                    A(f"s_branch L_ht{k}")
                A.label(f"L_hp{k2}")
            A.label(f"L_ht{k}")
    def h_pretouch():
        srd(SRD1, sWS, 0x10000000)
        A("v_lshlrev_b32 v10, 7, v1")
        A(f"s_mul_i32 s{sT1}, s{sJ}, 589824")
        A(f"s_add_u32 s{sT1}, s{sT1}, {WS_IN if cfg.hpin else WS_H}")
        for rnd in range(2):
            k = A.uid()
            A(f"s_add_u32 s{sT0}, s{sG}, {NWT*rnd}")
            A(f"s_cmp_ge_u32 s{sT0}, 72")
            A(f"s_cbranch_scc1 L_ht{k}")
            A(f"s_lshl_b32 s{sT0}, s{sT0}, 13")
            A(f"s_add_u32 s{sT0}, s{sT0}, s{sT1}")
            A(f"buffer_load_dword v255, v10, s[{SRD1}:{SRD1+3}], s{sT0} offen {cfg.hpf}")
            A.label(f"L_ht{k}")
    if cfg.hpre == 1:
        h_pretouch()
    if cfg.touch:
        srd(SRD0, sW2, 5308416)
        A(f"s_mul_i32 s39, s{sJ}, 663552")
        korder = sorted(kbidx, key=lambda x: kbidx[x])
        tabD = sum(d << (2 * u) for u, (d, lk) in enumerate(korder))
        tabL = sum(lk << (2 * u) for u, (d, lk) in enumerate(korder))
        if w2base:
            A(f"s_add_u32 s{sG}, s{sG}, {w2base}")
            A(f"s_and_b32 s{sG}, s{sG}, 63")
        for rnd in range(2):
            k = A.uid()
            A(f"s_add_u32 s{sT0}, s{sG}, {NWT*rnd}")
            A(f"s_cmp_ge_u32 s{sT0}, 81")
            A(f"s_cbranch_scc1 L_ht{k}")
            sdiv(sT1, sT0, 9)
            A(f"s_mul_i32 s{sT2}, s{sT1}, 9")
            A(f"s_sub_u32 s{sT2}, s{sT0}, s{sT2}")
            sdiv(sT3, sT2, 3)
            A(f"s_lshl_b32 s{sT1}, s{sT1}, 1")
            A(f"s_lshr_b32 s{sT0}, {tabD}, s{sT1}")
            A(f"s_and_b32 s{sT0}, s{sT0}, 3")
            A(f"s_add_u32 s{sT0}, s{sT0}, s{sT3}")
            A(f"s_cmp_ge_u32 s{sT0}, 3")
            A(f"s_cselect_b32 s{sT3}, 3, 0")
            A(f"s_sub_u32 s{sT0}, s{sT0}, s{sT3}")
            A(f"s_lshr_b32 s{sT3}, {tabL}, s{sT1}")
            A(f"s_and_b32 s{sT3}, s{sT3}, 3")
            A(f"s_mul_i32 s{sT0}, s{sT0}, {192*1152}")
            A(f"s_mul_i32 s{sT3}, s{sT3}, {64*1152}")
            A(f"s_add_u32 s{sT0}, s{sT0}, s{sT3}")
            A(f"s_lshl_b32 s{sT2}, s{sT2}, 7")
            A(f"s_add_u32 s{sT0}, s{sT0}, s{sT2}")
            A(f"s_add_u32 s{sT0}, s{sT0}, s39")
            A(f"buffer_load_dword v255, v9, s[{SRD0}:{SRD0+3}], s{sT0} offen {cfg.tfl}")
            A.label(f"L_ht{k}")
    if cfg.hpre == 2:
        h_pretouch()
    if TS:
        tsn[0] = 1
        A("s_waitcnt vmcnt(0)")
        stamp()
        stamp()
        stamp_flush()
    A("s_branch L_end")
    A.tail("end")
    A.label("L_end")

    hdr = f"""; Fused MLP (x@w1+b1 -> relu^2 -> @w2+b2), generated by a python script (work/gen4.py)
; @launch grid=(256,1,1) block=(512,1,1) lds=163840
.amdgcn_target "amdgcn-amd-amdhsa--gfx950"
.text
.globl {KN}
.p2align 8
.type {KN},@function
{KN}:
"""
    ftr = f"""
    s_endpgm
.section .rodata,"a"
.p2align 6
.amdhsa_kernel {KN}
  .amdhsa_next_free_vgpr 256
  .amdhsa_next_free_sgpr 102
  .amdhsa_accum_offset 256
  .amdhsa_group_segment_fixed_size 0
  .amdhsa_kernarg_size 64
  .amdhsa_user_sgpr_count 2
  .amdhsa_user_sgpr_kernarg_segment_ptr 1
  .amdhsa_system_sgpr_workgroup_id_x 1
.end_amdhsa_kernel
"""
    return hdr + A.text(cfg.horder.split(","), cfg.torder.split(",") + ["end"]) + ftr


def parse_g2(s):
    out = []
    for stg in s.split(","):
        us = []
        for u in stg.split("+"):
            a, b = u.split(":")
            us.append((int(a[0]), int(a[1]), [int(c) for c in b]))
        out.append(us)
    return out


def ilist(s):
    return [int(x) for x in s.split(",")] if s else []


def main():
    ap = argparse.ArgumentParser()
    ap.add_argument("-o", default="k8.s")
    ap.add_argument("--ts", action="store_true")
    ap.add_argument("--passes", default="012")
    ap.add_argument("--depth", type=int, default=5)
    ap.add_argument("--fill", type=int, default=4)
    ap.add_argument("--grp1", type=int, default=3)
    ap.add_argument("--hres", type=float, default=2.5)
    ap.add_argument("--hearly", type=float, default=1.5)
    ap.add_argument("--hdel", type=int, default=1)
    ap.add_argument("--xfree", type=int, default=11)
    ap.add_argument("--g2", default="00:012,01:012,02:012,10:012,20:012,11:012,21:012,12:012,22:012")
    ap.add_argument("--tsq", default="")
    ap.add_argument("--verbose", action="store_true")
    ap.add_argument("--ahead", type=int, default=8)
    ap.add_argument("--ahead0", type=int, default=8)
    ap.add_argument("--capfrom", type=int, default=8)
    ap.add_argument("--capw", type=int, default=4)
    ap.add_argument("--capx", type=int, default=3)
    ap.add_argument("--burst", default="")
    ap.add_argument("--pause", default="")
    ap.add_argument("--go2lead", type=int, default=3)
    ap.add_argument("--sa", type=int, default=0)
    ap.add_argument("--ctouch", type=int, default=1)
    ap.add_argument("--wfl", default="")
    ap.add_argument("--tfl", default="")
    ap.add_argument("--rfl", default="sc1")
    ap.add_argument("--rsleep", type=int, default=0)
    ap.add_argument("--touch", type=int, default=1)
    ap.add_argument("--clrq", type=int, default=-1)
    ap.add_argument("--cdq", type=int, default=9)
    ap.add_argument("--rbar", type=int, default=0)
    ap.add_argument("--hsf", default="sc1")
    ap.add_argument("--hlf", default="sc1")
    ap.add_argument("--ofl", default="")
    ap.add_argument("--hpre", type=int, default=0)
    ap.add_argument("--rot", default="00000000")
    ap.add_argument("--ts0", type=int, default=0)
    ap.add_argument("--r0early", type=int, default=0)
    ap.add_argument("--rw1", type=int, default=0)
    ap.add_argument("--ofl1", default="")
    ap.add_argument("--rpq", type=int, default=10)
    ap.add_argument("--rb2", type=int, default=1)
    ap.add_argument("--rb4", type=int, default=0)
    ap.add_argument("--rearly", type=int, default=0)
    ap.add_argument("--hpf", default="")
    ap.add_argument("--hpin", type=int, default=0)
    ap.add_argument("--wsb", type=lambda x: int(x, 0), default=0)
    ap.add_argument("--enc", default="")
    ap.add_argument("--encw", type=int, default=4)
    ap.add_argument("--hfree", type=int, default=2)
    ap.add_argument("--stouch", type=int, default=0)
    ap.add_argument("--stdel", type=int, default=1)
    ap.add_argument("--stf", default="")
    ap.add_argument("--ta", type=int, default=0)
    ap.add_argument("--tn", type=int, default=0)
    ap.add_argument("--tpos", type=int, default=0)
    ap.add_argument("--w2rot", type=int, default=1)
    ap.add_argument("--rfast", type=int, default=1)
    ap.add_argument("--wt", type=int, default=0)
    ap.add_argument("--horder", default="w,x,h2,hl,c")
    ap.add_argument("--ht0", type=int, default=1)
    ap.add_argument("--first", type=int, default=4)
    ap.add_argument("--torder", default="hl,w,x,h2,c,red")
    ap.add_argument("--skipw", type=int, default=1)
    ap.add_argument("--skipx", type=int, default=1)
    cfg = ap.parse_args()
    cfg.passes = [[int(c) for c in p] for p in cfg.passes.split(",")]
    cfg.g2 = parse_g2(cfg.g2)
    cfg.rnb = cfg.rb2
    cfg.tsq, cfg.burst, cfg.pause = ilist(cfg.tsq), ilist(cfg.burst), ilist(cfg.pause)
    open(cfg.o, "w").write(build(cfg))


main()
```

```python
import sys, argparse

KN = "standalone__dense_activation_squared_relu__sampling_kernel"

WS_H = 0x0
WS_IN = 0x1000000
WS_CD = 0x1840000
WS_EP = 0x1850000
WS_TS = 0x8000000
SPIN_MAX = 100000
SGNMASK = 0x6A9956A5


class Asm:
    def __init__(self):
        self.L = []
        self.n = 0

    def __call__(self, s):
        self.L.append("    " + s)

    def label(self, s):
        self.L.append(s + ":")

    def c(self, s):
        self.L.append("    ; " + s)

    def uid(self):
        self.n += 1
        return self.n

    def head(self, role):
        self.L.append(f"@@HEAD {role}")

    def tail(self, role):
        self.L.append(f"@@TAIL {role}")

    def text(self, horder, torder):
        pro, heads, tails, cur = [], {}, {}, None
        cur = pro
        for ln in self.L:
            if ln.startswith("@@HEAD"):
                cur = heads.setdefault(ln.split()[1], [])
            elif ln.startswith("@@TAIL"):
                r = ln.split()[1]
                if r in heads:
                    heads[r].append(f"    s_branch L_tail_{r}")
                cur = tails.setdefault(r, [f"L_tail_{r}:"])
            else:
                cur.append(ln)
        assert sorted(heads) == sorted(horder) and sorted(tails) == sorted(torder), (heads.keys(), tails.keys())
        out = pro
        for r in horder:
            out += heads[r]
        out.append("L_heads_end:")
        for r in torder:
            out += tails[r]
        return "\n".join(out)


def build(cfg):
    global WS_H, WS_IN, WS_EP
    WS_H = cfg.wsb
    WS_IN = cfg.wsb + 0x480000
    WS_EP = cfg.wsb + 0x900000
    A = Asm()
    TS = cfg.ts
    passes = cfg.passes
    D = cfg.depth

    stages, blocks, order = [], {}, []

    def blk(name, **kw):
        blocks[name] = dict(name=name, **kw)
        return name

    def add_stage(units, breads):
        q = len(stages)
        stages.append(dict(units=units, breads=breads, q=q))
        for (bb, _kb) in breads:
            b = blocks[bb]
            b["need"] = b["last"] = q
            if b["kind"] != "Hown":
                order.append(bb)
        for (_t, wb, _kb, _first) in units:
            b = blocks[wb]
            if "need" not in b:
                b["need"] = q
                order.append(wb)
            b["last"] = q
        return q

    epi_after, pass_of_line = {}, {}
    for pi, lines in enumerate(passes):
        grp = 1 if (len(lines) > 1 or pi == 0) else cfg.grp1
        for t0 in range(0, 9, grp):
            units, breads = [], []
            for t in range(t0, t0 + grp):
                if pi == 0:
                    breads.append((blk(f"X{t}", kind="X", t=t), t))
                for l in lines:
                    units.append((l, blk(f"W{t}_{l}", kind="W1", t=t, l=l), t, False))
            q = add_stage(units, breads)
        epi_after[q] = (pi, list(lines))
        for l in lines:
            pass_of_line[l] = pi
    n_g1 = len(stages)
    kbidx = {}
    first = {0: True, 1: True, 2: True}
    cnt2 = {0: 0, 1: 0, 2: 0}
    epi2_after = {}
    for stg in cfg.g2:
        units, breads = [], []
        for (d, lk, lines) in stg:
            if (d, lk) not in kbidx:
                kbidx[(d, lk)] = len(kbidx)
                breads.append((blk(f"H{d}_{lk}", kind="Hown" if d == 0 else f"H{d}", d=d, lk=lk), kbidx[(d, lk)]))
            for l in lines:
                units.append((l, blk(f"V{d}_{lk}_{l}", kind="W2", d=d, lk=lk, l=l), kbidx[(d, lk)], first[l]))
                first[l] = False
                cnt2[l] += 1
        q = add_stage(units, breads)
        done = [l for l in range(3) if cnt2[l] == 9 and not any(l in v for v in epi2_after.values())]
        if done:
            epi2_after[q] = done
    assert all(v == 9 for v in cnt2.values())
    NQ = len(stages)
    hown_w = {l: q for q, (pi, lines) in epi_after.items() for l in lines}
    hown_vis = {l: (q + 1 if q == n_g1 - 1 else q + 2) for l, q in hown_w.items()}
    for l in hown_w:
        assert blocks[f"H0_{l}"]["need"] >= hown_vis[l]
    hfetch = {l: hown_vis[l] + cfg.hdel for l in hown_w}

    free_at = {s: -10 for s in range(20)}
    events = [(blocks[nm]["need"] - (cfg.hearly if blocks[nm]["kind"] in ("H1", "H2") else 0), 1, k, nm) for k, nm in enumerate(order)]
    for l, qw in hown_w.items():
        events.append((qw - cfg.hres, 0, l, f"H0_{l}"))
    events.sort()
    for ev in events:
        b = blocks[ev[3]]
        if b["kind"] == "X":
            cand = [16, 17, 18, 19]
        elif ev[0] < cfg.xfree:
            cand = list(range(0, 16))
        else:
            cand = list(range(0, 20))
        s = min(cand, key=lambda s: (free_at[s], s))
        b["slot"] = s
        b["free"] = free_at[s]
        if b["kind"] == "Hown":
            assert b["free"] + cfg.hfree <= hown_w[b["lk"]], b
        else:
            assert b["free"] + 2 < b["need"], b
        free_at[s] = b["last"]
    if cfg.verbose:
        print(" | ".join(f"{blocks[e[3]]['name']}:s{blocks[e[3]]['slot']} f{blocks[e[3]]['free']} n{blocks[e[3]]['need']}" for e in events), file=sys.stderr)
    for k, nm in enumerate(order):
        blocks[nm]["pos"] = k
    cum = [sum(1 for nm in order if blocks[nm]["need"] <= q) for q in range(NQ)]

    sX, sW1, sB1, sW2, sB2, sOUT, sDBG, sWS = 16, 18, 20, 22, 24, 26, 28, 30
    sJ, sR, sMT, sI, sWV, sWK = 32, 33, 34, 35, 36, 37
    SRD0, SRD1, SRD2 = 40, 44, 48
    sT0, sT1, sT2, sT3, sT4, sT5 = 52, 53, 54, 55, 56, 57
    sCNT = 58
    sTAG, sPB = 6, 8
    sTS = 64
    tsn = [0]

    def stamp():
        if TS:
            k = tsn[0]
            assert k < 16
            A(f"s_memtime s[{sTS+2*k}:{sTS+2*k+1}]")
            tsn[0] += 1

    def srd(d, p, nbytes):
        A(f"s_mov_b32 s{d}, s{p}")
        A(f"s_mov_b32 s{d+1}, s{p+1}")
        A(f"s_mov_b32 s{d+2}, {nbytes}")
        A(f"s_mov_b32 s{d+3}, 0x00020000")

    def stamp_flush():
        if not TS:
            return
        n = tsn[0]
        A("s_waitcnt lgkmcnt(0)")
        srd(SRD2, sWS, 0x10000000)
        A(f"s_lshl_b32 s{sT0}, s2, 9")
        A(f"s_lshl_b32 s{sT1}, s{sWV}, 6")
        A(f"s_add_u32 s{sT0}, s{sT0}, s{sT1}")
        A(f"s_add_u32 s{sT0}, s{sT0}, {WS_TS}")
        A(f"v_mov_b32 v2, s{sT0}")
        A("s_mov_b64 exec, 1")
        for k in range(n):
            A(f"v_mov_b32 v3, s{sTS+2*k}")
            A(f"buffer_store_dword v3, v2, s[{SRD2}:{SRD2+3}], 0 offen offset:{4*k}")
        A("s_mov_b64 exec, -1")

    def epoch_load(smt):
        A(f"s_lshl_b32 s{sT0}, s{smt}, 7")
        A(f"s_add_u32 s{sT0}, s{sT0}, {WS_EP}")
        A(f"s_load_dword s{sTAG}, s[{sWS}:{sWS+1}], s{sT0}")

    def epoch_fin():
        A("s_waitcnt lgkmcnt(0)")
        A(f"s_add_u32 s{sTAG}, s{sTAG}, 1")
        A(f"s_mul_i32 s{sTAG+1}, s{sTAG}, 0x02020202")
        A(f"s_and_b32 s{sTAG+1}, s{sTAG+1}, 0xeeeeeeee")
        A(f"s_or_b32 s{sTAG+1}, s{sTAG+1}, 0x10101010")

    def tag_regs(vd, vt):
        A(f"v_and_b32 v{vt}, 3, v1")
        A(f"v_lshlrev_b32 v{vt}, 3, v{vt}")
        A(f"v_lshrrev_b32 v{vt}, v{vt}, s{sTAG+1}")
        for k in range(4):
            A(f"v_bfe_u32 v{vd+k}, v{vt}, {2*k}, 2")
            A(f"v_mul_u32_u24 v{vd+k}, 0x8001, v{vd+k}")
            A(f"v_and_b32 v{vd+k}, 0x10001, v{vd+k}")
            A(f"v_lshl_or_b32 v{vd+k}, v{vd+k}, 15, v{vd+k}")

    def sign_reg(vd, vt):
        A(f"s_bitcmp1_b32 s{sTAG}, 0")
        A(f"s_cselect_b32 s{sT0}, -1, 0")
        A(f"s_xor_b32 s{sT0}, s{sT0}, {SGNMASK}")
        A(f"v_and_b32 v{vt}, 31, v1")
        A(f"v_lshrrev_b32 v{vt}, v{vt}, s{sT0}")
        A(f"v_bfe_i32 v{vt}, v{vt}, 0, 1")
        A(f"v_and_b32 v{vd}, 0x80008000, v{vt}")

    def sspin(loads, npairs, base):
        k = A.uid()
        A(f"s_mov_b32 s{sCNT}, 0")
        A.label(f"L_s{k}")
        for x in loads:
            A(x)
        A(f"s_add_u32 s{sCNT}, s{sCNT}, 1")
        A("s_waitcnt lgkmcnt(0)")
        A(f"s_cmp_gt_u32 s{sCNT}, {SPIN_MAX}")
        A(f"s_cbranch_scc1 L_sd{k}")
        for n in range(npairs):
            A(f"s_cmp_lg_u64 s[{base+2*n}:{base+2*n+1}], s[{sTAG}:{sTAG+1}]")
            A(f"s_cbranch_scc1 L_s{k}")
        A.label(f"L_sd{k}")

    def mod3add(dst, d, tmp):
        A(f"s_add_u32 s{dst}, s{sI}, {d}")
        A(f"s_cmp_ge_u32 s{dst}, 3")
        A(f"s_cselect_b32 s{tmp}, 3, 0")
        A(f"s_sub_u32 s{dst}, s{dst}, s{tmp}")

    A("s_cmp_ge_u32 s2, 256")
    A("s_cbranch_scc1 L_end")
    A("s_load_dwordx16 s[16:31], s[0:1], 0")
    if cfg.ctouch == 1:
        A("s_getpc_b64 s[4:5]")
        A.label("L_pc")
        A("v_lshlrev_b32 v2, 7, v0")
        A("v_min_u32 v2, L_end-L_pc, v2")
        A("v_and_b32 v2, 0xfffffffc, v2")
        A("global_load_dword v255, v2, s[4:5]")
    elif cfg.ctouch == 2:
        A("s_getpc_b64 s[4:5]")
        A.label("L_pc")
        A("s_lshr_b32 s3, s2, 3")
        A("s_lshl_b32 s3, s3, 11")
        A("v_lshrrev_b32 v2, 5, v0")
        A("v_lshl_add_u32 v2, v2, 7, s3")
        A("v_min_u32 v2, L_end-L_pc, v2")
        A("v_and_b32 v2, 0xfffffffc, v2")
        A("global_load_dword v255, v2, s[4:5]")
    if TS:
        A("s_memrealtime s[96:97]")
    if cfg.enc:
        A("s_memrealtime s[96:97]")
        if cfg.enc == "none":
            A("s_memrealtime s[94:95]")

    def enc(p):
        if cfg.enc == p:
            A("s_memrealtime s[94:95]")
    stamp()
    A("v_and_b32 v1, 63, v0")
    A("v_lshrrev_b32 v2, 6, v0")
    A(f"s_and_b32 s{sJ}, s2, 7")
    A(f"v_readfirstlane_b32 s{sWV}, v2")
    A(f"s_lshr_b32 s{sR}, s2, 3")
    A(f"s_cmp_lt_u32 s{sR}, 8")
    A("s_cbranch_scc1 L_helper")
    A(f"s_sub_u32 s{sR}, s{sR}, 8")
    A(f"s_mul_i32 s{sMT}, s{sR}, 21846")
    A(f"s_lshr_b32 s{sMT}, s{sMT}, 16")
    A(f"s_mul_i32 s{sT0}, s{sMT}, 3")
    A(f"s_sub_u32 s{sI}, s{sR}, s{sT0}")
    A(f"s_mul_i32 s{sWK}, s{sJ}, 24")
    A(f"s_add_u32 s{sWK}, s{sWK}, s{sR}")
    ROT = [int(c) for c in cfg.rot]
    ROTTAB = sum(r << (4 * m) for m, r in enumerate(ROT))
    sROT, sLO, sHI = 10, 11, 12
    if any(ROT):
        A(f"s_lshl_b32 s{sROT}, s{sMT}, 2")
        A(f"s_lshr_b32 s{sROT}, {ROTTAB}, s{sROT}")
        A(f"s_and_b32 s{sROT}, s{sROT}, 15")

    def rot_setup(sbase, stride):
        if any(ROT):
            A(f"s_mul_i32 s{sLO}, s{sROT}, {stride}")
            A(f"s_add_u32 s{sLO}, s{sLO}, s{sbase}")
            A(f"s_sub_u32 s{sHI}, s{sLO}, {9*stride}")

    def rot_addr(dst, sbase, t, stride, extra):
        if any(ROT):
            if t + max(ROT) < 9:
                A(f"s_add_u32 s{dst}, s{sLO}, {t*stride + extra}")
            else:
                A(f"s_cmp_lt_u32 s{sROT}, {9-t}")
                A(f"s_cselect_b32 s{dst}, s{sLO}, s{sHI}")
                A(f"s_add_u32 s{dst}, s{dst}, {t*stride + extra}")
        else:
            A(f"s_add_u32 s{dst}, s{sbase}, {t*stride + extra}")
    A(f"s_cmp_lt_u32 s{sWV}, 4")
    A("s_cbranch_scc1 L_compute")
    A(f"s_cmp_eq_u32 s{sWV}, 6")
    A("s_cbranch_scc1 L_xh")
    A(f"s_cmp_eq_u32 s{sWV}, 7")
    A("s_cbranch_scc1 L_h2")
    ts_base = tsn[0]

    def loader_stream(kinds, per_block, issue_fn, setup_fn, cap, group=False, validate=None, before_bar=None, role=None):
        mine = [blocks[nm] for nm in order if blocks[nm]["kind"] in kinds]
        outstanding, pend = [], list(mine)
        nb = lambda nm: blocks[nm]["n"] if blocks[nm]["kind"] == "extra" else (per_block(blocks[nm]) if callable(per_block) else per_block)
        cnt = lambda lst: sum(nb(x) for x in lst)

        def ok(b, q):
            if b["free"] + 2 > q:
                return False
            if b["kind"] in ("H1", "H2") and q < min(hfetch[b["lk"]], b["need"] - 1):
                return False
            return True

        def issue_upto(q, ahead, cap):
            n = 0
            lim = cum[q] + ahead if q >= 0 else ahead
            while pend and ok(pend[0], q):
                must = pend[0]["need"] <= q + 1 or pend[0]["pos"] < lim
                if not must and n >= cap:
                    break
                grp = [pend.pop(0)]
                while group and pend and ok(pend[0], q) and pend[0]["need"] == grp[0]["need"] and len(grp) < 3 \
                        and (pend[0]["pos"] < lim or n + len(grp) < cap or pend[0]["need"] <= q + 1):
                    grp.append(pend.pop(0))
                need_n = sum(nb(x["name"]) for x in grp)
                if cnt(outstanding) + need_n > 63:
                    while cnt(outstanding) + need_n > 63:
                        del outstanding[0]
                    A(f"s_waitcnt vmcnt({cnt(outstanding)})")
                issue_fn(grp if group else grp[0])
                if cfg.verbose:
                    print(f"   after B{q}: " + " ".join(x["name"] for x in grp), file=sys.stderr)
                outstanding.extend(x["name"] for x in grp)
                n += len(grp)

        issue_upto(-1, cfg.first, 0)
        if cfg.ts0:
            stamp()
        if role == "w":
            enc("iss")
        A.tail(role)
        pr = cfg.priow if role == "w" else cfg.prioh
        if pr:
            A(f"s_setprio {pr}")
        setup_fn()
        issue_upto(-1, cfg.ahead0, 0)
        for q in range(NQ):
            assert not any(b["need"] <= q for b in pend), (q, pend[0])
            def wait_for(b):
                if b["name"] in outstanding:
                    idx = max(i for i, nm in enumerate(outstanding) if blocks[nm]["need"] <= q) if validate is None \
                        else outstanding.index(b["name"])
                    del outstanding[:idx + 1]
                    A(f"s_waitcnt vmcnt({cnt(outstanding)})")
            hs = []
            for b in mine:
                if b["need"] == q:
                    if validate is not None and b["kind"] != "X":
                        hs.append(b)
                    else:
                        wait_for(b)
            if hs:
                validate(hs, wait_for)
            if before_bar is not None:
                ex = before_bar(q)
                if ex:
                    nm = f"extra{A.uid()}"
                    blocks[nm] = dict(name=nm, kind="extra", n=ex, need=99)
                    outstanding.append(nm)
            if q in cfg.tsq:
                stamp()
            A("s_barrier")
            if role == "w":
                enc(f"B{q}")
            if q in cfg.pause:
                issue_upto(q, 0, 0)
            else:
                issue_upto(q, cfg.ahead, 99 if q in cfg.burst else (cap if q >= cfg.capfrom else 0))
        assert not pend

    vRA, vRO, vRB, vRC, vRD, vRT, vRX, vRZ, vRG = 64, 65, 66, 72, 80, 112, 116, 117, 120
    sRI, sRO, sC = 60, 61, 13

    def vr(r, W):
        return f"v{r}" if W == 1 else f"v[{r}:{r+W-1}]"

    def dw(W):
        return "dword" if W == 1 else f"dwordx{W}"

    def red_pre(W):
        if W == 2:
            A(f"s_sub_u32 s{sC}, s{sWV}, 4")
            A(f"v_lshlrev_b32 v{vRA}, 3, v1")
            A(f"s_lshl_b32 s{sRO}, s{sC}, 6")
            A(f"s_lshl_b32 s{sRI}, s{sC}, 9")
            A(f"v_lshrrev_b32 v{vRT}, 4, v1")
            A(f"v_and_b32 v{vRT+1}, 1, v1")
            A(f"v_lshlrev_b32 v{vRT+1}, 3, v{vRT+1}")
            A(f"v_lshl_add_u32 v{vRT}, v{vRT}, 4, v{vRT+1}")
            A(f"v_bfe_u32 v{vRT+2}, v1, 1, 3")
            A(f"v_and_b32 v{vRT+3}, 7, v1")
            A(f"v_lshlrev_b32 v{vRT+3}, 2, v{vRT+3}")
        else:
            A(f"s_add_u32 s{sC}, s{sWV}, 8")
            A(f"v_lshlrev_b32 v{vRA}, 2, v1")
            A(f"s_lshl_b32 s{sRO}, s{sC}, 5")
            A(f"s_lshl_b32 s{sRI}, s{sC}, 8")
            A(f"v_lshrrev_b32 v{vRT}, 5, v1")
            A(f"v_and_b32 v{vRT+1}, 3, v1")
            A(f"v_lshlrev_b32 v{vRT+1}, 2, v{vRT+1}")
            A(f"v_lshl_add_u32 v{vRT}, v{vRT}, 4, v{vRT+1}")
            A(f"v_bfe_u32 v{vRT+2}, v1, 2, 3")
            A(f"v_and_b32 v{vRT+3}, 15, v1")
            A(f"v_lshlrev_b32 v{vRT+3}, 1, v{vRT+3}")
        A(f"s_mul_i32 s{sT1}, s{sI}, 384")
        A(f"s_add_u32 s{sRO}, s{sRO}, s{sT1}")
        if W == 2:
            srd(SRD2, sB2, 1152)
            A(f"buffer_load_{dw(W)} {vr(vRB, W)}, v{vRT}, s[{SRD2}:{SRD2+3}], s{sRO} offen")
        else:
            A(f"v_mov_b32 v{vRB}, v249")
        A(f"s_lshl_b32 s{sT1}, s{sJ}, 3")
        A(f"s_lshl_b32 s{sT3}, s{sMT}, 6")
        A(f"s_add_u32 s{sT1}, s{sT1}, s{sT3}")
        A(f"s_mul_i32 s{sT1}, s{sT1}, 1152")
        A(f"s_add_u32 s{sRO}, s{sRO}, s{sT1}")
        A(f"v_mul_u32_u24 v{vRT+2}, 1152, v{vRT+2}")
        A(f"v_add_u32 v{vRO}, v{vRT}, v{vRT+2}")
        A(f"s_mul_i32 s{sT1}, s{sWK}, {8*3072}")
        A(f"s_add_u32 s{sRI}, s{sRI}, s{sT1}")
        A(f"s_add_u32 s{sRI}, s{sRI}, {WS_IN}")
        A(f"v_mov_b32 v{vRZ}, 0")
        A(f"v_lshrrev_b32 v{vRT+3}, v{vRT+3}, s{sTAG+1}")
        for k in range(W):
            A(f"v_bfe_u32 v{vRG+k}, v{vRT+3}, {2*k}, 2")
            A(f"v_mul_u32_u24 v{vRG+k}, 0x8001, v{vRG+k}")
        A(f"v_mov_b32 v{vRG+4}, 0x10001")
        A(f"v_mov_b32 v{vRG+5}, 0xffff0000")
        return 1

    def red_init(W):
        for k in range(W):
            A(f"v_lshlrev_b32 v{vRC+2*k}, 16, v{vRB+k}")
            A(f"v_and_b32 v{vRC+1+2*k}, v{vRG+5}, v{vRB+k}")

    def bb_w(q):
        if q == 2:
            epoch_fin()
        if q == cfg.rpq:
            return red_pre(2)
        if q == cfg.rpq + 3:
            red_init(2)

    A.head("w")
    sHW = sT5
    A(f"s_sub_u32 s{sHW}, s{sWV}, 4")
    A("v_lshrrev_b32 v2, 3, v1")
    A("v_and_b32 v3, 7, v1")
    A("v_bfe_u32 v4, v1, 4, 1")
    A("v_lshlrev_b32 v4, 2, v4")
    A("v_xor_b32 v3, v3, v4")
    A("v_lshlrev_b32 v3, 4, v3")
    A("v_lshrrev_b32 v4, 2, v2")
    A("v_and_b32 v5, 3, v2")
    A("v_lshl_add_u32 v4, v4, 3, v5")
    A(f"s_lshl_b32 s{sT0}, s{sHW}, 5")
    A(f"v_add_u32 v4, s{sT0}, v4")
    A("v_mul_u32_u24 v4, 9216, v4")
    A("v_add_u32 v4, v4, v3")
    for c in range(1, 4):
        A(f"v_add_u32 v{4+c}, {(16*(c>>1)+4*(c&1))*9216 - 1024*c}, v4")
    sLW, sC1 = sT4, 38
    A(f"s_lshl_b32 s{sLW}, s{sHW}, 12")
    A(f"s_mul_i32 s{sC1}, s{sJ}, 1152")
    A(f"s_mul_i32 s{sT1}, s{sI}, 384")
    A(f"s_add_u32 s{sC1}, s{sC1}, s{sT1}")
    rot_setup(sC1, 64*9216)
    if cfg.wt:
        A("v_and_b32 v12, 7, v1")
        A("v_lshrrev_b32 v13, 5, v1")
        A("v_lshl_add_u32 v12, v13, 6, v12")
        A("v_mul_u32_u24 v12, 9216, v12")
        A("v_bfe_u32 v13, v1, 3, 2")
        A("v_lshl_add_u32 v12, v13, 7, v12")
        A(f"s_lshl_b32 s{sT0}, s{sHW}, 4")
        A(f"s_add_u32 s{sT0}, s{sT0}, s{sMT}")
        A(f"s_mul_i32 s{sT0}, s{sT0}, {8*9216}")
        A(f"s_add_u32 s{sT0}, s{sT0}, s{sC1}")
        msk = [sum(0xffffff << (32 * h) for h in range(2) if 2 * w + h < cfg.wt) for w in range(2)]
        A(f"s_mov_b32 exec_lo, {msk[0] & 0xffffffff}")
        A(f"s_mov_b32 exec_hi, {msk[0] >> 32}")
        if msk[1] != msk[0]:
            A(f"s_cmp_eq_u32 s{sHW}, 0")
            A(f"s_cselect_b32 exec_lo, exec_lo, {(msk[1] & 0xffffffff) or 1}")
            A(f"s_cselect_b32 exec_hi, exec_hi, {msk[1] >> 32}")
    A("s_waitcnt lgkmcnt(0)")
    if cfg.ts0:
        stamp()
    srd(SRD0, sW1, 5308416)
    if cfg.wt:
        A(f"buffer_load_dword v255, v12, s[{SRD0}:{SRD0+3}], s{sT0} offen")
        A("s_mov_b64 exec, -1")
    sV = [62, 63, 59]

    def w2_setup():
        epoch_load(sMT)
        A(f"s_lshl_b32 s{sT0}, s{sHW}, 5")
        A(f"v_add_u32 v8, s{sT0}, v2")
        A("v_mul_u32_u24 v8, 1152, v8")
        A("v_add_u32 v8, v8, v3")
        for c in range(1, 4):
            A(f"v_add_u32 v{8+c}, {8*c*1152 - 1024*c}, v8")
        A(f"s_mul_i32 s39, s{sJ}, {576*1152}")
        A(f"s_mul_i32 s{sT0}, s{sI}, 384")
        A(f"s_add_u32 s39, s39, s{sT0}")
        for d in range(3):
            mod3add(sT1, d, sT2)
            A(f"s_mul_i32 s{sT1}, s{sT1}, {192*1152}")
            A(f"s_add_u32 s{sV[d]}, s39, s{sT1}")
        srd(SRD1, sW2, 5308416)

    def issue_w(grp):
        for b in grp:
            A(f"s_add_u32 m0, s{sLW}, {b['slot']*8192}")
            if b["kind"] == "W1":
                rot_addr(sT0, sC1, b['t'], 64*9216, 128*b['l'])
                vb, sr = 4, SRD0
            else:
                A(f"s_add_u32 s{sT0}, s{sV[b['d']]}, {64*b['lk']*1152 + 128*b['l']}")
                vb, sr = 8, SRD1
            for c in range(4):
                A(f"buffer_load_dwordx4 v{vb+c}, s[{sr}:{sr+3}], s{sT0} offen offset:{1024*c} {cfg.wfl} lds")

    loader_stream(("W1", "W2"), 4, issue_w, w2_setup, cfg.capw, group=True,
                  before_bar=bb_w, role="w")
    A("s_branch L_reduce")
    ts_max = tsn[0]

    sXB = 38
    sH = {1: 39, 2: 59}
    HALF = [0]

    def h_setup(half):
        A("v_lshlrev_b32 v12, 4, v1")
        A("v_add_u32 v13, 0x10000, v12")
        A("v_add_u32 v14, 0x20000, v12")
        A(f"s_sub_u32 s{sT0}, s{sWK}, s{sI}")
        for d in (1, 2):
            mod3add(sT1, d, sT2)
            A(f"s_add_u32 s{sT1}, s{sT1}, s{sT0}")
            A(f"s_mul_i32 s{sH[d]}, s{sT1}, 24576")
        srd(SRD1, sWS, 0x10000000)
        epoch_load(sMT)

    def issue_xh(b):
        for h in (range(2) if b["kind"] == "X" else HALF):
            A(f"s_mov_b32 m0, {b['slot']*8192 + 4096*h}")
            if b["kind"] == "X":
                rot_addr(sT0, sXB, b['t'], 128, 32*1152*h)
                for c in range(4):
                    A(f"buffer_load_dwordx4 v{8+c}, s[{SRD0}:{SRD0+3}], s{sT0} offen offset:{1024*c} lds")
            else:
                A(f"s_add_u32 s{sT0}, s{sH[b['d']]}, {WS_H + 8192*b['lk'] + 4096*h}")
                for c in range(4):
                    A(f"buffer_load_dwordx4 v12, s[{SRD1}:{SRD1+3}], s{sT0} offen offset:{1024*c} {cfg.hlf} lds")

    retry_code = []

    def validate(hs, wait_for):
        k = A.uid()

        def rd(i):
            addr = hs[i]["slot"] * 8192 + 4096 * HALF[0]
            for c in range(4):
                r = 128 + 16 * i + 4 * c
                A(f"ds_read_b128 v[{r}:{r+3}], v{12 + (addr >> 16)} offset:{(addr & 0xffff) + 1024*c}")

        def valu(i, later):
            for c in range(4):
                r = 128 + 16 * i + 4 * c
                A(f"s_waitcnt lgkmcnt({3-c+later})")
                for kk in range(4):
                    ac = 16 + ((kk + 2) & 3)
                    if i == 0 and c == 0:
                        A(f"v_xor_b32 v{ac}, v{r+kk}, v{25+kk}")
                    else:
                        A(f"v_bitop3_b32 v{ac}, v{ac}, v{r+kk}, v{25+kk} bitop3:0xf6")
        A.label(f"L_v{k}")
        for i in range(len(hs)):
            wait_for(hs[i])
            rd(i)
            if i:
                valu(i - 1, 4)
        valu(len(hs) - 1, 0)
        A("v_or3_b32 v16, v16, v17, v18")
        A("v_bitop3_b32 v16, v16, v19, v24 bitop3:0xa8")
        A("v_cmp_ne_u32 vcc, 0, v16")
        A(f"s_cbranch_vccnz L_vr{k}")
        A.label(f"L_vd{k}")
        n0 = len(A.L)
        A.label(f"L_vr{k}")
        A(f"s_cmp_gt_u32 s{sCNT}, {SPIN_MAX}")
        A(f"s_cbranch_scc1 L_vd{k}")
        for b in hs:
            issue_xh(b)
        A(f"s_add_u32 s{sCNT}, s{sCNT}, 1")
        A("s_waitcnt vmcnt(0)")
        A(f"s_branch L_v{k}")
        retry_code.extend(A.L[n0:])
        del A.L[n0:]

    def flush_retry():
        A.L.extend(retry_code)
        retry_code.clear()

    def bb_tag(q):
        if q == 2:
            epoch_fin()
            tag_regs(25, 16)
            A(f"v_mov_b32 v24, {0x10001 if cfg.hlsb else 0x80008000}")
            A(f"s_mov_b32 s{sCNT}, 0")
        if q == cfg.rpq:
            return red_pre(2)
        if q == cfg.rpq + 3:
            red_init(2)

    A.head("x")
    A.label("L_xh")
    tsn[0] = ts_base
    A("v_lshrrev_b32 v2, 3, v1")
    A("v_and_b32 v3, 7, v1")
    A("v_lshrrev_b32 v4, 4, v1")
    A("v_xor_b32 v3, v3, v4")
    A("v_lshlrev_b32 v3, 4, v3")
    A("v_mul_u32_u24 v4, 1152, v2")
    A("v_add_u32 v8, v4, v3")
    A("v_xor_b32 v5, 64, v8")
    A(f"v_add_u32 v9, {8*1152 - 1024}, v5")
    A(f"v_add_u32 v10, {16*1152 - 2048}, v8")
    A(f"v_add_u32 v11, {24*1152 - 3072}, v5")
    A(f"s_mul_i32 s{sXB}, s{sMT}, {64*1152}")
    rot_setup(sXB, 128)

    def x_touch_pre(st0):
        A(f"s_mul_i32 s{sT0}, s{sI}, 22")
        A("v_and_b32 v12, 31, v1")
        A(f"v_add_u32 v12, s{sT0}, v12")
        A("v_min_u32 v12, 63, v12")
        A("v_mul_u32_u24 v12, 1152, v12")
        A("v_lshrrev_b32 v13, 5, v1")
        A("v_lshl_add_u32 v12, v13, 7, v12")
        A("s_mov_b32 exec_lo, 0x3fffff")
        A(f"s_mov_b32 exec_hi, {0x3fffff if cfg.wt > st0 + 1 else 0}")

    def x_touch(st0):
        A(f"buffer_load_dword v255, v12, s[{SRD0}:{SRD0+3}], s{sXB} offen offset:{128*st0}")
        A("s_mov_b64 exec, -1")
    if cfg.wt:
        x_touch_pre(0)
    A("s_waitcnt lgkmcnt(0)")
    if cfg.ts0:
        stamp()
    srd(SRD0, sX, 589824)
    if cfg.wt:
        x_touch(0)
    nbx = lambda b: 8 if b["kind"] == "X" else 4
    loader_stream(("X", "H1", "H2"), nbx, issue_xh, lambda: h_setup(0), cfg.capx, validate=validate, before_bar=bb_tag, role="x")
    if TS:
        A(f"s_mov_b32 s{sTS+24}, s{sCNT}")
    A("s_branch L_reduce")
    flush_retry()
    ts_max = max(ts_max, tsn[0])

    A.head("h2")
    A.label("L_h2")
    tsn[0] = ts_base
    if cfg.wt > 2:
        A(f"s_mul_i32 s{sXB}, s{sMT}, {64*1152}")
        x_touch_pre(2)
    A("s_waitcnt lgkmcnt(0)")
    if cfg.wt > 2:
        srd(SRD0, sX, 589824)
        x_touch(2)
    srd(SRD1, sWS, 0x10000000)
    if cfg.hpre == 3:
        A("v_lshlrev_b32 v3, 7, v1")
        A(f"s_mul_i32 s{sT1}, s{sWK}, 24576")
        for c in range(3):
            A(f"buffer_load_dword v255, v3, s[{SRD1}:{SRD1+3}], s{sT1} offen")
            A(f"s_add_u32 s{sT1}, s{sT1}, 8192")

    def w7_touch():
        st = list(range(cfg.ta, cfg.ta + cfg.tn))
        srd(SRD0, sX, 589824)
        srd(SRD2, sW1, 5308416)
        A(f"s_mul_i32 s{sXB}, s{sMT}, {64*1152}")
        A(f"s_mul_i32 s{sT0}, s{sI}, 22")
        A("v_and_b32 v2, 31, v1")
        A(f"v_add_u32 v2, s{sT0}, v2")
        A("v_min_u32 v2, 63, v2")
        A("v_mul_u32_u24 v2, 1152, v2")
        A("v_lshrrev_b32 v4, 5, v1")
        A("v_lshl_add_u32 v2, v4, 7, v2")
        A("v_and_b32 v3, 7, v1")
        A("v_lshl_add_u32 v3, v4, 6, v3")
        A("v_mul_u32_u24 v3, 9216, v3")
        A("v_bfe_u32 v4, v1, 3, 2")
        A("v_lshl_add_u32 v3, v4, 7, v3")
        A(f"s_mul_i32 s{sT0}, s{sMT}, {8*9216}")
        A(f"s_mul_i32 s{sT1}, s{sJ}, 1152")
        A(f"s_add_u32 s{sT0}, s{sT0}, s{sT1}")
        A(f"s_mul_i32 s{sT1}, s{sI}, 384")
        A(f"s_add_u32 s{sT0}, s{sT0}, s{sT1}")
        for p in range(0, len(st), 2):
            two = p + 1 < len(st)
            A(f"s_add_u32 s{sT1}, s{sT0}, {st[p]*64*9216}")
            A("s_mov_b32 exec_lo, 0xffffff")
            A(f"s_mov_b32 exec_hi, {0xffffff if two else 0}")
            A(f"buffer_load_dword v255, v3, s[{SRD2}:{SRD2+3}], s{sT1} offen")
            A("s_mov_b32 exec_lo, 0x3fffff")
            A(f"s_mov_b32 exec_hi, {0x3fffff if two else 0}")
            A(f"buffer_load_dword v255, v2, s[{SRD0}:{SRD0+3}], s{sXB} offen offset:{128*st[p]}")
        A("s_mov_b64 exec, -1")
    if cfg.tn and cfg.tpos == 0:
        w7_touch()

    def bb_h2(q):
        if cfg.tn and cfg.tpos == 1 and q == 0:
            A("s_waitcnt lgkmcnt(0)")
            w7_touch()
        if cfg.tn and cfg.tpos >= 2 and q == cfg.tpos - 1:
            w7_touch()
        if cfg.tn and q == 7:
            A("s_waitcnt vmcnt(0)")
        if q == 2 and (cfg.hpre == 3 or cfg.wt > 2):
            A("s_waitcnt vmcnt(0)")
        return bb_tag(q)

    HALF[0] = 1
    loader_stream(("H1", "H2"), nbx, issue_xh, lambda: h_setup(1), cfg.capx, validate=validate, before_bar=bb_h2, role="h2")
    ts_max = max(ts_max, tsn[0])
    A("s_branch L_reduce")
    flush_retry()

    A.tail("red")
    sM, sQ = sT5, sT4
    sVC = 16

    def reduce_code(W, nbar):
        x = f"{W}"
        srd(SRD1, sWS, 0x10000000)
        A(f"s_mov_b32 s{sCNT}, 0")
        srd(SRD0, sOUT, 589824)
        if W == 1:
            red_pre(1)
            red_init(1)
            A(f"s_waitcnt vmcnt({cfg.rw1})")

        def ld(s_):
            A(f"s_add_u32 s{sT1}, s{sRI}, {3072*s_}")
            A(f"buffer_load_{dw(W)} {vr(vRD+W*s_, W)}, v{vRA}, s[{SRD1}:{SRD1+3}], s{sT1} offen {cfg.rfl}")
        if W == 2 and cfg.r0early and nbar:
            A(f"s_cmp_ge_u32 s{sC}, 2")
            A("s_cbranch_scc1 L_rlate")
            stamp()
            tsn[0] -= 1 if TS else 0
            for s_ in range(8):
                ld(s_)
            A("s_barrier")
            A("s_branch L_rfirst")
            A.label("L_rlate")
        for _ in range(nbar):
            A("s_barrier")
        stamp()
        enc("rbar")

        def chk_i(s_, dst, t):
            r = vRD + W * s_
            if W == 1:
                o = [f"v_bitop3_b32 v{t}, v{r}, v{vRG}, v{vRG+4} bitop3:0x28"]
            else:
                o = [f"v_xor_b32 v{t}, v{r}, v{vRG}"]
                for k in range(1, W):
                    o.append(f"v_bitop3_b32 v{t}, v{t}, v{r+k}, v{vRG+k} bitop3:0xf6")
                o.append(f"v_and_b32 v{t}, v{vRG+4}, v{t}")
            o.append(f"v_cmp_ne_u32 {dst}, 0, v{t}")
            return o

        def acc_i(s_, t0):
            r = vRD + W * s_
            o = []
            for k in range(W):
                t = t0 + 2 * k
                o.append(f"v_lshlrev_b32 v{t}, 16, v{r+k}")
                o.append(f"v_and_b32 v{t+1}, v{vRG+5}, v{r+k}")
            for k in range(W):
                t = t0 + 2 * k
                o.append(f"v_pk_add_f32 v[{vRC+2*k}:{vRC+1+2*k}], v[{vRC+2*k}:{vRC+1+2*k}], v[{t}:{t+1}]")
            return o

        def masked(sm, fn, tag):
            for g in range(2):
                A(f"s_and_b32 s{sT0}, s{sm}, {0xf << (4*g)}")
                A(f"s_cbranch_scc0 L_{tag}{x}g{g}")
                for s_ in range(4 * g, 4 * g + 4):
                    A(f"s_bitcmp0_b32 s{sm}, {s_}")
                    A(f"s_cbranch_scc1 L_{tag}{x}s{s_}")
                    fn(s_)
                    A.label(f"L_{tag}{x}s{s_}")
                A.label(f"L_{tag}{x}g{g}")

        for s_ in range(8):
            ld(s_)
        for _ in range(nbar, cfg.rnb if W != 1 else 0):
            A("s_barrier")
        if W == 2:
            A.label("L_rfirst")
        for s_ in range(8):
            A(f"s_waitcnt vmcnt({7-s_})")
            c = chk_i(s_, f"s[{sVC+2*s_}:{sVC+2*s_+1}]", vRX)
            a_ = acc_i(s_, vRT)
            while c or a_:
                if c:
                    A(c.pop(0))
                if a_:
                    A(a_.pop(0))
            if s_ >= 2:
                A(f"s_or_b64 vcc, {'s[16:17]' if s_ == 2 else 'vcc'}, s[{sVC+2*s_-2}:{sVC+2*s_-1}]")
        A(f"s_or_b64 vcc, vcc, s[{sVC+14}:{sVC+15}]")
        A(f"s_cbranch_scc0 L_rdone{x}")
        A(f"s_mov_b32 s{sM}, 0")
        for s_ in range(7, -1, -1):
            A(f"s_cmp_lg_u64 s[{sVC+2*s_}:{sVC+2*s_+1}], 0")
            A(f"s_addc_u32 s{sM}, s{sM}, s{sM}")
        A(f"s_xor_b32 s{sQ}, s{sM}, 0xff")
        red_init(W)
        A.label(f"L_rtop{x}")
        masked(sM, ld, "rl")
        masked(sQ, lambda s_: [A(t) for t in acc_i(s_, vRT)], "ra")
        A(f"s_add_u32 s{sCNT}, s{sCNT}, 1")
        A(f"s_mov_b32 s{sQ}, s{sM}")
        A(f"s_cmp_gt_u32 s{sCNT}, {SPIN_MAX}")
        A(f"s_cbranch_scc1 L_rdone{x}")
        A("s_waitcnt vmcnt(0)")

        def chk2(s_):
            for t in chk_i(s_, "vcc", vRX):
                A(t)
            A(f"s_cbranch_vccnz L_rc{x}s{s_}")
            A(f"s_bitset0_b32 s{sM}, {s_}")
            for t in acc_i(s_, vRT):
                A(t)
        masked(sQ, chk2, "rc")
        A(f"s_mov_b32 s{sQ}, 0")
        A(f"s_cmp_lg_u32 s{sM}, 0")
        A(f"s_cbranch_scc1 L_rtop{x}")
        A.label(f"L_rdone{x}")
        stamp()
        enc("rdone")
        for k in range(W):
            A(f"v_cvt_pk_bf16_f32 v{vRC+k}, v{vRC+2*k}, v{vRC+1+2*k}")
        A(f"buffer_store_{dw(W)} {vr(vRC, W)}, v{vRO}, s[{SRD0}:{SRD0+3}], s{sRO} offen {cfg.ofl if W > 1 else cfg.ofl1}")
        if TS:
            A(f"s_mov_b32 s{sWS}, s{SRD1}")
            A(f"s_mov_b32 s{sWS+1}, s{SRD1+1}")

    A.label("L_reduce")
    tsn[0] = ts_max
    reduce_code(2, cfg.rb2)
    A(f"s_or_b32 s{sT0}, s{sJ}, s{sI}")
    A(f"s_or_b32 s{sT0}, s{sT0}, s{sC}")
    A(f"s_cmp_lg_u32 s{sT0}, 0")
    A("s_cbranch_scc1 L_noep")
    A(f"v_mov_b32 v16, s{sTAG}")
    A(f"s_lshl_b32 s{sT0}, s{sMT}, 7")
    A(f"s_add_u32 s{sT0}, s{sT0}, {WS_EP}")
    A("s_mov_b64 exec, 1")
    A(f"buffer_store_dword v16, v{vRZ}, s[{SRD1}:{SRD1+3}], s{sT0} offen sc1")
    A("s_mov_b64 exec, -1")
    A.label("L_noep")
    if cfg.enc:
        if cfg.enc == "end":
            A("s_waitcnt vmcnt(0)")
            enc("end")
        A(f"s_cmp_lg_u32 s{sWV}, {cfg.encw}")
        A("s_cbranch_scc1 L_end")
        A("s_waitcnt lgkmcnt(0)")
        A("s_sub_u32 s94, s94, s96")
        A("s_mul_i32 s94, s94, 2")
        A("s_add_u32 s94, s94, 3000")
        A.label("L_dly")
        A("s_memrealtime s[98:99]")
        A("s_waitcnt lgkmcnt(0)")
        A("s_sub_u32 s98, s98, s96")
        A("s_cmp_lt_u32 s98, s94")
        A("s_cbranch_scc1 L_dly")
    if TS:
        A("s_waitcnt vmcnt(0)")
        stamp()
        A("s_memrealtime s[98:99]")
        A("s_waitcnt lgkmcnt(0)")
        A(f"s_mov_b32 s{sTS+26}, s96"); A(f"s_mov_b32 s{sTS+28}, s98"); A(f"s_mov_b32 s{sTS+30}, s{sCNT}")
        assert tsn[0] <= 12
        tsn[0] = 16
        stamp_flush()
    A("s_branch L_end")

    A.head("c")
    A.label("L_compute")
    tsn[0] = ts_base
    vACC, vAB, vXB, vT = 16, 64, 96, 240
    nAB = D + 1
    vA, vBX, vBH, vHW = [2, 3, 4], [5, 6, 7, 8], [9, 10, 11], [12, 13, 14]
    vTG, vL16 = vT + 11, vT + 10
    assert vAB + 4 * nAB <= vXB
    sA, sBq = sT4, sT5
    A(f"s_and_b32 s{sA}, s{sWV}, 1")
    A(f"s_lshr_b32 s{sBq}, s{sWV}, 1")
    A(f"v_lshrrev_b32 v{vT}, 5, v1")
    A(f"s_mul_i32 s60, s{sJ}, 1152")
    A(f"s_mul_i32 s{sT1}, s{sI}, 384")
    A(f"s_add_u32 s60, s60, s{sT1}")
    A(f"s_lshl_b32 s{sT1}, s{sBq}, 6")
    A(f"s_add_u32 s61, s60, s{sT1}")
    A(f"v_lshlrev_b32 v{vT+4}, 3, v{vT}")
    if cfg.sa:
        A(f"s_add_u32 s{sT3}, s{sWV}, 1")
        A(f"v_and_b32 v{vT+5}, 7, v1")
        A(f"v_mul_u32_u24 v{vT+5}, 9216, v{vT+5}")
        A(f"v_lshrrev_b32 v{vT+6}, 3, v1")
        A(f"v_min_u32 v{vT+6}, 2, v{vT+6}")
        A(f"v_lshl_add_u32 v{vT+5}, v{vT+6}, 7, v{vT+5}")
        A(f"s_lshl_b32 s{sT1}, s{sT3}, 3")
        A(f"s_add_u32 s{sT1}, s{sT1}, s{sMT}")
        A(f"s_mul_i32 s{sT1}, s{sT1}, {8*9216}")
        A(f"s_add_u32 s{sT1}, s{sT1}, s60")
        A(f"s_mul_i32 s{sT2}, s{sI}, 22")
        A(f"v_min_u32 v{vT+6}, 21, v1")
        A(f"v_add_u32 v{vT+6}, s{sT2}, v{vT+6}")
        A(f"v_min_u32 v{vT+6}, 63, v{vT+6}")
        A(f"v_mul_u32_u24 v{vT+6}, 1152, v{vT+6}")
        A(f"s_mul_i32 s{sT2}, s{sMT}, {64*1152}")
        A(f"s_lshl_b32 s{sT3}, s{sT3}, 7")
        A(f"s_add_u32 s{sT2}, s{sT2}, s{sT3}")
    A("s_waitcnt lgkmcnt(0)")
    srd(SRD0, sB1, 9216)
    for l in range(3):
        for g in range(4):
            r = vXB + 2 * (4 * l + g)
            A(f"buffer_load_dwordx2 v[{r}:{r+1}], v{vT+4}, s[{SRD0}:{SRD0+3}], s61 offen offset:{128*l+16*g}")
    if cfg.sa:
        srd(SRD1, sW1, 5308416)
        srd(SRD2, sX, 589824)
        A(f"s_cmp_ge_u32 s{sWV}, {cfg.sa}")
        A("s_cbranch_scc1 L_tdone")
        A(f"buffer_load_dword v255, v{vT+5}, s[{SRD1}:{SRD1+3}], s{sT1} offen {cfg.tfl}")
        A(f"buffer_load_dword v255, v{vT+6}, s[{SRD2}:{SRD2+3}], s{sT2} offen")
        A.label("L_tdone")
    epoch_load(sMT)
    A.tail("c")
    srd(SRD2, sB2, 1152)
    A(f"v_and_b32 v{vT+1}, 3, v1")
    A(f"v_lshlrev_b32 v{vT+1}, 2, v{vT+1}")
    A(f"v_lshl_add_u32 v{vT+1}, v{vT}, 4, v{vT+1}")
    A(f"s_mul_i32 s{sT1}, s{sI}, 384")
    A(f"s_lshl_b32 s{sT0}, s{sWV}, 5")
    A(f"s_add_u32 s{sT1}, s{sT1}, s{sT0}")
    A(f"buffer_load_dword v249, v{vT+1}, s[{SRD2}:{SRD2+3}], s{sT1} offen offset:256")
    srd(SRD1, sWS, 0x10000000)
    A(f"v_bfe_u32 v{vT+1}, v1, 2, 2")
    A(f"v_lshl_add_u32 v{vT+2}, v{vT}, 2, v{vT+1}")
    A(f"v_lshlrev_b32 v{vT+2}, 7, v{vT+2}")
    A(f"v_bfe_u32 v{vT+3}, v1, 3, 1")
    A(f"v_xor_b32 v{vT+3}, s{sBq}, v{vT+3}")
    A(f"v_lshl_add_u32 v{vT+2}, v{vT+3}, 6, v{vT+2}")
    A(f"v_bfe_u32 v{vT+3}, v1, 4, 1")
    A(f"v_lshl_add_u32 v{vT+2}, v{vT+3}, 5, v{vT+2}")
    A(f"v_and_b32 v{vT+3}, 3, v1")
    A(f"v_lshl_add_u32 v{vA[0]}, v{vT+3}, 3, v{vT+2}")
    A(f"v_add_u32 v{vA[1]}, 0x10000, v{vA[0]}")
    A(f"v_add_u32 v{vA[2]}, 0x20000, v{vA[0]}")
    A(f"v_and_b32 v{vT+1}, 31, v1")
    A(f"v_bfe_u32 v{vT+2}, v1, 1, 3")
    A(f"v_xor_b32 v{vT+2}, v{vT}, v{vT+2}")
    A(f"v_lshlrev_b32 v{vT+2}, 4, v{vT+2}")
    A(f"v_lshl_add_u32 v{vT+2}, v{vT+1}, 7, v{vT+2}")
    A(f"s_lshl_b32 s{sT0}, s{sA}, 12")
    A(f"s_add_u32 s{sT1}, s{sT0}, 0x20000")
    A(f"v_add_u32 v{vBX[0]}, s{sT1}, v{vT+2}")
    for sp in range(1, 4):
        A(f"v_xor_b32 v{vBX[sp]}, {32*sp}, v{vBX[0]}")
    A(f"v_lshl_add_u32 v{vBH[0]}, v1, 4, s{sT0}")
    A(f"v_add_u32 v{vBH[1]}, 0x10000, v{vBH[0]}")
    A(f"v_add_u32 v{vBH[2]}, 0x20000, v{vBH[0]}")
    A(f"s_lshl_b32 s{sT1}, s{sBq}, 11")
    for k in range(3):
        A(f"v_add_u32 v{vHW[k]}, s{sT1}, v{vBH[k]}")
    sI0 = 38
    sMS, sML, sMC = 39, 63, 59
    sHS = [60, 61, 62]
    A(f"s_mul_i32 s{sI0}, s{sA}, 96")
    A(f"s_add_u32 s{sI0}, s{sI0}, s{sR}")
    A(f"s_lshl_b32 s{sI0}, s{sI0}, 3")
    A(f"s_add_u32 s{sI0}, s{sI0}, s{sJ}")
    A(f"s_mul_i32 s{sI0}, s{sI0}, 3072")
    A(f"s_add_u32 s{sI0}, s{sI0}, {WS_IN}")
    A(f"s_lshl_b32 s{sT1}, s{sBq}, 9")
    A(f"s_add_u32 s{sI0}, s{sI0}, s{sT1}")
    A(f"v_bfe_u32 v{vT+1}, v1, 3, 2")
    A(f"v_mul_u32_u24 v{vT+1}, {24*8*3072}, v{vT+1}")
    A(f"v_and_b32 v{vT+2}, 7, v1")
    A(f"v_lshl_add_u32 v{vT+1}, v{vT+2}, 4, v{vT+1}")
    A(f"v_lshl_add_u32 v{vL16}, v{vT}, 7, v{vT+1}")
    A(f"s_mov_b32 s{sMS}, 0x80008000")
    A(f"s_mov_b32 s{sML}, 0x00010001")
    A(f"s_mov_b32 s{sMC}, 0x7fff7fff")
    A(f"s_mul_i32 s{sHS[0]}, s{sWK}, 24576")
    if WS_H:
        A(f"s_add_u32 s{sHS[0]}, s{sHS[0]}, {WS_H}")
    A(f"s_add_u32 s{sHS[1]}, s{sHS[0]}, 8192")
    A(f"s_add_u32 s{sHS[2]}, s{sHS[0]}, 16384")
    epoch_fin()
    tag_regs(vTG, vT + 1)
    assert not cfg.sa
    A("s_waitcnt vmcnt(1)")
    if cfg.sa:
        A(f"s_cmp_lt_u32 s{sWV}, {cfg.sa}")
        A("s_cbranch_scc1 L_bw")
        A("s_waitcnt vmcnt(0)")
        A.label("L_bw")
    for l in range(3):
        for g in range(4):
            r = vXB + 2 * (4 * l + g)
            d = vACC + 16 * l + 4 * g
            A(f"v_lshlrev_b32 v{d}, 16, v{r}")
            A(f"v_and_b32 v{d+1}, 0xffff0000, v{r}")
            A(f"v_lshlrev_b32 v{d+2}, 16, v{r+1}")
            A(f"v_and_b32 v{d+3}, 0xffff0000, v{r+1}")
    stamp()

    items = []
    for st in stages:
        bykb = {}
        for u in st["units"]:
            bykb.setdefault(u[2], []).append(u)
        for kb, us in bykb.items():
            if st["q"] == n_g1 - 1 and cfg.tm:
                seq = [int(c) for c in cfg.tm]
                nsp = {0: 0, 1: 0, 2: 0}
                for t_ in seq:
                    (t, wb, _kb, fst) = [u for u in us if u[0] == t_][0]
                    items.append(dict(q=st["q"], tile=t, wb=wb, kb=kb, sp=nsp[t], first=False))
                    nsp[t] += 1
                assert all(v == 4 for v in nsp.values())
                continue
            for sp in range(4):
                for (t, wb, _kb, fst) in us:
                    items.append(dict(q=st["q"], tile=t, wb=wb, kb=kb, sp=sp, first=(fst and sp == 0)))
    NI = len(items)
    aux_used = set()
    if cfg.dual:
        own_end = max(n for n, it in enumerate(items) if it["q"] >= n_g1 and it["kb"] < 3)
        assert all(kbidx[(0, l)] < 3 for l in range(3))
        for n, it in enumerate(items):
            if n > own_end + 1 and items[n - 1]["tile"] == it["tile"]:
                it["first"] = it["tile"] not in aux_used
                aux_used.add(it["tile"])
                it["tile"] += 3

    def accbase(t):
        return vACC + 16 * t if t < 3 else vXB + 16 * (t - 3)
    last_item = {}
    for n, it in enumerate(items):
        last_item[it["q"]] = n
    bread_of = {(st["q"], kb): bb for st in stages for (bb, kb) in st["breads"]}
    lg = []

    def ds_issue(instr, tag):
        cap = 14 if TS else 15
        if len(lg) >= cap:
            A(f"s_waitcnt lgkmcnt({cap-2})")
            del lg[:len(lg) - (cap - 2)]
        A(instr)
        lg.append(tag)

    def ds_need(tags):
        idx = max([i for i, t in enumerate(lg) if t in tags], default=-1)
        if idx >= 0:
            A(f"s_waitcnt lgkmcnt({len(lg) - 1 - idx})")
            del lg[:idx + 1]

    checked = [-1]
    bdone = set()
    dirty, clean_pos = {}, {}

    def clean(m):
        key = (items[m]["kb"], items[m]["sp"])
        if key in dirty and dirty[key] == m:
            del dirty[key]
            ds_need({("B",) + key})
            r = vXB + 16 * key[0] + 4 * key[1]
            for k in range(4):
                A(f"v_and_b32 v{r+k}, s{sMC}, v{r+k}")
            clean_pos[m] = len(A.L) - 1

    def issue_reads(n):
        it = items[n]
        q = it["q"]
        if q > checked[0]:
            ds_need({"hw"})
            A("s_barrier")
            checked[0] = q
            if q in cfg.tsq:
                stamp()
        key = (q, it["kb"])
        if key in bread_of and (key, it["sp"]) not in bdone:
            bdone.add((key, it["sp"]))
            bb = blocks[bread_of[key]]
            addr = bb["slot"] * 8192
            r = vXB + 16 * it["kb"] + 4 * it["sp"]
            if bb["kind"] == "X":
                assert addr >> 16 == 2
                ds_issue(f"ds_read_b128 v[{r}:{r+3}], v{vBX[it['sp']]} offset:{addr & 0xffff}", ("B", it["kb"], it["sp"]))
            else:
                ds_issue(f"ds_read_b128 v[{r}:{r+3}], v{vBH[addr >> 16]} offset:{(addr & 0xffff) + 1024*it['sp']}",
                         ("B", it["kb"], it["sp"]))
                if bb["kind"] != "Hown":
                    if not cfg.hlsb:
                        dirty[(it["kb"], it["sp"])] = n
        wb = blocks[it["wb"]]
        addr = wb["slot"] * 8192 + 2048 * it["sp"]
        r = vAB + 4 * (n % nAB)
        ds_issue(f"ds_read_b64_tr_b16 v[{r}:{r+1}], v{vA[addr >> 16]} offset:{addr & 0xffff}", ("A", n))
        ds_issue(f"ds_read_b64_tr_b16 v[{r+2}:{r+3}], v{vA[addr >> 16]} offset:{(addr & 0xffff) + 1024}", ("A", n))

    post = []

    def epi1_instrs(pi, lines):
        out, late = [], []
        for l in lines:
            a = vACC + 16 * l
            addr = blocks[f"H0_{l}"]["slot"] * 8192
            for half in range(2):
                base = a + 8 * half
                if cfg.epi == 1:
                    assert cfg.hlsb
                    for k in range(8):
                        out.append(("v", f"v_mul_f32 v{base+k}, v{base+k}, |v{base+k}|"))
                    for k in range(4):
                        out.append(("v", f"v_cvt_pk_bf16_f32 v{base+k}, v{base+2*k}, v{base+2*k+1}"))
                    for k in range(4):
                        out.append(("v", f"v_pk_max_i16 v{base+k}, v{base+k}, 0"))
                else:
                    for k in range(8):
                        out.append(("v", f"v_max_f32 v{base+k}, 0, v{base+k}"))
                    for k in range(0, 8, 2):
                        out.append(("v", f"v_pk_mul_f32 v[{base+k}:{base+k+1}], v[{base+k}:{base+k+1}], v[{base+k}:{base+k+1}]"))
                    for k in range(4):
                        out.append(("v", f"v_cvt_pk_bf16_f32 v{base+k}, v{base+2*k}, v{base+2*k+1}"))
                for k in range(4):
                    out.append(("v", f"v_bfi_b32 v{base+4+k}, s{sML}, v{vTG+k}, v{base+k}" if cfg.hlsb else
                                f"v_and_or_b32 v{base+4+k}, v{vTG+k}, s{sMS}, v{base+k}"))
                out.append(("v", f"buffer_store_dwordx4 v[{base+4}:{base+7}], v{vHW[0]}, s[{SRD1}:{SRD1+3}], s{sHS[l]} offen offset:{1024*half} {cfg.hsf}"))
                out.append(("w", f"ds_write_b128 v{vHW[addr >> 16]}, v[{base}:{base+3}] offset:{(addr & 0xffff) + 1024*half}"))
                t = ("v", f"buffer_load_dword v255, v{vHW[0]}, s[{SRD1}:{SRD1+3}], s{sHS[l]} offen offset:{1024*half} {cfg.stf}")
                if cfg.stouch == 1:
                    out.append(t)
                elif cfg.stouch == 2:
                    late.append(t)
                elif cfg.stouch == 3:
                    post.append(t)
        return out + late

    def epi2_instrs(lines):
        out = []
        for l in lines:
            for u in range(2):
                base = vACC + 8 * (2 * l + u)
                if l in aux_used:
                    ab = accbase(l + 3) + 8 * u
                    for k in range(0, 8, 2):
                        out.append(("v", f"v_pk_add_f32 v[{base+k}:{base+k+1}], v[{base+k}:{base+k+1}], v[{ab+k}:{ab+k+1}]"))
                for k in range(4):
                    out.append(("v", f"v_cvt_pk_bf16_f32 v{base+k}, v{base+2*k}, v{base+2*k+1}"))
                out.append(("v", "s_nop 1"))
                out.append(("v", f"v_permlane32_swap_b32 v{base}, v{base+2}"))
                out.append(("v", f"v_permlane32_swap_b32 v{base+1}, v{base+3}"))
                for k in (0, 2, 1, 3):
                    out.append(("v", f"v_bfi_b32 v{base+k}, s{sML}, v{vTG+k}, v{base+k}"))
                out.append(("v", f"buffer_store_dwordx4 v[{base}:{base+3}], v{vL16}, s[{SRD1}:{SRD1+3}], s{sI0} offen offset:{1024*l+256*u} {cfg.psf}"))
        return out

    fillers = []
    fill_start = 0
    fill_tiles = set()
    mfma_pos = {}
    fill_fresh = [False]

    def states_since(pos):
        c = 0
        for ln in A.L[pos + 1:]:
            t = ln.strip()
            if t.endswith(":") or t.startswith(";") or t.startswith("@@"):
                continue
            c += int(t.split()[1]) + 1 if t.startswith("s_nop") else 1
        return c

    late_w = []

    def emit(kind, t):
        if kind == "mark":
            have = min(states_since(mfma_pos[tl]) for tl in t[0])
            if have < 12:
                A(f"s_nop {12 - have - 1}")
        elif kind == "w":
            ds_issue(t, "hw")
        else:
            A(t)

    def flush_fillers():
        nonlocal fillers
        for (kind, t) in fillers + late_w:
            emit(kind, t)
        fillers = []
        late_w.clear()
        fill_tiles.clear()

    trig = {}
    for l in range(3):
        trig[max(n for n, it in enumerate(items) if it["q"] < n_g1 and it["tile"] == l)] = (1, l)
        trig[max(n for n, it in enumerate(items) if it["q"] >= n_g1 and it["tile"] % 3 == l)] = (2, l)

    nread = 0
    for n in range(NI):
        it = items[n]
        lim = min(NI - 1, n + D)
        while nread <= lim:
            nx = items[nread]
            if nx["q"] > checked[0]:
                due = [l for l, v in hown_vis.items() if v == nx["q"]]
                if due:
                    if last_item[hown_w[due[0]]] >= n:
                        break
                    flush_fillers()
            key = (nx["q"], nx["kb"])
            if key in bread_of and (key, nx["sp"]) not in bdone:
                if any(items[m]["kb"] == nx["kb"] and items[m]["sp"] == nx["sp"] for m in range(n, nread)):
                    break
            issue_reads(nread)
            nread += 1
        assert nread > n
        if it["tile"] in fill_tiles:
            flush_fillers()
            A("s_nop 1")
        clean(n)
        ds_need({("A", n), ("B", it["kb"], it["sp"])})
        if it["first"]:
            ds_need({"hw"})
        if n in clean_pos and states_since(clean_pos[n]) < 2:
            A(f"s_nop {1 - states_since(clean_pos[n])}")
        ra = vAB + 4 * (n % nAB)
        rb = vXB + 16 * it["kb"] + 4 * it["sp"]
        acc = accbase(it["tile"])
        c = "0" if it["first"] else f"v[{acc}:{acc+15}]"
        A(f"v_mfma_f32_32x32x16_bf16 v[{acc}:{acc+15}], v[{ra}:{ra+3}], v[{rb}:{rb+3}], {c}")
        mfma_pos[it["tile"]] = len(A.L) - 1
        if n + 1 < nread:
            clean(n + 1)
        k = 0
        while fillers and k < (cfg.fill1 if it["q"] < n_g1 else cfg.fill):
            if fillers[0][0] == "mark" and n < fillers[0][1][1]:
                break
            kind, t = fillers.pop(0)
            emit(kind, t)
            k += kind != "mark"
        if not fillers and not late_w:
            fill_tiles.clear()
        if n == last_item[it["q"]] and (it["q"] in epi_after or it["q"] in epi2_after):
            stamp()
        if n in trig:
            g, l = trig[n]
            tl = [l] + ([l + 3] if (g == 2 and l in aux_used) else [])
            new = epi1_instrs(0, [l]) if g == 1 else epi2_instrs([l])
            if cfg.wlast:
                late_w.extend(x for x in new if x[0] == "w")
                new = [x for x in new if x[0] != "w"]
            fillers += [("mark", (tl, n + cfg.fdel))] + new
            fill_tiles.update(tl)
    flush_fillers()
    stamp()
    if cfg.rnb >= 1:
        A("s_barrier")
    reduce_code(1, 0)
    if TS:
        A("s_waitcnt vmcnt(0)")
        A("s_memrealtime s[98:99]")
        A("s_waitcnt lgkmcnt(0)")
        assert tsn[0] <= 14, tsn[0]
        A(f"s_mov_b32 s{sTS+28}, s98"); A(f"s_mov_b32 s{sTS+30}, s{sCNT}")
        tsn[0] = 16
        stamp_flush()
    if cfg.enc and cfg.encw < 4:
        A("s_branch L_noep")
    A("s_branch L_end")

    A.head("hl")
    A.label("L_helper")
    sG = 38
    A(f"s_lshl_b32 s{sG}, s{sWV}, 3")
    A(f"s_add_u32 s{sG}, s{sG}, s{sR}")
    A("v_mul_u32_u24 v8, 9216, v1")
    A("v_mul_u32_u24 v9, 1152, v1")
    A(f"s_mul_i32 s39, s{sJ}, 1152")
    A("s_waitcnt lgkmcnt(0)")
    NWT = 64

    def sdiv(dst, src, d):
        A(f"s_mul_i32 s{dst}, s{src}, {(65536 + d - 1) // d}")
        A(f"s_lshr_b32 s{dst}, s{dst}, 16")

    w2base = 0
    if cfg.touch and any(ROT):
        srd(SRD0, sW1, 5308416)
        srd(SRD1, sX, 589824)
        need = {kk: min((kk - r) % 9 for r in ROT) for kk in range(9)}
        kks = sorted([kk for kk in range(9) if need[kk] >= cfg.skipw], key=lambda kk: need[kk])
        KT = sum(kk << (4 * u) for u, kk in enumerate(kks))
        nW = 9 * len(kks)
        x0 = cfg.skipx
        nX = 8 * (9 - x0)
        tot = nW + nX
        for rnd in range((tot + NWT - 1) // NWT):
            if rnd == 1:
                A.tail("hl")
            k = A.uid()
            A(f"s_add_u32 s{sT0}, s{sG}, {NWT*rnd}")
            if NWT * rnd < nW:
                if NWT * rnd + NWT > nW:
                    A(f"s_cmp_ge_u32 s{sT0}, {nW}")
                    A(f"s_cbranch_scc1 L_hx{k}")
                sdiv(sT1, sT0, 9)
                A(f"s_mul_i32 s{sT2}, s{sT1}, 9")
                A(f"s_sub_u32 s{sT2}, s{sT0}, s{sT2}")
                A(f"s_lshl_b32 s{sT1}, s{sT1}, 2")
                A(f"s_lshr_b32 s{sT1}, {KT}, s{sT1}")
                A(f"s_and_b32 s{sT1}, s{sT1}, 15")
                A(f"s_mul_i32 s{sT1}, s{sT1}, {64*9216}")
                A(f"s_lshl_b32 s{sT2}, s{sT2}, 7")
                A(f"s_add_u32 s{sT1}, s{sT1}, s{sT2}")
                A(f"s_add_u32 s{sT1}, s{sT1}, s39")
                A(f"buffer_load_dword v255, v8, s[{SRD0}:{SRD0+3}], s{sT1} offen {cfg.tfl}")
                if NWT * rnd + NWT > nW:
                    A(f"s_branch L_ht{k}")
            if NWT * rnd + NWT > nW:
                A.label(f"L_hx{k}")
                if NWT * rnd + NWT > tot:
                    A(f"s_cmp_ge_u32 s{sT0}, {tot}")
                    A(f"s_cbranch_scc1 L_ht{k}")
                A(f"s_sub_u32 s{sT0}, s{sT0}, {nW - 8*x0}")
                A(f"s_and_b32 s{sT2}, s{sT0}, 7")
                A(f"s_lshr_b32 s{sT1}, s{sT0}, 3")
                A(f"s_lshl_b32 s{sT3}, s{sT2}, 2")
                A(f"s_lshr_b32 s{sT3}, {ROTTAB}, s{sT3}")
                A(f"s_and_b32 s{sT3}, s{sT3}, 15")
                A(f"s_add_u32 s{sT1}, s{sT1}, s{sT3}")
                A(f"s_cmp_ge_u32 s{sT1}, 9")
                A(f"s_cselect_b32 s{sT3}, 9, 0")
                A(f"s_sub_u32 s{sT1}, s{sT1}, s{sT3}")
                A(f"s_mul_i32 s{sT2}, s{sT2}, {64*1152}")
                A(f"s_lshl_b32 s{sT1}, s{sT1}, 7")
                A(f"s_add_u32 s{sT1}, s{sT1}, s{sT2}")
                A(f"buffer_load_dword v255, v9, s[{SRD1}:{SRD1+3}], s{sT1} offen")
            A.label(f"L_ht{k}")
        w2base = (NWT - tot % NWT) % NWT
    elif cfg.touch:
        srd(SRD0, sW1, 5308416)
        srd(SRD1, sX, 589824)
        phases, base = [], 0
        for pi, ls in enumerate(passes):
            t0 = cfg.ht0 if pi == 0 else 0
            c = 3 * len(ls) + (8 if pi == 0 else 0)
            phases.append((base, (9 - t0 - cfg.tn) * c, t0, c, ls))
            base += (9 - t0 - cfg.tn) * c
        w2base = (NWT - base % NWT) % NWT if cfg.w2rot else 0
        for rnd in range((base + NWT - 1) // NWT):
            if rnd == 1:
                A.tail("hl")
            k = A.uid()
            A(f"s_add_u32 s{sT0}, s{sG}, {NWT*rnd}")
            for (pb, cnt, t0, c, ls) in phases:
                if pb + cnt <= NWT * rnd or pb >= NWT * rnd + NWT:
                    continue
                k2 = A.uid()
                A(f"s_cmp_ge_u32 s{sT0}, {pb+cnt}")
                A(f"s_cbranch_scc1 L_hp{k2}")
                if pb:
                    A(f"s_sub_u32 s{sT0}, s{sT0}, {pb}")
                sdiv(sT1, sT0, c)
                A(f"s_mul_i32 s{sT2}, s{sT1}, {c}")
                A(f"s_sub_u32 s{sT2}, s{sT0}, s{sT2}")
                if t0:
                    A(f"s_add_u32 s{sT1}, s{sT1}, {t0}")
                if cfg.tn:
                    A(f"s_cmp_ge_u32 s{sT1}, {cfg.ta}")
                    A(f"s_cselect_b32 s{sT3}, {cfg.tn}, 0")
                    A(f"s_add_u32 s{sT1}, s{sT1}, s{sT3}")
                nw = 3 * len(ls)
                if c > nw:
                    A(f"s_cmp_ge_u32 s{sT2}, {nw}")
                    A(f"s_cbranch_scc1 L_hx{k2}")
                if len(ls) != 3:
                    if len(ls) == 1:
                        A(f"s_mul_i32 s{sT2}, s{sT2}, 3")
                    else:
                        A(f"s_lshr_b32 s{sT3}, s{sT2}, 1")
                        A(f"s_add_u32 s{sT2}, s{sT2}, s{sT3}")
                    if ls[0]:
                        A(f"s_add_u32 s{sT2}, s{sT2}, {ls[0]}")
                A(f"s_mul_i32 s{sT1}, s{sT1}, {64*9216}")
                A(f"s_lshl_b32 s{sT2}, s{sT2}, 7")
                A(f"s_add_u32 s{sT1}, s{sT1}, s{sT2}")
                A(f"s_add_u32 s{sT1}, s{sT1}, s39")
                A(f"buffer_load_dword v255, v8, s[{SRD0}:{SRD0+3}], s{sT1} offen {cfg.tfl}")
                A(f"s_branch L_ht{k}")
                if c > nw:
                    A.label(f"L_hx{k2}")
                    A(f"s_sub_u32 s{sT2}, s{sT2}, {nw}")
                    A(f"s_mul_i32 s{sT2}, s{sT2}, {64*1152}")
                    A(f"s_lshl_b32 s{sT1}, s{sT1}, 7")
                    A(f"s_add_u32 s{sT1}, s{sT1}, s{sT2}")
                    A(f"buffer_load_dword v255, v9, s[{SRD1}:{SRD1+3}], s{sT1} offen")
                    A(f"s_branch L_ht{k}")
                A.label(f"L_hp{k2}")
            A.label(f"L_ht{k}")
    def h_pretouch():
        srd(SRD1, sWS, 0x10000000)
        A("v_lshlrev_b32 v10, 7, v1")
        A(f"s_mul_i32 s{sT1}, s{sJ}, 589824")
        A(f"s_add_u32 s{sT1}, s{sT1}, {WS_IN if cfg.hpin else WS_H}")
        for rnd in range(2):
            k = A.uid()
            A(f"s_add_u32 s{sT0}, s{sG}, {NWT*rnd}")
            A(f"s_cmp_ge_u32 s{sT0}, 72")
            A(f"s_cbranch_scc1 L_ht{k}")
            A(f"s_lshl_b32 s{sT0}, s{sT0}, 13")
            A(f"s_add_u32 s{sT0}, s{sT0}, s{sT1}")
            A(f"buffer_load_dword v255, v10, s[{SRD1}:{SRD1+3}], s{sT0} offen {cfg.hpf}")
            A.label(f"L_ht{k}")
    if cfg.hpre == 1:
        h_pretouch()
    if cfg.touch:
        srd(SRD0, sW2, 5308416)
        A(f"s_mul_i32 s39, s{sJ}, 663552")
        korder = sorted(kbidx, key=lambda x: kbidx[x])
        tabD = sum(d << (2 * u) for u, (d, lk) in enumerate(korder))
        tabL = sum(lk << (2 * u) for u, (d, lk) in enumerate(korder))
        if w2base:
            A(f"s_add_u32 s{sG}, s{sG}, {w2base}")
            A(f"s_and_b32 s{sG}, s{sG}, 63")
        for rnd in range(2):
            k = A.uid()
            A(f"s_add_u32 s{sT0}, s{sG}, {NWT*rnd}")
            A(f"s_cmp_ge_u32 s{sT0}, 81")
            A(f"s_cbranch_scc1 L_ht{k}")
            sdiv(sT1, sT0, 9)
            A(f"s_mul_i32 s{sT2}, s{sT1}, 9")
            A(f"s_sub_u32 s{sT2}, s{sT0}, s{sT2}")
            sdiv(sT3, sT2, 3)
            A(f"s_lshl_b32 s{sT1}, s{sT1}, 1")
            A(f"s_lshr_b32 s{sT0}, {tabD}, s{sT1}")
            A(f"s_and_b32 s{sT0}, s{sT0}, 3")
            A(f"s_add_u32 s{sT0}, s{sT0}, s{sT3}")
            A(f"s_cmp_ge_u32 s{sT0}, 3")
            A(f"s_cselect_b32 s{sT3}, 3, 0")
            A(f"s_sub_u32 s{sT0}, s{sT0}, s{sT3}")
            A(f"s_lshr_b32 s{sT3}, {tabL}, s{sT1}")
            A(f"s_and_b32 s{sT3}, s{sT3}, 3")
            A(f"s_mul_i32 s{sT0}, s{sT0}, {192*1152}")
            A(f"s_mul_i32 s{sT3}, s{sT3}, {64*1152}")
            A(f"s_add_u32 s{sT0}, s{sT0}, s{sT3}")
            A(f"s_lshl_b32 s{sT2}, s{sT2}, 7")
            A(f"s_add_u32 s{sT0}, s{sT0}, s{sT2}")
            A(f"s_add_u32 s{sT0}, s{sT0}, s39")
            A(f"buffer_load_dword v255, v9, s[{SRD0}:{SRD0+3}], s{sT0} offen {cfg.tfl}")
            A.label(f"L_ht{k}")
    if cfg.hpre == 2:
        h_pretouch()
    if TS:
        tsn[0] = 1
        A("s_waitcnt vmcnt(0)")
        stamp()
        stamp()
        stamp_flush()
    A("s_branch L_end")
    A.tail("end")
    A.label("L_end")

    hdr = f"""; Fused MLP (x@w1+b1 -> relu^2 -> @w2+b2), generated by a python script (work/gen4.py)
; @launch grid=(256,1,1) block=(512,1,1) lds=163840
.amdgcn_target "amdgcn-amd-amdhsa--gfx950"
.text
.globl {KN}
.p2align 8
.type {KN},@function
{KN}:
"""
    ftr = f"""
    s_endpgm
.section .rodata,"a"
.p2align 6
.amdhsa_kernel {KN}
  .amdhsa_next_free_vgpr 256
  .amdhsa_next_free_sgpr 102
  .amdhsa_accum_offset 256
  .amdhsa_group_segment_fixed_size 0
  .amdhsa_kernarg_size 64
  .amdhsa_user_sgpr_count 2
  .amdhsa_user_sgpr_kernarg_segment_ptr 1
  .amdhsa_system_sgpr_workgroup_id_x 1
.end_amdhsa_kernel
"""
    return hdr + A.text(cfg.horder.split(","), cfg.torder.split(",") + ["end"]) + ftr


def parse_g2(s):
    out = []
    for stg in s.split(","):
        us = []
        for u in stg.split("+"):
            a, b = u.split(":")
            us.append((int(a[0]), int(a[1]), [int(c) for c in b]))
        out.append(us)
    return out


def ilist(s):
    return [int(x) for x in s.split(",")] if s else []


def main():
    ap = argparse.ArgumentParser()
    ap.add_argument("-o", default="k8.s")
    ap.add_argument("--ts", action="store_true")
    ap.add_argument("--passes", default="012")
    ap.add_argument("--depth", type=int, default=5)
    ap.add_argument("--fill", type=int, default=4)
    ap.add_argument("--grp1", type=int, default=3)
    ap.add_argument("--hres", type=float, default=2.5)
    ap.add_argument("--hearly", type=float, default=1.5)
    ap.add_argument("--hdel", type=int, default=1)
    ap.add_argument("--xfree", type=int, default=11)
    ap.add_argument("--g2", default="00:012,01:012,02:012,10:012,20:012,11:012,21:012,12:012,22:012")
    ap.add_argument("--tsq", default="")
    ap.add_argument("--verbose", action="store_true")
    ap.add_argument("--ahead", type=int, default=8)
    ap.add_argument("--ahead0", type=int, default=8)
    ap.add_argument("--capfrom", type=int, default=8)
    ap.add_argument("--capw", type=int, default=4)
    ap.add_argument("--capx", type=int, default=3)
    ap.add_argument("--burst", default="")
    ap.add_argument("--pause", default="")
    ap.add_argument("--go2lead", type=int, default=3)
    ap.add_argument("--sa", type=int, default=0)
    ap.add_argument("--ctouch", type=int, default=1)
    ap.add_argument("--wfl", default="")
    ap.add_argument("--tfl", default="")
    ap.add_argument("--rfl", default="sc1")
    ap.add_argument("--rsleep", type=int, default=0)
    ap.add_argument("--touch", type=int, default=1)
    ap.add_argument("--clrq", type=int, default=-1)
    ap.add_argument("--cdq", type=int, default=9)
    ap.add_argument("--rbar", type=int, default=0)
    ap.add_argument("--hsf", default="sc1")
    ap.add_argument("--hlf", default="sc1")
    ap.add_argument("--ofl", default="")
    ap.add_argument("--hpre", type=int, default=0)
    ap.add_argument("--rot", default="00000000")
    ap.add_argument("--ts0", type=int, default=0)
    ap.add_argument("--hlsb", type=int, default=1)
    ap.add_argument("--dual", type=int, default=0)
    ap.add_argument("--epi", type=int, default=0)
    ap.add_argument("--tm", default="")
    ap.add_argument("--wlast", type=int, default=0)
    ap.add_argument("--fdel", type=int, default=3)
    ap.add_argument("--fill1", type=int, default=5)
    ap.add_argument("--priow", type=int, default=0)
    ap.add_argument("--prioh", type=int, default=0)
    ap.add_argument("--r0early", type=int, default=0)
    ap.add_argument("--psf", default="sc1")
    ap.add_argument("--rw1", type=int, default=0)
    ap.add_argument("--ofl1", default="")
    ap.add_argument("--rpq", type=int, default=10)
    ap.add_argument("--rb2", type=int, default=1)
    ap.add_argument("--rb4", type=int, default=0)
    ap.add_argument("--rearly", type=int, default=0)
    ap.add_argument("--hpf", default="")
    ap.add_argument("--hpin", type=int, default=0)
    ap.add_argument("--wsb", type=lambda x: int(x, 0), default=0)
    ap.add_argument("--enc", default="")
    ap.add_argument("--encw", type=int, default=4)
    ap.add_argument("--hfree", type=int, default=2)
    ap.add_argument("--stouch", type=int, default=0)
    ap.add_argument("--stdel", type=int, default=1)
    ap.add_argument("--stf", default="")
    ap.add_argument("--ta", type=int, default=0)
    ap.add_argument("--tn", type=int, default=0)
    ap.add_argument("--tpos", type=int, default=0)
    ap.add_argument("--w2rot", type=int, default=1)
    ap.add_argument("--rfast", type=int, default=1)
    ap.add_argument("--wt", type=int, default=0)
    ap.add_argument("--horder", default="w,x,h2,hl,c")
    ap.add_argument("--ht0", type=int, default=1)
    ap.add_argument("--first", type=int, default=4)
    ap.add_argument("--torder", default="hl,w,x,h2,c,red")
    ap.add_argument("--skipw", type=int, default=1)
    ap.add_argument("--skipx", type=int, default=1)
    cfg = ap.parse_args()
    cfg.passes = [[int(c) for c in p] for p in cfg.passes.split(",")]
    cfg.g2 = parse_g2(cfg.g2)
    cfg.rnb = cfg.rb2
    cfg.tsq, cfg.burst, cfg.pause = ilist(cfg.tsq), ilist(cfg.burst), ilist(cfg.pause)
    open(cfg.o, "w").write(build(cfg))


main()
```

```python
import sys, argparse

KN = "standalone__dense_activation_squared_relu__sampling_kernel"

WS_H = 0x0
WS_IN = 0x1000000
WS_CD = 0x1840000
WS_EP = 0x1850000
WS_TS = 0x8000000
SPIN_MAX = 100000
SGNMASK = 0x6A9956A5


class Asm:
    def __init__(self):
        self.L = []
        self.n = 0

    def __call__(self, s):
        self.L.append("    " + s)

    def label(self, s):
        self.L.append(s + ":")

    def c(self, s):
        self.L.append("    ; " + s)

    def uid(self):
        self.n += 1
        return self.n

    def head(self, role):
        self.L.append(f"@@HEAD {role}")

    def tail(self, role):
        self.L.append(f"@@TAIL {role}")

    def text(self, horder, torder):
        pro, heads, tails, cur = [], {}, {}, None
        cur = pro
        for ln in self.L:
            if ln.startswith("@@HEAD"):
                cur = heads.setdefault(ln.split()[1], [])
            elif ln.startswith("@@TAIL"):
                r = ln.split()[1]
                if r in heads:
                    heads[r].append(f"    s_branch L_tail_{r}")
                cur = tails.setdefault(r, [f"L_tail_{r}:"])
            else:
                cur.append(ln)
        assert sorted(heads) == sorted(horder) and sorted(tails) == sorted(torder), (heads.keys(), tails.keys())
        out = pro
        for r in horder:
            out += heads[r]
        out.append("L_heads_end:")
        for r in torder:
            out += tails[r]
        return "\n".join(out)


def build(cfg):
    global WS_H, WS_IN, WS_EP
    WS_H = cfg.wsb
    WS_IN = cfg.wsb + 0x480000
    WS_EP = cfg.wsb + 0x900000
    A = Asm()
    TS = cfg.ts
    passes = cfg.passes
    D = cfg.depth

    stages, blocks, order = [], {}, []

    def blk(name, **kw):
        blocks[name] = dict(name=name, **kw)
        return name

    def add_stage(units, breads):
        q = len(stages)
        stages.append(dict(units=units, breads=breads, q=q))
        for (bb, _kb) in breads:
            b = blocks[bb]
            b["need"] = b["last"] = q
            if b["kind"] != "Hown":
                order.append(bb)
        for (_t, wb, _kb, _first) in units:
            b = blocks[wb]
            if "need" not in b:
                b["need"] = q
                order.append(wb)
            b["last"] = q
        return q

    epi_after, pass_of_line = {}, {}
    for pi, lines in enumerate(passes):
        grp = 1 if (len(lines) > 1 or pi == 0) else cfg.grp1
        for t0 in range(0, 9, grp):
            units, breads = [], []
            for t in range(t0, t0 + grp):
                if pi == 0:
                    breads.append((blk(f"X{t}", kind="X", t=t), t))
                for l in lines:
                    units.append((l, blk(f"W{t}_{l}", kind="W1", t=t, l=l), t, False))
            q = add_stage(units, breads)
        epi_after[q] = (pi, list(lines))
        for l in lines:
            pass_of_line[l] = pi
    n_g1 = len(stages)
    kbidx = {}
    first = {0: True, 1: True, 2: True}
    cnt2 = {0: 0, 1: 0, 2: 0}
    epi2_after = {}
    for stg in cfg.g2:
        units, breads = [], []
        for (d, lk, lines) in stg:
            if (d, lk) not in kbidx:
                kbidx[(d, lk)] = len(kbidx)
                breads.append((blk(f"H{d}_{lk}", kind="Hown" if d == 0 else f"H{d}", d=d, lk=lk), kbidx[(d, lk)]))
            for l in lines:
                units.append((l, blk(f"V{d}_{lk}_{l}", kind="W2", d=d, lk=lk, l=l), kbidx[(d, lk)], first[l]))
                first[l] = False
                cnt2[l] += 1
        q = add_stage(units, breads)
        done = [l for l in range(3) if cnt2[l] == 9 and not any(l in v for v in epi2_after.values())]
        if done:
            epi2_after[q] = done
    assert all(v == 9 for v in cnt2.values())
    NQ = len(stages)
    hown_w = {l: q for q, (pi, lines) in epi_after.items() for l in lines}
    hown_vis = {l: (q + 1 if q == n_g1 - 1 else q + 2) for l, q in hown_w.items()}
    for l in hown_w:
        assert blocks[f"H0_{l}"]["need"] >= hown_vis[l]
    hfetch = {l: hown_vis[l] + cfg.hdel for l in hown_w}

    free_at = {s: -10 for s in range(20)}
    events = [(blocks[nm]["need"] - (cfg.hearly if blocks[nm]["kind"] in ("H1", "H2") else 0), 1, k, nm) for k, nm in enumerate(order)]
    for l, qw in hown_w.items():
        events.append((qw - cfg.hres, 0, l, f"H0_{l}"))
    events.sort()
    for ev in events:
        b = blocks[ev[3]]
        if b["kind"] == "X":
            cand = [16, 17, 18, 19]
        elif ev[0] < cfg.xfree:
            cand = list(range(0, 16))
        else:
            cand = list(range(0, 20))
        s = min(cand, key=lambda s: (free_at[s], s))
        b["slot"] = s
        b["free"] = free_at[s]
        if b["kind"] == "Hown":
            assert b["free"] + cfg.hfree <= hown_w[b["lk"]], b
        else:
            assert b["free"] + 2 < b["need"], b
        free_at[s] = b["last"]
    if cfg.verbose:
        print(" | ".join(f"{blocks[e[3]]['name']}:s{blocks[e[3]]['slot']} f{blocks[e[3]]['free']} n{blocks[e[3]]['need']}" for e in events), file=sys.stderr)
    for k, nm in enumerate(order):
        blocks[nm]["pos"] = k
    cum = [sum(1 for nm in order if blocks[nm]["need"] <= q) for q in range(NQ)]

    sX, sW1, sB1, sW2, sB2, sOUT, sDBG, sWS = 16, 18, 20, 22, 24, 26, 28, 30
    sJ, sR, sMT, sI, sWV, sWK = 32, 33, 34, 35, 36, 37
    SRD0, SRD1, SRD2 = 40, 44, 48
    sT0, sT1, sT2, sT3, sT4, sT5 = 52, 53, 54, 55, 56, 57
    sCNT = 58
    sTAG, sPB = 6, 8
    sTS = 64
    tsn = [0]

    def stamp():
        if TS:
            k = tsn[0]
            assert k < 16
            A(f"s_memtime s[{sTS+2*k}:{sTS+2*k+1}]")
            tsn[0] += 1

    def srd(d, p, nbytes):
        A(f"s_mov_b32 s{d}, s{p}")
        A(f"s_mov_b32 s{d+1}, s{p+1}")
        A(f"s_mov_b32 s{d+2}, {nbytes}")
        A(f"s_mov_b32 s{d+3}, 0x00020000")

    def stamp_flush():
        if not TS:
            return
        n = tsn[0]
        A("s_waitcnt lgkmcnt(0)")
        srd(SRD2, sWS, 0x10000000)
        A(f"s_lshl_b32 s{sT0}, s2, 9")
        A(f"s_lshl_b32 s{sT1}, s{sWV}, 6")
        A(f"s_add_u32 s{sT0}, s{sT0}, s{sT1}")
        A(f"s_add_u32 s{sT0}, s{sT0}, {WS_TS}")
        A(f"v_mov_b32 v2, s{sT0}")
        A("s_mov_b64 exec, 1")
        for k in range(n):
            A(f"v_mov_b32 v3, s{sTS+2*k}")
            A(f"buffer_store_dword v3, v2, s[{SRD2}:{SRD2+3}], 0 offen offset:{4*k}")
        A("s_mov_b64 exec, -1")

    def epoch_load(smt):
        A(f"s_lshl_b32 s{sT0}, s{smt}, 7")
        A(f"s_add_u32 s{sT0}, s{sT0}, {WS_EP}")
        A(f"s_load_dword s{sTAG}, s[{sWS}:{sWS+1}], s{sT0}")

    def epoch_fin():
        A("s_waitcnt lgkmcnt(0)")
        A(f"s_add_u32 s{sTAG}, s{sTAG}, 1")
        A(f"s_mul_i32 s{sTAG+1}, s{sTAG}, 0x02020202")
        A(f"s_and_b32 s{sTAG+1}, s{sTAG+1}, 0xeeeeeeee")
        A(f"s_or_b32 s{sTAG+1}, s{sTAG+1}, 0x10101010")

    def tag_regs(vd, vt):
        A(f"v_and_b32 v{vt}, 3, v1")
        A(f"v_lshlrev_b32 v{vt}, 3, v{vt}")
        A(f"v_lshrrev_b32 v{vt}, v{vt}, s{sTAG+1}")
        for k in range(4):
            A(f"v_bfe_u32 v{vd+k}, v{vt}, {2*k}, 2")
            A(f"v_mul_u32_u24 v{vd+k}, 0x8001, v{vd+k}")
            A(f"v_and_b32 v{vd+k}, 0x10001, v{vd+k}")
            A(f"v_lshl_or_b32 v{vd+k}, v{vd+k}, 15, v{vd+k}")

    def sign_reg(vd, vt):
        A(f"s_bitcmp1_b32 s{sTAG}, 0")
        A(f"s_cselect_b32 s{sT0}, -1, 0")
        A(f"s_xor_b32 s{sT0}, s{sT0}, {SGNMASK}")
        A(f"v_and_b32 v{vt}, 31, v1")
        A(f"v_lshrrev_b32 v{vt}, v{vt}, s{sT0}")
        A(f"v_bfe_i32 v{vt}, v{vt}, 0, 1")
        A(f"v_and_b32 v{vd}, 0x80008000, v{vt}")

    def sspin(loads, npairs, base):
        k = A.uid()
        A(f"s_mov_b32 s{sCNT}, 0")
        A.label(f"L_s{k}")
        for x in loads:
            A(x)
        A(f"s_add_u32 s{sCNT}, s{sCNT}, 1")
        A("s_waitcnt lgkmcnt(0)")
        A(f"s_cmp_gt_u32 s{sCNT}, {SPIN_MAX}")
        A(f"s_cbranch_scc1 L_sd{k}")
        for n in range(npairs):
            A(f"s_cmp_lg_u64 s[{base+2*n}:{base+2*n+1}], s[{sTAG}:{sTAG+1}]")
            A(f"s_cbranch_scc1 L_s{k}")
        A.label(f"L_sd{k}")

    def mod3add(dst, d, tmp):
        A(f"s_add_u32 s{dst}, s{sI}, {d}")
        A(f"s_cmp_ge_u32 s{dst}, 3")
        A(f"s_cselect_b32 s{tmp}, 3, 0")
        A(f"s_sub_u32 s{dst}, s{dst}, s{tmp}")

    A("s_cmp_ge_u32 s2, 256")
    A("s_cbranch_scc1 L_end")
    A("s_load_dwordx16 s[16:31], s[0:1], 0")
    if cfg.ctouch == 1:
        A("s_getpc_b64 s[4:5]")
        A.label("L_pc")
        A("v_lshlrev_b32 v2, 7, v0")
        A("v_min_u32 v2, L_end-L_pc, v2")
        A("v_and_b32 v2, 0xfffffffc, v2")
        A("global_load_dword v255, v2, s[4:5]")
    elif cfg.ctouch == 2:
        A("s_getpc_b64 s[4:5]")
        A.label("L_pc")
        A("s_lshr_b32 s3, s2, 3")
        A("s_lshl_b32 s3, s3, 11")
        A("v_lshrrev_b32 v2, 5, v0")
        A("v_lshl_add_u32 v2, v2, 7, s3")
        A("v_min_u32 v2, L_end-L_pc, v2")
        A("v_and_b32 v2, 0xfffffffc, v2")
        A("global_load_dword v255, v2, s[4:5]")
    if TS:
        A("s_memrealtime s[96:97]")
    if cfg.enc:
        A("s_memrealtime s[96:97]")
        if cfg.enc == "none":
            A("s_memrealtime s[94:95]")

    def enc(p):
        if cfg.enc == p:
            A("s_memrealtime s[94:95]")
    stamp()
    A("v_and_b32 v1, 63, v0")
    A("v_lshrrev_b32 v2, 6, v0")
    A(f"s_and_b32 s{sJ}, s2, 7")
    A(f"v_readfirstlane_b32 s{sWV}, v2")
    A(f"s_lshr_b32 s{sR}, s2, 3")
    A(f"s_cmp_lt_u32 s{sR}, 8")
    A("s_cbranch_scc1 L_helper")
    A(f"s_sub_u32 s{sR}, s{sR}, 8")
    A(f"s_mul_i32 s{sMT}, s{sR}, 21846")
    A(f"s_lshr_b32 s{sMT}, s{sMT}, 16")
    A(f"s_mul_i32 s{sT0}, s{sMT}, 3")
    A(f"s_sub_u32 s{sI}, s{sR}, s{sT0}")
    A(f"s_mul_i32 s{sWK}, s{sJ}, 24")
    A(f"s_add_u32 s{sWK}, s{sWK}, s{sR}")
    ROT = [int(c) for c in cfg.rot]
    ROTTAB = sum(r << (4 * m) for m, r in enumerate(ROT))
    sROT, sLO, sHI = 10, 11, 12
    if any(ROT):
        A(f"s_lshl_b32 s{sROT}, s{sMT}, 2")
        A(f"s_lshr_b32 s{sROT}, {ROTTAB}, s{sROT}")
        A(f"s_and_b32 s{sROT}, s{sROT}, 15")

    def rot_setup(sbase, stride):
        if any(ROT):
            A(f"s_mul_i32 s{sLO}, s{sROT}, {stride}")
            A(f"s_add_u32 s{sLO}, s{sLO}, s{sbase}")
            A(f"s_sub_u32 s{sHI}, s{sLO}, {9*stride}")

    def rot_addr(dst, sbase, t, stride, extra):
        if any(ROT):
            if t + max(ROT) < 9:
                A(f"s_add_u32 s{dst}, s{sLO}, {t*stride + extra}")
            else:
                A(f"s_cmp_lt_u32 s{sROT}, {9-t}")
                A(f"s_cselect_b32 s{dst}, s{sLO}, s{sHI}")
                A(f"s_add_u32 s{dst}, s{dst}, {t*stride + extra}")
        else:
            A(f"s_add_u32 s{dst}, s{sbase}, {t*stride + extra}")
    A(f"s_cmp_lt_u32 s{sWV}, 4")
    A("s_cbranch_scc1 L_compute")
    A(f"s_cmp_eq_u32 s{sWV}, 6")
    A("s_cbranch_scc1 L_xh")
    A(f"s_cmp_eq_u32 s{sWV}, 7")
    A("s_cbranch_scc1 L_h2")
    ts_base = tsn[0]

    def loader_stream(kinds, per_block, issue_fn, setup_fn, cap, group=False, validate=None, before_bar=None, role=None):
        mine = [blocks[nm] for nm in order if blocks[nm]["kind"] in kinds]
        outstanding, pend = [], list(mine)
        nb = lambda nm: blocks[nm]["n"] if blocks[nm]["kind"] == "extra" else (per_block(blocks[nm]) if callable(per_block) else per_block)
        cnt = lambda lst: sum(nb(x) for x in lst)

        def ok(b, q):
            if b["free"] + 2 > q:
                return False
            if b["kind"] in ("H1", "H2") and q < min(hfetch[b["lk"]], b["need"] - 1):
                return False
            return True

        def issue_upto(q, ahead, cap):
            n = 0
            lim = cum[q] + ahead if q >= 0 else ahead
            while pend and ok(pend[0], q):
                must = pend[0]["need"] <= q + 1 or pend[0]["pos"] < lim
                if not must and n >= cap:
                    break
                grp = [pend.pop(0)]
                while group and pend and ok(pend[0], q) and pend[0]["need"] == grp[0]["need"] and len(grp) < 3 \
                        and (pend[0]["pos"] < lim or n + len(grp) < cap or pend[0]["need"] <= q + 1):
                    grp.append(pend.pop(0))
                need_n = sum(nb(x["name"]) for x in grp)
                if cnt(outstanding) + need_n > 63:
                    while cnt(outstanding) + need_n > 63:
                        del outstanding[0]
                    A(f"s_waitcnt vmcnt({cnt(outstanding)})")
                issue_fn(grp if group else grp[0])
                if cfg.verbose:
                    print(f"   after B{q}: " + " ".join(x["name"] for x in grp), file=sys.stderr)
                outstanding.extend(x["name"] for x in grp)
                n += len(grp)

        issue_upto(-1, cfg.first, 0)
        if cfg.ts0:
            stamp()
        if role == "w":
            enc("iss")
        A.tail(role)
        pr = cfg.priow if role == "w" else cfg.prioh
        if pr:
            A(f"s_setprio {pr}")
        setup_fn()
        issue_upto(-1, cfg.ahead0, 0)
        for q in range(NQ):
            assert not any(b["need"] <= q for b in pend), (q, pend[0])
            def wait_for(b):
                if b["name"] in outstanding:
                    idx = max(i for i, nm in enumerate(outstanding) if blocks[nm]["need"] <= q) if validate is None \
                        else outstanding.index(b["name"])
                    del outstanding[:idx + 1]
                    A(f"s_waitcnt vmcnt({cnt(outstanding)})")
            hs = []
            for b in mine:
                if b["need"] == q:
                    if validate is not None and b["kind"] != "X":
                        hs.append(b)
                    else:
                        wait_for(b)
            if hs:
                validate(hs, wait_for)
            if before_bar is not None:
                ex = before_bar(q)
                if ex:
                    nm = f"extra{A.uid()}"
                    blocks[nm] = dict(name=nm, kind="extra", n=ex, need=99)
                    outstanding.append(nm)
            if q in cfg.tsq:
                stamp()
            A("s_barrier")
            if role == "w":
                enc(f"B{q}")
            if q in cfg.pause:
                issue_upto(q, 0, 0)
            else:
                issue_upto(q, cfg.ahead, 99 if q in cfg.burst else (cap if q >= cfg.capfrom else 0))
        assert not pend

    vRA, vRO, vRB, vRC, vRD, vRT, vRX, vRZ, vRG = 64, 65, 66, 72, 80, 112, 116, 117, 120
    sRI, sRO, sC = 60, 61, 13

    def vr(r, W):
        return f"v{r}" if W == 1 else f"v[{r}:{r+W-1}]"

    def dw(W):
        return "dword" if W == 1 else f"dwordx{W}"

    def red_pre(W):
        if W == 2:
            A(f"s_sub_u32 s{sC}, s{sWV}, 4")
            A(f"v_lshlrev_b32 v{vRA}, 3, v1")
            A(f"s_lshl_b32 s{sRO}, s{sC}, 6")
            A(f"s_lshl_b32 s{sRI}, s{sC}, 9")
            A(f"v_lshrrev_b32 v{vRT}, 4, v1")
            A(f"v_and_b32 v{vRT+1}, 1, v1")
            A(f"v_lshlrev_b32 v{vRT+1}, 3, v{vRT+1}")
            A(f"v_lshl_add_u32 v{vRT}, v{vRT}, 4, v{vRT+1}")
            A(f"v_bfe_u32 v{vRT+2}, v1, 1, 3")
            A(f"v_and_b32 v{vRT+3}, 7, v1")
            A(f"v_lshlrev_b32 v{vRT+3}, 2, v{vRT+3}")
        else:
            A(f"s_add_u32 s{sC}, s{sWV}, 8")
            A(f"v_lshlrev_b32 v{vRA}, 2, v1")
            A(f"s_lshl_b32 s{sRO}, s{sC}, 5")
            A(f"s_lshl_b32 s{sRI}, s{sC}, 8")
            A(f"v_lshrrev_b32 v{vRT}, 5, v1")
            A(f"v_and_b32 v{vRT+1}, 3, v1")
            A(f"v_lshlrev_b32 v{vRT+1}, 2, v{vRT+1}")
            A(f"v_lshl_add_u32 v{vRT}, v{vRT}, 4, v{vRT+1}")
            A(f"v_bfe_u32 v{vRT+2}, v1, 2, 3")
            A(f"v_and_b32 v{vRT+3}, 15, v1")
            A(f"v_lshlrev_b32 v{vRT+3}, 1, v{vRT+3}")
        A(f"s_mul_i32 s{sT1}, s{sI}, 384")
        A(f"s_add_u32 s{sRO}, s{sRO}, s{sT1}")
        if W == 2:
            srd(SRD2, sB2, 1152)
            A(f"buffer_load_{dw(W)} {vr(vRB, W)}, v{vRT}, s[{SRD2}:{SRD2+3}], s{sRO} offen")
        else:
            A(f"v_mov_b32 v{vRB}, v249")
        A(f"s_lshl_b32 s{sT1}, s{sJ}, 3")
        A(f"s_lshl_b32 s{sT3}, s{sMT}, 6")
        A(f"s_add_u32 s{sT1}, s{sT1}, s{sT3}")
        A(f"s_mul_i32 s{sT1}, s{sT1}, 1152")
        A(f"s_add_u32 s{sRO}, s{sRO}, s{sT1}")
        A(f"v_mul_u32_u24 v{vRT+2}, 1152, v{vRT+2}")
        A(f"v_add_u32 v{vRO}, v{vRT}, v{vRT+2}")
        A(f"s_mul_i32 s{sT1}, s{sWK}, {8*3072}")
        A(f"s_add_u32 s{sRI}, s{sRI}, s{sT1}")
        A(f"s_add_u32 s{sRI}, s{sRI}, {WS_IN}")
        A(f"v_mov_b32 v{vRZ}, 0")
        A(f"v_lshrrev_b32 v{vRT+3}, v{vRT+3}, s{sTAG+1}")
        for k in range(W):
            A(f"v_bfe_u32 v{vRG+k}, v{vRT+3}, {2*k}, 2")
            A(f"v_mul_u32_u24 v{vRG+k}, 0x8001, v{vRG+k}")
        A(f"v_mov_b32 v{vRG+4}, 0x10001")
        A(f"v_mov_b32 v{vRG+5}, 0xffff0000")
        return 1

    def red_init(W):
        for k in range(W):
            A(f"v_lshlrev_b32 v{vRC+2*k}, 16, v{vRB+k}")
            A(f"v_and_b32 v{vRC+1+2*k}, v{vRG+5}, v{vRB+k}")

    def bb_w(q):
        if q == 2:
            epoch_fin()
        if q == cfg.rpq:
            return red_pre(2)
        if q == cfg.rpq + 3:
            red_init(2)

    A.head("w")
    sHW = sT5
    A(f"s_sub_u32 s{sHW}, s{sWV}, 4")
    A("v_lshrrev_b32 v2, 3, v1")
    A("v_and_b32 v3, 7, v1")
    A("v_bfe_u32 v4, v1, 4, 1")
    A("v_lshlrev_b32 v4, 2, v4")
    A("v_xor_b32 v3, v3, v4")
    A("v_lshlrev_b32 v3, 4, v3")
    A("v_lshrrev_b32 v4, 2, v2")
    A("v_and_b32 v5, 3, v2")
    A("v_lshl_add_u32 v4, v4, 3, v5")
    A(f"s_lshl_b32 s{sT0}, s{sHW}, 5")
    A(f"v_add_u32 v4, s{sT0}, v4")
    A("v_mul_u32_u24 v4, 9216, v4")
    A("v_add_u32 v4, v4, v3")
    for c in range(1, 4):
        A(f"v_add_u32 v{4+c}, {(16*(c>>1)+4*(c&1))*9216 - 1024*c}, v4")
    sLW, sC1 = sT4, 38
    A(f"s_lshl_b32 s{sLW}, s{sHW}, 12")
    A(f"s_mul_i32 s{sC1}, s{sJ}, 1152")
    A(f"s_mul_i32 s{sT1}, s{sI}, 384")
    A(f"s_add_u32 s{sC1}, s{sC1}, s{sT1}")
    rot_setup(sC1, 64*9216)
    if cfg.wt:
        A("v_and_b32 v12, 7, v1")
        A("v_lshrrev_b32 v13, 5, v1")
        A("v_lshl_add_u32 v12, v13, 6, v12")
        A("v_mul_u32_u24 v12, 9216, v12")
        A("v_bfe_u32 v13, v1, 3, 2")
        A("v_lshl_add_u32 v12, v13, 7, v12")
        A(f"s_lshl_b32 s{sT0}, s{sHW}, 4")
        A(f"s_add_u32 s{sT0}, s{sT0}, s{sMT}")
        A(f"s_mul_i32 s{sT0}, s{sT0}, {8*9216}")
        A(f"s_add_u32 s{sT0}, s{sT0}, s{sC1}")
        msk = [sum(0xffffff << (32 * h) for h in range(2) if 2 * w + h < cfg.wt) for w in range(2)]
        A(f"s_mov_b32 exec_lo, {msk[0] & 0xffffffff}")
        A(f"s_mov_b32 exec_hi, {msk[0] >> 32}")
        if msk[1] != msk[0]:
            A(f"s_cmp_eq_u32 s{sHW}, 0")
            A(f"s_cselect_b32 exec_lo, exec_lo, {(msk[1] & 0xffffffff) or 1}")
            A(f"s_cselect_b32 exec_hi, exec_hi, {msk[1] >> 32}")
    A("s_waitcnt lgkmcnt(0)")
    if cfg.ts0:
        stamp()
    srd(SRD0, sW1, 5308416)
    if cfg.wt:
        A(f"buffer_load_dword v255, v12, s[{SRD0}:{SRD0+3}], s{sT0} offen")
        A("s_mov_b64 exec, -1")
    sV = [62, 63, 59]

    def w2_setup():
        epoch_load(sMT)
        A(f"s_lshl_b32 s{sT0}, s{sHW}, 5")
        A(f"v_add_u32 v8, s{sT0}, v2")
        A("v_mul_u32_u24 v8, 1152, v8")
        A("v_add_u32 v8, v8, v3")
        for c in range(1, 4):
            A(f"v_add_u32 v{8+c}, {8*c*1152 - 1024*c}, v8")
        A(f"s_mul_i32 s39, s{sJ}, {576*1152}")
        A(f"s_mul_i32 s{sT0}, s{sI}, 384")
        A(f"s_add_u32 s39, s39, s{sT0}")
        for d in range(3):
            mod3add(sT1, d, sT2)
            A(f"s_mul_i32 s{sT1}, s{sT1}, {192*1152}")
            A(f"s_add_u32 s{sV[d]}, s39, s{sT1}")
        srd(SRD1, sW2, 5308416)

    def issue_w(grp):
        for b in grp:
            A(f"s_add_u32 m0, s{sLW}, {b['slot']*8192}")
            if b["kind"] == "W1":
                rot_addr(sT0, sC1, b['t'], 64*9216, 128*b['l'])
                vb, sr = 4, SRD0
            else:
                A(f"s_add_u32 s{sT0}, s{sV[b['d']]}, {64*b['lk']*1152 + 128*b['l']}")
                vb, sr = 8, SRD1
            for c in range(4):
                A(f"buffer_load_dwordx4 v{vb+c}, s[{sr}:{sr+3}], s{sT0} offen offset:{1024*c} {cfg.wfl} lds")

    loader_stream(("W1", "W2"), 4, issue_w, w2_setup, cfg.capw, group=True,
                  before_bar=bb_w, role="w")
    A("s_branch L_reduce")
    ts_max = tsn[0]

    sXB = 38
    sH = {1: 39, 2: 59}
    HALF = [0]

    def h_setup(half):
        A("v_lshlrev_b32 v12, 4, v1")
        A("v_add_u32 v13, 0x10000, v12")
        A("v_add_u32 v14, 0x20000, v12")
        A(f"s_sub_u32 s{sT0}, s{sWK}, s{sI}")
        for d in (1, 2):
            mod3add(sT1, d, sT2)
            A(f"s_add_u32 s{sT1}, s{sT1}, s{sT0}")
            A(f"s_mul_i32 s{sH[d]}, s{sT1}, 24576")
        srd(SRD1, sWS, 0x10000000)
        epoch_load(sMT)

    def issue_xh(b):
        for h in (range(2) if b["kind"] == "X" else HALF):
            A(f"s_mov_b32 m0, {b['slot']*8192 + 4096*h}")
            if b["kind"] == "X":
                rot_addr(sT0, sXB, b['t'], 128, 32*1152*h)
                for c in range(4):
                    A(f"buffer_load_dwordx4 v{8+c}, s[{SRD0}:{SRD0+3}], s{sT0} offen offset:{1024*c} lds")
            else:
                A(f"s_add_u32 s{sT0}, s{sH[b['d']]}, {WS_H + 8192*b['lk'] + 4096*h}")
                for c in range(4):
                    A(f"buffer_load_dwordx4 v12, s[{SRD1}:{SRD1+3}], s{sT0} offen offset:{1024*c} {cfg.hlf} lds")

    retry_code = []

    def validate(hs, wait_for):
        k = A.uid()

        def rd(i):
            addr = hs[i]["slot"] * 8192 + 4096 * HALF[0]
            for c in range(4):
                r = 128 + 16 * i + 4 * c
                A(f"ds_read_b128 v[{r}:{r+3}], v{12 + (addr >> 16)} offset:{(addr & 0xffff) + 1024*c}")

        def valu(i, later):
            for c in range(4):
                r = 128 + 16 * i + 4 * c
                A(f"s_waitcnt lgkmcnt({3-c+later})")
                for kk in range(4):
                    ac = 16 + ((kk + 2) & 3)
                    if i == 0 and c == 0:
                        A(f"v_xor_b32 v{ac}, v{r+kk}, v{25+kk}")
                    else:
                        A(f"v_bitop3_b32 v{ac}, v{ac}, v{r+kk}, v{25+kk} bitop3:0xf6")
        A.label(f"L_v{k}")
        for i in range(len(hs)):
            wait_for(hs[i])
            rd(i)
            if i:
                valu(i - 1, 4)
        valu(len(hs) - 1, 0)
        A("v_or3_b32 v16, v16, v17, v18")
        A("v_bitop3_b32 v16, v16, v19, v24 bitop3:0xa8")
        A("v_cmp_ne_u32 vcc, 0, v16")
        A(f"s_cbranch_vccnz L_vr{k}")
        A.label(f"L_vd{k}")
        n0 = len(A.L)
        A.label(f"L_vr{k}")
        A(f"s_cmp_gt_u32 s{sCNT}, {SPIN_MAX}")
        A(f"s_cbranch_scc1 L_vd{k}")
        for b in hs:
            issue_xh(b)
        A(f"s_add_u32 s{sCNT}, s{sCNT}, 1")
        A("s_waitcnt vmcnt(0)")
        A(f"s_branch L_v{k}")
        retry_code.extend(A.L[n0:])
        del A.L[n0:]

    def flush_retry():
        A.L.extend(retry_code)
        retry_code.clear()

    def bb_tag(q):
        if q == 2:
            epoch_fin()
            tag_regs(25, 16)
            A(f"v_mov_b32 v24, {0x10001 if cfg.hlsb else 0x80008000}")
            A(f"s_mov_b32 s{sCNT}, 0")
        if q == cfg.rpq:
            return red_pre(2)
        if q == cfg.rpq + 3:
            red_init(2)

    A.head("x")
    A.label("L_xh")
    tsn[0] = ts_base
    A("v_lshrrev_b32 v2, 3, v1")
    A("v_and_b32 v3, 7, v1")
    A("v_lshrrev_b32 v4, 4, v1")
    A("v_xor_b32 v3, v3, v4")
    A("v_lshlrev_b32 v3, 4, v3")
    A("v_mul_u32_u24 v4, 1152, v2")
    A("v_add_u32 v8, v4, v3")
    A("v_xor_b32 v5, 64, v8")
    A(f"v_add_u32 v9, {8*1152 - 1024}, v5")
    A(f"v_add_u32 v10, {16*1152 - 2048}, v8")
    A(f"v_add_u32 v11, {24*1152 - 3072}, v5")
    A(f"s_mul_i32 s{sXB}, s{sMT}, {64*1152}")
    rot_setup(sXB, 128)

    def x_touch_pre(st0):
        A(f"s_mul_i32 s{sT0}, s{sI}, 22")
        A("v_and_b32 v12, 31, v1")
        A(f"v_add_u32 v12, s{sT0}, v12")
        A("v_min_u32 v12, 63, v12")
        A("v_mul_u32_u24 v12, 1152, v12")
        A("v_lshrrev_b32 v13, 5, v1")
        A("v_lshl_add_u32 v12, v13, 7, v12")
        A("s_mov_b32 exec_lo, 0x3fffff")
        A(f"s_mov_b32 exec_hi, {0x3fffff if cfg.wt > st0 + 1 else 0}")

    def x_touch(st0):
        A(f"buffer_load_dword v255, v12, s[{SRD0}:{SRD0+3}], s{sXB} offen offset:{128*st0}")
        A("s_mov_b64 exec, -1")
    if cfg.wt:
        x_touch_pre(0)
    A("s_waitcnt lgkmcnt(0)")
    if cfg.ts0:
        stamp()
    srd(SRD0, sX, 589824)
    if cfg.wt:
        x_touch(0)
    nbx = lambda b: 8 if b["kind"] == "X" else 4
    loader_stream(("X", "H1", "H2"), nbx, issue_xh, lambda: h_setup(0), cfg.capx, validate=validate, before_bar=bb_tag, role="x")
    if TS:
        A(f"s_mov_b32 s{sTS+24}, s{sCNT}")
    A("s_branch L_reduce")
    flush_retry()
    ts_max = max(ts_max, tsn[0])

    A.head("h2")
    A.label("L_h2")
    tsn[0] = ts_base
    if cfg.wt > 2:
        A(f"s_mul_i32 s{sXB}, s{sMT}, {64*1152}")
        x_touch_pre(2)
    A("s_waitcnt lgkmcnt(0)")
    if cfg.wt > 2:
        srd(SRD0, sX, 589824)
        x_touch(2)
    srd(SRD1, sWS, 0x10000000)
    if cfg.hpre == 3:
        A("v_lshlrev_b32 v3, 7, v1")
        A(f"s_mul_i32 s{sT1}, s{sWK}, 24576")
        A(f"s_add_u32 s{sT1}, s{sT1}, {WS_H}")
        for c in range(3):
            A(f"buffer_load_dword v255, v3, s[{SRD1}:{SRD1+3}], s{sT1} offen")
            A(f"s_add_u32 s{sT1}, s{sT1}, 8192")

    def w7_touch():
        st = list(range(cfg.ta, cfg.ta + cfg.tn))
        srd(SRD0, sX, 589824)
        srd(SRD2, sW1, 5308416)
        A(f"s_mul_i32 s{sXB}, s{sMT}, {64*1152}")
        A(f"s_mul_i32 s{sT0}, s{sI}, 22")
        A("v_and_b32 v2, 31, v1")
        A(f"v_add_u32 v2, s{sT0}, v2")
        A("v_min_u32 v2, 63, v2")
        A("v_mul_u32_u24 v2, 1152, v2")
        A("v_lshrrev_b32 v4, 5, v1")
        A("v_lshl_add_u32 v2, v4, 7, v2")
        A("v_and_b32 v3, 7, v1")
        A("v_lshl_add_u32 v3, v4, 6, v3")
        A("v_mul_u32_u24 v3, 9216, v3")
        A("v_bfe_u32 v4, v1, 3, 2")
        A("v_lshl_add_u32 v3, v4, 7, v3")
        A(f"s_mul_i32 s{sT0}, s{sMT}, {8*9216}")
        A(f"s_mul_i32 s{sT1}, s{sJ}, 1152")
        A(f"s_add_u32 s{sT0}, s{sT0}, s{sT1}")
        A(f"s_mul_i32 s{sT1}, s{sI}, 384")
        A(f"s_add_u32 s{sT0}, s{sT0}, s{sT1}")
        for p in range(0, len(st), 2):
            two = p + 1 < len(st)
            A(f"s_add_u32 s{sT1}, s{sT0}, {st[p]*64*9216}")
            A("s_mov_b32 exec_lo, 0xffffff")
            A(f"s_mov_b32 exec_hi, {0xffffff if two else 0}")
            A(f"buffer_load_dword v255, v3, s[{SRD2}:{SRD2+3}], s{sT1} offen")
            A("s_mov_b32 exec_lo, 0x3fffff")
            A(f"s_mov_b32 exec_hi, {0x3fffff if two else 0}")
            A(f"buffer_load_dword v255, v2, s[{SRD0}:{SRD0+3}], s{sXB} offen offset:{128*st[p]}")
        A("s_mov_b64 exec, -1")
    if cfg.tn and cfg.tpos == 0:
        w7_touch()

    def bb_h2(q):
        if cfg.tn and cfg.tpos == 1 and q == 0:
            A("s_waitcnt lgkmcnt(0)")
            w7_touch()
        if cfg.tn and cfg.tpos >= 2 and q == cfg.tpos - 1:
            w7_touch()
        if cfg.tn and q == 7:
            A("s_waitcnt vmcnt(0)")
        if q == 2 and (cfg.hpre == 3 or cfg.wt > 2):
            A("s_waitcnt vmcnt(0)")
        return bb_tag(q)

    HALF[0] = 1
    loader_stream(("H1", "H2"), nbx, issue_xh, lambda: h_setup(1), cfg.capx, validate=validate, before_bar=bb_h2, role="h2")
    ts_max = max(ts_max, tsn[0])
    A("s_branch L_reduce")
    flush_retry()

    A.tail("red")
    sM, sQ = sT5, sT4
    sVC = 16

    def reduce_code(W, nbar):
        x = f"{W}"
        srd(SRD1, sWS, 0x10000000)
        A(f"s_mov_b32 s{sCNT}, 0")
        srd(SRD0, sOUT, 589824)
        if W == 1:
            red_pre(1)
            red_init(1)
            A(f"s_waitcnt vmcnt({cfg.rw1})")
            if cfg.rlate == 1:
                A("s_barrier")

        def ld(s_):
            A(f"s_add_u32 s{sT1}, s{sRI}, {3072*s_}")
            A(f"buffer_load_{dw(W)} {vr(vRD+W*s_, W)}, v{vRA}, s[{SRD1}:{SRD1+3}], s{sT1} offen {cfg.rfl}")
        if W == 2 and cfg.r0early and nbar:
            A(f"s_cmp_ge_u32 s{sC}, 2")
            A("s_cbranch_scc1 L_rlate")
            stamp()
            tsn[0] -= 1 if TS else 0
            for s_ in range(8):
                ld(s_)
            A("s_barrier")
            A("s_branch L_rfirst")
            A.label("L_rlate")
        for _ in range(nbar):
            A("s_barrier")
        stamp()
        enc("rbar")

        def chk_i(s_, dst, t):
            r = vRD + W * s_
            if W == 1:
                o = [f"v_bitop3_b32 v{t}, v{r}, v{vRG}, v{vRG+4} bitop3:0x28"]
            else:
                o = [f"v_xor_b32 v{t}, v{r}, v{vRG}"]
                for k in range(1, W):
                    o.append(f"v_bitop3_b32 v{t}, v{t}, v{r+k}, v{vRG+k} bitop3:0xf6")
                o.append(f"v_and_b32 v{t}, v{vRG+4}, v{t}")
            o.append(f"v_cmp_ne_u32 {dst}, 0, v{t}")
            return o

        def acc_i(s_, t0):
            r = vRD + W * s_
            o = []
            for k in range(W):
                t = t0 + 2 * k
                o.append(f"v_lshlrev_b32 v{t}, 16, v{r+k}")
                o.append(f"v_and_b32 v{t+1}, v{vRG+5}, v{r+k}")
            for k in range(W):
                t = t0 + 2 * k
                o.append(f"v_pk_add_f32 v[{vRC+2*k}:{vRC+1+2*k}], v[{vRC+2*k}:{vRC+1+2*k}], v[{t}:{t+1}]")
            return o

        def masked(sm, fn, tag):
            for g in range(2):
                A(f"s_and_b32 s{sT0}, s{sm}, {0xf << (4*g)}")
                A(f"s_cbranch_scc0 L_{tag}{x}g{g}")
                for s_ in range(4 * g, 4 * g + 4):
                    A(f"s_bitcmp0_b32 s{sm}, {s_}")
                    A(f"s_cbranch_scc1 L_{tag}{x}s{s_}")
                    fn(s_)
                    A.label(f"L_{tag}{x}s{s_}")
                A.label(f"L_{tag}{x}g{g}")

        for s_ in range(8):
            ld(s_)
        for _ in range(nbar, cfg.rnb if W != 1 else 0):
            A("s_barrier")
        if W == 1 and cfg.rlate == 2:
            A("s_barrier")
        if W == 2:
            A.label("L_rfirst")
        for s_ in range(8):
            A(f"s_waitcnt vmcnt({7-s_})")
            c = chk_i(s_, f"s[{sVC+2*s_}:{sVC+2*s_+1}]", vRX)
            a_ = acc_i(s_, vRT)
            while c or a_:
                if c:
                    A(c.pop(0))
                if a_:
                    A(a_.pop(0))
            if s_ >= 2:
                A(f"s_or_b64 vcc, {'s[16:17]' if s_ == 2 else 'vcc'}, s[{sVC+2*s_-2}:{sVC+2*s_-1}]")
        A(f"s_or_b64 vcc, vcc, s[{sVC+14}:{sVC+15}]")
        A(f"s_cbranch_scc0 L_rdone{x}")
        A(f"s_mov_b32 s{sM}, 0")
        for s_ in range(7, -1, -1):
            A(f"s_cmp_lg_u64 s[{sVC+2*s_}:{sVC+2*s_+1}], 0")
            A(f"s_addc_u32 s{sM}, s{sM}, s{sM}")
        A(f"s_xor_b32 s{sQ}, s{sM}, 0xff")
        red_init(W)
        A.label(f"L_rtop{x}")
        masked(sM, ld, "rl")
        masked(sQ, lambda s_: [A(t) for t in acc_i(s_, vRT)], "ra")
        A(f"s_add_u32 s{sCNT}, s{sCNT}, 1")
        A(f"s_mov_b32 s{sQ}, s{sM}")
        A(f"s_cmp_gt_u32 s{sCNT}, {SPIN_MAX}")
        A(f"s_cbranch_scc1 L_rdone{x}")
        A("s_waitcnt vmcnt(0)")

        def chk2(s_):
            for t in chk_i(s_, "vcc", vRX):
                A(t)
            A(f"s_cbranch_vccnz L_rc{x}s{s_}")
            A(f"s_bitset0_b32 s{sM}, {s_}")
            for t in acc_i(s_, vRT):
                A(t)
        masked(sQ, chk2, "rc")
        A(f"s_mov_b32 s{sQ}, 0")
        A(f"s_cmp_lg_u32 s{sM}, 0")
        A(f"s_cbranch_scc1 L_rtop{x}")
        A.label(f"L_rdone{x}")
        stamp()
        enc("rdone")
        for k in range(W):
            A(f"v_cvt_pk_bf16_f32 v{vRC+k}, v{vRC+2*k}, v{vRC+1+2*k}")
        A(f"buffer_store_{dw(W)} {vr(vRC, W)}, v{vRO}, s[{SRD0}:{SRD0+3}], s{sRO} offen {cfg.ofl if W > 1 else cfg.ofl1}")
        if TS:
            A(f"s_mov_b32 s{sWS}, s{SRD1}")
            A(f"s_mov_b32 s{sWS+1}, s{SRD1+1}")

    A.label("L_reduce")
    tsn[0] = ts_max
    reduce_code(2, cfg.rb2)
    A(f"s_or_b32 s{sT0}, s{sJ}, s{sI}")
    A(f"s_or_b32 s{sT0}, s{sT0}, s{sC}")
    A(f"s_cmp_lg_u32 s{sT0}, 0")
    A("s_cbranch_scc1 L_noep")
    A(f"v_mov_b32 v16, s{sTAG}")
    A(f"s_lshl_b32 s{sT0}, s{sMT}, 7")
    A(f"s_add_u32 s{sT0}, s{sT0}, {WS_EP}")
    A("s_mov_b64 exec, 1")
    A(f"buffer_store_dword v16, v{vRZ}, s[{SRD1}:{SRD1+3}], s{sT0} offen sc1")
    A("s_mov_b64 exec, -1")
    A.label("L_noep")
    if cfg.enc:
        if cfg.enc == "end":
            A("s_waitcnt vmcnt(0)")
            enc("end")
        A(f"s_cmp_lg_u32 s{sWV}, {cfg.encw}")
        A("s_cbranch_scc1 L_end")
        A("s_waitcnt lgkmcnt(0)")
        A("s_sub_u32 s94, s94, s96")
        A("s_mul_i32 s94, s94, 2")
        A("s_add_u32 s94, s94, 3000")
        A.label("L_dly")
        A("s_memrealtime s[98:99]")
        A("s_waitcnt lgkmcnt(0)")
        A("s_sub_u32 s98, s98, s96")
        A("s_cmp_lt_u32 s98, s94")
        A("s_cbranch_scc1 L_dly")
    if TS:
        A("s_waitcnt vmcnt(0)")
        stamp()
        A("s_memrealtime s[98:99]")
        A("s_waitcnt lgkmcnt(0)")
        A(f"s_mov_b32 s{sTS+26}, s96"); A(f"s_mov_b32 s{sTS+28}, s98"); A(f"s_mov_b32 s{sTS+30}, s{sCNT}")
        assert tsn[0] <= 12
        tsn[0] = 16
        stamp_flush()
    A("s_branch L_end")

    A.head("c")
    A.label("L_compute")
    tsn[0] = ts_base
    vACC, vAB, vXB, vT = 16, 64, 96, 240
    nAB = D + 1
    vA, vBX, vBH, vHW = [2, 3, 4], [5, 6, 7, 8], [9, 10, 11], [12, 13, 14]
    vTG, vL16 = vT + 11, vT + 10
    assert vAB + 4 * nAB <= vXB
    sA, sBq = sT4, sT5
    A(f"s_and_b32 s{sA}, s{sWV}, 1")
    A(f"s_lshr_b32 s{sBq}, s{sWV}, 1")
    A(f"v_lshrrev_b32 v{vT}, 5, v1")
    A(f"s_mul_i32 s60, s{sJ}, 1152")
    A(f"s_mul_i32 s{sT1}, s{sI}, 384")
    A(f"s_add_u32 s60, s60, s{sT1}")
    A(f"s_lshl_b32 s{sT1}, s{sBq}, 6")
    A(f"s_add_u32 s61, s60, s{sT1}")
    A(f"v_lshlrev_b32 v{vT+4}, 3, v{vT}")
    if cfg.sa:
        A(f"s_add_u32 s{sT3}, s{sWV}, 1")
        A(f"v_and_b32 v{vT+5}, 7, v1")
        A(f"v_mul_u32_u24 v{vT+5}, 9216, v{vT+5}")
        A(f"v_lshrrev_b32 v{vT+6}, 3, v1")
        A(f"v_min_u32 v{vT+6}, 2, v{vT+6}")
        A(f"v_lshl_add_u32 v{vT+5}, v{vT+6}, 7, v{vT+5}")
        A(f"s_lshl_b32 s{sT1}, s{sT3}, 3")
        A(f"s_add_u32 s{sT1}, s{sT1}, s{sMT}")
        A(f"s_mul_i32 s{sT1}, s{sT1}, {8*9216}")
        A(f"s_add_u32 s{sT1}, s{sT1}, s60")
        A(f"s_mul_i32 s{sT2}, s{sI}, 22")
        A(f"v_min_u32 v{vT+6}, 21, v1")
        A(f"v_add_u32 v{vT+6}, s{sT2}, v{vT+6}")
        A(f"v_min_u32 v{vT+6}, 63, v{vT+6}")
        A(f"v_mul_u32_u24 v{vT+6}, 1152, v{vT+6}")
        A(f"s_mul_i32 s{sT2}, s{sMT}, {64*1152}")
        A(f"s_lshl_b32 s{sT3}, s{sT3}, 7")
        A(f"s_add_u32 s{sT2}, s{sT2}, s{sT3}")
    A("s_waitcnt lgkmcnt(0)")
    srd(SRD0, sB1, 9216)
    for l in range(3):
        for g in range(4):
            r = vXB + 2 * (4 * l + g)
            A(f"buffer_load_dwordx2 v[{r}:{r+1}], v{vT+4}, s[{SRD0}:{SRD0+3}], s61 offen offset:{128*l+16*g}")
    if cfg.sa:
        srd(SRD1, sW1, 5308416)
        srd(SRD2, sX, 589824)
        A(f"s_cmp_ge_u32 s{sWV}, {cfg.sa}")
        A("s_cbranch_scc1 L_tdone")
        A(f"buffer_load_dword v255, v{vT+5}, s[{SRD1}:{SRD1+3}], s{sT1} offen {cfg.tfl}")
        A(f"buffer_load_dword v255, v{vT+6}, s[{SRD2}:{SRD2+3}], s{sT2} offen")
        A.label("L_tdone")
    epoch_load(sMT)
    A.tail("c")
    srd(SRD2, sB2, 1152)
    A(f"v_and_b32 v{vT+1}, 3, v1")
    A(f"v_lshlrev_b32 v{vT+1}, 2, v{vT+1}")
    A(f"v_lshl_add_u32 v{vT+1}, v{vT}, 4, v{vT+1}")
    A(f"s_mul_i32 s{sT1}, s{sI}, 384")
    A(f"s_lshl_b32 s{sT0}, s{sWV}, 5")
    A(f"s_add_u32 s{sT1}, s{sT1}, s{sT0}")
    A(f"buffer_load_dword v249, v{vT+1}, s[{SRD2}:{SRD2+3}], s{sT1} offen offset:256")
    srd(SRD1, sWS, 0x10000000)
    A(f"v_bfe_u32 v{vT+1}, v1, 2, 2")
    A(f"v_lshl_add_u32 v{vT+2}, v{vT}, 2, v{vT+1}")
    A(f"v_lshlrev_b32 v{vT+2}, 7, v{vT+2}")
    A(f"v_bfe_u32 v{vT+3}, v1, 3, 1")
    A(f"v_xor_b32 v{vT+3}, s{sBq}, v{vT+3}")
    A(f"v_lshl_add_u32 v{vT+2}, v{vT+3}, 6, v{vT+2}")
    A(f"v_bfe_u32 v{vT+3}, v1, 4, 1")
    A(f"v_lshl_add_u32 v{vT+2}, v{vT+3}, 5, v{vT+2}")
    A(f"v_and_b32 v{vT+3}, 3, v1")
    A(f"v_lshl_add_u32 v{vA[0]}, v{vT+3}, 3, v{vT+2}")
    A(f"v_add_u32 v{vA[1]}, 0x10000, v{vA[0]}")
    A(f"v_add_u32 v{vA[2]}, 0x20000, v{vA[0]}")
    A(f"v_and_b32 v{vT+1}, 31, v1")
    A(f"v_bfe_u32 v{vT+2}, v1, 1, 3")
    A(f"v_xor_b32 v{vT+2}, v{vT}, v{vT+2}")
    A(f"v_lshlrev_b32 v{vT+2}, 4, v{vT+2}")
    A(f"v_lshl_add_u32 v{vT+2}, v{vT+1}, 7, v{vT+2}")
    A(f"s_lshl_b32 s{sT0}, s{sA}, 12")
    A(f"s_add_u32 s{sT1}, s{sT0}, 0x20000")
    A(f"v_add_u32 v{vBX[0]}, s{sT1}, v{vT+2}")
    for sp in range(1, 4):
        A(f"v_xor_b32 v{vBX[sp]}, {32*sp}, v{vBX[0]}")
    A(f"v_lshl_add_u32 v{vBH[0]}, v1, 4, s{sT0}")
    A(f"v_add_u32 v{vBH[1]}, 0x10000, v{vBH[0]}")
    A(f"v_add_u32 v{vBH[2]}, 0x20000, v{vBH[0]}")
    A(f"s_lshl_b32 s{sT1}, s{sBq}, 11")
    for k in range(3):
        A(f"v_add_u32 v{vHW[k]}, s{sT1}, v{vBH[k]}")
    sI0 = 38
    sMS, sML, sMC = 39, 63, 59
    sHS = [60, 61, 62]
    A(f"s_mul_i32 s{sI0}, s{sA}, 96")
    A(f"s_add_u32 s{sI0}, s{sI0}, s{sR}")
    A(f"s_lshl_b32 s{sI0}, s{sI0}, 3")
    A(f"s_add_u32 s{sI0}, s{sI0}, s{sJ}")
    A(f"s_mul_i32 s{sI0}, s{sI0}, 3072")
    A(f"s_add_u32 s{sI0}, s{sI0}, {WS_IN}")
    A(f"s_lshl_b32 s{sT1}, s{sBq}, 9")
    A(f"s_add_u32 s{sI0}, s{sI0}, s{sT1}")
    A(f"v_bfe_u32 v{vT+1}, v1, 3, 2")
    A(f"v_mul_u32_u24 v{vT+1}, {24*8*3072}, v{vT+1}")
    A(f"v_and_b32 v{vT+2}, 7, v1")
    A(f"v_lshl_add_u32 v{vT+1}, v{vT+2}, 4, v{vT+1}")
    A(f"v_lshl_add_u32 v{vL16}, v{vT}, 7, v{vT+1}")
    A(f"s_mov_b32 s{sMS}, 0x80008000")
    A(f"s_mov_b32 s{sML}, 0x00010001")
    A(f"s_mov_b32 s{sMC}, 0x7fff7fff")
    A(f"s_mul_i32 s{sHS[0]}, s{sWK}, 24576")
    if WS_H:
        A(f"s_add_u32 s{sHS[0]}, s{sHS[0]}, {WS_H}")
    A(f"s_add_u32 s{sHS[1]}, s{sHS[0]}, 8192")
    A(f"s_add_u32 s{sHS[2]}, s{sHS[0]}, 16384")
    epoch_fin()
    tag_regs(vTG, vT + 1)
    assert not cfg.sa
    A("s_waitcnt vmcnt(1)")
    if cfg.sa:
        A(f"s_cmp_lt_u32 s{sWV}, {cfg.sa}")
        A("s_cbranch_scc1 L_bw")
        A("s_waitcnt vmcnt(0)")
        A.label("L_bw")
    for l in range(3):
        for g in range(4):
            r = vXB + 2 * (4 * l + g)
            d = vACC + 16 * l + 4 * g
            A(f"v_lshlrev_b32 v{d}, 16, v{r}")
            A(f"v_and_b32 v{d+1}, 0xffff0000, v{r}")
            A(f"v_lshlrev_b32 v{d+2}, 16, v{r+1}")
            A(f"v_and_b32 v{d+3}, 0xffff0000, v{r+1}")
    stamp()

    items = []
    for st in stages:
        bykb = {}
        for u in st["units"]:
            bykb.setdefault(u[2], []).append(u)
        for kb, us in bykb.items():
            if st["q"] == n_g1 - 1 and cfg.tm:
                seq = [int(c) for c in cfg.tm]
                nsp = {0: 0, 1: 0, 2: 0}
                for t_ in seq:
                    (t, wb, _kb, fst) = [u for u in us if u[0] == t_][0]
                    items.append(dict(q=st["q"], tile=t, wb=wb, kb=kb, sp=nsp[t], first=False))
                    nsp[t] += 1
                assert all(v == 4 for v in nsp.values())
                continue
            for sp in range(4):
                for (t, wb, _kb, fst) in us:
                    items.append(dict(q=st["q"], tile=t, wb=wb, kb=kb, sp=sp, first=(fst and sp == 0)))
    NI = len(items)
    aux_used = set()
    if cfg.dual:
        own_end = max(n for n, it in enumerate(items) if it["q"] >= n_g1 and it["kb"] < 3)
        assert all(kbidx[(0, l)] < 3 for l in range(3))
        for n, it in enumerate(items):
            if n > own_end + 1 and items[n - 1]["tile"] == it["tile"]:
                it["first"] = it["tile"] not in aux_used
                aux_used.add(it["tile"])
                it["tile"] += 3

    def accbase(t):
        return vACC + 16 * t if t < 3 else vXB + 16 * (t - 3)
    last_item = {}
    for n, it in enumerate(items):
        last_item[it["q"]] = n
    bread_of = {(st["q"], kb): bb for st in stages for (bb, kb) in st["breads"]}
    lg = []

    def ds_issue(instr, tag):
        cap = 14 if TS else 15
        if len(lg) >= cap:
            A(f"s_waitcnt lgkmcnt({cap-2})")
            del lg[:len(lg) - (cap - 2)]
        A(instr)
        lg.append(tag)

    def ds_need(tags):
        idx = max([i for i, t in enumerate(lg) if t in tags], default=-1)
        if idx >= 0:
            A(f"s_waitcnt lgkmcnt({len(lg) - 1 - idx})")
            del lg[:idx + 1]

    checked = [-1]
    bdone = set()
    dirty, clean_pos = {}, {}

    def clean(m):
        key = (items[m]["kb"], items[m]["sp"])
        if key in dirty and dirty[key] == m:
            del dirty[key]
            ds_need({("B",) + key})
            r = vXB + 16 * key[0] + 4 * key[1]
            for k in range(4):
                A(f"v_and_b32 v{r+k}, s{sMC}, v{r+k}")
            clean_pos[m] = len(A.L) - 1

    def issue_reads(n):
        it = items[n]
        q = it["q"]
        if q > checked[0]:
            ds_need({"hw"})
            A("s_barrier")
            checked[0] = q
            if q in cfg.tsq:
                stamp()
        key = (q, it["kb"])
        if key in bread_of and (key, it["sp"]) not in bdone:
            bdone.add((key, it["sp"]))
            bb = blocks[bread_of[key]]
            addr = bb["slot"] * 8192
            r = vXB + 16 * it["kb"] + 4 * it["sp"]
            if bb["kind"] == "X":
                assert addr >> 16 == 2
                ds_issue(f"ds_read_b128 v[{r}:{r+3}], v{vBX[it['sp']]} offset:{addr & 0xffff}", ("B", it["kb"], it["sp"]))
            else:
                ds_issue(f"ds_read_b128 v[{r}:{r+3}], v{vBH[addr >> 16]} offset:{(addr & 0xffff) + 1024*it['sp']}",
                         ("B", it["kb"], it["sp"]))
                if bb["kind"] != "Hown":
                    if not cfg.hlsb:
                        dirty[(it["kb"], it["sp"])] = n
        wb = blocks[it["wb"]]
        addr = wb["slot"] * 8192 + 2048 * it["sp"]
        r = vAB + 4 * (n % nAB)
        ds_issue(f"ds_read_b64_tr_b16 v[{r}:{r+1}], v{vA[addr >> 16]} offset:{addr & 0xffff}", ("A", n))
        ds_issue(f"ds_read_b64_tr_b16 v[{r+2}:{r+3}], v{vA[addr >> 16]} offset:{(addr & 0xffff) + 1024}", ("A", n))

    post = []

    def epi1_instrs(pi, lines):
        out, late = [], []
        for l in lines:
            a = vACC + 16 * l
            addr = blocks[f"H0_{l}"]["slot"] * 8192
            for half in range(2):
                base = a + 8 * half
                if cfg.epi == 1:
                    assert cfg.hlsb
                    for k in range(8):
                        out.append(("v", f"v_mul_f32 v{base+k}, v{base+k}, |v{base+k}|"))
                    for k in range(4):
                        out.append(("v", f"v_cvt_pk_bf16_f32 v{base+k}, v{base+2*k}, v{base+2*k+1}"))
                    for k in range(4):
                        out.append(("v", f"v_pk_max_i16 v{base+k}, v{base+k}, 0"))
                else:
                    for k in range(8):
                        out.append(("v", f"v_max_f32 v{base+k}, 0, v{base+k}"))
                    for k in range(0, 8, 2):
                        out.append(("v", f"v_pk_mul_f32 v[{base+k}:{base+k+1}], v[{base+k}:{base+k+1}], v[{base+k}:{base+k+1}]"))
                    for k in range(4):
                        out.append(("v", f"v_cvt_pk_bf16_f32 v{base+k}, v{base+2*k}, v{base+2*k+1}"))
                for k in range(4):
                    out.append(("v", f"v_bfi_b32 v{base+4+k}, s{sML}, v{vTG+k}, v{base+k}" if cfg.hlsb else
                                f"v_and_or_b32 v{base+4+k}, v{vTG+k}, s{sMS}, v{base+k}"))
                out.append(("v", f"buffer_store_dwordx4 v[{base+4}:{base+7}], v{vHW[0]}, s[{SRD1}:{SRD1+3}], s{sHS[l]} offen offset:{1024*half} {cfg.hsf}"))
                out.append(("w", f"ds_write_b128 v{vHW[addr >> 16]}, v[{base}:{base+3}] offset:{(addr & 0xffff) + 1024*half}"))
                t = ("v", f"buffer_load_dword v255, v{vHW[0]}, s[{SRD1}:{SRD1+3}], s{sHS[l]} offen offset:{1024*half} {cfg.stf}")
                if cfg.stouch == 1:
                    out.append(t)
                elif cfg.stouch == 2:
                    late.append(t)
                elif cfg.stouch == 3:
                    post.append(t)
        return out + late

    def epi2_instrs(lines):
        out = []
        for l in lines:
            for u in range(2):
                base = vACC + 8 * (2 * l + u)
                if l in aux_used:
                    ab = accbase(l + 3) + 8 * u
                    for k in range(0, 8, 2):
                        out.append(("v", f"v_pk_add_f32 v[{base+k}:{base+k+1}], v[{base+k}:{base+k+1}], v[{ab+k}:{ab+k+1}]"))
                for k in range(4):
                    out.append(("v", f"v_cvt_pk_bf16_f32 v{base+k}, v{base+2*k}, v{base+2*k+1}"))
                out.append(("v", "s_nop 1"))
                out.append(("v", f"v_permlane32_swap_b32 v{base}, v{base+2}"))
                out.append(("v", f"v_permlane32_swap_b32 v{base+1}, v{base+3}"))
                for k in (0, 2, 1, 3):
                    out.append(("v", f"v_bfi_b32 v{base+k}, s{sML}, v{vTG+k}, v{base+k}"))
                out.append(("v", f"buffer_store_dwordx4 v[{base}:{base+3}], v{vL16}, s[{SRD1}:{SRD1+3}], s{sI0} offen offset:{1024*l+256*u} {cfg.psf}"))
        return out

    fillers = []
    fill_start = 0
    fill_tiles = set()
    mfma_pos = {}
    fill_fresh = [False]

    def states_since(pos):
        c = 0
        for ln in A.L[pos + 1:]:
            t = ln.strip()
            if t.endswith(":") or t.startswith(";") or t.startswith("@@"):
                continue
            c += int(t.split()[1]) + 1 if t.startswith("s_nop") else 1
        return c

    late_w = []

    def emit(kind, t):
        if kind == "mark":
            have = min(states_since(mfma_pos[tl]) for tl in t[0])
            if have < 12:
                A(f"s_nop {12 - have - 1}")
        elif kind == "w":
            ds_issue(t, "hw")
        else:
            A(t)

    def flush_fillers():
        nonlocal fillers
        for (kind, t) in fillers + late_w:
            emit(kind, t)
        fillers = []
        late_w.clear()
        fill_tiles.clear()

    trig = {}
    for l in range(3):
        trig[max(n for n, it in enumerate(items) if it["q"] < n_g1 and it["tile"] == l)] = (1, l)
        trig[max(n for n, it in enumerate(items) if it["q"] >= n_g1 and it["tile"] % 3 == l)] = (2, l)

    nread = 0
    for n in range(NI):
        it = items[n]
        lim = min(NI - 1, n + D)
        while nread <= lim:
            nx = items[nread]
            if nx["q"] > checked[0]:
                due = [l for l, v in hown_vis.items() if v == nx["q"]]
                if due:
                    if last_item[hown_w[due[0]]] >= n:
                        break
                    flush_fillers()
            key = (nx["q"], nx["kb"])
            if key in bread_of and (key, nx["sp"]) not in bdone:
                if any(items[m]["kb"] == nx["kb"] and items[m]["sp"] == nx["sp"] for m in range(n, nread)):
                    break
            issue_reads(nread)
            nread += 1
        assert nread > n
        if it["tile"] in fill_tiles:
            flush_fillers()
            A("s_nop 1")
        clean(n)
        ds_need({("A", n), ("B", it["kb"], it["sp"])})
        if it["first"]:
            ds_need({"hw"})
        if n in clean_pos and states_since(clean_pos[n]) < 2:
            A(f"s_nop {1 - states_since(clean_pos[n])}")
        ra = vAB + 4 * (n % nAB)
        rb = vXB + 16 * it["kb"] + 4 * it["sp"]
        acc = accbase(it["tile"])
        c = "0" if it["first"] else f"v[{acc}:{acc+15}]"
        A(f"v_mfma_f32_32x32x16_bf16 v[{acc}:{acc+15}], v[{ra}:{ra+3}], v[{rb}:{rb+3}], {c}")
        mfma_pos[it["tile"]] = len(A.L) - 1
        if n + 1 < nread:
            clean(n + 1)
        k = 0
        while fillers and k < (cfg.fill1 if it["q"] < n_g1 else cfg.fill):
            if fillers[0][0] == "mark" and n < fillers[0][1][1]:
                break
            kind, t = fillers.pop(0)
            emit(kind, t)
            k += kind != "mark"
        if not fillers and not late_w:
            fill_tiles.clear()
        if n == last_item[it["q"]] and (it["q"] in epi_after or it["q"] in epi2_after):
            stamp()
        if n in trig:
            g, l = trig[n]
            tl = [l] + ([l + 3] if (g == 2 and l in aux_used) else [])
            new = epi1_instrs(0, [l]) if g == 1 else epi2_instrs([l])
            if cfg.wlast:
                late_w.extend(x for x in new if x[0] == "w")
                new = [x for x in new if x[0] != "w"]
            fillers += [("mark", (tl, n + cfg.fdel))] + new
            fill_tiles.update(tl)
    flush_fillers()
    stamp()
    if cfg.rnb >= 1 and not cfg.rlate:
        A("s_barrier")
    reduce_code(1, 0)
    if TS:
        A("s_waitcnt vmcnt(0)")
        A("s_memrealtime s[98:99]")
        A("s_waitcnt lgkmcnt(0)")
        assert tsn[0] <= 14, tsn[0]
        A(f"s_mov_b32 s{sTS+28}, s98"); A(f"s_mov_b32 s{sTS+30}, s{sCNT}")
        tsn[0] = 16
        stamp_flush()
    if cfg.enc and cfg.encw < 4:
        A("s_branch L_noep")
    A("s_branch L_end")

    A.head("hl")
    A.label("L_helper")
    sG = 38
    A(f"s_lshl_b32 s{sG}, s{sWV}, 3")
    A(f"s_add_u32 s{sG}, s{sG}, s{sR}")
    A("v_mul_u32_u24 v8, 9216, v1")
    A("v_mul_u32_u24 v9, 1152, v1")
    A(f"s_mul_i32 s39, s{sJ}, 1152")
    A("s_waitcnt lgkmcnt(0)")
    NWT = 64

    def sdiv(dst, src, d):
        A(f"s_mul_i32 s{dst}, s{src}, {(65536 + d - 1) // d}")
        A(f"s_lshr_b32 s{dst}, s{dst}, 16")

    w2base = 0
    if cfg.touch and any(ROT):
        srd(SRD0, sW1, 5308416)
        srd(SRD1, sX, 589824)
        need = {kk: min((kk - r) % 9 for r in ROT) for kk in range(9)}
        kks = sorted([kk for kk in range(9) if need[kk] >= cfg.skipw], key=lambda kk: need[kk])
        KT = sum(kk << (4 * u) for u, kk in enumerate(kks))
        nW = 9 * len(kks)
        x0 = cfg.skipx
        nX = 8 * (9 - x0)
        tot = nW + nX
        for rnd in range((tot + NWT - 1) // NWT):
            if rnd == 1:
                A.tail("hl")
            k = A.uid()
            A(f"s_add_u32 s{sT0}, s{sG}, {NWT*rnd}")
            if NWT * rnd < nW:
                if NWT * rnd + NWT > nW:
                    A(f"s_cmp_ge_u32 s{sT0}, {nW}")
                    A(f"s_cbranch_scc1 L_hx{k}")
                sdiv(sT1, sT0, 9)
                A(f"s_mul_i32 s{sT2}, s{sT1}, 9")
                A(f"s_sub_u32 s{sT2}, s{sT0}, s{sT2}")
                A(f"s_lshl_b32 s{sT1}, s{sT1}, 2")
                A(f"s_lshr_b32 s{sT1}, {KT}, s{sT1}")
                A(f"s_and_b32 s{sT1}, s{sT1}, 15")
                A(f"s_mul_i32 s{sT1}, s{sT1}, {64*9216}")
                A(f"s_lshl_b32 s{sT2}, s{sT2}, 7")
                A(f"s_add_u32 s{sT1}, s{sT1}, s{sT2}")
                A(f"s_add_u32 s{sT1}, s{sT1}, s39")
                A(f"buffer_load_dword v255, v8, s[{SRD0}:{SRD0+3}], s{sT1} offen {cfg.tfl}")
                if NWT * rnd + NWT > nW:
                    A(f"s_branch L_ht{k}")
            if NWT * rnd + NWT > nW:
                A.label(f"L_hx{k}")
                if NWT * rnd + NWT > tot:
                    A(f"s_cmp_ge_u32 s{sT0}, {tot}")
                    A(f"s_cbranch_scc1 L_ht{k}")
                A(f"s_sub_u32 s{sT0}, s{sT0}, {nW - 8*x0}")
                A(f"s_and_b32 s{sT2}, s{sT0}, 7")
                A(f"s_lshr_b32 s{sT1}, s{sT0}, 3")
                A(f"s_lshl_b32 s{sT3}, s{sT2}, 2")
                A(f"s_lshr_b32 s{sT3}, {ROTTAB}, s{sT3}")
                A(f"s_and_b32 s{sT3}, s{sT3}, 15")
                A(f"s_add_u32 s{sT1}, s{sT1}, s{sT3}")
                A(f"s_cmp_ge_u32 s{sT1}, 9")
                A(f"s_cselect_b32 s{sT3}, 9, 0")
                A(f"s_sub_u32 s{sT1}, s{sT1}, s{sT3}")
                A(f"s_mul_i32 s{sT2}, s{sT2}, {64*1152}")
                A(f"s_lshl_b32 s{sT1}, s{sT1}, 7")
                A(f"s_add_u32 s{sT1}, s{sT1}, s{sT2}")
                A(f"buffer_load_dword v255, v9, s[{SRD1}:{SRD1+3}], s{sT1} offen")
            A.label(f"L_ht{k}")
        w2base = (NWT - tot % NWT) % NWT
    elif cfg.touch:
        srd(SRD0, sW1, 5308416)
        srd(SRD1, sX, 589824)
        phases, base = [], 0
        for pi, ls in enumerate(passes):
            t0 = cfg.ht0 if pi == 0 else 0
            c = 3 * len(ls) + (8 if pi == 0 else 0)
            phases.append((base, (9 - t0 - cfg.tn) * c, t0, c, ls))
            base += (9 - t0 - cfg.tn) * c
        w2base = (NWT - base % NWT) % NWT if cfg.w2rot else 0
        for rnd in range((base + NWT - 1) // NWT):
            if rnd == 1:
                A.tail("hl")
            k = A.uid()
            A(f"s_add_u32 s{sT0}, s{sG}, {NWT*rnd}")
            for (pb, cnt, t0, c, ls) in phases:
                if pb + cnt <= NWT * rnd or pb >= NWT * rnd + NWT:
                    continue
                k2 = A.uid()
                A(f"s_cmp_ge_u32 s{sT0}, {pb+cnt}")
                A(f"s_cbranch_scc1 L_hp{k2}")
                if pb:
                    A(f"s_sub_u32 s{sT0}, s{sT0}, {pb}")
                sdiv(sT1, sT0, c)
                A(f"s_mul_i32 s{sT2}, s{sT1}, {c}")
                A(f"s_sub_u32 s{sT2}, s{sT0}, s{sT2}")
                if t0:
                    A(f"s_add_u32 s{sT1}, s{sT1}, {t0}")
                if cfg.tn:
                    A(f"s_cmp_ge_u32 s{sT1}, {cfg.ta}")
                    A(f"s_cselect_b32 s{sT3}, {cfg.tn}, 0")
                    A(f"s_add_u32 s{sT1}, s{sT1}, s{sT3}")
                nw = 3 * len(ls)
                if c > nw:
                    A(f"s_cmp_ge_u32 s{sT2}, {nw}")
                    A(f"s_cbranch_scc1 L_hx{k2}")
                if len(ls) != 3:
                    if len(ls) == 1:
                        A(f"s_mul_i32 s{sT2}, s{sT2}, 3")
                    else:
                        A(f"s_lshr_b32 s{sT3}, s{sT2}, 1")
                        A(f"s_add_u32 s{sT2}, s{sT2}, s{sT3}")
                    if ls[0]:
                        A(f"s_add_u32 s{sT2}, s{sT2}, {ls[0]}")
                A(f"s_mul_i32 s{sT1}, s{sT1}, {64*9216}")
                A(f"s_lshl_b32 s{sT2}, s{sT2}, 7")
                A(f"s_add_u32 s{sT1}, s{sT1}, s{sT2}")
                A(f"s_add_u32 s{sT1}, s{sT1}, s39")
                A(f"buffer_load_dword v255, v8, s[{SRD0}:{SRD0+3}], s{sT1} offen {cfg.tfl}")
                A(f"s_branch L_ht{k}")
                if c > nw:
                    A.label(f"L_hx{k2}")
                    A(f"s_sub_u32 s{sT2}, s{sT2}, {nw}")
                    A(f"s_mul_i32 s{sT2}, s{sT2}, {64*1152}")
                    A(f"s_lshl_b32 s{sT1}, s{sT1}, 7")
                    A(f"s_add_u32 s{sT1}, s{sT1}, s{sT2}")
                    A(f"buffer_load_dword v255, v9, s[{SRD1}:{SRD1+3}], s{sT1} offen")
                    A(f"s_branch L_ht{k}")
                A.label(f"L_hp{k2}")
            A.label(f"L_ht{k}")
    def h_pretouch():
        srd(SRD1, sWS, 0x10000000)
        A("v_lshlrev_b32 v10, 7, v1")
        A(f"s_mul_i32 s{sT1}, s{sJ}, 589824")
        A(f"s_add_u32 s{sT1}, s{sT1}, {WS_IN if cfg.hpin else WS_H}")
        for rnd in range(2):
            k = A.uid()
            A(f"s_add_u32 s{sT0}, s{sG}, {NWT*rnd}")
            A(f"s_cmp_ge_u32 s{sT0}, 72")
            A(f"s_cbranch_scc1 L_ht{k}")
            A(f"s_lshl_b32 s{sT0}, s{sT0}, 13")
            A(f"s_add_u32 s{sT0}, s{sT0}, s{sT1}")
            A(f"buffer_load_dword v255, v10, s[{SRD1}:{SRD1+3}], s{sT0} offen {cfg.hpf}")
            A.label(f"L_ht{k}")
    if cfg.hpre == 1:
        h_pretouch()
    if cfg.touch:
        srd(SRD0, sW2, 5308416)
        A(f"s_mul_i32 s39, s{sJ}, 663552")
        korder = sorted(kbidx, key=lambda x: kbidx[x])
        tabD = sum(d << (2 * u) for u, (d, lk) in enumerate(korder))
        tabL = sum(lk << (2 * u) for u, (d, lk) in enumerate(korder))
        if w2base:
            A(f"s_add_u32 s{sG}, s{sG}, {w2base}")
            A(f"s_and_b32 s{sG}, s{sG}, 63")
        for rnd in range(2):
            k = A.uid()
            A(f"s_add_u32 s{sT0}, s{sG}, {NWT*rnd}")
            A(f"s_cmp_ge_u32 s{sT0}, 81")
            A(f"s_cbranch_scc1 L_ht{k}")
            sdiv(sT1, sT0, 9)
            A(f"s_mul_i32 s{sT2}, s{sT1}, 9")
            A(f"s_sub_u32 s{sT2}, s{sT0}, s{sT2}")
            sdiv(sT3, sT2, 3)
            A(f"s_lshl_b32 s{sT1}, s{sT1}, 1")
            A(f"s_lshr_b32 s{sT0}, {tabD}, s{sT1}")
            A(f"s_and_b32 s{sT0}, s{sT0}, 3")
            A(f"s_add_u32 s{sT0}, s{sT0}, s{sT3}")
            A(f"s_cmp_ge_u32 s{sT0}, 3")
            A(f"s_cselect_b32 s{sT3}, 3, 0")
            A(f"s_sub_u32 s{sT0}, s{sT0}, s{sT3}")
            A(f"s_lshr_b32 s{sT3}, {tabL}, s{sT1}")
            A(f"s_and_b32 s{sT3}, s{sT3}, 3")
            A(f"s_mul_i32 s{sT0}, s{sT0}, {192*1152}")
            A(f"s_mul_i32 s{sT3}, s{sT3}, {64*1152}")
            A(f"s_add_u32 s{sT0}, s{sT0}, s{sT3}")
            A(f"s_lshl_b32 s{sT2}, s{sT2}, 7")
            A(f"s_add_u32 s{sT0}, s{sT0}, s{sT2}")
            A(f"s_add_u32 s{sT0}, s{sT0}, s39")
            A(f"buffer_load_dword v255, v9, s[{SRD0}:{SRD0+3}], s{sT0} offen {cfg.tfl}")
            A.label(f"L_ht{k}")
    if cfg.hpre == 2:
        h_pretouch()
    if TS:
        tsn[0] = 1
        A("s_waitcnt vmcnt(0)")
        stamp()
        stamp()
        stamp_flush()
    A("s_branch L_end")
    A.tail("end")
    A.label("L_end")

    hdr = f"""; Fused MLP (x@w1+b1 -> relu^2 -> @w2+b2), generated by a python script (work/gen4.py)
; @launch grid=(256,1,1) block=(512,1,1) lds=163840
.amdgcn_target "amdgcn-amd-amdhsa--gfx950"
.text
.globl {KN}
.p2align 8
.type {KN},@function
{KN}:
"""
    ftr = f"""
    s_endpgm
.section .rodata,"a"
.p2align 6
.amdhsa_kernel {KN}
  .amdhsa_next_free_vgpr 256
  .amdhsa_next_free_sgpr 102
  .amdhsa_accum_offset 256
  .amdhsa_group_segment_fixed_size 0
  .amdhsa_kernarg_size 64
  .amdhsa_user_sgpr_count 2
  .amdhsa_user_sgpr_kernarg_segment_ptr 1
  .amdhsa_system_sgpr_workgroup_id_x 1
.end_amdhsa_kernel
"""
    return hdr + A.text(cfg.horder.split(","), cfg.torder.split(",") + ["end"]) + ftr


def parse_g2(s):
    out = []
    for stg in s.split(","):
        us = []
        for u in stg.split("+"):
            a, b = u.split(":")
            us.append((int(a[0]), int(a[1]), [int(c) for c in b]))
        out.append(us)
    return out


def ilist(s):
    return [int(x) for x in s.split(",")] if s else []


def main():
    ap = argparse.ArgumentParser()
    ap.add_argument("-o", default="k8.s")
    ap.add_argument("--ts", action="store_true")
    ap.add_argument("--passes", default="012")
    ap.add_argument("--depth", type=int, default=5)
    ap.add_argument("--fill", type=int, default=4)
    ap.add_argument("--grp1", type=int, default=3)
    ap.add_argument("--hres", type=float, default=2.5)
    ap.add_argument("--hearly", type=float, default=1.5)
    ap.add_argument("--hdel", type=int, default=1)
    ap.add_argument("--xfree", type=int, default=11)
    ap.add_argument("--g2", default="00:012,01:012,02:012,10:012,20:012,11:012,21:012,12:012,22:012")
    ap.add_argument("--tsq", default="")
    ap.add_argument("--verbose", action="store_true")
    ap.add_argument("--ahead", type=int, default=8)
    ap.add_argument("--ahead0", type=int, default=8)
    ap.add_argument("--capfrom", type=int, default=8)
    ap.add_argument("--capw", type=int, default=4)
    ap.add_argument("--capx", type=int, default=3)
    ap.add_argument("--burst", default="")
    ap.add_argument("--pause", default="")
    ap.add_argument("--go2lead", type=int, default=3)
    ap.add_argument("--sa", type=int, default=0)
    ap.add_argument("--ctouch", type=int, default=1)
    ap.add_argument("--wfl", default="")
    ap.add_argument("--tfl", default="")
    ap.add_argument("--rfl", default="sc1")
    ap.add_argument("--rsleep", type=int, default=0)
    ap.add_argument("--touch", type=int, default=1)
    ap.add_argument("--clrq", type=int, default=-1)
    ap.add_argument("--cdq", type=int, default=9)
    ap.add_argument("--rbar", type=int, default=0)
    ap.add_argument("--hsf", default="sc1")
    ap.add_argument("--hlf", default="sc1")
    ap.add_argument("--ofl", default="")
    ap.add_argument("--hpre", type=int, default=0)
    ap.add_argument("--rot", default="00000000")
    ap.add_argument("--ts0", type=int, default=0)
    ap.add_argument("--hlsb", type=int, default=1)
    ap.add_argument("--dual", type=int, default=0)
    ap.add_argument("--rlate", type=int, default=0)
    ap.add_argument("--epi", type=int, default=0)
    ap.add_argument("--tm", default="")
    ap.add_argument("--wlast", type=int, default=0)
    ap.add_argument("--fdel", type=int, default=3)
    ap.add_argument("--fill1", type=int, default=5)
    ap.add_argument("--priow", type=int, default=0)
    ap.add_argument("--prioh", type=int, default=0)
    ap.add_argument("--r0early", type=int, default=0)
    ap.add_argument("--psf", default="sc1")
    ap.add_argument("--rw1", type=int, default=0)
    ap.add_argument("--ofl1", default="")
    ap.add_argument("--rpq", type=int, default=10)
    ap.add_argument("--rb2", type=int, default=1)
    ap.add_argument("--rb4", type=int, default=0)
    ap.add_argument("--rearly", type=int, default=0)
    ap.add_argument("--hpf", default="")
    ap.add_argument("--hpin", type=int, default=0)
    ap.add_argument("--wsb", type=lambda x: int(x, 0), default=0)
    ap.add_argument("--enc", default="")
    ap.add_argument("--encw", type=int, default=4)
    ap.add_argument("--hfree", type=int, default=2)
    ap.add_argument("--stouch", type=int, default=0)
    ap.add_argument("--stdel", type=int, default=1)
    ap.add_argument("--stf", default="")
    ap.add_argument("--ta", type=int, default=0)
    ap.add_argument("--tn", type=int, default=0)
    ap.add_argument("--tpos", type=int, default=0)
    ap.add_argument("--w2rot", type=int, default=1)
    ap.add_argument("--rfast", type=int, default=1)
    ap.add_argument("--wt", type=int, default=0)
    ap.add_argument("--horder", default="w,x,h2,hl,c")
    ap.add_argument("--ht0", type=int, default=1)
    ap.add_argument("--first", type=int, default=4)
    ap.add_argument("--torder", default="hl,w,x,h2,c,red")
    ap.add_argument("--skipw", type=int, default=1)
    ap.add_argument("--skipx", type=int, default=1)
    cfg = ap.parse_args()
    cfg.passes = [[int(c) for c in p] for p in cfg.passes.split(",")]
    cfg.g2 = parse_g2(cfg.g2)
    cfg.rnb = cfg.rb2
    cfg.tsq, cfg.burst, cfg.pause = ilist(cfg.tsq), ilist(cfg.burst), ilist(cfg.pause)
    open(cfg.o, "w").write(build(cfg))


main()
```

```python
import sys, argparse

KN = "standalone__dense_activation_squared_relu__sampling_kernel"

WS_H = 0x0
WS_IN = 0x1000000
WS_CD = 0x1840000
WS_EP = 0x1850000
WS_TS = 0x8000000
SPIN_MAX = 100000
SGNMASK = 0x6A9956A5


class Asm:
    def __init__(self):
        self.L = []
        self.n = 0

    def __call__(self, s):
        self.L.append("    " + s)

    def label(self, s):
        self.L.append(s + ":")

    def c(self, s):
        self.L.append("    ; " + s)

    def uid(self):
        self.n += 1
        return self.n

    def head(self, role):
        self.L.append(f"@@HEAD {role}")

    def tail(self, role):
        self.L.append(f"@@TAIL {role}")

    def text(self, horder, torder):
        pro, heads, tails, cur = [], {}, {}, None
        cur = pro
        for ln in self.L:
            if ln.startswith("@@HEAD"):
                cur = heads.setdefault(ln.split()[1], [])
            elif ln.startswith("@@TAIL"):
                r = ln.split()[1]
                if r in heads:
                    heads[r].append(f"    s_branch L_tail_{r}")
                cur = tails.setdefault(r, [f"L_tail_{r}:"])
            else:
                cur.append(ln)
        assert sorted(heads) == sorted(horder) and sorted(tails) == sorted(torder), (heads.keys(), tails.keys())
        out = pro
        for r in horder:
            out += heads[r]
        out.append("L_heads_end:")
        for r in torder:
            out += tails[r]
        return "\n".join(out)


def build(cfg):
    global WS_H, WS_IN, WS_EP
    WS_H = cfg.wsb
    WS_IN = cfg.wsb + 0x480000
    WS_EP = cfg.wsb + 0x900000 if not cfg.slots else 0x10000
    A = Asm()
    TS = cfg.ts
    passes = cfg.passes
    D = cfg.depth

    stages, blocks, order = [], {}, []

    def blk(name, **kw):
        blocks[name] = dict(name=name, **kw)
        return name

    def add_stage(units, breads):
        q = len(stages)
        stages.append(dict(units=units, breads=breads, q=q))
        for (bb, _kb) in breads:
            b = blocks[bb]
            b["need"] = b["last"] = q
            if b["kind"] != "Hown":
                order.append(bb)
        for (_t, wb, _kb, _first) in units:
            b = blocks[wb]
            if "need" not in b:
                b["need"] = q
                order.append(wb)
            b["last"] = q
        return q

    epi_after, pass_of_line = {}, {}
    for pi, lines in enumerate(passes):
        grp = 1 if (len(lines) > 1 or pi == 0) else cfg.grp1
        for t0 in range(0, 9, grp):
            units, breads = [], []
            for t in range(t0, t0 + grp):
                if pi == 0:
                    breads.append((blk(f"X{t}", kind="X", t=t), t))
                for l in lines:
                    units.append((l, blk(f"W{t}_{l}", kind="W1", t=t, l=l), t, False))
            q = add_stage(units, breads)
        epi_after[q] = (pi, list(lines))
        for l in lines:
            pass_of_line[l] = pi
    n_g1 = len(stages)
    kbidx = {}
    first = {0: True, 1: True, 2: True}
    cnt2 = {0: 0, 1: 0, 2: 0}
    epi2_after = {}
    for stg in cfg.g2:
        units, breads = [], []
        for (d, lk, lines) in stg:
            if (d, lk) not in kbidx:
                kbidx[(d, lk)] = len(kbidx)
                breads.append((blk(f"H{d}_{lk}", kind="Hown" if d == 0 else f"H{d}", d=d, lk=lk), kbidx[(d, lk)]))
            for l in lines:
                units.append((l, blk(f"V{d}_{lk}_{l}", kind="W2", d=d, lk=lk, l=l), kbidx[(d, lk)], first[l]))
                first[l] = False
                cnt2[l] += 1
        q = add_stage(units, breads)
        done = [l for l in range(3) if cnt2[l] == 9 and not any(l in v for v in epi2_after.values())]
        if done:
            epi2_after[q] = done
    assert all(v == 9 for v in cnt2.values())
    NQ = len(stages)
    hown_w = {l: q for q, (pi, lines) in epi_after.items() for l in lines}
    hown_vis = {l: (q + 1 if q == n_g1 - 1 else q + 2) for l, q in hown_w.items()}
    for l in hown_w:
        assert blocks[f"H0_{l}"]["need"] >= hown_vis[l]
    hfetch = {l: hown_vis[l] + cfg.hdel for l in hown_w}

    free_at = {s: -10 for s in range(20)}
    events = [(blocks[nm]["need"] - (cfg.hearly if blocks[nm]["kind"] in ("H1", "H2") else 0), 1, k, nm) for k, nm in enumerate(order)]
    for l, qw in hown_w.items():
        events.append((qw - cfg.hres, 0, l, f"H0_{l}"))
    events.sort()
    for ev in events:
        b = blocks[ev[3]]
        if b["kind"] == "X":
            cand = [16, 17, 18, 19]
        elif ev[0] < cfg.xfree:
            cand = list(range(0, 16))
        else:
            cand = list(range(0, 20))
        s = min(cand, key=lambda s: (free_at[s], s))
        b["slot"] = s
        b["free"] = free_at[s]
        if b["kind"] == "Hown":
            assert b["free"] + cfg.hfree <= hown_w[b["lk"]], b
        else:
            assert b["free"] + 2 < b["need"], b
        free_at[s] = b["last"]
    if cfg.verbose:
        print(" | ".join(f"{blocks[e[3]]['name']}:s{blocks[e[3]]['slot']} f{blocks[e[3]]['free']} n{blocks[e[3]]['need']}" for e in events), file=sys.stderr)
    for k, nm in enumerate(order):
        blocks[nm]["pos"] = k
    cum = [sum(1 for nm in order if blocks[nm]["need"] <= q) for q in range(NQ)]

    sX, sW1, sB1, sW2, sB2, sOUT, sDBG, sWS = 16, 18, 20, 22, 24, 26, 28, 30
    sJ, sR, sMT, sI, sWV, sWK = 32, 33, 34, 35, 36, 37
    SRD0, SRD1, SRD2 = 40, 44, 48
    sT0, sT1, sT2, sT3, sT4, sT5 = 52, 53, 54, 55, 56, 57
    sCNT = 58
    sTAG, sPB = 6, 8
    sTS = 64
    tsn = [0]

    def stamp():
        if TS:
            k = tsn[0]
            assert k < 16
            A(f"s_memtime s[{sTS+2*k}:{sTS+2*k+1}]")
            tsn[0] += 1

    def srd(d, p, nbytes):
        A(f"s_mov_b32 s{d}, s{p}")
        A(f"s_mov_b32 s{d+1}, s{p+1}")
        A(f"s_mov_b32 s{d+2}, {nbytes}")
        A(f"s_mov_b32 s{d+3}, 0x00020000")

    def stamp_flush():
        if not TS:
            return
        n = tsn[0]
        A("s_waitcnt lgkmcnt(0)")
        srd(SRD2, sWS, 0x10000000)
        A(f"s_lshl_b32 s{sT0}, s2, 9")
        A(f"s_lshl_b32 s{sT1}, s{sWV}, 6")
        A(f"s_add_u32 s{sT0}, s{sT0}, s{sT1}")
        A(f"s_add_u32 s{sT0}, s{sT0}, {WS_TS}")
        A(f"v_mov_b32 v2, s{sT0}")
        A("s_mov_b64 exec, 1")
        for k in range(n):
            A(f"v_mov_b32 v3, s{sTS+2*k}")
            A(f"buffer_store_dword v3, v2, s[{SRD2}:{SRD2+3}], 0 offen offset:{4*k}")
        A("s_mov_b64 exec, -1")

    def epoch_load(smt):
        A(f"s_lshl_b32 s{sT0}, s{smt}, 7")
        A(f"s_add_u32 s{sT0}, s{sT0}, {WS_EP}")
        A(f"s_load_dword s{sTAG}, s[{sWS}:{sWS+1}], s{sT0}")

    def epoch_fin():
        A("s_waitcnt lgkmcnt(0)")
        A(f"s_add_u32 s{sTAG}, s{sTAG}, 1")
        A(f"s_mul_i32 s{sTAG+1}, s{sTAG}, 0x02020202")
        A(f"s_and_b32 s{sTAG+1}, s{sTAG+1}, 0xeeeeeeee")
        A(f"s_or_b32 s{sTAG+1}, s{sTAG+1}, 0x10101010")
        if cfg.slots:
            A(f"s_and_b32 s14, s{sTAG}, {cfg.slots-1}")
            A(f"s_mul_i32 s14, s14, 0xa00000")

    def slot_add(*regs):
        if cfg.slots:
            for r in regs:
                A(f"s_add_u32 s{r}, s{r}, s14")

    def tag_regs(vd, vt):
        A(f"v_and_b32 v{vt}, 3, v1")
        A(f"v_lshlrev_b32 v{vt}, 3, v{vt}")
        A(f"v_lshrrev_b32 v{vt}, v{vt}, s{sTAG+1}")
        for k in range(4):
            A(f"v_bfe_u32 v{vd+k}, v{vt}, {2*k}, 2")
            A(f"v_mul_u32_u24 v{vd+k}, 0x8001, v{vd+k}")
            A(f"v_and_b32 v{vd+k}, 0x10001, v{vd+k}")
            A(f"v_lshl_or_b32 v{vd+k}, v{vd+k}, 15, v{vd+k}")

    def sign_reg(vd, vt):
        A(f"s_bitcmp1_b32 s{sTAG}, 0")
        A(f"s_cselect_b32 s{sT0}, -1, 0")
        A(f"s_xor_b32 s{sT0}, s{sT0}, {SGNMASK}")
        A(f"v_and_b32 v{vt}, 31, v1")
        A(f"v_lshrrev_b32 v{vt}, v{vt}, s{sT0}")
        A(f"v_bfe_i32 v{vt}, v{vt}, 0, 1")
        A(f"v_and_b32 v{vd}, 0x80008000, v{vt}")

    def sspin(loads, npairs, base):
        k = A.uid()
        A(f"s_mov_b32 s{sCNT}, 0")
        A.label(f"L_s{k}")
        for x in loads:
            A(x)
        A(f"s_add_u32 s{sCNT}, s{sCNT}, 1")
        A("s_waitcnt lgkmcnt(0)")
        A(f"s_cmp_gt_u32 s{sCNT}, {SPIN_MAX}")
        A(f"s_cbranch_scc1 L_sd{k}")
        for n in range(npairs):
            A(f"s_cmp_lg_u64 s[{base+2*n}:{base+2*n+1}], s[{sTAG}:{sTAG+1}]")
            A(f"s_cbranch_scc1 L_s{k}")
        A.label(f"L_sd{k}")

    def mod3add(dst, d, tmp):
        A(f"s_add_u32 s{dst}, s{sI}, {d}")
        A(f"s_cmp_ge_u32 s{dst}, 3")
        A(f"s_cselect_b32 s{tmp}, 3, 0")
        A(f"s_sub_u32 s{dst}, s{dst}, s{tmp}")

    A("s_cmp_ge_u32 s2, 256")
    A("s_cbranch_scc1 L_end")
    A("s_load_dwordx16 s[16:31], s[0:1], 0")
    if cfg.ctouch == 1:
        A("s_getpc_b64 s[4:5]")
        A.label("L_pc")
        A("v_lshlrev_b32 v2, 7, v0")
        A("v_min_u32 v2, L_end-L_pc, v2")
        A("v_and_b32 v2, 0xfffffffc, v2")
        A("global_load_dword v255, v2, s[4:5]")
    elif cfg.ctouch == 2:
        A("s_getpc_b64 s[4:5]")
        A.label("L_pc")
        A("s_lshr_b32 s3, s2, 3")
        A("s_lshl_b32 s3, s3, 11")
        A("v_lshrrev_b32 v2, 5, v0")
        A("v_lshl_add_u32 v2, v2, 7, s3")
        A("v_min_u32 v2, L_end-L_pc, v2")
        A("v_and_b32 v2, 0xfffffffc, v2")
        A("global_load_dword v255, v2, s[4:5]")
    if TS:
        A("s_memrealtime s[96:97]")
    if cfg.enc:
        A("s_memrealtime s[96:97]")
        if cfg.enc == "none":
            A("s_memrealtime s[94:95]")

    def enc(p):
        if cfg.enc == p:
            A("s_memrealtime s[94:95]")
    stamp()
    A("v_and_b32 v1, 63, v0")
    A("v_lshrrev_b32 v2, 6, v0")
    A(f"s_and_b32 s{sJ}, s2, 7")
    A(f"v_readfirstlane_b32 s{sWV}, v2")
    A(f"s_lshr_b32 s{sR}, s2, 3")
    A(f"s_cmp_lt_u32 s{sR}, 8")
    A("s_cbranch_scc1 L_helper")
    A(f"s_sub_u32 s{sR}, s{sR}, 8")
    A(f"s_mul_i32 s{sMT}, s{sR}, 21846")
    A(f"s_lshr_b32 s{sMT}, s{sMT}, 16")
    A(f"s_mul_i32 s{sT0}, s{sMT}, 3")
    A(f"s_sub_u32 s{sI}, s{sR}, s{sT0}")
    A(f"s_mul_i32 s{sWK}, s{sJ}, 24")
    A(f"s_add_u32 s{sWK}, s{sWK}, s{sR}")
    ROT = [int(c) for c in cfg.rot]
    ROTTAB = sum(r << (4 * m) for m, r in enumerate(ROT))
    sROT, sLO, sHI = 10, 11, 12
    if any(ROT):
        A(f"s_lshl_b32 s{sROT}, s{sMT}, 2")
        A(f"s_lshr_b32 s{sROT}, {ROTTAB}, s{sROT}")
        A(f"s_and_b32 s{sROT}, s{sROT}, 15")

    def rot_setup(sbase, stride):
        if any(ROT):
            A(f"s_mul_i32 s{sLO}, s{sROT}, {stride}")
            A(f"s_add_u32 s{sLO}, s{sLO}, s{sbase}")
            A(f"s_sub_u32 s{sHI}, s{sLO}, {9*stride}")

    def rot_addr(dst, sbase, t, stride, extra):
        if any(ROT):
            if t + max(ROT) < 9:
                A(f"s_add_u32 s{dst}, s{sLO}, {t*stride + extra}")
            else:
                A(f"s_cmp_lt_u32 s{sROT}, {9-t}")
                A(f"s_cselect_b32 s{dst}, s{sLO}, s{sHI}")
                A(f"s_add_u32 s{dst}, s{dst}, {t*stride + extra}")
        else:
            A(f"s_add_u32 s{dst}, s{sbase}, {t*stride + extra}")
    A(f"s_cmp_lt_u32 s{sWV}, 4")
    A("s_cbranch_scc1 L_compute")
    A(f"s_cmp_eq_u32 s{sWV}, 6")
    A("s_cbranch_scc1 L_xh")
    A(f"s_cmp_eq_u32 s{sWV}, 7")
    A("s_cbranch_scc1 L_h2")
    ts_base = tsn[0]

    def loader_stream(kinds, per_block, issue_fn, setup_fn, cap, group=False, validate=None, before_bar=None, role=None):
        mine = [blocks[nm] for nm in order if blocks[nm]["kind"] in kinds]
        outstanding, pend = [], list(mine)
        nb = lambda nm: blocks[nm]["n"] if blocks[nm]["kind"] == "extra" else (per_block(blocks[nm]) if callable(per_block) else per_block)
        cnt = lambda lst: sum(nb(x) for x in lst)

        def ok(b, q):
            if b["free"] + 2 > q:
                return False
            if b["kind"] in ("H1", "H2") and q < min(hfetch[b["lk"]], b["need"] - 1):
                return False
            return True

        def issue_upto(q, ahead, cap):
            n = 0
            lim = cum[q] + ahead if q >= 0 else ahead
            while pend and ok(pend[0], q):
                must = pend[0]["need"] <= q + 1 or pend[0]["pos"] < lim
                if not must and n >= cap:
                    break
                grp = [pend.pop(0)]
                while group and pend and ok(pend[0], q) and pend[0]["need"] == grp[0]["need"] and len(grp) < 3 \
                        and (pend[0]["pos"] < lim or n + len(grp) < cap or pend[0]["need"] <= q + 1):
                    grp.append(pend.pop(0))
                need_n = sum(nb(x["name"]) for x in grp)
                if cnt(outstanding) + need_n > 63:
                    while cnt(outstanding) + need_n > 63:
                        del outstanding[0]
                    A(f"s_waitcnt vmcnt({cnt(outstanding)})")
                issue_fn(grp if group else grp[0])
                if cfg.verbose:
                    print(f"   after B{q}: " + " ".join(x["name"] for x in grp), file=sys.stderr)
                outstanding.extend(x["name"] for x in grp)
                n += len(grp)

        issue_upto(-1, cfg.first, 0)
        if cfg.ts0:
            stamp()
        if role == "w":
            enc("iss")
        A.tail(role)
        pr = cfg.priow if role == "w" else cfg.prioh
        if pr:
            A(f"s_setprio {pr}")
        setup_fn()
        issue_upto(-1, cfg.ahead0, 0)
        for q in range(NQ):
            assert not any(b["need"] <= q for b in pend), (q, pend[0])
            def wait_for(b):
                if b["name"] in outstanding:
                    idx = max(i for i, nm in enumerate(outstanding) if blocks[nm]["need"] <= q) if validate is None \
                        else outstanding.index(b["name"])
                    del outstanding[:idx + 1]
                    A(f"s_waitcnt vmcnt({cnt(outstanding)})")
            hs = []
            for b in mine:
                if b["need"] == q:
                    if validate is not None and b["kind"] != "X":
                        hs.append(b)
                    else:
                        wait_for(b)
            if hs:
                validate(hs, wait_for)
            if before_bar is not None:
                ex = before_bar(q)
                if ex:
                    nm = f"extra{A.uid()}"
                    blocks[nm] = dict(name=nm, kind="extra", n=ex, need=99)
                    outstanding.append(nm)
            if q in cfg.tsq:
                stamp()
            A("s_barrier")
            if role == "w":
                enc(f"B{q}")
            if q in cfg.pause:
                issue_upto(q, 0, 0)
            else:
                issue_upto(q, cfg.ahead, 99 if q in cfg.burst else (cap if q >= cfg.capfrom else 0))
        assert not pend

    vRA, vRO, vRB, vRC, vRD, vRT, vRX, vRZ, vRG = 64, 65, 66, 72, 80, 112, 116, 117, 120
    sRI, sRO, sC = 60, 61, 13

    def vr(r, W):
        return f"v{r}" if W == 1 else f"v[{r}:{r+W-1}]"

    def dw(W):
        return "dword" if W == 1 else f"dwordx{W}"

    def red_pre(W):
        if W == 2:
            A(f"s_sub_u32 s{sC}, s{sWV}, 4")
            A(f"v_lshlrev_b32 v{vRA}, 3, v1")
            A(f"s_lshl_b32 s{sRO}, s{sC}, 6")
            A(f"s_lshl_b32 s{sRI}, s{sC}, 9")
            A(f"v_lshrrev_b32 v{vRT}, 4, v1")
            A(f"v_and_b32 v{vRT+1}, 1, v1")
            A(f"v_lshlrev_b32 v{vRT+1}, 3, v{vRT+1}")
            A(f"v_lshl_add_u32 v{vRT}, v{vRT}, 4, v{vRT+1}")
            A(f"v_bfe_u32 v{vRT+2}, v1, 1, 3")
            A(f"v_and_b32 v{vRT+3}, 7, v1")
            A(f"v_lshlrev_b32 v{vRT+3}, 2, v{vRT+3}")
        else:
            A(f"s_add_u32 s{sC}, s{sWV}, 8")
            A(f"v_lshlrev_b32 v{vRA}, 2, v1")
            A(f"s_lshl_b32 s{sRO}, s{sC}, 5")
            A(f"s_lshl_b32 s{sRI}, s{sC}, 8")
            A(f"v_lshrrev_b32 v{vRT}, 5, v1")
            A(f"v_and_b32 v{vRT+1}, 3, v1")
            A(f"v_lshlrev_b32 v{vRT+1}, 2, v{vRT+1}")
            A(f"v_lshl_add_u32 v{vRT}, v{vRT}, 4, v{vRT+1}")
            A(f"v_bfe_u32 v{vRT+2}, v1, 2, 3")
            A(f"v_and_b32 v{vRT+3}, 15, v1")
            A(f"v_lshlrev_b32 v{vRT+3}, 1, v{vRT+3}")
        A(f"s_mul_i32 s{sT1}, s{sI}, 384")
        A(f"s_add_u32 s{sRO}, s{sRO}, s{sT1}")
        if W == 2:
            srd(SRD2, sB2, 1152)
            A(f"buffer_load_{dw(W)} {vr(vRB, W)}, v{vRT}, s[{SRD2}:{SRD2+3}], s{sRO} offen")
        else:
            A(f"v_mov_b32 v{vRB}, v249")
        A(f"s_lshl_b32 s{sT1}, s{sJ}, 3")
        A(f"s_lshl_b32 s{sT3}, s{sMT}, 6")
        A(f"s_add_u32 s{sT1}, s{sT1}, s{sT3}")
        A(f"s_mul_i32 s{sT1}, s{sT1}, 1152")
        A(f"s_add_u32 s{sRO}, s{sRO}, s{sT1}")
        A(f"v_mul_u32_u24 v{vRT+2}, 1152, v{vRT+2}")
        A(f"v_add_u32 v{vRO}, v{vRT}, v{vRT+2}")
        A(f"s_mul_i32 s{sT1}, s{sWK}, {8*3072}")
        A(f"s_add_u32 s{sRI}, s{sRI}, s{sT1}")
        A(f"s_add_u32 s{sRI}, s{sRI}, {WS_IN}")
        slot_add(sRI)
        A(f"v_mov_b32 v{vRZ}, 0")
        A(f"v_lshrrev_b32 v{vRT+3}, v{vRT+3}, s{sTAG+1}")
        for k in range(W):
            A(f"v_bfe_u32 v{vRG+k}, v{vRT+3}, {2*k}, 2")
            A(f"v_mul_u32_u24 v{vRG+k}, 0x8001, v{vRG+k}")
        A(f"v_mov_b32 v{vRG+4}, 0x10001")
        A(f"v_mov_b32 v{vRG+5}, 0xffff0000")
        return 1

    def red_init(W):
        for k in range(W):
            A(f"v_lshlrev_b32 v{vRC+2*k}, 16, v{vRB+k}")
            A(f"v_and_b32 v{vRC+1+2*k}, v{vRG+5}, v{vRB+k}")

    def bb_w(q):
        if q == 2:
            epoch_fin()
        if q == cfg.rpq:
            return red_pre(2)
        if q == cfg.rpq + 3:
            red_init(2)

    A.head("w")
    sHW = sT5
    A(f"s_sub_u32 s{sHW}, s{sWV}, 4")
    A("v_lshrrev_b32 v2, 3, v1")
    A("v_and_b32 v3, 7, v1")
    A("v_bfe_u32 v4, v1, 4, 1")
    A("v_lshlrev_b32 v4, 2, v4")
    A("v_xor_b32 v3, v3, v4")
    A("v_lshlrev_b32 v3, 4, v3")
    A("v_lshrrev_b32 v4, 2, v2")
    A("v_and_b32 v5, 3, v2")
    A("v_lshl_add_u32 v4, v4, 3, v5")
    A(f"s_lshl_b32 s{sT0}, s{sHW}, 5")
    A(f"v_add_u32 v4, s{sT0}, v4")
    A("v_mul_u32_u24 v4, 9216, v4")
    A("v_add_u32 v4, v4, v3")
    for c in range(1, 4):
        A(f"v_add_u32 v{4+c}, {(16*(c>>1)+4*(c&1))*9216 - 1024*c}, v4")
    sLW, sC1 = sT4, 38
    A(f"s_lshl_b32 s{sLW}, s{sHW}, 12")
    A(f"s_mul_i32 s{sC1}, s{sJ}, 1152")
    A(f"s_mul_i32 s{sT1}, s{sI}, 384")
    A(f"s_add_u32 s{sC1}, s{sC1}, s{sT1}")
    rot_setup(sC1, 64*9216)
    if cfg.wt:
        A("v_and_b32 v12, 7, v1")
        A("v_lshrrev_b32 v13, 5, v1")
        A("v_lshl_add_u32 v12, v13, 6, v12")
        A("v_mul_u32_u24 v12, 9216, v12")
        A("v_bfe_u32 v13, v1, 3, 2")
        A("v_lshl_add_u32 v12, v13, 7, v12")
        A(f"s_lshl_b32 s{sT0}, s{sHW}, 4")
        A(f"s_add_u32 s{sT0}, s{sT0}, s{sMT}")
        A(f"s_mul_i32 s{sT0}, s{sT0}, {8*9216}")
        A(f"s_add_u32 s{sT0}, s{sT0}, s{sC1}")
        msk = [sum(0xffffff << (32 * h) for h in range(2) if 2 * w + h < cfg.wt) for w in range(2)]
        A(f"s_mov_b32 exec_lo, {msk[0] & 0xffffffff}")
        A(f"s_mov_b32 exec_hi, {msk[0] >> 32}")
        if msk[1] != msk[0]:
            A(f"s_cmp_eq_u32 s{sHW}, 0")
            A(f"s_cselect_b32 exec_lo, exec_lo, {(msk[1] & 0xffffffff) or 1}")
            A(f"s_cselect_b32 exec_hi, exec_hi, {msk[1] >> 32}")
    A("s_waitcnt lgkmcnt(0)")
    if cfg.ts0:
        stamp()
    srd(SRD0, sW1, 5308416)
    if cfg.wt:
        A(f"buffer_load_dword v255, v12, s[{SRD0}:{SRD0+3}], s{sT0} offen")
        A("s_mov_b64 exec, -1")
    sV = [62, 63, 59]

    def w2_setup():
        epoch_load(sMT)
        A(f"s_lshl_b32 s{sT0}, s{sHW}, 5")
        A(f"v_add_u32 v8, s{sT0}, v2")
        A("v_mul_u32_u24 v8, 1152, v8")
        A("v_add_u32 v8, v8, v3")
        for c in range(1, 4):
            A(f"v_add_u32 v{8+c}, {8*c*1152 - 1024*c}, v8")
        A(f"s_mul_i32 s39, s{sJ}, {576*1152}")
        A(f"s_mul_i32 s{sT0}, s{sI}, 384")
        A(f"s_add_u32 s39, s39, s{sT0}")
        for d in range(3):
            mod3add(sT1, d, sT2)
            A(f"s_mul_i32 s{sT1}, s{sT1}, {192*1152}")
            A(f"s_add_u32 s{sV[d]}, s39, s{sT1}")
        srd(SRD1, sW2, 5308416)

    def issue_w(grp):
        for b in grp:
            A(f"s_add_u32 m0, s{sLW}, {b['slot']*8192}")
            if b["kind"] == "W1":
                rot_addr(sT0, sC1, b['t'], 64*9216, 128*b['l'])
                vb, sr = 4, SRD0
            else:
                A(f"s_add_u32 s{sT0}, s{sV[b['d']]}, {64*b['lk']*1152 + 128*b['l']}")
                vb, sr = 8, SRD1
            for c in range(4):
                A(f"buffer_load_dwordx4 v{vb+c}, s[{sr}:{sr+3}], s{sT0} offen offset:{1024*c} {cfg.wfl} lds")

    loader_stream(("W1", "W2"), 4, issue_w, w2_setup, cfg.capw, group=True,
                  before_bar=bb_w, role="w")
    A("s_branch L_reduce")
    ts_max = tsn[0]

    sXB = 38
    sH = {1: 39, 2: 59}
    HALF = [0]

    def h_setup(half):
        A("v_lshlrev_b32 v12, 4, v1")
        A("v_add_u32 v13, 0x10000, v12")
        A("v_add_u32 v14, 0x20000, v12")
        A(f"s_sub_u32 s{sT0}, s{sWK}, s{sI}")
        for d in (1, 2):
            mod3add(sT1, d, sT2)
            A(f"s_add_u32 s{sT1}, s{sT1}, s{sT0}")
            A(f"s_mul_i32 s{sH[d]}, s{sT1}, 24576")
        srd(SRD1, sWS, 0x10000000)
        epoch_load(sMT)

    def issue_xh(b):
        for h in (range(2) if b["kind"] == "X" else HALF):
            A(f"s_mov_b32 m0, {b['slot']*8192 + 4096*h}")
            if b["kind"] == "X":
                rot_addr(sT0, sXB, b['t'], 128, 32*1152*h)
                for c in range(4):
                    A(f"buffer_load_dwordx4 v{8+c}, s[{SRD0}:{SRD0+3}], s{sT0} offen offset:{1024*c} lds")
            else:
                A(f"s_add_u32 s{sT0}, s{sH[b['d']]}, {WS_H + 8192*b['lk'] + 4096*h}")
                for c in range(4):
                    A(f"buffer_load_dwordx4 v12, s[{SRD1}:{SRD1+3}], s{sT0} offen offset:{1024*c} {cfg.hlf} lds")

    retry_code = []

    def validate(hs, wait_for):
        k = A.uid()

        def rd(i):
            addr = hs[i]["slot"] * 8192 + 4096 * HALF[0]
            for c in range(4):
                r = 128 + 16 * i + 4 * c
                A(f"ds_read_b128 v[{r}:{r+3}], v{12 + (addr >> 16)} offset:{(addr & 0xffff) + 1024*c}")

        def valu(i, later):
            for c in range(4):
                r = 128 + 16 * i + 4 * c
                A(f"s_waitcnt lgkmcnt({3-c+later})")
                for kk in range(4):
                    ac = 16 + ((kk + 2) & 3)
                    if i == 0 and c == 0:
                        A(f"v_xor_b32 v{ac}, v{r+kk}, v{25+kk}")
                    else:
                        A(f"v_bitop3_b32 v{ac}, v{ac}, v{r+kk}, v{25+kk} bitop3:0xf6")
        A.label(f"L_v{k}")
        for i in range(len(hs)):
            wait_for(hs[i])
            rd(i)
            if i:
                valu(i - 1, 4)
        valu(len(hs) - 1, 0)
        A("v_or3_b32 v16, v16, v17, v18")
        A("v_bitop3_b32 v16, v16, v19, v24 bitop3:0xa8")
        A("v_cmp_ne_u32 vcc, 0, v16")
        A(f"s_cbranch_vccnz L_vr{k}")
        A.label(f"L_vd{k}")
        n0 = len(A.L)
        A.label(f"L_vr{k}")
        A(f"s_cmp_gt_u32 s{sCNT}, {SPIN_MAX}")
        A(f"s_cbranch_scc1 L_vd{k}")
        for b in hs:
            issue_xh(b)
        A(f"s_add_u32 s{sCNT}, s{sCNT}, 1")
        A("s_waitcnt vmcnt(0)")
        A(f"s_branch L_v{k}")
        retry_code.extend(A.L[n0:])
        del A.L[n0:]

    def flush_retry():
        A.L.extend(retry_code)
        retry_code.clear()

    def bb_tag(q):
        if q == 2:
            epoch_fin()
            slot_add(sH[1], sH[2])
            tag_regs(25, 16)
            A(f"v_mov_b32 v24, {0x10001 if cfg.hlsb else 0x80008000}")
            A(f"s_mov_b32 s{sCNT}, 0")
        if q == cfg.rpq:
            return red_pre(2)
        if q == cfg.rpq + 3:
            red_init(2)

    A.head("x")
    A.label("L_xh")
    tsn[0] = ts_base
    A("v_lshrrev_b32 v2, 3, v1")
    A("v_and_b32 v3, 7, v1")
    A("v_lshrrev_b32 v4, 4, v1")
    A("v_xor_b32 v3, v3, v4")
    A("v_lshlrev_b32 v3, 4, v3")
    A("v_mul_u32_u24 v4, 1152, v2")
    A("v_add_u32 v8, v4, v3")
    A("v_xor_b32 v5, 64, v8")
    A(f"v_add_u32 v9, {8*1152 - 1024}, v5")
    A(f"v_add_u32 v10, {16*1152 - 2048}, v8")
    A(f"v_add_u32 v11, {24*1152 - 3072}, v5")
    A(f"s_mul_i32 s{sXB}, s{sMT}, {64*1152}")
    rot_setup(sXB, 128)

    def x_touch_pre(st0):
        A(f"s_mul_i32 s{sT0}, s{sI}, 22")
        A("v_and_b32 v12, 31, v1")
        A(f"v_add_u32 v12, s{sT0}, v12")
        A("v_min_u32 v12, 63, v12")
        A("v_mul_u32_u24 v12, 1152, v12")
        A("v_lshrrev_b32 v13, 5, v1")
        A("v_lshl_add_u32 v12, v13, 7, v12")
        A("s_mov_b32 exec_lo, 0x3fffff")
        A(f"s_mov_b32 exec_hi, {0x3fffff if cfg.wt > st0 + 1 else 0}")

    def x_touch(st0):
        A(f"buffer_load_dword v255, v12, s[{SRD0}:{SRD0+3}], s{sXB} offen offset:{128*st0}")
        A("s_mov_b64 exec, -1")
    if cfg.wt:
        x_touch_pre(0)
    A("s_waitcnt lgkmcnt(0)")
    if cfg.ts0:
        stamp()
    srd(SRD0, sX, 589824)
    if cfg.wt:
        x_touch(0)
    nbx = lambda b: 8 if b["kind"] == "X" else 4
    loader_stream(("X", "H1", "H2"), nbx, issue_xh, lambda: h_setup(0), cfg.capx, validate=validate, before_bar=bb_tag, role="x")
    if TS:
        A(f"s_mov_b32 s{sTS+24}, s{sCNT}")
    A("s_branch L_reduce")
    flush_retry()
    ts_max = max(ts_max, tsn[0])

    A.head("h2")
    A.label("L_h2")
    tsn[0] = ts_base
    if cfg.wt > 2:
        A(f"s_mul_i32 s{sXB}, s{sMT}, {64*1152}")
        x_touch_pre(2)
    A("s_waitcnt lgkmcnt(0)")
    if cfg.wt > 2:
        srd(SRD0, sX, 589824)
        x_touch(2)
    srd(SRD1, sWS, 0x10000000)
    if cfg.hpre == 3:
        A("v_lshlrev_b32 v3, 7, v1")
        A(f"s_mul_i32 s{sT1}, s{sWK}, 24576")
        A(f"s_add_u32 s{sT1}, s{sT1}, {WS_H}")
        for c in range(3):
            A(f"buffer_load_dword v255, v3, s[{SRD1}:{SRD1+3}], s{sT1} offen")
            A(f"s_add_u32 s{sT1}, s{sT1}, 8192")

    def w7_touch():
        st = list(range(cfg.ta, cfg.ta + cfg.tn))
        srd(SRD0, sX, 589824)
        srd(SRD2, sW1, 5308416)
        A(f"s_mul_i32 s{sXB}, s{sMT}, {64*1152}")
        A(f"s_mul_i32 s{sT0}, s{sI}, 22")
        A("v_and_b32 v2, 31, v1")
        A(f"v_add_u32 v2, s{sT0}, v2")
        A("v_min_u32 v2, 63, v2")
        A("v_mul_u32_u24 v2, 1152, v2")
        A("v_lshrrev_b32 v4, 5, v1")
        A("v_lshl_add_u32 v2, v4, 7, v2")
        A("v_and_b32 v3, 7, v1")
        A("v_lshl_add_u32 v3, v4, 6, v3")
        A("v_mul_u32_u24 v3, 9216, v3")
        A("v_bfe_u32 v4, v1, 3, 2")
        A("v_lshl_add_u32 v3, v4, 7, v3")
        A(f"s_mul_i32 s{sT0}, s{sMT}, {8*9216}")
        A(f"s_mul_i32 s{sT1}, s{sJ}, 1152")
        A(f"s_add_u32 s{sT0}, s{sT0}, s{sT1}")
        A(f"s_mul_i32 s{sT1}, s{sI}, 384")
        A(f"s_add_u32 s{sT0}, s{sT0}, s{sT1}")
        for p in range(0, len(st), 2):
            two = p + 1 < len(st)
            A(f"s_add_u32 s{sT1}, s{sT0}, {st[p]*64*9216}")
            A("s_mov_b32 exec_lo, 0xffffff")
            A(f"s_mov_b32 exec_hi, {0xffffff if two else 0}")
            A(f"buffer_load_dword v255, v3, s[{SRD2}:{SRD2+3}], s{sT1} offen")
            A("s_mov_b32 exec_lo, 0x3fffff")
            A(f"s_mov_b32 exec_hi, {0x3fffff if two else 0}")
            A(f"buffer_load_dword v255, v2, s[{SRD0}:{SRD0+3}], s{sXB} offen offset:{128*st[p]}")
        A("s_mov_b64 exec, -1")
    if cfg.tn and cfg.tpos == 0:
        w7_touch()

    def bb_h2(q):
        if cfg.tn and cfg.tpos == 1 and q == 0:
            A("s_waitcnt lgkmcnt(0)")
            w7_touch()
        if cfg.tn and cfg.tpos >= 2 and q == cfg.tpos - 1:
            w7_touch()
        if cfg.tn and q == 7:
            A("s_waitcnt vmcnt(0)")
        if q == 2 and (cfg.hpre == 3 or cfg.wt > 2):
            A("s_waitcnt vmcnt(0)")
        return bb_tag(q)

    HALF[0] = 1
    loader_stream(("H1", "H2"), nbx, issue_xh, lambda: h_setup(1), cfg.capx, validate=validate, before_bar=bb_h2, role="h2")
    ts_max = max(ts_max, tsn[0])
    A("s_branch L_reduce")
    flush_retry()

    A.tail("red")
    sM, sQ = sT5, sT4
    sVC = 16

    def reduce_code(W, nbar):
        x = f"{W}"
        srd(SRD1, sWS, 0x10000000)
        A(f"s_mov_b32 s{sCNT}, 0")
        srd(SRD0, sOUT, 589824)
        if W == 1:
            red_pre(1)
            red_init(1)
            A(f"s_waitcnt vmcnt({cfg.rw1})")
            if cfg.rlate == 1:
                A("s_barrier")

        def ld(s_):
            A(f"s_add_u32 s{sT1}, s{sRI}, {3072*s_}")
            A(f"buffer_load_{dw(W)} {vr(vRD+W*s_, W)}, v{vRA}, s[{SRD1}:{SRD1+3}], s{sT1} offen {cfg.rfl}")
        if W == 2 and cfg.r0early and nbar:
            A(f"s_cmp_ge_u32 s{sC}, 2")
            A("s_cbranch_scc1 L_rlate")
            stamp()
            tsn[0] -= 1 if TS else 0
            for s_ in range(8):
                ld(s_)
            A("s_barrier")
            A("s_branch L_rfirst")
            A.label("L_rlate")
        for _ in range(nbar):
            A("s_barrier")
        stamp()
        enc("rbar")

        def chk_i(s_, dst, t):
            r = vRD + W * s_
            if W == 1:
                o = [f"v_bitop3_b32 v{t}, v{r}, v{vRG}, v{vRG+4} bitop3:0x28"]
            else:
                o = [f"v_xor_b32 v{t}, v{r}, v{vRG}"]
                for k in range(1, W):
                    o.append(f"v_bitop3_b32 v{t}, v{t}, v{r+k}, v{vRG+k} bitop3:0xf6")
                o.append(f"v_and_b32 v{t}, v{vRG+4}, v{t}")
            o.append(f"v_cmp_ne_u32 {dst}, 0, v{t}")
            return o

        def acc_i(s_, t0):
            r = vRD + W * s_
            o = []
            for k in range(W):
                t = t0 + 2 * k
                o.append(f"v_lshlrev_b32 v{t}, 16, v{r+k}")
                o.append(f"v_and_b32 v{t+1}, v{vRG+5}, v{r+k}")
            for k in range(W):
                t = t0 + 2 * k
                o.append(f"v_pk_add_f32 v[{vRC+2*k}:{vRC+1+2*k}], v[{vRC+2*k}:{vRC+1+2*k}], v[{t}:{t+1}]")
            return o

        def masked(sm, fn, tag):
            for g in range(2):
                A(f"s_and_b32 s{sT0}, s{sm}, {0xf << (4*g)}")
                A(f"s_cbranch_scc0 L_{tag}{x}g{g}")
                for s_ in range(4 * g, 4 * g + 4):
                    A(f"s_bitcmp0_b32 s{sm}, {s_}")
                    A(f"s_cbranch_scc1 L_{tag}{x}s{s_}")
                    fn(s_)
                    A.label(f"L_{tag}{x}s{s_}")
                A.label(f"L_{tag}{x}g{g}")

        for s_ in range(8):
            ld(s_)
        for _ in range(nbar, cfg.rnb if W != 1 else 0):
            A("s_barrier")
        if W == 1 and cfg.rlate == 2:
            A("s_barrier")
        if W == 2:
            A.label("L_rfirst")
        for s_ in range(8):
            A(f"s_waitcnt vmcnt({7-s_})")
            c = chk_i(s_, f"s[{sVC+2*s_}:{sVC+2*s_+1}]", vRX)
            a_ = acc_i(s_, vRT)
            while c or a_:
                if c:
                    A(c.pop(0))
                if a_:
                    A(a_.pop(0))
            if s_ >= 2:
                A(f"s_or_b64 vcc, {'s[16:17]' if s_ == 2 else 'vcc'}, s[{sVC+2*s_-2}:{sVC+2*s_-1}]")
        A(f"s_or_b64 vcc, vcc, s[{sVC+14}:{sVC+15}]")
        A(f"s_cbranch_scc0 L_rdone{x}")
        A(f"s_mov_b32 s{sM}, 0")
        for s_ in range(7, -1, -1):
            A(f"s_cmp_lg_u64 s[{sVC+2*s_}:{sVC+2*s_+1}], 0")
            A(f"s_addc_u32 s{sM}, s{sM}, s{sM}")
        A(f"s_xor_b32 s{sQ}, s{sM}, 0xff")
        red_init(W)
        A.label(f"L_rtop{x}")
        masked(sM, ld, "rl")
        masked(sQ, lambda s_: [A(t) for t in acc_i(s_, vRT)], "ra")
        A(f"s_add_u32 s{sCNT}, s{sCNT}, 1")
        A(f"s_mov_b32 s{sQ}, s{sM}")
        A(f"s_cmp_gt_u32 s{sCNT}, {SPIN_MAX}")
        A(f"s_cbranch_scc1 L_rdone{x}")
        A("s_waitcnt vmcnt(0)")

        def chk2(s_):
            for t in chk_i(s_, "vcc", vRX):
                A(t)
            A(f"s_cbranch_vccnz L_rc{x}s{s_}")
            A(f"s_bitset0_b32 s{sM}, {s_}")
            for t in acc_i(s_, vRT):
                A(t)
        masked(sQ, chk2, "rc")
        A(f"s_mov_b32 s{sQ}, 0")
        A(f"s_cmp_lg_u32 s{sM}, 0")
        A(f"s_cbranch_scc1 L_rtop{x}")
        A.label(f"L_rdone{x}")
        stamp()
        enc("rdone")
        for k in range(W):
            A(f"v_cvt_pk_bf16_f32 v{vRC+k}, v{vRC+2*k}, v{vRC+1+2*k}")
        A(f"buffer_store_{dw(W)} {vr(vRC, W)}, v{vRO}, s[{SRD0}:{SRD0+3}], s{sRO} offen {cfg.ofl if W > 1 else cfg.ofl1}")
        if TS:
            A(f"s_mov_b32 s{sWS}, s{SRD1}")
            A(f"s_mov_b32 s{sWS+1}, s{SRD1+1}")

    A.label("L_reduce")
    tsn[0] = ts_max
    reduce_code(2, cfg.rb2)
    A(f"s_or_b32 s{sT0}, s{sJ}, s{sI}")
    A(f"s_or_b32 s{sT0}, s{sT0}, s{sC}")
    A(f"s_cmp_lg_u32 s{sT0}, 0")
    A("s_cbranch_scc1 L_noep")
    A(f"v_mov_b32 v16, s{sTAG}")
    A(f"s_lshl_b32 s{sT0}, s{sMT}, 7")
    A(f"s_add_u32 s{sT0}, s{sT0}, {WS_EP}")
    A("s_mov_b64 exec, 1")
    A(f"buffer_store_dword v16, v{vRZ}, s[{SRD1}:{SRD1+3}], s{sT0} offen sc1")
    A("s_mov_b64 exec, -1")
    A.label("L_noep")
    if cfg.enc:
        if cfg.enc == "end":
            A("s_waitcnt vmcnt(0)")
            enc("end")
        A(f"s_cmp_lg_u32 s{sWV}, {cfg.encw}")
        A("s_cbranch_scc1 L_end")
        A("s_waitcnt lgkmcnt(0)")
        A("s_sub_u32 s94, s94, s96")
        A("s_mul_i32 s94, s94, 2")
        A("s_add_u32 s94, s94, 3000")
        A.label("L_dly")
        A("s_memrealtime s[98:99]")
        A("s_waitcnt lgkmcnt(0)")
        A("s_sub_u32 s98, s98, s96")
        A("s_cmp_lt_u32 s98, s94")
        A("s_cbranch_scc1 L_dly")
    if TS:
        A("s_waitcnt vmcnt(0)")
        stamp()
        A("s_memrealtime s[98:99]")
        A("s_waitcnt lgkmcnt(0)")
        A(f"s_mov_b32 s{sTS+26}, s96"); A(f"s_mov_b32 s{sTS+28}, s98"); A(f"s_mov_b32 s{sTS+30}, s{sCNT}")
        assert tsn[0] <= 12
        tsn[0] = 16
        stamp_flush()
    A("s_branch L_end")

    A.head("c")
    A.label("L_compute")
    tsn[0] = ts_base
    vACC, vAB, vXB, vT = 16, 64, 96, 240
    nAB = D + 1
    vA, vBX, vBH, vHW = [2, 3, 4], [5, 6, 7, 8], [9, 10, 11], [12, 13, 14]
    vTG, vL16 = vT + 11, vT + 10
    assert vAB + 4 * nAB <= vXB
    sA, sBq = sT4, sT5
    A(f"s_and_b32 s{sA}, s{sWV}, 1")
    A(f"s_lshr_b32 s{sBq}, s{sWV}, 1")
    A(f"v_lshrrev_b32 v{vT}, 5, v1")
    A(f"s_mul_i32 s60, s{sJ}, 1152")
    A(f"s_mul_i32 s{sT1}, s{sI}, 384")
    A(f"s_add_u32 s60, s60, s{sT1}")
    A(f"s_lshl_b32 s{sT1}, s{sBq}, 6")
    A(f"s_add_u32 s61, s60, s{sT1}")
    A(f"v_lshlrev_b32 v{vT+4}, 3, v{vT}")
    if cfg.sa:
        A(f"s_add_u32 s{sT3}, s{sWV}, 1")
        A(f"v_and_b32 v{vT+5}, 7, v1")
        A(f"v_mul_u32_u24 v{vT+5}, 9216, v{vT+5}")
        A(f"v_lshrrev_b32 v{vT+6}, 3, v1")
        A(f"v_min_u32 v{vT+6}, 2, v{vT+6}")
        A(f"v_lshl_add_u32 v{vT+5}, v{vT+6}, 7, v{vT+5}")
        A(f"s_lshl_b32 s{sT1}, s{sT3}, 3")
        A(f"s_add_u32 s{sT1}, s{sT1}, s{sMT}")
        A(f"s_mul_i32 s{sT1}, s{sT1}, {8*9216}")
        A(f"s_add_u32 s{sT1}, s{sT1}, s60")
        A(f"s_mul_i32 s{sT2}, s{sI}, 22")
        A(f"v_min_u32 v{vT+6}, 21, v1")
        A(f"v_add_u32 v{vT+6}, s{sT2}, v{vT+6}")
        A(f"v_min_u32 v{vT+6}, 63, v{vT+6}")
        A(f"v_mul_u32_u24 v{vT+6}, 1152, v{vT+6}")
        A(f"s_mul_i32 s{sT2}, s{sMT}, {64*1152}")
        A(f"s_lshl_b32 s{sT3}, s{sT3}, 7")
        A(f"s_add_u32 s{sT2}, s{sT2}, s{sT3}")
    A("s_waitcnt lgkmcnt(0)")
    srd(SRD0, sB1, 9216)
    for l in range(3):
        for g in range(4):
            r = vXB + 2 * (4 * l + g)
            A(f"buffer_load_dwordx2 v[{r}:{r+1}], v{vT+4}, s[{SRD0}:{SRD0+3}], s61 offen offset:{128*l+16*g}")
    if cfg.sa:
        srd(SRD1, sW1, 5308416)
        srd(SRD2, sX, 589824)
        A(f"s_cmp_ge_u32 s{sWV}, {cfg.sa}")
        A("s_cbranch_scc1 L_tdone")
        A(f"buffer_load_dword v255, v{vT+5}, s[{SRD1}:{SRD1+3}], s{sT1} offen {cfg.tfl}")
        A(f"buffer_load_dword v255, v{vT+6}, s[{SRD2}:{SRD2+3}], s{sT2} offen")
        A.label("L_tdone")
    epoch_load(sMT)
    A.tail("c")
    srd(SRD2, sB2, 1152)
    A(f"v_and_b32 v{vT+1}, 3, v1")
    A(f"v_lshlrev_b32 v{vT+1}, 2, v{vT+1}")
    A(f"v_lshl_add_u32 v{vT+1}, v{vT}, 4, v{vT+1}")
    A(f"s_mul_i32 s{sT1}, s{sI}, 384")
    A(f"s_lshl_b32 s{sT0}, s{sWV}, 5")
    A(f"s_add_u32 s{sT1}, s{sT1}, s{sT0}")
    A(f"buffer_load_dword v249, v{vT+1}, s[{SRD2}:{SRD2+3}], s{sT1} offen offset:256")
    srd(SRD1, sWS, 0x10000000)
    A(f"v_bfe_u32 v{vT+1}, v1, 2, 2")
    A(f"v_lshl_add_u32 v{vT+2}, v{vT}, 2, v{vT+1}")
    A(f"v_lshlrev_b32 v{vT+2}, 7, v{vT+2}")
    A(f"v_bfe_u32 v{vT+3}, v1, 3, 1")
    A(f"v_xor_b32 v{vT+3}, s{sBq}, v{vT+3}")
    A(f"v_lshl_add_u32 v{vT+2}, v{vT+3}, 6, v{vT+2}")
    A(f"v_bfe_u32 v{vT+3}, v1, 4, 1")
    A(f"v_lshl_add_u32 v{vT+2}, v{vT+3}, 5, v{vT+2}")
    A(f"v_and_b32 v{vT+3}, 3, v1")
    A(f"v_lshl_add_u32 v{vA[0]}, v{vT+3}, 3, v{vT+2}")
    A(f"v_add_u32 v{vA[1]}, 0x10000, v{vA[0]}")
    A(f"v_add_u32 v{vA[2]}, 0x20000, v{vA[0]}")
    A(f"v_and_b32 v{vT+1}, 31, v1")
    A(f"v_bfe_u32 v{vT+2}, v1, 1, 3")
    A(f"v_xor_b32 v{vT+2}, v{vT}, v{vT+2}")
    A(f"v_lshlrev_b32 v{vT+2}, 4, v{vT+2}")
    A(f"v_lshl_add_u32 v{vT+2}, v{vT+1}, 7, v{vT+2}")
    A(f"s_lshl_b32 s{sT0}, s{sA}, 12")
    A(f"s_add_u32 s{sT1}, s{sT0}, 0x20000")
    A(f"v_add_u32 v{vBX[0]}, s{sT1}, v{vT+2}")
    for sp in range(1, 4):
        A(f"v_xor_b32 v{vBX[sp]}, {32*sp}, v{vBX[0]}")
    A(f"v_lshl_add_u32 v{vBH[0]}, v1, 4, s{sT0}")
    A(f"v_add_u32 v{vBH[1]}, 0x10000, v{vBH[0]}")
    A(f"v_add_u32 v{vBH[2]}, 0x20000, v{vBH[0]}")
    A(f"s_lshl_b32 s{sT1}, s{sBq}, 11")
    for k in range(3):
        A(f"v_add_u32 v{vHW[k]}, s{sT1}, v{vBH[k]}")
    sI0 = 38
    sMS, sML, sMC = 39, 63, 59
    sHS = [60, 61, 62]
    A(f"s_mul_i32 s{sI0}, s{sA}, 96")
    A(f"s_add_u32 s{sI0}, s{sI0}, s{sR}")
    A(f"s_lshl_b32 s{sI0}, s{sI0}, 3")
    A(f"s_add_u32 s{sI0}, s{sI0}, s{sJ}")
    A(f"s_mul_i32 s{sI0}, s{sI0}, 3072")
    A(f"s_add_u32 s{sI0}, s{sI0}, {WS_IN}")
    A(f"s_lshl_b32 s{sT1}, s{sBq}, 9")
    A(f"s_add_u32 s{sI0}, s{sI0}, s{sT1}")
    A(f"v_bfe_u32 v{vT+1}, v1, 3, 2")
    A(f"v_mul_u32_u24 v{vT+1}, {24*8*3072}, v{vT+1}")
    A(f"v_and_b32 v{vT+2}, 7, v1")
    A(f"v_lshl_add_u32 v{vT+1}, v{vT+2}, 4, v{vT+1}")
    A(f"v_lshl_add_u32 v{vL16}, v{vT}, 7, v{vT+1}")
    A(f"s_mov_b32 s{sMS}, 0x80008000")
    A(f"s_mov_b32 s{sML}, 0x00010001")
    A(f"s_mov_b32 s{sMC}, 0x7fff7fff")
    A(f"s_mul_i32 s{sHS[0]}, s{sWK}, 24576")
    if WS_H:
        A(f"s_add_u32 s{sHS[0]}, s{sHS[0]}, {WS_H}")
    A(f"s_add_u32 s{sHS[1]}, s{sHS[0]}, 8192")
    A(f"s_add_u32 s{sHS[2]}, s{sHS[0]}, 16384")
    epoch_fin()
    slot_add(sI0, *sHS)
    tag_regs(vTG, vT + 1)
    assert not cfg.sa
    A("s_waitcnt vmcnt(1)")
    if cfg.sa:
        A(f"s_cmp_lt_u32 s{sWV}, {cfg.sa}")
        A("s_cbranch_scc1 L_bw")
        A("s_waitcnt vmcnt(0)")
        A.label("L_bw")
    for l in range(3):
        for g in range(4):
            r = vXB + 2 * (4 * l + g)
            d = vACC + 16 * l + 4 * g
            A(f"v_lshlrev_b32 v{d}, 16, v{r}")
            A(f"v_and_b32 v{d+1}, 0xffff0000, v{r}")
            A(f"v_lshlrev_b32 v{d+2}, 16, v{r+1}")
            A(f"v_and_b32 v{d+3}, 0xffff0000, v{r+1}")
    stamp()

    items = []
    for st in stages:
        bykb = {}
        for u in st["units"]:
            bykb.setdefault(u[2], []).append(u)
        for kb, us in bykb.items():
            if st["q"] == n_g1 - 1 and cfg.tm:
                seq = [int(c) for c in cfg.tm]
                nsp = {0: 0, 1: 0, 2: 0}
                for t_ in seq:
                    (t, wb, _kb, fst) = [u for u in us if u[0] == t_][0]
                    items.append(dict(q=st["q"], tile=t, wb=wb, kb=kb, sp=nsp[t], first=False))
                    nsp[t] += 1
                assert all(v == 4 for v in nsp.values())
                continue
            for sp in range(4):
                for (t, wb, _kb, fst) in us:
                    items.append(dict(q=st["q"], tile=t, wb=wb, kb=kb, sp=sp, first=(fst and sp == 0)))
    NI = len(items)
    aux_used = set()
    if cfg.dual:
        own_end = max(n for n, it in enumerate(items) if it["q"] >= n_g1 and it["kb"] < 3)
        assert all(kbidx[(0, l)] < 3 for l in range(3))
        for n, it in enumerate(items):
            if n > own_end + 1 and items[n - 1]["tile"] == it["tile"]:
                it["first"] = it["tile"] not in aux_used
                aux_used.add(it["tile"])
                it["tile"] += 3

    def accbase(t):
        return vACC + 16 * t if t < 3 else vXB + 16 * (t - 3)
    last_item = {}
    for n, it in enumerate(items):
        last_item[it["q"]] = n
    bread_of = {(st["q"], kb): bb for st in stages for (bb, kb) in st["breads"]}
    lg = []

    def ds_issue(instr, tag):
        cap = 14 if TS else 15
        if len(lg) >= cap:
            A(f"s_waitcnt lgkmcnt({cap-2})")
            del lg[:len(lg) - (cap - 2)]
        A(instr)
        lg.append(tag)

    def ds_need(tags):
        idx = max([i for i, t in enumerate(lg) if t in tags], default=-1)
        if idx >= 0:
            A(f"s_waitcnt lgkmcnt({len(lg) - 1 - idx})")
            del lg[:idx + 1]

    checked = [-1]
    bdone = set()
    dirty, clean_pos = {}, {}

    def clean(m):
        key = (items[m]["kb"], items[m]["sp"])
        if key in dirty and dirty[key] == m:
            del dirty[key]
            ds_need({("B",) + key})
            r = vXB + 16 * key[0] + 4 * key[1]
            for k in range(4):
                A(f"v_and_b32 v{r+k}, s{sMC}, v{r+k}")
            clean_pos[m] = len(A.L) - 1

    def issue_reads(n):
        it = items[n]
        q = it["q"]
        if q > checked[0]:
            ds_need({"hw"})
            A("s_barrier")
            checked[0] = q
            if q in cfg.tsq:
                stamp()
        key = (q, it["kb"])
        if key in bread_of and (key, it["sp"]) not in bdone:
            bdone.add((key, it["sp"]))
            bb = blocks[bread_of[key]]
            addr = bb["slot"] * 8192
            r = vXB + 16 * it["kb"] + 4 * it["sp"]
            if bb["kind"] == "X":
                assert addr >> 16 == 2
                ds_issue(f"ds_read_b128 v[{r}:{r+3}], v{vBX[it['sp']]} offset:{addr & 0xffff}", ("B", it["kb"], it["sp"]))
            else:
                ds_issue(f"ds_read_b128 v[{r}:{r+3}], v{vBH[addr >> 16]} offset:{(addr & 0xffff) + 1024*it['sp']}",
                         ("B", it["kb"], it["sp"]))
                if bb["kind"] != "Hown":
                    if not cfg.hlsb:
                        dirty[(it["kb"], it["sp"])] = n
        wb = blocks[it["wb"]]
        addr = wb["slot"] * 8192 + 2048 * it["sp"]
        r = vAB + 4 * (n % nAB)
        ds_issue(f"ds_read_b64_tr_b16 v[{r}:{r+1}], v{vA[addr >> 16]} offset:{addr & 0xffff}", ("A", n))
        ds_issue(f"ds_read_b64_tr_b16 v[{r+2}:{r+3}], v{vA[addr >> 16]} offset:{(addr & 0xffff) + 1024}", ("A", n))

    post = []

    def epi1_instrs(pi, lines):
        out, late = [], []
        for l in lines:
            a = vACC + 16 * l
            addr = blocks[f"H0_{l}"]["slot"] * 8192
            for half in range(2):
                base = a + 8 * half
                if cfg.epi == 1:
                    assert cfg.hlsb
                    for k in range(8):
                        out.append(("v", f"v_mul_f32 v{base+k}, v{base+k}, |v{base+k}|"))
                    for k in range(4):
                        out.append(("v", f"v_cvt_pk_bf16_f32 v{base+k}, v{base+2*k}, v{base+2*k+1}"))
                    for k in range(4):
                        out.append(("v", f"v_pk_max_i16 v{base+k}, v{base+k}, 0"))
                else:
                    for k in range(8):
                        out.append(("v", f"v_max_f32 v{base+k}, 0, v{base+k}"))
                    for k in range(0, 8, 2):
                        out.append(("v", f"v_pk_mul_f32 v[{base+k}:{base+k+1}], v[{base+k}:{base+k+1}], v[{base+k}:{base+k+1}]"))
                    for k in range(4):
                        out.append(("v", f"v_cvt_pk_bf16_f32 v{base+k}, v{base+2*k}, v{base+2*k+1}"))
                for k in range(4):
                    out.append(("v", f"v_bfi_b32 v{base+4+k}, s{sML}, v{vTG+k}, v{base+k}" if cfg.hlsb else
                                f"v_and_or_b32 v{base+4+k}, v{vTG+k}, s{sMS}, v{base+k}"))
                out.append(("v", f"buffer_store_dwordx4 v[{base+4}:{base+7}], v{vHW[0]}, s[{SRD1}:{SRD1+3}], s{sHS[l]} offen offset:{1024*half} {cfg.hsf}"))
                out.append(("w", f"ds_write_b128 v{vHW[addr >> 16]}, v[{base}:{base+3}] offset:{(addr & 0xffff) + 1024*half}"))
                t = ("v", f"buffer_load_dword v255, v{vHW[0]}, s[{SRD1}:{SRD1+3}], s{sHS[l]} offen offset:{1024*half} {cfg.stf}")
                if cfg.stouch == 1:
                    out.append(t)
                elif cfg.stouch == 2:
                    late.append(t)
                elif cfg.stouch == 3:
                    post.append(t)
        return out + late

    def epi2_instrs(lines):
        out = []
        for l in lines:
            for u in range(2):
                base = vACC + 8 * (2 * l + u)
                if l in aux_used:
                    ab = accbase(l + 3) + 8 * u
                    for k in range(0, 8, 2):
                        out.append(("v", f"v_pk_add_f32 v[{base+k}:{base+k+1}], v[{base+k}:{base+k+1}], v[{ab+k}:{ab+k+1}]"))
                for k in range(4):
                    out.append(("v", f"v_cvt_pk_bf16_f32 v{base+k}, v{base+2*k}, v{base+2*k+1}"))
                out.append(("v", "s_nop 1"))
                out.append(("v", f"v_permlane32_swap_b32 v{base}, v{base+2}"))
                out.append(("v", f"v_permlane32_swap_b32 v{base+1}, v{base+3}"))
                for k in (0, 2, 1, 3):
                    out.append(("v", f"v_bfi_b32 v{base+k}, s{sML}, v{vTG+k}, v{base+k}"))
                out.append(("v", f"buffer_store_dwordx4 v[{base}:{base+3}], v{vL16}, s[{SRD1}:{SRD1+3}], s{sI0} offen offset:{1024*l+256*u} {cfg.psf}"))
        return out

    fillers = []
    fill_start = 0
    fill_tiles = set()
    mfma_pos = {}
    fill_fresh = [False]

    def states_since(pos):
        c = 0
        for ln in A.L[pos + 1:]:
            t = ln.strip()
            if t.endswith(":") or t.startswith(";") or t.startswith("@@"):
                continue
            c += int(t.split()[1]) + 1 if t.startswith("s_nop") else 1
        return c

    late_w = []

    def emit(kind, t):
        if kind == "mark":
            have = min(states_since(mfma_pos[tl]) for tl in t[0])
            if have < 12:
                A(f"s_nop {12 - have - 1}")
        elif kind == "w":
            ds_issue(t, "hw")
        else:
            A(t)

    def flush_fillers():
        nonlocal fillers
        for (kind, t) in fillers + late_w:
            emit(kind, t)
        fillers = []
        late_w.clear()
        fill_tiles.clear()

    trig = {}
    for l in range(3):
        trig[max(n for n, it in enumerate(items) if it["q"] < n_g1 and it["tile"] == l)] = (1, l)
        trig[max(n for n, it in enumerate(items) if it["q"] >= n_g1 and it["tile"] % 3 == l)] = (2, l)

    nread = 0
    for n in range(NI):
        it = items[n]
        lim = min(NI - 1, n + D)
        while nread <= lim:
            nx = items[nread]
            if nx["q"] > checked[0]:
                due = [l for l, v in hown_vis.items() if v == nx["q"]]
                if due:
                    if last_item[hown_w[due[0]]] >= n:
                        break
                    flush_fillers()
            key = (nx["q"], nx["kb"])
            if key in bread_of and (key, nx["sp"]) not in bdone:
                if any(items[m]["kb"] == nx["kb"] and items[m]["sp"] == nx["sp"] for m in range(n, nread)):
                    break
            issue_reads(nread)
            nread += 1
        assert nread > n
        if it["tile"] in fill_tiles:
            flush_fillers()
            A("s_nop 1")
        clean(n)
        ds_need({("A", n), ("B", it["kb"], it["sp"])})
        if it["first"]:
            ds_need({"hw"})
        if n in clean_pos and states_since(clean_pos[n]) < 2:
            A(f"s_nop {1 - states_since(clean_pos[n])}")
        ra = vAB + 4 * (n % nAB)
        rb = vXB + 16 * it["kb"] + 4 * it["sp"]
        acc = accbase(it["tile"])
        c = "0" if it["first"] else f"v[{acc}:{acc+15}]"
        A(f"v_mfma_f32_32x32x16_bf16 v[{acc}:{acc+15}], v[{ra}:{ra+3}], v[{rb}:{rb+3}], {c}")
        mfma_pos[it["tile"]] = len(A.L) - 1
        if n + 1 < nread:
            clean(n + 1)
        k = 0
        while fillers and k < (cfg.fill1 if it["q"] < n_g1 else cfg.fill):
            if fillers[0][0] == "mark" and n < fillers[0][1][1]:
                break
            kind, t = fillers.pop(0)
            emit(kind, t)
            k += kind != "mark"
        if not fillers and not late_w:
            fill_tiles.clear()
        if n == last_item[it["q"]] and (it["q"] in epi_after or it["q"] in epi2_after):
            stamp()
        if n in trig:
            g, l = trig[n]
            tl = [l] + ([l + 3] if (g == 2 and l in aux_used) else [])
            new = epi1_instrs(0, [l]) if g == 1 else epi2_instrs([l])
            if cfg.wlast:
                late_w.extend(x for x in new if x[0] == "w")
                new = [x for x in new if x[0] != "w"]
            fillers += [("mark", (tl, n + cfg.fdel))] + new
            fill_tiles.update(tl)
    flush_fillers()
    stamp()
    if cfg.rnb >= 1 and not cfg.rlate:
        A("s_barrier")
    reduce_code(1, 0)
    if TS:
        A("s_waitcnt vmcnt(0)")
        A("s_memrealtime s[98:99]")
        A("s_waitcnt lgkmcnt(0)")
        assert tsn[0] <= 14, tsn[0]
        A(f"s_mov_b32 s{sTS+28}, s98"); A(f"s_mov_b32 s{sTS+30}, s{sCNT}")
        tsn[0] = 16
        stamp_flush()
    if cfg.enc and cfg.encw < 4:
        A("s_branch L_noep")
    A("s_branch L_end")

    A.head("hl")
    A.label("L_helper")
    sG = 38
    A(f"s_lshl_b32 s{sG}, s{sWV}, 3")
    A(f"s_add_u32 s{sG}, s{sG}, s{sR}")
    A("v_mul_u32_u24 v8, 9216, v1")
    A("v_mul_u32_u24 v9, 1152, v1")
    A(f"s_mul_i32 s39, s{sJ}, 1152")
    A("s_waitcnt lgkmcnt(0)")
    NWT = 64

    def sdiv(dst, src, d):
        A(f"s_mul_i32 s{dst}, s{src}, {(65536 + d - 1) // d}")
        A(f"s_lshr_b32 s{dst}, s{dst}, 16")

    w2base = 0
    if cfg.touch and any(ROT):
        srd(SRD0, sW1, 5308416)
        srd(SRD1, sX, 589824)
        need = {kk: min((kk - r) % 9 for r in ROT) for kk in range(9)}
        kks = sorted([kk for kk in range(9) if need[kk] >= cfg.skipw], key=lambda kk: need[kk])
        KT = sum(kk << (4 * u) for u, kk in enumerate(kks))
        nW = 9 * len(kks)
        x0 = cfg.skipx
        nX = 8 * (9 - x0)
        tot = nW + nX
        for rnd in range((tot + NWT - 1) // NWT):
            if rnd == 1:
                A.tail("hl")
            k = A.uid()
            A(f"s_add_u32 s{sT0}, s{sG}, {NWT*rnd}")
            if NWT * rnd < nW:
                if NWT * rnd + NWT > nW:
                    A(f"s_cmp_ge_u32 s{sT0}, {nW}")
                    A(f"s_cbranch_scc1 L_hx{k}")
                sdiv(sT1, sT0, 9)
                A(f"s_mul_i32 s{sT2}, s{sT1}, 9")
                A(f"s_sub_u32 s{sT2}, s{sT0}, s{sT2}")
                A(f"s_lshl_b32 s{sT1}, s{sT1}, 2")
                A(f"s_lshr_b32 s{sT1}, {KT}, s{sT1}")
                A(f"s_and_b32 s{sT1}, s{sT1}, 15")
                A(f"s_mul_i32 s{sT1}, s{sT1}, {64*9216}")
                A(f"s_lshl_b32 s{sT2}, s{sT2}, 7")
                A(f"s_add_u32 s{sT1}, s{sT1}, s{sT2}")
                A(f"s_add_u32 s{sT1}, s{sT1}, s39")
                A(f"buffer_load_dword v255, v8, s[{SRD0}:{SRD0+3}], s{sT1} offen {cfg.tfl}")
                if NWT * rnd + NWT > nW:
                    A(f"s_branch L_ht{k}")
            if NWT * rnd + NWT > nW:
                A.label(f"L_hx{k}")
                if NWT * rnd + NWT > tot:
                    A(f"s_cmp_ge_u32 s{sT0}, {tot}")
                    A(f"s_cbranch_scc1 L_ht{k}")
                A(f"s_sub_u32 s{sT0}, s{sT0}, {nW - 8*x0}")
                A(f"s_and_b32 s{sT2}, s{sT0}, 7")
                A(f"s_lshr_b32 s{sT1}, s{sT0}, 3")
                A(f"s_lshl_b32 s{sT3}, s{sT2}, 2")
                A(f"s_lshr_b32 s{sT3}, {ROTTAB}, s{sT3}")
                A(f"s_and_b32 s{sT3}, s{sT3}, 15")
                A(f"s_add_u32 s{sT1}, s{sT1}, s{sT3}")
                A(f"s_cmp_ge_u32 s{sT1}, 9")
                A(f"s_cselect_b32 s{sT3}, 9, 0")
                A(f"s_sub_u32 s{sT1}, s{sT1}, s{sT3}")
                A(f"s_mul_i32 s{sT2}, s{sT2}, {64*1152}")
                A(f"s_lshl_b32 s{sT1}, s{sT1}, 7")
                A(f"s_add_u32 s{sT1}, s{sT1}, s{sT2}")
                A(f"buffer_load_dword v255, v9, s[{SRD1}:{SRD1+3}], s{sT1} offen")
            A.label(f"L_ht{k}")
        w2base = (NWT - tot % NWT) % NWT
    elif cfg.touch:
        srd(SRD0, sW1, 5308416)
        srd(SRD1, sX, 589824)
        phases, base = [], 0
        for pi, ls in enumerate(passes):
            t0 = cfg.ht0 if pi == 0 else 0
            c = 3 * len(ls) + (8 if pi == 0 else 0)
            phases.append((base, (9 - t0 - cfg.tn) * c, t0, c, ls))
            base += (9 - t0 - cfg.tn) * c
        w2base = (NWT - base % NWT) % NWT if cfg.w2rot else 0
        for rnd in range((base + NWT - 1) // NWT):
            if rnd == 1:
                A.tail("hl")
            k = A.uid()
            A(f"s_add_u32 s{sT0}, s{sG}, {NWT*rnd}")
            for (pb, cnt, t0, c, ls) in phases:
                if pb + cnt <= NWT * rnd or pb >= NWT * rnd + NWT:
                    continue
                k2 = A.uid()
                A(f"s_cmp_ge_u32 s{sT0}, {pb+cnt}")
                A(f"s_cbranch_scc1 L_hp{k2}")
                if pb:
                    A(f"s_sub_u32 s{sT0}, s{sT0}, {pb}")
                sdiv(sT1, sT0, c)
                A(f"s_mul_i32 s{sT2}, s{sT1}, {c}")
                A(f"s_sub_u32 s{sT2}, s{sT0}, s{sT2}")
                if t0:
                    A(f"s_add_u32 s{sT1}, s{sT1}, {t0}")
                if cfg.tn:
                    A(f"s_cmp_ge_u32 s{sT1}, {cfg.ta}")
                    A(f"s_cselect_b32 s{sT3}, {cfg.tn}, 0")
                    A(f"s_add_u32 s{sT1}, s{sT1}, s{sT3}")
                nw = 3 * len(ls)
                if c > nw:
                    A(f"s_cmp_ge_u32 s{sT2}, {nw}")
                    A(f"s_cbranch_scc1 L_hx{k2}")
                if len(ls) != 3:
                    if len(ls) == 1:
                        A(f"s_mul_i32 s{sT2}, s{sT2}, 3")
                    else:
                        A(f"s_lshr_b32 s{sT3}, s{sT2}, 1")
                        A(f"s_add_u32 s{sT2}, s{sT2}, s{sT3}")
                    if ls[0]:
                        A(f"s_add_u32 s{sT2}, s{sT2}, {ls[0]}")
                A(f"s_mul_i32 s{sT1}, s{sT1}, {64*9216}")
                A(f"s_lshl_b32 s{sT2}, s{sT2}, 7")
                A(f"s_add_u32 s{sT1}, s{sT1}, s{sT2}")
                A(f"s_add_u32 s{sT1}, s{sT1}, s39")
                A(f"buffer_load_dword v255, v8, s[{SRD0}:{SRD0+3}], s{sT1} offen {cfg.tfl}")
                A(f"s_branch L_ht{k}")
                if c > nw:
                    A.label(f"L_hx{k2}")
                    A(f"s_sub_u32 s{sT2}, s{sT2}, {nw}")
                    A(f"s_mul_i32 s{sT2}, s{sT2}, {64*1152}")
                    A(f"s_lshl_b32 s{sT1}, s{sT1}, 7")
                    A(f"s_add_u32 s{sT1}, s{sT1}, s{sT2}")
                    A(f"buffer_load_dword v255, v9, s[{SRD1}:{SRD1+3}], s{sT1} offen")
                    A(f"s_branch L_ht{k}")
                A.label(f"L_hp{k2}")
            A.label(f"L_ht{k}")
    def h_pretouch():
        srd(SRD1, sWS, 0x10000000)
        A("v_lshlrev_b32 v10, 7, v1")
        A(f"s_mul_i32 s{sT1}, s{sJ}, 589824")
        A(f"s_add_u32 s{sT1}, s{sT1}, {WS_IN if cfg.hpin else WS_H}")
        for rnd in range(2):
            k = A.uid()
            A(f"s_add_u32 s{sT0}, s{sG}, {NWT*rnd}")
            A(f"s_cmp_ge_u32 s{sT0}, 72")
            A(f"s_cbranch_scc1 L_ht{k}")
            A(f"s_lshl_b32 s{sT0}, s{sT0}, 13")
            A(f"s_add_u32 s{sT0}, s{sT0}, s{sT1}")
            A(f"buffer_load_dword v255, v10, s[{SRD1}:{SRD1+3}], s{sT0} offen {cfg.hpf}")
            A.label(f"L_ht{k}")
    if cfg.hpre == 1:
        h_pretouch()
    if cfg.touch:
        srd(SRD0, sW2, 5308416)
        A(f"s_mul_i32 s39, s{sJ}, 663552")
        korder = sorted(kbidx, key=lambda x: kbidx[x])
        tabD = sum(d << (2 * u) for u, (d, lk) in enumerate(korder))
        tabL = sum(lk << (2 * u) for u, (d, lk) in enumerate(korder))
        if w2base:
            A(f"s_add_u32 s{sG}, s{sG}, {w2base}")
            A(f"s_and_b32 s{sG}, s{sG}, 63")
        for rnd in range(2):
            k = A.uid()
            A(f"s_add_u32 s{sT0}, s{sG}, {NWT*rnd}")
            A(f"s_cmp_ge_u32 s{sT0}, 81")
            A(f"s_cbranch_scc1 L_ht{k}")
            sdiv(sT1, sT0, 9)
            A(f"s_mul_i32 s{sT2}, s{sT1}, 9")
            A(f"s_sub_u32 s{sT2}, s{sT0}, s{sT2}")
            sdiv(sT3, sT2, 3)
            A(f"s_lshl_b32 s{sT1}, s{sT1}, 1")
            A(f"s_lshr_b32 s{sT0}, {tabD}, s{sT1}")
            A(f"s_and_b32 s{sT0}, s{sT0}, 3")
            A(f"s_add_u32 s{sT0}, s{sT0}, s{sT3}")
            A(f"s_cmp_ge_u32 s{sT0}, 3")
            A(f"s_cselect_b32 s{sT3}, 3, 0")
            A(f"s_sub_u32 s{sT0}, s{sT0}, s{sT3}")
            A(f"s_lshr_b32 s{sT3}, {tabL}, s{sT1}")
            A(f"s_and_b32 s{sT3}, s{sT3}, 3")
            A(f"s_mul_i32 s{sT0}, s{sT0}, {192*1152}")
            A(f"s_mul_i32 s{sT3}, s{sT3}, {64*1152}")
            A(f"s_add_u32 s{sT0}, s{sT0}, s{sT3}")
            A(f"s_lshl_b32 s{sT2}, s{sT2}, 7")
            A(f"s_add_u32 s{sT0}, s{sT0}, s{sT2}")
            A(f"s_add_u32 s{sT0}, s{sT0}, s39")
            A(f"buffer_load_dword v255, v9, s[{SRD0}:{SRD0+3}], s{sT0} offen {cfg.tfl}")
            A.label(f"L_ht{k}")
    if cfg.hpre == 2:
        h_pretouch()
    if TS:
        tsn[0] = 1
        A("s_waitcnt vmcnt(0)")
        stamp()
        stamp()
        stamp_flush()
    A("s_branch L_end")
    A.tail("end")
    A.label("L_end")

    hdr = f"""; Fused MLP (x@w1+b1 -> relu^2 -> @w2+b2), generated by a python script (work/gen4.py)
; @launch grid=(256,1,1) block=(512,1,1) lds=163840
.amdgcn_target "amdgcn-amd-amdhsa--gfx950"
.text
.globl {KN}
.p2align 8
.type {KN},@function
{KN}:
"""
    ftr = f"""
    s_endpgm
.section .rodata,"a"
.p2align 6
.amdhsa_kernel {KN}
  .amdhsa_next_free_vgpr 256
  .amdhsa_next_free_sgpr 102
  .amdhsa_accum_offset 256
  .amdhsa_group_segment_fixed_size 0
  .amdhsa_kernarg_size 64
  .amdhsa_user_sgpr_count 2
  .amdhsa_user_sgpr_kernarg_segment_ptr 1
  .amdhsa_system_sgpr_workgroup_id_x 1
.end_amdhsa_kernel
"""
    return hdr + A.text(cfg.horder.split(","), cfg.torder.split(",") + ["end"]) + ftr


def parse_g2(s):
    out = []
    for stg in s.split(","):
        us = []
        for u in stg.split("+"):
            a, b = u.split(":")
            us.append((int(a[0]), int(a[1]), [int(c) for c in b]))
        out.append(us)
    return out


def ilist(s):
    return [int(x) for x in s.split(",")] if s else []


def main():
    ap = argparse.ArgumentParser()
    ap.add_argument("-o", default="k8.s")
    ap.add_argument("--ts", action="store_true")
    ap.add_argument("--passes", default="012")
    ap.add_argument("--depth", type=int, default=5)
    ap.add_argument("--fill", type=int, default=4)
    ap.add_argument("--grp1", type=int, default=3)
    ap.add_argument("--hres", type=float, default=2.5)
    ap.add_argument("--hearly", type=float, default=1.5)
    ap.add_argument("--hdel", type=int, default=1)
    ap.add_argument("--xfree", type=int, default=11)
    ap.add_argument("--g2", default="00:012,01:012,02:012,10:012,20:012,11:012,21:012,12:012,22:012")
    ap.add_argument("--tsq", default="")
    ap.add_argument("--verbose", action="store_true")
    ap.add_argument("--ahead", type=int, default=8)
    ap.add_argument("--ahead0", type=int, default=8)
    ap.add_argument("--capfrom", type=int, default=8)
    ap.add_argument("--capw", type=int, default=4)
    ap.add_argument("--capx", type=int, default=3)
    ap.add_argument("--burst", default="")
    ap.add_argument("--pause", default="")
    ap.add_argument("--go2lead", type=int, default=3)
    ap.add_argument("--sa", type=int, default=0)
    ap.add_argument("--ctouch", type=int, default=1)
    ap.add_argument("--wfl", default="")
    ap.add_argument("--tfl", default="")
    ap.add_argument("--rfl", default="sc1")
    ap.add_argument("--rsleep", type=int, default=0)
    ap.add_argument("--touch", type=int, default=1)
    ap.add_argument("--clrq", type=int, default=-1)
    ap.add_argument("--cdq", type=int, default=9)
    ap.add_argument("--rbar", type=int, default=0)
    ap.add_argument("--hsf", default="sc1")
    ap.add_argument("--hlf", default="sc1")
    ap.add_argument("--ofl", default="")
    ap.add_argument("--hpre", type=int, default=0)
    ap.add_argument("--rot", default="00000000")
    ap.add_argument("--ts0", type=int, default=0)
    ap.add_argument("--hlsb", type=int, default=1)
    ap.add_argument("--dual", type=int, default=0)
    ap.add_argument("--slots", type=int, default=0)
    ap.add_argument("--rlate", type=int, default=0)
    ap.add_argument("--epi", type=int, default=0)
    ap.add_argument("--tm", default="")
    ap.add_argument("--wlast", type=int, default=0)
    ap.add_argument("--fdel", type=int, default=3)
    ap.add_argument("--fill1", type=int, default=5)
    ap.add_argument("--priow", type=int, default=0)
    ap.add_argument("--prioh", type=int, default=0)
    ap.add_argument("--r0early", type=int, default=0)
    ap.add_argument("--psf", default="sc1")
    ap.add_argument("--rw1", type=int, default=0)
    ap.add_argument("--ofl1", default="")
    ap.add_argument("--rpq", type=int, default=10)
    ap.add_argument("--rb2", type=int, default=1)
    ap.add_argument("--rb4", type=int, default=0)
    ap.add_argument("--rearly", type=int, default=0)
    ap.add_argument("--hpf", default="")
    ap.add_argument("--hpin", type=int, default=0)
    ap.add_argument("--wsb", type=lambda x: int(x, 0), default=0)
    ap.add_argument("--enc", default="")
    ap.add_argument("--encw", type=int, default=4)
    ap.add_argument("--hfree", type=int, default=2)
    ap.add_argument("--stouch", type=int, default=0)
    ap.add_argument("--stdel", type=int, default=1)
    ap.add_argument("--stf", default="")
    ap.add_argument("--ta", type=int, default=0)
    ap.add_argument("--tn", type=int, default=0)
    ap.add_argument("--tpos", type=int, default=0)
    ap.add_argument("--w2rot", type=int, default=1)
    ap.add_argument("--rfast", type=int, default=1)
    ap.add_argument("--wt", type=int, default=0)
    ap.add_argument("--horder", default="w,x,h2,hl,c")
    ap.add_argument("--ht0", type=int, default=1)
    ap.add_argument("--first", type=int, default=4)
    ap.add_argument("--torder", default="hl,w,x,h2,c,red")
    ap.add_argument("--skipw", type=int, default=1)
    ap.add_argument("--skipx", type=int, default=1)
    cfg = ap.parse_args()
    cfg.passes = [[int(c) for c in p] for p in cfg.passes.split(",")]
    cfg.g2 = parse_g2(cfg.g2)
    cfg.rnb = cfg.rb2
    cfg.tsq, cfg.burst, cfg.pause = ilist(cfg.tsq), ilist(cfg.burst), ilist(cfg.pause)
    open(cfg.o, "w").write(build(cfg))


main()
```

```python
import sys, argparse

KN = "standalone__dense_activation_squared_relu__sampling_kernel"

WS_H = 0x0
WS_IN = 0x1000000
WS_CD = 0x1840000
WS_EP = 0x1850000
WS_TS = 0x8000000
SPIN_MAX = 100000
SGNMASK = 0x6A9956A5


class Asm:
    def __init__(self):
        self.L = []
        self.n = 0

    def __call__(self, s):
        self.L.append("    " + s)

    def label(self, s):
        self.L.append(s + ":")

    def c(self, s):
        self.L.append("    ; " + s)

    def uid(self):
        self.n += 1
        return self.n

    def head(self, role):
        self.L.append(f"@@HEAD {role}")

    def tail(self, role):
        self.L.append(f"@@TAIL {role}")

    def text(self, horder, torder):
        pro, heads, tails, cur = [], {}, {}, None
        cur = pro
        for ln in self.L:
            if ln.startswith("@@HEAD"):
                cur = heads.setdefault(ln.split()[1], [])
            elif ln.startswith("@@TAIL"):
                r = ln.split()[1]
                if r in heads:
                    heads[r].append(f"    s_branch L_tail_{r}")
                cur = tails.setdefault(r, [f"L_tail_{r}:"])
            else:
                cur.append(ln)
        assert sorted(heads) == sorted(horder) and sorted(tails) == sorted(torder), (heads.keys(), tails.keys())
        out = pro
        for r in horder:
            out += heads[r]
        out.append("L_heads_end:")
        for r in torder:
            out += tails[r]
        return "\n".join(out)


def build(cfg):
    global WS_H, WS_IN, WS_EP
    WS_H = cfg.wsb
    WS_IN = cfg.wsb + 0x480000
    WS_EP = cfg.wsb + 0x900000 if not cfg.slots else 0x10000
    A = Asm()
    TS = cfg.ts
    passes = cfg.passes
    D = cfg.depth

    stages, blocks, order = [], {}, []

    def blk(name, **kw):
        blocks[name] = dict(name=name, **kw)
        return name

    def add_stage(units, breads):
        q = len(stages)
        stages.append(dict(units=units, breads=breads, q=q))
        for (bb, _kb) in breads:
            b = blocks[bb]
            b["need"] = b["last"] = q
            if b["kind"] != "Hown":
                order.append(bb)
        for (_t, wb, _kb, _first) in units:
            b = blocks[wb]
            if "need" not in b:
                b["need"] = q
                order.append(wb)
            b["last"] = q
        return q

    epi_after, pass_of_line = {}, {}
    for pi, lines in enumerate(passes):
        grp = 1 if (len(lines) > 1 or pi == 0) else cfg.grp1
        for t0 in range(0, 9, grp):
            units, breads = [], []
            for t in range(t0, t0 + grp):
                if pi == 0:
                    breads.append((blk(f"X{t}", kind="X", t=t), t))
                for l in lines:
                    units.append((l, blk(f"W{t}_{l}", kind="W1", t=t, l=l), t, False))
            q = add_stage(units, breads)
        epi_after[q] = (pi, list(lines))
        for l in lines:
            pass_of_line[l] = pi
    n_g1 = len(stages)
    kbidx = {}
    first = {0: True, 1: True, 2: True}
    cnt2 = {0: 0, 1: 0, 2: 0}
    epi2_after = {}
    for stg in cfg.g2:
        units, breads = [], []
        for (d, lk, lines) in stg:
            if (d, lk) not in kbidx:
                kbidx[(d, lk)] = len(kbidx)
                breads.append((blk(f"H{d}_{lk}", kind="Hown" if d == 0 else f"H{d}", d=d, lk=lk), kbidx[(d, lk)]))
            for l in lines:
                units.append((l, blk(f"V{d}_{lk}_{l}", kind="W2", d=d, lk=lk, l=l), kbidx[(d, lk)], first[l]))
                first[l] = False
                cnt2[l] += 1
        q = add_stage(units, breads)
        done = [l for l in range(3) if cnt2[l] == 9 and not any(l in v for v in epi2_after.values())]
        if done:
            epi2_after[q] = done
    assert all(v == 9 for v in cnt2.values())
    NQ = len(stages)
    hown_w = {l: q for q, (pi, lines) in epi_after.items() for l in lines}
    hown_vis = {l: (q + 1 if q == n_g1 - 1 else q + 2) for l, q in hown_w.items()}
    for l in hown_w:
        assert blocks[f"H0_{l}"]["need"] >= hown_vis[l]
    hfetch = {l: hown_vis[l] + cfg.hdel for l in hown_w}

    free_at = {s: -10 for s in range(20)}
    events = [(blocks[nm]["need"] - (cfg.hearly if blocks[nm]["kind"] in ("H1", "H2") else 0), 1, k, nm) for k, nm in enumerate(order)]
    for l, qw in hown_w.items():
        events.append((qw - cfg.hres, 0, l, f"H0_{l}"))
    events.sort()
    for ev in events:
        b = blocks[ev[3]]
        if b["kind"] == "X":
            cand = [16, 17, 18, 19]
        elif ev[0] < cfg.xfree:
            cand = list(range(0, 16))
        else:
            cand = list(range(0, 20))
        s = min(cand, key=lambda s: (free_at[s], s))
        b["slot"] = s
        b["free"] = free_at[s]
        if b["kind"] == "Hown":
            assert b["free"] + cfg.hfree <= hown_w[b["lk"]], b
        else:
            assert b["free"] + 2 < b["need"], b
        free_at[s] = b["last"]
    if cfg.verbose:
        print(" | ".join(f"{blocks[e[3]]['name']}:s{blocks[e[3]]['slot']} f{blocks[e[3]]['free']} n{blocks[e[3]]['need']}" for e in events), file=sys.stderr)
    for k, nm in enumerate(order):
        blocks[nm]["pos"] = k
    cum = [sum(1 for nm in order if blocks[nm]["need"] <= q) for q in range(NQ)]

    sX, sW1, sB1, sW2, sB2, sOUT, sDBG, sWS = 16, 18, 20, 22, 24, 26, 28, 30
    sJ, sR, sMT, sI, sWV, sWK = 32, 33, 34, 35, 36, 37
    SRD0, SRD1, SRD2 = 40, 44, 48
    sT0, sT1, sT2, sT3, sT4, sT5 = 52, 53, 54, 55, 56, 57
    sCNT = 58
    sTAG, sPB = 6, 8
    sTS = 64
    tsn = [0]

    def stamp():
        if TS:
            k = tsn[0]
            assert k < 16
            A(f"s_memtime s[{sTS+2*k}:{sTS+2*k+1}]")
            tsn[0] += 1

    def srd(d, p, nbytes):
        A(f"s_mov_b32 s{d}, s{p}")
        A(f"s_mov_b32 s{d+1}, s{p+1}")
        A(f"s_mov_b32 s{d+2}, {nbytes}")
        A(f"s_mov_b32 s{d+3}, 0x00020000")

    def stamp_flush():
        if not TS:
            return
        n = tsn[0]
        A("s_waitcnt lgkmcnt(0)")
        srd(SRD2, sWS, 0x10000000)
        A(f"s_lshl_b32 s{sT0}, s2, 9")
        A(f"s_lshl_b32 s{sT1}, s{sWV}, 6")
        A(f"s_add_u32 s{sT0}, s{sT0}, s{sT1}")
        A(f"s_add_u32 s{sT0}, s{sT0}, {WS_TS}")
        A(f"v_mov_b32 v2, s{sT0}")
        A("s_mov_b64 exec, 1")
        for k in range(n):
            A(f"v_mov_b32 v3, s{sTS+2*k}")
            A(f"buffer_store_dword v3, v2, s[{SRD2}:{SRD2+3}], 0 offen offset:{4*k}")
        A("s_mov_b64 exec, -1")

    def epoch_load(smt):
        A(f"s_lshl_b32 s{sT0}, s{smt}, 7")
        A(f"s_add_u32 s{sT0}, s{sT0}, {WS_EP}")
        A(f"s_load_dword s{sTAG}, s[{sWS}:{sWS+1}], s{sT0}")

    def epoch_fin():
        A("s_waitcnt lgkmcnt(0)")
        A(f"s_add_u32 s{sTAG}, s{sTAG}, 1")
        A(f"s_mul_i32 s{sTAG+1}, s{sTAG}, 0x02020202")
        A(f"s_and_b32 s{sTAG+1}, s{sTAG+1}, 0xeeeeeeee")
        A(f"s_or_b32 s{sTAG+1}, s{sTAG+1}, 0x10101010")
        if cfg.slots:
            A(f"s_and_b32 s14, s{sTAG}, {cfg.slots-1}")
            A(f"s_mul_i32 s14, s14, 0xa00000")

    def slot_add(*regs):
        if cfg.slots:
            for r in regs:
                A(f"s_add_u32 s{r}, s{r}, s14")

    def tag_regs(vd, vt):
        A(f"v_and_b32 v{vt}, 3, v1")
        A(f"v_lshlrev_b32 v{vt}, 3, v{vt}")
        A(f"v_lshrrev_b32 v{vt}, v{vt}, s{sTAG+1}")
        for k in range(4):
            A(f"v_bfe_u32 v{vd+k}, v{vt}, {2*k}, 2")
            A(f"v_mul_u32_u24 v{vd+k}, 0x8001, v{vd+k}")
            A(f"v_and_b32 v{vd+k}, 0x10001, v{vd+k}")
            A(f"v_lshl_or_b32 v{vd+k}, v{vd+k}, 15, v{vd+k}")

    def sign_reg(vd, vt):
        A(f"s_bitcmp1_b32 s{sTAG}, 0")
        A(f"s_cselect_b32 s{sT0}, -1, 0")
        A(f"s_xor_b32 s{sT0}, s{sT0}, {SGNMASK}")
        A(f"v_and_b32 v{vt}, 31, v1")
        A(f"v_lshrrev_b32 v{vt}, v{vt}, s{sT0}")
        A(f"v_bfe_i32 v{vt}, v{vt}, 0, 1")
        A(f"v_and_b32 v{vd}, 0x80008000, v{vt}")

    def sspin(loads, npairs, base):
        k = A.uid()
        A(f"s_mov_b32 s{sCNT}, 0")
        A.label(f"L_s{k}")
        for x in loads:
            A(x)
        A(f"s_add_u32 s{sCNT}, s{sCNT}, 1")
        A("s_waitcnt lgkmcnt(0)")
        A(f"s_cmp_gt_u32 s{sCNT}, {SPIN_MAX}")
        A(f"s_cbranch_scc1 L_sd{k}")
        for n in range(npairs):
            A(f"s_cmp_lg_u64 s[{base+2*n}:{base+2*n+1}], s[{sTAG}:{sTAG+1}]")
            A(f"s_cbranch_scc1 L_s{k}")
        A.label(f"L_sd{k}")

    def mod3add(dst, d, tmp):
        A(f"s_add_u32 s{dst}, s{sI}, {d}")
        A(f"s_cmp_ge_u32 s{dst}, 3")
        A(f"s_cselect_b32 s{tmp}, 3, 0")
        A(f"s_sub_u32 s{dst}, s{dst}, s{tmp}")

    A("s_cmp_ge_u32 s2, 256")
    A("s_cbranch_scc1 L_end")
    A("s_load_dwordx16 s[16:31], s[0:1], 0")
    if cfg.ctouch == 1:
        A("s_getpc_b64 s[4:5]")
        A.label("L_pc")
        A("v_lshlrev_b32 v2, 7, v0")
        A("v_min_u32 v2, L_end-L_pc, v2")
        A("v_and_b32 v2, 0xfffffffc, v2")
        A("global_load_dword v255, v2, s[4:5]")
    elif cfg.ctouch == 2:
        A("s_getpc_b64 s[4:5]")
        A.label("L_pc")
        A("s_lshr_b32 s3, s2, 3")
        A("s_lshl_b32 s3, s3, 11")
        A("v_lshrrev_b32 v2, 5, v0")
        A("v_lshl_add_u32 v2, v2, 7, s3")
        A("v_min_u32 v2, L_end-L_pc, v2")
        A("v_and_b32 v2, 0xfffffffc, v2")
        A("global_load_dword v255, v2, s[4:5]")
    if TS:
        A("s_memrealtime s[96:97]")
    if cfg.enc:
        A("s_memrealtime s[96:97]")
        if cfg.enc == "none":
            A("s_memrealtime s[94:95]")

    def enc(p):
        if cfg.enc == p:
            A("s_memrealtime s[94:95]")
    stamp()
    A("v_and_b32 v1, 63, v0")
    A("v_lshrrev_b32 v2, 6, v0")
    A(f"s_and_b32 s{sJ}, s2, 7")
    A(f"v_readfirstlane_b32 s{sWV}, v2")
    A(f"s_lshr_b32 s{sR}, s2, 3")
    A(f"s_cmp_lt_u32 s{sR}, 8")
    A("s_cbranch_scc1 L_helper")
    A(f"s_sub_u32 s{sR}, s{sR}, 8")
    A(f"s_mul_i32 s{sMT}, s{sR}, 21846")
    A(f"s_lshr_b32 s{sMT}, s{sMT}, 16")
    A(f"s_mul_i32 s{sT0}, s{sMT}, 3")
    A(f"s_sub_u32 s{sI}, s{sR}, s{sT0}")
    A(f"s_mul_i32 s{sWK}, s{sJ}, 24")
    A(f"s_add_u32 s{sWK}, s{sWK}, s{sR}")
    ROT = [int(c) for c in cfg.rot]
    ROTTAB = sum(r << (4 * m) for m, r in enumerate(ROT))
    sROT, sLO, sHI = 10, 11, 12
    if any(ROT):
        A(f"s_lshl_b32 s{sROT}, s{sMT}, 2")
        A(f"s_lshr_b32 s{sROT}, {ROTTAB}, s{sROT}")
        A(f"s_and_b32 s{sROT}, s{sROT}, 15")

    def rot_setup(sbase, stride):
        if any(ROT):
            A(f"s_mul_i32 s{sLO}, s{sROT}, {stride}")
            A(f"s_add_u32 s{sLO}, s{sLO}, s{sbase}")
            A(f"s_sub_u32 s{sHI}, s{sLO}, {9*stride}")

    def rot_addr(dst, sbase, t, stride, extra):
        if any(ROT):
            if t + max(ROT) < 9:
                A(f"s_add_u32 s{dst}, s{sLO}, {t*stride + extra}")
            else:
                A(f"s_cmp_lt_u32 s{sROT}, {9-t}")
                A(f"s_cselect_b32 s{dst}, s{sLO}, s{sHI}")
                A(f"s_add_u32 s{dst}, s{dst}, {t*stride + extra}")
        else:
            A(f"s_add_u32 s{dst}, s{sbase}, {t*stride + extra}")
    A(f"s_cmp_lt_u32 s{sWV}, 4")
    A("s_cbranch_scc1 L_compute")
    A(f"s_cmp_eq_u32 s{sWV}, 6")
    A("s_cbranch_scc1 L_xh")
    A(f"s_cmp_eq_u32 s{sWV}, 7")
    A("s_cbranch_scc1 L_h2")
    ts_base = tsn[0]

    def loader_stream(kinds, per_block, issue_fn, setup_fn, cap, group=False, validate=None, before_bar=None, role=None):
        mine = [blocks[nm] for nm in order if blocks[nm]["kind"] in kinds]
        outstanding, pend = [], list(mine)
        nb = lambda nm: blocks[nm]["n"] if blocks[nm]["kind"] == "extra" else (per_block(blocks[nm]) if callable(per_block) else per_block)
        cnt = lambda lst: sum(nb(x) for x in lst)

        def ok(b, q):
            if b["free"] + 2 > q:
                return False
            if b["kind"] in ("H1", "H2") and q < min(hfetch[b["lk"]], b["need"] - 1):
                return False
            return True

        def issue_upto(q, ahead, cap):
            n = 0
            lim = cum[q] + ahead if q >= 0 else ahead
            while pend and ok(pend[0], q):
                must = pend[0]["need"] <= q + 1 or pend[0]["pos"] < lim
                if not must and n >= cap:
                    break
                grp = [pend.pop(0)]
                while group and pend and ok(pend[0], q) and pend[0]["need"] == grp[0]["need"] and len(grp) < 3 \
                        and (pend[0]["pos"] < lim or n + len(grp) < cap or pend[0]["need"] <= q + 1):
                    grp.append(pend.pop(0))
                need_n = sum(nb(x["name"]) for x in grp)
                if cnt(outstanding) + need_n > 63:
                    while cnt(outstanding) + need_n > 63:
                        del outstanding[0]
                    A(f"s_waitcnt vmcnt({cnt(outstanding)})")
                issue_fn(grp if group else grp[0])
                if cfg.verbose:
                    print(f"   after B{q}: " + " ".join(x["name"] for x in grp), file=sys.stderr)
                outstanding.extend(x["name"] for x in grp)
                n += len(grp)

        issue_upto(-1, cfg.first, 0)
        if cfg.ts0:
            stamp()
        if role == "w":
            enc("iss")
        A.tail(role)
        pr = cfg.priow if role == "w" else cfg.prioh
        if pr:
            A(f"s_setprio {pr}")
        setup_fn()
        issue_upto(-1, cfg.ahead0, 0)
        for q in range(NQ):
            assert not any(b["need"] <= q for b in pend), (q, pend[0])
            def wait_for(b):
                if b["name"] in outstanding:
                    idx = max(i for i, nm in enumerate(outstanding) if blocks[nm]["need"] <= q) if validate is None \
                        else outstanding.index(b["name"])
                    del outstanding[:idx + 1]
                    A(f"s_waitcnt vmcnt({cnt(outstanding)})")
            hs = []
            for b in mine:
                if b["need"] == q:
                    if validate is not None and b["kind"] != "X":
                        hs.append(b)
                    else:
                        wait_for(b)
            if hs:
                validate(hs, wait_for)
            if before_bar is not None:
                ex = before_bar(q)
                if ex:
                    nm = f"extra{A.uid()}"
                    blocks[nm] = dict(name=nm, kind="extra", n=ex, need=99)
                    outstanding.append(nm)
            if q in cfg.tsq:
                stamp()
            A("s_barrier")
            if role == "w":
                enc(f"B{q}")
            if q in cfg.pause:
                issue_upto(q, 0, 0)
            else:
                issue_upto(q, cfg.ahead, 99 if q in cfg.burst else (cap if q >= cfg.capfrom else 0))
        assert not pend

    vRA, vRO, vRB, vRC, vRD, vRT, vRX, vRZ, vRG = 64, 65, 66, 72, 80, 112, 116, 117, 120
    sRI, sRO, sC = 60, 61, 13

    def vr(r, W):
        return f"v{r}" if W == 1 else f"v[{r}:{r+W-1}]"

    def dw(W):
        return "dword" if W == 1 else f"dwordx{W}"

    def red_pre(W):
        if W == 2:
            A(f"s_sub_u32 s{sC}, s{sWV}, 4")
            A(f"v_lshlrev_b32 v{vRA}, 3, v1")
            A(f"s_lshl_b32 s{sRO}, s{sC}, 6")
            A(f"s_lshl_b32 s{sRI}, s{sC}, 9")
            A(f"v_lshrrev_b32 v{vRT}, 4, v1")
            A(f"v_and_b32 v{vRT+1}, 1, v1")
            A(f"v_lshlrev_b32 v{vRT+1}, 3, v{vRT+1}")
            A(f"v_lshl_add_u32 v{vRT}, v{vRT}, 4, v{vRT+1}")
            A(f"v_bfe_u32 v{vRT+2}, v1, 1, 3")
            A(f"v_and_b32 v{vRT+3}, 7, v1")
            A(f"v_lshlrev_b32 v{vRT+3}, 2, v{vRT+3}")
        else:
            A(f"s_add_u32 s{sC}, s{sWV}, 8")
            A(f"v_lshlrev_b32 v{vRA}, 2, v1")
            A(f"s_lshl_b32 s{sRO}, s{sC}, 5")
            A(f"s_lshl_b32 s{sRI}, s{sC}, 8")
            A(f"v_lshrrev_b32 v{vRT}, 5, v1")
            A(f"v_and_b32 v{vRT+1}, 3, v1")
            A(f"v_lshlrev_b32 v{vRT+1}, 2, v{vRT+1}")
            A(f"v_lshl_add_u32 v{vRT}, v{vRT}, 4, v{vRT+1}")
            A(f"v_bfe_u32 v{vRT+2}, v1, 2, 3")
            A(f"v_and_b32 v{vRT+3}, 15, v1")
            A(f"v_lshlrev_b32 v{vRT+3}, 1, v{vRT+3}")
        A(f"s_mul_i32 s{sT1}, s{sI}, 384")
        A(f"s_add_u32 s{sRO}, s{sRO}, s{sT1}")
        if W == 2:
            srd(SRD2, sB2, 1152)
            A(f"buffer_load_{dw(W)} {vr(vRB, W)}, v{vRT}, s[{SRD2}:{SRD2+3}], s{sRO} offen")
        else:
            A(f"v_mov_b32 v{vRB}, v249")
        A(f"s_lshl_b32 s{sT1}, s{sJ}, 3")
        A(f"s_lshl_b32 s{sT3}, s{sMT}, 6")
        A(f"s_add_u32 s{sT1}, s{sT1}, s{sT3}")
        A(f"s_mul_i32 s{sT1}, s{sT1}, 1152")
        A(f"s_add_u32 s{sRO}, s{sRO}, s{sT1}")
        A(f"v_mul_u32_u24 v{vRT+2}, 1152, v{vRT+2}")
        A(f"v_add_u32 v{vRO}, v{vRT}, v{vRT+2}")
        A(f"s_mul_i32 s{sT1}, s{sWK}, {8*3072}")
        A(f"s_add_u32 s{sRI}, s{sRI}, s{sT1}")
        A(f"s_add_u32 s{sRI}, s{sRI}, {WS_IN}")
        slot_add(sRI)
        A(f"v_mov_b32 v{vRZ}, 0")
        A(f"v_lshrrev_b32 v{vRT+3}, v{vRT+3}, s{sTAG+1}")
        for k in range(W):
            A(f"v_bfe_u32 v{vRG+k}, v{vRT+3}, {2*k}, 2")
            A(f"v_mul_u32_u24 v{vRG+k}, 0x8001, v{vRG+k}")
        A(f"v_mov_b32 v{vRG+4}, 0x10001")
        A(f"v_mov_b32 v{vRG+5}, 0xffff0000")
        return 1

    def red_init(W):
        for k in range(W):
            A(f"v_lshlrev_b32 v{vRC+2*k}, 16, v{vRB+k}")
            A(f"v_and_b32 v{vRC+1+2*k}, v{vRG+5}, v{vRB+k}")

    def bb_w(q):
        if q == 2:
            epoch_fin()
        if q == cfg.rpq:
            return red_pre(2)
        if q == cfg.rpq + 3:
            red_init(2)

    A.head("w")
    sHW = sT5
    A(f"s_sub_u32 s{sHW}, s{sWV}, 4")
    A("v_lshrrev_b32 v2, 3, v1")
    A("v_and_b32 v3, 7, v1")
    A("v_bfe_u32 v4, v1, 4, 1")
    A("v_lshlrev_b32 v4, 2, v4")
    A("v_xor_b32 v3, v3, v4")
    A("v_lshlrev_b32 v3, 4, v3")
    A("v_lshrrev_b32 v4, 2, v2")
    A("v_and_b32 v5, 3, v2")
    A("v_lshl_add_u32 v4, v4, 3, v5")
    A(f"s_lshl_b32 s{sT0}, s{sHW}, 5")
    A(f"v_add_u32 v4, s{sT0}, v4")
    A("v_mul_u32_u24 v4, 9216, v4")
    A("v_add_u32 v4, v4, v3")
    for c in range(1, 4):
        A(f"v_add_u32 v{4+c}, {(16*(c>>1)+4*(c&1))*9216 - 1024*c}, v4")
    sLW, sC1 = sT4, 38
    A(f"s_lshl_b32 s{sLW}, s{sHW}, 12")
    A(f"s_mul_i32 s{sC1}, s{sJ}, 1152")
    A(f"s_mul_i32 s{sT1}, s{sI}, 384")
    A(f"s_add_u32 s{sC1}, s{sC1}, s{sT1}")
    rot_setup(sC1, 64*9216)
    if cfg.wt:
        A("v_and_b32 v12, 7, v1")
        A("v_lshrrev_b32 v13, 5, v1")
        A("v_lshl_add_u32 v12, v13, 6, v12")
        A("v_mul_u32_u24 v12, 9216, v12")
        A("v_bfe_u32 v13, v1, 3, 2")
        A("v_lshl_add_u32 v12, v13, 7, v12")
        A(f"s_lshl_b32 s{sT0}, s{sHW}, 4")
        A(f"s_add_u32 s{sT0}, s{sT0}, s{sMT}")
        A(f"s_mul_i32 s{sT0}, s{sT0}, {8*9216}")
        A(f"s_add_u32 s{sT0}, s{sT0}, s{sC1}")
        msk = [sum(0xffffff << (32 * h) for h in range(2) if 2 * w + h < cfg.wt) for w in range(2)]
        A(f"s_mov_b32 exec_lo, {msk[0] & 0xffffffff}")
        A(f"s_mov_b32 exec_hi, {msk[0] >> 32}")
        if msk[1] != msk[0]:
            A(f"s_cmp_eq_u32 s{sHW}, 0")
            A(f"s_cselect_b32 exec_lo, exec_lo, {(msk[1] & 0xffffffff) or 1}")
            A(f"s_cselect_b32 exec_hi, exec_hi, {msk[1] >> 32}")
    A("s_waitcnt lgkmcnt(0)")
    if cfg.ts0:
        stamp()
    srd(SRD0, sW1, 5308416)
    if cfg.wt:
        A(f"buffer_load_dword v255, v12, s[{SRD0}:{SRD0+3}], s{sT0} offen")
        A("s_mov_b64 exec, -1")
    sV = [62, 63, 59]

    def w2_setup():
        epoch_load(sMT)
        A(f"s_lshl_b32 s{sT0}, s{sHW}, 5")
        A(f"v_add_u32 v8, s{sT0}, v2")
        A("v_mul_u32_u24 v8, 1152, v8")
        A("v_add_u32 v8, v8, v3")
        for c in range(1, 4):
            A(f"v_add_u32 v{8+c}, {8*c*1152 - 1024*c}, v8")
        A(f"s_mul_i32 s39, s{sJ}, {576*1152}")
        A(f"s_mul_i32 s{sT0}, s{sI}, 384")
        A(f"s_add_u32 s39, s39, s{sT0}")
        for d in range(3):
            mod3add(sT1, d, sT2)
            A(f"s_mul_i32 s{sT1}, s{sT1}, {192*1152}")
            A(f"s_add_u32 s{sV[d]}, s39, s{sT1}")
        srd(SRD1, sW2, 5308416)

    def issue_w(grp):
        for b in grp:
            A(f"s_add_u32 m0, s{sLW}, {b['slot']*8192}")
            if b["kind"] == "W1":
                rot_addr(sT0, sC1, b['t'], 64*9216, 128*b['l'])
                vb, sr = 4, SRD0
            else:
                A(f"s_add_u32 s{sT0}, s{sV[b['d']]}, {64*b['lk']*1152 + 128*b['l']}")
                vb, sr = 8, SRD1
            for c in range(4):
                A(f"buffer_load_dwordx4 v{vb+c}, s[{sr}:{sr+3}], s{sT0} offen offset:{1024*c} {cfg.wfl} lds")

    loader_stream(("W1", "W2"), 4, issue_w, w2_setup, cfg.capw, group=True,
                  before_bar=bb_w, role="w")
    A("s_branch L_reduce")
    ts_max = tsn[0]

    sXB = 38
    sH = {1: 39, 2: 59}
    HALF = [0]

    def h_setup(half):
        A("v_lshlrev_b32 v12, 4, v1")
        A("v_add_u32 v13, 0x10000, v12")
        A("v_add_u32 v14, 0x20000, v12")
        A(f"s_sub_u32 s{sT0}, s{sWK}, s{sI}")
        for d in (1, 2):
            mod3add(sT1, d, sT2)
            A(f"s_add_u32 s{sT1}, s{sT1}, s{sT0}")
            A(f"s_mul_i32 s{sH[d]}, s{sT1}, 24576")
        srd(SRD1, sWS, 0x10000000)
        epoch_load(sMT)

    def issue_xh(b):
        for h in (range(2) if b["kind"] == "X" else HALF):
            A(f"s_mov_b32 m0, {b['slot']*8192 + 4096*h}")
            if b["kind"] == "X":
                rot_addr(sT0, sXB, b['t'], 128, 32*1152*h)
                for c in range(4):
                    A(f"buffer_load_dwordx4 v{8+c}, s[{SRD0}:{SRD0+3}], s{sT0} offen offset:{1024*c} lds")
            else:
                A(f"s_add_u32 s{sT0}, s{sH[b['d']]}, {WS_H + 8192*b['lk'] + 4096*h}")
                for c in range(4):
                    A(f"buffer_load_dwordx4 v12, s[{SRD1}:{SRD1+3}], s{sT0} offen offset:{1024*c} {cfg.hlf} lds")

    retry_code = []

    def validate(hs, wait_for):
        k = A.uid()

        def rd(i):
            addr = hs[i]["slot"] * 8192 + 4096 * HALF[0]
            for c in range(4):
                r = 128 + 16 * i + 4 * c
                A(f"ds_read_b128 v[{r}:{r+3}], v{12 + (addr >> 16)} offset:{(addr & 0xffff) + 1024*c}")

        def valu(i, later):
            for c in range(4):
                r = 128 + 16 * i + 4 * c
                A(f"s_waitcnt lgkmcnt({3-c+later})")
                for kk in range(4):
                    ac = 16 + ((kk + 2) & 3)
                    if i == 0 and c == 0:
                        A(f"v_xor_b32 v{ac}, v{r+kk}, v{25+kk}")
                    else:
                        A(f"v_bitop3_b32 v{ac}, v{ac}, v{r+kk}, v{25+kk} bitop3:0xf6")
        A.label(f"L_v{k}")
        for i in range(len(hs)):
            wait_for(hs[i])
            rd(i)
            if i:
                valu(i - 1, 4)
        valu(len(hs) - 1, 0)
        A("v_or3_b32 v16, v16, v17, v18")
        A("v_bitop3_b32 v16, v16, v19, v24 bitop3:0xa8")
        A("v_cmp_ne_u32 vcc, 0, v16")
        A(f"s_cbranch_vccnz L_vr{k}")
        A.label(f"L_vd{k}")
        n0 = len(A.L)
        A.label(f"L_vr{k}")
        A(f"s_cmp_gt_u32 s{sCNT}, {SPIN_MAX}")
        A(f"s_cbranch_scc1 L_vd{k}")
        for b in hs:
            issue_xh(b)
        A(f"s_add_u32 s{sCNT}, s{sCNT}, 1")
        A("s_waitcnt vmcnt(0)")
        A(f"s_branch L_v{k}")
        retry_code.extend(A.L[n0:])
        del A.L[n0:]

    def flush_retry():
        A.L.extend(retry_code)
        retry_code.clear()

    def bb_tag(q):
        if q == 2:
            epoch_fin()
            slot_add(sH[1], sH[2])
            tag_regs(25, 16)
            A(f"v_mov_b32 v24, {0x10001 if cfg.hlsb else 0x80008000}")
            A(f"s_mov_b32 s{sCNT}, 0")
        if q == cfg.rpq:
            return red_pre(2)
        if q == cfg.rpq + 3:
            red_init(2)

    A.head("x")
    A.label("L_xh")
    tsn[0] = ts_base
    A("v_lshrrev_b32 v2, 3, v1")
    A("v_and_b32 v3, 7, v1")
    A("v_lshrrev_b32 v4, 4, v1")
    A("v_xor_b32 v3, v3, v4")
    A("v_lshlrev_b32 v3, 4, v3")
    A("v_mul_u32_u24 v4, 1152, v2")
    A("v_add_u32 v8, v4, v3")
    A("v_xor_b32 v5, 64, v8")
    A(f"v_add_u32 v9, {8*1152 - 1024}, v5")
    A(f"v_add_u32 v10, {16*1152 - 2048}, v8")
    A(f"v_add_u32 v11, {24*1152 - 3072}, v5")
    A(f"s_mul_i32 s{sXB}, s{sMT}, {64*1152}")
    rot_setup(sXB, 128)

    def x_touch_pre(st0):
        A(f"s_mul_i32 s{sT0}, s{sI}, 22")
        A("v_and_b32 v12, 31, v1")
        A(f"v_add_u32 v12, s{sT0}, v12")
        A("v_min_u32 v12, 63, v12")
        A("v_mul_u32_u24 v12, 1152, v12")
        A("v_lshrrev_b32 v13, 5, v1")
        A("v_lshl_add_u32 v12, v13, 7, v12")
        A("s_mov_b32 exec_lo, 0x3fffff")
        A(f"s_mov_b32 exec_hi, {0x3fffff if cfg.wt > st0 + 1 else 0}")

    def x_touch(st0):
        A(f"buffer_load_dword v255, v12, s[{SRD0}:{SRD0+3}], s{sXB} offen offset:{128*st0}")
        A("s_mov_b64 exec, -1")
    if cfg.wt:
        x_touch_pre(0)
    A("s_waitcnt lgkmcnt(0)")
    if cfg.ts0:
        stamp()
    srd(SRD0, sX, 589824)
    if cfg.wt:
        x_touch(0)
    nbx = lambda b: 8 if b["kind"] == "X" else 4
    loader_stream(("X", "H1", "H2"), nbx, issue_xh, lambda: h_setup(0), cfg.capx, validate=validate, before_bar=bb_tag, role="x")
    if TS:
        A(f"s_mov_b32 s{sTS+24}, s{sCNT}")
    A("s_branch L_reduce")
    flush_retry()
    ts_max = max(ts_max, tsn[0])

    A.head("h2")
    A.label("L_h2")
    tsn[0] = ts_base
    if cfg.wt > 2:
        A(f"s_mul_i32 s{sXB}, s{sMT}, {64*1152}")
        x_touch_pre(2)
    A("s_waitcnt lgkmcnt(0)")
    if cfg.wt > 2:
        srd(SRD0, sX, 589824)
        x_touch(2)
    srd(SRD1, sWS, 0x10000000)
    if cfg.hpre == 3:
        A("v_lshlrev_b32 v3, 7, v1")
        A(f"s_mul_i32 s{sT1}, s{sWK}, 24576")
        A(f"s_add_u32 s{sT1}, s{sT1}, {WS_H}")
        for c in range(3):
            A(f"buffer_load_dword v255, v3, s[{SRD1}:{SRD1+3}], s{sT1} offen")
            A(f"s_add_u32 s{sT1}, s{sT1}, 8192")

    def w7_touch():
        st = list(range(cfg.ta, cfg.ta + cfg.tn))
        srd(SRD0, sX, 589824)
        srd(SRD2, sW1, 5308416)
        A(f"s_mul_i32 s{sXB}, s{sMT}, {64*1152}")
        A(f"s_mul_i32 s{sT0}, s{sI}, 22")
        A("v_and_b32 v2, 31, v1")
        A(f"v_add_u32 v2, s{sT0}, v2")
        A("v_min_u32 v2, 63, v2")
        A("v_mul_u32_u24 v2, 1152, v2")
        A("v_lshrrev_b32 v4, 5, v1")
        A("v_lshl_add_u32 v2, v4, 7, v2")
        A("v_and_b32 v3, 7, v1")
        A("v_lshl_add_u32 v3, v4, 6, v3")
        A("v_mul_u32_u24 v3, 9216, v3")
        A("v_bfe_u32 v4, v1, 3, 2")
        A("v_lshl_add_u32 v3, v4, 7, v3")
        A(f"s_mul_i32 s{sT0}, s{sMT}, {8*9216}")
        A(f"s_mul_i32 s{sT1}, s{sJ}, 1152")
        A(f"s_add_u32 s{sT0}, s{sT0}, s{sT1}")
        A(f"s_mul_i32 s{sT1}, s{sI}, 384")
        A(f"s_add_u32 s{sT0}, s{sT0}, s{sT1}")
        for p in range(0, len(st), 2):
            two = p + 1 < len(st)
            A(f"s_add_u32 s{sT1}, s{sT0}, {st[p]*64*9216}")
            A("s_mov_b32 exec_lo, 0xffffff")
            A(f"s_mov_b32 exec_hi, {0xffffff if two else 0}")
            A(f"buffer_load_dword v255, v3, s[{SRD2}:{SRD2+3}], s{sT1} offen")
            A("s_mov_b32 exec_lo, 0x3fffff")
            A(f"s_mov_b32 exec_hi, {0x3fffff if two else 0}")
            A(f"buffer_load_dword v255, v2, s[{SRD0}:{SRD0+3}], s{sXB} offen offset:{128*st[p]}")
        A("s_mov_b64 exec, -1")
    if cfg.tn and cfg.tpos == 0:
        w7_touch()

    def bb_h2(q):
        if cfg.tn and cfg.tpos == 1 and q == 0:
            A("s_waitcnt lgkmcnt(0)")
            w7_touch()
        if cfg.tn and cfg.tpos >= 2 and q == cfg.tpos - 1:
            w7_touch()
        if cfg.tn and q == 7:
            A("s_waitcnt vmcnt(0)")
        if q == 2 and (cfg.hpre == 3 or cfg.wt > 2):
            A("s_waitcnt vmcnt(0)")
        return bb_tag(q)

    HALF[0] = 1
    loader_stream(("H1", "H2"), nbx, issue_xh, lambda: h_setup(1), cfg.capx, validate=validate, before_bar=bb_h2, role="h2")
    ts_max = max(ts_max, tsn[0])
    A("s_branch L_reduce")
    flush_retry()

    A.tail("red")
    sM, sQ = sT5, sT4
    sVC = 16

    def reduce_code(W, nbar):
        x = f"{W}"
        srd(SRD1, sWS, 0x10000000)
        A(f"s_mov_b32 s{sCNT}, 0")
        srd(SRD0, sOUT, 589824)
        if W == 1:
            red_pre(1)
            red_init(1)
            A(f"s_waitcnt vmcnt({cfg.rw1})")
            if cfg.rlate == 1:
                A("s_barrier")

        def ld(s_):
            A(f"s_add_u32 s{sT1}, s{sRI}, {3072*s_}")
            A(f"buffer_load_{dw(W)} {vr(vRD+W*s_, W)}, v{vRA}, s[{SRD1}:{SRD1+3}], s{sT1} offen {cfg.rfl}")
        if W == 2 and cfg.r0early and nbar:
            A(f"s_cmp_ge_u32 s{sC}, 2")
            A("s_cbranch_scc1 L_rlate")
            stamp()
            tsn[0] -= 1 if TS else 0
            for s_ in range(8):
                ld(s_)
            A("s_barrier")
            A("s_branch L_rfirst")
            A.label("L_rlate")
        for _ in range(nbar):
            A("s_barrier")
        stamp()
        enc("rbar")

        def chk_i(s_, dst, t):
            r = vRD + W * s_
            if W == 1:
                o = [f"v_bitop3_b32 v{t}, v{r}, v{vRG}, v{vRG+4} bitop3:0x28"]
            else:
                o = [f"v_xor_b32 v{t}, v{r}, v{vRG}"]
                for k in range(1, W):
                    o.append(f"v_bitop3_b32 v{t}, v{t}, v{r+k}, v{vRG+k} bitop3:0xf6")
                o.append(f"v_and_b32 v{t}, v{vRG+4}, v{t}")
            o.append(f"v_cmp_ne_u32 {dst}, 0, v{t}")
            return o

        def acc_i(s_, t0):
            r = vRD + W * s_
            o = []
            for k in range(W):
                t = t0 + 2 * k
                o.append(f"v_lshlrev_b32 v{t}, 16, v{r+k}")
                o.append(f"v_and_b32 v{t+1}, v{vRG+5}, v{r+k}")
            for k in range(W):
                t = t0 + 2 * k
                o.append(f"v_pk_add_f32 v[{vRC+2*k}:{vRC+1+2*k}], v[{vRC+2*k}:{vRC+1+2*k}], v[{t}:{t+1}]")
            return o

        def masked(sm, fn, tag):
            for g in range(2):
                A(f"s_and_b32 s{sT0}, s{sm}, {0xf << (4*g)}")
                A(f"s_cbranch_scc0 L_{tag}{x}g{g}")
                for s_ in range(4 * g, 4 * g + 4):
                    A(f"s_bitcmp0_b32 s{sm}, {s_}")
                    A(f"s_cbranch_scc1 L_{tag}{x}s{s_}")
                    fn(s_)
                    A.label(f"L_{tag}{x}s{s_}")
                A.label(f"L_{tag}{x}g{g}")

        for s_ in range(8):
            ld(s_)
        for _ in range(nbar, cfg.rnb if W != 1 else 0):
            A("s_barrier")
        if W == 1 and cfg.rlate == 2:
            A("s_barrier")
        if W == 2:
            A.label("L_rfirst")
        for s_ in range(8):
            A(f"s_waitcnt vmcnt({7-s_})")
            c = chk_i(s_, f"s[{sVC+2*s_}:{sVC+2*s_+1}]", vRX)
            a_ = acc_i(s_, vRT)
            while c or a_:
                if c:
                    A(c.pop(0))
                if a_:
                    A(a_.pop(0))
            if s_ >= 2:
                A(f"s_or_b64 vcc, {'s[16:17]' if s_ == 2 else 'vcc'}, s[{sVC+2*s_-2}:{sVC+2*s_-1}]")
        A(f"s_or_b64 vcc, vcc, s[{sVC+14}:{sVC+15}]")
        A(f"s_cbranch_scc0 L_rdone{x}")
        A(f"s_mov_b32 s{sM}, 0")
        for s_ in range(7, -1, -1):
            A(f"s_cmp_lg_u64 s[{sVC+2*s_}:{sVC+2*s_+1}], 0")
            A(f"s_addc_u32 s{sM}, s{sM}, s{sM}")
        A(f"s_xor_b32 s{sQ}, s{sM}, 0xff")
        red_init(W)
        A.label(f"L_rtop{x}")
        masked(sM, ld, "rl")
        masked(sQ, lambda s_: [A(t) for t in acc_i(s_, vRT)], "ra")
        A(f"s_add_u32 s{sCNT}, s{sCNT}, 1")
        A(f"s_mov_b32 s{sQ}, s{sM}")
        A(f"s_cmp_gt_u32 s{sCNT}, {SPIN_MAX}")
        A(f"s_cbranch_scc1 L_rdone{x}")
        A("s_waitcnt vmcnt(0)")

        def chk2(s_):
            for t in chk_i(s_, "vcc", vRX):
                A(t)
            A(f"s_cbranch_vccnz L_rc{x}s{s_}")
            A(f"s_bitset0_b32 s{sM}, {s_}")
            for t in acc_i(s_, vRT):
                A(t)
        masked(sQ, chk2, "rc")
        A(f"s_mov_b32 s{sQ}, 0")
        A(f"s_cmp_lg_u32 s{sM}, 0")
        A(f"s_cbranch_scc1 L_rtop{x}")
        A.label(f"L_rdone{x}")
        stamp()
        enc("rdone")
        for k in range(W):
            A(f"v_cvt_pk_bf16_f32 v{vRC+k}, v{vRC+2*k}, v{vRC+1+2*k}")
        A(f"buffer_store_{dw(W)} {vr(vRC, W)}, v{vRO}, s[{SRD0}:{SRD0+3}], s{sRO} offen {cfg.ofl if W > 1 else cfg.ofl1}")
        if TS:
            A(f"s_mov_b32 s{sWS}, s{SRD1}")
            A(f"s_mov_b32 s{sWS+1}, s{SRD1+1}")

    A.label("L_reduce")
    tsn[0] = ts_max
    reduce_code(2, cfg.rb2)
    A(f"s_or_b32 s{sT0}, s{sJ}, s{sI}")
    A(f"s_or_b32 s{sT0}, s{sT0}, s{sC}")
    A(f"s_cmp_lg_u32 s{sT0}, 0")
    A("s_cbranch_scc1 L_noep")
    A(f"v_mov_b32 v16, s{sTAG}")
    A(f"s_lshl_b32 s{sT0}, s{sMT}, 7")
    A(f"s_add_u32 s{sT0}, s{sT0}, {WS_EP}")
    A("s_mov_b64 exec, 1")
    A(f"buffer_store_dword v16, v{vRZ}, s[{SRD1}:{SRD1+3}], s{sT0} offen sc1")
    A("s_mov_b64 exec, -1")
    A.label("L_noep")
    if cfg.enc:
        if cfg.enc == "end":
            A("s_waitcnt vmcnt(0)")
            enc("end")
        if cfg.encw >= 0:
            A(f"s_cmp_lg_u32 s{sWV}, {cfg.encw}")
            A("s_cbranch_scc1 L_end")
        A("s_waitcnt lgkmcnt(0)")
        A("s_sub_u32 s94, s94, s96")
        A(f"s_mul_i32 s94, s94, {cfg.encm}")
        A("s_add_u32 s94, s94, 3000")
        A.label("L_dly")
        A("s_memrealtime s[98:99]")
        A("s_waitcnt lgkmcnt(0)")
        A("s_sub_u32 s98, s98, s96")
        A("s_cmp_lt_u32 s98, s94")
        A("s_cbranch_scc1 L_dly")
    if TS:
        A("s_waitcnt vmcnt(0)")
        stamp()
        A("s_memrealtime s[98:99]")
        A("s_waitcnt lgkmcnt(0)")
        A(f"s_mov_b32 s{sTS+26}, s96"); A(f"s_mov_b32 s{sTS+28}, s98"); A(f"s_mov_b32 s{sTS+30}, s{sCNT}")
        assert tsn[0] <= 12
        tsn[0] = 16
        stamp_flush()
    A("s_branch L_end")

    A.head("c")
    A.label("L_compute")
    tsn[0] = ts_base
    vACC, vAB, vXB, vT = 16, 64, 96, 240
    nAB = D + 1
    vA, vBX, vBH, vHW = [2, 3, 4], [5, 6, 7, 8], [9, 10, 11], [12, 13, 14]
    vTG, vL16 = vT + 11, vT + 10
    assert vAB + 4 * nAB <= vXB
    sA, sBq = sT4, sT5
    A(f"s_and_b32 s{sA}, s{sWV}, 1")
    A(f"s_lshr_b32 s{sBq}, s{sWV}, 1")
    A(f"v_lshrrev_b32 v{vT}, 5, v1")
    A(f"s_mul_i32 s60, s{sJ}, 1152")
    A(f"s_mul_i32 s{sT1}, s{sI}, 384")
    A(f"s_add_u32 s60, s60, s{sT1}")
    A(f"s_lshl_b32 s{sT1}, s{sBq}, 6")
    A(f"s_add_u32 s61, s60, s{sT1}")
    A(f"v_lshlrev_b32 v{vT+4}, 3, v{vT}")
    if cfg.sa:
        A(f"s_add_u32 s{sT3}, s{sWV}, 1")
        A(f"v_and_b32 v{vT+5}, 7, v1")
        A(f"v_mul_u32_u24 v{vT+5}, 9216, v{vT+5}")
        A(f"v_lshrrev_b32 v{vT+6}, 3, v1")
        A(f"v_min_u32 v{vT+6}, 2, v{vT+6}")
        A(f"v_lshl_add_u32 v{vT+5}, v{vT+6}, 7, v{vT+5}")
        A(f"s_lshl_b32 s{sT1}, s{sT3}, 3")
        A(f"s_add_u32 s{sT1}, s{sT1}, s{sMT}")
        A(f"s_mul_i32 s{sT1}, s{sT1}, {8*9216}")
        A(f"s_add_u32 s{sT1}, s{sT1}, s60")
        A(f"s_mul_i32 s{sT2}, s{sI}, 22")
        A(f"v_min_u32 v{vT+6}, 21, v1")
        A(f"v_add_u32 v{vT+6}, s{sT2}, v{vT+6}")
        A(f"v_min_u32 v{vT+6}, 63, v{vT+6}")
        A(f"v_mul_u32_u24 v{vT+6}, 1152, v{vT+6}")
        A(f"s_mul_i32 s{sT2}, s{sMT}, {64*1152}")
        A(f"s_lshl_b32 s{sT3}, s{sT3}, 7")
        A(f"s_add_u32 s{sT2}, s{sT2}, s{sT3}")
    A("s_waitcnt lgkmcnt(0)")
    srd(SRD0, sB1, 9216)
    for l in range(3):
        for g in range(4):
            r = vXB + 2 * (4 * l + g)
            A(f"buffer_load_dwordx2 v[{r}:{r+1}], v{vT+4}, s[{SRD0}:{SRD0+3}], s61 offen offset:{128*l+16*g}")
    if cfg.sa:
        srd(SRD1, sW1, 5308416)
        srd(SRD2, sX, 589824)
        A(f"s_cmp_ge_u32 s{sWV}, {cfg.sa}")
        A("s_cbranch_scc1 L_tdone")
        A(f"buffer_load_dword v255, v{vT+5}, s[{SRD1}:{SRD1+3}], s{sT1} offen {cfg.tfl}")
        A(f"buffer_load_dword v255, v{vT+6}, s[{SRD2}:{SRD2+3}], s{sT2} offen")
        A.label("L_tdone")
    epoch_load(sMT)
    A.tail("c")
    srd(SRD2, sB2, 1152)
    A(f"v_and_b32 v{vT+1}, 3, v1")
    A(f"v_lshlrev_b32 v{vT+1}, 2, v{vT+1}")
    A(f"v_lshl_add_u32 v{vT+1}, v{vT}, 4, v{vT+1}")
    A(f"s_mul_i32 s{sT1}, s{sI}, 384")
    A(f"s_lshl_b32 s{sT0}, s{sWV}, 5")
    A(f"s_add_u32 s{sT1}, s{sT1}, s{sT0}")
    A(f"buffer_load_dword v249, v{vT+1}, s[{SRD2}:{SRD2+3}], s{sT1} offen offset:256")
    srd(SRD1, sWS, 0x10000000)
    A(f"v_bfe_u32 v{vT+1}, v1, 2, 2")
    A(f"v_lshl_add_u32 v{vT+2}, v{vT}, 2, v{vT+1}")
    A(f"v_lshlrev_b32 v{vT+2}, 7, v{vT+2}")
    A(f"v_bfe_u32 v{vT+3}, v1, 3, 1")
    A(f"v_xor_b32 v{vT+3}, s{sBq}, v{vT+3}")
    A(f"v_lshl_add_u32 v{vT+2}, v{vT+3}, 6, v{vT+2}")
    A(f"v_bfe_u32 v{vT+3}, v1, 4, 1")
    A(f"v_lshl_add_u32 v{vT+2}, v{vT+3}, 5, v{vT+2}")
    A(f"v_and_b32 v{vT+3}, 3, v1")
    A(f"v_lshl_add_u32 v{vA[0]}, v{vT+3}, 3, v{vT+2}")
    A(f"v_add_u32 v{vA[1]}, 0x10000, v{vA[0]}")
    A(f"v_add_u32 v{vA[2]}, 0x20000, v{vA[0]}")
    A(f"v_and_b32 v{vT+1}, 31, v1")
    A(f"v_bfe_u32 v{vT+2}, v1, 1, 3")
    A(f"v_xor_b32 v{vT+2}, v{vT}, v{vT+2}")
    A(f"v_lshlrev_b32 v{vT+2}, 4, v{vT+2}")
    A(f"v_lshl_add_u32 v{vT+2}, v{vT+1}, 7, v{vT+2}")
    A(f"s_lshl_b32 s{sT0}, s{sA}, 12")
    A(f"s_add_u32 s{sT1}, s{sT0}, 0x20000")
    A(f"v_add_u32 v{vBX[0]}, s{sT1}, v{vT+2}")
    for sp in range(1, 4):
        A(f"v_xor_b32 v{vBX[sp]}, {32*sp}, v{vBX[0]}")
    A(f"v_lshl_add_u32 v{vBH[0]}, v1, 4, s{sT0}")
    A(f"v_add_u32 v{vBH[1]}, 0x10000, v{vBH[0]}")
    A(f"v_add_u32 v{vBH[2]}, 0x20000, v{vBH[0]}")
    A(f"s_lshl_b32 s{sT1}, s{sBq}, 11")
    for k in range(3):
        A(f"v_add_u32 v{vHW[k]}, s{sT1}, v{vBH[k]}")
    sI0 = 38
    sMS, sML, sMC = 39, 63, 59
    sHS = [60, 61, 62]
    A(f"s_mul_i32 s{sI0}, s{sA}, 96")
    A(f"s_add_u32 s{sI0}, s{sI0}, s{sR}")
    A(f"s_lshl_b32 s{sI0}, s{sI0}, 3")
    A(f"s_add_u32 s{sI0}, s{sI0}, s{sJ}")
    A(f"s_mul_i32 s{sI0}, s{sI0}, 3072")
    A(f"s_add_u32 s{sI0}, s{sI0}, {WS_IN}")
    A(f"s_lshl_b32 s{sT1}, s{sBq}, 9")
    A(f"s_add_u32 s{sI0}, s{sI0}, s{sT1}")
    A(f"v_bfe_u32 v{vT+1}, v1, 3, 2")
    A(f"v_mul_u32_u24 v{vT+1}, {24*8*3072}, v{vT+1}")
    A(f"v_and_b32 v{vT+2}, 7, v1")
    A(f"v_lshl_add_u32 v{vT+1}, v{vT+2}, 4, v{vT+1}")
    A(f"v_lshl_add_u32 v{vL16}, v{vT}, 7, v{vT+1}")
    A(f"s_mov_b32 s{sMS}, 0x80008000")
    A(f"s_mov_b32 s{sML}, 0x00010001")
    A(f"s_mov_b32 s{sMC}, 0x7fff7fff")
    A(f"s_mul_i32 s{sHS[0]}, s{sWK}, 24576")
    if WS_H:
        A(f"s_add_u32 s{sHS[0]}, s{sHS[0]}, {WS_H}")
    A(f"s_add_u32 s{sHS[1]}, s{sHS[0]}, 8192")
    A(f"s_add_u32 s{sHS[2]}, s{sHS[0]}, 16384")
    epoch_fin()
    slot_add(sI0, *sHS)
    tag_regs(vTG, vT + 1)
    assert not cfg.sa
    A("s_waitcnt vmcnt(1)")
    if cfg.sa:
        A(f"s_cmp_lt_u32 s{sWV}, {cfg.sa}")
        A("s_cbranch_scc1 L_bw")
        A("s_waitcnt vmcnt(0)")
        A.label("L_bw")
    for l in range(3):
        for g in range(4):
            r = vXB + 2 * (4 * l + g)
            d = vACC + 16 * l + 4 * g
            A(f"v_lshlrev_b32 v{d}, 16, v{r}")
            A(f"v_and_b32 v{d+1}, 0xffff0000, v{r}")
            A(f"v_lshlrev_b32 v{d+2}, 16, v{r+1}")
            A(f"v_and_b32 v{d+3}, 0xffff0000, v{r+1}")
    stamp()

    items = []
    for st in stages:
        bykb = {}
        for u in st["units"]:
            bykb.setdefault(u[2], []).append(u)
        for kb, us in bykb.items():
            if st["q"] == n_g1 - 1 and cfg.tm:
                seq = [int(c) for c in cfg.tm]
                nsp = {0: 0, 1: 0, 2: 0}
                for t_ in seq:
                    (t, wb, _kb, fst) = [u for u in us if u[0] == t_][0]
                    items.append(dict(q=st["q"], tile=t, wb=wb, kb=kb, sp=nsp[t], first=False))
                    nsp[t] += 1
                assert all(v == 4 for v in nsp.values())
                continue
            for sp in range(4):
                for (t, wb, _kb, fst) in us:
                    items.append(dict(q=st["q"], tile=t, wb=wb, kb=kb, sp=sp, first=(fst and sp == 0)))
    NI = len(items)
    aux_used = set()
    if cfg.dual:
        own_end = max(n for n, it in enumerate(items) if it["q"] >= n_g1 and it["kb"] < 3)
        assert all(kbidx[(0, l)] < 3 for l in range(3))
        for n, it in enumerate(items):
            if n > own_end + 1 and items[n - 1]["tile"] == it["tile"]:
                it["first"] = it["tile"] not in aux_used
                aux_used.add(it["tile"])
                it["tile"] += 3

    def accbase(t):
        return vACC + 16 * t if t < 3 else vXB + 16 * (t - 3)
    last_item = {}
    for n, it in enumerate(items):
        last_item[it["q"]] = n
    bread_of = {(st["q"], kb): bb for st in stages for (bb, kb) in st["breads"]}
    lg = []

    def ds_issue(instr, tag):
        cap = 14 if TS else 15
        if len(lg) >= cap:
            A(f"s_waitcnt lgkmcnt({cap-2})")
            del lg[:len(lg) - (cap - 2)]
        A(instr)
        lg.append(tag)

    def ds_need(tags):
        idx = max([i for i, t in enumerate(lg) if t in tags], default=-1)
        if idx >= 0:
            A(f"s_waitcnt lgkmcnt({len(lg) - 1 - idx})")
            del lg[:idx + 1]

    checked = [-1]
    bdone = set()
    dirty, clean_pos = {}, {}

    def clean(m):
        key = (items[m]["kb"], items[m]["sp"])
        if key in dirty and dirty[key] == m:
            del dirty[key]
            ds_need({("B",) + key})
            r = vXB + 16 * key[0] + 4 * key[1]
            for k in range(4):
                A(f"v_and_b32 v{r+k}, s{sMC}, v{r+k}")
            clean_pos[m] = len(A.L) - 1

    def issue_reads(n):
        it = items[n]
        q = it["q"]
        if q > checked[0]:
            ds_need({"hw"})
            A("s_barrier")
            checked[0] = q
            if q in cfg.tsq:
                stamp()
        key = (q, it["kb"])
        if key in bread_of and (key, it["sp"]) not in bdone:
            bdone.add((key, it["sp"]))
            bb = blocks[bread_of[key]]
            addr = bb["slot"] * 8192
            r = vXB + 16 * it["kb"] + 4 * it["sp"]
            if bb["kind"] == "X":
                assert addr >> 16 == 2
                ds_issue(f"ds_read_b128 v[{r}:{r+3}], v{vBX[it['sp']]} offset:{addr & 0xffff}", ("B", it["kb"], it["sp"]))
            else:
                ds_issue(f"ds_read_b128 v[{r}:{r+3}], v{vBH[addr >> 16]} offset:{(addr & 0xffff) + 1024*it['sp']}",
                         ("B", it["kb"], it["sp"]))
                if bb["kind"] != "Hown":
                    if not cfg.hlsb:
                        dirty[(it["kb"], it["sp"])] = n
        wb = blocks[it["wb"]]
        addr = wb["slot"] * 8192 + 2048 * it["sp"]
        r = vAB + 4 * (n % nAB)
        ds_issue(f"ds_read_b64_tr_b16 v[{r}:{r+1}], v{vA[addr >> 16]} offset:{addr & 0xffff}", ("A", n))
        ds_issue(f"ds_read_b64_tr_b16 v[{r+2}:{r+3}], v{vA[addr >> 16]} offset:{(addr & 0xffff) + 1024}", ("A", n))

    post = []

    def epi1_instrs(pi, lines):
        out, late = [], []
        for l in lines:
            a = vACC + 16 * l
            addr = blocks[f"H0_{l}"]["slot"] * 8192
            for half in range(2):
                base = a + 8 * half
                if cfg.epi == 1:
                    assert cfg.hlsb
                    for k in range(8):
                        out.append(("v", f"v_mul_f32 v{base+k}, v{base+k}, |v{base+k}|"))
                    for k in range(4):
                        out.append(("v", f"v_cvt_pk_bf16_f32 v{base+k}, v{base+2*k}, v{base+2*k+1}"))
                    for k in range(4):
                        out.append(("v", f"v_pk_max_i16 v{base+k}, v{base+k}, 0"))
                else:
                    for k in range(8):
                        out.append(("v", f"v_max_f32 v{base+k}, 0, v{base+k}"))
                    for k in range(0, 8, 2):
                        out.append(("v", f"v_pk_mul_f32 v[{base+k}:{base+k+1}], v[{base+k}:{base+k+1}], v[{base+k}:{base+k+1}]"))
                    for k in range(4):
                        out.append(("v", f"v_cvt_pk_bf16_f32 v{base+k}, v{base+2*k}, v{base+2*k+1}"))
                for k in range(4):
                    out.append(("v", f"v_bfi_b32 v{base+4+k}, s{sML}, v{vTG+k}, v{base+k}" if cfg.hlsb else
                                f"v_and_or_b32 v{base+4+k}, v{vTG+k}, s{sMS}, v{base+k}"))
                out.append(("v", f"buffer_store_dwordx4 v[{base+4}:{base+7}], v{vHW[0]}, s[{SRD1}:{SRD1+3}], s{sHS[l]} offen offset:{1024*half} {cfg.hsf}"))
                out.append(("w", f"ds_write_b128 v{vHW[addr >> 16]}, v[{base}:{base+3}] offset:{(addr & 0xffff) + 1024*half}"))
                t = ("v", f"buffer_load_dword v255, v{vHW[0]}, s[{SRD1}:{SRD1+3}], s{sHS[l]} offen offset:{1024*half} {cfg.stf}")
                if cfg.stouch == 1:
                    out.append(t)
                elif cfg.stouch == 2:
                    late.append(t)
                elif cfg.stouch == 3:
                    post.append(t)
        return out + late

    def epi2_instrs(lines):
        out = []
        for l in lines:
            for u in range(2):
                base = vACC + 8 * (2 * l + u)
                if l in aux_used:
                    ab = accbase(l + 3) + 8 * u
                    for k in range(0, 8, 2):
                        out.append(("v", f"v_pk_add_f32 v[{base+k}:{base+k+1}], v[{base+k}:{base+k+1}], v[{ab+k}:{ab+k+1}]"))
                for k in range(4):
                    out.append(("v", f"v_cvt_pk_bf16_f32 v{base+k}, v{base+2*k}, v{base+2*k+1}"))
                out.append(("v", "s_nop 1"))
                out.append(("v", f"v_permlane32_swap_b32 v{base}, v{base+2}"))
                out.append(("v", f"v_permlane32_swap_b32 v{base+1}, v{base+3}"))
                for k in (0, 2, 1, 3):
                    out.append(("v", f"v_bfi_b32 v{base+k}, s{sML}, v{vTG+k}, v{base+k}"))
                out.append(("v", f"buffer_store_dwordx4 v[{base}:{base+3}], v{vL16}, s[{SRD1}:{SRD1+3}], s{sI0} offen offset:{1024*l+256*u} {cfg.psf}"))
        return out

    fillers = []
    fill_start = 0
    fill_tiles = set()
    mfma_pos = {}
    fill_fresh = [False]

    def states_since(pos):
        c = 0
        for ln in A.L[pos + 1:]:
            t = ln.strip()
            if t.endswith(":") or t.startswith(";") or t.startswith("@@"):
                continue
            c += int(t.split()[1]) + 1 if t.startswith("s_nop") else 1
        return c

    late_w = []

    def emit(kind, t):
        if kind == "mark":
            have = min(states_since(mfma_pos[tl]) for tl in t[0])
            if have < 12:
                A(f"s_nop {12 - have - 1}")
        elif kind == "w":
            ds_issue(t, "hw")
        else:
            A(t)

    def flush_fillers():
        nonlocal fillers
        for (kind, t) in fillers + late_w:
            emit(kind, t)
        fillers = []
        late_w.clear()
        fill_tiles.clear()

    trig = {}
    for l in range(3):
        trig[max(n for n, it in enumerate(items) if it["q"] < n_g1 and it["tile"] == l)] = (1, l)
        trig[max(n for n, it in enumerate(items) if it["q"] >= n_g1 and it["tile"] % 3 == l)] = (2, l)

    nread = 0
    for n in range(NI):
        it = items[n]
        lim = min(NI - 1, n + D)
        while nread <= lim:
            nx = items[nread]
            if nx["q"] > checked[0]:
                due = [l for l, v in hown_vis.items() if v == nx["q"]]
                if due:
                    if last_item[hown_w[due[0]]] >= n:
                        break
                    flush_fillers()
            key = (nx["q"], nx["kb"])
            if key in bread_of and (key, nx["sp"]) not in bdone:
                if any(items[m]["kb"] == nx["kb"] and items[m]["sp"] == nx["sp"] for m in range(n, nread)):
                    break
            issue_reads(nread)
            nread += 1
        assert nread > n
        if it["tile"] in fill_tiles:
            flush_fillers()
            A("s_nop 1")
        clean(n)
        ds_need({("A", n), ("B", it["kb"], it["sp"])})
        if it["first"]:
            ds_need({"hw"})
        if n in clean_pos and states_since(clean_pos[n]) < 2:
            A(f"s_nop {1 - states_since(clean_pos[n])}")
        ra = vAB + 4 * (n % nAB)
        rb = vXB + 16 * it["kb"] + 4 * it["sp"]
        acc = accbase(it["tile"])
        c = "0" if it["first"] else f"v[{acc}:{acc+15}]"
        A(f"v_mfma_f32_32x32x16_bf16 v[{acc}:{acc+15}], v[{ra}:{ra+3}], v[{rb}:{rb+3}], {c}")
        mfma_pos[it["tile"]] = len(A.L) - 1
        if n + 1 < nread:
            clean(n + 1)
        k = 0
        while fillers and k < (cfg.fill1 if it["q"] < n_g1 else cfg.fill):
            if fillers[0][0] == "mark" and n < fillers[0][1][1]:
                break
            kind, t = fillers.pop(0)
            emit(kind, t)
            k += kind != "mark"
        if not fillers and not late_w:
            fill_tiles.clear()
        if n == last_item[it["q"]] and (it["q"] in epi_after or it["q"] in epi2_after):
            stamp()
        if n in trig:
            g, l = trig[n]
            tl = [l] + ([l + 3] if (g == 2 and l in aux_used) else [])
            new = epi1_instrs(0, [l]) if g == 1 else epi2_instrs([l])
            if cfg.wlast:
                late_w.extend(x for x in new if x[0] == "w")
                new = [x for x in new if x[0] != "w"]
            fillers += [("mark", (tl, n + cfg.fdel))] + new
            fill_tiles.update(tl)
    flush_fillers()
    stamp()
    if cfg.rnb >= 1 and not cfg.rlate:
        A("s_barrier")
    reduce_code(1, 0)
    if TS:
        A("s_waitcnt vmcnt(0)")
        A("s_memrealtime s[98:99]")
        A("s_waitcnt lgkmcnt(0)")
        assert tsn[0] <= 14, tsn[0]
        A(f"s_mov_b32 s{sTS+28}, s98"); A(f"s_mov_b32 s{sTS+30}, s{sCNT}")
        tsn[0] = 16
        stamp_flush()
    if cfg.enc and cfg.encw < 4:
        A("s_branch L_noep")
    A("s_branch L_end")

    A.head("hl")
    A.label("L_helper")
    sG = 38
    A(f"s_lshl_b32 s{sG}, s{sWV}, 3")
    A(f"s_add_u32 s{sG}, s{sG}, s{sR}")
    A("v_mul_u32_u24 v8, 9216, v1")
    A("v_mul_u32_u24 v9, 1152, v1")
    A(f"s_mul_i32 s39, s{sJ}, 1152")
    A("s_waitcnt lgkmcnt(0)")
    NWT = 64

    def sdiv(dst, src, d):
        A(f"s_mul_i32 s{dst}, s{src}, {(65536 + d - 1) // d}")
        A(f"s_lshr_b32 s{dst}, s{dst}, 16")

    w2base = 0
    if cfg.touch and any(ROT):
        srd(SRD0, sW1, 5308416)
        srd(SRD1, sX, 589824)
        need = {kk: min((kk - r) % 9 for r in ROT) for kk in range(9)}
        kks = sorted([kk for kk in range(9) if need[kk] >= cfg.skipw], key=lambda kk: need[kk])
        KT = sum(kk << (4 * u) for u, kk in enumerate(kks))
        nW = 9 * len(kks)
        x0 = cfg.skipx
        nX = 8 * (9 - x0)
        tot = nW + nX
        for rnd in range((tot + NWT - 1) // NWT):
            if rnd == 1:
                A.tail("hl")
            k = A.uid()
            A(f"s_add_u32 s{sT0}, s{sG}, {NWT*rnd}")
            if NWT * rnd < nW:
                if NWT * rnd + NWT > nW:
                    A(f"s_cmp_ge_u32 s{sT0}, {nW}")
                    A(f"s_cbranch_scc1 L_hx{k}")
                sdiv(sT1, sT0, 9)
                A(f"s_mul_i32 s{sT2}, s{sT1}, 9")
                A(f"s_sub_u32 s{sT2}, s{sT0}, s{sT2}")
                A(f"s_lshl_b32 s{sT1}, s{sT1}, 2")
                A(f"s_lshr_b32 s{sT1}, {KT}, s{sT1}")
                A(f"s_and_b32 s{sT1}, s{sT1}, 15")
                A(f"s_mul_i32 s{sT1}, s{sT1}, {64*9216}")
                A(f"s_lshl_b32 s{sT2}, s{sT2}, 7")
                A(f"s_add_u32 s{sT1}, s{sT1}, s{sT2}")
                A(f"s_add_u32 s{sT1}, s{sT1}, s39")
                A(f"buffer_load_dword v255, v8, s[{SRD0}:{SRD0+3}], s{sT1} offen {cfg.tfl}")
                if NWT * rnd + NWT > nW:
                    A(f"s_branch L_ht{k}")
            if NWT * rnd + NWT > nW:
                A.label(f"L_hx{k}")
                if NWT * rnd + NWT > tot:
                    A(f"s_cmp_ge_u32 s{sT0}, {tot}")
                    A(f"s_cbranch_scc1 L_ht{k}")
                A(f"s_sub_u32 s{sT0}, s{sT0}, {nW - 8*x0}")
                A(f"s_and_b32 s{sT2}, s{sT0}, 7")
                A(f"s_lshr_b32 s{sT1}, s{sT0}, 3")
                A(f"s_lshl_b32 s{sT3}, s{sT2}, 2")
                A(f"s_lshr_b32 s{sT3}, {ROTTAB}, s{sT3}")
                A(f"s_and_b32 s{sT3}, s{sT3}, 15")
                A(f"s_add_u32 s{sT1}, s{sT1}, s{sT3}")
                A(f"s_cmp_ge_u32 s{sT1}, 9")
                A(f"s_cselect_b32 s{sT3}, 9, 0")
                A(f"s_sub_u32 s{sT1}, s{sT1}, s{sT3}")
                A(f"s_mul_i32 s{sT2}, s{sT2}, {64*1152}")
                A(f"s_lshl_b32 s{sT1}, s{sT1}, 7")
                A(f"s_add_u32 s{sT1}, s{sT1}, s{sT2}")
                A(f"buffer_load_dword v255, v9, s[{SRD1}:{SRD1+3}], s{sT1} offen")
            A.label(f"L_ht{k}")
        w2base = (NWT - tot % NWT) % NWT
    elif cfg.touch:
        srd(SRD0, sW1, 5308416)
        srd(SRD1, sX, 589824)
        phases, base = [], 0
        for pi, ls in enumerate(passes):
            t0 = cfg.ht0 if pi == 0 else 0
            c = 3 * len(ls) + (8 if pi == 0 else 0)
            phases.append((base, (9 - t0 - cfg.tn) * c, t0, c, ls))
            base += (9 - t0 - cfg.tn) * c
        w2base = (NWT - base % NWT) % NWT if cfg.w2rot else 0
        for rnd in range((base + NWT - 1) // NWT):
            if rnd == 1:
                A.tail("hl")
            k = A.uid()
            A(f"s_add_u32 s{sT0}, s{sG}, {NWT*rnd}")
            for (pb, cnt, t0, c, ls) in phases:
                if pb + cnt <= NWT * rnd or pb >= NWT * rnd + NWT:
                    continue
                k2 = A.uid()
                A(f"s_cmp_ge_u32 s{sT0}, {pb+cnt}")
                A(f"s_cbranch_scc1 L_hp{k2}")
                if pb:
                    A(f"s_sub_u32 s{sT0}, s{sT0}, {pb}")
                sdiv(sT1, sT0, c)
                A(f"s_mul_i32 s{sT2}, s{sT1}, {c}")
                A(f"s_sub_u32 s{sT2}, s{sT0}, s{sT2}")
                if t0:
                    A(f"s_add_u32 s{sT1}, s{sT1}, {t0}")
                if cfg.tn:
                    A(f"s_cmp_ge_u32 s{sT1}, {cfg.ta}")
                    A(f"s_cselect_b32 s{sT3}, {cfg.tn}, 0")
                    A(f"s_add_u32 s{sT1}, s{sT1}, s{sT3}")
                nw = 3 * len(ls)
                if c > nw:
                    A(f"s_cmp_ge_u32 s{sT2}, {nw}")
                    A(f"s_cbranch_scc1 L_hx{k2}")
                if len(ls) != 3:
                    if len(ls) == 1:
                        A(f"s_mul_i32 s{sT2}, s{sT2}, 3")
                    else:
                        A(f"s_lshr_b32 s{sT3}, s{sT2}, 1")
                        A(f"s_add_u32 s{sT2}, s{sT2}, s{sT3}")
                    if ls[0]:
                        A(f"s_add_u32 s{sT2}, s{sT2}, {ls[0]}")
                A(f"s_mul_i32 s{sT1}, s{sT1}, {64*9216}")
                A(f"s_lshl_b32 s{sT2}, s{sT2}, 7")
                A(f"s_add_u32 s{sT1}, s{sT1}, s{sT2}")
                A(f"s_add_u32 s{sT1}, s{sT1}, s39")
                A(f"buffer_load_dword v255, v8, s[{SRD0}:{SRD0+3}], s{sT1} offen {cfg.tfl}")
                A(f"s_branch L_ht{k}")
                if c > nw:
                    A.label(f"L_hx{k2}")
                    A(f"s_sub_u32 s{sT2}, s{sT2}, {nw}")
                    A(f"s_mul_i32 s{sT2}, s{sT2}, {64*1152}")
                    A(f"s_lshl_b32 s{sT1}, s{sT1}, 7")
                    A(f"s_add_u32 s{sT1}, s{sT1}, s{sT2}")
                    A(f"buffer_load_dword v255, v9, s[{SRD1}:{SRD1+3}], s{sT1} offen")
                    A(f"s_branch L_ht{k}")
                A.label(f"L_hp{k2}")
            A.label(f"L_ht{k}")
    def h_pretouch():
        srd(SRD1, sWS, 0x10000000)
        A("v_lshlrev_b32 v10, 7, v1")
        A(f"s_mul_i32 s{sT1}, s{sJ}, 589824")
        A(f"s_add_u32 s{sT1}, s{sT1}, {WS_IN if cfg.hpin else WS_H}")
        for rnd in range(2):
            k = A.uid()
            A(f"s_add_u32 s{sT0}, s{sG}, {NWT*rnd}")
            A(f"s_cmp_ge_u32 s{sT0}, 72")
            A(f"s_cbranch_scc1 L_ht{k}")
            A(f"s_lshl_b32 s{sT0}, s{sT0}, 13")
            A(f"s_add_u32 s{sT0}, s{sT0}, s{sT1}")
            A(f"buffer_load_dword v255, v10, s[{SRD1}:{SRD1+3}], s{sT0} offen {cfg.hpf}")
            A.label(f"L_ht{k}")
    if cfg.hpre == 1:
        h_pretouch()
    if cfg.touch:
        srd(SRD0, sW2, 5308416)
        A(f"s_mul_i32 s39, s{sJ}, 663552")
        korder = sorted(kbidx, key=lambda x: kbidx[x])
        tabD = sum(d << (2 * u) for u, (d, lk) in enumerate(korder))
        tabL = sum(lk << (2 * u) for u, (d, lk) in enumerate(korder))
        if w2base:
            A(f"s_add_u32 s{sG}, s{sG}, {w2base}")
            A(f"s_and_b32 s{sG}, s{sG}, 63")
        for rnd in range(2):
            k = A.uid()
            A(f"s_add_u32 s{sT0}, s{sG}, {NWT*rnd}")
            A(f"s_cmp_ge_u32 s{sT0}, 81")
            A(f"s_cbranch_scc1 L_ht{k}")
            sdiv(sT1, sT0, 9)
            A(f"s_mul_i32 s{sT2}, s{sT1}, 9")
            A(f"s_sub_u32 s{sT2}, s{sT0}, s{sT2}")
            sdiv(sT3, sT2, 3)
            A(f"s_lshl_b32 s{sT1}, s{sT1}, 1")
            A(f"s_lshr_b32 s{sT0}, {tabD}, s{sT1}")
            A(f"s_and_b32 s{sT0}, s{sT0}, 3")
            A(f"s_add_u32 s{sT0}, s{sT0}, s{sT3}")
            A(f"s_cmp_ge_u32 s{sT0}, 3")
            A(f"s_cselect_b32 s{sT3}, 3, 0")
            A(f"s_sub_u32 s{sT0}, s{sT0}, s{sT3}")
            A(f"s_lshr_b32 s{sT3}, {tabL}, s{sT1}")
            A(f"s_and_b32 s{sT3}, s{sT3}, 3")
            A(f"s_mul_i32 s{sT0}, s{sT0}, {192*1152}")
            A(f"s_mul_i32 s{sT3}, s{sT3}, {64*1152}")
            A(f"s_add_u32 s{sT0}, s{sT0}, s{sT3}")
            A(f"s_lshl_b32 s{sT2}, s{sT2}, 7")
            A(f"s_add_u32 s{sT0}, s{sT0}, s{sT2}")
            A(f"s_add_u32 s{sT0}, s{sT0}, s39")
            A(f"buffer_load_dword v255, v9, s[{SRD0}:{SRD0+3}], s{sT0} offen {cfg.tfl}")
            A.label(f"L_ht{k}")
    if cfg.hpre == 2:
        h_pretouch()
    if TS:
        tsn[0] = 1
        A("s_waitcnt vmcnt(0)")
        stamp()
        stamp()
        stamp_flush()
    A("s_branch L_end")
    A.tail("end")
    A.label("L_end")

    hdr = f"""; Fused MLP (x@w1+b1 -> relu^2 -> @w2+b2), generated by a python script (work/gen4.py)
; @launch grid=(256,1,1) block=(512,1,1) lds=163840
.amdgcn_target "amdgcn-amd-amdhsa--gfx950"
.text
.globl {KN}
.p2align 8
.type {KN},@function
{KN}:
"""
    ftr = f"""
    s_endpgm
.section .rodata,"a"
.p2align 6
.amdhsa_kernel {KN}
  .amdhsa_next_free_vgpr 256
  .amdhsa_next_free_sgpr 102
  .amdhsa_accum_offset 256
  .amdhsa_group_segment_fixed_size 0
  .amdhsa_kernarg_size 64
  .amdhsa_user_sgpr_count 2
  .amdhsa_user_sgpr_kernarg_segment_ptr 1
  .amdhsa_system_sgpr_workgroup_id_x 1
.end_amdhsa_kernel
"""
    return hdr + A.text(cfg.horder.split(","), cfg.torder.split(",") + ["end"]) + ftr


def parse_g2(s):
    out = []
    for stg in s.split(","):
        us = []
        for u in stg.split("+"):
            a, b = u.split(":")
            us.append((int(a[0]), int(a[1]), [int(c) for c in b]))
        out.append(us)
    return out


def ilist(s):
    return [int(x) for x in s.split(",")] if s else []


def main():
    ap = argparse.ArgumentParser()
    ap.add_argument("-o", default="k8.s")
    ap.add_argument("--ts", action="store_true")
    ap.add_argument("--passes", default="012")
    ap.add_argument("--depth", type=int, default=5)
    ap.add_argument("--fill", type=int, default=4)
    ap.add_argument("--grp1", type=int, default=3)
    ap.add_argument("--hres", type=float, default=2.5)
    ap.add_argument("--hearly", type=float, default=1.5)
    ap.add_argument("--hdel", type=int, default=1)
    ap.add_argument("--xfree", type=int, default=11)
    ap.add_argument("--g2", default="00:012,01:012,02:012,10:012,20:012,11:012,21:012,12:012,22:012")
    ap.add_argument("--tsq", default="")
    ap.add_argument("--verbose", action="store_true")
    ap.add_argument("--ahead", type=int, default=8)
    ap.add_argument("--ahead0", type=int, default=8)
    ap.add_argument("--capfrom", type=int, default=8)
    ap.add_argument("--capw", type=int, default=4)
    ap.add_argument("--capx", type=int, default=3)
    ap.add_argument("--burst", default="")
    ap.add_argument("--pause", default="")
    ap.add_argument("--go2lead", type=int, default=3)
    ap.add_argument("--sa", type=int, default=0)
    ap.add_argument("--ctouch", type=int, default=1)
    ap.add_argument("--wfl", default="")
    ap.add_argument("--tfl", default="")
    ap.add_argument("--rfl", default="sc1")
    ap.add_argument("--rsleep", type=int, default=0)
    ap.add_argument("--touch", type=int, default=1)
    ap.add_argument("--clrq", type=int, default=-1)
    ap.add_argument("--cdq", type=int, default=9)
    ap.add_argument("--rbar", type=int, default=0)
    ap.add_argument("--hsf", default="sc1")
    ap.add_argument("--hlf", default="sc1")
    ap.add_argument("--ofl", default="")
    ap.add_argument("--hpre", type=int, default=0)
    ap.add_argument("--rot", default="00000000")
    ap.add_argument("--ts0", type=int, default=0)
    ap.add_argument("--hlsb", type=int, default=1)
    ap.add_argument("--dual", type=int, default=0)
    ap.add_argument("--encm", type=int, default=2)
    ap.add_argument("--slots", type=int, default=0)
    ap.add_argument("--rlate", type=int, default=0)
    ap.add_argument("--epi", type=int, default=0)
    ap.add_argument("--tm", default="")
    ap.add_argument("--wlast", type=int, default=0)
    ap.add_argument("--fdel", type=int, default=3)
    ap.add_argument("--fill1", type=int, default=5)
    ap.add_argument("--priow", type=int, default=0)
    ap.add_argument("--prioh", type=int, default=0)
    ap.add_argument("--r0early", type=int, default=0)
    ap.add_argument("--psf", default="sc1")
    ap.add_argument("--rw1", type=int, default=0)
    ap.add_argument("--ofl1", default="")
    ap.add_argument("--rpq", type=int, default=10)
    ap.add_argument("--rb2", type=int, default=1)
    ap.add_argument("--rb4", type=int, default=0)
    ap.add_argument("--rearly", type=int, default=0)
    ap.add_argument("--hpf", default="")
    ap.add_argument("--hpin", type=int, default=0)
    ap.add_argument("--wsb", type=lambda x: int(x, 0), default=0)
    ap.add_argument("--enc", default="")
    ap.add_argument("--encw", type=int, default=4)
    ap.add_argument("--hfree", type=int, default=2)
    ap.add_argument("--stouch", type=int, default=0)
    ap.add_argument("--stdel", type=int, default=1)
    ap.add_argument("--stf", default="")
    ap.add_argument("--ta", type=int, default=0)
    ap.add_argument("--tn", type=int, default=0)
    ap.add_argument("--tpos", type=int, default=0)
    ap.add_argument("--w2rot", type=int, default=1)
    ap.add_argument("--rfast", type=int, default=1)
    ap.add_argument("--wt", type=int, default=0)
    ap.add_argument("--horder", default="w,x,h2,hl,c")
    ap.add_argument("--ht0", type=int, default=1)
    ap.add_argument("--first", type=int, default=4)
    ap.add_argument("--torder", default="hl,w,x,h2,c,red")
    ap.add_argument("--skipw", type=int, default=1)
    ap.add_argument("--skipx", type=int, default=1)
    cfg = ap.parse_args()
    cfg.passes = [[int(c) for c in p] for p in cfg.passes.split(",")]
    cfg.g2 = parse_g2(cfg.g2)
    cfg.rnb = cfg.rb2
    cfg.tsq, cfg.burst, cfg.pause = ilist(cfg.tsq), ilist(cfg.burst), ilist(cfg.pause)
    open(cfg.o, "w").write(build(cfg))


main()
```

```python
import sys, argparse

KN = "standalone__dense_activation_squared_relu__sampling_kernel"

WS_H = 0x0
WS_IN = 0x1000000
WS_CD = 0x1840000
WS_EP = 0x1850000
WS_TS = 0x8000000
SPIN_MAX = 100000
SGNMASK = 0x6A9956A5


class Asm:
    def __init__(self):
        self.L = []
        self.n = 0

    def __call__(self, s):
        self.L.append("    " + s)

    def label(self, s):
        self.L.append(s + ":")

    def c(self, s):
        self.L.append("    ; " + s)

    def uid(self):
        self.n += 1
        return self.n

    def head(self, role):
        self.L.append(f"@@HEAD {role}")

    def tail(self, role):
        self.L.append(f"@@TAIL {role}")

    def text(self, horder, torder):
        pro, heads, tails, cur = [], {}, {}, None
        cur = pro
        for ln in self.L:
            if ln.startswith("@@HEAD"):
                cur = heads.setdefault(ln.split()[1], [])
            elif ln.startswith("@@TAIL"):
                r = ln.split()[1]
                if r in heads:
                    heads[r].append(f"    s_branch L_tail_{r}")
                cur = tails.setdefault(r, [f"L_tail_{r}:"])
            else:
                cur.append(ln)
        assert sorted(heads) == sorted(horder) and sorted(tails) == sorted(torder), (heads.keys(), tails.keys())
        out = pro
        for r in horder:
            out += heads[r]
        out.append("L_heads_end:")
        for r in torder:
            out += tails[r]
        return "\n".join(out)


def build(cfg):
    global WS_H, WS_IN, WS_EP
    WS_H = cfg.wsb
    WS_IN = cfg.wsb + 0x480000
    WS_EP = cfg.wsb + 0x900000 if not cfg.slots else 0x10000
    A = Asm()
    TS = cfg.ts
    passes = cfg.passes
    D = cfg.depth

    stages, blocks, order = [], {}, []

    def blk(name, **kw):
        blocks[name] = dict(name=name, **kw)
        return name

    def add_stage(units, breads):
        q = len(stages)
        stages.append(dict(units=units, breads=breads, q=q))
        for (bb, _kb) in breads:
            b = blocks[bb]
            b["need"] = b["last"] = q
            if b["kind"] != "Hown":
                order.append(bb)
        for (_t, wb, _kb, _first) in units:
            b = blocks[wb]
            if "need" not in b:
                b["need"] = q
                order.append(wb)
            b["last"] = q
        return q

    epi_after, pass_of_line = {}, {}
    for pi, lines in enumerate(passes):
        grp = 1 if (len(lines) > 1 or pi == 0) else cfg.grp1
        for t0 in range(0, 9, grp):
            units, breads = [], []
            for t in range(t0, t0 + grp):
                if pi == 0:
                    breads.append((blk(f"X{t}", kind="X", t=t), t))
                for l in lines:
                    units.append((l, blk(f"W{t}_{l}", kind="W1", t=t, l=l), t, False))
            q = add_stage(units, breads)
        epi_after[q] = (pi, list(lines))
        for l in lines:
            pass_of_line[l] = pi
    n_g1 = len(stages)
    kbidx = {}
    first = {0: True, 1: True, 2: True}
    cnt2 = {0: 0, 1: 0, 2: 0}
    epi2_after = {}
    for stg in cfg.g2:
        units, breads = [], []
        for (d, lk, lines) in stg:
            if (d, lk) not in kbidx:
                kbidx[(d, lk)] = len(kbidx)
                breads.append((blk(f"H{d}_{lk}", kind="Hown" if d == 0 else f"H{d}", d=d, lk=lk), kbidx[(d, lk)]))
            for l in lines:
                units.append((l, blk(f"V{d}_{lk}_{l}", kind="W2", d=d, lk=lk, l=l), kbidx[(d, lk)], first[l]))
                first[l] = False
                cnt2[l] += 1
        q = add_stage(units, breads)
        done = [l for l in range(3) if cnt2[l] == 9 and not any(l in v for v in epi2_after.values())]
        if done:
            epi2_after[q] = done
    assert all(v == 9 for v in cnt2.values())
    NQ = len(stages)
    hown_w = {l: q for q, (pi, lines) in epi_after.items() for l in lines}
    hown_vis = {l: (q + 1 if q == n_g1 - 1 else q + 2) for l, q in hown_w.items()}
    for l in hown_w:
        assert blocks[f"H0_{l}"]["need"] >= hown_vis[l]
    hfetch = {l: hown_vis[l] + cfg.hdel for l in hown_w}

    free_at = {s: -10 for s in range(20)}
    events = [(blocks[nm]["need"] - (cfg.hearly if blocks[nm]["kind"] in ("H1", "H2") else 0), 1, k, nm) for k, nm in enumerate(order)]
    for l, qw in hown_w.items():
        events.append((qw - cfg.hres, 0, l, f"H0_{l}"))
    events.sort()
    for ev in events:
        b = blocks[ev[3]]
        if b["kind"] == "X":
            cand = [16, 17, 18, 19]
        elif ev[0] < cfg.xfree:
            cand = list(range(0, 16))
        else:
            cand = list(range(0, 20))
        s = min(cand, key=lambda s: (free_at[s], s))
        b["slot"] = s
        b["free"] = free_at[s]
        if b["kind"] == "Hown":
            assert b["free"] + cfg.hfree <= hown_w[b["lk"]], b
        else:
            assert b["free"] + 2 < b["need"], b
        free_at[s] = b["last"]
    if cfg.verbose:
        print(" | ".join(f"{blocks[e[3]]['name']}:s{blocks[e[3]]['slot']} f{blocks[e[3]]['free']} n{blocks[e[3]]['need']}" for e in events), file=sys.stderr)
    for k, nm in enumerate(order):
        blocks[nm]["pos"] = k
    cum = [sum(1 for nm in order if blocks[nm]["need"] <= q) for q in range(NQ)]

    sX, sW1, sB1, sW2, sB2, sOUT, sDBG, sWS = 16, 18, 20, 22, 24, 26, 28, 30
    sJ, sR, sMT, sI, sWV, sWK = 32, 33, 34, 35, 36, 37
    SRD0, SRD1, SRD2 = 40, 44, 48
    sT0, sT1, sT2, sT3, sT4, sT5 = 52, 53, 54, 55, 56, 57
    sCNT = 58
    sTAG, sPB = 6, 8
    sTS = 64
    tsn = [0]

    def stamp():
        if TS:
            k = tsn[0]
            assert k < 16
            A(f"s_memtime s[{sTS+2*k}:{sTS+2*k+1}]")
            tsn[0] += 1

    def srd(d, p, nbytes):
        A(f"s_mov_b32 s{d}, s{p}")
        A(f"s_mov_b32 s{d+1}, s{p+1}")
        A(f"s_mov_b32 s{d+2}, {nbytes}")
        A(f"s_mov_b32 s{d+3}, 0x00020000")

    def stamp_flush():
        if not TS:
            return
        n = tsn[0]
        A("s_waitcnt lgkmcnt(0)")
        srd(SRD2, sWS, 0x10000000)
        A(f"s_lshl_b32 s{sT0}, s2, 9")
        A(f"s_lshl_b32 s{sT1}, s{sWV}, 6")
        A(f"s_add_u32 s{sT0}, s{sT0}, s{sT1}")
        A(f"s_add_u32 s{sT0}, s{sT0}, {WS_TS}")
        A(f"v_mov_b32 v2, s{sT0}")
        A("s_mov_b64 exec, 1")
        for k in range(n):
            A(f"v_mov_b32 v3, s{sTS+2*k}")
            A(f"buffer_store_dword v3, v2, s[{SRD2}:{SRD2+3}], 0 offen offset:{4*k}")
        A("s_mov_b64 exec, -1")

    def epoch_load(smt):
        A(f"s_lshl_b32 s{sT0}, s{smt}, 7")
        A(f"s_add_u32 s{sT0}, s{sT0}, {WS_EP}")
        A(f"s_load_dword s{sTAG}, s[{sWS}:{sWS+1}], s{sT0}")

    def epoch_fin():
        A("s_waitcnt lgkmcnt(0)")
        A(f"s_add_u32 s{sTAG}, s{sTAG}, 1")
        A(f"s_mul_i32 s{sTAG+1}, s{sTAG}, 0x02020202")
        A(f"s_and_b32 s{sTAG+1}, s{sTAG+1}, 0xeeeeeeee")
        A(f"s_or_b32 s{sTAG+1}, s{sTAG+1}, 0x10101010")
        if cfg.slots:
            A(f"s_and_b32 s14, s{sTAG}, {cfg.slots-1}")
            A(f"s_mul_i32 s14, s14, 0xa00000")

    def slot_add(*regs):
        if cfg.slots:
            for r in regs:
                A(f"s_add_u32 s{r}, s{r}, s14")

    def tag_regs(vd, vt):
        A(f"v_and_b32 v{vt}, 3, v1")
        A(f"v_lshlrev_b32 v{vt}, 3, v{vt}")
        A(f"v_lshrrev_b32 v{vt}, v{vt}, s{sTAG+1}")
        for k in range(4):
            A(f"v_bfe_u32 v{vd+k}, v{vt}, {2*k}, 2")
            A(f"v_mul_u32_u24 v{vd+k}, 0x8001, v{vd+k}")
            A(f"v_and_b32 v{vd+k}, 0x10001, v{vd+k}")
            A(f"v_lshl_or_b32 v{vd+k}, v{vd+k}, 15, v{vd+k}")

    def sign_reg(vd, vt):
        A(f"s_bitcmp1_b32 s{sTAG}, 0")
        A(f"s_cselect_b32 s{sT0}, -1, 0")
        A(f"s_xor_b32 s{sT0}, s{sT0}, {SGNMASK}")
        A(f"v_and_b32 v{vt}, 31, v1")
        A(f"v_lshrrev_b32 v{vt}, v{vt}, s{sT0}")
        A(f"v_bfe_i32 v{vt}, v{vt}, 0, 1")
        A(f"v_and_b32 v{vd}, 0x80008000, v{vt}")

    def sspin(loads, npairs, base):
        k = A.uid()
        A(f"s_mov_b32 s{sCNT}, 0")
        A.label(f"L_s{k}")
        for x in loads:
            A(x)
        A(f"s_add_u32 s{sCNT}, s{sCNT}, 1")
        A("s_waitcnt lgkmcnt(0)")
        A(f"s_cmp_gt_u32 s{sCNT}, {SPIN_MAX}")
        A(f"s_cbranch_scc1 L_sd{k}")
        for n in range(npairs):
            A(f"s_cmp_lg_u64 s[{base+2*n}:{base+2*n+1}], s[{sTAG}:{sTAG+1}]")
            A(f"s_cbranch_scc1 L_s{k}")
        A.label(f"L_sd{k}")

    def mod3add(dst, d, tmp):
        A(f"s_add_u32 s{dst}, s{sI}, {d}")
        A(f"s_cmp_ge_u32 s{dst}, 3")
        A(f"s_cselect_b32 s{tmp}, 3, 0")
        A(f"s_sub_u32 s{dst}, s{dst}, s{tmp}")

    A("s_cmp_ge_u32 s2, 256")
    A("s_cbranch_scc1 L_end")
    A("s_load_dwordx16 s[16:31], s[0:1], 0")
    if cfg.ctouch == 1:
        A("s_getpc_b64 s[4:5]")
        A.label("L_pc")
        A("v_lshlrev_b32 v2, 7, v0")
        A("v_min_u32 v2, L_end-L_pc, v2")
        A("v_and_b32 v2, 0xfffffffc, v2")
        A("global_load_dword v255, v2, s[4:5]")
    elif cfg.ctouch == 2:
        A("s_getpc_b64 s[4:5]")
        A.label("L_pc")
        A("s_lshr_b32 s3, s2, 3")
        A("s_lshl_b32 s3, s3, 11")
        A("v_lshrrev_b32 v2, 5, v0")
        A("v_lshl_add_u32 v2, v2, 7, s3")
        A("v_min_u32 v2, L_end-L_pc, v2")
        A("v_and_b32 v2, 0xfffffffc, v2")
        A("global_load_dword v255, v2, s[4:5]")
    if TS:
        A("s_memrealtime s[96:97]")
    if cfg.enc:
        A("s_memrealtime s[96:97]")
        if cfg.enc == "none":
            A("s_memrealtime s[94:95]")
        if cfg.encc:
            A("s_memtime s[92:93]")

    def enc(p):
        if cfg.enc == p:
            A("s_memrealtime s[94:95]" if not cfg.encc else "s_memtime s[94:95]")
    stamp()
    A("v_and_b32 v1, 63, v0")
    A("v_lshrrev_b32 v2, 6, v0")
    A(f"s_and_b32 s{sJ}, s2, 7")
    A(f"v_readfirstlane_b32 s{sWV}, v2")
    A(f"s_lshr_b32 s{sR}, s2, 3")
    A(f"s_cmp_lt_u32 s{sR}, 8")
    A("s_cbranch_scc1 L_helper")
    A(f"s_sub_u32 s{sR}, s{sR}, 8")
    A(f"s_mul_i32 s{sMT}, s{sR}, 21846")
    A(f"s_lshr_b32 s{sMT}, s{sMT}, 16")
    A(f"s_mul_i32 s{sT0}, s{sMT}, 3")
    A(f"s_sub_u32 s{sI}, s{sR}, s{sT0}")
    A(f"s_mul_i32 s{sWK}, s{sJ}, 24")
    A(f"s_add_u32 s{sWK}, s{sWK}, s{sR}")
    ROT = [int(c) for c in cfg.rot]
    ROTTAB = sum(r << (4 * m) for m, r in enumerate(ROT))
    sROT, sLO, sHI = 10, 11, 12
    if any(ROT):
        A(f"s_lshl_b32 s{sROT}, s{sMT}, 2")
        A(f"s_lshr_b32 s{sROT}, {ROTTAB}, s{sROT}")
        A(f"s_and_b32 s{sROT}, s{sROT}, 15")

    def rot_setup(sbase, stride):
        if any(ROT):
            A(f"s_mul_i32 s{sLO}, s{sROT}, {stride}")
            A(f"s_add_u32 s{sLO}, s{sLO}, s{sbase}")
            A(f"s_sub_u32 s{sHI}, s{sLO}, {9*stride}")

    def rot_addr(dst, sbase, t, stride, extra):
        if any(ROT):
            if t + max(ROT) < 9:
                A(f"s_add_u32 s{dst}, s{sLO}, {t*stride + extra}")
            else:
                A(f"s_cmp_lt_u32 s{sROT}, {9-t}")
                A(f"s_cselect_b32 s{dst}, s{sLO}, s{sHI}")
                A(f"s_add_u32 s{dst}, s{dst}, {t*stride + extra}")
        else:
            A(f"s_add_u32 s{dst}, s{sbase}, {t*stride + extra}")
    A(f"s_cmp_lt_u32 s{sWV}, 4")
    A("s_cbranch_scc1 L_compute")
    A(f"s_cmp_eq_u32 s{sWV}, 6")
    A("s_cbranch_scc1 L_xh")
    A(f"s_cmp_eq_u32 s{sWV}, 7")
    A("s_cbranch_scc1 L_h2")
    ts_base = tsn[0]

    def loader_stream(kinds, per_block, issue_fn, setup_fn, cap, group=False, validate=None, before_bar=None, role=None):
        mine = [blocks[nm] for nm in order if blocks[nm]["kind"] in kinds]
        outstanding, pend = [], list(mine)
        nb = lambda nm: blocks[nm]["n"] if blocks[nm]["kind"] == "extra" else (per_block(blocks[nm]) if callable(per_block) else per_block)
        cnt = lambda lst: sum(nb(x) for x in lst)

        def ok(b, q):
            if b["free"] + 2 > q:
                return False
            if b["kind"] in ("H1", "H2") and q < min(hfetch[b["lk"]], b["need"] - 1):
                return False
            return True

        def issue_upto(q, ahead, cap):
            n = 0
            lim = cum[q] + ahead if q >= 0 else ahead
            while pend and ok(pend[0], q):
                must = pend[0]["need"] <= q + 1 or pend[0]["pos"] < lim
                if not must and n >= cap:
                    break
                grp = [pend.pop(0)]
                while group and pend and ok(pend[0], q) and pend[0]["need"] == grp[0]["need"] and len(grp) < 3 \
                        and (pend[0]["pos"] < lim or n + len(grp) < cap or pend[0]["need"] <= q + 1):
                    grp.append(pend.pop(0))
                need_n = sum(nb(x["name"]) for x in grp)
                if cnt(outstanding) + need_n > 63:
                    while cnt(outstanding) + need_n > 63:
                        del outstanding[0]
                    A(f"s_waitcnt vmcnt({cnt(outstanding)})")
                issue_fn(grp if group else grp[0])
                if cfg.verbose:
                    print(f"   after B{q}: " + " ".join(x["name"] for x in grp), file=sys.stderr)
                outstanding.extend(x["name"] for x in grp)
                n += len(grp)

        issue_upto(-1, cfg.first, 0)
        if cfg.ts0:
            stamp()
        if role == "w":
            enc("iss")
        A.tail(role)
        pr = cfg.priow if role == "w" else cfg.prioh
        if pr:
            A(f"s_setprio {pr}")
        setup_fn()
        issue_upto(-1, cfg.ahead0, 0)
        for q in range(NQ):
            assert not any(b["need"] <= q for b in pend), (q, pend[0])
            def wait_for(b):
                if b["name"] in outstanding:
                    idx = max(i for i, nm in enumerate(outstanding) if blocks[nm]["need"] <= q) if validate is None \
                        else outstanding.index(b["name"])
                    del outstanding[:idx + 1]
                    A(f"s_waitcnt vmcnt({cnt(outstanding)})")
            hs = []
            for b in mine:
                if b["need"] == q:
                    if validate is not None and b["kind"] != "X":
                        hs.append(b)
                    else:
                        wait_for(b)
            if hs:
                validate(hs, wait_for)
            if before_bar is not None:
                ex = before_bar(q)
                if ex:
                    nm = f"extra{A.uid()}"
                    blocks[nm] = dict(name=nm, kind="extra", n=ex, need=99)
                    outstanding.append(nm)
            if q in cfg.tsq:
                stamp()
            A("s_barrier")
            if role == "w":
                enc(f"B{q}")
            if q in cfg.pause:
                issue_upto(q, 0, 0)
            else:
                issue_upto(q, cfg.ahead, 99 if q in cfg.burst else (cap if q >= cfg.capfrom else 0))
        assert not pend

    vRA, vRO, vRB, vRC, vRD, vRT, vRX, vRZ, vRG = 64, 65, 66, 72, 80, 112, 116, 117, 120
    sRI, sRO, sC = 60, 61, 13

    def vr(r, W):
        return f"v{r}" if W == 1 else f"v[{r}:{r+W-1}]"

    def dw(W):
        return "dword" if W == 1 else f"dwordx{W}"

    def red_pre(W):
        if W == 2:
            A(f"s_sub_u32 s{sC}, s{sWV}, 4")
            A(f"v_lshlrev_b32 v{vRA}, 3, v1")
            A(f"s_lshl_b32 s{sRO}, s{sC}, 6")
            A(f"s_lshl_b32 s{sRI}, s{sC}, 9")
            A(f"v_lshrrev_b32 v{vRT}, 4, v1")
            A(f"v_and_b32 v{vRT+1}, 1, v1")
            A(f"v_lshlrev_b32 v{vRT+1}, 3, v{vRT+1}")
            A(f"v_lshl_add_u32 v{vRT}, v{vRT}, 4, v{vRT+1}")
            A(f"v_bfe_u32 v{vRT+2}, v1, 1, 3")
            A(f"v_and_b32 v{vRT+3}, 7, v1")
            A(f"v_lshlrev_b32 v{vRT+3}, 2, v{vRT+3}")
        else:
            A(f"s_add_u32 s{sC}, s{sWV}, 8")
            A(f"v_lshlrev_b32 v{vRA}, 2, v1")
            A(f"s_lshl_b32 s{sRO}, s{sC}, 5")
            A(f"s_lshl_b32 s{sRI}, s{sC}, 8")
            A(f"v_lshrrev_b32 v{vRT}, 5, v1")
            A(f"v_and_b32 v{vRT+1}, 3, v1")
            A(f"v_lshlrev_b32 v{vRT+1}, 2, v{vRT+1}")
            A(f"v_lshl_add_u32 v{vRT}, v{vRT}, 4, v{vRT+1}")
            A(f"v_bfe_u32 v{vRT+2}, v1, 2, 3")
            A(f"v_and_b32 v{vRT+3}, 15, v1")
            A(f"v_lshlrev_b32 v{vRT+3}, 1, v{vRT+3}")
        A(f"s_mul_i32 s{sT1}, s{sI}, 384")
        A(f"s_add_u32 s{sRO}, s{sRO}, s{sT1}")
        if W == 2:
            srd(SRD2, sB2, 1152)
            A(f"buffer_load_{dw(W)} {vr(vRB, W)}, v{vRT}, s[{SRD2}:{SRD2+3}], s{sRO} offen")
        else:
            A(f"v_mov_b32 v{vRB}, v249")
        A(f"s_lshl_b32 s{sT1}, s{sJ}, 3")
        A(f"s_lshl_b32 s{sT3}, s{sMT}, 6")
        A(f"s_add_u32 s{sT1}, s{sT1}, s{sT3}")
        A(f"s_mul_i32 s{sT1}, s{sT1}, 1152")
        A(f"s_add_u32 s{sRO}, s{sRO}, s{sT1}")
        A(f"v_mul_u32_u24 v{vRT+2}, 1152, v{vRT+2}")
        A(f"v_add_u32 v{vRO}, v{vRT}, v{vRT+2}")
        A(f"s_mul_i32 s{sT1}, s{sWK}, {8*3072}")
        A(f"s_add_u32 s{sRI}, s{sRI}, s{sT1}")
        A(f"s_add_u32 s{sRI}, s{sRI}, {WS_IN}")
        slot_add(sRI)
        A(f"v_mov_b32 v{vRZ}, 0")
        A(f"v_lshrrev_b32 v{vRT+3}, v{vRT+3}, s{sTAG+1}")
        for k in range(W):
            A(f"v_bfe_u32 v{vRG+k}, v{vRT+3}, {2*k}, 2")
            A(f"v_mul_u32_u24 v{vRG+k}, 0x8001, v{vRG+k}")
        A(f"v_mov_b32 v{vRG+4}, 0x10001")
        A(f"v_mov_b32 v{vRG+5}, 0xffff0000")
        return 1

    def red_init(W):
        for k in range(W):
            A(f"v_lshlrev_b32 v{vRC+2*k}, 16, v{vRB+k}")
            A(f"v_and_b32 v{vRC+1+2*k}, v{vRG+5}, v{vRB+k}")

    def bb_w(q):
        if q == 2:
            epoch_fin()
        if q == cfg.rpq:
            return red_pre(2)
        if q == cfg.rpq + 3:
            red_init(2)

    A.head("w")
    sHW = sT5
    A(f"s_sub_u32 s{sHW}, s{sWV}, 4")
    A("v_lshrrev_b32 v2, 3, v1")
    A("v_and_b32 v3, 7, v1")
    A("v_bfe_u32 v4, v1, 4, 1")
    A("v_lshlrev_b32 v4, 2, v4")
    A("v_xor_b32 v3, v3, v4")
    A("v_lshlrev_b32 v3, 4, v3")
    A("v_lshrrev_b32 v4, 2, v2")
    A("v_and_b32 v5, 3, v2")
    A("v_lshl_add_u32 v4, v4, 3, v5")
    A(f"s_lshl_b32 s{sT0}, s{sHW}, 5")
    A(f"v_add_u32 v4, s{sT0}, v4")
    A("v_mul_u32_u24 v4, 9216, v4")
    A("v_add_u32 v4, v4, v3")
    for c in range(1, 4):
        A(f"v_add_u32 v{4+c}, {(16*(c>>1)+4*(c&1))*9216 - 1024*c}, v4")
    sLW, sC1 = sT4, 38
    A(f"s_lshl_b32 s{sLW}, s{sHW}, 12")
    A(f"s_mul_i32 s{sC1}, s{sJ}, 1152")
    A(f"s_mul_i32 s{sT1}, s{sI}, 384")
    A(f"s_add_u32 s{sC1}, s{sC1}, s{sT1}")
    rot_setup(sC1, 64*9216)
    if cfg.wt:
        A("v_and_b32 v12, 7, v1")
        A("v_lshrrev_b32 v13, 5, v1")
        A("v_lshl_add_u32 v12, v13, 6, v12")
        A("v_mul_u32_u24 v12, 9216, v12")
        A("v_bfe_u32 v13, v1, 3, 2")
        A("v_lshl_add_u32 v12, v13, 7, v12")
        A(f"s_lshl_b32 s{sT0}, s{sHW}, 4")
        A(f"s_add_u32 s{sT0}, s{sT0}, s{sMT}")
        A(f"s_mul_i32 s{sT0}, s{sT0}, {8*9216}")
        A(f"s_add_u32 s{sT0}, s{sT0}, s{sC1}")
        msk = [sum(0xffffff << (32 * h) for h in range(2) if 2 * w + h < cfg.wt) for w in range(2)]
        A(f"s_mov_b32 exec_lo, {msk[0] & 0xffffffff}")
        A(f"s_mov_b32 exec_hi, {msk[0] >> 32}")
        if msk[1] != msk[0]:
            A(f"s_cmp_eq_u32 s{sHW}, 0")
            A(f"s_cselect_b32 exec_lo, exec_lo, {(msk[1] & 0xffffffff) or 1}")
            A(f"s_cselect_b32 exec_hi, exec_hi, {msk[1] >> 32}")
    A("s_waitcnt lgkmcnt(0)")
    if cfg.ts0:
        stamp()
    srd(SRD0, sW1, 5308416)
    if cfg.wt:
        A(f"buffer_load_dword v255, v12, s[{SRD0}:{SRD0+3}], s{sT0} offen")
        A("s_mov_b64 exec, -1")
    sV = [62, 63, 59]

    def w2_setup():
        epoch_load(sMT)
        A(f"s_lshl_b32 s{sT0}, s{sHW}, 5")
        A(f"v_add_u32 v8, s{sT0}, v2")
        A("v_mul_u32_u24 v8, 1152, v8")
        A("v_add_u32 v8, v8, v3")
        for c in range(1, 4):
            A(f"v_add_u32 v{8+c}, {8*c*1152 - 1024*c}, v8")
        A(f"s_mul_i32 s39, s{sJ}, {576*1152}")
        A(f"s_mul_i32 s{sT0}, s{sI}, 384")
        A(f"s_add_u32 s39, s39, s{sT0}")
        for d in range(3):
            mod3add(sT1, d, sT2)
            A(f"s_mul_i32 s{sT1}, s{sT1}, {192*1152}")
            A(f"s_add_u32 s{sV[d]}, s39, s{sT1}")
        srd(SRD1, sW2, 5308416)

    def issue_w(grp):
        for b in grp:
            A(f"s_add_u32 m0, s{sLW}, {b['slot']*8192}")
            if b["kind"] == "W1":
                rot_addr(sT0, sC1, b['t'], 64*9216, 128*b['l'])
                vb, sr = 4, SRD0
            else:
                A(f"s_add_u32 s{sT0}, s{sV[b['d']]}, {64*b['lk']*1152 + 128*b['l']}")
                vb, sr = 8, SRD1
            for c in range(4):
                A(f"buffer_load_dwordx4 v{vb+c}, s[{sr}:{sr+3}], s{sT0} offen offset:{1024*c} {cfg.wfl} lds")

    loader_stream(("W1", "W2"), 4, issue_w, w2_setup, cfg.capw, group=True,
                  before_bar=bb_w, role="w")
    A("s_branch L_reduce")
    ts_max = tsn[0]

    sXB = 38
    sH = {1: 39, 2: 59}
    HALF = [0]

    def h_setup(half):
        A("v_lshlrev_b32 v12, 4, v1")
        A("v_add_u32 v13, 0x10000, v12")
        A("v_add_u32 v14, 0x20000, v12")
        A(f"s_sub_u32 s{sT0}, s{sWK}, s{sI}")
        for d in (1, 2):
            mod3add(sT1, d, sT2)
            A(f"s_add_u32 s{sT1}, s{sT1}, s{sT0}")
            A(f"s_mul_i32 s{sH[d]}, s{sT1}, 24576")
        srd(SRD1, sWS, 0x10000000)
        epoch_load(sMT)

    def issue_xh(b):
        for h in (range(2) if b["kind"] == "X" else HALF):
            A(f"s_mov_b32 m0, {b['slot']*8192 + 4096*h}")
            if b["kind"] == "X":
                rot_addr(sT0, sXB, b['t'], 128, 32*1152*h)
                for c in range(4):
                    A(f"buffer_load_dwordx4 v{8+c}, s[{SRD0}:{SRD0+3}], s{sT0} offen offset:{1024*c} lds")
            else:
                A(f"s_add_u32 s{sT0}, s{sH[b['d']]}, {WS_H + 8192*b['lk'] + 4096*h}")
                for c in range(4):
                    A(f"buffer_load_dwordx4 v12, s[{SRD1}:{SRD1+3}], s{sT0} offen offset:{1024*c} {cfg.hlf} lds")

    retry_code = []

    def validate(hs, wait_for):
        k = A.uid()

        def rd(i):
            addr = hs[i]["slot"] * 8192 + 4096 * HALF[0]
            for c in range(4):
                r = 128 + 16 * i + 4 * c
                A(f"ds_read_b128 v[{r}:{r+3}], v{12 + (addr >> 16)} offset:{(addr & 0xffff) + 1024*c}")

        def valu(i, later):
            for c in range(4):
                r = 128 + 16 * i + 4 * c
                A(f"s_waitcnt lgkmcnt({3-c+later})")
                for kk in range(4):
                    ac = 16 + ((kk + 2) & 3)
                    if i == 0 and c == 0:
                        A(f"v_xor_b32 v{ac}, v{r+kk}, v{25+kk}")
                    else:
                        A(f"v_bitop3_b32 v{ac}, v{ac}, v{r+kk}, v{25+kk} bitop3:0xf6")
        A.label(f"L_v{k}")
        for i in range(len(hs)):
            wait_for(hs[i])
            rd(i)
            if i:
                valu(i - 1, 4)
        valu(len(hs) - 1, 0)
        A("v_or3_b32 v16, v16, v17, v18")
        A("v_bitop3_b32 v16, v16, v19, v24 bitop3:0xa8")
        A("v_cmp_ne_u32 vcc, 0, v16")
        A(f"s_cbranch_vccnz L_vr{k}")
        A.label(f"L_vd{k}")
        n0 = len(A.L)
        A.label(f"L_vr{k}")
        A(f"s_cmp_gt_u32 s{sCNT}, {SPIN_MAX}")
        A(f"s_cbranch_scc1 L_vd{k}")
        for b in hs:
            issue_xh(b)
        A(f"s_add_u32 s{sCNT}, s{sCNT}, 1")
        A("s_waitcnt vmcnt(0)")
        A(f"s_branch L_v{k}")
        retry_code.extend(A.L[n0:])
        del A.L[n0:]

    def flush_retry():
        A.L.extend(retry_code)
        retry_code.clear()

    def bb_tag(q):
        if q == 2:
            epoch_fin()
            slot_add(sH[1], sH[2])
            tag_regs(25, 16)
            A(f"v_mov_b32 v24, {0x10001 if cfg.hlsb else 0x80008000}")
            A(f"s_mov_b32 s{sCNT}, 0")
        if q == cfg.rpq:
            return red_pre(2)
        if q == cfg.rpq + 3:
            red_init(2)

    A.head("x")
    A.label("L_xh")
    tsn[0] = ts_base
    A("v_lshrrev_b32 v2, 3, v1")
    A("v_and_b32 v3, 7, v1")
    A("v_lshrrev_b32 v4, 4, v1")
    A("v_xor_b32 v3, v3, v4")
    A("v_lshlrev_b32 v3, 4, v3")
    A("v_mul_u32_u24 v4, 1152, v2")
    A("v_add_u32 v8, v4, v3")
    A("v_xor_b32 v5, 64, v8")
    A(f"v_add_u32 v9, {8*1152 - 1024}, v5")
    A(f"v_add_u32 v10, {16*1152 - 2048}, v8")
    A(f"v_add_u32 v11, {24*1152 - 3072}, v5")
    A(f"s_mul_i32 s{sXB}, s{sMT}, {64*1152}")
    rot_setup(sXB, 128)

    def x_touch_pre(st0):
        A(f"s_mul_i32 s{sT0}, s{sI}, 22")
        A("v_and_b32 v12, 31, v1")
        A(f"v_add_u32 v12, s{sT0}, v12")
        A("v_min_u32 v12, 63, v12")
        A("v_mul_u32_u24 v12, 1152, v12")
        A("v_lshrrev_b32 v13, 5, v1")
        A("v_lshl_add_u32 v12, v13, 7, v12")
        A("s_mov_b32 exec_lo, 0x3fffff")
        A(f"s_mov_b32 exec_hi, {0x3fffff if cfg.wt > st0 + 1 else 0}")

    def x_touch(st0):
        A(f"buffer_load_dword v255, v12, s[{SRD0}:{SRD0+3}], s{sXB} offen offset:{128*st0}")
        A("s_mov_b64 exec, -1")
    if cfg.wt:
        x_touch_pre(0)
    A("s_waitcnt lgkmcnt(0)")
    if cfg.ts0:
        stamp()
    srd(SRD0, sX, 589824)
    if cfg.wt:
        x_touch(0)
    nbx = lambda b: 8 if b["kind"] == "X" else 4
    loader_stream(("X", "H1", "H2"), nbx, issue_xh, lambda: h_setup(0), cfg.capx, validate=validate, before_bar=bb_tag, role="x")
    if TS:
        A(f"s_mov_b32 s{sTS+24}, s{sCNT}")
    A("s_branch L_reduce")
    flush_retry()
    ts_max = max(ts_max, tsn[0])

    A.head("h2")
    A.label("L_h2")
    tsn[0] = ts_base
    if cfg.wt > 2:
        A(f"s_mul_i32 s{sXB}, s{sMT}, {64*1152}")
        x_touch_pre(2)
    A("s_waitcnt lgkmcnt(0)")
    if cfg.wt > 2:
        srd(SRD0, sX, 589824)
        x_touch(2)
    srd(SRD1, sWS, 0x10000000)
    if cfg.hpre == 3:
        A("v_lshlrev_b32 v3, 7, v1")
        A(f"s_mul_i32 s{sT1}, s{sWK}, 24576")
        A(f"s_add_u32 s{sT1}, s{sT1}, {WS_H}")
        for c in range(3):
            A(f"buffer_load_dword v255, v3, s[{SRD1}:{SRD1+3}], s{sT1} offen")
            A(f"s_add_u32 s{sT1}, s{sT1}, 8192")

    def w7_touch():
        st = list(range(cfg.ta, cfg.ta + cfg.tn))
        srd(SRD0, sX, 589824)
        srd(SRD2, sW1, 5308416)
        A(f"s_mul_i32 s{sXB}, s{sMT}, {64*1152}")
        A(f"s_mul_i32 s{sT0}, s{sI}, 22")
        A("v_and_b32 v2, 31, v1")
        A(f"v_add_u32 v2, s{sT0}, v2")
        A("v_min_u32 v2, 63, v2")
        A("v_mul_u32_u24 v2, 1152, v2")
        A("v_lshrrev_b32 v4, 5, v1")
        A("v_lshl_add_u32 v2, v4, 7, v2")
        A("v_and_b32 v3, 7, v1")
        A("v_lshl_add_u32 v3, v4, 6, v3")
        A("v_mul_u32_u24 v3, 9216, v3")
        A("v_bfe_u32 v4, v1, 3, 2")
        A("v_lshl_add_u32 v3, v4, 7, v3")
        A(f"s_mul_i32 s{sT0}, s{sMT}, {8*9216}")
        A(f"s_mul_i32 s{sT1}, s{sJ}, 1152")
        A(f"s_add_u32 s{sT0}, s{sT0}, s{sT1}")
        A(f"s_mul_i32 s{sT1}, s{sI}, 384")
        A(f"s_add_u32 s{sT0}, s{sT0}, s{sT1}")
        for p in range(0, len(st), 2):
            two = p + 1 < len(st)
            A(f"s_add_u32 s{sT1}, s{sT0}, {st[p]*64*9216}")
            A("s_mov_b32 exec_lo, 0xffffff")
            A(f"s_mov_b32 exec_hi, {0xffffff if two else 0}")
            A(f"buffer_load_dword v255, v3, s[{SRD2}:{SRD2+3}], s{sT1} offen")
            A("s_mov_b32 exec_lo, 0x3fffff")
            A(f"s_mov_b32 exec_hi, {0x3fffff if two else 0}")
            A(f"buffer_load_dword v255, v2, s[{SRD0}:{SRD0+3}], s{sXB} offen offset:{128*st[p]}")
        A("s_mov_b64 exec, -1")
    if cfg.tn and cfg.tpos == 0:
        w7_touch()

    def bb_h2(q):
        if cfg.tn and cfg.tpos == 1 and q == 0:
            A("s_waitcnt lgkmcnt(0)")
            w7_touch()
        if cfg.tn and cfg.tpos >= 2 and q == cfg.tpos - 1:
            w7_touch()
        if cfg.tn and q == 7:
            A("s_waitcnt vmcnt(0)")
        if q == 2 and (cfg.hpre == 3 or cfg.wt > 2):
            A("s_waitcnt vmcnt(0)")
        return bb_tag(q)

    HALF[0] = 1
    loader_stream(("H1", "H2"), nbx, issue_xh, lambda: h_setup(1), cfg.capx, validate=validate, before_bar=bb_h2, role="h2")
    ts_max = max(ts_max, tsn[0])
    A("s_branch L_reduce")
    flush_retry()

    A.tail("red")
    sM, sQ = sT5, sT4
    sVC = 16

    def reduce_code(W, nbar):
        x = f"{W}"
        srd(SRD1, sWS, 0x10000000)
        A(f"s_mov_b32 s{sCNT}, 0")
        srd(SRD0, sOUT, 589824)
        if W == 1:
            red_pre(1)
            red_init(1)
            A(f"s_waitcnt vmcnt({cfg.rw1})")
            if cfg.rlate == 1:
                A("s_barrier")

        def ld(s_):
            A(f"s_add_u32 s{sT1}, s{sRI}, {3072*s_}")
            A(f"buffer_load_{dw(W)} {vr(vRD+W*s_, W)}, v{vRA}, s[{SRD1}:{SRD1+3}], s{sT1} offen {cfg.rfl}")
        if W == 2 and cfg.r0early and nbar:
            A(f"s_cmp_ge_u32 s{sC}, 2")
            A("s_cbranch_scc1 L_rlate")
            stamp()
            tsn[0] -= 1 if TS else 0
            for s_ in range(8):
                ld(s_)
            A("s_barrier")
            A("s_branch L_rfirst")
            A.label("L_rlate")
        for _ in range(nbar):
            A("s_barrier")
        stamp()
        enc("rbar")

        def chk_i(s_, dst, t):
            r = vRD + W * s_
            if W == 1:
                o = [f"v_bitop3_b32 v{t}, v{r}, v{vRG}, v{vRG+4} bitop3:0x28"]
            else:
                o = [f"v_xor_b32 v{t}, v{r}, v{vRG}"]
                for k in range(1, W):
                    o.append(f"v_bitop3_b32 v{t}, v{t}, v{r+k}, v{vRG+k} bitop3:0xf6")
                o.append(f"v_and_b32 v{t}, v{vRG+4}, v{t}")
            o.append(f"v_cmp_ne_u32 {dst}, 0, v{t}")
            return o

        def acc_i(s_, t0):
            r = vRD + W * s_
            o = []
            for k in range(W):
                t = t0 + 2 * k
                o.append(f"v_lshlrev_b32 v{t}, 16, v{r+k}")
                o.append(f"v_and_b32 v{t+1}, v{vRG+5}, v{r+k}")
            for k in range(W):
                t = t0 + 2 * k
                o.append(f"v_pk_add_f32 v[{vRC+2*k}:{vRC+1+2*k}], v[{vRC+2*k}:{vRC+1+2*k}], v[{t}:{t+1}]")
            return o

        def masked(sm, fn, tag):
            for g in range(2):
                A(f"s_and_b32 s{sT0}, s{sm}, {0xf << (4*g)}")
                A(f"s_cbranch_scc0 L_{tag}{x}g{g}")
                for s_ in range(4 * g, 4 * g + 4):
                    A(f"s_bitcmp0_b32 s{sm}, {s_}")
                    A(f"s_cbranch_scc1 L_{tag}{x}s{s_}")
                    fn(s_)
                    A.label(f"L_{tag}{x}s{s_}")
                A.label(f"L_{tag}{x}g{g}")

        for s_ in range(8):
            ld(s_)
        for _ in range(nbar, cfg.rnb if W != 1 else 0):
            A("s_barrier")
        if W == 1 and cfg.rlate == 2:
            A("s_barrier")
        if W == 2:
            A.label("L_rfirst")
        for s_ in range(8):
            A(f"s_waitcnt vmcnt({7-s_})")
            c = chk_i(s_, f"s[{sVC+2*s_}:{sVC+2*s_+1}]", vRX)
            a_ = acc_i(s_, vRT)
            while c or a_:
                if c:
                    A(c.pop(0))
                if a_:
                    A(a_.pop(0))
            if s_ >= 2:
                A(f"s_or_b64 vcc, {'s[16:17]' if s_ == 2 else 'vcc'}, s[{sVC+2*s_-2}:{sVC+2*s_-1}]")
        A(f"s_or_b64 vcc, vcc, s[{sVC+14}:{sVC+15}]")
        A(f"s_cbranch_scc0 L_rdone{x}")
        A(f"s_mov_b32 s{sM}, 0")
        for s_ in range(7, -1, -1):
            A(f"s_cmp_lg_u64 s[{sVC+2*s_}:{sVC+2*s_+1}], 0")
            A(f"s_addc_u32 s{sM}, s{sM}, s{sM}")
        A(f"s_xor_b32 s{sQ}, s{sM}, 0xff")
        red_init(W)
        A.label(f"L_rtop{x}")
        masked(sM, ld, "rl")
        masked(sQ, lambda s_: [A(t) for t in acc_i(s_, vRT)], "ra")
        A(f"s_add_u32 s{sCNT}, s{sCNT}, 1")
        A(f"s_mov_b32 s{sQ}, s{sM}")
        A(f"s_cmp_gt_u32 s{sCNT}, {SPIN_MAX}")
        A(f"s_cbranch_scc1 L_rdone{x}")
        A("s_waitcnt vmcnt(0)")

        def chk2(s_):
            for t in chk_i(s_, "vcc", vRX):
                A(t)
            A(f"s_cbranch_vccnz L_rc{x}s{s_}")
            A(f"s_bitset0_b32 s{sM}, {s_}")
            for t in acc_i(s_, vRT):
                A(t)
        masked(sQ, chk2, "rc")
        A(f"s_mov_b32 s{sQ}, 0")
        A(f"s_cmp_lg_u32 s{sM}, 0")
        A(f"s_cbranch_scc1 L_rtop{x}")
        A.label(f"L_rdone{x}")
        stamp()
        enc("rdone")
        for k in range(W):
            A(f"v_cvt_pk_bf16_f32 v{vRC+k}, v{vRC+2*k}, v{vRC+1+2*k}")
        A(f"buffer_store_{dw(W)} {vr(vRC, W)}, v{vRO}, s[{SRD0}:{SRD0+3}], s{sRO} offen {cfg.ofl if W > 1 else cfg.ofl1}")
        if TS:
            A(f"s_mov_b32 s{sWS}, s{SRD1}")
            A(f"s_mov_b32 s{sWS+1}, s{SRD1+1}")

    A.label("L_reduce")
    tsn[0] = ts_max
    reduce_code(2, cfg.rb2)
    A(f"s_or_b32 s{sT0}, s{sJ}, s{sI}")
    A(f"s_or_b32 s{sT0}, s{sT0}, s{sC}")
    A(f"s_cmp_lg_u32 s{sT0}, 0")
    A("s_cbranch_scc1 L_noep")
    A(f"v_mov_b32 v16, s{sTAG}")
    A(f"s_lshl_b32 s{sT0}, s{sMT}, 7")
    A(f"s_add_u32 s{sT0}, s{sT0}, {WS_EP}")
    A("s_mov_b64 exec, 1")
    A(f"buffer_store_dword v16, v{vRZ}, s[{SRD1}:{SRD1+3}], s{sT0} offen sc1")
    A("s_mov_b64 exec, -1")
    A.label("L_noep")
    if cfg.enc:
        if cfg.enc == "end":
            A("s_waitcnt vmcnt(0)")
            enc("end")
        if cfg.encw >= 0:
            A(f"s_cmp_lg_u32 s{sWV}, {cfg.encw}")
            A("s_cbranch_scc1 L_end")
        A("s_waitcnt lgkmcnt(0)")
        if cfg.encc:
            A("s_sub_u32 s94, s94, s92")
            A("s_lshr_b32 s94, s94, 1")
        else:
            A("s_sub_u32 s94, s94, s96")
            A(f"s_mul_i32 s94, s94, {cfg.encm}")
        A("s_add_u32 s94, s94, 3000")
        A.label("L_dly")
        A("s_memrealtime s[98:99]")
        A("s_waitcnt lgkmcnt(0)")
        A("s_sub_u32 s98, s98, s96")
        A("s_cmp_lt_u32 s98, s94")
        A("s_cbranch_scc1 L_dly")
    if TS:
        A("s_waitcnt vmcnt(0)")
        stamp()
        A("s_memrealtime s[98:99]")
        A("s_waitcnt lgkmcnt(0)")
        A(f"s_mov_b32 s{sTS+26}, s96"); A(f"s_mov_b32 s{sTS+28}, s98"); A(f"s_mov_b32 s{sTS+30}, s{sCNT}")
        assert tsn[0] <= 12
        tsn[0] = 16
        stamp_flush()
    A("s_branch L_end")

    A.head("c")
    A.label("L_compute")
    tsn[0] = ts_base
    vACC, vAB, vXB, vT = 16, 64, 96, 240
    nAB = D + 1
    vA, vBX, vBH, vHW = [2, 3, 4], [5, 6, 7, 8], [9, 10, 11], [12, 13, 14]
    vTG, vL16 = vT + 11, vT + 10
    assert vAB + 4 * nAB <= vXB
    sA, sBq = sT4, sT5
    A(f"s_and_b32 s{sA}, s{sWV}, 1")
    A(f"s_lshr_b32 s{sBq}, s{sWV}, 1")
    A(f"v_lshrrev_b32 v{vT}, 5, v1")
    A(f"s_mul_i32 s60, s{sJ}, 1152")
    A(f"s_mul_i32 s{sT1}, s{sI}, 384")
    A(f"s_add_u32 s60, s60, s{sT1}")
    A(f"s_lshl_b32 s{sT1}, s{sBq}, 6")
    A(f"s_add_u32 s61, s60, s{sT1}")
    A(f"v_lshlrev_b32 v{vT+4}, 3, v{vT}")
    if cfg.sa:
        A(f"s_add_u32 s{sT3}, s{sWV}, 1")
        A(f"v_and_b32 v{vT+5}, 7, v1")
        A(f"v_mul_u32_u24 v{vT+5}, 9216, v{vT+5}")
        A(f"v_lshrrev_b32 v{vT+6}, 3, v1")
        A(f"v_min_u32 v{vT+6}, 2, v{vT+6}")
        A(f"v_lshl_add_u32 v{vT+5}, v{vT+6}, 7, v{vT+5}")
        A(f"s_lshl_b32 s{sT1}, s{sT3}, 3")
        A(f"s_add_u32 s{sT1}, s{sT1}, s{sMT}")
        A(f"s_mul_i32 s{sT1}, s{sT1}, {8*9216}")
        A(f"s_add_u32 s{sT1}, s{sT1}, s60")
        A(f"s_mul_i32 s{sT2}, s{sI}, 22")
        A(f"v_min_u32 v{vT+6}, 21, v1")
        A(f"v_add_u32 v{vT+6}, s{sT2}, v{vT+6}")
        A(f"v_min_u32 v{vT+6}, 63, v{vT+6}")
        A(f"v_mul_u32_u24 v{vT+6}, 1152, v{vT+6}")
        A(f"s_mul_i32 s{sT2}, s{sMT}, {64*1152}")
        A(f"s_lshl_b32 s{sT3}, s{sT3}, 7")
        A(f"s_add_u32 s{sT2}, s{sT2}, s{sT3}")
    A("s_waitcnt lgkmcnt(0)")
    srd(SRD0, sB1, 9216)
    for l in range(3):
        for g in range(4):
            r = vXB + 2 * (4 * l + g)
            A(f"buffer_load_dwordx2 v[{r}:{r+1}], v{vT+4}, s[{SRD0}:{SRD0+3}], s61 offen offset:{128*l+16*g}")
    if cfg.sa:
        srd(SRD1, sW1, 5308416)
        srd(SRD2, sX, 589824)
        A(f"s_cmp_ge_u32 s{sWV}, {cfg.sa}")
        A("s_cbranch_scc1 L_tdone")
        A(f"buffer_load_dword v255, v{vT+5}, s[{SRD1}:{SRD1+3}], s{sT1} offen {cfg.tfl}")
        A(f"buffer_load_dword v255, v{vT+6}, s[{SRD2}:{SRD2+3}], s{sT2} offen")
        A.label("L_tdone")
    epoch_load(sMT)
    A.tail("c")
    srd(SRD2, sB2, 1152)
    A(f"v_and_b32 v{vT+1}, 3, v1")
    A(f"v_lshlrev_b32 v{vT+1}, 2, v{vT+1}")
    A(f"v_lshl_add_u32 v{vT+1}, v{vT}, 4, v{vT+1}")
    A(f"s_mul_i32 s{sT1}, s{sI}, 384")
    A(f"s_lshl_b32 s{sT0}, s{sWV}, 5")
    A(f"s_add_u32 s{sT1}, s{sT1}, s{sT0}")
    A(f"buffer_load_dword v249, v{vT+1}, s[{SRD2}:{SRD2+3}], s{sT1} offen offset:256")
    srd(SRD1, sWS, 0x10000000)
    A(f"v_bfe_u32 v{vT+1}, v1, 2, 2")
    A(f"v_lshl_add_u32 v{vT+2}, v{vT}, 2, v{vT+1}")
    A(f"v_lshlrev_b32 v{vT+2}, 7, v{vT+2}")
    A(f"v_bfe_u32 v{vT+3}, v1, 3, 1")
    A(f"v_xor_b32 v{vT+3}, s{sBq}, v{vT+3}")
    A(f"v_lshl_add_u32 v{vT+2}, v{vT+3}, 6, v{vT+2}")
    A(f"v_bfe_u32 v{vT+3}, v1, 4, 1")
    A(f"v_lshl_add_u32 v{vT+2}, v{vT+3}, 5, v{vT+2}")
    A(f"v_and_b32 v{vT+3}, 3, v1")
    A(f"v_lshl_add_u32 v{vA[0]}, v{vT+3}, 3, v{vT+2}")
    A(f"v_add_u32 v{vA[1]}, 0x10000, v{vA[0]}")
    A(f"v_add_u32 v{vA[2]}, 0x20000, v{vA[0]}")
    A(f"v_and_b32 v{vT+1}, 31, v1")
    A(f"v_bfe_u32 v{vT+2}, v1, 1, 3")
    A(f"v_xor_b32 v{vT+2}, v{vT}, v{vT+2}")
    A(f"v_lshlrev_b32 v{vT+2}, 4, v{vT+2}")
    A(f"v_lshl_add_u32 v{vT+2}, v{vT+1}, 7, v{vT+2}")
    A(f"s_lshl_b32 s{sT0}, s{sA}, 12")
    A(f"s_add_u32 s{sT1}, s{sT0}, 0x20000")
    A(f"v_add_u32 v{vBX[0]}, s{sT1}, v{vT+2}")
    for sp in range(1, 4):
        A(f"v_xor_b32 v{vBX[sp]}, {32*sp}, v{vBX[0]}")
    A(f"v_lshl_add_u32 v{vBH[0]}, v1, 4, s{sT0}")
    A(f"v_add_u32 v{vBH[1]}, 0x10000, v{vBH[0]}")
    A(f"v_add_u32 v{vBH[2]}, 0x20000, v{vBH[0]}")
    A(f"s_lshl_b32 s{sT1}, s{sBq}, 11")
    for k in range(3):
        A(f"v_add_u32 v{vHW[k]}, s{sT1}, v{vBH[k]}")
    sI0 = 38
    sMS, sML, sMC = 39, 63, 59
    sHS = [60, 61, 62]
    A(f"s_mul_i32 s{sI0}, s{sA}, 96")
    A(f"s_add_u32 s{sI0}, s{sI0}, s{sR}")
    A(f"s_lshl_b32 s{sI0}, s{sI0}, 3")
    A(f"s_add_u32 s{sI0}, s{sI0}, s{sJ}")
    A(f"s_mul_i32 s{sI0}, s{sI0}, 3072")
    A(f"s_add_u32 s{sI0}, s{sI0}, {WS_IN}")
    A(f"s_lshl_b32 s{sT1}, s{sBq}, 9")
    A(f"s_add_u32 s{sI0}, s{sI0}, s{sT1}")
    A(f"v_bfe_u32 v{vT+1}, v1, 3, 2")
    A(f"v_mul_u32_u24 v{vT+1}, {24*8*3072}, v{vT+1}")
    A(f"v_and_b32 v{vT+2}, 7, v1")
    A(f"v_lshl_add_u32 v{vT+1}, v{vT+2}, 4, v{vT+1}")
    A(f"v_lshl_add_u32 v{vL16}, v{vT}, 7, v{vT+1}")
    A(f"s_mov_b32 s{sMS}, 0x80008000")
    A(f"s_mov_b32 s{sML}, 0x00010001")
    A(f"s_mov_b32 s{sMC}, 0x7fff7fff")
    A(f"s_mul_i32 s{sHS[0]}, s{sWK}, 24576")
    if WS_H:
        A(f"s_add_u32 s{sHS[0]}, s{sHS[0]}, {WS_H}")
    A(f"s_add_u32 s{sHS[1]}, s{sHS[0]}, 8192")
    A(f"s_add_u32 s{sHS[2]}, s{sHS[0]}, 16384")
    epoch_fin()
    slot_add(sI0, *sHS)
    tag_regs(vTG, vT + 1)
    assert not cfg.sa
    A("s_waitcnt vmcnt(1)")
    if cfg.sa:
        A(f"s_cmp_lt_u32 s{sWV}, {cfg.sa}")
        A("s_cbranch_scc1 L_bw")
        A("s_waitcnt vmcnt(0)")
        A.label("L_bw")
    for l in range(3):
        for g in range(4):
            r = vXB + 2 * (4 * l + g)
            d = vACC + 16 * l + 4 * g
            A(f"v_lshlrev_b32 v{d}, 16, v{r}")
            A(f"v_and_b32 v{d+1}, 0xffff0000, v{r}")
            A(f"v_lshlrev_b32 v{d+2}, 16, v{r+1}")
            A(f"v_and_b32 v{d+3}, 0xffff0000, v{r+1}")
    stamp()

    items = []
    for st in stages:
        bykb = {}
        for u in st["units"]:
            bykb.setdefault(u[2], []).append(u)
        for kb, us in bykb.items():
            if st["q"] == n_g1 - 1 and cfg.tm:
                seq = [int(c) for c in cfg.tm]
                nsp = {0: 0, 1: 0, 2: 0}
                for t_ in seq:
                    (t, wb, _kb, fst) = [u for u in us if u[0] == t_][0]
                    items.append(dict(q=st["q"], tile=t, wb=wb, kb=kb, sp=nsp[t], first=False))
                    nsp[t] += 1
                assert all(v == 4 for v in nsp.values())
                continue
            for sp in range(4):
                for (t, wb, _kb, fst) in us:
                    items.append(dict(q=st["q"], tile=t, wb=wb, kb=kb, sp=sp, first=(fst and sp == 0)))
    NI = len(items)
    aux_used = set()
    if cfg.dual:
        own_end = max(n for n, it in enumerate(items) if it["q"] >= n_g1 and it["kb"] < 3)
        assert all(kbidx[(0, l)] < 3 for l in range(3))
        for n, it in enumerate(items):
            if n > own_end + 1 and items[n - 1]["tile"] == it["tile"]:
                it["first"] = it["tile"] not in aux_used
                aux_used.add(it["tile"])
                it["tile"] += 3

    def accbase(t):
        return vACC + 16 * t if t < 3 else vXB + 16 * (t - 3)
    last_item = {}
    for n, it in enumerate(items):
        last_item[it["q"]] = n
    bread_of = {(st["q"], kb): bb for st in stages for (bb, kb) in st["breads"]}
    lg = []

    def ds_issue(instr, tag):
        cap = 14 if TS else 15
        if len(lg) >= cap:
            A(f"s_waitcnt lgkmcnt({cap-2})")
            del lg[:len(lg) - (cap - 2)]
        A(instr)
        lg.append(tag)

    def ds_need(tags):
        idx = max([i for i, t in enumerate(lg) if t in tags], default=-1)
        if idx >= 0:
            A(f"s_waitcnt lgkmcnt({len(lg) - 1 - idx})")
            del lg[:idx + 1]

    checked = [-1]
    bdone = set()
    dirty, clean_pos = {}, {}

    def clean(m):
        key = (items[m]["kb"], items[m]["sp"])
        if key in dirty and dirty[key] == m:
            del dirty[key]
            ds_need({("B",) + key})
            r = vXB + 16 * key[0] + 4 * key[1]
            for k in range(4):
                A(f"v_and_b32 v{r+k}, s{sMC}, v{r+k}")
            clean_pos[m] = len(A.L) - 1

    def issue_reads(n):
        it = items[n]
        q = it["q"]
        if q > checked[0]:
            ds_need({"hw"})
            A("s_barrier")
            checked[0] = q
            if q in cfg.tsq:
                stamp()
        key = (q, it["kb"])
        if key in bread_of and (key, it["sp"]) not in bdone:
            bdone.add((key, it["sp"]))
            bb = blocks[bread_of[key]]
            addr = bb["slot"] * 8192
            r = vXB + 16 * it["kb"] + 4 * it["sp"]
            if bb["kind"] == "X":
                assert addr >> 16 == 2
                ds_issue(f"ds_read_b128 v[{r}:{r+3}], v{vBX[it['sp']]} offset:{addr & 0xffff}", ("B", it["kb"], it["sp"]))
            else:
                ds_issue(f"ds_read_b128 v[{r}:{r+3}], v{vBH[addr >> 16]} offset:{(addr & 0xffff) + 1024*it['sp']}",
                         ("B", it["kb"], it["sp"]))
                if bb["kind"] != "Hown":
                    if not cfg.hlsb:
                        dirty[(it["kb"], it["sp"])] = n
        wb = blocks[it["wb"]]
        addr = wb["slot"] * 8192 + 2048 * it["sp"]
        r = vAB + 4 * (n % nAB)
        ds_issue(f"ds_read_b64_tr_b16 v[{r}:{r+1}], v{vA[addr >> 16]} offset:{addr & 0xffff}", ("A", n))
        ds_issue(f"ds_read_b64_tr_b16 v[{r+2}:{r+3}], v{vA[addr >> 16]} offset:{(addr & 0xffff) + 1024}", ("A", n))

    post = []

    def epi1_instrs(pi, lines):
        out, late = [], []
        for l in lines:
            a = vACC + 16 * l
            addr = blocks[f"H0_{l}"]["slot"] * 8192
            for half in range(2):
                base = a + 8 * half
                if cfg.epi == 1:
                    assert cfg.hlsb
                    for k in range(8):
                        out.append(("v", f"v_mul_f32 v{base+k}, v{base+k}, |v{base+k}|"))
                    for k in range(4):
                        out.append(("v", f"v_cvt_pk_bf16_f32 v{base+k}, v{base+2*k}, v{base+2*k+1}"))
                    for k in range(4):
                        out.append(("v", f"v_pk_max_i16 v{base+k}, v{base+k}, 0"))
                else:
                    for k in range(8):
                        out.append(("v", f"v_max_f32 v{base+k}, 0, v{base+k}"))
                    for k in range(0, 8, 2):
                        out.append(("v", f"v_pk_mul_f32 v[{base+k}:{base+k+1}], v[{base+k}:{base+k+1}], v[{base+k}:{base+k+1}]"))
                    for k in range(4):
                        out.append(("v", f"v_cvt_pk_bf16_f32 v{base+k}, v{base+2*k}, v{base+2*k+1}"))
                for k in range(4):
                    out.append(("v", f"v_bfi_b32 v{base+4+k}, s{sML}, v{vTG+k}, v{base+k}" if cfg.hlsb else
                                f"v_and_or_b32 v{base+4+k}, v{vTG+k}, s{sMS}, v{base+k}"))
                out.append(("v", f"buffer_store_dwordx4 v[{base+4}:{base+7}], v{vHW[0]}, s[{SRD1}:{SRD1+3}], s{sHS[l]} offen offset:{1024*half} {cfg.hsf}"))
                out.append(("w", f"ds_write_b128 v{vHW[addr >> 16]}, v[{base}:{base+3}] offset:{(addr & 0xffff) + 1024*half}"))
                t = ("v", f"buffer_load_dword v255, v{vHW[0]}, s[{SRD1}:{SRD1+3}], s{sHS[l]} offen offset:{1024*half} {cfg.stf}")
                if cfg.stouch == 1:
                    out.append(t)
                elif cfg.stouch == 2:
                    late.append(t)
                elif cfg.stouch == 3:
                    post.append(t)
        return out + late

    def epi2_instrs(lines):
        out = []
        for l in lines:
            for u in range(2):
                base = vACC + 8 * (2 * l + u)
                if l in aux_used:
                    ab = accbase(l + 3) + 8 * u
                    for k in range(0, 8, 2):
                        out.append(("v", f"v_pk_add_f32 v[{base+k}:{base+k+1}], v[{base+k}:{base+k+1}], v[{ab+k}:{ab+k+1}]"))
                for k in range(4):
                    out.append(("v", f"v_cvt_pk_bf16_f32 v{base+k}, v{base+2*k}, v{base+2*k+1}"))
                out.append(("v", "s_nop 1"))
                out.append(("v", f"v_permlane32_swap_b32 v{base}, v{base+2}"))
                out.append(("v", f"v_permlane32_swap_b32 v{base+1}, v{base+3}"))
                for k in (0, 2, 1, 3):
                    out.append(("v", f"v_bfi_b32 v{base+k}, s{sML}, v{vTG+k}, v{base+k}"))
                out.append(("v", f"buffer_store_dwordx4 v[{base}:{base+3}], v{vL16}, s[{SRD1}:{SRD1+3}], s{sI0} offen offset:{1024*l+256*u} {cfg.psf}"))
        return out

    fillers = []
    fill_start = 0
    fill_tiles = set()
    mfma_pos = {}
    fill_fresh = [False]

    def states_since(pos):
        c = 0
        for ln in A.L[pos + 1:]:
            t = ln.strip()
            if t.endswith(":") or t.startswith(";") or t.startswith("@@"):
                continue
            c += int(t.split()[1]) + 1 if t.startswith("s_nop") else 1
        return c

    late_w = []

    def emit(kind, t):
        if kind == "mark":
            have = min(states_since(mfma_pos[tl]) for tl in t[0])
            if have < 12:
                A(f"s_nop {12 - have - 1}")
        elif kind == "w":
            ds_issue(t, "hw")
        else:
            A(t)

    def flush_fillers():
        nonlocal fillers
        for (kind, t) in fillers + late_w:
            emit(kind, t)
        fillers = []
        late_w.clear()
        fill_tiles.clear()

    trig = {}
    for l in range(3):
        trig[max(n for n, it in enumerate(items) if it["q"] < n_g1 and it["tile"] == l)] = (1, l)
        trig[max(n for n, it in enumerate(items) if it["q"] >= n_g1 and it["tile"] % 3 == l)] = (2, l)

    nread = 0
    for n in range(NI):
        it = items[n]
        lim = min(NI - 1, n + D)
        while nread <= lim:
            nx = items[nread]
            if nx["q"] > checked[0]:
                due = [l for l, v in hown_vis.items() if v == nx["q"]]
                if due:
                    if last_item[hown_w[due[0]]] >= n:
                        break
                    flush_fillers()
            key = (nx["q"], nx["kb"])
            if key in bread_of and (key, nx["sp"]) not in bdone:
                if any(items[m]["kb"] == nx["kb"] and items[m]["sp"] == nx["sp"] for m in range(n, nread)):
                    break
            issue_reads(nread)
            nread += 1
        assert nread > n
        if it["tile"] in fill_tiles:
            flush_fillers()
            A("s_nop 1")
        clean(n)
        ds_need({("A", n), ("B", it["kb"], it["sp"])})
        if it["first"]:
            ds_need({"hw"})
        if n in clean_pos and states_since(clean_pos[n]) < 2:
            A(f"s_nop {1 - states_since(clean_pos[n])}")
        ra = vAB + 4 * (n % nAB)
        rb = vXB + 16 * it["kb"] + 4 * it["sp"]
        acc = accbase(it["tile"])
        c = "0" if it["first"] else f"v[{acc}:{acc+15}]"
        A(f"v_mfma_f32_32x32x16_bf16 v[{acc}:{acc+15}], v[{ra}:{ra+3}], v[{rb}:{rb+3}], {c}")
        mfma_pos[it["tile"]] = len(A.L) - 1
        if n + 1 < nread:
            clean(n + 1)
        k = 0
        while fillers and k < (cfg.fill1 if it["q"] < n_g1 else cfg.fill):
            if fillers[0][0] == "mark" and n < fillers[0][1][1]:
                break
            kind, t = fillers.pop(0)
            emit(kind, t)
            k += kind != "mark"
        if not fillers and not late_w:
            fill_tiles.clear()
        if n == last_item[it["q"]] and (it["q"] in epi_after or it["q"] in epi2_after):
            stamp()
        if n in trig:
            g, l = trig[n]
            tl = [l] + ([l + 3] if (g == 2 and l in aux_used) else [])
            new = epi1_instrs(0, [l]) if g == 1 else epi2_instrs([l])
            if cfg.wlast:
                late_w.extend(x for x in new if x[0] == "w")
                new = [x for x in new if x[0] != "w"]
            fillers += [("mark", (tl, n + cfg.fdel))] + new
            fill_tiles.update(tl)
    flush_fillers()
    stamp()
    if cfg.rnb >= 1 and not cfg.rlate:
        A("s_barrier")
    reduce_code(1, 0)
    if TS:
        A("s_waitcnt vmcnt(0)")
        A("s_memrealtime s[98:99]")
        A("s_waitcnt lgkmcnt(0)")
        assert tsn[0] <= 14, tsn[0]
        A(f"s_mov_b32 s{sTS+28}, s98"); A(f"s_mov_b32 s{sTS+30}, s{sCNT}")
        tsn[0] = 16
        stamp_flush()
    if cfg.enc and cfg.encw < 4:
        A("s_branch L_noep")
    A("s_branch L_end")

    A.head("hl")
    A.label("L_helper")
    sG = 38
    A(f"s_lshl_b32 s{sG}, s{sWV}, 3")
    A(f"s_add_u32 s{sG}, s{sG}, s{sR}")
    A("v_mul_u32_u24 v8, 9216, v1")
    A("v_mul_u32_u24 v9, 1152, v1")
    A(f"s_mul_i32 s39, s{sJ}, 1152")
    A("s_waitcnt lgkmcnt(0)")
    NWT = 64

    def sdiv(dst, src, d):
        A(f"s_mul_i32 s{dst}, s{src}, {(65536 + d - 1) // d}")
        A(f"s_lshr_b32 s{dst}, s{dst}, 16")

    w2base = 0
    if cfg.touch and any(ROT):
        srd(SRD0, sW1, 5308416)
        srd(SRD1, sX, 589824)
        need = {kk: min((kk - r) % 9 for r in ROT) for kk in range(9)}
        kks = sorted([kk for kk in range(9) if need[kk] >= cfg.skipw], key=lambda kk: need[kk])
        KT = sum(kk << (4 * u) for u, kk in enumerate(kks))
        nW = 9 * len(kks)
        x0 = cfg.skipx
        nX = 8 * (9 - x0)
        tot = nW + nX
        for rnd in range((tot + NWT - 1) // NWT):
            if rnd == 1:
                A.tail("hl")
            k = A.uid()
            A(f"s_add_u32 s{sT0}, s{sG}, {NWT*rnd}")
            if NWT * rnd < nW:
                if NWT * rnd + NWT > nW:
                    A(f"s_cmp_ge_u32 s{sT0}, {nW}")
                    A(f"s_cbranch_scc1 L_hx{k}")
                sdiv(sT1, sT0, 9)
                A(f"s_mul_i32 s{sT2}, s{sT1}, 9")
                A(f"s_sub_u32 s{sT2}, s{sT0}, s{sT2}")
                A(f"s_lshl_b32 s{sT1}, s{sT1}, 2")
                A(f"s_lshr_b32 s{sT1}, {KT}, s{sT1}")
                A(f"s_and_b32 s{sT1}, s{sT1}, 15")
                A(f"s_mul_i32 s{sT1}, s{sT1}, {64*9216}")
                A(f"s_lshl_b32 s{sT2}, s{sT2}, 7")
                A(f"s_add_u32 s{sT1}, s{sT1}, s{sT2}")
                A(f"s_add_u32 s{sT1}, s{sT1}, s39")
                A(f"buffer_load_dword v255, v8, s[{SRD0}:{SRD0+3}], s{sT1} offen {cfg.tfl}")
                if NWT * rnd + NWT > nW:
                    A(f"s_branch L_ht{k}")
            if NWT * rnd + NWT > nW:
                A.label(f"L_hx{k}")
                if NWT * rnd + NWT > tot:
                    A(f"s_cmp_ge_u32 s{sT0}, {tot}")
                    A(f"s_cbranch_scc1 L_ht{k}")
                A(f"s_sub_u32 s{sT0}, s{sT0}, {nW - 8*x0}")
                A(f"s_and_b32 s{sT2}, s{sT0}, 7")
                A(f"s_lshr_b32 s{sT1}, s{sT0}, 3")
                A(f"s_lshl_b32 s{sT3}, s{sT2}, 2")
                A(f"s_lshr_b32 s{sT3}, {ROTTAB}, s{sT3}")
                A(f"s_and_b32 s{sT3}, s{sT3}, 15")
                A(f"s_add_u32 s{sT1}, s{sT1}, s{sT3}")
                A(f"s_cmp_ge_u32 s{sT1}, 9")
                A(f"s_cselect_b32 s{sT3}, 9, 0")
                A(f"s_sub_u32 s{sT1}, s{sT1}, s{sT3}")
                A(f"s_mul_i32 s{sT2}, s{sT2}, {64*1152}")
                A(f"s_lshl_b32 s{sT1}, s{sT1}, 7")
                A(f"s_add_u32 s{sT1}, s{sT1}, s{sT2}")
                A(f"buffer_load_dword v255, v9, s[{SRD1}:{SRD1+3}], s{sT1} offen")
            A.label(f"L_ht{k}")
        w2base = (NWT - tot % NWT) % NWT
    elif cfg.touch:
        srd(SRD0, sW1, 5308416)
        srd(SRD1, sX, 589824)
        phases, base = [], 0
        for pi, ls in enumerate(passes):
            t0 = cfg.ht0 if pi == 0 else 0
            c = 3 * len(ls) + (8 if pi == 0 else 0)
            phases.append((base, (9 - t0 - cfg.tn) * c, t0, c, ls))
            base += (9 - t0 - cfg.tn) * c
        w2base = (NWT - base % NWT) % NWT if cfg.w2rot else 0
        for rnd in range((base + NWT - 1) // NWT):
            if rnd == 1:
                A.tail("hl")
            k = A.uid()
            A(f"s_add_u32 s{sT0}, s{sG}, {NWT*rnd}")
            for (pb, cnt, t0, c, ls) in phases:
                if pb + cnt <= NWT * rnd or pb >= NWT * rnd + NWT:
                    continue
                k2 = A.uid()
                A(f"s_cmp_ge_u32 s{sT0}, {pb+cnt}")
                A(f"s_cbranch_scc1 L_hp{k2}")
                if pb:
                    A(f"s_sub_u32 s{sT0}, s{sT0}, {pb}")
                sdiv(sT1, sT0, c)
                A(f"s_mul_i32 s{sT2}, s{sT1}, {c}")
                A(f"s_sub_u32 s{sT2}, s{sT0}, s{sT2}")
                if t0:
                    A(f"s_add_u32 s{sT1}, s{sT1}, {t0}")
                if cfg.tn:
                    A(f"s_cmp_ge_u32 s{sT1}, {cfg.ta}")
                    A(f"s_cselect_b32 s{sT3}, {cfg.tn}, 0")
                    A(f"s_add_u32 s{sT1}, s{sT1}, s{sT3}")
                nw = 3 * len(ls)
                if c > nw:
                    A(f"s_cmp_ge_u32 s{sT2}, {nw}")
                    A(f"s_cbranch_scc1 L_hx{k2}")
                if len(ls) != 3:
                    if len(ls) == 1:
                        A(f"s_mul_i32 s{sT2}, s{sT2}, 3")
                    else:
                        A(f"s_lshr_b32 s{sT3}, s{sT2}, 1")
                        A(f"s_add_u32 s{sT2}, s{sT2}, s{sT3}")
                    if ls[0]:
                        A(f"s_add_u32 s{sT2}, s{sT2}, {ls[0]}")
                A(f"s_mul_i32 s{sT1}, s{sT1}, {64*9216}")
                A(f"s_lshl_b32 s{sT2}, s{sT2}, 7")
                A(f"s_add_u32 s{sT1}, s{sT1}, s{sT2}")
                A(f"s_add_u32 s{sT1}, s{sT1}, s39")
                A(f"buffer_load_dword v255, v8, s[{SRD0}:{SRD0+3}], s{sT1} offen {cfg.tfl}")
                A(f"s_branch L_ht{k}")
                if c > nw:
                    A.label(f"L_hx{k2}")
                    A(f"s_sub_u32 s{sT2}, s{sT2}, {nw}")
                    A(f"s_mul_i32 s{sT2}, s{sT2}, {64*1152}")
                    A(f"s_lshl_b32 s{sT1}, s{sT1}, 7")
                    A(f"s_add_u32 s{sT1}, s{sT1}, s{sT2}")
                    A(f"buffer_load_dword v255, v9, s[{SRD1}:{SRD1+3}], s{sT1} offen")
                    A(f"s_branch L_ht{k}")
                A.label(f"L_hp{k2}")
            A.label(f"L_ht{k}")
    def h_pretouch():
        srd(SRD1, sWS, 0x10000000)
        A("v_lshlrev_b32 v10, 7, v1")
        A(f"s_mul_i32 s{sT1}, s{sJ}, 589824")
        A(f"s_add_u32 s{sT1}, s{sT1}, {WS_IN if cfg.hpin else WS_H}")
        for rnd in range(2):
            k = A.uid()
            A(f"s_add_u32 s{sT0}, s{sG}, {NWT*rnd}")
            A(f"s_cmp_ge_u32 s{sT0}, 72")
            A(f"s_cbranch_scc1 L_ht{k}")
            A(f"s_lshl_b32 s{sT0}, s{sT0}, 13")
            A(f"s_add_u32 s{sT0}, s{sT0}, s{sT1}")
            A(f"buffer_load_dword v255, v10, s[{SRD1}:{SRD1+3}], s{sT0} offen {cfg.hpf}")
            A.label(f"L_ht{k}")
    if cfg.hpre == 1:
        h_pretouch()
    if cfg.touch:
        srd(SRD0, sW2, 5308416)
        A(f"s_mul_i32 s39, s{sJ}, 663552")
        korder = sorted(kbidx, key=lambda x: kbidx[x])
        tabD = sum(d << (2 * u) for u, (d, lk) in enumerate(korder))
        tabL = sum(lk << (2 * u) for u, (d, lk) in enumerate(korder))
        if w2base:
            A(f"s_add_u32 s{sG}, s{sG}, {w2base}")
            A(f"s_and_b32 s{sG}, s{sG}, 63")
        for rnd in range(2):
            k = A.uid()
            A(f"s_add_u32 s{sT0}, s{sG}, {NWT*rnd}")
            A(f"s_cmp_ge_u32 s{sT0}, 81")
            A(f"s_cbranch_scc1 L_ht{k}")
            sdiv(sT1, sT0, 9)
            A(f"s_mul_i32 s{sT2}, s{sT1}, 9")
            A(f"s_sub_u32 s{sT2}, s{sT0}, s{sT2}")
            sdiv(sT3, sT2, 3)
            A(f"s_lshl_b32 s{sT1}, s{sT1}, 1")
            A(f"s_lshr_b32 s{sT0}, {tabD}, s{sT1}")
            A(f"s_and_b32 s{sT0}, s{sT0}, 3")
            A(f"s_add_u32 s{sT0}, s{sT0}, s{sT3}")
            A(f"s_cmp_ge_u32 s{sT0}, 3")
            A(f"s_cselect_b32 s{sT3}, 3, 0")
            A(f"s_sub_u32 s{sT0}, s{sT0}, s{sT3}")
            A(f"s_lshr_b32 s{sT3}, {tabL}, s{sT1}")
            A(f"s_and_b32 s{sT3}, s{sT3}, 3")
            A(f"s_mul_i32 s{sT0}, s{sT0}, {192*1152}")
            A(f"s_mul_i32 s{sT3}, s{sT3}, {64*1152}")
            A(f"s_add_u32 s{sT0}, s{sT0}, s{sT3}")
            A(f"s_lshl_b32 s{sT2}, s{sT2}, 7")
            A(f"s_add_u32 s{sT0}, s{sT0}, s{sT2}")
            A(f"s_add_u32 s{sT0}, s{sT0}, s39")
            A(f"buffer_load_dword v255, v9, s[{SRD0}:{SRD0+3}], s{sT0} offen {cfg.tfl}")
            A.label(f"L_ht{k}")
    if cfg.hpre == 2:
        h_pretouch()
    if TS:
        tsn[0] = 1
        A("s_waitcnt vmcnt(0)")
        stamp()
        stamp()
        stamp_flush()
    A("s_branch L_end")
    A.tail("end")
    A.label("L_end")

    hdr = f"""; Fused MLP (x@w1+b1 -> relu^2 -> @w2+b2), generated by a python script (work/gen4.py)
; @launch grid=(256,1,1) block=(512,1,1) lds=163840
.amdgcn_target "amdgcn-amd-amdhsa--gfx950"
.text
.globl {KN}
.p2align 8
.type {KN},@function
{KN}:
"""
    ftr = f"""
    s_endpgm
.section .rodata,"a"
.p2align 6
.amdhsa_kernel {KN}
  .amdhsa_next_free_vgpr 256
  .amdhsa_next_free_sgpr 102
  .amdhsa_accum_offset 256
  .amdhsa_group_segment_fixed_size 0
  .amdhsa_kernarg_size 64
  .amdhsa_user_sgpr_count 2
  .amdhsa_user_sgpr_kernarg_segment_ptr 1
  .amdhsa_system_sgpr_workgroup_id_x 1
.end_amdhsa_kernel
"""
    return hdr + A.text(cfg.horder.split(","), cfg.torder.split(",") + ["end"]) + ftr


def parse_g2(s):
    out = []
    for stg in s.split(","):
        us = []
        for u in stg.split("+"):
            a, b = u.split(":")
            us.append((int(a[0]), int(a[1]), [int(c) for c in b]))
        out.append(us)
    return out


def ilist(s):
    return [int(x) for x in s.split(",")] if s else []


def main():
    ap = argparse.ArgumentParser()
    ap.add_argument("-o", default="k8.s")
    ap.add_argument("--ts", action="store_true")
    ap.add_argument("--passes", default="012")
    ap.add_argument("--depth", type=int, default=5)
    ap.add_argument("--fill", type=int, default=4)
    ap.add_argument("--grp1", type=int, default=3)
    ap.add_argument("--hres", type=float, default=2.5)
    ap.add_argument("--hearly", type=float, default=1.5)
    ap.add_argument("--hdel", type=int, default=1)
    ap.add_argument("--xfree", type=int, default=11)
    ap.add_argument("--g2", default="00:012,01:012,02:012,10:012,20:012,11:012,21:012,12:012,22:012")
    ap.add_argument("--tsq", default="")
    ap.add_argument("--verbose", action="store_true")
    ap.add_argument("--ahead", type=int, default=8)
    ap.add_argument("--ahead0", type=int, default=8)
    ap.add_argument("--capfrom", type=int, default=8)
    ap.add_argument("--capw", type=int, default=4)
    ap.add_argument("--capx", type=int, default=3)
    ap.add_argument("--burst", default="")
    ap.add_argument("--pause", default="")
    ap.add_argument("--go2lead", type=int, default=3)
    ap.add_argument("--sa", type=int, default=0)
    ap.add_argument("--ctouch", type=int, default=1)
    ap.add_argument("--wfl", default="")
    ap.add_argument("--tfl", default="")
    ap.add_argument("--rfl", default="sc1")
    ap.add_argument("--rsleep", type=int, default=0)
    ap.add_argument("--touch", type=int, default=1)
    ap.add_argument("--clrq", type=int, default=-1)
    ap.add_argument("--cdq", type=int, default=9)
    ap.add_argument("--rbar", type=int, default=0)
    ap.add_argument("--hsf", default="sc1")
    ap.add_argument("--hlf", default="sc1")
    ap.add_argument("--ofl", default="")
    ap.add_argument("--hpre", type=int, default=0)
    ap.add_argument("--rot", default="00000000")
    ap.add_argument("--ts0", type=int, default=0)
    ap.add_argument("--hlsb", type=int, default=1)
    ap.add_argument("--dual", type=int, default=0)
    ap.add_argument("--encc", type=int, default=0)
    ap.add_argument("--encm", type=int, default=2)
    ap.add_argument("--slots", type=int, default=0)
    ap.add_argument("--rlate", type=int, default=0)
    ap.add_argument("--epi", type=int, default=0)
    ap.add_argument("--tm", default="")
    ap.add_argument("--wlast", type=int, default=0)
    ap.add_argument("--fdel", type=int, default=3)
    ap.add_argument("--fill1", type=int, default=5)
    ap.add_argument("--priow", type=int, default=0)
    ap.add_argument("--prioh", type=int, default=0)
    ap.add_argument("--r0early", type=int, default=0)
    ap.add_argument("--psf", default="sc1")
    ap.add_argument("--rw1", type=int, default=0)
    ap.add_argument("--ofl1", default="")
    ap.add_argument("--rpq", type=int, default=10)
    ap.add_argument("--rb2", type=int, default=1)
    ap.add_argument("--rb4", type=int, default=0)
    ap.add_argument("--rearly", type=int, default=0)
    ap.add_argument("--hpf", default="")
    ap.add_argument("--hpin", type=int, default=0)
    ap.add_argument("--wsb", type=lambda x: int(x, 0), default=0)
    ap.add_argument("--enc", default="")
    ap.add_argument("--encw", type=int, default=4)
    ap.add_argument("--hfree", type=int, default=2)
    ap.add_argument("--stouch", type=int, default=0)
    ap.add_argument("--stdel", type=int, default=1)
    ap.add_argument("--stf", default="")
    ap.add_argument("--ta", type=int, default=0)
    ap.add_argument("--tn", type=int, default=0)
    ap.add_argument("--tpos", type=int, default=0)
    ap.add_argument("--w2rot", type=int, default=1)
    ap.add_argument("--rfast", type=int, default=1)
    ap.add_argument("--wt", type=int, default=0)
    ap.add_argument("--horder", default="w,x,h2,hl,c")
    ap.add_argument("--ht0", type=int, default=1)
    ap.add_argument("--first", type=int, default=4)
    ap.add_argument("--torder", default="hl,w,x,h2,c,red")
    ap.add_argument("--skipw", type=int, default=1)
    ap.add_argument("--skipx", type=int, default=1)
    cfg = ap.parse_args()
    cfg.passes = [[int(c) for c in p] for p in cfg.passes.split(",")]
    cfg.g2 = parse_g2(cfg.g2)
    cfg.rnb = cfg.rb2
    cfg.tsq, cfg.burst, cfg.pause = ilist(cfg.tsq), ilist(cfg.burst), ilist(cfg.pause)
    open(cfg.o, "w").write(build(cfg))


main()
```

```python
import sys, argparse

KN = "standalone__dense_activation_squared_relu__sampling_kernel"

WS_H = 0x0
WS_IN = 0x1000000
WS_CD = 0x1840000
WS_EP = 0x1850000
WS_TS = 0x8000000
SPIN_MAX = 100000
SGNMASK = 0x6A9956A5


class Asm:
    def __init__(self):
        self.L = []
        self.n = 0

    def __call__(self, s):
        self.L.append("    " + s)

    def label(self, s):
        self.L.append(s + ":")

    def c(self, s):
        self.L.append("    ; " + s)

    def uid(self):
        self.n += 1
        return self.n

    def head(self, role):
        self.L.append(f"@@HEAD {role}")

    def tail(self, role):
        self.L.append(f"@@TAIL {role}")

    def text(self, horder, torder):
        pro, heads, tails, cur = [], {}, {}, None
        cur = pro
        for ln in self.L:
            if ln.startswith("@@HEAD"):
                cur = heads.setdefault(ln.split()[1], [])
            elif ln.startswith("@@TAIL"):
                r = ln.split()[1]
                if r in heads:
                    heads[r].append(f"    s_branch L_tail_{r}")
                cur = tails.setdefault(r, [f"L_tail_{r}:"])
            else:
                cur.append(ln)
        assert sorted(heads) == sorted(horder) and sorted(tails) == sorted(torder), (heads.keys(), tails.keys())
        out = pro
        for r in horder:
            out += heads[r]
        out.append("L_heads_end:")
        for r in torder:
            out += tails[r]
        return "\n".join(out)


def build(cfg):
    global WS_H, WS_IN, WS_EP
    WS_H = cfg.wsb
    WS_IN = cfg.wsb + 0x480000
    WS_EP = cfg.wsb + 0x900000 if not cfg.slots else 0x10000
    A = Asm()
    TS = cfg.ts
    passes = cfg.passes
    D = cfg.depth

    stages, blocks, order = [], {}, []

    def blk(name, **kw):
        blocks[name] = dict(name=name, **kw)
        return name

    def add_stage(units, breads):
        q = len(stages)
        stages.append(dict(units=units, breads=breads, q=q))
        for (bb, _kb) in breads:
            b = blocks[bb]
            b["need"] = b["last"] = q
            if b["kind"] != "Hown":
                order.append(bb)
        for (_t, wb, _kb, _first) in units:
            b = blocks[wb]
            if "need" not in b:
                b["need"] = q
                order.append(wb)
            b["last"] = q
        return q

    epi_after, pass_of_line = {}, {}
    for pi, lines in enumerate(passes):
        grp = 1 if (len(lines) > 1 or pi == 0) else cfg.grp1
        for t0 in range(0, 9, grp):
            units, breads = [], []
            for t in range(t0, t0 + grp):
                if pi == 0:
                    breads.append((blk(f"X{t}", kind="X", t=t), t))
                for l in lines:
                    units.append((l, blk(f"W{t}_{l}", kind="W1", t=t, l=l), t, False))
            q = add_stage(units, breads)
        epi_after[q] = (pi, list(lines))
        for l in lines:
            pass_of_line[l] = pi
    n_g1 = len(stages)
    kbidx = {}
    first = {0: True, 1: True, 2: True}
    cnt2 = {0: 0, 1: 0, 2: 0}
    epi2_after = {}
    for stg in cfg.g2:
        units, breads = [], []
        for (d, lk, lines) in stg:
            if (d, lk) not in kbidx:
                kbidx[(d, lk)] = len(kbidx)
                breads.append((blk(f"H{d}_{lk}", kind="Hown" if d == 0 else f"H{d}", d=d, lk=lk), kbidx[(d, lk)]))
            for l in lines:
                units.append((l, blk(f"V{d}_{lk}_{l}", kind="W2", d=d, lk=lk, l=l), kbidx[(d, lk)], first[l]))
                first[l] = False
                cnt2[l] += 1
        q = add_stage(units, breads)
        done = [l for l in range(3) if cnt2[l] == 9 and not any(l in v for v in epi2_after.values())]
        if done:
            epi2_after[q] = done
    assert all(v == 9 for v in cnt2.values())
    NQ = len(stages)
    hown_w = {l: q for q, (pi, lines) in epi_after.items() for l in lines}
    hown_vis = {l: (q + 1 if q == n_g1 - 1 else q + 2) for l, q in hown_w.items()}
    for l in hown_w:
        assert blocks[f"H0_{l}"]["need"] >= hown_vis[l]
    hfetch = {l: hown_vis[l] + cfg.hdel for l in hown_w}

    free_at = {s: -10 for s in range(20)}
    events = [(blocks[nm]["need"] - (cfg.hearly if blocks[nm]["kind"] in ("H1", "H2") else 0), 1, k, nm) for k, nm in enumerate(order)]
    for l, qw in hown_w.items():
        events.append((qw - cfg.hres, 0, l, f"H0_{l}"))
    events.sort()
    for ev in events:
        b = blocks[ev[3]]
        if b["kind"] == "X":
            cand = [16, 17, 18, 19]
        elif ev[0] < cfg.xfree:
            cand = list(range(0, 16))
        else:
            cand = list(range(0, 20))
        s = min(cand, key=lambda s: (free_at[s], s))
        b["slot"] = s
        b["free"] = free_at[s]
        if b["kind"] == "Hown":
            assert b["free"] + cfg.hfree <= hown_w[b["lk"]], b
        else:
            assert b["free"] + 2 < b["need"], b
        free_at[s] = b["last"]
    if cfg.verbose:
        print(" | ".join(f"{blocks[e[3]]['name']}:s{blocks[e[3]]['slot']} f{blocks[e[3]]['free']} n{blocks[e[3]]['need']}" for e in events), file=sys.stderr)
    for k, nm in enumerate(order):
        blocks[nm]["pos"] = k
    cum = [sum(1 for nm in order if blocks[nm]["need"] <= q) for q in range(NQ)]

    sX, sW1, sB1, sW2, sB2, sOUT, sDBG, sWS = 16, 18, 20, 22, 24, 26, 28, 30
    sJ, sR, sMT, sI, sWV, sWK = 32, 33, 34, 35, 36, 37
    SRD0, SRD1, SRD2 = 40, 44, 48
    sT0, sT1, sT2, sT3, sT4, sT5 = 52, 53, 54, 55, 56, 57
    sCNT = 58
    sTAG, sPB = 6, 8
    sTS = 64
    tsn = [0]

    def stamp():
        if TS:
            k = tsn[0]
            assert k < 16
            A(f"s_memtime s[{sTS+2*k}:{sTS+2*k+1}]")
            tsn[0] += 1

    def srd(d, p, nbytes):
        A(f"s_mov_b32 s{d}, s{p}")
        A(f"s_mov_b32 s{d+1}, s{p+1}")
        A(f"s_mov_b32 s{d+2}, {nbytes}")
        A(f"s_mov_b32 s{d+3}, 0x00020000")

    def stamp_flush():
        if not TS:
            return
        n = tsn[0]
        A("s_waitcnt lgkmcnt(0)")
        srd(SRD2, sWS, 0x10000000)
        A(f"s_lshl_b32 s{sT0}, s2, 9")
        A(f"s_lshl_b32 s{sT1}, s{sWV}, 6")
        A(f"s_add_u32 s{sT0}, s{sT0}, s{sT1}")
        A(f"s_add_u32 s{sT0}, s{sT0}, {WS_TS}")
        A(f"v_mov_b32 v2, s{sT0}")
        A("s_mov_b64 exec, 1")
        for k in range(n):
            A(f"v_mov_b32 v3, s{sTS+2*k}")
            A(f"buffer_store_dword v3, v2, s[{SRD2}:{SRD2+3}], 0 offen offset:{4*k}")
        A("s_mov_b64 exec, -1")

    def epoch_load(smt):
        A(f"s_lshl_b32 s{sT0}, s{smt}, 7")
        A(f"s_add_u32 s{sT0}, s{sT0}, {WS_EP}")
        A(f"s_load_dword s{sTAG}, s[{sWS}:{sWS+1}], s{sT0}")

    def epoch_fin():
        A("s_waitcnt lgkmcnt(0)")
        A(f"s_add_u32 s{sTAG}, s{sTAG}, 1")
        A(f"s_mul_i32 s{sTAG+1}, s{sTAG}, 0x02020202")
        A(f"s_and_b32 s{sTAG+1}, s{sTAG+1}, 0xeeeeeeee")
        A(f"s_or_b32 s{sTAG+1}, s{sTAG+1}, 0x10101010")
        if cfg.slots:
            A(f"s_and_b32 s14, s{sTAG}, {cfg.slots-1}")
            A(f"s_mul_i32 s14, s14, 0xa00000")

    def slot_add(*regs):
        if cfg.slots:
            for r in regs:
                A(f"s_add_u32 s{r}, s{r}, s14")

    def tag_regs(vd, vt):
        A(f"v_and_b32 v{vt}, 3, v1")
        A(f"v_lshlrev_b32 v{vt}, 3, v{vt}")
        A(f"v_lshrrev_b32 v{vt}, v{vt}, s{sTAG+1}")
        for k in range(4):
            A(f"v_bfe_u32 v{vd+k}, v{vt}, {2*k}, 2")
            A(f"v_mul_u32_u24 v{vd+k}, 0x8001, v{vd+k}")
            A(f"v_and_b32 v{vd+k}, 0x10001, v{vd+k}")
            A(f"v_lshl_or_b32 v{vd+k}, v{vd+k}, 15, v{vd+k}")

    def sign_reg(vd, vt):
        A(f"s_bitcmp1_b32 s{sTAG}, 0")
        A(f"s_cselect_b32 s{sT0}, -1, 0")
        A(f"s_xor_b32 s{sT0}, s{sT0}, {SGNMASK}")
        A(f"v_and_b32 v{vt}, 31, v1")
        A(f"v_lshrrev_b32 v{vt}, v{vt}, s{sT0}")
        A(f"v_bfe_i32 v{vt}, v{vt}, 0, 1")
        A(f"v_and_b32 v{vd}, 0x80008000, v{vt}")

    def sspin(loads, npairs, base):
        k = A.uid()
        A(f"s_mov_b32 s{sCNT}, 0")
        A.label(f"L_s{k}")
        for x in loads:
            A(x)
        A(f"s_add_u32 s{sCNT}, s{sCNT}, 1")
        A("s_waitcnt lgkmcnt(0)")
        A(f"s_cmp_gt_u32 s{sCNT}, {SPIN_MAX}")
        A(f"s_cbranch_scc1 L_sd{k}")
        for n in range(npairs):
            A(f"s_cmp_lg_u64 s[{base+2*n}:{base+2*n+1}], s[{sTAG}:{sTAG+1}]")
            A(f"s_cbranch_scc1 L_s{k}")
        A.label(f"L_sd{k}")

    def mod3add(dst, d, tmp):
        A(f"s_add_u32 s{dst}, s{sI}, {d}")
        A(f"s_cmp_ge_u32 s{dst}, 3")
        A(f"s_cselect_b32 s{tmp}, 3, 0")
        A(f"s_sub_u32 s{dst}, s{dst}, s{tmp}")

    A("s_cmp_ge_u32 s2, 256")
    A("s_cbranch_scc1 L_end")
    A("s_load_dwordx16 s[16:31], s[0:1], 0")
    if cfg.ctouch == 1:
        A("s_getpc_b64 s[4:5]")
        A.label("L_pc")
        A("v_lshlrev_b32 v2, 7, v0")
        A("v_min_u32 v2, L_end-L_pc, v2")
        A("v_and_b32 v2, 0xfffffffc, v2")
        A("global_load_dword v255, v2, s[4:5]")
    elif cfg.ctouch == 2:
        A("s_getpc_b64 s[4:5]")
        A.label("L_pc")
        A("s_lshr_b32 s3, s2, 3")
        A("s_lshl_b32 s3, s3, 11")
        A("v_lshrrev_b32 v2, 5, v0")
        A("v_lshl_add_u32 v2, v2, 7, s3")
        A("v_min_u32 v2, L_end-L_pc, v2")
        A("v_and_b32 v2, 0xfffffffc, v2")
        A("global_load_dword v255, v2, s[4:5]")
    if TS:
        A("s_memrealtime s[96:97]")
    if cfg.enc:
        A("s_memrealtime s[96:97]")
        if cfg.enc == "none":
            A("s_memrealtime s[94:95]")
        if cfg.encc:
            A("s_memtime s[92:93]")

    def enc(p):
        if cfg.enc == p:
            A("s_memrealtime s[94:95]" if not cfg.encc else "s_memtime s[94:95]")
    stamp()
    A("v_and_b32 v1, 63, v0")
    A("v_lshrrev_b32 v2, 6, v0")
    A(f"s_and_b32 s{sJ}, s2, 7")
    A(f"v_readfirstlane_b32 s{sWV}, v2")
    A(f"s_lshr_b32 s{sR}, s2, 3")
    A(f"s_cmp_lt_u32 s{sR}, 8")
    A("s_cbranch_scc1 L_helper")
    A(f"s_sub_u32 s{sR}, s{sR}, 8")
    A(f"s_mul_i32 s{sMT}, s{sR}, 21846")
    A(f"s_lshr_b32 s{sMT}, s{sMT}, 16")
    A(f"s_mul_i32 s{sT0}, s{sMT}, 3")
    A(f"s_sub_u32 s{sI}, s{sR}, s{sT0}")
    A(f"s_mul_i32 s{sWK}, s{sJ}, 24")
    A(f"s_add_u32 s{sWK}, s{sWK}, s{sR}")
    ROT = [int(c) for c in cfg.rot]
    ROTTAB = sum(r << (4 * m) for m, r in enumerate(ROT))
    sROT, sLO, sHI = 10, 11, 12
    if any(ROT):
        A(f"s_lshl_b32 s{sROT}, s{sMT}, 2")
        A(f"s_lshr_b32 s{sROT}, {ROTTAB}, s{sROT}")
        A(f"s_and_b32 s{sROT}, s{sROT}, 15")

    def rot_setup(sbase, stride):
        if any(ROT):
            A(f"s_mul_i32 s{sLO}, s{sROT}, {stride}")
            A(f"s_add_u32 s{sLO}, s{sLO}, s{sbase}")
            A(f"s_sub_u32 s{sHI}, s{sLO}, {9*stride}")

    def rot_addr(dst, sbase, t, stride, extra):
        if any(ROT):
            if t + max(ROT) < 9:
                A(f"s_add_u32 s{dst}, s{sLO}, {t*stride + extra}")
            else:
                A(f"s_cmp_lt_u32 s{sROT}, {9-t}")
                A(f"s_cselect_b32 s{dst}, s{sLO}, s{sHI}")
                A(f"s_add_u32 s{dst}, s{dst}, {t*stride + extra}")
        else:
            A(f"s_add_u32 s{dst}, s{sbase}, {t*stride + extra}")
    A(f"s_cmp_lt_u32 s{sWV}, 4")
    A("s_cbranch_scc1 L_compute")
    A(f"s_cmp_eq_u32 s{sWV}, 6")
    A("s_cbranch_scc1 L_xh")
    A(f"s_cmp_eq_u32 s{sWV}, 7")
    A("s_cbranch_scc1 L_h2")
    ts_base = tsn[0]

    def loader_stream(kinds, per_block, issue_fn, setup_fn, cap, group=False, validate=None, before_bar=None, role=None):
        mine = [blocks[nm] for nm in order if blocks[nm]["kind"] in kinds]
        outstanding, pend = [], list(mine)
        nb = lambda nm: blocks[nm]["n"] if blocks[nm]["kind"] == "extra" else (per_block(blocks[nm]) if callable(per_block) else per_block)
        cnt = lambda lst: sum(nb(x) for x in lst)

        def ok(b, q):
            if b["free"] + 2 > q:
                return False
            if b["kind"] in ("H1", "H2") and q < min(hfetch[b["lk"]], b["need"] - 1):
                return False
            return True

        def issue_upto(q, ahead, cap):
            n = 0
            lim = cum[q] + ahead if q >= 0 else ahead
            while pend and ok(pend[0], q):
                must = pend[0]["need"] <= q + 1 or pend[0]["pos"] < lim
                if not must and n >= cap:
                    break
                grp = [pend.pop(0)]
                while group and pend and ok(pend[0], q) and pend[0]["need"] == grp[0]["need"] and len(grp) < 3 \
                        and (pend[0]["pos"] < lim or n + len(grp) < cap or pend[0]["need"] <= q + 1):
                    grp.append(pend.pop(0))
                need_n = sum(nb(x["name"]) for x in grp)
                if cnt(outstanding) + need_n > 63:
                    while cnt(outstanding) + need_n > 63:
                        del outstanding[0]
                    A(f"s_waitcnt vmcnt({cnt(outstanding)})")
                issue_fn(grp if group else grp[0])
                if cfg.verbose:
                    print(f"   after B{q}: " + " ".join(x["name"] for x in grp), file=sys.stderr)
                outstanding.extend(x["name"] for x in grp)
                n += len(grp)

        issue_upto(-1, cfg.first, 0)
        if cfg.ts0:
            stamp()
        if role == "w":
            enc("iss")
        A.tail(role)
        pr = cfg.priow if role == "w" else cfg.prioh
        if pr:
            A(f"s_setprio {pr}")
        setup_fn()
        issue_upto(-1, cfg.ahead0, 0)
        for q in range(NQ):
            assert not any(b["need"] <= q for b in pend), (q, pend[0])
            def wait_for(b):
                if b["name"] in outstanding:
                    idx = max(i for i, nm in enumerate(outstanding) if blocks[nm]["need"] <= q) if validate is None \
                        else outstanding.index(b["name"])
                    del outstanding[:idx + 1]
                    A(f"s_waitcnt vmcnt({cnt(outstanding)})")
            hs = []
            for b in mine:
                if b["need"] == q:
                    if validate is not None and b["kind"] != "X":
                        hs.append(b)
                    else:
                        wait_for(b)
            if hs:
                validate(hs, wait_for)
            if before_bar is not None:
                ex = before_bar(q)
                if ex:
                    nm = f"extra{A.uid()}"
                    blocks[nm] = dict(name=nm, kind="extra", n=ex, need=99)
                    outstanding.append(nm)
            if q in cfg.tsq:
                stamp()
            A("s_barrier")
            if role == "w":
                enc(f"B{q}")
            if q in cfg.pause:
                issue_upto(q, 0, 0)
            else:
                issue_upto(q, cfg.ahead, 99 if q in cfg.burst else (cap if q >= cfg.capfrom else 0))
        assert not pend

    vRA, vRO, vRB, vRC, vRD, vRT, vRX, vRZ, vRG = 64, 65, 66, 72, 80, 112, 116, 117, 120
    sRI, sRO, sC = 60, 61, 13

    def vr(r, W):
        return f"v{r}" if W == 1 else f"v[{r}:{r+W-1}]"

    def dw(W):
        return "dword" if W == 1 else f"dwordx{W}"

    def red_pre(W):
        if W == 2:
            A(f"s_sub_u32 s{sC}, s{sWV}, 4")
            A(f"v_lshlrev_b32 v{vRA}, 3, v1")
            A(f"s_lshl_b32 s{sRO}, s{sC}, 6")
            A(f"s_lshl_b32 s{sRI}, s{sC}, 9")
            A(f"v_lshrrev_b32 v{vRT}, 4, v1")
            A(f"v_and_b32 v{vRT+1}, 1, v1")
            A(f"v_lshlrev_b32 v{vRT+1}, 3, v{vRT+1}")
            A(f"v_lshl_add_u32 v{vRT}, v{vRT}, 4, v{vRT+1}")
            A(f"v_bfe_u32 v{vRT+2}, v1, 1, 3")
            A(f"v_and_b32 v{vRT+3}, 7, v1")
            A(f"v_lshlrev_b32 v{vRT+3}, 2, v{vRT+3}")
        else:
            A(f"s_add_u32 s{sC}, s{sWV}, 8")
            A(f"v_lshlrev_b32 v{vRA}, 2, v1")
            A(f"s_lshl_b32 s{sRO}, s{sC}, 5")
            A(f"s_lshl_b32 s{sRI}, s{sC}, 8")
            A(f"v_lshrrev_b32 v{vRT}, 5, v1")
            A(f"v_and_b32 v{vRT+1}, 3, v1")
            A(f"v_lshlrev_b32 v{vRT+1}, 2, v{vRT+1}")
            A(f"v_lshl_add_u32 v{vRT}, v{vRT}, 4, v{vRT+1}")
            A(f"v_bfe_u32 v{vRT+2}, v1, 2, 3")
            A(f"v_and_b32 v{vRT+3}, 15, v1")
            A(f"v_lshlrev_b32 v{vRT+3}, 1, v{vRT+3}")
        A(f"s_mul_i32 s{sT1}, s{sI}, 384")
        A(f"s_add_u32 s{sRO}, s{sRO}, s{sT1}")
        if W == 2:
            srd(SRD2, sB2, 1152)
            A(f"buffer_load_{dw(W)} {vr(vRB, W)}, v{vRT}, s[{SRD2}:{SRD2+3}], s{sRO} offen")
        else:
            A(f"v_mov_b32 v{vRB}, v249")
        A(f"s_lshl_b32 s{sT1}, s{sJ}, 3")
        A(f"s_lshl_b32 s{sT3}, s{sMT}, 6")
        A(f"s_add_u32 s{sT1}, s{sT1}, s{sT3}")
        A(f"s_mul_i32 s{sT1}, s{sT1}, 1152")
        A(f"s_add_u32 s{sRO}, s{sRO}, s{sT1}")
        A(f"v_mul_u32_u24 v{vRT+2}, 1152, v{vRT+2}")
        A(f"v_add_u32 v{vRO}, v{vRT}, v{vRT+2}")
        A(f"s_mul_i32 s{sT1}, s{sWK}, {8*3072}")
        A(f"s_add_u32 s{sRI}, s{sRI}, s{sT1}")
        A(f"s_add_u32 s{sRI}, s{sRI}, {WS_IN}")
        slot_add(sRI)
        A(f"v_mov_b32 v{vRZ}, 0")
        A(f"v_lshrrev_b32 v{vRT+3}, v{vRT+3}, s{sTAG+1}")
        for k in range(W):
            A(f"v_bfe_u32 v{vRG+k}, v{vRT+3}, {2*k}, 2")
            A(f"v_mul_u32_u24 v{vRG+k}, 0x8001, v{vRG+k}")
        A(f"v_mov_b32 v{vRG+4}, 0x10001")
        A(f"v_mov_b32 v{vRG+5}, 0xffff0000")
        return 1

    def red_init(W):
        for k in range(W):
            A(f"v_lshlrev_b32 v{vRC+2*k}, 16, v{vRB+k}")
            A(f"v_and_b32 v{vRC+1+2*k}, v{vRG+5}, v{vRB+k}")

    def bb_w(q):
        if q == 2:
            epoch_fin()
        if q == cfg.rpq:
            return red_pre(2)
        if q == cfg.rpq + 3:
            red_init(2)

    A.head("w")
    sHW = sT5
    A(f"s_sub_u32 s{sHW}, s{sWV}, 4")
    A("v_lshrrev_b32 v2, 3, v1")
    A("v_and_b32 v3, 7, v1")
    A("v_bfe_u32 v4, v1, 4, 1")
    A("v_lshlrev_b32 v4, 2, v4")
    A("v_xor_b32 v3, v3, v4")
    A("v_lshlrev_b32 v3, 4, v3")
    A("v_lshrrev_b32 v4, 2, v2")
    A("v_and_b32 v5, 3, v2")
    A("v_lshl_add_u32 v4, v4, 3, v5")
    A(f"s_lshl_b32 s{sT0}, s{sHW}, 5")
    A(f"v_add_u32 v4, s{sT0}, v4")
    A("v_mul_u32_u24 v4, 9216, v4")
    A("v_add_u32 v4, v4, v3")
    for c in range(1, 4):
        A(f"v_add_u32 v{4+c}, {(16*(c>>1)+4*(c&1))*9216 - 1024*c}, v4")
    sLW, sC1 = sT4, 38
    A(f"s_lshl_b32 s{sLW}, s{sHW}, 12")
    A(f"s_mul_i32 s{sC1}, s{sJ}, 1152")
    A(f"s_mul_i32 s{sT1}, s{sI}, 384")
    A(f"s_add_u32 s{sC1}, s{sC1}, s{sT1}")
    rot_setup(sC1, 64*9216)
    if cfg.wt:
        A("v_and_b32 v12, 7, v1")
        A("v_lshrrev_b32 v13, 5, v1")
        A("v_lshl_add_u32 v12, v13, 6, v12")
        A("v_mul_u32_u24 v12, 9216, v12")
        A("v_bfe_u32 v13, v1, 3, 2")
        A("v_lshl_add_u32 v12, v13, 7, v12")
        A(f"s_lshl_b32 s{sT0}, s{sHW}, 4")
        A(f"s_add_u32 s{sT0}, s{sT0}, s{sMT}")
        A(f"s_mul_i32 s{sT0}, s{sT0}, {8*9216}")
        A(f"s_add_u32 s{sT0}, s{sT0}, s{sC1}")
        msk = [sum(0xffffff << (32 * h) for h in range(2) if 2 * w + h < cfg.wt) for w in range(2)]
        A(f"s_mov_b32 exec_lo, {msk[0] & 0xffffffff}")
        A(f"s_mov_b32 exec_hi, {msk[0] >> 32}")
        if msk[1] != msk[0]:
            A(f"s_cmp_eq_u32 s{sHW}, 0")
            A(f"s_cselect_b32 exec_lo, exec_lo, {(msk[1] & 0xffffffff) or 1}")
            A(f"s_cselect_b32 exec_hi, exec_hi, {msk[1] >> 32}")
    A("s_waitcnt lgkmcnt(0)")
    if cfg.ts0:
        stamp()
    srd(SRD0, sW1, 5308416)
    if cfg.wt:
        A(f"buffer_load_dword v255, v12, s[{SRD0}:{SRD0+3}], s{sT0} offen")
        A("s_mov_b64 exec, -1")
    sV = [62, 63, 59]

    def w2_setup():
        epoch_load(sMT)
        A(f"s_lshl_b32 s{sT0}, s{sHW}, 5")
        A(f"v_add_u32 v8, s{sT0}, v2")
        A("v_mul_u32_u24 v8, 1152, v8")
        A("v_add_u32 v8, v8, v3")
        for c in range(1, 4):
            A(f"v_add_u32 v{8+c}, {8*c*1152 - 1024*c}, v8")
        A(f"s_mul_i32 s39, s{sJ}, {576*1152}")
        A(f"s_mul_i32 s{sT0}, s{sI}, 384")
        A(f"s_add_u32 s39, s39, s{sT0}")
        for d in range(3):
            mod3add(sT1, d, sT2)
            A(f"s_mul_i32 s{sT1}, s{sT1}, {192*1152}")
            A(f"s_add_u32 s{sV[d]}, s39, s{sT1}")
        srd(SRD1, sW2, 5308416)

    def issue_w(grp):
        for b in grp:
            A(f"s_add_u32 m0, s{sLW}, {b['slot']*8192}")
            if b["kind"] == "W1":
                rot_addr(sT0, sC1, b['t'], 64*9216, 128*b['l'])
                vb, sr = 4, SRD0
            else:
                A(f"s_add_u32 s{sT0}, s{sV[b['d']]}, {64*b['lk']*1152 + 128*b['l']}")
                vb, sr = 8, SRD1
            for c in range(4):
                A(f"buffer_load_dwordx4 v{vb+c}, s[{sr}:{sr+3}], s{sT0} offen offset:{1024*c} {cfg.wfl} lds")

    loader_stream(("W1", "W2"), 4, issue_w, w2_setup, cfg.capw, group=True,
                  before_bar=bb_w, role="w")
    A("s_branch L_reduce")
    ts_max = tsn[0]

    sXB = 38
    sH = {1: 39, 2: 59}
    HALF = [0]

    def h_setup(half):
        A("v_lshlrev_b32 v12, 4, v1")
        A("v_add_u32 v13, 0x10000, v12")
        A("v_add_u32 v14, 0x20000, v12")
        A(f"s_sub_u32 s{sT0}, s{sWK}, s{sI}")
        for d in (1, 2):
            mod3add(sT1, d, sT2)
            A(f"s_add_u32 s{sT1}, s{sT1}, s{sT0}")
            A(f"s_mul_i32 s{sH[d]}, s{sT1}, 24576")
        srd(SRD1, sWS, 0x10000000)
        epoch_load(sMT)

    def issue_xh(b):
        for h in (range(2) if b["kind"] == "X" else HALF):
            A(f"s_mov_b32 m0, {b['slot']*8192 + 4096*h}")
            if b["kind"] == "X":
                rot_addr(sT0, sXB, b['t'], 128, 32*1152*h)
                for c in range(4):
                    A(f"buffer_load_dwordx4 v{8+c}, s[{SRD0}:{SRD0+3}], s{sT0} offen offset:{1024*c} lds")
            else:
                A(f"s_add_u32 s{sT0}, s{sH[b['d']]}, {WS_H + 8192*b['lk'] + 4096*h}")
                for c in range(4):
                    A(f"buffer_load_dwordx4 v12, s[{SRD1}:{SRD1+3}], s{sT0} offen offset:{1024*c} {cfg.hlf} lds")

    retry_code = []

    def validate(hs, wait_for):
        k = A.uid()

        def rd(i):
            addr = hs[i]["slot"] * 8192 + 4096 * HALF[0]
            for c in range(4):
                r = 128 + 16 * i + 4 * c
                A(f"ds_read_b128 v[{r}:{r+3}], v{12 + (addr >> 16)} offset:{(addr & 0xffff) + 1024*c}")

        def valu(i, later):
            for c in range(4):
                r = 128 + 16 * i + 4 * c
                A(f"s_waitcnt lgkmcnt({3-c+later})")
                for kk in range(4):
                    ac = 16 + ((kk + 2) & 3)
                    if i == 0 and c == 0:
                        A(f"v_xor_b32 v{ac}, v{r+kk}, v{25+kk}")
                    else:
                        A(f"v_bitop3_b32 v{ac}, v{ac}, v{r+kk}, v{25+kk} bitop3:0xf6")
        A.label(f"L_v{k}")
        for i in range(len(hs)):
            wait_for(hs[i])
            rd(i)
            if i:
                valu(i - 1, 4)
        valu(len(hs) - 1, 0)
        A("v_or3_b32 v16, v16, v17, v18")
        A("v_bitop3_b32 v16, v16, v19, v24 bitop3:0xa8")
        A("v_cmp_ne_u32 vcc, 0, v16")
        A(f"s_cbranch_vccnz L_vr{k}")
        A.label(f"L_vd{k}")
        n0 = len(A.L)
        A.label(f"L_vr{k}")
        A(f"s_cmp_gt_u32 s{sCNT}, {SPIN_MAX}")
        A(f"s_cbranch_scc1 L_vd{k}")
        for b in hs:
            issue_xh(b)
        A(f"s_add_u32 s{sCNT}, s{sCNT}, 1")
        A("s_waitcnt vmcnt(0)")
        A(f"s_branch L_v{k}")
        retry_code.extend(A.L[n0:])
        del A.L[n0:]

    def flush_retry():
        A.L.extend(retry_code)
        retry_code.clear()

    def bb_tag(q):
        if q == 2:
            epoch_fin()
            slot_add(sH[1], sH[2])
            tag_regs(25, 16)
            A(f"v_mov_b32 v24, {0x10001 if cfg.hlsb else 0x80008000}")
            A(f"s_mov_b32 s{sCNT}, 0")
        if q == cfg.rpq:
            return red_pre(2)
        if q == cfg.rpq + 3:
            red_init(2)

    A.head("x")
    A.label("L_xh")
    tsn[0] = ts_base
    A("v_lshrrev_b32 v2, 3, v1")
    A("v_and_b32 v3, 7, v1")
    A("v_lshrrev_b32 v4, 4, v1")
    A("v_xor_b32 v3, v3, v4")
    A("v_lshlrev_b32 v3, 4, v3")
    A("v_mul_u32_u24 v4, 1152, v2")
    A("v_add_u32 v8, v4, v3")
    A("v_xor_b32 v5, 64, v8")
    A(f"v_add_u32 v9, {8*1152 - 1024}, v5")
    A(f"v_add_u32 v10, {16*1152 - 2048}, v8")
    A(f"v_add_u32 v11, {24*1152 - 3072}, v5")
    A(f"s_mul_i32 s{sXB}, s{sMT}, {64*1152}")
    rot_setup(sXB, 128)

    def x_touch_pre(st0):
        A(f"s_mul_i32 s{sT0}, s{sI}, 22")
        A("v_and_b32 v12, 31, v1")
        A(f"v_add_u32 v12, s{sT0}, v12")
        A("v_min_u32 v12, 63, v12")
        A("v_mul_u32_u24 v12, 1152, v12")
        A("v_lshrrev_b32 v13, 5, v1")
        A("v_lshl_add_u32 v12, v13, 7, v12")
        A("s_mov_b32 exec_lo, 0x3fffff")
        A(f"s_mov_b32 exec_hi, {0x3fffff if cfg.wt > st0 + 1 else 0}")

    def x_touch(st0):
        A(f"buffer_load_dword v255, v12, s[{SRD0}:{SRD0+3}], s{sXB} offen offset:{128*st0}")
        A("s_mov_b64 exec, -1")
    if cfg.wt:
        x_touch_pre(0)
    A("s_waitcnt lgkmcnt(0)")
    if cfg.ts0:
        stamp()
    srd(SRD0, sX, 589824)
    if cfg.wt:
        x_touch(0)
    nbx = lambda b: 8 if b["kind"] == "X" else 4
    loader_stream(("X", "H1", "H2"), nbx, issue_xh, lambda: h_setup(0), cfg.capx, validate=validate, before_bar=bb_tag, role="x")
    if TS:
        A(f"s_mov_b32 s{sTS+24}, s{sCNT}")
    A("s_branch L_reduce")
    flush_retry()
    ts_max = max(ts_max, tsn[0])

    A.head("h2")
    A.label("L_h2")
    tsn[0] = ts_base
    if cfg.wt > 2:
        A(f"s_mul_i32 s{sXB}, s{sMT}, {64*1152}")
        x_touch_pre(2)
    A("s_waitcnt lgkmcnt(0)")
    if cfg.wt > 2:
        srd(SRD0, sX, 589824)
        x_touch(2)
    srd(SRD1, sWS, 0x10000000)
    if cfg.hpre == 3:
        A("v_lshlrev_b32 v3, 7, v1")
        A(f"s_mul_i32 s{sT1}, s{sWK}, 24576")
        A(f"s_add_u32 s{sT1}, s{sT1}, {WS_H}")
        for c in range(3):
            A(f"buffer_load_dword v255, v3, s[{SRD1}:{SRD1+3}], s{sT1} offen")
            A(f"s_add_u32 s{sT1}, s{sT1}, 8192")

    def w7_touch():
        st = list(range(cfg.ta, cfg.ta + cfg.tn))
        srd(SRD0, sX, 589824)
        srd(SRD2, sW1, 5308416)
        A(f"s_mul_i32 s{sXB}, s{sMT}, {64*1152}")
        A(f"s_mul_i32 s{sT0}, s{sI}, 22")
        A("v_and_b32 v2, 31, v1")
        A(f"v_add_u32 v2, s{sT0}, v2")
        A("v_min_u32 v2, 63, v2")
        A("v_mul_u32_u24 v2, 1152, v2")
        A("v_lshrrev_b32 v4, 5, v1")
        A("v_lshl_add_u32 v2, v4, 7, v2")
        A("v_and_b32 v3, 7, v1")
        A("v_lshl_add_u32 v3, v4, 6, v3")
        A("v_mul_u32_u24 v3, 9216, v3")
        A("v_bfe_u32 v4, v1, 3, 2")
        A("v_lshl_add_u32 v3, v4, 7, v3")
        A(f"s_mul_i32 s{sT0}, s{sMT}, {8*9216}")
        A(f"s_mul_i32 s{sT1}, s{sJ}, 1152")
        A(f"s_add_u32 s{sT0}, s{sT0}, s{sT1}")
        A(f"s_mul_i32 s{sT1}, s{sI}, 384")
        A(f"s_add_u32 s{sT0}, s{sT0}, s{sT1}")
        for p in range(0, len(st), 2):
            two = p + 1 < len(st)
            A(f"s_add_u32 s{sT1}, s{sT0}, {st[p]*64*9216}")
            A("s_mov_b32 exec_lo, 0xffffff")
            A(f"s_mov_b32 exec_hi, {0xffffff if two else 0}")
            A(f"buffer_load_dword v255, v3, s[{SRD2}:{SRD2+3}], s{sT1} offen")
            A("s_mov_b32 exec_lo, 0x3fffff")
            A(f"s_mov_b32 exec_hi, {0x3fffff if two else 0}")
            A(f"buffer_load_dword v255, v2, s[{SRD0}:{SRD0+3}], s{sXB} offen offset:{128*st[p]}")
        A("s_mov_b64 exec, -1")
    if cfg.tn and cfg.tpos == 0:
        w7_touch()

    def bb_h2(q):
        if cfg.tn and cfg.tpos == 1 and q == 0:
            A("s_waitcnt lgkmcnt(0)")
            w7_touch()
        if cfg.tn and cfg.tpos >= 2 and q == cfg.tpos - 1:
            w7_touch()
        if cfg.tn and q == 7:
            A("s_waitcnt vmcnt(0)")
        if q == 2 and (cfg.hpre == 3 or cfg.wt > 2):
            A("s_waitcnt vmcnt(0)")
        return bb_tag(q)

    HALF[0] = 1
    loader_stream(("H1", "H2"), nbx, issue_xh, lambda: h_setup(1), cfg.capx, validate=validate, before_bar=bb_h2, role="h2")
    ts_max = max(ts_max, tsn[0])
    A("s_branch L_reduce")
    flush_retry()

    A.tail("red")
    sM, sQ = sT5, sT4
    sVC = 16

    def reduce_code(W, nbar):
        x = f"{W}"
        srd(SRD1, sWS, 0x10000000)
        A(f"s_mov_b32 s{sCNT}, 0")
        srd(SRD0, sOUT, 589824)
        if W == 1:
            red_pre(1)
            red_init(1)
            A(f"s_waitcnt vmcnt({cfg.rw1})")
            if cfg.rlate == 1:
                A("s_barrier")

        def ld(s_):
            A(f"s_add_u32 s{sT1}, s{sRI}, {3072*s_}")
            A(f"buffer_load_{dw(W)} {vr(vRD+W*s_, W)}, v{vRA}, s[{SRD1}:{SRD1+3}], s{sT1} offen {cfg.rfl}")
        if W == 2 and cfg.r0early and nbar:
            A(f"s_cmp_ge_u32 s{sC}, 2")
            A("s_cbranch_scc1 L_rlate")
            stamp()
            tsn[0] -= 1 if TS else 0
            for s_ in range(8):
                ld(s_)
            A("s_barrier")
            A("s_branch L_rfirst")
            A.label("L_rlate")
        for _ in range(nbar):
            A("s_barrier")
        stamp()
        enc("rbar")

        def chk_i(s_, dst, t):
            r = vRD + W * s_
            if W == 1:
                o = [f"v_bitop3_b32 v{t}, v{r}, v{vRG}, v{vRG+4} bitop3:0x28"]
            else:
                o = [f"v_xor_b32 v{t}, v{r}, v{vRG}"]
                for k in range(1, W):
                    o.append(f"v_bitop3_b32 v{t}, v{t}, v{r+k}, v{vRG+k} bitop3:0xf6")
                o.append(f"v_and_b32 v{t}, v{vRG+4}, v{t}")
            o.append(f"v_cmp_ne_u32 {dst}, 0, v{t}")
            return o

        def acc_i(s_, t0):
            r = vRD + W * s_
            o = []
            for k in range(W):
                t = t0 + 2 * k
                o.append(f"v_lshlrev_b32 v{t}, 16, v{r+k}")
                o.append(f"v_and_b32 v{t+1}, v{vRG+5}, v{r+k}")
            for k in range(W):
                t = t0 + 2 * k
                o.append(f"v_pk_add_f32 v[{vRC+2*k}:{vRC+1+2*k}], v[{vRC+2*k}:{vRC+1+2*k}], v[{t}:{t+1}]")
            return o

        def masked(sm, fn, tag):
            for g in range(2):
                A(f"s_and_b32 s{sT0}, s{sm}, {0xf << (4*g)}")
                A(f"s_cbranch_scc0 L_{tag}{x}g{g}")
                for s_ in range(4 * g, 4 * g + 4):
                    A(f"s_bitcmp0_b32 s{sm}, {s_}")
                    A(f"s_cbranch_scc1 L_{tag}{x}s{s_}")
                    fn(s_)
                    A.label(f"L_{tag}{x}s{s_}")
                A.label(f"L_{tag}{x}g{g}")

        for s_ in range(8):
            ld(s_)
        for _ in range(nbar, cfg.rnb if W != 1 else 0):
            A("s_barrier")
        if W == 1 and cfg.rlate == 2:
            A("s_barrier")
        if W == 2:
            A.label("L_rfirst")
        for s_ in range(8):
            A(f"s_waitcnt vmcnt({7-s_})")
            c = chk_i(s_, f"s[{sVC+2*s_}:{sVC+2*s_+1}]", vRX)
            a_ = acc_i(s_, vRT)
            while c or a_:
                if c:
                    A(c.pop(0))
                if a_:
                    A(a_.pop(0))
            if s_ >= 2:
                A(f"s_or_b64 vcc, {'s[16:17]' if s_ == 2 else 'vcc'}, s[{sVC+2*s_-2}:{sVC+2*s_-1}]")
        A(f"s_or_b64 vcc, vcc, s[{sVC+14}:{sVC+15}]")
        A(f"s_cbranch_scc0 L_rdone{x}")
        A(f"s_mov_b32 s{sM}, 0")
        for s_ in range(7, -1, -1):
            A(f"s_cmp_lg_u64 s[{sVC+2*s_}:{sVC+2*s_+1}], 0")
            A(f"s_addc_u32 s{sM}, s{sM}, s{sM}")
        A(f"s_xor_b32 s{sQ}, s{sM}, 0xff")
        red_init(W)
        A.label(f"L_rtop{x}")
        masked(sM, ld, "rl")
        masked(sQ, lambda s_: [A(t) for t in acc_i(s_, vRT)], "ra")
        A(f"s_add_u32 s{sCNT}, s{sCNT}, 1")
        A(f"s_mov_b32 s{sQ}, s{sM}")
        A(f"s_cmp_gt_u32 s{sCNT}, {SPIN_MAX}")
        A(f"s_cbranch_scc1 L_rdone{x}")
        A("s_waitcnt vmcnt(0)")

        def chk2(s_):
            for t in chk_i(s_, "vcc", vRX):
                A(t)
            A(f"s_cbranch_vccnz L_rc{x}s{s_}")
            A(f"s_bitset0_b32 s{sM}, {s_}")
            for t in acc_i(s_, vRT):
                A(t)
        masked(sQ, chk2, "rc")
        A(f"s_mov_b32 s{sQ}, 0")
        A(f"s_cmp_lg_u32 s{sM}, 0")
        A(f"s_cbranch_scc1 L_rtop{x}")
        A.label(f"L_rdone{x}")
        stamp()
        enc("rdone")
        for k in range(W):
            A(f"v_cvt_pk_bf16_f32 v{vRC+k}, v{vRC+2*k}, v{vRC+1+2*k}")
        A(f"buffer_store_{dw(W)} {vr(vRC, W)}, v{vRO}, s[{SRD0}:{SRD0+3}], s{sRO} offen {cfg.ofl if W > 1 else cfg.ofl1}")
        if TS:
            A(f"s_mov_b32 s{sWS}, s{SRD1}")
            A(f"s_mov_b32 s{sWS+1}, s{SRD1+1}")

    A.label("L_reduce")
    tsn[0] = ts_max
    reduce_code(2, cfg.rb2)
    A(f"s_or_b32 s{sT0}, s{sJ}, s{sI}")
    A(f"s_or_b32 s{sT0}, s{sT0}, s{sC}")
    A(f"s_cmp_lg_u32 s{sT0}, 0")
    A("s_cbranch_scc1 L_noep")
    A(f"v_mov_b32 v16, s{sTAG}")
    A(f"s_lshl_b32 s{sT0}, s{sMT}, 7")
    A(f"s_add_u32 s{sT0}, s{sT0}, {WS_EP}")
    A("s_mov_b64 exec, 1")
    A(f"buffer_store_dword v16, v{vRZ}, s[{SRD1}:{SRD1+3}], s{sT0} offen sc1")
    A("s_mov_b64 exec, -1")
    A.label("L_noep")
    if cfg.enc:
        if cfg.enc == "end":
            A("s_waitcnt vmcnt(0)")
            enc("end")
        if cfg.encw >= 0:
            A(f"s_cmp_lg_u32 s{sWV}, {cfg.encw}")
            A("s_cbranch_scc1 L_end")
        A("s_waitcnt lgkmcnt(0)")
        if cfg.encc:
            A("s_sub_u32 s94, s94, s92")
            A("s_lshr_b32 s94, s94, 1")
        else:
            A("s_sub_u32 s94, s94, s96")
            A(f"s_mul_i32 s94, s94, {cfg.encm}")
        A("s_add_u32 s94, s94, 3000")
        A.label("L_dly")
        A("s_memrealtime s[98:99]")
        A("s_waitcnt lgkmcnt(0)")
        A("s_sub_u32 s98, s98, s96")
        A("s_cmp_lt_u32 s98, s94")
        A("s_cbranch_scc1 L_dly")
    if TS:
        A("s_waitcnt vmcnt(0)")
        stamp()
        A("s_memrealtime s[98:99]")
        A("s_waitcnt lgkmcnt(0)")
        A(f"s_mov_b32 s{sTS+26}, s96"); A(f"s_mov_b32 s{sTS+28}, s98"); A(f"s_mov_b32 s{sTS+30}, s{sCNT}")
        assert tsn[0] <= 12
        tsn[0] = 16
        stamp_flush()
    A("s_branch L_end")

    A.head("c")
    A.label("L_compute")
    tsn[0] = ts_base
    vACC, vAB, vXB, vT = 16, 64, 96, 240
    nAB = D + 1
    vA, vBX, vBH, vHW = [2, 3, 4], [5, 6, 7, 8], [9, 10, 11], [12, 13, 14]
    vTG, vL16 = vT + 11, vT + 10
    assert vAB + 4 * nAB <= vXB
    sA, sBq = sT4, sT5
    A(f"s_and_b32 s{sA}, s{sWV}, 1")
    A(f"s_lshr_b32 s{sBq}, s{sWV}, 1")
    A(f"v_lshrrev_b32 v{vT}, 5, v1")
    A(f"s_mul_i32 s60, s{sJ}, 1152")
    A(f"s_mul_i32 s{sT1}, s{sI}, 384")
    A(f"s_add_u32 s60, s60, s{sT1}")
    A(f"s_lshl_b32 s{sT1}, s{sBq}, 6")
    A(f"s_add_u32 s61, s60, s{sT1}")
    A(f"v_lshlrev_b32 v{vT+4}, 3, v{vT}")
    if cfg.sa:
        A(f"s_add_u32 s{sT3}, s{sWV}, 1")
        A(f"v_and_b32 v{vT+5}, 7, v1")
        A(f"v_mul_u32_u24 v{vT+5}, 9216, v{vT+5}")
        A(f"v_lshrrev_b32 v{vT+6}, 3, v1")
        A(f"v_min_u32 v{vT+6}, 2, v{vT+6}")
        A(f"v_lshl_add_u32 v{vT+5}, v{vT+6}, 7, v{vT+5}")
        A(f"s_lshl_b32 s{sT1}, s{sT3}, 3")
        A(f"s_add_u32 s{sT1}, s{sT1}, s{sMT}")
        A(f"s_mul_i32 s{sT1}, s{sT1}, {8*9216}")
        A(f"s_add_u32 s{sT1}, s{sT1}, s60")
        A(f"s_mul_i32 s{sT2}, s{sI}, 22")
        A(f"v_min_u32 v{vT+6}, 21, v1")
        A(f"v_add_u32 v{vT+6}, s{sT2}, v{vT+6}")
        A(f"v_min_u32 v{vT+6}, 63, v{vT+6}")
        A(f"v_mul_u32_u24 v{vT+6}, 1152, v{vT+6}")
        A(f"s_mul_i32 s{sT2}, s{sMT}, {64*1152}")
        A(f"s_lshl_b32 s{sT3}, s{sT3}, 7")
        A(f"s_add_u32 s{sT2}, s{sT2}, s{sT3}")
    A("s_waitcnt lgkmcnt(0)")
    srd(SRD0, sB1, 9216)
    for l in range(3):
        for g in range(4):
            r = vXB + 2 * (4 * l + g)
            A(f"buffer_load_dwordx2 v[{r}:{r+1}], v{vT+4}, s[{SRD0}:{SRD0+3}], s61 offen offset:{128*l+16*g}")
    if cfg.sa:
        srd(SRD1, sW1, 5308416)
        srd(SRD2, sX, 589824)
        A(f"s_cmp_ge_u32 s{sWV}, {cfg.sa}")
        A("s_cbranch_scc1 L_tdone")
        A(f"buffer_load_dword v255, v{vT+5}, s[{SRD1}:{SRD1+3}], s{sT1} offen {cfg.tfl}")
        A(f"buffer_load_dword v255, v{vT+6}, s[{SRD2}:{SRD2+3}], s{sT2} offen")
        A.label("L_tdone")
    epoch_load(sMT)
    A.tail("c")
    srd(SRD2, sB2, 1152)
    A(f"v_and_b32 v{vT+1}, 3, v1")
    A(f"v_lshlrev_b32 v{vT+1}, 2, v{vT+1}")
    A(f"v_lshl_add_u32 v{vT+1}, v{vT}, 4, v{vT+1}")
    A(f"s_mul_i32 s{sT1}, s{sI}, 384")
    A(f"s_lshl_b32 s{sT0}, s{sWV}, 5")
    A(f"s_add_u32 s{sT1}, s{sT1}, s{sT0}")
    A(f"buffer_load_dword v249, v{vT+1}, s[{SRD2}:{SRD2+3}], s{sT1} offen offset:256")
    srd(SRD1, sWS, 0x10000000)
    A(f"v_bfe_u32 v{vT+1}, v1, 2, 2")
    A(f"v_lshl_add_u32 v{vT+2}, v{vT}, 2, v{vT+1}")
    A(f"v_lshlrev_b32 v{vT+2}, 7, v{vT+2}")
    A(f"v_bfe_u32 v{vT+3}, v1, 3, 1")
    A(f"v_xor_b32 v{vT+3}, s{sBq}, v{vT+3}")
    A(f"v_lshl_add_u32 v{vT+2}, v{vT+3}, 6, v{vT+2}")
    A(f"v_bfe_u32 v{vT+3}, v1, 4, 1")
    A(f"v_lshl_add_u32 v{vT+2}, v{vT+3}, 5, v{vT+2}")
    A(f"v_and_b32 v{vT+3}, 3, v1")
    A(f"v_lshl_add_u32 v{vA[0]}, v{vT+3}, 3, v{vT+2}")
    A(f"v_add_u32 v{vA[1]}, 0x10000, v{vA[0]}")
    A(f"v_add_u32 v{vA[2]}, 0x20000, v{vA[0]}")
    A(f"v_and_b32 v{vT+1}, 31, v1")
    A(f"v_bfe_u32 v{vT+2}, v1, 1, 3")
    A(f"v_xor_b32 v{vT+2}, v{vT}, v{vT+2}")
    A(f"v_lshlrev_b32 v{vT+2}, 4, v{vT+2}")
    A(f"v_lshl_add_u32 v{vT+2}, v{vT+1}, 7, v{vT+2}")
    A(f"s_lshl_b32 s{sT0}, s{sA}, 12")
    A(f"s_add_u32 s{sT1}, s{sT0}, 0x20000")
    A(f"v_add_u32 v{vBX[0]}, s{sT1}, v{vT+2}")
    for sp in range(1, 4):
        A(f"v_xor_b32 v{vBX[sp]}, {32*sp}, v{vBX[0]}")
    A(f"v_lshl_add_u32 v{vBH[0]}, v1, 4, s{sT0}")
    A(f"v_add_u32 v{vBH[1]}, 0x10000, v{vBH[0]}")
    A(f"v_add_u32 v{vBH[2]}, 0x20000, v{vBH[0]}")
    A(f"s_lshl_b32 s{sT1}, s{sBq}, 11")
    for k in range(3):
        A(f"v_add_u32 v{vHW[k]}, s{sT1}, v{vBH[k]}")
    sI0 = 38
    sMS, sML, sMC = 39, 63, 59
    sHS = [60, 61, 62]
    A(f"s_mul_i32 s{sI0}, s{sA}, 96")
    A(f"s_add_u32 s{sI0}, s{sI0}, s{sR}")
    A(f"s_lshl_b32 s{sI0}, s{sI0}, 3")
    A(f"s_add_u32 s{sI0}, s{sI0}, s{sJ}")
    A(f"s_mul_i32 s{sI0}, s{sI0}, 3072")
    A(f"s_add_u32 s{sI0}, s{sI0}, {WS_IN}")
    A(f"s_lshl_b32 s{sT1}, s{sBq}, 9")
    A(f"s_add_u32 s{sI0}, s{sI0}, s{sT1}")
    A(f"v_bfe_u32 v{vT+1}, v1, 3, 2")
    A(f"v_mul_u32_u24 v{vT+1}, {24*8*3072}, v{vT+1}")
    A(f"v_and_b32 v{vT+2}, 7, v1")
    A(f"v_lshl_add_u32 v{vT+1}, v{vT+2}, 4, v{vT+1}")
    A(f"v_lshl_add_u32 v{vL16}, v{vT}, 7, v{vT+1}")
    A(f"s_mov_b32 s{sMS}, 0x80008000")
    A(f"s_mov_b32 s{sML}, 0x00010001")
    A(f"s_mov_b32 s{sMC}, 0x7fff7fff")
    A(f"s_mul_i32 s{sHS[0]}, s{sWK}, 24576")
    if WS_H:
        A(f"s_add_u32 s{sHS[0]}, s{sHS[0]}, {WS_H}")
    A(f"s_add_u32 s{sHS[1]}, s{sHS[0]}, 8192")
    A(f"s_add_u32 s{sHS[2]}, s{sHS[0]}, 16384")
    def dummy(n, tag):
        if not n:
            return
        for k in range(8):
            A(f"v_mul_u32_u24 v{160+k}, {0x9e3779 + 77*k}, v0")
            A(f"v_and_b32 v{160+k}, 0x3fff3fff, v{160+k}")
        A(f"s_mov_b32 s15, {n // 4}")
        A.label(f"L_dum{tag}")
        for k in range(4):
            A(f"v_mfma_f32_32x32x16_bf16 v[{176+16*k}:{191+16*k}], v[{160+4*(k&1)}:{163+4*(k&1)}], v[{160+4*(k>>1)}:{163+4*(k>>1)}], 0")
        A("s_sub_u32 s15, s15, 1")
        A("s_cmp_lg_u32 s15, 0")
        A(f"s_cbranch_scc1 L_dum{tag}")
    dummy(cfg.dum1, "a")
    epoch_fin()
    slot_add(sI0, *sHS)
    tag_regs(vTG, vT + 1)
    assert not cfg.sa
    A("s_waitcnt vmcnt(1)")
    if cfg.sa:
        A(f"s_cmp_lt_u32 s{sWV}, {cfg.sa}")
        A("s_cbranch_scc1 L_bw")
        A("s_waitcnt vmcnt(0)")
        A.label("L_bw")
    for l in range(3):
        for g in range(4):
            r = vXB + 2 * (4 * l + g)
            d = vACC + 16 * l + 4 * g
            A(f"v_lshlrev_b32 v{d}, 16, v{r}")
            A(f"v_and_b32 v{d+1}, 0xffff0000, v{r}")
            A(f"v_lshlrev_b32 v{d+2}, 16, v{r+1}")
            A(f"v_and_b32 v{d+3}, 0xffff0000, v{r+1}")
    dummy(cfg.dum2, "b")
    stamp()

    items = []
    for st in stages:
        bykb = {}
        for u in st["units"]:
            bykb.setdefault(u[2], []).append(u)
        for kb, us in bykb.items():
            if st["q"] == n_g1 - 1 and cfg.tm:
                seq = [int(c) for c in cfg.tm]
                nsp = {0: 0, 1: 0, 2: 0}
                for t_ in seq:
                    (t, wb, _kb, fst) = [u for u in us if u[0] == t_][0]
                    items.append(dict(q=st["q"], tile=t, wb=wb, kb=kb, sp=nsp[t], first=False))
                    nsp[t] += 1
                assert all(v == 4 for v in nsp.values())
                continue
            for sp in range(4):
                for (t, wb, _kb, fst) in us:
                    items.append(dict(q=st["q"], tile=t, wb=wb, kb=kb, sp=sp, first=(fst and sp == 0)))
    NI = len(items)
    aux_used = set()
    if cfg.dual:
        own_end = max(n for n, it in enumerate(items) if it["q"] >= n_g1 and it["kb"] < 3)
        assert all(kbidx[(0, l)] < 3 for l in range(3))
        for n, it in enumerate(items):
            if n > own_end + 1 and items[n - 1]["tile"] == it["tile"]:
                it["first"] = it["tile"] not in aux_used
                aux_used.add(it["tile"])
                it["tile"] += 3

    def accbase(t):
        return vACC + 16 * t if t < 3 else vXB + 16 * (t - 3)
    last_item = {}
    for n, it in enumerate(items):
        last_item[it["q"]] = n
    bread_of = {(st["q"], kb): bb for st in stages for (bb, kb) in st["breads"]}
    lg = []

    def ds_issue(instr, tag):
        cap = 14 if TS else 15
        if len(lg) >= cap:
            A(f"s_waitcnt lgkmcnt({cap-2})")
            del lg[:len(lg) - (cap - 2)]
        A(instr)
        lg.append(tag)

    def ds_need(tags):
        idx = max([i for i, t in enumerate(lg) if t in tags], default=-1)
        if idx >= 0:
            A(f"s_waitcnt lgkmcnt({len(lg) - 1 - idx})")
            del lg[:idx + 1]

    checked = [-1]
    bdone = set()
    dirty, clean_pos = {}, {}

    def clean(m):
        key = (items[m]["kb"], items[m]["sp"])
        if key in dirty and dirty[key] == m:
            del dirty[key]
            ds_need({("B",) + key})
            r = vXB + 16 * key[0] + 4 * key[1]
            for k in range(4):
                A(f"v_and_b32 v{r+k}, s{sMC}, v{r+k}")
            clean_pos[m] = len(A.L) - 1

    def issue_reads(n):
        it = items[n]
        q = it["q"]
        if q > checked[0]:
            ds_need({"hw"})
            A("s_barrier")
            checked[0] = q
            if q in cfg.tsq:
                stamp()
        key = (q, it["kb"])
        if key in bread_of and (key, it["sp"]) not in bdone:
            bdone.add((key, it["sp"]))
            bb = blocks[bread_of[key]]
            addr = bb["slot"] * 8192
            r = vXB + 16 * it["kb"] + 4 * it["sp"]
            if bb["kind"] == "X":
                assert addr >> 16 == 2
                ds_issue(f"ds_read_b128 v[{r}:{r+3}], v{vBX[it['sp']]} offset:{addr & 0xffff}", ("B", it["kb"], it["sp"]))
            else:
                ds_issue(f"ds_read_b128 v[{r}:{r+3}], v{vBH[addr >> 16]} offset:{(addr & 0xffff) + 1024*it['sp']}",
                         ("B", it["kb"], it["sp"]))
                if bb["kind"] != "Hown":
                    if not cfg.hlsb:
                        dirty[(it["kb"], it["sp"])] = n
        wb = blocks[it["wb"]]
        addr = wb["slot"] * 8192 + 2048 * it["sp"]
        r = vAB + 4 * (n % nAB)
        ds_issue(f"ds_read_b64_tr_b16 v[{r}:{r+1}], v{vA[addr >> 16]} offset:{addr & 0xffff}", ("A", n))
        ds_issue(f"ds_read_b64_tr_b16 v[{r+2}:{r+3}], v{vA[addr >> 16]} offset:{(addr & 0xffff) + 1024}", ("A", n))

    post = []

    def epi1_instrs(pi, lines):
        out, late = [], []
        for l in lines:
            a = vACC + 16 * l
            addr = blocks[f"H0_{l}"]["slot"] * 8192
            for half in range(2):
                base = a + 8 * half
                if cfg.epi == 1:
                    assert cfg.hlsb
                    for k in range(8):
                        out.append(("v", f"v_mul_f32 v{base+k}, v{base+k}, |v{base+k}|"))
                    for k in range(4):
                        out.append(("v", f"v_cvt_pk_bf16_f32 v{base+k}, v{base+2*k}, v{base+2*k+1}"))
                    for k in range(4):
                        out.append(("v", f"v_pk_max_i16 v{base+k}, v{base+k}, 0"))
                else:
                    for k in range(8):
                        out.append(("v", f"v_max_f32 v{base+k}, 0, v{base+k}"))
                    for k in range(0, 8, 2):
                        out.append(("v", f"v_pk_mul_f32 v[{base+k}:{base+k+1}], v[{base+k}:{base+k+1}], v[{base+k}:{base+k+1}]"))
                    for k in range(4):
                        out.append(("v", f"v_cvt_pk_bf16_f32 v{base+k}, v{base+2*k}, v{base+2*k+1}"))
                for k in range(4):
                    out.append(("v", f"v_bfi_b32 v{base+4+k}, s{sML}, v{vTG+k}, v{base+k}" if cfg.hlsb else
                                f"v_and_or_b32 v{base+4+k}, v{vTG+k}, s{sMS}, v{base+k}"))
                out.append(("v", f"buffer_store_dwordx4 v[{base+4}:{base+7}], v{vHW[0]}, s[{SRD1}:{SRD1+3}], s{sHS[l]} offen offset:{1024*half} {cfg.hsf}"))
                out.append(("w", f"ds_write_b128 v{vHW[addr >> 16]}, v[{base}:{base+3}] offset:{(addr & 0xffff) + 1024*half}"))
                t = ("v", f"buffer_load_dword v255, v{vHW[0]}, s[{SRD1}:{SRD1+3}], s{sHS[l]} offen offset:{1024*half} {cfg.stf}")
                if cfg.stouch == 1:
                    out.append(t)
                elif cfg.stouch == 2:
                    late.append(t)
                elif cfg.stouch == 3:
                    post.append(t)
        return out + late

    def epi2_instrs(lines):
        out = []
        for l in lines:
            for u in range(2):
                base = vACC + 8 * (2 * l + u)
                if l in aux_used:
                    ab = accbase(l + 3) + 8 * u
                    for k in range(0, 8, 2):
                        out.append(("v", f"v_pk_add_f32 v[{base+k}:{base+k+1}], v[{base+k}:{base+k+1}], v[{ab+k}:{ab+k+1}]"))
                for k in range(4):
                    out.append(("v", f"v_cvt_pk_bf16_f32 v{base+k}, v{base+2*k}, v{base+2*k+1}"))
                out.append(("v", "s_nop 1"))
                out.append(("v", f"v_permlane32_swap_b32 v{base}, v{base+2}"))
                out.append(("v", f"v_permlane32_swap_b32 v{base+1}, v{base+3}"))
                for k in (0, 2, 1, 3):
                    out.append(("v", f"v_bfi_b32 v{base+k}, s{sML}, v{vTG+k}, v{base+k}"))
                out.append(("v", f"buffer_store_dwordx4 v[{base}:{base+3}], v{vL16}, s[{SRD1}:{SRD1+3}], s{sI0} offen offset:{1024*l+256*u} {cfg.psf}"))
        return out

    fillers = []
    fill_start = 0
    fill_tiles = set()
    mfma_pos = {}
    fill_fresh = [False]

    def states_since(pos):
        c = 0
        for ln in A.L[pos + 1:]:
            t = ln.strip()
            if t.endswith(":") or t.startswith(";") or t.startswith("@@"):
                continue
            c += int(t.split()[1]) + 1 if t.startswith("s_nop") else 1
        return c

    late_w = []

    def emit(kind, t):
        if kind == "mark":
            have = min(states_since(mfma_pos[tl]) for tl in t[0])
            if have < 12:
                A(f"s_nop {12 - have - 1}")
        elif kind == "w":
            ds_issue(t, "hw")
        else:
            A(t)

    def flush_fillers():
        nonlocal fillers
        for (kind, t) in fillers + late_w:
            emit(kind, t)
        fillers = []
        late_w.clear()
        fill_tiles.clear()

    trig = {}
    for l in range(3):
        trig[max(n for n, it in enumerate(items) if it["q"] < n_g1 and it["tile"] == l)] = (1, l)
        trig[max(n for n, it in enumerate(items) if it["q"] >= n_g1 and it["tile"] % 3 == l)] = (2, l)

    nread = 0
    for n in range(NI):
        it = items[n]
        lim = min(NI - 1, n + D)
        while nread <= lim:
            nx = items[nread]
            if nx["q"] > checked[0]:
                due = [l for l, v in hown_vis.items() if v == nx["q"]]
                if due:
                    if last_item[hown_w[due[0]]] >= n:
                        break
                    flush_fillers()
            key = (nx["q"], nx["kb"])
            if key in bread_of and (key, nx["sp"]) not in bdone:
                if any(items[m]["kb"] == nx["kb"] and items[m]["sp"] == nx["sp"] for m in range(n, nread)):
                    break
            issue_reads(nread)
            nread += 1
        assert nread > n
        if it["tile"] in fill_tiles:
            flush_fillers()
            A("s_nop 1")
        clean(n)
        ds_need({("A", n), ("B", it["kb"], it["sp"])})
        if it["first"]:
            ds_need({"hw"})
        if n in clean_pos and states_since(clean_pos[n]) < 2:
            A(f"s_nop {1 - states_since(clean_pos[n])}")
        ra = vAB + 4 * (n % nAB)
        rb = vXB + 16 * it["kb"] + 4 * it["sp"]
        acc = accbase(it["tile"])
        c = "0" if it["first"] else f"v[{acc}:{acc+15}]"
        A(f"v_mfma_f32_32x32x16_bf16 v[{acc}:{acc+15}], v[{ra}:{ra+3}], v[{rb}:{rb+3}], {c}")
        mfma_pos[it["tile"]] = len(A.L) - 1
        if n + 1 < nread:
            clean(n + 1)
        k = 0
        while fillers and k < (cfg.fill1 if it["q"] < n_g1 else cfg.fill):
            if fillers[0][0] == "mark" and n < fillers[0][1][1]:
                break
            kind, t = fillers.pop(0)
            emit(kind, t)
            k += kind != "mark"
        if not fillers and not late_w:
            fill_tiles.clear()
        if n == last_item[it["q"]] and (it["q"] in epi_after or it["q"] in epi2_after):
            stamp()
        if n in trig:
            g, l = trig[n]
            tl = [l] + ([l + 3] if (g == 2 and l in aux_used) else [])
            new = epi1_instrs(0, [l]) if g == 1 else epi2_instrs([l])
            if cfg.wlast:
                late_w.extend(x for x in new if x[0] == "w")
                new = [x for x in new if x[0] != "w"]
            fillers += [("mark", (tl, n + cfg.fdel))] + new
            fill_tiles.update(tl)
    flush_fillers()
    stamp()
    if cfg.rnb >= 1 and not cfg.rlate:
        A("s_barrier")
    reduce_code(1, 0)
    if TS:
        A("s_waitcnt vmcnt(0)")
        A("s_memrealtime s[98:99]")
        A("s_waitcnt lgkmcnt(0)")
        assert tsn[0] <= 14, tsn[0]
        A(f"s_mov_b32 s{sTS+28}, s98"); A(f"s_mov_b32 s{sTS+30}, s{sCNT}")
        tsn[0] = 16
        stamp_flush()
    if cfg.enc and cfg.encw < 4:
        A("s_branch L_noep")
    A("s_branch L_end")

    A.head("hl")
    A.label("L_helper")
    sG = 38
    A(f"s_lshl_b32 s{sG}, s{sWV}, 3")
    A(f"s_add_u32 s{sG}, s{sG}, s{sR}")
    A("v_mul_u32_u24 v8, 9216, v1")
    A("v_mul_u32_u24 v9, 1152, v1")
    A(f"s_mul_i32 s39, s{sJ}, 1152")
    A("s_waitcnt lgkmcnt(0)")
    NWT = 64

    def sdiv(dst, src, d):
        A(f"s_mul_i32 s{dst}, s{src}, {(65536 + d - 1) // d}")
        A(f"s_lshr_b32 s{dst}, s{dst}, 16")

    w2base = 0
    if cfg.touch and any(ROT):
        srd(SRD0, sW1, 5308416)
        srd(SRD1, sX, 589824)
        need = {kk: min((kk - r) % 9 for r in ROT) for kk in range(9)}
        kks = sorted([kk for kk in range(9) if need[kk] >= cfg.skipw], key=lambda kk: need[kk])
        KT = sum(kk << (4 * u) for u, kk in enumerate(kks))
        nW = 9 * len(kks)
        x0 = cfg.skipx
        nX = 8 * (9 - x0)
        tot = nW + nX
        for rnd in range((tot + NWT - 1) // NWT):
            if rnd == 1:
                A.tail("hl")
            k = A.uid()
            A(f"s_add_u32 s{sT0}, s{sG}, {NWT*rnd}")
            if NWT * rnd < nW:
                if NWT * rnd + NWT > nW:
                    A(f"s_cmp_ge_u32 s{sT0}, {nW}")
                    A(f"s_cbranch_scc1 L_hx{k}")
                sdiv(sT1, sT0, 9)
                A(f"s_mul_i32 s{sT2}, s{sT1}, 9")
                A(f"s_sub_u32 s{sT2}, s{sT0}, s{sT2}")
                A(f"s_lshl_b32 s{sT1}, s{sT1}, 2")
                A(f"s_lshr_b32 s{sT1}, {KT}, s{sT1}")
                A(f"s_and_b32 s{sT1}, s{sT1}, 15")
                A(f"s_mul_i32 s{sT1}, s{sT1}, {64*9216}")
                A(f"s_lshl_b32 s{sT2}, s{sT2}, 7")
                A(f"s_add_u32 s{sT1}, s{sT1}, s{sT2}")
                A(f"s_add_u32 s{sT1}, s{sT1}, s39")
                A(f"buffer_load_dword v255, v8, s[{SRD0}:{SRD0+3}], s{sT1} offen {cfg.tfl}")
                if NWT * rnd + NWT > nW:
                    A(f"s_branch L_ht{k}")
            if NWT * rnd + NWT > nW:
                A.label(f"L_hx{k}")
                if NWT * rnd + NWT > tot:
                    A(f"s_cmp_ge_u32 s{sT0}, {tot}")
                    A(f"s_cbranch_scc1 L_ht{k}")
                A(f"s_sub_u32 s{sT0}, s{sT0}, {nW - 8*x0}")
                A(f"s_and_b32 s{sT2}, s{sT0}, 7")
                A(f"s_lshr_b32 s{sT1}, s{sT0}, 3")
                A(f"s_lshl_b32 s{sT3}, s{sT2}, 2")
                A(f"s_lshr_b32 s{sT3}, {ROTTAB}, s{sT3}")
                A(f"s_and_b32 s{sT3}, s{sT3}, 15")
                A(f"s_add_u32 s{sT1}, s{sT1}, s{sT3}")
                A(f"s_cmp_ge_u32 s{sT1}, 9")
                A(f"s_cselect_b32 s{sT3}, 9, 0")
                A(f"s_sub_u32 s{sT1}, s{sT1}, s{sT3}")
                A(f"s_mul_i32 s{sT2}, s{sT2}, {64*1152}")
                A(f"s_lshl_b32 s{sT1}, s{sT1}, 7")
                A(f"s_add_u32 s{sT1}, s{sT1}, s{sT2}")
                A(f"buffer_load_dword v255, v9, s[{SRD1}:{SRD1+3}], s{sT1} offen")
            A.label(f"L_ht{k}")
        w2base = (NWT - tot % NWT) % NWT
    elif cfg.touch:
        srd(SRD0, sW1, 5308416)
        srd(SRD1, sX, 589824)
        phases, base = [], 0
        for pi, ls in enumerate(passes):
            t0 = cfg.ht0 if pi == 0 else 0
            c = 3 * len(ls) + (8 if pi == 0 else 0)
            phases.append((base, (9 - t0 - cfg.tn) * c, t0, c, ls))
            base += (9 - t0 - cfg.tn) * c
        w2base = (NWT - base % NWT) % NWT if cfg.w2rot else 0
        for rnd in range((base + NWT - 1) // NWT):
            if rnd == 1:
                A.tail("hl")
            k = A.uid()
            A(f"s_add_u32 s{sT0}, s{sG}, {NWT*rnd}")
            for (pb, cnt, t0, c, ls) in phases:
                if pb + cnt <= NWT * rnd or pb >= NWT * rnd + NWT:
                    continue
                k2 = A.uid()
                A(f"s_cmp_ge_u32 s{sT0}, {pb+cnt}")
                A(f"s_cbranch_scc1 L_hp{k2}")
                if pb:
                    A(f"s_sub_u32 s{sT0}, s{sT0}, {pb}")
                sdiv(sT1, sT0, c)
                A(f"s_mul_i32 s{sT2}, s{sT1}, {c}")
                A(f"s_sub_u32 s{sT2}, s{sT0}, s{sT2}")
                if t0:
                    A(f"s_add_u32 s{sT1}, s{sT1}, {t0}")
                if cfg.tn:
                    A(f"s_cmp_ge_u32 s{sT1}, {cfg.ta}")
                    A(f"s_cselect_b32 s{sT3}, {cfg.tn}, 0")
                    A(f"s_add_u32 s{sT1}, s{sT1}, s{sT3}")
                nw = 3 * len(ls)
                if c > nw:
                    A(f"s_cmp_ge_u32 s{sT2}, {nw}")
                    A(f"s_cbranch_scc1 L_hx{k2}")
                if len(ls) != 3:
                    if len(ls) == 1:
                        A(f"s_mul_i32 s{sT2}, s{sT2}, 3")
                    else:
                        A(f"s_lshr_b32 s{sT3}, s{sT2}, 1")
                        A(f"s_add_u32 s{sT2}, s{sT2}, s{sT3}")
                    if ls[0]:
                        A(f"s_add_u32 s{sT2}, s{sT2}, {ls[0]}")
                A(f"s_mul_i32 s{sT1}, s{sT1}, {64*9216}")
                A(f"s_lshl_b32 s{sT2}, s{sT2}, 7")
                A(f"s_add_u32 s{sT1}, s{sT1}, s{sT2}")
                A(f"s_add_u32 s{sT1}, s{sT1}, s39")
                A(f"buffer_load_dword v255, v8, s[{SRD0}:{SRD0+3}], s{sT1} offen {cfg.tfl}")
                A(f"s_branch L_ht{k}")
                if c > nw:
                    A.label(f"L_hx{k2}")
                    A(f"s_sub_u32 s{sT2}, s{sT2}, {nw}")
                    A(f"s_mul_i32 s{sT2}, s{sT2}, {64*1152}")
                    A(f"s_lshl_b32 s{sT1}, s{sT1}, 7")
                    A(f"s_add_u32 s{sT1}, s{sT1}, s{sT2}")
                    A(f"buffer_load_dword v255, v9, s[{SRD1}:{SRD1+3}], s{sT1} offen")
                    A(f"s_branch L_ht{k}")
                A.label(f"L_hp{k2}")
            A.label(f"L_ht{k}")
    def h_pretouch():
        srd(SRD1, sWS, 0x10000000)
        A("v_lshlrev_b32 v10, 7, v1")
        A(f"s_mul_i32 s{sT1}, s{sJ}, 589824")
        A(f"s_add_u32 s{sT1}, s{sT1}, {WS_IN if cfg.hpin else WS_H}")
        for rnd in range(2):
            k = A.uid()
            A(f"s_add_u32 s{sT0}, s{sG}, {NWT*rnd}")
            A(f"s_cmp_ge_u32 s{sT0}, 72")
            A(f"s_cbranch_scc1 L_ht{k}")
            A(f"s_lshl_b32 s{sT0}, s{sT0}, 13")
            A(f"s_add_u32 s{sT0}, s{sT0}, s{sT1}")
            A(f"buffer_load_dword v255, v10, s[{SRD1}:{SRD1+3}], s{sT0} offen {cfg.hpf}")
            A.label(f"L_ht{k}")
    if cfg.hpre == 1:
        h_pretouch()
    if cfg.touch:
        srd(SRD0, sW2, 5308416)
        A(f"s_mul_i32 s39, s{sJ}, 663552")
        korder = sorted(kbidx, key=lambda x: kbidx[x])
        tabD = sum(d << (2 * u) for u, (d, lk) in enumerate(korder))
        tabL = sum(lk << (2 * u) for u, (d, lk) in enumerate(korder))
        if w2base:
            A(f"s_add_u32 s{sG}, s{sG}, {w2base}")
            A(f"s_and_b32 s{sG}, s{sG}, 63")
        for rnd in range(2):
            k = A.uid()
            A(f"s_add_u32 s{sT0}, s{sG}, {NWT*rnd}")
            A(f"s_cmp_ge_u32 s{sT0}, 81")
            A(f"s_cbranch_scc1 L_ht{k}")
            sdiv(sT1, sT0, 9)
            A(f"s_mul_i32 s{sT2}, s{sT1}, 9")
            A(f"s_sub_u32 s{sT2}, s{sT0}, s{sT2}")
            sdiv(sT3, sT2, 3)
            A(f"s_lshl_b32 s{sT1}, s{sT1}, 1")
            A(f"s_lshr_b32 s{sT0}, {tabD}, s{sT1}")
            A(f"s_and_b32 s{sT0}, s{sT0}, 3")
            A(f"s_add_u32 s{sT0}, s{sT0}, s{sT3}")
            A(f"s_cmp_ge_u32 s{sT0}, 3")
            A(f"s_cselect_b32 s{sT3}, 3, 0")
            A(f"s_sub_u32 s{sT0}, s{sT0}, s{sT3}")
            A(f"s_lshr_b32 s{sT3}, {tabL}, s{sT1}")
            A(f"s_and_b32 s{sT3}, s{sT3}, 3")
            A(f"s_mul_i32 s{sT0}, s{sT0}, {192*1152}")
            A(f"s_mul_i32 s{sT3}, s{sT3}, {64*1152}")
            A(f"s_add_u32 s{sT0}, s{sT0}, s{sT3}")
            A(f"s_lshl_b32 s{sT2}, s{sT2}, 7")
            A(f"s_add_u32 s{sT0}, s{sT0}, s{sT2}")
            A(f"s_add_u32 s{sT0}, s{sT0}, s39")
            A(f"buffer_load_dword v255, v9, s[{SRD0}:{SRD0+3}], s{sT0} offen {cfg.tfl}")
            A.label(f"L_ht{k}")
    if cfg.hpre == 2:
        h_pretouch()
    dummy(cfg.dumh, "h")
    if TS:
        tsn[0] = 1
        A("s_waitcnt vmcnt(0)")
        stamp()
        stamp()
        stamp_flush()
    A("s_branch L_end")
    A.tail("end")
    A.label("L_end")

    hdr = f"""; Fused MLP (x@w1+b1 -> relu^2 -> @w2+b2), generated by a python script (work/gen4.py)
; @launch grid=(256,1,1) block=(512,1,1) lds=163840
.amdgcn_target "amdgcn-amd-amdhsa--gfx950"
.text
.globl {KN}
.p2align 8
.type {KN},@function
{KN}:
"""
    ftr = f"""
    s_endpgm
.section .rodata,"a"
.p2align 6
.amdhsa_kernel {KN}
  .amdhsa_next_free_vgpr 256
  .amdhsa_next_free_sgpr 102
  .amdhsa_accum_offset 256
  .amdhsa_group_segment_fixed_size 0
  .amdhsa_kernarg_size 64
  .amdhsa_user_sgpr_count 2
  .amdhsa_user_sgpr_kernarg_segment_ptr 1
  .amdhsa_system_sgpr_workgroup_id_x 1
.end_amdhsa_kernel
"""
    return hdr + A.text(cfg.horder.split(","), cfg.torder.split(",") + ["end"]) + ftr


def parse_g2(s):
    out = []
    for stg in s.split(","):
        us = []
        for u in stg.split("+"):
            a, b = u.split(":")
            us.append((int(a[0]), int(a[1]), [int(c) for c in b]))
        out.append(us)
    return out


def ilist(s):
    return [int(x) for x in s.split(",")] if s else []


def main():
    ap = argparse.ArgumentParser()
    ap.add_argument("-o", default="k8.s")
    ap.add_argument("--ts", action="store_true")
    ap.add_argument("--passes", default="012")
    ap.add_argument("--depth", type=int, default=5)
    ap.add_argument("--fill", type=int, default=4)
    ap.add_argument("--grp1", type=int, default=3)
    ap.add_argument("--hres", type=float, default=2.5)
    ap.add_argument("--hearly", type=float, default=1.5)
    ap.add_argument("--hdel", type=int, default=1)
    ap.add_argument("--xfree", type=int, default=11)
    ap.add_argument("--g2", default="00:012,01:012,02:012,10:012,20:012,11:012,21:012,12:012,22:012")
    ap.add_argument("--tsq", default="")
    ap.add_argument("--verbose", action="store_true")
    ap.add_argument("--ahead", type=int, default=8)
    ap.add_argument("--ahead0", type=int, default=8)
    ap.add_argument("--capfrom", type=int, default=8)
    ap.add_argument("--capw", type=int, default=4)
    ap.add_argument("--capx", type=int, default=3)
    ap.add_argument("--burst", default="")
    ap.add_argument("--pause", default="")
    ap.add_argument("--go2lead", type=int, default=3)
    ap.add_argument("--sa", type=int, default=0)
    ap.add_argument("--ctouch", type=int, default=1)
    ap.add_argument("--wfl", default="")
    ap.add_argument("--tfl", default="")
    ap.add_argument("--rfl", default="sc1")
    ap.add_argument("--rsleep", type=int, default=0)
    ap.add_argument("--touch", type=int, default=1)
    ap.add_argument("--clrq", type=int, default=-1)
    ap.add_argument("--cdq", type=int, default=9)
    ap.add_argument("--rbar", type=int, default=0)
    ap.add_argument("--hsf", default="sc1")
    ap.add_argument("--hlf", default="sc1")
    ap.add_argument("--ofl", default="")
    ap.add_argument("--hpre", type=int, default=0)
    ap.add_argument("--rot", default="00000000")
    ap.add_argument("--ts0", type=int, default=0)
    ap.add_argument("--hlsb", type=int, default=1)
    ap.add_argument("--dual", type=int, default=0)
    ap.add_argument("--dum1", type=int, default=0)
    ap.add_argument("--dum2", type=int, default=0)
    ap.add_argument("--dumh", type=int, default=0)
    ap.add_argument("--encc", type=int, default=0)
    ap.add_argument("--encm", type=int, default=2)
    ap.add_argument("--slots", type=int, default=0)
    ap.add_argument("--rlate", type=int, default=0)
    ap.add_argument("--epi", type=int, default=0)
    ap.add_argument("--tm", default="")
    ap.add_argument("--wlast", type=int, default=0)
    ap.add_argument("--fdel", type=int, default=3)
    ap.add_argument("--fill1", type=int, default=5)
    ap.add_argument("--priow", type=int, default=0)
    ap.add_argument("--prioh", type=int, default=0)
    ap.add_argument("--r0early", type=int, default=0)
    ap.add_argument("--psf", default="sc1")
    ap.add_argument("--rw1", type=int, default=0)
    ap.add_argument("--ofl1", default="")
    ap.add_argument("--rpq", type=int, default=10)
    ap.add_argument("--rb2", type=int, default=1)
    ap.add_argument("--rb4", type=int, default=0)
    ap.add_argument("--rearly", type=int, default=0)
    ap.add_argument("--hpf", default="")
    ap.add_argument("--hpin", type=int, default=0)
    ap.add_argument("--wsb", type=lambda x: int(x, 0), default=0)
    ap.add_argument("--enc", default="")
    ap.add_argument("--encw", type=int, default=4)
    ap.add_argument("--hfree", type=int, default=2)
    ap.add_argument("--stouch", type=int, default=0)
    ap.add_argument("--stdel", type=int, default=1)
    ap.add_argument("--stf", default="")
    ap.add_argument("--ta", type=int, default=0)
    ap.add_argument("--tn", type=int, default=0)
    ap.add_argument("--tpos", type=int, default=0)
    ap.add_argument("--w2rot", type=int, default=1)
    ap.add_argument("--rfast", type=int, default=1)
    ap.add_argument("--wt", type=int, default=0)
    ap.add_argument("--horder", default="w,x,h2,hl,c")
    ap.add_argument("--ht0", type=int, default=1)
    ap.add_argument("--first", type=int, default=4)
    ap.add_argument("--torder", default="hl,w,x,h2,c,red")
    ap.add_argument("--skipw", type=int, default=1)
    ap.add_argument("--skipx", type=int, default=1)
    cfg = ap.parse_args()
    cfg.passes = [[int(c) for c in p] for p in cfg.passes.split(",")]
    cfg.g2 = parse_g2(cfg.g2)
    cfg.rnb = cfg.rb2
    cfg.tsq, cfg.burst, cfg.pause = ilist(cfg.tsq), ilist(cfg.burst), ilist(cfg.pause)
    open(cfg.o, "w").write(build(cfg))


main()
```

```python
import sys, argparse

KN = "standalone__dense_activation_squared_relu__sampling_kernel"

WS_H = 0x0
WS_IN = 0x1000000
WS_CD = 0x1840000
WS_EP = 0x1850000
WS_TS = 0x8000000
SPIN_MAX = 100000
SGNMASK = 0x6A9956A5


class Asm:
    def __init__(self):
        self.L = []
        self.n = 0

    def __call__(self, s):
        self.L.append("    " + s)

    def label(self, s):
        self.L.append(s + ":")

    def c(self, s):
        self.L.append("    ; " + s)

    def uid(self):
        self.n += 1
        return self.n

    def head(self, role):
        self.L.append(f"@@HEAD {role}")

    def tail(self, role):
        self.L.append(f"@@TAIL {role}")

    def text(self, horder, torder):
        pro, heads, tails, cur = [], {}, {}, None
        cur = pro
        for ln in self.L:
            if ln.startswith("@@HEAD"):
                cur = heads.setdefault(ln.split()[1], [])
            elif ln.startswith("@@TAIL"):
                r = ln.split()[1]
                if r in heads:
                    heads[r].append(f"    s_branch L_tail_{r}")
                cur = tails.setdefault(r, [f"L_tail_{r}:"])
            else:
                cur.append(ln)
        assert sorted(heads) == sorted(horder) and sorted(tails) == sorted(torder), (heads.keys(), tails.keys())
        out = pro
        for r in horder:
            out += heads[r]
        out.append("L_heads_end:")
        for r in torder:
            out += tails[r]
        return "\n".join(out)


def build(cfg):
    global WS_H, WS_IN, WS_EP
    WS_H = cfg.wsb
    WS_IN = cfg.wsb + 0x480000
    WS_EP = cfg.wsb + 0x900000 if not cfg.slots else 0x10000
    A = Asm()
    TS = cfg.ts
    passes = cfg.passes
    D = cfg.depth

    stages, blocks, order = [], {}, []

    def blk(name, **kw):
        blocks[name] = dict(name=name, **kw)
        return name

    def add_stage(units, breads):
        q = len(stages)
        stages.append(dict(units=units, breads=breads, q=q))
        for (bb, _kb) in breads:
            b = blocks[bb]
            b["need"] = b["last"] = q
            if b["kind"] != "Hown":
                order.append(bb)
        for (_t, wb, _kb, _first) in units:
            b = blocks[wb]
            if "need" not in b:
                b["need"] = q
                order.append(wb)
            b["last"] = q
        return q

    epi_after, pass_of_line = {}, {}
    for pi, lines in enumerate(passes):
        grp = 1 if (len(lines) > 1 or pi == 0) else cfg.grp1
        for t0 in range(0, 9, grp):
            units, breads = [], []
            for t in range(t0, t0 + grp):
                if pi == 0:
                    breads.append((blk(f"X{t}", kind="X", t=t), t))
                for l in lines:
                    units.append((l, blk(f"W{t}_{l}", kind="W1", t=t, l=l), t, False))
            q = add_stage(units, breads)
        epi_after[q] = (pi, list(lines))
        for l in lines:
            pass_of_line[l] = pi
    n_g1 = len(stages)
    kbidx = {}
    first = {0: True, 1: True, 2: True}
    cnt2 = {0: 0, 1: 0, 2: 0}
    epi2_after = {}
    for stg in cfg.g2:
        units, breads = [], []
        for (d, lk, lines) in stg:
            if (d, lk) not in kbidx:
                kbidx[(d, lk)] = len(kbidx)
                breads.append((blk(f"H{d}_{lk}", kind="Hown" if d == 0 else f"H{d}", d=d, lk=lk), kbidx[(d, lk)]))
            for l in lines:
                units.append((l, blk(f"V{d}_{lk}_{l}", kind="W2", d=d, lk=lk, l=l), kbidx[(d, lk)], first[l]))
                first[l] = False
                cnt2[l] += 1
        q = add_stage(units, breads)
        done = [l for l in range(3) if cnt2[l] == 9 and not any(l in v for v in epi2_after.values())]
        if done:
            epi2_after[q] = done
    assert all(v == 9 for v in cnt2.values())
    NQ = len(stages)
    hown_w = {l: q for q, (pi, lines) in epi_after.items() for l in lines}
    hown_vis = {l: (q + 1 if q == n_g1 - 1 else q + 2) for l, q in hown_w.items()}
    for l in hown_w:
        assert blocks[f"H0_{l}"]["need"] >= hown_vis[l]
    hfetch = {l: hown_vis[l] + cfg.hdel for l in hown_w}

    free_at = {s: -10 for s in range(20)}
    events = [(blocks[nm]["need"] - (cfg.hearly if blocks[nm]["kind"] in ("H1", "H2") else 0), 1, k, nm) for k, nm in enumerate(order)]
    for l, qw in hown_w.items():
        events.append((qw - cfg.hres, 0, l, f"H0_{l}"))
    events.sort()
    for ev in events:
        b = blocks[ev[3]]
        if b["kind"] == "X":
            cand = [16, 17, 18, 19]
        elif ev[0] < cfg.xfree:
            cand = list(range(0, 16))
        else:
            cand = list(range(0, 20))
        s = min(cand, key=lambda s: (free_at[s], s))
        b["slot"] = s
        b["free"] = free_at[s]
        if b["kind"] == "Hown":
            assert b["free"] + cfg.hfree <= hown_w[b["lk"]], b
        else:
            assert b["free"] + 2 < b["need"], b
        free_at[s] = b["last"]
    if cfg.verbose:
        print(" | ".join(f"{blocks[e[3]]['name']}:s{blocks[e[3]]['slot']} f{blocks[e[3]]['free']} n{blocks[e[3]]['need']}" for e in events), file=sys.stderr)
    for k, nm in enumerate(order):
        blocks[nm]["pos"] = k
    cum = [sum(1 for nm in order if blocks[nm]["need"] <= q) for q in range(NQ)]

    sX, sW1, sB1, sW2, sB2, sOUT, sDBG, sWS = 16, 18, 20, 22, 24, 26, 28, 30
    sJ, sR, sMT, sI, sWV, sWK = 32, 33, 34, 35, 36, 37
    SRD0, SRD1, SRD2 = 40, 44, 48
    sT0, sT1, sT2, sT3, sT4, sT5 = 52, 53, 54, 55, 56, 57
    sCNT = 58
    sTAG, sPB = 6, 8
    sTS = 64
    tsn = [0]

    def stamp():
        if TS:
            k = tsn[0]
            assert k < 16
            A(f"s_memtime s[{sTS+2*k}:{sTS+2*k+1}]")
            tsn[0] += 1

    def srd(d, p, nbytes):
        A(f"s_mov_b32 s{d}, s{p}")
        A(f"s_mov_b32 s{d+1}, s{p+1}")
        A(f"s_mov_b32 s{d+2}, {nbytes}")
        A(f"s_mov_b32 s{d+3}, 0x00020000")

    def stamp_flush():
        if not TS:
            return
        n = tsn[0]
        A("s_waitcnt lgkmcnt(0)")
        srd(SRD2, sWS, 0x10000000)
        A(f"s_lshl_b32 s{sT0}, s2, 9")
        A(f"s_lshl_b32 s{sT1}, s{sWV}, 6")
        A(f"s_add_u32 s{sT0}, s{sT0}, s{sT1}")
        A(f"s_add_u32 s{sT0}, s{sT0}, {WS_TS}")
        A(f"v_mov_b32 v2, s{sT0}")
        A("s_mov_b64 exec, 1")
        for k in range(n):
            A(f"v_mov_b32 v3, s{sTS+2*k}")
            A(f"buffer_store_dword v3, v2, s[{SRD2}:{SRD2+3}], 0 offen offset:{4*k}")
        A("s_mov_b64 exec, -1")

    def epoch_load(smt):
        A(f"s_lshl_b32 s{sT0}, s{smt}, 7")
        A(f"s_add_u32 s{sT0}, s{sT0}, {WS_EP}")
        A(f"s_load_dword s{sTAG}, s[{sWS}:{sWS+1}], s{sT0}")

    def epoch_fin():
        A("s_waitcnt lgkmcnt(0)")
        A(f"s_add_u32 s{sTAG}, s{sTAG}, 1")
        A(f"s_mul_i32 s{sTAG+1}, s{sTAG}, 0x02020202")
        A(f"s_and_b32 s{sTAG+1}, s{sTAG+1}, 0xeeeeeeee")
        A(f"s_or_b32 s{sTAG+1}, s{sTAG+1}, 0x10101010")
        if cfg.slots:
            A(f"s_and_b32 s14, s{sTAG}, {cfg.slots-1}")
            A(f"s_mul_i32 s14, s14, 0xa00000")

    def slot_add(*regs):
        if cfg.slots:
            for r in regs:
                A(f"s_add_u32 s{r}, s{r}, s14")

    def tag_regs(vd, vt):
        A(f"v_and_b32 v{vt}, 3, v1")
        A(f"v_lshlrev_b32 v{vt}, 3, v{vt}")
        A(f"v_lshrrev_b32 v{vt}, v{vt}, s{sTAG+1}")
        for k in range(4):
            A(f"v_bfe_u32 v{vd+k}, v{vt}, {2*k}, 2")
            A(f"v_mul_u32_u24 v{vd+k}, 0x8001, v{vd+k}")
            A(f"v_and_b32 v{vd+k}, 0x10001, v{vd+k}")
            A(f"v_lshl_or_b32 v{vd+k}, v{vd+k}, 15, v{vd+k}")

    def sign_reg(vd, vt):
        A(f"s_bitcmp1_b32 s{sTAG}, 0")
        A(f"s_cselect_b32 s{sT0}, -1, 0")
        A(f"s_xor_b32 s{sT0}, s{sT0}, {SGNMASK}")
        A(f"v_and_b32 v{vt}, 31, v1")
        A(f"v_lshrrev_b32 v{vt}, v{vt}, s{sT0}")
        A(f"v_bfe_i32 v{vt}, v{vt}, 0, 1")
        A(f"v_and_b32 v{vd}, 0x80008000, v{vt}")

    def sspin(loads, npairs, base):
        k = A.uid()
        A(f"s_mov_b32 s{sCNT}, 0")
        A.label(f"L_s{k}")
        for x in loads:
            A(x)
        A(f"s_add_u32 s{sCNT}, s{sCNT}, 1")
        A("s_waitcnt lgkmcnt(0)")
        A(f"s_cmp_gt_u32 s{sCNT}, {SPIN_MAX}")
        A(f"s_cbranch_scc1 L_sd{k}")
        for n in range(npairs):
            A(f"s_cmp_lg_u64 s[{base+2*n}:{base+2*n+1}], s[{sTAG}:{sTAG+1}]")
            A(f"s_cbranch_scc1 L_s{k}")
        A.label(f"L_sd{k}")

    def mod3add(dst, d, tmp):
        A(f"s_add_u32 s{dst}, s{sI}, {d}")
        A(f"s_cmp_ge_u32 s{dst}, 3")
        A(f"s_cselect_b32 s{tmp}, 3, 0")
        A(f"s_sub_u32 s{dst}, s{dst}, s{tmp}")

    A("s_cmp_ge_u32 s2, 256")
    A("s_cbranch_scc1 L_end")
    A("s_load_dwordx16 s[16:31], s[0:1], 0")
    if cfg.ctouch == 1:
        A("s_getpc_b64 s[4:5]")
        A.label("L_pc")
        A("v_lshlrev_b32 v2, 7, v0")
        A("v_min_u32 v2, L_end-L_pc, v2")
        A("v_and_b32 v2, 0xfffffffc, v2")
        A("global_load_dword v255, v2, s[4:5]")
    elif cfg.ctouch == 2:
        A("s_getpc_b64 s[4:5]")
        A.label("L_pc")
        A("s_lshr_b32 s3, s2, 3")
        A("s_lshl_b32 s3, s3, 11")
        A("v_lshrrev_b32 v2, 5, v0")
        A("v_lshl_add_u32 v2, v2, 7, s3")
        A("v_min_u32 v2, L_end-L_pc, v2")
        A("v_and_b32 v2, 0xfffffffc, v2")
        A("global_load_dword v255, v2, s[4:5]")
    if TS:
        A("s_memrealtime s[96:97]")
    if cfg.enc:
        A("s_memrealtime s[96:97]")
        if cfg.enc == "none":
            A("s_memrealtime s[94:95]")
        if cfg.encc:
            A("s_memtime s[92:93]")

    def enc(p):
        if cfg.enc == p:
            A("s_memrealtime s[94:95]" if not cfg.encc else "s_memtime s[94:95]")
    stamp()
    A("v_and_b32 v1, 63, v0")
    A("v_lshrrev_b32 v2, 6, v0")
    A(f"s_and_b32 s{sJ}, s2, 7")
    A(f"v_readfirstlane_b32 s{sWV}, v2")
    A(f"s_lshr_b32 s{sR}, s2, 3")
    A(f"s_cmp_lt_u32 s{sR}, 8")
    A("s_cbranch_scc1 L_helper")
    A(f"s_sub_u32 s{sR}, s{sR}, 8")
    A(f"s_mul_i32 s{sMT}, s{sR}, 21846")
    A(f"s_lshr_b32 s{sMT}, s{sMT}, 16")
    A(f"s_mul_i32 s{sT0}, s{sMT}, 3")
    A(f"s_sub_u32 s{sI}, s{sR}, s{sT0}")
    A(f"s_mul_i32 s{sWK}, s{sJ}, 24")
    A(f"s_add_u32 s{sWK}, s{sWK}, s{sR}")
    ROT = [int(c) for c in cfg.rot]
    ROTTAB = sum(r << (4 * m) for m, r in enumerate(ROT))
    sROT, sLO, sHI = 10, 11, 12
    if any(ROT):
        A(f"s_lshl_b32 s{sROT}, s{sMT}, 2")
        A(f"s_lshr_b32 s{sROT}, {ROTTAB}, s{sROT}")
        A(f"s_and_b32 s{sROT}, s{sROT}, 15")

    def rot_setup(sbase, stride):
        if any(ROT):
            A(f"s_mul_i32 s{sLO}, s{sROT}, {stride}")
            A(f"s_add_u32 s{sLO}, s{sLO}, s{sbase}")
            A(f"s_sub_u32 s{sHI}, s{sLO}, {9*stride}")

    def rot_addr(dst, sbase, t, stride, extra):
        if any(ROT):
            if t + max(ROT) < 9:
                A(f"s_add_u32 s{dst}, s{sLO}, {t*stride + extra}")
            else:
                A(f"s_cmp_lt_u32 s{sROT}, {9-t}")
                A(f"s_cselect_b32 s{dst}, s{sLO}, s{sHI}")
                A(f"s_add_u32 s{dst}, s{dst}, {t*stride + extra}")
        else:
            A(f"s_add_u32 s{dst}, s{sbase}, {t*stride + extra}")
    A(f"s_cmp_lt_u32 s{sWV}, 4")
    A("s_cbranch_scc1 L_compute")
    A(f"s_cmp_eq_u32 s{sWV}, 6")
    A("s_cbranch_scc1 L_xh")
    A(f"s_cmp_eq_u32 s{sWV}, 7")
    A("s_cbranch_scc1 L_h2")
    ts_base = tsn[0]

    def loader_stream(kinds, per_block, issue_fn, setup_fn, cap, group=False, validate=None, before_bar=None, role=None):
        mine = [blocks[nm] for nm in order if blocks[nm]["kind"] in kinds]
        outstanding, pend = [], list(mine)
        nb = lambda nm: blocks[nm]["n"] if blocks[nm]["kind"] == "extra" else (per_block(blocks[nm]) if callable(per_block) else per_block)
        cnt = lambda lst: sum(nb(x) for x in lst)

        def ok(b, q):
            if b["free"] + 2 > q:
                return False
            if b["kind"] in ("H1", "H2") and q < min(hfetch[b["lk"]], b["need"] - 1):
                return False
            return True

        def issue_upto(q, ahead, cap):
            n = 0
            lim = cum[q] + ahead if q >= 0 else ahead
            while pend and ok(pend[0], q):
                must = pend[0]["need"] <= q + 1 or pend[0]["pos"] < lim
                if not must and n >= cap:
                    break
                grp = [pend.pop(0)]
                while group and pend and ok(pend[0], q) and pend[0]["need"] == grp[0]["need"] and len(grp) < 3 \
                        and (pend[0]["pos"] < lim or n + len(grp) < cap or pend[0]["need"] <= q + 1):
                    grp.append(pend.pop(0))
                need_n = sum(nb(x["name"]) for x in grp)
                if cnt(outstanding) + need_n > 63:
                    while cnt(outstanding) + need_n > 63:
                        del outstanding[0]
                    A(f"s_waitcnt vmcnt({cnt(outstanding)})")
                issue_fn(grp if group else grp[0])
                if cfg.verbose:
                    print(f"   after B{q}: " + " ".join(x["name"] for x in grp), file=sys.stderr)
                outstanding.extend(x["name"] for x in grp)
                n += len(grp)

        issue_upto(-1, cfg.first, 0)
        if cfg.ts0:
            stamp()
        if role == "w":
            enc("iss")
        A.tail(role)
        pr = cfg.priow if role == "w" else cfg.prioh
        if pr:
            A(f"s_setprio {pr}")
        setup_fn()
        issue_upto(-1, cfg.ahead0, 0)
        for q in range(NQ):
            assert not any(b["need"] <= q for b in pend), (q, pend[0])
            def wait_for(b):
                if b["name"] in outstanding:
                    idx = max(i for i, nm in enumerate(outstanding) if blocks[nm]["need"] <= q) if validate is None \
                        else outstanding.index(b["name"])
                    del outstanding[:idx + 1]
                    A(f"s_waitcnt vmcnt({cnt(outstanding)})")
            hs = []
            for b in mine:
                if b["need"] == q:
                    if validate is not None and b["kind"] != "X":
                        hs.append(b)
                    else:
                        wait_for(b)
            if hs:
                validate(hs, wait_for)
            if before_bar is not None:
                ex = before_bar(q)
                if ex:
                    nm = f"extra{A.uid()}"
                    blocks[nm] = dict(name=nm, kind="extra", n=ex, need=99)
                    outstanding.append(nm)
            if q in cfg.tsq:
                stamp()
            A("s_barrier")
            if role == "w":
                enc(f"B{q}")
            if q in cfg.pause:
                issue_upto(q, 0, 0)
            else:
                issue_upto(q, cfg.ahead, 99 if q in cfg.burst else (cap if q >= cfg.capfrom else 0))
        assert not pend

    vRA, vRO, vRB, vRC, vRD, vRT, vRX, vRZ, vRG = 64, 65, 66, 72, 80, 112, 116, 117, 120
    sRI, sRO, sC = 60, 61, 13

    def vr(r, W):
        return f"v{r}" if W == 1 else f"v[{r}:{r+W-1}]"

    def dw(W):
        return "dword" if W == 1 else f"dwordx{W}"

    def red_pre(W):
        if W == 2:
            A(f"s_sub_u32 s{sC}, s{sWV}, 4")
            A(f"v_lshlrev_b32 v{vRA}, 3, v1")
            A(f"s_lshl_b32 s{sRO}, s{sC}, 6")
            A(f"s_lshl_b32 s{sRI}, s{sC}, 9")
            A(f"v_lshrrev_b32 v{vRT}, 4, v1")
            A(f"v_and_b32 v{vRT+1}, 1, v1")
            A(f"v_lshlrev_b32 v{vRT+1}, 3, v{vRT+1}")
            A(f"v_lshl_add_u32 v{vRT}, v{vRT}, 4, v{vRT+1}")
            A(f"v_bfe_u32 v{vRT+2}, v1, 1, 3")
            A(f"v_and_b32 v{vRT+3}, 7, v1")
            A(f"v_lshlrev_b32 v{vRT+3}, 2, v{vRT+3}")
        else:
            A(f"s_add_u32 s{sC}, s{sWV}, 8")
            A(f"v_lshlrev_b32 v{vRA}, 2, v1")
            A(f"s_lshl_b32 s{sRO}, s{sC}, 5")
            A(f"s_lshl_b32 s{sRI}, s{sC}, 8")
            A(f"v_lshrrev_b32 v{vRT}, 5, v1")
            A(f"v_and_b32 v{vRT+1}, 3, v1")
            A(f"v_lshlrev_b32 v{vRT+1}, 2, v{vRT+1}")
            A(f"v_lshl_add_u32 v{vRT}, v{vRT}, 4, v{vRT+1}")
            A(f"v_bfe_u32 v{vRT+2}, v1, 2, 3")
            A(f"v_and_b32 v{vRT+3}, 15, v1")
            A(f"v_lshlrev_b32 v{vRT+3}, 1, v{vRT+3}")
        A(f"s_mul_i32 s{sT1}, s{sI}, 384")
        A(f"s_add_u32 s{sRO}, s{sRO}, s{sT1}")
        if W == 2:
            srd(SRD2, sB2, 1152)
            A(f"buffer_load_{dw(W)} {vr(vRB, W)}, v{vRT}, s[{SRD2}:{SRD2+3}], s{sRO} offen")
        else:
            A(f"v_mov_b32 v{vRB}, v249")
        A(f"s_lshl_b32 s{sT1}, s{sJ}, 3")
        A(f"s_lshl_b32 s{sT3}, s{sMT}, 6")
        A(f"s_add_u32 s{sT1}, s{sT1}, s{sT3}")
        A(f"s_mul_i32 s{sT1}, s{sT1}, 1152")
        A(f"s_add_u32 s{sRO}, s{sRO}, s{sT1}")
        A(f"v_mul_u32_u24 v{vRT+2}, 1152, v{vRT+2}")
        A(f"v_add_u32 v{vRO}, v{vRT}, v{vRT+2}")
        A(f"s_mul_i32 s{sT1}, s{sWK}, {8*3072}")
        A(f"s_add_u32 s{sRI}, s{sRI}, s{sT1}")
        A(f"s_add_u32 s{sRI}, s{sRI}, {WS_IN}")
        slot_add(sRI)
        A(f"v_mov_b32 v{vRZ}, 0")
        A(f"v_lshrrev_b32 v{vRT+3}, v{vRT+3}, s{sTAG+1}")
        for k in range(W):
            A(f"v_bfe_u32 v{vRG+k}, v{vRT+3}, {2*k}, 2")
            A(f"v_mul_u32_u24 v{vRG+k}, 0x8001, v{vRG+k}")
        A(f"v_mov_b32 v{vRG+4}, 0x10001")
        A(f"v_mov_b32 v{vRG+5}, 0xffff0000")
        return 1

    def red_init(W):
        for k in range(W):
            A(f"v_lshlrev_b32 v{vRC+2*k}, 16, v{vRB+k}")
            A(f"v_and_b32 v{vRC+1+2*k}, v{vRG+5}, v{vRB+k}")

    def bb_w(q):
        if q == 2:
            epoch_fin()
        if q == cfg.rpq:
            return red_pre(2)
        if q == cfg.rpq + 3:
            red_init(2)

    A.head("w")
    sHW = sT5
    A(f"s_sub_u32 s{sHW}, s{sWV}, 4")
    A("v_lshrrev_b32 v2, 3, v1")
    A("v_and_b32 v3, 7, v1")
    A("v_bfe_u32 v4, v1, 4, 1")
    A("v_lshlrev_b32 v4, 2, v4")
    A("v_xor_b32 v3, v3, v4")
    A("v_lshlrev_b32 v3, 4, v3")
    A("v_lshrrev_b32 v4, 2, v2")
    A("v_and_b32 v5, 3, v2")
    A("v_lshl_add_u32 v4, v4, 3, v5")
    A(f"s_lshl_b32 s{sT0}, s{sHW}, 5")
    A(f"v_add_u32 v4, s{sT0}, v4")
    A("v_mul_u32_u24 v4, 9216, v4")
    A("v_add_u32 v4, v4, v3")
    for c in range(1, 4):
        A(f"v_add_u32 v{4+c}, {(16*(c>>1)+4*(c&1))*9216 - 1024*c}, v4")
    sLW, sC1 = sT4, 38
    A(f"s_lshl_b32 s{sLW}, s{sHW}, 12")
    A(f"s_mul_i32 s{sC1}, s{sJ}, 1152")
    A(f"s_mul_i32 s{sT1}, s{sI}, 384")
    A(f"s_add_u32 s{sC1}, s{sC1}, s{sT1}")
    rot_setup(sC1, 64*9216)
    if cfg.wt:
        A("v_and_b32 v12, 7, v1")
        A("v_lshrrev_b32 v13, 5, v1")
        A("v_lshl_add_u32 v12, v13, 6, v12")
        A("v_mul_u32_u24 v12, 9216, v12")
        A("v_bfe_u32 v13, v1, 3, 2")
        A("v_lshl_add_u32 v12, v13, 7, v12")
        A(f"s_lshl_b32 s{sT0}, s{sHW}, 4")
        A(f"s_add_u32 s{sT0}, s{sT0}, s{sMT}")
        A(f"s_mul_i32 s{sT0}, s{sT0}, {8*9216}")
        A(f"s_add_u32 s{sT0}, s{sT0}, s{sC1}")
        msk = [sum(0xffffff << (32 * h) for h in range(2) if 2 * w + h < cfg.wt) for w in range(2)]
        A(f"s_mov_b32 exec_lo, {msk[0] & 0xffffffff}")
        A(f"s_mov_b32 exec_hi, {msk[0] >> 32}")
        if msk[1] != msk[0]:
            A(f"s_cmp_eq_u32 s{sHW}, 0")
            A(f"s_cselect_b32 exec_lo, exec_lo, {(msk[1] & 0xffffffff) or 1}")
            A(f"s_cselect_b32 exec_hi, exec_hi, {msk[1] >> 32}")
    A("s_waitcnt lgkmcnt(0)")
    if cfg.ts0:
        stamp()
    srd(SRD0, sW1, 5308416)
    if cfg.wt:
        A(f"buffer_load_dword v255, v12, s[{SRD0}:{SRD0+3}], s{sT0} offen")
        A("s_mov_b64 exec, -1")
    sV = [62, 63, 59]

    def w2_setup():
        epoch_load(sMT)
        A(f"s_lshl_b32 s{sT0}, s{sHW}, 5")
        A(f"v_add_u32 v8, s{sT0}, v2")
        A("v_mul_u32_u24 v8, 1152, v8")
        A("v_add_u32 v8, v8, v3")
        for c in range(1, 4):
            A(f"v_add_u32 v{8+c}, {8*c*1152 - 1024*c}, v8")
        A(f"s_mul_i32 s39, s{sJ}, {576*1152}")
        A(f"s_mul_i32 s{sT0}, s{sI}, 384")
        A(f"s_add_u32 s39, s39, s{sT0}")
        for d in range(3):
            mod3add(sT1, d, sT2)
            A(f"s_mul_i32 s{sT1}, s{sT1}, {192*1152}")
            A(f"s_add_u32 s{sV[d]}, s39, s{sT1}")
        srd(SRD1, sW2, 5308416)

    def issue_w(grp):
        for b in grp:
            A(f"s_add_u32 m0, s{sLW}, {b['slot']*8192}")
            if b["kind"] == "W1":
                rot_addr(sT0, sC1, b['t'], 64*9216, 128*b['l'])
                vb, sr = 4, SRD0
            else:
                A(f"s_add_u32 s{sT0}, s{sV[b['d']]}, {64*b['lk']*1152 + 128*b['l']}")
                vb, sr = 8, SRD1
            for c in range(4):
                A(f"buffer_load_dwordx4 v{vb+c}, s[{sr}:{sr+3}], s{sT0} offen offset:{1024*c} {cfg.wfl} lds")

    loader_stream(("W1", "W2"), 4, issue_w, w2_setup, cfg.capw, group=True,
                  before_bar=bb_w, role="w")
    A("s_branch L_reduce")
    ts_max = tsn[0]

    sXB = 38
    sH = {1: 39, 2: 59}
    HALF = [0]

    def h_setup(half):
        A("v_lshlrev_b32 v12, 4, v1")
        A("v_add_u32 v13, 0x10000, v12")
        A("v_add_u32 v14, 0x20000, v12")
        A(f"s_sub_u32 s{sT0}, s{sWK}, s{sI}")
        for d in (1, 2):
            mod3add(sT1, d, sT2)
            A(f"s_add_u32 s{sT1}, s{sT1}, s{sT0}")
            A(f"s_mul_i32 s{sH[d]}, s{sT1}, 24576")
        srd(SRD1, sWS, 0x10000000)
        epoch_load(sMT)

    def issue_xh(b):
        for h in (range(2) if b["kind"] == "X" else HALF):
            A(f"s_mov_b32 m0, {b['slot']*8192 + 4096*h}")
            if b["kind"] == "X":
                rot_addr(sT0, sXB, b['t'], 128, 32*1152*h)
                for c in range(4):
                    A(f"buffer_load_dwordx4 v{8+c}, s[{SRD0}:{SRD0+3}], s{sT0} offen offset:{1024*c} lds")
            else:
                A(f"s_add_u32 s{sT0}, s{sH[b['d']]}, {WS_H + 8192*b['lk'] + 4096*h}")
                for c in range(4):
                    A(f"buffer_load_dwordx4 v12, s[{SRD1}:{SRD1+3}], s{sT0} offen offset:{1024*c} {cfg.hlf} lds")

    retry_code = []

    def validate(hs, wait_for):
        k = A.uid()

        def rd(i):
            addr = hs[i]["slot"] * 8192 + 4096 * HALF[0]
            for c in range(4):
                r = 128 + 16 * i + 4 * c
                A(f"ds_read_b128 v[{r}:{r+3}], v{12 + (addr >> 16)} offset:{(addr & 0xffff) + 1024*c}")

        def valu(i, later):
            for c in range(4):
                r = 128 + 16 * i + 4 * c
                A(f"s_waitcnt lgkmcnt({3-c+later})")
                for kk in range(4):
                    ac = 16 + ((kk + 2) & 3)
                    if i == 0 and c == 0:
                        A(f"v_xor_b32 v{ac}, v{r+kk}, v{25+kk}")
                    else:
                        A(f"v_bitop3_b32 v{ac}, v{ac}, v{r+kk}, v{25+kk} bitop3:0xf6")
        A.label(f"L_v{k}")
        for i in range(len(hs)):
            wait_for(hs[i])
            rd(i)
            if i:
                valu(i - 1, 4)
        valu(len(hs) - 1, 0)
        A("v_or3_b32 v16, v16, v17, v18")
        A("v_bitop3_b32 v16, v16, v19, v24 bitop3:0xa8")
        A("v_cmp_ne_u32 vcc, 0, v16")
        A(f"s_cbranch_vccnz L_vr{k}")
        A.label(f"L_vd{k}")
        n0 = len(A.L)
        A.label(f"L_vr{k}")
        A(f"s_cmp_gt_u32 s{sCNT}, {SPIN_MAX}")
        A(f"s_cbranch_scc1 L_vd{k}")
        for b in hs:
            issue_xh(b)
        A(f"s_add_u32 s{sCNT}, s{sCNT}, 1")
        A("s_waitcnt vmcnt(0)")
        A(f"s_branch L_v{k}")
        retry_code.extend(A.L[n0:])
        del A.L[n0:]

    def flush_retry():
        A.L.extend(retry_code)
        retry_code.clear()

    def bb_tag(q):
        if q == 2:
            epoch_fin()
            slot_add(sH[1], sH[2])
            tag_regs(25, 16)
            A(f"v_mov_b32 v24, {0x10001 if cfg.hlsb else 0x80008000}")
            A(f"s_mov_b32 s{sCNT}, 0")
        if q == cfg.rpq:
            return red_pre(2)
        if q == cfg.rpq + 3:
            red_init(2)

    A.head("x")
    A.label("L_xh")
    tsn[0] = ts_base
    A("v_lshrrev_b32 v2, 3, v1")
    A("v_and_b32 v3, 7, v1")
    A("v_lshrrev_b32 v4, 4, v1")
    A("v_xor_b32 v3, v3, v4")
    A("v_lshlrev_b32 v3, 4, v3")
    A("v_mul_u32_u24 v4, 1152, v2")
    A("v_add_u32 v8, v4, v3")
    A("v_xor_b32 v5, 64, v8")
    A(f"v_add_u32 v9, {8*1152 - 1024}, v5")
    A(f"v_add_u32 v10, {16*1152 - 2048}, v8")
    A(f"v_add_u32 v11, {24*1152 - 3072}, v5")
    A(f"s_mul_i32 s{sXB}, s{sMT}, {64*1152}")
    rot_setup(sXB, 128)

    def x_touch_pre(st0):
        A(f"s_mul_i32 s{sT0}, s{sI}, 22")
        A("v_and_b32 v12, 31, v1")
        A(f"v_add_u32 v12, s{sT0}, v12")
        A("v_min_u32 v12, 63, v12")
        A("v_mul_u32_u24 v12, 1152, v12")
        A("v_lshrrev_b32 v13, 5, v1")
        A("v_lshl_add_u32 v12, v13, 7, v12")
        A("s_mov_b32 exec_lo, 0x3fffff")
        A(f"s_mov_b32 exec_hi, {0x3fffff if cfg.wt > st0 + 1 else 0}")

    def x_touch(st0):
        A(f"buffer_load_dword v255, v12, s[{SRD0}:{SRD0+3}], s{sXB} offen offset:{128*st0}")
        A("s_mov_b64 exec, -1")
    if cfg.wt:
        x_touch_pre(0)
    A("s_waitcnt lgkmcnt(0)")
    if cfg.ts0:
        stamp()
    srd(SRD0, sX, 589824)
    if cfg.wt:
        x_touch(0)
    nbx = lambda b: 8 if b["kind"] == "X" else 4
    loader_stream(("X", "H1", "H2"), nbx, issue_xh, lambda: h_setup(0), cfg.capx, validate=validate, before_bar=bb_tag, role="x")
    if TS:
        A(f"s_mov_b32 s{sTS+24}, s{sCNT}")
    A("s_branch L_reduce")
    flush_retry()
    ts_max = max(ts_max, tsn[0])

    A.head("h2")
    A.label("L_h2")
    tsn[0] = ts_base
    if cfg.wt > 2:
        A(f"s_mul_i32 s{sXB}, s{sMT}, {64*1152}")
        x_touch_pre(2)
    A("s_waitcnt lgkmcnt(0)")
    if cfg.wt > 2:
        srd(SRD0, sX, 589824)
        x_touch(2)
    srd(SRD1, sWS, 0x10000000)
    if cfg.hpre == 3:
        A("v_lshlrev_b32 v3, 7, v1")
        A(f"s_mul_i32 s{sT1}, s{sWK}, 24576")
        A(f"s_add_u32 s{sT1}, s{sT1}, {WS_H}")
        for c in range(3):
            A(f"buffer_load_dword v255, v3, s[{SRD1}:{SRD1+3}], s{sT1} offen")
            A(f"s_add_u32 s{sT1}, s{sT1}, 8192")

    def w7_touch():
        st = list(range(cfg.ta, cfg.ta + cfg.tn))
        srd(SRD0, sX, 589824)
        srd(SRD2, sW1, 5308416)
        A(f"s_mul_i32 s{sXB}, s{sMT}, {64*1152}")
        A(f"s_mul_i32 s{sT0}, s{sI}, 22")
        A("v_and_b32 v2, 31, v1")
        A(f"v_add_u32 v2, s{sT0}, v2")
        A("v_min_u32 v2, 63, v2")
        A("v_mul_u32_u24 v2, 1152, v2")
        A("v_lshrrev_b32 v4, 5, v1")
        A("v_lshl_add_u32 v2, v4, 7, v2")
        A("v_and_b32 v3, 7, v1")
        A("v_lshl_add_u32 v3, v4, 6, v3")
        A("v_mul_u32_u24 v3, 9216, v3")
        A("v_bfe_u32 v4, v1, 3, 2")
        A("v_lshl_add_u32 v3, v4, 7, v3")
        A(f"s_mul_i32 s{sT0}, s{sMT}, {8*9216}")
        A(f"s_mul_i32 s{sT1}, s{sJ}, 1152")
        A(f"s_add_u32 s{sT0}, s{sT0}, s{sT1}")
        A(f"s_mul_i32 s{sT1}, s{sI}, 384")
        A(f"s_add_u32 s{sT0}, s{sT0}, s{sT1}")
        for p in range(0, len(st), 2):
            two = p + 1 < len(st)
            A(f"s_add_u32 s{sT1}, s{sT0}, {st[p]*64*9216}")
            A("s_mov_b32 exec_lo, 0xffffff")
            A(f"s_mov_b32 exec_hi, {0xffffff if two else 0}")
            A(f"buffer_load_dword v255, v3, s[{SRD2}:{SRD2+3}], s{sT1} offen")
            A("s_mov_b32 exec_lo, 0x3fffff")
            A(f"s_mov_b32 exec_hi, {0x3fffff if two else 0}")
            A(f"buffer_load_dword v255, v2, s[{SRD0}:{SRD0+3}], s{sXB} offen offset:{128*st[p]}")
        A("s_mov_b64 exec, -1")
    if cfg.tn and cfg.tpos == 0:
        w7_touch()

    def bb_h2(q):
        if cfg.tn and cfg.tpos == 1 and q == 0:
            A("s_waitcnt lgkmcnt(0)")
            w7_touch()
        if cfg.tn and cfg.tpos >= 2 and q == cfg.tpos - 1:
            w7_touch()
        if cfg.tn and q == 7:
            A("s_waitcnt vmcnt(0)")
        if q == 2 and (cfg.hpre == 3 or cfg.wt > 2):
            A("s_waitcnt vmcnt(0)")
        return bb_tag(q)

    HALF[0] = 1
    loader_stream(("H1", "H2"), nbx, issue_xh, lambda: h_setup(1), cfg.capx, validate=validate, before_bar=bb_h2, role="h2")
    ts_max = max(ts_max, tsn[0])
    A("s_branch L_reduce")
    flush_retry()

    A.tail("red")
    sM, sQ = sT5, sT4
    sVC = 16

    def reduce_code(W, nbar):
        x = f"{W}"
        srd(SRD1, sWS, 0x10000000)
        A(f"s_mov_b32 s{sCNT}, 0")
        srd(SRD0, sOUT, 589824)
        if W == 1:
            red_pre(1)
            red_init(1)
            A(f"s_waitcnt vmcnt({cfg.rw1})")
            if cfg.rlate == 1:
                A("s_barrier")

        def ld(s_):
            A(f"s_add_u32 s{sT1}, s{sRI}, {3072*s_}")
            A(f"buffer_load_{dw(W)} {vr(vRD+W*s_, W)}, v{vRA}, s[{SRD1}:{SRD1+3}], s{sT1} offen {cfg.rfl}")
        if W == 2 and cfg.r0early and nbar:
            A(f"s_cmp_ge_u32 s{sC}, 2")
            A("s_cbranch_scc1 L_rlate")
            stamp()
            tsn[0] -= 1 if TS else 0
            for s_ in range(8):
                ld(s_)
            A("s_barrier")
            A("s_branch L_rfirst")
            A.label("L_rlate")
        for _ in range(nbar):
            A("s_barrier")
        stamp()
        enc("rbar")

        def chk_i(s_, dst, t):
            r = vRD + W * s_
            if W == 1:
                o = [f"v_bitop3_b32 v{t}, v{r}, v{vRG}, v{vRG+4} bitop3:0x28"]
            else:
                o = [f"v_xor_b32 v{t}, v{r}, v{vRG}"]
                for k in range(1, W):
                    o.append(f"v_bitop3_b32 v{t}, v{t}, v{r+k}, v{vRG+k} bitop3:0xf6")
                o.append(f"v_and_b32 v{t}, v{vRG+4}, v{t}")
            o.append(f"v_cmp_ne_u32 {dst}, 0, v{t}")
            return o

        def acc_i(s_, t0):
            r = vRD + W * s_
            o = []
            for k in range(W):
                t = t0 + 2 * k
                o.append(f"v_lshlrev_b32 v{t}, 16, v{r+k}")
                o.append(f"v_and_b32 v{t+1}, v{vRG+5}, v{r+k}")
            for k in range(W):
                t = t0 + 2 * k
                o.append(f"v_pk_add_f32 v[{vRC+2*k}:{vRC+1+2*k}], v[{vRC+2*k}:{vRC+1+2*k}], v[{t}:{t+1}]")
            return o

        def masked(sm, fn, tag):
            for g in range(2):
                A(f"s_and_b32 s{sT0}, s{sm}, {0xf << (4*g)}")
                A(f"s_cbranch_scc0 L_{tag}{x}g{g}")
                for s_ in range(4 * g, 4 * g + 4):
                    A(f"s_bitcmp0_b32 s{sm}, {s_}")
                    A(f"s_cbranch_scc1 L_{tag}{x}s{s_}")
                    fn(s_)
                    A.label(f"L_{tag}{x}s{s_}")
                A.label(f"L_{tag}{x}g{g}")

        for s_ in range(8):
            ld(s_)
        for _ in range(nbar, cfg.rnb if W != 1 else 0):
            A("s_barrier")
        if W == 1 and cfg.rlate == 2:
            A("s_barrier")
        if W == 2:
            A.label("L_rfirst")
        for s_ in range(8):
            A(f"s_waitcnt vmcnt({7-s_})")
            c = chk_i(s_, f"s[{sVC+2*s_}:{sVC+2*s_+1}]", vRX)
            a_ = acc_i(s_, vRT)
            while c or a_:
                if c:
                    A(c.pop(0))
                if a_:
                    A(a_.pop(0))
            if s_ >= 2:
                A(f"s_or_b64 vcc, {'s[16:17]' if s_ == 2 else 'vcc'}, s[{sVC+2*s_-2}:{sVC+2*s_-1}]")
        A(f"s_or_b64 vcc, vcc, s[{sVC+14}:{sVC+15}]")
        A(f"s_cbranch_scc0 L_rdone{x}")
        A(f"s_mov_b32 s{sM}, 0")
        for s_ in range(7, -1, -1):
            A(f"s_cmp_lg_u64 s[{sVC+2*s_}:{sVC+2*s_+1}], 0")
            A(f"s_addc_u32 s{sM}, s{sM}, s{sM}")
        A(f"s_xor_b32 s{sQ}, s{sM}, 0xff")
        red_init(W)
        A.label(f"L_rtop{x}")
        masked(sM, ld, "rl")
        masked(sQ, lambda s_: [A(t) for t in acc_i(s_, vRT)], "ra")
        A(f"s_add_u32 s{sCNT}, s{sCNT}, 1")
        A(f"s_mov_b32 s{sQ}, s{sM}")
        A(f"s_cmp_gt_u32 s{sCNT}, {SPIN_MAX}")
        A(f"s_cbranch_scc1 L_rdone{x}")
        A("s_waitcnt vmcnt(0)")

        def chk2(s_):
            for t in chk_i(s_, "vcc", vRX):
                A(t)
            A(f"s_cbranch_vccnz L_rc{x}s{s_}")
            A(f"s_bitset0_b32 s{sM}, {s_}")
            for t in acc_i(s_, vRT):
                A(t)
        masked(sQ, chk2, "rc")
        A(f"s_mov_b32 s{sQ}, 0")
        A(f"s_cmp_lg_u32 s{sM}, 0")
        A(f"s_cbranch_scc1 L_rtop{x}")
        A.label(f"L_rdone{x}")
        stamp()
        enc("rdone")
        for k in range(W):
            A(f"v_cvt_pk_bf16_f32 v{vRC+k}, v{vRC+2*k}, v{vRC+1+2*k}")
        if cfg.owide:
            A("s_nop 1")
            if W == 1:
                for k in range(1, 4):
                    A(f"v_mov_b32_dpp v{vRC+k}, v{vRC} quad_perm:[{k},{k},{k},{k}] row_mask:0xf bank_mask:0xf")
                m = 0x11111111
            else:
                for k in range(2):
                    A(f"v_mov_b32_dpp v{vRC+2+k}, v{vRC+k} quad_perm:[1,1,3,3] row_mask:0xf bank_mask:0xf")
                m = 0x55555555
            A(f"s_mov_b32 exec_lo, {m}")
            A(f"s_mov_b32 exec_hi, {m}")
            A(f"buffer_store_dwordx4 v[{vRC}:{vRC+3}], v{vRO}, s[{SRD0}:{SRD0+3}], s{sRO} offen {cfg.ofl if W > 1 else cfg.ofl1}")
            A("s_mov_b64 exec, -1")
        else:
            A(f"buffer_store_{dw(W)} {vr(vRC, W)}, v{vRO}, s[{SRD0}:{SRD0+3}], s{sRO} offen {cfg.ofl if W > 1 else cfg.ofl1}")
        if TS:
            A(f"s_mov_b32 s{sWS}, s{SRD1}")
            A(f"s_mov_b32 s{sWS+1}, s{SRD1+1}")

    A.label("L_reduce")
    tsn[0] = ts_max
    reduce_code(2, cfg.rb2)
    A(f"s_or_b32 s{sT0}, s{sJ}, s{sI}")
    A(f"s_or_b32 s{sT0}, s{sT0}, s{sC}")
    A(f"s_cmp_lg_u32 s{sT0}, 0")
    A("s_cbranch_scc1 L_noep")
    A(f"v_mov_b32 v16, s{sTAG}")
    A(f"s_lshl_b32 s{sT0}, s{sMT}, 7")
    A(f"s_add_u32 s{sT0}, s{sT0}, {WS_EP}")
    A("s_mov_b64 exec, 1")
    A(f"buffer_store_dword v16, v{vRZ}, s[{SRD1}:{SRD1+3}], s{sT0} offen sc1")
    A("s_mov_b64 exec, -1")
    A.label("L_noep")
    if cfg.enc:
        if cfg.enc == "end":
            A("s_waitcnt vmcnt(0)")
            enc("end")
        if cfg.encw >= 0:
            A(f"s_cmp_lg_u32 s{sWV}, {cfg.encw}")
            A("s_cbranch_scc1 L_end")
        A("s_waitcnt lgkmcnt(0)")
        if cfg.encc:
            A("s_sub_u32 s94, s94, s92")
            A("s_lshr_b32 s94, s94, 1")
        else:
            A("s_sub_u32 s94, s94, s96")
            A(f"s_mul_i32 s94, s94, {cfg.encm}")
        A("s_add_u32 s94, s94, 3000")
        A.label("L_dly")
        A("s_memrealtime s[98:99]")
        A("s_waitcnt lgkmcnt(0)")
        A("s_sub_u32 s98, s98, s96")
        A("s_cmp_lt_u32 s98, s94")
        A("s_cbranch_scc1 L_dly")
    if TS:
        A("s_waitcnt vmcnt(0)")
        stamp()
        A("s_memrealtime s[98:99]")
        A("s_waitcnt lgkmcnt(0)")
        A(f"s_mov_b32 s{sTS+26}, s96"); A(f"s_mov_b32 s{sTS+28}, s98"); A(f"s_mov_b32 s{sTS+30}, s{sCNT}")
        assert tsn[0] <= 12
        tsn[0] = 16
        stamp_flush()
    A("s_branch L_end")

    A.head("c")
    A.label("L_compute")
    tsn[0] = ts_base
    vACC, vAB, vXB, vT = 16, 64, 96, 240
    nAB = D + 1
    vA, vBX, vBH, vHW = [2, 3, 4], [5, 6, 7, 8], [9, 10, 11], [12, 13, 14]
    vTG, vL16 = vT + 11, vT + 10
    assert vAB + 4 * nAB <= vXB
    sA, sBq = sT4, sT5
    A(f"s_and_b32 s{sA}, s{sWV}, 1")
    A(f"s_lshr_b32 s{sBq}, s{sWV}, 1")
    A(f"v_lshrrev_b32 v{vT}, 5, v1")
    A(f"s_mul_i32 s60, s{sJ}, 1152")
    A(f"s_mul_i32 s{sT1}, s{sI}, 384")
    A(f"s_add_u32 s60, s60, s{sT1}")
    A(f"s_lshl_b32 s{sT1}, s{sBq}, 6")
    A(f"s_add_u32 s61, s60, s{sT1}")
    A(f"v_lshlrev_b32 v{vT+4}, 3, v{vT}")
    if cfg.sa:
        A(f"s_add_u32 s{sT3}, s{sWV}, 1")
        A(f"v_and_b32 v{vT+5}, 7, v1")
        A(f"v_mul_u32_u24 v{vT+5}, 9216, v{vT+5}")
        A(f"v_lshrrev_b32 v{vT+6}, 3, v1")
        A(f"v_min_u32 v{vT+6}, 2, v{vT+6}")
        A(f"v_lshl_add_u32 v{vT+5}, v{vT+6}, 7, v{vT+5}")
        A(f"s_lshl_b32 s{sT1}, s{sT3}, 3")
        A(f"s_add_u32 s{sT1}, s{sT1}, s{sMT}")
        A(f"s_mul_i32 s{sT1}, s{sT1}, {8*9216}")
        A(f"s_add_u32 s{sT1}, s{sT1}, s60")
        A(f"s_mul_i32 s{sT2}, s{sI}, 22")
        A(f"v_min_u32 v{vT+6}, 21, v1")
        A(f"v_add_u32 v{vT+6}, s{sT2}, v{vT+6}")
        A(f"v_min_u32 v{vT+6}, 63, v{vT+6}")
        A(f"v_mul_u32_u24 v{vT+6}, 1152, v{vT+6}")
        A(f"s_mul_i32 s{sT2}, s{sMT}, {64*1152}")
        A(f"s_lshl_b32 s{sT3}, s{sT3}, 7")
        A(f"s_add_u32 s{sT2}, s{sT2}, s{sT3}")
    A("s_waitcnt lgkmcnt(0)")
    srd(SRD0, sB1, 9216)
    for l in range(3):
        for g in range(4):
            r = vXB + 2 * (4 * l + g)
            A(f"buffer_load_dwordx2 v[{r}:{r+1}], v{vT+4}, s[{SRD0}:{SRD0+3}], s61 offen offset:{128*l+16*g}")
    if cfg.sa:
        srd(SRD1, sW1, 5308416)
        srd(SRD2, sX, 589824)
        A(f"s_cmp_ge_u32 s{sWV}, {cfg.sa}")
        A("s_cbranch_scc1 L_tdone")
        A(f"buffer_load_dword v255, v{vT+5}, s[{SRD1}:{SRD1+3}], s{sT1} offen {cfg.tfl}")
        A(f"buffer_load_dword v255, v{vT+6}, s[{SRD2}:{SRD2+3}], s{sT2} offen")
        A.label("L_tdone")
    epoch_load(sMT)
    A.tail("c")
    srd(SRD2, sB2, 1152)
    A(f"v_and_b32 v{vT+1}, 3, v1")
    A(f"v_lshlrev_b32 v{vT+1}, 2, v{vT+1}")
    A(f"v_lshl_add_u32 v{vT+1}, v{vT}, 4, v{vT+1}")
    A(f"s_mul_i32 s{sT1}, s{sI}, 384")
    A(f"s_lshl_b32 s{sT0}, s{sWV}, 5")
    A(f"s_add_u32 s{sT1}, s{sT1}, s{sT0}")
    A(f"buffer_load_dword v249, v{vT+1}, s[{SRD2}:{SRD2+3}], s{sT1} offen offset:256")
    srd(SRD1, sWS, 0x10000000)
    A(f"v_bfe_u32 v{vT+1}, v1, 2, 2")
    A(f"v_lshl_add_u32 v{vT+2}, v{vT}, 2, v{vT+1}")
    A(f"v_lshlrev_b32 v{vT+2}, 7, v{vT+2}")
    A(f"v_bfe_u32 v{vT+3}, v1, 3, 1")
    A(f"v_xor_b32 v{vT+3}, s{sBq}, v{vT+3}")
    A(f"v_lshl_add_u32 v{vT+2}, v{vT+3}, 6, v{vT+2}")
    A(f"v_bfe_u32 v{vT+3}, v1, 4, 1")
    A(f"v_lshl_add_u32 v{vT+2}, v{vT+3}, 5, v{vT+2}")
    A(f"v_and_b32 v{vT+3}, 3, v1")
    A(f"v_lshl_add_u32 v{vA[0]}, v{vT+3}, 3, v{vT+2}")
    A(f"v_add_u32 v{vA[1]}, 0x10000, v{vA[0]}")
    A(f"v_add_u32 v{vA[2]}, 0x20000, v{vA[0]}")
    A(f"v_and_b32 v{vT+1}, 31, v1")
    A(f"v_bfe_u32 v{vT+2}, v1, 1, 3")
    A(f"v_xor_b32 v{vT+2}, v{vT}, v{vT+2}")
    A(f"v_lshlrev_b32 v{vT+2}, 4, v{vT+2}")
    A(f"v_lshl_add_u32 v{vT+2}, v{vT+1}, 7, v{vT+2}")
    A(f"s_lshl_b32 s{sT0}, s{sA}, 12")
    A(f"s_add_u32 s{sT1}, s{sT0}, 0x20000")
    A(f"v_add_u32 v{vBX[0]}, s{sT1}, v{vT+2}")
    for sp in range(1, 4):
        A(f"v_xor_b32 v{vBX[sp]}, {32*sp}, v{vBX[0]}")
    A(f"v_lshl_add_u32 v{vBH[0]}, v1, 4, s{sT0}")
    A(f"v_add_u32 v{vBH[1]}, 0x10000, v{vBH[0]}")
    A(f"v_add_u32 v{vBH[2]}, 0x20000, v{vBH[0]}")
    A(f"s_lshl_b32 s{sT1}, s{sBq}, 11")
    for k in range(3):
        A(f"v_add_u32 v{vHW[k]}, s{sT1}, v{vBH[k]}")
    sI0 = 38
    sMS, sML, sMC = 39, 63, 59
    sHS = [60, 61, 62]
    A(f"s_mul_i32 s{sI0}, s{sA}, 96")
    A(f"s_add_u32 s{sI0}, s{sI0}, s{sR}")
    A(f"s_lshl_b32 s{sI0}, s{sI0}, 3")
    A(f"s_add_u32 s{sI0}, s{sI0}, s{sJ}")
    A(f"s_mul_i32 s{sI0}, s{sI0}, 3072")
    A(f"s_add_u32 s{sI0}, s{sI0}, {WS_IN}")
    A(f"s_lshl_b32 s{sT1}, s{sBq}, 9")
    A(f"s_add_u32 s{sI0}, s{sI0}, s{sT1}")
    A(f"v_bfe_u32 v{vT+1}, v1, 3, 2")
    A(f"v_mul_u32_u24 v{vT+1}, {24*8*3072}, v{vT+1}")
    A(f"v_and_b32 v{vT+2}, 7, v1")
    A(f"v_lshl_add_u32 v{vT+1}, v{vT+2}, 4, v{vT+1}")
    A(f"v_lshl_add_u32 v{vL16}, v{vT}, 7, v{vT+1}")
    A(f"s_mov_b32 s{sMS}, 0x80008000")
    A(f"s_mov_b32 s{sML}, 0x00010001")
    A(f"s_mov_b32 s{sMC}, 0x7fff7fff")
    A(f"s_mul_i32 s{sHS[0]}, s{sWK}, 24576")
    if WS_H:
        A(f"s_add_u32 s{sHS[0]}, s{sHS[0]}, {WS_H}")
    A(f"s_add_u32 s{sHS[1]}, s{sHS[0]}, 8192")
    A(f"s_add_u32 s{sHS[2]}, s{sHS[0]}, 16384")
    def dummy(n, tag):
        if not n:
            return
        for k in range(8):
            A(f"v_mul_u32_u24 v{160+k}, {0x9e3779 + 77*k}, v0")
            A(f"v_and_b32 v{160+k}, 0x3fff3fff, v{160+k}")
        A(f"s_mov_b32 s15, {n // 4}")
        A.label(f"L_dum{tag}")
        for k in range(4):
            A(f"v_mfma_f32_32x32x16_bf16 v[{176+16*k}:{191+16*k}], v[{160+4*(k&1)}:{163+4*(k&1)}], v[{160+4*(k>>1)}:{163+4*(k>>1)}], 0")
        A("s_sub_u32 s15, s15, 1")
        A("s_cmp_lg_u32 s15, 0")
        A(f"s_cbranch_scc1 L_dum{tag}")
    dummy(cfg.dum1, "a")
    epoch_fin()
    slot_add(sI0, *sHS)
    tag_regs(vTG, vT + 1)
    assert not cfg.sa
    A("s_waitcnt vmcnt(1)")
    if cfg.sa:
        A(f"s_cmp_lt_u32 s{sWV}, {cfg.sa}")
        A("s_cbranch_scc1 L_bw")
        A("s_waitcnt vmcnt(0)")
        A.label("L_bw")
    for l in range(3):
        for g in range(4):
            r = vXB + 2 * (4 * l + g)
            d = vACC + 16 * l + 4 * g
            A(f"v_lshlrev_b32 v{d}, 16, v{r}")
            A(f"v_and_b32 v{d+1}, 0xffff0000, v{r}")
            A(f"v_lshlrev_b32 v{d+2}, 16, v{r+1}")
            A(f"v_and_b32 v{d+3}, 0xffff0000, v{r+1}")
    dummy(cfg.dum2, "b")
    stamp()

    items = []
    for st in stages:
        bykb = {}
        for u in st["units"]:
            bykb.setdefault(u[2], []).append(u)
        for kb, us in bykb.items():
            if st["q"] == n_g1 - 1 and cfg.tm:
                seq = [int(c) for c in cfg.tm]
                nsp = {0: 0, 1: 0, 2: 0}
                for t_ in seq:
                    (t, wb, _kb, fst) = [u for u in us if u[0] == t_][0]
                    items.append(dict(q=st["q"], tile=t, wb=wb, kb=kb, sp=nsp[t], first=False))
                    nsp[t] += 1
                assert all(v == 4 for v in nsp.values())
                continue
            for sp in range(4):
                for (t, wb, _kb, fst) in us:
                    items.append(dict(q=st["q"], tile=t, wb=wb, kb=kb, sp=sp, first=(fst and sp == 0)))
    NI = len(items)
    aux_used = set()
    if cfg.dual:
        own_end = max(n for n, it in enumerate(items) if it["q"] >= n_g1 and it["kb"] < 3)
        assert all(kbidx[(0, l)] < 3 for l in range(3))
        for n, it in enumerate(items):
            if n > own_end + 1 and items[n - 1]["tile"] == it["tile"]:
                it["first"] = it["tile"] not in aux_used
                aux_used.add(it["tile"])
                it["tile"] += 3

    def accbase(t):
        return vACC + 16 * t if t < 3 else vXB + 16 * (t - 3)
    last_item = {}
    for n, it in enumerate(items):
        last_item[it["q"]] = n
    bread_of = {(st["q"], kb): bb for st in stages for (bb, kb) in st["breads"]}
    lg = []

    def ds_issue(instr, tag):
        cap = 14 if TS else 15
        if len(lg) >= cap:
            A(f"s_waitcnt lgkmcnt({cap-2})")
            del lg[:len(lg) - (cap - 2)]
        A(instr)
        lg.append(tag)

    def ds_need(tags):
        idx = max([i for i, t in enumerate(lg) if t in tags], default=-1)
        if idx >= 0:
            A(f"s_waitcnt lgkmcnt({len(lg) - 1 - idx})")
            del lg[:idx + 1]

    checked = [-1]
    bdone = set()
    dirty, clean_pos = {}, {}

    def clean(m):
        key = (items[m]["kb"], items[m]["sp"])
        if key in dirty and dirty[key] == m:
            del dirty[key]
            ds_need({("B",) + key})
            r = vXB + 16 * key[0] + 4 * key[1]
            for k in range(4):
                A(f"v_and_b32 v{r+k}, s{sMC}, v{r+k}")
            clean_pos[m] = len(A.L) - 1

    def issue_reads(n):
        it = items[n]
        q = it["q"]
        if q > checked[0]:
            ds_need({"hw"})
            A("s_barrier")
            checked[0] = q
            if q in cfg.tsq:
                stamp()
        key = (q, it["kb"])
        if key in bread_of and (key, it["sp"]) not in bdone:
            bdone.add((key, it["sp"]))
            bb = blocks[bread_of[key]]
            addr = bb["slot"] * 8192
            r = vXB + 16 * it["kb"] + 4 * it["sp"]
            if bb["kind"] == "X":
                assert addr >> 16 == 2
                ds_issue(f"ds_read_b128 v[{r}:{r+3}], v{vBX[it['sp']]} offset:{addr & 0xffff}", ("B", it["kb"], it["sp"]))
            else:
                ds_issue(f"ds_read_b128 v[{r}:{r+3}], v{vBH[addr >> 16]} offset:{(addr & 0xffff) + 1024*it['sp']}",
                         ("B", it["kb"], it["sp"]))
                if bb["kind"] != "Hown":
                    if not cfg.hlsb:
                        dirty[(it["kb"], it["sp"])] = n
        wb = blocks[it["wb"]]
        addr = wb["slot"] * 8192 + 2048 * it["sp"]
        r = vAB + 4 * (n % nAB)
        ds_issue(f"ds_read_b64_tr_b16 v[{r}:{r+1}], v{vA[addr >> 16]} offset:{addr & 0xffff}", ("A", n))
        ds_issue(f"ds_read_b64_tr_b16 v[{r+2}:{r+3}], v{vA[addr >> 16]} offset:{(addr & 0xffff) + 1024}", ("A", n))

    post = []

    def epi1_instrs(pi, lines):
        out, late = [], []
        for l in lines:
            a = vACC + 16 * l
            addr = blocks[f"H0_{l}"]["slot"] * 8192
            for half in range(2):
                base = a + 8 * half
                if cfg.epi == 1:
                    assert cfg.hlsb
                    for k in range(8):
                        out.append(("v", f"v_mul_f32 v{base+k}, v{base+k}, |v{base+k}|"))
                    for k in range(4):
                        out.append(("v", f"v_cvt_pk_bf16_f32 v{base+k}, v{base+2*k}, v{base+2*k+1}"))
                    for k in range(4):
                        out.append(("v", f"v_pk_max_i16 v{base+k}, v{base+k}, 0"))
                else:
                    for k in range(8):
                        out.append(("v", f"v_max_f32 v{base+k}, 0, v{base+k}"))
                    for k in range(0, 8, 2):
                        out.append(("v", f"v_pk_mul_f32 v[{base+k}:{base+k+1}], v[{base+k}:{base+k+1}], v[{base+k}:{base+k+1}]"))
                    for k in range(4):
                        out.append(("v", f"v_cvt_pk_bf16_f32 v{base+k}, v{base+2*k}, v{base+2*k+1}"))
                for k in range(4):
                    out.append(("v", f"v_bfi_b32 v{base+4+k}, s{sML}, v{vTG+k}, v{base+k}" if cfg.hlsb else
                                f"v_and_or_b32 v{base+4+k}, v{vTG+k}, s{sMS}, v{base+k}"))
                out.append(("v", f"buffer_store_dwordx4 v[{base+4}:{base+7}], v{vHW[0]}, s[{SRD1}:{SRD1+3}], s{sHS[l]} offen offset:{1024*half} {cfg.hsf}"))
                out.append(("w", f"ds_write_b128 v{vHW[addr >> 16]}, v[{base}:{base+3}] offset:{(addr & 0xffff) + 1024*half}"))
                t = ("v", f"buffer_load_dword v255, v{vHW[0]}, s[{SRD1}:{SRD1+3}], s{sHS[l]} offen offset:{1024*half} {cfg.stf}")
                if cfg.stouch == 1:
                    out.append(t)
                elif cfg.stouch == 2:
                    late.append(t)
                elif cfg.stouch == 3:
                    post.append(t)
        return out + late

    def epi2_instrs(lines):
        out = []
        for l in lines:
            for u in range(2):
                base = vACC + 8 * (2 * l + u)
                if l in aux_used:
                    ab = accbase(l + 3) + 8 * u
                    for k in range(0, 8, 2):
                        out.append(("v", f"v_pk_add_f32 v[{base+k}:{base+k+1}], v[{base+k}:{base+k+1}], v[{ab+k}:{ab+k+1}]"))
                for k in range(4):
                    out.append(("v", f"v_cvt_pk_bf16_f32 v{base+k}, v{base+2*k}, v{base+2*k+1}"))
                out.append(("v", "s_nop 1"))
                out.append(("v", f"v_permlane32_swap_b32 v{base}, v{base+2}"))
                out.append(("v", f"v_permlane32_swap_b32 v{base+1}, v{base+3}"))
                for k in (0, 2, 1, 3):
                    out.append(("v", f"v_bfi_b32 v{base+k}, s{sML}, v{vTG+k}, v{base+k}"))
                out.append(("v", f"buffer_store_dwordx4 v[{base}:{base+3}], v{vL16}, s[{SRD1}:{SRD1+3}], s{sI0} offen offset:{1024*l+256*u} {cfg.psf}"))
        return out

    fillers = []
    fill_start = 0
    fill_tiles = set()
    mfma_pos = {}
    fill_fresh = [False]

    def states_since(pos):
        c = 0
        for ln in A.L[pos + 1:]:
            t = ln.strip()
            if t.endswith(":") or t.startswith(";") or t.startswith("@@"):
                continue
            c += int(t.split()[1]) + 1 if t.startswith("s_nop") else 1
        return c

    late_w = []

    def emit(kind, t):
        if kind == "mark":
            have = min(states_since(mfma_pos[tl]) for tl in t[0])
            if have < 12:
                A(f"s_nop {12 - have - 1}")
        elif kind == "w":
            ds_issue(t, "hw")
        else:
            A(t)

    def flush_fillers():
        nonlocal fillers
        for (kind, t) in fillers + late_w:
            emit(kind, t)
        fillers = []
        late_w.clear()
        fill_tiles.clear()

    trig = {}
    for l in range(3):
        trig[max(n for n, it in enumerate(items) if it["q"] < n_g1 and it["tile"] == l)] = (1, l)
        trig[max(n for n, it in enumerate(items) if it["q"] >= n_g1 and it["tile"] % 3 == l)] = (2, l)

    nread = 0
    for n in range(NI):
        it = items[n]
        lim = min(NI - 1, n + D)
        while nread <= lim:
            nx = items[nread]
            if nx["q"] > checked[0]:
                due = [l for l, v in hown_vis.items() if v == nx["q"]]
                if due:
                    if last_item[hown_w[due[0]]] >= n:
                        break
                    flush_fillers()
            key = (nx["q"], nx["kb"])
            if key in bread_of and (key, nx["sp"]) not in bdone:
                if any(items[m]["kb"] == nx["kb"] and items[m]["sp"] == nx["sp"] for m in range(n, nread)):
                    break
            issue_reads(nread)
            nread += 1
        assert nread > n
        if it["tile"] in fill_tiles:
            flush_fillers()
            A("s_nop 1")
        clean(n)
        ds_need({("A", n), ("B", it["kb"], it["sp"])})
        if it["first"]:
            ds_need({"hw"})
        if n in clean_pos and states_since(clean_pos[n]) < 2:
            A(f"s_nop {1 - states_since(clean_pos[n])}")
        ra = vAB + 4 * (n % nAB)
        rb = vXB + 16 * it["kb"] + 4 * it["sp"]
        acc = accbase(it["tile"])
        c = "0" if it["first"] else f"v[{acc}:{acc+15}]"
        A(f"v_mfma_f32_32x32x16_bf16 v[{acc}:{acc+15}], v[{ra}:{ra+3}], v[{rb}:{rb+3}], {c}")
        mfma_pos[it["tile"]] = len(A.L) - 1
        if n + 1 < nread:
            clean(n + 1)
        k = 0
        while fillers and k < (cfg.fill1 if it["q"] < n_g1 else cfg.fill):
            if fillers[0][0] == "mark" and n < fillers[0][1][1]:
                break
            kind, t = fillers.pop(0)
            emit(kind, t)
            k += kind != "mark"
        if not fillers and not late_w:
            fill_tiles.clear()
        if n == last_item[it["q"]] and (it["q"] in epi_after or it["q"] in epi2_after):
            stamp()
        if n in trig:
            g, l = trig[n]
            tl = [l] + ([l + 3] if (g == 2 and l in aux_used) else [])
            new = epi1_instrs(0, [l]) if g == 1 else epi2_instrs([l])
            if cfg.wlast:
                late_w.extend(x for x in new if x[0] == "w")
                new = [x for x in new if x[0] != "w"]
            fillers += [("mark", (tl, n + cfg.fdel))] + new
            fill_tiles.update(tl)
    flush_fillers()
    stamp()
    if cfg.rnb >= 1 and not cfg.rlate:
        A("s_barrier")
    reduce_code(1, 0)
    if TS:
        A("s_waitcnt vmcnt(0)")
        A("s_memrealtime s[98:99]")
        A("s_waitcnt lgkmcnt(0)")
        assert tsn[0] <= 14, tsn[0]
        A(f"s_mov_b32 s{sTS+28}, s98"); A(f"s_mov_b32 s{sTS+30}, s{sCNT}")
        tsn[0] = 16
        stamp_flush()
    if cfg.enc and cfg.encw < 4:
        A("s_branch L_noep")
    A("s_branch L_end")

    A.head("hl")
    A.label("L_helper")
    sG = 38
    A(f"s_lshl_b32 s{sG}, s{sWV}, 3")
    A(f"s_add_u32 s{sG}, s{sG}, s{sR}")
    A("v_mul_u32_u24 v8, 9216, v1")
    A("v_mul_u32_u24 v9, 1152, v1")
    A(f"s_mul_i32 s39, s{sJ}, 1152")
    A("s_waitcnt lgkmcnt(0)")
    NWT = 64

    def sdiv(dst, src, d):
        A(f"s_mul_i32 s{dst}, s{src}, {(65536 + d - 1) // d}")
        A(f"s_lshr_b32 s{dst}, s{dst}, 16")

    w2base = 0
    if cfg.touch and any(ROT):
        srd(SRD0, sW1, 5308416)
        srd(SRD1, sX, 589824)
        need = {kk: min((kk - r) % 9 for r in ROT) for kk in range(9)}
        kks = sorted([kk for kk in range(9) if need[kk] >= cfg.skipw], key=lambda kk: need[kk])
        KT = sum(kk << (4 * u) for u, kk in enumerate(kks))
        nW = 9 * len(kks)
        x0 = cfg.skipx
        nX = 8 * (9 - x0)
        tot = nW + nX
        for rnd in range((tot + NWT - 1) // NWT):
            if rnd == 1:
                A.tail("hl")
            k = A.uid()
            A(f"s_add_u32 s{sT0}, s{sG}, {NWT*rnd}")
            if NWT * rnd < nW:
                if NWT * rnd + NWT > nW:
                    A(f"s_cmp_ge_u32 s{sT0}, {nW}")
                    A(f"s_cbranch_scc1 L_hx{k}")
                sdiv(sT1, sT0, 9)
                A(f"s_mul_i32 s{sT2}, s{sT1}, 9")
                A(f"s_sub_u32 s{sT2}, s{sT0}, s{sT2}")
                A(f"s_lshl_b32 s{sT1}, s{sT1}, 2")
                A(f"s_lshr_b32 s{sT1}, {KT}, s{sT1}")
                A(f"s_and_b32 s{sT1}, s{sT1}, 15")
                A(f"s_mul_i32 s{sT1}, s{sT1}, {64*9216}")
                A(f"s_lshl_b32 s{sT2}, s{sT2}, 7")
                A(f"s_add_u32 s{sT1}, s{sT1}, s{sT2}")
                A(f"s_add_u32 s{sT1}, s{sT1}, s39")
                A(f"buffer_load_dword v255, v8, s[{SRD0}:{SRD0+3}], s{sT1} offen {cfg.tfl}")
                if NWT * rnd + NWT > nW:
                    A(f"s_branch L_ht{k}")
            if NWT * rnd + NWT > nW:
                A.label(f"L_hx{k}")
                if NWT * rnd + NWT > tot:
                    A(f"s_cmp_ge_u32 s{sT0}, {tot}")
                    A(f"s_cbranch_scc1 L_ht{k}")
                A(f"s_sub_u32 s{sT0}, s{sT0}, {nW - 8*x0}")
                A(f"s_and_b32 s{sT2}, s{sT0}, 7")
                A(f"s_lshr_b32 s{sT1}, s{sT0}, 3")
                A(f"s_lshl_b32 s{sT3}, s{sT2}, 2")
                A(f"s_lshr_b32 s{sT3}, {ROTTAB}, s{sT3}")
                A(f"s_and_b32 s{sT3}, s{sT3}, 15")
                A(f"s_add_u32 s{sT1}, s{sT1}, s{sT3}")
                A(f"s_cmp_ge_u32 s{sT1}, 9")
                A(f"s_cselect_b32 s{sT3}, 9, 0")
                A(f"s_sub_u32 s{sT1}, s{sT1}, s{sT3}")
                A(f"s_mul_i32 s{sT2}, s{sT2}, {64*1152}")
                A(f"s_lshl_b32 s{sT1}, s{sT1}, 7")
                A(f"s_add_u32 s{sT1}, s{sT1}, s{sT2}")
                A(f"buffer_load_dword v255, v9, s[{SRD1}:{SRD1+3}], s{sT1} offen")
            A.label(f"L_ht{k}")
        w2base = (NWT - tot % NWT) % NWT
    elif cfg.touch:
        srd(SRD0, sW1, 5308416)
        srd(SRD1, sX, 589824)
        phases, base = [], 0
        for pi, ls in enumerate(passes):
            t0 = cfg.ht0 if pi == 0 else 0
            c = 3 * len(ls) + (8 if pi == 0 else 0)
            phases.append((base, (9 - t0 - cfg.tn) * c, t0, c, ls))
            base += (9 - t0 - cfg.tn) * c
        w2base = (NWT - base % NWT) % NWT if cfg.w2rot else 0
        for rnd in range((base + NWT - 1) // NWT):
            if rnd == 1:
                A.tail("hl")
            k = A.uid()
            A(f"s_add_u32 s{sT0}, s{sG}, {NWT*rnd}")
            for (pb, cnt, t0, c, ls) in phases:
                if pb + cnt <= NWT * rnd or pb >= NWT * rnd + NWT:
                    continue
                k2 = A.uid()
                A(f"s_cmp_ge_u32 s{sT0}, {pb+cnt}")
                A(f"s_cbranch_scc1 L_hp{k2}")
                if pb:
                    A(f"s_sub_u32 s{sT0}, s{sT0}, {pb}")
                sdiv(sT1, sT0, c)
                A(f"s_mul_i32 s{sT2}, s{sT1}, {c}")
                A(f"s_sub_u32 s{sT2}, s{sT0}, s{sT2}")
                if t0:
                    A(f"s_add_u32 s{sT1}, s{sT1}, {t0}")
                if cfg.tn:
                    A(f"s_cmp_ge_u32 s{sT1}, {cfg.ta}")
                    A(f"s_cselect_b32 s{sT3}, {cfg.tn}, 0")
                    A(f"s_add_u32 s{sT1}, s{sT1}, s{sT3}")
                nw = 3 * len(ls)
                if c > nw:
                    A(f"s_cmp_ge_u32 s{sT2}, {nw}")
                    A(f"s_cbranch_scc1 L_hx{k2}")
                if len(ls) != 3:
                    if len(ls) == 1:
                        A(f"s_mul_i32 s{sT2}, s{sT2}, 3")
                    else:
                        A(f"s_lshr_b32 s{sT3}, s{sT2}, 1")
                        A(f"s_add_u32 s{sT2}, s{sT2}, s{sT3}")
                    if ls[0]:
                        A(f"s_add_u32 s{sT2}, s{sT2}, {ls[0]}")
                A(f"s_mul_i32 s{sT1}, s{sT1}, {64*9216}")
                A(f"s_lshl_b32 s{sT2}, s{sT2}, 7")
                A(f"s_add_u32 s{sT1}, s{sT1}, s{sT2}")
                A(f"s_add_u32 s{sT1}, s{sT1}, s39")
                A(f"buffer_load_dword v255, v8, s[{SRD0}:{SRD0+3}], s{sT1} offen {cfg.tfl}")
                A(f"s_branch L_ht{k}")
                if c > nw:
                    A.label(f"L_hx{k2}")
                    A(f"s_sub_u32 s{sT2}, s{sT2}, {nw}")
                    A(f"s_mul_i32 s{sT2}, s{sT2}, {64*1152}")
                    A(f"s_lshl_b32 s{sT1}, s{sT1}, 7")
                    A(f"s_add_u32 s{sT1}, s{sT1}, s{sT2}")
                    A(f"buffer_load_dword v255, v9, s[{SRD1}:{SRD1+3}], s{sT1} offen")
                    A(f"s_branch L_ht{k}")
                A.label(f"L_hp{k2}")
            A.label(f"L_ht{k}")
    def h_pretouch():
        srd(SRD1, sWS, 0x10000000)
        A("v_lshlrev_b32 v10, 7, v1")
        A(f"s_mul_i32 s{sT1}, s{sJ}, 589824")
        A(f"s_add_u32 s{sT1}, s{sT1}, {WS_IN if cfg.hpin else WS_H}")
        for rnd in range(2):
            k = A.uid()
            A(f"s_add_u32 s{sT0}, s{sG}, {NWT*rnd}")
            A(f"s_cmp_ge_u32 s{sT0}, 72")
            A(f"s_cbranch_scc1 L_ht{k}")
            A(f"s_lshl_b32 s{sT0}, s{sT0}, 13")
            A(f"s_add_u32 s{sT0}, s{sT0}, s{sT1}")
            A(f"buffer_load_dword v255, v10, s[{SRD1}:{SRD1+3}], s{sT0} offen {cfg.hpf}")
            A.label(f"L_ht{k}")
    if cfg.hpre == 1:
        h_pretouch()
    if cfg.touch:
        srd(SRD0, sW2, 5308416)
        A(f"s_mul_i32 s39, s{sJ}, 663552")
        korder = sorted(kbidx, key=lambda x: kbidx[x])
        tabD = sum(d << (2 * u) for u, (d, lk) in enumerate(korder))
        tabL = sum(lk << (2 * u) for u, (d, lk) in enumerate(korder))
        if w2base:
            A(f"s_add_u32 s{sG}, s{sG}, {w2base}")
            A(f"s_and_b32 s{sG}, s{sG}, 63")
        for rnd in range(2):
            k = A.uid()
            A(f"s_add_u32 s{sT0}, s{sG}, {NWT*rnd}")
            A(f"s_cmp_ge_u32 s{sT0}, 81")
            A(f"s_cbranch_scc1 L_ht{k}")
            sdiv(sT1, sT0, 9)
            A(f"s_mul_i32 s{sT2}, s{sT1}, 9")
            A(f"s_sub_u32 s{sT2}, s{sT0}, s{sT2}")
            sdiv(sT3, sT2, 3)
            A(f"s_lshl_b32 s{sT1}, s{sT1}, 1")
            A(f"s_lshr_b32 s{sT0}, {tabD}, s{sT1}")
            A(f"s_and_b32 s{sT0}, s{sT0}, 3")
            A(f"s_add_u32 s{sT0}, s{sT0}, s{sT3}")
            A(f"s_cmp_ge_u32 s{sT0}, 3")
            A(f"s_cselect_b32 s{sT3}, 3, 0")
            A(f"s_sub_u32 s{sT0}, s{sT0}, s{sT3}")
            A(f"s_lshr_b32 s{sT3}, {tabL}, s{sT1}")
            A(f"s_and_b32 s{sT3}, s{sT3}, 3")
            A(f"s_mul_i32 s{sT0}, s{sT0}, {192*1152}")
            A(f"s_mul_i32 s{sT3}, s{sT3}, {64*1152}")
            A(f"s_add_u32 s{sT0}, s{sT0}, s{sT3}")
            A(f"s_lshl_b32 s{sT2}, s{sT2}, 7")
            A(f"s_add_u32 s{sT0}, s{sT0}, s{sT2}")
            A(f"s_add_u32 s{sT0}, s{sT0}, s39")
            A(f"buffer_load_dword v255, v9, s[{SRD0}:{SRD0+3}], s{sT0} offen {cfg.tfl}")
            A.label(f"L_ht{k}")
    if cfg.hpre == 2:
        h_pretouch()
    dummy(cfg.dumh, "h")
    if TS:
        tsn[0] = 1
        A("s_waitcnt vmcnt(0)")
        stamp()
        stamp()
        stamp_flush()
    A("s_branch L_end")
    A.tail("end")
    A.label("L_end")

    hdr = f"""; Fused MLP (x@w1+b1 -> relu^2 -> @w2+b2), generated by a python script (work/gen4.py)
; @launch grid=(256,1,1) block=(512,1,1) lds=163840
.amdgcn_target "amdgcn-amd-amdhsa--gfx950"
.text
.globl {KN}
.p2align 8
.type {KN},@function
{KN}:
"""
    ftr = f"""
    s_endpgm
.section .rodata,"a"
.p2align 6
.amdhsa_kernel {KN}
  .amdhsa_next_free_vgpr 256
  .amdhsa_next_free_sgpr 102
  .amdhsa_accum_offset 256
  .amdhsa_group_segment_fixed_size 0
  .amdhsa_kernarg_size 64
  .amdhsa_user_sgpr_count 2
  .amdhsa_user_sgpr_kernarg_segment_ptr 1
  .amdhsa_system_sgpr_workgroup_id_x 1
.end_amdhsa_kernel
"""
    return hdr + A.text(cfg.horder.split(","), cfg.torder.split(",") + ["end"]) + ftr


def parse_g2(s):
    out = []
    for stg in s.split(","):
        us = []
        for u in stg.split("+"):
            a, b = u.split(":")
            us.append((int(a[0]), int(a[1]), [int(c) for c in b]))
        out.append(us)
    return out


def ilist(s):
    return [int(x) for x in s.split(",")] if s else []


def main():
    ap = argparse.ArgumentParser()
    ap.add_argument("-o", default="k8.s")
    ap.add_argument("--ts", action="store_true")
    ap.add_argument("--passes", default="012")
    ap.add_argument("--depth", type=int, default=5)
    ap.add_argument("--fill", type=int, default=4)
    ap.add_argument("--grp1", type=int, default=3)
    ap.add_argument("--hres", type=float, default=2.5)
    ap.add_argument("--hearly", type=float, default=1.5)
    ap.add_argument("--hdel", type=int, default=1)
    ap.add_argument("--xfree", type=int, default=11)
    ap.add_argument("--g2", default="00:012,01:012,02:012,10:012,20:012,11:012,21:012,12:012,22:012")
    ap.add_argument("--tsq", default="")
    ap.add_argument("--verbose", action="store_true")
    ap.add_argument("--ahead", type=int, default=8)
    ap.add_argument("--ahead0", type=int, default=8)
    ap.add_argument("--capfrom", type=int, default=8)
    ap.add_argument("--capw", type=int, default=4)
    ap.add_argument("--capx", type=int, default=3)
    ap.add_argument("--burst", default="")
    ap.add_argument("--pause", default="")
    ap.add_argument("--go2lead", type=int, default=3)
    ap.add_argument("--sa", type=int, default=0)
    ap.add_argument("--ctouch", type=int, default=1)
    ap.add_argument("--wfl", default="")
    ap.add_argument("--tfl", default="")
    ap.add_argument("--rfl", default="sc1")
    ap.add_argument("--rsleep", type=int, default=0)
    ap.add_argument("--touch", type=int, default=1)
    ap.add_argument("--clrq", type=int, default=-1)
    ap.add_argument("--cdq", type=int, default=9)
    ap.add_argument("--rbar", type=int, default=0)
    ap.add_argument("--hsf", default="sc1")
    ap.add_argument("--hlf", default="sc1")
    ap.add_argument("--ofl", default="")
    ap.add_argument("--hpre", type=int, default=0)
    ap.add_argument("--rot", default="00000000")
    ap.add_argument("--ts0", type=int, default=0)
    ap.add_argument("--hlsb", type=int, default=1)
    ap.add_argument("--dual", type=int, default=0)
    ap.add_argument("--owide", type=int, default=0)
    ap.add_argument("--dum1", type=int, default=0)
    ap.add_argument("--dum2", type=int, default=0)
    ap.add_argument("--dumh", type=int, default=0)
    ap.add_argument("--encc", type=int, default=0)
    ap.add_argument("--encm", type=int, default=2)
    ap.add_argument("--slots", type=int, default=0)
    ap.add_argument("--rlate", type=int, default=0)
    ap.add_argument("--epi", type=int, default=0)
    ap.add_argument("--tm", default="")
    ap.add_argument("--wlast", type=int, default=0)
    ap.add_argument("--fdel", type=int, default=3)
    ap.add_argument("--fill1", type=int, default=5)
    ap.add_argument("--priow", type=int, default=0)
    ap.add_argument("--prioh", type=int, default=0)
    ap.add_argument("--r0early", type=int, default=0)
    ap.add_argument("--psf", default="sc1")
    ap.add_argument("--rw1", type=int, default=0)
    ap.add_argument("--ofl1", default="")
    ap.add_argument("--rpq", type=int, default=10)
    ap.add_argument("--rb2", type=int, default=1)
    ap.add_argument("--rb4", type=int, default=0)
    ap.add_argument("--rearly", type=int, default=0)
    ap.add_argument("--hpf", default="")
    ap.add_argument("--hpin", type=int, default=0)
    ap.add_argument("--wsb", type=lambda x: int(x, 0), default=0)
    ap.add_argument("--enc", default="")
    ap.add_argument("--encw", type=int, default=4)
    ap.add_argument("--hfree", type=int, default=2)
    ap.add_argument("--stouch", type=int, default=0)
    ap.add_argument("--stdel", type=int, default=1)
    ap.add_argument("--stf", default="")
    ap.add_argument("--ta", type=int, default=0)
    ap.add_argument("--tn", type=int, default=0)
    ap.add_argument("--tpos", type=int, default=0)
    ap.add_argument("--w2rot", type=int, default=1)
    ap.add_argument("--rfast", type=int, default=1)
    ap.add_argument("--wt", type=int, default=0)
    ap.add_argument("--horder", default="w,x,h2,hl,c")
    ap.add_argument("--ht0", type=int, default=1)
    ap.add_argument("--first", type=int, default=4)
    ap.add_argument("--torder", default="hl,w,x,h2,c,red")
    ap.add_argument("--skipw", type=int, default=1)
    ap.add_argument("--skipx", type=int, default=1)
    cfg = ap.parse_args()
    cfg.passes = [[int(c) for c in p] for p in cfg.passes.split(",")]
    cfg.g2 = parse_g2(cfg.g2)
    cfg.rnb = cfg.rb2
    cfg.tsq, cfg.burst, cfg.pause = ilist(cfg.tsq), ilist(cfg.burst), ilist(cfg.pause)
    open(cfg.o, "w").write(build(cfg))


main()
```

```python
import sys, argparse

KN = "standalone__dense_activation_squared_relu__sampling_kernel"

WS_H = 0x0
WS_IN = 0x1000000
WS_CD = 0x1840000
WS_EP = 0x1850000
WS_TS = 0x8000000
SPIN_MAX = 100000
SGNMASK = 0x6A9956A5


class Asm:
    def __init__(self):
        self.L = []
        self.n = 0

    def __call__(self, s):
        self.L.append("    " + s)

    def label(self, s):
        self.L.append(s + ":")

    def c(self, s):
        self.L.append("    ; " + s)

    def uid(self):
        self.n += 1
        return self.n

    def head(self, role):
        self.L.append(f"@@HEAD {role}")

    def tail(self, role):
        self.L.append(f"@@TAIL {role}")

    def text(self, horder, torder):
        pro, heads, tails, cur = [], {}, {}, None
        cur = pro
        for ln in self.L:
            if ln.startswith("@@HEAD"):
                cur = heads.setdefault(ln.split()[1], [])
            elif ln.startswith("@@TAIL"):
                r = ln.split()[1]
                if r in heads:
                    heads[r].append(f"    s_branch L_tail_{r}")
                cur = tails.setdefault(r, [f"L_tail_{r}:"])
            else:
                cur.append(ln)
        assert sorted(heads) == sorted(horder) and sorted(tails) == sorted(torder), (heads.keys(), tails.keys())
        out = pro
        for r in horder:
            out += heads[r]
        out.append("L_heads_end:")
        for r in torder:
            out += tails[r]
        return "\n".join(out)


def build(cfg):
    global WS_H, WS_IN, WS_EP
    WS_H = cfg.wsb
    WS_IN = cfg.wsb + 0x480000
    WS_EP = cfg.wsb + 0x900000 if not cfg.slots else 0x10000
    A = Asm()
    TS = cfg.ts
    passes = cfg.passes
    D = cfg.depth

    stages, blocks, order = [], {}, []

    def blk(name, **kw):
        blocks[name] = dict(name=name, **kw)
        return name

    def add_stage(units, breads):
        q = len(stages)
        stages.append(dict(units=units, breads=breads, q=q))
        for (bb, _kb) in breads:
            b = blocks[bb]
            b["need"] = b["last"] = q
            if b["kind"] != "Hown":
                order.append(bb)
        for (_t, wb, _kb, _first) in units:
            b = blocks[wb]
            if "need" not in b:
                b["need"] = q
                order.append(wb)
            b["last"] = q
        return q

    epi_after, pass_of_line = {}, {}
    for pi, lines in enumerate(passes):
        grp = 1 if (len(lines) > 1 or pi == 0) else cfg.grp1
        for t0 in range(0, 9, grp):
            units, breads = [], []
            for t in range(t0, t0 + grp):
                if pi == 0:
                    breads.append((blk(f"X{t}", kind="X", t=t), t))
                for l in lines:
                    units.append((l, blk(f"W{t}_{l}", kind="W1", t=t, l=l), t, False))
            q = add_stage(units, breads)
        epi_after[q] = (pi, list(lines))
        for l in lines:
            pass_of_line[l] = pi
    n_g1 = len(stages)
    kbidx = {}
    first = {0: True, 1: True, 2: True}
    cnt2 = {0: 0, 1: 0, 2: 0}
    epi2_after = {}
    for stg in cfg.g2:
        units, breads = [], []
        for (d, lk, lines) in stg:
            if (d, lk) not in kbidx:
                kbidx[(d, lk)] = len(kbidx)
                breads.append((blk(f"H{d}_{lk}", kind="Hown" if d == 0 else f"H{d}", d=d, lk=lk), kbidx[(d, lk)]))
            for l in lines:
                units.append((l, blk(f"V{d}_{lk}_{l}", kind="W2", d=d, lk=lk, l=l), kbidx[(d, lk)], first[l]))
                first[l] = False
                cnt2[l] += 1
        q = add_stage(units, breads)
        done = [l for l in range(3) if cnt2[l] == 9 and not any(l in v for v in epi2_after.values())]
        if done:
            epi2_after[q] = done
    assert all(v == 9 for v in cnt2.values())
    NQ = len(stages)
    hown_w = {l: q for q, (pi, lines) in epi_after.items() for l in lines}
    hown_vis = {l: (q + 1 if q == n_g1 - 1 else q + 2) for l, q in hown_w.items()}
    for l in hown_w:
        assert blocks[f"H0_{l}"]["need"] >= hown_vis[l]
    hfetch = {l: hown_vis[l] + cfg.hdel for l in hown_w}

    free_at = {s: -10 for s in range(20)}
    events = [(blocks[nm]["need"] - (cfg.hearly if blocks[nm]["kind"] in ("H1", "H2") else 0), 1, k, nm) for k, nm in enumerate(order)]
    for l, qw in hown_w.items():
        events.append((qw - cfg.hres, 0, l, f"H0_{l}"))
    events.sort()
    for ev in events:
        b = blocks[ev[3]]
        if b["kind"] == "X":
            cand = [16, 17, 18, 19]
        elif ev[0] < cfg.xfree:
            cand = list(range(0, 16))
        else:
            cand = list(range(0, 20))
        s = min(cand, key=lambda s: (free_at[s], s))
        b["slot"] = s
        b["free"] = free_at[s]
        if b["kind"] == "Hown":
            assert b["free"] + cfg.hfree <= hown_w[b["lk"]], b
        else:
            assert b["free"] + 2 < b["need"], b
        free_at[s] = b["last"]
    if cfg.verbose:
        print(" | ".join(f"{blocks[e[3]]['name']}:s{blocks[e[3]]['slot']} f{blocks[e[3]]['free']} n{blocks[e[3]]['need']}" for e in events), file=sys.stderr)
    for k, nm in enumerate(order):
        blocks[nm]["pos"] = k
    cum = [sum(1 for nm in order if blocks[nm]["need"] <= q) for q in range(NQ)]

    sX, sW1, sB1, sW2, sB2, sOUT, sDBG, sWS = 16, 18, 20, 22, 24, 26, 28, 30
    sJ, sR, sMT, sI, sWV, sWK = 32, 33, 34, 35, 36, 37
    SRD0, SRD1, SRD2 = 40, 44, 48
    sT0, sT1, sT2, sT3, sT4, sT5 = 52, 53, 54, 55, 56, 57
    sCNT = 58
    sTAG, sPB = 6, 8
    sTS = 64
    tsn = [0]

    def stamp():
        if TS:
            k = tsn[0]
            assert k < 16
            A(f"{'s_memrealtime' if cfg.tsreal else 's_memtime'} s[{sTS+2*k}:{sTS+2*k+1}]")
            tsn[0] += 1

    def srd(d, p, nbytes):
        A(f"s_mov_b32 s{d}, s{p}")
        A(f"s_mov_b32 s{d+1}, s{p+1}")
        A(f"s_mov_b32 s{d+2}, {nbytes}")
        A(f"s_mov_b32 s{d+3}, 0x00020000")

    def stamp_flush():
        if not TS:
            return
        n = tsn[0]
        A("s_waitcnt lgkmcnt(0)")
        srd(SRD2, sWS, 0x10000000)
        A(f"s_lshl_b32 s{sT0}, s2, 9")
        A(f"s_lshl_b32 s{sT1}, s{sWV}, 6")
        A(f"s_add_u32 s{sT0}, s{sT0}, s{sT1}")
        A(f"s_add_u32 s{sT0}, s{sT0}, {WS_TS}")
        A(f"v_mov_b32 v2, s{sT0}")
        A("s_mov_b64 exec, 1")
        for k in range(n):
            A(f"v_mov_b32 v3, s{sTS+2*k}")
            A(f"buffer_store_dword v3, v2, s[{SRD2}:{SRD2+3}], 0 offen offset:{4*k}")
        A("s_mov_b64 exec, -1")

    def epoch_load(smt):
        A(f"s_lshl_b32 s{sT0}, s{smt}, 7")
        A(f"s_add_u32 s{sT0}, s{sT0}, {WS_EP}")
        A(f"s_load_dword s{sTAG}, s[{sWS}:{sWS+1}], s{sT0}")

    def epoch_fin():
        A("s_waitcnt lgkmcnt(0)")
        A(f"s_add_u32 s{sTAG}, s{sTAG}, 1")
        A(f"s_mul_i32 s{sTAG+1}, s{sTAG}, 0x02020202")
        A(f"s_and_b32 s{sTAG+1}, s{sTAG+1}, 0xeeeeeeee")
        A(f"s_or_b32 s{sTAG+1}, s{sTAG+1}, 0x10101010")
        if cfg.slots:
            A(f"s_and_b32 s14, s{sTAG}, {cfg.slots-1}")
            A(f"s_mul_i32 s14, s14, 0xa00000")

    def slot_add(*regs):
        if cfg.slots:
            for r in regs:
                A(f"s_add_u32 s{r}, s{r}, s14")

    def tag_regs(vd, vt):
        A(f"v_and_b32 v{vt}, 3, v1")
        A(f"v_lshlrev_b32 v{vt}, 3, v{vt}")
        A(f"v_lshrrev_b32 v{vt}, v{vt}, s{sTAG+1}")
        for k in range(4):
            A(f"v_bfe_u32 v{vd+k}, v{vt}, {2*k}, 2")
            A(f"v_mul_u32_u24 v{vd+k}, 0x8001, v{vd+k}")
            A(f"v_and_b32 v{vd+k}, 0x10001, v{vd+k}")
            A(f"v_lshl_or_b32 v{vd+k}, v{vd+k}, 15, v{vd+k}")

    def sign_reg(vd, vt):
        A(f"s_bitcmp1_b32 s{sTAG}, 0")
        A(f"s_cselect_b32 s{sT0}, -1, 0")
        A(f"s_xor_b32 s{sT0}, s{sT0}, {SGNMASK}")
        A(f"v_and_b32 v{vt}, 31, v1")
        A(f"v_lshrrev_b32 v{vt}, v{vt}, s{sT0}")
        A(f"v_bfe_i32 v{vt}, v{vt}, 0, 1")
        A(f"v_and_b32 v{vd}, 0x80008000, v{vt}")

    def sspin(loads, npairs, base):
        k = A.uid()
        A(f"s_mov_b32 s{sCNT}, 0")
        A.label(f"L_s{k}")
        for x in loads:
            A(x)
        A(f"s_add_u32 s{sCNT}, s{sCNT}, 1")
        A("s_waitcnt lgkmcnt(0)")
        A(f"s_cmp_gt_u32 s{sCNT}, {SPIN_MAX}")
        A(f"s_cbranch_scc1 L_sd{k}")
        for n in range(npairs):
            A(f"s_cmp_lg_u64 s[{base+2*n}:{base+2*n+1}], s[{sTAG}:{sTAG+1}]")
            A(f"s_cbranch_scc1 L_s{k}")
        A.label(f"L_sd{k}")

    def mod3add(dst, d, tmp):
        A(f"s_add_u32 s{dst}, s{sI}, {d}")
        A(f"s_cmp_ge_u32 s{dst}, 3")
        A(f"s_cselect_b32 s{tmp}, 3, 0")
        A(f"s_sub_u32 s{dst}, s{dst}, s{tmp}")

    A("s_cmp_ge_u32 s2, 256")
    A("s_cbranch_scc1 L_end")
    A("s_load_dwordx16 s[16:31], s[0:1], 0")
    if cfg.ctouch == 1:
        A("s_getpc_b64 s[4:5]")
        A.label("L_pc")
        A("v_lshlrev_b32 v2, 7, v0")
        A("v_min_u32 v2, L_end-L_pc, v2")
        A("v_and_b32 v2, 0xfffffffc, v2")
        A("global_load_dword v255, v2, s[4:5]")
    elif cfg.ctouch == 2:
        A("s_getpc_b64 s[4:5]")
        A.label("L_pc")
        A("s_lshr_b32 s3, s2, 3")
        A("s_lshl_b32 s3, s3, 11")
        A("v_lshrrev_b32 v2, 5, v0")
        A("v_lshl_add_u32 v2, v2, 7, s3")
        A("v_min_u32 v2, L_end-L_pc, v2")
        A("v_and_b32 v2, 0xfffffffc, v2")
        A("global_load_dword v255, v2, s[4:5]")
    if TS:
        A("s_memrealtime s[96:97]")
    if cfg.enc:
        A("s_memrealtime s[96:97]")
        if cfg.enc == "none":
            A("s_memrealtime s[94:95]")
        if cfg.encc:
            A("s_memtime s[92:93]")

    def enc(p):
        if cfg.enc == p:
            A("s_memrealtime s[94:95]" if not cfg.encc else "s_memtime s[94:95]")
    stamp()
    A("v_and_b32 v1, 63, v0")
    A("v_lshrrev_b32 v2, 6, v0")
    A(f"s_and_b32 s{sJ}, s2, 7")
    A(f"v_readfirstlane_b32 s{sWV}, v2")
    A(f"s_lshr_b32 s{sR}, s2, 3")
    A(f"s_cmp_lt_u32 s{sR}, 8")
    A("s_cbranch_scc1 L_helper")
    A(f"s_sub_u32 s{sR}, s{sR}, 8")
    A(f"s_mul_i32 s{sMT}, s{sR}, 21846")
    A(f"s_lshr_b32 s{sMT}, s{sMT}, 16")
    A(f"s_mul_i32 s{sT0}, s{sMT}, 3")
    A(f"s_sub_u32 s{sI}, s{sR}, s{sT0}")
    A(f"s_mul_i32 s{sWK}, s{sJ}, 24")
    A(f"s_add_u32 s{sWK}, s{sWK}, s{sR}")
    ROT = [int(c) for c in cfg.rot]
    ROTTAB = sum(r << (4 * m) for m, r in enumerate(ROT))
    sROT, sLO, sHI = 10, 11, 12
    if any(ROT):
        A(f"s_lshl_b32 s{sROT}, s{sMT}, 2")
        A(f"s_lshr_b32 s{sROT}, {ROTTAB}, s{sROT}")
        A(f"s_and_b32 s{sROT}, s{sROT}, 15")

    def rot_setup(sbase, stride):
        if any(ROT):
            A(f"s_mul_i32 s{sLO}, s{sROT}, {stride}")
            A(f"s_add_u32 s{sLO}, s{sLO}, s{sbase}")
            A(f"s_sub_u32 s{sHI}, s{sLO}, {9*stride}")

    def rot_addr(dst, sbase, t, stride, extra):
        if any(ROT):
            if t + max(ROT) < 9:
                A(f"s_add_u32 s{dst}, s{sLO}, {t*stride + extra}")
            else:
                A(f"s_cmp_lt_u32 s{sROT}, {9-t}")
                A(f"s_cselect_b32 s{dst}, s{sLO}, s{sHI}")
                A(f"s_add_u32 s{dst}, s{dst}, {t*stride + extra}")
        else:
            A(f"s_add_u32 s{dst}, s{sbase}, {t*stride + extra}")
    A(f"s_cmp_lt_u32 s{sWV}, 4")
    A("s_cbranch_scc1 L_compute")
    A(f"s_cmp_eq_u32 s{sWV}, 6")
    A("s_cbranch_scc1 L_xh")
    A(f"s_cmp_eq_u32 s{sWV}, 7")
    A("s_cbranch_scc1 L_h2")
    ts_base = tsn[0]

    def loader_stream(kinds, per_block, issue_fn, setup_fn, cap, group=False, validate=None, before_bar=None, role=None):
        mine = [blocks[nm] for nm in order if blocks[nm]["kind"] in kinds]
        outstanding, pend = [], list(mine)
        nb = lambda nm: blocks[nm]["n"] if blocks[nm]["kind"] == "extra" else (per_block(blocks[nm]) if callable(per_block) else per_block)
        cnt = lambda lst: sum(nb(x) for x in lst)

        def ok(b, q):
            if b["free"] + 2 > q:
                return False
            if b["kind"] in ("H1", "H2") and q < min(hfetch[b["lk"]], b["need"] - 1):
                return False
            return True

        def issue_upto(q, ahead, cap):
            n = 0
            lim = cum[q] + ahead if q >= 0 else ahead
            while pend and ok(pend[0], q):
                must = pend[0]["need"] <= q + 1 + (cfg.vpipe if pend[0]["kind"] in ("H1", "H2") else 0) or pend[0]["pos"] < lim
                if not must and n >= cap:
                    break
                grp = [pend.pop(0)]
                while group and pend and ok(pend[0], q) and pend[0]["need"] == grp[0]["need"] and len(grp) < 3 \
                        and (pend[0]["pos"] < lim or n + len(grp) < cap or pend[0]["need"] <= q + 1):
                    grp.append(pend.pop(0))
                need_n = sum(nb(x["name"]) for x in grp)
                if cnt(outstanding) + need_n > 63:
                    while cnt(outstanding) + need_n > 63:
                        del outstanding[0]
                    A(f"s_waitcnt vmcnt({cnt(outstanding)})")
                issue_fn(grp if group else grp[0])
                if cfg.verbose:
                    print(f"   after B{q}: " + " ".join(x["name"] for x in grp), file=sys.stderr)
                outstanding.extend(x["name"] for x in grp)
                n += len(grp)

        issue_upto(-1, cfg.first, 0)
        if cfg.ts0:
            stamp()
        if role == "w":
            enc("iss")
        A.tail(role)
        pr = cfg.priow if role == "w" else cfg.prioh
        if pr:
            A(f"s_setprio {pr}")
        setup_fn()
        issue_upto(-1, cfg.ahead0, 0)
        for q in range(NQ):
            assert not any(b["need"] <= q for b in pend), (q, pend[0])
            def wait_for(b):
                if b["name"] in outstanding:
                    idx = max(i for i, nm in enumerate(outstanding) if blocks[nm]["need"] <= q) if validate is None \
                        else outstanding.index(b["name"])
                    del outstanding[:idx + 1]
                    A(f"s_waitcnt vmcnt({cnt(outstanding)})")
            hs = []
            for b in mine:
                if b["need"] == q:
                    if validate is not None and b["kind"] != "X":
                        hs.append(b)
                    else:
                        wait_for(b)
            if validate is not None and cfg.vpipe:
                nxt = [b for b in mine if b["need"] == q + 1 and b["kind"] != "X" and b not in pend]
                if hs or nxt:
                    validate(hs, wait_for, nxt)
            elif hs:
                validate(hs, wait_for)
            if before_bar is not None:
                ex = before_bar(q)
                if ex:
                    nm = f"extra{A.uid()}"
                    blocks[nm] = dict(name=nm, kind="extra", n=ex, need=99)
                    outstanding.append(nm)
            if q in cfg.tsq:
                stamp()
            A("s_barrier")
            if role == "w":
                enc(f"B{q}")
            if q in cfg.pause:
                issue_upto(q, 0, 0)
            else:
                issue_upto(q, cfg.ahead if q < n_g1 or cfg.ahead2 < 0 else cfg.ahead2, 99 if q in cfg.burst else (cap if q >= cfg.capfrom else 0))
        assert not pend

    vRA, vRO, vRB, vRC, vRD, vRT, vRX, vRZ, vRG = 64, 65, 66, 72, 80, 112, 116, 117, 120
    sRI, sRO, sC = 60, 61, 13

    def vr(r, W):
        return f"v{r}" if W == 1 else f"v[{r}:{r+W-1}]"

    def dw(W):
        return "dword" if W == 1 else f"dwordx{W}"

    def red_pre(W):
        if W == 2:
            A(f"s_sub_u32 s{sC}, s{sWV}, 4")
            A(f"v_lshlrev_b32 v{vRA}, 3, v1")
            A(f"s_lshl_b32 s{sRO}, s{sC}, 6")
            A(f"s_lshl_b32 s{sRI}, s{sC}, 9")
            A(f"v_lshrrev_b32 v{vRT}, 4, v1")
            A(f"v_and_b32 v{vRT+1}, 1, v1")
            A(f"v_lshlrev_b32 v{vRT+1}, 3, v{vRT+1}")
            A(f"v_lshl_add_u32 v{vRT}, v{vRT}, 4, v{vRT+1}")
            A(f"v_bfe_u32 v{vRT+2}, v1, 1, 3")
            A(f"v_and_b32 v{vRT+3}, 7, v1")
            A(f"v_lshlrev_b32 v{vRT+3}, 2, v{vRT+3}")
        else:
            A(f"s_add_u32 s{sC}, s{sWV}, 8")
            A(f"v_lshlrev_b32 v{vRA}, 2, v1")
            A(f"s_lshl_b32 s{sRO}, s{sC}, 5")
            A(f"s_lshl_b32 s{sRI}, s{sC}, 8")
            A(f"v_lshrrev_b32 v{vRT}, 5, v1")
            A(f"v_and_b32 v{vRT+1}, 3, v1")
            A(f"v_lshlrev_b32 v{vRT+1}, 2, v{vRT+1}")
            A(f"v_lshl_add_u32 v{vRT}, v{vRT}, 4, v{vRT+1}")
            A(f"v_bfe_u32 v{vRT+2}, v1, 2, 3")
            A(f"v_and_b32 v{vRT+3}, 15, v1")
            A(f"v_lshlrev_b32 v{vRT+3}, 1, v{vRT+3}")
        A(f"s_mul_i32 s{sT1}, s{sI}, 384")
        A(f"s_add_u32 s{sRO}, s{sRO}, s{sT1}")
        if W == 2:
            srd(SRD2, sB2, 1152)
            A(f"buffer_load_{dw(W)} {vr(vRB, W)}, v{vRT}, s[{SRD2}:{SRD2+3}], s{sRO} offen")
        else:
            A(f"v_mov_b32 v{vRB}, v249")
        A(f"s_lshl_b32 s{sT1}, s{sJ}, 3")
        A(f"s_lshl_b32 s{sT3}, s{sMT}, 6")
        A(f"s_add_u32 s{sT1}, s{sT1}, s{sT3}")
        A(f"s_mul_i32 s{sT1}, s{sT1}, 1152")
        A(f"s_add_u32 s{sRO}, s{sRO}, s{sT1}")
        A(f"v_mul_u32_u24 v{vRT+2}, 1152, v{vRT+2}")
        A(f"v_add_u32 v{vRO}, v{vRT}, v{vRT+2}")
        A(f"s_mul_i32 s{sT1}, s{sWK}, {8*3072}")
        A(f"s_add_u32 s{sRI}, s{sRI}, s{sT1}")
        A(f"s_add_u32 s{sRI}, s{sRI}, {WS_IN}")
        slot_add(sRI)
        A(f"v_mov_b32 v{vRZ}, 0")
        A(f"v_lshrrev_b32 v{vRT+3}, v{vRT+3}, s{sTAG+1}")
        for k in range(W):
            A(f"v_bfe_u32 v{vRG+k}, v{vRT+3}, {2*k}, 2")
            A(f"v_mul_u32_u24 v{vRG+k}, 0x8001, v{vRG+k}")
        A(f"v_mov_b32 v{vRG+4}, 0x10001")
        A(f"v_mov_b32 v{vRG+5}, 0xffff0000")
        return 1

    def red_init(W):
        for k in range(W):
            A(f"v_lshlrev_b32 v{vRC+2*k}, 16, v{vRB+k}")
            A(f"v_and_b32 v{vRC+1+2*k}, v{vRG+5}, v{vRB+k}")

    def bb_w(q):
        if q == 2:
            epoch_fin()
        if q == cfg.rpq:
            return red_pre(2)
        if q == cfg.rpq + 3:
            red_init(2)

    A.head("w")
    sHW = sT5
    A(f"s_sub_u32 s{sHW}, s{sWV}, 4")
    A("v_lshrrev_b32 v2, 3, v1")
    A("v_and_b32 v3, 7, v1")
    A("v_bfe_u32 v4, v1, 4, 1")
    A("v_lshlrev_b32 v4, 2, v4")
    A("v_xor_b32 v3, v3, v4")
    A("v_lshlrev_b32 v3, 4, v3")
    A("v_lshrrev_b32 v4, 2, v2")
    A("v_and_b32 v5, 3, v2")
    A("v_lshl_add_u32 v4, v4, 3, v5")
    A(f"s_lshl_b32 s{sT0}, s{sHW}, 5")
    A(f"v_add_u32 v4, s{sT0}, v4")
    A("v_mul_u32_u24 v4, 9216, v4")
    A("v_add_u32 v4, v4, v3")
    for c in range(1, 4):
        A(f"v_add_u32 v{4+c}, {(16*(c>>1)+4*(c&1))*9216 - 1024*c}, v4")
    sLW, sC1 = sT4, 38
    A(f"s_lshl_b32 s{sLW}, s{sHW}, 12")
    A(f"s_mul_i32 s{sC1}, s{sJ}, 1152")
    A(f"s_mul_i32 s{sT1}, s{sI}, 384")
    A(f"s_add_u32 s{sC1}, s{sC1}, s{sT1}")
    rot_setup(sC1, 64*9216)
    if cfg.wt:
        A("v_and_b32 v12, 7, v1")
        A("v_lshrrev_b32 v13, 5, v1")
        A("v_lshl_add_u32 v12, v13, 6, v12")
        A("v_mul_u32_u24 v12, 9216, v12")
        A("v_bfe_u32 v13, v1, 3, 2")
        A("v_lshl_add_u32 v12, v13, 7, v12")
        A(f"s_lshl_b32 s{sT0}, s{sHW}, 4")
        A(f"s_add_u32 s{sT0}, s{sT0}, s{sMT}")
        A(f"s_mul_i32 s{sT0}, s{sT0}, {8*9216}")
        A(f"s_add_u32 s{sT0}, s{sT0}, s{sC1}")
        msk = [sum(0xffffff << (32 * h) for h in range(2) if 2 * w + h < cfg.wt) for w in range(2)]
        A(f"s_mov_b32 exec_lo, {msk[0] & 0xffffffff}")
        A(f"s_mov_b32 exec_hi, {msk[0] >> 32}")
        if msk[1] != msk[0]:
            A(f"s_cmp_eq_u32 s{sHW}, 0")
            A(f"s_cselect_b32 exec_lo, exec_lo, {(msk[1] & 0xffffffff) or 1}")
            A(f"s_cselect_b32 exec_hi, exec_hi, {msk[1] >> 32}")
    A("s_waitcnt lgkmcnt(0)")
    if cfg.ts0:
        stamp()
    srd(SRD0, sW1, 5308416)
    if cfg.wt:
        A(f"buffer_load_dword v255, v12, s[{SRD0}:{SRD0+3}], s{sT0} offen")
        A("s_mov_b64 exec, -1")
    sV = [62, 63, 59]

    def w2_setup():
        epoch_load(sMT)
        A(f"s_lshl_b32 s{sT0}, s{sHW}, 5")
        A(f"v_add_u32 v8, s{sT0}, v2")
        A("v_mul_u32_u24 v8, 1152, v8")
        A("v_add_u32 v8, v8, v3")
        for c in range(1, 4):
            A(f"v_add_u32 v{8+c}, {8*c*1152 - 1024*c}, v8")
        A(f"s_mul_i32 s39, s{sJ}, {576*1152}")
        A(f"s_mul_i32 s{sT0}, s{sI}, 384")
        A(f"s_add_u32 s39, s39, s{sT0}")
        for d in range(3):
            mod3add(sT1, d, sT2)
            A(f"s_mul_i32 s{sT1}, s{sT1}, {192*1152}")
            A(f"s_add_u32 s{sV[d]}, s39, s{sT1}")
        srd(SRD1, sW2, 5308416)

    def issue_w(grp):
        for b in grp:
            A(f"s_add_u32 m0, s{sLW}, {b['slot']*8192}")
            if b["kind"] == "W1":
                rot_addr(sT0, sC1, b['t'], 64*9216, 128*b['l'])
                vb, sr = 4, SRD0
            else:
                A(f"s_add_u32 s{sT0}, s{sV[b['d']]}, {64*b['lk']*1152 + 128*b['l']}")
                vb, sr = 8, SRD1
            for c in range(4):
                A(f"buffer_load_dwordx4 v{vb+c}, s[{sr}:{sr+3}], s{sT0} offen offset:{1024*c} {cfg.wfl} lds")

    loader_stream(("W1", "W2"), 4, issue_w, w2_setup, cfg.capw, group=True,
                  before_bar=bb_w, role="w")
    A("s_branch L_reduce")
    ts_max = tsn[0]

    sXB = 38
    sH = {1: 39, 2: 59}
    HALF = [0]

    def h_setup(half):
        A("v_lshlrev_b32 v12, 4, v1")
        A("v_add_u32 v13, 0x10000, v12")
        A("v_add_u32 v14, 0x20000, v12")
        A(f"s_sub_u32 s{sT0}, s{sWK}, s{sI}")
        for d in (1, 2):
            mod3add(sT1, d, sT2)
            A(f"s_add_u32 s{sT1}, s{sT1}, s{sT0}")
            A(f"s_mul_i32 s{sH[d]}, s{sT1}, 24576")
        srd(SRD1, sWS, 0x10000000)
        epoch_load(sMT)

    def issue_xh(b):
        for h in (range(2) if b["kind"] == "X" else HALF):
            A(f"s_mov_b32 m0, {b['slot']*8192 + 4096*h}")
            if b["kind"] == "X":
                rot_addr(sT0, sXB, b['t'], 128, 32*1152*h)
                for c in range(4):
                    A(f"buffer_load_dwordx4 v{8+c}, s[{SRD0}:{SRD0+3}], s{sT0} offen offset:{1024*c} lds")
            else:
                A(f"s_add_u32 s{sT0}, s{sH[b['d']]}, {WS_H + 8192*b['lk'] + 4096*h}")
                for c in range(4):
                    A(f"buffer_load_dwordx4 v12, s[{SRD1}:{SRD1+3}], s{sT0} offen offset:{1024*c} {cfg.hlf} lds")

    retry_code = []

    def validate(hs, wait_for):
        k = A.uid()

        def rd(i):
            addr = hs[i]["slot"] * 8192 + 4096 * HALF[0]
            for c in range(4):
                r = 128 + 16 * i + 4 * c
                A(f"ds_read_b128 v[{r}:{r+3}], v{12 + (addr >> 16)} offset:{(addr & 0xffff) + 1024*c}")

        def valu(i, later):
            for c in range(4):
                r = 128 + 16 * i + 4 * c
                A(f"s_waitcnt lgkmcnt({3-c+later})")
                for kk in range(4):
                    ac = 16 + ((kk + 2) & 3)
                    if i == 0 and c == 0:
                        A(f"v_xor_b32 v{ac}, v{r+kk}, v{25+kk}")
                    else:
                        A(f"v_bitop3_b32 v{ac}, v{ac}, v{r+kk}, v{25+kk} bitop3:0xf6")
        A.label(f"L_v{k}")
        for i in range(len(hs)):
            wait_for(hs[i])
            rd(i)
            if i:
                valu(i - 1, 4)
        valu(len(hs) - 1, 0)
        A("v_or3_b32 v16, v16, v17, v18")
        A("v_bitop3_b32 v16, v16, v19, v24 bitop3:0xa8")
        A("v_cmp_ne_u32 vcc, 0, v16")
        A(f"s_cbranch_vccnz L_vr{k}")
        A.label(f"L_vd{k}")
        n0 = len(A.L)
        A.label(f"L_vr{k}")
        A(f"s_cmp_gt_u32 s{sCNT}, {SPIN_MAX}")
        A(f"s_cbranch_scc1 L_vd{k}")
        for b in hs:
            issue_xh(b)
        A(f"s_add_u32 s{sCNT}, s{sCNT}, 1")
        A("s_waitcnt vmcnt(0)")
        A(f"s_branch L_v{k}")
        retry_code.extend(A.L[n0:])
        del A.L[n0:]

    hreg, hread = {}, set()

    def validate2(hs, wait_for, nxt):
        k = A.uid()

        def rd(b):
            i = hreg.setdefault(b["name"], len(hreg))
            addr = b["slot"] * 8192 + 4096 * HALF[0]
            for c in range(4):
                r = 128 + 16 * i + 4 * c
                A(f"ds_read_b128 v[{r}:{r+3}], v{12 + (addr >> 16)} offset:{(addr & 0xffff) + 1024*c}")
            hread.add((HALF[0], b["name"]))

        def do_nxt():
            for b in nxt:
                wait_for(b)
                rd(b)
        unread = [b for b in hs if (HALF[0], b["name"]) not in hread]
        for b in unread:
            wait_for(b)
            rd(b)
        later = 0
        if unread and 4 * (len(unread) + len(nxt)) <= 15:
            do_nxt()
            later = 4 * len(nxt)
            nxt = []
        if hs:
            A.label(f"L_v{k}")
            A(f"s_waitcnt lgkmcnt({later})")
            for i, b in enumerate(hs):
                for c in range(4):
                    r = 128 + 16 * hreg[b["name"]] + 4 * c
                    for kk in range(4):
                        ac = 16 + ((kk + 2) & 3)
                        if i == 0 and c == 0:
                            A(f"v_xor_b32 v{ac}, v{r+kk}, v{25+kk}")
                        else:
                            A(f"v_bitop3_b32 v{ac}, v{ac}, v{r+kk}, v{25+kk} bitop3:0xf6")
            A("v_or3_b32 v16, v16, v17, v18")
            A("v_bitop3_b32 v16, v16, v19, v24 bitop3:0xa8")
            A("v_cmp_ne_u32 vcc, 0, v16")
            A(f"s_cbranch_vccnz L_vr{k}")
            A.label(f"L_vd{k}")
            n0 = len(A.L)
            A.label(f"L_vr{k}")
            A(f"s_cmp_gt_u32 s{sCNT}, {SPIN_MAX}")
            A(f"s_cbranch_scc1 L_vd{k}")
            for b in hs:
                issue_xh(b)
            A(f"s_add_u32 s{sCNT}, s{sCNT}, 1")
            A("s_waitcnt vmcnt(0) lgkmcnt(0)")
            for b in hs:
                rd(b)
            A("s_waitcnt lgkmcnt(0)")
            A(f"s_branch L_v{k}")
            retry_code.extend(A.L[n0:])
            del A.L[n0:]
        do_nxt()

    if cfg.vpipe:
        validate = validate2

    def flush_retry():
        A.L.extend(retry_code)
        retry_code.clear()

    def bb_tag(q):
        if q == 2:
            epoch_fin()
            slot_add(sH[1], sH[2])
            tag_regs(25, 16)
            A(f"v_mov_b32 v24, {0x10001 if cfg.hlsb else 0x80008000}")
            A(f"s_mov_b32 s{sCNT}, 0")
        if q == cfg.rpq:
            return red_pre(2)
        if q == cfg.rpq + 3:
            red_init(2)

    A.head("x")
    A.label("L_xh")
    tsn[0] = ts_base
    A("v_lshrrev_b32 v2, 3, v1")
    A("v_and_b32 v3, 7, v1")
    A("v_lshrrev_b32 v4, 4, v1")
    A("v_xor_b32 v3, v3, v4")
    A("v_lshlrev_b32 v3, 4, v3")
    A("v_mul_u32_u24 v4, 1152, v2")
    A("v_add_u32 v8, v4, v3")
    A("v_xor_b32 v5, 64, v8")
    A(f"v_add_u32 v9, {8*1152 - 1024}, v5")
    A(f"v_add_u32 v10, {16*1152 - 2048}, v8")
    A(f"v_add_u32 v11, {24*1152 - 3072}, v5")
    A(f"s_mul_i32 s{sXB}, s{sMT}, {64*1152}")
    rot_setup(sXB, 128)

    def x_touch_pre(st0):
        A(f"s_mul_i32 s{sT0}, s{sI}, 22")
        A("v_and_b32 v12, 31, v1")
        A(f"v_add_u32 v12, s{sT0}, v12")
        A("v_min_u32 v12, 63, v12")
        A("v_mul_u32_u24 v12, 1152, v12")
        A("v_lshrrev_b32 v13, 5, v1")
        A("v_lshl_add_u32 v12, v13, 7, v12")
        A("s_mov_b32 exec_lo, 0x3fffff")
        A(f"s_mov_b32 exec_hi, {0x3fffff if cfg.wt > st0 + 1 else 0}")

    def x_touch(st0):
        A(f"buffer_load_dword v255, v12, s[{SRD0}:{SRD0+3}], s{sXB} offen offset:{128*st0}")
        A("s_mov_b64 exec, -1")
    if cfg.wt:
        x_touch_pre(0)
    A("s_waitcnt lgkmcnt(0)")
    if cfg.ts0:
        stamp()
    srd(SRD0, sX, 589824)
    if cfg.wt:
        x_touch(0)
    nbx = lambda b: 8 if b["kind"] == "X" else 4
    loader_stream(("X", "H1", "H2"), nbx, issue_xh, lambda: h_setup(0), cfg.capx, validate=validate, before_bar=bb_tag, role="x")
    if TS:
        A(f"s_mov_b32 s{sTS+24}, s{sCNT}")
    A("s_branch L_reduce")
    flush_retry()
    ts_max = max(ts_max, tsn[0])

    A.head("h2")
    A.label("L_h2")
    tsn[0] = ts_base
    if cfg.wt > 2:
        A(f"s_mul_i32 s{sXB}, s{sMT}, {64*1152}")
        x_touch_pre(2)
    if cfg.xpre:
        A("v_lshlrev_b32 v2, 7, v1")
        A(f"s_mul_i32 s{sT0}, s{sWK}, 3072")
        A("s_mov_b64 exec, 0xffffff")
    A("s_waitcnt lgkmcnt(0)")
    if cfg.xpre:
        srd(SRD0, sX, 589824)
        A(f"buffer_load_dword v255, v2, s[{SRD0}:{SRD0+3}], s{sT0} offen")
        A("s_mov_b64 exec, -1")
    if cfg.wt > 2:
        srd(SRD0, sX, 589824)
        x_touch(2)
    srd(SRD1, sWS, 0x10000000)
    if cfg.hpre == 3:
        A("v_lshlrev_b32 v3, 7, v1")
        A(f"s_mul_i32 s{sT1}, s{sWK}, 24576")
        A(f"s_add_u32 s{sT1}, s{sT1}, {WS_H}")
        for c in range(3):
            A(f"buffer_load_dword v255, v3, s[{SRD1}:{SRD1+3}], s{sT1} offen")
            A(f"s_add_u32 s{sT1}, s{sT1}, 8192")

    def w7_touch():
        st = list(range(cfg.ta, cfg.ta + cfg.tn))
        srd(SRD0, sX, 589824)
        srd(SRD2, sW1, 5308416)
        A(f"s_mul_i32 s{sXB}, s{sMT}, {64*1152}")
        A(f"s_mul_i32 s{sT0}, s{sI}, 22")
        A("v_and_b32 v2, 31, v1")
        A(f"v_add_u32 v2, s{sT0}, v2")
        A("v_min_u32 v2, 63, v2")
        A("v_mul_u32_u24 v2, 1152, v2")
        A("v_lshrrev_b32 v4, 5, v1")
        A("v_lshl_add_u32 v2, v4, 7, v2")
        A("v_and_b32 v3, 7, v1")
        A("v_lshl_add_u32 v3, v4, 6, v3")
        A("v_mul_u32_u24 v3, 9216, v3")
        A("v_bfe_u32 v4, v1, 3, 2")
        A("v_lshl_add_u32 v3, v4, 7, v3")
        A(f"s_mul_i32 s{sT0}, s{sMT}, {8*9216}")
        A(f"s_mul_i32 s{sT1}, s{sJ}, 1152")
        A(f"s_add_u32 s{sT0}, s{sT0}, s{sT1}")
        A(f"s_mul_i32 s{sT1}, s{sI}, 384")
        A(f"s_add_u32 s{sT0}, s{sT0}, s{sT1}")
        for p in range(0, len(st), 2):
            two = p + 1 < len(st)
            A(f"s_add_u32 s{sT1}, s{sT0}, {st[p]*64*9216}")
            A("s_mov_b32 exec_lo, 0xffffff")
            A(f"s_mov_b32 exec_hi, {0xffffff if two else 0}")
            A(f"buffer_load_dword v255, v3, s[{SRD2}:{SRD2+3}], s{sT1} offen")
            A("s_mov_b32 exec_lo, 0x3fffff")
            A(f"s_mov_b32 exec_hi, {0x3fffff if two else 0}")
            A(f"buffer_load_dword v255, v2, s[{SRD0}:{SRD0+3}], s{sXB} offen offset:{128*st[p]}")
        A("s_mov_b64 exec, -1")
    if cfg.tn and cfg.tpos == 0:
        w7_touch()

    def bb_h2(q):
        if cfg.tn and cfg.tpos == 1 and q == 0:
            A("s_waitcnt lgkmcnt(0)")
            w7_touch()
        if cfg.tn and cfg.tpos >= 2 and q == cfg.tpos - 1:
            w7_touch()
        if cfg.tn and q == 7:
            A("s_waitcnt vmcnt(0)")
        if q == 2 and (cfg.hpre == 3 or cfg.wt > 2):
            A("s_waitcnt vmcnt(0)")
        return bb_tag(q)

    HALF[0] = 1
    loader_stream(("H1", "H2"), nbx, issue_xh, lambda: h_setup(1), cfg.capx, validate=validate, before_bar=bb_h2, role="h2")
    ts_max = max(ts_max, tsn[0])
    A("s_branch L_reduce")
    flush_retry()

    A.tail("red")
    sM, sQ = sT5, sT4
    sVC = 16

    def reduce_code(W, nbar):
        x = f"{W}"
        srd(SRD1, sWS, 0x10000000)
        A(f"s_mov_b32 s{sCNT}, 0")
        srd(SRD0, sOUT, 589824)
        if W == 1:
            red_pre(1)
            red_init(1)
            A(f"s_waitcnt vmcnt({cfg.rw1})")
            if cfg.rlate == 1:
                A("s_barrier")

        def ld(s_):
            A(f"s_add_u32 s{sT1}, s{sRI}, {3072*s_}")
            A(f"buffer_load_{dw(W)} {vr(vRD+W*s_, W)}, v{vRA}, s[{SRD1}:{SRD1+3}], s{sT1} offen {cfg.rfl}")
        if W == 2 and cfg.r0early and nbar:
            A(f"s_cmp_ge_u32 s{sC}, 2")
            A("s_cbranch_scc1 L_rlate")
            stamp()
            tsn[0] -= 1 if TS else 0
            for s_ in range(8):
                ld(s_)
            A("s_barrier")
            A("s_branch L_rfirst")
            A.label("L_rlate")
        for _ in range(nbar):
            A("s_barrier")
        stamp()
        enc("rbar")

        def chk_i(s_, dst, t):
            r = vRD + W * s_
            if W == 1:
                o = [f"v_bitop3_b32 v{t}, v{r}, v{vRG}, v{vRG+4} bitop3:0x28"]
            else:
                o = [f"v_xor_b32 v{t}, v{r}, v{vRG}"]
                for k in range(1, W):
                    o.append(f"v_bitop3_b32 v{t}, v{t}, v{r+k}, v{vRG+k} bitop3:0xf6")
                o.append(f"v_and_b32 v{t}, v{vRG+4}, v{t}")
            o.append(f"v_cmp_ne_u32 {dst}, 0, v{t}")
            return o

        def acc_i(s_, t0):
            r = vRD + W * s_
            o = []
            for k in range(W):
                t = t0 + 2 * k
                o.append(f"v_lshlrev_b32 v{t}, 16, v{r+k}")
                o.append(f"v_and_b32 v{t+1}, v{vRG+5}, v{r+k}")
            for k in range(W):
                t = t0 + 2 * k
                o.append(f"v_pk_add_f32 v[{vRC+2*k}:{vRC+1+2*k}], v[{vRC+2*k}:{vRC+1+2*k}], v[{t}:{t+1}]")
            return o

        def masked(sm, fn, tag):
            for g in range(2):
                A(f"s_and_b32 s{sT0}, s{sm}, {0xf << (4*g)}")
                A(f"s_cbranch_scc0 L_{tag}{x}g{g}")
                for s_ in range(4 * g, 4 * g + 4):
                    A(f"s_bitcmp0_b32 s{sm}, {s_}")
                    A(f"s_cbranch_scc1 L_{tag}{x}s{s_}")
                    fn(s_)
                    A.label(f"L_{tag}{x}s{s_}")
                A.label(f"L_{tag}{x}g{g}")

        for s_ in range(8):
            ld(s_)
        for _ in range(nbar, cfg.rnb if W != 1 else 0):
            A("s_barrier")
        if W == 1 and cfg.rlate == 2:
            A("s_barrier")
        if W == 2:
            A.label("L_rfirst")
        for s_ in range(8):
            A(f"s_waitcnt vmcnt({7-s_})")
            c = chk_i(s_, f"s[{sVC+2*s_}:{sVC+2*s_+1}]", vRX)
            a_ = acc_i(s_, vRT)
            while c or a_:
                if c:
                    A(c.pop(0))
                if a_:
                    A(a_.pop(0))
            if s_ >= 2:
                A(f"s_or_b64 vcc, {'s[16:17]' if s_ == 2 else 'vcc'}, s[{sVC+2*s_-2}:{sVC+2*s_-1}]")
        A(f"s_or_b64 vcc, vcc, s[{sVC+14}:{sVC+15}]")
        A(f"s_cbranch_scc0 L_rdone{x}")
        A(f"s_mov_b32 s{sM}, 0")
        for s_ in range(7, -1, -1):
            A(f"s_cmp_lg_u64 s[{sVC+2*s_}:{sVC+2*s_+1}], 0")
            A(f"s_addc_u32 s{sM}, s{sM}, s{sM}")
        A(f"s_xor_b32 s{sQ}, s{sM}, 0xff")
        red_init(W)
        A.label(f"L_rtop{x}")
        masked(sM, ld, "rl")
        masked(sQ, lambda s_: [A(t) for t in acc_i(s_, vRT)], "ra")
        A(f"s_add_u32 s{sCNT}, s{sCNT}, 1")
        A(f"s_mov_b32 s{sQ}, s{sM}")
        A(f"s_cmp_gt_u32 s{sCNT}, {SPIN_MAX}")
        A(f"s_cbranch_scc1 L_rdone{x}")
        A("s_waitcnt vmcnt(0)")

        def chk2(s_):
            for t in chk_i(s_, "vcc", vRX):
                A(t)
            A(f"s_cbranch_vccnz L_rc{x}s{s_}")
            A(f"s_bitset0_b32 s{sM}, {s_}")
            for t in acc_i(s_, vRT):
                A(t)
        masked(sQ, chk2, "rc")
        A(f"s_mov_b32 s{sQ}, 0")
        A(f"s_cmp_lg_u32 s{sM}, 0")
        A(f"s_cbranch_scc1 L_rtop{x}")
        A.label(f"L_rdone{x}")
        stamp()
        enc("rdone")
        for k in range(W):
            A(f"v_cvt_pk_bf16_f32 v{vRC+k}, v{vRC+2*k}, v{vRC+1+2*k}")
        if cfg.owide:
            A("s_nop 1")
            if W == 1:
                for k in range(1, 4):
                    A(f"v_mov_b32_dpp v{vRC+k}, v{vRC} quad_perm:[{k},{k},{k},{k}] row_mask:0xf bank_mask:0xf")
                m = 0x11111111
            else:
                for k in range(2):
                    A(f"v_mov_b32_dpp v{vRC+2+k}, v{vRC+k} quad_perm:[1,1,3,3] row_mask:0xf bank_mask:0xf")
                m = 0x55555555
            A(f"s_mov_b32 exec_lo, {m}")
            A(f"s_mov_b32 exec_hi, {m}")
            A(f"buffer_store_dwordx4 v[{vRC}:{vRC+3}], v{vRO}, s[{SRD0}:{SRD0+3}], s{sRO} offen {cfg.ofl if W > 1 else cfg.ofl1}")
            A("s_mov_b64 exec, -1")
        else:
            A(f"buffer_store_{dw(W)} {vr(vRC, W)}, v{vRO}, s[{SRD0}:{SRD0+3}], s{sRO} offen {cfg.ofl if W > 1 else cfg.ofl1}")
        if TS:
            A(f"s_mov_b32 s{sWS}, s{SRD1}")
            A(f"s_mov_b32 s{sWS+1}, s{SRD1+1}")

    A.label("L_reduce")
    tsn[0] = ts_max
    reduce_code(2, cfg.rb2)
    A(f"s_or_b32 s{sT0}, s{sJ}, s{sI}")
    A(f"s_or_b32 s{sT0}, s{sT0}, s{sC}")
    A(f"s_cmp_lg_u32 s{sT0}, 0")
    A("s_cbranch_scc1 L_noep")
    A(f"v_mov_b32 v16, s{sTAG}")
    A(f"s_lshl_b32 s{sT0}, s{sMT}, 7")
    A(f"s_add_u32 s{sT0}, s{sT0}, {WS_EP}")
    A("s_mov_b64 exec, 1")
    A(f"buffer_store_dword v16, v{vRZ}, s[{SRD1}:{SRD1+3}], s{sT0} offen sc1")
    A("s_mov_b64 exec, -1")
    A.label("L_noep")
    if cfg.enc:
        if cfg.enc == "end":
            A("s_waitcnt vmcnt(0)")
            enc("end")
        if cfg.encw >= 0:
            A(f"s_cmp_lg_u32 s{sWV}, {cfg.encw}")
            A("s_cbranch_scc1 L_end")
        A("s_waitcnt lgkmcnt(0)")
        if cfg.encc:
            A("s_sub_u32 s94, s94, s92")
            A("s_lshr_b32 s94, s94, 1")
        else:
            A("s_sub_u32 s94, s94, s96")
            A(f"s_mul_i32 s94, s94, {cfg.encm}")
        A("s_add_u32 s94, s94, 3000")
        A.label("L_dly")
        A("s_memrealtime s[98:99]")
        A("s_waitcnt lgkmcnt(0)")
        A("s_sub_u32 s98, s98, s96")
        A("s_cmp_lt_u32 s98, s94")
        A("s_cbranch_scc1 L_dly")
    if TS:
        A("s_waitcnt vmcnt(0)")
        stamp()
        A("s_memrealtime s[98:99]")
        A("s_waitcnt lgkmcnt(0)")
        A(f"s_mov_b32 s{sTS+26}, s96"); A(f"s_mov_b32 s{sTS+28}, s98"); A(f"s_mov_b32 s{sTS+30}, s{sCNT}")
        assert tsn[0] <= 12
        tsn[0] = 16
        stamp_flush()
    A("s_branch L_end")

    A.head("c")
    A.label("L_compute")
    tsn[0] = ts_base
    vACC, vAB, vXB, vT = 16, 64, 96, 240
    nAB = D + 1
    vA, vBX, vBH, vHW = [2, 3, 4], [5, 6, 7, 8], [9, 10, 11], [12, 13, 14]
    vTG, vL16 = vT + 11, vT + 10
    assert vAB + 4 * nAB <= vXB
    sA, sBq = sT4, sT5
    A(f"s_and_b32 s{sA}, s{sWV}, 1")
    A(f"s_lshr_b32 s{sBq}, s{sWV}, 1")
    A(f"v_lshrrev_b32 v{vT}, 5, v1")
    A(f"s_mul_i32 s60, s{sJ}, 1152")
    A(f"s_mul_i32 s{sT1}, s{sI}, 384")
    A(f"s_add_u32 s60, s60, s{sT1}")
    A(f"s_lshl_b32 s{sT1}, s{sBq}, 6")
    A(f"s_add_u32 s61, s60, s{sT1}")
    A(f"v_lshlrev_b32 v{vT+4}, 3, v{vT}")
    if cfg.sa:
        A(f"s_add_u32 s{sT3}, s{sWV}, 1")
        A(f"v_and_b32 v{vT+5}, 7, v1")
        A(f"v_mul_u32_u24 v{vT+5}, 9216, v{vT+5}")
        A(f"v_lshrrev_b32 v{vT+6}, 3, v1")
        A(f"v_min_u32 v{vT+6}, 2, v{vT+6}")
        A(f"v_lshl_add_u32 v{vT+5}, v{vT+6}, 7, v{vT+5}")
        A(f"s_lshl_b32 s{sT1}, s{sT3}, 3")
        A(f"s_add_u32 s{sT1}, s{sT1}, s{sMT}")
        A(f"s_mul_i32 s{sT1}, s{sT1}, {8*9216}")
        A(f"s_add_u32 s{sT1}, s{sT1}, s60")
        A(f"s_mul_i32 s{sT2}, s{sI}, 22")
        A(f"v_min_u32 v{vT+6}, 21, v1")
        A(f"v_add_u32 v{vT+6}, s{sT2}, v{vT+6}")
        A(f"v_min_u32 v{vT+6}, 63, v{vT+6}")
        A(f"v_mul_u32_u24 v{vT+6}, 1152, v{vT+6}")
        A(f"s_mul_i32 s{sT2}, s{sMT}, {64*1152}")
        A(f"s_lshl_b32 s{sT3}, s{sT3}, 7")
        A(f"s_add_u32 s{sT2}, s{sT2}, s{sT3}")
    A("s_waitcnt lgkmcnt(0)")
    srd(SRD0, sB1, 9216)
    for l in range(3):
        for g in range(4):
            r = vXB + 2 * (4 * l + g)
            A(f"buffer_load_dwordx2 v[{r}:{r+1}], v{vT+4}, s[{SRD0}:{SRD0+3}], s61 offen offset:{128*l+16*g}")
    if cfg.sa:
        srd(SRD1, sW1, 5308416)
        srd(SRD2, sX, 589824)
        A(f"s_cmp_ge_u32 s{sWV}, {cfg.sa}")
        A("s_cbranch_scc1 L_tdone")
        A(f"buffer_load_dword v255, v{vT+5}, s[{SRD1}:{SRD1+3}], s{sT1} offen {cfg.tfl}")
        A(f"buffer_load_dword v255, v{vT+6}, s[{SRD2}:{SRD2+3}], s{sT2} offen")
        A.label("L_tdone")
    epoch_load(sMT)
    A.tail("c")
    srd(SRD2, sB2, 1152)
    A(f"v_and_b32 v{vT+1}, 3, v1")
    A(f"v_lshlrev_b32 v{vT+1}, 2, v{vT+1}")
    A(f"v_lshl_add_u32 v{vT+1}, v{vT}, 4, v{vT+1}")
    A(f"s_mul_i32 s{sT1}, s{sI}, 384")
    A(f"s_lshl_b32 s{sT0}, s{sWV}, 5")
    A(f"s_add_u32 s{sT1}, s{sT1}, s{sT0}")
    A(f"buffer_load_dword v249, v{vT+1}, s[{SRD2}:{SRD2+3}], s{sT1} offen offset:256")
    srd(SRD1, sWS, 0x10000000)
    A(f"v_bfe_u32 v{vT+1}, v1, 2, 2")
    A(f"v_lshl_add_u32 v{vT+2}, v{vT}, 2, v{vT+1}")
    A(f"v_lshlrev_b32 v{vT+2}, 7, v{vT+2}")
    A(f"v_bfe_u32 v{vT+3}, v1, 3, 1")
    A(f"v_xor_b32 v{vT+3}, s{sBq}, v{vT+3}")
    A(f"v_lshl_add_u32 v{vT+2}, v{vT+3}, 6, v{vT+2}")
    A(f"v_bfe_u32 v{vT+3}, v1, 4, 1")
    A(f"v_lshl_add_u32 v{vT+2}, v{vT+3}, 5, v{vT+2}")
    A(f"v_and_b32 v{vT+3}, 3, v1")
    A(f"v_lshl_add_u32 v{vA[0]}, v{vT+3}, 3, v{vT+2}")
    A(f"v_add_u32 v{vA[1]}, 0x10000, v{vA[0]}")
    A(f"v_add_u32 v{vA[2]}, 0x20000, v{vA[0]}")
    A(f"v_and_b32 v{vT+1}, 31, v1")
    A(f"v_bfe_u32 v{vT+2}, v1, 1, 3")
    A(f"v_xor_b32 v{vT+2}, v{vT}, v{vT+2}")
    A(f"v_lshlrev_b32 v{vT+2}, 4, v{vT+2}")
    A(f"v_lshl_add_u32 v{vT+2}, v{vT+1}, 7, v{vT+2}")
    A(f"s_lshl_b32 s{sT0}, s{sA}, 12")
    A(f"s_add_u32 s{sT1}, s{sT0}, 0x20000")
    A(f"v_add_u32 v{vBX[0]}, s{sT1}, v{vT+2}")
    for sp in range(1, 4):
        A(f"v_xor_b32 v{vBX[sp]}, {32*sp}, v{vBX[0]}")
    A(f"v_lshl_add_u32 v{vBH[0]}, v1, 4, s{sT0}")
    A(f"v_add_u32 v{vBH[1]}, 0x10000, v{vBH[0]}")
    A(f"v_add_u32 v{vBH[2]}, 0x20000, v{vBH[0]}")
    A(f"s_lshl_b32 s{sT1}, s{sBq}, 11")
    for k in range(3):
        A(f"v_add_u32 v{vHW[k]}, s{sT1}, v{vBH[k]}")
    sI0 = 38
    sMS, sML, sMC = 39, 63, 59
    sHS = [60, 61, 62]
    A(f"s_mul_i32 s{sI0}, s{sA}, 96")
    A(f"s_add_u32 s{sI0}, s{sI0}, s{sR}")
    A(f"s_lshl_b32 s{sI0}, s{sI0}, 3")
    A(f"s_add_u32 s{sI0}, s{sI0}, s{sJ}")
    A(f"s_mul_i32 s{sI0}, s{sI0}, 3072")
    A(f"s_add_u32 s{sI0}, s{sI0}, {WS_IN}")
    A(f"s_lshl_b32 s{sT1}, s{sBq}, 9")
    A(f"s_add_u32 s{sI0}, s{sI0}, s{sT1}")
    A(f"v_bfe_u32 v{vT+1}, v1, 3, 2")
    A(f"v_mul_u32_u24 v{vT+1}, {24*8*3072}, v{vT+1}")
    A(f"v_and_b32 v{vT+2}, 7, v1")
    A(f"v_lshl_add_u32 v{vT+1}, v{vT+2}, 4, v{vT+1}")
    A(f"v_lshl_add_u32 v{vL16}, v{vT}, 7, v{vT+1}")
    A(f"s_mov_b32 s{sMS}, 0x80008000")
    A(f"s_mov_b32 s{sML}, 0x00010001")
    A(f"s_mov_b32 s{sMC}, 0x7fff7fff")
    A(f"s_mul_i32 s{sHS[0]}, s{sWK}, 24576")
    if WS_H:
        A(f"s_add_u32 s{sHS[0]}, s{sHS[0]}, {WS_H}")
    A(f"s_add_u32 s{sHS[1]}, s{sHS[0]}, 8192")
    A(f"s_add_u32 s{sHS[2]}, s{sHS[0]}, 16384")
    def dummy(n, tag):
        if not n:
            return
        for k in range(8):
            A(f"v_mul_u32_u24 v{160+k}, {0x9e3779 + 77*k}, v0")
            A(f"v_and_b32 v{160+k}, 0x3fff3fff, v{160+k}")
        A(f"s_mov_b32 s15, {n // 4}")
        A.label(f"L_dum{tag}")
        for k in range(4):
            A(f"v_mfma_f32_32x32x16_bf16 v[{176+16*k}:{191+16*k}], v[{160+4*(k&1)}:{163+4*(k&1)}], v[{160+4*(k>>1)}:{163+4*(k>>1)}], 0")
        A("s_sub_u32 s15, s15, 1")
        A("s_cmp_lg_u32 s15, 0")
        A(f"s_cbranch_scc1 L_dum{tag}")
    dummy(cfg.dum1, "a")
    epoch_fin()
    slot_add(sI0, *sHS)
    tag_regs(vTG, vT + 1)
    assert not cfg.sa
    A("s_waitcnt vmcnt(1)")
    if cfg.sa:
        A(f"s_cmp_lt_u32 s{sWV}, {cfg.sa}")
        A("s_cbranch_scc1 L_bw")
        A("s_waitcnt vmcnt(0)")
        A.label("L_bw")
    for l in range(3):
        for g in range(4):
            r = vXB + 2 * (4 * l + g)
            d = vACC + 16 * l + 4 * g
            A(f"v_lshlrev_b32 v{d}, 16, v{r}")
            A(f"v_and_b32 v{d+1}, 0xffff0000, v{r}")
            A(f"v_lshlrev_b32 v{d+2}, 16, v{r+1}")
            A(f"v_and_b32 v{d+3}, 0xffff0000, v{r+1}")
    dummy(cfg.dum2, "b")
    stamp()

    items = []
    for st in stages:
        bykb = {}
        for u in st["units"]:
            bykb.setdefault(u[2], []).append(u)
        for kb, us in bykb.items():
            if st["q"] == n_g1 - 1 and cfg.tm:
                seq = [int(c) for c in cfg.tm]
                nsp = {0: 0, 1: 0, 2: 0}
                for t_ in seq:
                    (t, wb, _kb, fst) = [u for u in us if u[0] == t_][0]
                    items.append(dict(q=st["q"], tile=t, wb=wb, kb=kb, sp=nsp[t], first=False))
                    nsp[t] += 1
                assert all(v == 4 for v in nsp.values())
                continue
            if len(us) == 2 and cfg.chain:
                for (t, wb, _kb, fst) in us:
                    for sp in range(4):
                        items.append(dict(q=st["q"], tile=t, wb=wb, kb=kb, sp=sp, first=(fst and sp == 0)))
                continue
            for sp in range(4):
                for (t, wb, _kb, fst) in us:
                    items.append(dict(q=st["q"], tile=t, wb=wb, kb=kb, sp=sp, first=(fst and sp == 0)))
    NI = len(items)
    aux_used = set()
    if cfg.dual:
        own_end = max(n for n, it in enumerate(items) if it["q"] >= n_g1 and it["kb"] < 3)
        assert all(kbidx[(0, l)] < 3 for l in range(3))
        for n, it in enumerate(items):
            if n > own_end + 1 and items[n - 1]["tile"] == it["tile"]:
                it["first"] = it["tile"] not in aux_used
                aux_used.add(it["tile"])
                it["tile"] += 3

    def accbase(t):
        return vACC + 16 * t if t < 3 else vXB + 16 * (t - 3)
    last_item = {}
    for n, it in enumerate(items):
        last_item[it["q"]] = n
    bread_of = {(st["q"], kb): bb for st in stages for (bb, kb) in st["breads"]}
    lg = []

    def ds_issue(instr, tag):
        cap = 14 if TS else 15
        if len(lg) >= cap:
            A(f"s_waitcnt lgkmcnt({cap-2})")
            del lg[:len(lg) - (cap - 2)]
        A(instr)
        lg.append(tag)

    def ds_need(tags):
        idx = max([i for i, t in enumerate(lg) if t in tags], default=-1)
        if idx >= 0:
            A(f"s_waitcnt lgkmcnt({len(lg) - 1 - idx})")
            del lg[:idx + 1]

    checked = [-1]
    bdone = set()
    dirty, clean_pos = {}, {}

    def clean(m):
        key = (items[m]["kb"], items[m]["sp"])
        if key in dirty and dirty[key] == m:
            del dirty[key]
            ds_need({("B",) + key})
            r = vXB + 16 * key[0] + 4 * key[1]
            for k in range(4):
                A(f"v_and_b32 v{r+k}, s{sMC}, v{r+k}")
            clean_pos[m] = len(A.L) - 1

    def issue_reads(n):
        it = items[n]
        q = it["q"]
        if q > checked[0]:
            ds_need({"hw"})
            A("s_barrier")
            checked[0] = q
            if q in cfg.tsq:
                stamp()
        key = (q, it["kb"])
        if key in bread_of and (key, it["sp"]) not in bdone:
            bdone.add((key, it["sp"]))
            bb = blocks[bread_of[key]]
            addr = bb["slot"] * 8192
            r = vXB + 16 * it["kb"] + 4 * it["sp"]
            if bb["kind"] == "X":
                assert addr >> 16 == 2
                ds_issue(f"ds_read_b128 v[{r}:{r+3}], v{vBX[it['sp']]} offset:{addr & 0xffff}", ("B", it["kb"], it["sp"]))
            else:
                ds_issue(f"ds_read_b128 v[{r}:{r+3}], v{vBH[addr >> 16]} offset:{(addr & 0xffff) + 1024*it['sp']}",
                         ("B", it["kb"], it["sp"]))
                if bb["kind"] != "Hown":
                    if not cfg.hlsb:
                        dirty[(it["kb"], it["sp"])] = n
        wb = blocks[it["wb"]]
        addr = wb["slot"] * 8192 + 2048 * it["sp"]
        r = vAB + 4 * (n % nAB)
        ds_issue(f"ds_read_b64_tr_b16 v[{r}:{r+1}], v{vA[addr >> 16]} offset:{addr & 0xffff}", ("A", n))
        ds_issue(f"ds_read_b64_tr_b16 v[{r+2}:{r+3}], v{vA[addr >> 16]} offset:{(addr & 0xffff) + 1024}", ("A", n))

    post = []

    def epi1_instrs(pi, lines):
        out, late = [], []
        for l in lines:
            a = vACC + 16 * l
            addr = blocks[f"H0_{l}"]["slot"] * 8192
            for half in range(2):
                base = a + 8 * half
                if cfg.epi == 1:
                    assert cfg.hlsb
                    for k in range(8):
                        out.append(("v", f"v_mul_f32 v{base+k}, v{base+k}, |v{base+k}|"))
                    for k in range(4):
                        out.append(("v", f"v_cvt_pk_bf16_f32 v{base+k}, v{base+2*k}, v{base+2*k+1}"))
                    for k in range(4):
                        out.append(("v", f"v_pk_max_i16 v{base+k}, v{base+k}, 0"))
                else:
                    for k in range(8):
                        out.append(("v", f"v_max_f32 v{base+k}, 0, v{base+k}"))
                    for k in range(0, 8, 2):
                        out.append(("v", f"v_pk_mul_f32 v[{base+k}:{base+k+1}], v[{base+k}:{base+k+1}], v[{base+k}:{base+k+1}]"))
                    for k in range(4):
                        out.append(("v", f"v_cvt_pk_bf16_f32 v{base+k}, v{base+2*k}, v{base+2*k+1}"))
                for k in range(4):
                    out.append(("v", f"v_bfi_b32 v{base+4+k}, s{sML}, v{vTG+k}, v{base+k}" if cfg.hlsb else
                                f"v_and_or_b32 v{base+4+k}, v{vTG+k}, s{sMS}, v{base+k}"))
                out.append(("v", f"buffer_store_dwordx4 v[{base+4}:{base+7}], v{vHW[0]}, s[{SRD1}:{SRD1+3}], s{sHS[l]} offen offset:{1024*half} {cfg.hsf}"))
                out.append(("w", f"ds_write_b128 v{vHW[addr >> 16]}, v[{base}:{base+3}] offset:{(addr & 0xffff) + 1024*half}"))
                t = ("v", f"buffer_load_dword v255, v{vHW[0]}, s[{SRD1}:{SRD1+3}], s{sHS[l]} offen offset:{1024*half} {cfg.stf}")
                if cfg.stouch == 1:
                    out.append(t)
                elif cfg.stouch == 2:
                    late.append(t)
                elif cfg.stouch == 3:
                    post.append(t)
        return out + late

    def epi2_instrs(lines):
        out = []
        for l in lines:
            for u in range(2):
                base = vACC + 8 * (2 * l + u)
                if l in aux_used:
                    ab = accbase(l + 3) + 8 * u
                    for k in range(0, 8, 2):
                        out.append(("v", f"v_pk_add_f32 v[{base+k}:{base+k+1}], v[{base+k}:{base+k+1}], v[{ab+k}:{ab+k+1}]"))
                for k in range(4):
                    out.append(("v", f"v_cvt_pk_bf16_f32 v{base+k}, v{base+2*k}, v{base+2*k+1}"))
                out.append(("v", "s_nop 1"))
                out.append(("v", f"v_permlane32_swap_b32 v{base}, v{base+2}"))
                out.append(("v", f"v_permlane32_swap_b32 v{base+1}, v{base+3}"))
                for k in (0, 2, 1, 3):
                    out.append(("v", f"v_bfi_b32 v{base+k}, s{sML}, v{vTG+k}, v{base+k}"))
                out.append(("v", f"buffer_store_dwordx4 v[{base}:{base+3}], v{vL16}, s[{SRD1}:{SRD1+3}], s{sI0} offen offset:{1024*l+256*u} {cfg.psf}"))
        return out

    fillers = []
    fill_start = 0
    fill_tiles = set()
    mfma_pos = {}
    fill_fresh = [False]

    def states_since(pos):
        c = 0
        for ln in A.L[pos + 1:]:
            t = ln.strip()
            if t.endswith(":") or t.startswith(";") or t.startswith("@@"):
                continue
            c += int(t.split()[1]) + 1 if t.startswith("s_nop") else 1
        return c

    late_w = []

    def emit(kind, t):
        if kind == "mark":
            have = min(states_since(mfma_pos[tl]) for tl in t[0])
            if have < 12:
                A(f"s_nop {12 - have - 1}")
        elif kind == "w":
            ds_issue(t, "hw")
        else:
            A(t)

    def flush_fillers():
        nonlocal fillers
        for (kind, t) in fillers + late_w:
            emit(kind, t)
        fillers = []
        late_w.clear()
        fill_tiles.clear()

    trig = {}
    for l in range(3):
        trig[max(n for n, it in enumerate(items) if it["q"] < n_g1 and it["tile"] == l)] = (1, l)
        trig[max(n for n, it in enumerate(items) if it["q"] >= n_g1 and it["tile"] % 3 == l)] = (2, l)

    nread = 0
    for n in range(NI):
        it = items[n]
        lim = min(NI - 1, n + D)
        while nread <= lim:
            nx = items[nread]
            if nx["q"] > checked[0]:
                due = [l for l, v in hown_vis.items() if v == nx["q"]]
                if due:
                    if last_item[hown_w[due[0]]] >= n:
                        break
                    flush_fillers()
            key = (nx["q"], nx["kb"])
            if key in bread_of and (key, nx["sp"]) not in bdone:
                if any(items[m]["kb"] == nx["kb"] and items[m]["sp"] == nx["sp"] for m in range(n, nread)):
                    break
            issue_reads(nread)
            nread += 1
        assert nread > n
        if it["tile"] in fill_tiles:
            flush_fillers()
            A("s_nop 1")
        clean(n)
        ds_need({("A", n), ("B", it["kb"], it["sp"])})
        if it["first"]:
            ds_need({"hw"})
        if n in clean_pos and states_since(clean_pos[n]) < 2:
            A(f"s_nop {1 - states_since(clean_pos[n])}")
        ra = vAB + 4 * (n % nAB)
        rb = vXB + 16 * it["kb"] + 4 * it["sp"]
        acc = accbase(it["tile"])
        c = "0" if it["first"] else f"v[{acc}:{acc+15}]"
        if cfg.m16test == 1:
            for hh in range(2):
                a4 = acc + 8 * (it["sp"] & 1) + 4 * hh
                rb2 = vXB + 16 * it["kb"] + 4 * (it["sp"] if hh == 0 else max(it["sp"] - 1, 0))
                A(f"v_mfma_f32_16x16x32_bf16 v[{a4}:{a4+3}], v[{ra}:{ra+3}], v[{rb2}:{rb2+3}], v[{a4}:{a4+3}]")
        elif cfg.m16test == 2:
            A("s_nop 7")
        else:
            A(f"v_mfma_f32_32x32x16_bf16 v[{acc}:{acc+15}], v[{ra}:{ra+3}], v[{rb}:{rb+3}], {c}")
        mfma_pos[it["tile"]] = len(A.L) - 1
        if n + 1 < nread:
            clean(n + 1)
        k = 0
        while fillers and k < (cfg.fill1 if it["q"] < n_g1 else cfg.fill):
            if fillers[0][0] == "mark" and n < fillers[0][1][1]:
                break
            kind, t = fillers.pop(0)
            emit(kind, t)
            k += kind != "mark"
        if not fillers and not late_w:
            fill_tiles.clear()
        if n == last_item[it["q"]] and (it["q"] in epi_after or it["q"] in epi2_after):
            stamp()
        if n in trig:
            g, l = trig[n]
            tl = [l] + ([l + 3] if (g == 2 and l in aux_used) else [])
            new = epi1_instrs(0, [l]) if g == 1 else epi2_instrs([l])
            if cfg.wlast:
                late_w.extend(x for x in new if x[0] == "w")
                new = [x for x in new if x[0] != "w"]
            fillers += [("mark", (tl, n + cfg.fdel))] + new
            fill_tiles.update(tl)
    flush_fillers()
    stamp()
    if cfg.rnb >= 1 and not cfg.rlate:
        A("s_barrier")
    reduce_code(1, 0)
    if TS:
        A("s_waitcnt vmcnt(0)")
        A("s_memrealtime s[98:99]")
        A("s_waitcnt lgkmcnt(0)")
        assert tsn[0] <= 14, tsn[0]
        A(f"s_mov_b32 s{sTS+28}, s98"); A(f"s_mov_b32 s{sTS+30}, s{sCNT}")
        tsn[0] = 16
        stamp_flush()
    if cfg.enc and cfg.encw < 4:
        A("s_branch L_noep")
    A("s_branch L_end")

    A.head("hl")
    A.label("L_helper")
    sG = 38
    A(f"s_lshl_b32 s{sG}, s{sWV}, 3")
    A(f"s_add_u32 s{sG}, s{sG}, s{sR}")
    A("v_mul_u32_u24 v8, 9216, v1")
    A("v_mul_u32_u24 v9, 1152, v1")
    A(f"s_mul_i32 s39, s{sJ}, 1152")
    A("s_waitcnt lgkmcnt(0)")
    NWT = 64

    def sdiv(dst, src, d):
        A(f"s_mul_i32 s{dst}, s{src}, {(65536 + d - 1) // d}")
        A(f"s_lshr_b32 s{dst}, s{dst}, 16")

    w2base = 0
    if cfg.touch and any(ROT):
        srd(SRD0, sW1, 5308416)
        srd(SRD1, sX, 589824)
        need = {kk: min((kk - r) % 9 for r in ROT) for kk in range(9)}
        kks = sorted([kk for kk in range(9) if need[kk] >= cfg.skipw], key=lambda kk: need[kk])
        KT = sum(kk << (4 * u) for u, kk in enumerate(kks))
        nW = 9 * len(kks)
        x0 = cfg.skipx
        nX = 8 * (9 - x0)
        tot = nW + nX
        for rnd in range((tot + NWT - 1) // NWT):
            if rnd == 1:
                A.tail("hl")
            k = A.uid()
            A(f"s_add_u32 s{sT0}, s{sG}, {NWT*rnd}")
            if NWT * rnd < nW:
                if NWT * rnd + NWT > nW:
                    A(f"s_cmp_ge_u32 s{sT0}, {nW}")
                    A(f"s_cbranch_scc1 L_hx{k}")
                sdiv(sT1, sT0, 9)
                A(f"s_mul_i32 s{sT2}, s{sT1}, 9")
                A(f"s_sub_u32 s{sT2}, s{sT0}, s{sT2}")
                A(f"s_lshl_b32 s{sT1}, s{sT1}, 2")
                A(f"s_lshr_b32 s{sT1}, {KT}, s{sT1}")
                A(f"s_and_b32 s{sT1}, s{sT1}, 15")
                A(f"s_mul_i32 s{sT1}, s{sT1}, {64*9216}")
                A(f"s_lshl_b32 s{sT2}, s{sT2}, 7")
                A(f"s_add_u32 s{sT1}, s{sT1}, s{sT2}")
                A(f"s_add_u32 s{sT1}, s{sT1}, s39")
                A(f"buffer_load_dword v255, v8, s[{SRD0}:{SRD0+3}], s{sT1} offen {cfg.tfl}")
                if NWT * rnd + NWT > nW:
                    A(f"s_branch L_ht{k}")
            if NWT * rnd + NWT > nW:
                A.label(f"L_hx{k}")
                if NWT * rnd + NWT > tot:
                    A(f"s_cmp_ge_u32 s{sT0}, {tot}")
                    A(f"s_cbranch_scc1 L_ht{k}")
                A(f"s_sub_u32 s{sT0}, s{sT0}, {nW - 8*x0}")
                A(f"s_and_b32 s{sT2}, s{sT0}, 7")
                A(f"s_lshr_b32 s{sT1}, s{sT0}, 3")
                A(f"s_lshl_b32 s{sT3}, s{sT2}, 2")
                A(f"s_lshr_b32 s{sT3}, {ROTTAB}, s{sT3}")
                A(f"s_and_b32 s{sT3}, s{sT3}, 15")
                A(f"s_add_u32 s{sT1}, s{sT1}, s{sT3}")
                A(f"s_cmp_ge_u32 s{sT1}, 9")
                A(f"s_cselect_b32 s{sT3}, 9, 0")
                A(f"s_sub_u32 s{sT1}, s{sT1}, s{sT3}")
                A(f"s_mul_i32 s{sT2}, s{sT2}, {64*1152}")
                A(f"s_lshl_b32 s{sT1}, s{sT1}, 7")
                A(f"s_add_u32 s{sT1}, s{sT1}, s{sT2}")
                A(f"buffer_load_dword v255, v9, s[{SRD1}:{SRD1+3}], s{sT1} offen")
            A.label(f"L_ht{k}")
        w2base = (NWT - tot % NWT) % NWT
    elif cfg.touch:
        srd(SRD0, sW1, 5308416)
        srd(SRD1, sX, 589824)
        phases, base = [], 0
        for pi, ls in enumerate(passes):
            t0 = cfg.ht0 if pi == 0 else 0
            c = 3 * len(ls) + (8 if pi == 0 else 0)
            phases.append((base, (9 - t0 - cfg.tn) * c, t0, c, ls))
            base += (9 - t0 - cfg.tn) * c
        w2base = (NWT - base % NWT) % NWT if cfg.w2rot else 0
        for rnd in range((base + NWT - 1) // NWT):
            if rnd == 1:
                A.tail("hl")
            k = A.uid()
            A(f"s_add_u32 s{sT0}, s{sG}, {NWT*rnd}")
            for (pb, cnt, t0, c, ls) in phases:
                if pb + cnt <= NWT * rnd or pb >= NWT * rnd + NWT:
                    continue
                k2 = A.uid()
                A(f"s_cmp_ge_u32 s{sT0}, {pb+cnt}")
                A(f"s_cbranch_scc1 L_hp{k2}")
                if pb:
                    A(f"s_sub_u32 s{sT0}, s{sT0}, {pb}")
                sdiv(sT1, sT0, c)
                A(f"s_mul_i32 s{sT2}, s{sT1}, {c}")
                A(f"s_sub_u32 s{sT2}, s{sT0}, s{sT2}")
                if t0:
                    A(f"s_add_u32 s{sT1}, s{sT1}, {t0}")
                if cfg.tn:
                    A(f"s_cmp_ge_u32 s{sT1}, {cfg.ta}")
                    A(f"s_cselect_b32 s{sT3}, {cfg.tn}, 0")
                    A(f"s_add_u32 s{sT1}, s{sT1}, s{sT3}")
                nw = 3 * len(ls)
                if c > nw:
                    A(f"s_cmp_ge_u32 s{sT2}, {nw}")
                    A(f"s_cbranch_scc1 L_hx{k2}")
                if len(ls) != 3:
                    if len(ls) == 1:
                        A(f"s_mul_i32 s{sT2}, s{sT2}, 3")
                    else:
                        A(f"s_lshr_b32 s{sT3}, s{sT2}, 1")
                        A(f"s_add_u32 s{sT2}, s{sT2}, s{sT3}")
                    if ls[0]:
                        A(f"s_add_u32 s{sT2}, s{sT2}, {ls[0]}")
                A(f"s_mul_i32 s{sT1}, s{sT1}, {64*9216}")
                A(f"s_lshl_b32 s{sT2}, s{sT2}, 7")
                A(f"s_add_u32 s{sT1}, s{sT1}, s{sT2}")
                A(f"s_add_u32 s{sT1}, s{sT1}, s39")
                A(f"buffer_load_dword v255, v8, s[{SRD0}:{SRD0+3}], s{sT1} offen {cfg.tfl}")
                A(f"s_branch L_ht{k}")
                if c > nw:
                    A.label(f"L_hx{k2}")
                    A(f"s_sub_u32 s{sT2}, s{sT2}, {nw}")
                    A(f"s_mul_i32 s{sT2}, s{sT2}, {64*1152}")
                    A(f"s_lshl_b32 s{sT1}, s{sT1}, 7")
                    A(f"s_add_u32 s{sT1}, s{sT1}, s{sT2}")
                    A(f"buffer_load_dword v255, v9, s[{SRD1}:{SRD1+3}], s{sT1} offen")
                    A(f"s_branch L_ht{k}")
                A.label(f"L_hp{k2}")
            A.label(f"L_ht{k}")
    def h_pretouch():
        srd(SRD1, sWS, 0x10000000)
        A("v_lshlrev_b32 v10, 7, v1")
        A(f"s_mul_i32 s{sT1}, s{sJ}, 589824")
        A(f"s_add_u32 s{sT1}, s{sT1}, {WS_IN if cfg.hpin else WS_H}")
        for rnd in range(2):
            k = A.uid()
            A(f"s_add_u32 s{sT0}, s{sG}, {NWT*rnd}")
            A(f"s_cmp_ge_u32 s{sT0}, 72")
            A(f"s_cbranch_scc1 L_ht{k}")
            A(f"s_lshl_b32 s{sT0}, s{sT0}, 13")
            A(f"s_add_u32 s{sT0}, s{sT0}, s{sT1}")
            A(f"buffer_load_dword v255, v10, s[{SRD1}:{SRD1+3}], s{sT0} offen {cfg.hpf}")
            A.label(f"L_ht{k}")
    if cfg.hpre == 1:
        h_pretouch()
    if cfg.touch:
        srd(SRD0, sW2, 5308416)
        A(f"s_mul_i32 s39, s{sJ}, 663552")
        vord = [blocks[nm] for nm in order if blocks[nm]["kind"] == "W2"]
        if not cfg.vneed:
            vord.sort(key=lambda b: (kbidx[(b["d"], b["lk"])], b["l"]))
        for reg, key in ((60, "d"), (62, "lk"), (44, "l")):
            tab = sum(b[key] << (2 * u) for u, b in enumerate(vord))
            A(f"s_mov_b32 s{reg}, {tab & 0xffffffff}")
            A(f"s_mov_b32 s{reg+1}, {tab >> 32}")
        if w2base:
            A(f"s_add_u32 s{sG}, s{sG}, {w2base}")
            A(f"s_and_b32 s{sG}, s{sG}, 63")
        for rnd in range(2):
            k = A.uid()
            A(f"s_add_u32 s{sT0}, s{sG}, {NWT*rnd}")
            A(f"s_cmp_ge_u32 s{sT0}, 81")
            A(f"s_cbranch_scc1 L_ht{k}")
            sdiv(sT1, sT0, 3)
            A(f"s_mul_i32 s{sT2}, s{sT1}, 3")
            A(f"s_sub_u32 s{sT2}, s{sT0}, s{sT2}")
            A(f"s_lshl_b32 s{sT1}, s{sT1}, 1")
            A(f"s_lshr_b64 s[46:47], s[60:61], s{sT1}")
            A(f"s_and_b32 s{sT0}, s46, 3")
            A(f"s_add_u32 s{sT0}, s{sT0}, s{sT2}")
            A(f"s_cmp_ge_u32 s{sT0}, 3")
            A(f"s_cselect_b32 s{sT3}, 3, 0")
            A(f"s_sub_u32 s{sT0}, s{sT0}, s{sT3}")
            A(f"s_lshr_b64 s[46:47], s[62:63], s{sT1}")
            A(f"s_and_b32 s{sT3}, s46, 3")
            A(f"s_mul_i32 s{sT0}, s{sT0}, {192*1152}")
            A(f"s_mul_i32 s{sT3}, s{sT3}, {64*1152}")
            A(f"s_add_u32 s{sT0}, s{sT0}, s{sT3}")
            A(f"s_lshr_b64 s[46:47], s[44:45], s{sT1}")
            A(f"s_and_b32 s{sT3}, s46, 3")
            A(f"s_mul_i32 s{sT2}, s{sT2}, 3")
            A(f"s_add_u32 s{sT2}, s{sT2}, s{sT3}")
            A(f"s_lshl_b32 s{sT2}, s{sT2}, 7")
            A(f"s_add_u32 s{sT0}, s{sT0}, s{sT2}")
            A(f"s_add_u32 s{sT0}, s{sT0}, s39")
            A(f"buffer_load_dword v255, v9, s[{SRD0}:{SRD0+3}], s{sT0} offen {cfg.tfl}")
            A.label(f"L_ht{k}")
    if cfg.hpre == 2:
        h_pretouch()
    dummy(cfg.dumh, "h")
    if TS:
        tsn[0] = 1
        A("s_waitcnt vmcnt(0)")
        stamp()
        stamp()
        stamp_flush()
    A("s_branch L_end")
    A.tail("end")
    A.label("L_end")

    hdr = f"""; Fused MLP (x@w1+b1 -> relu^2 -> @w2+b2), generated by a python script (work/gen4.py)
; @launch grid=(256,1,1) block=(512,1,1) lds=163840
.amdgcn_target "amdgcn-amd-amdhsa--gfx950"
.text
.globl {KN}
.p2align 8
.type {KN},@function
{KN}:
"""
    ftr = f"""
    s_endpgm
.section .rodata,"a"
.p2align 6
.amdhsa_kernel {KN}
  .amdhsa_next_free_vgpr 256
  .amdhsa_next_free_sgpr 102
  .amdhsa_accum_offset 256
  .amdhsa_group_segment_fixed_size 0
  .amdhsa_kernarg_size 64
  .amdhsa_user_sgpr_count 2
  .amdhsa_user_sgpr_kernarg_segment_ptr 1
  .amdhsa_system_sgpr_workgroup_id_x 1
.end_amdhsa_kernel
"""
    return hdr + A.text(cfg.horder.split(","), cfg.torder.split(",") + ["end"]) + ftr


def parse_g2(s):
    out = []
    for stg in s.split(","):
        us = []
        for u in stg.split("+"):
            a, b = u.split(":")
            us.append((int(a[0]), int(a[1]), [int(c) for c in b]))
        out.append(us)
    return out


def ilist(s):
    return [int(x) for x in s.split(",")] if s else []


def main():
    ap = argparse.ArgumentParser()
    ap.add_argument("-o", default="k8.s")
    ap.add_argument("--ts", action="store_true")
    ap.add_argument("--passes", default="012")
    ap.add_argument("--depth", type=int, default=5)
    ap.add_argument("--fill", type=int, default=4)
    ap.add_argument("--grp1", type=int, default=3)
    ap.add_argument("--hres", type=float, default=2.5)
    ap.add_argument("--hearly", type=float, default=1.5)
    ap.add_argument("--hdel", type=int, default=1)
    ap.add_argument("--xfree", type=int, default=11)
    ap.add_argument("--g2", default="00:012,01:012,02:012,10:012,20:012,11:012,21:012,12:012,22:012")
    ap.add_argument("--tsq", default="")
    ap.add_argument("--verbose", action="store_true")
    ap.add_argument("--ahead", type=int, default=8)
    ap.add_argument("--ahead0", type=int, default=8)
    ap.add_argument("--capfrom", type=int, default=8)
    ap.add_argument("--capw", type=int, default=4)
    ap.add_argument("--capx", type=int, default=3)
    ap.add_argument("--burst", default="")
    ap.add_argument("--pause", default="")
    ap.add_argument("--go2lead", type=int, default=3)
    ap.add_argument("--sa", type=int, default=0)
    ap.add_argument("--ctouch", type=int, default=1)
    ap.add_argument("--wfl", default="")
    ap.add_argument("--tfl", default="")
    ap.add_argument("--rfl", default="sc1")
    ap.add_argument("--rsleep", type=int, default=0)
    ap.add_argument("--touch", type=int, default=1)
    ap.add_argument("--clrq", type=int, default=-1)
    ap.add_argument("--cdq", type=int, default=9)
    ap.add_argument("--rbar", type=int, default=0)
    ap.add_argument("--hsf", default="sc1")
    ap.add_argument("--hlf", default="sc1")
    ap.add_argument("--ofl", default="")
    ap.add_argument("--hpre", type=int, default=0)
    ap.add_argument("--rot", default="00000000")
    ap.add_argument("--ts0", type=int, default=0)
    ap.add_argument("--hlsb", type=int, default=1)
    ap.add_argument("--dual", type=int, default=0)
    ap.add_argument("--xpre", type=int, default=0)
    ap.add_argument("--m16test", type=int, default=0)
    ap.add_argument("--vneed", type=int, default=1)
    ap.add_argument("--tsreal", type=int, default=0)
    ap.add_argument("--vpipe", type=int, default=0)
    ap.add_argument("--ahead2", type=int, default=-1)
    ap.add_argument("--chain", type=int, default=1)
    ap.add_argument("--owide", type=int, default=0)
    ap.add_argument("--dum1", type=int, default=0)
    ap.add_argument("--dum2", type=int, default=0)
    ap.add_argument("--dumh", type=int, default=0)
    ap.add_argument("--encc", type=int, default=0)
    ap.add_argument("--encm", type=int, default=2)
    ap.add_argument("--slots", type=int, default=0)
    ap.add_argument("--rlate", type=int, default=0)
    ap.add_argument("--epi", type=int, default=0)
    ap.add_argument("--tm", default="")
    ap.add_argument("--wlast", type=int, default=0)
    ap.add_argument("--fdel", type=int, default=3)
    ap.add_argument("--fill1", type=int, default=5)
    ap.add_argument("--priow", type=int, default=0)
    ap.add_argument("--prioh", type=int, default=0)
    ap.add_argument("--r0early", type=int, default=0)
    ap.add_argument("--psf", default="sc1")
    ap.add_argument("--rw1", type=int, default=0)
    ap.add_argument("--ofl1", default="")
    ap.add_argument("--rpq", type=int, default=10)
    ap.add_argument("--rb2", type=int, default=1)
    ap.add_argument("--rb4", type=int, default=0)
    ap.add_argument("--rearly", type=int, default=0)
    ap.add_argument("--hpf", default="")
    ap.add_argument("--hpin", type=int, default=0)
    ap.add_argument("--wsb", type=lambda x: int(x, 0), default=0)
    ap.add_argument("--enc", default="")
    ap.add_argument("--encw", type=int, default=4)
    ap.add_argument("--hfree", type=int, default=2)
    ap.add_argument("--stouch", type=int, default=0)
    ap.add_argument("--stdel", type=int, default=1)
    ap.add_argument("--stf", default="")
    ap.add_argument("--ta", type=int, default=0)
    ap.add_argument("--tn", type=int, default=0)
    ap.add_argument("--tpos", type=int, default=0)
    ap.add_argument("--w2rot", type=int, default=1)
    ap.add_argument("--rfast", type=int, default=1)
    ap.add_argument("--wt", type=int, default=0)
    ap.add_argument("--horder", default="w,x,h2,hl,c")
    ap.add_argument("--ht0", type=int, default=1)
    ap.add_argument("--first", type=int, default=4)
    ap.add_argument("--torder", default="hl,w,x,h2,c,red")
    ap.add_argument("--skipw", type=int, default=1)
    ap.add_argument("--skipx", type=int, default=1)
    cfg = ap.parse_args()
    cfg.passes = [[int(c) for c in p] for p in cfg.passes.split(",")]
    cfg.g2 = parse_g2(cfg.g2)
    cfg.rnb = cfg.rb2
    cfg.tsq, cfg.burst, cfg.pause = ilist(cfg.tsq), ilist(cfg.burst), ilist(cfg.pause)
    open(cfg.o, "w").write(build(cfg))


main()
```

```python
import sys, argparse

KN = "standalone__dense_activation_squared_relu__sampling_kernel"

WS_H = 0x0
WS_IN = 0x1000000
WS_CD = 0x1840000
WS_EP = 0x1850000
WS_TS = 0x8000000
SPIN_MAX = 100000
SGNMASK = 0x6A9956A5


class Asm:
    def __init__(self):
        self.L = []
        self.n = 0

    def __call__(self, s):
        self.L.append("    " + s)

    def label(self, s):
        self.L.append(s + ":")

    def c(self, s):
        self.L.append("    ; " + s)

    def uid(self):
        self.n += 1
        return self.n

    def head(self, role):
        self.L.append(f"@@HEAD {role}")

    def tail(self, role):
        self.L.append(f"@@TAIL {role}")

    def text(self, horder, torder):
        pro, heads, tails, cur = [], {}, {}, None
        cur = pro
        for ln in self.L:
            if ln.startswith("@@HEAD"):
                cur = heads.setdefault(ln.split()[1], [])
            elif ln.startswith("@@TAIL"):
                r = ln.split()[1]
                if r in heads:
                    heads[r].append(f"    s_branch L_tail_{r}")
                cur = tails.setdefault(r, [f"L_tail_{r}:"])
            else:
                cur.append(ln)
        assert sorted(heads) == sorted(horder) and sorted(tails) == sorted(torder), (heads.keys(), tails.keys())
        out = pro
        for r in horder:
            out += heads[r]
        out.append("L_heads_end:")
        for r in torder:
            out += tails[r]
        return "\n".join(out)


def build(cfg):
    global WS_H, WS_IN, WS_EP
    WS_H = cfg.wsb
    WS_IN = cfg.wsb + 0x480000
    WS_EP = cfg.wsb + 0x900000 if not cfg.slots else 0x10000
    A = Asm()
    TS = cfg.ts
    passes = cfg.passes
    D = cfg.depth

    stages, blocks, order = [], {}, []

    def blk(name, **kw):
        blocks[name] = dict(name=name, **kw)
        return name

    def add_stage(units, breads):
        q = len(stages)
        stages.append(dict(units=units, breads=breads, q=q))
        for (bb, _kb) in breads:
            b = blocks[bb]
            b["need"] = b["last"] = q
            if b["kind"] != "Hown":
                order.append(bb)
        for (_t, wb, _kb, _first) in units:
            b = blocks[wb]
            if "need" not in b:
                b["need"] = q
                order.append(wb)
            b["last"] = q
        return q

    epi_after, pass_of_line = {}, {}
    for pi, lines in enumerate(passes):
        grp = 1 if (len(lines) > 1 or pi == 0) else cfg.grp1
        for t0 in range(0, 9, grp):
            units, breads = [], []
            for t in range(t0, t0 + grp):
                if pi == 0:
                    breads.append((blk(f"X{t}", kind="X", t=t), t))
                for l in lines:
                    units.append((l, blk(f"W{t}_{l}", kind="W1", t=t, l=l), t, False))
            q = add_stage(units, breads)
        epi_after[q] = (pi, list(lines))
        for l in lines:
            pass_of_line[l] = pi
    n_g1 = len(stages)
    kbidx = {}
    first = {0: True, 1: True, 2: True}
    cnt2 = {0: 0, 1: 0, 2: 0}
    epi2_after = {}
    for stg in cfg.g2:
        units, breads = [], []
        for (d, lk, lines) in stg:
            if (d, lk) not in kbidx:
                kbidx[(d, lk)] = len(kbidx)
                breads.append((blk(f"H{d}_{lk}", kind="Hown" if d == 0 else f"H{d}", d=d, lk=lk), kbidx[(d, lk)]))
            for l in lines:
                units.append((l, blk(f"V{d}_{lk}_{l}", kind="W2", d=d, lk=lk, l=l), kbidx[(d, lk)], first[l]))
                first[l] = False
                cnt2[l] += 1
        q = add_stage(units, breads)
        done = [l for l in range(3) if cnt2[l] == 9 and not any(l in v for v in epi2_after.values())]
        if done:
            epi2_after[q] = done
    assert all(v == 9 for v in cnt2.values())
    NQ = len(stages)
    hown_w = {l: q for q, (pi, lines) in epi_after.items() for l in lines}
    hown_vis = {l: (q + 1 if q == n_g1 - 1 else q + 2) for l, q in hown_w.items()}
    for l in hown_w:
        assert blocks[f"H0_{l}"]["need"] >= hown_vis[l]
    hfetch = {l: hown_vis[l] + cfg.hdel for l in hown_w}

    free_at = {s: -10 for s in range(20)}
    events = [(blocks[nm]["need"] - (cfg.hearly if blocks[nm]["kind"] in ("H1", "H2") else 0), 1, k, nm) for k, nm in enumerate(order)]
    for l, qw in hown_w.items():
        events.append((qw - cfg.hres, 0, l, f"H0_{l}"))
    events.sort()
    for ev in events:
        b = blocks[ev[3]]
        if b["kind"] == "X":
            cand = [16, 17, 18, 19]
        elif ev[0] < cfg.xfree:
            cand = list(range(0, 16))
        else:
            cand = list(range(0, 20))
        s = min(cand, key=lambda s: (free_at[s], s))
        b["slot"] = s
        b["free"] = free_at[s]
        if b["kind"] == "Hown":
            assert b["free"] + cfg.hfree <= hown_w[b["lk"]], b
        else:
            assert b["free"] + 2 < b["need"], b
        free_at[s] = b["last"]
    if cfg.verbose:
        print(" | ".join(f"{blocks[e[3]]['name']}:s{blocks[e[3]]['slot']} f{blocks[e[3]]['free']} n{blocks[e[3]]['need']}" for e in events), file=sys.stderr)
    for k, nm in enumerate(order):
        blocks[nm]["pos"] = k
    cum = [sum(1 for nm in order if blocks[nm]["need"] <= q) for q in range(NQ)]

    sX, sW1, sB1, sW2, sB2, sOUT, sDBG, sWS = 16, 18, 20, 22, 24, 26, 28, 30
    sJ, sR, sMT, sI, sWV, sWK = 32, 33, 34, 35, 36, 37
    SRD0, SRD1, SRD2 = 40, 44, 48
    sT0, sT1, sT2, sT3, sT4, sT5 = 52, 53, 54, 55, 56, 57
    sCNT = 58
    sTAG, sPB = 6, 8
    sTS = 64
    tsn = [0]

    def stamp():
        if TS:
            k = tsn[0]
            assert k < 16
            A(f"{'s_memrealtime' if cfg.tsreal else 's_memtime'} s[{sTS+2*k}:{sTS+2*k+1}]")
            tsn[0] += 1

    def srd(d, p, nbytes):
        A(f"s_mov_b32 s{d}, s{p}")
        A(f"s_mov_b32 s{d+1}, s{p+1}")
        A(f"s_mov_b32 s{d+2}, {nbytes}")
        A(f"s_mov_b32 s{d+3}, 0x00020000")

    def stamp_flush():
        if not TS:
            return
        n = tsn[0]
        A("s_waitcnt lgkmcnt(0)")
        srd(SRD2, sWS, 0x10000000)
        A(f"s_lshl_b32 s{sT0}, s2, 9")
        A(f"s_lshl_b32 s{sT1}, s{sWV}, 6")
        A(f"s_add_u32 s{sT0}, s{sT0}, s{sT1}")
        A(f"s_add_u32 s{sT0}, s{sT0}, {WS_TS}")
        A(f"v_mov_b32 v2, s{sT0}")
        A("s_mov_b64 exec, 1")
        for k in range(n):
            A(f"v_mov_b32 v3, s{sTS+2*k}")
            A(f"buffer_store_dword v3, v2, s[{SRD2}:{SRD2+3}], 0 offen offset:{4*k}")
        A("s_mov_b64 exec, -1")

    def epoch_load(smt):
        A(f"s_lshl_b32 s{sT0}, s{smt}, 7")
        A(f"s_add_u32 s{sT0}, s{sT0}, {WS_EP}")
        A(f"s_load_dword s{sTAG}, s[{sWS}:{sWS+1}], s{sT0}")

    def epoch_fin():
        A("s_waitcnt lgkmcnt(0)")
        A(f"s_add_u32 s{sTAG}, s{sTAG}, 1")
        A(f"s_mul_i32 s{sTAG+1}, s{sTAG}, 0x22222222")
        A(f"s_and_b32 s{sTAG+1}, s{sTAG+1}, 0xeeeeeeee")
        A(f"s_or_b32 s{sTAG+1}, s{sTAG+1}, 0x10101010")
        if cfg.slots:
            A(f"s_and_b32 s14, s{sTAG}, {cfg.slots-1}")
            A(f"s_mul_i32 s14, s14, 0xa00000")

    def slot_add(*regs):
        if cfg.slots:
            for r in regs:
                A(f"s_add_u32 s{r}, s{r}, s14")

    def tag_regs(vd, vt):
        A(f"v_and_b32 v{vt}, 3, v1")
        A(f"v_lshlrev_b32 v{vt}, 3, v{vt}")
        A(f"v_lshrrev_b32 v{vt}, v{vt}, s{sTAG+1}")
        for k in range(4):
            A(f"v_bfe_u32 v{vd+k}, v{vt}, {2*k}, 2")
            A(f"v_mul_u32_u24 v{vd+k}, 0x8001, v{vd+k}")
            A(f"v_and_b32 v{vd+k}, 0x10001, v{vd+k}")
            A(f"v_lshl_or_b32 v{vd+k}, v{vd+k}, 15, v{vd+k}")

    def sign_reg(vd, vt):
        A(f"s_bitcmp1_b32 s{sTAG}, 0")
        A(f"s_cselect_b32 s{sT0}, -1, 0")
        A(f"s_xor_b32 s{sT0}, s{sT0}, {SGNMASK}")
        A(f"v_and_b32 v{vt}, 31, v1")
        A(f"v_lshrrev_b32 v{vt}, v{vt}, s{sT0}")
        A(f"v_bfe_i32 v{vt}, v{vt}, 0, 1")
        A(f"v_and_b32 v{vd}, 0x80008000, v{vt}")

    def sspin(loads, npairs, base):
        k = A.uid()
        A(f"s_mov_b32 s{sCNT}, 0")
        A.label(f"L_s{k}")
        for x in loads:
            A(x)
        A(f"s_add_u32 s{sCNT}, s{sCNT}, 1")
        A("s_waitcnt lgkmcnt(0)")
        A(f"s_cmp_gt_u32 s{sCNT}, {SPIN_MAX}")
        A(f"s_cbranch_scc1 L_sd{k}")
        for n in range(npairs):
            A(f"s_cmp_lg_u64 s[{base+2*n}:{base+2*n+1}], s[{sTAG}:{sTAG+1}]")
            A(f"s_cbranch_scc1 L_s{k}")
        A.label(f"L_sd{k}")

    def mod3add(dst, d, tmp):
        A(f"s_add_u32 s{dst}, s{sI}, {d}")
        A(f"s_cmp_ge_u32 s{dst}, 3")
        A(f"s_cselect_b32 s{tmp}, 3, 0")
        A(f"s_sub_u32 s{dst}, s{dst}, s{tmp}")

    A("s_cmp_ge_u32 s2, 256")
    A("s_cbranch_scc1 L_end")
    A("s_load_dwordx16 s[16:31], s[0:1], 0")
    if cfg.ctouch == 1:
        A("s_getpc_b64 s[4:5]")
        A.label("L_pc")
        A("v_lshlrev_b32 v2, 7, v0")
        A("v_min_u32 v2, L_end-L_pc, v2")
        A("v_and_b32 v2, 0xfffffffc, v2")
        A("global_load_dword v255, v2, s[4:5]")
    elif cfg.ctouch == 2:
        A("s_getpc_b64 s[4:5]")
        A.label("L_pc")
        A("s_lshr_b32 s3, s2, 3")
        A("s_lshl_b32 s3, s3, 11")
        A("v_lshrrev_b32 v2, 5, v0")
        A("v_lshl_add_u32 v2, v2, 7, s3")
        A("v_min_u32 v2, L_end-L_pc, v2")
        A("v_and_b32 v2, 0xfffffffc, v2")
        A("global_load_dword v255, v2, s[4:5]")
    if TS:
        A("s_memrealtime s[96:97]")
    if cfg.enc:
        A("s_memrealtime s[96:97]")
        if cfg.enc == "none":
            A("s_memrealtime s[94:95]")
        if cfg.encc:
            A("s_memtime s[92:93]")

    def enc(p):
        if cfg.enc == p:
            A("s_memrealtime s[94:95]" if not cfg.encc else "s_memtime s[94:95]")
    stamp()
    A("v_and_b32 v1, 63, v0")
    A("v_lshrrev_b32 v2, 6, v0")
    A(f"s_and_b32 s{sJ}, s2, 7")
    A(f"v_readfirstlane_b32 s{sWV}, v2")
    A(f"s_lshr_b32 s{sR}, s2, 3")
    A(f"s_cmp_lt_u32 s{sR}, 8")
    A("s_cbranch_scc1 L_helper")
    A(f"s_sub_u32 s{sR}, s{sR}, 8")
    A(f"s_mul_i32 s{sMT}, s{sR}, 21846")
    A(f"s_lshr_b32 s{sMT}, s{sMT}, 16")
    A(f"s_mul_i32 s{sT0}, s{sMT}, 3")
    A(f"s_sub_u32 s{sI}, s{sR}, s{sT0}")
    A(f"s_mul_i32 s{sWK}, s{sJ}, 24")
    A(f"s_add_u32 s{sWK}, s{sWK}, s{sR}")
    ROT = [int(c) for c in cfg.rot]
    ROTTAB = sum(r << (4 * m) for m, r in enumerate(ROT))
    sROT, sLO, sHI = 10, 11, 12
    if any(ROT):
        A(f"s_lshl_b32 s{sROT}, s{sMT}, 2")
        A(f"s_lshr_b32 s{sROT}, {ROTTAB}, s{sROT}")
        A(f"s_and_b32 s{sROT}, s{sROT}, 15")

    def rot_setup(sbase, stride):
        if any(ROT):
            A(f"s_mul_i32 s{sLO}, s{sROT}, {stride}")
            A(f"s_add_u32 s{sLO}, s{sLO}, s{sbase}")
            A(f"s_sub_u32 s{sHI}, s{sLO}, {9*stride}")

    def rot_addr(dst, sbase, t, stride, extra):
        if any(ROT):
            if t + max(ROT) < 9:
                A(f"s_add_u32 s{dst}, s{sLO}, {t*stride + extra}")
            else:
                A(f"s_cmp_lt_u32 s{sROT}, {9-t}")
                A(f"s_cselect_b32 s{dst}, s{sLO}, s{sHI}")
                A(f"s_add_u32 s{dst}, s{dst}, {t*stride + extra}")
        else:
            A(f"s_add_u32 s{dst}, s{sbase}, {t*stride + extra}")
    A(f"s_cmp_lt_u32 s{sWV}, 4")
    A("s_cbranch_scc1 L_compute")
    A(f"s_cmp_eq_u32 s{sWV}, 6")
    A("s_cbranch_scc1 L_xh")
    A(f"s_cmp_eq_u32 s{sWV}, 7")
    A("s_cbranch_scc1 L_h2")
    ts_base = tsn[0]

    def loader_stream(kinds, per_block, issue_fn, setup_fn, cap, group=False, validate=None, before_bar=None, role=None):
        mine = [blocks[nm] for nm in order if blocks[nm]["kind"] in kinds]
        outstanding, pend = [], list(mine)
        nb = lambda nm: blocks[nm]["n"] if blocks[nm]["kind"] == "extra" else (per_block(blocks[nm]) if callable(per_block) else per_block)
        cnt = lambda lst: sum(nb(x) for x in lst)

        def ok(b, q):
            if b["free"] + 2 > q:
                return False
            if b["kind"] in ("H1", "H2") and q < min(hfetch[b["lk"]], b["need"] - 1):
                return False
            return True

        def issue_upto(q, ahead, cap):
            n = 0
            lim = cum[q] + ahead if q >= 0 else ahead
            while pend and ok(pend[0], q):
                must = pend[0]["need"] <= q + 1 + (cfg.vpipe if pend[0]["kind"] in ("H1", "H2") else 0) or pend[0]["pos"] < lim
                if not must and n >= cap:
                    break
                grp = [pend.pop(0)]
                while group and pend and ok(pend[0], q) and pend[0]["need"] == grp[0]["need"] and len(grp) < 3 \
                        and (pend[0]["pos"] < lim or n + len(grp) < cap or pend[0]["need"] <= q + 1):
                    grp.append(pend.pop(0))
                need_n = sum(nb(x["name"]) for x in grp)
                if cnt(outstanding) + need_n > 63:
                    while cnt(outstanding) + need_n > 63:
                        del outstanding[0]
                    A(f"s_waitcnt vmcnt({cnt(outstanding)})")
                issue_fn(grp if group else grp[0])
                if cfg.verbose:
                    print(f"   after B{q}: " + " ".join(x["name"] for x in grp), file=sys.stderr)
                outstanding.extend(x["name"] for x in grp)
                n += len(grp)

        issue_upto(-1, cfg.first, 0)
        if cfg.ts0:
            stamp()
        if role == "w":
            enc("iss")
        A.tail(role)
        pr = cfg.priow if role == "w" else cfg.prioh
        if pr:
            A(f"s_setprio {pr}")
        setup_fn()
        issue_upto(-1, cfg.ahead0, 0)
        for q in range(NQ):
            assert not any(b["need"] <= q for b in pend), (q, pend[0])
            def wait_for(b):
                if b["name"] in outstanding:
                    idx = max(i for i, nm in enumerate(outstanding) if blocks[nm]["need"] <= q) if validate is None \
                        else outstanding.index(b["name"])
                    del outstanding[:idx + 1]
                    A(f"s_waitcnt vmcnt({cnt(outstanding)})")
            hs = []
            for b in mine:
                if b["need"] == q:
                    if validate is not None and b["kind"] != "X":
                        hs.append(b)
                    else:
                        wait_for(b)
            if validate is not None and cfg.vpipe:
                nxt = [b for b in mine if b["need"] == q + 1 and b["kind"] != "X" and b not in pend]
                if hs or nxt:
                    validate(hs, wait_for, nxt)
            elif hs:
                validate(hs, wait_for)
            if before_bar is not None:
                ex = before_bar(q)
                if ex:
                    nm = f"extra{A.uid()}"
                    blocks[nm] = dict(name=nm, kind="extra", n=ex, need=99)
                    outstanding.append(nm)
            if q in cfg.tsq:
                stamp()
            A("s_barrier")
            if role == "w":
                enc(f"B{q}")
            if q in cfg.pause:
                issue_upto(q, 0, 0)
            else:
                issue_upto(q, cfg.ahead if q < n_g1 or cfg.ahead2 < 0 else cfg.ahead2, 99 if q in cfg.burst else (cap if q >= cfg.capfrom else 0))
        assert not pend

    vRA, vRO, vRB, vRC, vRD, vRT, vRX, vRZ, vRG = 64, 65, 66, 72, 80, 112, 116, 117, 120
    sRI, sRO, sC = 60, 61, 13

    def vr(r, W):
        return f"v{r}" if W == 1 else f"v[{r}:{r+W-1}]"

    def dw(W):
        return "dword" if W == 1 else f"dwordx{W}"

    def red_pre(W):
        if W == 2:
            A(f"s_sub_u32 s{sC}, s{sWV}, 4")
            A(f"v_lshlrev_b32 v{vRA}, 3, v1")
            A(f"s_lshl_b32 s{sRO}, s{sC}, 6")
            A(f"s_lshl_b32 s{sRI}, s{sC}, 9")
            A(f"v_lshrrev_b32 v{vRT}, 4, v1")
            A(f"v_and_b32 v{vRT+1}, 1, v1")
            A(f"v_lshlrev_b32 v{vRT+1}, 3, v{vRT+1}")
            A(f"v_lshl_add_u32 v{vRT}, v{vRT}, 4, v{vRT+1}")
            A(f"v_bfe_u32 v{vRT+2}, v1, 1, 3")
            A(f"v_and_b32 v{vRT+3}, 7, v1")
            A(f"v_lshlrev_b32 v{vRT+3}, 2, v{vRT+3}")
        else:
            A(f"s_add_u32 s{sC}, s{sWV}, 8")
            A(f"v_lshlrev_b32 v{vRA}, 2, v1")
            A(f"s_lshl_b32 s{sRO}, s{sC}, 5")
            A(f"s_lshl_b32 s{sRI}, s{sC}, 8")
            A(f"v_lshrrev_b32 v{vRT}, 5, v1")
            A(f"v_and_b32 v{vRT+1}, 3, v1")
            A(f"v_lshlrev_b32 v{vRT+1}, 2, v{vRT+1}")
            A(f"v_lshl_add_u32 v{vRT}, v{vRT}, 4, v{vRT+1}")
            A(f"v_bfe_u32 v{vRT+2}, v1, 2, 3")
            A(f"v_and_b32 v{vRT+3}, 15, v1")
            A(f"v_lshlrev_b32 v{vRT+3}, 1, v{vRT+3}")
        A(f"s_mul_i32 s{sT1}, s{sI}, 384")
        A(f"s_add_u32 s{sRO}, s{sRO}, s{sT1}")
        if W == 2:
            srd(SRD2, sB2, 1152)
            A(f"buffer_load_{dw(W)} {vr(vRB, W)}, v{vRT}, s[{SRD2}:{SRD2+3}], s{sRO} offen")
        else:
            A(f"v_mov_b32 v{vRB}, v249")
        A(f"s_lshl_b32 s{sT1}, s{sJ}, 3")
        A(f"s_lshl_b32 s{sT3}, s{sMT}, 6")
        A(f"s_add_u32 s{sT1}, s{sT1}, s{sT3}")
        A(f"s_mul_i32 s{sT1}, s{sT1}, 1152")
        A(f"s_add_u32 s{sRO}, s{sRO}, s{sT1}")
        A(f"v_mul_u32_u24 v{vRT+2}, 1152, v{vRT+2}")
        A(f"v_add_u32 v{vRO}, v{vRT}, v{vRT+2}")
        A(f"s_mul_i32 s{sT1}, s{sWK}, {8*3072}")
        A(f"s_add_u32 s{sRI}, s{sRI}, s{sT1}")
        A(f"s_add_u32 s{sRI}, s{sRI}, {WS_IN}")
        slot_add(sRI)
        A(f"v_mov_b32 v{vRZ}, 0")
        A(f"v_lshrrev_b32 v{vRT+3}, v{vRT+3}, s{sTAG+1}")
        for k in range(W):
            A(f"v_bfe_u32 v{vRG+k}, v{vRT+3}, {2*k}, 2")
            A(f"v_mul_u32_u24 v{vRG+k}, 0x8001, v{vRG+k}")
        A(f"v_mov_b32 v{vRG+4}, 0x10001")
        A(f"v_mov_b32 v{vRG+5}, 0xffff0000")
        return 1

    def red_init(W):
        for k in range(W):
            A(f"v_lshlrev_b32 v{vRC+2*k}, 16, v{vRB+k}")
            A(f"v_and_b32 v{vRC+1+2*k}, v{vRG+5}, v{vRB+k}")

    def bb_w(q):
        if q == 2:
            epoch_fin()
        if q == cfg.rpq:
            return red_pre(2)
        if q == cfg.rpq + 3:
            red_init(2)

    A.head("w")
    sHW = sT5
    A(f"s_sub_u32 s{sHW}, s{sWV}, 4")
    A("v_lshrrev_b32 v2, 3, v1")
    A("v_and_b32 v3, 7, v1")
    A("v_bfe_u32 v4, v1, 4, 1")
    A("v_lshlrev_b32 v4, 2, v4")
    A("v_xor_b32 v3, v3, v4")
    A("v_lshlrev_b32 v3, 4, v3")
    A("v_lshrrev_b32 v4, 2, v2")
    A("v_and_b32 v5, 3, v2")
    A("v_lshl_add_u32 v4, v4, 3, v5")
    A(f"s_lshl_b32 s{sT0}, s{sHW}, 5")
    A(f"v_add_u32 v4, s{sT0}, v4")
    A("v_mul_u32_u24 v4, 9216, v4")
    A("v_add_u32 v4, v4, v3")
    for c in range(1, 4):
        A(f"v_add_u32 v{4+c}, {(16*(c>>1)+4*(c&1))*9216 - 1024*c}, v4")
    sLW, sC1 = sT4, 38
    A(f"s_lshl_b32 s{sLW}, s{sHW}, 12")
    A(f"s_mul_i32 s{sC1}, s{sJ}, 1152")
    A(f"s_mul_i32 s{sT1}, s{sI}, 384")
    A(f"s_add_u32 s{sC1}, s{sC1}, s{sT1}")
    rot_setup(sC1, 64*9216)
    if cfg.wt:
        A("v_and_b32 v12, 7, v1")
        A("v_lshrrev_b32 v13, 5, v1")
        A("v_lshl_add_u32 v12, v13, 6, v12")
        A("v_mul_u32_u24 v12, 9216, v12")
        A("v_bfe_u32 v13, v1, 3, 2")
        A("v_lshl_add_u32 v12, v13, 7, v12")
        A(f"s_lshl_b32 s{sT0}, s{sHW}, 4")
        A(f"s_add_u32 s{sT0}, s{sT0}, s{sMT}")
        A(f"s_mul_i32 s{sT0}, s{sT0}, {8*9216}")
        A(f"s_add_u32 s{sT0}, s{sT0}, s{sC1}")
        msk = [sum(0xffffff << (32 * h) for h in range(2) if 2 * w + h < cfg.wt) for w in range(2)]
        A(f"s_mov_b32 exec_lo, {msk[0] & 0xffffffff}")
        A(f"s_mov_b32 exec_hi, {msk[0] >> 32}")
        if msk[1] != msk[0]:
            A(f"s_cmp_eq_u32 s{sHW}, 0")
            A(f"s_cselect_b32 exec_lo, exec_lo, {(msk[1] & 0xffffffff) or 1}")
            A(f"s_cselect_b32 exec_hi, exec_hi, {msk[1] >> 32}")
    A("s_waitcnt lgkmcnt(0)")
    if cfg.ts0:
        stamp()
    srd(SRD0, sW1, 5308416)
    if cfg.wt:
        A(f"buffer_load_dword v255, v12, s[{SRD0}:{SRD0+3}], s{sT0} offen")
        A("s_mov_b64 exec, -1")
    sV = [62, 63, 59]

    def w2_setup():
        epoch_load(sMT)
        A(f"s_lshl_b32 s{sT0}, s{sHW}, 5")
        A(f"v_add_u32 v8, s{sT0}, v2")
        A("v_mul_u32_u24 v8, 1152, v8")
        A("v_add_u32 v8, v8, v3")
        for c in range(1, 4):
            A(f"v_add_u32 v{8+c}, {8*c*1152 - 1024*c}, v8")
        A(f"s_mul_i32 s39, s{sJ}, {576*1152}")
        A(f"s_mul_i32 s{sT0}, s{sI}, 384")
        A(f"s_add_u32 s39, s39, s{sT0}")
        for d in range(3):
            mod3add(sT1, d, sT2)
            A(f"s_mul_i32 s{sT1}, s{sT1}, {192*1152}")
            A(f"s_add_u32 s{sV[d]}, s39, s{sT1}")
        srd(SRD1, sW2, 5308416)

    def issue_w(grp):
        for b in grp:
            A(f"s_add_u32 m0, s{sLW}, {b['slot']*8192}")
            if b["kind"] == "W1":
                rot_addr(sT0, sC1, b['t'], 64*9216, 128*b['l'])
                vb, sr = 4, SRD0
            else:
                A(f"s_add_u32 s{sT0}, s{sV[b['d']]}, {64*b['lk']*1152 + 128*b['l']}")
                vb, sr = 8, SRD1
            for c in range(4):
                A(f"buffer_load_dwordx4 v{vb+c}, s[{sr}:{sr+3}], s{sT0} offen offset:{1024*c} {cfg.wfl} lds")

    loader_stream(("W1", "W2"), 4, issue_w, w2_setup, cfg.capw, group=True,
                  before_bar=bb_w, role="w")
    A("s_branch L_reduce")
    ts_max = tsn[0]

    sXB = 38
    sH = {1: 39, 2: 59}
    HALF = [0]

    def h_setup(half):
        A("v_lshlrev_b32 v12, 4, v1")
        A("v_add_u32 v13, 0x10000, v12")
        A("v_add_u32 v14, 0x20000, v12")
        A(f"s_sub_u32 s{sT0}, s{sWK}, s{sI}")
        for d in (1, 2):
            mod3add(sT1, d, sT2)
            A(f"s_add_u32 s{sT1}, s{sT1}, s{sT0}")
            A(f"s_mul_i32 s{sH[d]}, s{sT1}, 24576")
        srd(SRD1, sWS, 0x10000000)
        epoch_load(sMT)

    def issue_xh(b):
        for h in (range(2) if b["kind"] == "X" else HALF):
            A(f"s_mov_b32 m0, {b['slot']*8192 + 4096*h}")
            if b["kind"] == "X":
                rot_addr(sT0, sXB, b['t'], 128, 32*1152*h)
                for c in range(4):
                    A(f"buffer_load_dwordx4 v{8+c}, s[{SRD0}:{SRD0+3}], s{sT0} offen offset:{1024*c} lds")
            else:
                A(f"s_add_u32 s{sT0}, s{sH[b['d']]}, {WS_H + 8192*b['lk'] + 4096*h}")
                for c in range(4):
                    A(f"buffer_load_dwordx4 v12, s[{SRD1}:{SRD1+3}], s{sT0} offen offset:{1024*c} {cfg.hlf} lds")

    retry_code = []

    def validate(hs, wait_for):
        k = A.uid()

        def rd(i):
            addr = hs[i]["slot"] * 8192 + 4096 * HALF[0]
            for c in range(4):
                r = 128 + 16 * i + 4 * c
                A(f"ds_read_b128 v[{r}:{r+3}], v{12 + (addr >> 16)} offset:{(addr & 0xffff) + 1024*c}")

        def valu(i, later):
            for c in range(4):
                r = 128 + 16 * i + 4 * c
                A(f"s_waitcnt lgkmcnt({3-c+later})")
                for kk in range(4):
                    ac = 16 + ((kk + 2) & 3)
                    if i == 0 and c == 0:
                        A(f"v_xor_b32 v{ac}, v{r+kk}, v{25+kk}")
                    else:
                        A(f"v_bitop3_b32 v{ac}, v{ac}, v{r+kk}, v{25+kk} bitop3:0xf6")
        A.label(f"L_v{k}")
        for i in range(len(hs)):
            wait_for(hs[i])
            rd(i)
            if i:
                valu(i - 1, 4)
        valu(len(hs) - 1, 0)
        A("v_or3_b32 v16, v16, v17, v18")
        A("v_bitop3_b32 v16, v16, v19, v24 bitop3:0xa8")
        A("v_cmp_ne_u32 vcc, 0, v16")
        A(f"s_cbranch_vccnz L_vr{k}")
        A.label(f"L_vd{k}")
        n0 = len(A.L)
        A.label(f"L_vr{k}")
        A(f"s_cmp_gt_u32 s{sCNT}, {SPIN_MAX}")
        A(f"s_cbranch_scc1 L_vd{k}")
        for b in hs:
            issue_xh(b)
        A(f"s_add_u32 s{sCNT}, s{sCNT}, 1")
        A("s_waitcnt vmcnt(0)")
        A(f"s_branch L_v{k}")
        retry_code.extend(A.L[n0:])
        del A.L[n0:]

    hreg, hread = {}, set()

    def validate2(hs, wait_for, nxt):
        k = A.uid()

        def rd(b):
            i = hreg.setdefault(b["name"], len(hreg))
            addr = b["slot"] * 8192 + 4096 * HALF[0]
            for c in range(4):
                r = 128 + 16 * i + 4 * c
                A(f"ds_read_b128 v[{r}:{r+3}], v{12 + (addr >> 16)} offset:{(addr & 0xffff) + 1024*c}")
            hread.add((HALF[0], b["name"]))

        def do_nxt():
            for b in nxt:
                wait_for(b)
                rd(b)
        unread = [b for b in hs if (HALF[0], b["name"]) not in hread]
        for b in unread:
            wait_for(b)
            rd(b)
        later = 0
        if unread and 4 * (len(unread) + len(nxt)) <= 15:
            do_nxt()
            later = 4 * len(nxt)
            nxt = []
        if hs:
            A.label(f"L_v{k}")
            A(f"s_waitcnt lgkmcnt({later})")
            for i, b in enumerate(hs):
                for c in range(4):
                    r = 128 + 16 * hreg[b["name"]] + 4 * c
                    for kk in range(4):
                        ac = 16 + ((kk + 2) & 3)
                        if i == 0 and c == 0:
                            A(f"v_xor_b32 v{ac}, v{r+kk}, v{25+kk}")
                        else:
                            A(f"v_bitop3_b32 v{ac}, v{ac}, v{r+kk}, v{25+kk} bitop3:0xf6")
            A("v_or3_b32 v16, v16, v17, v18")
            A("v_bitop3_b32 v16, v16, v19, v24 bitop3:0xa8")
            A("v_cmp_ne_u32 vcc, 0, v16")
            A(f"s_cbranch_vccnz L_vr{k}")
            A.label(f"L_vd{k}")
            n0 = len(A.L)
            A.label(f"L_vr{k}")
            A(f"s_cmp_gt_u32 s{sCNT}, {SPIN_MAX}")
            A(f"s_cbranch_scc1 L_vd{k}")
            for b in hs:
                issue_xh(b)
            A(f"s_add_u32 s{sCNT}, s{sCNT}, 1")
            A("s_waitcnt vmcnt(0) lgkmcnt(0)")
            for b in hs:
                rd(b)
            A("s_waitcnt lgkmcnt(0)")
            A(f"s_branch L_v{k}")
            retry_code.extend(A.L[n0:])
            del A.L[n0:]
        do_nxt()

    if cfg.vpipe:
        validate = validate2

    def flush_retry():
        A.L.extend(retry_code)
        retry_code.clear()

    def bb_tag(q):
        if q == 2:
            epoch_fin()
            slot_add(sH[1], sH[2])
            tag_regs(25, 16)
            A(f"v_mov_b32 v24, {0x10001 if cfg.hlsb else 0x80008000}")
            A(f"s_mov_b32 s{sCNT}, 0")
        if q == cfg.rpq:
            return red_pre(2)
        if q == cfg.rpq + 3:
            red_init(2)

    A.head("x")
    A.label("L_xh")
    tsn[0] = ts_base
    A("v_lshrrev_b32 v2, 3, v1")
    A("v_and_b32 v3, 7, v1")
    A("v_lshrrev_b32 v4, 4, v1")
    A("v_xor_b32 v3, v3, v4")
    A("v_lshlrev_b32 v3, 4, v3")
    A("v_mul_u32_u24 v4, 1152, v2")
    A("v_add_u32 v8, v4, v3")
    A("v_xor_b32 v5, 64, v8")
    A(f"v_add_u32 v9, {8*1152 - 1024}, v5")
    A(f"v_add_u32 v10, {16*1152 - 2048}, v8")
    A(f"v_add_u32 v11, {24*1152 - 3072}, v5")
    A(f"s_mul_i32 s{sXB}, s{sMT}, {64*1152}")
    rot_setup(sXB, 128)

    def x_touch_pre(st0):
        A(f"s_mul_i32 s{sT0}, s{sI}, 22")
        A("v_and_b32 v12, 31, v1")
        A(f"v_add_u32 v12, s{sT0}, v12")
        A("v_min_u32 v12, 63, v12")
        A("v_mul_u32_u24 v12, 1152, v12")
        A("v_lshrrev_b32 v13, 5, v1")
        A("v_lshl_add_u32 v12, v13, 7, v12")
        A("s_mov_b32 exec_lo, 0x3fffff")
        A(f"s_mov_b32 exec_hi, {0x3fffff if cfg.wt > st0 + 1 else 0}")

    def x_touch(st0):
        A(f"buffer_load_dword v255, v12, s[{SRD0}:{SRD0+3}], s{sXB} offen offset:{128*st0}")
        A("s_mov_b64 exec, -1")
    if cfg.wt:
        x_touch_pre(0)
    A("s_waitcnt lgkmcnt(0)")
    if cfg.ts0:
        stamp()
    srd(SRD0, sX, 589824)
    if cfg.wt:
        x_touch(0)
    nbx = lambda b: 8 if b["kind"] == "X" else 4
    loader_stream(("X", "H1", "H2"), nbx, issue_xh, lambda: h_setup(0), cfg.capx, validate=validate, before_bar=bb_tag, role="x")
    if TS:
        A(f"s_mov_b32 s{sTS+24}, s{sCNT}")
    A("s_branch L_reduce")
    flush_retry()
    ts_max = max(ts_max, tsn[0])

    A.head("h2")
    A.label("L_h2")
    tsn[0] = ts_base
    if cfg.wt > 2:
        A(f"s_mul_i32 s{sXB}, s{sMT}, {64*1152}")
        x_touch_pre(2)
    if cfg.xpre:
        A("v_lshlrev_b32 v2, 7, v1")
        A(f"s_mul_i32 s{sT0}, s{sWK}, 3072")
        A("s_mov_b64 exec, 0xffffff")
    A("s_waitcnt lgkmcnt(0)")
    if cfg.xpre:
        srd(SRD0, sX, 589824)
        A(f"buffer_load_dword v255, v2, s[{SRD0}:{SRD0+3}], s{sT0} offen")
        A("s_mov_b64 exec, -1")
    if cfg.wt > 2:
        srd(SRD0, sX, 589824)
        x_touch(2)
    srd(SRD1, sWS, 0x10000000)
    if cfg.hpre == 3:
        A("v_lshlrev_b32 v3, 7, v1")
        A(f"s_mul_i32 s{sT1}, s{sWK}, 24576")
        A(f"s_add_u32 s{sT1}, s{sT1}, {WS_H}")
        for c in range(3):
            A(f"buffer_load_dword v255, v3, s[{SRD1}:{SRD1+3}], s{sT1} offen")
            A(f"s_add_u32 s{sT1}, s{sT1}, 8192")

    def w7_touch():
        st = list(range(cfg.ta, cfg.ta + cfg.tn))
        srd(SRD0, sX, 589824)
        srd(SRD2, sW1, 5308416)
        A(f"s_mul_i32 s{sXB}, s{sMT}, {64*1152}")
        A(f"s_mul_i32 s{sT0}, s{sI}, 22")
        A("v_and_b32 v2, 31, v1")
        A(f"v_add_u32 v2, s{sT0}, v2")
        A("v_min_u32 v2, 63, v2")
        A("v_mul_u32_u24 v2, 1152, v2")
        A("v_lshrrev_b32 v4, 5, v1")
        A("v_lshl_add_u32 v2, v4, 7, v2")
        A("v_and_b32 v3, 7, v1")
        A("v_lshl_add_u32 v3, v4, 6, v3")
        A("v_mul_u32_u24 v3, 9216, v3")
        A("v_bfe_u32 v4, v1, 3, 2")
        A("v_lshl_add_u32 v3, v4, 7, v3")
        A(f"s_mul_i32 s{sT0}, s{sMT}, {8*9216}")
        A(f"s_mul_i32 s{sT1}, s{sJ}, 1152")
        A(f"s_add_u32 s{sT0}, s{sT0}, s{sT1}")
        A(f"s_mul_i32 s{sT1}, s{sI}, 384")
        A(f"s_add_u32 s{sT0}, s{sT0}, s{sT1}")
        for p in range(0, len(st), 2):
            two = p + 1 < len(st)
            A(f"s_add_u32 s{sT1}, s{sT0}, {st[p]*64*9216}")
            A("s_mov_b32 exec_lo, 0xffffff")
            A(f"s_mov_b32 exec_hi, {0xffffff if two else 0}")
            A(f"buffer_load_dword v255, v3, s[{SRD2}:{SRD2+3}], s{sT1} offen")
            A("s_mov_b32 exec_lo, 0x3fffff")
            A(f"s_mov_b32 exec_hi, {0x3fffff if two else 0}")
            A(f"buffer_load_dword v255, v2, s[{SRD0}:{SRD0+3}], s{sXB} offen offset:{128*st[p]}")
        A("s_mov_b64 exec, -1")
    if cfg.tn and cfg.tpos == 0:
        w7_touch()

    def bb_h2(q):
        if cfg.tn and cfg.tpos == 1 and q == 0:
            A("s_waitcnt lgkmcnt(0)")
            w7_touch()
        if cfg.tn and cfg.tpos >= 2 and q == cfg.tpos - 1:
            w7_touch()
        if cfg.tn and q == 7:
            A("s_waitcnt vmcnt(0)")
        if q == 2 and (cfg.hpre == 3 or cfg.wt > 2):
            A("s_waitcnt vmcnt(0)")
        if cfg.vt and q == 5:
            A(f"s_add_u32 s{sT0}, s{sI}, 1")
            A(f"s_mul_i32 s{sT0}, s{sT0}, 192")
            A(f"s_mul_i32 s{sT1}, s{sMT}, 48")
            A(f"s_add_u32 s{sT0}, s{sT0}, s{sT1}")
            A(f"s_cmp_ge_u32 s{sT0}, 576")
            A(f"s_cselect_b32 s{sT1}, 576, 0")
            A(f"s_sub_u32 s{sT0}, s{sT0}, s{sT1}")
            A(f"s_mul_i32 s{sT1}, s{sJ}, 576")
            A(f"s_add_u32 s{sT0}, s{sT0}, s{sT1}")
            A(f"s_mul_i32 s15, s{sT0}, 1152")
            A(f"s_mul_i32 s{sT1}, s{sI}, 384")
            A(f"s_add_u32 s15, s15, s{sT1}")
            A("v_mul_u32_u24 v5, 1152, v1")
            srd(SRD0, sW2, 5308416)
        ex = 0
        if cfg.vt and q == cfg.vtq:
            A("s_mov_b32 exec_hi, 0xffff")
            for l in range(3 - cfg.vt, 3):
                A(f"buffer_load_dword v255, v5, s[{SRD0}:{SRD0+3}], s15 offen offset:{128*l}")
            A("s_mov_b64 exec, -1")
            ex = cfg.vt
        return (bb_tag(q) or 0) + ex

    HALF[0] = 1
    loader_stream(("H1", "H2"), nbx, issue_xh, lambda: h_setup(1), cfg.capx, validate=validate, before_bar=bb_h2, role="h2")
    ts_max = max(ts_max, tsn[0])
    A("s_branch L_reduce")
    flush_retry()

    A.tail("red")
    sM, sQ = sT5, sT4
    sVC = 16

    def reduce_code(W, nbar):
        x = f"{W}"
        srd(SRD1, sWS, 0x10000000)
        A(f"s_mov_b32 s{sCNT}, 0")
        srd(SRD0, sOUT, 589824)
        if W == 1:
            red_pre(1)
            red_init(1)
            A(f"s_waitcnt vmcnt({cfg.rw1})")
            if cfg.rlate == 1:
                A("s_barrier")

        def ld(s_):
            A(f"s_add_u32 s{sT1}, s{sRI}, {3072*s_}")
            A(f"buffer_load_{dw(W)} {vr(vRD+W*s_, W)}, v{vRA}, s[{SRD1}:{SRD1+3}], s{sT1} offen {cfg.rfl}")
        if W == 2 and cfg.r0early and nbar:
            A(f"s_cmp_ge_u32 s{sC}, 2")
            A("s_cbranch_scc1 L_rlate")
            stamp()
            tsn[0] -= 1 if TS else 0
            for s_ in range(8):
                ld(s_)
            A("s_barrier")
            A("s_branch L_rfirst")
            A.label("L_rlate")
        for _ in range(nbar):
            A("s_barrier")
        stamp()
        enc("rbar")

        def chk_i(s_, dst, t):
            r = vRD + W * s_
            if W == 1:
                o = [f"v_bitop3_b32 v{t}, v{r}, v{vRG}, v{vRG+4} bitop3:0x28"]
            else:
                o = [f"v_xor_b32 v{t}, v{r}, v{vRG}"]
                for k in range(1, W):
                    o.append(f"v_bitop3_b32 v{t}, v{t}, v{r+k}, v{vRG+k} bitop3:0xf6")
                o.append(f"v_and_b32 v{t}, v{vRG+4}, v{t}")
            o.append(f"v_cmp_ne_u32 {dst}, 0, v{t}")
            return o

        def acc_i(s_, t0):
            r = vRD + W * s_
            o = []
            for k in range(W):
                t = t0 + 2 * k
                o.append(f"v_lshlrev_b32 v{t}, 16, v{r+k}")
                o.append(f"v_and_b32 v{t+1}, v{vRG+5}, v{r+k}")
            for k in range(W):
                t = t0 + 2 * k
                o.append(f"v_pk_add_f32 v[{vRC+2*k}:{vRC+1+2*k}], v[{vRC+2*k}:{vRC+1+2*k}], v[{t}:{t+1}]")
            return o

        def masked(sm, fn, tag):
            for g in range(2):
                A(f"s_and_b32 s{sT0}, s{sm}, {0xf << (4*g)}")
                A(f"s_cbranch_scc0 L_{tag}{x}g{g}")
                for s_ in range(4 * g, 4 * g + 4):
                    A(f"s_bitcmp0_b32 s{sm}, {s_}")
                    A(f"s_cbranch_scc1 L_{tag}{x}s{s_}")
                    fn(s_)
                    A.label(f"L_{tag}{x}s{s_}")
                A.label(f"L_{tag}{x}g{g}")

        for s_ in range(8):
            ld(s_)
        for _ in range(nbar, cfg.rnb if W != 1 else 0):
            A("s_barrier")
        if W == 1 and cfg.rlate == 2:
            A("s_barrier")
        if W == 2:
            A.label("L_rfirst")
        for s_ in range(8):
            A(f"s_waitcnt vmcnt({7-s_})")
            c = chk_i(s_, f"s[{sVC+2*s_}:{sVC+2*s_+1}]", vRX)
            a_ = acc_i(s_, vRT)
            while c or a_:
                if c:
                    A(c.pop(0))
                if a_:
                    A(a_.pop(0))
            if s_ >= 2:
                A(f"s_or_b64 vcc, {'s[16:17]' if s_ == 2 else 'vcc'}, s[{sVC+2*s_-2}:{sVC+2*s_-1}]")
        A(f"s_or_b64 vcc, vcc, s[{sVC+14}:{sVC+15}]")
        A(f"s_cbranch_scc0 L_rdone{x}")
        A(f"s_mov_b32 s{sM}, 0")
        for s_ in range(7, -1, -1):
            A(f"s_cmp_lg_u64 s[{sVC+2*s_}:{sVC+2*s_+1}], 0")
            A(f"s_addc_u32 s{sM}, s{sM}, s{sM}")
        A(f"s_xor_b32 s{sQ}, s{sM}, 0xff")
        red_init(W)
        A.label(f"L_rtop{x}")
        masked(sM, ld, "rl")
        masked(sQ, lambda s_: [A(t) for t in acc_i(s_, vRT)], "ra")
        A(f"s_add_u32 s{sCNT}, s{sCNT}, 1")
        A(f"s_mov_b32 s{sQ}, s{sM}")
        A(f"s_cmp_gt_u32 s{sCNT}, {SPIN_MAX}")
        A(f"s_cbranch_scc1 L_rdone{x}")
        A("s_waitcnt vmcnt(0)")

        def chk2(s_):
            for t in chk_i(s_, "vcc", vRX):
                A(t)
            A(f"s_cbranch_vccnz L_rc{x}s{s_}")
            A(f"s_bitset0_b32 s{sM}, {s_}")
            for t in acc_i(s_, vRT):
                A(t)
        masked(sQ, chk2, "rc")
        A(f"s_mov_b32 s{sQ}, 0")
        A(f"s_cmp_lg_u32 s{sM}, 0")
        A(f"s_cbranch_scc1 L_rtop{x}")
        A.label(f"L_rdone{x}")
        stamp()
        enc("rdone")
        for k in range(W):
            A(f"v_cvt_pk_bf16_f32 v{vRC+k}, v{vRC+2*k}, v{vRC+1+2*k}")
        if cfg.owide:
            A("s_nop 1")
            if W == 1:
                for k in range(1, 4):
                    A(f"v_mov_b32_dpp v{vRC+k}, v{vRC} quad_perm:[{k},{k},{k},{k}] row_mask:0xf bank_mask:0xf")
                m = 0x11111111
            else:
                for k in range(2):
                    A(f"v_mov_b32_dpp v{vRC+2+k}, v{vRC+k} quad_perm:[1,1,3,3] row_mask:0xf bank_mask:0xf")
                m = 0x55555555
            A(f"s_mov_b32 exec_lo, {m}")
            A(f"s_mov_b32 exec_hi, {m}")
            A(f"buffer_store_dwordx4 v[{vRC}:{vRC+3}], v{vRO}, s[{SRD0}:{SRD0+3}], s{sRO} offen {cfg.ofl if W > 1 else cfg.ofl1}")
            A("s_mov_b64 exec, -1")
        else:
            A(f"buffer_store_{dw(W)} {vr(vRC, W)}, v{vRO}, s[{SRD0}:{SRD0+3}], s{sRO} offen {cfg.ofl if W > 1 else cfg.ofl1}")
        if TS:
            A(f"s_mov_b32 s{sWS}, s{SRD1}")
            A(f"s_mov_b32 s{sWS+1}, s{SRD1+1}")

    A.label("L_reduce")
    tsn[0] = ts_max
    reduce_code(2, cfg.rb2)
    A(f"s_or_b32 s{sT0}, s{sJ}, s{sI}")
    A(f"s_or_b32 s{sT0}, s{sT0}, s{sC}")
    A(f"s_cmp_lg_u32 s{sT0}, 0")
    A("s_cbranch_scc1 L_noep")
    A(f"v_mov_b32 v16, s{sTAG}")
    A(f"s_lshl_b32 s{sT0}, s{sMT}, 7")
    A(f"s_add_u32 s{sT0}, s{sT0}, {WS_EP}")
    A("s_mov_b64 exec, 1")
    A(f"buffer_store_dword v16, v{vRZ}, s[{SRD1}:{SRD1+3}], s{sT0} offen sc1")
    A("s_mov_b64 exec, -1")
    A.label("L_noep")
    if cfg.enc:
        if cfg.enc == "end":
            A("s_waitcnt vmcnt(0)")
            enc("end")
        if cfg.encw >= 0:
            A(f"s_cmp_lg_u32 s{sWV}, {cfg.encw}")
            A("s_cbranch_scc1 L_end")
        A("s_waitcnt lgkmcnt(0)")
        if cfg.encc:
            A("s_sub_u32 s94, s94, s92")
            A("s_lshr_b32 s94, s94, 1")
        else:
            A("s_sub_u32 s94, s94, s96")
            A(f"s_mul_i32 s94, s94, {cfg.encm}")
        A("s_add_u32 s94, s94, 3000")
        A.label("L_dly")
        A("s_memrealtime s[98:99]")
        A("s_waitcnt lgkmcnt(0)")
        A("s_sub_u32 s98, s98, s96")
        A("s_cmp_lt_u32 s98, s94")
        A("s_cbranch_scc1 L_dly")
    if TS:
        A("s_waitcnt vmcnt(0)")
        stamp()
        A("s_memrealtime s[98:99]")
        A("s_waitcnt lgkmcnt(0)")
        A(f"s_mov_b32 s{sTS+26}, s96"); A(f"s_mov_b32 s{sTS+28}, s98"); A(f"s_mov_b32 s{sTS+30}, s{sCNT}")
        assert tsn[0] <= 12
        tsn[0] = 16
        stamp_flush()
    A("s_branch L_end")

    A.head("c")
    A.label("L_compute")
    tsn[0] = ts_base
    vACC, vAB, vXB, vT = 16, 64, 96, 240
    nAB = D + 1
    vA, vBX, vBH, vHW = [2, 3, 4], [5, 6, 7, 8], [9, 10, 11], [12, 13, 14]
    vTG, vL16 = vT + 11, vT + 10
    assert vAB + 4 * nAB <= vXB
    sA, sBq = sT4, sT5
    A(f"s_and_b32 s{sA}, s{sWV}, 1")
    A(f"s_lshr_b32 s{sBq}, s{sWV}, 1")
    A(f"v_lshrrev_b32 v{vT}, 5, v1")
    A(f"s_mul_i32 s60, s{sJ}, 1152")
    A(f"s_mul_i32 s{sT1}, s{sI}, 384")
    A(f"s_add_u32 s60, s60, s{sT1}")
    A(f"s_lshl_b32 s{sT1}, s{sBq}, 6")
    A(f"s_add_u32 s61, s60, s{sT1}")
    A(f"v_lshlrev_b32 v{vT+4}, 3, v{vT}")
    if cfg.sa:
        A(f"s_add_u32 s{sT3}, s{sWV}, 1")
        A(f"v_and_b32 v{vT+5}, 7, v1")
        A(f"v_mul_u32_u24 v{vT+5}, 9216, v{vT+5}")
        A(f"v_lshrrev_b32 v{vT+6}, 3, v1")
        A(f"v_min_u32 v{vT+6}, 2, v{vT+6}")
        A(f"v_lshl_add_u32 v{vT+5}, v{vT+6}, 7, v{vT+5}")
        A(f"s_lshl_b32 s{sT1}, s{sT3}, 3")
        A(f"s_add_u32 s{sT1}, s{sT1}, s{sMT}")
        A(f"s_mul_i32 s{sT1}, s{sT1}, {8*9216}")
        A(f"s_add_u32 s{sT1}, s{sT1}, s60")
        A(f"s_mul_i32 s{sT2}, s{sI}, 22")
        A(f"v_min_u32 v{vT+6}, 21, v1")
        A(f"v_add_u32 v{vT+6}, s{sT2}, v{vT+6}")
        A(f"v_min_u32 v{vT+6}, 63, v{vT+6}")
        A(f"v_mul_u32_u24 v{vT+6}, 1152, v{vT+6}")
        A(f"s_mul_i32 s{sT2}, s{sMT}, {64*1152}")
        A(f"s_lshl_b32 s{sT3}, s{sT3}, 7")
        A(f"s_add_u32 s{sT2}, s{sT2}, s{sT3}")
    A("s_waitcnt lgkmcnt(0)")
    srd(SRD0, sB1, 9216)
    for l in range(3):
        for g in range(4):
            r = vXB + 2 * (4 * l + g)
            A(f"buffer_load_dwordx2 v[{r}:{r+1}], v{vT+4}, s[{SRD0}:{SRD0+3}], s61 offen offset:{128*l+16*g}")
    if cfg.sa:
        srd(SRD1, sW1, 5308416)
        srd(SRD2, sX, 589824)
        A(f"s_cmp_ge_u32 s{sWV}, {cfg.sa}")
        A("s_cbranch_scc1 L_tdone")
        A(f"buffer_load_dword v255, v{vT+5}, s[{SRD1}:{SRD1+3}], s{sT1} offen {cfg.tfl}")
        A(f"buffer_load_dword v255, v{vT+6}, s[{SRD2}:{SRD2+3}], s{sT2} offen")
        A.label("L_tdone")
    epoch_load(sMT)
    A.tail("c")
    srd(SRD2, sB2, 1152)
    A(f"v_and_b32 v{vT+1}, 3, v1")
    A(f"v_lshlrev_b32 v{vT+1}, 2, v{vT+1}")
    A(f"v_lshl_add_u32 v{vT+1}, v{vT}, 4, v{vT+1}")
    A(f"s_mul_i32 s{sT1}, s{sI}, 384")
    A(f"s_lshl_b32 s{sT0}, s{sWV}, 5")
    A(f"s_add_u32 s{sT1}, s{sT1}, s{sT0}")
    A(f"buffer_load_dword v249, v{vT+1}, s[{SRD2}:{SRD2+3}], s{sT1} offen offset:256")
    srd(SRD1, sWS, 0x10000000)
    A(f"v_bfe_u32 v{vT+1}, v1, 2, 2")
    A(f"v_lshl_add_u32 v{vT+2}, v{vT}, 2, v{vT+1}")
    A(f"v_lshlrev_b32 v{vT+2}, 7, v{vT+2}")
    A(f"v_bfe_u32 v{vT+3}, v1, 3, 1")
    A(f"v_xor_b32 v{vT+3}, s{sBq}, v{vT+3}")
    A(f"v_lshl_add_u32 v{vT+2}, v{vT+3}, 6, v{vT+2}")
    A(f"v_bfe_u32 v{vT+3}, v1, 4, 1")
    A(f"v_lshl_add_u32 v{vT+2}, v{vT+3}, 5, v{vT+2}")
    A(f"v_and_b32 v{vT+3}, 3, v1")
    A(f"v_lshl_add_u32 v{vA[0]}, v{vT+3}, 3, v{vT+2}")
    A(f"v_add_u32 v{vA[1]}, 0x10000, v{vA[0]}")
    A(f"v_add_u32 v{vA[2]}, 0x20000, v{vA[0]}")
    A(f"v_and_b32 v{vT+1}, 31, v1")
    A(f"v_bfe_u32 v{vT+2}, v1, 1, 3")
    A(f"v_xor_b32 v{vT+2}, v{vT}, v{vT+2}")
    A(f"v_lshlrev_b32 v{vT+2}, 4, v{vT+2}")
    A(f"v_lshl_add_u32 v{vT+2}, v{vT+1}, 7, v{vT+2}")
    A(f"s_lshl_b32 s{sT0}, s{sA}, 12")
    A(f"s_add_u32 s{sT1}, s{sT0}, 0x20000")
    A(f"v_add_u32 v{vBX[0]}, s{sT1}, v{vT+2}")
    for sp in range(1, 4):
        A(f"v_xor_b32 v{vBX[sp]}, {32*sp}, v{vBX[0]}")
    A(f"v_lshl_add_u32 v{vBH[0]}, v1, 4, s{sT0}")
    A(f"v_add_u32 v{vBH[1]}, 0x10000, v{vBH[0]}")
    A(f"v_add_u32 v{vBH[2]}, 0x20000, v{vBH[0]}")
    A(f"s_lshl_b32 s{sT1}, s{sBq}, 11")
    for k in range(3):
        A(f"v_add_u32 v{vHW[k]}, s{sT1}, v{vBH[k]}")
    sI0 = 38
    sMS, sML, sMC = 39, 63, 59
    sHS = [60, 61, 62]
    A(f"s_mul_i32 s{sI0}, s{sA}, 96")
    A(f"s_add_u32 s{sI0}, s{sI0}, s{sR}")
    A(f"s_lshl_b32 s{sI0}, s{sI0}, 3")
    A(f"s_add_u32 s{sI0}, s{sI0}, s{sJ}")
    A(f"s_mul_i32 s{sI0}, s{sI0}, 3072")
    A(f"s_add_u32 s{sI0}, s{sI0}, {WS_IN}")
    A(f"s_lshl_b32 s{sT1}, s{sBq}, 9")
    A(f"s_add_u32 s{sI0}, s{sI0}, s{sT1}")
    A(f"v_bfe_u32 v{vT+1}, v1, 3, 2")
    A(f"v_mul_u32_u24 v{vT+1}, {24*8*3072}, v{vT+1}")
    A(f"v_and_b32 v{vT+2}, 7, v1")
    A(f"v_lshl_add_u32 v{vT+1}, v{vT+2}, 4, v{vT+1}")
    A(f"v_lshl_add_u32 v{vL16}, v{vT}, 7, v{vT+1}")
    A(f"s_mov_b32 s{sMS}, 0x80008000")
    A(f"s_mov_b32 s{sML}, 0x00010001")
    A(f"s_mov_b32 s{sMC}, 0x7fff7fff")
    A(f"s_mul_i32 s{sHS[0]}, s{sWK}, 24576")
    if WS_H:
        A(f"s_add_u32 s{sHS[0]}, s{sHS[0]}, {WS_H}")
    A(f"s_add_u32 s{sHS[1]}, s{sHS[0]}, 8192")
    A(f"s_add_u32 s{sHS[2]}, s{sHS[0]}, 16384")
    def dummy(n, tag):
        if not n:
            return
        for k in range(8):
            A(f"v_mul_u32_u24 v{160+k}, {0x9e3779 + 77*k}, v0")
            A(f"v_and_b32 v{160+k}, 0x3fff3fff, v{160+k}")
        A(f"s_mov_b32 s15, {n // 4}")
        A.label(f"L_dum{tag}")
        for k in range(4):
            A(f"v_mfma_f32_32x32x16_bf16 v[{176+16*k}:{191+16*k}], v[{160+4*(k&1)}:{163+4*(k&1)}], v[{160+4*(k>>1)}:{163+4*(k>>1)}], 0")
        A("s_sub_u32 s15, s15, 1")
        A("s_cmp_lg_u32 s15, 0")
        A(f"s_cbranch_scc1 L_dum{tag}")
    dummy(cfg.dum1, "a")
    epoch_fin()
    slot_add(sI0, *sHS)
    tag_regs(vTG, vT + 1)
    assert not cfg.sa
    A("s_waitcnt vmcnt(1)")
    if cfg.sa:
        A(f"s_cmp_lt_u32 s{sWV}, {cfg.sa}")
        A("s_cbranch_scc1 L_bw")
        A("s_waitcnt vmcnt(0)")
        A.label("L_bw")
    for l in range(3):
        for g in range(4):
            r = vXB + 2 * (4 * l + g)
            d = vACC + 16 * l + 4 * g
            A(f"v_lshlrev_b32 v{d}, 16, v{r}")
            A(f"v_and_b32 v{d+1}, 0xffff0000, v{r}")
            A(f"v_lshlrev_b32 v{d+2}, 16, v{r+1}")
            A(f"v_and_b32 v{d+3}, 0xffff0000, v{r+1}")
    dummy(cfg.dum2, "b")
    stamp()

    items = []
    for st in stages:
        bykb = {}
        for u in st["units"]:
            bykb.setdefault(u[2], []).append(u)
        for kb, us in bykb.items():
            if st["q"] == n_g1 - 1 and cfg.tm:
                seq = [int(c) for c in cfg.tm]
                nsp = {0: 0, 1: 0, 2: 0}
                for t_ in seq:
                    (t, wb, _kb, fst) = [u for u in us if u[0] == t_][0]
                    items.append(dict(q=st["q"], tile=t, wb=wb, kb=kb, sp=nsp[t], first=False))
                    nsp[t] += 1
                assert all(v == 4 for v in nsp.values())
                continue
            if len(us) == 2 and cfg.chain:
                for (t, wb, _kb, fst) in us:
                    for sp in range(4):
                        items.append(dict(q=st["q"], tile=t, wb=wb, kb=kb, sp=sp, first=(fst and sp == 0)))
                continue
            for sp in range(4):
                for (t, wb, _kb, fst) in us:
                    items.append(dict(q=st["q"], tile=t, wb=wb, kb=kb, sp=sp, first=(fst and sp == 0)))
    NI = len(items)
    aux_used = set()
    if cfg.dual:
        own_end = max(n for n, it in enumerate(items) if it["q"] >= n_g1 and it["kb"] < 3)
        assert all(kbidx[(0, l)] < 3 for l in range(3))
        for n, it in enumerate(items):
            if n > own_end + 1 and items[n - 1]["tile"] == it["tile"]:
                it["first"] = it["tile"] not in aux_used
                aux_used.add(it["tile"])
                it["tile"] += 3

    def accbase(t):
        return vACC + 16 * t if t < 3 else vXB + 16 * (t - 3)
    last_item = {}
    for n, it in enumerate(items):
        last_item[it["q"]] = n
    bread_of = {(st["q"], kb): bb for st in stages for (bb, kb) in st["breads"]}
    lg = []

    def ds_issue(instr, tag):
        cap = 14 if TS else 15
        if len(lg) >= cap:
            A(f"s_waitcnt lgkmcnt({cap-2})")
            del lg[:len(lg) - (cap - 2)]
        A(instr)
        lg.append(tag)

    def ds_need(tags):
        idx = max([i for i, t in enumerate(lg) if t in tags], default=-1)
        if idx >= 0:
            A(f"s_waitcnt lgkmcnt({len(lg) - 1 - idx})")
            del lg[:idx + 1]

    checked = [-1]
    bdone = set()
    dirty, clean_pos = {}, {}

    def clean(m):
        key = (items[m]["kb"], items[m]["sp"])
        if key in dirty and dirty[key] == m:
            del dirty[key]
            ds_need({("B",) + key})
            r = vXB + 16 * key[0] + 4 * key[1]
            for k in range(4):
                A(f"v_and_b32 v{r+k}, s{sMC}, v{r+k}")
            clean_pos[m] = len(A.L) - 1

    def issue_reads(n):
        it = items[n]
        q = it["q"]
        if q > checked[0]:
            ds_need({"hw"})
            A("s_barrier")
            checked[0] = q
            if q in cfg.tsq:
                stamp()
        key = (q, it["kb"])
        if key in bread_of and (key, it["sp"]) not in bdone:
            bdone.add((key, it["sp"]))
            bb = blocks[bread_of[key]]
            addr = bb["slot"] * 8192
            r = vXB + 16 * it["kb"] + 4 * it["sp"]
            if bb["kind"] == "X":
                assert addr >> 16 == 2
                ds_issue(f"ds_read_b128 v[{r}:{r+3}], v{vBX[it['sp']]} offset:{addr & 0xffff}", ("B", it["kb"], it["sp"]))
            else:
                ds_issue(f"ds_read_b128 v[{r}:{r+3}], v{vBH[addr >> 16]} offset:{(addr & 0xffff) + 1024*it['sp']}",
                         ("B", it["kb"], it["sp"]))
                if bb["kind"] != "Hown":
                    if not cfg.hlsb:
                        dirty[(it["kb"], it["sp"])] = n
        wb = blocks[it["wb"]]
        addr = wb["slot"] * 8192 + 2048 * it["sp"]
        r = vAB + 4 * (n % nAB)
        ds_issue(f"ds_read_b64_tr_b16 v[{r}:{r+1}], v{vA[addr >> 16]} offset:{addr & 0xffff}", ("A", n))
        ds_issue(f"ds_read_b64_tr_b16 v[{r+2}:{r+3}], v{vA[addr >> 16]} offset:{(addr & 0xffff) + 1024}", ("A", n))

    post = []

    def epi1_instrs(pi, lines):
        out, late = [], []
        for l in lines:
            a = vACC + 16 * l
            addr = blocks[f"H0_{l}"]["slot"] * 8192
            for half in range(2):
                base = a + 8 * half
                if cfg.epi == 1:
                    assert cfg.hlsb
                    for k in range(8):
                        out.append(("v", f"v_mul_f32 v{base+k}, v{base+k}, |v{base+k}|"))
                    for k in range(4):
                        out.append(("v", f"v_cvt_pk_bf16_f32 v{base+k}, v{base+2*k}, v{base+2*k+1}"))
                    for k in range(4):
                        out.append(("v", f"v_pk_max_i16 v{base+k}, v{base+k}, 0"))
                else:
                    for k in range(8):
                        out.append(("v", f"v_max_f32 v{base+k}, 0, v{base+k}"))
                    for k in range(0, 8, 2):
                        out.append(("v", f"v_pk_mul_f32 v[{base+k}:{base+k+1}], v[{base+k}:{base+k+1}], v[{base+k}:{base+k+1}]"))
                    for k in range(4):
                        out.append(("v", f"v_cvt_pk_bf16_f32 v{base+k}, v{base+2*k}, v{base+2*k+1}"))
                for k in range(4):
                    out.append(("v", f"v_bfi_b32 v{base+4+k}, s{sML}, v{vTG+k}, v{base+k}" if cfg.hlsb else
                                f"v_and_or_b32 v{base+4+k}, v{vTG+k}, s{sMS}, v{base+k}"))
                out.append(("v", f"buffer_store_dwordx4 v[{base+4}:{base+7}], v{vHW[0]}, s[{SRD1}:{SRD1+3}], s{sHS[l]} offen offset:{1024*half} {cfg.hsf}"))
                out.append(("w", f"ds_write_b128 v{vHW[addr >> 16]}, v[{base}:{base+3}] offset:{(addr & 0xffff) + 1024*half}"))
                t = ("v", f"buffer_load_dword v255, v{vHW[0]}, s[{SRD1}:{SRD1+3}], s{sHS[l]} offen offset:{1024*half} {cfg.stf}")
                if cfg.stouch == 1:
                    out.append(t)
                elif cfg.stouch == 2:
                    late.append(t)
                elif cfg.stouch == 3:
                    post.append(t)
        return out + late

    def epi2_instrs(lines):
        out = []
        for l in lines:
            for u in range(2):
                base = vACC + 8 * (2 * l + u)
                if l in aux_used:
                    ab = accbase(l + 3) + 8 * u
                    for k in range(0, 8, 2):
                        out.append(("v", f"v_pk_add_f32 v[{base+k}:{base+k+1}], v[{base+k}:{base+k+1}], v[{ab+k}:{ab+k+1}]"))
                for k in range(4):
                    out.append(("v", f"v_cvt_pk_bf16_f32 v{base+k}, v{base+2*k}, v{base+2*k+1}"))
                out.append(("v", "s_nop 1"))
                out.append(("v", f"v_permlane32_swap_b32 v{base}, v{base+2}"))
                out.append(("v", f"v_permlane32_swap_b32 v{base+1}, v{base+3}"))
                for k in (0, 2, 1, 3):
                    out.append(("v", f"v_bfi_b32 v{base+k}, s{sML}, v{vTG+k}, v{base+k}"))
                out.append(("v", f"buffer_store_dwordx4 v[{base}:{base+3}], v{vL16}, s[{SRD1}:{SRD1+3}], s{sI0} offen offset:{1024*l+256*u} {cfg.psf}"))
        return out

    fillers = []
    fill_start = 0
    fill_tiles = set()
    mfma_pos = {}
    fill_fresh = [False]

    def states_since(pos):
        c = 0
        for ln in A.L[pos + 1:]:
            t = ln.strip()
            if t.endswith(":") or t.startswith(";") or t.startswith("@@"):
                continue
            c += int(t.split()[1]) + 1 if t.startswith("s_nop") else 1
        return c

    late_w = []

    def emit(kind, t):
        if kind == "mark":
            have = min(states_since(mfma_pos[tl]) for tl in t[0])
            if have < 12:
                A(f"s_nop {12 - have - 1}")
        elif kind == "w":
            ds_issue(t, "hw")
        else:
            A(t)

    def flush_fillers():
        nonlocal fillers
        for (kind, t) in fillers + late_w:
            emit(kind, t)
        fillers = []
        late_w.clear()
        fill_tiles.clear()

    trig = {}
    for l in range(3):
        trig[max(n for n, it in enumerate(items) if it["q"] < n_g1 and it["tile"] == l)] = (1, l)
        trig[max(n for n, it in enumerate(items) if it["q"] >= n_g1 and it["tile"] % 3 == l)] = (2, l)

    nread = 0
    for n in range(NI):
        it = items[n]
        lim = min(NI - 1, n + D)
        while nread <= lim:
            nx = items[nread]
            if nx["q"] > checked[0]:
                due = [l for l, v in hown_vis.items() if v == nx["q"]]
                if due:
                    if last_item[hown_w[due[0]]] >= n:
                        break
                    flush_fillers()
            key = (nx["q"], nx["kb"])
            if key in bread_of and (key, nx["sp"]) not in bdone:
                if any(items[m]["kb"] == nx["kb"] and items[m]["sp"] == nx["sp"] for m in range(n, nread)):
                    break
            issue_reads(nread)
            nread += 1
        assert nread > n
        if it["tile"] in fill_tiles:
            flush_fillers()
            A("s_nop 1")
        clean(n)
        ds_need({("A", n), ("B", it["kb"], it["sp"])})
        if it["first"]:
            ds_need({"hw"})
        if n in clean_pos and states_since(clean_pos[n]) < 2:
            A(f"s_nop {1 - states_since(clean_pos[n])}")
        ra = vAB + 4 * (n % nAB)
        rb = vXB + 16 * it["kb"] + 4 * it["sp"]
        acc = accbase(it["tile"])
        c = "0" if it["first"] else f"v[{acc}:{acc+15}]"
        if cfg.m16test == 1:
            for hh in range(2):
                a4 = acc + 8 * (it["sp"] & 1) + 4 * hh
                rb2 = vXB + 16 * it["kb"] + 4 * (it["sp"] if hh == 0 else max(it["sp"] - 1, 0))
                A(f"v_mfma_f32_16x16x32_bf16 v[{a4}:{a4+3}], v[{ra}:{ra+3}], v[{rb2}:{rb2+3}], v[{a4}:{a4+3}]")
        elif cfg.m16test == 2:
            A("s_nop 7")
        else:
            A(f"v_mfma_f32_32x32x16_bf16 v[{acc}:{acc+15}], v[{ra}:{ra+3}], v[{rb}:{rb+3}], {c}")
        mfma_pos[it["tile"]] = len(A.L) - 1
        if n + 1 < nread:
            clean(n + 1)
        k = 0
        while fillers and k < (cfg.fill1 if it["q"] < n_g1 else cfg.fill):
            if fillers[0][0] == "mark" and n < fillers[0][1][1]:
                break
            kind, t = fillers.pop(0)
            emit(kind, t)
            k += kind != "mark"
        if not fillers and not late_w:
            fill_tiles.clear()
        if n == last_item[it["q"]] and (it["q"] in epi_after or it["q"] in epi2_after):
            stamp()
        if n in trig:
            g, l = trig[n]
            tl = [l] + ([l + 3] if (g == 2 and l in aux_used) else [])
            new = epi1_instrs(0, [l]) if g == 1 else epi2_instrs([l])
            if cfg.wlast:
                late_w.extend(x for x in new if x[0] == "w")
                new = [x for x in new if x[0] != "w"]
            fillers += [("mark", (tl, n + cfg.fdel))] + new
            fill_tiles.update(tl)
    flush_fillers()
    stamp()
    if cfg.rnb >= 1 and not cfg.rlate:
        A("s_barrier")
    reduce_code(1, 0)
    if TS:
        A("s_waitcnt vmcnt(0)")
        A("s_memrealtime s[98:99]")
        A("s_waitcnt lgkmcnt(0)")
        assert tsn[0] <= 14, tsn[0]
        A(f"s_mov_b32 s{sTS+28}, s98"); A(f"s_mov_b32 s{sTS+30}, s{sCNT}")
        tsn[0] = 16
        stamp_flush()
    if cfg.enc and cfg.encw < 4:
        A("s_branch L_noep")
    A("s_branch L_end")

    A.head("hl")
    A.label("L_helper")
    sG = 38
    A(f"s_lshl_b32 s{sG}, s{sWV}, 3")
    A(f"s_add_u32 s{sG}, s{sG}, s{sR}")
    A("v_mul_u32_u24 v8, 9216, v1")
    A("v_mul_u32_u24 v9, 1152, v1")
    A(f"s_mul_i32 s39, s{sJ}, 1152")
    A("s_waitcnt lgkmcnt(0)")
    NWT = 64

    def sdiv(dst, src, d):
        A(f"s_mul_i32 s{dst}, s{src}, {(65536 + d - 1) // d}")
        A(f"s_lshr_b32 s{dst}, s{dst}, 16")

    w2base = 0
    if cfg.touch and any(ROT):
        srd(SRD0, sW1, 5308416)
        srd(SRD1, sX, 589824)
        need = {kk: min((kk - r) % 9 for r in ROT) for kk in range(9)}
        kks = sorted([kk for kk in range(9) if need[kk] >= cfg.skipw], key=lambda kk: need[kk])
        KT = sum(kk << (4 * u) for u, kk in enumerate(kks))
        nW = 9 * len(kks)
        x0 = cfg.skipx
        nX = 8 * (9 - x0)
        tot = nW + nX
        for rnd in range((tot + NWT - 1) // NWT):
            if rnd == 1:
                A.tail("hl")
            k = A.uid()
            A(f"s_add_u32 s{sT0}, s{sG}, {NWT*rnd}")
            if NWT * rnd < nW:
                if NWT * rnd + NWT > nW:
                    A(f"s_cmp_ge_u32 s{sT0}, {nW}")
                    A(f"s_cbranch_scc1 L_hx{k}")
                sdiv(sT1, sT0, 9)
                A(f"s_mul_i32 s{sT2}, s{sT1}, 9")
                A(f"s_sub_u32 s{sT2}, s{sT0}, s{sT2}")
                A(f"s_lshl_b32 s{sT1}, s{sT1}, 2")
                A(f"s_lshr_b32 s{sT1}, {KT}, s{sT1}")
                A(f"s_and_b32 s{sT1}, s{sT1}, 15")
                A(f"s_mul_i32 s{sT1}, s{sT1}, {64*9216}")
                A(f"s_lshl_b32 s{sT2}, s{sT2}, 7")
                A(f"s_add_u32 s{sT1}, s{sT1}, s{sT2}")
                A(f"s_add_u32 s{sT1}, s{sT1}, s39")
                A(f"buffer_load_dword v255, v8, s[{SRD0}:{SRD0+3}], s{sT1} offen {cfg.tfl}")
                if NWT * rnd + NWT > nW:
                    A(f"s_branch L_ht{k}")
            if NWT * rnd + NWT > nW:
                A.label(f"L_hx{k}")
                if NWT * rnd + NWT > tot:
                    A(f"s_cmp_ge_u32 s{sT0}, {tot}")
                    A(f"s_cbranch_scc1 L_ht{k}")
                A(f"s_sub_u32 s{sT0}, s{sT0}, {nW - 8*x0}")
                A(f"s_and_b32 s{sT2}, s{sT0}, 7")
                A(f"s_lshr_b32 s{sT1}, s{sT0}, 3")
                A(f"s_lshl_b32 s{sT3}, s{sT2}, 2")
                A(f"s_lshr_b32 s{sT3}, {ROTTAB}, s{sT3}")
                A(f"s_and_b32 s{sT3}, s{sT3}, 15")
                A(f"s_add_u32 s{sT1}, s{sT1}, s{sT3}")
                A(f"s_cmp_ge_u32 s{sT1}, 9")
                A(f"s_cselect_b32 s{sT3}, 9, 0")
                A(f"s_sub_u32 s{sT1}, s{sT1}, s{sT3}")
                A(f"s_mul_i32 s{sT2}, s{sT2}, {64*1152}")
                A(f"s_lshl_b32 s{sT1}, s{sT1}, 7")
                A(f"s_add_u32 s{sT1}, s{sT1}, s{sT2}")
                A(f"buffer_load_dword v255, v9, s[{SRD1}:{SRD1+3}], s{sT1} offen")
            A.label(f"L_ht{k}")
        w2base = (NWT - tot % NWT) % NWT
    elif cfg.touch:
        srd(SRD0, sW1, 5308416)
        srd(SRD1, sX, 589824)
        phases, base = [], 0
        for pi, ls in enumerate(passes):
            t0 = cfg.ht0 if pi == 0 else 0
            c = 3 * len(ls) + (8 if pi == 0 else 0)
            phases.append((base, (9 - t0 - cfg.tn) * c, t0, c, ls))
            base += (9 - t0 - cfg.tn) * c
        w2base = (NWT - base % NWT) % NWT if cfg.w2rot else 0
        for rnd in range((base + NWT - 1) // NWT):
            if rnd == 1:
                A.tail("hl")
            k = A.uid()
            A(f"s_add_u32 s{sT0}, s{sG}, {NWT*rnd}")
            for (pb, cnt, t0, c, ls) in phases:
                if pb + cnt <= NWT * rnd or pb >= NWT * rnd + NWT:
                    continue
                k2 = A.uid()
                A(f"s_cmp_ge_u32 s{sT0}, {pb+cnt}")
                A(f"s_cbranch_scc1 L_hp{k2}")
                if pb:
                    A(f"s_sub_u32 s{sT0}, s{sT0}, {pb}")
                sdiv(sT1, sT0, c)
                A(f"s_mul_i32 s{sT2}, s{sT1}, {c}")
                A(f"s_sub_u32 s{sT2}, s{sT0}, s{sT2}")
                if t0:
                    A(f"s_add_u32 s{sT1}, s{sT1}, {t0}")
                if cfg.tn:
                    A(f"s_cmp_ge_u32 s{sT1}, {cfg.ta}")
                    A(f"s_cselect_b32 s{sT3}, {cfg.tn}, 0")
                    A(f"s_add_u32 s{sT1}, s{sT1}, s{sT3}")
                nw = 3 * len(ls)
                if c > nw:
                    A(f"s_cmp_ge_u32 s{sT2}, {nw}")
                    A(f"s_cbranch_scc1 L_hx{k2}")
                if len(ls) != 3:
                    if len(ls) == 1:
                        A(f"s_mul_i32 s{sT2}, s{sT2}, 3")
                    else:
                        A(f"s_lshr_b32 s{sT3}, s{sT2}, 1")
                        A(f"s_add_u32 s{sT2}, s{sT2}, s{sT3}")
                    if ls[0]:
                        A(f"s_add_u32 s{sT2}, s{sT2}, {ls[0]}")
                A(f"s_mul_i32 s{sT1}, s{sT1}, {64*9216}")
                A(f"s_lshl_b32 s{sT2}, s{sT2}, 7")
                A(f"s_add_u32 s{sT1}, s{sT1}, s{sT2}")
                A(f"s_add_u32 s{sT1}, s{sT1}, s39")
                A(f"buffer_load_dword v255, v8, s[{SRD0}:{SRD0+3}], s{sT1} offen {cfg.tfl}")
                A(f"s_branch L_ht{k}")
                if c > nw:
                    A.label(f"L_hx{k2}")
                    A(f"s_sub_u32 s{sT2}, s{sT2}, {nw}")
                    A(f"s_mul_i32 s{sT2}, s{sT2}, {64*1152}")
                    A(f"s_lshl_b32 s{sT1}, s{sT1}, 7")
                    A(f"s_add_u32 s{sT1}, s{sT1}, s{sT2}")
                    A(f"buffer_load_dword v255, v9, s[{SRD1}:{SRD1+3}], s{sT1} offen")
                    A(f"s_branch L_ht{k}")
                A.label(f"L_hp{k2}")
            A.label(f"L_ht{k}")
    def h_pretouch():
        srd(SRD1, sWS, 0x10000000)
        A("v_lshlrev_b32 v10, 7, v1")
        A(f"s_mul_i32 s{sT1}, s{sJ}, 589824")
        A(f"s_add_u32 s{sT1}, s{sT1}, {WS_IN if cfg.hpin else WS_H}")
        for rnd in range(2):
            k = A.uid()
            A(f"s_add_u32 s{sT0}, s{sG}, {NWT*rnd}")
            A(f"s_cmp_ge_u32 s{sT0}, 72")
            A(f"s_cbranch_scc1 L_ht{k}")
            A(f"s_lshl_b32 s{sT0}, s{sT0}, 13")
            A(f"s_add_u32 s{sT0}, s{sT0}, s{sT1}")
            A(f"buffer_load_dword v255, v10, s[{SRD1}:{SRD1+3}], s{sT0} offen {cfg.hpf}")
            A.label(f"L_ht{k}")
    if cfg.hpre == 1:
        h_pretouch()
    if cfg.touch:
        srd(SRD0, sW2, 5308416)
        A(f"s_mul_i32 s39, s{sJ}, 663552")
        vord = [blocks[nm] for nm in order if blocks[nm]["kind"] == "W2"]
        if not cfg.vneed:
            vord.sort(key=lambda b: (kbidx[(b["d"], b["lk"])], b["l"]))
        for reg, key in ((60, "d"), (62, "lk"), (44, "l")):
            tab = sum(b[key] << (2 * u) for u, b in enumerate(vord))
            A(f"s_mov_b32 s{reg}, {tab & 0xffffffff}")
            A(f"s_mov_b32 s{reg+1}, {tab >> 32}")
        if w2base:
            A(f"s_add_u32 s{sG}, s{sG}, {w2base}")
            A(f"s_and_b32 s{sG}, s{sG}, 63")
        for rnd in range(2):
            k = A.uid()
            A(f"s_add_u32 s{sT0}, s{sG}, {NWT*rnd}")
            A(f"s_cmp_ge_u32 s{sT0}, {81 - 18*cfg.vt}")
            A(f"s_cbranch_scc1 L_ht{k}")
            sdiv(sT1, sT0, 3)
            A(f"s_mul_i32 s{sT2}, s{sT1}, 3")
            A(f"s_sub_u32 s{sT2}, s{sT0}, s{sT2}")
            A(f"s_lshl_b32 s{sT1}, s{sT1}, 1")
            A(f"s_lshr_b64 s[46:47], s[60:61], s{sT1}")
            A(f"s_and_b32 s{sT0}, s46, 3")
            A(f"s_add_u32 s{sT0}, s{sT0}, s{sT2}")
            A(f"s_cmp_ge_u32 s{sT0}, 3")
            A(f"s_cselect_b32 s{sT3}, 3, 0")
            A(f"s_sub_u32 s{sT0}, s{sT0}, s{sT3}")
            A(f"s_lshr_b64 s[46:47], s[62:63], s{sT1}")
            A(f"s_and_b32 s{sT3}, s46, 3")
            A(f"s_mul_i32 s{sT0}, s{sT0}, {192*1152}")
            A(f"s_mul_i32 s{sT3}, s{sT3}, {64*1152}")
            A(f"s_add_u32 s{sT0}, s{sT0}, s{sT3}")
            A(f"s_lshr_b64 s[46:47], s[44:45], s{sT1}")
            A(f"s_and_b32 s{sT3}, s46, 3")
            A(f"s_mul_i32 s{sT2}, s{sT2}, 3")
            A(f"s_add_u32 s{sT2}, s{sT2}, s{sT3}")
            A(f"s_lshl_b32 s{sT2}, s{sT2}, 7")
            A(f"s_add_u32 s{sT0}, s{sT0}, s{sT2}")
            A(f"s_add_u32 s{sT0}, s{sT0}, s39")
            A(f"buffer_load_dword v255, v9, s[{SRD0}:{SRD0+3}], s{sT0} offen {cfg.tfl}")
            A.label(f"L_ht{k}")
    if cfg.hpre == 2:
        h_pretouch()
    dummy(cfg.dumh, "h")
    if TS:
        tsn[0] = 1
        A("s_waitcnt vmcnt(0)")
        stamp()
        stamp()
        stamp_flush()
    A("s_branch L_end")
    A.tail("end")
    A.label("L_end")

    hdr = f"""; Fused MLP (x@w1+b1 -> relu^2 -> @w2+b2), generated by a python script (work/gen4.py)
; @launch grid=(256,1,1) block=(512,1,1) lds=163840
.amdgcn_target "amdgcn-amd-amdhsa--gfx950"
.text
.globl {KN}
.p2align 8
.type {KN},@function
{KN}:
"""
    ftr = f"""
    s_endpgm
.section .rodata,"a"
.p2align 6
.amdhsa_kernel {KN}
  .amdhsa_next_free_vgpr 256
  .amdhsa_next_free_sgpr 102
  .amdhsa_accum_offset 256
  .amdhsa_group_segment_fixed_size 0
  .amdhsa_kernarg_size 64
  .amdhsa_user_sgpr_count 2
  .amdhsa_user_sgpr_kernarg_segment_ptr 1
  .amdhsa_system_sgpr_workgroup_id_x 1
.end_amdhsa_kernel
"""
    return hdr + A.text(cfg.horder.split(","), cfg.torder.split(",") + ["end"]) + ftr


def parse_g2(s):
    out = []
    for stg in s.split(","):
        us = []
        for u in stg.split("+"):
            a, b = u.split(":")
            us.append((int(a[0]), int(a[1]), [int(c) for c in b]))
        out.append(us)
    return out


def ilist(s):
    return [int(x) for x in s.split(",")] if s else []


def main():
    ap = argparse.ArgumentParser()
    ap.add_argument("-o", default="k8.s")
    ap.add_argument("--ts", action="store_true")
    ap.add_argument("--passes", default="012")
    ap.add_argument("--depth", type=int, default=5)
    ap.add_argument("--fill", type=int, default=4)
    ap.add_argument("--grp1", type=int, default=3)
    ap.add_argument("--hres", type=float, default=2.5)
    ap.add_argument("--hearly", type=float, default=1.5)
    ap.add_argument("--hdel", type=int, default=1)
    ap.add_argument("--xfree", type=int, default=11)
    ap.add_argument("--g2", default="00:012,01:012,02:012,10:012,20:012,11:012,21:012,12:012,22:012")
    ap.add_argument("--tsq", default="")
    ap.add_argument("--verbose", action="store_true")
    ap.add_argument("--ahead", type=int, default=8)
    ap.add_argument("--ahead0", type=int, default=8)
    ap.add_argument("--capfrom", type=int, default=8)
    ap.add_argument("--capw", type=int, default=4)
    ap.add_argument("--capx", type=int, default=3)
    ap.add_argument("--burst", default="")
    ap.add_argument("--pause", default="")
    ap.add_argument("--go2lead", type=int, default=3)
    ap.add_argument("--sa", type=int, default=0)
    ap.add_argument("--ctouch", type=int, default=1)
    ap.add_argument("--wfl", default="")
    ap.add_argument("--tfl", default="")
    ap.add_argument("--rfl", default="sc1")
    ap.add_argument("--rsleep", type=int, default=0)
    ap.add_argument("--touch", type=int, default=1)
    ap.add_argument("--clrq", type=int, default=-1)
    ap.add_argument("--cdq", type=int, default=9)
    ap.add_argument("--rbar", type=int, default=0)
    ap.add_argument("--hsf", default="sc1")
    ap.add_argument("--hlf", default="sc1")
    ap.add_argument("--ofl", default="")
    ap.add_argument("--hpre", type=int, default=0)
    ap.add_argument("--rot", default="00000000")
    ap.add_argument("--ts0", type=int, default=0)
    ap.add_argument("--hlsb", type=int, default=1)
    ap.add_argument("--dual", type=int, default=0)
    ap.add_argument("--vt", type=int, default=0)
    ap.add_argument("--vtq", type=int, default=10)
    ap.add_argument("--xpre", type=int, default=0)
    ap.add_argument("--m16test", type=int, default=0)
    ap.add_argument("--vneed", type=int, default=1)
    ap.add_argument("--tsreal", type=int, default=0)
    ap.add_argument("--vpipe", type=int, default=0)
    ap.add_argument("--ahead2", type=int, default=-1)
    ap.add_argument("--chain", type=int, default=1)
    ap.add_argument("--owide", type=int, default=0)
    ap.add_argument("--dum1", type=int, default=0)
    ap.add_argument("--dum2", type=int, default=0)
    ap.add_argument("--dumh", type=int, default=0)
    ap.add_argument("--encc", type=int, default=0)
    ap.add_argument("--encm", type=int, default=2)
    ap.add_argument("--slots", type=int, default=0)
    ap.add_argument("--rlate", type=int, default=0)
    ap.add_argument("--epi", type=int, default=0)
    ap.add_argument("--tm", default="")
    ap.add_argument("--wlast", type=int, default=0)
    ap.add_argument("--fdel", type=int, default=3)
    ap.add_argument("--fill1", type=int, default=5)
    ap.add_argument("--priow", type=int, default=0)
    ap.add_argument("--prioh", type=int, default=0)
    ap.add_argument("--r0early", type=int, default=0)
    ap.add_argument("--psf", default="sc1")
    ap.add_argument("--rw1", type=int, default=0)
    ap.add_argument("--ofl1", default="")
    ap.add_argument("--rpq", type=int, default=10)
    ap.add_argument("--rb2", type=int, default=1)
    ap.add_argument("--rb4", type=int, default=0)
    ap.add_argument("--rearly", type=int, default=0)
    ap.add_argument("--hpf", default="")
    ap.add_argument("--hpin", type=int, default=0)
    ap.add_argument("--wsb", type=lambda x: int(x, 0), default=0)
    ap.add_argument("--enc", default="")
    ap.add_argument("--encw", type=int, default=4)
    ap.add_argument("--hfree", type=int, default=2)
    ap.add_argument("--stouch", type=int, default=0)
    ap.add_argument("--stdel", type=int, default=1)
    ap.add_argument("--stf", default="")
    ap.add_argument("--ta", type=int, default=0)
    ap.add_argument("--tn", type=int, default=0)
    ap.add_argument("--tpos", type=int, default=0)
    ap.add_argument("--w2rot", type=int, default=1)
    ap.add_argument("--rfast", type=int, default=1)
    ap.add_argument("--wt", type=int, default=0)
    ap.add_argument("--horder", default="w,x,h2,hl,c")
    ap.add_argument("--ht0", type=int, default=1)
    ap.add_argument("--first", type=int, default=4)
    ap.add_argument("--torder", default="hl,w,x,h2,c,red")
    ap.add_argument("--skipw", type=int, default=1)
    ap.add_argument("--skipx", type=int, default=1)
    cfg = ap.parse_args()
    cfg.passes = [[int(c) for c in p] for p in cfg.passes.split(",")]
    cfg.g2 = parse_g2(cfg.g2)
    cfg.rnb = cfg.rb2
    cfg.tsq, cfg.burst, cfg.pause = ilist(cfg.tsq), ilist(cfg.burst), ilist(cfg.pause)
    open(cfg.o, "w").write(build(cfg))


main()
```

```python
import sys, argparse

KN = "standalone__dense_activation_squared_relu__sampling_kernel"

WS_H = 0x0
WS_IN = 0x1000000
WS_CD = 0x1840000
WS_EP = 0x1850000
WS_TS = 0x8000000
SPIN_MAX = 100000
SGNMASK = 0x6A9956A5


class Asm:
    def __init__(self):
        self.L = []
        self.n = 0

    def __call__(self, s):
        self.L.append("    " + s)

    def label(self, s):
        self.L.append(s + ":")

    def c(self, s):
        self.L.append("    ; " + s)

    def uid(self):
        self.n += 1
        return self.n

    def head(self, role):
        self.L.append(f"@@HEAD {role}")

    def tail(self, role):
        self.L.append(f"@@TAIL {role}")

    def text(self, horder, torder):
        pro, heads, tails, cur = [], {}, {}, None
        cur = pro
        for ln in self.L:
            if ln.startswith("@@HEAD"):
                cur = heads.setdefault(ln.split()[1], [])
            elif ln.startswith("@@TAIL"):
                r = ln.split()[1]
                if r in heads:
                    heads[r].append(f"    s_branch L_tail_{r}")
                cur = tails.setdefault(r, [f"L_tail_{r}:"])
            else:
                cur.append(ln)
        assert sorted(heads) == sorted(horder) and sorted(tails) == sorted(torder), (heads.keys(), tails.keys())
        out = pro
        for r in horder:
            out += heads[r]
        out.append("L_heads_end:")
        for r in torder:
            out += tails[r]
        return "\n".join(out)


def build(cfg):
    global WS_H, WS_IN, WS_EP
    WS_H = cfg.wsb
    WS_IN = cfg.wsb + 0x480000
    WS_EP = cfg.wsb + 0xc00000 if not cfg.slots else 0x10000
    A = Asm()
    SR, SD, SS, SL = {0: (24576, 589824, 3072, 1024), 1: (24576, 1024, 589824, 8192),
                      2: (196608, 8192, 1024, 65536), 3: (196608, 1024, 8192, 65536),
                      4: (221184, 9216, 1024, 73728), 5: (24*10496, 10496, 1280, 8*10496),
                      6: (221184, 1024, 9216, 73728), 7: (24*8448, 8448, 1024, 8*8448)}[cfg.obox]
    TS = cfg.ts
    passes = cfg.passes
    D = cfg.depth

    stages, blocks, order = [], {}, []

    def blk(name, **kw):
        blocks[name] = dict(name=name, **kw)
        return name

    def add_stage(units, breads):
        q = len(stages)
        stages.append(dict(units=units, breads=breads, q=q))
        for (bb, _kb) in breads:
            b = blocks[bb]
            b["need"] = b["last"] = q
            if b["kind"] != "Hown":
                order.append(bb)
        for (_t, wb, _kb, _first) in units:
            b = blocks[wb]
            if "need" not in b:
                b["need"] = q
                order.append(wb)
            b["last"] = q
        return q

    epi_after, pass_of_line = {}, {}
    for pi, lines in enumerate(passes):
        grp = 1 if (len(lines) > 1 or pi == 0) else cfg.grp1
        for t0 in range(0, 9, grp):
            units, breads = [], []
            for t in range(t0, t0 + grp):
                if pi == 0:
                    breads.append((blk(f"X{t}", kind="X", t=t), t))
                for l in lines:
                    units.append((l, blk(f"W{t}_{l}", kind="W1", t=t, l=l), t, False))
            q = add_stage(units, breads)
        epi_after[q] = (pi, list(lines))
        for l in lines:
            pass_of_line[l] = pi
    n_g1 = len(stages)
    kbidx = {}
    first = {0: True, 1: True, 2: True}
    cnt2 = {0: 0, 1: 0, 2: 0}
    epi2_after = {}
    for stg in cfg.g2:
        units, breads = [], []
        for (d, lk, lines) in stg:
            if (d, lk) not in kbidx:
                kbidx[(d, lk)] = len(kbidx)
                breads.append((blk(f"H{d}_{lk}", kind="Hown" if d == 0 else f"H{d}", d=d, lk=lk), kbidx[(d, lk)]))
            for l in lines:
                units.append((l, blk(f"V{d}_{lk}_{l}", kind="W2", d=d, lk=lk, l=l), kbidx[(d, lk)], first[l]))
                first[l] = False
                cnt2[l] += 1
        q = add_stage(units, breads)
        done = [l for l in range(3) if cnt2[l] == 9 and not any(l in v for v in epi2_after.values())]
        if done:
            epi2_after[q] = done
    assert all(v == 9 for v in cnt2.values())
    NQ = len(stages)
    hown_w = {l: q for q, (pi, lines) in epi_after.items() for l in lines}
    hown_vis = {l: (q + 1 if q == n_g1 - 1 else q + 2) for l, q in hown_w.items()}
    for l in hown_w:
        assert blocks[f"H0_{l}"]["need"] >= hown_vis[l]
    hfetch = {l: hown_vis[l] + cfg.hdel for l in hown_w}

    free_at = {s: -10 for s in range(20)}
    events = [(blocks[nm]["need"] - (cfg.hearly if blocks[nm]["kind"] in ("H1", "H2") else 0), 1, k, nm) for k, nm in enumerate(order)]
    for l, qw in hown_w.items():
        events.append((qw - cfg.hres, 0, l, f"H0_{l}"))
    events.sort()
    for ev in events:
        b = blocks[ev[3]]
        if b["kind"] == "X":
            cand = [16, 17, 18, 19]
        elif ev[0] < cfg.xfree:
            cand = list(range(0, 16))
        else:
            cand = list(range(0, 20))
        s = min(cand, key=lambda s: (free_at[s], s))
        b["slot"] = s
        b["free"] = free_at[s]
        if b["kind"] == "Hown":
            assert b["free"] + cfg.hfree <= hown_w[b["lk"]], b
        else:
            assert b["free"] + 2 < b["need"], b
        free_at[s] = b["last"]
    if cfg.verbose:
        print(" | ".join(f"{blocks[e[3]]['name']}:s{blocks[e[3]]['slot']} f{blocks[e[3]]['free']} n{blocks[e[3]]['need']}" for e in events), file=sys.stderr)
    for k, nm in enumerate(order):
        blocks[nm]["pos"] = k
    cum = [sum(1 for nm in order if blocks[nm]["need"] <= q) for q in range(NQ)]

    sX, sW1, sB1, sW2, sB2, sOUT, sDBG, sWS = 16, 18, 20, 22, 24, 26, 28, 30
    sJ, sR, sMT, sI, sWV, sWK = 32, 33, 34, 35, 36, 37
    SRD0, SRD1, SRD2 = 40, 44, 48
    sT0, sT1, sT2, sT3, sT4, sT5 = 52, 53, 54, 55, 56, 57
    sCNT = 58
    sTAG, sPB = 6, 8
    sTS = 64
    tsn = [0]

    def stamp():
        if TS:
            k = tsn[0]
            assert k < 16
            A(f"{'s_memrealtime' if cfg.tsreal else 's_memtime'} s[{sTS+2*k}:{sTS+2*k+1}]")
            tsn[0] += 1

    def srd(d, p, nbytes):
        A(f"s_mov_b32 s{d}, s{p}")
        A(f"s_mov_b32 s{d+1}, s{p+1}")
        A(f"s_mov_b32 s{d+2}, {nbytes}")
        A(f"s_mov_b32 s{d+3}, 0x00020000")

    def stamp_flush():
        if not TS:
            return
        n = tsn[0]
        A("s_waitcnt lgkmcnt(0)")
        srd(SRD2, sWS, 0x10000000)
        A(f"s_lshl_b32 s{sT0}, s2, 9")
        A(f"s_lshl_b32 s{sT1}, s{sWV}, 6")
        A(f"s_add_u32 s{sT0}, s{sT0}, s{sT1}")
        A(f"s_add_u32 s{sT0}, s{sT0}, {WS_TS}")
        A(f"v_mov_b32 v2, s{sT0}")
        A("s_mov_b64 exec, 1")
        for k in range(n):
            A(f"v_mov_b32 v3, s{sTS+2*k}")
            A(f"buffer_store_dword v3, v2, s[{SRD2}:{SRD2+3}], 0 offen offset:{4*k}")
        A("s_mov_b64 exec, -1")

    def epoch_load(smt):
        A(f"s_lshl_b32 s{sT0}, s{smt}, 7")
        A(f"s_add_u32 s{sT0}, s{sT0}, {WS_EP}")
        A(f"s_load_dword s{sTAG}, s[{sWS}:{sWS+1}], s{sT0}")

    def epoch_fin():
        A("s_waitcnt lgkmcnt(0)")
        A(f"s_add_u32 s{sTAG}, s{sTAG}, 1")
        A(f"s_mul_i32 s{sTAG+1}, s{sTAG}, 0x22222222")
        A(f"s_and_b32 s{sTAG+1}, s{sTAG+1}, 0xeeeeeeee")
        A(f"s_or_b32 s{sTAG+1}, s{sTAG+1}, 0x10101010")
        if cfg.slots:
            A(f"s_and_b32 s14, s{sTAG}, {cfg.slots-1}")
            A(f"s_mul_i32 s14, s14, 0xa00000")

    def slot_add(*regs):
        if cfg.slots:
            for r in regs:
                A(f"s_add_u32 s{r}, s{r}, s14")

    def tag_regs(vd, vt):
        A(f"v_and_b32 v{vt}, 3, v1")
        A(f"v_lshlrev_b32 v{vt}, 3, v{vt}")
        A(f"v_lshrrev_b32 v{vt}, v{vt}, s{sTAG+1}")
        for k in range(4):
            A(f"v_bfe_u32 v{vd+k}, v{vt}, {2*k}, 2")
            A(f"v_mul_u32_u24 v{vd+k}, 0x8001, v{vd+k}")
            A(f"v_and_b32 v{vd+k}, 0x10001, v{vd+k}")
            A(f"v_lshl_or_b32 v{vd+k}, v{vd+k}, 15, v{vd+k}")

    def sign_reg(vd, vt):
        A(f"s_bitcmp1_b32 s{sTAG}, 0")
        A(f"s_cselect_b32 s{sT0}, -1, 0")
        A(f"s_xor_b32 s{sT0}, s{sT0}, {SGNMASK}")
        A(f"v_and_b32 v{vt}, 31, v1")
        A(f"v_lshrrev_b32 v{vt}, v{vt}, s{sT0}")
        A(f"v_bfe_i32 v{vt}, v{vt}, 0, 1")
        A(f"v_and_b32 v{vd}, 0x80008000, v{vt}")

    def sspin(loads, npairs, base):
        k = A.uid()
        A(f"s_mov_b32 s{sCNT}, 0")
        A.label(f"L_s{k}")
        for x in loads:
            A(x)
        A(f"s_add_u32 s{sCNT}, s{sCNT}, 1")
        A("s_waitcnt lgkmcnt(0)")
        A(f"s_cmp_gt_u32 s{sCNT}, {SPIN_MAX}")
        A(f"s_cbranch_scc1 L_sd{k}")
        for n in range(npairs):
            A(f"s_cmp_lg_u64 s[{base+2*n}:{base+2*n+1}], s[{sTAG}:{sTAG+1}]")
            A(f"s_cbranch_scc1 L_s{k}")
        A.label(f"L_sd{k}")

    def mod3add(dst, d, tmp):
        A(f"s_add_u32 s{dst}, s{sI}, {d}")
        A(f"s_cmp_ge_u32 s{dst}, 3")
        A(f"s_cselect_b32 s{tmp}, 3, 0")
        A(f"s_sub_u32 s{dst}, s{dst}, s{tmp}")

    A("s_cmp_ge_u32 s2, 256")
    A("s_cbranch_scc1 L_end")
    A("s_load_dwordx16 s[16:31], s[0:1], 0")
    if cfg.ctouch == 1:
        A("s_getpc_b64 s[4:5]")
        A.label("L_pc")
        A("v_lshlrev_b32 v2, 7, v0")
        A("v_min_u32 v2, L_end-L_pc, v2")
        A("v_and_b32 v2, 0xfffffffc, v2")
        A("global_load_dword v255, v2, s[4:5]")
    elif cfg.ctouch == 2:
        A("s_getpc_b64 s[4:5]")
        A.label("L_pc")
        A("s_lshr_b32 s3, s2, 3")
        A("s_lshl_b32 s3, s3, 11")
        A("v_lshrrev_b32 v2, 5, v0")
        A("v_lshl_add_u32 v2, v2, 7, s3")
        A("v_min_u32 v2, L_end-L_pc, v2")
        A("v_and_b32 v2, 0xfffffffc, v2")
        A("global_load_dword v255, v2, s[4:5]")
    if TS:
        A("s_memrealtime s[96:97]")
    if cfg.enc:
        A("s_memrealtime s[96:97]")
        if cfg.enc == "none":
            A("s_memrealtime s[94:95]")
        if cfg.encc:
            A("s_memtime s[92:93]")

    def enc(p):
        if cfg.enc == p:
            A("s_memrealtime s[94:95]" if not cfg.encc else "s_memtime s[94:95]")
    stamp()
    A("v_and_b32 v1, 63, v0")
    A("v_lshrrev_b32 v2, 6, v0")
    A(f"s_and_b32 s{sJ}, s2, 7")
    A(f"v_readfirstlane_b32 s{sWV}, v2")
    A(f"s_lshr_b32 s{sR}, s2, 3")
    A(f"s_cmp_lt_u32 s{sR}, 8")
    A("s_cbranch_scc1 L_helper")
    A(f"s_sub_u32 s{sR}, s{sR}, 8")
    A(f"s_mul_i32 s{sMT}, s{sR}, 21846")
    A(f"s_lshr_b32 s{sMT}, s{sMT}, 16")
    A(f"s_mul_i32 s{sT0}, s{sMT}, 3")
    A(f"s_sub_u32 s{sI}, s{sR}, s{sT0}")
    A(f"s_mul_i32 s{sWK}, s{sJ}, 24")
    A(f"s_add_u32 s{sWK}, s{sWK}, s{sR}")
    ROT = [int(c) for c in cfg.rot]
    ROTTAB = sum(r << (4 * m) for m, r in enumerate(ROT))
    sROT, sLO, sHI = 10, 11, 12
    if any(ROT):
        A(f"s_lshl_b32 s{sROT}, s{sMT}, 2")
        A(f"s_lshr_b32 s{sROT}, {ROTTAB}, s{sROT}")
        A(f"s_and_b32 s{sROT}, s{sROT}, 15")

    def rot_setup(sbase, stride):
        if any(ROT):
            A(f"s_mul_i32 s{sLO}, s{sROT}, {stride}")
            A(f"s_add_u32 s{sLO}, s{sLO}, s{sbase}")
            A(f"s_sub_u32 s{sHI}, s{sLO}, {9*stride}")

    def rot_addr(dst, sbase, t, stride, extra):
        if any(ROT):
            if t + max(ROT) < 9:
                A(f"s_add_u32 s{dst}, s{sLO}, {t*stride + extra}")
            else:
                A(f"s_cmp_lt_u32 s{sROT}, {9-t}")
                A(f"s_cselect_b32 s{dst}, s{sLO}, s{sHI}")
                A(f"s_add_u32 s{dst}, s{dst}, {t*stride + extra}")
        else:
            A(f"s_add_u32 s{dst}, s{sbase}, {t*stride + extra}")
    A(f"s_cmp_lt_u32 s{sWV}, 4")
    A("s_cbranch_scc1 L_compute")
    A(f"s_cmp_eq_u32 s{sWV}, 6")
    A("s_cbranch_scc1 L_xh")
    A(f"s_cmp_eq_u32 s{sWV}, 7")
    A("s_cbranch_scc1 L_h2")
    ts_base = tsn[0]

    def loader_stream(kinds, per_block, issue_fn, setup_fn, cap, group=False, validate=None, before_bar=None, role=None):
        mine = [blocks[nm] for nm in order if blocks[nm]["kind"] in kinds]
        outstanding, pend = [], list(mine)
        nb = lambda nm: blocks[nm]["n"] if blocks[nm]["kind"] == "extra" else (per_block(blocks[nm]) if callable(per_block) else per_block)
        cnt = lambda lst: sum(nb(x) for x in lst)

        def ok(b, q):
            if b["free"] + 2 > q:
                return False
            if b["kind"] in ("H1", "H2") and q < min(hfetch[b["lk"]], b["need"] - 1):
                return False
            return True

        def issue_upto(q, ahead, cap):
            n = 0
            lim = cum[q] + ahead if q >= 0 else ahead
            while pend and ok(pend[0], q):
                must = pend[0]["need"] <= q + 1 + (cfg.vpipe if pend[0]["kind"] in ("H1", "H2") else 0) or pend[0]["pos"] < lim
                if not must and n >= cap:
                    break
                grp = [pend.pop(0)]
                while group and pend and ok(pend[0], q) and pend[0]["need"] == grp[0]["need"] and len(grp) < 3 \
                        and (pend[0]["pos"] < lim or n + len(grp) < cap or pend[0]["need"] <= q + 1):
                    grp.append(pend.pop(0))
                need_n = sum(nb(x["name"]) for x in grp)
                if cnt(outstanding) + need_n > 63:
                    while cnt(outstanding) + need_n > 63:
                        del outstanding[0]
                    A(f"s_waitcnt vmcnt({cnt(outstanding)})")
                issue_fn(grp if group else grp[0])
                if cfg.verbose:
                    print(f"   after B{q}: " + " ".join(x["name"] for x in grp), file=sys.stderr)
                outstanding.extend(x["name"] for x in grp)
                n += len(grp)

        issue_upto(-1, cfg.first, 0)
        if cfg.ts0:
            stamp()
        if role == "w":
            enc("iss")
        A.tail(role)
        pr = cfg.priow if role == "w" else cfg.prioh
        if pr:
            A(f"s_setprio {pr}")
        setup_fn()
        issue_upto(-1, cfg.ahead0, 0)
        for q in range(NQ):
            assert not any(b["need"] <= q for b in pend), (q, pend[0])
            def wait_for(b):
                if b["name"] in outstanding:
                    idx = max(i for i, nm in enumerate(outstanding) if blocks[nm]["need"] <= q) if validate is None \
                        else outstanding.index(b["name"])
                    del outstanding[:idx + 1]
                    A(f"s_waitcnt vmcnt({cnt(outstanding)})")
            hs = []
            for b in mine:
                if b["need"] == q:
                    if validate is not None and b["kind"] != "X":
                        hs.append(b)
                    else:
                        wait_for(b)
            if validate is not None and cfg.vpipe:
                nxt = [b for b in mine if b["need"] == q + 1 and b["kind"] != "X" and b not in pend]
                if hs or nxt:
                    validate(hs, wait_for, nxt)
            elif hs:
                validate(hs, wait_for)
            if before_bar is not None:
                ex = before_bar(q)
                if ex:
                    nm = f"extra{A.uid()}"
                    blocks[nm] = dict(name=nm, kind="extra", n=ex, need=99)
                    outstanding.append(nm)
            if q in cfg.tsq:
                stamp()
            A("s_barrier")
            if role == "w":
                enc(f"B{q}")
            if q in cfg.pause:
                issue_upto(q, 0, 0)
            else:
                issue_upto(q, cfg.ahead if q < n_g1 or cfg.ahead2 < 0 else cfg.ahead2, 99 if q in cfg.burst else (cap if q >= cfg.capfrom else 0))
        assert not pend

    vRA, vRO, vRB, vRC, vRD, vRT, vRX, vRZ, vRG = 64, 65, 66, 72, 80, 112, 116, 117, 120
    sRI, sRO, sC = 60, 61, 13

    def vr(r, W):
        return f"v{r}" if W == 1 else f"v[{r}:{r+W-1}]"

    def dw(W):
        return "dword" if W == 1 else f"dwordx{W}"

    def red_pre(W):
        if W == 2:
            A(f"s_sub_u32 s{sC}, s{sWV}, 4")
            A(f"v_lshlrev_b32 v{vRA}, 3, v1")
            A(f"s_lshl_b32 s{sRO}, s{sC}, 6")
            A(f"s_lshr_b32 s{sRI}, s{sC}, 1")
            A(f"s_mul_i32 s{sRI}, s{sRI}, {SL}")
            A(f"s_and_b32 s{sT1}, s{sC}, 1")
            A(f"s_lshl_b32 s{sT1}, s{sT1}, 9")
            A(f"s_add_u32 s{sRI}, s{sRI}, s{sT1}")
            A(f"v_lshrrev_b32 v{vRT}, 4, v1")
            A(f"v_and_b32 v{vRT+1}, 1, v1")
            A(f"v_lshlrev_b32 v{vRT+1}, 3, v{vRT+1}")
            A(f"v_lshl_add_u32 v{vRT}, v{vRT}, 4, v{vRT+1}")
            A(f"v_bfe_u32 v{vRT+2}, v1, 1, 3")
            A(f"v_and_b32 v{vRT+3}, 7, v1")
            A(f"v_lshlrev_b32 v{vRT+3}, 2, v{vRT+3}")
        else:
            A(f"s_add_u32 s{sC}, s{sWV}, 8")
            A(f"v_lshlrev_b32 v{vRA}, 2, v1")
            A(f"s_lshl_b32 s{sRO}, s{sC}, 5")
            A(f"s_lshl_b32 s{sRI}, s{sWV}, 8")
            A(f"s_add_u32 s{sRI}, s{sRI}, {2*SL}")
            A(f"v_lshrrev_b32 v{vRT}, 5, v1")
            A(f"v_and_b32 v{vRT+1}, 3, v1")
            A(f"v_lshlrev_b32 v{vRT+1}, 2, v{vRT+1}")
            A(f"v_lshl_add_u32 v{vRT}, v{vRT}, 4, v{vRT+1}")
            A(f"v_bfe_u32 v{vRT+2}, v1, 2, 3")
            A(f"v_and_b32 v{vRT+3}, 15, v1")
            A(f"v_lshlrev_b32 v{vRT+3}, 1, v{vRT+3}")
        A(f"s_mul_i32 s{sT1}, s{sI}, 384")
        A(f"s_add_u32 s{sRO}, s{sRO}, s{sT1}")
        if W == 2:
            srd(SRD2, sB2, 1152)
            A(f"buffer_load_{dw(W)} {vr(vRB, W)}, v{vRT}, s[{SRD2}:{SRD2+3}], s{sRO} offen")
        else:
            A(f"v_mov_b32 v{vRB}, v249")
        A(f"s_lshl_b32 s{sT1}, s{sJ}, 3")
        A(f"s_lshl_b32 s{sT3}, s{sMT}, 6")
        A(f"s_add_u32 s{sT1}, s{sT1}, s{sT3}")
        A(f"s_mul_i32 s{sT1}, s{sT1}, 1152")
        A(f"s_add_u32 s{sRO}, s{sRO}, s{sT1}")
        A(f"v_mul_u32_u24 v{vRT+2}, 1152, v{vRT+2}")
        A(f"v_add_u32 v{vRO}, v{vRT}, v{vRT+2}")
        A(f"s_mul_i32 s{sT1}, s{sR}, {SR}")
        A(f"s_add_u32 s{sRI}, s{sRI}, s{sT1}")
        A(f"s_mul_i32 s{sT1}, s{sJ}, {SD}")
        A(f"s_add_u32 s{sRI}, s{sRI}, s{sT1}")
        A(f"s_add_u32 s{sRI}, s{sRI}, {WS_IN}")
        slot_add(sRI)
        A(f"v_mov_b32 v{vRZ}, 0")
        A(f"v_lshrrev_b32 v{vRT+3}, v{vRT+3}, s{sTAG+1}")
        for k in range(W):
            A(f"v_bfe_u32 v{vRG+k}, v{vRT+3}, {2*k}, 2")
            A(f"v_mul_u32_u24 v{vRG+k}, 0x8001, v{vRG+k}")
        A(f"v_mov_b32 v{vRG+4}, 0x10001")
        A(f"v_mov_b32 v{vRG+5}, 0xffff0000")
        return 1

    def red_init(W):
        for k in range(W):
            A(f"v_lshlrev_b32 v{vRC+2*k}, 16, v{vRB+k}")
            A(f"v_and_b32 v{vRC+1+2*k}, v{vRG+5}, v{vRB+k}")

    def bb_w(q):
        if q == 2:
            epoch_fin()
        if q == cfg.rpq:
            return red_pre(2)
        if q == cfg.rpq + 3:
            red_init(2)

    A.head("w")
    sHW = sT5
    A(f"s_sub_u32 s{sHW}, s{sWV}, 4")
    A("v_lshrrev_b32 v2, 3, v1")
    A("v_and_b32 v3, 7, v1")
    A("v_bfe_u32 v4, v1, 4, 1")
    A("v_lshlrev_b32 v4, 2, v4")
    A("v_xor_b32 v3, v3, v4")
    A("v_lshlrev_b32 v3, 4, v3")
    A("v_lshrrev_b32 v4, 2, v2")
    A("v_and_b32 v5, 3, v2")
    A("v_lshl_add_u32 v4, v4, 3, v5")
    A(f"s_lshl_b32 s{sT0}, s{sHW}, 5")
    A(f"v_add_u32 v4, s{sT0}, v4")
    A("v_mul_u32_u24 v4, 9216, v4")
    A("v_add_u32 v4, v4, v3")
    for c in range(1, 4):
        A(f"v_add_u32 v{4+c}, {(16*(c>>1)+4*(c&1))*9216 - 1024*c}, v4")
    sLW, sC1 = sT4, 38
    A(f"s_lshl_b32 s{sLW}, s{sHW}, 12")
    A(f"s_mul_i32 s{sC1}, s{sJ}, 1152")
    A(f"s_mul_i32 s{sT1}, s{sI}, 384")
    A(f"s_add_u32 s{sC1}, s{sC1}, s{sT1}")
    rot_setup(sC1, 64*9216)
    if cfg.wt:
        A("v_and_b32 v12, 7, v1")
        A("v_lshrrev_b32 v13, 5, v1")
        A("v_lshl_add_u32 v12, v13, 6, v12")
        A("v_mul_u32_u24 v12, 9216, v12")
        A("v_bfe_u32 v13, v1, 3, 2")
        A("v_lshl_add_u32 v12, v13, 7, v12")
        A(f"s_lshl_b32 s{sT0}, s{sHW}, 4")
        A(f"s_add_u32 s{sT0}, s{sT0}, s{sMT}")
        A(f"s_mul_i32 s{sT0}, s{sT0}, {8*9216}")
        A(f"s_add_u32 s{sT0}, s{sT0}, s{sC1}")
        msk = [sum(0xffffff << (32 * h) for h in range(2) if 2 * w + h < cfg.wt) for w in range(2)]
        A(f"s_mov_b32 exec_lo, {msk[0] & 0xffffffff}")
        A(f"s_mov_b32 exec_hi, {msk[0] >> 32}")
        if msk[1] != msk[0]:
            A(f"s_cmp_eq_u32 s{sHW}, 0")
            A(f"s_cselect_b32 exec_lo, exec_lo, {(msk[1] & 0xffffffff) or 1}")
            A(f"s_cselect_b32 exec_hi, exec_hi, {msk[1] >> 32}")
    A("s_waitcnt lgkmcnt(0)")
    if cfg.ts0:
        stamp()
    srd(SRD0, sW1, 5308416)
    if cfg.wt:
        A(f"buffer_load_dword v255, v12, s[{SRD0}:{SRD0+3}], s{sT0} offen")
        A("s_mov_b64 exec, -1")
    sV = [62, 63, 59]

    def w2_setup():
        epoch_load(sMT)
        A(f"s_lshl_b32 s{sT0}, s{sHW}, 5")
        A(f"v_add_u32 v8, s{sT0}, v2")
        A("v_mul_u32_u24 v8, 1152, v8")
        A("v_add_u32 v8, v8, v3")
        for c in range(1, 4):
            A(f"v_add_u32 v{8+c}, {8*c*1152 - 1024*c}, v8")
        A(f"s_mul_i32 s39, s{sJ}, {576*1152}")
        A(f"s_mul_i32 s{sT0}, s{sI}, 384")
        A(f"s_add_u32 s39, s39, s{sT0}")
        for d in range(3):
            mod3add(sT1, d, sT2)
            A(f"s_mul_i32 s{sT1}, s{sT1}, {192*1152}")
            A(f"s_add_u32 s{sV[d]}, s39, s{sT1}")
        srd(SRD1, sW2, 5308416)

    def issue_w(grp):
        for b in grp:
            A(f"s_add_u32 m0, s{sLW}, {b['slot']*8192}")
            if b["kind"] == "W1":
                rot_addr(sT0, sC1, b['t'], 64*9216, 128*b['l'])
                vb, sr = 4, SRD0
            else:
                A(f"s_add_u32 s{sT0}, s{sV[b['d']]}, {64*b['lk']*1152 + 128*b['l']}")
                vb, sr = 8, SRD1
            for c in range(4):
                A(f"buffer_load_dwordx4 v{vb+c}, s[{sr}:{sr+3}], s{sT0} offen offset:{1024*c} {cfg.wfl} lds")

    loader_stream(("W1", "W2"), 4, issue_w, w2_setup, cfg.capw, group=True,
                  before_bar=bb_w, role="w")
    A("s_branch L_reduce")
    ts_max = tsn[0]

    sXB = 38
    sH = {1: 39, 2: 59}
    HALF = [0]

    def h_setup(half):
        A("v_lshlrev_b32 v12, 4, v1")
        A("v_add_u32 v13, 0x10000, v12")
        A("v_add_u32 v14, 0x20000, v12")
        A(f"s_sub_u32 s{sT0}, s{sWK}, s{sI}")
        for d in (1, 2):
            mod3add(sT1, d, sT2)
            A(f"s_add_u32 s{sT1}, s{sT1}, s{sT0}")
            A(f"s_mul_i32 s{sH[d]}, s{sT1}, 24576")
        srd(SRD1, sWS, 0x10000000)
        epoch_load(sMT)

    def issue_xh(b):
        for h in (range(2) if b["kind"] == "X" else HALF):
            A(f"s_mov_b32 m0, {b['slot']*8192 + 4096*h}")
            if b["kind"] == "X":
                rot_addr(sT0, sXB, b['t'], 128, 32*1152*h)
                for c in range(4):
                    A(f"buffer_load_dwordx4 v{8+c}, s[{SRD0}:{SRD0+3}], s{sT0} offen offset:{1024*c} lds")
            else:
                A(f"s_add_u32 s{sT0}, s{sH[b['d']]}, {WS_H + 8192*b['lk'] + 4096*h}")
                for c in range(4):
                    A(f"buffer_load_dwordx4 v12, s[{SRD1}:{SRD1+3}], s{sT0} offen offset:{1024*c} {cfg.hlf} lds")

    retry_code = []

    def validate(hs, wait_for):
        k = A.uid()

        def rd(i):
            addr = hs[i]["slot"] * 8192 + 4096 * HALF[0]
            for c in range(4):
                r = 128 + 16 * i + 4 * c
                A(f"ds_read_b128 v[{r}:{r+3}], v{12 + (addr >> 16)} offset:{(addr & 0xffff) + 1024*c}")

        def valu(i, later):
            for c in range(4):
                r = 128 + 16 * i + 4 * c
                A(f"s_waitcnt lgkmcnt({3-c+later})")
                for kk in range(4):
                    ac = 16 + ((kk + 2) & 3)
                    if i == 0 and c == 0:
                        A(f"v_xor_b32 v{ac}, v{r+kk}, v{25+kk}")
                    else:
                        A(f"v_bitop3_b32 v{ac}, v{ac}, v{r+kk}, v{25+kk} bitop3:0xf6")
        A.label(f"L_v{k}")
        for i in range(len(hs)):
            wait_for(hs[i])
            rd(i)
            if i:
                valu(i - 1, 4)
        valu(len(hs) - 1, 0)
        A("v_or3_b32 v16, v16, v17, v18")
        A("v_bitop3_b32 v16, v16, v19, v24 bitop3:0xa8")
        A("v_cmp_ne_u32 vcc, 0, v16")
        A(f"s_cbranch_vccnz L_vr{k}")
        A.label(f"L_vd{k}")
        n0 = len(A.L)
        A.label(f"L_vr{k}")
        A(f"s_cmp_gt_u32 s{sCNT}, {SPIN_MAX}")
        A(f"s_cbranch_scc1 L_vd{k}")
        for b in hs:
            issue_xh(b)
        A(f"s_add_u32 s{sCNT}, s{sCNT}, 1")
        A("s_waitcnt vmcnt(0)")
        A(f"s_branch L_v{k}")
        retry_code.extend(A.L[n0:])
        del A.L[n0:]

    hreg, hread = {}, set()

    def validate2(hs, wait_for, nxt):
        k = A.uid()

        def rd(b):
            i = hreg.setdefault(b["name"], len(hreg))
            addr = b["slot"] * 8192 + 4096 * HALF[0]
            for c in range(4):
                r = 128 + 16 * i + 4 * c
                A(f"ds_read_b128 v[{r}:{r+3}], v{12 + (addr >> 16)} offset:{(addr & 0xffff) + 1024*c}")
            hread.add((HALF[0], b["name"]))

        def do_nxt():
            for b in nxt:
                wait_for(b)
                rd(b)
        unread = [b for b in hs if (HALF[0], b["name"]) not in hread]
        for b in unread:
            wait_for(b)
            rd(b)
        later = 0
        if unread and 4 * (len(unread) + len(nxt)) <= 15:
            do_nxt()
            later = 4 * len(nxt)
            nxt = []
        if hs:
            A.label(f"L_v{k}")
            A(f"s_waitcnt lgkmcnt({later})")
            for i, b in enumerate(hs):
                for c in range(4):
                    r = 128 + 16 * hreg[b["name"]] + 4 * c
                    for kk in range(4):
                        ac = 16 + ((kk + 2) & 3)
                        if i == 0 and c == 0:
                            A(f"v_xor_b32 v{ac}, v{r+kk}, v{25+kk}")
                        else:
                            A(f"v_bitop3_b32 v{ac}, v{ac}, v{r+kk}, v{25+kk} bitop3:0xf6")
            A("v_or3_b32 v16, v16, v17, v18")
            A("v_bitop3_b32 v16, v16, v19, v24 bitop3:0xa8")
            A("v_cmp_ne_u32 vcc, 0, v16")
            A(f"s_cbranch_vccnz L_vr{k}")
            A.label(f"L_vd{k}")
            n0 = len(A.L)
            A.label(f"L_vr{k}")
            A(f"s_cmp_gt_u32 s{sCNT}, {SPIN_MAX}")
            A(f"s_cbranch_scc1 L_vd{k}")
            for b in hs:
                issue_xh(b)
            A(f"s_add_u32 s{sCNT}, s{sCNT}, 1")
            A("s_waitcnt vmcnt(0) lgkmcnt(0)")
            for b in hs:
                rd(b)
            A("s_waitcnt lgkmcnt(0)")
            A(f"s_branch L_v{k}")
            retry_code.extend(A.L[n0:])
            del A.L[n0:]
        do_nxt()

    if cfg.vpipe:
        validate = validate2

    def flush_retry():
        A.L.extend(retry_code)
        retry_code.clear()

    def bb_tag(q):
        if q == 2:
            epoch_fin()
            slot_add(sH[1], sH[2])
            tag_regs(25, 16)
            A(f"v_mov_b32 v24, {0x10001 if cfg.hlsb else 0x80008000}")
            A(f"s_mov_b32 s{sCNT}, 0")
        if q == cfg.rpq:
            return red_pre(2)
        if q == cfg.rpq + 3:
            red_init(2)
        if q == 10 and cfg.probe:
            A(f"buffer_load_dword v255, v{vRZ}, s[{SRD2}:{SRD2+3}], 0 offen")
            A("s_waitcnt vmcnt(0)")

    A.head("x")
    A.label("L_xh")
    tsn[0] = ts_base
    A("v_lshrrev_b32 v2, 3, v1")
    A("v_and_b32 v3, 7, v1")
    A("v_lshrrev_b32 v4, 4, v1")
    A("v_xor_b32 v3, v3, v4")
    A("v_lshlrev_b32 v3, 4, v3")
    A("v_mul_u32_u24 v4, 1152, v2")
    A("v_add_u32 v8, v4, v3")
    A("v_xor_b32 v5, 64, v8")
    A(f"v_add_u32 v9, {8*1152 - 1024}, v5")
    A(f"v_add_u32 v10, {16*1152 - 2048}, v8")
    A(f"v_add_u32 v11, {24*1152 - 3072}, v5")
    A(f"s_mul_i32 s{sXB}, s{sMT}, {64*1152}")
    rot_setup(sXB, 128)

    def x_touch_pre(st0):
        A(f"s_mul_i32 s{sT0}, s{sI}, 22")
        A("v_and_b32 v12, 31, v1")
        A(f"v_add_u32 v12, s{sT0}, v12")
        A("v_min_u32 v12, 63, v12")
        A("v_mul_u32_u24 v12, 1152, v12")
        A("v_lshrrev_b32 v13, 5, v1")
        A("v_lshl_add_u32 v12, v13, 7, v12")
        A("s_mov_b32 exec_lo, 0x3fffff")
        A(f"s_mov_b32 exec_hi, {0x3fffff if cfg.wt > st0 + 1 else 0}")

    def x_touch(st0):
        A(f"buffer_load_dword v255, v12, s[{SRD0}:{SRD0+3}], s{sXB} offen offset:{128*st0}")
        A("s_mov_b64 exec, -1")
    if cfg.wt:
        x_touch_pre(0)
    A("s_waitcnt lgkmcnt(0)")
    if cfg.ts0:
        stamp()
    srd(SRD0, sX, 589824)
    if cfg.wt:
        x_touch(0)
    nbx = lambda b: 8 if b["kind"] == "X" else 4
    loader_stream(("X", "H1", "H2"), nbx, issue_xh, lambda: h_setup(0), cfg.capx, validate=validate, before_bar=bb_tag, role="x")
    if TS:
        A(f"s_mov_b32 s{sTS+24}, s{sCNT}")
    A("s_branch L_reduce")
    flush_retry()
    ts_max = max(ts_max, tsn[0])

    A.head("h2")
    A.label("L_h2")
    tsn[0] = ts_base
    if cfg.wt > 2:
        A(f"s_mul_i32 s{sXB}, s{sMT}, {64*1152}")
        x_touch_pre(2)
    if cfg.xpre:
        A("v_lshlrev_b32 v2, 7, v1")
        A(f"s_mul_i32 s{sT0}, s{sWK}, 3072")
        A("s_mov_b64 exec, 0xffffff")
    A("s_waitcnt lgkmcnt(0)")
    if cfg.xpre:
        srd(SRD0, sX, 589824)
        A(f"buffer_load_dword v255, v2, s[{SRD0}:{SRD0+3}], s{sT0} offen")
        A("s_mov_b64 exec, -1")
    if cfg.wt > 2:
        srd(SRD0, sX, 589824)
        x_touch(2)
    srd(SRD1, sWS, 0x10000000)
    if cfg.hpre == 3:
        A("v_lshlrev_b32 v3, 7, v1")
        A(f"s_mul_i32 s{sT1}, s{sWK}, 24576")
        A(f"s_add_u32 s{sT1}, s{sT1}, {WS_H}")
        for c in range(3):
            A(f"buffer_load_dword v255, v3, s[{SRD1}:{SRD1+3}], s{sT1} offen")
            A(f"s_add_u32 s{sT1}, s{sT1}, 8192")

    def w7_touch():
        st = list(range(cfg.ta, cfg.ta + cfg.tn))
        srd(SRD0, sX, 589824)
        srd(SRD2, sW1, 5308416)
        A(f"s_mul_i32 s{sXB}, s{sMT}, {64*1152}")
        A(f"s_mul_i32 s{sT0}, s{sI}, 22")
        A("v_and_b32 v2, 31, v1")
        A(f"v_add_u32 v2, s{sT0}, v2")
        A("v_min_u32 v2, 63, v2")
        A("v_mul_u32_u24 v2, 1152, v2")
        A("v_lshrrev_b32 v4, 5, v1")
        A("v_lshl_add_u32 v2, v4, 7, v2")
        A("v_and_b32 v3, 7, v1")
        A("v_lshl_add_u32 v3, v4, 6, v3")
        A("v_mul_u32_u24 v3, 9216, v3")
        A("v_bfe_u32 v4, v1, 3, 2")
        A("v_lshl_add_u32 v3, v4, 7, v3")
        A(f"s_mul_i32 s{sT0}, s{sMT}, {8*9216}")
        A(f"s_mul_i32 s{sT1}, s{sJ}, 1152")
        A(f"s_add_u32 s{sT0}, s{sT0}, s{sT1}")
        A(f"s_mul_i32 s{sT1}, s{sI}, 384")
        A(f"s_add_u32 s{sT0}, s{sT0}, s{sT1}")
        for p in range(0, len(st), 2):
            two = p + 1 < len(st)
            A(f"s_add_u32 s{sT1}, s{sT0}, {st[p]*64*9216}")
            A("s_mov_b32 exec_lo, 0xffffff")
            A(f"s_mov_b32 exec_hi, {0xffffff if two else 0}")
            A(f"buffer_load_dword v255, v3, s[{SRD2}:{SRD2+3}], s{sT1} offen")
            A("s_mov_b32 exec_lo, 0x3fffff")
            A(f"s_mov_b32 exec_hi, {0x3fffff if two else 0}")
            A(f"buffer_load_dword v255, v2, s[{SRD0}:{SRD0+3}], s{sXB} offen offset:{128*st[p]}")
        A("s_mov_b64 exec, -1")
    if cfg.tn and cfg.tpos == 0:
        w7_touch()

    def bb_h2(q):
        if cfg.tn and cfg.tpos == 1 and q == 0:
            A("s_waitcnt lgkmcnt(0)")
            w7_touch()
        if cfg.tn and cfg.tpos >= 2 and q == cfg.tpos - 1:
            w7_touch()
        if cfg.tn and q == 7:
            A("s_waitcnt vmcnt(0)")
        if q == 2 and (cfg.hpre == 3 or cfg.wt > 2):
            A("s_waitcnt vmcnt(0)")
        if cfg.vt and q == 5:
            A(f"s_add_u32 s{sT0}, s{sI}, 1")
            A(f"s_mul_i32 s{sT0}, s{sT0}, 192")
            A(f"s_mul_i32 s{sT1}, s{sMT}, 48")
            A(f"s_add_u32 s{sT0}, s{sT0}, s{sT1}")
            A(f"s_cmp_ge_u32 s{sT0}, 576")
            A(f"s_cselect_b32 s{sT1}, 576, 0")
            A(f"s_sub_u32 s{sT0}, s{sT0}, s{sT1}")
            A(f"s_mul_i32 s{sT1}, s{sJ}, 576")
            A(f"s_add_u32 s{sT0}, s{sT0}, s{sT1}")
            A(f"s_mul_i32 s15, s{sT0}, 1152")
            A(f"s_mul_i32 s{sT1}, s{sI}, 384")
            A(f"s_add_u32 s15, s15, s{sT1}")
            A("v_mul_u32_u24 v5, 1152, v1")
            srd(SRD0, sW2, 5308416)
        ex = 0
        if cfg.vt and q == cfg.vtq:
            A("s_mov_b32 exec_hi, 0xffff")
            for l in range(3 - cfg.vt, 3):
                A(f"buffer_load_dword v255, v5, s[{SRD0}:{SRD0+3}], s15 offen offset:{128*l}")
            A("s_mov_b64 exec, -1")
            ex = cfg.vt
        return (bb_tag(q) or 0) + ex

    HALF[0] = 1
    loader_stream(("H1", "H2"), nbx, issue_xh, lambda: h_setup(1), cfg.capx, validate=validate, before_bar=bb_h2, role="h2")
    ts_max = max(ts_max, tsn[0])
    A("s_branch L_reduce")
    flush_retry()

    A.tail("red")
    sM, sQ = sT5, sT4
    sVC = 16

    def reduce_code(W, nbar):
        x = f"{W}"
        srd(SRD1, sWS, 0x10000000)
        A(f"s_mov_b32 s{sCNT}, 0")
        srd(SRD0, sOUT, 589824)
        if W == 1:
            red_pre(1)
            red_init(1)
            A(f"s_waitcnt vmcnt({cfg.rw1})")
            if cfg.rlate == 1:
                A("s_barrier")

        def ld(s_):
            A(f"s_add_u32 s{sT1}, s{sRI}, {SS*s_}")
            A(f"buffer_load_{dw(W)} {vr(vRD+W*s_, W)}, v{vRA}, s[{SRD1}:{SRD1+3}], s{sT1} offen {cfg.rfl}")
        if W == 2 and cfg.r0early and nbar:
            A(f"s_cmp_ge_u32 s{sC}, 2")
            A("s_cbranch_scc1 L_rlate")
            stamp()
            tsn[0] -= 1 if TS else 0
            for s_ in range(8):
                ld(s_)
            A("s_barrier")
            A("s_branch L_rfirst")
            A.label("L_rlate")
        for _ in range(nbar):
            A("s_barrier")
        stamp()
        enc("rbar")

        def chk_i(s_, dst, t):
            r = vRD + W * s_
            if W == 1:
                o = [f"v_bitop3_b32 v{t}, v{r}, v{vRG}, v{vRG+4} bitop3:0x28"]
            else:
                o = [f"v_xor_b32 v{t}, v{r}, v{vRG}"]
                for k in range(1, W):
                    o.append(f"v_bitop3_b32 v{t}, v{t}, v{r+k}, v{vRG+k} bitop3:0xf6")
                o.append(f"v_and_b32 v{t}, v{vRG+4}, v{t}")
            o.append(f"v_cmp_ne_u32 {dst}, 0, v{t}")
            return o

        def acc_i(s_, t0):
            r = vRD + W * s_
            o = []
            for k in range(W):
                t = t0 + 2 * k
                o.append(f"v_lshlrev_b32 v{t}, 16, v{r+k}")
                o.append(f"v_and_b32 v{t+1}, v{vRG+5}, v{r+k}")
            for k in range(W):
                t = t0 + 2 * k
                o.append(f"v_pk_add_f32 v[{vRC+2*k}:{vRC+1+2*k}], v[{vRC+2*k}:{vRC+1+2*k}], v[{t}:{t+1}]")
            return o

        def masked(sm, fn, tag):
            for g in range(2):
                A(f"s_and_b32 s{sT0}, s{sm}, {0xf << (4*g)}")
                A(f"s_cbranch_scc0 L_{tag}{x}g{g}")
                for s_ in range(4 * g, 4 * g + 4):
                    A(f"s_bitcmp0_b32 s{sm}, {s_}")
                    A(f"s_cbranch_scc1 L_{tag}{x}s{s_}")
                    fn(s_)
                    A.label(f"L_{tag}{x}s{s_}")
                A.label(f"L_{tag}{x}g{g}")

        for s_ in range(8):
            ld(s_)
        for _ in range(nbar, cfg.rnb if W != 1 else 0):
            A("s_barrier")
        if W == 1 and cfg.rlate == 2:
            A("s_barrier")
        if W == 2:
            A.label("L_rfirst")
        for s_ in range(8):
            A(f"s_waitcnt vmcnt({7-s_})")
            c = chk_i(s_, f"s[{sVC+2*s_}:{sVC+2*s_+1}]", vRX)
            a_ = acc_i(s_, vRT)
            while c or a_:
                if c:
                    A(c.pop(0))
                if a_:
                    A(a_.pop(0))
            if s_ >= 2:
                A(f"s_or_b64 vcc, {'s[16:17]' if s_ == 2 else 'vcc'}, s[{sVC+2*s_-2}:{sVC+2*s_-1}]")
        A(f"s_or_b64 vcc, vcc, s[{sVC+14}:{sVC+15}]")
        A(f"s_cbranch_scc0 L_rdone{x}")
        A(f"s_mov_b32 s{sM}, 0")
        for s_ in range(7, -1, -1):
            A(f"s_cmp_lg_u64 s[{sVC+2*s_}:{sVC+2*s_+1}], 0")
            A(f"s_addc_u32 s{sM}, s{sM}, s{sM}")
        A(f"s_xor_b32 s{sQ}, s{sM}, 0xff")
        red_init(W)
        A.label(f"L_rtop{x}")
        masked(sM, ld, "rl")
        masked(sQ, lambda s_: [A(t) for t in acc_i(s_, vRT)], "ra")
        A(f"s_add_u32 s{sCNT}, s{sCNT}, 1")
        A(f"s_mov_b32 s{sQ}, s{sM}")
        A(f"s_cmp_gt_u32 s{sCNT}, {SPIN_MAX}")
        A(f"s_cbranch_scc1 L_rdone{x}")
        A("s_waitcnt vmcnt(0)")

        def chk2(s_):
            for t in chk_i(s_, "vcc", vRX):
                A(t)
            A(f"s_cbranch_vccnz L_rc{x}s{s_}")
            A(f"s_bitset0_b32 s{sM}, {s_}")
            for t in acc_i(s_, vRT):
                A(t)
        masked(sQ, chk2, "rc")
        A(f"s_mov_b32 s{sQ}, 0")
        A(f"s_cmp_lg_u32 s{sM}, 0")
        A(f"s_cbranch_scc1 L_rtop{x}")
        A.label(f"L_rdone{x}")
        stamp()
        enc("rdone")
        for k in range(W):
            A(f"v_cvt_pk_bf16_f32 v{vRC+k}, v{vRC+2*k}, v{vRC+1+2*k}")
        if cfg.owide:
            A("s_nop 1")
            if W == 1:
                for k in range(1, 4):
                    A(f"v_mov_b32_dpp v{vRC+k}, v{vRC} quad_perm:[{k},{k},{k},{k}] row_mask:0xf bank_mask:0xf")
                m = 0x11111111
            else:
                for k in range(2):
                    A(f"v_mov_b32_dpp v{vRC+2+k}, v{vRC+k} quad_perm:[1,1,3,3] row_mask:0xf bank_mask:0xf")
                m = 0x55555555
            A(f"s_mov_b32 exec_lo, {m}")
            A(f"s_mov_b32 exec_hi, {m}")
            A(f"buffer_store_dwordx4 v[{vRC}:{vRC+3}], v{vRO}, s[{SRD0}:{SRD0+3}], s{sRO} offen {cfg.ofl if W > 1 else cfg.ofl1}")
            A("s_mov_b64 exec, -1")
        else:
            A(f"buffer_store_{dw(W)} {vr(vRC, W)}, v{vRO}, s[{SRD0}:{SRD0+3}], s{sRO} offen {cfg.ofl if W > 1 else cfg.ofl1}")
        if TS:
            A(f"s_mov_b32 s{sWS}, s{SRD1}")
            A(f"s_mov_b32 s{sWS+1}, s{SRD1+1}")

    A.label("L_reduce")
    tsn[0] = ts_max
    reduce_code(2, cfg.rb2)
    A(f"s_or_b32 s{sT0}, s{sJ}, s{sI}")
    A(f"s_or_b32 s{sT0}, s{sT0}, s{sC}")
    A(f"s_cmp_lg_u32 s{sT0}, 0")
    A("s_cbranch_scc1 L_noep")
    A(f"v_mov_b32 v16, s{sTAG}")
    A(f"s_lshl_b32 s{sT0}, s{sMT}, 7")
    A(f"s_add_u32 s{sT0}, s{sT0}, {WS_EP}")
    A("s_mov_b64 exec, 1")
    A(f"buffer_store_dword v16, v{vRZ}, s[{SRD1}:{SRD1+3}], s{sT0} offen sc1")
    A("s_mov_b64 exec, -1")
    A.label("L_noep")
    if cfg.enc:
        if cfg.enc == "end":
            A("s_waitcnt vmcnt(0)")
            enc("end")
        if cfg.encw >= 0:
            A(f"s_cmp_lg_u32 s{sWV}, {cfg.encw}")
            A("s_cbranch_scc1 L_end")
        A("s_waitcnt lgkmcnt(0)")
        if cfg.encc:
            A("s_sub_u32 s94, s94, s92")
            A("s_lshr_b32 s94, s94, 1")
        else:
            A("s_sub_u32 s94, s94, s96")
            A(f"s_mul_i32 s94, s94, {cfg.encm}")
        A("s_add_u32 s94, s94, 3000")
        A.label("L_dly")
        A("s_memrealtime s[98:99]")
        A("s_waitcnt lgkmcnt(0)")
        A("s_sub_u32 s98, s98, s96")
        A("s_cmp_lt_u32 s98, s94")
        A("s_cbranch_scc1 L_dly")
    if TS:
        A("s_waitcnt vmcnt(0)")
        stamp()
        A("s_memrealtime s[98:99]")
        A("s_waitcnt lgkmcnt(0)")
        A(f"s_mov_b32 s{sTS+26}, s96"); A(f"s_mov_b32 s{sTS+28}, s98"); A(f"s_mov_b32 s{sTS+30}, s{sCNT}")
        assert tsn[0] <= 12
        tsn[0] = 16
        stamp_flush()
    A("s_branch L_end")

    A.head("c")
    A.label("L_compute")
    tsn[0] = ts_base
    vACC, vAB, vXB, vT = 16, 64, 96, 240
    nAB = D + 1
    vA, vBX, vBH, vHW = [2, 3, 4], [5, 6, 7, 8], [9, 10, 11], [12, 13, 14]
    vTG, vL16 = vT + 11, vT + 10
    assert vAB + 4 * nAB <= vXB
    sA, sBq = sT4, sT5
    A(f"s_and_b32 s{sA}, s{sWV}, 1")
    A(f"s_lshr_b32 s{sBq}, s{sWV}, 1")
    A(f"v_lshrrev_b32 v{vT}, 5, v1")
    A(f"s_mul_i32 s60, s{sJ}, 1152")
    A(f"s_mul_i32 s{sT1}, s{sI}, 384")
    A(f"s_add_u32 s60, s60, s{sT1}")
    A(f"s_lshl_b32 s{sT1}, s{sBq}, 6")
    A(f"s_add_u32 s61, s60, s{sT1}")
    A(f"v_lshlrev_b32 v{vT+4}, 3, v{vT}")
    if cfg.sa:
        A(f"s_add_u32 s{sT3}, s{sWV}, 1")
        A(f"v_and_b32 v{vT+5}, 7, v1")
        A(f"v_mul_u32_u24 v{vT+5}, 9216, v{vT+5}")
        A(f"v_lshrrev_b32 v{vT+6}, 3, v1")
        A(f"v_min_u32 v{vT+6}, 2, v{vT+6}")
        A(f"v_lshl_add_u32 v{vT+5}, v{vT+6}, 7, v{vT+5}")
        A(f"s_lshl_b32 s{sT1}, s{sT3}, 3")
        A(f"s_add_u32 s{sT1}, s{sT1}, s{sMT}")
        A(f"s_mul_i32 s{sT1}, s{sT1}, {8*9216}")
        A(f"s_add_u32 s{sT1}, s{sT1}, s60")
        A(f"s_mul_i32 s{sT2}, s{sI}, 22")
        A(f"v_min_u32 v{vT+6}, 21, v1")
        A(f"v_add_u32 v{vT+6}, s{sT2}, v{vT+6}")
        A(f"v_min_u32 v{vT+6}, 63, v{vT+6}")
        A(f"v_mul_u32_u24 v{vT+6}, 1152, v{vT+6}")
        A(f"s_mul_i32 s{sT2}, s{sMT}, {64*1152}")
        A(f"s_lshl_b32 s{sT3}, s{sT3}, 7")
        A(f"s_add_u32 s{sT2}, s{sT2}, s{sT3}")
    A("s_waitcnt lgkmcnt(0)")
    srd(SRD0, sB1, 9216)
    for l in range(3):
        for g in range(4):
            r = vXB + 2 * (4 * l + g)
            A(f"buffer_load_dwordx2 v[{r}:{r+1}], v{vT+4}, s[{SRD0}:{SRD0+3}], s61 offen offset:{128*l+16*g}")
    if cfg.sa:
        srd(SRD1, sW1, 5308416)
        srd(SRD2, sX, 589824)
        A(f"s_cmp_ge_u32 s{sWV}, {cfg.sa}")
        A("s_cbranch_scc1 L_tdone")
        A(f"buffer_load_dword v255, v{vT+5}, s[{SRD1}:{SRD1+3}], s{sT1} offen {cfg.tfl}")
        A(f"buffer_load_dword v255, v{vT+6}, s[{SRD2}:{SRD2+3}], s{sT2} offen")
        A.label("L_tdone")
    epoch_load(sMT)
    A.tail("c")
    srd(SRD2, sB2, 1152)
    A(f"v_and_b32 v{vT+1}, 3, v1")
    A(f"v_lshlrev_b32 v{vT+1}, 2, v{vT+1}")
    A(f"v_lshl_add_u32 v{vT+1}, v{vT}, 4, v{vT+1}")
    A(f"s_mul_i32 s{sT1}, s{sI}, 384")
    A(f"s_lshl_b32 s{sT0}, s{sWV}, 5")
    A(f"s_add_u32 s{sT1}, s{sT1}, s{sT0}")
    A(f"buffer_load_dword v249, v{vT+1}, s[{SRD2}:{SRD2+3}], s{sT1} offen offset:256")
    srd(SRD1, sWS, 0x10000000)
    A(f"v_bfe_u32 v{vT+1}, v1, 2, 2")
    A(f"v_lshl_add_u32 v{vT+2}, v{vT}, 2, v{vT+1}")
    A(f"v_lshlrev_b32 v{vT+2}, 7, v{vT+2}")
    A(f"v_bfe_u32 v{vT+3}, v1, 3, 1")
    A(f"v_xor_b32 v{vT+3}, s{sBq}, v{vT+3}")
    A(f"v_lshl_add_u32 v{vT+2}, v{vT+3}, 6, v{vT+2}")
    A(f"v_bfe_u32 v{vT+3}, v1, 4, 1")
    A(f"v_lshl_add_u32 v{vT+2}, v{vT+3}, 5, v{vT+2}")
    A(f"v_and_b32 v{vT+3}, 3, v1")
    A(f"v_lshl_add_u32 v{vA[0]}, v{vT+3}, 3, v{vT+2}")
    A(f"v_add_u32 v{vA[1]}, 0x10000, v{vA[0]}")
    A(f"v_add_u32 v{vA[2]}, 0x20000, v{vA[0]}")
    A(f"v_and_b32 v{vT+1}, 31, v1")
    A(f"v_bfe_u32 v{vT+2}, v1, 1, 3")
    A(f"v_xor_b32 v{vT+2}, v{vT}, v{vT+2}")
    A(f"v_lshlrev_b32 v{vT+2}, 4, v{vT+2}")
    A(f"v_lshl_add_u32 v{vT+2}, v{vT+1}, 7, v{vT+2}")
    A(f"s_lshl_b32 s{sT0}, s{sA}, 12")
    A(f"s_add_u32 s{sT1}, s{sT0}, 0x20000")
    A(f"v_add_u32 v{vBX[0]}, s{sT1}, v{vT+2}")
    for sp in range(1, 4):
        A(f"v_xor_b32 v{vBX[sp]}, {32*sp}, v{vBX[0]}")
    A(f"v_lshl_add_u32 v{vBH[0]}, v1, 4, s{sT0}")
    A(f"v_add_u32 v{vBH[1]}, 0x10000, v{vBH[0]}")
    A(f"v_add_u32 v{vBH[2]}, 0x20000, v{vBH[0]}")
    A(f"s_lshl_b32 s{sT1}, s{sBq}, 11")
    for k in range(3):
        A(f"v_add_u32 v{vHW[k]}, s{sT1}, v{vBH[k]}")
    sI0 = 38
    sMS, sML, sMC = 39, 63, 59
    sHS = [60, 61, 62]
    A(f"s_mul_i32 s{sI0}, s{sA}, {4*SD}")
    A(f"s_mul_i32 s{sT1}, s{sR}, {SR}")
    A(f"s_add_u32 s{sI0}, s{sI0}, s{sT1}")
    A(f"s_mul_i32 s{sT1}, s{sJ}, {SS}")
    A(f"s_add_u32 s{sI0}, s{sI0}, s{sT1}")
    A(f"s_add_u32 s{sI0}, s{sI0}, {WS_IN}")
    A(f"s_lshl_b32 s{sT1}, s{sBq}, 9")
    A(f"s_add_u32 s{sI0}, s{sI0}, s{sT1}")
    A(f"v_bfe_u32 v{vT+1}, v1, 3, 2")
    A(f"v_mul_u32_u24 v{vT+1}, {SD}, v{vT+1}")
    A(f"v_and_b32 v{vT+2}, 7, v1")
    A(f"v_lshl_add_u32 v{vT+1}, v{vT+2}, 4, v{vT+1}")
    A(f"v_lshl_add_u32 v{vL16}, v{vT}, 7, v{vT+1}")
    A(f"s_mov_b32 s{sMS}, 0x80008000")
    A(f"s_mov_b32 s{sML}, 0x00010001")
    A(f"s_mov_b32 s{sMC}, 0x7fff7fff")
    A(f"s_mul_i32 s{sHS[0]}, s{sWK}, 24576")
    if WS_H:
        A(f"s_add_u32 s{sHS[0]}, s{sHS[0]}, {WS_H}")
    A(f"s_add_u32 s{sHS[1]}, s{sHS[0]}, 8192")
    A(f"s_add_u32 s{sHS[2]}, s{sHS[0]}, 16384")
    def dummy(n, tag):
        if not n:
            return
        for k in range(8):
            A(f"v_mul_u32_u24 v{160+k}, {0x9e3779 + 77*k}, v0")
            A(f"v_and_b32 v{160+k}, 0x3fff3fff, v{160+k}")
        A(f"s_mov_b32 s15, {n // 4}")
        A.label(f"L_dum{tag}")
        for k in range(4):
            A(f"v_mfma_f32_32x32x16_bf16 v[{176+16*k}:{191+16*k}], v[{160+4*(k&1)}:{163+4*(k&1)}], v[{160+4*(k>>1)}:{163+4*(k>>1)}], 0")
        A("s_sub_u32 s15, s15, 1")
        A("s_cmp_lg_u32 s15, 0")
        A(f"s_cbranch_scc1 L_dum{tag}")
    dummy(cfg.dum1, "a")
    epoch_fin()
    slot_add(sI0, *sHS)
    sIL = [sI0, 10, 11]
    assert not any(ROT)
    A(f"s_add_u32 s10, s{sI0}, {SL}")
    A(f"s_add_u32 s11, s{sI0}, {2*SL}")
    tag_regs(vTG, vT + 1)
    assert not cfg.sa
    A("s_waitcnt vmcnt(1)")
    if cfg.sa:
        A(f"s_cmp_lt_u32 s{sWV}, {cfg.sa}")
        A("s_cbranch_scc1 L_bw")
        A("s_waitcnt vmcnt(0)")
        A.label("L_bw")
    for l in range(3):
        for g in range(4):
            r = vXB + 2 * (4 * l + g)
            d = vACC + 16 * l + 4 * g
            A(f"v_lshlrev_b32 v{d}, 16, v{r}")
            A(f"v_and_b32 v{d+1}, 0xffff0000, v{r}")
            A(f"v_lshlrev_b32 v{d+2}, 16, v{r+1}")
            A(f"v_and_b32 v{d+3}, 0xffff0000, v{r+1}")
    dummy(cfg.dum2, "b")
    stamp()

    items = []
    for st in stages:
        bykb = {}
        for u in st["units"]:
            bykb.setdefault(u[2], []).append(u)
        for kb, us in bykb.items():
            if st["q"] == n_g1 - 1 and cfg.tm:
                seq = [int(c) for c in cfg.tm]
                nsp = {0: 0, 1: 0, 2: 0}
                for t_ in seq:
                    (t, wb, _kb, fst) = [u for u in us if u[0] == t_][0]
                    items.append(dict(q=st["q"], tile=t, wb=wb, kb=kb, sp=nsp[t], first=False))
                    nsp[t] += 1
                assert all(v == 4 for v in nsp.values())
                continue
            if len(us) == 2 and cfg.chain:
                for (t, wb, _kb, fst) in us:
                    for sp in range(4):
                        items.append(dict(q=st["q"], tile=t, wb=wb, kb=kb, sp=sp, first=(fst and sp == 0)))
                continue
            for sp in range(4):
                for (t, wb, _kb, fst) in us:
                    items.append(dict(q=st["q"], tile=t, wb=wb, kb=kb, sp=sp, first=(fst and sp == 0)))
    NI = len(items)
    aux_used = set()
    if cfg.dual:
        own_end = max(n for n, it in enumerate(items) if it["q"] >= n_g1 and it["kb"] < 3)
        assert all(kbidx[(0, l)] < 3 for l in range(3))
        for n, it in enumerate(items):
            if n > own_end + 1 and items[n - 1]["tile"] == it["tile"]:
                it["first"] = it["tile"] not in aux_used
                aux_used.add(it["tile"])
                it["tile"] += 3

    def accbase(t):
        return vACC + 16 * t if t < 3 else vXB + 16 * (t - 3)
    last_item = {}
    for n, it in enumerate(items):
        last_item[it["q"]] = n
    bread_of = {(st["q"], kb): bb for st in stages for (bb, kb) in st["breads"]}
    lg = []

    def ds_issue(instr, tag):
        cap = 14 if TS else 15
        if len(lg) >= cap:
            A(f"s_waitcnt lgkmcnt({cap-2})")
            del lg[:len(lg) - (cap - 2)]
        A(instr)
        lg.append(tag)

    def ds_need(tags):
        idx = max([i for i, t in enumerate(lg) if t in tags], default=-1)
        if idx >= 0:
            A(f"s_waitcnt lgkmcnt({len(lg) - 1 - idx})")
            del lg[:idx + 1]

    checked = [-1]
    bdone = set()
    dirty, clean_pos = {}, {}

    def clean(m):
        key = (items[m]["kb"], items[m]["sp"])
        if key in dirty and dirty[key] == m:
            del dirty[key]
            ds_need({("B",) + key})
            r = vXB + 16 * key[0] + 4 * key[1]
            for k in range(4):
                A(f"v_and_b32 v{r+k}, s{sMC}, v{r+k}")
            clean_pos[m] = len(A.L) - 1

    def issue_reads(n):
        it = items[n]
        q = it["q"]
        if q > checked[0]:
            ds_need({"hw"})
            A("s_barrier")
            checked[0] = q
            if q in cfg.tsq:
                stamp()
        key = (q, it["kb"])
        if key in bread_of and (key, it["sp"]) not in bdone:
            bdone.add((key, it["sp"]))
            bb = blocks[bread_of[key]]
            addr = bb["slot"] * 8192
            r = vXB + 16 * it["kb"] + 4 * it["sp"]
            if bb["kind"] == "X":
                assert addr >> 16 == 2
                ds_issue(f"ds_read_b128 v[{r}:{r+3}], v{vBX[it['sp']]} offset:{addr & 0xffff}", ("B", it["kb"], it["sp"]))
            else:
                ds_issue(f"ds_read_b128 v[{r}:{r+3}], v{vBH[addr >> 16]} offset:{(addr & 0xffff) + 1024*it['sp']}",
                         ("B", it["kb"], it["sp"]))
                if bb["kind"] != "Hown":
                    if not cfg.hlsb:
                        dirty[(it["kb"], it["sp"])] = n
        wb = blocks[it["wb"]]
        addr = wb["slot"] * 8192 + 2048 * it["sp"]
        r = vAB + 4 * (n % nAB)
        ds_issue(f"ds_read_b64_tr_b16 v[{r}:{r+1}], v{vA[addr >> 16]} offset:{addr & 0xffff}", ("A", n))
        ds_issue(f"ds_read_b64_tr_b16 v[{r+2}:{r+3}], v{vA[addr >> 16]} offset:{(addr & 0xffff) + 1024}", ("A", n))

    post = []

    def epi1_instrs(pi, lines):
        out, late = [], []
        for l in lines:
            a = vACC + 16 * l
            addr = blocks[f"H0_{l}"]["slot"] * 8192
            for half in range(2):
                base = a + 8 * half
                if cfg.epi == 1:
                    assert cfg.hlsb
                    for k in range(8):
                        out.append(("v", f"v_mul_f32 v{base+k}, v{base+k}, |v{base+k}|"))
                    for k in range(4):
                        out.append(("v", f"v_cvt_pk_bf16_f32 v{base+k}, v{base+2*k}, v{base+2*k+1}"))
                    for k in range(4):
                        out.append(("v", f"v_pk_max_i16 v{base+k}, v{base+k}, 0"))
                else:
                    for k in range(8):
                        out.append(("v", f"v_max_f32 v{base+k}, 0, v{base+k}"))
                    for k in range(0, 8, 2):
                        out.append(("v", f"v_pk_mul_f32 v[{base+k}:{base+k+1}], v[{base+k}:{base+k+1}], v[{base+k}:{base+k+1}]"))
                    for k in range(4):
                        out.append(("v", f"v_cvt_pk_bf16_f32 v{base+k}, v{base+2*k}, v{base+2*k+1}"))
                for k in range(4):
                    out.append(("v", f"v_bfi_b32 v{base+4+k}, s{sML}, v{vTG+k}, v{base+k}" if cfg.hlsb else
                                f"v_and_or_b32 v{base+4+k}, v{vTG+k}, s{sMS}, v{base+k}"))
                out.append(("v", f"buffer_store_dwordx4 v[{base+4}:{base+7}], v{vHW[0]}, s[{SRD1}:{SRD1+3}], s{sHS[l]} offen offset:{1024*half} {cfg.hsf}"))
                out.append(("w", f"ds_write_b128 v{vHW[addr >> 16]}, v[{base}:{base+3}] offset:{(addr & 0xffff) + 1024*half}"))
                t = ("v", f"buffer_load_dword v255, v{vHW[0]}, s[{SRD1}:{SRD1+3}], s{sHS[l]} offen offset:{1024*half} {cfg.stf}")
                if cfg.stouch == 1:
                    out.append(t)
                elif cfg.stouch == 2:
                    late.append(t)
                elif cfg.stouch == 3:
                    post.append(t)
        return out + late

    def epi2_instrs(lines):
        out = []
        for l in lines:
            for u in range(2):
                base = vACC + 8 * (2 * l + u)
                if l in aux_used:
                    ab = accbase(l + 3) + 8 * u
                    for k in range(0, 8, 2):
                        out.append(("v", f"v_pk_add_f32 v[{base+k}:{base+k+1}], v[{base+k}:{base+k+1}], v[{ab+k}:{ab+k+1}]"))
                for k in range(4):
                    out.append(("v", f"v_cvt_pk_bf16_f32 v{base+k}, v{base+2*k}, v{base+2*k+1}"))
                out.append(("v", "s_nop 1"))
                out.append(("v", f"v_permlane32_swap_b32 v{base}, v{base+2}"))
                out.append(("v", f"v_permlane32_swap_b32 v{base+1}, v{base+3}"))
                for k in (0, 2, 1, 3):
                    out.append(("v", f"v_bfi_b32 v{base+k}, s{sML}, v{vTG+k}, v{base+k}"))
                out.append(("v", f"buffer_store_dwordx4 v[{base}:{base+3}], v{vL16}, s[{SRD1}:{SRD1+3}], s{sIL[l]} offen offset:{256*u} {cfg.psf}"))
        return out

    fillers = []
    fill_start = 0
    fill_tiles = set()
    mfma_pos = {}
    fill_fresh = [False]

    def states_since(pos):
        c = 0
        for ln in A.L[pos + 1:]:
            t = ln.strip()
            if t.endswith(":") or t.startswith(";") or t.startswith("@@"):
                continue
            c += int(t.split()[1]) + 1 if t.startswith("s_nop") else 1
        return c

    late_w = []

    def emit(kind, t):
        if kind == "mark":
            have = min(states_since(mfma_pos[tl]) for tl in t[0])
            if have < 12:
                A(f"s_nop {12 - have - 1}")
        elif kind == "w":
            ds_issue(t, "hw")
        else:
            A(t)

    def flush_fillers():
        nonlocal fillers
        for (kind, t) in fillers + late_w:
            emit(kind, t)
        fillers = []
        late_w.clear()
        fill_tiles.clear()

    trig = {}
    for l in range(3):
        trig[max(n for n, it in enumerate(items) if it["q"] < n_g1 and it["tile"] == l)] = (1, l)
        trig[max(n for n, it in enumerate(items) if it["q"] >= n_g1 and it["tile"] % 3 == l)] = (2, l)

    nread = 0
    for n in range(NI):
        it = items[n]
        lim = min(NI - 1, n + D)
        while nread <= lim:
            nx = items[nread]
            if nx["q"] > checked[0]:
                due = [l for l, v in hown_vis.items() if v == nx["q"]]
                if due:
                    if last_item[hown_w[due[0]]] >= n:
                        break
                    flush_fillers()
            key = (nx["q"], nx["kb"])
            if key in bread_of and (key, nx["sp"]) not in bdone:
                if any(items[m]["kb"] == nx["kb"] and items[m]["sp"] == nx["sp"] for m in range(n, nread)):
                    break
            issue_reads(nread)
            nread += 1
        assert nread > n
        if it["tile"] in fill_tiles:
            flush_fillers()
            A("s_nop 1")
        clean(n)
        ds_need({("A", n), ("B", it["kb"], it["sp"])})
        if it["first"]:
            ds_need({"hw"})
        if n in clean_pos and states_since(clean_pos[n]) < 2:
            A(f"s_nop {1 - states_since(clean_pos[n])}")
        ra = vAB + 4 * (n % nAB)
        rb = vXB + 16 * it["kb"] + 4 * it["sp"]
        acc = accbase(it["tile"])
        c = "0" if it["first"] else f"v[{acc}:{acc+15}]"
        if cfg.m16test == 1:
            for hh in range(2):
                a4 = acc + 8 * (it["sp"] & 1) + 4 * hh
                rb2 = vXB + 16 * it["kb"] + 4 * (it["sp"] if hh == 0 else max(it["sp"] - 1, 0))
                A(f"v_mfma_f32_16x16x32_bf16 v[{a4}:{a4+3}], v[{ra}:{ra+3}], v[{rb2}:{rb2+3}], v[{a4}:{a4+3}]")
        elif cfg.m16test == 2:
            A("s_nop 7")
        else:
            A(f"v_mfma_f32_32x32x16_bf16 v[{acc}:{acc+15}], v[{ra}:{ra+3}], v[{rb}:{rb+3}], {c}")
        mfma_pos[it["tile"]] = len(A.L) - 1
        if n + 1 < nread:
            clean(n + 1)
        k = 0
        while fillers and k < (cfg.fill1 if it["q"] < n_g1 else cfg.fill):
            if fillers[0][0] == "mark" and n < fillers[0][1][1]:
                break
            kind, t = fillers.pop(0)
            emit(kind, t)
            k += kind != "mark"
        if not fillers and not late_w:
            fill_tiles.clear()
        if n == last_item[it["q"]] and (it["q"] in epi_after or it["q"] in epi2_after):
            stamp()
        if n in trig:
            g, l = trig[n]
            tl = [l] + ([l + 3] if (g == 2 and l in aux_used) else [])
            new = epi1_instrs(0, [l]) if g == 1 else epi2_instrs([l])
            if cfg.wlast:
                late_w.extend(x for x in new if x[0] == "w")
                new = [x for x in new if x[0] != "w"]
            fillers += [("mark", (tl, n + cfg.fdel))] + new
            fill_tiles.update(tl)
    flush_fillers()
    stamp()
    if cfg.rnb >= 1 and not cfg.rlate:
        A("s_barrier")
    reduce_code(1, 0)
    if TS:
        A("s_waitcnt vmcnt(0)")
        A("s_memrealtime s[98:99]")
        A("s_waitcnt lgkmcnt(0)")
        assert tsn[0] <= 14, tsn[0]
        A(f"s_mov_b32 s{sTS+28}, s98"); A(f"s_mov_b32 s{sTS+30}, s{sCNT}")
        tsn[0] = 16
        stamp_flush()
    if cfg.enc and cfg.encw < 4:
        A("s_branch L_noep")
    A("s_branch L_end")

    A.head("hl")
    A.label("L_helper")
    sG = 38
    A(f"s_lshl_b32 s{sG}, s{sWV}, 3")
    A(f"s_add_u32 s{sG}, s{sG}, s{sR}")
    A("v_mul_u32_u24 v8, 9216, v1")
    A("v_mul_u32_u24 v9, 1152, v1")
    A(f"s_mul_i32 s39, s{sJ}, 1152")
    A("s_waitcnt lgkmcnt(0)")
    NWT = 64

    def sdiv(dst, src, d):
        A(f"s_mul_i32 s{dst}, s{src}, {(65536 + d - 1) // d}")
        A(f"s_lshr_b32 s{dst}, s{dst}, 16")

    w2base = 0
    if cfg.touch and any(ROT):
        srd(SRD0, sW1, 5308416)
        srd(SRD1, sX, 589824)
        need = {kk: min((kk - r) % 9 for r in ROT) for kk in range(9)}
        kks = sorted([kk for kk in range(9) if need[kk] >= cfg.skipw], key=lambda kk: need[kk])
        KT = sum(kk << (4 * u) for u, kk in enumerate(kks))
        nW = 9 * len(kks)
        x0 = cfg.skipx
        nX = 8 * (9 - x0)
        tot = nW + nX
        for rnd in range((tot + NWT - 1) // NWT):
            if rnd == 1:
                A.tail("hl")
            k = A.uid()
            A(f"s_add_u32 s{sT0}, s{sG}, {NWT*rnd}")
            if NWT * rnd < nW:
                if NWT * rnd + NWT > nW:
                    A(f"s_cmp_ge_u32 s{sT0}, {nW}")
                    A(f"s_cbranch_scc1 L_hx{k}")
                sdiv(sT1, sT0, 9)
                A(f"s_mul_i32 s{sT2}, s{sT1}, 9")
                A(f"s_sub_u32 s{sT2}, s{sT0}, s{sT2}")
                A(f"s_lshl_b32 s{sT1}, s{sT1}, 2")
                A(f"s_lshr_b32 s{sT1}, {KT}, s{sT1}")
                A(f"s_and_b32 s{sT1}, s{sT1}, 15")
                A(f"s_mul_i32 s{sT1}, s{sT1}, {64*9216}")
                A(f"s_lshl_b32 s{sT2}, s{sT2}, 7")
                A(f"s_add_u32 s{sT1}, s{sT1}, s{sT2}")
                A(f"s_add_u32 s{sT1}, s{sT1}, s39")
                A(f"buffer_load_dword v255, v8, s[{SRD0}:{SRD0+3}], s{sT1} offen {cfg.tfl}")
                if NWT * rnd + NWT > nW:
                    A(f"s_branch L_ht{k}")
            if NWT * rnd + NWT > nW:
                A.label(f"L_hx{k}")
                if NWT * rnd + NWT > tot:
                    A(f"s_cmp_ge_u32 s{sT0}, {tot}")
                    A(f"s_cbranch_scc1 L_ht{k}")
                A(f"s_sub_u32 s{sT0}, s{sT0}, {nW - 8*x0}")
                A(f"s_and_b32 s{sT2}, s{sT0}, 7")
                A(f"s_lshr_b32 s{sT1}, s{sT0}, 3")
                A(f"s_lshl_b32 s{sT3}, s{sT2}, 2")
                A(f"s_lshr_b32 s{sT3}, {ROTTAB}, s{sT3}")
                A(f"s_and_b32 s{sT3}, s{sT3}, 15")
                A(f"s_add_u32 s{sT1}, s{sT1}, s{sT3}")
                A(f"s_cmp_ge_u32 s{sT1}, 9")
                A(f"s_cselect_b32 s{sT3}, 9, 0")
                A(f"s_sub_u32 s{sT1}, s{sT1}, s{sT3}")
                A(f"s_mul_i32 s{sT2}, s{sT2}, {64*1152}")
                A(f"s_lshl_b32 s{sT1}, s{sT1}, 7")
                A(f"s_add_u32 s{sT1}, s{sT1}, s{sT2}")
                A(f"buffer_load_dword v255, v9, s[{SRD1}:{SRD1+3}], s{sT1} offen")
            A.label(f"L_ht{k}")
        w2base = (NWT - tot % NWT) % NWT
    elif cfg.touch:
        srd(SRD0, sW1, 5308416)
        srd(SRD1, sX, 589824)
        phases, base = [], 0
        for pi, ls in enumerate(passes):
            t0 = cfg.ht0 if pi == 0 else 0
            c = 3 * len(ls) + (8 if pi == 0 else 0)
            phases.append((base, (9 - t0 - cfg.tn) * c, t0, c, ls))
            base += (9 - t0 - cfg.tn) * c
        w2base = (NWT - base % NWT) % NWT if cfg.w2rot else 0
        for rnd in range((base + NWT - 1) // NWT):
            if rnd == 1:
                A.tail("hl")
            k = A.uid()
            A(f"s_add_u32 s{sT0}, s{sG}, {NWT*rnd}")
            for (pb, cnt, t0, c, ls) in phases:
                if pb + cnt <= NWT * rnd or pb >= NWT * rnd + NWT:
                    continue
                k2 = A.uid()
                A(f"s_cmp_ge_u32 s{sT0}, {pb+cnt}")
                A(f"s_cbranch_scc1 L_hp{k2}")
                if pb:
                    A(f"s_sub_u32 s{sT0}, s{sT0}, {pb}")
                sdiv(sT1, sT0, c)
                A(f"s_mul_i32 s{sT2}, s{sT1}, {c}")
                A(f"s_sub_u32 s{sT2}, s{sT0}, s{sT2}")
                if t0:
                    A(f"s_add_u32 s{sT1}, s{sT1}, {t0}")
                if cfg.tn:
                    A(f"s_cmp_ge_u32 s{sT1}, {cfg.ta}")
                    A(f"s_cselect_b32 s{sT3}, {cfg.tn}, 0")
                    A(f"s_add_u32 s{sT1}, s{sT1}, s{sT3}")
                nw = 3 * len(ls)
                if c > nw:
                    A(f"s_cmp_ge_u32 s{sT2}, {nw}")
                    A(f"s_cbranch_scc1 L_hx{k2}")
                if len(ls) != 3:
                    if len(ls) == 1:
                        A(f"s_mul_i32 s{sT2}, s{sT2}, 3")
                    else:
                        A(f"s_lshr_b32 s{sT3}, s{sT2}, 1")
                        A(f"s_add_u32 s{sT2}, s{sT2}, s{sT3}")
                    if ls[0]:
                        A(f"s_add_u32 s{sT2}, s{sT2}, {ls[0]}")
                A(f"s_mul_i32 s{sT1}, s{sT1}, {64*9216}")
                A(f"s_lshl_b32 s{sT2}, s{sT2}, 7")
                A(f"s_add_u32 s{sT1}, s{sT1}, s{sT2}")
                A(f"s_add_u32 s{sT1}, s{sT1}, s39")
                A(f"buffer_load_dword v255, v8, s[{SRD0}:{SRD0+3}], s{sT1} offen {cfg.tfl}")
                A(f"s_branch L_ht{k}")
                if c > nw:
                    A.label(f"L_hx{k2}")
                    A(f"s_sub_u32 s{sT2}, s{sT2}, {nw}")
                    A(f"s_mul_i32 s{sT2}, s{sT2}, {64*1152}")
                    A(f"s_lshl_b32 s{sT1}, s{sT1}, 7")
                    A(f"s_add_u32 s{sT1}, s{sT1}, s{sT2}")
                    A(f"buffer_load_dword v255, v9, s[{SRD1}:{SRD1+3}], s{sT1} offen")
                    A(f"s_branch L_ht{k}")
                A.label(f"L_hp{k2}")
            A.label(f"L_ht{k}")
    def h_pretouch():
        srd(SRD1, sWS, 0x10000000)
        A("v_lshlrev_b32 v10, 7, v1")
        A(f"s_mul_i32 s{sT1}, s{sJ}, 589824")
        A(f"s_add_u32 s{sT1}, s{sT1}, {WS_IN if cfg.hpin else WS_H}")
        for rnd in range(2):
            k = A.uid()
            A(f"s_add_u32 s{sT0}, s{sG}, {NWT*rnd}")
            A(f"s_cmp_ge_u32 s{sT0}, 72")
            A(f"s_cbranch_scc1 L_ht{k}")
            A(f"s_lshl_b32 s{sT0}, s{sT0}, 13")
            A(f"s_add_u32 s{sT0}, s{sT0}, s{sT1}")
            A(f"buffer_load_dword v255, v10, s[{SRD1}:{SRD1+3}], s{sT0} offen {cfg.hpf}")
            A.label(f"L_ht{k}")
    if cfg.hpre == 1:
        h_pretouch()
    if cfg.touch:
        srd(SRD0, sW2, 5308416)
        A(f"s_mul_i32 s39, s{sJ}, 663552")
        vord = [blocks[nm] for nm in order if blocks[nm]["kind"] == "W2"]
        if not cfg.vneed:
            vord.sort(key=lambda b: (kbidx[(b["d"], b["lk"])], b["l"]))
        for reg, key in ((60, "d"), (62, "lk"), (44, "l")):
            tab = sum(b[key] << (2 * u) for u, b in enumerate(vord))
            A(f"s_mov_b32 s{reg}, {tab & 0xffffffff}")
            A(f"s_mov_b32 s{reg+1}, {tab >> 32}")
        if w2base:
            A(f"s_add_u32 s{sG}, s{sG}, {w2base}")
            A(f"s_and_b32 s{sG}, s{sG}, 63")
        for rnd in range(2):
            k = A.uid()
            A(f"s_add_u32 s{sT0}, s{sG}, {NWT*rnd}")
            A(f"s_cmp_ge_u32 s{sT0}, {81 - 18*cfg.vt}")
            A(f"s_cbranch_scc1 L_ht{k}")
            sdiv(sT1, sT0, 3)
            A(f"s_mul_i32 s{sT2}, s{sT1}, 3")
            A(f"s_sub_u32 s{sT2}, s{sT0}, s{sT2}")
            A(f"s_lshl_b32 s{sT1}, s{sT1}, 1")
            A(f"s_lshr_b64 s[46:47], s[60:61], s{sT1}")
            A(f"s_and_b32 s{sT0}, s46, 3")
            A(f"s_add_u32 s{sT0}, s{sT0}, s{sT2}")
            A(f"s_cmp_ge_u32 s{sT0}, 3")
            A(f"s_cselect_b32 s{sT3}, 3, 0")
            A(f"s_sub_u32 s{sT0}, s{sT0}, s{sT3}")
            A(f"s_lshr_b64 s[46:47], s[62:63], s{sT1}")
            A(f"s_and_b32 s{sT3}, s46, 3")
            A(f"s_mul_i32 s{sT0}, s{sT0}, {192*1152}")
            A(f"s_mul_i32 s{sT3}, s{sT3}, {64*1152}")
            A(f"s_add_u32 s{sT0}, s{sT0}, s{sT3}")
            A(f"s_lshr_b64 s[46:47], s[44:45], s{sT1}")
            A(f"s_and_b32 s{sT3}, s46, 3")
            A(f"s_mul_i32 s{sT2}, s{sT2}, 3")
            A(f"s_add_u32 s{sT2}, s{sT2}, s{sT3}")
            A(f"s_lshl_b32 s{sT2}, s{sT2}, 7")
            A(f"s_add_u32 s{sT0}, s{sT0}, s{sT2}")
            A(f"s_add_u32 s{sT0}, s{sT0}, s39")
            A(f"buffer_load_dword v255, v9, s[{SRD0}:{SRD0+3}], s{sT0} offen {cfg.tfl}")
            A.label(f"L_ht{k}")
    if cfg.hpre == 2:
        h_pretouch()
    dummy(cfg.dumh, "h")
    if TS:
        tsn[0] = 1
        A("s_waitcnt vmcnt(0)")
        stamp()
        stamp()
        stamp_flush()
    A("s_branch L_end")
    A.tail("end")
    A.label("L_end")

    hdr = f"""; Fused MLP (x@w1+b1 -> relu^2 -> @w2+b2), generated by a python script (work/gen8.py)
; @launch grid=(256,1,1) block=(512,1,1) lds=163840
.amdgcn_target "amdgcn-amd-amdhsa--gfx950"
.text
.globl {KN}
.p2align 8
.type {KN},@function
{KN}:
"""
    ftr = f"""
    s_endpgm
.section .rodata,"a"
.p2align 6
.amdhsa_kernel {KN}
  .amdhsa_next_free_vgpr 256
  .amdhsa_next_free_sgpr 102
  .amdhsa_accum_offset 256
  .amdhsa_group_segment_fixed_size 0
  .amdhsa_kernarg_size 64
  .amdhsa_user_sgpr_count 2
  .amdhsa_user_sgpr_kernarg_segment_ptr 1
  .amdhsa_system_sgpr_workgroup_id_x 1
.end_amdhsa_kernel
"""
    return hdr + A.text(cfg.horder.split(","), cfg.torder.split(",") + ["end"]) + ftr


def parse_g2(s):
    out = []
    for stg in s.split(","):
        us = []
        for u in stg.split("+"):
            a, b = u.split(":")
            us.append((int(a[0]), int(a[1]), [int(c) for c in b]))
        out.append(us)
    return out


def ilist(s):
    return [int(x) for x in s.split(",")] if s else []


def main():
    ap = argparse.ArgumentParser()
    ap.add_argument("-o", default="k8.s")
    ap.add_argument("--ts", action="store_true")
    ap.add_argument("--passes", default="012")
    ap.add_argument("--depth", type=int, default=5)
    ap.add_argument("--fill", type=int, default=4)
    ap.add_argument("--grp1", type=int, default=3)
    ap.add_argument("--hres", type=float, default=2.5)
    ap.add_argument("--hearly", type=float, default=1.5)
    ap.add_argument("--hdel", type=int, default=1)
    ap.add_argument("--xfree", type=int, default=11)
    ap.add_argument("--g2", default="00:012,01:012,02:012,10:012,20:012,11:012,21:012,12:012,22:012")
    ap.add_argument("--tsq", default="")
    ap.add_argument("--verbose", action="store_true")
    ap.add_argument("--ahead", type=int, default=8)
    ap.add_argument("--ahead0", type=int, default=8)
    ap.add_argument("--capfrom", type=int, default=8)
    ap.add_argument("--capw", type=int, default=4)
    ap.add_argument("--capx", type=int, default=3)
    ap.add_argument("--burst", default="")
    ap.add_argument("--pause", default="")
    ap.add_argument("--go2lead", type=int, default=3)
    ap.add_argument("--sa", type=int, default=0)
    ap.add_argument("--ctouch", type=int, default=1)
    ap.add_argument("--wfl", default="")
    ap.add_argument("--tfl", default="")
    ap.add_argument("--rfl", default="sc1")
    ap.add_argument("--rsleep", type=int, default=0)
    ap.add_argument("--touch", type=int, default=1)
    ap.add_argument("--clrq", type=int, default=-1)
    ap.add_argument("--cdq", type=int, default=9)
    ap.add_argument("--rbar", type=int, default=0)
    ap.add_argument("--hsf", default="sc1")
    ap.add_argument("--hlf", default="sc1")
    ap.add_argument("--ofl", default="")
    ap.add_argument("--hpre", type=int, default=0)
    ap.add_argument("--rot", default="00000000")
    ap.add_argument("--ts0", type=int, default=0)
    ap.add_argument("--hlsb", type=int, default=1)
    ap.add_argument("--dual", type=int, default=0)
    ap.add_argument("--obox", type=int, default=0)
    ap.add_argument("--probe", type=int, default=0)
    ap.add_argument("--vt", type=int, default=0)
    ap.add_argument("--vtq", type=int, default=10)
    ap.add_argument("--xpre", type=int, default=0)
    ap.add_argument("--m16test", type=int, default=0)
    ap.add_argument("--vneed", type=int, default=1)
    ap.add_argument("--tsreal", type=int, default=0)
    ap.add_argument("--vpipe", type=int, default=0)
    ap.add_argument("--ahead2", type=int, default=-1)
    ap.add_argument("--chain", type=int, default=1)
    ap.add_argument("--owide", type=int, default=0)
    ap.add_argument("--dum1", type=int, default=0)
    ap.add_argument("--dum2", type=int, default=0)
    ap.add_argument("--dumh", type=int, default=0)
    ap.add_argument("--encc", type=int, default=0)
    ap.add_argument("--encm", type=int, default=2)
    ap.add_argument("--slots", type=int, default=0)
    ap.add_argument("--rlate", type=int, default=0)
    ap.add_argument("--epi", type=int, default=0)
    ap.add_argument("--tm", default="")
    ap.add_argument("--wlast", type=int, default=0)
    ap.add_argument("--fdel", type=int, default=3)
    ap.add_argument("--fill1", type=int, default=5)
    ap.add_argument("--priow", type=int, default=0)
    ap.add_argument("--prioh", type=int, default=0)
    ap.add_argument("--r0early", type=int, default=0)
    ap.add_argument("--psf", default="sc1")
    ap.add_argument("--rw1", type=int, default=0)
    ap.add_argument("--ofl1", default="")
    ap.add_argument("--rpq", type=int, default=10)
    ap.add_argument("--rb2", type=int, default=1)
    ap.add_argument("--rb4", type=int, default=0)
    ap.add_argument("--rearly", type=int, default=0)
    ap.add_argument("--hpf", default="")
    ap.add_argument("--hpin", type=int, default=0)
    ap.add_argument("--wsb", type=lambda x: int(x, 0), default=0)
    ap.add_argument("--enc", default="")
    ap.add_argument("--encw", type=int, default=4)
    ap.add_argument("--hfree", type=int, default=2)
    ap.add_argument("--stouch", type=int, default=0)
    ap.add_argument("--stdel", type=int, default=1)
    ap.add_argument("--stf", default="")
    ap.add_argument("--ta", type=int, default=0)
    ap.add_argument("--tn", type=int, default=0)
    ap.add_argument("--tpos", type=int, default=0)
    ap.add_argument("--w2rot", type=int, default=1)
    ap.add_argument("--rfast", type=int, default=1)
    ap.add_argument("--wt", type=int, default=0)
    ap.add_argument("--horder", default="w,x,h2,hl,c")
    ap.add_argument("--ht0", type=int, default=1)
    ap.add_argument("--first", type=int, default=4)
    ap.add_argument("--torder", default="hl,w,x,h2,c,red")
    ap.add_argument("--skipw", type=int, default=1)
    ap.add_argument("--skipx", type=int, default=1)
    cfg = ap.parse_args()
    cfg.passes = [[int(c) for c in p] for p in cfg.passes.split(",")]
    cfg.g2 = parse_g2(cfg.g2)
    cfg.rnb = cfg.rb2
    cfg.tsq, cfg.burst, cfg.pause = ilist(cfg.tsq), ilist(cfg.burst), ilist(cfg.pause)
    open(cfg.o, "w").write(build(cfg))


main()
```

```python
import sys, argparse

KN = "standalone__dense_activation_squared_relu__sampling_kernel"

WS_H = 0x0
WS_IN = 0x1000000
WS_CD = 0x1840000
WS_EP = 0x1850000
WS_TS = 0x8000000
SPIN_MAX = 100000
SGNMASK = 0x6A9956A5


class Asm:
    def __init__(self):
        self.L = []
        self.n = 0

    def __call__(self, s):
        self.L.append("    " + s)

    def label(self, s):
        self.L.append(s + ":")

    def c(self, s):
        self.L.append("    ; " + s)

    def uid(self):
        self.n += 1
        return self.n

    def head(self, role):
        self.L.append(f"@@HEAD {role}")

    def tail(self, role):
        self.L.append(f"@@TAIL {role}")

    def text(self, horder, torder):
        pro, heads, tails, cur = [], {}, {}, None
        cur = pro
        for ln in self.L:
            if ln.startswith("@@HEAD"):
                cur = heads.setdefault(ln.split()[1], [])
            elif ln.startswith("@@TAIL"):
                r = ln.split()[1]
                if r in heads:
                    heads[r].append(f"    s_branch L_tail_{r}")
                cur = tails.setdefault(r, [f"L_tail_{r}:"])
            else:
                cur.append(ln)
        assert sorted(heads) == sorted(horder) and sorted(tails) == sorted(torder), (heads.keys(), tails.keys())
        out = pro
        for r in horder:
            out += heads[r]
        out.append("L_heads_end:")
        for r in torder:
            out += tails[r]
        return "\n".join(out)


def build(cfg):
    global WS_H, WS_IN, WS_EP
    WS_H = cfg.wsb
    WS_IN = cfg.wsb + 0x480000
    WS_EP = cfg.wsb + 0xc00000 if not cfg.slots else 0x10000
    A = Asm()
    SR, SD, SS, SL = {0: (24576, 589824, 3072, 1024), 1: (24576, 1024, 589824, 8192),
                      2: (196608, 8192, 1024, 65536), 3: (196608, 1024, 8192, 65536),
                      4: (221184, 9216, 1024, 73728), 5: (24*10496, 10496, 1280, 8*10496),
                      6: (221184, 1024, 9216, 73728), 7: (24*8448, 8448, 1024, 8*8448)}[cfg.obox]
    TS = cfg.ts
    HW, HL = (24576, 8192) if cfg.hside < 0 else (49152, 16384)
    if cfg.hside >= 0 or cfg.iside >= 0:
        WS_IN = cfg.wsb + 0x1000000
        WS_EP = cfg.wsb + 0x2000000
    if cfg.iside >= 0:
        SR, SD, SS, SL = 49152, 0x400000, 1024, 16384

    def jbase(dst, sj, side, tmp):
        A(f"s_and_b32 s{dst}, s{sj}, 3")
        A(f"s_lshl_b32 s{dst}, s{dst}, 22")
        A(f"s_lshr_b32 s{tmp}, s{sj}, 2")
        if side:
            A(f"s_xor_b32 s{tmp}, s{tmp}, 1")
        A(f"s_lshl_b32 s{tmp}, s{tmp}, 13")
        A(f"s_add_u32 s{dst}, s{dst}, s{tmp}")
    passes = cfg.passes
    D = cfg.depth

    stages, blocks, order = [], {}, []

    def blk(name, **kw):
        blocks[name] = dict(name=name, **kw)
        return name

    def add_stage(units, breads):
        q = len(stages)
        stages.append(dict(units=units, breads=breads, q=q))
        for (bb, _kb) in breads:
            b = blocks[bb]
            b["need"] = b["last"] = q
            if b["kind"] != "Hown":
                order.append(bb)
        for (_t, wb, _kb, _first) in units:
            b = blocks[wb]
            if "need" not in b:
                b["need"] = q
                order.append(wb)
            b["last"] = q
        return q

    epi_after, pass_of_line = {}, {}
    for pi, lines in enumerate(passes):
        grp = 1 if (len(lines) > 1 or pi == 0) else cfg.grp1
        for t0 in range(0, 9, grp):
            units, breads = [], []
            for t in range(t0, t0 + grp):
                if pi == 0:
                    breads.append((blk(f"X{t}", kind="X", t=t), t))
                for l in lines:
                    units.append((l, blk(f"W{t}_{l}", kind="W1", t=t, l=l), t, False))
            q = add_stage(units, breads)
        epi_after[q] = (pi, list(lines))
        for l in lines:
            pass_of_line[l] = pi
    n_g1 = len(stages)
    kbidx = {}
    first = {0: True, 1: True, 2: True}
    cnt2 = {0: 0, 1: 0, 2: 0}
    epi2_after = {}
    for stg in cfg.g2:
        units, breads = [], []
        for (d, lk, lines) in stg:
            if (d, lk) not in kbidx:
                kbidx[(d, lk)] = len(kbidx)
                breads.append((blk(f"H{d}_{lk}", kind="Hown" if d == 0 else f"H{d}", d=d, lk=lk), kbidx[(d, lk)]))
            for l in lines:
                units.append((l, blk(f"V{d}_{lk}_{l}", kind="W2", d=d, lk=lk, l=l), kbidx[(d, lk)], first[l]))
                first[l] = False
                cnt2[l] += 1
        q = add_stage(units, breads)
        done = [l for l in range(3) if cnt2[l] == 9 and not any(l in v for v in epi2_after.values())]
        if done:
            epi2_after[q] = done
    assert all(v == 9 for v in cnt2.values())
    NQ = len(stages)
    hown_w = {l: q for q, (pi, lines) in epi_after.items() for l in lines}
    hown_vis = {l: (q + 1 if q == n_g1 - 1 else q + 2) for l, q in hown_w.items()}
    for l in hown_w:
        assert blocks[f"H0_{l}"]["need"] >= hown_vis[l]
    hfetch = {l: hown_vis[l] + cfg.hdel for l in hown_w}

    free_at = {s: -10 for s in range(20)}
    events = [(blocks[nm]["need"] - (cfg.hearly if blocks[nm]["kind"] in ("H1", "H2") else 0), 1, k, nm) for k, nm in enumerate(order)]
    for l, qw in hown_w.items():
        events.append((qw - cfg.hres, 0, l, f"H0_{l}"))
    events.sort()
    for ev in events:
        b = blocks[ev[3]]
        if b["kind"] == "X":
            cand = [16, 17, 18, 19]
        elif ev[0] < cfg.xfree:
            cand = list(range(0, 16))
        else:
            cand = list(range(0, 20))
        s = min(cand, key=lambda s: (free_at[s], s))
        b["slot"] = s
        b["free"] = free_at[s]
        if b["kind"] == "Hown":
            assert b["free"] + cfg.hfree <= hown_w[b["lk"]], b
        else:
            assert b["free"] + 2 < b["need"], b
        free_at[s] = b["last"]
    if cfg.verbose:
        print(" | ".join(f"{blocks[e[3]]['name']}:s{blocks[e[3]]['slot']} f{blocks[e[3]]['free']} n{blocks[e[3]]['need']}" for e in events), file=sys.stderr)
    for k, nm in enumerate(order):
        blocks[nm]["pos"] = k
    cum = [sum(1 for nm in order if blocks[nm]["need"] <= q) for q in range(NQ)]

    sX, sW1, sB1, sW2, sB2, sOUT, sDBG, sWS = 16, 18, 20, 22, 24, 26, 28, 30
    sJ, sR, sMT, sI, sWV, sWK = 32, 33, 34, 35, 36, 37
    SRD0, SRD1, SRD2 = 40, 44, 48
    sT0, sT1, sT2, sT3, sT4, sT5 = 52, 53, 54, 55, 56, 57
    sCNT = 58
    sTAG, sPB = 6, 8
    sTS = 64
    tsn = [0]

    def stamp():
        if TS:
            k = tsn[0]
            assert k < 16
            A(f"{'s_memrealtime' if cfg.tsreal else 's_memtime'} s[{sTS+2*k}:{sTS+2*k+1}]")
            tsn[0] += 1

    def srd(d, p, nbytes):
        A(f"s_mov_b32 s{d}, s{p}")
        A(f"s_mov_b32 s{d+1}, s{p+1}")
        A(f"s_mov_b32 s{d+2}, {nbytes}")
        A(f"s_mov_b32 s{d+3}, 0x00020000")

    def stamp_flush():
        if not TS:
            return
        n = tsn[0]
        A("s_waitcnt lgkmcnt(0)")
        srd(SRD2, sWS, 0x10000000)
        A(f"s_lshl_b32 s{sT0}, s2, 9")
        A(f"s_lshl_b32 s{sT1}, s{sWV}, 6")
        A(f"s_add_u32 s{sT0}, s{sT0}, s{sT1}")
        A(f"s_add_u32 s{sT0}, s{sT0}, {WS_TS}")
        A(f"v_mov_b32 v2, s{sT0}")
        A("s_mov_b64 exec, 1")
        for k in range(n):
            A(f"v_mov_b32 v3, s{sTS+2*k}")
            A(f"buffer_store_dword v3, v2, s[{SRD2}:{SRD2+3}], 0 offen offset:{4*k}")
        A("s_mov_b64 exec, -1")

    def epoch_load(smt):
        A(f"s_lshl_b32 s{sT0}, s{smt}, 7")
        A(f"s_add_u32 s{sT0}, s{sT0}, {WS_EP}")
        A(f"s_load_dword s{sTAG}, s[{sWS}:{sWS+1}], s{sT0}")

    def epoch_fin():
        A("s_waitcnt lgkmcnt(0)")
        A(f"s_add_u32 s{sTAG}, s{sTAG}, 1")
        A(f"s_mul_i32 s{sTAG+1}, s{sTAG}, 0x22222222")
        A(f"s_and_b32 s{sTAG+1}, s{sTAG+1}, 0xeeeeeeee")
        A(f"s_or_b32 s{sTAG+1}, s{sTAG+1}, 0x10101010")
        if cfg.slots:
            A(f"s_and_b32 s14, s{sTAG}, {cfg.slots-1}")
            A(f"s_mul_i32 s14, s14, 0xa00000")

    def slot_add(*regs):
        if cfg.slots:
            for r in regs:
                A(f"s_add_u32 s{r}, s{r}, s14")

    def tag_regs(vd, vt):
        A(f"v_and_b32 v{vt}, 3, v1")
        A(f"v_lshlrev_b32 v{vt}, 3, v{vt}")
        A(f"v_lshrrev_b32 v{vt}, v{vt}, s{sTAG+1}")
        for k in range(4):
            A(f"v_bfe_u32 v{vd+k}, v{vt}, {2*k}, 2")
            A(f"v_mul_u32_u24 v{vd+k}, 0x8001, v{vd+k}")
            A(f"v_and_b32 v{vd+k}, 0x10001, v{vd+k}")
            A(f"v_lshl_or_b32 v{vd+k}, v{vd+k}, 15, v{vd+k}")

    def sign_reg(vd, vt):
        A(f"s_bitcmp1_b32 s{sTAG}, 0")
        A(f"s_cselect_b32 s{sT0}, -1, 0")
        A(f"s_xor_b32 s{sT0}, s{sT0}, {SGNMASK}")
        A(f"v_and_b32 v{vt}, 31, v1")
        A(f"v_lshrrev_b32 v{vt}, v{vt}, s{sT0}")
        A(f"v_bfe_i32 v{vt}, v{vt}, 0, 1")
        A(f"v_and_b32 v{vd}, 0x80008000, v{vt}")

    def sspin(loads, npairs, base):
        k = A.uid()
        A(f"s_mov_b32 s{sCNT}, 0")
        A.label(f"L_s{k}")
        for x in loads:
            A(x)
        A(f"s_add_u32 s{sCNT}, s{sCNT}, 1")
        A("s_waitcnt lgkmcnt(0)")
        A(f"s_cmp_gt_u32 s{sCNT}, {SPIN_MAX}")
        A(f"s_cbranch_scc1 L_sd{k}")
        for n in range(npairs):
            A(f"s_cmp_lg_u64 s[{base+2*n}:{base+2*n+1}], s[{sTAG}:{sTAG+1}]")
            A(f"s_cbranch_scc1 L_s{k}")
        A.label(f"L_sd{k}")

    def mod3add(dst, d, tmp):
        A(f"s_add_u32 s{dst}, s{sI}, {d}")
        A(f"s_cmp_ge_u32 s{dst}, 3")
        A(f"s_cselect_b32 s{tmp}, 3, 0")
        A(f"s_sub_u32 s{dst}, s{dst}, s{tmp}")

    A("s_cmp_ge_u32 s2, 256")
    A("s_cbranch_scc1 L_end")
    A("s_load_dwordx16 s[16:31], s[0:1], 0")
    if cfg.ctouch == 1:
        A("s_getpc_b64 s[4:5]")
        A.label("L_pc")
        A("v_lshlrev_b32 v2, 7, v0")
        A("v_min_u32 v2, L_end-L_pc, v2")
        A("v_and_b32 v2, 0xfffffffc, v2")
        A("global_load_dword v255, v2, s[4:5]")
    elif cfg.ctouch == 2:
        A("s_getpc_b64 s[4:5]")
        A.label("L_pc")
        A("s_lshr_b32 s3, s2, 3")
        A("s_lshl_b32 s3, s3, 11")
        A("v_lshrrev_b32 v2, 5, v0")
        A("v_lshl_add_u32 v2, v2, 7, s3")
        A("v_min_u32 v2, L_end-L_pc, v2")
        A("v_and_b32 v2, 0xfffffffc, v2")
        A("global_load_dword v255, v2, s[4:5]")
    if TS:
        A("s_memrealtime s[96:97]")
    if cfg.enc:
        A("s_memrealtime s[96:97]")
        if cfg.enc == "none":
            A("s_memrealtime s[94:95]")
        if cfg.encc:
            A("s_memtime s[92:93]")

    def enc(p):
        if cfg.enc == p:
            A("s_memrealtime s[94:95]" if not cfg.encc else "s_memtime s[94:95]")
    stamp()
    A("v_and_b32 v1, 63, v0")
    A("v_lshrrev_b32 v2, 6, v0")
    A(f"s_and_b32 s{sJ}, s2, 7")
    A(f"v_readfirstlane_b32 s{sWV}, v2")
    A(f"s_lshr_b32 s{sR}, s2, 3")
    A(f"s_cmp_lt_u32 s{sR}, 8")
    A("s_cbranch_scc1 L_helper")
    A(f"s_sub_u32 s{sR}, s{sR}, 8")
    A(f"s_mul_i32 s{sMT}, s{sR}, 21846")
    A(f"s_lshr_b32 s{sMT}, s{sMT}, 16")
    A(f"s_mul_i32 s{sT0}, s{sMT}, 3")
    A(f"s_sub_u32 s{sI}, s{sR}, s{sT0}")
    A(f"s_mul_i32 s{sWK}, s{sJ}, 24")
    A(f"s_add_u32 s{sWK}, s{sWK}, s{sR}")
    ROT = [int(c) for c in cfg.rot]
    ROTTAB = sum(r << (4 * m) for m, r in enumerate(ROT))
    sROT, sLO, sHI = 10, 11, 12
    if any(ROT):
        A(f"s_lshl_b32 s{sROT}, s{sMT}, 2")
        A(f"s_lshr_b32 s{sROT}, {ROTTAB}, s{sROT}")
        A(f"s_and_b32 s{sROT}, s{sROT}, 15")

    def rot_setup(sbase, stride):
        if any(ROT):
            A(f"s_mul_i32 s{sLO}, s{sROT}, {stride}")
            A(f"s_add_u32 s{sLO}, s{sLO}, s{sbase}")
            A(f"s_sub_u32 s{sHI}, s{sLO}, {9*stride}")

    def rot_addr(dst, sbase, t, stride, extra):
        if any(ROT):
            if t + max(ROT) < 9:
                A(f"s_add_u32 s{dst}, s{sLO}, {t*stride + extra}")
            else:
                A(f"s_cmp_lt_u32 s{sROT}, {9-t}")
                A(f"s_cselect_b32 s{dst}, s{sLO}, s{sHI}")
                A(f"s_add_u32 s{dst}, s{dst}, {t*stride + extra}")
        else:
            A(f"s_add_u32 s{dst}, s{sbase}, {t*stride + extra}")
    A(f"s_cmp_lt_u32 s{sWV}, 4")
    A("s_cbranch_scc1 L_compute")
    A(f"s_cmp_eq_u32 s{sWV}, 6")
    A("s_cbranch_scc1 L_xh")
    A(f"s_cmp_eq_u32 s{sWV}, 7")
    A("s_cbranch_scc1 L_h2")
    ts_base = tsn[0]

    def loader_stream(kinds, per_block, issue_fn, setup_fn, cap, group=False, validate=None, before_bar=None, role=None):
        mine = [blocks[nm] for nm in order if blocks[nm]["kind"] in kinds]
        outstanding, pend = [], list(mine)
        nb = lambda nm: blocks[nm]["n"] if blocks[nm]["kind"] == "extra" else (per_block(blocks[nm]) if callable(per_block) else per_block)
        cnt = lambda lst: sum(nb(x) for x in lst)

        def ok(b, q):
            if b["free"] + 2 > q:
                return False
            if b["kind"] in ("H1", "H2") and q < min(hfetch[b["lk"]], b["need"] - 1):
                return False
            return True

        def issue_upto(q, ahead, cap):
            n = 0
            lim = cum[q] + ahead if q >= 0 else ahead
            while pend and ok(pend[0], q):
                must = pend[0]["need"] <= q + 1 + (cfg.vpipe if pend[0]["kind"] in ("H1", "H2") else 0) or pend[0]["pos"] < lim
                if not must and n >= cap:
                    break
                grp = [pend.pop(0)]
                while group and pend and ok(pend[0], q) and pend[0]["need"] == grp[0]["need"] and len(grp) < 3 \
                        and (pend[0]["pos"] < lim or n + len(grp) < cap or pend[0]["need"] <= q + 1):
                    grp.append(pend.pop(0))
                need_n = sum(nb(x["name"]) for x in grp)
                if cnt(outstanding) + need_n > 63:
                    while cnt(outstanding) + need_n > 63:
                        del outstanding[0]
                    A(f"s_waitcnt vmcnt({cnt(outstanding)})")
                issue_fn(grp if group else grp[0])
                if cfg.verbose:
                    print(f"   after B{q}: " + " ".join(x["name"] for x in grp), file=sys.stderr)
                outstanding.extend(x["name"] for x in grp)
                n += len(grp)

        issue_upto(-1, cfg.first, 0)
        if cfg.ts0:
            stamp()
        if role == "w":
            enc("iss")
        A.tail(role)
        pr = cfg.priow if role == "w" else cfg.prioh
        if pr:
            A(f"s_setprio {pr}")
        setup_fn()
        issue_upto(-1, cfg.ahead0, 0)
        for q in range(NQ):
            assert not any(b["need"] <= q for b in pend), (q, pend[0])
            def wait_for(b):
                if b["name"] in outstanding:
                    idx = max(i for i, nm in enumerate(outstanding) if blocks[nm]["need"] <= q) if validate is None \
                        else outstanding.index(b["name"])
                    del outstanding[:idx + 1]
                    A(f"s_waitcnt vmcnt({cnt(outstanding)})")
            hs = []
            for b in mine:
                if b["need"] == q:
                    if validate is not None and b["kind"] != "X":
                        hs.append(b)
                    else:
                        wait_for(b)
            if validate is not None and cfg.vpipe:
                nxt = [b for b in mine if b["need"] == q + 1 and b["kind"] != "X" and b not in pend]
                if hs or nxt:
                    validate(hs, wait_for, nxt)
            elif hs:
                validate(hs, wait_for)
            if before_bar is not None:
                ex = before_bar(q)
                if ex:
                    nm = f"extra{A.uid()}"
                    blocks[nm] = dict(name=nm, kind="extra", n=ex, need=99)
                    outstanding.append(nm)
            if q in cfg.tsq:
                stamp()
            A("s_barrier")
            if role == "w":
                enc(f"B{q}")
            if q in cfg.pause:
                issue_upto(q, 0, 0)
            else:
                issue_upto(q, cfg.ahead if q < n_g1 or cfg.ahead2 < 0 else cfg.ahead2, 99 if q in cfg.burst else (cap if q >= cfg.capfrom else 0))
        assert not pend

    vRA, vRO, vRB, vRC, vRD, vRT, vRX, vRZ, vRG = 64, 65, 66, 72, 80, 112, 116, 117, 120
    sRI, sRO, sC = 60, 61, 13

    def vr(r, W):
        return f"v{r}" if W == 1 else f"v[{r}:{r+W-1}]"

    def dw(W):
        return "dword" if W == 1 else f"dwordx{W}"

    def red_pre(W):
        if W == 2:
            A(f"s_sub_u32 s{sC}, s{sWV}, 4")
            A(f"v_lshlrev_b32 v{vRA}, 3, v1")
            A(f"s_lshl_b32 s{sRO}, s{sC}, 6")
            A(f"s_lshr_b32 s{sRI}, s{sC}, 1")
            A(f"s_mul_i32 s{sRI}, s{sRI}, {SL}")
            A(f"s_and_b32 s{sT1}, s{sC}, 1")
            A(f"s_lshl_b32 s{sT1}, s{sT1}, 9")
            A(f"s_add_u32 s{sRI}, s{sRI}, s{sT1}")
            A(f"v_lshrrev_b32 v{vRT}, 4, v1")
            A(f"v_and_b32 v{vRT+1}, 1, v1")
            A(f"v_lshlrev_b32 v{vRT+1}, 3, v{vRT+1}")
            A(f"v_lshl_add_u32 v{vRT}, v{vRT}, 4, v{vRT+1}")
            A(f"v_bfe_u32 v{vRT+2}, v1, 1, 3")
            A(f"v_and_b32 v{vRT+3}, 7, v1")
            A(f"v_lshlrev_b32 v{vRT+3}, 2, v{vRT+3}")
        else:
            A(f"s_add_u32 s{sC}, s{sWV}, 8")
            A(f"v_lshlrev_b32 v{vRA}, 2, v1")
            A(f"s_lshl_b32 s{sRO}, s{sC}, 5")
            A(f"s_lshl_b32 s{sRI}, s{sWV}, 8")
            A(f"s_add_u32 s{sRI}, s{sRI}, {2*SL}")
            A(f"v_lshrrev_b32 v{vRT}, 5, v1")
            A(f"v_and_b32 v{vRT+1}, 3, v1")
            A(f"v_lshlrev_b32 v{vRT+1}, 2, v{vRT+1}")
            A(f"v_lshl_add_u32 v{vRT}, v{vRT}, 4, v{vRT+1}")
            A(f"v_bfe_u32 v{vRT+2}, v1, 2, 3")
            A(f"v_and_b32 v{vRT+3}, 15, v1")
            A(f"v_lshlrev_b32 v{vRT+3}, 1, v{vRT+3}")
        A(f"s_mul_i32 s{sT1}, s{sI}, 384")
        A(f"s_add_u32 s{sRO}, s{sRO}, s{sT1}")
        if W == 2:
            srd(SRD2, sB2, 1152)
            A(f"buffer_load_{dw(W)} {vr(vRB, W)}, v{vRT}, s[{SRD2}:{SRD2+3}], s{sRO} offen")
        else:
            A(f"v_mov_b32 v{vRB}, v249")
        A(f"s_lshl_b32 s{sT1}, s{sJ}, 3")
        A(f"s_lshl_b32 s{sT3}, s{sMT}, 6")
        A(f"s_add_u32 s{sT1}, s{sT1}, s{sT3}")
        A(f"s_mul_i32 s{sT1}, s{sT1}, 1152")
        A(f"s_add_u32 s{sRO}, s{sRO}, s{sT1}")
        A(f"v_mul_u32_u24 v{vRT+2}, 1152, v{vRT+2}")
        A(f"v_add_u32 v{vRO}, v{vRT}, v{vRT+2}")
        A(f"s_mul_i32 s{sT1}, s{sR}, {SR}")
        A(f"s_add_u32 s{sRI}, s{sRI}, s{sT1}")
        if cfg.iside >= 0:
            jbase(sT1, sJ, cfg.iside, sT3)
        else:
            A(f"s_mul_i32 s{sT1}, s{sJ}, {SD}")
        A(f"s_add_u32 s{sRI}, s{sRI}, s{sT1}")
        A(f"s_add_u32 s{sRI}, s{sRI}, {WS_IN}")
        slot_add(sRI)
        A(f"v_mov_b32 v{vRZ}, 0")
        A(f"v_lshrrev_b32 v{vRT+3}, v{vRT+3}, s{sTAG+1}")
        for k in range(W):
            A(f"v_bfe_u32 v{vRG+k}, v{vRT+3}, {2*k}, 2")
            A(f"v_mul_u32_u24 v{vRG+k}, 0x8001, v{vRG+k}")
        A(f"v_mov_b32 v{vRG+4}, 0x10001")
        A(f"v_mov_b32 v{vRG+5}, 0xffff0000")
        return 1

    def red_init(W):
        for k in range(W):
            A(f"v_lshlrev_b32 v{vRC+2*k}, 16, v{vRB+k}")
            A(f"v_and_b32 v{vRC+1+2*k}, v{vRG+5}, v{vRB+k}")

    def bb_w(q):
        if q == 2:
            epoch_fin()
        if q == cfg.rpq:
            return red_pre(2)
        if q == cfg.rpq + 3:
            red_init(2)

    A.head("w")
    sHW = sT5
    A(f"s_sub_u32 s{sHW}, s{sWV}, 4")
    A("v_lshrrev_b32 v2, 3, v1")
    A("v_and_b32 v3, 7, v1")
    A("v_bfe_u32 v4, v1, 4, 1")
    A("v_lshlrev_b32 v4, 2, v4")
    A("v_xor_b32 v3, v3, v4")
    A("v_lshlrev_b32 v3, 4, v3")
    A("v_lshrrev_b32 v4, 2, v2")
    A("v_and_b32 v5, 3, v2")
    A("v_lshl_add_u32 v4, v4, 3, v5")
    A(f"s_lshl_b32 s{sT0}, s{sHW}, 5")
    A(f"v_add_u32 v4, s{sT0}, v4")
    A("v_mul_u32_u24 v4, 9216, v4")
    A("v_add_u32 v4, v4, v3")
    for c in range(1, 4):
        A(f"v_add_u32 v{4+c}, {(16*(c>>1)+4*(c&1))*9216 - 1024*c}, v4")
    sLW, sC1 = sT4, 38
    A(f"s_lshl_b32 s{sLW}, s{sHW}, 12")
    A(f"s_mul_i32 s{sC1}, s{sJ}, 1152")
    A(f"s_mul_i32 s{sT1}, s{sI}, 384")
    A(f"s_add_u32 s{sC1}, s{sC1}, s{sT1}")
    rot_setup(sC1, 64*9216)
    if cfg.wt:
        A("v_and_b32 v12, 7, v1")
        A("v_lshrrev_b32 v13, 5, v1")
        A("v_lshl_add_u32 v12, v13, 6, v12")
        A("v_mul_u32_u24 v12, 9216, v12")
        A("v_bfe_u32 v13, v1, 3, 2")
        A("v_lshl_add_u32 v12, v13, 7, v12")
        A(f"s_lshl_b32 s{sT0}, s{sHW}, 4")
        A(f"s_add_u32 s{sT0}, s{sT0}, s{sMT}")
        A(f"s_mul_i32 s{sT0}, s{sT0}, {8*9216}")
        A(f"s_add_u32 s{sT0}, s{sT0}, s{sC1}")
        msk = [sum(0xffffff << (32 * h) for h in range(2) if 2 * w + h < cfg.wt) for w in range(2)]
        A(f"s_mov_b32 exec_lo, {msk[0] & 0xffffffff}")
        A(f"s_mov_b32 exec_hi, {msk[0] >> 32}")
        if msk[1] != msk[0]:
            A(f"s_cmp_eq_u32 s{sHW}, 0")
            A(f"s_cselect_b32 exec_lo, exec_lo, {(msk[1] & 0xffffffff) or 1}")
            A(f"s_cselect_b32 exec_hi, exec_hi, {msk[1] >> 32}")
    A("s_waitcnt lgkmcnt(0)")
    if cfg.ts0:
        stamp()
    srd(SRD0, sW1, 5308416)
    if cfg.wt:
        A(f"buffer_load_dword v255, v12, s[{SRD0}:{SRD0+3}], s{sT0} offen")
        A("s_mov_b64 exec, -1")
    sV = [62, 63, 59]

    def w2_setup():
        epoch_load(sMT)
        A(f"s_lshl_b32 s{sT0}, s{sHW}, 5")
        A(f"v_add_u32 v8, s{sT0}, v2")
        A("v_mul_u32_u24 v8, 1152, v8")
        A("v_add_u32 v8, v8, v3")
        for c in range(1, 4):
            A(f"v_add_u32 v{8+c}, {8*c*1152 - 1024*c}, v8")
        A(f"s_mul_i32 s39, s{sJ}, {576*1152}")
        A(f"s_mul_i32 s{sT0}, s{sI}, 384")
        A(f"s_add_u32 s39, s39, s{sT0}")
        for d in range(3):
            mod3add(sT1, d, sT2)
            A(f"s_mul_i32 s{sT1}, s{sT1}, {192*1152}")
            A(f"s_add_u32 s{sV[d]}, s39, s{sT1}")
        srd(SRD1, sW2, 5308416)

    def issue_w(grp):
        for b in grp:
            A(f"s_add_u32 m0, s{sLW}, {b['slot']*8192}")
            if b["kind"] == "W1":
                rot_addr(sT0, sC1, b['t'], 64*9216, 128*b['l'])
                vb, sr = 4, SRD0
            else:
                A(f"s_add_u32 s{sT0}, s{sV[b['d']]}, {64*b['lk']*1152 + 128*b['l']}")
                vb, sr = 8, SRD1
            for c in range(4):
                A(f"buffer_load_dwordx4 v{vb+c}, s[{sr}:{sr+3}], s{sT0} offen offset:{1024*c} {cfg.wfl} lds")

    loader_stream(("W1", "W2"), 4, issue_w, w2_setup, cfg.capw, group=True,
                  before_bar=bb_w, role="w")
    A("s_branch L_reduce")
    ts_max = tsn[0]

    sXB = 38
    sH = {1: 39, 2: 59}
    HALF = [0]

    def h_setup(half):
        A("v_lshlrev_b32 v12, 4, v1")
        A("v_add_u32 v13, 0x10000, v12")
        A("v_add_u32 v14, 0x20000, v12")
        A(f"s_sub_u32 s{sT0}, s{sWK if cfg.hside < 0 else sR}, s{sI}")
        if cfg.hside >= 0:
            jbase(sT3, sJ, cfg.hside, sT2)
        for d in (1, 2):
            mod3add(sT1, d, sT2)
            A(f"s_add_u32 s{sT1}, s{sT1}, s{sT0}")
            A(f"s_mul_i32 s{sH[d]}, s{sT1}, {HW}")
            if cfg.hside >= 0:
                A(f"s_add_u32 s{sH[d]}, s{sH[d]}, s{sT3}")
        srd(SRD1, sWS, 0x10000000)
        epoch_load(sMT)

    def issue_xh(b):
        for h in (range(2) if b["kind"] == "X" else HALF):
            A(f"s_mov_b32 m0, {b['slot']*8192 + 4096*h}")
            if b["kind"] == "X":
                rot_addr(sT0, sXB, b['t'], 128, 32*1152*h)
                for c in range(4):
                    A(f"buffer_load_dwordx4 v{8+c}, s[{SRD0}:{SRD0+3}], s{sT0} offen offset:{1024*c} lds")
            else:
                A(f"s_add_u32 s{sT0}, s{sH[b['d']]}, {WS_H + HL*b['lk'] + 4096*h}")
                for c in range(4):
                    A(f"buffer_load_dwordx4 v12, s[{SRD1}:{SRD1+3}], s{sT0} offen offset:{1024*c} {cfg.hlf} lds")

    retry_code = []

    def validate(hs, wait_for):
        k = A.uid()

        def rd(i):
            addr = hs[i]["slot"] * 8192 + 4096 * HALF[0]
            for c in range(4):
                r = 128 + 16 * i + 4 * c
                A(f"ds_read_b128 v[{r}:{r+3}], v{12 + (addr >> 16)} offset:{(addr & 0xffff) + 1024*c}")

        def valu(i, later):
            for c in range(4):
                r = 128 + 16 * i + 4 * c
                A(f"s_waitcnt lgkmcnt({3-c+later})")
                for kk in range(4):
                    ac = 16 + ((kk + 2) & 3)
                    if i == 0 and c == 0:
                        A(f"v_xor_b32 v{ac}, v{r+kk}, v{25+kk}")
                    else:
                        A(f"v_bitop3_b32 v{ac}, v{ac}, v{r+kk}, v{25+kk} bitop3:0xf6")
        A.label(f"L_v{k}")
        for i in range(len(hs)):
            wait_for(hs[i])
            rd(i)
            if i:
                valu(i - 1, 4)
        valu(len(hs) - 1, 0)
        A("v_or3_b32 v16, v16, v17, v18")
        A("v_bitop3_b32 v16, v16, v19, v24 bitop3:0xa8")
        A("v_cmp_ne_u32 vcc, 0, v16")
        A(f"s_cbranch_vccnz L_vr{k}")
        A.label(f"L_vd{k}")
        n0 = len(A.L)
        A.label(f"L_vr{k}")
        A(f"s_cmp_gt_u32 s{sCNT}, {SPIN_MAX}")
        A(f"s_cbranch_scc1 L_vd{k}")
        for b in hs:
            issue_xh(b)
        A(f"s_add_u32 s{sCNT}, s{sCNT}, 1")
        A("s_waitcnt vmcnt(0)")
        A(f"s_branch L_v{k}")
        retry_code.extend(A.L[n0:])
        del A.L[n0:]

    hreg, hread = {}, set()

    def validate2(hs, wait_for, nxt):
        k = A.uid()

        def rd(b):
            i = hreg.setdefault(b["name"], len(hreg))
            addr = b["slot"] * 8192 + 4096 * HALF[0]
            for c in range(4):
                r = 128 + 16 * i + 4 * c
                A(f"ds_read_b128 v[{r}:{r+3}], v{12 + (addr >> 16)} offset:{(addr & 0xffff) + 1024*c}")
            hread.add((HALF[0], b["name"]))

        def do_nxt():
            for b in nxt:
                wait_for(b)
                rd(b)
        unread = [b for b in hs if (HALF[0], b["name"]) not in hread]
        for b in unread:
            wait_for(b)
            rd(b)
        later = 0
        if unread and 4 * (len(unread) + len(nxt)) <= 15:
            do_nxt()
            later = 4 * len(nxt)
            nxt = []
        if hs:
            A.label(f"L_v{k}")
            A(f"s_waitcnt lgkmcnt({later})")
            for i, b in enumerate(hs):
                for c in range(4):
                    r = 128 + 16 * hreg[b["name"]] + 4 * c
                    for kk in range(4):
                        ac = 16 + ((kk + 2) & 3)
                        if i == 0 and c == 0:
                            A(f"v_xor_b32 v{ac}, v{r+kk}, v{25+kk}")
                        else:
                            A(f"v_bitop3_b32 v{ac}, v{ac}, v{r+kk}, v{25+kk} bitop3:0xf6")
            A("v_or3_b32 v16, v16, v17, v18")
            A("v_bitop3_b32 v16, v16, v19, v24 bitop3:0xa8")
            A("v_cmp_ne_u32 vcc, 0, v16")
            A(f"s_cbranch_vccnz L_vr{k}")
            A.label(f"L_vd{k}")
            n0 = len(A.L)
            A.label(f"L_vr{k}")
            A(f"s_cmp_gt_u32 s{sCNT}, {SPIN_MAX}")
            A(f"s_cbranch_scc1 L_vd{k}")
            for b in hs:
                issue_xh(b)
            A(f"s_add_u32 s{sCNT}, s{sCNT}, 1")
            A("s_waitcnt vmcnt(0) lgkmcnt(0)")
            for b in hs:
                rd(b)
            A("s_waitcnt lgkmcnt(0)")
            A(f"s_branch L_v{k}")
            retry_code.extend(A.L[n0:])
            del A.L[n0:]
        do_nxt()

    if cfg.vpipe:
        validate = validate2

    def flush_retry():
        A.L.extend(retry_code)
        retry_code.clear()

    def bb_tag(q):
        if q == 2:
            epoch_fin()
            slot_add(sH[1], sH[2])
            tag_regs(25, 16)
            A(f"v_mov_b32 v24, {0x10001 if cfg.hlsb else 0x80008000}")
            A(f"s_mov_b32 s{sCNT}, 0")
        if q == cfg.rpq:
            return red_pre(2)
        if q == cfg.rpq + 3:
            red_init(2)
        if q == 10 and cfg.probe:
            A(f"buffer_load_dword v255, v{vRZ}, s[{SRD2}:{SRD2+3}], 0 offen")
            A("s_waitcnt vmcnt(0)")

    A.head("x")
    A.label("L_xh")
    tsn[0] = ts_base
    A("v_lshrrev_b32 v2, 3, v1")
    A("v_and_b32 v3, 7, v1")
    A("v_lshrrev_b32 v4, 4, v1")
    A("v_xor_b32 v3, v3, v4")
    A("v_lshlrev_b32 v3, 4, v3")
    A("v_mul_u32_u24 v4, 1152, v2")
    A("v_add_u32 v8, v4, v3")
    A("v_xor_b32 v5, 64, v8")
    A(f"v_add_u32 v9, {8*1152 - 1024}, v5")
    A(f"v_add_u32 v10, {16*1152 - 2048}, v8")
    A(f"v_add_u32 v11, {24*1152 - 3072}, v5")
    A(f"s_mul_i32 s{sXB}, s{sMT}, {64*1152}")
    rot_setup(sXB, 128)

    def x_touch_pre(st0):
        A(f"s_mul_i32 s{sT0}, s{sI}, 22")
        A("v_and_b32 v12, 31, v1")
        A(f"v_add_u32 v12, s{sT0}, v12")
        A("v_min_u32 v12, 63, v12")
        A("v_mul_u32_u24 v12, 1152, v12")
        A("v_lshrrev_b32 v13, 5, v1")
        A("v_lshl_add_u32 v12, v13, 7, v12")
        A("s_mov_b32 exec_lo, 0x3fffff")
        A(f"s_mov_b32 exec_hi, {0x3fffff if cfg.wt > st0 + 1 else 0}")

    def x_touch(st0):
        A(f"buffer_load_dword v255, v12, s[{SRD0}:{SRD0+3}], s{sXB} offen offset:{128*st0}")
        A("s_mov_b64 exec, -1")
    if cfg.wt:
        x_touch_pre(0)
    A("s_waitcnt lgkmcnt(0)")
    if cfg.ts0:
        stamp()
    srd(SRD0, sX, 589824)
    if cfg.wt:
        x_touch(0)
    nbx = lambda b: 8 if b["kind"] == "X" else 4
    loader_stream(("X", "H1", "H2"), nbx, issue_xh, lambda: h_setup(0), cfg.capx, validate=validate, before_bar=bb_tag, role="x")
    if TS:
        A(f"s_mov_b32 s{sTS+24}, s{sCNT}")
    A("s_branch L_reduce")
    flush_retry()
    ts_max = max(ts_max, tsn[0])

    A.head("h2")
    A.label("L_h2")
    tsn[0] = ts_base
    if cfg.wt > 2:
        A(f"s_mul_i32 s{sXB}, s{sMT}, {64*1152}")
        x_touch_pre(2)
    if cfg.xpre:
        A("v_lshlrev_b32 v2, 7, v1")
        A(f"s_mul_i32 s{sT0}, s{sWK}, 3072")
        A("s_mov_b64 exec, 0xffffff")
    A("s_waitcnt lgkmcnt(0)")
    if cfg.xpre:
        srd(SRD0, sX, 589824)
        A(f"buffer_load_dword v255, v2, s[{SRD0}:{SRD0+3}], s{sT0} offen")
        A("s_mov_b64 exec, -1")
    if cfg.wt > 2:
        srd(SRD0, sX, 589824)
        x_touch(2)
    srd(SRD1, sWS, 0x10000000)
    if cfg.hpre == 3:
        A("v_lshlrev_b32 v3, 7, v1")
        A(f"s_mul_i32 s{sT1}, s{sWK}, 24576")
        A(f"s_add_u32 s{sT1}, s{sT1}, {WS_H}")
        for c in range(3):
            A(f"buffer_load_dword v255, v3, s[{SRD1}:{SRD1+3}], s{sT1} offen")
            A(f"s_add_u32 s{sT1}, s{sT1}, 8192")

    def w7_touch():
        st = list(range(cfg.ta, cfg.ta + cfg.tn))
        srd(SRD0, sX, 589824)
        srd(SRD2, sW1, 5308416)
        A(f"s_mul_i32 s{sXB}, s{sMT}, {64*1152}")
        A(f"s_mul_i32 s{sT0}, s{sI}, 22")
        A("v_and_b32 v2, 31, v1")
        A(f"v_add_u32 v2, s{sT0}, v2")
        A("v_min_u32 v2, 63, v2")
        A("v_mul_u32_u24 v2, 1152, v2")
        A("v_lshrrev_b32 v4, 5, v1")
        A("v_lshl_add_u32 v2, v4, 7, v2")
        A("v_and_b32 v3, 7, v1")
        A("v_lshl_add_u32 v3, v4, 6, v3")
        A("v_mul_u32_u24 v3, 9216, v3")
        A("v_bfe_u32 v4, v1, 3, 2")
        A("v_lshl_add_u32 v3, v4, 7, v3")
        A(f"s_mul_i32 s{sT0}, s{sMT}, {8*9216}")
        A(f"s_mul_i32 s{sT1}, s{sJ}, 1152")
        A(f"s_add_u32 s{sT0}, s{sT0}, s{sT1}")
        A(f"s_mul_i32 s{sT1}, s{sI}, 384")
        A(f"s_add_u32 s{sT0}, s{sT0}, s{sT1}")
        for p in range(0, len(st), 2):
            two = p + 1 < len(st)
            A(f"s_add_u32 s{sT1}, s{sT0}, {st[p]*64*9216}")
            A("s_mov_b32 exec_lo, 0xffffff")
            A(f"s_mov_b32 exec_hi, {0xffffff if two else 0}")
            A(f"buffer_load_dword v255, v3, s[{SRD2}:{SRD2+3}], s{sT1} offen")
            A("s_mov_b32 exec_lo, 0x3fffff")
            A(f"s_mov_b32 exec_hi, {0x3fffff if two else 0}")
            A(f"buffer_load_dword v255, v2, s[{SRD0}:{SRD0+3}], s{sXB} offen offset:{128*st[p]}")
        A("s_mov_b64 exec, -1")
    if cfg.tn and cfg.tpos == 0:
        w7_touch()

    def bb_h2(q):
        if cfg.tn and cfg.tpos == 1 and q == 0:
            A("s_waitcnt lgkmcnt(0)")
            w7_touch()
        if cfg.tn and cfg.tpos >= 2 and q == cfg.tpos - 1:
            w7_touch()
        if cfg.tn and q == 7:
            A("s_waitcnt vmcnt(0)")
        if q == 2 and (cfg.hpre == 3 or cfg.wt > 2):
            A("s_waitcnt vmcnt(0)")
        if cfg.vt and q == 5:
            A(f"s_add_u32 s{sT0}, s{sI}, 1")
            A(f"s_mul_i32 s{sT0}, s{sT0}, 192")
            A(f"s_mul_i32 s{sT1}, s{sMT}, 48")
            A(f"s_add_u32 s{sT0}, s{sT0}, s{sT1}")
            A(f"s_cmp_ge_u32 s{sT0}, 576")
            A(f"s_cselect_b32 s{sT1}, 576, 0")
            A(f"s_sub_u32 s{sT0}, s{sT0}, s{sT1}")
            A(f"s_mul_i32 s{sT1}, s{sJ}, 576")
            A(f"s_add_u32 s{sT0}, s{sT0}, s{sT1}")
            A(f"s_mul_i32 s15, s{sT0}, 1152")
            A(f"s_mul_i32 s{sT1}, s{sI}, 384")
            A(f"s_add_u32 s15, s15, s{sT1}")
            A("v_mul_u32_u24 v5, 1152, v1")
            srd(SRD0, sW2, 5308416)
        ex = 0
        if cfg.vt and q == cfg.vtq:
            A("s_mov_b32 exec_hi, 0xffff")
            for l in range(3 - cfg.vt, 3):
                A(f"buffer_load_dword v255, v5, s[{SRD0}:{SRD0+3}], s15 offen offset:{128*l}")
            A("s_mov_b64 exec, -1")
            ex = cfg.vt
        return (bb_tag(q) or 0) + ex

    HALF[0] = 1
    loader_stream(("H1", "H2"), nbx, issue_xh, lambda: h_setup(1), cfg.capx, validate=validate, before_bar=bb_h2, role="h2")
    ts_max = max(ts_max, tsn[0])
    A("s_branch L_reduce")
    flush_retry()

    A.tail("red")
    sM, sQ = sT5, sT4
    sVC = 16

    def reduce_code(W, nbar):
        x = f"{W}"
        srd(SRD1, sWS, 0x10000000)
        A(f"s_mov_b32 s{sCNT}, 0")
        srd(SRD0, sOUT, 589824)
        if W == 1:
            red_pre(1)
            red_init(1)
            A(f"s_waitcnt vmcnt({cfg.rw1})")
            if cfg.rlate == 1:
                A("s_barrier")

        def ld(s_):
            A(f"s_add_u32 s{sT1}, s{sRI}, {SS*s_}")
            A(f"buffer_load_{dw(W)} {vr(vRD+W*s_, W)}, v{vRA}, s[{SRD1}:{SRD1+3}], s{sT1} offen {cfg.rfl}")
        if W == 2 and cfg.r0early and nbar:
            A(f"s_cmp_ge_u32 s{sC}, 2")
            A("s_cbranch_scc1 L_rlate")
            stamp()
            tsn[0] -= 1 if TS else 0
            for s_ in range(8):
                ld(s_)
            A("s_barrier")
            A("s_branch L_rfirst")
            A.label("L_rlate")
        for _ in range(nbar):
            A("s_barrier")
        stamp()
        enc("rbar")

        def chk_i(s_, dst, t):
            r = vRD + W * s_
            if W == 1:
                o = [f"v_bitop3_b32 v{t}, v{r}, v{vRG}, v{vRG+4} bitop3:0x28"]
            else:
                o = [f"v_xor_b32 v{t}, v{r}, v{vRG}"]
                for k in range(1, W):
                    o.append(f"v_bitop3_b32 v{t}, v{t}, v{r+k}, v{vRG+k} bitop3:0xf6")
                o.append(f"v_and_b32 v{t}, v{vRG+4}, v{t}")
            o.append(f"v_cmp_ne_u32 {dst}, 0, v{t}")
            return o

        def acc_i(s_, t0):
            r = vRD + W * s_
            o = []
            for k in range(W):
                t = t0 + 2 * k
                o.append(f"v_lshlrev_b32 v{t}, 16, v{r+k}")
                o.append(f"v_and_b32 v{t+1}, v{vRG+5}, v{r+k}")
            for k in range(W):
                t = t0 + 2 * k
                o.append(f"v_pk_add_f32 v[{vRC+2*k}:{vRC+1+2*k}], v[{vRC+2*k}:{vRC+1+2*k}], v[{t}:{t+1}]")
            return o

        def masked(sm, fn, tag):
            for g in range(2):
                A(f"s_and_b32 s{sT0}, s{sm}, {0xf << (4*g)}")
                A(f"s_cbranch_scc0 L_{tag}{x}g{g}")
                for s_ in range(4 * g, 4 * g + 4):
                    A(f"s_bitcmp0_b32 s{sm}, {s_}")
                    A(f"s_cbranch_scc1 L_{tag}{x}s{s_}")
                    fn(s_)
                    A.label(f"L_{tag}{x}s{s_}")
                A.label(f"L_{tag}{x}g{g}")

        for s_ in range(8):
            ld(s_)
        for _ in range(nbar, cfg.rnb if W != 1 else 0):
            A("s_barrier")
        if W == 1 and cfg.rlate == 2:
            A("s_barrier")
        if W == 2:
            A.label("L_rfirst")
        for s_ in range(8):
            A(f"s_waitcnt vmcnt({7-s_})")
            c = chk_i(s_, f"s[{sVC+2*s_}:{sVC+2*s_+1}]", vRX)
            a_ = acc_i(s_, vRT)
            while c or a_:
                if c:
                    A(c.pop(0))
                if a_:
                    A(a_.pop(0))
            if s_ >= 2:
                A(f"s_or_b64 vcc, {'s[16:17]' if s_ == 2 else 'vcc'}, s[{sVC+2*s_-2}:{sVC+2*s_-1}]")
        A(f"s_or_b64 vcc, vcc, s[{sVC+14}:{sVC+15}]")
        A(f"s_cbranch_scc0 L_rdone{x}")
        A(f"s_mov_b32 s{sM}, 0")
        for s_ in range(7, -1, -1):
            A(f"s_cmp_lg_u64 s[{sVC+2*s_}:{sVC+2*s_+1}], 0")
            A(f"s_addc_u32 s{sM}, s{sM}, s{sM}")
        A(f"s_xor_b32 s{sQ}, s{sM}, 0xff")
        red_init(W)
        A.label(f"L_rtop{x}")
        masked(sM, ld, "rl")
        masked(sQ, lambda s_: [A(t) for t in acc_i(s_, vRT)], "ra")
        A(f"s_add_u32 s{sCNT}, s{sCNT}, 1")
        A(f"s_mov_b32 s{sQ}, s{sM}")
        A(f"s_cmp_gt_u32 s{sCNT}, {SPIN_MAX}")
        A(f"s_cbranch_scc1 L_rdone{x}")
        A("s_waitcnt vmcnt(0)")

        def chk2(s_):
            for t in chk_i(s_, "vcc", vRX):
                A(t)
            A(f"s_cbranch_vccnz L_rc{x}s{s_}")
            A(f"s_bitset0_b32 s{sM}, {s_}")
            for t in acc_i(s_, vRT):
                A(t)
        masked(sQ, chk2, "rc")
        A(f"s_mov_b32 s{sQ}, 0")
        A(f"s_cmp_lg_u32 s{sM}, 0")
        A(f"s_cbranch_scc1 L_rtop{x}")
        A.label(f"L_rdone{x}")
        stamp()
        enc("rdone")
        for k in range(W):
            A(f"v_cvt_pk_bf16_f32 v{vRC+k}, v{vRC+2*k}, v{vRC+1+2*k}")
        if cfg.owide:
            A("s_nop 1")
            if W == 1:
                for k in range(1, 4):
                    A(f"v_mov_b32_dpp v{vRC+k}, v{vRC} quad_perm:[{k},{k},{k},{k}] row_mask:0xf bank_mask:0xf")
                m = 0x11111111
            else:
                for k in range(2):
                    A(f"v_mov_b32_dpp v{vRC+2+k}, v{vRC+k} quad_perm:[1,1,3,3] row_mask:0xf bank_mask:0xf")
                m = 0x55555555
            A(f"s_mov_b32 exec_lo, {m}")
            A(f"s_mov_b32 exec_hi, {m}")
            A(f"buffer_store_dwordx4 v[{vRC}:{vRC+3}], v{vRO}, s[{SRD0}:{SRD0+3}], s{sRO} offen {cfg.ofl if W > 1 else cfg.ofl1}")
            A("s_mov_b64 exec, -1")
        else:
            A(f"buffer_store_{dw(W)} {vr(vRC, W)}, v{vRO}, s[{SRD0}:{SRD0+3}], s{sRO} offen {cfg.ofl if W > 1 else cfg.ofl1}")
        if TS:
            A(f"s_mov_b32 s{sWS}, s{SRD1}")
            A(f"s_mov_b32 s{sWS+1}, s{SRD1+1}")

    A.label("L_reduce")
    tsn[0] = ts_max
    reduce_code(2, cfg.rb2)
    A(f"s_or_b32 s{sT0}, s{sJ}, s{sI}")
    A(f"s_or_b32 s{sT0}, s{sT0}, s{sC}")
    A(f"s_cmp_lg_u32 s{sT0}, 0")
    A("s_cbranch_scc1 L_noep")
    A(f"v_mov_b32 v16, s{sTAG}")
    A(f"s_lshl_b32 s{sT0}, s{sMT}, 7")
    A(f"s_add_u32 s{sT0}, s{sT0}, {WS_EP}")
    A("s_mov_b64 exec, 1")
    A(f"buffer_store_dword v16, v{vRZ}, s[{SRD1}:{SRD1+3}], s{sT0} offen sc1")
    A("s_mov_b64 exec, -1")
    A.label("L_noep")
    if cfg.enc:
        if cfg.enc == "end":
            A("s_waitcnt vmcnt(0)")
            enc("end")
        if cfg.encw >= 0:
            A(f"s_cmp_lg_u32 s{sWV}, {cfg.encw}")
            A("s_cbranch_scc1 L_end")
        A("s_waitcnt lgkmcnt(0)")
        if cfg.encc:
            A("s_sub_u32 s94, s94, s92")
            A("s_lshr_b32 s94, s94, 1")
        else:
            A("s_sub_u32 s94, s94, s96")
            A(f"s_mul_i32 s94, s94, {cfg.encm}")
        A("s_add_u32 s94, s94, 3000")
        A.label("L_dly")
        A("s_memrealtime s[98:99]")
        A("s_waitcnt lgkmcnt(0)")
        A("s_sub_u32 s98, s98, s96")
        A("s_cmp_lt_u32 s98, s94")
        A("s_cbranch_scc1 L_dly")
    if TS:
        A("s_waitcnt vmcnt(0)")
        stamp()
        A("s_memrealtime s[98:99]")
        A("s_waitcnt lgkmcnt(0)")
        A(f"s_mov_b32 s{sTS+26}, s96"); A(f"s_mov_b32 s{sTS+28}, s98"); A(f"s_mov_b32 s{sTS+30}, s{sCNT}")
        assert tsn[0] <= 12
        tsn[0] = 16
        stamp_flush()
    A("s_branch L_end")

    A.head("c")
    A.label("L_compute")
    tsn[0] = ts_base
    vACC, vAB, vXB, vT = 16, 64, 96, 240
    nAB = D + 1
    vA, vBX, vBH, vHW = [2, 3, 4], [5, 6, 7, 8], [9, 10, 11], [12, 13, 14]
    vTG, vL16 = vT + 11, vT + 10
    assert vAB + 4 * nAB <= vXB
    sA, sBq = sT4, sT5
    A(f"s_and_b32 s{sA}, s{sWV}, 1")
    A(f"s_lshr_b32 s{sBq}, s{sWV}, 1")
    A(f"v_lshrrev_b32 v{vT}, 5, v1")
    A(f"s_mul_i32 s60, s{sJ}, 1152")
    A(f"s_mul_i32 s{sT1}, s{sI}, 384")
    A(f"s_add_u32 s60, s60, s{sT1}")
    A(f"s_lshl_b32 s{sT1}, s{sBq}, 6")
    A(f"s_add_u32 s61, s60, s{sT1}")
    A(f"v_lshlrev_b32 v{vT+4}, 3, v{vT}")
    if cfg.sa:
        A(f"s_add_u32 s{sT3}, s{sWV}, 1")
        A(f"v_and_b32 v{vT+5}, 7, v1")
        A(f"v_mul_u32_u24 v{vT+5}, 9216, v{vT+5}")
        A(f"v_lshrrev_b32 v{vT+6}, 3, v1")
        A(f"v_min_u32 v{vT+6}, 2, v{vT+6}")
        A(f"v_lshl_add_u32 v{vT+5}, v{vT+6}, 7, v{vT+5}")
        A(f"s_lshl_b32 s{sT1}, s{sT3}, 3")
        A(f"s_add_u32 s{sT1}, s{sT1}, s{sMT}")
        A(f"s_mul_i32 s{sT1}, s{sT1}, {8*9216}")
        A(f"s_add_u32 s{sT1}, s{sT1}, s60")
        A(f"s_mul_i32 s{sT2}, s{sI}, 22")
        A(f"v_min_u32 v{vT+6}, 21, v1")
        A(f"v_add_u32 v{vT+6}, s{sT2}, v{vT+6}")
        A(f"v_min_u32 v{vT+6}, 63, v{vT+6}")
        A(f"v_mul_u32_u24 v{vT+6}, 1152, v{vT+6}")
        A(f"s_mul_i32 s{sT2}, s{sMT}, {64*1152}")
        A(f"s_lshl_b32 s{sT3}, s{sT3}, 7")
        A(f"s_add_u32 s{sT2}, s{sT2}, s{sT3}")
    A("s_waitcnt lgkmcnt(0)")
    srd(SRD0, sB1, 9216)
    for l in range(3):
        for g in range(4):
            r = vXB + 2 * (4 * l + g)
            A(f"buffer_load_dwordx2 v[{r}:{r+1}], v{vT+4}, s[{SRD0}:{SRD0+3}], s61 offen offset:{128*l+16*g}")
    if cfg.sa:
        srd(SRD1, sW1, 5308416)
        srd(SRD2, sX, 589824)
        A(f"s_cmp_ge_u32 s{sWV}, {cfg.sa}")
        A("s_cbranch_scc1 L_tdone")
        A(f"buffer_load_dword v255, v{vT+5}, s[{SRD1}:{SRD1+3}], s{sT1} offen {cfg.tfl}")
        A(f"buffer_load_dword v255, v{vT+6}, s[{SRD2}:{SRD2+3}], s{sT2} offen")
        A.label("L_tdone")
    epoch_load(sMT)
    A.tail("c")
    srd(SRD2, sB2, 1152)
    A(f"v_and_b32 v{vT+1}, 3, v1")
    A(f"v_lshlrev_b32 v{vT+1}, 2, v{vT+1}")
    A(f"v_lshl_add_u32 v{vT+1}, v{vT}, 4, v{vT+1}")
    A(f"s_mul_i32 s{sT1}, s{sI}, 384")
    A(f"s_lshl_b32 s{sT0}, s{sWV}, 5")
    A(f"s_add_u32 s{sT1}, s{sT1}, s{sT0}")
    A(f"buffer_load_dword v249, v{vT+1}, s[{SRD2}:{SRD2+3}], s{sT1} offen offset:256")
    srd(SRD1, sWS, 0x10000000)
    A(f"v_bfe_u32 v{vT+1}, v1, 2, 2")
    A(f"v_lshl_add_u32 v{vT+2}, v{vT}, 2, v{vT+1}")
    A(f"v_lshlrev_b32 v{vT+2}, 7, v{vT+2}")
    A(f"v_bfe_u32 v{vT+3}, v1, 3, 1")
    A(f"v_xor_b32 v{vT+3}, s{sBq}, v{vT+3}")
    A(f"v_lshl_add_u32 v{vT+2}, v{vT+3}, 6, v{vT+2}")
    A(f"v_bfe_u32 v{vT+3}, v1, 4, 1")
    A(f"v_lshl_add_u32 v{vT+2}, v{vT+3}, 5, v{vT+2}")
    A(f"v_and_b32 v{vT+3}, 3, v1")
    A(f"v_lshl_add_u32 v{vA[0]}, v{vT+3}, 3, v{vT+2}")
    A(f"v_add_u32 v{vA[1]}, 0x10000, v{vA[0]}")
    A(f"v_add_u32 v{vA[2]}, 0x20000, v{vA[0]}")
    A(f"v_and_b32 v{vT+1}, 31, v1")
    A(f"v_bfe_u32 v{vT+2}, v1, 1, 3")
    A(f"v_xor_b32 v{vT+2}, v{vT}, v{vT+2}")
    A(f"v_lshlrev_b32 v{vT+2}, 4, v{vT+2}")
    A(f"v_lshl_add_u32 v{vT+2}, v{vT+1}, 7, v{vT+2}")
    A(f"s_lshl_b32 s{sT0}, s{sA}, 12")
    A(f"s_add_u32 s{sT1}, s{sT0}, 0x20000")
    A(f"v_add_u32 v{vBX[0]}, s{sT1}, v{vT+2}")
    for sp in range(1, 4):
        A(f"v_xor_b32 v{vBX[sp]}, {32*sp}, v{vBX[0]}")
    A(f"v_lshl_add_u32 v{vBH[0]}, v1, 4, s{sT0}")
    A(f"v_add_u32 v{vBH[1]}, 0x10000, v{vBH[0]}")
    A(f"v_add_u32 v{vBH[2]}, 0x20000, v{vBH[0]}")
    A(f"s_lshl_b32 s{sT1}, s{sBq}, 11")
    for k in range(3):
        A(f"v_add_u32 v{vHW[k]}, s{sT1}, v{vBH[k]}")
    sI0 = 38
    sMS, sML, sMC = 39, 63, 59
    sHS = [60, 61, 62]
    if cfg.iside >= 0:
        A(f"s_xor_b32 s{sI0}, s{sA}, {cfg.iside}")
        A(f"s_lshl_b32 s{sI0}, s{sI0}, 13")
    else:
        A(f"s_mul_i32 s{sI0}, s{sA}, {4*SD}")
    A(f"s_mul_i32 s{sT1}, s{sR}, {SR}")
    A(f"s_add_u32 s{sI0}, s{sI0}, s{sT1}")
    A(f"s_mul_i32 s{sT1}, s{sJ}, {SS}")
    A(f"s_add_u32 s{sI0}, s{sI0}, s{sT1}")
    A(f"s_add_u32 s{sI0}, s{sI0}, {WS_IN}")
    A(f"s_lshl_b32 s{sT1}, s{sBq}, 9")
    A(f"s_add_u32 s{sI0}, s{sI0}, s{sT1}")
    A(f"v_bfe_u32 v{vT+1}, v1, 3, 2")
    A(f"v_mul_u32_u24 v{vT+1}, {SD}, v{vT+1}")
    A(f"v_and_b32 v{vT+2}, 7, v1")
    A(f"v_lshl_add_u32 v{vT+1}, v{vT+2}, 4, v{vT+1}")
    A(f"v_lshl_add_u32 v{vL16}, v{vT}, 7, v{vT+1}")
    A(f"s_mov_b32 s{sMS}, 0x80008000")
    A(f"s_mov_b32 s{sML}, 0x00010001")
    A(f"s_mov_b32 s{sMC}, 0x7fff7fff")
    A(f"s_mul_i32 s{sHS[0]}, s{sWK if cfg.hside < 0 else sR}, {HW}")
    if cfg.hside >= 0:
        jbase(sT1, sJ, cfg.hside, sT3)
        A(f"s_add_u32 s{sHS[0]}, s{sHS[0]}, s{sT1}")
    if WS_H:
        A(f"s_add_u32 s{sHS[0]}, s{sHS[0]}, {WS_H}")
    A(f"s_add_u32 s{sHS[1]}, s{sHS[0]}, {HL}")
    A(f"s_add_u32 s{sHS[2]}, s{sHS[0]}, {2*HL}")
    def dummy(n, tag):
        if not n:
            return
        for k in range(8):
            A(f"v_mul_u32_u24 v{160+k}, {0x9e3779 + 77*k}, v0")
            A(f"v_and_b32 v{160+k}, 0x3fff3fff, v{160+k}")
        A(f"s_mov_b32 s15, {n // 4}")
        A.label(f"L_dum{tag}")
        for k in range(4):
            A(f"v_mfma_f32_32x32x16_bf16 v[{176+16*k}:{191+16*k}], v[{160+4*(k&1)}:{163+4*(k&1)}], v[{160+4*(k>>1)}:{163+4*(k>>1)}], 0")
        A("s_sub_u32 s15, s15, 1")
        A("s_cmp_lg_u32 s15, 0")
        A(f"s_cbranch_scc1 L_dum{tag}")
    dummy(cfg.dum1, "a")
    epoch_fin()
    slot_add(sI0, *sHS)
    sIL = [sI0, 10, 11]
    assert not any(ROT)
    A(f"s_add_u32 s10, s{sI0}, {SL}")
    A(f"s_add_u32 s11, s{sI0}, {2*SL}")
    tag_regs(vTG, vT + 1)
    assert not cfg.sa
    A("s_waitcnt vmcnt(1)")
    if cfg.sa:
        A(f"s_cmp_lt_u32 s{sWV}, {cfg.sa}")
        A("s_cbranch_scc1 L_bw")
        A("s_waitcnt vmcnt(0)")
        A.label("L_bw")
    for l in range(3):
        for g in range(4):
            r = vXB + 2 * (4 * l + g)
            d = vACC + 16 * l + 4 * g
            A(f"v_lshlrev_b32 v{d}, 16, v{r}")
            A(f"v_and_b32 v{d+1}, 0xffff0000, v{r}")
            A(f"v_lshlrev_b32 v{d+2}, 16, v{r+1}")
            A(f"v_and_b32 v{d+3}, 0xffff0000, v{r+1}")
    dummy(cfg.dum2, "b")
    stamp()

    items = []
    for st in stages:
        bykb = {}
        for u in st["units"]:
            bykb.setdefault(u[2], []).append(u)
        for kb, us in bykb.items():
            if st["q"] == n_g1 - 1 and cfg.tm:
                seq = [int(c) for c in cfg.tm]
                nsp = {0: 0, 1: 0, 2: 0}
                for t_ in seq:
                    (t, wb, _kb, fst) = [u for u in us if u[0] == t_][0]
                    items.append(dict(q=st["q"], tile=t, wb=wb, kb=kb, sp=nsp[t], first=False))
                    nsp[t] += 1
                assert all(v == 4 for v in nsp.values())
                continue
            if len(us) == 2 and cfg.chain:
                for (t, wb, _kb, fst) in us:
                    for sp in range(4):
                        items.append(dict(q=st["q"], tile=t, wb=wb, kb=kb, sp=sp, first=(fst and sp == 0)))
                continue
            for sp in range(4):
                for (t, wb, _kb, fst) in us:
                    items.append(dict(q=st["q"], tile=t, wb=wb, kb=kb, sp=sp, first=(fst and sp == 0)))
    NI = len(items)
    aux_used = set()
    if cfg.dual:
        own_end = max(n for n, it in enumerate(items) if it["q"] >= n_g1 and it["kb"] < 3)
        assert all(kbidx[(0, l)] < 3 for l in range(3))
        for n, it in enumerate(items):
            if n > own_end + 1 and items[n - 1]["tile"] == it["tile"]:
                it["first"] = it["tile"] not in aux_used
                aux_used.add(it["tile"])
                it["tile"] += 3

    def accbase(t):
        return vACC + 16 * t if t < 3 else vXB + 16 * (t - 3)
    last_item = {}
    for n, it in enumerate(items):
        last_item[it["q"]] = n
    bread_of = {(st["q"], kb): bb for st in stages for (bb, kb) in st["breads"]}
    lg = []

    def ds_issue(instr, tag):
        cap = 14 if TS else 15
        if len(lg) >= cap:
            A(f"s_waitcnt lgkmcnt({cap-2})")
            del lg[:len(lg) - (cap - 2)]
        A(instr)
        lg.append(tag)

    def ds_need(tags):
        idx = max([i for i, t in enumerate(lg) if t in tags], default=-1)
        if idx >= 0:
            A(f"s_waitcnt lgkmcnt({len(lg) - 1 - idx})")
            del lg[:idx + 1]

    checked = [-1]
    bdone = set()
    dirty, clean_pos = {}, {}

    def clean(m):
        key = (items[m]["kb"], items[m]["sp"])
        if key in dirty and dirty[key] == m:
            del dirty[key]
            ds_need({("B",) + key})
            r = vXB + 16 * key[0] + 4 * key[1]
            for k in range(4):
                A(f"v_and_b32 v{r+k}, s{sMC}, v{r+k}")
            clean_pos[m] = len(A.L) - 1

    def issue_reads(n):
        it = items[n]
        q = it["q"]
        if q > checked[0]:
            ds_need({"hw"})
            A("s_barrier")
            checked[0] = q
            if q in cfg.tsq:
                stamp()
        key = (q, it["kb"])
        if key in bread_of and (key, it["sp"]) not in bdone:
            bdone.add((key, it["sp"]))
            bb = blocks[bread_of[key]]
            addr = bb["slot"] * 8192
            r = vXB + 16 * it["kb"] + 4 * it["sp"]
            if bb["kind"] == "X":
                assert addr >> 16 == 2
                ds_issue(f"ds_read_b128 v[{r}:{r+3}], v{vBX[it['sp']]} offset:{addr & 0xffff}", ("B", it["kb"], it["sp"]))
            else:
                ds_issue(f"ds_read_b128 v[{r}:{r+3}], v{vBH[addr >> 16]} offset:{(addr & 0xffff) + 1024*it['sp']}",
                         ("B", it["kb"], it["sp"]))
                if bb["kind"] != "Hown":
                    if not cfg.hlsb:
                        dirty[(it["kb"], it["sp"])] = n
        wb = blocks[it["wb"]]
        addr = wb["slot"] * 8192 + 2048 * it["sp"]
        r = vAB + 4 * (n % nAB)
        ds_issue(f"ds_read_b64_tr_b16 v[{r}:{r+1}], v{vA[addr >> 16]} offset:{addr & 0xffff}", ("A", n))
        ds_issue(f"ds_read_b64_tr_b16 v[{r+2}:{r+3}], v{vA[addr >> 16]} offset:{(addr & 0xffff) + 1024}", ("A", n))

    post = []

    def epi1_instrs(pi, lines):
        out, late = [], []
        for l in lines:
            a = vACC + 16 * l
            addr = blocks[f"H0_{l}"]["slot"] * 8192
            for half in range(2):
                base = a + 8 * half
                if cfg.epi == 1:
                    assert cfg.hlsb
                    for k in range(8):
                        out.append(("v", f"v_mul_f32 v{base+k}, v{base+k}, |v{base+k}|"))
                    for k in range(4):
                        out.append(("v", f"v_cvt_pk_bf16_f32 v{base+k}, v{base+2*k}, v{base+2*k+1}"))
                    for k in range(4):
                        out.append(("v", f"v_pk_max_i16 v{base+k}, v{base+k}, 0"))
                else:
                    for k in range(8):
                        out.append(("v", f"v_max_f32 v{base+k}, 0, v{base+k}"))
                    for k in range(0, 8, 2):
                        out.append(("v", f"v_pk_mul_f32 v[{base+k}:{base+k+1}], v[{base+k}:{base+k+1}], v[{base+k}:{base+k+1}]"))
                    for k in range(4):
                        out.append(("v", f"v_cvt_pk_bf16_f32 v{base+k}, v{base+2*k}, v{base+2*k+1}"))
                for k in range(4):
                    out.append(("v", f"v_bfi_b32 v{base+4+k}, s{sML}, v{vTG+k}, v{base+k}" if cfg.hlsb else
                                f"v_and_or_b32 v{base+4+k}, v{vTG+k}, s{sMS}, v{base+k}"))
                out.append(("v", f"buffer_store_dwordx4 v[{base+4}:{base+7}], v{vHW[0]}, s[{SRD1}:{SRD1+3}], s{sHS[l]} offen offset:{1024*half} {cfg.hsf}"))
                out.append(("w", f"ds_write_b128 v{vHW[addr >> 16]}, v[{base}:{base+3}] offset:{(addr & 0xffff) + 1024*half}"))
                t = ("v", f"buffer_load_dword v255, v{vHW[0]}, s[{SRD1}:{SRD1+3}], s{sHS[l]} offen offset:{1024*half} {cfg.stf}")
                if cfg.stouch == 1:
                    out.append(t)
                elif cfg.stouch == 2:
                    late.append(t)
                elif cfg.stouch == 3:
                    post.append(t)
        return out + late

    def epi2_instrs(lines):
        out = []
        for l in lines:
            for u in range(2):
                base = vACC + 8 * (2 * l + u)
                if l in aux_used:
                    ab = accbase(l + 3) + 8 * u
                    for k in range(0, 8, 2):
                        out.append(("v", f"v_pk_add_f32 v[{base+k}:{base+k+1}], v[{base+k}:{base+k+1}], v[{ab+k}:{ab+k+1}]"))
                for k in range(4):
                    out.append(("v", f"v_cvt_pk_bf16_f32 v{base+k}, v{base+2*k}, v{base+2*k+1}"))
                out.append(("v", "s_nop 1"))
                out.append(("v", f"v_permlane32_swap_b32 v{base}, v{base+2}"))
                out.append(("v", f"v_permlane32_swap_b32 v{base+1}, v{base+3}"))
                for k in (0, 2, 1, 3):
                    out.append(("v", f"v_bfi_b32 v{base+k}, s{sML}, v{vTG+k}, v{base+k}"))
                out.append(("v", f"buffer_store_dwordx4 v[{base}:{base+3}], v{vL16}, s[{SRD1}:{SRD1+3}], s{sIL[l]} offen offset:{256*u} {cfg.psf}"))
        return out

    fillers = []
    fill_start = 0
    fill_tiles = set()
    mfma_pos = {}
    fill_fresh = [False]

    def states_since(pos):
        c = 0
        for ln in A.L[pos + 1:]:
            t = ln.strip()
            if t.endswith(":") or t.startswith(";") or t.startswith("@@"):
                continue
            c += int(t.split()[1]) + 1 if t.startswith("s_nop") else 1
        return c

    late_w = []

    def emit(kind, t):
        if kind == "mark":
            have = min(states_since(mfma_pos[tl]) for tl in t[0])
            if have < 12:
                A(f"s_nop {12 - have - 1}")
        elif kind == "w":
            ds_issue(t, "hw")
        else:
            A(t)

    def flush_fillers():
        nonlocal fillers
        for (kind, t) in fillers + late_w:
            emit(kind, t)
        fillers = []
        late_w.clear()
        fill_tiles.clear()

    trig = {}
    for l in range(3):
        trig[max(n for n, it in enumerate(items) if it["q"] < n_g1 and it["tile"] == l)] = (1, l)
        trig[max(n for n, it in enumerate(items) if it["q"] >= n_g1 and it["tile"] % 3 == l)] = (2, l)

    nread = 0
    for n in range(NI):
        it = items[n]
        lim = min(NI - 1, n + D)
        while nread <= lim:
            nx = items[nread]
            if nx["q"] > checked[0]:
                due = [l for l, v in hown_vis.items() if v == nx["q"]]
                if due:
                    if last_item[hown_w[due[0]]] >= n:
                        break
                    flush_fillers()
            key = (nx["q"], nx["kb"])
            if key in bread_of and (key, nx["sp"]) not in bdone:
                if any(items[m]["kb"] == nx["kb"] and items[m]["sp"] == nx["sp"] for m in range(n, nread)):
                    break
            issue_reads(nread)
            nread += 1
        assert nread > n
        if it["tile"] in fill_tiles:
            flush_fillers()
            A("s_nop 1")
        clean(n)
        ds_need({("A", n), ("B", it["kb"], it["sp"])})
        if it["first"]:
            ds_need({"hw"})
        if n in clean_pos and states_since(clean_pos[n]) < 2:
            A(f"s_nop {1 - states_since(clean_pos[n])}")
        ra = vAB + 4 * (n % nAB)
        rb = vXB + 16 * it["kb"] + 4 * it["sp"]
        acc = accbase(it["tile"])
        c = "0" if it["first"] else f"v[{acc}:{acc+15}]"
        if cfg.m16test == 1:
            for hh in range(2):
                a4 = acc + 8 * (it["sp"] & 1) + 4 * hh
                rb2 = vXB + 16 * it["kb"] + 4 * (it["sp"] if hh == 0 else max(it["sp"] - 1, 0))
                A(f"v_mfma_f32_16x16x32_bf16 v[{a4}:{a4+3}], v[{ra}:{ra+3}], v[{rb2}:{rb2+3}], v[{a4}:{a4+3}]")
        elif cfg.m16test == 2:
            A("s_nop 7")
        else:
            A(f"v_mfma_f32_32x32x16_bf16 v[{acc}:{acc+15}], v[{ra}:{ra+3}], v[{rb}:{rb+3}], {c}")
        mfma_pos[it["tile"]] = len(A.L) - 1
        if n + 1 < nread:
            clean(n + 1)
        k = 0
        while fillers and k < (cfg.fill1 if it["q"] < n_g1 else cfg.fill):
            if fillers[0][0] == "mark" and n < fillers[0][1][1]:
                break
            kind, t = fillers.pop(0)
            emit(kind, t)
            k += kind != "mark"
        if not fillers and not late_w:
            fill_tiles.clear()
        if n == last_item[it["q"]] and (it["q"] in epi_after or it["q"] in epi2_after):
            stamp()
        if n in trig:
            g, l = trig[n]
            tl = [l] + ([l + 3] if (g == 2 and l in aux_used) else [])
            new = epi1_instrs(0, [l]) if g == 1 else epi2_instrs([l])
            if cfg.wlast:
                late_w.extend(x for x in new if x[0] == "w")
                new = [x for x in new if x[0] != "w"]
            fillers += [("mark", (tl, n + cfg.fdel))] + new
            fill_tiles.update(tl)
    flush_fillers()
    stamp()
    if cfg.rnb >= 1 and not cfg.rlate:
        A("s_barrier")
    reduce_code(1, 0)
    if TS:
        A("s_waitcnt vmcnt(0)")
        A("s_memrealtime s[98:99]")
        A("s_waitcnt lgkmcnt(0)")
        assert tsn[0] <= 14, tsn[0]
        A(f"s_mov_b32 s{sTS+28}, s98"); A(f"s_mov_b32 s{sTS+30}, s{sCNT}")
        tsn[0] = 16
        stamp_flush()
    if cfg.enc and cfg.encw < 4:
        A("s_branch L_noep")
    A("s_branch L_end")

    A.head("hl")
    A.label("L_helper")
    sG = 38
    A(f"s_lshl_b32 s{sG}, s{sWV}, 3")
    A(f"s_add_u32 s{sG}, s{sG}, s{sR}")
    A("v_mul_u32_u24 v8, 9216, v1")
    A("v_mul_u32_u24 v9, 1152, v1")
    A(f"s_mul_i32 s39, s{sJ}, 1152")
    A("s_waitcnt lgkmcnt(0)")
    NWT = 64

    def sdiv(dst, src, d):
        A(f"s_mul_i32 s{dst}, s{src}, {(65536 + d - 1) // d}")
        A(f"s_lshr_b32 s{dst}, s{dst}, 16")

    w2base = 0
    if cfg.touch and any(ROT):
        srd(SRD0, sW1, 5308416)
        srd(SRD1, sX, 589824)
        need = {kk: min((kk - r) % 9 for r in ROT) for kk in range(9)}
        kks = sorted([kk for kk in range(9) if need[kk] >= cfg.skipw], key=lambda kk: need[kk])
        KT = sum(kk << (4 * u) for u, kk in enumerate(kks))
        nW = 9 * len(kks)
        x0 = cfg.skipx
        nX = 8 * (9 - x0)
        tot = nW + nX
        for rnd in range((tot + NWT - 1) // NWT):
            if rnd == 1:
                A.tail("hl")
            k = A.uid()
            A(f"s_add_u32 s{sT0}, s{sG}, {NWT*rnd}")
            if NWT * rnd < nW:
                if NWT * rnd + NWT > nW:
                    A(f"s_cmp_ge_u32 s{sT0}, {nW}")
                    A(f"s_cbranch_scc1 L_hx{k}")
                sdiv(sT1, sT0, 9)
                A(f"s_mul_i32 s{sT2}, s{sT1}, 9")
                A(f"s_sub_u32 s{sT2}, s{sT0}, s{sT2}")
                A(f"s_lshl_b32 s{sT1}, s{sT1}, 2")
                A(f"s_lshr_b32 s{sT1}, {KT}, s{sT1}")
                A(f"s_and_b32 s{sT1}, s{sT1}, 15")
                A(f"s_mul_i32 s{sT1}, s{sT1}, {64*9216}")
                A(f"s_lshl_b32 s{sT2}, s{sT2}, 7")
                A(f"s_add_u32 s{sT1}, s{sT1}, s{sT2}")
                A(f"s_add_u32 s{sT1}, s{sT1}, s39")
                A(f"buffer_load_dword v255, v8, s[{SRD0}:{SRD0+3}], s{sT1} offen {cfg.tfl}")
                if NWT * rnd + NWT > nW:
                    A(f"s_branch L_ht{k}")
            if NWT * rnd + NWT > nW:
                A.label(f"L_hx{k}")
                if NWT * rnd + NWT > tot:
                    A(f"s_cmp_ge_u32 s{sT0}, {tot}")
                    A(f"s_cbranch_scc1 L_ht{k}")
                A(f"s_sub_u32 s{sT0}, s{sT0}, {nW - 8*x0}")
                A(f"s_and_b32 s{sT2}, s{sT0}, 7")
                A(f"s_lshr_b32 s{sT1}, s{sT0}, 3")
                A(f"s_lshl_b32 s{sT3}, s{sT2}, 2")
                A(f"s_lshr_b32 s{sT3}, {ROTTAB}, s{sT3}")
                A(f"s_and_b32 s{sT3}, s{sT3}, 15")
                A(f"s_add_u32 s{sT1}, s{sT1}, s{sT3}")
                A(f"s_cmp_ge_u32 s{sT1}, 9")
                A(f"s_cselect_b32 s{sT3}, 9, 0")
                A(f"s_sub_u32 s{sT1}, s{sT1}, s{sT3}")
                A(f"s_mul_i32 s{sT2}, s{sT2}, {64*1152}")
                A(f"s_lshl_b32 s{sT1}, s{sT1}, 7")
                A(f"s_add_u32 s{sT1}, s{sT1}, s{sT2}")
                A(f"buffer_load_dword v255, v9, s[{SRD1}:{SRD1+3}], s{sT1} offen")
            A.label(f"L_ht{k}")
        w2base = (NWT - tot % NWT) % NWT
    elif cfg.touch:
        srd(SRD0, sW1, 5308416)
        srd(SRD1, sX, 589824)
        phases, base = [], 0
        for pi, ls in enumerate(passes):
            t0 = cfg.ht0 if pi == 0 else 0
            c = 3 * len(ls) + (8 if pi == 0 else 0)
            phases.append((base, (9 - t0 - cfg.tn) * c, t0, c, ls))
            base += (9 - t0 - cfg.tn) * c
        w2base = (NWT - base % NWT) % NWT if cfg.w2rot else 0
        for rnd in range((base + NWT - 1) // NWT):
            if rnd == 1:
                A.tail("hl")
            k = A.uid()
            A(f"s_add_u32 s{sT0}, s{sG}, {NWT*rnd}")
            for (pb, cnt, t0, c, ls) in phases:
                if pb + cnt <= NWT * rnd or pb >= NWT * rnd + NWT:
                    continue
                k2 = A.uid()
                A(f"s_cmp_ge_u32 s{sT0}, {pb+cnt}")
                A(f"s_cbranch_scc1 L_hp{k2}")
                if pb:
                    A(f"s_sub_u32 s{sT0}, s{sT0}, {pb}")
                sdiv(sT1, sT0, c)
                A(f"s_mul_i32 s{sT2}, s{sT1}, {c}")
                A(f"s_sub_u32 s{sT2}, s{sT0}, s{sT2}")
                if t0:
                    A(f"s_add_u32 s{sT1}, s{sT1}, {t0}")
                if cfg.tn:
                    A(f"s_cmp_ge_u32 s{sT1}, {cfg.ta}")
                    A(f"s_cselect_b32 s{sT3}, {cfg.tn}, 0")
                    A(f"s_add_u32 s{sT1}, s{sT1}, s{sT3}")
                nw = 3 * len(ls)
                if c > nw:
                    A(f"s_cmp_ge_u32 s{sT2}, {nw}")
                    A(f"s_cbranch_scc1 L_hx{k2}")
                if len(ls) != 3:
                    if len(ls) == 1:
                        A(f"s_mul_i32 s{sT2}, s{sT2}, 3")
                    else:
                        A(f"s_lshr_b32 s{sT3}, s{sT2}, 1")
                        A(f"s_add_u32 s{sT2}, s{sT2}, s{sT3}")
                    if ls[0]:
                        A(f"s_add_u32 s{sT2}, s{sT2}, {ls[0]}")
                A(f"s_mul_i32 s{sT1}, s{sT1}, {64*9216}")
                A(f"s_lshl_b32 s{sT2}, s{sT2}, 7")
                A(f"s_add_u32 s{sT1}, s{sT1}, s{sT2}")
                A(f"s_add_u32 s{sT1}, s{sT1}, s39")
                A(f"buffer_load_dword v255, v8, s[{SRD0}:{SRD0+3}], s{sT1} offen {cfg.tfl}")
                A(f"s_branch L_ht{k}")
                if c > nw:
                    A.label(f"L_hx{k2}")
                    A(f"s_sub_u32 s{sT2}, s{sT2}, {nw}")
                    A(f"s_mul_i32 s{sT2}, s{sT2}, {64*1152}")
                    A(f"s_lshl_b32 s{sT1}, s{sT1}, 7")
                    A(f"s_add_u32 s{sT1}, s{sT1}, s{sT2}")
                    A(f"buffer_load_dword v255, v9, s[{SRD1}:{SRD1+3}], s{sT1} offen")
                    A(f"s_branch L_ht{k}")
                A.label(f"L_hp{k2}")
            A.label(f"L_ht{k}")
    def h_pretouch():
        srd(SRD1, sWS, 0x10000000)
        A("v_lshlrev_b32 v10, 7, v1")
        A(f"s_mul_i32 s{sT1}, s{sJ}, 589824")
        A(f"s_add_u32 s{sT1}, s{sT1}, {WS_IN if cfg.hpin else WS_H}")
        for rnd in range(2):
            k = A.uid()
            A(f"s_add_u32 s{sT0}, s{sG}, {NWT*rnd}")
            A(f"s_cmp_ge_u32 s{sT0}, 72")
            A(f"s_cbranch_scc1 L_ht{k}")
            A(f"s_lshl_b32 s{sT0}, s{sT0}, 13")
            A(f"s_add_u32 s{sT0}, s{sT0}, s{sT1}")
            A(f"buffer_load_dword v255, v10, s[{SRD1}:{SRD1+3}], s{sT0} offen {cfg.hpf}")
            A.label(f"L_ht{k}")
    if cfg.hpre == 1:
        h_pretouch()
    if cfg.touch:
        srd(SRD0, sW2, 5308416)
        A(f"s_mul_i32 s39, s{sJ}, 663552")
        vord = [blocks[nm] for nm in order if blocks[nm]["kind"] == "W2"]
        if not cfg.vneed:
            vord.sort(key=lambda b: (kbidx[(b["d"], b["lk"])], b["l"]))
        for reg, key in ((60, "d"), (62, "lk"), (44, "l")):
            tab = sum(b[key] << (2 * u) for u, b in enumerate(vord))
            A(f"s_mov_b32 s{reg}, {tab & 0xffffffff}")
            A(f"s_mov_b32 s{reg+1}, {tab >> 32}")
        if w2base:
            A(f"s_add_u32 s{sG}, s{sG}, {w2base}")
            A(f"s_and_b32 s{sG}, s{sG}, 63")
        for rnd in range(2):
            k = A.uid()
            A(f"s_add_u32 s{sT0}, s{sG}, {NWT*rnd}")
            A(f"s_cmp_ge_u32 s{sT0}, {81 - 18*cfg.vt}")
            A(f"s_cbranch_scc1 L_ht{k}")
            sdiv(sT1, sT0, 3)
            A(f"s_mul_i32 s{sT2}, s{sT1}, 3")
            A(f"s_sub_u32 s{sT2}, s{sT0}, s{sT2}")
            A(f"s_lshl_b32 s{sT1}, s{sT1}, 1")
            A(f"s_lshr_b64 s[46:47], s[60:61], s{sT1}")
            A(f"s_and_b32 s{sT0}, s46, 3")
            A(f"s_add_u32 s{sT0}, s{sT0}, s{sT2}")
            A(f"s_cmp_ge_u32 s{sT0}, 3")
            A(f"s_cselect_b32 s{sT3}, 3, 0")
            A(f"s_sub_u32 s{sT0}, s{sT0}, s{sT3}")
            A(f"s_lshr_b64 s[46:47], s[62:63], s{sT1}")
            A(f"s_and_b32 s{sT3}, s46, 3")
            A(f"s_mul_i32 s{sT0}, s{sT0}, {192*1152}")
            A(f"s_mul_i32 s{sT3}, s{sT3}, {64*1152}")
            A(f"s_add_u32 s{sT0}, s{sT0}, s{sT3}")
            A(f"s_lshr_b64 s[46:47], s[44:45], s{sT1}")
            A(f"s_and_b32 s{sT3}, s46, 3")
            A(f"s_mul_i32 s{sT2}, s{sT2}, 3")
            A(f"s_add_u32 s{sT2}, s{sT2}, s{sT3}")
            A(f"s_lshl_b32 s{sT2}, s{sT2}, 7")
            A(f"s_add_u32 s{sT0}, s{sT0}, s{sT2}")
            A(f"s_add_u32 s{sT0}, s{sT0}, s39")
            A(f"buffer_load_dword v255, v9, s[{SRD0}:{SRD0+3}], s{sT0} offen {cfg.tfl}")
            A.label(f"L_ht{k}")
    if cfg.hpre == 2:
        h_pretouch()
    dummy(cfg.dumh, "h")
    if TS:
        tsn[0] = 1
        A("s_waitcnt vmcnt(0)")
        stamp()
        stamp()
        stamp_flush()
    A("s_branch L_end")
    A.tail("end")
    A.label("L_end")

    hdr = f"""; Fused MLP (x@w1+b1 -> relu^2 -> @w2+b2), generated by a python script (work/gen8.py)
; @launch grid=(256,1,1) block=(512,1,1) lds=163840
.amdgcn_target "amdgcn-amd-amdhsa--gfx950"
.text
.globl {KN}
.p2align 8
.type {KN},@function
{KN}:
"""
    ftr = f"""
    s_endpgm
.section .rodata,"a"
.p2align 6
.amdhsa_kernel {KN}
  .amdhsa_next_free_vgpr 256
  .amdhsa_next_free_sgpr 102
  .amdhsa_accum_offset 256
  .amdhsa_group_segment_fixed_size 0
  .amdhsa_kernarg_size 64
  .amdhsa_user_sgpr_count 2
  .amdhsa_user_sgpr_kernarg_segment_ptr 1
  .amdhsa_system_sgpr_workgroup_id_x 1
.end_amdhsa_kernel
"""
    return hdr + A.text(cfg.horder.split(","), cfg.torder.split(",") + ["end"]) + ftr


def parse_g2(s):
    out = []
    for stg in s.split(","):
        us = []
        for u in stg.split("+"):
            a, b = u.split(":")
            us.append((int(a[0]), int(a[1]), [int(c) for c in b]))
        out.append(us)
    return out


def ilist(s):
    return [int(x) for x in s.split(",")] if s else []


def main():
    ap = argparse.ArgumentParser()
    ap.add_argument("-o", default="k8.s")
    ap.add_argument("--ts", action="store_true")
    ap.add_argument("--passes", default="012")
    ap.add_argument("--depth", type=int, default=5)
    ap.add_argument("--fill", type=int, default=4)
    ap.add_argument("--grp1", type=int, default=3)
    ap.add_argument("--hres", type=float, default=2.5)
    ap.add_argument("--hearly", type=float, default=1.5)
    ap.add_argument("--hdel", type=int, default=1)
    ap.add_argument("--xfree", type=int, default=11)
    ap.add_argument("--g2", default="00:012,01:012,02:012,10:012,20:012,11:012,21:012,12:012,22:012")
    ap.add_argument("--tsq", default="")
    ap.add_argument("--verbose", action="store_true")
    ap.add_argument("--ahead", type=int, default=8)
    ap.add_argument("--ahead0", type=int, default=8)
    ap.add_argument("--capfrom", type=int, default=8)
    ap.add_argument("--capw", type=int, default=4)
    ap.add_argument("--capx", type=int, default=3)
    ap.add_argument("--burst", default="")
    ap.add_argument("--pause", default="")
    ap.add_argument("--go2lead", type=int, default=3)
    ap.add_argument("--sa", type=int, default=0)
    ap.add_argument("--ctouch", type=int, default=1)
    ap.add_argument("--wfl", default="")
    ap.add_argument("--tfl", default="")
    ap.add_argument("--rfl", default="sc1")
    ap.add_argument("--rsleep", type=int, default=0)
    ap.add_argument("--touch", type=int, default=1)
    ap.add_argument("--clrq", type=int, default=-1)
    ap.add_argument("--cdq", type=int, default=9)
    ap.add_argument("--rbar", type=int, default=0)
    ap.add_argument("--hsf", default="sc1")
    ap.add_argument("--hlf", default="sc1")
    ap.add_argument("--ofl", default="")
    ap.add_argument("--hpre", type=int, default=0)
    ap.add_argument("--rot", default="00000000")
    ap.add_argument("--ts0", type=int, default=0)
    ap.add_argument("--hlsb", type=int, default=1)
    ap.add_argument("--dual", type=int, default=0)
    ap.add_argument("--hside", type=int, default=-1)
    ap.add_argument("--iside", type=int, default=-1)
    ap.add_argument("--obox", type=int, default=0)
    ap.add_argument("--probe", type=int, default=0)
    ap.add_argument("--vt", type=int, default=0)
    ap.add_argument("--vtq", type=int, default=10)
    ap.add_argument("--xpre", type=int, default=0)
    ap.add_argument("--m16test", type=int, default=0)
    ap.add_argument("--vneed", type=int, default=1)
    ap.add_argument("--tsreal", type=int, default=0)
    ap.add_argument("--vpipe", type=int, default=0)
    ap.add_argument("--ahead2", type=int, default=-1)
    ap.add_argument("--chain", type=int, default=1)
    ap.add_argument("--owide", type=int, default=0)
    ap.add_argument("--dum1", type=int, default=0)
    ap.add_argument("--dum2", type=int, default=0)
    ap.add_argument("--dumh", type=int, default=0)
    ap.add_argument("--encc", type=int, default=0)
    ap.add_argument("--encm", type=int, default=2)
    ap.add_argument("--slots", type=int, default=0)
    ap.add_argument("--rlate", type=int, default=0)
    ap.add_argument("--epi", type=int, default=0)
    ap.add_argument("--tm", default="")
    ap.add_argument("--wlast", type=int, default=0)
    ap.add_argument("--fdel", type=int, default=3)
    ap.add_argument("--fill1", type=int, default=5)
    ap.add_argument("--priow", type=int, default=0)
    ap.add_argument("--prioh", type=int, default=0)
    ap.add_argument("--r0early", type=int, default=0)
    ap.add_argument("--psf", default="sc1")
    ap.add_argument("--rw1", type=int, default=0)
    ap.add_argument("--ofl1", default="")
    ap.add_argument("--rpq", type=int, default=10)
    ap.add_argument("--rb2", type=int, default=1)
    ap.add_argument("--rb4", type=int, default=0)
    ap.add_argument("--rearly", type=int, default=0)
    ap.add_argument("--hpf", default="")
    ap.add_argument("--hpin", type=int, default=0)
    ap.add_argument("--wsb", type=lambda x: int(x, 0), default=0)
    ap.add_argument("--enc", default="")
    ap.add_argument("--encw", type=int, default=4)
    ap.add_argument("--hfree", type=int, default=2)
    ap.add_argument("--stouch", type=int, default=0)
    ap.add_argument("--stdel", type=int, default=1)
    ap.add_argument("--stf", default="")
    ap.add_argument("--ta", type=int, default=0)
    ap.add_argument("--tn", type=int, default=0)
    ap.add_argument("--tpos", type=int, default=0)
    ap.add_argument("--w2rot", type=int, default=1)
    ap.add_argument("--rfast", type=int, default=1)
    ap.add_argument("--wt", type=int, default=0)
    ap.add_argument("--horder", default="w,x,h2,hl,c")
    ap.add_argument("--ht0", type=int, default=1)
    ap.add_argument("--first", type=int, default=4)
    ap.add_argument("--torder", default="hl,w,x,h2,c,red")
    ap.add_argument("--skipw", type=int, default=1)
    ap.add_argument("--skipx", type=int, default=1)
    cfg = ap.parse_args()
    cfg.passes = [[int(c) for c in p] for p in cfg.passes.split(",")]
    cfg.g2 = parse_g2(cfg.g2)
    cfg.rnb = cfg.rb2
    cfg.tsq, cfg.burst, cfg.pause = ilist(cfg.tsq), ilist(cfg.burst), ilist(cfg.pause)
    open(cfg.o, "w").write(build(cfg))


main()
```

```python
import sys, argparse

KN = "standalone__dense_activation_squared_relu__sampling_kernel"

WS_H = 0x0
WS_IN = 0x1000000
WS_CD = 0x1840000
WS_EP = 0x1850000
WS_TS = 0x8000000
SPIN_MAX = 100000
SGNMASK = 0x6A9956A5


class Asm:
    def __init__(self):
        self.L = []
        self.n = 0

    def __call__(self, s):
        self.L.append("    " + s)

    def label(self, s):
        self.L.append(s + ":")

    def c(self, s):
        self.L.append("    ; " + s)

    def uid(self):
        self.n += 1
        return self.n

    def head(self, role):
        self.L.append(f"@@HEAD {role}")

    def tail(self, role):
        self.L.append(f"@@TAIL {role}")

    def text(self, horder, torder):
        pro, heads, tails, cur = [], {}, {}, None
        cur = pro
        for ln in self.L:
            if ln.startswith("@@HEAD"):
                cur = heads.setdefault(ln.split()[1], [])
            elif ln.startswith("@@TAIL"):
                r = ln.split()[1]
                if r in heads:
                    heads[r].append(f"    s_branch L_tail_{r}")
                cur = tails.setdefault(r, [f"L_tail_{r}:"])
            else:
                cur.append(ln)
        assert sorted(heads) == sorted(horder) and sorted(tails) == sorted(torder), (heads.keys(), tails.keys())
        out = pro
        for r in horder:
            out += heads[r]
        out.append("L_heads_end:")
        for r in torder:
            out += tails[r]
        return "\n".join(out)


def build(cfg):
    global WS_H, WS_IN, WS_EP
    WS_H = cfg.wsb
    WS_IN = cfg.wsb + 0x480000
    WS_EP = cfg.wsb + 0xc00000 if not cfg.slots else 0x10000
    A = Asm()
    SR, SD, SS, SL = {0: (24576, 589824, 3072, 1024), 1: (24576, 1024, 589824, 8192),
                      2: (196608, 8192, 1024, 65536), 3: (196608, 1024, 8192, 65536),
                      4: (221184, 9216, 1024, 73728), 5: (24*10496, 10496, 1280, 8*10496),
                      6: (221184, 1024, 9216, 73728), 7: (24*8448, 8448, 1024, 8*8448)}[cfg.obox]
    TS = cfg.ts
    HW, HL = (24576, 8192) if cfg.hside < 0 else (49152, 16384)
    if cfg.hside >= 0 or cfg.iside >= 0:
        WS_IN = cfg.wsb + 0x1000000
        WS_EP = cfg.wsb + 0x2000000
    if cfg.iside >= 0:
        SR, SD, SS, SL = 49152, 0x400000, 1024, 16384

    def jbase(dst, sj, side, tmp):
        A(f"s_and_b32 s{dst}, s{sj}, 3")
        A(f"s_lshl_b32 s{dst}, s{dst}, 22")
        A(f"s_lshr_b32 s{tmp}, s{sj}, 2")
        if side:
            A(f"s_xor_b32 s{tmp}, s{tmp}, 1")
        A(f"s_lshl_b32 s{tmp}, s{tmp}, 13")
        A(f"s_add_u32 s{dst}, s{dst}, s{tmp}")
    passes = cfg.passes
    D = cfg.depth

    stages, blocks, order = [], {}, []

    def blk(name, **kw):
        blocks[name] = dict(name=name, **kw)
        return name

    def add_stage(units, breads):
        q = len(stages)
        stages.append(dict(units=units, breads=breads, q=q))
        for (bb, _kb) in breads:
            b = blocks[bb]
            b["need"] = b["last"] = q
            if b["kind"] != "Hown":
                order.append(bb)
        for (_t, wb, _kb, _first) in units:
            b = blocks[wb]
            if "need" not in b:
                b["need"] = q
                order.append(wb)
            b["last"] = q
        return q

    epi_after, pass_of_line = {}, {}
    for pi, lines in enumerate(passes):
        grp = 1 if (len(lines) > 1 or pi == 0) else cfg.grp1
        for t0 in range(0, 9, grp):
            units, breads = [], []
            for t in range(t0, t0 + grp):
                if pi == 0:
                    breads.append((blk(f"X{t}", kind="X", t=t), t))
                for l in lines:
                    units.append((l, blk(f"W{t}_{l}", kind="W1", t=t, l=l), t, False))
            q = add_stage(units, breads)
        epi_after[q] = (pi, list(lines))
        for l in lines:
            pass_of_line[l] = pi
    n_g1 = len(stages)
    kbidx = {}
    first = {0: True, 1: True, 2: True}
    cnt2 = {0: 0, 1: 0, 2: 0}
    epi2_after = {}
    for stg in cfg.g2:
        units, breads = [], []
        for (d, lk, lines) in stg:
            if (d, lk) not in kbidx:
                kbidx[(d, lk)] = len(kbidx)
                breads.append((blk(f"H{d}_{lk}", kind="Hown" if d == 0 else f"H{d}", d=d, lk=lk), kbidx[(d, lk)]))
            for l in lines:
                units.append((l, blk(f"V{d}_{lk}_{l}", kind="W2", d=d, lk=lk, l=l), kbidx[(d, lk)], first[l]))
                first[l] = False
                cnt2[l] += 1
        q = add_stage(units, breads)
        done = [l for l in range(3) if cnt2[l] == 9 and not any(l in v for v in epi2_after.values())]
        if done:
            epi2_after[q] = done
    assert all(v == 9 for v in cnt2.values())
    NQ = len(stages)
    hown_w = {l: q for q, (pi, lines) in epi_after.items() for l in lines}
    hown_vis = {l: (q + 1 if q == n_g1 - 1 else q + 2) for l, q in hown_w.items()}
    for l in hown_w:
        assert blocks[f"H0_{l}"]["need"] >= hown_vis[l]
    hfetch = {l: hown_vis[l] + cfg.hdel for l in hown_w}

    free_at = {s: -10 for s in range(20)}
    events = [(blocks[nm]["need"] - (cfg.hearly if blocks[nm]["kind"] in ("H1", "H2") else 0), 1, k, nm) for k, nm in enumerate(order)]
    for l, qw in hown_w.items():
        events.append((qw - cfg.hres, 0, l, f"H0_{l}"))
    events.sort()
    for ev in events:
        b = blocks[ev[3]]
        if b["kind"] == "X":
            cand = [16, 17, 18, 19]
        elif ev[0] < cfg.xfree:
            cand = list(range(0, 16))
        else:
            cand = list(range(0, 20))
        s = min(cand, key=lambda s: (free_at[s], s))
        b["slot"] = s
        b["free"] = free_at[s]
        if b["kind"] == "Hown":
            assert b["free"] + cfg.hfree <= hown_w[b["lk"]], b
        else:
            assert b["free"] + 2 < b["need"], b
        free_at[s] = b["last"]
    if cfg.verbose:
        print(" | ".join(f"{blocks[e[3]]['name']}:s{blocks[e[3]]['slot']} f{blocks[e[3]]['free']} n{blocks[e[3]]['need']}" for e in events), file=sys.stderr)
    for k, nm in enumerate(order):
        blocks[nm]["pos"] = k
    cum = [sum(1 for nm in order if blocks[nm]["need"] <= q) for q in range(NQ)]

    sX, sW1, sB1, sW2, sB2, sOUT, sDBG, sWS = 16, 18, 20, 22, 24, 26, 28, 30
    sJ, sR, sMT, sI, sWV, sWK = 32, 33, 34, 35, 36, 37
    SRD0, SRD1, SRD2 = 40, 44, 48
    sT0, sT1, sT2, sT3, sT4, sT5 = 52, 53, 54, 55, 56, 57
    sCNT = 58
    sTAG, sPB = 6, 8
    sTS = 64
    tsn = [0]

    def stamp():
        if TS:
            k = tsn[0]
            assert k < 16
            A(f"{'s_memrealtime' if cfg.tsreal else 's_memtime'} s[{sTS+2*k}:{sTS+2*k+1}]")
            tsn[0] += 1

    def srd(d, p, nbytes):
        A(f"s_mov_b32 s{d}, s{p}")
        A(f"s_mov_b32 s{d+1}, s{p+1}")
        A(f"s_mov_b32 s{d+2}, {nbytes}")
        A(f"s_mov_b32 s{d+3}, 0x00020000")

    def stamp_flush():
        if not TS:
            return
        n = tsn[0]
        A("s_waitcnt lgkmcnt(0)")
        srd(SRD2, sWS, 0x10000000)
        A(f"s_lshl_b32 s{sT0}, s2, 9")
        A(f"s_lshl_b32 s{sT1}, s{sWV}, 6")
        A(f"s_add_u32 s{sT0}, s{sT0}, s{sT1}")
        A(f"s_add_u32 s{sT0}, s{sT0}, {WS_TS}")
        A(f"v_mov_b32 v2, s{sT0}")
        A("s_mov_b64 exec, 1")
        for k in range(n):
            A(f"v_mov_b32 v3, s{sTS+2*k}")
            A(f"buffer_store_dword v3, v2, s[{SRD2}:{SRD2+3}], 0 offen offset:{4*k}")
        A("s_mov_b64 exec, -1")

    def epoch_load(smt):
        A(f"s_lshl_b32 s{sT0}, s{smt}, 7")
        A(f"s_add_u32 s{sT0}, s{sT0}, {WS_EP}")
        A(f"s_load_dword s{sTAG}, s[{sWS}:{sWS+1}], s{sT0}")

    def epoch_fin():
        A("s_waitcnt lgkmcnt(0)")
        A(f"s_add_u32 s{sTAG}, s{sTAG}, 1")
        A(f"s_mul_i32 s{sTAG+1}, s{sTAG}, 0x22222222")
        A(f"s_and_b32 s{sTAG+1}, s{sTAG+1}, 0xeeeeeeee")
        A(f"s_or_b32 s{sTAG+1}, s{sTAG+1}, 0x10101010")
        if cfg.slots:
            A(f"s_and_b32 s14, s{sTAG}, {cfg.slots-1}")
            A(f"s_mul_i32 s14, s14, 0xa00000")

    def slot_add(*regs):
        if cfg.slots:
            for r in regs:
                A(f"s_add_u32 s{r}, s{r}, s14")

    def tag_regs(vd, vt):
        A(f"v_and_b32 v{vt}, 3, v1")
        A(f"v_lshlrev_b32 v{vt}, 3, v{vt}")
        A(f"v_lshrrev_b32 v{vt}, v{vt}, s{sTAG+1}")
        for k in range(4):
            A(f"v_bfe_u32 v{vd+k}, v{vt}, {2*k}, 2")
            A(f"v_mul_u32_u24 v{vd+k}, 0x8001, v{vd+k}")
            A(f"v_and_b32 v{vd+k}, 0x10001, v{vd+k}")
            A(f"v_lshl_or_b32 v{vd+k}, v{vd+k}, 15, v{vd+k}")

    def sign_reg(vd, vt):
        A(f"s_bitcmp1_b32 s{sTAG}, 0")
        A(f"s_cselect_b32 s{sT0}, -1, 0")
        A(f"s_xor_b32 s{sT0}, s{sT0}, {SGNMASK}")
        A(f"v_and_b32 v{vt}, 31, v1")
        A(f"v_lshrrev_b32 v{vt}, v{vt}, s{sT0}")
        A(f"v_bfe_i32 v{vt}, v{vt}, 0, 1")
        A(f"v_and_b32 v{vd}, 0x80008000, v{vt}")

    def sspin(loads, npairs, base):
        k = A.uid()
        A(f"s_mov_b32 s{sCNT}, 0")
        A.label(f"L_s{k}")
        for x in loads:
            A(x)
        A(f"s_add_u32 s{sCNT}, s{sCNT}, 1")
        A("s_waitcnt lgkmcnt(0)")
        A(f"s_cmp_gt_u32 s{sCNT}, {SPIN_MAX}")
        A(f"s_cbranch_scc1 L_sd{k}")
        for n in range(npairs):
            A(f"s_cmp_lg_u64 s[{base+2*n}:{base+2*n+1}], s[{sTAG}:{sTAG+1}]")
            A(f"s_cbranch_scc1 L_s{k}")
        A.label(f"L_sd{k}")

    def mod3add(dst, d, tmp):
        A(f"s_add_u32 s{dst}, s{sI}, {d}")
        A(f"s_cmp_ge_u32 s{dst}, 3")
        A(f"s_cselect_b32 s{tmp}, 3, 0")
        A(f"s_sub_u32 s{dst}, s{dst}, s{tmp}")

    A("s_cmp_ge_u32 s2, 256")
    A("s_cbranch_scc1 L_end")
    A("s_load_dwordx16 s[16:31], s[0:1], 0")
    if cfg.ctouch == 1:
        A("s_getpc_b64 s[4:5]")
        A.label("L_pc")
        A("v_lshlrev_b32 v2, 7, v0")
        A("v_min_u32 v2, L_end-L_pc, v2")
        A("v_and_b32 v2, 0xfffffffc, v2")
        A("global_load_dword v255, v2, s[4:5]")
    elif cfg.ctouch == 2:
        A("s_getpc_b64 s[4:5]")
        A.label("L_pc")
        A("s_lshr_b32 s3, s2, 3")
        A("s_lshl_b32 s3, s3, 11")
        A("v_lshrrev_b32 v2, 5, v0")
        A("v_lshl_add_u32 v2, v2, 7, s3")
        A("v_min_u32 v2, L_end-L_pc, v2")
        A("v_and_b32 v2, 0xfffffffc, v2")
        A("global_load_dword v255, v2, s[4:5]")
    if TS:
        A("s_memrealtime s[96:97]")
    if cfg.enc:
        A("s_memrealtime s[96:97]")
        if cfg.enc == "none":
            A("s_memrealtime s[94:95]")
        if cfg.encc:
            A("s_memtime s[92:93]")

    def enc(p):
        if cfg.enc == p:
            A("s_memrealtime s[94:95]" if not cfg.encc else "s_memtime s[94:95]")
    stamp()
    A("v_and_b32 v1, 63, v0")
    A("v_lshrrev_b32 v2, 6, v0")
    A(f"s_and_b32 s{sJ}, s2, 7")
    A(f"v_readfirstlane_b32 s{sWV}, v2")
    A(f"s_lshr_b32 s{sR}, s2, 3")
    A(f"s_cmp_lt_u32 s{sR}, 8")
    A("s_cbranch_scc1 L_helper")
    A(f"s_sub_u32 s{sR}, s{sR}, 8")
    A(f"s_mul_i32 s{sMT}, s{sR}, 21846")
    A(f"s_lshr_b32 s{sMT}, s{sMT}, 16")
    A(f"s_mul_i32 s{sT0}, s{sMT}, 3")
    A(f"s_sub_u32 s{sI}, s{sR}, s{sT0}")
    A(f"s_mul_i32 s{sWK}, s{sJ}, 24")
    A(f"s_add_u32 s{sWK}, s{sWK}, s{sR}")
    ROT = [int(c) for c in cfg.rot]
    ROTTAB = sum(r << (4 * m) for m, r in enumerate(ROT))
    sROT, sLO, sHI = 10, 11, 12
    if any(ROT):
        A(f"s_lshl_b32 s{sROT}, s{sMT}, 2")
        A(f"s_lshr_b32 s{sROT}, {ROTTAB}, s{sROT}")
        A(f"s_and_b32 s{sROT}, s{sROT}, 15")

    def rot_setup(sbase, stride):
        if any(ROT):
            A(f"s_mul_i32 s{sLO}, s{sROT}, {stride}")
            A(f"s_add_u32 s{sLO}, s{sLO}, s{sbase}")
            A(f"s_sub_u32 s{sHI}, s{sLO}, {9*stride}")

    def rot_addr(dst, sbase, t, stride, extra):
        if any(ROT):
            if t + max(ROT) < 9:
                A(f"s_add_u32 s{dst}, s{sLO}, {t*stride + extra}")
            else:
                A(f"s_cmp_lt_u32 s{sROT}, {9-t}")
                A(f"s_cselect_b32 s{dst}, s{sLO}, s{sHI}")
                A(f"s_add_u32 s{dst}, s{dst}, {t*stride + extra}")
        else:
            A(f"s_add_u32 s{dst}, s{sbase}, {t*stride + extra}")
    A(f"s_cmp_lt_u32 s{sWV}, 4")
    A("s_cbranch_scc1 L_compute")
    A(f"s_cmp_eq_u32 s{sWV}, 6")
    A("s_cbranch_scc1 L_xh")
    A(f"s_cmp_eq_u32 s{sWV}, 7")
    A("s_cbranch_scc1 L_h2")
    ts_base = tsn[0]

    def loader_stream(kinds, per_block, issue_fn, setup_fn, cap, group=False, validate=None, before_bar=None, role=None):
        mine = [blocks[nm] for nm in order if blocks[nm]["kind"] in kinds]
        outstanding, pend = [], list(mine)
        nb = lambda nm: blocks[nm]["n"] if blocks[nm]["kind"] == "extra" else (per_block(blocks[nm]) if callable(per_block) else per_block)
        cnt = lambda lst: sum(nb(x) for x in lst)

        def ok(b, q):
            if b["free"] + 2 > q:
                return False
            if b["kind"] in ("H1", "H2") and q < min(hfetch[b["lk"]], b["need"] - 1):
                return False
            return True

        def issue_upto(q, ahead, cap):
            n = 0
            lim = cum[q] + ahead if q >= 0 else ahead
            while pend and ok(pend[0], q):
                must = pend[0]["need"] <= q + 1 + (cfg.vpipe if pend[0]["kind"] in ("H1", "H2") else 0) or pend[0]["pos"] < lim
                if not must and n >= cap:
                    break
                grp = [pend.pop(0)]
                while group and pend and ok(pend[0], q) and pend[0]["need"] == grp[0]["need"] and len(grp) < 3 \
                        and (pend[0]["pos"] < lim or n + len(grp) < cap or pend[0]["need"] <= q + 1):
                    grp.append(pend.pop(0))
                need_n = sum(nb(x["name"]) for x in grp)
                if cnt(outstanding) + need_n > 63:
                    while cnt(outstanding) + need_n > 63:
                        del outstanding[0]
                    A(f"s_waitcnt vmcnt({cnt(outstanding)})")
                issue_fn(grp if group else grp[0])
                if cfg.verbose:
                    print(f"   after B{q}: " + " ".join(x["name"] for x in grp), file=sys.stderr)
                outstanding.extend(x["name"] for x in grp)
                n += len(grp)

        issue_upto(-1, cfg.first, 0)
        if cfg.ts0:
            stamp()
        if role == "w":
            enc("iss")
        A.tail(role)
        pr = cfg.priow if role == "w" else cfg.prioh
        if pr:
            A(f"s_setprio {pr}")
        setup_fn()
        issue_upto(-1, cfg.ahead0, 0)
        for q in range(NQ):
            assert not any(b["need"] <= q for b in pend), (q, pend[0])
            def wait_for(b):
                if b["name"] in outstanding:
                    idx = max(i for i, nm in enumerate(outstanding) if blocks[nm]["need"] <= q) if validate is None \
                        else outstanding.index(b["name"])
                    del outstanding[:idx + 1]
                    A(f"s_waitcnt vmcnt({cnt(outstanding)})")
            hs = []
            for b in mine:
                if b["need"] == q:
                    if validate is not None and b["kind"] != "X":
                        hs.append(b)
                    else:
                        wait_for(b)
            if validate is not None and cfg.vpipe:
                nxt = [b for b in mine if b["need"] == q + 1 and b["kind"] != "X" and b not in pend]
                if hs or nxt:
                    validate(hs, wait_for, nxt)
            elif hs:
                validate(hs, wait_for)
            if before_bar is not None:
                ex = before_bar(q)
                if ex:
                    nm = f"extra{A.uid()}"
                    blocks[nm] = dict(name=nm, kind="extra", n=ex, need=99)
                    outstanding.append(nm)
            if q in cfg.tsq:
                stamp()
            A("s_barrier")
            if role == "w":
                enc(f"B{q}")
            if q in cfg.pause:
                issue_upto(q, 0, 0)
            else:
                issue_upto(q, cfg.ahead if q < n_g1 or cfg.ahead2 < 0 else cfg.ahead2, 99 if q in cfg.burst else (cap if q >= cfg.capfrom else 0))
        assert not pend

    vRA, vRO, vRB, vRC, vRD, vRT, vRX, vRZ, vRG = 64, 65, 66, 72, 80, 112, 116, 117, 120
    sRI, sRO, sC = 60, 61, 13

    def vr(r, W):
        return f"v{r}" if W == 1 else f"v[{r}:{r+W-1}]"

    def dw(W):
        return "dword" if W == 1 else f"dwordx{W}"

    def red_pre(W):
        if W == 2:
            A(f"s_sub_u32 s{sC}, s{sWV}, 4")
            A(f"v_lshlrev_b32 v{vRA}, 3, v1")
            A(f"s_lshl_b32 s{sRO}, s{sC}, 6")
            A(f"s_lshr_b32 s{sRI}, s{sC}, 1")
            A(f"s_mul_i32 s{sRI}, s{sRI}, {SL}")
            A(f"s_and_b32 s{sT1}, s{sC}, 1")
            A(f"s_lshl_b32 s{sT1}, s{sT1}, 9")
            A(f"s_add_u32 s{sRI}, s{sRI}, s{sT1}")
            A(f"v_lshrrev_b32 v{vRT}, 4, v1")
            A(f"v_and_b32 v{vRT+1}, 1, v1")
            A(f"v_lshlrev_b32 v{vRT+1}, 3, v{vRT+1}")
            A(f"v_lshl_add_u32 v{vRT}, v{vRT}, 4, v{vRT+1}")
            A(f"v_bfe_u32 v{vRT+2}, v1, 1, 3")
            A(f"v_and_b32 v{vRT+3}, 7, v1")
            A(f"v_lshlrev_b32 v{vRT+3}, 2, v{vRT+3}")
        else:
            A(f"s_add_u32 s{sC}, s{sWV}, 8")
            A(f"v_lshlrev_b32 v{vRA}, 2, v1")
            A(f"s_lshl_b32 s{sRO}, s{sC}, 5")
            A(f"s_lshl_b32 s{sRI}, s{sWV}, 8")
            A(f"s_add_u32 s{sRI}, s{sRI}, {2*SL}")
            A(f"v_lshrrev_b32 v{vRT}, 5, v1")
            A(f"v_and_b32 v{vRT+1}, 3, v1")
            A(f"v_lshlrev_b32 v{vRT+1}, 2, v{vRT+1}")
            A(f"v_lshl_add_u32 v{vRT}, v{vRT}, 4, v{vRT+1}")
            A(f"v_bfe_u32 v{vRT+2}, v1, 2, 3")
            A(f"v_and_b32 v{vRT+3}, 15, v1")
            A(f"v_lshlrev_b32 v{vRT+3}, 1, v{vRT+3}")
        A(f"s_mul_i32 s{sT1}, s{sI}, 384")
        A(f"s_add_u32 s{sRO}, s{sRO}, s{sT1}")
        if W == 2:
            srd(SRD2, sB2, 1152)
            A(f"buffer_load_{dw(W)} {vr(vRB, W)}, v{vRT}, s[{SRD2}:{SRD2+3}], s{sRO} offen")
        else:
            A(f"v_mov_b32 v{vRB}, v249")
        A(f"s_lshl_b32 s{sT1}, s{sJ}, 3")
        A(f"s_lshl_b32 s{sT3}, s{sMT}, 6")
        A(f"s_add_u32 s{sT1}, s{sT1}, s{sT3}")
        A(f"s_mul_i32 s{sT1}, s{sT1}, 1152")
        A(f"s_add_u32 s{sRO}, s{sRO}, s{sT1}")
        A(f"v_mul_u32_u24 v{vRT+2}, 1152, v{vRT+2}")
        A(f"v_add_u32 v{vRO}, v{vRT}, v{vRT+2}")
        A(f"s_mul_i32 s{sT1}, s{sR}, {SR}")
        A(f"s_add_u32 s{sRI}, s{sRI}, s{sT1}")
        if cfg.iside >= 0:
            jbase(sT1, sJ, cfg.iside, sT3)
        else:
            A(f"s_mul_i32 s{sT1}, s{sJ}, {SD}")
        A(f"s_add_u32 s{sRI}, s{sRI}, s{sT1}")
        A(f"s_add_u32 s{sRI}, s{sRI}, {WS_IN}")
        slot_add(sRI)
        A(f"v_mov_b32 v{vRZ}, 0")
        A(f"v_lshrrev_b32 v{vRT+3}, v{vRT+3}, s{sTAG+1}")
        for k in range(W):
            A(f"v_bfe_u32 v{vRG+k}, v{vRT+3}, {2*k}, 2")
            A(f"v_mul_u32_u24 v{vRG+k}, 0x8001, v{vRG+k}")
        A(f"v_mov_b32 v{vRG+4}, 0x10001")
        A(f"v_mov_b32 v{vRG+5}, 0xffff0000")
        return 1

    def red_init(W):
        for k in range(W):
            A(f"v_lshlrev_b32 v{vRC+2*k}, 16, v{vRB+k}")
            A(f"v_and_b32 v{vRC+1+2*k}, v{vRG+5}, v{vRB+k}")

    def bb_w(q):
        if q == 2:
            epoch_fin()
        if q == cfg.rpq:
            return red_pre(2)
        if q == cfg.rpq + 3:
            red_init(2)

    A.head("w")
    sHW = sT5
    A(f"s_sub_u32 s{sHW}, s{sWV}, 4")
    A("v_lshrrev_b32 v2, 3, v1")
    A("v_and_b32 v3, 7, v1")
    A("v_bfe_u32 v4, v1, 4, 1")
    A("v_lshlrev_b32 v4, 2, v4")
    A("v_xor_b32 v3, v3, v4")
    A("v_lshlrev_b32 v3, 4, v3")
    A("v_lshrrev_b32 v4, 2, v2")
    A("v_and_b32 v5, 3, v2")
    A("v_lshl_add_u32 v4, v4, 3, v5")
    A(f"s_lshl_b32 s{sT0}, s{sHW}, 5")
    A(f"v_add_u32 v4, s{sT0}, v4")
    A("v_mul_u32_u24 v4, 9216, v4")
    A("v_add_u32 v4, v4, v3")
    for c in range(1, 4):
        A(f"v_add_u32 v{4+c}, {(16*(c>>1)+4*(c&1))*9216 - 1024*c}, v4")
    sLW, sC1 = sT4, 38
    A(f"s_lshl_b32 s{sLW}, s{sHW}, 12")
    A(f"s_mul_i32 s{sC1}, s{sJ}, 1152")
    A(f"s_mul_i32 s{sT1}, s{sI}, 384")
    A(f"s_add_u32 s{sC1}, s{sC1}, s{sT1}")
    rot_setup(sC1, 64*9216)
    if cfg.wt:
        A("v_and_b32 v12, 7, v1")
        A("v_lshrrev_b32 v13, 5, v1")
        A("v_lshl_add_u32 v12, v13, 6, v12")
        A("v_mul_u32_u24 v12, 9216, v12")
        A("v_bfe_u32 v13, v1, 3, 2")
        A("v_lshl_add_u32 v12, v13, 7, v12")
        A(f"s_lshl_b32 s{sT0}, s{sHW}, 4")
        A(f"s_add_u32 s{sT0}, s{sT0}, s{sMT}")
        A(f"s_mul_i32 s{sT0}, s{sT0}, {8*9216}")
        A(f"s_add_u32 s{sT0}, s{sT0}, s{sC1}")
        msk = [sum(0xffffff << (32 * h) for h in range(2) if 2 * w + h < cfg.wt) for w in range(2)]
        A(f"s_mov_b32 exec_lo, {msk[0] & 0xffffffff}")
        A(f"s_mov_b32 exec_hi, {msk[0] >> 32}")
        if msk[1] != msk[0]:
            A(f"s_cmp_eq_u32 s{sHW}, 0")
            A(f"s_cselect_b32 exec_lo, exec_lo, {(msk[1] & 0xffffffff) or 1}")
            A(f"s_cselect_b32 exec_hi, exec_hi, {msk[1] >> 32}")
    A("s_waitcnt lgkmcnt(0)")
    if cfg.ts0:
        stamp()
    srd(SRD0, sW1, 5308416)
    if cfg.wt:
        A(f"buffer_load_dword v255, v12, s[{SRD0}:{SRD0+3}], s{sT0} offen")
        A("s_mov_b64 exec, -1")
    sV = [62, 63, 59]

    def w2_setup():
        epoch_load(sMT)
        A(f"s_lshl_b32 s{sT0}, s{sHW}, 5")
        A(f"v_add_u32 v8, s{sT0}, v2")
        A("v_mul_u32_u24 v8, 1152, v8")
        A("v_add_u32 v8, v8, v3")
        for c in range(1, 4):
            A(f"v_add_u32 v{8+c}, {8*c*1152 - 1024*c}, v8")
        A(f"s_mul_i32 s39, s{sJ}, {576*1152}")
        A(f"s_mul_i32 s{sT0}, s{sI}, 384")
        A(f"s_add_u32 s39, s39, s{sT0}")
        for d in range(3):
            mod3add(sT1, d, sT2)
            A(f"s_mul_i32 s{sT1}, s{sT1}, {192*1152}")
            A(f"s_add_u32 s{sV[d]}, s39, s{sT1}")
        srd(SRD1, sW2, 5308416)

    def issue_w(grp):
        for b in grp:
            A(f"s_add_u32 m0, s{sLW}, {b['slot']*8192}")
            if b["kind"] == "W1":
                rot_addr(sT0, sC1, b['t'], 64*9216, 128*b['l'])
                vb, sr = 4, SRD0
            else:
                A(f"s_add_u32 s{sT0}, s{sV[b['d']]}, {64*b['lk']*1152 + 128*b['l']}")
                vb, sr = 8, SRD1
            for c in range(4):
                A(f"buffer_load_dwordx4 v{vb+c}, s[{sr}:{sr+3}], s{sT0} offen offset:{1024*c} {cfg.wfl} lds")

    loader_stream(("W1", "W2"), 4, issue_w, w2_setup, cfg.capw, group=True,
                  before_bar=bb_w, role="w")
    A("s_branch L_reduce")
    ts_max = tsn[0]

    sXB = 38
    sH = {1: 39, 2: 59}
    HALF = [0]

    def h_setup(half):
        A("v_lshlrev_b32 v12, 4, v1")
        A("v_add_u32 v13, 0x10000, v12")
        A("v_add_u32 v14, 0x20000, v12")
        A(f"s_sub_u32 s{sT0}, s{sWK if cfg.hside < 0 else sR}, s{sI}")
        if cfg.hside >= 0:
            jbase(sT3, sJ, cfg.hside, sT2)
        for d in (1, 2):
            mod3add(sT1, d, sT2)
            A(f"s_add_u32 s{sT1}, s{sT1}, s{sT0}")
            A(f"s_mul_i32 s{sH[d]}, s{sT1}, {HW}")
            if cfg.hside >= 0:
                A(f"s_add_u32 s{sH[d]}, s{sH[d]}, s{sT3}")
        srd(SRD1, sWS, 0x10000000)
        epoch_load(sMT)

    def issue_xh(b):
        for h in (range(2) if b["kind"] == "X" else HALF):
            A(f"s_mov_b32 m0, {b['slot']*8192 + 4096*h}")
            if b["kind"] == "X":
                rot_addr(sT0, sXB, b['t'], 128, 32*1152*h)
                for c in range(4):
                    A(f"buffer_load_dwordx4 v{8+c}, s[{SRD0}:{SRD0+3}], s{sT0} offen offset:{1024*c} lds")
            else:
                A(f"s_add_u32 s{sT0}, s{sH[b['d']]}, {WS_H + HL*b['lk'] + 4096*h}")
                for c in range(4):
                    A(f"buffer_load_dwordx4 v12, s[{SRD1}:{SRD1+3}], s{sT0} offen offset:{1024*c} {cfg.hlf} lds")

    retry_code = []

    def validate(hs, wait_for):
        k = A.uid()

        def rd(i):
            addr = hs[i]["slot"] * 8192 + 4096 * HALF[0]
            for c in range(4):
                r = 128 + 16 * i + 4 * c
                A(f"ds_read_b128 v[{r}:{r+3}], v{12 + (addr >> 16)} offset:{(addr & 0xffff) + 1024*c}")

        def valu(i, later):
            for c in range(4):
                r = 128 + 16 * i + 4 * c
                A(f"s_waitcnt lgkmcnt({3-c+later})")
                for kk in range(4):
                    ac = 16 + ((kk + 2) & 3)
                    if i == 0 and c == 0:
                        A(f"v_xor_b32 v{ac}, v{r+kk}, v{25+kk}")
                    else:
                        A(f"v_bitop3_b32 v{ac}, v{ac}, v{r+kk}, v{25+kk} bitop3:0xf6")
        A.label(f"L_v{k}")
        for i in range(len(hs)):
            wait_for(hs[i])
            rd(i)
            if i:
                valu(i - 1, 4)
        valu(len(hs) - 1, 0)
        A("v_or3_b32 v16, v16, v17, v18")
        A("v_bitop3_b32 v16, v16, v19, v24 bitop3:0xa8")
        A("v_cmp_ne_u32 vcc, 0, v16")
        A(f"s_cbranch_vccnz L_vr{k}")
        A.label(f"L_vd{k}")
        n0 = len(A.L)
        A.label(f"L_vr{k}")
        A(f"s_cmp_gt_u32 s{sCNT}, {SPIN_MAX}")
        A(f"s_cbranch_scc1 L_vd{k}")
        for b in hs:
            issue_xh(b)
        A(f"s_add_u32 s{sCNT}, s{sCNT}, 1")
        A("s_waitcnt vmcnt(0)")
        A(f"s_branch L_v{k}")
        retry_code.extend(A.L[n0:])
        del A.L[n0:]

    hreg, hread = {}, set()

    def validate2(hs, wait_for, nxt):
        k = A.uid()

        def rd(b):
            i = hreg.setdefault(b["name"], len(hreg))
            addr = b["slot"] * 8192 + 4096 * HALF[0]
            for c in range(4):
                r = 128 + 16 * i + 4 * c
                A(f"ds_read_b128 v[{r}:{r+3}], v{12 + (addr >> 16)} offset:{(addr & 0xffff) + 1024*c}")
            hread.add((HALF[0], b["name"]))

        def do_nxt():
            for b in nxt:
                wait_for(b)
                rd(b)
        unread = [b for b in hs if (HALF[0], b["name"]) not in hread]
        for b in unread:
            wait_for(b)
            rd(b)
        later = 0
        if unread and 4 * (len(unread) + len(nxt)) <= 15:
            do_nxt()
            later = 4 * len(nxt)
            nxt = []
        if hs:
            A.label(f"L_v{k}")
            A(f"s_waitcnt lgkmcnt({later})")
            for i, b in enumerate(hs):
                for c in range(4):
                    r = 128 + 16 * hreg[b["name"]] + 4 * c
                    for kk in range(4):
                        ac = 16 + ((kk + 2) & 3)
                        if i == 0 and c == 0:
                            A(f"v_xor_b32 v{ac}, v{r+kk}, v{25+kk}")
                        else:
                            A(f"v_bitop3_b32 v{ac}, v{ac}, v{r+kk}, v{25+kk} bitop3:0xf6")
            A("v_or3_b32 v16, v16, v17, v18")
            A("v_bitop3_b32 v16, v16, v19, v24 bitop3:0xa8")
            A("v_cmp_ne_u32 vcc, 0, v16")
            A(f"s_cbranch_vccnz L_vr{k}")
            A.label(f"L_vd{k}")
            n0 = len(A.L)
            A.label(f"L_vr{k}")
            A(f"s_cmp_gt_u32 s{sCNT}, {SPIN_MAX}")
            A(f"s_cbranch_scc1 L_vd{k}")
            for b in hs:
                issue_xh(b)
            A(f"s_add_u32 s{sCNT}, s{sCNT}, 1")
            A("s_waitcnt vmcnt(0) lgkmcnt(0)")
            for b in hs:
                rd(b)
            A("s_waitcnt lgkmcnt(0)")
            A(f"s_branch L_v{k}")
            retry_code.extend(A.L[n0:])
            del A.L[n0:]
        do_nxt()

    if cfg.vpipe:
        validate = validate2

    def flush_retry():
        A.L.extend(retry_code)
        retry_code.clear()

    def bb_tag(q):
        if q == 2:
            epoch_fin()
            slot_add(sH[1], sH[2])
            tag_regs(25, 16)
            A(f"v_mov_b32 v24, {0x10001 if cfg.hlsb else 0x80008000}")
            A(f"s_mov_b32 s{sCNT}, 0")
        if q == cfg.rpq:
            return red_pre(2)
        if q == cfg.rpq + 3:
            red_init(2)
        if q == 10 and cfg.probe:
            A(f"buffer_load_dword v255, v{vRZ}, s[{SRD2}:{SRD2+3}], 0 offen")
            A("s_waitcnt vmcnt(0)")

    A.head("x")
    A.label("L_xh")
    tsn[0] = ts_base
    A("v_lshrrev_b32 v2, 3, v1")
    A("v_and_b32 v3, 7, v1")
    A("v_lshrrev_b32 v4, 4, v1")
    A("v_xor_b32 v3, v3, v4")
    A("v_lshlrev_b32 v3, 4, v3")
    A("v_mul_u32_u24 v4, 1152, v2")
    A("v_add_u32 v8, v4, v3")
    A("v_xor_b32 v5, 64, v8")
    A(f"v_add_u32 v9, {8*1152 - 1024}, v5")
    A(f"v_add_u32 v10, {16*1152 - 2048}, v8")
    A(f"v_add_u32 v11, {24*1152 - 3072}, v5")
    A(f"s_mul_i32 s{sXB}, s{sMT}, {64*1152}")
    rot_setup(sXB, 128)

    def x_touch_pre(st0):
        A(f"s_mul_i32 s{sT0}, s{sI}, 22")
        A("v_and_b32 v12, 31, v1")
        A(f"v_add_u32 v12, s{sT0}, v12")
        A("v_min_u32 v12, 63, v12")
        A("v_mul_u32_u24 v12, 1152, v12")
        A("v_lshrrev_b32 v13, 5, v1")
        A("v_lshl_add_u32 v12, v13, 7, v12")
        A("s_mov_b32 exec_lo, 0x3fffff")
        A(f"s_mov_b32 exec_hi, {0x3fffff if cfg.wt > st0 + 1 else 0}")

    def x_touch(st0):
        A(f"buffer_load_dword v255, v12, s[{SRD0}:{SRD0+3}], s{sXB} offen offset:{128*st0}")
        A("s_mov_b64 exec, -1")
    if cfg.wt:
        x_touch_pre(0)
    A("s_waitcnt lgkmcnt(0)")
    if cfg.ts0:
        stamp()
    srd(SRD0, sX, 589824)
    if cfg.wt:
        x_touch(0)
    nbx = lambda b: 8 if b["kind"] == "X" else 4
    loader_stream(("X", "H1", "H2"), nbx, issue_xh, lambda: h_setup(0), cfg.capx, validate=validate, before_bar=bb_tag, role="x")
    if TS:
        A(f"s_mov_b32 s{sTS+24}, s{sCNT}")
    A("s_branch L_reduce")
    flush_retry()
    ts_max = max(ts_max, tsn[0])

    A.head("h2")
    A.label("L_h2")
    tsn[0] = ts_base
    if cfg.wt > 2:
        A(f"s_mul_i32 s{sXB}, s{sMT}, {64*1152}")
        x_touch_pre(2)
    if cfg.xpre:
        A("v_lshlrev_b32 v2, 7, v1")
        A(f"s_mul_i32 s{sT0}, s{sWK}, 3072")
        A("s_mov_b64 exec, 0xffffff")
    A("s_waitcnt lgkmcnt(0)")
    if cfg.xpre:
        srd(SRD0, sX, 589824)
        A(f"buffer_load_dword v255, v2, s[{SRD0}:{SRD0+3}], s{sT0} offen")
        A("s_mov_b64 exec, -1")
    if cfg.wt > 2:
        srd(SRD0, sX, 589824)
        x_touch(2)
    srd(SRD1, sWS, 0x10000000)
    if cfg.hpre == 3:
        A("v_lshlrev_b32 v3, 7, v1")
        A(f"s_mul_i32 s{sT1}, s{sWK}, 24576")
        A(f"s_add_u32 s{sT1}, s{sT1}, {WS_H}")
        for c in range(3):
            A(f"buffer_load_dword v255, v3, s[{SRD1}:{SRD1+3}], s{sT1} offen")
            A(f"s_add_u32 s{sT1}, s{sT1}, 8192")

    def w7_touch():
        st = list(range(cfg.ta, cfg.ta + cfg.tn))
        srd(SRD0, sX, 589824)
        srd(SRD2, sW1, 5308416)
        A(f"s_mul_i32 s{sXB}, s{sMT}, {64*1152}")
        A(f"s_mul_i32 s{sT0}, s{sI}, 22")
        A("v_and_b32 v2, 31, v1")
        A(f"v_add_u32 v2, s{sT0}, v2")
        A("v_min_u32 v2, 63, v2")
        A("v_mul_u32_u24 v2, 1152, v2")
        A("v_lshrrev_b32 v4, 5, v1")
        A("v_lshl_add_u32 v2, v4, 7, v2")
        A("v_and_b32 v3, 7, v1")
        A("v_lshl_add_u32 v3, v4, 6, v3")
        A("v_mul_u32_u24 v3, 9216, v3")
        A("v_bfe_u32 v4, v1, 3, 2")
        A("v_lshl_add_u32 v3, v4, 7, v3")
        A(f"s_mul_i32 s{sT0}, s{sMT}, {8*9216}")
        A(f"s_mul_i32 s{sT1}, s{sJ}, 1152")
        A(f"s_add_u32 s{sT0}, s{sT0}, s{sT1}")
        A(f"s_mul_i32 s{sT1}, s{sI}, 384")
        A(f"s_add_u32 s{sT0}, s{sT0}, s{sT1}")
        for p in range(0, len(st), 2):
            two = p + 1 < len(st)
            A(f"s_add_u32 s{sT1}, s{sT0}, {st[p]*64*9216}")
            A("s_mov_b32 exec_lo, 0xffffff")
            A(f"s_mov_b32 exec_hi, {0xffffff if two else 0}")
            A(f"buffer_load_dword v255, v3, s[{SRD2}:{SRD2+3}], s{sT1} offen")
            A("s_mov_b32 exec_lo, 0x3fffff")
            A(f"s_mov_b32 exec_hi, {0x3fffff if two else 0}")
            A(f"buffer_load_dword v255, v2, s[{SRD0}:{SRD0+3}], s{sXB} offen offset:{128*st[p]}")
        A("s_mov_b64 exec, -1")
    if cfg.tn and cfg.tpos == 0:
        w7_touch()

    def bb_h2(q):
        if cfg.tn and cfg.tpos == 1 and q == 0:
            A("s_waitcnt lgkmcnt(0)")
            w7_touch()
        if cfg.tn and cfg.tpos >= 2 and q == cfg.tpos - 1:
            w7_touch()
        if cfg.tn and q == 7:
            A("s_waitcnt vmcnt(0)")
        if q == 2 and (cfg.hpre == 3 or cfg.wt > 2):
            A("s_waitcnt vmcnt(0)")
        if cfg.vt and q == 5:
            A(f"s_add_u32 s{sT0}, s{sI}, 1")
            A(f"s_mul_i32 s{sT0}, s{sT0}, 192")
            A(f"s_mul_i32 s{sT1}, s{sMT}, 48")
            A(f"s_add_u32 s{sT0}, s{sT0}, s{sT1}")
            A(f"s_cmp_ge_u32 s{sT0}, 576")
            A(f"s_cselect_b32 s{sT1}, 576, 0")
            A(f"s_sub_u32 s{sT0}, s{sT0}, s{sT1}")
            A(f"s_mul_i32 s{sT1}, s{sJ}, 576")
            A(f"s_add_u32 s{sT0}, s{sT0}, s{sT1}")
            A(f"s_mul_i32 s15, s{sT0}, 1152")
            A(f"s_mul_i32 s{sT1}, s{sI}, 384")
            A(f"s_add_u32 s15, s15, s{sT1}")
            A("v_mul_u32_u24 v5, 1152, v1")
            srd(SRD0, sW2, 5308416)
        ex = 0
        if cfg.vt and q == cfg.vtq:
            A("s_mov_b32 exec_hi, 0xffff")
            for l in range(3 - cfg.vt, 3):
                A(f"buffer_load_dword v255, v5, s[{SRD0}:{SRD0+3}], s15 offen offset:{128*l}")
            A("s_mov_b64 exec, -1")
            ex = cfg.vt
        return (bb_tag(q) or 0) + ex

    HALF[0] = 1
    loader_stream(("H1", "H2"), nbx, issue_xh, lambda: h_setup(1), cfg.capx, validate=validate, before_bar=bb_h2, role="h2")
    ts_max = max(ts_max, tsn[0])
    A("s_branch L_reduce")
    flush_retry()

    A.tail("red")
    sM, sQ = sT5, sT4
    sVC = 16

    def reduce_code(W, nbar):
        x = f"{W}"
        srd(SRD1, sWS, 0x10000000)
        A(f"s_mov_b32 s{sCNT}, 0")
        srd(SRD0, sOUT, 589824)
        if W == 1:
            red_pre(1)
            red_init(1)
            A(f"s_waitcnt vmcnt({cfg.rw1})")
            if cfg.rlate == 1:
                A("s_barrier")

        def ld(s_):
            A(f"s_add_u32 s{sT1}, s{sRI}, {SS*s_}")
            A(f"buffer_load_{dw(W)} {vr(vRD+W*s_, W)}, v{vRA}, s[{SRD1}:{SRD1+3}], s{sT1} offen {cfg.rfl}")
        if W == 2 and cfg.r0early and nbar:
            A(f"s_cmp_ge_u32 s{sC}, 2")
            A("s_cbranch_scc1 L_rlate")
            stamp()
            tsn[0] -= 1 if TS else 0
            for s_ in range(8):
                ld(s_)
            A("s_barrier")
            A("s_branch L_rfirst")
            A.label("L_rlate")
        for _ in range(nbar):
            A("s_barrier")
        stamp()
        enc("rbar")

        def chk_i(s_, dst, t):
            r = vRD + W * s_
            if W == 1:
                o = [f"v_bitop3_b32 v{t}, v{r}, v{vRG}, v{vRG+4} bitop3:0x28"]
            else:
                o = [f"v_xor_b32 v{t}, v{r}, v{vRG}"]
                for k in range(1, W):
                    o.append(f"v_bitop3_b32 v{t}, v{t}, v{r+k}, v{vRG+k} bitop3:0xf6")
                o.append(f"v_and_b32 v{t}, v{vRG+4}, v{t}")
            o.append(f"v_cmp_ne_u32 {dst}, 0, v{t}")
            return o

        def acc_i(s_, t0):
            r = vRD + W * s_
            o = []
            for k in range(W):
                t = t0 + 2 * k
                o.append(f"v_lshlrev_b32 v{t}, 16, v{r+k}")
                o.append(f"v_and_b32 v{t+1}, v{vRG+5}, v{r+k}")
            for k in range(W):
                t = t0 + 2 * k
                o.append(f"v_pk_add_f32 v[{vRC+2*k}:{vRC+1+2*k}], v[{vRC+2*k}:{vRC+1+2*k}], v[{t}:{t+1}]")
            return o

        def masked(sm, fn, tag):
            for g in range(2):
                A(f"s_and_b32 s{sT0}, s{sm}, {0xf << (4*g)}")
                A(f"s_cbranch_scc0 L_{tag}{x}g{g}")
                for s_ in range(4 * g, 4 * g + 4):
                    A(f"s_bitcmp0_b32 s{sm}, {s_}")
                    A(f"s_cbranch_scc1 L_{tag}{x}s{s_}")
                    fn(s_)
                    A.label(f"L_{tag}{x}s{s_}")
                A.label(f"L_{tag}{x}g{g}")

        for s_ in range(8):
            ld(s_)
        for _ in range(nbar, cfg.rnb if W != 1 else 0):
            A("s_barrier")
        if W == 1 and cfg.rlate == 2:
            A("s_barrier")
        if W == 2:
            A.label("L_rfirst")
        for s_ in range(8):
            A(f"s_waitcnt vmcnt({7-s_})")
            c = chk_i(s_, f"s[{sVC+2*s_}:{sVC+2*s_+1}]", vRX)
            a_ = acc_i(s_, vRT)
            while c or a_:
                if c:
                    A(c.pop(0))
                if a_:
                    A(a_.pop(0))
            if s_ >= 2:
                A(f"s_or_b64 vcc, {'s[16:17]' if s_ == 2 else 'vcc'}, s[{sVC+2*s_-2}:{sVC+2*s_-1}]")
        A(f"s_or_b64 vcc, vcc, s[{sVC+14}:{sVC+15}]")
        A(f"s_cbranch_scc0 L_rdone{x}")
        A(f"s_mov_b32 s{sM}, 0")
        for s_ in range(7, -1, -1):
            A(f"s_cmp_lg_u64 s[{sVC+2*s_}:{sVC+2*s_+1}], 0")
            A(f"s_addc_u32 s{sM}, s{sM}, s{sM}")
        A(f"s_xor_b32 s{sQ}, s{sM}, 0xff")
        red_init(W)
        A.label(f"L_rtop{x}")
        masked(sM, ld, "rl")
        masked(sQ, lambda s_: [A(t) for t in acc_i(s_, vRT)], "ra")
        A(f"s_add_u32 s{sCNT}, s{sCNT}, 1")
        A(f"s_mov_b32 s{sQ}, s{sM}")
        A(f"s_cmp_gt_u32 s{sCNT}, {SPIN_MAX}")
        A(f"s_cbranch_scc1 L_rdone{x}")
        A("s_waitcnt vmcnt(0)")

        def chk2(s_):
            for t in chk_i(s_, "vcc", vRX):
                A(t)
            A(f"s_cbranch_vccnz L_rc{x}s{s_}")
            A(f"s_bitset0_b32 s{sM}, {s_}")
            for t in acc_i(s_, vRT):
                A(t)
        masked(sQ, chk2, "rc")
        A(f"s_mov_b32 s{sQ}, 0")
        A(f"s_cmp_lg_u32 s{sM}, 0")
        A(f"s_cbranch_scc1 L_rtop{x}")
        A.label(f"L_rdone{x}")
        stamp()
        enc("rdone")
        for k in range(W):
            A(f"v_cvt_pk_bf16_f32 v{vRC+k}, v{vRC+2*k}, v{vRC+1+2*k}")
        if cfg.owide:
            A("s_nop 1")
            if W == 1:
                for k in range(1, 4):
                    A(f"v_mov_b32_dpp v{vRC+k}, v{vRC} quad_perm:[{k},{k},{k},{k}] row_mask:0xf bank_mask:0xf")
                m = 0x11111111
            else:
                for k in range(2):
                    A(f"v_mov_b32_dpp v{vRC+2+k}, v{vRC+k} quad_perm:[1,1,3,3] row_mask:0xf bank_mask:0xf")
                m = 0x55555555
            A(f"s_mov_b32 exec_lo, {m}")
            A(f"s_mov_b32 exec_hi, {m}")
            A(f"buffer_store_dwordx4 v[{vRC}:{vRC+3}], v{vRO}, s[{SRD0}:{SRD0+3}], s{sRO} offen {cfg.ofl if W > 1 else cfg.ofl1}")
            A("s_mov_b64 exec, -1")
        else:
            A(f"buffer_store_{dw(W)} {vr(vRC, W)}, v{vRO}, s[{SRD0}:{SRD0+3}], s{sRO} offen {cfg.ofl if W > 1 else cfg.ofl1}")
        if TS:
            A(f"s_mov_b32 s{sWS}, s{SRD1}")
            A(f"s_mov_b32 s{sWS+1}, s{SRD1+1}")

    A.label("L_reduce")
    tsn[0] = ts_max
    reduce_code(2, cfg.rb2)
    A(f"s_or_b32 s{sT0}, s{sJ}, s{sI}")
    A(f"s_or_b32 s{sT0}, s{sT0}, s{sC}")
    A(f"s_cmp_lg_u32 s{sT0}, 0")
    A("s_cbranch_scc1 L_noep")
    A(f"v_mov_b32 v16, s{sTAG}")
    A(f"s_lshl_b32 s{sT0}, s{sMT}, 7")
    A(f"s_add_u32 s{sT0}, s{sT0}, {WS_EP}")
    A("s_mov_b64 exec, 1")
    A(f"buffer_store_dword v16, v{vRZ}, s[{SRD1}:{SRD1+3}], s{sT0} offen sc1")
    A("s_mov_b64 exec, -1")
    A.label("L_noep")
    if cfg.enc:
        if cfg.enc == "end":
            A("s_waitcnt vmcnt(0)")
            enc("end")
        if cfg.encw >= 0:
            A(f"s_cmp_lg_u32 s{sWV}, {cfg.encw}")
            A("s_cbranch_scc1 L_end")
        A("s_waitcnt lgkmcnt(0)")
        if cfg.enc == "xcc":
            A("s_getreg_b32 s94, hwreg(HW_REG_XCC_ID)")
            A("s_and_b32 s94, s94, 15")
            A("s_mul_i32 s94, s94, 500")
            A(f"s_cmp_eq_u32 s{sJ}, {cfg.encm}")
            A("s_cselect_b32 s94, s94, 0")
        elif cfg.encc:
            A("s_sub_u32 s94, s94, s92")
            A("s_lshr_b32 s94, s94, 1")
        else:
            A("s_sub_u32 s94, s94, s96")
            A(f"s_mul_i32 s94, s94, {cfg.encm}")
        A("s_add_u32 s94, s94, 3000")
        A.label("L_dly")
        A("s_memrealtime s[98:99]")
        A("s_waitcnt lgkmcnt(0)")
        A("s_sub_u32 s98, s98, s96")
        A("s_cmp_lt_u32 s98, s94")
        A("s_cbranch_scc1 L_dly")
    if TS:
        A("s_waitcnt vmcnt(0)")
        stamp()
        A("s_memrealtime s[98:99]")
        A("s_waitcnt lgkmcnt(0)")
        A(f"s_mov_b32 s{sTS+26}, s96"); A(f"s_mov_b32 s{sTS+28}, s98"); A(f"s_mov_b32 s{sTS+30}, s{sCNT}")
        assert tsn[0] <= 12
        tsn[0] = 16
        stamp_flush()
    A("s_branch L_end")

    A.head("c")
    A.label("L_compute")
    tsn[0] = ts_base
    vACC, vAB, vXB, vT = 16, 64, 96, 240
    nAB = D + 1
    vA, vBX, vBH, vHW = [2, 3, 4], [5, 6, 7, 8], [9, 10, 11], [12, 13, 14]
    vTG, vL16 = vT + 11, vT + 10
    assert vAB + 4 * nAB <= vXB
    sA, sBq = sT4, sT5
    A(f"s_and_b32 s{sA}, s{sWV}, 1")
    A(f"s_lshr_b32 s{sBq}, s{sWV}, 1")
    A(f"v_lshrrev_b32 v{vT}, 5, v1")
    A(f"s_mul_i32 s60, s{sJ}, 1152")
    A(f"s_mul_i32 s{sT1}, s{sI}, 384")
    A(f"s_add_u32 s60, s60, s{sT1}")
    A(f"s_lshl_b32 s{sT1}, s{sBq}, 6")
    A(f"s_add_u32 s61, s60, s{sT1}")
    A(f"v_lshlrev_b32 v{vT+4}, 3, v{vT}")
    if cfg.sa:
        A(f"s_add_u32 s{sT3}, s{sWV}, 1")
        A(f"v_and_b32 v{vT+5}, 7, v1")
        A(f"v_mul_u32_u24 v{vT+5}, 9216, v{vT+5}")
        A(f"v_lshrrev_b32 v{vT+6}, 3, v1")
        A(f"v_min_u32 v{vT+6}, 2, v{vT+6}")
        A(f"v_lshl_add_u32 v{vT+5}, v{vT+6}, 7, v{vT+5}")
        A(f"s_lshl_b32 s{sT1}, s{sT3}, 3")
        A(f"s_add_u32 s{sT1}, s{sT1}, s{sMT}")
        A(f"s_mul_i32 s{sT1}, s{sT1}, {8*9216}")
        A(f"s_add_u32 s{sT1}, s{sT1}, s60")
        A(f"s_mul_i32 s{sT2}, s{sI}, 22")
        A(f"v_min_u32 v{vT+6}, 21, v1")
        A(f"v_add_u32 v{vT+6}, s{sT2}, v{vT+6}")
        A(f"v_min_u32 v{vT+6}, 63, v{vT+6}")
        A(f"v_mul_u32_u24 v{vT+6}, 1152, v{vT+6}")
        A(f"s_mul_i32 s{sT2}, s{sMT}, {64*1152}")
        A(f"s_lshl_b32 s{sT3}, s{sT3}, 7")
        A(f"s_add_u32 s{sT2}, s{sT2}, s{sT3}")
    A("s_waitcnt lgkmcnt(0)")
    srd(SRD0, sB1, 9216)
    for l in range(3):
        for g in range(4):
            r = vXB + 2 * (4 * l + g)
            A(f"buffer_load_dwordx2 v[{r}:{r+1}], v{vT+4}, s[{SRD0}:{SRD0+3}], s61 offen offset:{128*l+16*g}")
    if cfg.sa:
        srd(SRD1, sW1, 5308416)
        srd(SRD2, sX, 589824)
        A(f"s_cmp_ge_u32 s{sWV}, {cfg.sa}")
        A("s_cbranch_scc1 L_tdone")
        A(f"buffer_load_dword v255, v{vT+5}, s[{SRD1}:{SRD1+3}], s{sT1} offen {cfg.tfl}")
        A(f"buffer_load_dword v255, v{vT+6}, s[{SRD2}:{SRD2+3}], s{sT2} offen")
        A.label("L_tdone")
    epoch_load(sMT)
    A.tail("c")
    srd(SRD2, sB2, 1152)
    A(f"v_and_b32 v{vT+1}, 3, v1")
    A(f"v_lshlrev_b32 v{vT+1}, 2, v{vT+1}")
    A(f"v_lshl_add_u32 v{vT+1}, v{vT}, 4, v{vT+1}")
    A(f"s_mul_i32 s{sT1}, s{sI}, 384")
    A(f"s_lshl_b32 s{sT0}, s{sWV}, 5")
    A(f"s_add_u32 s{sT1}, s{sT1}, s{sT0}")
    A(f"buffer_load_dword v249, v{vT+1}, s[{SRD2}:{SRD2+3}], s{sT1} offen offset:256")
    srd(SRD1, sWS, 0x10000000)
    A(f"v_bfe_u32 v{vT+1}, v1, 2, 2")
    A(f"v_lshl_add_u32 v{vT+2}, v{vT}, 2, v{vT+1}")
    A(f"v_lshlrev_b32 v{vT+2}, 7, v{vT+2}")
    A(f"v_bfe_u32 v{vT+3}, v1, 3, 1")
    A(f"v_xor_b32 v{vT+3}, s{sBq}, v{vT+3}")
    A(f"v_lshl_add_u32 v{vT+2}, v{vT+3}, 6, v{vT+2}")
    A(f"v_bfe_u32 v{vT+3}, v1, 4, 1")
    A(f"v_lshl_add_u32 v{vT+2}, v{vT+3}, 5, v{vT+2}")
    A(f"v_and_b32 v{vT+3}, 3, v1")
    A(f"v_lshl_add_u32 v{vA[0]}, v{vT+3}, 3, v{vT+2}")
    A(f"v_add_u32 v{vA[1]}, 0x10000, v{vA[0]}")
    A(f"v_add_u32 v{vA[2]}, 0x20000, v{vA[0]}")
    A(f"v_and_b32 v{vT+1}, 31, v1")
    A(f"v_bfe_u32 v{vT+2}, v1, 1, 3")
    A(f"v_xor_b32 v{vT+2}, v{vT}, v{vT+2}")
    A(f"v_lshlrev_b32 v{vT+2}, 4, v{vT+2}")
    A(f"v_lshl_add_u32 v{vT+2}, v{vT+1}, 7, v{vT+2}")
    A(f"s_lshl_b32 s{sT0}, s{sA}, 12")
    A(f"s_add_u32 s{sT1}, s{sT0}, 0x20000")
    A(f"v_add_u32 v{vBX[0]}, s{sT1}, v{vT+2}")
    for sp in range(1, 4):
        A(f"v_xor_b32 v{vBX[sp]}, {32*sp}, v{vBX[0]}")
    A(f"v_lshl_add_u32 v{vBH[0]}, v1, 4, s{sT0}")
    A(f"v_add_u32 v{vBH[1]}, 0x10000, v{vBH[0]}")
    A(f"v_add_u32 v{vBH[2]}, 0x20000, v{vBH[0]}")
    A(f"s_lshl_b32 s{sT1}, s{sBq}, 11")
    for k in range(3):
        A(f"v_add_u32 v{vHW[k]}, s{sT1}, v{vBH[k]}")
    sI0 = 38
    sMS, sML, sMC = 39, 63, 59
    sHS = [60, 61, 62]
    if cfg.iside >= 0:
        A(f"s_xor_b32 s{sI0}, s{sA}, {cfg.iside}")
        A(f"s_lshl_b32 s{sI0}, s{sI0}, 13")
    else:
        A(f"s_mul_i32 s{sI0}, s{sA}, {4*SD}")
    A(f"s_mul_i32 s{sT1}, s{sR}, {SR}")
    A(f"s_add_u32 s{sI0}, s{sI0}, s{sT1}")
    A(f"s_mul_i32 s{sT1}, s{sJ}, {SS}")
    A(f"s_add_u32 s{sI0}, s{sI0}, s{sT1}")
    A(f"s_add_u32 s{sI0}, s{sI0}, {WS_IN}")
    A(f"s_lshl_b32 s{sT1}, s{sBq}, 9")
    A(f"s_add_u32 s{sI0}, s{sI0}, s{sT1}")
    A(f"v_bfe_u32 v{vT+1}, v1, 3, 2")
    A(f"v_mul_u32_u24 v{vT+1}, {SD}, v{vT+1}")
    A(f"v_and_b32 v{vT+2}, 7, v1")
    A(f"v_lshl_add_u32 v{vT+1}, v{vT+2}, 4, v{vT+1}")
    A(f"v_lshl_add_u32 v{vL16}, v{vT}, 7, v{vT+1}")
    A(f"s_mov_b32 s{sMS}, 0x80008000")
    A(f"s_mov_b32 s{sML}, 0x00010001")
    A(f"s_mov_b32 s{sMC}, 0x7fff7fff")
    A(f"s_mul_i32 s{sHS[0]}, s{sWK if cfg.hside < 0 else sR}, {HW}")
    if cfg.hside >= 0:
        jbase(sT1, sJ, cfg.hside, sT3)
        A(f"s_add_u32 s{sHS[0]}, s{sHS[0]}, s{sT1}")
    if WS_H:
        A(f"s_add_u32 s{sHS[0]}, s{sHS[0]}, {WS_H}")
    A(f"s_add_u32 s{sHS[1]}, s{sHS[0]}, {HL}")
    A(f"s_add_u32 s{sHS[2]}, s{sHS[0]}, {2*HL}")
    def dummy(n, tag):
        if not n:
            return
        for k in range(8):
            A(f"v_mul_u32_u24 v{160+k}, {0x9e3779 + 77*k}, v0")
            A(f"v_and_b32 v{160+k}, 0x3fff3fff, v{160+k}")
        A(f"s_mov_b32 s15, {n // 4}")
        A.label(f"L_dum{tag}")
        for k in range(4):
            A(f"v_mfma_f32_32x32x16_bf16 v[{176+16*k}:{191+16*k}], v[{160+4*(k&1)}:{163+4*(k&1)}], v[{160+4*(k>>1)}:{163+4*(k>>1)}], 0")
        A("s_sub_u32 s15, s15, 1")
        A("s_cmp_lg_u32 s15, 0")
        A(f"s_cbranch_scc1 L_dum{tag}")
    dummy(cfg.dum1, "a")
    epoch_fin()
    slot_add(sI0, *sHS)
    sIL = [sI0, 10, 11]
    assert not any(ROT)
    A(f"s_add_u32 s10, s{sI0}, {SL}")
    A(f"s_add_u32 s11, s{sI0}, {2*SL}")
    tag_regs(vTG, vT + 1)
    assert not cfg.sa
    A("s_waitcnt vmcnt(1)")
    if cfg.sa:
        A(f"s_cmp_lt_u32 s{sWV}, {cfg.sa}")
        A("s_cbranch_scc1 L_bw")
        A("s_waitcnt vmcnt(0)")
        A.label("L_bw")
    for l in range(3):
        for g in range(4):
            r = vXB + 2 * (4 * l + g)
            d = vACC + 16 * l + 4 * g
            A(f"v_lshlrev_b32 v{d}, 16, v{r}")
            A(f"v_and_b32 v{d+1}, 0xffff0000, v{r}")
            A(f"v_lshlrev_b32 v{d+2}, 16, v{r+1}")
            A(f"v_and_b32 v{d+3}, 0xffff0000, v{r+1}")
    dummy(cfg.dum2, "b")
    stamp()

    items = []
    for st in stages:
        bykb = {}
        for u in st["units"]:
            bykb.setdefault(u[2], []).append(u)
        for kb, us in bykb.items():
            if st["q"] == n_g1 - 1 and cfg.tm:
                seq = [int(c) for c in cfg.tm]
                nsp = {0: 0, 1: 0, 2: 0}
                for t_ in seq:
                    (t, wb, _kb, fst) = [u for u in us if u[0] == t_][0]
                    items.append(dict(q=st["q"], tile=t, wb=wb, kb=kb, sp=nsp[t], first=False))
                    nsp[t] += 1
                assert all(v == 4 for v in nsp.values())
                continue
            if len(us) == 2 and cfg.chain:
                for (t, wb, _kb, fst) in us:
                    for sp in range(4):
                        items.append(dict(q=st["q"], tile=t, wb=wb, kb=kb, sp=sp, first=(fst and sp == 0)))
                continue
            for sp in range(4):
                for (t, wb, _kb, fst) in us:
                    items.append(dict(q=st["q"], tile=t, wb=wb, kb=kb, sp=sp, first=(fst and sp == 0)))
    NI = len(items)
    aux_used = set()
    if cfg.dual:
        own_end = max(n for n, it in enumerate(items) if it["q"] >= n_g1 and it["kb"] < 3)
        assert all(kbidx[(0, l)] < 3 for l in range(3))
        for n, it in enumerate(items):
            if n > own_end + 1 and items[n - 1]["tile"] == it["tile"]:
                it["first"] = it["tile"] not in aux_used
                aux_used.add(it["tile"])
                it["tile"] += 3

    def accbase(t):
        return vACC + 16 * t if t < 3 else vXB + 16 * (t - 3)
    last_item = {}
    for n, it in enumerate(items):
        last_item[it["q"]] = n
    bread_of = {(st["q"], kb): bb for st in stages for (bb, kb) in st["breads"]}
    lg = []

    def ds_issue(instr, tag):
        cap = 14 if TS else 15
        if len(lg) >= cap:
            A(f"s_waitcnt lgkmcnt({cap-2})")
            del lg[:len(lg) - (cap - 2)]
        A(instr)
        lg.append(tag)

    def ds_need(tags):
        idx = max([i for i, t in enumerate(lg) if t in tags], default=-1)
        if idx >= 0:
            A(f"s_waitcnt lgkmcnt({len(lg) - 1 - idx})")
            del lg[:idx + 1]

    checked = [-1]
    bdone = set()
    dirty, clean_pos = {}, {}

    def clean(m):
        key = (items[m]["kb"], items[m]["sp"])
        if key in dirty and dirty[key] == m:
            del dirty[key]
            ds_need({("B",) + key})
            r = vXB + 16 * key[0] + 4 * key[1]
            for k in range(4):
                A(f"v_and_b32 v{r+k}, s{sMC}, v{r+k}")
            clean_pos[m] = len(A.L) - 1

    def issue_reads(n):
        it = items[n]
        q = it["q"]
        if q > checked[0]:
            ds_need({"hw"})
            A("s_barrier")
            checked[0] = q
            if q in cfg.tsq:
                stamp()
        key = (q, it["kb"])
        if key in bread_of and (key, it["sp"]) not in bdone:
            bdone.add((key, it["sp"]))
            bb = blocks[bread_of[key]]
            addr = bb["slot"] * 8192
            r = vXB + 16 * it["kb"] + 4 * it["sp"]
            if bb["kind"] == "X":
                assert addr >> 16 == 2
                ds_issue(f"ds_read_b128 v[{r}:{r+3}], v{vBX[it['sp']]} offset:{addr & 0xffff}", ("B", it["kb"], it["sp"]))
            else:
                ds_issue(f"ds_read_b128 v[{r}:{r+3}], v{vBH[addr >> 16]} offset:{(addr & 0xffff) + 1024*it['sp']}",
                         ("B", it["kb"], it["sp"]))
                if bb["kind"] != "Hown":
                    if not cfg.hlsb:
                        dirty[(it["kb"], it["sp"])] = n
        wb = blocks[it["wb"]]
        addr = wb["slot"] * 8192 + 2048 * it["sp"]
        r = vAB + 4 * (n % nAB)
        ds_issue(f"ds_read_b64_tr_b16 v[{r}:{r+1}], v{vA[addr >> 16]} offset:{addr & 0xffff}", ("A", n))
        ds_issue(f"ds_read_b64_tr_b16 v[{r+2}:{r+3}], v{vA[addr >> 16]} offset:{(addr & 0xffff) + 1024}", ("A", n))

    post = []

    def epi1_instrs(pi, lines):
        out, late = [], []
        for l in lines:
            a = vACC + 16 * l
            addr = blocks[f"H0_{l}"]["slot"] * 8192
            for half in range(2):
                base = a + 8 * half
                if cfg.epi == 1:
                    assert cfg.hlsb
                    for k in range(8):
                        out.append(("v", f"v_mul_f32 v{base+k}, v{base+k}, |v{base+k}|"))
                    for k in range(4):
                        out.append(("v", f"v_cvt_pk_bf16_f32 v{base+k}, v{base+2*k}, v{base+2*k+1}"))
                    for k in range(4):
                        out.append(("v", f"v_pk_max_i16 v{base+k}, v{base+k}, 0"))
                else:
                    for k in range(8):
                        out.append(("v", f"v_max_f32 v{base+k}, 0, v{base+k}"))
                    for k in range(0, 8, 2):
                        out.append(("v", f"v_pk_mul_f32 v[{base+k}:{base+k+1}], v[{base+k}:{base+k+1}], v[{base+k}:{base+k+1}]"))
                    for k in range(4):
                        out.append(("v", f"v_cvt_pk_bf16_f32 v{base+k}, v{base+2*k}, v{base+2*k+1}"))
                for k in range(4):
                    out.append(("v", f"v_bfi_b32 v{base+4+k}, s{sML}, v{vTG+k}, v{base+k}" if cfg.hlsb else
                                f"v_and_or_b32 v{base+4+k}, v{vTG+k}, s{sMS}, v{base+k}"))
                out.append(("v", f"buffer_store_dwordx4 v[{base+4}:{base+7}], v{vHW[0]}, s[{SRD1}:{SRD1+3}], s{sHS[l]} offen offset:{1024*half} {cfg.hsf}"))
                out.append(("w", f"ds_write_b128 v{vHW[addr >> 16]}, v[{base}:{base+3}] offset:{(addr & 0xffff) + 1024*half}"))
                t = ("v", f"buffer_load_dword v255, v{vHW[0]}, s[{SRD1}:{SRD1+3}], s{sHS[l]} offen offset:{1024*half} {cfg.stf}")
                if cfg.stouch == 1:
                    out.append(t)
                elif cfg.stouch == 2:
                    late.append(t)
                elif cfg.stouch == 3:
                    post.append(t)
        return out + late

    def epi2_instrs(lines):
        out = []
        for l in lines:
            for u in range(2):
                base = vACC + 8 * (2 * l + u)
                if l in aux_used:
                    ab = accbase(l + 3) + 8 * u
                    for k in range(0, 8, 2):
                        out.append(("v", f"v_pk_add_f32 v[{base+k}:{base+k+1}], v[{base+k}:{base+k+1}], v[{ab+k}:{ab+k+1}]"))
                for k in range(4):
                    out.append(("v", f"v_cvt_pk_bf16_f32 v{base+k}, v{base+2*k}, v{base+2*k+1}"))
                out.append(("v", "s_nop 1"))
                out.append(("v", f"v_permlane32_swap_b32 v{base}, v{base+2}"))
                out.append(("v", f"v_permlane32_swap_b32 v{base+1}, v{base+3}"))
                for k in (0, 2, 1, 3):
                    out.append(("v", f"v_bfi_b32 v{base+k}, s{sML}, v{vTG+k}, v{base+k}"))
                out.append(("v", f"buffer_store_dwordx4 v[{base}:{base+3}], v{vL16}, s[{SRD1}:{SRD1+3}], s{sIL[l]} offen offset:{256*u} {cfg.psf}"))
        return out

    fillers = []
    fill_start = 0
    fill_tiles = set()
    mfma_pos = {}
    fill_fresh = [False]

    def states_since(pos):
        c = 0
        for ln in A.L[pos + 1:]:
            t = ln.strip()
            if t.endswith(":") or t.startswith(";") or t.startswith("@@"):
                continue
            c += int(t.split()[1]) + 1 if t.startswith("s_nop") else 1
        return c

    late_w = []

    def emit(kind, t):
        if kind == "mark":
            have = min(states_since(mfma_pos[tl]) for tl in t[0])
            if have < 12:
                A(f"s_nop {12 - have - 1}")
        elif kind == "w":
            ds_issue(t, "hw")
        else:
            A(t)

    def flush_fillers():
        nonlocal fillers
        for (kind, t) in fillers + late_w:
            emit(kind, t)
        fillers = []
        late_w.clear()
        fill_tiles.clear()

    trig = {}
    for l in range(3):
        trig[max(n for n, it in enumerate(items) if it["q"] < n_g1 and it["tile"] == l)] = (1, l)
        trig[max(n for n, it in enumerate(items) if it["q"] >= n_g1 and it["tile"] % 3 == l)] = (2, l)

    nread = 0
    for n in range(NI):
        it = items[n]
        lim = min(NI - 1, n + D)
        while nread <= lim:
            nx = items[nread]
            if nx["q"] > checked[0]:
                due = [l for l, v in hown_vis.items() if v == nx["q"]]
                if due:
                    if last_item[hown_w[due[0]]] >= n:
                        break
                    flush_fillers()
            key = (nx["q"], nx["kb"])
            if key in bread_of and (key, nx["sp"]) not in bdone:
                if any(items[m]["kb"] == nx["kb"] and items[m]["sp"] == nx["sp"] for m in range(n, nread)):
                    break
            issue_reads(nread)
            nread += 1
        assert nread > n
        if it["tile"] in fill_tiles:
            flush_fillers()
            A("s_nop 1")
        clean(n)
        ds_need({("A", n), ("B", it["kb"], it["sp"])})
        if it["first"]:
            ds_need({"hw"})
        if n in clean_pos and states_since(clean_pos[n]) < 2:
            A(f"s_nop {1 - states_since(clean_pos[n])}")
        ra = vAB + 4 * (n % nAB)
        rb = vXB + 16 * it["kb"] + 4 * it["sp"]
        acc = accbase(it["tile"])
        c = "0" if it["first"] else f"v[{acc}:{acc+15}]"
        if cfg.m16test == 1:
            for hh in range(2):
                a4 = acc + 8 * (it["sp"] & 1) + 4 * hh
                rb2 = vXB + 16 * it["kb"] + 4 * (it["sp"] if hh == 0 else max(it["sp"] - 1, 0))
                A(f"v_mfma_f32_16x16x32_bf16 v[{a4}:{a4+3}], v[{ra}:{ra+3}], v[{rb2}:{rb2+3}], v[{a4}:{a4+3}]")
        elif cfg.m16test == 2:
            A("s_nop 7")
        else:
            A(f"v_mfma_f32_32x32x16_bf16 v[{acc}:{acc+15}], v[{ra}:{ra+3}], v[{rb}:{rb+3}], {c}")
        mfma_pos[it["tile"]] = len(A.L) - 1
        if n + 1 < nread:
            clean(n + 1)
        k = 0
        while fillers and k < (cfg.fill1 if it["q"] < n_g1 else cfg.fill):
            if fillers[0][0] == "mark" and n < fillers[0][1][1]:
                break
            kind, t = fillers.pop(0)
            emit(kind, t)
            k += kind != "mark"
        if not fillers and not late_w:
            fill_tiles.clear()
        if n == last_item[it["q"]] and (it["q"] in epi_after or it["q"] in epi2_after):
            stamp()
        if n in trig:
            g, l = trig[n]
            tl = [l] + ([l + 3] if (g == 2 and l in aux_used) else [])
            new = epi1_instrs(0, [l]) if g == 1 else epi2_instrs([l])
            if cfg.wlast:
                late_w.extend(x for x in new if x[0] == "w")
                new = [x for x in new if x[0] != "w"]
            fillers += [("mark", (tl, n + cfg.fdel))] + new
            fill_tiles.update(tl)
    flush_fillers()
    stamp()
    if cfg.rnb >= 1 and not cfg.rlate:
        A("s_barrier")
    reduce_code(1, 0)
    if TS:
        A("s_waitcnt vmcnt(0)")
        A("s_memrealtime s[98:99]")
        A("s_waitcnt lgkmcnt(0)")
        assert tsn[0] <= 14, tsn[0]
        A(f"s_mov_b32 s{sTS+28}, s98"); A(f"s_mov_b32 s{sTS+30}, s{sCNT}")
        tsn[0] = 16
        stamp_flush()
    if cfg.enc and cfg.encw < 4:
        A("s_branch L_noep")
    A("s_branch L_end")

    A.head("hl")
    A.label("L_helper")
    sG = 38
    A(f"s_lshl_b32 s{sG}, s{sWV}, 3")
    A(f"s_add_u32 s{sG}, s{sG}, s{sR}")
    A("v_mul_u32_u24 v8, 9216, v1")
    A("v_mul_u32_u24 v9, 1152, v1")
    A(f"s_mul_i32 s39, s{sJ}, 1152")
    A("s_waitcnt lgkmcnt(0)")
    NWT = 64

    def sdiv(dst, src, d):
        A(f"s_mul_i32 s{dst}, s{src}, {(65536 + d - 1) // d}")
        A(f"s_lshr_b32 s{dst}, s{dst}, 16")

    w2base = 0
    if cfg.touch and any(ROT):
        srd(SRD0, sW1, 5308416)
        srd(SRD1, sX, 589824)
        need = {kk: min((kk - r) % 9 for r in ROT) for kk in range(9)}
        kks = sorted([kk for kk in range(9) if need[kk] >= cfg.skipw], key=lambda kk: need[kk])
        KT = sum(kk << (4 * u) for u, kk in enumerate(kks))
        nW = 9 * len(kks)
        x0 = cfg.skipx
        nX = 8 * (9 - x0)
        tot = nW + nX
        for rnd in range((tot + NWT - 1) // NWT):
            if rnd == 1:
                A.tail("hl")
            k = A.uid()
            A(f"s_add_u32 s{sT0}, s{sG}, {NWT*rnd}")
            if NWT * rnd < nW:
                if NWT * rnd + NWT > nW:
                    A(f"s_cmp_ge_u32 s{sT0}, {nW}")
                    A(f"s_cbranch_scc1 L_hx{k}")
                sdiv(sT1, sT0, 9)
                A(f"s_mul_i32 s{sT2}, s{sT1}, 9")
                A(f"s_sub_u32 s{sT2}, s{sT0}, s{sT2}")
                A(f"s_lshl_b32 s{sT1}, s{sT1}, 2")
                A(f"s_lshr_b32 s{sT1}, {KT}, s{sT1}")
                A(f"s_and_b32 s{sT1}, s{sT1}, 15")
                A(f"s_mul_i32 s{sT1}, s{sT1}, {64*9216}")
                A(f"s_lshl_b32 s{sT2}, s{sT2}, 7")
                A(f"s_add_u32 s{sT1}, s{sT1}, s{sT2}")
                A(f"s_add_u32 s{sT1}, s{sT1}, s39")
                A(f"buffer_load_dword v255, v8, s[{SRD0}:{SRD0+3}], s{sT1} offen {cfg.tfl}")
                if NWT * rnd + NWT > nW:
                    A(f"s_branch L_ht{k}")
            if NWT * rnd + NWT > nW:
                A.label(f"L_hx{k}")
                if NWT * rnd + NWT > tot:
                    A(f"s_cmp_ge_u32 s{sT0}, {tot}")
                    A(f"s_cbranch_scc1 L_ht{k}")
                A(f"s_sub_u32 s{sT0}, s{sT0}, {nW - 8*x0}")
                A(f"s_and_b32 s{sT2}, s{sT0}, 7")
                A(f"s_lshr_b32 s{sT1}, s{sT0}, 3")
                A(f"s_lshl_b32 s{sT3}, s{sT2}, 2")
                A(f"s_lshr_b32 s{sT3}, {ROTTAB}, s{sT3}")
                A(f"s_and_b32 s{sT3}, s{sT3}, 15")
                A(f"s_add_u32 s{sT1}, s{sT1}, s{sT3}")
                A(f"s_cmp_ge_u32 s{sT1}, 9")
                A(f"s_cselect_b32 s{sT3}, 9, 0")
                A(f"s_sub_u32 s{sT1}, s{sT1}, s{sT3}")
                A(f"s_mul_i32 s{sT2}, s{sT2}, {64*1152}")
                A(f"s_lshl_b32 s{sT1}, s{sT1}, 7")
                A(f"s_add_u32 s{sT1}, s{sT1}, s{sT2}")
                A(f"buffer_load_dword v255, v9, s[{SRD1}:{SRD1+3}], s{sT1} offen")
            A.label(f"L_ht{k}")
        w2base = (NWT - tot % NWT) % NWT
    elif cfg.touch:
        srd(SRD0, sW1, 5308416)
        srd(SRD1, sX, 589824)
        phases, base = [], 0
        for pi, ls in enumerate(passes):
            t0 = cfg.ht0 if pi == 0 else 0
            c = 3 * len(ls) + (8 if pi == 0 else 0)
            phases.append((base, (9 - t0 - cfg.tn) * c, t0, c, ls))
            base += (9 - t0 - cfg.tn) * c
        w2base = (NWT - base % NWT) % NWT if cfg.w2rot else 0
        for rnd in range((base + NWT - 1) // NWT):
            if rnd == 1:
                A.tail("hl")
            k = A.uid()
            A(f"s_add_u32 s{sT0}, s{sG}, {NWT*rnd}")
            for (pb, cnt, t0, c, ls) in phases:
                if pb + cnt <= NWT * rnd or pb >= NWT * rnd + NWT:
                    continue
                k2 = A.uid()
                A(f"s_cmp_ge_u32 s{sT0}, {pb+cnt}")
                A(f"s_cbranch_scc1 L_hp{k2}")
                if pb:
                    A(f"s_sub_u32 s{sT0}, s{sT0}, {pb}")
                sdiv(sT1, sT0, c)
                A(f"s_mul_i32 s{sT2}, s{sT1}, {c}")
                A(f"s_sub_u32 s{sT2}, s{sT0}, s{sT2}")
                if t0:
                    A(f"s_add_u32 s{sT1}, s{sT1}, {t0}")
                if cfg.tn:
                    A(f"s_cmp_ge_u32 s{sT1}, {cfg.ta}")
                    A(f"s_cselect_b32 s{sT3}, {cfg.tn}, 0")
                    A(f"s_add_u32 s{sT1}, s{sT1}, s{sT3}")
                nw = 3 * len(ls)
                if c > nw:
                    A(f"s_cmp_ge_u32 s{sT2}, {nw}")
                    A(f"s_cbranch_scc1 L_hx{k2}")
                if len(ls) != 3:
                    if len(ls) == 1:
                        A(f"s_mul_i32 s{sT2}, s{sT2}, 3")
                    else:
                        A(f"s_lshr_b32 s{sT3}, s{sT2}, 1")
                        A(f"s_add_u32 s{sT2}, s{sT2}, s{sT3}")
                    if ls[0]:
                        A(f"s_add_u32 s{sT2}, s{sT2}, {ls[0]}")
                A(f"s_mul_i32 s{sT1}, s{sT1}, {64*9216}")
                A(f"s_lshl_b32 s{sT2}, s{sT2}, 7")
                A(f"s_add_u32 s{sT1}, s{sT1}, s{sT2}")
                A(f"s_add_u32 s{sT1}, s{sT1}, s39")
                A(f"buffer_load_dword v255, v8, s[{SRD0}:{SRD0+3}], s{sT1} offen {cfg.tfl}")
                A(f"s_branch L_ht{k}")
                if c > nw:
                    A.label(f"L_hx{k2}")
                    A(f"s_sub_u32 s{sT2}, s{sT2}, {nw}")
                    A(f"s_mul_i32 s{sT2}, s{sT2}, {64*1152}")
                    A(f"s_lshl_b32 s{sT1}, s{sT1}, 7")
                    A(f"s_add_u32 s{sT1}, s{sT1}, s{sT2}")
                    A(f"buffer_load_dword v255, v9, s[{SRD1}:{SRD1+3}], s{sT1} offen")
                    A(f"s_branch L_ht{k}")
                A.label(f"L_hp{k2}")
            A.label(f"L_ht{k}")
    def h_pretouch():
        srd(SRD1, sWS, 0x10000000)
        A("v_lshlrev_b32 v10, 7, v1")
        A(f"s_mul_i32 s{sT1}, s{sJ}, 589824")
        A(f"s_add_u32 s{sT1}, s{sT1}, {WS_IN if cfg.hpin else WS_H}")
        for rnd in range(2):
            k = A.uid()
            A(f"s_add_u32 s{sT0}, s{sG}, {NWT*rnd}")
            A(f"s_cmp_ge_u32 s{sT0}, 72")
            A(f"s_cbranch_scc1 L_ht{k}")
            A(f"s_lshl_b32 s{sT0}, s{sT0}, 13")
            A(f"s_add_u32 s{sT0}, s{sT0}, s{sT1}")
            A(f"buffer_load_dword v255, v10, s[{SRD1}:{SRD1+3}], s{sT0} offen {cfg.hpf}")
            A.label(f"L_ht{k}")
    if cfg.hpre == 1:
        h_pretouch()
    if cfg.touch:
        srd(SRD0, sW2, 5308416)
        A(f"s_mul_i32 s39, s{sJ}, 663552")
        vord = [blocks[nm] for nm in order if blocks[nm]["kind"] == "W2"]
        if not cfg.vneed:
            vord.sort(key=lambda b: (kbidx[(b["d"], b["lk"])], b["l"]))
        for reg, key in ((60, "d"), (62, "lk"), (44, "l")):
            tab = sum(b[key] << (2 * u) for u, b in enumerate(vord))
            A(f"s_mov_b32 s{reg}, {tab & 0xffffffff}")
            A(f"s_mov_b32 s{reg+1}, {tab >> 32}")
        if w2base:
            A(f"s_add_u32 s{sG}, s{sG}, {w2base}")
            A(f"s_and_b32 s{sG}, s{sG}, 63")
        for rnd in range(2):
            k = A.uid()
            A(f"s_add_u32 s{sT0}, s{sG}, {NWT*rnd}")
            A(f"s_cmp_ge_u32 s{sT0}, {81 - 18*cfg.vt}")
            A(f"s_cbranch_scc1 L_ht{k}")
            sdiv(sT1, sT0, 3)
            A(f"s_mul_i32 s{sT2}, s{sT1}, 3")
            A(f"s_sub_u32 s{sT2}, s{sT0}, s{sT2}")
            A(f"s_lshl_b32 s{sT1}, s{sT1}, 1")
            A(f"s_lshr_b64 s[46:47], s[60:61], s{sT1}")
            A(f"s_and_b32 s{sT0}, s46, 3")
            A(f"s_add_u32 s{sT0}, s{sT0}, s{sT2}")
            A(f"s_cmp_ge_u32 s{sT0}, 3")
            A(f"s_cselect_b32 s{sT3}, 3, 0")
            A(f"s_sub_u32 s{sT0}, s{sT0}, s{sT3}")
            A(f"s_lshr_b64 s[46:47], s[62:63], s{sT1}")
            A(f"s_and_b32 s{sT3}, s46, 3")
            A(f"s_mul_i32 s{sT0}, s{sT0}, {192*1152}")
            A(f"s_mul_i32 s{sT3}, s{sT3}, {64*1152}")
            A(f"s_add_u32 s{sT0}, s{sT0}, s{sT3}")
            A(f"s_lshr_b64 s[46:47], s[44:45], s{sT1}")
            A(f"s_and_b32 s{sT3}, s46, 3")
            A(f"s_mul_i32 s{sT2}, s{sT2}, 3")
            A(f"s_add_u32 s{sT2}, s{sT2}, s{sT3}")
            A(f"s_lshl_b32 s{sT2}, s{sT2}, 7")
            A(f"s_add_u32 s{sT0}, s{sT0}, s{sT2}")
            A(f"s_add_u32 s{sT0}, s{sT0}, s39")
            A(f"buffer_load_dword v255, v9, s[{SRD0}:{SRD0+3}], s{sT0} offen {cfg.tfl}")
            A.label(f"L_ht{k}")
    if cfg.hpre == 2:
        h_pretouch()
    dummy(cfg.dumh, "h")
    if TS:
        tsn[0] = 1
        A("s_waitcnt vmcnt(0)")
        stamp()
        stamp()
        stamp_flush()
    A("s_branch L_end")
    A.tail("end")
    A.label("L_end")

    hdr = f"""; Fused MLP (x@w1+b1 -> relu^2 -> @w2+b2), generated by a python script (work/gen8.py)
; @launch grid=(256,1,1) block=(512,1,1) lds=163840
.amdgcn_target "amdgcn-amd-amdhsa--gfx950"
.text
.globl {KN}
.p2align 8
.type {KN},@function
{KN}:
"""
    ftr = f"""
    s_endpgm
.section .rodata,"a"
.p2align 6
.amdhsa_kernel {KN}
  .amdhsa_next_free_vgpr 256
  .amdhsa_next_free_sgpr 102
  .amdhsa_accum_offset 256
  .amdhsa_group_segment_fixed_size 0
  .amdhsa_kernarg_size 64
  .amdhsa_user_sgpr_count 2
  .amdhsa_user_sgpr_kernarg_segment_ptr 1
  .amdhsa_system_sgpr_workgroup_id_x 1
.end_amdhsa_kernel
"""
    return hdr + A.text(cfg.horder.split(","), cfg.torder.split(",") + ["end"]) + ftr


def parse_g2(s):
    out = []
    for stg in s.split(","):
        us = []
        for u in stg.split("+"):
            a, b = u.split(":")
            us.append((int(a[0]), int(a[1]), [int(c) for c in b]))
        out.append(us)
    return out


def ilist(s):
    return [int(x) for x in s.split(",")] if s else []


def main():
    ap = argparse.ArgumentParser()
    ap.add_argument("-o", default="k8.s")
    ap.add_argument("--ts", action="store_true")
    ap.add_argument("--passes", default="012")
    ap.add_argument("--depth", type=int, default=5)
    ap.add_argument("--fill", type=int, default=4)
    ap.add_argument("--grp1", type=int, default=3)
    ap.add_argument("--hres", type=float, default=2.5)
    ap.add_argument("--hearly", type=float, default=1.5)
    ap.add_argument("--hdel", type=int, default=1)
    ap.add_argument("--xfree", type=int, default=11)
    ap.add_argument("--g2", default="00:012,01:012,02:012,10:012,20:012,11:012,21:012,12:012,22:012")
    ap.add_argument("--tsq", default="")
    ap.add_argument("--verbose", action="store_true")
    ap.add_argument("--ahead", type=int, default=8)
    ap.add_argument("--ahead0", type=int, default=8)
    ap.add_argument("--capfrom", type=int, default=8)
    ap.add_argument("--capw", type=int, default=4)
    ap.add_argument("--capx", type=int, default=3)
    ap.add_argument("--burst", default="")
    ap.add_argument("--pause", default="")
    ap.add_argument("--go2lead", type=int, default=3)
    ap.add_argument("--sa", type=int, default=0)
    ap.add_argument("--ctouch", type=int, default=1)
    ap.add_argument("--wfl", default="")
    ap.add_argument("--tfl", default="")
    ap.add_argument("--rfl", default="sc1")
    ap.add_argument("--rsleep", type=int, default=0)
    ap.add_argument("--touch", type=int, default=1)
    ap.add_argument("--clrq", type=int, default=-1)
    ap.add_argument("--cdq", type=int, default=9)
    ap.add_argument("--rbar", type=int, default=0)
    ap.add_argument("--hsf", default="sc1")
    ap.add_argument("--hlf", default="sc1")
    ap.add_argument("--ofl", default="")
    ap.add_argument("--hpre", type=int, default=0)
    ap.add_argument("--rot", default="00000000")
    ap.add_argument("--ts0", type=int, default=0)
    ap.add_argument("--hlsb", type=int, default=1)
    ap.add_argument("--dual", type=int, default=0)
    ap.add_argument("--hside", type=int, default=-1)
    ap.add_argument("--iside", type=int, default=-1)
    ap.add_argument("--obox", type=int, default=0)
    ap.add_argument("--probe", type=int, default=0)
    ap.add_argument("--vt", type=int, default=0)
    ap.add_argument("--vtq", type=int, default=10)
    ap.add_argument("--xpre", type=int, default=0)
    ap.add_argument("--m16test", type=int, default=0)
    ap.add_argument("--vneed", type=int, default=1)
    ap.add_argument("--tsreal", type=int, default=0)
    ap.add_argument("--vpipe", type=int, default=0)
    ap.add_argument("--ahead2", type=int, default=-1)
    ap.add_argument("--chain", type=int, default=1)
    ap.add_argument("--owide", type=int, default=0)
    ap.add_argument("--dum1", type=int, default=0)
    ap.add_argument("--dum2", type=int, default=0)
    ap.add_argument("--dumh", type=int, default=0)
    ap.add_argument("--encc", type=int, default=0)
    ap.add_argument("--encm", type=int, default=2)
    ap.add_argument("--slots", type=int, default=0)
    ap.add_argument("--rlate", type=int, default=0)
    ap.add_argument("--epi", type=int, default=0)
    ap.add_argument("--tm", default="")
    ap.add_argument("--wlast", type=int, default=0)
    ap.add_argument("--fdel", type=int, default=3)
    ap.add_argument("--fill1", type=int, default=5)
    ap.add_argument("--priow", type=int, default=0)
    ap.add_argument("--prioh", type=int, default=0)
    ap.add_argument("--r0early", type=int, default=0)
    ap.add_argument("--psf", default="sc1")
    ap.add_argument("--rw1", type=int, default=0)
    ap.add_argument("--ofl1", default="")
    ap.add_argument("--rpq", type=int, default=10)
    ap.add_argument("--rb2", type=int, default=1)
    ap.add_argument("--rb4", type=int, default=0)
    ap.add_argument("--rearly", type=int, default=0)
    ap.add_argument("--hpf", default="")
    ap.add_argument("--hpin", type=int, default=0)
    ap.add_argument("--wsb", type=lambda x: int(x, 0), default=0)
    ap.add_argument("--enc", default="")
    ap.add_argument("--encw", type=int, default=4)
    ap.add_argument("--hfree", type=int, default=2)
    ap.add_argument("--stouch", type=int, default=0)
    ap.add_argument("--stdel", type=int, default=1)
    ap.add_argument("--stf", default="")
    ap.add_argument("--ta", type=int, default=0)
    ap.add_argument("--tn", type=int, default=0)
    ap.add_argument("--tpos", type=int, default=0)
    ap.add_argument("--w2rot", type=int, default=1)
    ap.add_argument("--rfast", type=int, default=1)
    ap.add_argument("--wt", type=int, default=0)
    ap.add_argument("--horder", default="w,x,h2,hl,c")
    ap.add_argument("--ht0", type=int, default=1)
    ap.add_argument("--first", type=int, default=4)
    ap.add_argument("--torder", default="hl,w,x,h2,c,red")
    ap.add_argument("--skipw", type=int, default=1)
    ap.add_argument("--skipx", type=int, default=1)
    cfg = ap.parse_args()
    cfg.passes = [[int(c) for c in p] for p in cfg.passes.split(",")]
    cfg.g2 = parse_g2(cfg.g2)
    cfg.rnb = cfg.rb2
    cfg.tsq, cfg.burst, cfg.pause = ilist(cfg.tsq), ilist(cfg.burst), ilist(cfg.pause)
    open(cfg.o, "w").write(build(cfg))


main()
```

```python
import sys, argparse

KN = "standalone__dense_activation_squared_relu__sampling_kernel"

WS_H = 0x0
WS_IN = 0x1000000
WS_CD = 0x1840000
WS_EP = 0x1850000
WS_TS = 0x8000000
SPIN_MAX = 100000
SGNMASK = 0x6A9956A5


class Asm:
    def __init__(self):
        self.L = []
        self.n = 0

    def __call__(self, s):
        self.L.append("    " + s)

    def label(self, s):
        self.L.append(s + ":")

    def c(self, s):
        self.L.append("    ; " + s)

    def uid(self):
        self.n += 1
        return self.n

    def head(self, role):
        self.L.append(f"@@HEAD {role}")

    def tail(self, role):
        self.L.append(f"@@TAIL {role}")

    def text(self, horder, torder):
        pro, heads, tails, cur = [], {}, {}, None
        cur = pro
        for ln in self.L:
            if ln.startswith("@@HEAD"):
                cur = heads.setdefault(ln.split()[1], [])
            elif ln.startswith("@@TAIL"):
                r = ln.split()[1]
                if r in heads:
                    heads[r].append(f"    s_branch L_tail_{r}")
                cur = tails.setdefault(r, [f"L_tail_{r}:"])
            else:
                cur.append(ln)
        assert sorted(heads) == sorted(horder) and sorted(tails) == sorted(torder), (heads.keys(), tails.keys())
        out = pro
        for r in horder:
            out += heads[r]
        out.append("L_heads_end:")
        for r in torder:
            out += tails[r]
        return "\n".join(out)


def build(cfg):
    global WS_H, WS_IN, WS_EP
    WS_H = cfg.wsb
    WS_IN = cfg.wsb + 0x480000
    WS_EP = cfg.wsb + 0xc00000 if not cfg.slots else 0x10000
    A = Asm()
    SR, SD, SS, SL = {0: (24576, 589824, 3072, 1024), 1: (24576, 1024, 589824, 8192),
                      2: (196608, 8192, 1024, 65536), 3: (196608, 1024, 8192, 65536),
                      4: (221184, 9216, 1024, 73728), 5: (24*10496, 10496, 1280, 8*10496),
                      6: (221184, 1024, 9216, 73728), 7: (24*8448, 8448, 1024, 8*8448)}[cfg.obox]
    TS = cfg.ts
    HW, HL = (24576, 8192) if cfg.hside < 0 else (49152, 16384)
    if cfg.hside >= 0 or cfg.iside >= 0:
        WS_IN = cfg.wsb + 0x1000000
        WS_EP = cfg.wsb + 0x2000000
    if cfg.iside >= 0:
        SR, SD, SS, SL = 49152, 0x400000, 1024, 16384

    def jbase(dst, sj, side, tmp):
        A(f"s_and_b32 s{dst}, s{sj}, 3")
        A(f"s_lshl_b32 s{dst}, s{dst}, 22")
        A(f"s_lshr_b32 s{tmp}, s{sj}, 2")
        if side:
            A(f"s_xor_b32 s{tmp}, s{tmp}, 1")
        A(f"s_lshl_b32 s{tmp}, s{tmp}, 13")
        A(f"s_add_u32 s{dst}, s{dst}, s{tmp}")
    passes = cfg.passes
    D = cfg.depth

    stages, blocks, order = [], {}, []

    def blk(name, **kw):
        blocks[name] = dict(name=name, **kw)
        return name

    def add_stage(units, breads):
        q = len(stages)
        stages.append(dict(units=units, breads=breads, q=q))
        for (bb, _kb) in breads:
            b = blocks[bb]
            b["need"] = b["last"] = q
            if b["kind"] != "Hown":
                order.append(bb)
        for (_t, wb, _kb, _first) in units:
            b = blocks[wb]
            if "need" not in b:
                b["need"] = q
                order.append(wb)
            b["last"] = q
        return q

    epi_after, pass_of_line = {}, {}
    for pi, lines in enumerate(passes):
        grp = 1 if (len(lines) > 1 or pi == 0) else cfg.grp1
        for t0 in range(0, 9, grp):
            units, breads = [], []
            for t in range(t0, t0 + grp):
                if pi == 0:
                    breads.append((blk(f"X{t}", kind="X", t=t), t))
                for l in lines:
                    units.append((l, blk(f"W{t}_{l}", kind="W1", t=t, l=l), t, False))
            q = add_stage(units, breads)
        epi_after[q] = (pi, list(lines))
        for l in lines:
            pass_of_line[l] = pi
    n_g1 = len(stages)
    kbidx = {}
    first = {0: True, 1: True, 2: True}
    cnt2 = {0: 0, 1: 0, 2: 0}
    epi2_after = {}
    for stg in cfg.g2:
        units, breads = [], []
        for (d, lk, lines) in stg:
            if (d, lk) not in kbidx:
                kbidx[(d, lk)] = len(kbidx)
                breads.append((blk(f"H{d}_{lk}", kind="Hown" if d == 0 else f"H{d}", d=d, lk=lk), kbidx[(d, lk)]))
            for l in lines:
                units.append((l, blk(f"V{d}_{lk}_{l}", kind="W2", d=d, lk=lk, l=l), kbidx[(d, lk)], first[l]))
                first[l] = False
                cnt2[l] += 1
        q = add_stage(units, breads)
        done = [l for l in range(3) if cnt2[l] == 9 and not any(l in v for v in epi2_after.values())]
        if done:
            epi2_after[q] = done
    assert all(v == 9 for v in cnt2.values())
    NQ = len(stages)
    hown_w = {l: q for q, (pi, lines) in epi_after.items() for l in lines}
    hown_vis = {l: (q + 1 if q == n_g1 - 1 else q + 2) for l, q in hown_w.items()}
    for l in hown_w:
        assert blocks[f"H0_{l}"]["need"] >= hown_vis[l]
    hfetch = {l: hown_vis[l] + cfg.hdel for l in hown_w}

    free_at = {s: -10 for s in range(20)}
    events = [(blocks[nm]["need"] - (cfg.hearly if blocks[nm]["kind"] in ("H1", "H2") else 0), 1, k, nm) for k, nm in enumerate(order)]
    for l, qw in hown_w.items():
        events.append((qw - cfg.hres, 0, l, f"H0_{l}"))
    events.sort()
    for ev in events:
        b = blocks[ev[3]]
        if b["kind"] == "X":
            cand = [16, 17, 18, 19]
        elif ev[0] < cfg.xfree:
            cand = list(range(0, 16))
        else:
            cand = list(range(0, 20))
        s = min(cand, key=lambda s: (free_at[s], s))
        b["slot"] = s
        b["free"] = free_at[s]
        if b["kind"] == "Hown":
            assert b["free"] + cfg.hfree <= hown_w[b["lk"]], b
        else:
            assert b["free"] + 2 < b["need"], b
        free_at[s] = b["last"]
    if cfg.verbose:
        print(" | ".join(f"{blocks[e[3]]['name']}:s{blocks[e[3]]['slot']} f{blocks[e[3]]['free']} n{blocks[e[3]]['need']}" for e in events), file=sys.stderr)
    for k, nm in enumerate(order):
        blocks[nm]["pos"] = k
    cum = [sum(1 for nm in order if blocks[nm]["need"] <= q) for q in range(NQ)]

    sX, sW1, sB1, sW2, sB2, sOUT, sDBG, sWS = 16, 18, 20, 22, 24, 26, 28, 30
    sJ, sR, sMT, sI, sWV, sWK = 32, 33, 34, 35, 36, 37
    SRD0, SRD1, SRD2 = 40, 44, 48
    sT0, sT1, sT2, sT3, sT4, sT5 = 52, 53, 54, 55, 56, 57
    sCNT = 58
    sTAG, sPB = 6, 8
    sTS = 64
    tsn = [0]

    def stamp():
        if TS:
            k = tsn[0]
            assert k < 16
            A(f"{'s_memrealtime' if cfg.tsreal else 's_memtime'} s[{sTS+2*k}:{sTS+2*k+1}]")
            tsn[0] += 1

    def srd(d, p, nbytes):
        A(f"s_mov_b32 s{d}, s{p}")
        A(f"s_mov_b32 s{d+1}, s{p+1}")
        A(f"s_mov_b32 s{d+2}, {nbytes}")
        A(f"s_mov_b32 s{d+3}, 0x00020000")

    def stamp_flush():
        if not TS:
            return
        n = tsn[0]
        A("s_waitcnt lgkmcnt(0)")
        srd(SRD2, sWS, 0x10000000)
        A(f"s_lshl_b32 s{sT0}, s2, 9")
        A(f"s_lshl_b32 s{sT1}, s{sWV}, 6")
        A(f"s_add_u32 s{sT0}, s{sT0}, s{sT1}")
        A(f"s_add_u32 s{sT0}, s{sT0}, {WS_TS}")
        A(f"v_mov_b32 v2, s{sT0}")
        A("s_mov_b64 exec, 1")
        for k in range(n):
            A(f"v_mov_b32 v3, s{sTS+2*k}")
            A(f"buffer_store_dword v3, v2, s[{SRD2}:{SRD2+3}], 0 offen offset:{4*k}")
        A("s_mov_b64 exec, -1")

    def epoch_load(smt):
        A(f"s_lshl_b32 s{sT0}, s{smt}, 7")
        A(f"s_add_u32 s{sT0}, s{sT0}, {WS_EP}")
        A(f"s_load_dword s{sTAG}, s[{sWS}:{sWS+1}], s{sT0}")

    def epoch_fin():
        A("s_waitcnt lgkmcnt(0)")
        A(f"s_add_u32 s{sTAG}, s{sTAG}, 1")
        A(f"s_mul_i32 s{sTAG+1}, s{sTAG}, 0x22222222")
        A(f"s_and_b32 s{sTAG+1}, s{sTAG+1}, 0xeeeeeeee")
        A(f"s_or_b32 s{sTAG+1}, s{sTAG+1}, 0x10101010")
        if cfg.slots:
            A(f"s_and_b32 s14, s{sTAG}, {cfg.slots-1}")
            A(f"s_mul_i32 s14, s14, 0xa00000")

    def slot_add(*regs):
        if cfg.slots:
            for r in regs:
                A(f"s_add_u32 s{r}, s{r}, s14")

    def tag_regs(vd, vt):
        A(f"v_and_b32 v{vt}, 3, v1")
        A(f"v_lshlrev_b32 v{vt}, 3, v{vt}")
        A(f"v_lshrrev_b32 v{vt}, v{vt}, s{sTAG+1}")
        for k in range(4):
            A(f"v_bfe_u32 v{vd+k}, v{vt}, {2*k}, 2")
            A(f"v_mul_u32_u24 v{vd+k}, 0x8001, v{vd+k}")
            A(f"v_and_b32 v{vd+k}, 0x10001, v{vd+k}")
            A(f"v_lshl_or_b32 v{vd+k}, v{vd+k}, 15, v{vd+k}")

    def sign_reg(vd, vt):
        A(f"s_bitcmp1_b32 s{sTAG}, 0")
        A(f"s_cselect_b32 s{sT0}, -1, 0")
        A(f"s_xor_b32 s{sT0}, s{sT0}, {SGNMASK}")
        A(f"v_and_b32 v{vt}, 31, v1")
        A(f"v_lshrrev_b32 v{vt}, v{vt}, s{sT0}")
        A(f"v_bfe_i32 v{vt}, v{vt}, 0, 1")
        A(f"v_and_b32 v{vd}, 0x80008000, v{vt}")

    def sspin(loads, npairs, base):
        k = A.uid()
        A(f"s_mov_b32 s{sCNT}, 0")
        A.label(f"L_s{k}")
        for x in loads:
            A(x)
        A(f"s_add_u32 s{sCNT}, s{sCNT}, 1")
        A("s_waitcnt lgkmcnt(0)")
        A(f"s_cmp_gt_u32 s{sCNT}, {SPIN_MAX}")
        A(f"s_cbranch_scc1 L_sd{k}")
        for n in range(npairs):
            A(f"s_cmp_lg_u64 s[{base+2*n}:{base+2*n+1}], s[{sTAG}:{sTAG+1}]")
            A(f"s_cbranch_scc1 L_s{k}")
        A.label(f"L_sd{k}")

    def mod3add(dst, d, tmp):
        A(f"s_add_u32 s{dst}, s{sI}, {d}")
        A(f"s_cmp_ge_u32 s{dst}, 3")
        A(f"s_cselect_b32 s{tmp}, 3, 0")
        A(f"s_sub_u32 s{dst}, s{dst}, s{tmp}")

    A("s_cmp_ge_u32 s2, 256")
    A("s_cbranch_scc1 L_end")
    A("s_load_dwordx16 s[16:31], s[0:1], 0")
    if cfg.ctouch == 1:
        A("s_getpc_b64 s[4:5]")
        A.label("L_pc")
        A("v_lshlrev_b32 v2, 7, v0")
        A("v_min_u32 v2, L_end-L_pc, v2")
        A("v_and_b32 v2, 0xfffffffc, v2")
        A("global_load_dword v255, v2, s[4:5]")
    elif cfg.ctouch == 2:
        A("s_getpc_b64 s[4:5]")
        A.label("L_pc")
        A("s_lshr_b32 s3, s2, 3")
        A("s_lshl_b32 s3, s3, 11")
        A("v_lshrrev_b32 v2, 5, v0")
        A("v_lshl_add_u32 v2, v2, 7, s3")
        A("v_min_u32 v2, L_end-L_pc, v2")
        A("v_and_b32 v2, 0xfffffffc, v2")
        A("global_load_dword v255, v2, s[4:5]")
    if TS:
        A("s_memrealtime s[96:97]")
    if cfg.enc:
        A("s_memrealtime s[96:97]")
        if cfg.enc == "none":
            A("s_memrealtime s[94:95]")
        if cfg.encc:
            A("s_memtime s[92:93]")

    def enc(p):
        if cfg.enc == p:
            A("s_memrealtime s[94:95]" if not cfg.encc else "s_memtime s[94:95]")
    stamp()
    A("v_and_b32 v1, 63, v0")
    A("v_lshrrev_b32 v2, 6, v0")
    A(f"s_and_b32 s{sJ}, s2, 7")
    A(f"v_readfirstlane_b32 s{sWV}, v2")
    A(f"s_lshr_b32 s{sR}, s2, 3")
    A(f"s_cmp_lt_u32 s{sR}, 8")
    A("s_cbranch_scc1 L_helper")
    A(f"s_sub_u32 s{sR}, s{sR}, 8")
    A(f"s_mul_i32 s{sMT}, s{sR}, 21846")
    A(f"s_lshr_b32 s{sMT}, s{sMT}, 16")
    A(f"s_mul_i32 s{sT0}, s{sMT}, 3")
    A(f"s_sub_u32 s{sI}, s{sR}, s{sT0}")
    A(f"s_mul_i32 s{sWK}, s{sJ}, 24")
    A(f"s_add_u32 s{sWK}, s{sWK}, s{sR}")
    ROT = [int(c) for c in cfg.rot]
    ROTTAB = sum(r << (4 * m) for m, r in enumerate(ROT))
    sROT, sLO, sHI = 10, 11, 12
    if any(ROT):
        A(f"s_lshl_b32 s{sROT}, s{sMT}, 2")
        A(f"s_lshr_b32 s{sROT}, {ROTTAB}, s{sROT}")
        A(f"s_and_b32 s{sROT}, s{sROT}, 15")

    def rot_setup(sbase, stride):
        if any(ROT):
            A(f"s_mul_i32 s{sLO}, s{sROT}, {stride}")
            A(f"s_add_u32 s{sLO}, s{sLO}, s{sbase}")
            A(f"s_sub_u32 s{sHI}, s{sLO}, {9*stride}")

    def rot_addr(dst, sbase, t, stride, extra):
        if any(ROT):
            if t + max(ROT) < 9:
                A(f"s_add_u32 s{dst}, s{sLO}, {t*stride + extra}")
            else:
                A(f"s_cmp_lt_u32 s{sROT}, {9-t}")
                A(f"s_cselect_b32 s{dst}, s{sLO}, s{sHI}")
                A(f"s_add_u32 s{dst}, s{dst}, {t*stride + extra}")
        else:
            A(f"s_add_u32 s{dst}, s{sbase}, {t*stride + extra}")
    A(f"s_cmp_lt_u32 s{sWV}, 4")
    A("s_cbranch_scc1 L_compute")
    A(f"s_cmp_eq_u32 s{sWV}, 6")
    A("s_cbranch_scc1 L_xh")
    A(f"s_cmp_eq_u32 s{sWV}, 7")
    A("s_cbranch_scc1 L_h2")
    ts_base = tsn[0]

    def loader_stream(kinds, per_block, issue_fn, setup_fn, cap, group=False, validate=None, before_bar=None, role=None):
        mine = [blocks[nm] for nm in order if blocks[nm]["kind"] in kinds]
        outstanding, pend = [], list(mine)
        nb = lambda nm: blocks[nm]["n"] if blocks[nm]["kind"] == "extra" else (per_block(blocks[nm]) if callable(per_block) else per_block)
        cnt = lambda lst: sum(nb(x) for x in lst)

        def ok(b, q):
            if b["free"] + 2 > q:
                return False
            if b["kind"] in ("H1", "H2") and q < min(hfetch[b["lk"]], b["need"] - 1):
                return False
            return True

        def issue_upto(q, ahead, cap):
            n = 0
            lim = cum[q] + ahead if q >= 0 else ahead
            while pend and ok(pend[0], q):
                must = pend[0]["need"] <= q + 1 + (cfg.vpipe if pend[0]["kind"] in ("H1", "H2") else 0) or pend[0]["pos"] < lim
                if not must and n >= cap:
                    break
                grp = [pend.pop(0)]
                while group and pend and ok(pend[0], q) and pend[0]["need"] == grp[0]["need"] and len(grp) < 3 \
                        and (pend[0]["pos"] < lim or n + len(grp) < cap or pend[0]["need"] <= q + 1):
                    grp.append(pend.pop(0))
                need_n = sum(nb(x["name"]) for x in grp)
                if cnt(outstanding) + need_n > 63:
                    while cnt(outstanding) + need_n > 63:
                        del outstanding[0]
                    A(f"s_waitcnt vmcnt({cnt(outstanding)})")
                issue_fn(grp if group else grp[0])
                if cfg.verbose:
                    print(f"   after B{q}: " + " ".join(x["name"] for x in grp), file=sys.stderr)
                outstanding.extend(x["name"] for x in grp)
                n += len(grp)

        issue_upto(-1, cfg.first, 0)
        if cfg.ts0:
            stamp()
        if role == "w":
            enc("iss")
        A.tail(role)
        pr = cfg.priow if role == "w" else cfg.prioh
        if pr:
            A(f"s_setprio {pr}")
        setup_fn()
        issue_upto(-1, cfg.ahead0, 0)
        for q in range(NQ):
            assert not any(b["need"] <= q for b in pend), (q, pend[0])
            def wait_for(b):
                if b["name"] in outstanding:
                    idx = max(i for i, nm in enumerate(outstanding) if blocks[nm]["need"] <= q) if validate is None \
                        else outstanding.index(b["name"])
                    del outstanding[:idx + 1]
                    A(f"s_waitcnt vmcnt({cnt(outstanding)})")
            hs = []
            for b in mine:
                if b["need"] == q:
                    if validate is not None and b["kind"] != "X":
                        hs.append(b)
                    else:
                        wait_for(b)
            if validate is not None and cfg.vpipe:
                nxt = [b for b in mine if b["need"] == q + 1 and b["kind"] != "X" and b not in pend]
                if hs or nxt:
                    validate(hs, wait_for, nxt)
            elif hs:
                validate(hs, wait_for)
            if before_bar is not None:
                ex = before_bar(q)
                if ex:
                    nm = f"extra{A.uid()}"
                    blocks[nm] = dict(name=nm, kind="extra", n=ex, need=99)
                    outstanding.append(nm)
            if q in cfg.tsq:
                stamp()
            A("s_barrier")
            if role == "w":
                enc(f"B{q}")
            if q in cfg.pause:
                issue_upto(q, 0, 0)
            else:
                issue_upto(q, cfg.ahead if q < n_g1 or cfg.ahead2 < 0 else cfg.ahead2, 99 if q in cfg.burst else (cap if q >= cfg.capfrom else 0))
        assert not pend

    vRA, vRO, vRB, vRC, vRD, vRT, vRX, vRZ, vRG = 64, 65, 66, 72, 80, 112, 116, 117, 120
    sRI, sRO, sC = 60, 61, 13

    def vr(r, W):
        return f"v{r}" if W == 1 else f"v[{r}:{r+W-1}]"

    def dw(W):
        return "dword" if W == 1 else f"dwordx{W}"

    def red_pre(W):
        if W == 2:
            A(f"s_sub_u32 s{sC}, s{sWV}, 4")
            A(f"v_lshlrev_b32 v{vRA}, 3, v1")
            A(f"s_lshl_b32 s{sRO}, s{sC}, 6")
            A(f"s_lshr_b32 s{sRI}, s{sC}, 1")
            A(f"s_mul_i32 s{sRI}, s{sRI}, {SL}")
            A(f"s_and_b32 s{sT1}, s{sC}, 1")
            A(f"s_lshl_b32 s{sT1}, s{sT1}, 9")
            A(f"s_add_u32 s{sRI}, s{sRI}, s{sT1}")
            A(f"v_lshrrev_b32 v{vRT}, 4, v1")
            A(f"v_and_b32 v{vRT+1}, 1, v1")
            A(f"v_lshlrev_b32 v{vRT+1}, 3, v{vRT+1}")
            A(f"v_lshl_add_u32 v{vRT}, v{vRT}, 4, v{vRT+1}")
            A(f"v_bfe_u32 v{vRT+2}, v1, 1, 3")
            A(f"v_and_b32 v{vRT+3}, 7, v1")
            A(f"v_lshlrev_b32 v{vRT+3}, 2, v{vRT+3}")
        else:
            A(f"s_add_u32 s{sC}, s{sWV}, 8")
            A(f"v_lshlrev_b32 v{vRA}, 2, v1")
            A(f"s_lshl_b32 s{sRO}, s{sC}, 5")
            A(f"s_lshl_b32 s{sRI}, s{sWV}, 8")
            A(f"s_add_u32 s{sRI}, s{sRI}, {2*SL}")
            A(f"v_lshrrev_b32 v{vRT}, 5, v1")
            A(f"v_and_b32 v{vRT+1}, 3, v1")
            A(f"v_lshlrev_b32 v{vRT+1}, 2, v{vRT+1}")
            A(f"v_lshl_add_u32 v{vRT}, v{vRT}, 4, v{vRT+1}")
            A(f"v_bfe_u32 v{vRT+2}, v1, 2, 3")
            A(f"v_and_b32 v{vRT+3}, 15, v1")
            A(f"v_lshlrev_b32 v{vRT+3}, 1, v{vRT+3}")
        A(f"s_mul_i32 s{sT1}, s{sI}, 384")
        A(f"s_add_u32 s{sRO}, s{sRO}, s{sT1}")
        if W == 2:
            srd(SRD2, sB2, 1152)
            A(f"buffer_load_{dw(W)} {vr(vRB, W)}, v{vRT}, s[{SRD2}:{SRD2+3}], s{sRO} offen")
        else:
            A(f"v_mov_b32 v{vRB}, v249")
        A(f"s_lshl_b32 s{sT1}, s{sJ}, 3")
        A(f"s_lshl_b32 s{sT3}, s{sMT}, 6")
        A(f"s_add_u32 s{sT1}, s{sT1}, s{sT3}")
        A(f"s_mul_i32 s{sT1}, s{sT1}, 1152")
        A(f"s_add_u32 s{sRO}, s{sRO}, s{sT1}")
        A(f"v_mul_u32_u24 v{vRT+2}, 1152, v{vRT+2}")
        A(f"v_add_u32 v{vRO}, v{vRT}, v{vRT+2}")
        A(f"s_mul_i32 s{sT1}, s{sR}, {SR}")
        A(f"s_add_u32 s{sRI}, s{sRI}, s{sT1}")
        if cfg.iside >= 0:
            jbase(sT1, sJ, cfg.iside, sT3)
        else:
            A(f"s_mul_i32 s{sT1}, s{sJ}, {SD}")
        A(f"s_add_u32 s{sRI}, s{sRI}, s{sT1}")
        A(f"s_add_u32 s{sRI}, s{sRI}, {WS_IN}")
        slot_add(sRI)
        A(f"v_mov_b32 v{vRZ}, 0")
        A(f"v_lshrrev_b32 v{vRT+3}, v{vRT+3}, s{sTAG+1}")
        for k in range(W):
            A(f"v_bfe_u32 v{vRG+k}, v{vRT+3}, {2*k}, 2")
            A(f"v_mul_u32_u24 v{vRG+k}, 0x8001, v{vRG+k}")
        A(f"v_mov_b32 v{vRG+4}, 0x10001")
        A(f"v_mov_b32 v{vRG+5}, 0xffff0000")
        return 1

    def red_init(W):
        for k in range(W):
            A(f"v_lshlrev_b32 v{vRC+2*k}, 16, v{vRB+k}")
            A(f"v_and_b32 v{vRC+1+2*k}, v{vRG+5}, v{vRB+k}")

    def bb_w(q):
        if q == 2:
            epoch_fin()
        if q == cfg.rpq:
            return red_pre(2)
        if q == cfg.rpq + 3:
            red_init(2)

    A.head("w")
    sHW = sT5
    A(f"s_sub_u32 s{sHW}, s{sWV}, 4")
    A("v_lshrrev_b32 v2, 3, v1")
    A("v_and_b32 v3, 7, v1")
    A("v_bfe_u32 v4, v1, 4, 1")
    A("v_lshlrev_b32 v4, 2, v4")
    A("v_xor_b32 v3, v3, v4")
    A("v_lshlrev_b32 v3, 4, v3")
    A("v_lshrrev_b32 v4, 2, v2")
    A("v_and_b32 v5, 3, v2")
    A("v_lshl_add_u32 v4, v4, 3, v5")
    A(f"s_lshl_b32 s{sT0}, s{sHW}, 5")
    A(f"v_add_u32 v4, s{sT0}, v4")
    A("v_mul_u32_u24 v4, 9216, v4")
    A("v_add_u32 v4, v4, v3")
    for c in range(1, 4):
        A(f"v_add_u32 v{4+c}, {(16*(c>>1)+4*(c&1))*9216 - 1024*c}, v4")
    sLW, sC1 = sT4, 38
    A(f"s_lshl_b32 s{sLW}, s{sHW}, 12")
    A(f"s_mul_i32 s{sC1}, s{sJ}, 1152")
    A(f"s_mul_i32 s{sT1}, s{sI}, 384")
    A(f"s_add_u32 s{sC1}, s{sC1}, s{sT1}")
    rot_setup(sC1, 64*9216)
    if cfg.wt:
        A("v_and_b32 v12, 7, v1")
        A("v_lshrrev_b32 v13, 5, v1")
        A("v_lshl_add_u32 v12, v13, 6, v12")
        A("v_mul_u32_u24 v12, 9216, v12")
        A("v_bfe_u32 v13, v1, 3, 2")
        A("v_lshl_add_u32 v12, v13, 7, v12")
        A(f"s_lshl_b32 s{sT0}, s{sHW}, 4")
        A(f"s_add_u32 s{sT0}, s{sT0}, s{sMT}")
        A(f"s_mul_i32 s{sT0}, s{sT0}, {8*9216}")
        A(f"s_add_u32 s{sT0}, s{sT0}, s{sC1}")
        msk = [sum(0xffffff << (32 * h) for h in range(2) if 2 * w + h < cfg.wt) for w in range(2)]
        A(f"s_mov_b32 exec_lo, {msk[0] & 0xffffffff}")
        A(f"s_mov_b32 exec_hi, {msk[0] >> 32}")
        if msk[1] != msk[0]:
            A(f"s_cmp_eq_u32 s{sHW}, 0")
            A(f"s_cselect_b32 exec_lo, exec_lo, {(msk[1] & 0xffffffff) or 1}")
            A(f"s_cselect_b32 exec_hi, exec_hi, {msk[1] >> 32}")
    A("s_waitcnt lgkmcnt(0)")
    if cfg.ts0:
        stamp()
    srd(SRD0, sW1, 5308416)
    if cfg.wt:
        A(f"buffer_load_dword v255, v12, s[{SRD0}:{SRD0+3}], s{sT0} offen")
        A("s_mov_b64 exec, -1")
    sV = [62, 63, 59]

    def w2_setup():
        epoch_load(sMT)
        A(f"s_lshl_b32 s{sT0}, s{sHW}, 5")
        A(f"v_add_u32 v8, s{sT0}, v2")
        A("v_mul_u32_u24 v8, 1152, v8")
        A("v_add_u32 v8, v8, v3")
        for c in range(1, 4):
            A(f"v_add_u32 v{8+c}, {8*c*1152 - 1024*c}, v8")
        A(f"s_mul_i32 s39, s{sJ}, {576*1152}")
        A(f"s_mul_i32 s{sT0}, s{sI}, 384")
        A(f"s_add_u32 s39, s39, s{sT0}")
        for d in range(3):
            mod3add(sT1, d, sT2)
            A(f"s_mul_i32 s{sT1}, s{sT1}, {192*1152}")
            A(f"s_add_u32 s{sV[d]}, s39, s{sT1}")
        srd(SRD1, sW2, 5308416)

    def issue_w(grp):
        for b in grp:
            A(f"s_add_u32 m0, s{sLW}, {b['slot']*8192}")
            if b["kind"] == "W1":
                rot_addr(sT0, sC1, b['t'], 64*9216, 128*b['l'])
                vb, sr = 4, SRD0
            else:
                A(f"s_add_u32 s{sT0}, s{sV[b['d']]}, {64*b['lk']*1152 + 128*b['l']}")
                vb, sr = 8, SRD1
            for c in range(4):
                A(f"buffer_load_dwordx4 v{vb+c}, s[{sr}:{sr+3}], s{sT0} offen offset:{1024*c} {cfg.wfl} lds")

    loader_stream(("W1", "W2"), 4, issue_w, w2_setup, cfg.capw, group=True,
                  before_bar=bb_w, role="w")
    A("s_branch L_reduce")
    ts_max = tsn[0]

    sXB = 38
    sH = {1: 39, 2: 59}
    HALF = [0]

    def h_setup(half):
        A("v_lshlrev_b32 v12, 4, v1")
        A("v_add_u32 v13, 0x10000, v12")
        A("v_add_u32 v14, 0x20000, v12")
        A(f"s_sub_u32 s{sT0}, s{sWK if cfg.hside < 0 else sR}, s{sI}")
        if cfg.hside >= 0:
            jbase(sT3, sJ, cfg.hside, sT2)
        for d in (1, 2):
            mod3add(sT1, d, sT2)
            A(f"s_add_u32 s{sT1}, s{sT1}, s{sT0}")
            A(f"s_mul_i32 s{sH[d]}, s{sT1}, {HW}")
            if cfg.hside >= 0:
                A(f"s_add_u32 s{sH[d]}, s{sH[d]}, s{sT3}")
        srd(SRD1, sWS, 0x10000000)
        epoch_load(sMT)

    def issue_xh(b):
        for h in (range(2) if b["kind"] == "X" else HALF):
            A(f"s_mov_b32 m0, {b['slot']*8192 + 4096*h}")
            if b["kind"] == "X":
                rot_addr(sT0, sXB, b['t'], 128, 32*1152*h)
                for c in range(4):
                    A(f"buffer_load_dwordx4 v{8+c}, s[{SRD0}:{SRD0+3}], s{sT0} offen offset:{1024*c} lds")
            else:
                A(f"s_add_u32 s{sT0}, s{sH[b['d']]}, {WS_H + HL*b['lk'] + 4096*h}")
                for c in range(4):
                    A(f"buffer_load_dwordx4 v12, s[{SRD1}:{SRD1+3}], s{sT0} offen offset:{1024*c} {cfg.hlf} lds")

    retry_code = []

    def validate(hs, wait_for):
        k = A.uid()

        def rd(i):
            addr = hs[i]["slot"] * 8192 + 4096 * HALF[0]
            for c in range(4):
                r = 128 + 16 * i + 4 * c
                A(f"ds_read_b128 v[{r}:{r+3}], v{12 + (addr >> 16)} offset:{(addr & 0xffff) + 1024*c}")

        def valu(i, later):
            for c in range(4):
                r = 128 + 16 * i + 4 * c
                A(f"s_waitcnt lgkmcnt({3-c+later})")
                for kk in range(4):
                    ac = 16 + ((kk + 2) & 3)
                    if i == 0 and c == 0:
                        A(f"v_xor_b32 v{ac}, v{r+kk}, v{25+kk}")
                    else:
                        A(f"v_bitop3_b32 v{ac}, v{ac}, v{r+kk}, v{25+kk} bitop3:0xf6")
        A.label(f"L_v{k}")
        for i in range(len(hs)):
            wait_for(hs[i])
            rd(i)
            if i:
                valu(i - 1, 4)
        valu(len(hs) - 1, 0)
        A("v_or3_b32 v16, v16, v17, v18")
        A("v_bitop3_b32 v16, v16, v19, v24 bitop3:0xa8")
        A("v_cmp_ne_u32 vcc, 0, v16")
        A(f"s_cbranch_vccnz L_vr{k}")
        A.label(f"L_vd{k}")
        n0 = len(A.L)
        A.label(f"L_vr{k}")
        A(f"s_cmp_gt_u32 s{sCNT}, {SPIN_MAX}")
        A(f"s_cbranch_scc1 L_vd{k}")
        for b in hs:
            issue_xh(b)
        A(f"s_add_u32 s{sCNT}, s{sCNT}, 1")
        A("s_waitcnt vmcnt(0)")
        A(f"s_branch L_v{k}")
        retry_code.extend(A.L[n0:])
        del A.L[n0:]

    hreg, hread = {}, set()

    def validate2(hs, wait_for, nxt):
        k = A.uid()

        def rd(b):
            i = hreg.setdefault(b["name"], len(hreg))
            addr = b["slot"] * 8192 + 4096 * HALF[0]
            for c in range(4):
                r = 128 + 16 * i + 4 * c
                A(f"ds_read_b128 v[{r}:{r+3}], v{12 + (addr >> 16)} offset:{(addr & 0xffff) + 1024*c}")
            hread.add((HALF[0], b["name"]))

        def do_nxt():
            for b in nxt:
                wait_for(b)
                rd(b)
        unread = [b for b in hs if (HALF[0], b["name"]) not in hread]
        for b in unread:
            wait_for(b)
            rd(b)
        later = 0
        if unread and 4 * (len(unread) + len(nxt)) <= 15:
            do_nxt()
            later = 4 * len(nxt)
            nxt = []
        if hs:
            A.label(f"L_v{k}")
            A(f"s_waitcnt lgkmcnt({later})")
            for i, b in enumerate(hs):
                for c in range(4):
                    r = 128 + 16 * hreg[b["name"]] + 4 * c
                    for kk in range(4):
                        ac = 16 + ((kk + 2) & 3)
                        if i == 0 and c == 0:
                            A(f"v_xor_b32 v{ac}, v{r+kk}, v{25+kk}")
                        else:
                            A(f"v_bitop3_b32 v{ac}, v{ac}, v{r+kk}, v{25+kk} bitop3:0xf6")
            A("v_or3_b32 v16, v16, v17, v18")
            A("v_bitop3_b32 v16, v16, v19, v24 bitop3:0xa8")
            A("v_cmp_ne_u32 vcc, 0, v16")
            A(f"s_cbranch_vccnz L_vr{k}")
            A.label(f"L_vd{k}")
            n0 = len(A.L)
            A.label(f"L_vr{k}")
            A(f"s_cmp_gt_u32 s{sCNT}, {SPIN_MAX}")
            A(f"s_cbranch_scc1 L_vd{k}")
            for b in hs:
                issue_xh(b)
            A(f"s_add_u32 s{sCNT}, s{sCNT}, 1")
            A("s_waitcnt vmcnt(0) lgkmcnt(0)")
            for b in hs:
                rd(b)
            A("s_waitcnt lgkmcnt(0)")
            A(f"s_branch L_v{k}")
            retry_code.extend(A.L[n0:])
            del A.L[n0:]
        do_nxt()

    if cfg.vpipe:
        validate = validate2

    def flush_retry():
        A.L.extend(retry_code)
        retry_code.clear()

    def bb_tag(q):
        if q == 2:
            epoch_fin()
            slot_add(sH[1], sH[2])
            tag_regs(25, 16)
            A(f"v_mov_b32 v24, {0x10001 if cfg.hlsb else 0x80008000}")
            A(f"s_mov_b32 s{sCNT}, 0")
        if q == cfg.rpq:
            return red_pre(2)
        if q == cfg.rpq + 3:
            red_init(2)
        if q == 10 and cfg.probe:
            A(f"buffer_load_dword v255, v{vRZ}, s[{SRD2}:{SRD2+3}], 0 offen")
            A("s_waitcnt vmcnt(0)")

    A.head("x")
    A.label("L_xh")
    tsn[0] = ts_base
    A("v_lshrrev_b32 v2, 3, v1")
    A("v_and_b32 v3, 7, v1")
    A("v_lshrrev_b32 v4, 4, v1")
    A("v_xor_b32 v3, v3, v4")
    A("v_lshlrev_b32 v3, 4, v3")
    A("v_mul_u32_u24 v4, 1152, v2")
    A("v_add_u32 v8, v4, v3")
    A("v_xor_b32 v5, 64, v8")
    A(f"v_add_u32 v9, {8*1152 - 1024}, v5")
    A(f"v_add_u32 v10, {16*1152 - 2048}, v8")
    A(f"v_add_u32 v11, {24*1152 - 3072}, v5")
    A(f"s_mul_i32 s{sXB}, s{sMT}, {64*1152}")
    rot_setup(sXB, 128)

    def x_touch_pre(st0):
        A(f"s_mul_i32 s{sT0}, s{sI}, 22")
        A("v_and_b32 v12, 31, v1")
        A(f"v_add_u32 v12, s{sT0}, v12")
        A("v_min_u32 v12, 63, v12")
        A("v_mul_u32_u24 v12, 1152, v12")
        A("v_lshrrev_b32 v13, 5, v1")
        A("v_lshl_add_u32 v12, v13, 7, v12")
        A("s_mov_b32 exec_lo, 0x3fffff")
        A(f"s_mov_b32 exec_hi, {0x3fffff if cfg.wt > st0 + 1 else 0}")

    def x_touch(st0):
        A(f"buffer_load_dword v255, v12, s[{SRD0}:{SRD0+3}], s{sXB} offen offset:{128*st0}")
        A("s_mov_b64 exec, -1")
    if cfg.wt:
        x_touch_pre(0)
    A("s_waitcnt lgkmcnt(0)")
    if cfg.ts0:
        stamp()
    srd(SRD0, sX, 589824)
    if cfg.wt:
        x_touch(0)
    nbx = lambda b: 8 if b["kind"] == "X" else 4
    loader_stream(("X", "H1", "H2"), nbx, issue_xh, lambda: h_setup(0), cfg.capx, validate=validate, before_bar=bb_tag, role="x")
    if TS:
        A(f"s_mov_b32 s{sTS+24}, s{sCNT}")
    A("s_branch L_reduce")
    flush_retry()
    ts_max = max(ts_max, tsn[0])

    A.head("h2")
    A.label("L_h2")
    tsn[0] = ts_base
    if cfg.wt > 2:
        A(f"s_mul_i32 s{sXB}, s{sMT}, {64*1152}")
        x_touch_pre(2)
    if cfg.xpre:
        A("v_lshlrev_b32 v2, 7, v1")
        A(f"s_mul_i32 s{sT0}, s{sWK}, 3072")
        A("s_mov_b64 exec, 0xffffff")
    A("s_waitcnt lgkmcnt(0)")
    if cfg.xpre:
        srd(SRD0, sX, 589824)
        A(f"buffer_load_dword v255, v2, s[{SRD0}:{SRD0+3}], s{sT0} offen")
        A("s_mov_b64 exec, -1")
    if cfg.wt > 2:
        srd(SRD0, sX, 589824)
        x_touch(2)
    srd(SRD1, sWS, 0x10000000)
    if cfg.hpre == 3:
        A("v_lshlrev_b32 v3, 7, v1")
        A(f"s_mul_i32 s{sT1}, s{sWK}, 24576")
        A(f"s_add_u32 s{sT1}, s{sT1}, {WS_H}")
        for c in range(3):
            A(f"buffer_load_dword v255, v3, s[{SRD1}:{SRD1+3}], s{sT1} offen")
            A(f"s_add_u32 s{sT1}, s{sT1}, 8192")

    def w7_touch():
        st = list(range(cfg.ta, cfg.ta + cfg.tn))
        srd(SRD0, sX, 589824)
        srd(SRD2, sW1, 5308416)
        A(f"s_mul_i32 s{sXB}, s{sMT}, {64*1152}")
        A(f"s_mul_i32 s{sT0}, s{sI}, 22")
        A("v_and_b32 v2, 31, v1")
        A(f"v_add_u32 v2, s{sT0}, v2")
        A("v_min_u32 v2, 63, v2")
        A("v_mul_u32_u24 v2, 1152, v2")
        A("v_lshrrev_b32 v4, 5, v1")
        A("v_lshl_add_u32 v2, v4, 7, v2")
        A("v_and_b32 v3, 7, v1")
        A("v_lshl_add_u32 v3, v4, 6, v3")
        A("v_mul_u32_u24 v3, 9216, v3")
        A("v_bfe_u32 v4, v1, 3, 2")
        A("v_lshl_add_u32 v3, v4, 7, v3")
        A(f"s_mul_i32 s{sT0}, s{sMT}, {8*9216}")
        A(f"s_mul_i32 s{sT1}, s{sJ}, 1152")
        A(f"s_add_u32 s{sT0}, s{sT0}, s{sT1}")
        A(f"s_mul_i32 s{sT1}, s{sI}, 384")
        A(f"s_add_u32 s{sT0}, s{sT0}, s{sT1}")
        for p in range(0, len(st), 2):
            two = p + 1 < len(st)
            A(f"s_add_u32 s{sT1}, s{sT0}, {st[p]*64*9216}")
            A("s_mov_b32 exec_lo, 0xffffff")
            A(f"s_mov_b32 exec_hi, {0xffffff if two else 0}")
            A(f"buffer_load_dword v255, v3, s[{SRD2}:{SRD2+3}], s{sT1} offen")
            A("s_mov_b32 exec_lo, 0x3fffff")
            A(f"s_mov_b32 exec_hi, {0x3fffff if two else 0}")
            A(f"buffer_load_dword v255, v2, s[{SRD0}:{SRD0+3}], s{sXB} offen offset:{128*st[p]}")
        A("s_mov_b64 exec, -1")
    if cfg.tn and cfg.tpos == 0:
        w7_touch()

    def bb_h2(q):
        if cfg.tn and cfg.tpos == 1 and q == 0:
            A("s_waitcnt lgkmcnt(0)")
            w7_touch()
        if cfg.tn and cfg.tpos >= 2 and q == cfg.tpos - 1:
            w7_touch()
        if cfg.tn and q == 7:
            A("s_waitcnt vmcnt(0)")
        if q == 2 and (cfg.hpre == 3 or cfg.wt > 2):
            A("s_waitcnt vmcnt(0)")
        if cfg.vt and q == 5:
            A(f"s_add_u32 s{sT0}, s{sI}, 1")
            A(f"s_mul_i32 s{sT0}, s{sT0}, 192")
            A(f"s_mul_i32 s{sT1}, s{sMT}, 48")
            A(f"s_add_u32 s{sT0}, s{sT0}, s{sT1}")
            A(f"s_cmp_ge_u32 s{sT0}, 576")
            A(f"s_cselect_b32 s{sT1}, 576, 0")
            A(f"s_sub_u32 s{sT0}, s{sT0}, s{sT1}")
            A(f"s_mul_i32 s{sT1}, s{sJ}, 576")
            A(f"s_add_u32 s{sT0}, s{sT0}, s{sT1}")
            A(f"s_mul_i32 s15, s{sT0}, 1152")
            A(f"s_mul_i32 s{sT1}, s{sI}, 384")
            A(f"s_add_u32 s15, s15, s{sT1}")
            A("v_mul_u32_u24 v5, 1152, v1")
            srd(SRD0, sW2, 5308416)
        ex = 0
        if cfg.vt and q == cfg.vtq:
            A("s_mov_b32 exec_hi, 0xffff")
            for l in range(3 - cfg.vt, 3):
                A(f"buffer_load_dword v255, v5, s[{SRD0}:{SRD0+3}], s15 offen offset:{128*l}")
            A("s_mov_b64 exec, -1")
            ex = cfg.vt
        return (bb_tag(q) or 0) + ex

    HALF[0] = 1
    loader_stream(("H1", "H2"), nbx, issue_xh, lambda: h_setup(1), cfg.capx, validate=validate, before_bar=bb_h2, role="h2")
    ts_max = max(ts_max, tsn[0])
    A("s_branch L_reduce")
    flush_retry()

    A.tail("red")
    sM, sQ = sT5, sT4
    sVC = 16

    def reduce_code(W, nbar):
        x = f"{W}"
        srd(SRD1, sWS, 0x10000000)
        A(f"s_mov_b32 s{sCNT}, 0")
        srd(SRD0, sOUT, 589824)
        if W == 1:
            red_pre(1)
            red_init(1)
            A(f"s_waitcnt vmcnt({cfg.rw1})")
            if cfg.rlate == 1:
                A("s_barrier")

        def ld(s_):
            A(f"s_add_u32 s{sT1}, s{sRI}, {SS*s_}")
            A(f"buffer_load_{dw(W)} {vr(vRD+W*s_, W)}, v{vRA}, s[{SRD1}:{SRD1+3}], s{sT1} offen {cfg.rfl}")
        if W == 2 and cfg.r0early and nbar:
            A(f"s_cmp_ge_u32 s{sC}, 2")
            A("s_cbranch_scc1 L_rlate")
            stamp()
            tsn[0] -= 1 if TS else 0
            for s_ in range(8):
                ld(s_)
            A("s_barrier")
            A("s_branch L_rfirst")
            A.label("L_rlate")
        for _ in range(nbar):
            A("s_barrier")
        stamp()
        enc("rbar")

        def chk_i(s_, dst, t):
            r = vRD + W * s_
            if W == 1:
                o = [f"v_bitop3_b32 v{t}, v{r}, v{vRG}, v{vRG+4} bitop3:0x28"]
            else:
                o = [f"v_xor_b32 v{t}, v{r}, v{vRG}"]
                for k in range(1, W):
                    o.append(f"v_bitop3_b32 v{t}, v{t}, v{r+k}, v{vRG+k} bitop3:0xf6")
                o.append(f"v_and_b32 v{t}, v{vRG+4}, v{t}")
            o.append(f"v_cmp_ne_u32 {dst}, 0, v{t}")
            return o

        def acc_i(s_, t0):
            r = vRD + W * s_
            o = []
            for k in range(W):
                t = t0 + 2 * k
                o.append(f"v_lshlrev_b32 v{t}, 16, v{r+k}")
                o.append(f"v_and_b32 v{t+1}, v{vRG+5}, v{r+k}")
            for k in range(W):
                t = t0 + 2 * k
                o.append(f"v_pk_add_f32 v[{vRC+2*k}:{vRC+1+2*k}], v[{vRC+2*k}:{vRC+1+2*k}], v[{t}:{t+1}]")
            return o

        def masked(sm, fn, tag):
            for g in range(2):
                A(f"s_and_b32 s{sT0}, s{sm}, {0xf << (4*g)}")
                A(f"s_cbranch_scc0 L_{tag}{x}g{g}")
                for s_ in range(4 * g, 4 * g + 4):
                    A(f"s_bitcmp0_b32 s{sm}, {s_}")
                    A(f"s_cbranch_scc1 L_{tag}{x}s{s_}")
                    fn(s_)
                    A.label(f"L_{tag}{x}s{s_}")
                A.label(f"L_{tag}{x}g{g}")

        for s_ in range(8):
            ld(s_)
        for _ in range(nbar, cfg.rnb if W != 1 else 0):
            A("s_barrier")
        if W == 1 and cfg.rlate == 2:
            A("s_barrier")
        if W == 2:
            A.label("L_rfirst")
        for s_ in range(8):
            A(f"s_waitcnt vmcnt({7-s_})")
            c = chk_i(s_, f"s[{sVC+2*s_}:{sVC+2*s_+1}]", vRX)
            a_ = acc_i(s_, vRT)
            while c or a_:
                if c:
                    A(c.pop(0))
                if a_:
                    A(a_.pop(0))
            if s_ >= 2:
                A(f"s_or_b64 vcc, {'s[16:17]' if s_ == 2 else 'vcc'}, s[{sVC+2*s_-2}:{sVC+2*s_-1}]")
        A(f"s_or_b64 vcc, vcc, s[{sVC+14}:{sVC+15}]")
        A(f"s_cbranch_scc0 L_rdone{x}")
        A(f"s_mov_b32 s{sM}, 0")
        for s_ in range(7, -1, -1):
            A(f"s_cmp_lg_u64 s[{sVC+2*s_}:{sVC+2*s_+1}], 0")
            A(f"s_addc_u32 s{sM}, s{sM}, s{sM}")
        A(f"s_xor_b32 s{sQ}, s{sM}, 0xff")
        red_init(W)
        A.label(f"L_rtop{x}")
        masked(sM, ld, "rl")
        masked(sQ, lambda s_: [A(t) for t in acc_i(s_, vRT)], "ra")
        A(f"s_add_u32 s{sCNT}, s{sCNT}, 1")
        A(f"s_mov_b32 s{sQ}, s{sM}")
        A(f"s_cmp_gt_u32 s{sCNT}, {SPIN_MAX}")
        A(f"s_cbranch_scc1 L_rdone{x}")
        A("s_waitcnt vmcnt(0)")

        def chk2(s_):
            for t in chk_i(s_, "vcc", vRX):
                A(t)
            A(f"s_cbranch_vccnz L_rc{x}s{s_}")
            A(f"s_bitset0_b32 s{sM}, {s_}")
            for t in acc_i(s_, vRT):
                A(t)
        masked(sQ, chk2, "rc")
        A(f"s_mov_b32 s{sQ}, 0")
        A(f"s_cmp_lg_u32 s{sM}, 0")
        A(f"s_cbranch_scc1 L_rtop{x}")
        A.label(f"L_rdone{x}")
        stamp()
        enc("rdone")
        for k in range(W):
            A(f"v_cvt_pk_bf16_f32 v{vRC+k}, v{vRC+2*k}, v{vRC+1+2*k}")
        if cfg.owide:
            A("s_nop 1")
            if W == 1:
                for k in range(1, 4):
                    A(f"v_mov_b32_dpp v{vRC+k}, v{vRC} quad_perm:[{k},{k},{k},{k}] row_mask:0xf bank_mask:0xf")
                m = 0x11111111
            else:
                for k in range(2):
                    A(f"v_mov_b32_dpp v{vRC+2+k}, v{vRC+k} quad_perm:[1,1,3,3] row_mask:0xf bank_mask:0xf")
                m = 0x55555555
            A(f"s_mov_b32 exec_lo, {m}")
            A(f"s_mov_b32 exec_hi, {m}")
            A(f"buffer_store_dwordx4 v[{vRC}:{vRC+3}], v{vRO}, s[{SRD0}:{SRD0+3}], s{sRO} offen {cfg.ofl if W > 1 else cfg.ofl1}")
            A("s_mov_b64 exec, -1")
        else:
            A(f"buffer_store_{dw(W)} {vr(vRC, W)}, v{vRO}, s[{SRD0}:{SRD0+3}], s{sRO} offen {cfg.ofl if W > 1 else cfg.ofl1}")
        if TS:
            A(f"s_mov_b32 s{sWS}, s{SRD1}")
            A(f"s_mov_b32 s{sWS+1}, s{SRD1+1}")

    A.label("L_reduce")
    tsn[0] = ts_max
    reduce_code(2, cfg.rb2)
    A(f"s_or_b32 s{sT0}, s{sJ}, s{sI}")
    A(f"s_or_b32 s{sT0}, s{sT0}, s{sC}")
    A(f"s_cmp_lg_u32 s{sT0}, 0")
    A("s_cbranch_scc1 L_noep")
    A(f"v_mov_b32 v16, s{sTAG}")
    A(f"s_lshl_b32 s{sT0}, s{sMT}, 7")
    A(f"s_add_u32 s{sT0}, s{sT0}, {WS_EP}")
    A("s_mov_b64 exec, 1")
    A(f"buffer_store_dword v16, v{vRZ}, s[{SRD1}:{SRD1+3}], s{sT0} offen sc1")
    A("s_mov_b64 exec, -1")
    A.label("L_noep")
    if cfg.enc:
        if cfg.enc == "end":
            A("s_waitcnt vmcnt(0)")
            enc("end")
        if cfg.encw >= 0:
            A(f"s_cmp_lg_u32 s{sWV}, {cfg.encw}")
            A("s_cbranch_scc1 L_end")
        A("s_waitcnt lgkmcnt(0)")
        if cfg.enc == "ptr":
            A(f"s_lshr_b32 s94, s{SRD1}, {cfg.encm}")
            A("s_and_b32 s94, s94, 31")
            A("s_mul_i32 s94, s94, 300")
        elif cfg.enc == "lat":
            A("s_waitcnt vmcnt(0)")
            A(f"s_lshl_b32 s90, s{sR}, 7")
            A(f"s_add_u32 s90, s90, {cfg.encm}")
            A("s_memtime s[84:85]")
            A("s_waitcnt lgkmcnt(0)")
            A(f"buffer_load_dword v2, v{vRZ}, s[{SRD1}:{SRD1+3}], s90 offen sc1")
            A("s_waitcnt vmcnt(0)")
            A("s_memtime s[86:87]")
            A("s_waitcnt lgkmcnt(0)")
            A("s_sub_u32 s94, s86, s84")
            A("s_lshl_b32 s94, s94, 2")
            A(f"s_cmp_eq_u32 s2, 64")
            A("s_cselect_b32 s94, s94, 0")
        elif cfg.enc == "xcc":
            A("s_getreg_b32 s94, hwreg(HW_REG_XCC_ID)")
            A("s_and_b32 s94, s94, 15")
            A("s_mul_i32 s94, s94, 500")
            A(f"s_cmp_eq_u32 s{sJ}, {cfg.encm}")
            A("s_cselect_b32 s94, s94, 0")
        elif cfg.encc:
            A("s_sub_u32 s94, s94, s92")
            A("s_lshr_b32 s94, s94, 1")
        else:
            A("s_sub_u32 s94, s94, s96")
            A(f"s_mul_i32 s94, s94, {cfg.encm}")
        A("s_add_u32 s94, s94, 3000")
        A.label("L_dly")
        A("s_memrealtime s[98:99]")
        A("s_waitcnt lgkmcnt(0)")
        A("s_sub_u32 s98, s98, s96")
        A("s_cmp_lt_u32 s98, s94")
        A("s_cbranch_scc1 L_dly")
    if TS:
        A("s_waitcnt vmcnt(0)")
        stamp()
        A("s_memrealtime s[98:99]")
        A("s_waitcnt lgkmcnt(0)")
        A(f"s_mov_b32 s{sTS+26}, s96"); A(f"s_mov_b32 s{sTS+28}, s98"); A(f"s_mov_b32 s{sTS+30}, s{sCNT}")
        assert tsn[0] <= 12
        tsn[0] = 16
        stamp_flush()
    A("s_branch L_end")

    A.head("c")
    A.label("L_compute")
    tsn[0] = ts_base
    vACC, vAB, vXB, vT = 16, 64, 96, 240
    nAB = D + 1
    vA, vBX, vBH, vHW = [2, 3, 4], [5, 6, 7, 8], [9, 10, 11], [12, 13, 14]
    vTG, vL16 = vT + 11, vT + 10
    assert vAB + 4 * nAB <= vXB
    sA, sBq = sT4, sT5
    A(f"s_and_b32 s{sA}, s{sWV}, 1")
    A(f"s_lshr_b32 s{sBq}, s{sWV}, 1")
    A(f"v_lshrrev_b32 v{vT}, 5, v1")
    A(f"s_mul_i32 s60, s{sJ}, 1152")
    A(f"s_mul_i32 s{sT1}, s{sI}, 384")
    A(f"s_add_u32 s60, s60, s{sT1}")
    A(f"s_lshl_b32 s{sT1}, s{sBq}, 6")
    A(f"s_add_u32 s61, s60, s{sT1}")
    A(f"v_lshlrev_b32 v{vT+4}, 3, v{vT}")
    if cfg.sa:
        A(f"s_add_u32 s{sT3}, s{sWV}, 1")
        A(f"v_and_b32 v{vT+5}, 7, v1")
        A(f"v_mul_u32_u24 v{vT+5}, 9216, v{vT+5}")
        A(f"v_lshrrev_b32 v{vT+6}, 3, v1")
        A(f"v_min_u32 v{vT+6}, 2, v{vT+6}")
        A(f"v_lshl_add_u32 v{vT+5}, v{vT+6}, 7, v{vT+5}")
        A(f"s_lshl_b32 s{sT1}, s{sT3}, 3")
        A(f"s_add_u32 s{sT1}, s{sT1}, s{sMT}")
        A(f"s_mul_i32 s{sT1}, s{sT1}, {8*9216}")
        A(f"s_add_u32 s{sT1}, s{sT1}, s60")
        A(f"s_mul_i32 s{sT2}, s{sI}, 22")
        A(f"v_min_u32 v{vT+6}, 21, v1")
        A(f"v_add_u32 v{vT+6}, s{sT2}, v{vT+6}")
        A(f"v_min_u32 v{vT+6}, 63, v{vT+6}")
        A(f"v_mul_u32_u24 v{vT+6}, 1152, v{vT+6}")
        A(f"s_mul_i32 s{sT2}, s{sMT}, {64*1152}")
        A(f"s_lshl_b32 s{sT3}, s{sT3}, 7")
        A(f"s_add_u32 s{sT2}, s{sT2}, s{sT3}")
    A("s_waitcnt lgkmcnt(0)")
    srd(SRD0, sB1, 9216)
    for l in range(3):
        for g in range(4):
            r = vXB + 2 * (4 * l + g)
            A(f"buffer_load_dwordx2 v[{r}:{r+1}], v{vT+4}, s[{SRD0}:{SRD0+3}], s61 offen offset:{128*l+16*g}")
    if cfg.sa:
        srd(SRD1, sW1, 5308416)
        srd(SRD2, sX, 589824)
        A(f"s_cmp_ge_u32 s{sWV}, {cfg.sa}")
        A("s_cbranch_scc1 L_tdone")
        A(f"buffer_load_dword v255, v{vT+5}, s[{SRD1}:{SRD1+3}], s{sT1} offen {cfg.tfl}")
        A(f"buffer_load_dword v255, v{vT+6}, s[{SRD2}:{SRD2+3}], s{sT2} offen")
        A.label("L_tdone")
    epoch_load(sMT)
    A.tail("c")
    srd(SRD2, sB2, 1152)
    A(f"v_and_b32 v{vT+1}, 3, v1")
    A(f"v_lshlrev_b32 v{vT+1}, 2, v{vT+1}")
    A(f"v_lshl_add_u32 v{vT+1}, v{vT}, 4, v{vT+1}")
    A(f"s_mul_i32 s{sT1}, s{sI}, 384")
    A(f"s_lshl_b32 s{sT0}, s{sWV}, 5")
    A(f"s_add_u32 s{sT1}, s{sT1}, s{sT0}")
    A(f"buffer_load_dword v249, v{vT+1}, s[{SRD2}:{SRD2+3}], s{sT1} offen offset:256")
    srd(SRD1, sWS, 0x10000000)
    A(f"v_bfe_u32 v{vT+1}, v1, 2, 2")
    A(f"v_lshl_add_u32 v{vT+2}, v{vT}, 2, v{vT+1}")
    A(f"v_lshlrev_b32 v{vT+2}, 7, v{vT+2}")
    A(f"v_bfe_u32 v{vT+3}, v1, 3, 1")
    A(f"v_xor_b32 v{vT+3}, s{sBq}, v{vT+3}")
    A(f"v_lshl_add_u32 v{vT+2}, v{vT+3}, 6, v{vT+2}")
    A(f"v_bfe_u32 v{vT+3}, v1, 4, 1")
    A(f"v_lshl_add_u32 v{vT+2}, v{vT+3}, 5, v{vT+2}")
    A(f"v_and_b32 v{vT+3}, 3, v1")
    A(f"v_lshl_add_u32 v{vA[0]}, v{vT+3}, 3, v{vT+2}")
    A(f"v_add_u32 v{vA[1]}, 0x10000, v{vA[0]}")
    A(f"v_add_u32 v{vA[2]}, 0x20000, v{vA[0]}")
    A(f"v_and_b32 v{vT+1}, 31, v1")
    A(f"v_bfe_u32 v{vT+2}, v1, 1, 3")
    A(f"v_xor_b32 v{vT+2}, v{vT}, v{vT+2}")
    A(f"v_lshlrev_b32 v{vT+2}, 4, v{vT+2}")
    A(f"v_lshl_add_u32 v{vT+2}, v{vT+1}, 7, v{vT+2}")
    A(f"s_lshl_b32 s{sT0}, s{sA}, 12")
    A(f"s_add_u32 s{sT1}, s{sT0}, 0x20000")
    A(f"v_add_u32 v{vBX[0]}, s{sT1}, v{vT+2}")
    for sp in range(1, 4):
        A(f"v_xor_b32 v{vBX[sp]}, {32*sp}, v{vBX[0]}")
    A(f"v_lshl_add_u32 v{vBH[0]}, v1, 4, s{sT0}")
    A(f"v_add_u32 v{vBH[1]}, 0x10000, v{vBH[0]}")
    A(f"v_add_u32 v{vBH[2]}, 0x20000, v{vBH[0]}")
    A(f"s_lshl_b32 s{sT1}, s{sBq}, 11")
    for k in range(3):
        A(f"v_add_u32 v{vHW[k]}, s{sT1}, v{vBH[k]}")
    sI0 = 38
    sMS, sML, sMC = 39, 63, 59
    sHS = [60, 61, 62]
    if cfg.iside >= 0:
        A(f"s_xor_b32 s{sI0}, s{sA}, {cfg.iside}")
        A(f"s_lshl_b32 s{sI0}, s{sI0}, 13")
    else:
        A(f"s_mul_i32 s{sI0}, s{sA}, {4*SD}")
    A(f"s_mul_i32 s{sT1}, s{sR}, {SR}")
    A(f"s_add_u32 s{sI0}, s{sI0}, s{sT1}")
    A(f"s_mul_i32 s{sT1}, s{sJ}, {SS}")
    A(f"s_add_u32 s{sI0}, s{sI0}, s{sT1}")
    A(f"s_add_u32 s{sI0}, s{sI0}, {WS_IN}")
    A(f"s_lshl_b32 s{sT1}, s{sBq}, 9")
    A(f"s_add_u32 s{sI0}, s{sI0}, s{sT1}")
    A(f"v_bfe_u32 v{vT+1}, v1, 3, 2")
    A(f"v_mul_u32_u24 v{vT+1}, {SD}, v{vT+1}")
    A(f"v_and_b32 v{vT+2}, 7, v1")
    A(f"v_lshl_add_u32 v{vT+1}, v{vT+2}, 4, v{vT+1}")
    A(f"v_lshl_add_u32 v{vL16}, v{vT}, 7, v{vT+1}")
    A(f"s_mov_b32 s{sMS}, 0x80008000")
    A(f"s_mov_b32 s{sML}, 0x00010001")
    A(f"s_mov_b32 s{sMC}, 0x7fff7fff")
    A(f"s_mul_i32 s{sHS[0]}, s{sWK if cfg.hside < 0 else sR}, {HW}")
    if cfg.hside >= 0:
        jbase(sT1, sJ, cfg.hside, sT3)
        A(f"s_add_u32 s{sHS[0]}, s{sHS[0]}, s{sT1}")
    if WS_H:
        A(f"s_add_u32 s{sHS[0]}, s{sHS[0]}, {WS_H}")
    A(f"s_add_u32 s{sHS[1]}, s{sHS[0]}, {HL}")
    A(f"s_add_u32 s{sHS[2]}, s{sHS[0]}, {2*HL}")
    def dummy(n, tag):
        if not n:
            return
        for k in range(8):
            A(f"v_mul_u32_u24 v{160+k}, {0x9e3779 + 77*k}, v0")
            A(f"v_and_b32 v{160+k}, 0x3fff3fff, v{160+k}")
        A(f"s_mov_b32 s15, {n // 4}")
        A.label(f"L_dum{tag}")
        for k in range(4):
            A(f"v_mfma_f32_32x32x16_bf16 v[{176+16*k}:{191+16*k}], v[{160+4*(k&1)}:{163+4*(k&1)}], v[{160+4*(k>>1)}:{163+4*(k>>1)}], 0")
        A("s_sub_u32 s15, s15, 1")
        A("s_cmp_lg_u32 s15, 0")
        A(f"s_cbranch_scc1 L_dum{tag}")
    dummy(cfg.dum1, "a")
    epoch_fin()
    slot_add(sI0, *sHS)
    sIL = [sI0, 10, 11]
    assert not any(ROT)
    A(f"s_add_u32 s10, s{sI0}, {SL}")
    A(f"s_add_u32 s11, s{sI0}, {2*SL}")
    tag_regs(vTG, vT + 1)
    assert not cfg.sa
    A("s_waitcnt vmcnt(1)")
    if cfg.sa:
        A(f"s_cmp_lt_u32 s{sWV}, {cfg.sa}")
        A("s_cbranch_scc1 L_bw")
        A("s_waitcnt vmcnt(0)")
        A.label("L_bw")
    for l in range(3):
        for g in range(4):
            r = vXB + 2 * (4 * l + g)
            d = vACC + 16 * l + 4 * g
            A(f"v_lshlrev_b32 v{d}, 16, v{r}")
            A(f"v_and_b32 v{d+1}, 0xffff0000, v{r}")
            A(f"v_lshlrev_b32 v{d+2}, 16, v{r+1}")
            A(f"v_and_b32 v{d+3}, 0xffff0000, v{r+1}")
    dummy(cfg.dum2, "b")
    stamp()

    items = []
    for st in stages:
        bykb = {}
        for u in st["units"]:
            bykb.setdefault(u[2], []).append(u)
        for kb, us in bykb.items():
            if st["q"] == n_g1 - 1 and cfg.tm:
                seq = [int(c) for c in cfg.tm]
                nsp = {0: 0, 1: 0, 2: 0}
                for t_ in seq:
                    (t, wb, _kb, fst) = [u for u in us if u[0] == t_][0]
                    items.append(dict(q=st["q"], tile=t, wb=wb, kb=kb, sp=nsp[t], first=False))
                    nsp[t] += 1
                assert all(v == 4 for v in nsp.values())
                continue
            if len(us) == 2 and cfg.chain:
                for (t, wb, _kb, fst) in us:
                    for sp in range(4):
                        items.append(dict(q=st["q"], tile=t, wb=wb, kb=kb, sp=sp, first=(fst and sp == 0)))
                continue
            for sp in range(4):
                for (t, wb, _kb, fst) in us:
                    items.append(dict(q=st["q"], tile=t, wb=wb, kb=kb, sp=sp, first=(fst and sp == 0)))
    NI = len(items)
    aux_used = set()
    if cfg.dual:
        own_end = max(n for n, it in enumerate(items) if it["q"] >= n_g1 and it["kb"] < 3)
        assert all(kbidx[(0, l)] < 3 for l in range(3))
        for n, it in enumerate(items):
            if n > own_end + 1 and items[n - 1]["tile"] == it["tile"]:
                it["first"] = it["tile"] not in aux_used
                aux_used.add(it["tile"])
                it["tile"] += 3

    def accbase(t):
        return vACC + 16 * t if t < 3 else vXB + 16 * (t - 3)
    last_item = {}
    for n, it in enumerate(items):
        last_item[it["q"]] = n
    bread_of = {(st["q"], kb): bb for st in stages for (bb, kb) in st["breads"]}
    lg = []

    def ds_issue(instr, tag):
        cap = 14 if TS else 15
        if len(lg) >= cap:
            A(f"s_waitcnt lgkmcnt({cap-2})")
            del lg[:len(lg) - (cap - 2)]
        A(instr)
        lg.append(tag)

    def ds_need(tags):
        idx = max([i for i, t in enumerate(lg) if t in tags], default=-1)
        if idx >= 0:
            A(f"s_waitcnt lgkmcnt({len(lg) - 1 - idx})")
            del lg[:idx + 1]

    checked = [-1]
    bdone = set()
    dirty, clean_pos = {}, {}

    def clean(m):
        key = (items[m]["kb"], items[m]["sp"])
        if key in dirty and dirty[key] == m:
            del dirty[key]
            ds_need({("B",) + key})
            r = vXB + 16 * key[0] + 4 * key[1]
            for k in range(4):
                A(f"v_and_b32 v{r+k}, s{sMC}, v{r+k}")
            clean_pos[m] = len(A.L) - 1

    def issue_reads(n):
        it = items[n]
        q = it["q"]
        if q > checked[0]:
            ds_need({"hw"})
            A("s_barrier")
            checked[0] = q
            if q in cfg.tsq:
                stamp()
        key = (q, it["kb"])
        if key in bread_of and (key, it["sp"]) not in bdone:
            bdone.add((key, it["sp"]))
            bb = blocks[bread_of[key]]
            addr = bb["slot"] * 8192
            r = vXB + 16 * it["kb"] + 4 * it["sp"]
            if bb["kind"] == "X":
                assert addr >> 16 == 2
                ds_issue(f"ds_read_b128 v[{r}:{r+3}], v{vBX[it['sp']]} offset:{addr & 0xffff}", ("B", it["kb"], it["sp"]))
            else:
                ds_issue(f"ds_read_b128 v[{r}:{r+3}], v{vBH[addr >> 16]} offset:{(addr & 0xffff) + 1024*it['sp']}",
                         ("B", it["kb"], it["sp"]))
                if bb["kind"] != "Hown":
                    if not cfg.hlsb:
                        dirty[(it["kb"], it["sp"])] = n
        wb = blocks[it["wb"]]
        addr = wb["slot"] * 8192 + 2048 * it["sp"]
        r = vAB + 4 * (n % nAB)
        ds_issue(f"ds_read_b64_tr_b16 v[{r}:{r+1}], v{vA[addr >> 16]} offset:{addr & 0xffff}", ("A", n))
        ds_issue(f"ds_read_b64_tr_b16 v[{r+2}:{r+3}], v{vA[addr >> 16]} offset:{(addr & 0xffff) + 1024}", ("A", n))

    post = []

    def epi1_instrs(pi, lines):
        out, late = [], []
        for l in lines:
            a = vACC + 16 * l
            addr = blocks[f"H0_{l}"]["slot"] * 8192
            for half in range(2):
                base = a + 8 * half
                if cfg.epi == 1:
                    assert cfg.hlsb
                    for k in range(8):
                        out.append(("v", f"v_mul_f32 v{base+k}, v{base+k}, |v{base+k}|"))
                    for k in range(4):
                        out.append(("v", f"v_cvt_pk_bf16_f32 v{base+k}, v{base+2*k}, v{base+2*k+1}"))
                    for k in range(4):
                        out.append(("v", f"v_pk_max_i16 v{base+k}, v{base+k}, 0"))
                else:
                    for k in range(8):
                        out.append(("v", f"v_max_f32 v{base+k}, 0, v{base+k}"))
                    for k in range(0, 8, 2):
                        out.append(("v", f"v_pk_mul_f32 v[{base+k}:{base+k+1}], v[{base+k}:{base+k+1}], v[{base+k}:{base+k+1}]"))
                    for k in range(4):
                        out.append(("v", f"v_cvt_pk_bf16_f32 v{base+k}, v{base+2*k}, v{base+2*k+1}"))
                for k in range(4):
                    out.append(("v", f"v_bfi_b32 v{base+4+k}, s{sML}, v{vTG+k}, v{base+k}" if cfg.hlsb else
                                f"v_and_or_b32 v{base+4+k}, v{vTG+k}, s{sMS}, v{base+k}"))
                out.append(("v", f"buffer_store_dwordx4 v[{base+4}:{base+7}], v{vHW[0]}, s[{SRD1}:{SRD1+3}], s{sHS[l]} offen offset:{1024*half} {cfg.hsf}"))
                out.append(("w", f"ds_write_b128 v{vHW[addr >> 16]}, v[{base}:{base+3}] offset:{(addr & 0xffff) + 1024*half}"))
                t = ("v", f"buffer_load_dword v255, v{vHW[0]}, s[{SRD1}:{SRD1+3}], s{sHS[l]} offen offset:{1024*half} {cfg.stf}")
                if cfg.stouch == 1:
                    out.append(t)
                elif cfg.stouch == 2:
                    late.append(t)
                elif cfg.stouch == 3:
                    post.append(t)
        return out + late

    def epi2_instrs(lines):
        out = []
        for l in lines:
            for u in range(2):
                base = vACC + 8 * (2 * l + u)
                if l in aux_used:
                    ab = accbase(l + 3) + 8 * u
                    for k in range(0, 8, 2):
                        out.append(("v", f"v_pk_add_f32 v[{base+k}:{base+k+1}], v[{base+k}:{base+k+1}], v[{ab+k}:{ab+k+1}]"))
                for k in range(4):
                    out.append(("v", f"v_cvt_pk_bf16_f32 v{base+k}, v{base+2*k}, v{base+2*k+1}"))
                out.append(("v", "s_nop 1"))
                out.append(("v", f"v_permlane32_swap_b32 v{base}, v{base+2}"))
                out.append(("v", f"v_permlane32_swap_b32 v{base+1}, v{base+3}"))
                for k in (0, 2, 1, 3):
                    out.append(("v", f"v_bfi_b32 v{base+k}, s{sML}, v{vTG+k}, v{base+k}"))
                out.append(("v", f"buffer_store_dwordx4 v[{base}:{base+3}], v{vL16}, s[{SRD1}:{SRD1+3}], s{sIL[l]} offen offset:{256*u} {cfg.psf}"))
        return out

    fillers = []
    fill_start = 0
    fill_tiles = set()
    mfma_pos = {}
    fill_fresh = [False]

    def states_since(pos):
        c = 0
        for ln in A.L[pos + 1:]:
            t = ln.strip()
            if t.endswith(":") or t.startswith(";") or t.startswith("@@"):
                continue
            c += int(t.split()[1]) + 1 if t.startswith("s_nop") else 1
        return c

    late_w = []

    def emit(kind, t):
        if kind == "mark":
            have = min(states_since(mfma_pos[tl]) for tl in t[0])
            if have < 12:
                A(f"s_nop {12 - have - 1}")
        elif kind == "w":
            ds_issue(t, "hw")
        else:
            A(t)

    def flush_fillers():
        nonlocal fillers
        for (kind, t) in fillers + late_w:
            emit(kind, t)
        fillers = []
        late_w.clear()
        fill_tiles.clear()

    trig = {}
    for l in range(3):
        trig[max(n for n, it in enumerate(items) if it["q"] < n_g1 and it["tile"] == l)] = (1, l)
        trig[max(n for n, it in enumerate(items) if it["q"] >= n_g1 and it["tile"] % 3 == l)] = (2, l)

    nread = 0
    for n in range(NI):
        it = items[n]
        lim = min(NI - 1, n + D)
        while nread <= lim:
            nx = items[nread]
            if nx["q"] > checked[0]:
                due = [l for l, v in hown_vis.items() if v == nx["q"]]
                if due:
                    if last_item[hown_w[due[0]]] >= n:
                        break
                    flush_fillers()
            key = (nx["q"], nx["kb"])
            if key in bread_of and (key, nx["sp"]) not in bdone:
                if any(items[m]["kb"] == nx["kb"] and items[m]["sp"] == nx["sp"] for m in range(n, nread)):
                    break
            issue_reads(nread)
            nread += 1
        assert nread > n
        if it["tile"] in fill_tiles:
            flush_fillers()
            A("s_nop 1")
        clean(n)
        ds_need({("A", n), ("B", it["kb"], it["sp"])})
        if it["first"]:
            ds_need({"hw"})
        if n in clean_pos and states_since(clean_pos[n]) < 2:
            A(f"s_nop {1 - states_since(clean_pos[n])}")
        ra = vAB + 4 * (n % nAB)
        rb = vXB + 16 * it["kb"] + 4 * it["sp"]
        acc = accbase(it["tile"])
        c = "0" if it["first"] else f"v[{acc}:{acc+15}]"
        if cfg.m16test == 1:
            for hh in range(2):
                a4 = acc + 8 * (it["sp"] & 1) + 4 * hh
                rb2 = vXB + 16 * it["kb"] + 4 * (it["sp"] if hh == 0 else max(it["sp"] - 1, 0))
                A(f"v_mfma_f32_16x16x32_bf16 v[{a4}:{a4+3}], v[{ra}:{ra+3}], v[{rb2}:{rb2+3}], v[{a4}:{a4+3}]")
        elif cfg.m16test == 2:
            A("s_nop 7")
        else:
            A(f"v_mfma_f32_32x32x16_bf16 v[{acc}:{acc+15}], v[{ra}:{ra+3}], v[{rb}:{rb+3}], {c}")
        mfma_pos[it["tile"]] = len(A.L) - 1
        if n + 1 < nread:
            clean(n + 1)
        k = 0
        while fillers and k < (cfg.fill1 if it["q"] < n_g1 else cfg.fill):
            if fillers[0][0] == "mark" and n < fillers[0][1][1]:
                break
            kind, t = fillers.pop(0)
            emit(kind, t)
            k += kind != "mark"
        if not fillers and not late_w:
            fill_tiles.clear()
        if n == last_item[it["q"]] and (it["q"] in epi_after or it["q"] in epi2_after):
            stamp()
        if n in trig:
            g, l = trig[n]
            tl = [l] + ([l + 3] if (g == 2 and l in aux_used) else [])
            new = epi1_instrs(0, [l]) if g == 1 else epi2_instrs([l])
            if cfg.wlast:
                late_w.extend(x for x in new if x[0] == "w")
                new = [x for x in new if x[0] != "w"]
            fillers += [("mark", (tl, n + cfg.fdel))] + new
            fill_tiles.update(tl)
    flush_fillers()
    stamp()
    if cfg.rnb >= 1 and not cfg.rlate:
        A("s_barrier")
    reduce_code(1, 0)
    if TS:
        A("s_waitcnt vmcnt(0)")
        A("s_memrealtime s[98:99]")
        A("s_waitcnt lgkmcnt(0)")
        assert tsn[0] <= 14, tsn[0]
        A(f"s_mov_b32 s{sTS+28}, s98"); A(f"s_mov_b32 s{sTS+30}, s{sCNT}")
        tsn[0] = 16
        stamp_flush()
    if cfg.enc and cfg.encw < 4:
        A("s_branch L_noep")
    A("s_branch L_end")

    A.head("hl")
    A.label("L_helper")
    sG = 38
    A(f"s_lshl_b32 s{sG}, s{sWV}, 3")
    A(f"s_add_u32 s{sG}, s{sG}, s{sR}")
    A("v_mul_u32_u24 v8, 9216, v1")
    A("v_mul_u32_u24 v9, 1152, v1")
    A(f"s_mul_i32 s39, s{sJ}, 1152")
    A("s_waitcnt lgkmcnt(0)")
    NWT = 64

    def sdiv(dst, src, d):
        A(f"s_mul_i32 s{dst}, s{src}, {(65536 + d - 1) // d}")
        A(f"s_lshr_b32 s{dst}, s{dst}, 16")

    w2base = 0
    if cfg.touch and any(ROT):
        srd(SRD0, sW1, 5308416)
        srd(SRD1, sX, 589824)
        need = {kk: min((kk - r) % 9 for r in ROT) for kk in range(9)}
        kks = sorted([kk for kk in range(9) if need[kk] >= cfg.skipw], key=lambda kk: need[kk])
        KT = sum(kk << (4 * u) for u, kk in enumerate(kks))
        nW = 9 * len(kks)
        x0 = cfg.skipx
        nX = 8 * (9 - x0)
        tot = nW + nX
        for rnd in range((tot + NWT - 1) // NWT):
            if rnd == 1:
                A.tail("hl")
            k = A.uid()
            A(f"s_add_u32 s{sT0}, s{sG}, {NWT*rnd}")
            if NWT * rnd < nW:
                if NWT * rnd + NWT > nW:
                    A(f"s_cmp_ge_u32 s{sT0}, {nW}")
                    A(f"s_cbranch_scc1 L_hx{k}")
                sdiv(sT1, sT0, 9)
                A(f"s_mul_i32 s{sT2}, s{sT1}, 9")
                A(f"s_sub_u32 s{sT2}, s{sT0}, s{sT2}")
                A(f"s_lshl_b32 s{sT1}, s{sT1}, 2")
                A(f"s_lshr_b32 s{sT1}, {KT}, s{sT1}")
                A(f"s_and_b32 s{sT1}, s{sT1}, 15")
                A(f"s_mul_i32 s{sT1}, s{sT1}, {64*9216}")
                A(f"s_lshl_b32 s{sT2}, s{sT2}, 7")
                A(f"s_add_u32 s{sT1}, s{sT1}, s{sT2}")
                A(f"s_add_u32 s{sT1}, s{sT1}, s39")
                A(f"buffer_load_dword v255, v8, s[{SRD0}:{SRD0+3}], s{sT1} offen {cfg.tfl}")
                if NWT * rnd + NWT > nW:
                    A(f"s_branch L_ht{k}")
            if NWT * rnd + NWT > nW:
                A.label(f"L_hx{k}")
                if NWT * rnd + NWT > tot:
                    A(f"s_cmp_ge_u32 s{sT0}, {tot}")
                    A(f"s_cbranch_scc1 L_ht{k}")
                A(f"s_sub_u32 s{sT0}, s{sT0}, {nW - 8*x0}")
                A(f"s_and_b32 s{sT2}, s{sT0}, 7")
                A(f"s_lshr_b32 s{sT1}, s{sT0}, 3")
                A(f"s_lshl_b32 s{sT3}, s{sT2}, 2")
                A(f"s_lshr_b32 s{sT3}, {ROTTAB}, s{sT3}")
                A(f"s_and_b32 s{sT3}, s{sT3}, 15")
                A(f"s_add_u32 s{sT1}, s{sT1}, s{sT3}")
                A(f"s_cmp_ge_u32 s{sT1}, 9")
                A(f"s_cselect_b32 s{sT3}, 9, 0")
                A(f"s_sub_u32 s{sT1}, s{sT1}, s{sT3}")
                A(f"s_mul_i32 s{sT2}, s{sT2}, {64*1152}")
                A(f"s_lshl_b32 s{sT1}, s{sT1}, 7")
                A(f"s_add_u32 s{sT1}, s{sT1}, s{sT2}")
                A(f"buffer_load_dword v255, v9, s[{SRD1}:{SRD1+3}], s{sT1} offen")
            A.label(f"L_ht{k}")
        w2base = (NWT - tot % NWT) % NWT
    elif cfg.touch:
        srd(SRD0, sW1, 5308416)
        srd(SRD1, sX, 589824)
        phases, base = [], 0
        for pi, ls in enumerate(passes):
            t0 = cfg.ht0 if pi == 0 else 0
            c = 3 * len(ls) + (8 if pi == 0 else 0)
            phases.append((base, (9 - t0 - cfg.tn) * c, t0, c, ls))
            base += (9 - t0 - cfg.tn) * c
        w2base = (NWT - base % NWT) % NWT if cfg.w2rot else 0
        for rnd in range((base + NWT - 1) // NWT):
            if rnd == 1:
                A.tail("hl")
            k = A.uid()
            A(f"s_add_u32 s{sT0}, s{sG}, {NWT*rnd}")
            for (pb, cnt, t0, c, ls) in phases:
                if pb + cnt <= NWT * rnd or pb >= NWT * rnd + NWT:
                    continue
                k2 = A.uid()
                A(f"s_cmp_ge_u32 s{sT0}, {pb+cnt}")
                A(f"s_cbranch_scc1 L_hp{k2}")
                if pb:
                    A(f"s_sub_u32 s{sT0}, s{sT0}, {pb}")
                sdiv(sT1, sT0, c)
                A(f"s_mul_i32 s{sT2}, s{sT1}, {c}")
                A(f"s_sub_u32 s{sT2}, s{sT0}, s{sT2}")
                if t0:
                    A(f"s_add_u32 s{sT1}, s{sT1}, {t0}")
                if cfg.tn:
                    A(f"s_cmp_ge_u32 s{sT1}, {cfg.ta}")
                    A(f"s_cselect_b32 s{sT3}, {cfg.tn}, 0")
                    A(f"s_add_u32 s{sT1}, s{sT1}, s{sT3}")
                nw = 3 * len(ls)
                if c > nw:
                    A(f"s_cmp_ge_u32 s{sT2}, {nw}")
                    A(f"s_cbranch_scc1 L_hx{k2}")
                if len(ls) != 3:
                    if len(ls) == 1:
                        A(f"s_mul_i32 s{sT2}, s{sT2}, 3")
                    else:
                        A(f"s_lshr_b32 s{sT3}, s{sT2}, 1")
                        A(f"s_add_u32 s{sT2}, s{sT2}, s{sT3}")
                    if ls[0]:
                        A(f"s_add_u32 s{sT2}, s{sT2}, {ls[0]}")
                A(f"s_mul_i32 s{sT1}, s{sT1}, {64*9216}")
                A(f"s_lshl_b32 s{sT2}, s{sT2}, 7")
                A(f"s_add_u32 s{sT1}, s{sT1}, s{sT2}")
                A(f"s_add_u32 s{sT1}, s{sT1}, s39")
                A(f"buffer_load_dword v255, v8, s[{SRD0}:{SRD0+3}], s{sT1} offen {cfg.tfl}")
                A(f"s_branch L_ht{k}")
                if c > nw:
                    A.label(f"L_hx{k2}")
                    A(f"s_sub_u32 s{sT2}, s{sT2}, {nw}")
                    A(f"s_mul_i32 s{sT2}, s{sT2}, {64*1152}")
                    A(f"s_lshl_b32 s{sT1}, s{sT1}, 7")
                    A(f"s_add_u32 s{sT1}, s{sT1}, s{sT2}")
                    A(f"buffer_load_dword v255, v9, s[{SRD1}:{SRD1+3}], s{sT1} offen")
                    A(f"s_branch L_ht{k}")
                A.label(f"L_hp{k2}")
            A.label(f"L_ht{k}")
    def h_pretouch():
        srd(SRD1, sWS, 0x10000000)
        A("v_lshlrev_b32 v10, 7, v1")
        A(f"s_mul_i32 s{sT1}, s{sJ}, 589824")
        A(f"s_add_u32 s{sT1}, s{sT1}, {WS_IN if cfg.hpin else WS_H}")
        for rnd in range(2):
            k = A.uid()
            A(f"s_add_u32 s{sT0}, s{sG}, {NWT*rnd}")
            A(f"s_cmp_ge_u32 s{sT0}, 72")
            A(f"s_cbranch_scc1 L_ht{k}")
            A(f"s_lshl_b32 s{sT0}, s{sT0}, 13")
            A(f"s_add_u32 s{sT0}, s{sT0}, s{sT1}")
            A(f"buffer_load_dword v255, v10, s[{SRD1}:{SRD1+3}], s{sT0} offen {cfg.hpf}")
            A.label(f"L_ht{k}")
    if cfg.hpre == 1:
        h_pretouch()
    if cfg.touch:
        srd(SRD0, sW2, 5308416)
        A(f"s_mul_i32 s39, s{sJ}, 663552")
        vord = [blocks[nm] for nm in order if blocks[nm]["kind"] == "W2"]
        if not cfg.vneed:
            vord.sort(key=lambda b: (kbidx[(b["d"], b["lk"])], b["l"]))
        for reg, key in ((60, "d"), (62, "lk"), (44, "l")):
            tab = sum(b[key] << (2 * u) for u, b in enumerate(vord))
            A(f"s_mov_b32 s{reg}, {tab & 0xffffffff}")
            A(f"s_mov_b32 s{reg+1}, {tab >> 32}")
        if w2base:
            A(f"s_add_u32 s{sG}, s{sG}, {w2base}")
            A(f"s_and_b32 s{sG}, s{sG}, 63")
        for rnd in range(2):
            k = A.uid()
            A(f"s_add_u32 s{sT0}, s{sG}, {NWT*rnd}")
            A(f"s_cmp_ge_u32 s{sT0}, {81 - 18*cfg.vt}")
            A(f"s_cbranch_scc1 L_ht{k}")
            sdiv(sT1, sT0, 3)
            A(f"s_mul_i32 s{sT2}, s{sT1}, 3")
            A(f"s_sub_u32 s{sT2}, s{sT0}, s{sT2}")
            A(f"s_lshl_b32 s{sT1}, s{sT1}, 1")
            A(f"s_lshr_b64 s[46:47], s[60:61], s{sT1}")
            A(f"s_and_b32 s{sT0}, s46, 3")
            A(f"s_add_u32 s{sT0}, s{sT0}, s{sT2}")
            A(f"s_cmp_ge_u32 s{sT0}, 3")
            A(f"s_cselect_b32 s{sT3}, 3, 0")
            A(f"s_sub_u32 s{sT0}, s{sT0}, s{sT3}")
            A(f"s_lshr_b64 s[46:47], s[62:63], s{sT1}")
            A(f"s_and_b32 s{sT3}, s46, 3")
            A(f"s_mul_i32 s{sT0}, s{sT0}, {192*1152}")
            A(f"s_mul_i32 s{sT3}, s{sT3}, {64*1152}")
            A(f"s_add_u32 s{sT0}, s{sT0}, s{sT3}")
            A(f"s_lshr_b64 s[46:47], s[44:45], s{sT1}")
            A(f"s_and_b32 s{sT3}, s46, 3")
            A(f"s_mul_i32 s{sT2}, s{sT2}, 3")
            A(f"s_add_u32 s{sT2}, s{sT2}, s{sT3}")
            A(f"s_lshl_b32 s{sT2}, s{sT2}, 7")
            A(f"s_add_u32 s{sT0}, s{sT0}, s{sT2}")
            A(f"s_add_u32 s{sT0}, s{sT0}, s39")
            A(f"buffer_load_dword v255, v9, s[{SRD0}:{SRD0+3}], s{sT0} offen {cfg.tfl}")
            A.label(f"L_ht{k}")
    if cfg.hpre == 2:
        h_pretouch()
    dummy(cfg.dumh, "h")
    if TS:
        tsn[0] = 1
        A("s_waitcnt vmcnt(0)")
        stamp()
        stamp()
        stamp_flush()
    A("s_branch L_end")
    A.tail("end")
    A.label("L_end")

    hdr = f"""; Fused MLP (x@w1+b1 -> relu^2 -> @w2+b2), generated by a python script (work/gen8.py)
; @launch grid=(256,1,1) block=(512,1,1) lds=163840
.amdgcn_target "amdgcn-amd-amdhsa--gfx950"
.text
.globl {KN}
.p2align 8
.type {KN},@function
{KN}:
"""
    ftr = f"""
    s_endpgm
.section .rodata,"a"
.p2align 6
.amdhsa_kernel {KN}
  .amdhsa_next_free_vgpr 256
  .amdhsa_next_free_sgpr 102
  .amdhsa_accum_offset 256
  .amdhsa_group_segment_fixed_size 0
  .amdhsa_kernarg_size 64
  .amdhsa_user_sgpr_count 2
  .amdhsa_user_sgpr_kernarg_segment_ptr 1
  .amdhsa_system_sgpr_workgroup_id_x 1
.end_amdhsa_kernel
"""
    return hdr + A.text(cfg.horder.split(","), cfg.torder.split(",") + ["end"]) + ftr


def parse_g2(s):
    out = []
    for stg in s.split(","):
        us = []
        for u in stg.split("+"):
            a, b = u.split(":")
            us.append((int(a[0]), int(a[1]), [int(c) for c in b]))
        out.append(us)
    return out


def ilist(s):
    return [int(x) for x in s.split(",")] if s else []


def main():
    ap = argparse.ArgumentParser()
    ap.add_argument("-o", default="k8.s")
    ap.add_argument("--ts", action="store_true")
    ap.add_argument("--passes", default="012")
    ap.add_argument("--depth", type=int, default=5)
    ap.add_argument("--fill", type=int, default=4)
    ap.add_argument("--grp1", type=int, default=3)
    ap.add_argument("--hres", type=float, default=2.5)
    ap.add_argument("--hearly", type=float, default=1.5)
    ap.add_argument("--hdel", type=int, default=1)
    ap.add_argument("--xfree", type=int, default=11)
    ap.add_argument("--g2", default="00:012,01:012,02:012,10:012,20:012,11:012,21:012,12:012,22:012")
    ap.add_argument("--tsq", default="")
    ap.add_argument("--verbose", action="store_true")
    ap.add_argument("--ahead", type=int, default=8)
    ap.add_argument("--ahead0", type=int, default=8)
    ap.add_argument("--capfrom", type=int, default=8)
    ap.add_argument("--capw", type=int, default=4)
    ap.add_argument("--capx", type=int, default=3)
    ap.add_argument("--burst", default="")
    ap.add_argument("--pause", default="")
    ap.add_argument("--go2lead", type=int, default=3)
    ap.add_argument("--sa", type=int, default=0)
    ap.add_argument("--ctouch", type=int, default=1)
    ap.add_argument("--wfl", default="")
    ap.add_argument("--tfl", default="")
    ap.add_argument("--rfl", default="sc1")
    ap.add_argument("--rsleep", type=int, default=0)
    ap.add_argument("--touch", type=int, default=1)
    ap.add_argument("--clrq", type=int, default=-1)
    ap.add_argument("--cdq", type=int, default=9)
    ap.add_argument("--rbar", type=int, default=0)
    ap.add_argument("--hsf", default="sc1")
    ap.add_argument("--hlf", default="sc1")
    ap.add_argument("--ofl", default="")
    ap.add_argument("--hpre", type=int, default=0)
    ap.add_argument("--rot", default="00000000")
    ap.add_argument("--ts0", type=int, default=0)
    ap.add_argument("--hlsb", type=int, default=1)
    ap.add_argument("--dual", type=int, default=0)
    ap.add_argument("--hside", type=int, default=-1)
    ap.add_argument("--iside", type=int, default=-1)
    ap.add_argument("--obox", type=int, default=0)
    ap.add_argument("--probe", type=int, default=0)
    ap.add_argument("--vt", type=int, default=0)
    ap.add_argument("--vtq", type=int, default=10)
    ap.add_argument("--xpre", type=int, default=0)
    ap.add_argument("--m16test", type=int, default=0)
    ap.add_argument("--vneed", type=int, default=1)
    ap.add_argument("--tsreal", type=int, default=0)
    ap.add_argument("--vpipe", type=int, default=0)
    ap.add_argument("--ahead2", type=int, default=-1)
    ap.add_argument("--chain", type=int, default=1)
    ap.add_argument("--owide", type=int, default=0)
    ap.add_argument("--dum1", type=int, default=0)
    ap.add_argument("--dum2", type=int, default=0)
    ap.add_argument("--dumh", type=int, default=0)
    ap.add_argument("--encc", type=int, default=0)
    ap.add_argument("--encm", type=int, default=2)
    ap.add_argument("--slots", type=int, default=0)
    ap.add_argument("--rlate", type=int, default=0)
    ap.add_argument("--epi", type=int, default=0)
    ap.add_argument("--tm", default="")
    ap.add_argument("--wlast", type=int, default=0)
    ap.add_argument("--fdel", type=int, default=3)
    ap.add_argument("--fill1", type=int, default=5)
    ap.add_argument("--priow", type=int, default=0)
    ap.add_argument("--prioh", type=int, default=0)
    ap.add_argument("--r0early", type=int, default=0)
    ap.add_argument("--psf", default="sc1")
    ap.add_argument("--rw1", type=int, default=0)
    ap.add_argument("--ofl1", default="")
    ap.add_argument("--rpq", type=int, default=10)
    ap.add_argument("--rb2", type=int, default=1)
    ap.add_argument("--rb4", type=int, default=0)
    ap.add_argument("--rearly", type=int, default=0)
    ap.add_argument("--hpf", default="")
    ap.add_argument("--hpin", type=int, default=0)
    ap.add_argument("--wsb", type=lambda x: int(x, 0), default=0)
    ap.add_argument("--enc", default="")
    ap.add_argument("--encw", type=int, default=4)
    ap.add_argument("--hfree", type=int, default=2)
    ap.add_argument("--stouch", type=int, default=0)
    ap.add_argument("--stdel", type=int, default=1)
    ap.add_argument("--stf", default="")
    ap.add_argument("--ta", type=int, default=0)
    ap.add_argument("--tn", type=int, default=0)
    ap.add_argument("--tpos", type=int, default=0)
    ap.add_argument("--w2rot", type=int, default=1)
    ap.add_argument("--rfast", type=int, default=1)
    ap.add_argument("--wt", type=int, default=0)
    ap.add_argument("--horder", default="w,x,h2,hl,c")
    ap.add_argument("--ht0", type=int, default=1)
    ap.add_argument("--first", type=int, default=4)
    ap.add_argument("--torder", default="hl,w,x,h2,c,red")
    ap.add_argument("--skipw", type=int, default=1)
    ap.add_argument("--skipx", type=int, default=1)
    cfg = ap.parse_args()
    cfg.passes = [[int(c) for c in p] for p in cfg.passes.split(",")]
    cfg.g2 = parse_g2(cfg.g2)
    cfg.rnb = cfg.rb2
    cfg.tsq, cfg.burst, cfg.pause = ilist(cfg.tsq), ilist(cfg.burst), ilist(cfg.pause)
    open(cfg.o, "w").write(build(cfg))


main()
```

```python
import sys, argparse

KN = "standalone__dense_activation_squared_relu__sampling_kernel"

WS_H = 0x0
WS_IN = 0x1000000
WS_CD = 0x1840000
WS_EP = 0x1850000
WS_TS = 0x8000000
SPIN_MAX = 100000
SGNMASK = 0x6A9956A5


class Asm:
    def __init__(self):
        self.L = []
        self.n = 0

    def __call__(self, s):
        self.L.append("    " + s)

    def label(self, s):
        self.L.append(s + ":")

    def c(self, s):
        self.L.append("    ; " + s)

    def uid(self):
        self.n += 1
        return self.n

    def head(self, role):
        self.L.append(f"@@HEAD {role}")

    def tail(self, role):
        self.L.append(f"@@TAIL {role}")

    def text(self, horder, torder):
        pro, heads, tails, cur = [], {}, {}, None
        cur = pro
        for ln in self.L:
            if ln.startswith("@@HEAD"):
                cur = heads.setdefault(ln.split()[1], [])
            elif ln.startswith("@@TAIL"):
                r = ln.split()[1]
                if r in heads:
                    heads[r].append(f"    s_branch L_tail_{r}")
                cur = tails.setdefault(r, [f"L_tail_{r}:"])
            else:
                cur.append(ln)
        assert sorted(heads) == sorted(horder) and sorted(tails) == sorted(torder), (heads.keys(), tails.keys())
        out = pro
        for r in horder:
            out += heads[r]
        out.append("L_heads_end:")
        for r in torder:
            out += tails[r]
        return "\n".join(out)


def build(cfg):
    global WS_H, WS_IN, WS_EP
    WS_H = cfg.wsb
    WS_IN = cfg.wsb + 0x480000
    WS_EP = cfg.wsb + 0xc00000 if not cfg.slots else 0x10000
    A = Asm()
    SR, SD, SS, SL = {0: (24576, 589824, 3072, 1024), 1: (24576, 1024, 589824, 8192),
                      2: (196608, 8192, 1024, 65536), 3: (196608, 1024, 8192, 65536),
                      4: (221184, 9216, 1024, 73728), 5: (24*10496, 10496, 1280, 8*10496),
                      6: (221184, 1024, 9216, 73728), 7: (24*8448, 8448, 1024, 8*8448)}[cfg.obox]
    TS = cfg.ts
    HW, HL = (24576, 8192) if cfg.hside < 0 else (49152, 16384)
    if cfg.hside >= 0 or cfg.iside >= 0:
        WS_IN = cfg.wsb + 0x1000000
        WS_EP = cfg.wsb + 0x2000000
    if cfg.iside >= 0:
        SR, SD, SS, SL = 49152, 0x400000, 1024, 16384

    if cfg.numa:
        HW, HL = 49152, 16384
        SD, SS, SL = 0x80000, 1024, 16384
        WS_IN = cfg.wsb + 9 * 16384
        WS_EP = cfg.wsb + 0x2000000
    WS_FL = WS_EP + 0x1000
    sSIDE, sFO = 12, 14
    late_code = []

    def flag_load():
        A(f"s_lshl_b32 s{sFO}, s34, 3")
        A(f"s_add_u32 s{sFO}, s{sFO}, s32")
        A(f"s_lshl_b32 s{sFO}, s{sFO}, 7")
        A(f"s_add_u32 s{sFO}, s{sFO}, {WS_FL}")
        A(f"s_load_dwordx2 s[8:9], s[30:31], s{sFO} glc")

    def flag_chk(regs, reload, t0, t1, dst, cnt):
        k = A.uid()
        A(f"s_mov_b32 s{cnt}, 0")
        A.label(f"L_f{k}")
        A("s_waitcnt lgkmcnt(0)")
        A(f"s_mov_b32 s{dst}, 0")
        for n, r in enumerate(regs):
            A(f"s_xnor_b32 s{t0}, s{r+1}, s6")
            A(f"s_xor_b32 s{t1}, s{r}, s6")
            A(f"s_lshl_b32 s{r}, s{t0}, {n}")
            A(f"s_or_b32 s{dst}, s{dst}, s{r}")
            A(f"s_lshr_b32 s{t0}, s{t0}, 1")
            A(f"s_or_b32 s{t0}, s{t0}, s{t1}")
            A(f"s_cbranch_scc1 L_fr{k}")
        A.label(f"L_fd{k}")
        n0 = len(A.L)
        A.label(f"L_fr{k}")
        A(f"s_add_u32 s{cnt}, s{cnt}, 1")
        A(f"s_mov_b32 s{dst}, 0")
        A(f"s_cmp_gt_u32 s{cnt}, {SPIN_MAX}")
        A(f"s_cbranch_scc1 L_fd{k}")
        for x in reload:
            A(x)
        A(f"s_branch L_f{k}")
        late_code.extend(A.L[n0:])
        del A.L[n0:]

    def flag_fin(t0, t1, cnt):
        flag_chk([8], [f"s_load_dwordx2 s[8:9], s[30:31], s{sFO} glc"], t0, t1, sSIDE, cnt)
        A(f"s_lshl_b32 s{sSIDE}, s{sSIDE}, 13")

    def gbase(dst, tmp):
        A(f"s_lshl_b32 s{dst}, s34, 3")
        A(f"s_add_u32 s{dst}, s{dst}, s32")
        A(f"s_lshl_b32 s{dst}, s{dst}, 19")

    def jbase(dst, sj, side, tmp):
        A(f"s_and_b32 s{dst}, s{sj}, 3")
        A(f"s_lshl_b32 s{dst}, s{dst}, 22")
        A(f"s_lshr_b32 s{tmp}, s{sj}, 2")
        if side:
            A(f"s_xor_b32 s{tmp}, s{tmp}, 1")
        A(f"s_lshl_b32 s{tmp}, s{tmp}, 13")
        A(f"s_add_u32 s{dst}, s{dst}, s{tmp}")
    passes = cfg.passes
    D = cfg.depth

    stages, blocks, order = [], {}, []

    def blk(name, **kw):
        blocks[name] = dict(name=name, **kw)
        return name

    def add_stage(units, breads):
        q = len(stages)
        stages.append(dict(units=units, breads=breads, q=q))
        for (bb, _kb) in breads:
            b = blocks[bb]
            b["need"] = b["last"] = q
            if b["kind"] != "Hown":
                order.append(bb)
        for (_t, wb, _kb, _first) in units:
            b = blocks[wb]
            if "need" not in b:
                b["need"] = q
                order.append(wb)
            b["last"] = q
        return q

    epi_after, pass_of_line = {}, {}
    for pi, lines in enumerate(passes):
        grp = 1 if (len(lines) > 1 or pi == 0) else cfg.grp1
        for t0 in range(0, 9, grp):
            units, breads = [], []
            for t in range(t0, t0 + grp):
                if pi == 0:
                    breads.append((blk(f"X{t}", kind="X", t=t), t))
                for l in lines:
                    units.append((l, blk(f"W{t}_{l}", kind="W1", t=t, l=l), t, False))
            q = add_stage(units, breads)
        epi_after[q] = (pi, list(lines))
        for l in lines:
            pass_of_line[l] = pi
    n_g1 = len(stages)
    kbidx = {}
    first = {0: True, 1: True, 2: True}
    cnt2 = {0: 0, 1: 0, 2: 0}
    epi2_after = {}
    for stg in cfg.g2:
        units, breads = [], []
        for (d, lk, lines) in stg:
            if (d, lk) not in kbidx:
                kbidx[(d, lk)] = len(kbidx)
                breads.append((blk(f"H{d}_{lk}", kind="Hown" if d == 0 else f"H{d}", d=d, lk=lk), kbidx[(d, lk)]))
            for l in lines:
                units.append((l, blk(f"V{d}_{lk}_{l}", kind="W2", d=d, lk=lk, l=l), kbidx[(d, lk)], first[l]))
                first[l] = False
                cnt2[l] += 1
        q = add_stage(units, breads)
        done = [l for l in range(3) if cnt2[l] == 9 and not any(l in v for v in epi2_after.values())]
        if done:
            epi2_after[q] = done
    assert all(v == 9 for v in cnt2.values())
    NQ = len(stages)
    hown_w = {l: q for q, (pi, lines) in epi_after.items() for l in lines}
    hown_vis = {l: (q + 1 if q == n_g1 - 1 else q + 2) for l, q in hown_w.items()}
    for l in hown_w:
        assert blocks[f"H0_{l}"]["need"] >= hown_vis[l]
    hfetch = {l: hown_vis[l] + cfg.hdel for l in hown_w}

    free_at = {s: -10 for s in range(20)}
    events = [(blocks[nm]["need"] - (cfg.hearly if blocks[nm]["kind"] in ("H1", "H2") else 0), 1, k, nm) for k, nm in enumerate(order)]
    for l, qw in hown_w.items():
        events.append((qw - cfg.hres, 0, l, f"H0_{l}"))
    events.sort()
    for ev in events:
        b = blocks[ev[3]]
        if b["kind"] == "X":
            cand = [16, 17, 18, 19]
        elif ev[0] < cfg.xfree:
            cand = list(range(0, 16))
        else:
            cand = list(range(0, 20))
        s = min(cand, key=lambda s: (free_at[s], s))
        b["slot"] = s
        b["free"] = free_at[s]
        if b["kind"] == "Hown":
            assert b["free"] + cfg.hfree <= hown_w[b["lk"]], b
        else:
            assert b["free"] + 2 < b["need"], b
        free_at[s] = b["last"]
    if cfg.verbose:
        print(" | ".join(f"{blocks[e[3]]['name']}:s{blocks[e[3]]['slot']} f{blocks[e[3]]['free']} n{blocks[e[3]]['need']}" for e in events), file=sys.stderr)
    for k, nm in enumerate(order):
        blocks[nm]["pos"] = k
    cum = [sum(1 for nm in order if blocks[nm]["need"] <= q) for q in range(NQ)]

    sX, sW1, sB1, sW2, sB2, sOUT, sDBG, sWS = 16, 18, 20, 22, 24, 26, 28, 30
    sJ, sR, sMT, sI, sWV, sWK = 32, 33, 34, 35, 36, 37
    SRD0, SRD1, SRD2 = 40, 44, 48
    sT0, sT1, sT2, sT3, sT4, sT5 = 52, 53, 54, 55, 56, 57
    sCNT = 58
    sTAG, sPB = 6, 8
    sTS = 64
    tsn = [0]

    def stamp():
        if TS:
            k = tsn[0]
            assert k < 16
            A(f"{'s_memrealtime' if cfg.tsreal else 's_memtime'} s[{sTS+2*k}:{sTS+2*k+1}]")
            tsn[0] += 1

    def srd(d, p, nbytes):
        A(f"s_mov_b32 s{d}, s{p}")
        A(f"s_mov_b32 s{d+1}, s{p+1}")
        A(f"s_mov_b32 s{d+2}, {nbytes}")
        A(f"s_mov_b32 s{d+3}, 0x00020000")

    def stamp_flush():
        if not TS:
            return
        n = tsn[0]
        A("s_waitcnt lgkmcnt(0)")
        srd(SRD2, sWS, 0x10000000)
        A(f"s_lshl_b32 s{sT0}, s2, 9")
        A(f"s_lshl_b32 s{sT1}, s{sWV}, 6")
        A(f"s_add_u32 s{sT0}, s{sT0}, s{sT1}")
        A(f"s_add_u32 s{sT0}, s{sT0}, {WS_TS}")
        A(f"v_mov_b32 v2, s{sT0}")
        A("s_mov_b64 exec, 1")
        for k in range(n):
            A(f"v_mov_b32 v3, s{sTS+2*k}")
            A(f"buffer_store_dword v3, v2, s[{SRD2}:{SRD2+3}], 0 offen offset:{4*k}")
        A("s_mov_b64 exec, -1")

    def epoch_load(smt):
        A(f"s_lshl_b32 s{sT0}, s{smt}, 7")
        A(f"s_add_u32 s{sT0}, s{sT0}, {WS_EP}")
        A(f"s_load_dword s{sTAG}, s[{sWS}:{sWS+1}], s{sT0}")

    def epoch_fin():
        A("s_waitcnt lgkmcnt(0)")
        A(f"s_add_u32 s{sTAG}, s{sTAG}, 1")
        A(f"s_mul_i32 s{sTAG+1}, s{sTAG}, 0x22222222")
        A(f"s_and_b32 s{sTAG+1}, s{sTAG+1}, 0xeeeeeeee")
        A(f"s_or_b32 s{sTAG+1}, s{sTAG+1}, 0x10101010")
        if cfg.slots:
            A(f"s_and_b32 s14, s{sTAG}, {cfg.slots-1}")
            A(f"s_mul_i32 s14, s14, 0xa00000")

    def slot_add(*regs):
        if cfg.slots:
            for r in regs:
                A(f"s_add_u32 s{r}, s{r}, s14")

    def tag_regs(vd, vt):
        A(f"v_and_b32 v{vt}, 3, v1")
        A(f"v_lshlrev_b32 v{vt}, 3, v{vt}")
        A(f"v_lshrrev_b32 v{vt}, v{vt}, s{sTAG+1}")
        for k in range(4):
            A(f"v_bfe_u32 v{vd+k}, v{vt}, {2*k}, 2")
            A(f"v_mul_u32_u24 v{vd+k}, 0x8001, v{vd+k}")
            A(f"v_and_b32 v{vd+k}, 0x10001, v{vd+k}")
            A(f"v_lshl_or_b32 v{vd+k}, v{vd+k}, 15, v{vd+k}")

    def sign_reg(vd, vt):
        A(f"s_bitcmp1_b32 s{sTAG}, 0")
        A(f"s_cselect_b32 s{sT0}, -1, 0")
        A(f"s_xor_b32 s{sT0}, s{sT0}, {SGNMASK}")
        A(f"v_and_b32 v{vt}, 31, v1")
        A(f"v_lshrrev_b32 v{vt}, v{vt}, s{sT0}")
        A(f"v_bfe_i32 v{vt}, v{vt}, 0, 1")
        A(f"v_and_b32 v{vd}, 0x80008000, v{vt}")

    def sspin(loads, npairs, base):
        k = A.uid()
        A(f"s_mov_b32 s{sCNT}, 0")
        A.label(f"L_s{k}")
        for x in loads:
            A(x)
        A(f"s_add_u32 s{sCNT}, s{sCNT}, 1")
        A("s_waitcnt lgkmcnt(0)")
        A(f"s_cmp_gt_u32 s{sCNT}, {SPIN_MAX}")
        A(f"s_cbranch_scc1 L_sd{k}")
        for n in range(npairs):
            A(f"s_cmp_lg_u64 s[{base+2*n}:{base+2*n+1}], s[{sTAG}:{sTAG+1}]")
            A(f"s_cbranch_scc1 L_s{k}")
        A.label(f"L_sd{k}")

    def mod3add(dst, d, tmp):
        A(f"s_add_u32 s{dst}, s{sI}, {d}")
        A(f"s_cmp_ge_u32 s{dst}, 3")
        A(f"s_cselect_b32 s{tmp}, 3, 0")
        A(f"s_sub_u32 s{dst}, s{dst}, s{tmp}")

    A("s_cmp_ge_u32 s2, 256")
    A("s_cbranch_scc1 L_end")
    A("s_load_dwordx16 s[16:31], s[0:1], 0")
    if cfg.ctouch == 1:
        A("s_getpc_b64 s[4:5]")
        A.label("L_pc")
        A("v_lshlrev_b32 v2, 7, v0")
        A("v_min_u32 v2, L_end-L_pc, v2")
        A("v_and_b32 v2, 0xfffffffc, v2")
        A("global_load_dword v255, v2, s[4:5]")
    elif cfg.ctouch == 2:
        A("s_getpc_b64 s[4:5]")
        A.label("L_pc")
        A("s_lshr_b32 s3, s2, 3")
        A("s_lshl_b32 s3, s3, 11")
        A("v_lshrrev_b32 v2, 5, v0")
        A("v_lshl_add_u32 v2, v2, 7, s3")
        A("v_min_u32 v2, L_end-L_pc, v2")
        A("v_and_b32 v2, 0xfffffffc, v2")
        A("global_load_dword v255, v2, s[4:5]")
    if TS:
        A("s_memrealtime s[96:97]")
    if cfg.enc:
        A("s_memrealtime s[96:97]")
        if cfg.enc == "none":
            A("s_memrealtime s[94:95]")
        if cfg.encc:
            A("s_memtime s[92:93]")

    def enc(p):
        if cfg.enc == p:
            A("s_memrealtime s[94:95]" if not cfg.encc else "s_memtime s[94:95]")
    stamp()
    A("v_and_b32 v1, 63, v0")
    A("v_lshrrev_b32 v2, 6, v0")
    A(f"s_and_b32 s{sJ}, s2, 7")
    A(f"v_readfirstlane_b32 s{sWV}, v2")
    A(f"s_lshr_b32 s{sR}, s2, 3")
    A(f"s_cmp_lt_u32 s{sR}, 8")
    A("s_cbranch_scc1 L_helper")
    A(f"s_sub_u32 s{sR}, s{sR}, 8")
    A(f"s_mul_i32 s{sMT}, s{sR}, 21846")
    A(f"s_lshr_b32 s{sMT}, s{sMT}, 16")
    A(f"s_mul_i32 s{sT0}, s{sMT}, 3")
    A(f"s_sub_u32 s{sI}, s{sR}, s{sT0}")
    A(f"s_mul_i32 s{sWK}, s{sJ}, 24")
    A(f"s_add_u32 s{sWK}, s{sWK}, s{sR}")
    ROT = [int(c) for c in cfg.rot]
    ROTTAB = sum(r << (4 * m) for m, r in enumerate(ROT))
    sROT, sLO, sHI = 10, 11, 12
    if any(ROT):
        A(f"s_lshl_b32 s{sROT}, s{sMT}, 2")
        A(f"s_lshr_b32 s{sROT}, {ROTTAB}, s{sROT}")
        A(f"s_and_b32 s{sROT}, s{sROT}, 15")

    def rot_setup(sbase, stride):
        if any(ROT):
            A(f"s_mul_i32 s{sLO}, s{sROT}, {stride}")
            A(f"s_add_u32 s{sLO}, s{sLO}, s{sbase}")
            A(f"s_sub_u32 s{sHI}, s{sLO}, {9*stride}")

    def rot_addr(dst, sbase, t, stride, extra):
        if any(ROT):
            if t + max(ROT) < 9:
                A(f"s_add_u32 s{dst}, s{sLO}, {t*stride + extra}")
            else:
                A(f"s_cmp_lt_u32 s{sROT}, {9-t}")
                A(f"s_cselect_b32 s{dst}, s{sLO}, s{sHI}")
                A(f"s_add_u32 s{dst}, s{dst}, {t*stride + extra}")
        else:
            A(f"s_add_u32 s{dst}, s{sbase}, {t*stride + extra}")
    A(f"s_cmp_lt_u32 s{sWV}, 4")
    A("s_cbranch_scc1 L_compute")
    A(f"s_cmp_eq_u32 s{sWV}, 6")
    A("s_cbranch_scc1 L_xh")
    A(f"s_cmp_eq_u32 s{sWV}, 7")
    A("s_cbranch_scc1 L_h2")
    ts_base = tsn[0]

    def loader_stream(kinds, per_block, issue_fn, setup_fn, cap, group=False, validate=None, before_bar=None, role=None):
        mine = [blocks[nm] for nm in order if blocks[nm]["kind"] in kinds]
        outstanding, pend = [], list(mine)
        nb = lambda nm: blocks[nm]["n"] if blocks[nm]["kind"] == "extra" else (per_block(blocks[nm]) if callable(per_block) else per_block)
        cnt = lambda lst: sum(nb(x) for x in lst)

        def ok(b, q):
            if b["free"] + 2 > q:
                return False
            if b["kind"] in ("H1", "H2") and q < min(hfetch[b["lk"]], b["need"] - 1):
                return False
            return True

        def issue_upto(q, ahead, cap):
            n = 0
            lim = cum[q] + ahead if q >= 0 else ahead
            while pend and ok(pend[0], q):
                must = pend[0]["need"] <= q + 1 + (cfg.vpipe if pend[0]["kind"] in ("H1", "H2") else 0) or pend[0]["pos"] < lim
                if not must and n >= cap:
                    break
                grp = [pend.pop(0)]
                while group and pend and ok(pend[0], q) and pend[0]["need"] == grp[0]["need"] and len(grp) < 3 \
                        and (pend[0]["pos"] < lim or n + len(grp) < cap or pend[0]["need"] <= q + 1):
                    grp.append(pend.pop(0))
                need_n = sum(nb(x["name"]) for x in grp)
                if cnt(outstanding) + need_n > 63:
                    while cnt(outstanding) + need_n > 63:
                        del outstanding[0]
                    A(f"s_waitcnt vmcnt({cnt(outstanding)})")
                issue_fn(grp if group else grp[0])
                if cfg.verbose:
                    print(f"   after B{q}: " + " ".join(x["name"] for x in grp), file=sys.stderr)
                outstanding.extend(x["name"] for x in grp)
                n += len(grp)

        issue_upto(-1, cfg.first, 0)
        if cfg.ts0:
            stamp()
        if role == "w":
            enc("iss")
        A.tail(role)
        pr = cfg.priow if role == "w" else cfg.prioh
        if pr:
            A(f"s_setprio {pr}")
        setup_fn()
        issue_upto(-1, cfg.ahead0, 0)
        for q in range(NQ):
            assert not any(b["need"] <= q for b in pend), (q, pend[0])
            def wait_for(b):
                if b["name"] in outstanding:
                    idx = max(i for i, nm in enumerate(outstanding) if blocks[nm]["need"] <= q) if validate is None \
                        else outstanding.index(b["name"])
                    del outstanding[:idx + 1]
                    A(f"s_waitcnt vmcnt({cnt(outstanding)})")
            hs = []
            for b in mine:
                if b["need"] == q:
                    if validate is not None and b["kind"] != "X":
                        hs.append(b)
                    else:
                        wait_for(b)
            if validate is not None and cfg.vpipe:
                nxt = [b for b in mine if b["need"] == q + 1 and b["kind"] != "X" and b not in pend]
                if hs or nxt:
                    validate(hs, wait_for, nxt)
            elif hs:
                validate(hs, wait_for)
            if before_bar is not None:
                ex = before_bar(q)
                if ex:
                    nm = f"extra{A.uid()}"
                    blocks[nm] = dict(name=nm, kind="extra", n=ex, need=99)
                    outstanding.append(nm)
            if q in cfg.tsq:
                stamp()
            A("s_barrier")
            if role == "w":
                enc(f"B{q}")
            if q in cfg.pause:
                issue_upto(q, 0, 0)
            else:
                issue_upto(q, cfg.ahead if q < n_g1 or cfg.ahead2 < 0 else cfg.ahead2, 99 if q in cfg.burst else (cap if q >= cfg.capfrom else 0))
        assert not pend

    vRA, vRO, vRB, vRC, vRD, vRT, vRX, vRZ, vRG = 64, 65, 66, 72, 80, 112, 116, 117, 120
    sRI, sRO, sC = 60, 61, 13

    def vr(r, W):
        return f"v{r}" if W == 1 else f"v[{r}:{r+W-1}]"

    def dw(W):
        return "dword" if W == 1 else f"dwordx{W}"

    def red_pre(W):
        if W == 2:
            A(f"s_sub_u32 s{sC}, s{sWV}, 4")
            A(f"v_lshlrev_b32 v{vRA}, 3, v1")
            A(f"s_lshl_b32 s{sRO}, s{sC}, 6")
            A(f"s_lshr_b32 s{sRI}, s{sC}, 1")
            A(f"s_mul_i32 s{sRI}, s{sRI}, {SL}")
            A(f"s_and_b32 s{sT1}, s{sC}, 1")
            A(f"s_lshl_b32 s{sT1}, s{sT1}, 9")
            A(f"s_add_u32 s{sRI}, s{sRI}, s{sT1}")
            A(f"v_lshrrev_b32 v{vRT}, 4, v1")
            A(f"v_and_b32 v{vRT+1}, 1, v1")
            A(f"v_lshlrev_b32 v{vRT+1}, 3, v{vRT+1}")
            A(f"v_lshl_add_u32 v{vRT}, v{vRT}, 4, v{vRT+1}")
            A(f"v_bfe_u32 v{vRT+2}, v1, 1, 3")
            A(f"v_and_b32 v{vRT+3}, 7, v1")
            A(f"v_lshlrev_b32 v{vRT+3}, 2, v{vRT+3}")
        else:
            A(f"s_add_u32 s{sC}, s{sWV}, 8")
            A(f"v_lshlrev_b32 v{vRA}, 2, v1")
            A(f"s_lshl_b32 s{sRO}, s{sC}, 5")
            A(f"s_lshl_b32 s{sRI}, s{sWV}, 8")
            A(f"s_add_u32 s{sRI}, s{sRI}, {2*SL}")
            A(f"v_lshrrev_b32 v{vRT}, 5, v1")
            A(f"v_and_b32 v{vRT+1}, 3, v1")
            A(f"v_lshlrev_b32 v{vRT+1}, 2, v{vRT+1}")
            A(f"v_lshl_add_u32 v{vRT}, v{vRT}, 4, v{vRT+1}")
            A(f"v_bfe_u32 v{vRT+2}, v1, 2, 3")
            A(f"v_and_b32 v{vRT+3}, 15, v1")
            A(f"v_lshlrev_b32 v{vRT+3}, 1, v{vRT+3}")
        A(f"s_mul_i32 s{sT1}, s{sI}, 384")
        A(f"s_add_u32 s{sRO}, s{sRO}, s{sT1}")
        if W == 2:
            srd(SRD2, sB2, 1152)
            A(f"buffer_load_{dw(W)} {vr(vRB, W)}, v{vRT}, s[{SRD2}:{SRD2+3}], s{sRO} offen")
        else:
            A(f"v_mov_b32 v{vRB}, v249")
        A(f"s_lshl_b32 s{sT1}, s{sJ}, 3")
        A(f"s_lshl_b32 s{sT3}, s{sMT}, 6")
        A(f"s_add_u32 s{sT1}, s{sT1}, s{sT3}")
        A(f"s_mul_i32 s{sT1}, s{sT1}, 1152")
        A(f"s_add_u32 s{sRO}, s{sRO}, s{sT1}")
        A(f"v_mul_u32_u24 v{vRT+2}, 1152, v{vRT+2}")
        A(f"v_add_u32 v{vRO}, v{vRT}, v{vRT+2}")
        A(f"s_mul_i32 s{sT1}, s{sR}, {SR}" if not cfg.numa else f"s_mul_i32 s{sT1}, s{sI}, {HW}")
        A(f"s_add_u32 s{sRI}, s{sRI}, s{sT1}")
        if cfg.numa:
            A(f"s_add_u32 s{sRI}, s{sRI}, s{sSIDE}")
            gbase(sT1, sT3)
        elif cfg.iside >= 0:
            jbase(sT1, sJ, cfg.iside, sT3)
        else:
            A(f"s_mul_i32 s{sT1}, s{sJ}, {SD}")
        A(f"s_add_u32 s{sRI}, s{sRI}, s{sT1}")
        A(f"s_add_u32 s{sRI}, s{sRI}, {WS_IN}")
        slot_add(sRI)
        A(f"v_mov_b32 v{vRZ}, 0")
        A(f"v_lshrrev_b32 v{vRT+3}, v{vRT+3}, s{sTAG+1}")
        for k in range(W):
            A(f"v_bfe_u32 v{vRG+k}, v{vRT+3}, {2*k}, 2")
            A(f"v_mul_u32_u24 v{vRG+k}, 0x8001, v{vRG+k}")
        A(f"v_mov_b32 v{vRG+4}, 0x10001")
        A(f"v_mov_b32 v{vRG+5}, 0xffff0000")
        return 1

    def red_init(W):
        for k in range(W):
            A(f"v_lshlrev_b32 v{vRC+2*k}, 16, v{vRB+k}")
            A(f"v_and_b32 v{vRC+1+2*k}, v{vRG+5}, v{vRB+k}")

    def bb_w(q):
        if q == 2:
            epoch_fin()
        if cfg.numa and q == cfg.flq:
            flag_load()
        if cfg.numa and q == cfg.flq + 2:
            flag_fin(sT1, sT2, sT3)
        if q == cfg.rpq:
            return red_pre(2)
        if q == cfg.rpq + 3:
            red_init(2)

    A.head("w")
    sHW = sT5
    A(f"s_sub_u32 s{sHW}, s{sWV}, 4")
    A("v_lshrrev_b32 v2, 3, v1")
    A("v_and_b32 v3, 7, v1")
    A("v_bfe_u32 v4, v1, 4, 1")
    A("v_lshlrev_b32 v4, 2, v4")
    A("v_xor_b32 v3, v3, v4")
    A("v_lshlrev_b32 v3, 4, v3")
    A("v_lshrrev_b32 v4, 2, v2")
    A("v_and_b32 v5, 3, v2")
    A("v_lshl_add_u32 v4, v4, 3, v5")
    A(f"s_lshl_b32 s{sT0}, s{sHW}, 5")
    A(f"v_add_u32 v4, s{sT0}, v4")
    A("v_mul_u32_u24 v4, 9216, v4")
    A("v_add_u32 v4, v4, v3")
    for c in range(1, 4):
        A(f"v_add_u32 v{4+c}, {(16*(c>>1)+4*(c&1))*9216 - 1024*c}, v4")
    sLW, sC1 = sT4, 38
    A(f"s_lshl_b32 s{sLW}, s{sHW}, 12")
    A(f"s_mul_i32 s{sC1}, s{sJ}, 1152")
    A(f"s_mul_i32 s{sT1}, s{sI}, 384")
    A(f"s_add_u32 s{sC1}, s{sC1}, s{sT1}")
    rot_setup(sC1, 64*9216)
    if cfg.wt:
        A("v_and_b32 v12, 7, v1")
        A("v_lshrrev_b32 v13, 5, v1")
        A("v_lshl_add_u32 v12, v13, 6, v12")
        A("v_mul_u32_u24 v12, 9216, v12")
        A("v_bfe_u32 v13, v1, 3, 2")
        A("v_lshl_add_u32 v12, v13, 7, v12")
        A(f"s_lshl_b32 s{sT0}, s{sHW}, 4")
        A(f"s_add_u32 s{sT0}, s{sT0}, s{sMT}")
        A(f"s_mul_i32 s{sT0}, s{sT0}, {8*9216}")
        A(f"s_add_u32 s{sT0}, s{sT0}, s{sC1}")
        msk = [sum(0xffffff << (32 * h) for h in range(2) if 2 * w + h < cfg.wt) for w in range(2)]
        A(f"s_mov_b32 exec_lo, {msk[0] & 0xffffffff}")
        A(f"s_mov_b32 exec_hi, {msk[0] >> 32}")
        if msk[1] != msk[0]:
            A(f"s_cmp_eq_u32 s{sHW}, 0")
            A(f"s_cselect_b32 exec_lo, exec_lo, {(msk[1] & 0xffffffff) or 1}")
            A(f"s_cselect_b32 exec_hi, exec_hi, {msk[1] >> 32}")
    A("s_waitcnt lgkmcnt(0)")
    if cfg.ts0:
        stamp()
    srd(SRD0, sW1, 5308416)
    if cfg.wt:
        A(f"buffer_load_dword v255, v12, s[{SRD0}:{SRD0+3}], s{sT0} offen")
        A("s_mov_b64 exec, -1")
    sV = [62, 63, 59]

    def w2_setup():
        epoch_load(sMT)
        A(f"s_lshl_b32 s{sT0}, s{sHW}, 5")
        A(f"v_add_u32 v8, s{sT0}, v2")
        A("v_mul_u32_u24 v8, 1152, v8")
        A("v_add_u32 v8, v8, v3")
        for c in range(1, 4):
            A(f"v_add_u32 v{8+c}, {8*c*1152 - 1024*c}, v8")
        A(f"s_mul_i32 s39, s{sJ}, {576*1152}")
        A(f"s_mul_i32 s{sT0}, s{sI}, 384")
        A(f"s_add_u32 s39, s39, s{sT0}")
        for d in range(3):
            mod3add(sT1, d, sT2)
            A(f"s_mul_i32 s{sT1}, s{sT1}, {192*1152}")
            A(f"s_add_u32 s{sV[d]}, s39, s{sT1}")
        srd(SRD1, sW2, 5308416)

    def issue_w(grp):
        for b in grp:
            A(f"s_add_u32 m0, s{sLW}, {b['slot']*8192}")
            if b["kind"] == "W1":
                rot_addr(sT0, sC1, b['t'], 64*9216, 128*b['l'])
                vb, sr = 4, SRD0
            else:
                A(f"s_add_u32 s{sT0}, s{sV[b['d']]}, {64*b['lk']*1152 + 128*b['l']}")
                vb, sr = 8, SRD1
            for c in range(4):
                A(f"buffer_load_dwordx4 v{vb+c}, s[{sr}:{sr+3}], s{sT0} offen offset:{1024*c} {cfg.wfl} lds")

    loader_stream(("W1", "W2"), 4, issue_w, w2_setup, cfg.capw, group=True,
                  before_bar=bb_w, role="w")
    A("s_branch L_reduce")
    ts_max = tsn[0]

    sXB = 38
    sH = {1: 39, 2: 59}
    HALF = [0]

    def h_setup(half):
        A("v_lshlrev_b32 v12, 4, v1")
        A("v_add_u32 v13, 0x10000, v12")
        A("v_add_u32 v14, 0x20000, v12")
        A(f"s_sub_u32 s{sT0}, s{sWK if cfg.hside < 0 else sR}, s{sI}")
        if cfg.numa:
            gbase(sT3, sT2)
        elif cfg.hside >= 0:
            jbase(sT3, sJ, cfg.hside, sT2)
        for d in (1, 2):
            mod3add(sT1, d, sT2)
            if not cfg.numa:
                A(f"s_add_u32 s{sT1}, s{sT1}, s{sT0}")
            A(f"s_mul_i32 s{sH[d]}, s{sT1}, {HW}")
            if cfg.hside >= 0 or cfg.numa:
                A(f"s_add_u32 s{sH[d]}, s{sH[d]}, s{sT3}")
        srd(SRD1, sWS, 0x10000000)
        epoch_load(sMT)

    def issue_xh(b):
        for h in (range(2) if b["kind"] == "X" else HALF):
            A(f"s_mov_b32 m0, {b['slot']*8192 + 4096*h}")
            if b["kind"] == "X":
                rot_addr(sT0, sXB, b['t'], 128, 32*1152*h)
                for c in range(4):
                    A(f"buffer_load_dwordx4 v{8+c}, s[{SRD0}:{SRD0+3}], s{sT0} offen offset:{1024*c} lds")
            else:
                A(f"s_add_u32 s{sT0}, s{sH[b['d']]}, {WS_H + HL*b['lk'] + 4096*h}")
                for c in range(4):
                    A(f"buffer_load_dwordx4 v12, s[{SRD1}:{SRD1+3}], s{sT0} offen offset:{1024*c} {cfg.hlf} lds")

    retry_code = []

    def validate(hs, wait_for):
        k = A.uid()

        def rd(i):
            addr = hs[i]["slot"] * 8192 + 4096 * HALF[0]
            for c in range(4):
                r = 128 + 16 * i + 4 * c
                A(f"ds_read_b128 v[{r}:{r+3}], v{12 + (addr >> 16)} offset:{(addr & 0xffff) + 1024*c}")

        def valu(i, later):
            for c in range(4):
                r = 128 + 16 * i + 4 * c
                A(f"s_waitcnt lgkmcnt({3-c+later})")
                for kk in range(4):
                    ac = 16 + ((kk + 2) & 3)
                    if i == 0 and c == 0:
                        A(f"v_xor_b32 v{ac}, v{r+kk}, v{25+kk}")
                    else:
                        A(f"v_bitop3_b32 v{ac}, v{ac}, v{r+kk}, v{25+kk} bitop3:0xf6")
        A.label(f"L_v{k}")
        for i in range(len(hs)):
            wait_for(hs[i])
            rd(i)
            if i:
                valu(i - 1, 4)
        valu(len(hs) - 1, 0)
        A("v_or3_b32 v16, v16, v17, v18")
        A("v_bitop3_b32 v16, v16, v19, v24 bitop3:0xa8")
        A("v_cmp_ne_u32 vcc, 0, v16")
        A(f"s_cbranch_vccnz L_vr{k}")
        A.label(f"L_vd{k}")
        n0 = len(A.L)
        A.label(f"L_vr{k}")
        A(f"s_cmp_gt_u32 s{sCNT}, {SPIN_MAX}")
        A(f"s_cbranch_scc1 L_vd{k}")
        for b in hs:
            issue_xh(b)
        A(f"s_add_u32 s{sCNT}, s{sCNT}, 1")
        A("s_waitcnt vmcnt(0)")
        A(f"s_branch L_v{k}")
        retry_code.extend(A.L[n0:])
        del A.L[n0:]

    hreg, hread = {}, set()

    def validate2(hs, wait_for, nxt):
        k = A.uid()

        def rd(b):
            i = hreg.setdefault(b["name"], len(hreg))
            addr = b["slot"] * 8192 + 4096 * HALF[0]
            for c in range(4):
                r = 128 + 16 * i + 4 * c
                A(f"ds_read_b128 v[{r}:{r+3}], v{12 + (addr >> 16)} offset:{(addr & 0xffff) + 1024*c}")
            hread.add((HALF[0], b["name"]))

        def do_nxt():
            for b in nxt:
                wait_for(b)
                rd(b)
        unread = [b for b in hs if (HALF[0], b["name"]) not in hread]
        for b in unread:
            wait_for(b)
            rd(b)
        later = 0
        if unread and 4 * (len(unread) + len(nxt)) <= 15:
            do_nxt()
            later = 4 * len(nxt)
            nxt = []
        if hs:
            A.label(f"L_v{k}")
            A(f"s_waitcnt lgkmcnt({later})")
            for i, b in enumerate(hs):
                for c in range(4):
                    r = 128 + 16 * hreg[b["name"]] + 4 * c
                    for kk in range(4):
                        ac = 16 + ((kk + 2) & 3)
                        if i == 0 and c == 0:
                            A(f"v_xor_b32 v{ac}, v{r+kk}, v{25+kk}")
                        else:
                            A(f"v_bitop3_b32 v{ac}, v{ac}, v{r+kk}, v{25+kk} bitop3:0xf6")
            A("v_or3_b32 v16, v16, v17, v18")
            A("v_bitop3_b32 v16, v16, v19, v24 bitop3:0xa8")
            A("v_cmp_ne_u32 vcc, 0, v16")
            A(f"s_cbranch_vccnz L_vr{k}")
            A.label(f"L_vd{k}")
            n0 = len(A.L)
            A.label(f"L_vr{k}")
            A(f"s_cmp_gt_u32 s{sCNT}, {SPIN_MAX}")
            A(f"s_cbranch_scc1 L_vd{k}")
            for b in hs:
                issue_xh(b)
            A(f"s_add_u32 s{sCNT}, s{sCNT}, 1")
            A("s_waitcnt vmcnt(0) lgkmcnt(0)")
            for b in hs:
                rd(b)
            A("s_waitcnt lgkmcnt(0)")
            A(f"s_branch L_v{k}")
            retry_code.extend(A.L[n0:])
            del A.L[n0:]
        do_nxt()

    if cfg.vpipe:
        validate = validate2

    def flush_retry():
        A.L.extend(retry_code)
        retry_code.clear()

    def bb_tag(q):
        if q == 2:
            epoch_fin()
            slot_add(sH[1], sH[2])
            tag_regs(25, 16)
            A(f"v_mov_b32 v24, {0x10001 if cfg.hlsb else 0x80008000}")
            A(f"s_mov_b32 s{sCNT}, 0")
        if cfg.numa and q == cfg.flq:
            flag_load()
        if cfg.numa and q == cfg.flq + 2:
            flag_fin(sT1, sT2, sT3)
            A(f"s_add_u32 s{sH[1]}, s{sH[1]}, s{sSIDE}")
            A(f"s_add_u32 s{sH[2]}, s{sH[2]}, s{sSIDE}")
        if q == cfg.rpq:
            return red_pre(2)
        if q == cfg.rpq + 3:
            red_init(2)
        if q == 10 and cfg.probe:
            A(f"buffer_load_dword v255, v{vRZ}, s[{SRD2}:{SRD2+3}], 0 offen")
            A("s_waitcnt vmcnt(0)")

    A.head("x")
    A.label("L_xh")
    tsn[0] = ts_base
    A("v_lshrrev_b32 v2, 3, v1")
    A("v_and_b32 v3, 7, v1")
    A("v_lshrrev_b32 v4, 4, v1")
    A("v_xor_b32 v3, v3, v4")
    A("v_lshlrev_b32 v3, 4, v3")
    A("v_mul_u32_u24 v4, 1152, v2")
    A("v_add_u32 v8, v4, v3")
    A("v_xor_b32 v5, 64, v8")
    A(f"v_add_u32 v9, {8*1152 - 1024}, v5")
    A(f"v_add_u32 v10, {16*1152 - 2048}, v8")
    A(f"v_add_u32 v11, {24*1152 - 3072}, v5")
    A(f"s_mul_i32 s{sXB}, s{sMT}, {64*1152}")
    rot_setup(sXB, 128)

    def x_touch_pre(st0):
        A(f"s_mul_i32 s{sT0}, s{sI}, 22")
        A("v_and_b32 v12, 31, v1")
        A(f"v_add_u32 v12, s{sT0}, v12")
        A("v_min_u32 v12, 63, v12")
        A("v_mul_u32_u24 v12, 1152, v12")
        A("v_lshrrev_b32 v13, 5, v1")
        A("v_lshl_add_u32 v12, v13, 7, v12")
        A("s_mov_b32 exec_lo, 0x3fffff")
        A(f"s_mov_b32 exec_hi, {0x3fffff if cfg.wt > st0 + 1 else 0}")

    def x_touch(st0):
        A(f"buffer_load_dword v255, v12, s[{SRD0}:{SRD0+3}], s{sXB} offen offset:{128*st0}")
        A("s_mov_b64 exec, -1")
    if cfg.wt:
        x_touch_pre(0)
    A("s_waitcnt lgkmcnt(0)")
    if cfg.ts0:
        stamp()
    srd(SRD0, sX, 589824)
    if cfg.wt:
        x_touch(0)
    nbx = lambda b: 8 if b["kind"] == "X" else 4
    loader_stream(("X", "H1", "H2"), nbx, issue_xh, lambda: h_setup(0), cfg.capx, validate=validate, before_bar=bb_tag, role="x")
    if TS:
        A(f"s_mov_b32 s{sTS+24}, s{sCNT}")
    A("s_branch L_reduce")
    flush_retry()
    ts_max = max(ts_max, tsn[0])

    A.head("h2")
    A.label("L_h2")
    tsn[0] = ts_base
    if cfg.wt > 2:
        A(f"s_mul_i32 s{sXB}, s{sMT}, {64*1152}")
        x_touch_pre(2)
    if cfg.xpre:
        A("v_lshlrev_b32 v2, 7, v1")
        A(f"s_mul_i32 s{sT0}, s{sWK}, 3072")
        A("s_mov_b64 exec, 0xffffff")
    A("s_waitcnt lgkmcnt(0)")
    if cfg.xpre:
        srd(SRD0, sX, 589824)
        A(f"buffer_load_dword v255, v2, s[{SRD0}:{SRD0+3}], s{sT0} offen")
        A("s_mov_b64 exec, -1")
    if cfg.wt > 2:
        srd(SRD0, sX, 589824)
        x_touch(2)
    srd(SRD1, sWS, 0x10000000)
    if cfg.hpre == 3:
        A("v_lshlrev_b32 v3, 7, v1")
        A(f"s_mul_i32 s{sT1}, s{sWK}, 24576")
        A(f"s_add_u32 s{sT1}, s{sT1}, {WS_H}")
        for c in range(3):
            A(f"buffer_load_dword v255, v3, s[{SRD1}:{SRD1+3}], s{sT1} offen")
            A(f"s_add_u32 s{sT1}, s{sT1}, 8192")

    def w7_touch():
        st = list(range(cfg.ta, cfg.ta + cfg.tn))
        srd(SRD0, sX, 589824)
        srd(SRD2, sW1, 5308416)
        A(f"s_mul_i32 s{sXB}, s{sMT}, {64*1152}")
        A(f"s_mul_i32 s{sT0}, s{sI}, 22")
        A("v_and_b32 v2, 31, v1")
        A(f"v_add_u32 v2, s{sT0}, v2")
        A("v_min_u32 v2, 63, v2")
        A("v_mul_u32_u24 v2, 1152, v2")
        A("v_lshrrev_b32 v4, 5, v1")
        A("v_lshl_add_u32 v2, v4, 7, v2")
        A("v_and_b32 v3, 7, v1")
        A("v_lshl_add_u32 v3, v4, 6, v3")
        A("v_mul_u32_u24 v3, 9216, v3")
        A("v_bfe_u32 v4, v1, 3, 2")
        A("v_lshl_add_u32 v3, v4, 7, v3")
        A(f"s_mul_i32 s{sT0}, s{sMT}, {8*9216}")
        A(f"s_mul_i32 s{sT1}, s{sJ}, 1152")
        A(f"s_add_u32 s{sT0}, s{sT0}, s{sT1}")
        A(f"s_mul_i32 s{sT1}, s{sI}, 384")
        A(f"s_add_u32 s{sT0}, s{sT0}, s{sT1}")
        for p in range(0, len(st), 2):
            two = p + 1 < len(st)
            A(f"s_add_u32 s{sT1}, s{sT0}, {st[p]*64*9216}")
            A("s_mov_b32 exec_lo, 0xffffff")
            A(f"s_mov_b32 exec_hi, {0xffffff if two else 0}")
            A(f"buffer_load_dword v255, v3, s[{SRD2}:{SRD2+3}], s{sT1} offen")
            A("s_mov_b32 exec_lo, 0x3fffff")
            A(f"s_mov_b32 exec_hi, {0x3fffff if two else 0}")
            A(f"buffer_load_dword v255, v2, s[{SRD0}:{SRD0+3}], s{sXB} offen offset:{128*st[p]}")
        A("s_mov_b64 exec, -1")
    if cfg.tn and cfg.tpos == 0:
        w7_touch()

    def race(rnd, first):
        N = cfg.rn
        if first:
            A(f"s_lshl_b32 s{sT0}, s{sWK}, 14")
            A(f"s_add_u32 s{sT0}, s{sT0}, {cfg.wsb + 0x3000000}")
            A(f"s_add_u32 s8, s{sWS}, s{sT0}")
            A(f"s_addc_u32 s9, s{sWS+1}, 0")
            A(f"s_not_b32 s3, s{sTAG}")
            A("s_mov_b32 s15, 100")
        H = N // 2
        f = rnd & 1
        for k in range(N):
            A(f"s_mov_b32 s{72+k}, s3")
        for k in range(N):
            sd = f if k < H else 1 - f
            A(f"s_load_dword s{72+k}, s[8:9], {8192*sd + 128*(rnd*H + k % H)}")
        A(f"s_waitcnt lgkmcnt({H})")
        for _ in range(cfg.rd):
            A("s_nop 7")
        for k in range(H, N):
            A(f"s_cmp_lg_u32 s{72+k}, s3")
            A("s_addc_u32 s15, s15, 0" if f == 1 else "s_subb_u32 s15, s15, 0")
        A("s_waitcnt lgkmcnt(0)")

    def bb_h2(q):
        if cfg.tn and cfg.tpos == 1 and q == 0:
            A("s_waitcnt lgkmcnt(0)")
            w7_touch()
        if cfg.rr and q == cfg.rq:
            stamp()
            A("s_waitcnt lgkmcnt(0)")
            for rnd in range(cfg.rr):
                race(rnd, rnd == 0)
            stamp()
        if cfg.tn and cfg.tpos >= 2 and q == cfg.tpos - 1:
            w7_touch()
        if cfg.tn and q == 7:
            A("s_waitcnt vmcnt(0)")
        if q == 2 and (cfg.hpre == 3 or cfg.wt > 2):
            A("s_waitcnt vmcnt(0)")
        if cfg.vt and q == 5:
            A(f"s_add_u32 s{sT0}, s{sI}, 1")
            A(f"s_mul_i32 s{sT0}, s{sT0}, 192")
            A(f"s_mul_i32 s{sT1}, s{sMT}, 48")
            A(f"s_add_u32 s{sT0}, s{sT0}, s{sT1}")
            A(f"s_cmp_ge_u32 s{sT0}, 576")
            A(f"s_cselect_b32 s{sT1}, 576, 0")
            A(f"s_sub_u32 s{sT0}, s{sT0}, s{sT1}")
            A(f"s_mul_i32 s{sT1}, s{sJ}, 576")
            A(f"s_add_u32 s{sT0}, s{sT0}, s{sT1}")
            A(f"s_mul_i32 s15, s{sT0}, 1152")
            A(f"s_mul_i32 s{sT1}, s{sI}, 384")
            A(f"s_add_u32 s15, s15, s{sT1}")
            A("v_mul_u32_u24 v5, 1152, v1")
            srd(SRD0, sW2, 5308416)
        ex = 0
        if cfg.vt and q == cfg.vtq:
            A("s_mov_b32 exec_hi, 0xffff")
            for l in range(3 - cfg.vt, 3):
                A(f"buffer_load_dword v255, v5, s[{SRD0}:{SRD0+3}], s15 offen offset:{128*l}")
            A("s_mov_b64 exec, -1")
            ex = cfg.vt
        return (bb_tag(q) or 0) + ex

    HALF[0] = 1
    loader_stream(("H1", "H2"), nbx, issue_xh, lambda: h_setup(1), cfg.capx, validate=validate, before_bar=bb_h2, role="h2")
    if TS and cfg.rr:
        A(f"s_mov_b32 s{sTS+24}, s15")
    ts_max = max(ts_max, tsn[0])
    A("s_branch L_reduce")
    flush_retry()

    A.tail("red")
    sM, sQ = sT5, sT4
    sVC = 16

    def reduce_code(W, nbar):
        x = f"{W}"
        srd(SRD1, sWS, 0x10000000)
        A(f"s_mov_b32 s{sCNT}, 0")
        srd(SRD0, sOUT, 589824)
        if W == 1:
            red_pre(1)
            red_init(1)
            A(f"s_waitcnt vmcnt({cfg.rw1})")
            if cfg.rlate == 1:
                A("s_barrier")

        def ld(s_):
            A(f"s_add_u32 s{sT1}, s{sRI}, {SS*s_}")
            A(f"buffer_load_{dw(W)} {vr(vRD+W*s_, W)}, v{vRA}, s[{SRD1}:{SRD1+3}], s{sT1} offen {cfg.rfl}")
        if W == 2 and cfg.r0early and nbar:
            A(f"s_cmp_ge_u32 s{sC}, 2")
            A("s_cbranch_scc1 L_rlate")
            stamp()
            tsn[0] -= 1 if TS else 0
            for s_ in range(8):
                ld(s_)
            A("s_barrier")
            A("s_branch L_rfirst")
            A.label("L_rlate")
        for _ in range(nbar):
            A("s_barrier")
        stamp()
        enc("rbar")

        def chk_i(s_, dst, t):
            r = vRD + W * s_
            if W == 1:
                o = [f"v_bitop3_b32 v{t}, v{r}, v{vRG}, v{vRG+4} bitop3:0x28"]
            else:
                o = [f"v_xor_b32 v{t}, v{r}, v{vRG}"]
                for k in range(1, W):
                    o.append(f"v_bitop3_b32 v{t}, v{t}, v{r+k}, v{vRG+k} bitop3:0xf6")
                o.append(f"v_and_b32 v{t}, v{vRG+4}, v{t}")
            o.append(f"v_cmp_ne_u32 {dst}, 0, v{t}")
            return o

        def acc_i(s_, t0):
            r = vRD + W * s_
            o = []
            for k in range(W):
                t = t0 + 2 * k
                o.append(f"v_lshlrev_b32 v{t}, 16, v{r+k}")
                o.append(f"v_and_b32 v{t+1}, v{vRG+5}, v{r+k}")
            for k in range(W):
                t = t0 + 2 * k
                o.append(f"v_pk_add_f32 v[{vRC+2*k}:{vRC+1+2*k}], v[{vRC+2*k}:{vRC+1+2*k}], v[{t}:{t+1}]")
            return o

        def masked(sm, fn, tag):
            for g in range(2):
                A(f"s_and_b32 s{sT0}, s{sm}, {0xf << (4*g)}")
                A(f"s_cbranch_scc0 L_{tag}{x}g{g}")
                for s_ in range(4 * g, 4 * g + 4):
                    A(f"s_bitcmp0_b32 s{sm}, {s_}")
                    A(f"s_cbranch_scc1 L_{tag}{x}s{s_}")
                    fn(s_)
                    A.label(f"L_{tag}{x}s{s_}")
                A.label(f"L_{tag}{x}g{g}")

        for s_ in range(8):
            ld(s_)
        for _ in range(nbar, cfg.rnb if W != 1 else 0):
            A("s_barrier")
        if W == 1 and cfg.rlate == 2:
            A("s_barrier")
        if W == 2:
            A.label("L_rfirst")
        for s_ in range(8):
            A(f"s_waitcnt vmcnt({7-s_})")
            c = chk_i(s_, f"s[{sVC+2*s_}:{sVC+2*s_+1}]", vRX)
            a_ = acc_i(s_, vRT)
            while c or a_:
                if c:
                    A(c.pop(0))
                if a_:
                    A(a_.pop(0))
            if s_ >= 2:
                A(f"s_or_b64 vcc, {'s[16:17]' if s_ == 2 else 'vcc'}, s[{sVC+2*s_-2}:{sVC+2*s_-1}]")
        A(f"s_or_b64 vcc, vcc, s[{sVC+14}:{sVC+15}]")
        A(f"s_cbranch_scc0 L_rdone{x}")
        A(f"s_mov_b32 s{sM}, 0")
        for s_ in range(7, -1, -1):
            A(f"s_cmp_lg_u64 s[{sVC+2*s_}:{sVC+2*s_+1}], 0")
            A(f"s_addc_u32 s{sM}, s{sM}, s{sM}")
        A(f"s_xor_b32 s{sQ}, s{sM}, 0xff")
        red_init(W)
        A.label(f"L_rtop{x}")
        masked(sM, ld, "rl")
        masked(sQ, lambda s_: [A(t) for t in acc_i(s_, vRT)], "ra")
        A(f"s_add_u32 s{sCNT}, s{sCNT}, 1")
        A(f"s_mov_b32 s{sQ}, s{sM}")
        A(f"s_cmp_gt_u32 s{sCNT}, {SPIN_MAX}")
        A(f"s_cbranch_scc1 L_rdone{x}")
        A("s_waitcnt vmcnt(0)")

        def chk2(s_):
            for t in chk_i(s_, "vcc", vRX):
                A(t)
            A(f"s_cbranch_vccnz L_rc{x}s{s_}")
            A(f"s_bitset0_b32 s{sM}, {s_}")
            for t in acc_i(s_, vRT):
                A(t)
        masked(sQ, chk2, "rc")
        A(f"s_mov_b32 s{sQ}, 0")
        A(f"s_cmp_lg_u32 s{sM}, 0")
        A(f"s_cbranch_scc1 L_rtop{x}")
        A.label(f"L_rdone{x}")
        stamp()
        enc("rdone")
        for k in range(W):
            A(f"v_cvt_pk_bf16_f32 v{vRC+k}, v{vRC+2*k}, v{vRC+1+2*k}")
        if cfg.owide:
            A("s_nop 1")
            if W == 1:
                for k in range(1, 4):
                    A(f"v_mov_b32_dpp v{vRC+k}, v{vRC} quad_perm:[{k},{k},{k},{k}] row_mask:0xf bank_mask:0xf")
                m = 0x11111111
            else:
                for k in range(2):
                    A(f"v_mov_b32_dpp v{vRC+2+k}, v{vRC+k} quad_perm:[1,1,3,3] row_mask:0xf bank_mask:0xf")
                m = 0x55555555
            A(f"s_mov_b32 exec_lo, {m}")
            A(f"s_mov_b32 exec_hi, {m}")
            A(f"buffer_store_dwordx4 v[{vRC}:{vRC+3}], v{vRO}, s[{SRD0}:{SRD0+3}], s{sRO} offen {cfg.ofl if W > 1 else cfg.ofl1}")
            A("s_mov_b64 exec, -1")
        else:
            A(f"buffer_store_{dw(W)} {vr(vRC, W)}, v{vRO}, s[{SRD0}:{SRD0+3}], s{sRO} offen {cfg.ofl if W > 1 else cfg.ofl1}")
        if TS:
            A(f"s_mov_b32 s{sWS}, s{SRD1}")
            A(f"s_mov_b32 s{sWS+1}, s{SRD1+1}")

    A.label("L_reduce")
    tsn[0] = ts_max
    reduce_code(2, cfg.rb2)
    A(f"s_or_b32 s{sT0}, s{sJ}, s{sI}")
    A(f"s_or_b32 s{sT0}, s{sT0}, s{sC}")
    A(f"s_cmp_lg_u32 s{sT0}, 0")
    A("s_cbranch_scc1 L_noep")
    A(f"v_mov_b32 v16, s{sTAG}")
    A(f"s_lshl_b32 s{sT0}, s{sMT}, 7")
    A(f"s_add_u32 s{sT0}, s{sT0}, {WS_EP}")
    A("s_mov_b64 exec, 1")
    A(f"buffer_store_dword v16, v{vRZ}, s[{SRD1}:{SRD1+3}], s{sT0} offen sc1")
    A("s_mov_b64 exec, -1")
    A.label("L_noep")
    if cfg.enc:
        if cfg.enc == "end":
            A("s_waitcnt vmcnt(0)")
            enc("end")
        if cfg.encw >= 0:
            A(f"s_cmp_lg_u32 s{sWV}, {cfg.encw}")
            A("s_cbranch_scc1 L_end")
        A("s_waitcnt lgkmcnt(0)")
        if cfg.enc == "ptr":
            A(f"s_lshr_b32 s94, s{SRD1}, {cfg.encm}")
            A("s_and_b32 s94, s94, 31")
            A("s_mul_i32 s94, s94, 300")
        elif cfg.enc == "lat":
            A("s_waitcnt vmcnt(0)")
            A(f"s_lshl_b32 s90, s{sR}, 7")
            A(f"s_add_u32 s90, s90, {cfg.encm}")
            A("s_memtime s[84:85]")
            A("s_waitcnt lgkmcnt(0)")
            A(f"buffer_load_dword v2, v{vRZ}, s[{SRD1}:{SRD1+3}], s90 offen sc1")
            A("s_waitcnt vmcnt(0)")
            A("s_memtime s[86:87]")
            A("s_waitcnt lgkmcnt(0)")
            A("s_sub_u32 s94, s86, s84")
            A("s_lshl_b32 s94, s94, 2")
            A(f"s_cmp_eq_u32 s2, 64")
            A("s_cselect_b32 s94, s94, 0")
        elif cfg.enc == "xcc":
            A("s_getreg_b32 s94, hwreg(HW_REG_XCC_ID)")
            A("s_and_b32 s94, s94, 15")
            A("s_mul_i32 s94, s94, 500")
            A(f"s_cmp_eq_u32 s{sJ}, {cfg.encm}")
            A("s_cselect_b32 s94, s94, 0")
        elif cfg.encc:
            A("s_sub_u32 s94, s94, s92")
            A("s_lshr_b32 s94, s94, 1")
        else:
            A("s_sub_u32 s94, s94, s96")
            A(f"s_mul_i32 s94, s94, {cfg.encm}")
        A("s_add_u32 s94, s94, 3000")
        A.label("L_dly")
        A("s_memrealtime s[98:99]")
        A("s_waitcnt lgkmcnt(0)")
        A("s_sub_u32 s98, s98, s96")
        A("s_cmp_lt_u32 s98, s94")
        A("s_cbranch_scc1 L_dly")
    if TS:
        A("s_waitcnt vmcnt(0)")
        stamp()
        A("s_memrealtime s[98:99]")
        A("s_waitcnt lgkmcnt(0)")
        A(f"s_mov_b32 s{sTS+26}, s96"); A(f"s_mov_b32 s{sTS+28}, s98"); A(f"s_mov_b32 s{sTS+30}, s{sCNT}")
        assert tsn[0] <= 12
        tsn[0] = 16
        stamp_flush()
    A("s_branch L_end")

    A.head("c")
    A.label("L_compute")
    tsn[0] = ts_base
    vACC, vAB, vXB, vT = 16, 64, 96, 240
    nAB = D + 1
    vA, vBX, vBH, vHW = [2, 3, 4], [5, 6, 7, 8], [9, 10, 11], [12, 13, 14]
    vTG, vL16 = vT + 11, vT + 10
    assert vAB + 4 * nAB <= vXB
    sA, sBq = sT4, sT5
    A(f"s_and_b32 s{sA}, s{sWV}, 1")
    A(f"s_lshr_b32 s{sBq}, s{sWV}, 1")
    A(f"v_lshrrev_b32 v{vT}, 5, v1")
    A(f"s_mul_i32 s60, s{sJ}, 1152")
    A(f"s_mul_i32 s{sT1}, s{sI}, 384")
    A(f"s_add_u32 s60, s60, s{sT1}")
    A(f"s_lshl_b32 s{sT1}, s{sBq}, 6")
    A(f"s_add_u32 s61, s60, s{sT1}")
    A(f"v_lshlrev_b32 v{vT+4}, 3, v{vT}")
    if cfg.sa:
        A(f"s_add_u32 s{sT3}, s{sWV}, 1")
        A(f"v_and_b32 v{vT+5}, 7, v1")
        A(f"v_mul_u32_u24 v{vT+5}, 9216, v{vT+5}")
        A(f"v_lshrrev_b32 v{vT+6}, 3, v1")
        A(f"v_min_u32 v{vT+6}, 2, v{vT+6}")
        A(f"v_lshl_add_u32 v{vT+5}, v{vT+6}, 7, v{vT+5}")
        A(f"s_lshl_b32 s{sT1}, s{sT3}, 3")
        A(f"s_add_u32 s{sT1}, s{sT1}, s{sMT}")
        A(f"s_mul_i32 s{sT1}, s{sT1}, {8*9216}")
        A(f"s_add_u32 s{sT1}, s{sT1}, s60")
        A(f"s_mul_i32 s{sT2}, s{sI}, 22")
        A(f"v_min_u32 v{vT+6}, 21, v1")
        A(f"v_add_u32 v{vT+6}, s{sT2}, v{vT+6}")
        A(f"v_min_u32 v{vT+6}, 63, v{vT+6}")
        A(f"v_mul_u32_u24 v{vT+6}, 1152, v{vT+6}")
        A(f"s_mul_i32 s{sT2}, s{sMT}, {64*1152}")
        A(f"s_lshl_b32 s{sT3}, s{sT3}, 7")
        A(f"s_add_u32 s{sT2}, s{sT2}, s{sT3}")
    A("s_waitcnt lgkmcnt(0)")
    srd(SRD0, sB1, 9216)
    for l in range(3):
        for g in range(4):
            r = vXB + 2 * (4 * l + g)
            A(f"buffer_load_dwordx2 v[{r}:{r+1}], v{vT+4}, s[{SRD0}:{SRD0+3}], s61 offen offset:{128*l+16*g}")
    if cfg.sa:
        srd(SRD1, sW1, 5308416)
        srd(SRD2, sX, 589824)
        A(f"s_cmp_ge_u32 s{sWV}, {cfg.sa}")
        A("s_cbranch_scc1 L_tdone")
        A(f"buffer_load_dword v255, v{vT+5}, s[{SRD1}:{SRD1+3}], s{sT1} offen {cfg.tfl}")
        A(f"buffer_load_dword v255, v{vT+6}, s[{SRD2}:{SRD2+3}], s{sT2} offen")
        A.label("L_tdone")
    epoch_load(sMT)
    A.tail("c")
    srd(SRD2, sB2, 1152)
    A(f"v_and_b32 v{vT+1}, 3, v1")
    A(f"v_lshlrev_b32 v{vT+1}, 2, v{vT+1}")
    A(f"v_lshl_add_u32 v{vT+1}, v{vT}, 4, v{vT+1}")
    A(f"s_mul_i32 s{sT1}, s{sI}, 384")
    A(f"s_lshl_b32 s{sT0}, s{sWV}, 5")
    A(f"s_add_u32 s{sT1}, s{sT1}, s{sT0}")
    A(f"buffer_load_dword v249, v{vT+1}, s[{SRD2}:{SRD2+3}], s{sT1} offen offset:256")
    srd(SRD1, sWS, 0x10000000)
    A(f"v_bfe_u32 v{vT+1}, v1, 2, 2")
    A(f"v_lshl_add_u32 v{vT+2}, v{vT}, 2, v{vT+1}")
    A(f"v_lshlrev_b32 v{vT+2}, 7, v{vT+2}")
    A(f"v_bfe_u32 v{vT+3}, v1, 3, 1")
    A(f"v_xor_b32 v{vT+3}, s{sBq}, v{vT+3}")
    A(f"v_lshl_add_u32 v{vT+2}, v{vT+3}, 6, v{vT+2}")
    A(f"v_bfe_u32 v{vT+3}, v1, 4, 1")
    A(f"v_lshl_add_u32 v{vT+2}, v{vT+3}, 5, v{vT+2}")
    A(f"v_and_b32 v{vT+3}, 3, v1")
    A(f"v_lshl_add_u32 v{vA[0]}, v{vT+3}, 3, v{vT+2}")
    A(f"v_add_u32 v{vA[1]}, 0x10000, v{vA[0]}")
    A(f"v_add_u32 v{vA[2]}, 0x20000, v{vA[0]}")
    A(f"v_and_b32 v{vT+1}, 31, v1")
    A(f"v_bfe_u32 v{vT+2}, v1, 1, 3")
    A(f"v_xor_b32 v{vT+2}, v{vT}, v{vT+2}")
    A(f"v_lshlrev_b32 v{vT+2}, 4, v{vT+2}")
    A(f"v_lshl_add_u32 v{vT+2}, v{vT+1}, 7, v{vT+2}")
    A(f"s_lshl_b32 s{sT0}, s{sA}, 12")
    A(f"s_add_u32 s{sT1}, s{sT0}, 0x20000")
    A(f"v_add_u32 v{vBX[0]}, s{sT1}, v{vT+2}")
    for sp in range(1, 4):
        A(f"v_xor_b32 v{vBX[sp]}, {32*sp}, v{vBX[0]}")
    A(f"v_lshl_add_u32 v{vBH[0]}, v1, 4, s{sT0}")
    A(f"v_add_u32 v{vBH[1]}, 0x10000, v{vBH[0]}")
    A(f"v_add_u32 v{vBH[2]}, 0x20000, v{vBH[0]}")
    A(f"s_lshl_b32 s{sT1}, s{sBq}, 11")
    for k in range(3):
        A(f"v_add_u32 v{vHW[k]}, s{sT1}, v{vBH[k]}")
    sI0 = 38
    sMS, sML, sMC = 39, 63, 59
    sHS = [60, 61, 62]
    if cfg.iside >= 0:
        A(f"s_xor_b32 s{sI0}, s{sA}, {cfg.iside}")
        A(f"s_lshl_b32 s{sI0}, s{sI0}, 13")
    else:
        A(f"s_mul_i32 s{sI0}, s{sA}, {4*SD}")
    if cfg.numa:
        A(f"s_mul_i32 s{sT1}, s{sI}, {HW}")
        A(f"s_add_u32 s{sI0}, s{sI0}, s{sT1}")
        A(f"s_lshl_b32 s{sT1}, s{sMT}, 22")
    else:
        A(f"s_mul_i32 s{sT1}, s{sR}, {SR}")
    A(f"s_add_u32 s{sI0}, s{sI0}, s{sT1}")
    A(f"s_mul_i32 s{sT1}, s{sJ}, {SS}")
    A(f"s_add_u32 s{sI0}, s{sI0}, s{sT1}")
    A(f"s_add_u32 s{sI0}, s{sI0}, {WS_IN}")
    A(f"s_lshl_b32 s{sT1}, s{sBq}, 9")
    A(f"s_add_u32 s{sI0}, s{sI0}, s{sT1}")
    A(f"v_bfe_u32 v{vT+1}, v1, 3, 2")
    A(f"v_mul_u32_u24 v{vT+1}, {SD}, v{vT+1}")
    A(f"v_and_b32 v{vT+2}, 7, v1")
    A(f"v_lshl_add_u32 v{vT+1}, v{vT+2}, 4, v{vT+1}")
    A(f"v_lshl_add_u32 v{vL16}, v{vT}, 7, v{vT+1}")
    A(f"s_mov_b32 s{sMS}, 0x80008000")
    A(f"s_mov_b32 s{sML}, 0x00010001")
    A(f"s_mov_b32 s{sMC}, 0x7fff7fff")
    A(f"s_mul_i32 s{sHS[0]}, s{sI if cfg.numa else (sWK if cfg.hside < 0 else sR)}, {HW}")
    if cfg.numa:
        gbase(sT1, sT3)
        A(f"s_add_u32 s{sHS[0]}, s{sHS[0]}, s{sT1}")
        A(f"s_lshl_b32 s{sT1}, s{sMT}, 10")
        A(f"s_lshl_b32 s{sT3}, s{sA}, 9")
        A(f"s_add_u32 s{sT1}, s{sT1}, s{sT3}")
        A(f"s_add_u32 s{sT1}, s{sT1}, {WS_FL}")
        A(f"s_add_u32 s28, s{sWS}, s{sT1}")
        A(f"s_addc_u32 s29, s{sWS+1}, 0")
    elif cfg.hside >= 0:
        jbase(sT1, sJ, cfg.hside, sT3)
        A(f"s_add_u32 s{sHS[0]}, s{sHS[0]}, s{sT1}")
    if WS_H:
        A(f"s_add_u32 s{sHS[0]}, s{sHS[0]}, {WS_H}")
    A(f"s_add_u32 s{sHS[1]}, s{sHS[0]}, {HL}")
    A(f"s_add_u32 s{sHS[2]}, s{sHS[0]}, {2*HL}")
    def dummy(n, tag):
        if not n:
            return
        for k in range(8):
            A(f"v_mul_u32_u24 v{160+k}, {0x9e3779 + 77*k}, v0")
            A(f"v_and_b32 v{160+k}, 0x3fff3fff, v{160+k}")
        A(f"s_mov_b32 s15, {n // 4}")
        A.label(f"L_dum{tag}")
        for k in range(4):
            A(f"v_mfma_f32_32x32x16_bf16 v[{176+16*k}:{191+16*k}], v[{160+4*(k&1)}:{163+4*(k&1)}], v[{160+4*(k>>1)}:{163+4*(k>>1)}], 0")
        A("s_sub_u32 s15, s15, 1")
        A("s_cmp_lg_u32 s15, 0")
        A(f"s_cbranch_scc1 L_dum{tag}")
    dummy(cfg.dum1, "a")
    epoch_fin()
    slot_add(sI0, *sHS)
    sIL = [sI0, 10, 11]
    assert not any(ROT)
    A(f"s_add_u32 s10, s{sI0}, {SL}")
    A(f"s_add_u32 s11, s{sI0}, {2*SL}")
    tag_regs(vTG, vT + 1)
    assert not cfg.sa
    A("s_waitcnt vmcnt(1)")
    if cfg.sa:
        A(f"s_cmp_lt_u32 s{sWV}, {cfg.sa}")
        A("s_cbranch_scc1 L_bw")
        A("s_waitcnt vmcnt(0)")
        A.label("L_bw")
    for l in range(3):
        for g in range(4):
            r = vXB + 2 * (4 * l + g)
            d = vACC + 16 * l + 4 * g
            A(f"v_lshlrev_b32 v{d}, 16, v{r}")
            A(f"v_and_b32 v{d+1}, 0xffff0000, v{r}")
            A(f"v_lshlrev_b32 v{d+2}, 16, v{r+1}")
            A(f"v_and_b32 v{d+3}, 0xffff0000, v{r+1}")
    dummy(cfg.dum2, "b")
    stamp()

    items = []
    for st in stages:
        bykb = {}
        for u in st["units"]:
            bykb.setdefault(u[2], []).append(u)
        for kb, us in bykb.items():
            if st["q"] == n_g1 - 1 and cfg.tm:
                seq = [int(c) for c in cfg.tm]
                nsp = {0: 0, 1: 0, 2: 0}
                for t_ in seq:
                    (t, wb, _kb, fst) = [u for u in us if u[0] == t_][0]
                    items.append(dict(q=st["q"], tile=t, wb=wb, kb=kb, sp=nsp[t], first=False))
                    nsp[t] += 1
                assert all(v == 4 for v in nsp.values())
                continue
            if len(us) == 2 and cfg.chain:
                for (t, wb, _kb, fst) in us:
                    for sp in range(4):
                        items.append(dict(q=st["q"], tile=t, wb=wb, kb=kb, sp=sp, first=(fst and sp == 0)))
                continue
            for sp in range(4):
                for (t, wb, _kb, fst) in us:
                    items.append(dict(q=st["q"], tile=t, wb=wb, kb=kb, sp=sp, first=(fst and sp == 0)))
    NI = len(items)
    aux_used = set()
    if cfg.dual:
        own_end = max(n for n, it in enumerate(items) if it["q"] >= n_g1 and it["kb"] < 3)
        assert all(kbidx[(0, l)] < 3 for l in range(3))
        for n, it in enumerate(items):
            if n > own_end + 1 and items[n - 1]["tile"] == it["tile"]:
                it["first"] = it["tile"] not in aux_used
                aux_used.add(it["tile"])
                it["tile"] += 3

    def accbase(t):
        return vACC + 16 * t if t < 3 else vXB + 16 * (t - 3)
    last_item = {}
    for n, it in enumerate(items):
        last_item[it["q"]] = n
    bread_of = {(st["q"], kb): bb for st in stages for (bb, kb) in st["breads"]}
    lg = []
    smem_room = [False]

    def ds_issue(instr, tag):
        cap = (14 if TS else 15) - (4 if smem_room[0] else 0)
        if len(lg) >= cap:
            A(f"s_waitcnt lgkmcnt({cap-2})")
            del lg[:len(lg) - (cap - 2)]
        A(instr)
        lg.append(tag)

    def ds_need(tags):
        idx = max([i for i, t in enumerate(lg) if t in tags], default=-1)
        if idx >= 0:
            A(f"s_waitcnt lgkmcnt({len(lg) - 1 - idx})")
            del lg[:idx + 1]

    checked = [-1]
    bdone = set()
    dirty, clean_pos = {}, {}

    def clean(m):
        key = (items[m]["kb"], items[m]["sp"])
        if key in dirty and dirty[key] == m:
            del dirty[key]
            ds_need({("B",) + key})
            r = vXB + 16 * key[0] + 4 * key[1]
            for k in range(4):
                A(f"v_and_b32 v{r+k}, s{sMC}, v{r+k}")
            clean_pos[m] = len(A.L) - 1

    def issue_reads(n):
        it = items[n]
        q = it["q"]
        if q > checked[0]:
            ds_need({"hw"})
            fl4 = [f"s_load_dwordx2 s[{16+2*k}:{17+2*k}], s[28:29], {128*k} glc" for k in range(4)]
            if cfg.numa and q == n_g1 + 3:
                flag_chk([16, 18, 20, 22], fl4, sT0, sT1, sT2, sT3)
                lg.clear()
                A(f"v_bfe_u32 v{vT+1}, v1, 3, 2")
                A(f"v_lshrrev_b32 v{vT+1}, v{vT+1}, s{sT2}")
                A(f"v_and_b32 v{vT+1}, 1, v{vT+1}")
                A(f"v_lshl_add_u32 v{vL16}, v{vT+1}, 13, v{vL16}")
            A("s_barrier")
            checked[0] = q
            smem_room[0] = cfg.numa and q == n_g1 + 2
            if smem_room[0] and len(lg) > 10:
                A("s_waitcnt lgkmcnt(10)")
                del lg[:len(lg) - 10]
            if cfg.numa and q == cfg.flq + 1:
                flag_load()
            if cfg.numa and q == n_g1 + 2:
                for x in fl4:
                    A(x)
            if q in cfg.tsq:
                stamp()
        key = (q, it["kb"])
        if key in bread_of and (key, it["sp"]) not in bdone:
            bdone.add((key, it["sp"]))
            bb = blocks[bread_of[key]]
            addr = bb["slot"] * 8192
            r = vXB + 16 * it["kb"] + 4 * it["sp"]
            if bb["kind"] == "X":
                assert addr >> 16 == 2
                ds_issue(f"ds_read_b128 v[{r}:{r+3}], v{vBX[it['sp']]} offset:{addr & 0xffff}", ("B", it["kb"], it["sp"]))
            else:
                ds_issue(f"ds_read_b128 v[{r}:{r+3}], v{vBH[addr >> 16]} offset:{(addr & 0xffff) + 1024*it['sp']}",
                         ("B", it["kb"], it["sp"]))
                if bb["kind"] != "Hown":
                    if not cfg.hlsb:
                        dirty[(it["kb"], it["sp"])] = n
        wb = blocks[it["wb"]]
        addr = wb["slot"] * 8192 + 2048 * it["sp"]
        r = vAB + 4 * (n % nAB)
        ds_issue(f"ds_read_b64_tr_b16 v[{r}:{r+1}], v{vA[addr >> 16]} offset:{addr & 0xffff}", ("A", n))
        ds_issue(f"ds_read_b64_tr_b16 v[{r+2}:{r+3}], v{vA[addr >> 16]} offset:{(addr & 0xffff) + 1024}", ("A", n))

    post = []

    def epi1_instrs(pi, lines):
        out, late = [], []
        for l in lines:
            a = vACC + 16 * l
            addr = blocks[f"H0_{l}"]["slot"] * 8192
            for half in range(2):
                base = a + 8 * half
                if cfg.epi == 1:
                    assert cfg.hlsb
                    for k in range(8):
                        out.append(("v", f"v_mul_f32 v{base+k}, v{base+k}, |v{base+k}|"))
                    for k in range(4):
                        out.append(("v", f"v_cvt_pk_bf16_f32 v{base+k}, v{base+2*k}, v{base+2*k+1}"))
                    for k in range(4):
                        out.append(("v", f"v_pk_max_i16 v{base+k}, v{base+k}, 0"))
                else:
                    for k in range(8):
                        out.append(("v", f"v_max_f32 v{base+k}, 0, v{base+k}"))
                    for k in range(0, 8, 2):
                        out.append(("v", f"v_pk_mul_f32 v[{base+k}:{base+k+1}], v[{base+k}:{base+k+1}], v[{base+k}:{base+k+1}]"))
                    for k in range(4):
                        out.append(("v", f"v_cvt_pk_bf16_f32 v{base+k}, v{base+2*k}, v{base+2*k+1}"))
                for k in range(4):
                    out.append(("v", f"v_bfi_b32 v{base+4+k}, s{sML}, v{vTG+k}, v{base+k}" if cfg.hlsb else
                                f"v_and_or_b32 v{base+4+k}, v{vTG+k}, s{sMS}, v{base+k}"))
                out.append(("v", f"buffer_store_dwordx4 v[{base+4}:{base+7}], v{vHW[0]}, s[{SRD1}:{SRD1+3}], s{sHS[l]} offen offset:{1024*half} {cfg.hsf}"))
                out.append(("w", f"ds_write_b128 v{vHW[addr >> 16]}, v[{base}:{base+3}] offset:{(addr & 0xffff) + 1024*half}"))
                t = ("v", f"buffer_load_dword v255, v{vHW[0]}, s[{SRD1}:{SRD1+3}], s{sHS[l]} offen offset:{1024*half} {cfg.stf}")
                if cfg.stouch == 1:
                    out.append(t)
                elif cfg.stouch == 2:
                    late.append(t)
                elif cfg.stouch == 3:
                    post.append(t)
        return out + late

    def epi2_instrs(lines):
        out = []
        for l in lines:
            for u in range(2):
                base = vACC + 8 * (2 * l + u)
                if l in aux_used:
                    ab = accbase(l + 3) + 8 * u
                    for k in range(0, 8, 2):
                        out.append(("v", f"v_pk_add_f32 v[{base+k}:{base+k+1}], v[{base+k}:{base+k+1}], v[{ab+k}:{ab+k+1}]"))
                for k in range(4):
                    out.append(("v", f"v_cvt_pk_bf16_f32 v{base+k}, v{base+2*k}, v{base+2*k+1}"))
                out.append(("v", "s_nop 1"))
                out.append(("v", f"v_permlane32_swap_b32 v{base}, v{base+2}"))
                out.append(("v", f"v_permlane32_swap_b32 v{base+1}, v{base+3}"))
                for k in (0, 2, 1, 3):
                    out.append(("v", f"v_bfi_b32 v{base+k}, s{sML}, v{vTG+k}, v{base+k}"))
                out.append(("v", f"buffer_store_dwordx4 v[{base}:{base+3}], v{vL16}, s[{SRD1}:{SRD1+3}], s{sIL[l]} offen offset:{256*u} {cfg.psf}"))
        return out

    fillers = []
    fill_start = 0
    fill_tiles = set()
    mfma_pos = {}
    fill_fresh = [False]

    def states_since(pos):
        c = 0
        for ln in A.L[pos + 1:]:
            t = ln.strip()
            if t.endswith(":") or t.startswith(";") or t.startswith("@@"):
                continue
            c += int(t.split()[1]) + 1 if t.startswith("s_nop") else 1
        return c

    late_w = []

    def emit(kind, t):
        if kind == "mark":
            have = min(states_since(mfma_pos[tl]) for tl in t[0])
            if have < 12:
                A(f"s_nop {12 - have - 1}")
        elif kind == "w":
            ds_issue(t, "hw")
        else:
            A(t)

    def flush_fillers():
        nonlocal fillers
        for (kind, t) in fillers + late_w:
            emit(kind, t)
        fillers = []
        late_w.clear()
        fill_tiles.clear()

    trig = {}
    for l in range(3):
        trig[max(n for n, it in enumerate(items) if it["q"] < n_g1 and it["tile"] == l)] = (1, l)
        trig[max(n for n, it in enumerate(items) if it["q"] >= n_g1 and it["tile"] % 3 == l)] = (2, l)

    nread = 0
    for n in range(NI):
        it = items[n]
        lim = min(NI - 1, n + D)
        while nread <= lim:
            nx = items[nread]
            if nx["q"] > checked[0]:
                due = [l for l, v in hown_vis.items() if v == nx["q"]]
                if due:
                    if last_item[hown_w[due[0]]] >= n:
                        break
                    flush_fillers()
            key = (nx["q"], nx["kb"])
            if key in bread_of and (key, nx["sp"]) not in bdone:
                if any(items[m]["kb"] == nx["kb"] and items[m]["sp"] == nx["sp"] for m in range(n, nread)):
                    break
            issue_reads(nread)
            nread += 1
        assert nread > n
        if it["tile"] in fill_tiles:
            flush_fillers()
            A("s_nop 1")
        clean(n)
        ds_need({("A", n), ("B", it["kb"], it["sp"])})
        if it["first"]:
            ds_need({"hw"})
        if n in clean_pos and states_since(clean_pos[n]) < 2:
            A(f"s_nop {1 - states_since(clean_pos[n])}")
        ra = vAB + 4 * (n % nAB)
        rb = vXB + 16 * it["kb"] + 4 * it["sp"]
        acc = accbase(it["tile"])
        c = "0" if it["first"] else f"v[{acc}:{acc+15}]"
        if cfg.m16test == 1:
            for hh in range(2):
                a4 = acc + 8 * (it["sp"] & 1) + 4 * hh
                rb2 = vXB + 16 * it["kb"] + 4 * (it["sp"] if hh == 0 else max(it["sp"] - 1, 0))
                A(f"v_mfma_f32_16x16x32_bf16 v[{a4}:{a4+3}], v[{ra}:{ra+3}], v[{rb2}:{rb2+3}], v[{a4}:{a4+3}]")
        elif cfg.m16test == 2:
            A("s_nop 7")
        else:
            A(f"v_mfma_f32_32x32x16_bf16 v[{acc}:{acc+15}], v[{ra}:{ra+3}], v[{rb}:{rb+3}], {c}")
        mfma_pos[it["tile"]] = len(A.L) - 1
        if cfg.numa and n == last_item[n_g1 - 1]:
            flag_fin(sT0, sT1, sT2)
            lg.clear()
            for l in range(3):
                A(f"s_add_u32 s{sHS[l]}, s{sHS[l]}, s{sSIDE}")
        if n + 1 < nread:
            clean(n + 1)
        k = 0
        while fillers and k < (cfg.fill1 if it["q"] < n_g1 else cfg.fill):
            if fillers[0][0] == "mark" and n < fillers[0][1][1]:
                break
            kind, t = fillers.pop(0)
            emit(kind, t)
            k += kind != "mark"
        if not fillers and not late_w:
            fill_tiles.clear()
        if n == last_item[it["q"]] and (it["q"] in epi_after or it["q"] in epi2_after):
            stamp()
        if n in trig:
            g, l = trig[n]
            tl = [l] + ([l + 3] if (g == 2 and l in aux_used) else [])
            new = epi1_instrs(0, [l]) if g == 1 else epi2_instrs([l])
            if cfg.wlast:
                late_w.extend(x for x in new if x[0] == "w")
                new = [x for x in new if x[0] != "w"]
            fillers += [("mark", (tl, n + cfg.fdel))] + new
            fill_tiles.update(tl)
    flush_fillers()
    stamp()
    if cfg.rnb >= 1 and not cfg.rlate:
        A("s_barrier")
    reduce_code(1, 0)
    if TS:
        A("s_waitcnt vmcnt(0)")
        A("s_memrealtime s[98:99]")
        A("s_waitcnt lgkmcnt(0)")
        assert tsn[0] <= 14, tsn[0]
        A(f"s_mov_b32 s{sTS+28}, s98"); A(f"s_mov_b32 s{sTS+30}, s{sCNT}")
        tsn[0] = 16
        stamp_flush()
    if cfg.enc and cfg.encw < 4:
        A("s_branch L_noep")
    A("s_branch L_end")

    A.head("hl")
    A.label("L_helper")
    sG = 38
    A(f"s_lshl_b32 s{sG}, s{sWV}, 3")
    A(f"s_add_u32 s{sG}, s{sG}, s{sR}")
    A("v_mul_u32_u24 v8, 9216, v1")
    A("v_mul_u32_u24 v9, 1152, v1")
    A(f"s_mul_i32 s39, s{sJ}, 1152")
    NWT = 64
    if cfg.numa:
        NWT = 56
        A(f"s_cmp_eq_u32 s{sWV}, 7")
        A("s_cbranch_scc1 L_probe")
    if cfg.hw:
        NWT = 8 * cfg.hw
        A(f"s_cmp_ge_u32 s{sWV}, {cfg.hw}")
        A("s_cbranch_scc1 L_end")

    def thr(rnd):
        if cfg.hw and rnd > cfg.hq and cfg.hq < 60:
            A(f"s_waitcnt vmcnt({cfg.hq})")
    A("s_waitcnt lgkmcnt(0)")

    def sdiv(dst, src, d):
        A(f"s_mul_i32 s{dst}, s{src}, {(65536 + d - 1) // d}")
        A(f"s_lshr_b32 s{dst}, s{dst}, 16")

    w2base = 0
    if cfg.touch and any(ROT):
        srd(SRD0, sW1, 5308416)
        srd(SRD1, sX, 589824)
        need = {kk: min((kk - r) % 9 for r in ROT) for kk in range(9)}
        kks = sorted([kk for kk in range(9) if need[kk] >= cfg.skipw], key=lambda kk: need[kk])
        KT = sum(kk << (4 * u) for u, kk in enumerate(kks))
        nW = 9 * len(kks)
        x0 = cfg.skipx
        nX = 8 * (9 - x0)
        tot = nW + nX
        for rnd in range((tot + NWT - 1) // NWT):
            if rnd == 1:
                A.tail("hl")
            k = A.uid()
            A(f"s_add_u32 s{sT0}, s{sG}, {NWT*rnd}")
            if NWT * rnd < nW:
                if NWT * rnd + NWT > nW:
                    A(f"s_cmp_ge_u32 s{sT0}, {nW}")
                    A(f"s_cbranch_scc1 L_hx{k}")
                sdiv(sT1, sT0, 9)
                A(f"s_mul_i32 s{sT2}, s{sT1}, 9")
                A(f"s_sub_u32 s{sT2}, s{sT0}, s{sT2}")
                A(f"s_lshl_b32 s{sT1}, s{sT1}, 2")
                A(f"s_lshr_b32 s{sT1}, {KT}, s{sT1}")
                A(f"s_and_b32 s{sT1}, s{sT1}, 15")
                A(f"s_mul_i32 s{sT1}, s{sT1}, {64*9216}")
                A(f"s_lshl_b32 s{sT2}, s{sT2}, 7")
                A(f"s_add_u32 s{sT1}, s{sT1}, s{sT2}")
                A(f"s_add_u32 s{sT1}, s{sT1}, s39")
                A(f"buffer_load_dword v255, v8, s[{SRD0}:{SRD0+3}], s{sT1} offen {cfg.tfl}")
                if NWT * rnd + NWT > nW:
                    A(f"s_branch L_ht{k}")
            if NWT * rnd + NWT > nW:
                A.label(f"L_hx{k}")
                if NWT * rnd + NWT > tot:
                    A(f"s_cmp_ge_u32 s{sT0}, {tot}")
                    A(f"s_cbranch_scc1 L_ht{k}")
                A(f"s_sub_u32 s{sT0}, s{sT0}, {nW - 8*x0}")
                A(f"s_and_b32 s{sT2}, s{sT0}, 7")
                A(f"s_lshr_b32 s{sT1}, s{sT0}, 3")
                A(f"s_lshl_b32 s{sT3}, s{sT2}, 2")
                A(f"s_lshr_b32 s{sT3}, {ROTTAB}, s{sT3}")
                A(f"s_and_b32 s{sT3}, s{sT3}, 15")
                A(f"s_add_u32 s{sT1}, s{sT1}, s{sT3}")
                A(f"s_cmp_ge_u32 s{sT1}, 9")
                A(f"s_cselect_b32 s{sT3}, 9, 0")
                A(f"s_sub_u32 s{sT1}, s{sT1}, s{sT3}")
                A(f"s_mul_i32 s{sT2}, s{sT2}, {64*1152}")
                A(f"s_lshl_b32 s{sT1}, s{sT1}, 7")
                A(f"s_add_u32 s{sT1}, s{sT1}, s{sT2}")
                A(f"buffer_load_dword v255, v9, s[{SRD1}:{SRD1+3}], s{sT1} offen")
            A.label(f"L_ht{k}")
        w2base = (NWT - tot % NWT) % NWT
    elif cfg.touch:
        srd(SRD0, sW1, 5308416)
        srd(SRD1, sX, 589824)
        phases, base = [], 0
        for pi, ls in enumerate(passes):
            t0 = cfg.ht0 if pi == 0 else 0
            c = 3 * len(ls) + (8 if pi == 0 else 0)
            phases.append((base, (9 - t0 - cfg.tn) * c, t0, c, ls))
            base += (9 - t0 - cfg.tn) * c
        w2base = (NWT - base % NWT) % NWT if cfg.w2rot else 0
        for rnd in range((base + NWT - 1) // NWT):
            if rnd == 1:
                A.tail("hl")
            k = A.uid()
            A(f"s_add_u32 s{sT0}, s{sG}, {NWT*rnd}")
            for (pb, cnt, t0, c, ls) in phases:
                if pb + cnt <= NWT * rnd or pb >= NWT * rnd + NWT:
                    continue
                k2 = A.uid()
                A(f"s_cmp_ge_u32 s{sT0}, {pb+cnt}")
                A(f"s_cbranch_scc1 L_hp{k2}")
                if pb:
                    A(f"s_sub_u32 s{sT0}, s{sT0}, {pb}")
                sdiv(sT1, sT0, c)
                A(f"s_mul_i32 s{sT2}, s{sT1}, {c}")
                A(f"s_sub_u32 s{sT2}, s{sT0}, s{sT2}")
                if t0:
                    A(f"s_add_u32 s{sT1}, s{sT1}, {t0}")
                if cfg.tn:
                    A(f"s_cmp_ge_u32 s{sT1}, {cfg.ta}")
                    A(f"s_cselect_b32 s{sT3}, {cfg.tn}, 0")
                    A(f"s_add_u32 s{sT1}, s{sT1}, s{sT3}")
                nw = 3 * len(ls)
                if c > nw:
                    A(f"s_cmp_ge_u32 s{sT2}, {nw}")
                    A(f"s_cbranch_scc1 L_hx{k2}")
                if len(ls) != 3:
                    if len(ls) == 1:
                        A(f"s_mul_i32 s{sT2}, s{sT2}, 3")
                    else:
                        A(f"s_lshr_b32 s{sT3}, s{sT2}, 1")
                        A(f"s_add_u32 s{sT2}, s{sT2}, s{sT3}")
                    if ls[0]:
                        A(f"s_add_u32 s{sT2}, s{sT2}, {ls[0]}")
                A(f"s_mul_i32 s{sT1}, s{sT1}, {64*9216}")
                A(f"s_lshl_b32 s{sT2}, s{sT2}, 7")
                A(f"s_add_u32 s{sT1}, s{sT1}, s{sT2}")
                A(f"s_add_u32 s{sT1}, s{sT1}, s39")
                thr(rnd)
                A(f"buffer_load_dword v255, v8, s[{SRD0}:{SRD0+3}], s{sT1} offen {cfg.tfl}")
                A(f"s_branch L_ht{k}")
                if c > nw:
                    A.label(f"L_hx{k2}")
                    A(f"s_sub_u32 s{sT2}, s{sT2}, {nw}")
                    A(f"s_mul_i32 s{sT2}, s{sT2}, {64*1152}")
                    A(f"s_lshl_b32 s{sT1}, s{sT1}, 7")
                    A(f"s_add_u32 s{sT1}, s{sT1}, s{sT2}")
                    thr(rnd)
                    A(f"buffer_load_dword v255, v9, s[{SRD1}:{SRD1+3}], s{sT1} offen")
                    A(f"s_branch L_ht{k}")
                A.label(f"L_hp{k2}")
            A.label(f"L_ht{k}")
    def h_pretouch():
        srd(SRD1, sWS, 0x10000000)
        A("v_lshlrev_b32 v10, 7, v1")
        A(f"s_mul_i32 s{sT1}, s{sJ}, 589824")
        A(f"s_add_u32 s{sT1}, s{sT1}, {WS_IN if cfg.hpin else WS_H}")
        for rnd in range(2):
            k = A.uid()
            A(f"s_add_u32 s{sT0}, s{sG}, {NWT*rnd}")
            A(f"s_cmp_ge_u32 s{sT0}, 72")
            A(f"s_cbranch_scc1 L_ht{k}")
            A(f"s_lshl_b32 s{sT0}, s{sT0}, 13")
            A(f"s_add_u32 s{sT0}, s{sT0}, s{sT1}")
            A(f"buffer_load_dword v255, v10, s[{SRD1}:{SRD1+3}], s{sT0} offen {cfg.hpf}")
            A.label(f"L_ht{k}")
    if cfg.hpre == 1:
        h_pretouch()
    if cfg.touch:
        srd(SRD0, sW2, 5308416)
        A(f"s_mul_i32 s39, s{sJ}, 663552")
        vord = [blocks[nm] for nm in order if blocks[nm]["kind"] == "W2"]
        if not cfg.vneed:
            vord.sort(key=lambda b: (kbidx[(b["d"], b["lk"])], b["l"]))
        for reg, key in ((60, "d"), (62, "lk"), (44, "l")):
            tab = sum(b[key] << (2 * u) for u, b in enumerate(vord))
            A(f"s_mov_b32 s{reg}, {tab & 0xffffffff}")
            A(f"s_mov_b32 s{reg+1}, {tab >> 32}")
        if w2base:
            A(f"s_add_u32 s{sG}, s{sG}, {w2base}")
            A(f"s_cmp_ge_u32 s{sG}, {NWT}")
            A(f"s_cselect_b32 s{sT0}, {NWT}, 0")
            A(f"s_sub_u32 s{sG}, s{sG}, s{sT0}")
        for rnd in range((81 + NWT - 1) // NWT):
            k = A.uid()
            A(f"s_add_u32 s{sT0}, s{sG}, {NWT*rnd}")
            A(f"s_cmp_ge_u32 s{sT0}, {81 - 18*cfg.vt}")
            A(f"s_cbranch_scc1 L_ht{k}")
            sdiv(sT1, sT0, 3)
            A(f"s_mul_i32 s{sT2}, s{sT1}, 3")
            A(f"s_sub_u32 s{sT2}, s{sT0}, s{sT2}")
            A(f"s_lshl_b32 s{sT1}, s{sT1}, 1")
            A(f"s_lshr_b64 s[46:47], s[60:61], s{sT1}")
            A(f"s_and_b32 s{sT0}, s46, 3")
            A(f"s_add_u32 s{sT0}, s{sT0}, s{sT2}")
            A(f"s_cmp_ge_u32 s{sT0}, 3")
            A(f"s_cselect_b32 s{sT3}, 3, 0")
            A(f"s_sub_u32 s{sT0}, s{sT0}, s{sT3}")
            A(f"s_lshr_b64 s[46:47], s[62:63], s{sT1}")
            A(f"s_and_b32 s{sT3}, s46, 3")
            A(f"s_mul_i32 s{sT0}, s{sT0}, {192*1152}")
            A(f"s_mul_i32 s{sT3}, s{sT3}, {64*1152}")
            A(f"s_add_u32 s{sT0}, s{sT0}, s{sT3}")
            A(f"s_lshr_b64 s[46:47], s[44:45], s{sT1}")
            A(f"s_and_b32 s{sT3}, s46, 3")
            A(f"s_mul_i32 s{sT2}, s{sT2}, 3")
            A(f"s_add_u32 s{sT2}, s{sT2}, s{sT3}")
            A(f"s_lshl_b32 s{sT2}, s{sT2}, 7")
            A(f"s_add_u32 s{sT0}, s{sT0}, s{sT2}")
            A(f"s_add_u32 s{sT0}, s{sT0}, s39")
            thr(99)
            A(f"buffer_load_dword v255, v9, s[{SRD0}:{SRD0+3}], s{sT0} offen {cfg.tfl}")
            A.label(f"L_ht{k}")
    if cfg.hpre == 2:
        h_pretouch()
    dummy(cfg.dumh, "h")
    if TS:
        tsn[0] = 1
        A("s_waitcnt vmcnt(0)")
        stamp()
        stamp()
        stamp_flush()
    A("s_branch L_end")
    if cfg.numa:
        A.tail("pr")
        A.label("L_probe")
        A(f"s_mov_b32 s{sMT}, s{sR}")
        sO1, sO2, sEV, sRD = 53, 54, 55, 56
        gbase(sO1, 58)
        A(f"s_add_u32 s{sO1}, s{sO1}, {cfg.wsb + 18*16384}")
        A(f"s_mov_b32 s{sRD}, 0")
        A("v_mov_b32 v2, 0")
        A("s_waitcnt lgkmcnt(0)")
        epoch_load(sMT)
        srd(SRD1, sWS, 0x10000000)
        A(f"s_lshl_b32 s57, s{sMT}, 3")
        A(f"s_add_u32 s57, s57, s{sJ}")
        A("s_lshl_b32 s57, s57, 7")
        A(f"s_add_u32 s57, s57, {WS_FL}")
        A("s_waitcnt lgkmcnt(0)")
        A(f"s_not_b32 s3, s{sTAG}")
        A(f"s_add_u32 s{sTAG}, s{sTAG}, 1")
        A(f"v_mov_b32 v4, s{sTAG}")
        A.label("L_pl")
        A(f"s_xor_b32 s{sO2}, s{sO1}, 8192")
        A("s_mov_b32 s61, s3")
        A(f"s_load_dword s60, s[{sWS}:{sWS+1}], s{sO1}")
        A(f"s_load_dword s61, s[{sWS}:{sWS+1}], s{sO2}")
        A("s_waitcnt lgkmcnt(1)")
        for _ in range(cfg.rd):
            A("s_nop 7")
        A("s_cmp_eq_u32 s61, s3")
        A("s_cbranch_scc1 L_pub")
        A(f"s_add_u32 s{sO1}, s{sO2}, 128")
        A(f"s_add_u32 s{sRD}, s{sRD}, 1")
        A("s_waitcnt lgkmcnt(0)")
        A(f"s_cmp_lt_u32 s{sRD}, {cfg.nrd}")
        A("s_cbranch_scc1 L_pl")
        A.label("L_pub")
        A(f"s_bfe_u32 s58, s{sO1}, 0x1000d")
        if cfg.numa == 2:
            A("s_xor_b32 s58, s58, 1")
        if TS:
            A(f"s_mov_b32 s{sTS+6}, s58")
            A(f"s_mov_b32 s{sTS+8}, s{sRD}")
        A(f"s_xnor_b32 s58, s{sTAG}, s58")
        A("v_mov_b32 v5, s58")
        A("s_mov_b64 exec, 1")
        A(f"buffer_store_dwordx2 v[4:5], v2, s[{SRD1}:{SRD1+3}], s57 offen sc1")
        A.label("L_pend")
        A("s_mov_b64 exec, -1")
        if TS:
            tsn[0] = 1
            stamp()
            A("s_waitcnt vmcnt(0)")
            stamp()
            tsn[0] = 5
            stamp_flush()
        A("s_waitcnt lgkmcnt(0)")
        A("s_branch L_end")
    A.tail("late")
    A.L.extend(late_code)
    A.tail("end")
    A.label("L_end")

    hdr = f"""; Fused MLP (x@w1+b1 -> relu^2 -> @w2+b2), generated by a python script (work/gen9.py)
; @launch grid=(256,1,1) block=(512,1,1) lds=163840
.amdgcn_target "amdgcn-amd-amdhsa--gfx950"
.text
.globl {KN}
.p2align 8
.type {KN},@function
{KN}:
"""
    ftr = f"""
    s_endpgm
.section .rodata,"a"
.p2align 6
.amdhsa_kernel {KN}
  .amdhsa_next_free_vgpr 256
  .amdhsa_next_free_sgpr 102
  .amdhsa_accum_offset 256
  .amdhsa_group_segment_fixed_size 0
  .amdhsa_kernarg_size 64
  .amdhsa_user_sgpr_count 2
  .amdhsa_user_sgpr_kernarg_segment_ptr 1
  .amdhsa_system_sgpr_workgroup_id_x 1
.end_amdhsa_kernel
"""
    return hdr + A.text(cfg.horder.split(","), (["pr"] if cfg.numa else []) + cfg.torder.split(",") + ["late", "end"]) + ftr


def parse_g2(s):
    out = []
    for stg in s.split(","):
        us = []
        for u in stg.split("+"):
            a, b = u.split(":")
            us.append((int(a[0]), int(a[1]), [int(c) for c in b]))
        out.append(us)
    return out


def ilist(s):
    return [int(x) for x in s.split(",")] if s else []


def main():
    ap = argparse.ArgumentParser()
    ap.add_argument("-o", default="k8.s")
    ap.add_argument("--ts", action="store_true")
    ap.add_argument("--passes", default="012")
    ap.add_argument("--depth", type=int, default=5)
    ap.add_argument("--fill", type=int, default=4)
    ap.add_argument("--grp1", type=int, default=3)
    ap.add_argument("--hres", type=float, default=2.5)
    ap.add_argument("--hearly", type=float, default=1.5)
    ap.add_argument("--hdel", type=int, default=1)
    ap.add_argument("--xfree", type=int, default=11)
    ap.add_argument("--g2", default="00:012,01:012,02:012,10:012,20:012,11:012,21:012,12:012,22:012")
    ap.add_argument("--tsq", default="")
    ap.add_argument("--verbose", action="store_true")
    ap.add_argument("--ahead", type=int, default=8)
    ap.add_argument("--ahead0", type=int, default=8)
    ap.add_argument("--capfrom", type=int, default=8)
    ap.add_argument("--capw", type=int, default=4)
    ap.add_argument("--capx", type=int, default=3)
    ap.add_argument("--burst", default="")
    ap.add_argument("--pause", default="")
    ap.add_argument("--go2lead", type=int, default=3)
    ap.add_argument("--sa", type=int, default=0)
    ap.add_argument("--ctouch", type=int, default=1)
    ap.add_argument("--wfl", default="")
    ap.add_argument("--tfl", default="")
    ap.add_argument("--rfl", default="sc1")
    ap.add_argument("--rsleep", type=int, default=0)
    ap.add_argument("--touch", type=int, default=1)
    ap.add_argument("--clrq", type=int, default=-1)
    ap.add_argument("--cdq", type=int, default=9)
    ap.add_argument("--rbar", type=int, default=0)
    ap.add_argument("--hsf", default="sc1")
    ap.add_argument("--hlf", default="sc1")
    ap.add_argument("--ofl", default="")
    ap.add_argument("--hpre", type=int, default=0)
    ap.add_argument("--rot", default="00000000")
    ap.add_argument("--ts0", type=int, default=0)
    ap.add_argument("--hlsb", type=int, default=1)
    ap.add_argument("--dual", type=int, default=0)
    ap.add_argument("--hw", type=int, default=0)
    ap.add_argument("--hq", type=int, default=0)
    ap.add_argument("--numa", type=int, default=0)
    ap.add_argument("--flq", type=int, default=5)
    ap.add_argument("--nev", type=int, default=2)
    ap.add_argument("--nrd", type=int, default=7)
    ap.add_argument("--rr", type=int, default=0)
    ap.add_argument("--rd", type=int, default=2)
    ap.add_argument("--rn", type=int, default=12)
    ap.add_argument("--rq", type=int, default=0)
    ap.add_argument("--hside", type=int, default=-1)
    ap.add_argument("--iside", type=int, default=-1)
    ap.add_argument("--obox", type=int, default=0)
    ap.add_argument("--probe", type=int, default=0)
    ap.add_argument("--vt", type=int, default=0)
    ap.add_argument("--vtq", type=int, default=10)
    ap.add_argument("--xpre", type=int, default=0)
    ap.add_argument("--m16test", type=int, default=0)
    ap.add_argument("--vneed", type=int, default=1)
    ap.add_argument("--tsreal", type=int, default=0)
    ap.add_argument("--vpipe", type=int, default=0)
    ap.add_argument("--ahead2", type=int, default=-1)
    ap.add_argument("--chain", type=int, default=1)
    ap.add_argument("--owide", type=int, default=0)
    ap.add_argument("--dum1", type=int, default=0)
    ap.add_argument("--dum2", type=int, default=0)
    ap.add_argument("--dumh", type=int, default=0)
    ap.add_argument("--encc", type=int, default=0)
    ap.add_argument("--encm", type=int, default=2)
    ap.add_argument("--slots", type=int, default=0)
    ap.add_argument("--rlate", type=int, default=0)
    ap.add_argument("--epi", type=int, default=0)
    ap.add_argument("--tm", default="")
    ap.add_argument("--wlast", type=int, default=0)
    ap.add_argument("--fdel", type=int, default=3)
    ap.add_argument("--fill1", type=int, default=5)
    ap.add_argument("--priow", type=int, default=0)
    ap.add_argument("--prioh", type=int, default=0)
    ap.add_argument("--r0early", type=int, default=0)
    ap.add_argument("--psf", default="sc1")
    ap.add_argument("--rw1", type=int, default=0)
    ap.add_argument("--ofl1", default="")
    ap.add_argument("--rpq", type=int, default=10)
    ap.add_argument("--rb2", type=int, default=1)
    ap.add_argument("--rb4", type=int, default=0)
    ap.add_argument("--rearly", type=int, default=0)
    ap.add_argument("--hpf", default="")
    ap.add_argument("--hpin", type=int, default=0)
    ap.add_argument("--wsb", type=lambda x: int(x, 0), default=0)
    ap.add_argument("--enc", default="")
    ap.add_argument("--encw", type=int, default=4)
    ap.add_argument("--hfree", type=int, default=2)
    ap.add_argument("--stouch", type=int, default=0)
    ap.add_argument("--stdel", type=int, default=1)
    ap.add_argument("--stf", default="")
    ap.add_argument("--ta", type=int, default=0)
    ap.add_argument("--tn", type=int, default=0)
    ap.add_argument("--tpos", type=int, default=0)
    ap.add_argument("--w2rot", type=int, default=1)
    ap.add_argument("--rfast", type=int, default=1)
    ap.add_argument("--wt", type=int, default=0)
    ap.add_argument("--horder", default="w,x,h2,hl,c")
    ap.add_argument("--ht0", type=int, default=1)
    ap.add_argument("--first", type=int, default=4)
    ap.add_argument("--torder", default="hl,w,x,h2,c,red")
    ap.add_argument("--skipw", type=int, default=1)
    ap.add_argument("--skipx", type=int, default=1)
    cfg = ap.parse_args()
    cfg.passes = [[int(c) for c in p] for p in cfg.passes.split(",")]
    cfg.g2 = parse_g2(cfg.g2)
    cfg.rnb = cfg.rb2
    cfg.tsq, cfg.burst, cfg.pause = ilist(cfg.tsq), ilist(cfg.burst), ilist(cfg.pause)
    open(cfg.o, "w").write(build(cfg))


main()
```

```python
import sys, argparse

KN = "standalone__dense_activation_squared_relu__sampling_kernel"

WS_H = 0x0
WS_IN = 0x1000000
WS_CD = 0x1840000
WS_EP = 0x1850000
WS_TS = 0x8000000
SPIN_MAX = 100000
SGNMASK = 0x6A9956A5


class Asm:
    def __init__(self):
        self.L = []
        self.n = 0

    def __call__(self, s):
        self.L.append("    " + s)

    def label(self, s):
        self.L.append(s + ":")

    def c(self, s):
        self.L.append("    ; " + s)

    def uid(self):
        self.n += 1
        return self.n

    def head(self, role):
        self.L.append(f"@@HEAD {role}")

    def tail(self, role):
        self.L.append(f"@@TAIL {role}")

    def text(self, horder, torder):
        pro, heads, tails, cur = [], {}, {}, None
        cur = pro
        for ln in self.L:
            if ln.startswith("@@HEAD"):
                cur = heads.setdefault(ln.split()[1], [])
            elif ln.startswith("@@TAIL"):
                r = ln.split()[1]
                if r in heads:
                    heads[r].append(f"    s_branch L_tail_{r}")
                cur = tails.setdefault(r, [f"L_tail_{r}:"])
            else:
                cur.append(ln)
        assert sorted(heads) == sorted(horder) and sorted(tails) == sorted(torder), (heads.keys(), tails.keys())
        out = pro
        for r in horder:
            out += heads[r]
        out.append("L_heads_end:")
        for r in torder:
            out += tails[r]
        return "\n".join(out)


def build(cfg):
    global WS_H, WS_IN, WS_EP
    WS_H = cfg.wsb
    WS_IN = cfg.wsb + 0x480000
    WS_EP = cfg.wsb + 0xc00000 if not cfg.slots else 0x10000
    A = Asm()
    SR, SD, SS, SL = {0: (24576, 589824, 3072, 1024), 1: (24576, 1024, 589824, 8192),
                      2: (196608, 8192, 1024, 65536), 3: (196608, 1024, 8192, 65536),
                      4: (221184, 9216, 1024, 73728), 5: (24*10496, 10496, 1280, 8*10496),
                      6: (221184, 1024, 9216, 73728), 7: (24*8448, 8448, 1024, 8*8448)}[cfg.obox]
    TS = cfg.ts
    HW, HL = (24576, 8192) if cfg.hside < 0 else (49152, 16384)
    if cfg.hside >= 0 or cfg.iside >= 0:
        WS_IN = cfg.wsb + 0x1000000
        WS_EP = cfg.wsb + 0x2000000
    if cfg.iside >= 0:
        SR, SD, SS, SL = 49152, 0x400000, 1024, 16384

    if cfg.numa:
        HW, HL = 49152, 16384
        SD, SS, SL = 0x80000, 1024, 16384
        WS_IN = cfg.wsb + 9 * 16384
        WS_EP = cfg.wsb + 0x2000000
    WS_FL = WS_EP + 0x1000
    sSIDE, sFO = 12, 14
    late_code = []

    def flag_load():
        A(f"s_lshl_b32 s{sFO}, s34, 3")
        A(f"s_add_u32 s{sFO}, s{sFO}, s32")
        A(f"s_lshl_b32 s{sFO}, s{sFO}, 7")
        A(f"s_add_u32 s{sFO}, s{sFO}, {WS_FL}")
        A(f"s_load_dwordx2 s[8:9], s[30:31], s{sFO} glc")

    def flag_chk(regs, reload, t0, t1, dst, cnt):
        k = A.uid()
        A(f"s_mov_b32 s{cnt}, 0")
        A.label(f"L_f{k}")
        A("s_waitcnt lgkmcnt(0)")
        A(f"s_mov_b32 s{dst}, 0")
        for n, r in enumerate(regs):
            A(f"s_xnor_b32 s{t0}, s{r+1}, s6")
            A(f"s_xor_b32 s{t1}, s{r}, s6")
            A(f"s_lshl_b32 s{r}, s{t0}, {n}")
            A(f"s_or_b32 s{dst}, s{dst}, s{r}")
            A(f"s_lshr_b32 s{t0}, s{t0}, 1")
            A(f"s_or_b32 s{t0}, s{t0}, s{t1}")
            A(f"s_cbranch_scc1 L_fr{k}")
        A.label(f"L_fd{k}")
        n0 = len(A.L)
        A.label(f"L_fr{k}")
        A(f"s_add_u32 s{cnt}, s{cnt}, 1")
        A(f"s_mov_b32 s{dst}, 0")
        A(f"s_cmp_gt_u32 s{cnt}, {SPIN_MAX}")
        A(f"s_cbranch_scc1 L_fd{k}")
        for x in reload:
            A(x)
        A(f"s_branch L_f{k}")
        late_code.extend(A.L[n0:])
        del A.L[n0:]

    def flag_fin(t0, t1, cnt):
        flag_chk([8], [f"s_load_dwordx2 s[8:9], s[30:31], s{sFO} glc"], t0, t1, sSIDE, cnt)
        A(f"s_lshl_b32 s{sSIDE}, s{sSIDE}, 13")

    def gbase(dst, tmp):
        A(f"s_lshl_b32 s{dst}, s34, 3")
        A(f"s_add_u32 s{dst}, s{dst}, s32")
        A(f"s_lshl_b32 s{dst}, s{dst}, 19")

    def jbase(dst, sj, side, tmp):
        A(f"s_and_b32 s{dst}, s{sj}, 3")
        A(f"s_lshl_b32 s{dst}, s{dst}, 22")
        A(f"s_lshr_b32 s{tmp}, s{sj}, 2")
        if side:
            A(f"s_xor_b32 s{tmp}, s{tmp}, 1")
        A(f"s_lshl_b32 s{tmp}, s{tmp}, 13")
        A(f"s_add_u32 s{dst}, s{dst}, s{tmp}")
    passes = cfg.passes
    D = cfg.depth

    stages, blocks, order = [], {}, []

    def blk(name, **kw):
        blocks[name] = dict(name=name, **kw)
        return name

    def add_stage(units, breads):
        q = len(stages)
        stages.append(dict(units=units, breads=breads, q=q))
        for (bb, _kb) in breads:
            b = blocks[bb]
            b["need"] = b["last"] = q
            if b["kind"] != "Hown":
                order.append(bb)
        for (_t, wb, _kb, _first) in units:
            b = blocks[wb]
            if "need" not in b:
                b["need"] = q
                order.append(wb)
            b["last"] = q
        return q

    epi_after, pass_of_line = {}, {}
    for pi, lines in enumerate(passes):
        grp = 1 if (len(lines) > 1 or pi == 0) else cfg.grp1
        for t0 in range(0, 9, grp):
            units, breads = [], []
            for t in range(t0, t0 + grp):
                if pi == 0:
                    breads.append((blk(f"X{t}", kind="X", t=t), t))
                for l in lines:
                    units.append((l, blk(f"W{t}_{l}", kind="W1", t=t, l=l), t, False))
            q = add_stage(units, breads)
        epi_after[q] = (pi, list(lines))
        for l in lines:
            pass_of_line[l] = pi
    n_g1 = len(stages)
    kbidx = {}
    first = {0: True, 1: True, 2: True}
    cnt2 = {0: 0, 1: 0, 2: 0}
    epi2_after = {}
    for stg in cfg.g2:
        units, breads = [], []
        for (d, lk, lines) in stg:
            if (d, lk) not in kbidx:
                kbidx[(d, lk)] = len(kbidx)
                breads.append((blk(f"H{d}_{lk}", kind="Hown" if d == 0 else f"H{d}", d=d, lk=lk), kbidx[(d, lk)]))
            for l in lines:
                units.append((l, blk(f"V{d}_{lk}_{l}", kind="W2", d=d, lk=lk, l=l), kbidx[(d, lk)], first[l]))
                first[l] = False
                cnt2[l] += 1
        q = add_stage(units, breads)
        done = [l for l in range(3) if cnt2[l] == 9 and not any(l in v for v in epi2_after.values())]
        if done:
            epi2_after[q] = done
    assert all(v == 9 for v in cnt2.values())
    NQ = len(stages)
    hown_w = {l: q for q, (pi, lines) in epi_after.items() for l in lines}
    hown_vis = {l: (q + 1 if q == n_g1 - 1 else q + 2) for l, q in hown_w.items()}
    for l in hown_w:
        assert blocks[f"H0_{l}"]["need"] >= hown_vis[l]
    hfetch = {l: hown_vis[l] + cfg.hdel for l in hown_w}

    free_at = {s: -10 for s in range(20)}
    events = [(blocks[nm]["need"] - (cfg.hearly if blocks[nm]["kind"] in ("H1", "H2") else 0), 1, k, nm) for k, nm in enumerate(order)]
    for l, qw in hown_w.items():
        events.append((qw - cfg.hres, 0, l, f"H0_{l}"))
    events.sort()
    for ev in events:
        b = blocks[ev[3]]
        if b["kind"] == "X":
            cand = [16, 17, 18, 19]
        elif ev[0] < cfg.xfree:
            cand = list(range(0, 16))
        else:
            cand = list(range(0, 20))
        s = min(cand, key=lambda s: (free_at[s], s))
        b["slot"] = s
        b["free"] = free_at[s]
        if b["kind"] == "Hown":
            assert b["free"] + cfg.hfree <= hown_w[b["lk"]], b
        else:
            assert b["free"] + 2 < b["need"], b
        free_at[s] = b["last"]
    if cfg.verbose:
        print(" | ".join(f"{blocks[e[3]]['name']}:s{blocks[e[3]]['slot']} f{blocks[e[3]]['free']} n{blocks[e[3]]['need']}" for e in events), file=sys.stderr)
    for k, nm in enumerate(order):
        blocks[nm]["pos"] = k
    cum = [sum(1 for nm in order if blocks[nm]["need"] <= q) for q in range(NQ)]

    sX, sW1, sB1, sW2, sB2, sOUT, sDBG, sWS = 16, 18, 20, 22, 24, 26, 28, 30
    sJ, sR, sMT, sI, sWV, sWK = 32, 33, 34, 35, 36, 37
    SRD0, SRD1, SRD2 = 40, 44, 48
    sT0, sT1, sT2, sT3, sT4, sT5 = 52, 53, 54, 55, 56, 57
    sCNT = 58
    sTAG, sPB = 6, 8
    sTS = 64
    tsn = [0]

    def stamp():
        if TS:
            k = tsn[0]
            assert k < 16
            A(f"{'s_memrealtime' if cfg.tsreal else 's_memtime'} s[{sTS+2*k}:{sTS+2*k+1}]")
            tsn[0] += 1

    def srd(d, p, nbytes):
        A(f"s_mov_b32 s{d}, s{p}")
        A(f"s_mov_b32 s{d+1}, s{p+1}")
        A(f"s_mov_b32 s{d+2}, {nbytes}")
        A(f"s_mov_b32 s{d+3}, 0x00020000")

    def stamp_flush():
        if not TS:
            return
        n = tsn[0]
        A("s_waitcnt lgkmcnt(0)")
        srd(SRD2, sWS, 0x10000000)
        A(f"s_lshl_b32 s{sT0}, s2, 9")
        A(f"s_lshl_b32 s{sT1}, s{sWV}, 6")
        A(f"s_add_u32 s{sT0}, s{sT0}, s{sT1}")
        A(f"s_add_u32 s{sT0}, s{sT0}, {WS_TS}")
        A(f"v_mov_b32 v2, s{sT0}")
        A("s_mov_b64 exec, 1")
        for k in range(n):
            A(f"v_mov_b32 v3, s{sTS+2*k}")
            A(f"buffer_store_dword v3, v2, s[{SRD2}:{SRD2+3}], 0 offen offset:{4*k}")
        A("s_mov_b64 exec, -1")

    def epoch_load(smt):
        A(f"s_lshl_b32 s{sT0}, s{smt}, 7")
        A(f"s_add_u32 s{sT0}, s{sT0}, {WS_EP}")
        A(f"s_load_dword s{sTAG}, s[{sWS}:{sWS+1}], s{sT0}")

    def epoch_fin():
        A("s_waitcnt lgkmcnt(0)")
        A(f"s_add_u32 s{sTAG}, s{sTAG}, 1")
        A(f"s_mul_i32 s{sTAG+1}, s{sTAG}, 0x22222222")
        A(f"s_and_b32 s{sTAG+1}, s{sTAG+1}, 0xeeeeeeee")
        A(f"s_or_b32 s{sTAG+1}, s{sTAG+1}, 0x10101010")
        if cfg.slots:
            A(f"s_and_b32 s14, s{sTAG}, {cfg.slots-1}")
            A(f"s_mul_i32 s14, s14, 0xa00000")

    def slot_add(*regs):
        if cfg.slots:
            for r in regs:
                A(f"s_add_u32 s{r}, s{r}, s14")

    def tag_regs(vd, vt):
        A(f"v_and_b32 v{vt}, 3, v1")
        A(f"v_lshlrev_b32 v{vt}, 3, v{vt}")
        A(f"v_lshrrev_b32 v{vt}, v{vt}, s{sTAG+1}")
        for k in range(4):
            A(f"v_bfe_u32 v{vd+k}, v{vt}, {2*k}, 2")
            A(f"v_mul_u32_u24 v{vd+k}, 0x8001, v{vd+k}")
            A(f"v_and_b32 v{vd+k}, 0x10001, v{vd+k}")
            A(f"v_lshl_or_b32 v{vd+k}, v{vd+k}, 15, v{vd+k}")

    def sign_reg(vd, vt):
        A(f"s_bitcmp1_b32 s{sTAG}, 0")
        A(f"s_cselect_b32 s{sT0}, -1, 0")
        A(f"s_xor_b32 s{sT0}, s{sT0}, {SGNMASK}")
        A(f"v_and_b32 v{vt}, 31, v1")
        A(f"v_lshrrev_b32 v{vt}, v{vt}, s{sT0}")
        A(f"v_bfe_i32 v{vt}, v{vt}, 0, 1")
        A(f"v_and_b32 v{vd}, 0x80008000, v{vt}")

    def sspin(loads, npairs, base):
        k = A.uid()
        A(f"s_mov_b32 s{sCNT}, 0")
        A.label(f"L_s{k}")
        for x in loads:
            A(x)
        A(f"s_add_u32 s{sCNT}, s{sCNT}, 1")
        A("s_waitcnt lgkmcnt(0)")
        A(f"s_cmp_gt_u32 s{sCNT}, {SPIN_MAX}")
        A(f"s_cbranch_scc1 L_sd{k}")
        for n in range(npairs):
            A(f"s_cmp_lg_u64 s[{base+2*n}:{base+2*n+1}], s[{sTAG}:{sTAG+1}]")
            A(f"s_cbranch_scc1 L_s{k}")
        A.label(f"L_sd{k}")

    def mod3add(dst, d, tmp):
        A(f"s_add_u32 s{dst}, s{sI}, {d}")
        A(f"s_cmp_ge_u32 s{dst}, 3")
        A(f"s_cselect_b32 s{tmp}, 3, 0")
        A(f"s_sub_u32 s{dst}, s{dst}, s{tmp}")

    A("s_cmp_ge_u32 s2, 256")
    A("s_cbranch_scc1 L_end")
    A("s_load_dwordx16 s[16:31], s[0:1], 0")
    if cfg.ctouch == 1:
        A("s_getpc_b64 s[4:5]")
        A.label("L_pc")
        A("v_lshlrev_b32 v2, 7, v0")
        A("v_min_u32 v2, L_end-L_pc, v2")
        A("v_and_b32 v2, 0xfffffffc, v2")
        A("global_load_dword v255, v2, s[4:5]")
    elif cfg.ctouch == 2:
        A("s_getpc_b64 s[4:5]")
        A.label("L_pc")
        A("s_lshr_b32 s3, s2, 3")
        A("s_lshl_b32 s3, s3, 11")
        A("v_lshrrev_b32 v2, 5, v0")
        A("v_lshl_add_u32 v2, v2, 7, s3")
        A("v_min_u32 v2, L_end-L_pc, v2")
        A("v_and_b32 v2, 0xfffffffc, v2")
        A("global_load_dword v255, v2, s[4:5]")
    if TS:
        A("s_memrealtime s[96:97]")
    if cfg.enc:
        A("s_memrealtime s[96:97]")
        if cfg.enc == "none":
            A("s_memrealtime s[94:95]")
        if cfg.encc:
            A("s_memtime s[92:93]")

    def enc(p):
        if cfg.enc == p:
            A("s_memrealtime s[94:95]" if not cfg.encc else "s_memtime s[94:95]")
    stamp()
    A("v_and_b32 v1, 63, v0")
    A("v_lshrrev_b32 v2, 6, v0")
    A(f"s_and_b32 s{sJ}, s2, 7")
    A(f"v_readfirstlane_b32 s{sWV}, v2")
    A(f"s_lshr_b32 s{sR}, s2, 3")
    A(f"s_cmp_lt_u32 s{sR}, 8")
    A("s_cbranch_scc1 L_helper")
    A(f"s_sub_u32 s{sR}, s{sR}, 8")
    A(f"s_mul_i32 s{sMT}, s{sR}, 21846")
    A(f"s_lshr_b32 s{sMT}, s{sMT}, 16")
    A(f"s_mul_i32 s{sT0}, s{sMT}, 3")
    A(f"s_sub_u32 s{sI}, s{sR}, s{sT0}")
    A(f"s_mul_i32 s{sWK}, s{sJ}, 24")
    A(f"s_add_u32 s{sWK}, s{sWK}, s{sR}")
    ROT = [int(c) for c in cfg.rot]
    ROTTAB = sum(r << (4 * m) for m, r in enumerate(ROT))
    sROT, sLO, sHI = 10, 11, 12
    if any(ROT):
        A(f"s_lshl_b32 s{sROT}, s{sMT}, 2")
        A(f"s_lshr_b32 s{sROT}, {ROTTAB}, s{sROT}")
        A(f"s_and_b32 s{sROT}, s{sROT}, 15")

    def rot_setup(sbase, stride):
        if any(ROT):
            A(f"s_mul_i32 s{sLO}, s{sROT}, {stride}")
            A(f"s_add_u32 s{sLO}, s{sLO}, s{sbase}")
            A(f"s_sub_u32 s{sHI}, s{sLO}, {9*stride}")

    def rot_addr(dst, sbase, t, stride, extra):
        if any(ROT):
            if t + max(ROT) < 9:
                A(f"s_add_u32 s{dst}, s{sLO}, {t*stride + extra}")
            else:
                A(f"s_cmp_lt_u32 s{sROT}, {9-t}")
                A(f"s_cselect_b32 s{dst}, s{sLO}, s{sHI}")
                A(f"s_add_u32 s{dst}, s{dst}, {t*stride + extra}")
        else:
            A(f"s_add_u32 s{dst}, s{sbase}, {t*stride + extra}")
    A(f"s_cmp_lt_u32 s{sWV}, 4")
    A("s_cbranch_scc1 L_compute")
    A(f"s_cmp_eq_u32 s{sWV}, 6")
    A("s_cbranch_scc1 L_xh")
    A(f"s_cmp_eq_u32 s{sWV}, 7")
    A("s_cbranch_scc1 L_h2")
    ts_base = tsn[0]

    def loader_stream(kinds, per_block, issue_fn, setup_fn, cap, group=False, validate=None, before_bar=None, role=None):
        mine = [blocks[nm] for nm in order if blocks[nm]["kind"] in kinds]
        outstanding, pend = [], list(mine)
        nb = lambda nm: blocks[nm]["n"] if blocks[nm]["kind"] == "extra" else (per_block(blocks[nm]) if callable(per_block) else per_block)
        cnt = lambda lst: sum(nb(x) for x in lst)

        def ok(b, q):
            if b["free"] + 2 > q:
                return False
            if b["kind"] in ("H1", "H2") and q < min(hfetch[b["lk"]], b["need"] - 1):
                return False
            return True

        def issue_upto(q, ahead, cap):
            n = 0
            lim = cum[q] + ahead if q >= 0 else ahead
            while pend and ok(pend[0], q):
                must = pend[0]["need"] <= q + 1 + (cfg.vpipe if pend[0]["kind"] in ("H1", "H2") else 0) or pend[0]["pos"] < lim
                if not must and n >= cap:
                    break
                grp = [pend.pop(0)]
                while group and pend and ok(pend[0], q) and pend[0]["need"] == grp[0]["need"] and len(grp) < 3 \
                        and (pend[0]["pos"] < lim or n + len(grp) < cap or pend[0]["need"] <= q + 1):
                    grp.append(pend.pop(0))
                need_n = sum(nb(x["name"]) for x in grp)
                if cnt(outstanding) + need_n > 63:
                    while cnt(outstanding) + need_n > 63:
                        del outstanding[0]
                    A(f"s_waitcnt vmcnt({cnt(outstanding)})")
                issue_fn(grp if group else grp[0])
                if cfg.verbose:
                    print(f"   after B{q}: " + " ".join(x["name"] for x in grp), file=sys.stderr)
                outstanding.extend(x["name"] for x in grp)
                n += len(grp)

        issue_upto(-1, cfg.first, 0)
        if cfg.ts0:
            stamp()
        if role == "w":
            enc("iss")
        A.tail(role)
        pr = cfg.priow if role == "w" else cfg.prioh
        if pr:
            A(f"s_setprio {pr}")
        setup_fn()
        issue_upto(-1, cfg.ahead0, 0)
        for q in range(NQ):
            assert not any(b["need"] <= q for b in pend), (q, pend[0])
            def wait_for(b):
                if b["name"] in outstanding:
                    idx = max(i for i, nm in enumerate(outstanding) if blocks[nm]["need"] <= q) if validate is None \
                        else outstanding.index(b["name"])
                    del outstanding[:idx + 1]
                    A(f"s_waitcnt vmcnt({cnt(outstanding)})")
            hs = []
            for b in mine:
                if b["need"] == q:
                    if validate is not None and b["kind"] != "X":
                        hs.append(b)
                    else:
                        wait_for(b)
            if validate is not None and cfg.vpipe:
                nxt = [b for b in mine if b["need"] == q + 1 and b["kind"] != "X" and b not in pend]
                if hs or nxt:
                    validate(hs, wait_for, nxt)
            elif hs:
                validate(hs, wait_for)
            if before_bar is not None:
                ex = before_bar(q)
                if ex:
                    nm = f"extra{A.uid()}"
                    blocks[nm] = dict(name=nm, kind="extra", n=ex, need=99)
                    outstanding.append(nm)
            if q in cfg.tsq:
                stamp()
            A("s_barrier")
            if role == "w":
                enc(f"B{q}")
            if q in cfg.pause:
                issue_upto(q, 0, 0)
            else:
                issue_upto(q, cfg.ahead if q < n_g1 or cfg.ahead2 < 0 else cfg.ahead2, 99 if q in cfg.burst else (cap if q >= cfg.capfrom else 0))
        assert not pend

    vRA, vRO, vRB, vRC, vRD, vRT, vRX, vRZ, vRG = 64, 65, 66, 72, 80, 112, 116, 117, 120
    sRI, sRO, sC = 60, 61, 13

    def vr(r, W):
        return f"v{r}" if W == 1 else f"v[{r}:{r+W-1}]"

    def dw(W):
        return "dword" if W == 1 else f"dwordx{W}"

    def red_pre(W):
        if W == 2:
            A(f"s_sub_u32 s{sC}, s{sWV}, 4")
            A(f"v_lshlrev_b32 v{vRA}, 3, v1")
            A(f"s_lshl_b32 s{sRO}, s{sC}, 6")
            A(f"s_lshr_b32 s{sRI}, s{sC}, 1")
            A(f"s_mul_i32 s{sRI}, s{sRI}, {SL}")
            A(f"s_and_b32 s{sT1}, s{sC}, 1")
            A(f"s_lshl_b32 s{sT1}, s{sT1}, 9")
            A(f"s_add_u32 s{sRI}, s{sRI}, s{sT1}")
            A(f"v_lshrrev_b32 v{vRT}, 4, v1")
            A(f"v_and_b32 v{vRT+1}, 1, v1")
            A(f"v_lshlrev_b32 v{vRT+1}, 3, v{vRT+1}")
            A(f"v_lshl_add_u32 v{vRT}, v{vRT}, 4, v{vRT+1}")
            A(f"v_bfe_u32 v{vRT+2}, v1, 1, 3")
            A(f"v_and_b32 v{vRT+3}, 7, v1")
            A(f"v_lshlrev_b32 v{vRT+3}, 2, v{vRT+3}")
        else:
            A(f"s_add_u32 s{sC}, s{sWV}, 8")
            A(f"v_lshlrev_b32 v{vRA}, 2, v1")
            A(f"s_lshl_b32 s{sRO}, s{sC}, 5")
            A(f"s_lshl_b32 s{sRI}, s{sWV}, 8")
            A(f"s_add_u32 s{sRI}, s{sRI}, {2*SL}")
            A(f"v_lshrrev_b32 v{vRT}, 5, v1")
            A(f"v_and_b32 v{vRT+1}, 3, v1")
            A(f"v_lshlrev_b32 v{vRT+1}, 2, v{vRT+1}")
            A(f"v_lshl_add_u32 v{vRT}, v{vRT}, 4, v{vRT+1}")
            A(f"v_bfe_u32 v{vRT+2}, v1, 2, 3")
            A(f"v_and_b32 v{vRT+3}, 15, v1")
            A(f"v_lshlrev_b32 v{vRT+3}, 1, v{vRT+3}")
        A(f"s_mul_i32 s{sT1}, s{sI}, 384")
        A(f"s_add_u32 s{sRO}, s{sRO}, s{sT1}")
        if W == 2:
            srd(SRD2, sB2, 1152)
            A(f"buffer_load_{dw(W)} {vr(vRB, W)}, v{vRT}, s[{SRD2}:{SRD2+3}], s{sRO} offen")
        else:
            A(f"v_mov_b32 v{vRB}, v249")
        A(f"s_lshl_b32 s{sT1}, s{sJ}, 3")
        A(f"s_lshl_b32 s{sT3}, s{sMT}, 6")
        A(f"s_add_u32 s{sT1}, s{sT1}, s{sT3}")
        A(f"s_mul_i32 s{sT1}, s{sT1}, 1152")
        A(f"s_add_u32 s{sRO}, s{sRO}, s{sT1}")
        A(f"v_mul_u32_u24 v{vRT+2}, 1152, v{vRT+2}")
        A(f"v_add_u32 v{vRO}, v{vRT}, v{vRT+2}")
        A(f"s_mul_i32 s{sT1}, s{sR}, {SR}" if not cfg.numa else f"s_mul_i32 s{sT1}, s{sI}, {HW}")
        A(f"s_add_u32 s{sRI}, s{sRI}, s{sT1}")
        if cfg.numa:
            A(f"s_add_u32 s{sRI}, s{sRI}, s{sSIDE}")
            gbase(sT1, sT3)
        elif cfg.iside >= 0:
            jbase(sT1, sJ, cfg.iside, sT3)
        else:
            A(f"s_mul_i32 s{sT1}, s{sJ}, {SD}")
        A(f"s_add_u32 s{sRI}, s{sRI}, s{sT1}")
        A(f"s_add_u32 s{sRI}, s{sRI}, {WS_IN}")
        slot_add(sRI)
        A(f"v_mov_b32 v{vRZ}, 0")
        A(f"v_lshrrev_b32 v{vRT+3}, v{vRT+3}, s{sTAG+1}")
        for k in range(W):
            A(f"v_bfe_u32 v{vRG+k}, v{vRT+3}, {2*k}, 2")
            A(f"v_mul_u32_u24 v{vRG+k}, 0x8001, v{vRG+k}")
        A(f"v_mov_b32 v{vRG+4}, 0x10001")
        A(f"v_mov_b32 v{vRG+5}, 0xffff0000")
        return 1

    def red_init(W):
        for k in range(W):
            A(f"v_lshlrev_b32 v{vRC+2*k}, 16, v{vRB+k}")
            A(f"v_and_b32 v{vRC+1+2*k}, v{vRG+5}, v{vRB+k}")

    def bb_w(q):
        if q == 2:
            epoch_fin()
        if cfg.numa and q == cfg.flq:
            flag_load()
        if cfg.numa and q == cfg.flq + 2:
            flag_fin(sT1, sT2, sT3)
        if q == cfg.rpq:
            return red_pre(2)
        if q == cfg.rpq + 3:
            red_init(2)

    A.head("w")
    sHW = sT5
    A(f"s_sub_u32 s{sHW}, s{sWV}, 4")
    A("v_lshrrev_b32 v2, 3, v1")
    A("v_and_b32 v3, 7, v1")
    A("v_bfe_u32 v4, v1, 4, 1")
    A("v_lshlrev_b32 v4, 2, v4")
    A("v_xor_b32 v3, v3, v4")
    A("v_lshlrev_b32 v3, 4, v3")
    A("v_lshrrev_b32 v4, 2, v2")
    A("v_and_b32 v5, 3, v2")
    A("v_lshl_add_u32 v4, v4, 3, v5")
    A(f"s_lshl_b32 s{sT0}, s{sHW}, 5")
    A(f"v_add_u32 v4, s{sT0}, v4")
    A("v_mul_u32_u24 v4, 9216, v4")
    A("v_add_u32 v4, v4, v3")
    for c in range(1, 4):
        A(f"v_add_u32 v{4+c}, {(16*(c>>1)+4*(c&1))*9216 - 1024*c}, v4")
    sLW, sC1 = sT4, 38
    A(f"s_lshl_b32 s{sLW}, s{sHW}, 12")
    A(f"s_mul_i32 s{sC1}, s{sJ}, 1152")
    A(f"s_mul_i32 s{sT1}, s{sI}, 384")
    A(f"s_add_u32 s{sC1}, s{sC1}, s{sT1}")
    rot_setup(sC1, 64*9216)
    if cfg.wt:
        A("v_and_b32 v12, 7, v1")
        A("v_lshrrev_b32 v13, 5, v1")
        A("v_lshl_add_u32 v12, v13, 6, v12")
        A("v_mul_u32_u24 v12, 9216, v12")
        A("v_bfe_u32 v13, v1, 3, 2")
        A("v_lshl_add_u32 v12, v13, 7, v12")
        A(f"s_lshl_b32 s{sT0}, s{sHW}, 4")
        A(f"s_add_u32 s{sT0}, s{sT0}, s{sMT}")
        A(f"s_mul_i32 s{sT0}, s{sT0}, {8*9216}")
        A(f"s_add_u32 s{sT0}, s{sT0}, s{sC1}")
        msk = [sum(0xffffff << (32 * h) for h in range(2) if 2 * w + h < cfg.wt) for w in range(2)]
        A(f"s_mov_b32 exec_lo, {msk[0] & 0xffffffff}")
        A(f"s_mov_b32 exec_hi, {msk[0] >> 32}")
        if msk[1] != msk[0]:
            A(f"s_cmp_eq_u32 s{sHW}, 0")
            A(f"s_cselect_b32 exec_lo, exec_lo, {(msk[1] & 0xffffffff) or 1}")
            A(f"s_cselect_b32 exec_hi, exec_hi, {msk[1] >> 32}")
    A("s_waitcnt lgkmcnt(0)")
    if cfg.ts0:
        stamp()
    srd(SRD0, sW1, 5308416)
    if cfg.wt:
        A(f"buffer_load_dword v255, v12, s[{SRD0}:{SRD0+3}], s{sT0} offen")
        A("s_mov_b64 exec, -1")
    sV = [62, 63, 59]

    def w2_setup():
        epoch_load(sMT)
        A(f"s_lshl_b32 s{sT0}, s{sHW}, 5")
        A(f"v_add_u32 v8, s{sT0}, v2")
        A("v_mul_u32_u24 v8, 1152, v8")
        A("v_add_u32 v8, v8, v3")
        for c in range(1, 4):
            A(f"v_add_u32 v{8+c}, {8*c*1152 - 1024*c}, v8")
        A(f"s_mul_i32 s39, s{sJ}, {576*1152}")
        A(f"s_mul_i32 s{sT0}, s{sI}, 384")
        A(f"s_add_u32 s39, s39, s{sT0}")
        for d in range(3):
            mod3add(sT1, d, sT2)
            A(f"s_mul_i32 s{sT1}, s{sT1}, {192*1152}")
            A(f"s_add_u32 s{sV[d]}, s39, s{sT1}")
        srd(SRD1, sW2, 5308416)

    def issue_w(grp):
        for b in grp:
            A(f"s_add_u32 m0, s{sLW}, {b['slot']*8192}")
            if b["kind"] == "W1":
                rot_addr(sT0, sC1, b['t'], 64*9216, 128*b['l'])
                vb, sr = 4, SRD0
            else:
                A(f"s_add_u32 s{sT0}, s{sV[b['d']]}, {64*b['lk']*1152 + 128*b['l']}")
                vb, sr = 8, SRD1
            for c in range(4):
                A(f"buffer_load_dwordx4 v{vb+c}, s[{sr}:{sr+3}], s{sT0} offen offset:{1024*c} {cfg.wfl} lds")

    loader_stream(("W1", "W2"), 4, issue_w, w2_setup, cfg.capw, group=True,
                  before_bar=bb_w, role="w")
    A("s_branch L_reduce")
    ts_max = tsn[0]

    sXB = 38
    sH = {1: 39, 2: 59}
    HALF = [0]

    def h_setup(half):
        A("v_lshlrev_b32 v12, 4, v1")
        A("v_add_u32 v13, 0x10000, v12")
        A("v_add_u32 v14, 0x20000, v12")
        A(f"s_sub_u32 s{sT0}, s{sWK if cfg.hside < 0 else sR}, s{sI}")
        if cfg.numa:
            gbase(sT3, sT2)
        elif cfg.hside >= 0:
            jbase(sT3, sJ, cfg.hside, sT2)
        for d in (1, 2):
            mod3add(sT1, d, sT2)
            if not cfg.numa:
                A(f"s_add_u32 s{sT1}, s{sT1}, s{sT0}")
            A(f"s_mul_i32 s{sH[d]}, s{sT1}, {HW}")
            if cfg.hside >= 0 or cfg.numa:
                A(f"s_add_u32 s{sH[d]}, s{sH[d]}, s{sT3}")
        srd(SRD1, sWS, 0x10000000)
        epoch_load(sMT)

    def issue_xh(b):
        for h in (range(2) if b["kind"] == "X" else HALF):
            A(f"s_mov_b32 m0, {b['slot']*8192 + 4096*h}")
            if b["kind"] == "X":
                rot_addr(sT0, sXB, b['t'], 128, 32*1152*h)
                for c in range(4):
                    A(f"buffer_load_dwordx4 v{8+c}, s[{SRD0}:{SRD0+3}], s{sT0} offen offset:{1024*c} lds")
            else:
                A(f"s_add_u32 s{sT0}, s{sH[b['d']]}, {WS_H + HL*b['lk'] + 4096*h}")
                for c in range(4):
                    A(f"buffer_load_dwordx4 v12, s[{SRD1}:{SRD1+3}], s{sT0} offen offset:{1024*c} {cfg.hlf} lds")

    retry_code = []

    def validate(hs, wait_for):
        k = A.uid()

        def rd(i):
            addr = hs[i]["slot"] * 8192 + 4096 * HALF[0]
            for c in range(4):
                r = 128 + 16 * i + 4 * c
                A(f"ds_read_b128 v[{r}:{r+3}], v{12 + (addr >> 16)} offset:{(addr & 0xffff) + 1024*c}")

        def valu(i, later):
            for c in range(4):
                r = 128 + 16 * i + 4 * c
                A(f"s_waitcnt lgkmcnt({3-c+later})")
                for kk in range(4):
                    ac = 16 + ((kk + 2) & 3)
                    if i == 0 and c == 0:
                        A(f"v_xor_b32 v{ac}, v{r+kk}, v{25+kk}")
                    else:
                        A(f"v_bitop3_b32 v{ac}, v{ac}, v{r+kk}, v{25+kk} bitop3:0xf6")
        A.label(f"L_v{k}")
        for i in range(len(hs)):
            wait_for(hs[i])
            rd(i)
            if i:
                valu(i - 1, 4)
        valu(len(hs) - 1, 0)
        A("v_or3_b32 v16, v16, v17, v18")
        A("v_bitop3_b32 v16, v16, v19, v24 bitop3:0xa8")
        A("v_cmp_ne_u32 vcc, 0, v16")
        A(f"s_cbranch_vccnz L_vr{k}")
        A.label(f"L_vd{k}")
        n0 = len(A.L)
        A.label(f"L_vr{k}")
        A(f"s_cmp_gt_u32 s{sCNT}, {SPIN_MAX}")
        A(f"s_cbranch_scc1 L_vd{k}")
        for b in hs:
            issue_xh(b)
        A(f"s_add_u32 s{sCNT}, s{sCNT}, 1")
        A("s_waitcnt vmcnt(0)")
        A(f"s_branch L_v{k}")
        retry_code.extend(A.L[n0:])
        del A.L[n0:]

    hreg, hread = {}, set()

    def validate2(hs, wait_for, nxt):
        k = A.uid()

        def rd(b):
            i = hreg.setdefault(b["name"], len(hreg))
            addr = b["slot"] * 8192 + 4096 * HALF[0]
            for c in range(4):
                r = 128 + 16 * i + 4 * c
                A(f"ds_read_b128 v[{r}:{r+3}], v{12 + (addr >> 16)} offset:{(addr & 0xffff) + 1024*c}")
            hread.add((HALF[0], b["name"]))

        def do_nxt():
            for b in nxt:
                wait_for(b)
                rd(b)
        unread = [b for b in hs if (HALF[0], b["name"]) not in hread]
        for b in unread:
            wait_for(b)
            rd(b)
        later = 0
        if unread and 4 * (len(unread) + len(nxt)) <= 15:
            do_nxt()
            later = 4 * len(nxt)
            nxt = []
        if hs:
            A.label(f"L_v{k}")
            A(f"s_waitcnt lgkmcnt({later})")
            for i, b in enumerate(hs):
                for c in range(4):
                    r = 128 + 16 * hreg[b["name"]] + 4 * c
                    for kk in range(4):
                        ac = 16 + ((kk + 2) & 3)
                        if i == 0 and c == 0:
                            A(f"v_xor_b32 v{ac}, v{r+kk}, v{25+kk}")
                        else:
                            A(f"v_bitop3_b32 v{ac}, v{ac}, v{r+kk}, v{25+kk} bitop3:0xf6")
            A("v_or3_b32 v16, v16, v17, v18")
            A("v_bitop3_b32 v16, v16, v19, v24 bitop3:0xa8")
            A("v_cmp_ne_u32 vcc, 0, v16")
            A(f"s_cbranch_vccnz L_vr{k}")
            A.label(f"L_vd{k}")
            n0 = len(A.L)
            A.label(f"L_vr{k}")
            A(f"s_cmp_gt_u32 s{sCNT}, {SPIN_MAX}")
            A(f"s_cbranch_scc1 L_vd{k}")
            for b in hs:
                issue_xh(b)
            A(f"s_add_u32 s{sCNT}, s{sCNT}, 1")
            A("s_waitcnt vmcnt(0) lgkmcnt(0)")
            for b in hs:
                rd(b)
            A("s_waitcnt lgkmcnt(0)")
            A(f"s_branch L_v{k}")
            retry_code.extend(A.L[n0:])
            del A.L[n0:]
        do_nxt()

    if cfg.vpipe:
        validate = validate2

    def flush_retry():
        A.L.extend(retry_code)
        retry_code.clear()

    def bb_tag(q):
        if q == 2:
            epoch_fin()
            slot_add(sH[1], sH[2])
            tag_regs(25, 16)
            A(f"v_mov_b32 v24, {0x10001 if cfg.hlsb else 0x80008000}")
            A(f"s_mov_b32 s{sCNT}, 0")
        if cfg.numa and q == cfg.flq:
            flag_load()
        if cfg.numa and q == cfg.flq + 2:
            flag_fin(sT1, sT2, sT3)
            A(f"s_add_u32 s{sH[1]}, s{sH[1]}, s{sSIDE}")
            A(f"s_add_u32 s{sH[2]}, s{sH[2]}, s{sSIDE}")
        if q == cfg.rpq:
            return red_pre(2)
        if q == cfg.rpq + 3:
            red_init(2)
        if q == 10 and cfg.probe:
            A(f"buffer_load_dword v255, v{vRZ}, s[{SRD2}:{SRD2+3}], 0 offen")
            A("s_waitcnt vmcnt(0)")

    A.head("x")
    A.label("L_xh")
    tsn[0] = ts_base
    A("v_lshrrev_b32 v2, 3, v1")
    A("v_and_b32 v3, 7, v1")
    A("v_lshrrev_b32 v4, 4, v1")
    A("v_xor_b32 v3, v3, v4")
    A("v_lshlrev_b32 v3, 4, v3")
    A("v_mul_u32_u24 v4, 1152, v2")
    A("v_add_u32 v8, v4, v3")
    A("v_xor_b32 v5, 64, v8")
    A(f"v_add_u32 v9, {8*1152 - 1024}, v5")
    A(f"v_add_u32 v10, {16*1152 - 2048}, v8")
    A(f"v_add_u32 v11, {24*1152 - 3072}, v5")
    A(f"s_mul_i32 s{sXB}, s{sMT}, {64*1152}")
    rot_setup(sXB, 128)

    def x_touch_pre(st0):
        A(f"s_mul_i32 s{sT0}, s{sI}, 22")
        A("v_and_b32 v12, 31, v1")
        A(f"v_add_u32 v12, s{sT0}, v12")
        A("v_min_u32 v12, 63, v12")
        A("v_mul_u32_u24 v12, 1152, v12")
        A("v_lshrrev_b32 v13, 5, v1")
        A("v_lshl_add_u32 v12, v13, 7, v12")
        A("s_mov_b32 exec_lo, 0x3fffff")
        A(f"s_mov_b32 exec_hi, {0x3fffff if cfg.wt > st0 + 1 else 0}")

    def x_touch(st0):
        A(f"buffer_load_dword v255, v12, s[{SRD0}:{SRD0+3}], s{sXB} offen offset:{128*st0}")
        A("s_mov_b64 exec, -1")
    if cfg.wt:
        x_touch_pre(0)
    A("s_waitcnt lgkmcnt(0)")
    if cfg.ts0:
        stamp()
    srd(SRD0, sX, 589824)
    if cfg.wt:
        x_touch(0)
    nbx = lambda b: 8 if b["kind"] == "X" else 4
    loader_stream(("X", "H1", "H2"), nbx, issue_xh, lambda: h_setup(0), cfg.capx, validate=validate, before_bar=bb_tag, role="x")
    if TS:
        A(f"s_mov_b32 s{sTS+24}, s{sCNT}")
    A("s_branch L_reduce")
    flush_retry()
    ts_max = max(ts_max, tsn[0])

    A.head("h2")
    A.label("L_h2")
    tsn[0] = ts_base
    if cfg.wt > 2:
        A(f"s_mul_i32 s{sXB}, s{sMT}, {64*1152}")
        x_touch_pre(2)
    if cfg.xpre:
        A("v_lshlrev_b32 v2, 7, v1")
        A(f"s_mul_i32 s{sT0}, s{sWK}, 3072")
        A("s_mov_b64 exec, 0xffffff")
    A("s_waitcnt lgkmcnt(0)")
    if cfg.xpre:
        srd(SRD0, sX, 589824)
        A(f"buffer_load_dword v255, v2, s[{SRD0}:{SRD0+3}], s{sT0} offen")
        A("s_mov_b64 exec, -1")
    if cfg.wt > 2:
        srd(SRD0, sX, 589824)
        x_touch(2)
    srd(SRD1, sWS, 0x10000000)
    if cfg.hpre == 3:
        A("v_lshlrev_b32 v3, 7, v1")
        A(f"s_mul_i32 s{sT1}, s{sWK}, 24576")
        A(f"s_add_u32 s{sT1}, s{sT1}, {WS_H}")
        for c in range(3):
            A(f"buffer_load_dword v255, v3, s[{SRD1}:{SRD1+3}], s{sT1} offen")
            A(f"s_add_u32 s{sT1}, s{sT1}, 8192")

    def w7_touch():
        st = list(range(cfg.ta, cfg.ta + cfg.tn))
        srd(SRD0, sX, 589824)
        srd(SRD2, sW1, 5308416)
        A(f"s_mul_i32 s{sXB}, s{sMT}, {64*1152}")
        A(f"s_mul_i32 s{sT0}, s{sI}, 22")
        A("v_and_b32 v2, 31, v1")
        A(f"v_add_u32 v2, s{sT0}, v2")
        A("v_min_u32 v2, 63, v2")
        A("v_mul_u32_u24 v2, 1152, v2")
        A("v_lshrrev_b32 v4, 5, v1")
        A("v_lshl_add_u32 v2, v4, 7, v2")
        A("v_and_b32 v3, 7, v1")
        A("v_lshl_add_u32 v3, v4, 6, v3")
        A("v_mul_u32_u24 v3, 9216, v3")
        A("v_bfe_u32 v4, v1, 3, 2")
        A("v_lshl_add_u32 v3, v4, 7, v3")
        A(f"s_mul_i32 s{sT0}, s{sMT}, {8*9216}")
        A(f"s_mul_i32 s{sT1}, s{sJ}, 1152")
        A(f"s_add_u32 s{sT0}, s{sT0}, s{sT1}")
        A(f"s_mul_i32 s{sT1}, s{sI}, 384")
        A(f"s_add_u32 s{sT0}, s{sT0}, s{sT1}")
        for p in range(0, len(st), 2):
            two = p + 1 < len(st)
            A(f"s_add_u32 s{sT1}, s{sT0}, {st[p]*64*9216}")
            A("s_mov_b32 exec_lo, 0xffffff")
            A(f"s_mov_b32 exec_hi, {0xffffff if two else 0}")
            A(f"buffer_load_dword v255, v3, s[{SRD2}:{SRD2+3}], s{sT1} offen")
            A("s_mov_b32 exec_lo, 0x3fffff")
            A(f"s_mov_b32 exec_hi, {0x3fffff if two else 0}")
            A(f"buffer_load_dword v255, v2, s[{SRD0}:{SRD0+3}], s{sXB} offen offset:{128*st[p]}")
        A("s_mov_b64 exec, -1")
    if cfg.tn and cfg.tpos == 0:
        w7_touch()

    def race(rnd, first):
        N = cfg.rn
        if first:
            A(f"s_lshl_b32 s{sT0}, s{sWK}, 14")
            A(f"s_add_u32 s{sT0}, s{sT0}, {cfg.wsb + 0x3000000}")
            A(f"s_add_u32 s8, s{sWS}, s{sT0}")
            A(f"s_addc_u32 s9, s{sWS+1}, 0")
            A(f"s_not_b32 s3, s{sTAG}")
            A("s_mov_b32 s15, 100")
        H = N // 2
        f = rnd & 1
        for k in range(N):
            A(f"s_mov_b32 s{72+k}, s3")
        for k in range(N):
            sd = f if k < H else 1 - f
            A(f"s_load_dword s{72+k}, s[8:9], {8192*sd + 128*(rnd*H + k % H)}")
        A(f"s_waitcnt lgkmcnt({H})")
        for _ in range(cfg.rd):
            A("s_nop 7")
        for k in range(H, N):
            A(f"s_cmp_lg_u32 s{72+k}, s3")
            A("s_addc_u32 s15, s15, 0" if f == 1 else "s_subb_u32 s15, s15, 0")
        A("s_waitcnt lgkmcnt(0)")

    def bb_h2(q):
        if cfg.tn and cfg.tpos == 1 and q == 0:
            A("s_waitcnt lgkmcnt(0)")
            w7_touch()
        if cfg.rr and q == cfg.rq:
            stamp()
            A("s_waitcnt lgkmcnt(0)")
            for rnd in range(cfg.rr):
                race(rnd, rnd == 0)
            stamp()
        if cfg.tn and cfg.tpos >= 2 and q == cfg.tpos - 1:
            w7_touch()
        if cfg.tn and q == 7:
            A("s_waitcnt vmcnt(0)")
        if q == 2 and (cfg.hpre == 3 or cfg.wt > 2):
            A("s_waitcnt vmcnt(0)")
        if cfg.vt and q == 5:
            A(f"s_add_u32 s{sT0}, s{sI}, 1")
            A(f"s_mul_i32 s{sT0}, s{sT0}, 192")
            A(f"s_mul_i32 s{sT1}, s{sMT}, 48")
            A(f"s_add_u32 s{sT0}, s{sT0}, s{sT1}")
            A(f"s_cmp_ge_u32 s{sT0}, 576")
            A(f"s_cselect_b32 s{sT1}, 576, 0")
            A(f"s_sub_u32 s{sT0}, s{sT0}, s{sT1}")
            A(f"s_mul_i32 s{sT1}, s{sJ}, 576")
            A(f"s_add_u32 s{sT0}, s{sT0}, s{sT1}")
            A(f"s_mul_i32 s15, s{sT0}, 1152")
            A(f"s_mul_i32 s{sT1}, s{sI}, 384")
            A(f"s_add_u32 s15, s15, s{sT1}")
            A("v_mul_u32_u24 v5, 1152, v1")
            srd(SRD0, sW2, 5308416)
        ex = 0
        if cfg.vt and q == cfg.vtq:
            A("s_mov_b32 exec_hi, 0xffff")
            for l in range(3 - cfg.vt, 3):
                A(f"buffer_load_dword v255, v5, s[{SRD0}:{SRD0+3}], s15 offen offset:{128*l}")
            A("s_mov_b64 exec, -1")
            ex = cfg.vt
        return (bb_tag(q) or 0) + ex

    HALF[0] = 1
    loader_stream(("H1", "H2"), nbx, issue_xh, lambda: h_setup(1), cfg.capx, validate=validate, before_bar=bb_h2, role="h2")
    if TS and cfg.rr:
        A(f"s_mov_b32 s{sTS+24}, s15")
    ts_max = max(ts_max, tsn[0])
    A("s_branch L_reduce")
    flush_retry()

    A.tail("red")
    sM, sQ = sT5, sT4
    sVC = 16

    def reduce_code(W, nbar):
        x = f"{W}"
        srd(SRD1, sWS, 0x10000000)
        A(f"s_mov_b32 s{sCNT}, 0")
        srd(SRD0, sOUT, 589824)
        if W == 1:
            red_pre(1)
            red_init(1)
            A(f"s_waitcnt vmcnt({cfg.rw1})")
            if cfg.rlate == 1:
                A("s_barrier")

        def ld(s_):
            A(f"s_add_u32 s{sT1}, s{sRI}, {SS*s_}")
            A(f"buffer_load_{dw(W)} {vr(vRD+W*s_, W)}, v{vRA}, s[{SRD1}:{SRD1+3}], s{sT1} offen {cfg.rfl}")
        if W == 2 and cfg.r0early and nbar:
            A(f"s_cmp_ge_u32 s{sC}, 2")
            A("s_cbranch_scc1 L_rlate")
            stamp()
            tsn[0] -= 1 if TS else 0
            for s_ in range(8):
                ld(s_)
            A("s_barrier")
            A("s_branch L_rfirst")
            A.label("L_rlate")
        for _ in range(nbar):
            A("s_barrier")
        stamp()
        enc("rbar")

        def chk_i(s_, dst, t):
            r = vRD + W * s_
            if W == 1:
                o = [f"v_bitop3_b32 v{t}, v{r}, v{vRG}, v{vRG+4} bitop3:0x28"]
            else:
                o = [f"v_xor_b32 v{t}, v{r}, v{vRG}"]
                for k in range(1, W):
                    o.append(f"v_bitop3_b32 v{t}, v{t}, v{r+k}, v{vRG+k} bitop3:0xf6")
                o.append(f"v_and_b32 v{t}, v{vRG+4}, v{t}")
            o.append(f"v_cmp_ne_u32 {dst}, 0, v{t}")
            return o

        def acc_i(s_, t0):
            r = vRD + W * s_
            o = []
            for k in range(W):
                t = t0 + 2 * k
                o.append(f"v_lshlrev_b32 v{t}, 16, v{r+k}")
                o.append(f"v_and_b32 v{t+1}, v{vRG+5}, v{r+k}")
            for k in range(W):
                t = t0 + 2 * k
                o.append(f"v_pk_add_f32 v[{vRC+2*k}:{vRC+1+2*k}], v[{vRC+2*k}:{vRC+1+2*k}], v[{t}:{t+1}]")
            return o

        def masked(sm, fn, tag):
            for g in range(2):
                A(f"s_and_b32 s{sT0}, s{sm}, {0xf << (4*g)}")
                A(f"s_cbranch_scc0 L_{tag}{x}g{g}")
                for s_ in range(4 * g, 4 * g + 4):
                    A(f"s_bitcmp0_b32 s{sm}, {s_}")
                    A(f"s_cbranch_scc1 L_{tag}{x}s{s_}")
                    fn(s_)
                    A.label(f"L_{tag}{x}s{s_}")
                A.label(f"L_{tag}{x}g{g}")

        for s_ in range(8):
            ld(s_)
        for _ in range(nbar, cfg.rnb if W != 1 else 0):
            A("s_barrier")
        if W == 1 and cfg.rlate == 2:
            A("s_barrier")
        if W == 2:
            A.label("L_rfirst")
        for s_ in range(8):
            A(f"s_waitcnt vmcnt({7-s_})")
            c = chk_i(s_, f"s[{sVC+2*s_}:{sVC+2*s_+1}]", vRX)
            a_ = acc_i(s_, vRT)
            while c or a_:
                if c:
                    A(c.pop(0))
                if a_:
                    A(a_.pop(0))
            if s_ >= 2:
                A(f"s_or_b64 vcc, {'s[16:17]' if s_ == 2 else 'vcc'}, s[{sVC+2*s_-2}:{sVC+2*s_-1}]")
        A(f"s_or_b64 vcc, vcc, s[{sVC+14}:{sVC+15}]")
        A(f"s_cbranch_scc0 L_rdone{x}")
        A(f"s_mov_b32 s{sM}, 0")
        for s_ in range(7, -1, -1):
            A(f"s_cmp_lg_u64 s[{sVC+2*s_}:{sVC+2*s_+1}], 0")
            A(f"s_addc_u32 s{sM}, s{sM}, s{sM}")
        A(f"s_xor_b32 s{sQ}, s{sM}, 0xff")
        red_init(W)
        A.label(f"L_rtop{x}")
        masked(sM, ld, "rl")
        masked(sQ, lambda s_: [A(t) for t in acc_i(s_, vRT)], "ra")
        A(f"s_add_u32 s{sCNT}, s{sCNT}, 1")
        A(f"s_mov_b32 s{sQ}, s{sM}")
        A(f"s_cmp_gt_u32 s{sCNT}, {SPIN_MAX}")
        A(f"s_cbranch_scc1 L_rdone{x}")
        A("s_waitcnt vmcnt(0)")

        def chk2(s_):
            for t in chk_i(s_, "vcc", vRX):
                A(t)
            A(f"s_cbranch_vccnz L_rc{x}s{s_}")
            A(f"s_bitset0_b32 s{sM}, {s_}")
            for t in acc_i(s_, vRT):
                A(t)
        masked(sQ, chk2, "rc")
        A(f"s_mov_b32 s{sQ}, 0")
        A(f"s_cmp_lg_u32 s{sM}, 0")
        A(f"s_cbranch_scc1 L_rtop{x}")
        A.label(f"L_rdone{x}")
        stamp()
        enc("rdone")
        for k in range(W):
            A(f"v_cvt_pk_bf16_f32 v{vRC+k}, v{vRC+2*k}, v{vRC+1+2*k}")
        if cfg.owide:
            A("s_nop 1")
            if W == 1:
                for k in range(1, 4):
                    A(f"v_mov_b32_dpp v{vRC+k}, v{vRC} quad_perm:[{k},{k},{k},{k}] row_mask:0xf bank_mask:0xf")
                m = 0x11111111
            else:
                for k in range(2):
                    A(f"v_mov_b32_dpp v{vRC+2+k}, v{vRC+k} quad_perm:[1,1,3,3] row_mask:0xf bank_mask:0xf")
                m = 0x55555555
            A(f"s_mov_b32 exec_lo, {m}")
            A(f"s_mov_b32 exec_hi, {m}")
            A(f"buffer_store_dwordx4 v[{vRC}:{vRC+3}], v{vRO}, s[{SRD0}:{SRD0+3}], s{sRO} offen {cfg.ofl if W > 1 else cfg.ofl1}")
            A("s_mov_b64 exec, -1")
        else:
            A(f"buffer_store_{dw(W)} {vr(vRC, W)}, v{vRO}, s[{SRD0}:{SRD0+3}], s{sRO} offen {cfg.ofl if W > 1 else cfg.ofl1}")
        if TS:
            A(f"s_mov_b32 s{sWS}, s{SRD1}")
            A(f"s_mov_b32 s{sWS+1}, s{SRD1+1}")

    A.label("L_reduce")
    tsn[0] = ts_max
    reduce_code(2, cfg.rb2)
    A(f"s_or_b32 s{sT0}, s{sJ}, s{sI}")
    A(f"s_or_b32 s{sT0}, s{sT0}, s{sC}")
    A(f"s_cmp_lg_u32 s{sT0}, 0")
    A("s_cbranch_scc1 L_noep")
    A(f"v_mov_b32 v16, s{sTAG}")
    A(f"s_lshl_b32 s{sT0}, s{sMT}, 7")
    A(f"s_add_u32 s{sT0}, s{sT0}, {WS_EP}")
    A("s_mov_b64 exec, 1")
    A(f"buffer_store_dword v16, v{vRZ}, s[{SRD1}:{SRD1+3}], s{sT0} offen sc1")
    A("s_mov_b64 exec, -1")
    A.label("L_noep")
    if cfg.enc:
        if cfg.enc == "end":
            A("s_waitcnt vmcnt(0)")
            enc("end")
        if cfg.encw >= 0:
            A(f"s_cmp_lg_u32 s{sWV}, {cfg.encw}")
            A("s_cbranch_scc1 L_end")
        A("s_waitcnt lgkmcnt(0)")
        if cfg.enc == "ptr":
            A(f"s_lshr_b32 s94, s{SRD1}, {cfg.encm}")
            A("s_and_b32 s94, s94, 31")
            A("s_mul_i32 s94, s94, 300")
        elif cfg.enc == "lat":
            A("s_waitcnt vmcnt(0)")
            A(f"s_lshl_b32 s90, s{sR}, 7")
            A(f"s_add_u32 s90, s90, {cfg.encm}")
            A("s_memtime s[84:85]")
            A("s_waitcnt lgkmcnt(0)")
            A(f"buffer_load_dword v2, v{vRZ}, s[{SRD1}:{SRD1+3}], s90 offen sc1")
            A("s_waitcnt vmcnt(0)")
            A("s_memtime s[86:87]")
            A("s_waitcnt lgkmcnt(0)")
            A("s_sub_u32 s94, s86, s84")
            A("s_lshl_b32 s94, s94, 2")
            A(f"s_cmp_eq_u32 s2, 64")
            A("s_cselect_b32 s94, s94, 0")
        elif cfg.enc == "xcc":
            A("s_getreg_b32 s94, hwreg(HW_REG_XCC_ID)")
            A("s_and_b32 s94, s94, 15")
            A("s_mul_i32 s94, s94, 500")
            A(f"s_cmp_eq_u32 s{sJ}, {cfg.encm}")
            A("s_cselect_b32 s94, s94, 0")
        elif cfg.encc:
            A("s_sub_u32 s94, s94, s92")
            A("s_lshr_b32 s94, s94, 1")
        else:
            A("s_sub_u32 s94, s94, s96")
            A(f"s_mul_i32 s94, s94, {cfg.encm}")
        A("s_add_u32 s94, s94, 3000")
        A.label("L_dly")
        A("s_memrealtime s[98:99]")
        A("s_waitcnt lgkmcnt(0)")
        A("s_sub_u32 s98, s98, s96")
        A("s_cmp_lt_u32 s98, s94")
        A("s_cbranch_scc1 L_dly")
    if TS:
        A("s_waitcnt vmcnt(0)")
        stamp()
        A("s_memrealtime s[98:99]")
        A("s_waitcnt lgkmcnt(0)")
        A(f"s_mov_b32 s{sTS+26}, s96"); A(f"s_mov_b32 s{sTS+28}, s98"); A(f"s_mov_b32 s{sTS+30}, s{sCNT}")
        assert tsn[0] <= 12
        tsn[0] = 16
        stamp_flush()
    A("s_branch L_end")

    A.head("c")
    A.label("L_compute")
    tsn[0] = ts_base
    vACC, vAB, vXB, vT = 16, 64, 96, 240
    nAB = D + 1
    vA, vBX, vBH, vHW = [2, 3, 4], [5, 6, 7, 8], [9, 10, 11], [12, 13, 14]
    vTG, vL16 = vT + 11, vT + 10
    assert vAB + 4 * nAB <= vXB
    sA, sBq = sT4, sT5
    A(f"s_and_b32 s{sA}, s{sWV}, 1")
    A(f"s_lshr_b32 s{sBq}, s{sWV}, 1")
    A(f"v_lshrrev_b32 v{vT}, 5, v1")
    A(f"s_mul_i32 s60, s{sJ}, 1152")
    A(f"s_mul_i32 s{sT1}, s{sI}, 384")
    A(f"s_add_u32 s60, s60, s{sT1}")
    A(f"s_lshl_b32 s{sT1}, s{sBq}, 6")
    A(f"s_add_u32 s61, s60, s{sT1}")
    A(f"v_lshlrev_b32 v{vT+4}, 3, v{vT}")
    if cfg.sa:
        A(f"s_add_u32 s{sT3}, s{sWV}, 1")
        A(f"v_and_b32 v{vT+5}, 7, v1")
        A(f"v_mul_u32_u24 v{vT+5}, 9216, v{vT+5}")
        A(f"v_lshrrev_b32 v{vT+6}, 3, v1")
        A(f"v_min_u32 v{vT+6}, 2, v{vT+6}")
        A(f"v_lshl_add_u32 v{vT+5}, v{vT+6}, 7, v{vT+5}")
        A(f"s_lshl_b32 s{sT1}, s{sT3}, 3")
        A(f"s_add_u32 s{sT1}, s{sT1}, s{sMT}")
        A(f"s_mul_i32 s{sT1}, s{sT1}, {8*9216}")
        A(f"s_add_u32 s{sT1}, s{sT1}, s60")
        A(f"s_mul_i32 s{sT2}, s{sI}, 22")
        A(f"v_min_u32 v{vT+6}, 21, v1")
        A(f"v_add_u32 v{vT+6}, s{sT2}, v{vT+6}")
        A(f"v_min_u32 v{vT+6}, 63, v{vT+6}")
        A(f"v_mul_u32_u24 v{vT+6}, 1152, v{vT+6}")
        A(f"s_mul_i32 s{sT2}, s{sMT}, {64*1152}")
        A(f"s_lshl_b32 s{sT3}, s{sT3}, 7")
        A(f"s_add_u32 s{sT2}, s{sT2}, s{sT3}")
    A("s_waitcnt lgkmcnt(0)")
    srd(SRD0, sB1, 9216)
    for l in range(3):
        for g in range(4):
            r = vXB + 2 * (4 * l + g)
            A(f"buffer_load_dwordx2 v[{r}:{r+1}], v{vT+4}, s[{SRD0}:{SRD0+3}], s61 offen offset:{128*l+16*g}")
    if cfg.sa:
        srd(SRD1, sW1, 5308416)
        srd(SRD2, sX, 589824)
        A(f"s_cmp_ge_u32 s{sWV}, {cfg.sa}")
        A("s_cbranch_scc1 L_tdone")
        A(f"buffer_load_dword v255, v{vT+5}, s[{SRD1}:{SRD1+3}], s{sT1} offen {cfg.tfl}")
        A(f"buffer_load_dword v255, v{vT+6}, s[{SRD2}:{SRD2+3}], s{sT2} offen")
        A.label("L_tdone")
    epoch_load(sMT)
    A.tail("c")
    srd(SRD2, sB2, 1152)
    A(f"v_and_b32 v{vT+1}, 3, v1")
    A(f"v_lshlrev_b32 v{vT+1}, 2, v{vT+1}")
    A(f"v_lshl_add_u32 v{vT+1}, v{vT}, 4, v{vT+1}")
    A(f"s_mul_i32 s{sT1}, s{sI}, 384")
    A(f"s_lshl_b32 s{sT0}, s{sWV}, 5")
    A(f"s_add_u32 s{sT1}, s{sT1}, s{sT0}")
    A(f"buffer_load_dword v249, v{vT+1}, s[{SRD2}:{SRD2+3}], s{sT1} offen offset:256")
    srd(SRD1, sWS, 0x10000000)
    A(f"v_bfe_u32 v{vT+1}, v1, 2, 2")
    A(f"v_lshl_add_u32 v{vT+2}, v{vT}, 2, v{vT+1}")
    A(f"v_lshlrev_b32 v{vT+2}, 7, v{vT+2}")
    A(f"v_bfe_u32 v{vT+3}, v1, 3, 1")
    A(f"v_xor_b32 v{vT+3}, s{sBq}, v{vT+3}")
    A(f"v_lshl_add_u32 v{vT+2}, v{vT+3}, 6, v{vT+2}")
    A(f"v_bfe_u32 v{vT+3}, v1, 4, 1")
    A(f"v_lshl_add_u32 v{vT+2}, v{vT+3}, 5, v{vT+2}")
    A(f"v_and_b32 v{vT+3}, 3, v1")
    A(f"v_lshl_add_u32 v{vA[0]}, v{vT+3}, 3, v{vT+2}")
    A(f"v_add_u32 v{vA[1]}, 0x10000, v{vA[0]}")
    A(f"v_add_u32 v{vA[2]}, 0x20000, v{vA[0]}")
    A(f"v_and_b32 v{vT+1}, 31, v1")
    A(f"v_bfe_u32 v{vT+2}, v1, 1, 3")
    A(f"v_xor_b32 v{vT+2}, v{vT}, v{vT+2}")
    A(f"v_lshlrev_b32 v{vT+2}, 4, v{vT+2}")
    A(f"v_lshl_add_u32 v{vT+2}, v{vT+1}, 7, v{vT+2}")
    A(f"s_lshl_b32 s{sT0}, s{sA}, 12")
    A(f"s_add_u32 s{sT1}, s{sT0}, 0x20000")
    A(f"v_add_u32 v{vBX[0]}, s{sT1}, v{vT+2}")
    for sp in range(1, 4):
        A(f"v_xor_b32 v{vBX[sp]}, {32*sp}, v{vBX[0]}")
    A(f"v_lshl_add_u32 v{vBH[0]}, v1, 4, s{sT0}")
    A(f"v_add_u32 v{vBH[1]}, 0x10000, v{vBH[0]}")
    A(f"v_add_u32 v{vBH[2]}, 0x20000, v{vBH[0]}")
    A(f"s_lshl_b32 s{sT1}, s{sBq}, 11")
    for k in range(3):
        A(f"v_add_u32 v{vHW[k]}, s{sT1}, v{vBH[k]}")
    sI0 = 38
    sMS, sML, sMC = 39, 63, 59
    sHS = [60, 61, 62]
    if cfg.iside >= 0:
        A(f"s_xor_b32 s{sI0}, s{sA}, {cfg.iside}")
        A(f"s_lshl_b32 s{sI0}, s{sI0}, 13")
    else:
        A(f"s_mul_i32 s{sI0}, s{sA}, {4*SD}")
    if cfg.numa:
        A(f"s_mul_i32 s{sT1}, s{sI}, {HW}")
        A(f"s_add_u32 s{sI0}, s{sI0}, s{sT1}")
        A(f"s_lshl_b32 s{sT1}, s{sMT}, 22")
    else:
        A(f"s_mul_i32 s{sT1}, s{sR}, {SR}")
    A(f"s_add_u32 s{sI0}, s{sI0}, s{sT1}")
    A(f"s_mul_i32 s{sT1}, s{sJ}, {SS}")
    A(f"s_add_u32 s{sI0}, s{sI0}, s{sT1}")
    A(f"s_add_u32 s{sI0}, s{sI0}, {WS_IN}")
    A(f"s_lshl_b32 s{sT1}, s{sBq}, 9")
    A(f"s_add_u32 s{sI0}, s{sI0}, s{sT1}")
    A(f"v_bfe_u32 v{vT+1}, v1, 3, 2")
    A(f"v_mul_u32_u24 v{vT+1}, {SD}, v{vT+1}")
    A(f"v_and_b32 v{vT+2}, 7, v1")
    A(f"v_lshl_add_u32 v{vT+1}, v{vT+2}, 4, v{vT+1}")
    A(f"v_lshl_add_u32 v{vL16}, v{vT}, 7, v{vT+1}")
    A(f"s_mov_b32 s{sMS}, 0x80008000")
    A(f"s_mov_b32 s{sML}, 0x00010001")
    A(f"s_mov_b32 s{sMC}, 0x7fff7fff")
    A(f"s_mul_i32 s{sHS[0]}, s{sI if cfg.numa else (sWK if cfg.hside < 0 else sR)}, {HW}")
    if cfg.numa:
        gbase(sT1, sT3)
        A(f"s_add_u32 s{sHS[0]}, s{sHS[0]}, s{sT1}")
        A(f"s_lshl_b32 s{sT1}, s{sMT}, 10")
        A(f"s_lshl_b32 s{sT3}, s{sA}, 9")
        A(f"s_add_u32 s{sT1}, s{sT1}, s{sT3}")
        A(f"s_add_u32 s{sT1}, s{sT1}, {WS_FL}")
        A(f"s_add_u32 s28, s{sWS}, s{sT1}")
        A(f"s_addc_u32 s29, s{sWS+1}, 0")
    elif cfg.hside >= 0:
        jbase(sT1, sJ, cfg.hside, sT3)
        A(f"s_add_u32 s{sHS[0]}, s{sHS[0]}, s{sT1}")
    if WS_H:
        A(f"s_add_u32 s{sHS[0]}, s{sHS[0]}, {WS_H}")
    A(f"s_add_u32 s{sHS[1]}, s{sHS[0]}, {HL}")
    A(f"s_add_u32 s{sHS[2]}, s{sHS[0]}, {2*HL}")
    def dummy(n, tag):
        if not n:
            return
        for k in range(8):
            A(f"v_mul_u32_u24 v{160+k}, {0x9e3779 + 77*k}, v0")
            A(f"v_and_b32 v{160+k}, 0x3fff3fff, v{160+k}")
        A(f"s_mov_b32 s15, {n // 4}")
        A.label(f"L_dum{tag}")
        for k in range(4):
            A(f"v_mfma_f32_32x32x16_bf16 v[{176+16*k}:{191+16*k}], v[{160+4*(k&1)}:{163+4*(k&1)}], v[{160+4*(k>>1)}:{163+4*(k>>1)}], 0")
        A("s_sub_u32 s15, s15, 1")
        A("s_cmp_lg_u32 s15, 0")
        A(f"s_cbranch_scc1 L_dum{tag}")
    dummy(cfg.dum1, "a")
    epoch_fin()
    slot_add(sI0, *sHS)
    sIL = [sI0, 10, 11]
    assert not any(ROT)
    A(f"s_add_u32 s10, s{sI0}, {SL}")
    A(f"s_add_u32 s11, s{sI0}, {2*SL}")
    tag_regs(vTG, vT + 1)
    assert not cfg.sa
    A("s_waitcnt vmcnt(1)")
    if cfg.sa:
        A(f"s_cmp_lt_u32 s{sWV}, {cfg.sa}")
        A("s_cbranch_scc1 L_bw")
        A("s_waitcnt vmcnt(0)")
        A.label("L_bw")
    for l in range(3):
        for g in range(4):
            r = vXB + 2 * (4 * l + g)
            d = vACC + 16 * l + 4 * g
            A(f"v_lshlrev_b32 v{d}, 16, v{r}")
            A(f"v_and_b32 v{d+1}, 0xffff0000, v{r}")
            A(f"v_lshlrev_b32 v{d+2}, 16, v{r+1}")
            A(f"v_and_b32 v{d+3}, 0xffff0000, v{r+1}")
    dummy(cfg.dum2, "b")
    stamp()

    items = []
    for st in stages:
        bykb = {}
        for u in st["units"]:
            bykb.setdefault(u[2], []).append(u)
        for kb, us in bykb.items():
            if st["q"] == n_g1 - 1 and cfg.tm:
                seq = [int(c) for c in cfg.tm]
                nsp = {0: 0, 1: 0, 2: 0}
                for t_ in seq:
                    (t, wb, _kb, fst) = [u for u in us if u[0] == t_][0]
                    items.append(dict(q=st["q"], tile=t, wb=wb, kb=kb, sp=nsp[t], first=False))
                    nsp[t] += 1
                assert all(v == 4 for v in nsp.values())
                continue
            if len(us) == 2 and cfg.chain:
                for (t, wb, _kb, fst) in us:
                    for sp in range(4):
                        items.append(dict(q=st["q"], tile=t, wb=wb, kb=kb, sp=sp, first=(fst and sp == 0)))
                continue
            for sp in range(4):
                for (t, wb, _kb, fst) in us:
                    items.append(dict(q=st["q"], tile=t, wb=wb, kb=kb, sp=sp, first=(fst and sp == 0)))
    NI = len(items)
    aux_used = set()
    if cfg.dual:
        own_end = max(n for n, it in enumerate(items) if it["q"] >= n_g1 and it["kb"] < 3)
        assert all(kbidx[(0, l)] < 3 for l in range(3))
        for n, it in enumerate(items):
            if n > own_end + 1 and items[n - 1]["tile"] == it["tile"]:
                it["first"] = it["tile"] not in aux_used
                aux_used.add(it["tile"])
                it["tile"] += 3

    def accbase(t):
        return vACC + 16 * t if t < 3 else vXB + 16 * (t - 3)
    last_item = {}
    for n, it in enumerate(items):
        last_item[it["q"]] = n
    bread_of = {(st["q"], kb): bb for st in stages for (bb, kb) in st["breads"]}
    lg = []
    smem_room = [False]

    def ds_issue(instr, tag):
        cap = (14 if TS else 15) - (4 if smem_room[0] else 0)
        if len(lg) >= cap:
            A(f"s_waitcnt lgkmcnt({cap-2})")
            del lg[:len(lg) - (cap - 2)]
        A(instr)
        lg.append(tag)

    def ds_need(tags):
        idx = max([i for i, t in enumerate(lg) if t in tags], default=-1)
        if idx >= 0:
            A(f"s_waitcnt lgkmcnt({len(lg) - 1 - idx})")
            del lg[:idx + 1]

    checked = [-1]
    bdone = set()
    dirty, clean_pos = {}, {}

    def clean(m):
        key = (items[m]["kb"], items[m]["sp"])
        if key in dirty and dirty[key] == m:
            del dirty[key]
            ds_need({("B",) + key})
            r = vXB + 16 * key[0] + 4 * key[1]
            for k in range(4):
                A(f"v_and_b32 v{r+k}, s{sMC}, v{r+k}")
            clean_pos[m] = len(A.L) - 1

    def issue_reads(n):
        it = items[n]
        q = it["q"]
        if q > checked[0]:
            ds_need({"hw"})
            fl4 = [f"s_load_dwordx2 s[{16+2*k}:{17+2*k}], s[28:29], {128*k} glc" for k in range(4)]
            if cfg.numa and q == n_g1 + 3:
                flag_chk([16, 18, 20, 22], fl4, sT0, sT1, sT2, sT3)
                lg.clear()
                A(f"v_bfe_u32 v{vT+1}, v1, 3, 2")
                A(f"v_lshrrev_b32 v{vT+1}, v{vT+1}, s{sT2}")
                A(f"v_and_b32 v{vT+1}, 1, v{vT+1}")
                A(f"v_lshl_add_u32 v{vL16}, v{vT+1}, 13, v{vL16}")
            A("s_barrier")
            checked[0] = q
            smem_room[0] = cfg.numa and q == n_g1 + 2
            if smem_room[0] and len(lg) > 10:
                A("s_waitcnt lgkmcnt(10)")
                del lg[:len(lg) - 10]
            if cfg.numa and q == cfg.flq + 1:
                flag_load()
            if cfg.numa and q == n_g1 + 2:
                for x in fl4:
                    A(x)
            if q in cfg.tsq:
                stamp()
        key = (q, it["kb"])
        if key in bread_of and (key, it["sp"]) not in bdone:
            bdone.add((key, it["sp"]))
            bb = blocks[bread_of[key]]
            addr = bb["slot"] * 8192
            r = vXB + 16 * it["kb"] + 4 * it["sp"]
            if bb["kind"] == "X":
                assert addr >> 16 == 2
                ds_issue(f"ds_read_b128 v[{r}:{r+3}], v{vBX[it['sp']]} offset:{addr & 0xffff}", ("B", it["kb"], it["sp"]))
            else:
                ds_issue(f"ds_read_b128 v[{r}:{r+3}], v{vBH[addr >> 16]} offset:{(addr & 0xffff) + 1024*it['sp']}",
                         ("B", it["kb"], it["sp"]))
                if bb["kind"] != "Hown":
                    if not cfg.hlsb:
                        dirty[(it["kb"], it["sp"])] = n
        wb = blocks[it["wb"]]
        addr = wb["slot"] * 8192 + 2048 * it["sp"]
        r = vAB + 4 * (n % nAB)
        ds_issue(f"ds_read_b64_tr_b16 v[{r}:{r+1}], v{vA[addr >> 16]} offset:{addr & 0xffff}", ("A", n))
        ds_issue(f"ds_read_b64_tr_b16 v[{r+2}:{r+3}], v{vA[addr >> 16]} offset:{(addr & 0xffff) + 1024}", ("A", n))

    post = []

    def epi1_instrs(pi, lines):
        out, late = [], []
        for l in lines:
            a = vACC + 16 * l
            addr = blocks[f"H0_{l}"]["slot"] * 8192
            for half in range(2):
                base = a + 8 * half
                if cfg.epi == 1:
                    assert cfg.hlsb
                    for k in range(8):
                        out.append(("v", f"v_mul_f32 v{base+k}, v{base+k}, |v{base+k}|"))
                    for k in range(4):
                        out.append(("v", f"v_cvt_pk_bf16_f32 v{base+k}, v{base+2*k}, v{base+2*k+1}"))
                    for k in range(4):
                        out.append(("v", f"v_pk_max_i16 v{base+k}, v{base+k}, 0"))
                else:
                    for k in range(8):
                        out.append(("v", f"v_max_f32 v{base+k}, 0, v{base+k}"))
                    for k in range(0, 8, 2):
                        out.append(("v", f"v_pk_mul_f32 v[{base+k}:{base+k+1}], v[{base+k}:{base+k+1}], v[{base+k}:{base+k+1}]"))
                    for k in range(4):
                        out.append(("v", f"v_cvt_pk_bf16_f32 v{base+k}, v{base+2*k}, v{base+2*k+1}"))
                for k in range(4):
                    out.append(("v", f"v_bfi_b32 v{base+4+k}, s{sML}, v{vTG+k}, v{base+k}" if cfg.hlsb else
                                f"v_and_or_b32 v{base+4+k}, v{vTG+k}, s{sMS}, v{base+k}"))
                out.append(("v", f"buffer_store_dwordx4 v[{base+4}:{base+7}], v{vHW[0]}, s[{SRD1}:{SRD1+3}], s{sHS[l]} offen offset:{1024*half} {cfg.hsf}"))
                out.append(("w", f"ds_write_b128 v{vHW[addr >> 16]}, v[{base}:{base+3}] offset:{(addr & 0xffff) + 1024*half}"))
                t = ("v", f"buffer_load_dword v255, v{vHW[0]}, s[{SRD1}:{SRD1+3}], s{sHS[l]} offen offset:{1024*half} {cfg.stf}")
                if cfg.stouch == 1:
                    out.append(t)
                elif cfg.stouch == 2:
                    late.append(t)
                elif cfg.stouch == 3:
                    post.append(t)
        return out + late

    def epi2_instrs(lines):
        out = []
        for l in lines:
            for u in range(2):
                base = vACC + 8 * (2 * l + u)
                if l in aux_used:
                    ab = accbase(l + 3) + 8 * u
                    for k in range(0, 8, 2):
                        out.append(("v", f"v_pk_add_f32 v[{base+k}:{base+k+1}], v[{base+k}:{base+k+1}], v[{ab+k}:{ab+k+1}]"))
                for k in range(4):
                    out.append(("v", f"v_cvt_pk_bf16_f32 v{base+k}, v{base+2*k}, v{base+2*k+1}"))
                out.append(("v", "s_nop 1"))
                out.append(("v", f"v_permlane32_swap_b32 v{base}, v{base+2}"))
                out.append(("v", f"v_permlane32_swap_b32 v{base+1}, v{base+3}"))
                for k in (0, 2, 1, 3):
                    out.append(("v", f"v_bfi_b32 v{base+k}, s{sML}, v{vTG+k}, v{base+k}"))
                out.append(("v", f"buffer_store_dwordx4 v[{base}:{base+3}], v{vL16}, s[{SRD1}:{SRD1+3}], s{sIL[l]} offen offset:{256*u} {cfg.psf}"))
        return out

    fillers = []
    fill_start = 0
    fill_tiles = set()
    mfma_pos = {}
    fill_fresh = [False]

    def states_since(pos):
        c = 0
        for ln in A.L[pos + 1:]:
            t = ln.strip()
            if t.endswith(":") or t.startswith(";") or t.startswith("@@"):
                continue
            c += int(t.split()[1]) + 1 if t.startswith("s_nop") else 1
        return c

    late_w = []

    def emit(kind, t):
        if kind == "mark":
            have = min(states_since(mfma_pos[tl]) for tl in t[0])
            if have < 12:
                A(f"s_nop {12 - have - 1}")
        elif kind == "w":
            ds_issue(t, "hw")
        else:
            A(t)

    def flush_fillers():
        nonlocal fillers
        for (kind, t) in fillers + late_w:
            emit(kind, t)
        fillers = []
        late_w.clear()
        fill_tiles.clear()

    trig = {}
    for l in range(3):
        trig[max(n for n, it in enumerate(items) if it["q"] < n_g1 and it["tile"] == l)] = (1, l)
        trig[max(n for n, it in enumerate(items) if it["q"] >= n_g1 and it["tile"] % 3 == l)] = (2, l)

    nread = 0
    for n in range(NI):
        it = items[n]
        lim = min(NI - 1, n + D)
        while nread <= lim:
            nx = items[nread]
            if nx["q"] > checked[0]:
                due = [l for l, v in hown_vis.items() if v == nx["q"]]
                if due:
                    if last_item[hown_w[due[0]]] >= n:
                        break
                    flush_fillers()
            key = (nx["q"], nx["kb"])
            if key in bread_of and (key, nx["sp"]) not in bdone:
                if any(items[m]["kb"] == nx["kb"] and items[m]["sp"] == nx["sp"] for m in range(n, nread)):
                    break
            issue_reads(nread)
            nread += 1
        assert nread > n
        if it["tile"] in fill_tiles:
            flush_fillers()
            A("s_nop 1")
        clean(n)
        ds_need({("A", n), ("B", it["kb"], it["sp"])})
        if it["first"]:
            ds_need({"hw"})
        if n in clean_pos and states_since(clean_pos[n]) < 2:
            A(f"s_nop {1 - states_since(clean_pos[n])}")
        ra = vAB + 4 * (n % nAB)
        rb = vXB + 16 * it["kb"] + 4 * it["sp"]
        acc = accbase(it["tile"])
        c = "0" if it["first"] else f"v[{acc}:{acc+15}]"
        if cfg.m16test == 1:
            for hh in range(2):
                a4 = acc + 8 * (it["sp"] & 1) + 4 * hh
                rb2 = vXB + 16 * it["kb"] + 4 * (it["sp"] if hh == 0 else max(it["sp"] - 1, 0))
                A(f"v_mfma_f32_16x16x32_bf16 v[{a4}:{a4+3}], v[{ra}:{ra+3}], v[{rb2}:{rb2+3}], v[{a4}:{a4+3}]")
        elif cfg.m16test == 2:
            A("s_nop 7")
        else:
            A(f"v_mfma_f32_32x32x16_bf16 v[{acc}:{acc+15}], v[{ra}:{ra+3}], v[{rb}:{rb+3}], {c}")
        mfma_pos[it["tile"]] = len(A.L) - 1
        if cfg.numa and n == last_item[n_g1 - 1]:
            flag_fin(sT0, sT1, sT2)
            lg.clear()
            for l in range(3):
                A(f"s_add_u32 s{sHS[l]}, s{sHS[l]}, s{sSIDE}")
        if n + 1 < nread:
            clean(n + 1)
        k = 0
        while fillers and k < (cfg.fill1 if it["q"] < n_g1 else cfg.fill):
            if fillers[0][0] == "mark" and n < fillers[0][1][1]:
                break
            kind, t = fillers.pop(0)
            emit(kind, t)
            k += kind != "mark"
        if not fillers and not late_w:
            fill_tiles.clear()
        if n == last_item[it["q"]] and (it["q"] in epi_after or it["q"] in epi2_after):
            stamp()
        if n in trig:
            g, l = trig[n]
            tl = [l] + ([l + 3] if (g == 2 and l in aux_used) else [])
            new = epi1_instrs(0, [l]) if g == 1 else epi2_instrs([l])
            if cfg.wlast:
                late_w.extend(x for x in new if x[0] == "w")
                new = [x for x in new if x[0] != "w"]
            fillers += [("mark", (tl, n + cfg.fdel))] + new
            fill_tiles.update(tl)
    flush_fillers()
    stamp()
    if cfg.rnb >= 1 and not cfg.rlate:
        A("s_barrier")
    reduce_code(1, 0)
    if TS:
        A("s_waitcnt vmcnt(0)")
        A("s_memrealtime s[98:99]")
        A("s_waitcnt lgkmcnt(0)")
        assert tsn[0] <= 14, tsn[0]
        A(f"s_mov_b32 s{sTS+28}, s98"); A(f"s_mov_b32 s{sTS+30}, s{sCNT}")
        tsn[0] = 16
        stamp_flush()
    if cfg.enc and cfg.encw < 4:
        A("s_branch L_noep")
    A("s_branch L_end")

    A.head("hl")
    A.label("L_helper")
    sG = 38
    A(f"s_lshl_b32 s{sG}, s{sWV}, 3")
    A(f"s_add_u32 s{sG}, s{sG}, s{sR}")
    A("v_mul_u32_u24 v8, 9216, v1")
    A("v_mul_u32_u24 v9, 1152, v1")
    A(f"s_mul_i32 s39, s{sJ}, 1152")
    NWT = 64
    if cfg.numa:
        NWT = 56
        A(f"s_cmp_eq_u32 s{sWV}, 7")
        A("s_cbranch_scc1 L_probe")
    if cfg.hw:
        NWT = 8 * cfg.hw
        A(f"s_cmp_ge_u32 s{sWV}, {cfg.hw}")
        A("s_cbranch_scc1 L_end")

    def thr(rnd):
        hq = cfg.hq2 if (rnd == 99 and cfg.hq2 >= 0) else cfg.hq
        if cfg.hw and rnd > hq and hq < 60:
            A(f"s_waitcnt vmcnt({hq})")
    A("s_waitcnt lgkmcnt(0)")

    def sdiv(dst, src, d):
        A(f"s_mul_i32 s{dst}, s{src}, {(65536 + d - 1) // d}")
        A(f"s_lshr_b32 s{dst}, s{dst}, 16")

    w2base = 0
    if cfg.touch and any(ROT):
        srd(SRD0, sW1, 5308416)
        srd(SRD1, sX, 589824)
        need = {kk: min((kk - r) % 9 for r in ROT) for kk in range(9)}
        kks = sorted([kk for kk in range(9) if need[kk] >= cfg.skipw], key=lambda kk: need[kk])
        KT = sum(kk << (4 * u) for u, kk in enumerate(kks))
        nW = 9 * len(kks)
        x0 = cfg.skipx
        nX = 8 * (9 - x0)
        tot = nW + nX
        for rnd in range((tot + NWT - 1) // NWT):
            if rnd == 1:
                A.tail("hl")
            k = A.uid()
            A(f"s_add_u32 s{sT0}, s{sG}, {NWT*rnd}")
            if NWT * rnd < nW:
                if NWT * rnd + NWT > nW:
                    A(f"s_cmp_ge_u32 s{sT0}, {nW}")
                    A(f"s_cbranch_scc1 L_hx{k}")
                sdiv(sT1, sT0, 9)
                A(f"s_mul_i32 s{sT2}, s{sT1}, 9")
                A(f"s_sub_u32 s{sT2}, s{sT0}, s{sT2}")
                A(f"s_lshl_b32 s{sT1}, s{sT1}, 2")
                A(f"s_lshr_b32 s{sT1}, {KT}, s{sT1}")
                A(f"s_and_b32 s{sT1}, s{sT1}, 15")
                A(f"s_mul_i32 s{sT1}, s{sT1}, {64*9216}")
                A(f"s_lshl_b32 s{sT2}, s{sT2}, 7")
                A(f"s_add_u32 s{sT1}, s{sT1}, s{sT2}")
                A(f"s_add_u32 s{sT1}, s{sT1}, s39")
                A(f"buffer_load_dword v255, v8, s[{SRD0}:{SRD0+3}], s{sT1} offen {cfg.tfl}")
                if NWT * rnd + NWT > nW:
                    A(f"s_branch L_ht{k}")
            if NWT * rnd + NWT > nW:
                A.label(f"L_hx{k}")
                if NWT * rnd + NWT > tot:
                    A(f"s_cmp_ge_u32 s{sT0}, {tot}")
                    A(f"s_cbranch_scc1 L_ht{k}")
                A(f"s_sub_u32 s{sT0}, s{sT0}, {nW - 8*x0}")
                A(f"s_and_b32 s{sT2}, s{sT0}, 7")
                A(f"s_lshr_b32 s{sT1}, s{sT0}, 3")
                A(f"s_lshl_b32 s{sT3}, s{sT2}, 2")
                A(f"s_lshr_b32 s{sT3}, {ROTTAB}, s{sT3}")
                A(f"s_and_b32 s{sT3}, s{sT3}, 15")
                A(f"s_add_u32 s{sT1}, s{sT1}, s{sT3}")
                A(f"s_cmp_ge_u32 s{sT1}, 9")
                A(f"s_cselect_b32 s{sT3}, 9, 0")
                A(f"s_sub_u32 s{sT1}, s{sT1}, s{sT3}")
                A(f"s_mul_i32 s{sT2}, s{sT2}, {64*1152}")
                A(f"s_lshl_b32 s{sT1}, s{sT1}, 7")
                A(f"s_add_u32 s{sT1}, s{sT1}, s{sT2}")
                A(f"buffer_load_dword v255, v9, s[{SRD1}:{SRD1+3}], s{sT1} offen")
            A.label(f"L_ht{k}")
        w2base = (NWT - tot % NWT) % NWT
    elif cfg.touch and cfg.xa >= 0:
        srd(SRD0, sW1, 5308416)
        srd(SRD1, sX, 589824)
        CS = cfg.cs
        tot = 9 * CS - cfg.hskip
        w2base = (NWT - tot % NWT) % NWT
        for rnd in range((tot + NWT - 1) // NWT):
            if rnd == 1:
                A.tail("hl")
            k = A.uid()
            A(f"s_add_u32 s{sT0}, s{sG}, {NWT*rnd + cfg.hskip}")
            if NWT * rnd + NWT > tot:
                A(f"s_cmp_ge_u32 s{sT0}, {9*CS}")
                A(f"s_cbranch_scc1 L_ht{k}")
            sdiv(sT1, sT0, CS)
            A(f"s_mul_i32 s{sT2}, s{sT1}, {CS}")
            A(f"s_sub_u32 s{sT2}, s{sT0}, s{sT2}")
            A(f"s_sub_u32 s{sT3}, s{sT2}, {cfg.xa}")
            A(f"s_cmp_lt_u32 s{sT3}, 8")
            A(f"s_cbranch_scc1 L_hx{k}")
            A(f"s_cmp_ge_u32 s{sT2}, {cfg.xa}")
            A(f"s_cselect_b32 s{sT3}, 8, 0")
            A(f"s_sub_u32 s{sT2}, s{sT2}, s{sT3}")
            if cfg.rev:
                A(f"s_sub_u32 s{sT2}, 8, s{sT2}")
            sdiv(sT3, sT2, 3)
            A(f"s_mul_i32 s{sT2}, s{sT2}, 384")
            A(f"s_lshl_b32 s{sT3}, s{sT3}, 10")
            A(f"s_sub_u32 s{sT2}, s{sT2}, s{sT3}")
            A(f"s_mul_i32 s{sT1}, s{sT1}, {64*9216}")
            A(f"s_add_u32 s{sT1}, s{sT1}, s{sT2}")
            A(f"s_add_u32 s{sT1}, s{sT1}, s39")
            A(f"buffer_load_dword v255, v8, s[{SRD0}:{SRD0+3}], s{sT1} offen {cfg.tfl}")
            A(f"s_branch L_ht{k}")
            A.label(f"L_hx{k}")
            A(f"s_mul_i32 s{sT2}, s{sT3}, {64*1152}")
            A(f"s_lshl_b32 s{sT1}, s{sT1}, 7")
            A(f"s_add_u32 s{sT1}, s{sT1}, s{sT2}")
            A(f"buffer_load_dword v255, v9, s[{SRD1}:{SRD1+3}], s{sT1} offen")
            A.label(f"L_ht{k}")
    elif cfg.touch:
        srd(SRD0, sW1, 5308416)
        srd(SRD1, sX, 589824)
        phases, base = [], 0
        for pi, ls in enumerate(passes):
            t0 = cfg.ht0 if pi == 0 else 0
            c = 3 * len(ls) + (8 if pi == 0 else 0)
            phases.append((base, (9 - t0 - cfg.tn) * c, t0, c, ls))
            base += (9 - t0 - cfg.tn) * c
        w2base = (NWT - base % NWT) % NWT if cfg.w2rot else 0
        for rnd in range((base + NWT - 1) // NWT):
            if rnd == 1:
                A.tail("hl")
            k = A.uid()
            A(f"s_add_u32 s{sT0}, s{sG}, {NWT*rnd}")
            for (pb, cnt, t0, c, ls) in phases:
                if pb + cnt <= NWT * rnd or pb >= NWT * rnd + NWT:
                    continue
                k2 = A.uid()
                A(f"s_cmp_ge_u32 s{sT0}, {pb+cnt}")
                A(f"s_cbranch_scc1 L_hp{k2}")
                if pb:
                    A(f"s_sub_u32 s{sT0}, s{sT0}, {pb}")
                sdiv(sT1, sT0, c)
                A(f"s_mul_i32 s{sT2}, s{sT1}, {c}")
                A(f"s_sub_u32 s{sT2}, s{sT0}, s{sT2}")
                if t0:
                    A(f"s_add_u32 s{sT1}, s{sT1}, {t0}")
                if cfg.tn:
                    A(f"s_cmp_ge_u32 s{sT1}, {cfg.ta}")
                    A(f"s_cselect_b32 s{sT3}, {cfg.tn}, 0")
                    A(f"s_add_u32 s{sT1}, s{sT1}, s{sT3}")
                nw = 3 * len(ls)
                if c > nw:
                    A(f"s_cmp_ge_u32 s{sT2}, {nw}")
                    A(f"s_cbranch_scc1 L_hx{k2}")
                if len(ls) != 3:
                    if len(ls) == 1:
                        A(f"s_mul_i32 s{sT2}, s{sT2}, 3")
                    else:
                        A(f"s_lshr_b32 s{sT3}, s{sT2}, 1")
                        A(f"s_add_u32 s{sT2}, s{sT2}, s{sT3}")
                    if ls[0]:
                        A(f"s_add_u32 s{sT2}, s{sT2}, {ls[0]}")
                A(f"s_mul_i32 s{sT1}, s{sT1}, {64*9216}")
                A(f"s_lshl_b32 s{sT2}, s{sT2}, 7")
                A(f"s_add_u32 s{sT1}, s{sT1}, s{sT2}")
                A(f"s_add_u32 s{sT1}, s{sT1}, s39")
                thr(rnd)
                A(f"buffer_load_dword v255, v8, s[{SRD0}:{SRD0+3}], s{sT1} offen {cfg.tfl}")
                A(f"s_branch L_ht{k}")
                if c > nw:
                    A.label(f"L_hx{k2}")
                    A(f"s_sub_u32 s{sT2}, s{sT2}, {nw}")
                    A(f"s_mul_i32 s{sT2}, s{sT2}, {64*1152}")
                    A(f"s_lshl_b32 s{sT1}, s{sT1}, 7")
                    A(f"s_add_u32 s{sT1}, s{sT1}, s{sT2}")
                    thr(rnd)
                    A(f"buffer_load_dword v255, v9, s[{SRD1}:{SRD1+3}], s{sT1} offen")
                    A(f"s_branch L_ht{k}")
                A.label(f"L_hp{k2}")
            A.label(f"L_ht{k}")
    def h_pretouch():
        srd(SRD1, sWS, 0x10000000)
        A("v_lshlrev_b32 v10, 7, v1")
        A(f"s_mul_i32 s{sT1}, s{sJ}, 589824")
        A(f"s_add_u32 s{sT1}, s{sT1}, {WS_IN if cfg.hpin else WS_H}")
        for rnd in range(2):
            k = A.uid()
            A(f"s_add_u32 s{sT0}, s{sG}, {NWT*rnd}")
            A(f"s_cmp_ge_u32 s{sT0}, 72")
            A(f"s_cbranch_scc1 L_ht{k}")
            A(f"s_lshl_b32 s{sT0}, s{sT0}, 13")
            A(f"s_add_u32 s{sT0}, s{sT0}, s{sT1}")
            A(f"buffer_load_dword v255, v10, s[{SRD1}:{SRD1+3}], s{sT0} offen {cfg.hpf}")
            A.label(f"L_ht{k}")
    if cfg.hpre == 1:
        h_pretouch()
    if cfg.touch:
        srd(SRD0, sW2, 5308416)
        A(f"s_mul_i32 s39, s{sJ}, 663552")
        vord = [blocks[nm] for nm in order if blocks[nm]["kind"] == "W2"]
        if not cfg.vneed:
            vord.sort(key=lambda b: (kbidx[(b["d"], b["lk"])], b["l"]))
        for reg, key in ((60, "d"), (62, "lk"), (44, "l")):
            tab = sum(b[key] << (2 * u) for u, b in enumerate(vord))
            A(f"s_mov_b32 s{reg}, {tab & 0xffffffff}")
            A(f"s_mov_b32 s{reg+1}, {tab >> 32}")
        if w2base:
            A(f"s_add_u32 s{sG}, s{sG}, {w2base}")
            A(f"s_cmp_ge_u32 s{sG}, {NWT}")
            A(f"s_cselect_b32 s{sT0}, {NWT}, 0")
            A(f"s_sub_u32 s{sG}, s{sG}, s{sT0}")
        for rnd in range((81 + NWT - 1) // NWT):
            k = A.uid()
            A(f"s_add_u32 s{sT0}, s{sG}, {NWT*rnd}")
            A(f"s_cmp_ge_u32 s{sT0}, {81 - 18*cfg.vt}")
            A(f"s_cbranch_scc1 L_ht{k}")
            sdiv(sT1, sT0, 3)
            A(f"s_mul_i32 s{sT2}, s{sT1}, 3")
            A(f"s_sub_u32 s{sT2}, s{sT0}, s{sT2}")
            A(f"s_lshl_b32 s{sT1}, s{sT1}, 1")
            A(f"s_lshr_b64 s[46:47], s[60:61], s{sT1}")
            A(f"s_and_b32 s{sT0}, s46, 3")
            A(f"s_add_u32 s{sT0}, s{sT0}, s{sT2}")
            A(f"s_cmp_ge_u32 s{sT0}, 3")
            A(f"s_cselect_b32 s{sT3}, 3, 0")
            A(f"s_sub_u32 s{sT0}, s{sT0}, s{sT3}")
            A(f"s_lshr_b64 s[46:47], s[62:63], s{sT1}")
            A(f"s_and_b32 s{sT3}, s46, 3")
            A(f"s_mul_i32 s{sT0}, s{sT0}, {192*1152}")
            A(f"s_mul_i32 s{sT3}, s{sT3}, {64*1152}")
            A(f"s_add_u32 s{sT0}, s{sT0}, s{sT3}")
            A(f"s_lshr_b64 s[46:47], s[44:45], s{sT1}")
            A(f"s_and_b32 s{sT3}, s46, 3")
            A(f"s_mul_i32 s{sT2}, s{sT2}, 3")
            A(f"s_add_u32 s{sT2}, s{sT2}, s{sT3}")
            A(f"s_lshl_b32 s{sT2}, s{sT2}, 7")
            A(f"s_add_u32 s{sT0}, s{sT0}, s{sT2}")
            A(f"s_add_u32 s{sT0}, s{sT0}, s39")
            thr(99)
            A(f"buffer_load_dword v255, v9, s[{SRD0}:{SRD0+3}], s{sT0} offen {cfg.tfl}")
            A.label(f"L_ht{k}")
    if cfg.hpre == 2:
        h_pretouch()
    dummy(cfg.dumh, "h")
    if TS:
        tsn[0] = 1
        A("s_waitcnt vmcnt(0)")
        stamp()
        stamp()
        stamp_flush()
    A("s_branch L_end")
    if cfg.numa:
        A.tail("pr")
        A.label("L_probe")
        A(f"s_mov_b32 s{sMT}, s{sR}")
        sO1, sO2, sEV, sRD = 53, 54, 55, 56
        gbase(sO1, 58)
        A(f"s_add_u32 s{sO1}, s{sO1}, {cfg.wsb + 18*16384}")
        A(f"s_mov_b32 s{sRD}, 0")
        A("v_mov_b32 v2, 0")
        A("s_waitcnt lgkmcnt(0)")
        epoch_load(sMT)
        srd(SRD1, sWS, 0x10000000)
        A(f"s_lshl_b32 s57, s{sMT}, 3")
        A(f"s_add_u32 s57, s57, s{sJ}")
        A("s_lshl_b32 s57, s57, 7")
        A(f"s_add_u32 s57, s57, {WS_FL}")
        A("s_waitcnt lgkmcnt(0)")
        A(f"s_not_b32 s3, s{sTAG}")
        A(f"s_add_u32 s{sTAG}, s{sTAG}, 1")
        A(f"v_mov_b32 v4, s{sTAG}")
        A.label("L_pl")
        A(f"s_xor_b32 s{sO2}, s{sO1}, 8192")
        A("s_mov_b32 s61, s3")
        A(f"s_load_dword s60, s[{sWS}:{sWS+1}], s{sO1}")
        A(f"s_load_dword s61, s[{sWS}:{sWS+1}], s{sO2}")
        A("s_waitcnt lgkmcnt(1)")
        for _ in range(cfg.rd):
            A("s_nop 7")
        A("s_cmp_eq_u32 s61, s3")
        A("s_cbranch_scc1 L_pub")
        A(f"s_add_u32 s{sO1}, s{sO2}, 128")
        A(f"s_add_u32 s{sRD}, s{sRD}, 1")
        A("s_waitcnt lgkmcnt(0)")
        A(f"s_cmp_lt_u32 s{sRD}, {cfg.nrd}")
        A("s_cbranch_scc1 L_pl")
        A.label("L_pub")
        A(f"s_bfe_u32 s58, s{sO1}, 0x1000d")
        if cfg.numa == 2:
            A("s_xor_b32 s58, s58, 1")
        if TS:
            A(f"s_mov_b32 s{sTS+6}, s58")
            A(f"s_mov_b32 s{sTS+8}, s{sRD}")
        A(f"s_xnor_b32 s58, s{sTAG}, s58")
        A("v_mov_b32 v5, s58")
        A("s_mov_b64 exec, 1")
        A(f"buffer_store_dwordx2 v[4:5], v2, s[{SRD1}:{SRD1+3}], s57 offen sc1")
        A.label("L_pend")
        A("s_mov_b64 exec, -1")
        if TS:
            tsn[0] = 1
            stamp()
            A("s_waitcnt vmcnt(0)")
            stamp()
            tsn[0] = 5
            stamp_flush()
        A("s_waitcnt lgkmcnt(0)")
        A("s_branch L_end")
    A.tail("late")
    A.L.extend(late_code)
    A.tail("end")
    A.label("L_end")

    hdr = f"""; Fused MLP (x@w1+b1 -> relu^2 -> @w2+b2), generated by a python script (work/gen9.py)
; @launch grid=(256,1,1) block=(512,1,1) lds=163840
.amdgcn_target "amdgcn-amd-amdhsa--gfx950"
.text
.globl {KN}
.p2align 8
.type {KN},@function
{KN}:
"""
    ftr = f"""
    s_endpgm
.section .rodata,"a"
.p2align 6
.amdhsa_kernel {KN}
  .amdhsa_next_free_vgpr 256
  .amdhsa_next_free_sgpr 102
  .amdhsa_accum_offset 256
  .amdhsa_group_segment_fixed_size 0
  .amdhsa_kernarg_size 64
  .amdhsa_user_sgpr_count 2
  .amdhsa_user_sgpr_kernarg_segment_ptr 1
  .amdhsa_system_sgpr_workgroup_id_x 1
.end_amdhsa_kernel
"""
    return hdr + A.text(cfg.horder.split(","), (["pr"] if cfg.numa else []) + cfg.torder.split(",") + ["late", "end"]) + ftr


def parse_g2(s):
    out = []
    for stg in s.split(","):
        us = []
        for u in stg.split("+"):
            a, b = u.split(":")
            us.append((int(a[0]), int(a[1]), [int(c) for c in b]))
        out.append(us)
    return out


def ilist(s):
    return [int(x) for x in s.split(",")] if s else []


def main():
    ap = argparse.ArgumentParser()
    ap.add_argument("-o", default="k8.s")
    ap.add_argument("--ts", action="store_true")
    ap.add_argument("--passes", default="012")
    ap.add_argument("--depth", type=int, default=5)
    ap.add_argument("--fill", type=int, default=4)
    ap.add_argument("--grp1", type=int, default=3)
    ap.add_argument("--hres", type=float, default=2.5)
    ap.add_argument("--hearly", type=float, default=1.5)
    ap.add_argument("--hdel", type=int, default=1)
    ap.add_argument("--xfree", type=int, default=11)
    ap.add_argument("--g2", default="00:012,01:012,02:012,10:012,20:012,11:012,21:012,12:012,22:012")
    ap.add_argument("--tsq", default="")
    ap.add_argument("--verbose", action="store_true")
    ap.add_argument("--ahead", type=int, default=8)
    ap.add_argument("--ahead0", type=int, default=8)
    ap.add_argument("--capfrom", type=int, default=8)
    ap.add_argument("--capw", type=int, default=4)
    ap.add_argument("--capx", type=int, default=3)
    ap.add_argument("--burst", default="")
    ap.add_argument("--pause", default="")
    ap.add_argument("--go2lead", type=int, default=3)
    ap.add_argument("--sa", type=int, default=0)
    ap.add_argument("--ctouch", type=int, default=1)
    ap.add_argument("--wfl", default="")
    ap.add_argument("--tfl", default="")
    ap.add_argument("--rfl", default="sc1")
    ap.add_argument("--rsleep", type=int, default=0)
    ap.add_argument("--touch", type=int, default=1)
    ap.add_argument("--clrq", type=int, default=-1)
    ap.add_argument("--cdq", type=int, default=9)
    ap.add_argument("--rbar", type=int, default=0)
    ap.add_argument("--hsf", default="sc1")
    ap.add_argument("--hlf", default="sc1")
    ap.add_argument("--ofl", default="")
    ap.add_argument("--hpre", type=int, default=0)
    ap.add_argument("--rot", default="00000000")
    ap.add_argument("--ts0", type=int, default=0)
    ap.add_argument("--hlsb", type=int, default=1)
    ap.add_argument("--dual", type=int, default=0)
    ap.add_argument("--hq2", type=int, default=-1)
    ap.add_argument("--cs", type=int, default=17)
    ap.add_argument("--rev", type=int, default=0)
    ap.add_argument("--xa", type=int, default=-1)
    ap.add_argument("--hskip", type=int, default=0)
    ap.add_argument("--hw", type=int, default=0)
    ap.add_argument("--hq", type=int, default=0)
    ap.add_argument("--numa", type=int, default=0)
    ap.add_argument("--flq", type=int, default=5)
    ap.add_argument("--nev", type=int, default=2)
    ap.add_argument("--nrd", type=int, default=7)
    ap.add_argument("--rr", type=int, default=0)
    ap.add_argument("--rd", type=int, default=2)
    ap.add_argument("--rn", type=int, default=12)
    ap.add_argument("--rq", type=int, default=0)
    ap.add_argument("--hside", type=int, default=-1)
    ap.add_argument("--iside", type=int, default=-1)
    ap.add_argument("--obox", type=int, default=0)
    ap.add_argument("--probe", type=int, default=0)
    ap.add_argument("--vt", type=int, default=0)
    ap.add_argument("--vtq", type=int, default=10)
    ap.add_argument("--xpre", type=int, default=0)
    ap.add_argument("--m16test", type=int, default=0)
    ap.add_argument("--vneed", type=int, default=1)
    ap.add_argument("--tsreal", type=int, default=0)
    ap.add_argument("--vpipe", type=int, default=0)
    ap.add_argument("--ahead2", type=int, default=-1)
    ap.add_argument("--chain", type=int, default=1)
    ap.add_argument("--owide", type=int, default=0)
    ap.add_argument("--dum1", type=int, default=0)
    ap.add_argument("--dum2", type=int, default=0)
    ap.add_argument("--dumh", type=int, default=0)
    ap.add_argument("--encc", type=int, default=0)
    ap.add_argument("--encm", type=int, default=2)
    ap.add_argument("--slots", type=int, default=0)
    ap.add_argument("--rlate", type=int, default=0)
    ap.add_argument("--epi", type=int, default=0)
    ap.add_argument("--tm", default="")
    ap.add_argument("--wlast", type=int, default=0)
    ap.add_argument("--fdel", type=int, default=3)
    ap.add_argument("--fill1", type=int, default=5)
    ap.add_argument("--priow", type=int, default=0)
    ap.add_argument("--prioh", type=int, default=0)
    ap.add_argument("--r0early", type=int, default=0)
    ap.add_argument("--psf", default="sc1")
    ap.add_argument("--rw1", type=int, default=0)
    ap.add_argument("--ofl1", default="")
    ap.add_argument("--rpq", type=int, default=10)
    ap.add_argument("--rb2", type=int, default=1)
    ap.add_argument("--rb4", type=int, default=0)
    ap.add_argument("--rearly", type=int, default=0)
    ap.add_argument("--hpf", default="")
    ap.add_argument("--hpin", type=int, default=0)
    ap.add_argument("--wsb", type=lambda x: int(x, 0), default=0)
    ap.add_argument("--enc", default="")
    ap.add_argument("--encw", type=int, default=4)
    ap.add_argument("--hfree", type=int, default=2)
    ap.add_argument("--stouch", type=int, default=0)
    ap.add_argument("--stdel", type=int, default=1)
    ap.add_argument("--stf", default="")
    ap.add_argument("--ta", type=int, default=0)
    ap.add_argument("--tn", type=int, default=0)
    ap.add_argument("--tpos", type=int, default=0)
    ap.add_argument("--w2rot", type=int, default=1)
    ap.add_argument("--rfast", type=int, default=1)
    ap.add_argument("--wt", type=int, default=0)
    ap.add_argument("--horder", default="w,x,h2,hl,c")
    ap.add_argument("--ht0", type=int, default=1)
    ap.add_argument("--first", type=int, default=4)
    ap.add_argument("--torder", default="hl,w,x,h2,c,red")
    ap.add_argument("--skipw", type=int, default=1)
    ap.add_argument("--skipx", type=int, default=1)
    cfg = ap.parse_args()
    cfg.passes = [[int(c) for c in p] for p in cfg.passes.split(",")]
    cfg.g2 = parse_g2(cfg.g2)
    cfg.rnb = cfg.rb2
    cfg.tsq, cfg.burst, cfg.pause = ilist(cfg.tsq), ilist(cfg.burst), ilist(cfg.pause)
    open(cfg.o, "w").write(build(cfg))


main()
```

```python
import sys, argparse

KN = "standalone__dense_activation_squared_relu__sampling_kernel"

WS_H = 0x0
WS_IN = 0x1000000
WS_CD = 0x1840000
WS_EP = 0x1850000
WS_TS = 0x8000000
SPIN_MAX = 100000
SGNMASK = 0x6A9956A5


class Asm:
    def __init__(self):
        self.L = []
        self.n = 0

    def __call__(self, s):
        self.L.append("    " + s)

    def label(self, s):
        self.L.append(s + ":")

    def c(self, s):
        self.L.append("    ; " + s)

    def uid(self):
        self.n += 1
        return self.n

    def head(self, role):
        self.L.append(f"@@HEAD {role}")

    def tail(self, role):
        self.L.append(f"@@TAIL {role}")

    def text(self, horder, torder):
        pro, heads, tails, cur = [], {}, {}, None
        cur = pro
        for ln in self.L:
            if ln.startswith("@@HEAD"):
                cur = heads.setdefault(ln.split()[1], [])
            elif ln.startswith("@@TAIL"):
                r = ln.split()[1]
                if r in heads:
                    heads[r].append(f"    s_branch L_tail_{r}")
                cur = tails.setdefault(r, [f"L_tail_{r}:"])
            else:
                cur.append(ln)
        assert sorted(heads) == sorted(horder) and sorted(tails) == sorted(torder), (heads.keys(), tails.keys())
        out = pro
        for r in horder:
            out += heads[r]
        out.append("L_heads_end:")
        for r in torder:
            out += tails[r]
        return "\n".join(out)


def build(cfg):
    global WS_H, WS_IN, WS_EP
    WS_H = cfg.wsb
    WS_IN = cfg.wsb + 0x480000
    WS_EP = cfg.wsb + 0xc00000 if not cfg.slots else 0x10000
    A = Asm()
    SR, SD, SS, SL = {0: (24576, 589824, 3072, 1024), 1: (24576, 1024, 589824, 8192),
                      2: (196608, 8192, 1024, 65536), 3: (196608, 1024, 8192, 65536),
                      4: (221184, 9216, 1024, 73728), 5: (24*10496, 10496, 1280, 8*10496),
                      6: (221184, 1024, 9216, 73728), 7: (24*8448, 8448, 1024, 8*8448)}[cfg.obox]
    TS = cfg.ts
    HW, HL = (24576, 8192) if cfg.hside < 0 else (49152, 16384)
    if cfg.hside >= 0 or cfg.iside >= 0:
        WS_IN = cfg.wsb + 0x1000000
        WS_EP = cfg.wsb + 0x2000000
    if cfg.iside >= 0:
        SR, SD, SS, SL = 49152, 0x400000, 1024, 16384

    if cfg.numa:
        HW, HL = 49152, 16384
        SD, SS, SL = 0x80000, 1024, 16384
        WS_IN = cfg.wsb + 9 * 16384
        WS_EP = cfg.wsb + 0x2000000
    WS_FL = WS_EP + 0x1000
    sSIDE, sFO = 12, 14
    late_code = []

    def flag_load():
        A(f"s_lshl_b32 s{sFO}, s34, 3")
        A(f"s_add_u32 s{sFO}, s{sFO}, s32")
        A(f"s_lshl_b32 s{sFO}, s{sFO}, 7")
        A(f"s_add_u32 s{sFO}, s{sFO}, {WS_FL}")
        A(f"s_load_dwordx2 s[8:9], s[30:31], s{sFO} glc")

    def flag_chk(regs, reload, t0, t1, dst, cnt):
        k = A.uid()
        A(f"s_mov_b32 s{cnt}, 0")
        A.label(f"L_f{k}")
        A("s_waitcnt lgkmcnt(0)")
        A(f"s_mov_b32 s{dst}, 0")
        for n, r in enumerate(regs):
            A(f"s_xnor_b32 s{t0}, s{r+1}, s6")
            A(f"s_xor_b32 s{t1}, s{r}, s6")
            A(f"s_lshl_b32 s{r}, s{t0}, {n}")
            A(f"s_or_b32 s{dst}, s{dst}, s{r}")
            A(f"s_lshr_b32 s{t0}, s{t0}, 1")
            A(f"s_or_b32 s{t0}, s{t0}, s{t1}")
            A(f"s_cbranch_scc1 L_fr{k}")
        A.label(f"L_fd{k}")
        n0 = len(A.L)
        A.label(f"L_fr{k}")
        A(f"s_add_u32 s{cnt}, s{cnt}, 1")
        A(f"s_mov_b32 s{dst}, 0")
        A(f"s_cmp_gt_u32 s{cnt}, {SPIN_MAX}")
        A(f"s_cbranch_scc1 L_fd{k}")
        for x in reload:
            A(x)
        A(f"s_branch L_f{k}")
        late_code.extend(A.L[n0:])
        del A.L[n0:]

    def flag_fin(t0, t1, cnt):
        flag_chk([8], [f"s_load_dwordx2 s[8:9], s[30:31], s{sFO} glc"], t0, t1, sSIDE, cnt)
        A(f"s_lshl_b32 s{sSIDE}, s{sSIDE}, 13")

    def gbase(dst, tmp):
        A(f"s_lshl_b32 s{dst}, s34, 3")
        A(f"s_add_u32 s{dst}, s{dst}, s32")
        A(f"s_lshl_b32 s{dst}, s{dst}, 19")

    def jbase(dst, sj, side, tmp):
        A(f"s_and_b32 s{dst}, s{sj}, 3")
        A(f"s_lshl_b32 s{dst}, s{dst}, 22")
        A(f"s_lshr_b32 s{tmp}, s{sj}, 2")
        if side:
            A(f"s_xor_b32 s{tmp}, s{tmp}, 1")
        A(f"s_lshl_b32 s{tmp}, s{tmp}, 13")
        A(f"s_add_u32 s{dst}, s{dst}, s{tmp}")
    passes = cfg.passes
    D = cfg.depth

    stages, blocks, order = [], {}, []

    def blk(name, **kw):
        blocks[name] = dict(name=name, **kw)
        return name

    def add_stage(units, breads):
        q = len(stages)
        stages.append(dict(units=units, breads=breads, q=q))
        for (bb, _kb) in breads:
            b = blocks[bb]
            b["need"] = b["last"] = q
            if b["kind"] != "Hown":
                order.append(bb)
        for (_t, wb, _kb, _first) in units:
            b = blocks[wb]
            if "need" not in b:
                b["need"] = q
                order.append(wb)
            b["last"] = q
        return q

    epi_after, pass_of_line = {}, {}
    for pi, lines in enumerate(passes):
        grp = 1 if (len(lines) > 1 or pi == 0) else cfg.grp1
        for t0 in range(0, 9, grp):
            units, breads = [], []
            for t in range(t0, t0 + grp):
                if pi == 0:
                    breads.append((blk(f"X{t}", kind="X", t=t), t))
                for l in lines:
                    units.append((l, blk(f"W{t}_{l}", kind="W1", t=t, l=l), t, False))
            q = add_stage(units, breads)
        epi_after[q] = (pi, list(lines))
        for l in lines:
            pass_of_line[l] = pi
    n_g1 = len(stages)
    kbidx = {}
    first = {0: True, 1: True, 2: True}
    cnt2 = {0: 0, 1: 0, 2: 0}
    epi2_after = {}
    for stg in cfg.g2:
        units, breads = [], []
        for (d, lk, lines) in stg:
            if (d, lk) not in kbidx:
                kbidx[(d, lk)] = len(kbidx)
                breads.append((blk(f"H{d}_{lk}", kind="Hown" if d == 0 else f"H{d}", d=d, lk=lk), kbidx[(d, lk)]))
            for l in lines:
                units.append((l, blk(f"V{d}_{lk}_{l}", kind="W2", d=d, lk=lk, l=l), kbidx[(d, lk)], first[l]))
                first[l] = False
                cnt2[l] += 1
        q = add_stage(units, breads)
        done = [l for l in range(3) if cnt2[l] == 9 and not any(l in v for v in epi2_after.values())]
        if done:
            epi2_after[q] = done
    assert all(v == 9 for v in cnt2.values())
    NQ = len(stages)
    hown_w = {l: q for q, (pi, lines) in epi_after.items() for l in lines}
    hown_vis = {l: (q + 1 if q == n_g1 - 1 else q + 2) for l, q in hown_w.items()}
    for l in hown_w:
        assert blocks[f"H0_{l}"]["need"] >= hown_vis[l]
    hfetch = {l: hown_vis[l] + cfg.hdel for l in hown_w}

    free_at = {s: -10 for s in range(20)}
    events = [(blocks[nm]["need"] - (cfg.hearly if blocks[nm]["kind"] in ("H1", "H2") else 0), 1, k, nm) for k, nm in enumerate(order)]
    for l, qw in hown_w.items():
        events.append((qw - cfg.hres, 0, l, f"H0_{l}"))
    events.sort()
    for ev in events:
        b = blocks[ev[3]]
        if b["kind"] == "X":
            cand = [16, 17, 18, 19]
        elif ev[0] < cfg.xfree:
            cand = list(range(0, 16))
        else:
            cand = list(range(0, 20))
        s = min(cand, key=lambda s: (free_at[s], s))
        b["slot"] = s
        b["free"] = free_at[s]
        if b["kind"] == "Hown":
            assert b["free"] + cfg.hfree <= hown_w[b["lk"]], b
        else:
            assert b["free"] + 2 < b["need"], b
        free_at[s] = b["last"]
    if cfg.verbose:
        print(" | ".join(f"{blocks[e[3]]['name']}:s{blocks[e[3]]['slot']} f{blocks[e[3]]['free']} n{blocks[e[3]]['need']}" for e in events), file=sys.stderr)
    for k, nm in enumerate(order):
        blocks[nm]["pos"] = k
    cum = [sum(1 for nm in order if blocks[nm]["need"] <= q) for q in range(NQ)]

    sX, sW1, sB1, sW2, sB2, sOUT, sDBG, sWS = 16, 18, 20, 22, 24, 26, 28, 30
    sJ, sR, sMT, sI, sWV, sWK = 32, 33, 34, 35, 36, 37
    SRD0, SRD1, SRD2 = 40, 44, 48
    sT0, sT1, sT2, sT3, sT4, sT5 = 52, 53, 54, 55, 56, 57
    sCNT = 58
    sTAG, sPB = 6, 8
    sTS = 64
    tsn = [0]

    def stamp():
        if TS:
            k = tsn[0]
            assert k < 16
            A(f"{'s_memrealtime' if cfg.tsreal else 's_memtime'} s[{sTS+2*k}:{sTS+2*k+1}]")
            tsn[0] += 1

    def srd(d, p, nbytes):
        A(f"s_mov_b32 s{d}, s{p}")
        A(f"s_mov_b32 s{d+1}, s{p+1}")
        A(f"s_mov_b32 s{d+2}, {nbytes}")
        A(f"s_mov_b32 s{d+3}, 0x00020000")

    def stamp_flush():
        if not TS:
            return
        n = tsn[0]
        A("s_waitcnt lgkmcnt(0)")
        srd(SRD2, sWS, 0x10000000)
        A(f"s_lshl_b32 s{sT0}, s2, 9")
        A(f"s_lshl_b32 s{sT1}, s{sWV}, 6")
        A(f"s_add_u32 s{sT0}, s{sT0}, s{sT1}")
        A(f"s_add_u32 s{sT0}, s{sT0}, {WS_TS}")
        A(f"v_mov_b32 v2, s{sT0}")
        A("s_mov_b64 exec, 1")
        for k in range(n):
            A(f"v_mov_b32 v3, s{sTS+2*k}")
            A(f"buffer_store_dword v3, v2, s[{SRD2}:{SRD2+3}], 0 offen offset:{4*k}")
        A("s_mov_b64 exec, -1")

    def epoch_load(smt):
        A(f"s_lshl_b32 s{sT0}, s{smt}, 7")
        A(f"s_add_u32 s{sT0}, s{sT0}, {WS_EP}")
        A(f"s_load_dword s{sTAG}, s[{sWS}:{sWS+1}], s{sT0}")

    def epoch_fin():
        A("s_waitcnt lgkmcnt(0)")
        A(f"s_add_u32 s{sTAG}, s{sTAG}, 1")
        A(f"s_mul_i32 s{sTAG+1}, s{sTAG}, 0x22222222")
        A(f"s_and_b32 s{sTAG+1}, s{sTAG+1}, 0xeeeeeeee")
        A(f"s_or_b32 s{sTAG+1}, s{sTAG+1}, 0x10101010")
        if cfg.slots:
            A(f"s_and_b32 s14, s{sTAG}, {cfg.slots-1}")
            A(f"s_mul_i32 s14, s14, 0xa00000")

    def slot_add(*regs):
        if cfg.slots:
            for r in regs:
                A(f"s_add_u32 s{r}, s{r}, s14")

    def tag_regs(vd, vt):
        A(f"v_and_b32 v{vt}, 3, v1")
        A(f"v_lshlrev_b32 v{vt}, 3, v{vt}")
        A(f"v_lshrrev_b32 v{vt}, v{vt}, s{sTAG+1}")
        for k in range(4):
            A(f"v_bfe_u32 v{vd+k}, v{vt}, {2*k}, 2")
            A(f"v_mul_u32_u24 v{vd+k}, 0x8001, v{vd+k}")
            A(f"v_and_b32 v{vd+k}, 0x10001, v{vd+k}")
            A(f"v_lshl_or_b32 v{vd+k}, v{vd+k}, 15, v{vd+k}")

    def sign_reg(vd, vt):
        A(f"s_bitcmp1_b32 s{sTAG}, 0")
        A(f"s_cselect_b32 s{sT0}, -1, 0")
        A(f"s_xor_b32 s{sT0}, s{sT0}, {SGNMASK}")
        A(f"v_and_b32 v{vt}, 31, v1")
        A(f"v_lshrrev_b32 v{vt}, v{vt}, s{sT0}")
        A(f"v_bfe_i32 v{vt}, v{vt}, 0, 1")
        A(f"v_and_b32 v{vd}, 0x80008000, v{vt}")

    def sspin(loads, npairs, base):
        k = A.uid()
        A(f"s_mov_b32 s{sCNT}, 0")
        A.label(f"L_s{k}")
        for x in loads:
            A(x)
        A(f"s_add_u32 s{sCNT}, s{sCNT}, 1")
        A("s_waitcnt lgkmcnt(0)")
        A(f"s_cmp_gt_u32 s{sCNT}, {SPIN_MAX}")
        A(f"s_cbranch_scc1 L_sd{k}")
        for n in range(npairs):
            A(f"s_cmp_lg_u64 s[{base+2*n}:{base+2*n+1}], s[{sTAG}:{sTAG+1}]")
            A(f"s_cbranch_scc1 L_s{k}")
        A.label(f"L_sd{k}")

    def mod3add(dst, d, tmp):
        A(f"s_add_u32 s{dst}, s{sI}, {d}")
        A(f"s_cmp_ge_u32 s{dst}, 3")
        A(f"s_cselect_b32 s{tmp}, 3, 0")
        A(f"s_sub_u32 s{dst}, s{dst}, s{tmp}")

    A("s_cmp_ge_u32 s2, 256")
    A("s_cbranch_scc1 L_end")
    A("s_load_dwordx16 s[16:31], s[0:1], 0")
    if cfg.ctouch == 1:
        A("s_getpc_b64 s[4:5]")
        A.label("L_pc")
        A("v_lshlrev_b32 v2, 7, v0")
        A("v_min_u32 v2, L_end-L_pc, v2")
        A("v_and_b32 v2, 0xfffffffc, v2")
        A("global_load_dword v255, v2, s[4:5]")
    elif cfg.ctouch == 2:
        A("s_getpc_b64 s[4:5]")
        A.label("L_pc")
        A("s_lshr_b32 s3, s2, 3")
        A("s_lshl_b32 s3, s3, 11")
        A("v_lshrrev_b32 v2, 5, v0")
        A("v_lshl_add_u32 v2, v2, 7, s3")
        A("v_min_u32 v2, L_end-L_pc, v2")
        A("v_and_b32 v2, 0xfffffffc, v2")
        A("global_load_dword v255, v2, s[4:5]")
    if TS:
        A("s_memrealtime s[96:97]")
    if cfg.enc:
        A("s_memrealtime s[96:97]")
        if cfg.enc == "none":
            A("s_memrealtime s[94:95]")
        if cfg.encc:
            A("s_memtime s[92:93]")

    def enc(p):
        if cfg.enc == p:
            A("s_memrealtime s[94:95]" if not cfg.encc else "s_memtime s[94:95]")
    stamp()
    A("v_and_b32 v1, 63, v0")
    A("v_lshrrev_b32 v2, 6, v0")
    A(f"s_and_b32 s{sJ}, s2, 7")
    A(f"v_readfirstlane_b32 s{sWV}, v2")
    A(f"s_lshr_b32 s{sR}, s2, 3")
    A(f"s_cmp_lt_u32 s{sR}, 8")
    A("s_cbranch_scc1 L_helper")
    A(f"s_sub_u32 s{sR}, s{sR}, 8")
    A(f"s_mul_i32 s{sMT}, s{sR}, 21846")
    A(f"s_lshr_b32 s{sMT}, s{sMT}, 16")
    A(f"s_mul_i32 s{sT0}, s{sMT}, 3")
    A(f"s_sub_u32 s{sI}, s{sR}, s{sT0}")
    A(f"s_mul_i32 s{sWK}, s{sJ}, 24")
    A(f"s_add_u32 s{sWK}, s{sWK}, s{sR}")
    ROT = [int(c) for c in cfg.rot]
    ROTTAB = sum(r << (4 * m) for m, r in enumerate(ROT))
    sROT, sLO, sHI = 10, 11, 12
    if any(ROT):
        A(f"s_lshl_b32 s{sROT}, s{sMT}, 2")
        A(f"s_lshr_b32 s{sROT}, {ROTTAB}, s{sROT}")
        A(f"s_and_b32 s{sROT}, s{sROT}, 15")

    def rot_setup(sbase, stride):
        if any(ROT):
            A(f"s_mul_i32 s{sLO}, s{sROT}, {stride}")
            A(f"s_add_u32 s{sLO}, s{sLO}, s{sbase}")
            A(f"s_sub_u32 s{sHI}, s{sLO}, {9*stride}")

    def rot_addr(dst, sbase, t, stride, extra):
        if any(ROT):
            if t + max(ROT) < 9:
                A(f"s_add_u32 s{dst}, s{sLO}, {t*stride + extra}")
            else:
                A(f"s_cmp_lt_u32 s{sROT}, {9-t}")
                A(f"s_cselect_b32 s{dst}, s{sLO}, s{sHI}")
                A(f"s_add_u32 s{dst}, s{dst}, {t*stride + extra}")
        else:
            A(f"s_add_u32 s{dst}, s{sbase}, {t*stride + extra}")
    A(f"s_cmp_lt_u32 s{sWV}, 4")
    A("s_cbranch_scc1 L_compute")
    A(f"s_cmp_eq_u32 s{sWV}, 6")
    A("s_cbranch_scc1 L_xh")
    A(f"s_cmp_eq_u32 s{sWV}, 7")
    A("s_cbranch_scc1 L_h2")
    ts_base = tsn[0]

    def loader_stream(kinds, per_block, issue_fn, setup_fn, cap, group=False, validate=None, before_bar=None, role=None):
        mine = [blocks[nm] for nm in order if blocks[nm]["kind"] in kinds]
        outstanding, pend = [], list(mine)
        nb = lambda nm: blocks[nm]["n"] if blocks[nm]["kind"] == "extra" else (per_block(blocks[nm]) if callable(per_block) else per_block)
        cnt = lambda lst: sum(nb(x) for x in lst)

        def ok(b, q):
            if b["free"] + 2 > q:
                return False
            if b["kind"] in ("H1", "H2") and q < min(hfetch[b["lk"]], b["need"] - 1):
                return False
            return True

        def issue_upto(q, ahead, cap):
            n = 0
            lim = cum[q] + ahead if q >= 0 else ahead
            while pend and ok(pend[0], q):
                must = pend[0]["need"] <= q + 1 + (cfg.vpipe if pend[0]["kind"] in ("H1", "H2") else 0) or pend[0]["pos"] < lim
                if not must and n >= cap:
                    break
                grp = [pend.pop(0)]
                while group and pend and ok(pend[0], q) and pend[0]["need"] == grp[0]["need"] and len(grp) < 3 \
                        and (pend[0]["pos"] < lim or n + len(grp) < cap or pend[0]["need"] <= q + 1):
                    grp.append(pend.pop(0))
                need_n = sum(nb(x["name"]) for x in grp)
                if cnt(outstanding) + need_n > 63:
                    while cnt(outstanding) + need_n > 63:
                        del outstanding[0]
                    A(f"s_waitcnt vmcnt({cnt(outstanding)})")
                issue_fn(grp if group else grp[0])
                if cfg.verbose:
                    print(f"   after B{q}: " + " ".join(x["name"] for x in grp), file=sys.stderr)
                outstanding.extend(x["name"] for x in grp)
                n += len(grp)

        issue_upto(-1, cfg.first, 0)
        if cfg.ts0:
            stamp()
        if role == "w":
            enc("iss")
        A.tail(role)
        pr = cfg.priow if role == "w" else cfg.prioh
        if pr:
            A(f"s_setprio {pr}")
        setup_fn()
        issue_upto(-1, cfg.ahead0, 0)
        for q in range(NQ):
            assert not any(b["need"] <= q for b in pend), (q, pend[0])
            def wait_for(b):
                if b["name"] in outstanding:
                    idx = max(i for i, nm in enumerate(outstanding) if blocks[nm]["need"] <= q) if validate is None \
                        else outstanding.index(b["name"])
                    del outstanding[:idx + 1]
                    A(f"s_waitcnt vmcnt({cnt(outstanding)})")
            hs = []
            for b in mine:
                if b["need"] == q:
                    if validate is not None and b["kind"] != "X":
                        hs.append(b)
                    else:
                        wait_for(b)
            if validate is not None and cfg.vpipe:
                nxt = [b for b in mine if b["need"] == q + 1 and b["kind"] != "X" and b not in pend]
                if hs or nxt:
                    validate(hs, wait_for, nxt)
            elif hs:
                validate(hs, wait_for)
            if before_bar is not None:
                ex = before_bar(q)
                if ex:
                    nm = f"extra{A.uid()}"
                    blocks[nm] = dict(name=nm, kind="extra", n=ex, need=99)
                    outstanding.append(nm)
            if q in cfg.tsq:
                stamp()
            A("s_barrier")
            if role == "w":
                enc(f"B{q}")
            if q in cfg.pause:
                issue_upto(q, 0, 0)
            else:
                issue_upto(q, cfg.ahead if q < n_g1 or cfg.ahead2 < 0 else cfg.ahead2, 99 if q in cfg.burst else (cap if q >= cfg.capfrom else 0))
        assert not pend

    vRA, vRO, vRB, vRC, vRD, vRT, vRX, vRZ, vRG = 64, 65, 66, 72, 80, 112, 116, 117, 120
    sRI, sRO, sC = 60, 61, 13

    def vr(r, W):
        return f"v{r}" if W == 1 else f"v[{r}:{r+W-1}]"

    def dw(W):
        return "dword" if W == 1 else f"dwordx{W}"

    def red_pre(W):
        if W == 2:
            A(f"s_sub_u32 s{sC}, s{sWV}, 4")
            A(f"v_lshlrev_b32 v{vRA}, 3, v1")
            A(f"s_lshl_b32 s{sRO}, s{sC}, 6")
            A(f"s_lshr_b32 s{sRI}, s{sC}, 1")
            A(f"s_mul_i32 s{sRI}, s{sRI}, {SL}")
            A(f"s_and_b32 s{sT1}, s{sC}, 1")
            A(f"s_lshl_b32 s{sT1}, s{sT1}, 9")
            A(f"s_add_u32 s{sRI}, s{sRI}, s{sT1}")
            A(f"v_lshrrev_b32 v{vRT}, 4, v1")
            A(f"v_and_b32 v{vRT+1}, 1, v1")
            A(f"v_lshlrev_b32 v{vRT+1}, 3, v{vRT+1}")
            A(f"v_lshl_add_u32 v{vRT}, v{vRT}, 4, v{vRT+1}")
            A(f"v_bfe_u32 v{vRT+2}, v1, 1, 3")
            A(f"v_and_b32 v{vRT+3}, 7, v1")
            A(f"v_lshlrev_b32 v{vRT+3}, 2, v{vRT+3}")
        else:
            A(f"s_add_u32 s{sC}, s{sWV}, 8")
            A(f"v_lshlrev_b32 v{vRA}, 2, v1")
            A(f"s_lshl_b32 s{sRO}, s{sC}, 5")
            A(f"s_lshl_b32 s{sRI}, s{sWV}, 8")
            A(f"s_add_u32 s{sRI}, s{sRI}, {2*SL}")
            A(f"v_lshrrev_b32 v{vRT}, 5, v1")
            A(f"v_and_b32 v{vRT+1}, 3, v1")
            A(f"v_lshlrev_b32 v{vRT+1}, 2, v{vRT+1}")
            A(f"v_lshl_add_u32 v{vRT}, v{vRT}, 4, v{vRT+1}")
            A(f"v_bfe_u32 v{vRT+2}, v1, 2, 3")
            A(f"v_and_b32 v{vRT+3}, 15, v1")
            A(f"v_lshlrev_b32 v{vRT+3}, 1, v{vRT+3}")
        A(f"s_mul_i32 s{sT1}, s{sI}, 384")
        A(f"s_add_u32 s{sRO}, s{sRO}, s{sT1}")
        if W == 2:
            srd(SRD2, sB2, 1152)
            A(f"buffer_load_{dw(W)} {vr(vRB, W)}, v{vRT}, s[{SRD2}:{SRD2+3}], s{sRO} offen")
        else:
            A(f"v_mov_b32 v{vRB}, v249")
        A(f"s_lshl_b32 s{sT1}, s{sJ}, 3")
        A(f"s_lshl_b32 s{sT3}, s{sMT}, 6")
        A(f"s_add_u32 s{sT1}, s{sT1}, s{sT3}")
        A(f"s_mul_i32 s{sT1}, s{sT1}, 1152")
        A(f"s_add_u32 s{sRO}, s{sRO}, s{sT1}")
        A(f"v_mul_u32_u24 v{vRT+2}, 1152, v{vRT+2}")
        A(f"v_add_u32 v{vRO}, v{vRT}, v{vRT+2}")
        A(f"s_mul_i32 s{sT1}, s{sR}, {SR}" if not cfg.numa else f"s_mul_i32 s{sT1}, s{sI}, {HW}")
        A(f"s_add_u32 s{sRI}, s{sRI}, s{sT1}")
        if cfg.numa:
            A(f"s_add_u32 s{sRI}, s{sRI}, s{sSIDE}")
            gbase(sT1, sT3)
        elif cfg.iside >= 0:
            jbase(sT1, sJ, cfg.iside, sT3)
        else:
            A(f"s_mul_i32 s{sT1}, s{sJ}, {SD}")
        A(f"s_add_u32 s{sRI}, s{sRI}, s{sT1}")
        A(f"s_add_u32 s{sRI}, s{sRI}, {WS_IN}")
        slot_add(sRI)
        A(f"v_mov_b32 v{vRZ}, 0")
        A(f"v_lshrrev_b32 v{vRT+3}, v{vRT+3}, s{sTAG+1}")
        for k in range(W):
            A(f"v_bfe_u32 v{vRG+k}, v{vRT+3}, {2*k}, 2")
            A(f"v_mul_u32_u24 v{vRG+k}, 0x8001, v{vRG+k}")
        A(f"v_mov_b32 v{vRG+4}, 0x10001")
        A(f"v_mov_b32 v{vRG+5}, 0xffff0000")
        return 1

    def red_init(W):
        for k in range(W):
            A(f"v_lshlrev_b32 v{vRC+2*k}, 16, v{vRB+k}")
            A(f"v_and_b32 v{vRC+1+2*k}, v{vRG+5}, v{vRB+k}")

    def bb_w(q):
        if q == 2:
            epoch_fin()
        if cfg.numa and q == cfg.flq:
            flag_load()
        if cfg.numa and q == cfg.flq + 2:
            flag_fin(sT1, sT2, sT3)
        if q == cfg.rpq:
            return red_pre(2)
        if q == cfg.rpq + 3:
            red_init(2)

    A.head("w")
    sHW = sT5
    A(f"s_sub_u32 s{sHW}, s{sWV}, 4")
    A("v_lshrrev_b32 v2, 3, v1")
    A("v_and_b32 v3, 7, v1")
    A("v_bfe_u32 v4, v1, 4, 1")
    A("v_lshlrev_b32 v4, 2, v4")
    A("v_xor_b32 v3, v3, v4")
    A("v_lshlrev_b32 v3, 4, v3")
    A("v_lshrrev_b32 v4, 2, v2")
    A("v_and_b32 v5, 3, v2")
    A("v_lshl_add_u32 v4, v4, 3, v5")
    A(f"s_lshl_b32 s{sT0}, s{sHW}, 5")
    A(f"v_add_u32 v4, s{sT0}, v4")
    A("v_mul_u32_u24 v4, 9216, v4")
    A("v_add_u32 v4, v4, v3")
    for c in range(1, 4):
        A(f"v_add_u32 v{4+c}, {(16*(c>>1)+4*(c&1))*9216 - 1024*c}, v4")
    sLW, sC1 = sT4, 38
    A(f"s_lshl_b32 s{sLW}, s{sHW}, 12")
    A(f"s_mul_i32 s{sC1}, s{sJ}, 1152")
    A(f"s_mul_i32 s{sT1}, s{sI}, 384")
    A(f"s_add_u32 s{sC1}, s{sC1}, s{sT1}")
    rot_setup(sC1, 64*9216)
    if cfg.wt:
        A("v_and_b32 v12, 7, v1")
        A("v_lshrrev_b32 v13, 5, v1")
        A("v_lshl_add_u32 v12, v13, 6, v12")
        A("v_mul_u32_u24 v12, 9216, v12")
        A("v_bfe_u32 v13, v1, 3, 2")
        A("v_lshl_add_u32 v12, v13, 7, v12")
        A(f"s_lshl_b32 s{sT0}, s{sHW}, 4")
        A(f"s_add_u32 s{sT0}, s{sT0}, s{sMT}")
        A(f"s_mul_i32 s{sT0}, s{sT0}, {8*9216}")
        A(f"s_add_u32 s{sT0}, s{sT0}, s{sC1}")
        msk = [sum(0xffffff << (32 * h) for h in range(2) if 2 * w + h < cfg.wt) for w in range(2)]
        A(f"s_mov_b32 exec_lo, {msk[0] & 0xffffffff}")
        A(f"s_mov_b32 exec_hi, {msk[0] >> 32}")
        if msk[1] != msk[0]:
            A(f"s_cmp_eq_u32 s{sHW}, 0")
            A(f"s_cselect_b32 exec_lo, exec_lo, {(msk[1] & 0xffffffff) or 1}")
            A(f"s_cselect_b32 exec_hi, exec_hi, {msk[1] >> 32}")
    A("s_waitcnt lgkmcnt(0)")
    if cfg.ts0:
        stamp()
    srd(SRD0, sW1, 5308416)
    if cfg.wt:
        A(f"buffer_load_dword v255, v12, s[{SRD0}:{SRD0+3}], s{sT0} offen")
        A("s_mov_b64 exec, -1")
    sV = [62, 63, 59]

    def w2_setup():
        epoch_load(sMT)
        A(f"s_lshl_b32 s{sT0}, s{sHW}, 5")
        A(f"v_add_u32 v8, s{sT0}, v2")
        A("v_mul_u32_u24 v8, 1152, v8")
        A("v_add_u32 v8, v8, v3")
        for c in range(1, 4):
            A(f"v_add_u32 v{8+c}, {8*c*1152 - 1024*c}, v8")
        A(f"s_mul_i32 s39, s{sJ}, {576*1152}")
        A(f"s_mul_i32 s{sT0}, s{sI}, 384")
        A(f"s_add_u32 s39, s39, s{sT0}")
        for d in range(3):
            mod3add(sT1, d, sT2)
            A(f"s_mul_i32 s{sT1}, s{sT1}, {192*1152}")
            A(f"s_add_u32 s{sV[d]}, s39, s{sT1}")
        srd(SRD1, sW2, 5308416)

    def issue_w(grp):
        for b in grp:
            A(f"s_add_u32 m0, s{sLW}, {b['slot']*8192}")
            if b["kind"] == "W1":
                rot_addr(sT0, sC1, b['t'], 64*9216, 128*b['l'])
                vb, sr = 4, SRD0
            else:
                A(f"s_add_u32 s{sT0}, s{sV[b['d']]}, {64*b['lk']*1152 + 128*b['l']}")
                vb, sr = 8, SRD1
            for c in range(4):
                A(f"buffer_load_dwordx4 v{vb+c}, s[{sr}:{sr+3}], s{sT0} offen offset:{1024*c} {cfg.wfl} lds")

    loader_stream(("W1", "W2"), 4, issue_w, w2_setup, cfg.capw, group=True,
                  before_bar=bb_w, role="w")
    A("s_branch L_reduce")
    ts_max = tsn[0]

    sXB = 38
    sH = {1: 39, 2: 59}
    HALF = [0]

    def h_setup(half):
        A("v_lshlrev_b32 v12, 4, v1")
        A("v_add_u32 v13, 0x10000, v12")
        A("v_add_u32 v14, 0x20000, v12")
        A(f"s_sub_u32 s{sT0}, s{sWK if cfg.hside < 0 else sR}, s{sI}")
        if cfg.numa:
            gbase(sT3, sT2)
        elif cfg.hside >= 0:
            jbase(sT3, sJ, cfg.hside, sT2)
        for d in (1, 2):
            mod3add(sT1, d, sT2)
            if not cfg.numa:
                A(f"s_add_u32 s{sT1}, s{sT1}, s{sT0}")
            A(f"s_mul_i32 s{sH[d]}, s{sT1}, {HW}")
            if cfg.hside >= 0 or cfg.numa:
                A(f"s_add_u32 s{sH[d]}, s{sH[d]}, s{sT3}")
        srd(SRD1, sWS, 0x10000000)
        epoch_load(sMT)

    def issue_xh(b):
        for h in (range(2) if b["kind"] == "X" else HALF):
            A(f"s_mov_b32 m0, {b['slot']*8192 + 4096*h}")
            if b["kind"] == "X":
                rot_addr(sT0, sXB, b['t'], 128, 32*1152*h)
                for c in range(4):
                    A(f"buffer_load_dwordx4 v{8+c}, s[{SRD0}:{SRD0+3}], s{sT0} offen offset:{1024*c} lds")
            else:
                A(f"s_add_u32 s{sT0}, s{sH[b['d']]}, {WS_H + HL*b['lk'] + 4096*h}")
                for c in range(4):
                    A(f"buffer_load_dwordx4 v12, s[{SRD1}:{SRD1+3}], s{sT0} offen offset:{1024*c} {cfg.hlf} lds")

    retry_code = []

    def validate(hs, wait_for):
        k = A.uid()

        def rd(i):
            addr = hs[i]["slot"] * 8192 + 4096 * HALF[0]
            for c in range(4):
                r = 128 + 16 * i + 4 * c
                A(f"ds_read_b128 v[{r}:{r+3}], v{12 + (addr >> 16)} offset:{(addr & 0xffff) + 1024*c}")

        def valu(i, later):
            for c in range(4):
                r = 128 + 16 * i + 4 * c
                A(f"s_waitcnt lgkmcnt({3-c+later})")
                for kk in range(4):
                    ac = 16 + ((kk + 2) & 3)
                    if i == 0 and c == 0:
                        A(f"v_xor_b32 v{ac}, v{r+kk}, v{25+kk}")
                    else:
                        A(f"v_bitop3_b32 v{ac}, v{ac}, v{r+kk}, v{25+kk} bitop3:0xf6")
        A.label(f"L_v{k}")
        for i in range(len(hs)):
            wait_for(hs[i])
            rd(i)
            if i:
                valu(i - 1, 4)
        valu(len(hs) - 1, 0)
        A("v_or3_b32 v16, v16, v17, v18")
        A("v_bitop3_b32 v16, v16, v19, v24 bitop3:0xa8")
        A("v_cmp_ne_u32 vcc, 0, v16")
        A(f"s_cbranch_vccnz L_vr{k}")
        A.label(f"L_vd{k}")
        n0 = len(A.L)
        A.label(f"L_vr{k}")
        A(f"s_cmp_gt_u32 s{sCNT}, {SPIN_MAX}")
        A(f"s_cbranch_scc1 L_vd{k}")
        for b in hs:
            issue_xh(b)
        A(f"s_add_u32 s{sCNT}, s{sCNT}, 1")
        A("s_waitcnt vmcnt(0)")
        A(f"s_branch L_v{k}")
        retry_code.extend(A.L[n0:])
        del A.L[n0:]

    hreg, hread = {}, set()

    def validate2(hs, wait_for, nxt):
        k = A.uid()

        def rd(b):
            i = hreg.setdefault(b["name"], len(hreg))
            addr = b["slot"] * 8192 + 4096 * HALF[0]
            for c in range(4):
                r = 128 + 16 * i + 4 * c
                A(f"ds_read_b128 v[{r}:{r+3}], v{12 + (addr >> 16)} offset:{(addr & 0xffff) + 1024*c}")
            hread.add((HALF[0], b["name"]))

        def do_nxt():
            for b in nxt:
                wait_for(b)
                rd(b)
        unread = [b for b in hs if (HALF[0], b["name"]) not in hread]
        for b in unread:
            wait_for(b)
            rd(b)
        later = 0
        if unread and 4 * (len(unread) + len(nxt)) <= 15:
            do_nxt()
            later = 4 * len(nxt)
            nxt = []
        if hs:
            A.label(f"L_v{k}")
            A(f"s_waitcnt lgkmcnt({later})")
            for i, b in enumerate(hs):
                for c in range(4):
                    r = 128 + 16 * hreg[b["name"]] + 4 * c
                    for kk in range(4):
                        ac = 16 + ((kk + 2) & 3)
                        if i == 0 and c == 0:
                            A(f"v_xor_b32 v{ac}, v{r+kk}, v{25+kk}")
                        else:
                            A(f"v_bitop3_b32 v{ac}, v{ac}, v{r+kk}, v{25+kk} bitop3:0xf6")
            A("v_or3_b32 v16, v16, v17, v18")
            A("v_bitop3_b32 v16, v16, v19, v24 bitop3:0xa8")
            A("v_cmp_ne_u32 vcc, 0, v16")
            A(f"s_cbranch_vccnz L_vr{k}")
            A.label(f"L_vd{k}")
            n0 = len(A.L)
            A.label(f"L_vr{k}")
            A(f"s_cmp_gt_u32 s{sCNT}, {SPIN_MAX}")
            A(f"s_cbranch_scc1 L_vd{k}")
            for b in hs:
                issue_xh(b)
            A(f"s_add_u32 s{sCNT}, s{sCNT}, 1")
            A("s_waitcnt vmcnt(0) lgkmcnt(0)")
            for b in hs:
                rd(b)
            A("s_waitcnt lgkmcnt(0)")
            A(f"s_branch L_v{k}")
            retry_code.extend(A.L[n0:])
            del A.L[n0:]
        do_nxt()

    if cfg.vpipe:
        validate = validate2

    def flush_retry():
        A.L.extend(retry_code)
        retry_code.clear()

    def bb_tag(q):
        if q == 2:
            epoch_fin()
            slot_add(sH[1], sH[2])
            tag_regs(25, 16)
            A(f"v_mov_b32 v24, {0x10001 if cfg.hlsb else 0x80008000}")
            A(f"s_mov_b32 s{sCNT}, 0")
        if cfg.numa and q == cfg.flq:
            flag_load()
        if cfg.numa and q == cfg.flq + 2:
            flag_fin(sT1, sT2, sT3)
            A(f"s_add_u32 s{sH[1]}, s{sH[1]}, s{sSIDE}")
            A(f"s_add_u32 s{sH[2]}, s{sH[2]}, s{sSIDE}")
        if q == cfg.rpq:
            return red_pre(2)
        if q == cfg.rpq + 3:
            red_init(2)
        if q == 10 and cfg.probe:
            A(f"buffer_load_dword v255, v{vRZ}, s[{SRD2}:{SRD2+3}], 0 offen")
            A("s_waitcnt vmcnt(0)")

    A.head("x")
    A.label("L_xh")
    tsn[0] = ts_base
    A("v_lshrrev_b32 v2, 3, v1")
    A("v_and_b32 v3, 7, v1")
    A("v_lshrrev_b32 v4, 4, v1")
    A("v_xor_b32 v3, v3, v4")
    A("v_lshlrev_b32 v3, 4, v3")
    A("v_mul_u32_u24 v4, 1152, v2")
    A("v_add_u32 v8, v4, v3")
    A("v_xor_b32 v5, 64, v8")
    A(f"v_add_u32 v9, {8*1152 - 1024}, v5")
    A(f"v_add_u32 v10, {16*1152 - 2048}, v8")
    A(f"v_add_u32 v11, {24*1152 - 3072}, v5")
    A(f"s_mul_i32 s{sXB}, s{sMT}, {64*1152}")
    rot_setup(sXB, 128)

    def x_touch_pre(st0):
        A(f"s_mul_i32 s{sT0}, s{sI}, 22")
        A("v_and_b32 v12, 31, v1")
        A(f"v_add_u32 v12, s{sT0}, v12")
        A("v_min_u32 v12, 63, v12")
        A("v_mul_u32_u24 v12, 1152, v12")
        A("v_lshrrev_b32 v13, 5, v1")
        A("v_lshl_add_u32 v12, v13, 7, v12")
        A("s_mov_b32 exec_lo, 0x3fffff")
        A(f"s_mov_b32 exec_hi, {0x3fffff if cfg.wt > st0 + 1 else 0}")

    def x_touch(st0):
        A(f"buffer_load_dword v255, v12, s[{SRD0}:{SRD0+3}], s{sXB} offen offset:{128*st0}")
        A("s_mov_b64 exec, -1")
    if cfg.wt:
        x_touch_pre(0)
    A("s_waitcnt lgkmcnt(0)")
    if cfg.ts0:
        stamp()
    srd(SRD0, sX, 589824)
    if cfg.wt:
        x_touch(0)
    nbx = lambda b: 8 if b["kind"] == "X" else 4
    loader_stream(("X", "H1", "H2"), nbx, issue_xh, lambda: h_setup(0), cfg.capx, validate=validate, before_bar=bb_tag, role="x")
    if TS:
        A(f"s_mov_b32 s{sTS+24}, s{sCNT}")
    A("s_branch L_reduce")
    flush_retry()
    ts_max = max(ts_max, tsn[0])

    A.head("h2")
    A.label("L_h2")
    tsn[0] = ts_base
    if cfg.wt > 2:
        A(f"s_mul_i32 s{sXB}, s{sMT}, {64*1152}")
        x_touch_pre(2)
    if cfg.xpre:
        A("v_lshlrev_b32 v2, 7, v1")
        A(f"s_mul_i32 s{sT0}, s{sWK}, 3072")
        A("s_mov_b64 exec, 0xffffff")
    A("s_waitcnt lgkmcnt(0)")
    if cfg.xpre:
        srd(SRD0, sX, 589824)
        A(f"buffer_load_dword v255, v2, s[{SRD0}:{SRD0+3}], s{sT0} offen")
        A("s_mov_b64 exec, -1")
    if cfg.wt > 2:
        srd(SRD0, sX, 589824)
        x_touch(2)
    srd(SRD1, sWS, 0x10000000)
    if cfg.hpre == 3:
        A("v_lshlrev_b32 v3, 7, v1")
        A(f"s_mul_i32 s{sT1}, s{sWK}, 24576")
        A(f"s_add_u32 s{sT1}, s{sT1}, {WS_H}")
        for c in range(3):
            A(f"buffer_load_dword v255, v3, s[{SRD1}:{SRD1+3}], s{sT1} offen")
            A(f"s_add_u32 s{sT1}, s{sT1}, 8192")

    def w7_touch():
        st = list(range(cfg.ta, cfg.ta + cfg.tn))
        srd(SRD0, sX, 589824)
        srd(SRD2, sW1, 5308416)
        A(f"s_mul_i32 s{sXB}, s{sMT}, {64*1152}")
        A(f"s_mul_i32 s{sT0}, s{sI}, 22")
        A("v_and_b32 v2, 31, v1")
        A(f"v_add_u32 v2, s{sT0}, v2")
        A("v_min_u32 v2, 63, v2")
        A("v_mul_u32_u24 v2, 1152, v2")
        A("v_lshrrev_b32 v4, 5, v1")
        A("v_lshl_add_u32 v2, v4, 7, v2")
        A("v_and_b32 v3, 7, v1")
        A("v_lshl_add_u32 v3, v4, 6, v3")
        A("v_mul_u32_u24 v3, 9216, v3")
        A("v_bfe_u32 v4, v1, 3, 2")
        A("v_lshl_add_u32 v3, v4, 7, v3")
        A(f"s_mul_i32 s{sT0}, s{sMT}, {8*9216}")
        A(f"s_mul_i32 s{sT1}, s{sJ}, 1152")
        A(f"s_add_u32 s{sT0}, s{sT0}, s{sT1}")
        A(f"s_mul_i32 s{sT1}, s{sI}, 384")
        A(f"s_add_u32 s{sT0}, s{sT0}, s{sT1}")
        for p in range(0, len(st), 2):
            two = p + 1 < len(st)
            A(f"s_add_u32 s{sT1}, s{sT0}, {st[p]*64*9216}")
            A("s_mov_b32 exec_lo, 0xffffff")
            A(f"s_mov_b32 exec_hi, {0xffffff if two else 0}")
            A(f"buffer_load_dword v255, v3, s[{SRD2}:{SRD2+3}], s{sT1} offen")
            A("s_mov_b32 exec_lo, 0x3fffff")
            A(f"s_mov_b32 exec_hi, {0x3fffff if two else 0}")
            A(f"buffer_load_dword v255, v2, s[{SRD0}:{SRD0+3}], s{sXB} offen offset:{128*st[p]}")
        A("s_mov_b64 exec, -1")
    if cfg.tn and cfg.tpos == 0:
        w7_touch()

    def race(rnd, first):
        N = cfg.rn
        if first:
            A(f"s_lshl_b32 s{sT0}, s{sWK}, 14")
            A(f"s_add_u32 s{sT0}, s{sT0}, {cfg.wsb + 0x3000000}")
            A(f"s_add_u32 s8, s{sWS}, s{sT0}")
            A(f"s_addc_u32 s9, s{sWS+1}, 0")
            A(f"s_not_b32 s3, s{sTAG}")
            A("s_mov_b32 s15, 100")
        H = N // 2
        f = rnd & 1
        for k in range(N):
            A(f"s_mov_b32 s{72+k}, s3")
        for k in range(N):
            sd = f if k < H else 1 - f
            A(f"s_load_dword s{72+k}, s[8:9], {8192*sd + 128*(rnd*H + k % H)}")
        A(f"s_waitcnt lgkmcnt({H})")
        for _ in range(cfg.rd):
            A("s_nop 7")
        for k in range(H, N):
            A(f"s_cmp_lg_u32 s{72+k}, s3")
            A("s_addc_u32 s15, s15, 0" if f == 1 else "s_subb_u32 s15, s15, 0")
        A("s_waitcnt lgkmcnt(0)")

    def bb_h2(q):
        if cfg.tn and cfg.tpos == 1 and q == 0:
            A("s_waitcnt lgkmcnt(0)")
            w7_touch()
        if cfg.rr and q == cfg.rq:
            stamp()
            A("s_waitcnt lgkmcnt(0)")
            for rnd in range(cfg.rr):
                race(rnd, rnd == 0)
            stamp()
        if cfg.tn and cfg.tpos >= 2 and q == cfg.tpos - 1:
            w7_touch()
        if cfg.tn and q == 7:
            A("s_waitcnt vmcnt(0)")
        if q == 2 and (cfg.hpre == 3 or cfg.wt > 2):
            A("s_waitcnt vmcnt(0)")
        if cfg.vt and q == 5:
            A(f"s_add_u32 s{sT0}, s{sI}, 1")
            A(f"s_mul_i32 s{sT0}, s{sT0}, 192")
            A(f"s_mul_i32 s{sT1}, s{sMT}, 48")
            A(f"s_add_u32 s{sT0}, s{sT0}, s{sT1}")
            A(f"s_cmp_ge_u32 s{sT0}, 576")
            A(f"s_cselect_b32 s{sT1}, 576, 0")
            A(f"s_sub_u32 s{sT0}, s{sT0}, s{sT1}")
            A(f"s_mul_i32 s{sT1}, s{sJ}, 576")
            A(f"s_add_u32 s{sT0}, s{sT0}, s{sT1}")
            A(f"s_mul_i32 s15, s{sT0}, 1152")
            A(f"s_mul_i32 s{sT1}, s{sI}, 384")
            A(f"s_add_u32 s15, s15, s{sT1}")
            A("v_mul_u32_u24 v5, 1152, v1")
            srd(SRD0, sW2, 5308416)
        ex = 0
        if cfg.vt and q == cfg.vtq:
            A("s_mov_b32 exec_hi, 0xffff")
            for l in range(3 - cfg.vt, 3):
                A(f"buffer_load_dword v255, v5, s[{SRD0}:{SRD0+3}], s15 offen offset:{128*l}")
            A("s_mov_b64 exec, -1")
            ex = cfg.vt
        return (bb_tag(q) or 0) + ex

    HALF[0] = 1
    loader_stream(("H1", "H2"), nbx, issue_xh, lambda: h_setup(1), cfg.capx, validate=validate, before_bar=bb_h2, role="h2")
    if TS and cfg.rr:
        A(f"s_mov_b32 s{sTS+24}, s15")
    ts_max = max(ts_max, tsn[0])
    A("s_branch L_reduce")
    flush_retry()

    A.tail("red")
    sM, sQ = sT5, sT4
    sVC = 16

    def reduce_code(W, nbar):
        x = f"{W}"
        srd(SRD1, sWS, 0x10000000)
        A(f"s_mov_b32 s{sCNT}, 0")
        srd(SRD0, sOUT, 589824)
        if W == 1:
            red_pre(1)
            red_init(1)
            A(f"s_waitcnt vmcnt({cfg.rw1})")
            if cfg.rlate == 1:
                A("s_barrier")

        def ld(s_):
            A(f"s_add_u32 s{sT1}, s{sRI}, {SS*s_}")
            A(f"buffer_load_{dw(W)} {vr(vRD+W*s_, W)}, v{vRA}, s[{SRD1}:{SRD1+3}], s{sT1} offen {cfg.rfl}")
        if W == 2 and cfg.r0early and nbar:
            A(f"s_cmp_ge_u32 s{sC}, 2")
            A("s_cbranch_scc1 L_rlate")
            stamp()
            tsn[0] -= 1 if TS else 0
            for s_ in range(8):
                ld(s_)
            A("s_barrier")
            A("s_branch L_rfirst")
            A.label("L_rlate")
        for _ in range(nbar):
            A("s_barrier")
        stamp()
        enc("rbar")

        def chk_i(s_, dst, t):
            r = vRD + W * s_
            if W == 1:
                o = [f"v_bitop3_b32 v{t}, v{r}, v{vRG}, v{vRG+4} bitop3:0x28"]
            else:
                o = [f"v_xor_b32 v{t}, v{r}, v{vRG}"]
                for k in range(1, W):
                    o.append(f"v_bitop3_b32 v{t}, v{t}, v{r+k}, v{vRG+k} bitop3:0xf6")
                o.append(f"v_and_b32 v{t}, v{vRG+4}, v{t}")
            o.append(f"v_cmp_ne_u32 {dst}, 0, v{t}")
            return o

        def acc_i(s_, t0):
            r = vRD + W * s_
            o = []
            for k in range(W):
                t = t0 + 2 * k
                o.append(f"v_lshlrev_b32 v{t}, 16, v{r+k}")
                o.append(f"v_and_b32 v{t+1}, v{vRG+5}, v{r+k}")
            for k in range(W):
                t = t0 + 2 * k
                o.append(f"v_pk_add_f32 v[{vRC+2*k}:{vRC+1+2*k}], v[{vRC+2*k}:{vRC+1+2*k}], v[{t}:{t+1}]")
            return o

        def masked(sm, fn, tag):
            for g in range(2):
                A(f"s_and_b32 s{sT0}, s{sm}, {0xf << (4*g)}")
                A(f"s_cbranch_scc0 L_{tag}{x}g{g}")
                for s_ in range(4 * g, 4 * g + 4):
                    A(f"s_bitcmp0_b32 s{sm}, {s_}")
                    A(f"s_cbranch_scc1 L_{tag}{x}s{s_}")
                    fn(s_)
                    A.label(f"L_{tag}{x}s{s_}")
                A.label(f"L_{tag}{x}g{g}")

        for s_ in range(8):
            ld(s_)
        for _ in range(nbar, cfg.rnb if W != 1 else 0):
            A("s_barrier")
        if W == 1 and cfg.rlate == 2:
            A("s_barrier")
        if W == 2:
            A.label("L_rfirst")
        for s_ in range(8):
            A(f"s_waitcnt vmcnt({7-s_})")
            c = chk_i(s_, f"s[{sVC+2*s_}:{sVC+2*s_+1}]", vRX)
            a_ = acc_i(s_, vRT)
            while c or a_:
                if c:
                    A(c.pop(0))
                if a_:
                    A(a_.pop(0))
            if s_ >= 2:
                A(f"s_or_b64 vcc, {'s[16:17]' if s_ == 2 else 'vcc'}, s[{sVC+2*s_-2}:{sVC+2*s_-1}]")
        A(f"s_or_b64 vcc, vcc, s[{sVC+14}:{sVC+15}]")
        A(f"s_cbranch_scc0 L_rdone{x}")
        A(f"s_mov_b32 s{sM}, 0")
        for s_ in range(7, -1, -1):
            A(f"s_cmp_lg_u64 s[{sVC+2*s_}:{sVC+2*s_+1}], 0")
            A(f"s_addc_u32 s{sM}, s{sM}, s{sM}")
        A(f"s_xor_b32 s{sQ}, s{sM}, 0xff")
        red_init(W)
        A.label(f"L_rtop{x}")
        masked(sM, ld, "rl")
        masked(sQ, lambda s_: [A(t) for t in acc_i(s_, vRT)], "ra")
        A(f"s_add_u32 s{sCNT}, s{sCNT}, 1")
        A(f"s_mov_b32 s{sQ}, s{sM}")
        A(f"s_cmp_gt_u32 s{sCNT}, {SPIN_MAX}")
        A(f"s_cbranch_scc1 L_rdone{x}")
        A("s_waitcnt vmcnt(0)")

        def chk2(s_):
            for t in chk_i(s_, "vcc", vRX):
                A(t)
            A(f"s_cbranch_vccnz L_rc{x}s{s_}")
            A(f"s_bitset0_b32 s{sM}, {s_}")
            for t in acc_i(s_, vRT):
                A(t)
        masked(sQ, chk2, "rc")
        A(f"s_mov_b32 s{sQ}, 0")
        A(f"s_cmp_lg_u32 s{sM}, 0")
        A(f"s_cbranch_scc1 L_rtop{x}")
        A.label(f"L_rdone{x}")
        stamp()
        enc("rdone")
        for k in range(W):
            A(f"v_cvt_pk_bf16_f32 v{vRC+k}, v{vRC+2*k}, v{vRC+1+2*k}")
        if cfg.owide:
            A("s_nop 1")
            if W == 1:
                for k in range(1, 4):
                    A(f"v_mov_b32_dpp v{vRC+k}, v{vRC} quad_perm:[{k},{k},{k},{k}] row_mask:0xf bank_mask:0xf")
                m = 0x11111111
            else:
                for k in range(2):
                    A(f"v_mov_b32_dpp v{vRC+2+k}, v{vRC+k} quad_perm:[1,1,3,3] row_mask:0xf bank_mask:0xf")
                m = 0x55555555
            A(f"s_mov_b32 exec_lo, {m}")
            A(f"s_mov_b32 exec_hi, {m}")
            A(f"buffer_store_dwordx4 v[{vRC}:{vRC+3}], v{vRO}, s[{SRD0}:{SRD0+3}], s{sRO} offen {cfg.ofl if W > 1 else cfg.ofl1}")
            A("s_mov_b64 exec, -1")
        else:
            A(f"buffer_store_{dw(W)} {vr(vRC, W)}, v{vRO}, s[{SRD0}:{SRD0+3}], s{sRO} offen {cfg.ofl if W > 1 else cfg.ofl1}")
        if TS:
            A(f"s_mov_b32 s{sWS}, s{SRD1}")
            A(f"s_mov_b32 s{sWS+1}, s{SRD1+1}")

    A.label("L_reduce")
    tsn[0] = ts_max
    reduce_code(2, cfg.rb2)
    A(f"s_or_b32 s{sT0}, s{sJ}, s{sI}")
    A(f"s_or_b32 s{sT0}, s{sT0}, s{sC}")
    A(f"s_cmp_lg_u32 s{sT0}, 0")
    A("s_cbranch_scc1 L_noep")
    A(f"v_mov_b32 v16, s{sTAG}")
    A(f"s_lshl_b32 s{sT0}, s{sMT}, 7")
    A(f"s_add_u32 s{sT0}, s{sT0}, {WS_EP}")
    A("s_mov_b64 exec, 1")
    A(f"buffer_store_dword v16, v{vRZ}, s[{SRD1}:{SRD1+3}], s{sT0} offen sc1")
    A("s_mov_b64 exec, -1")
    A.label("L_noep")
    if cfg.enc:
        if cfg.enc == "end":
            A("s_waitcnt vmcnt(0)")
            enc("end")
        if cfg.encw >= 0:
            A(f"s_cmp_lg_u32 s{sWV}, {cfg.encw}")
            A("s_cbranch_scc1 L_end")
        A("s_waitcnt lgkmcnt(0)")
        if cfg.enc == "ptr":
            A(f"s_lshr_b32 s94, s{SRD1}, {cfg.encm}")
            A("s_and_b32 s94, s94, 31")
            A("s_mul_i32 s94, s94, 300")
        elif cfg.enc == "lat":
            A("s_waitcnt vmcnt(0)")
            A(f"s_lshl_b32 s90, s{sR}, 7")
            A(f"s_add_u32 s90, s90, {cfg.encm}")
            A("s_memtime s[84:85]")
            A("s_waitcnt lgkmcnt(0)")
            A(f"buffer_load_dword v2, v{vRZ}, s[{SRD1}:{SRD1+3}], s90 offen sc1")
            A("s_waitcnt vmcnt(0)")
            A("s_memtime s[86:87]")
            A("s_waitcnt lgkmcnt(0)")
            A("s_sub_u32 s94, s86, s84")
            A("s_lshl_b32 s94, s94, 2")
            A(f"s_cmp_eq_u32 s2, 64")
            A("s_cselect_b32 s94, s94, 0")
        elif cfg.enc == "xcc":
            A("s_getreg_b32 s94, hwreg(HW_REG_XCC_ID)")
            A("s_and_b32 s94, s94, 15")
            A("s_mul_i32 s94, s94, 500")
            A(f"s_cmp_eq_u32 s{sJ}, {cfg.encm}")
            A("s_cselect_b32 s94, s94, 0")
        elif cfg.encc:
            A("s_sub_u32 s94, s94, s92")
            A("s_lshr_b32 s94, s94, 1")
        else:
            A("s_sub_u32 s94, s94, s96")
            A(f"s_mul_i32 s94, s94, {cfg.encm}")
        A("s_add_u32 s94, s94, 3000")
        A.label("L_dly")
        A("s_memrealtime s[98:99]")
        A("s_waitcnt lgkmcnt(0)")
        A("s_sub_u32 s98, s98, s96")
        A("s_cmp_lt_u32 s98, s94")
        A("s_cbranch_scc1 L_dly")
    if TS:
        A("s_waitcnt vmcnt(0)")
        stamp()
        A("s_memrealtime s[98:99]")
        A("s_waitcnt lgkmcnt(0)")
        A(f"s_mov_b32 s{sTS+26}, s96"); A(f"s_mov_b32 s{sTS+28}, s98"); A(f"s_mov_b32 s{sTS+30}, s{sCNT}")
        assert tsn[0] <= 12
        tsn[0] = 16
        stamp_flush()
    A("s_branch L_end")

    A.head("c")
    A.label("L_compute")
    tsn[0] = ts_base
    vACC, vAB, vXB, vT = 16, 64, 96, 240
    nAB = D + 1
    vA, vBX, vBH, vHW = [2, 3, 4], [5, 6, 7, 8], [9, 10, 11], [12, 13, 14]
    vTG, vL16 = vT + 11, vT + 10
    assert vAB + 4 * nAB <= vXB
    sA, sBq = sT4, sT5
    A(f"s_and_b32 s{sA}, s{sWV}, 1")
    A(f"s_lshr_b32 s{sBq}, s{sWV}, 1")
    A(f"v_lshrrev_b32 v{vT}, 5, v1")
    A(f"s_mul_i32 s60, s{sJ}, 1152")
    A(f"s_mul_i32 s{sT1}, s{sI}, 384")
    A(f"s_add_u32 s60, s60, s{sT1}")
    A(f"s_lshl_b32 s{sT1}, s{sBq}, 6")
    A(f"s_add_u32 s61, s60, s{sT1}")
    A(f"v_lshlrev_b32 v{vT+4}, 3, v{vT}")
    if cfg.sa:
        A(f"s_add_u32 s{sT3}, s{sWV}, 1")
        A(f"v_and_b32 v{vT+5}, 7, v1")
        A(f"v_mul_u32_u24 v{vT+5}, 9216, v{vT+5}")
        A(f"v_lshrrev_b32 v{vT+6}, 3, v1")
        A(f"v_min_u32 v{vT+6}, 2, v{vT+6}")
        A(f"v_lshl_add_u32 v{vT+5}, v{vT+6}, 7, v{vT+5}")
        A(f"s_lshl_b32 s{sT1}, s{sT3}, 3")
        A(f"s_add_u32 s{sT1}, s{sT1}, s{sMT}")
        A(f"s_mul_i32 s{sT1}, s{sT1}, {8*9216}")
        A(f"s_add_u32 s{sT1}, s{sT1}, s60")
        A(f"s_mul_i32 s{sT2}, s{sI}, 22")
        A(f"v_min_u32 v{vT+6}, 21, v1")
        A(f"v_add_u32 v{vT+6}, s{sT2}, v{vT+6}")
        A(f"v_min_u32 v{vT+6}, 63, v{vT+6}")
        A(f"v_mul_u32_u24 v{vT+6}, 1152, v{vT+6}")
        A(f"s_mul_i32 s{sT2}, s{sMT}, {64*1152}")
        A(f"s_lshl_b32 s{sT3}, s{sT3}, 7")
        A(f"s_add_u32 s{sT2}, s{sT2}, s{sT3}")
    A("s_waitcnt lgkmcnt(0)")
    srd(SRD0, sB1, 9216)
    for l in range(3):
        for g in range(4):
            r = vXB + 2 * (4 * l + g)
            A(f"buffer_load_dwordx2 v[{r}:{r+1}], v{vT+4}, s[{SRD0}:{SRD0+3}], s61 offen offset:{128*l+16*g}")
    if cfg.sa:
        srd(SRD1, sW1, 5308416)
        srd(SRD2, sX, 589824)
        A(f"s_cmp_ge_u32 s{sWV}, {cfg.sa}")
        A("s_cbranch_scc1 L_tdone")
        A(f"buffer_load_dword v255, v{vT+5}, s[{SRD1}:{SRD1+3}], s{sT1} offen {cfg.tfl}")
        A(f"buffer_load_dword v255, v{vT+6}, s[{SRD2}:{SRD2+3}], s{sT2} offen")
        A.label("L_tdone")
    epoch_load(sMT)
    A.tail("c")
    srd(SRD2, sB2, 1152)
    A(f"v_and_b32 v{vT+1}, 3, v1")
    A(f"v_lshlrev_b32 v{vT+1}, 2, v{vT+1}")
    A(f"v_lshl_add_u32 v{vT+1}, v{vT}, 4, v{vT+1}")
    A(f"s_mul_i32 s{sT1}, s{sI}, 384")
    A(f"s_lshl_b32 s{sT0}, s{sWV}, 5")
    A(f"s_add_u32 s{sT1}, s{sT1}, s{sT0}")
    A(f"buffer_load_dword v249, v{vT+1}, s[{SRD2}:{SRD2+3}], s{sT1} offen offset:256")
    srd(SRD1, sWS, 0x10000000)
    A(f"v_bfe_u32 v{vT+1}, v1, 2, 2")
    A(f"v_lshl_add_u32 v{vT+2}, v{vT}, 2, v{vT+1}")
    A(f"v_lshlrev_b32 v{vT+2}, 7, v{vT+2}")
    A(f"v_bfe_u32 v{vT+3}, v1, 3, 1")
    A(f"v_xor_b32 v{vT+3}, s{sBq}, v{vT+3}")
    A(f"v_lshl_add_u32 v{vT+2}, v{vT+3}, 6, v{vT+2}")
    A(f"v_bfe_u32 v{vT+3}, v1, 4, 1")
    A(f"v_lshl_add_u32 v{vT+2}, v{vT+3}, 5, v{vT+2}")
    A(f"v_and_b32 v{vT+3}, 3, v1")
    A(f"v_lshl_add_u32 v{vA[0]}, v{vT+3}, 3, v{vT+2}")
    A(f"v_add_u32 v{vA[1]}, 0x10000, v{vA[0]}")
    A(f"v_add_u32 v{vA[2]}, 0x20000, v{vA[0]}")
    A(f"v_and_b32 v{vT+1}, 31, v1")
    A(f"v_bfe_u32 v{vT+2}, v1, 1, 3")
    A(f"v_xor_b32 v{vT+2}, v{vT}, v{vT+2}")
    A(f"v_lshlrev_b32 v{vT+2}, 4, v{vT+2}")
    A(f"v_lshl_add_u32 v{vT+2}, v{vT+1}, 7, v{vT+2}")
    A(f"s_lshl_b32 s{sT0}, s{sA}, 12")
    A(f"s_add_u32 s{sT1}, s{sT0}, 0x20000")
    A(f"v_add_u32 v{vBX[0]}, s{sT1}, v{vT+2}")
    for sp in range(1, 4):
        A(f"v_xor_b32 v{vBX[sp]}, {32*sp}, v{vBX[0]}")
    A(f"v_lshl_add_u32 v{vBH[0]}, v1, 4, s{sT0}")
    A(f"v_add_u32 v{vBH[1]}, 0x10000, v{vBH[0]}")
    A(f"v_add_u32 v{vBH[2]}, 0x20000, v{vBH[0]}")
    A(f"s_lshl_b32 s{sT1}, s{sBq}, 11")
    for k in range(3):
        A(f"v_add_u32 v{vHW[k]}, s{sT1}, v{vBH[k]}")
    sI0 = 38
    sMS, sML, sMC = 39, 63, 59
    sHS = [60, 61, 62]
    if cfg.iside >= 0:
        A(f"s_xor_b32 s{sI0}, s{sA}, {cfg.iside}")
        A(f"s_lshl_b32 s{sI0}, s{sI0}, 13")
    else:
        A(f"s_mul_i32 s{sI0}, s{sA}, {4*SD}")
    if cfg.numa:
        A(f"s_mul_i32 s{sT1}, s{sI}, {HW}")
        A(f"s_add_u32 s{sI0}, s{sI0}, s{sT1}")
        A(f"s_lshl_b32 s{sT1}, s{sMT}, 22")
    else:
        A(f"s_mul_i32 s{sT1}, s{sR}, {SR}")
    A(f"s_add_u32 s{sI0}, s{sI0}, s{sT1}")
    A(f"s_mul_i32 s{sT1}, s{sJ}, {SS}")
    A(f"s_add_u32 s{sI0}, s{sI0}, s{sT1}")
    A(f"s_add_u32 s{sI0}, s{sI0}, {WS_IN}")
    A(f"s_lshl_b32 s{sT1}, s{sBq}, 9")
    A(f"s_add_u32 s{sI0}, s{sI0}, s{sT1}")
    A(f"v_bfe_u32 v{vT+1}, v1, 3, 2")
    A(f"v_mul_u32_u24 v{vT+1}, {SD}, v{vT+1}")
    A(f"v_and_b32 v{vT+2}, 7, v1")
    A(f"v_lshl_add_u32 v{vT+1}, v{vT+2}, 4, v{vT+1}")
    A(f"v_lshl_add_u32 v{vL16}, v{vT}, 7, v{vT+1}")
    A(f"s_mov_b32 s{sMS}, 0x80008000")
    A(f"s_mov_b32 s{sML}, 0x00010001")
    A(f"s_mov_b32 s{sMC}, 0x7fff7fff")
    A(f"s_mul_i32 s{sHS[0]}, s{sI if cfg.numa else (sWK if cfg.hside < 0 else sR)}, {HW}")
    if cfg.numa:
        gbase(sT1, sT3)
        A(f"s_add_u32 s{sHS[0]}, s{sHS[0]}, s{sT1}")
        A(f"s_lshl_b32 s{sT1}, s{sMT}, 10")
        A(f"s_lshl_b32 s{sT3}, s{sA}, 9")
        A(f"s_add_u32 s{sT1}, s{sT1}, s{sT3}")
        A(f"s_add_u32 s{sT1}, s{sT1}, {WS_FL}")
        A(f"s_add_u32 s28, s{sWS}, s{sT1}")
        A(f"s_addc_u32 s29, s{sWS+1}, 0")
    elif cfg.hside >= 0:
        jbase(sT1, sJ, cfg.hside, sT3)
        A(f"s_add_u32 s{sHS[0]}, s{sHS[0]}, s{sT1}")
    if WS_H:
        A(f"s_add_u32 s{sHS[0]}, s{sHS[0]}, {WS_H}")
    A(f"s_add_u32 s{sHS[1]}, s{sHS[0]}, {HL}")
    A(f"s_add_u32 s{sHS[2]}, s{sHS[0]}, {2*HL}")
    def dummy(n, tag):
        if not n:
            return
        for k in range(8):
            A(f"v_mul_u32_u24 v{160+k}, {0x9e3779 + 77*k}, v0")
            A(f"v_and_b32 v{160+k}, 0x3fff3fff, v{160+k}")
        A(f"s_mov_b32 s15, {n // 4}")
        A.label(f"L_dum{tag}")
        for k in range(4):
            A(f"v_mfma_f32_32x32x16_bf16 v[{176+16*k}:{191+16*k}], v[{160+4*(k&1)}:{163+4*(k&1)}], v[{160+4*(k>>1)}:{163+4*(k>>1)}], 0")
        A("s_sub_u32 s15, s15, 1")
        A("s_cmp_lg_u32 s15, 0")
        A(f"s_cbranch_scc1 L_dum{tag}")
    dummy(cfg.dum1, "a")
    epoch_fin()
    slot_add(sI0, *sHS)
    sIL = [sI0, 10, 11]
    assert not any(ROT)
    A(f"s_add_u32 s10, s{sI0}, {SL}")
    A(f"s_add_u32 s11, s{sI0}, {2*SL}")
    tag_regs(vTG, vT + 1)
    assert not cfg.sa
    A("s_waitcnt vmcnt(1)")
    if cfg.sa:
        A(f"s_cmp_lt_u32 s{sWV}, {cfg.sa}")
        A("s_cbranch_scc1 L_bw")
        A("s_waitcnt vmcnt(0)")
        A.label("L_bw")
    for l in range(3):
        for g in range(4):
            r = vXB + 2 * (4 * l + g)
            d = vACC + 16 * l + 4 * g
            A(f"v_lshlrev_b32 v{d}, 16, v{r}")
            A(f"v_and_b32 v{d+1}, 0xffff0000, v{r}")
            A(f"v_lshlrev_b32 v{d+2}, 16, v{r+1}")
            A(f"v_and_b32 v{d+3}, 0xffff0000, v{r+1}")
    dummy(cfg.dum2, "b")
    stamp()

    items = []
    for st in stages:
        bykb = {}
        for u in st["units"]:
            bykb.setdefault(u[2], []).append(u)
        for kb, us in bykb.items():
            if st["q"] == n_g1 - 1 and cfg.tm:
                seq = [int(c) for c in cfg.tm]
                nsp = {0: 0, 1: 0, 2: 0}
                for t_ in seq:
                    (t, wb, _kb, fst) = [u for u in us if u[0] == t_][0]
                    items.append(dict(q=st["q"], tile=t, wb=wb, kb=kb, sp=nsp[t], first=False))
                    nsp[t] += 1
                assert all(v == 4 for v in nsp.values())
                continue
            if len(us) == 2 and cfg.chain:
                for (t, wb, _kb, fst) in us:
                    for sp in range(4):
                        items.append(dict(q=st["q"], tile=t, wb=wb, kb=kb, sp=sp, first=(fst and sp == 0)))
                continue
            for sp in range(4):
                for (t, wb, _kb, fst) in us:
                    items.append(dict(q=st["q"], tile=t, wb=wb, kb=kb, sp=sp, first=(fst and sp == 0)))
    NI = len(items)
    aux_used = set()
    if cfg.dual:
        own_end = max(n for n, it in enumerate(items) if it["q"] >= n_g1 and it["kb"] < 3)
        assert all(kbidx[(0, l)] < 3 for l in range(3))
        for n, it in enumerate(items):
            if n > own_end + 1 and items[n - 1]["tile"] == it["tile"]:
                it["first"] = it["tile"] not in aux_used
                aux_used.add(it["tile"])
                it["tile"] += 3

    def accbase(t):
        return vACC + 16 * t if t < 3 else vXB + 16 * (t - 3)
    last_item = {}
    for n, it in enumerate(items):
        last_item[it["q"]] = n
    bread_of = {(st["q"], kb): bb for st in stages for (bb, kb) in st["breads"]}
    lg = []
    smem_room = [False]

    def ds_issue(instr, tag):
        cap = (14 if TS else 15) - (4 if smem_room[0] else 0)
        if len(lg) >= cap:
            A(f"s_waitcnt lgkmcnt({cap-2})")
            del lg[:len(lg) - (cap - 2)]
        A(instr)
        lg.append(tag)

    def ds_need(tags):
        idx = max([i for i, t in enumerate(lg) if t in tags], default=-1)
        if idx >= 0:
            A(f"s_waitcnt lgkmcnt({len(lg) - 1 - idx})")
            del lg[:idx + 1]

    checked = [-1]
    bdone = set()
    dirty, clean_pos = {}, {}

    def clean(m):
        key = (items[m]["kb"], items[m]["sp"])
        if key in dirty and dirty[key] == m:
            del dirty[key]
            ds_need({("B",) + key})
            r = vXB + 16 * key[0] + 4 * key[1]
            for k in range(4):
                A(f"v_and_b32 v{r+k}, s{sMC}, v{r+k}")
            clean_pos[m] = len(A.L) - 1

    def issue_reads(n):
        it = items[n]
        q = it["q"]
        if q > checked[0]:
            ds_need({"hw"})
            fl4 = [f"s_load_dwordx2 s[{16+2*k}:{17+2*k}], s[28:29], {128*k} glc" for k in range(4)]
            if cfg.numa and q == n_g1 + 3:
                flag_chk([16, 18, 20, 22], fl4, sT0, sT1, sT2, sT3)
                lg.clear()
                A(f"v_bfe_u32 v{vT+1}, v1, 3, 2")
                A(f"v_lshrrev_b32 v{vT+1}, v{vT+1}, s{sT2}")
                A(f"v_and_b32 v{vT+1}, 1, v{vT+1}")
                A(f"v_lshl_add_u32 v{vL16}, v{vT+1}, 13, v{vL16}")
            A("s_barrier")
            checked[0] = q
            smem_room[0] = cfg.numa and q == n_g1 + 2
            if smem_room[0] and len(lg) > 10:
                A("s_waitcnt lgkmcnt(10)")
                del lg[:len(lg) - 10]
            if cfg.numa and q == cfg.flq + 1:
                flag_load()
            if cfg.numa and q == n_g1 + 2:
                for x in fl4:
                    A(x)
            if q in cfg.tsq:
                stamp()
        key = (q, it["kb"])
        if key in bread_of and (key, it["sp"]) not in bdone:
            bdone.add((key, it["sp"]))
            bb = blocks[bread_of[key]]
            addr = bb["slot"] * 8192
            r = vXB + 16 * it["kb"] + 4 * it["sp"]
            if bb["kind"] == "X":
                assert addr >> 16 == 2
                ds_issue(f"ds_read_b128 v[{r}:{r+3}], v{vBX[it['sp']]} offset:{addr & 0xffff}", ("B", it["kb"], it["sp"]))
            else:
                ds_issue(f"ds_read_b128 v[{r}:{r+3}], v{vBH[addr >> 16]} offset:{(addr & 0xffff) + 1024*it['sp']}",
                         ("B", it["kb"], it["sp"]))
                if bb["kind"] != "Hown":
                    if not cfg.hlsb:
                        dirty[(it["kb"], it["sp"])] = n
        wb = blocks[it["wb"]]
        addr = wb["slot"] * 8192 + 2048 * it["sp"]
        r = vAB + 4 * (n % nAB)
        ds_issue(f"ds_read_b64_tr_b16 v[{r}:{r+1}], v{vA[addr >> 16]} offset:{addr & 0xffff}", ("A", n))
        ds_issue(f"ds_read_b64_tr_b16 v[{r+2}:{r+3}], v{vA[addr >> 16]} offset:{(addr & 0xffff) + 1024}", ("A", n))

    post = []

    def epi1_instrs(pi, lines):
        out, late = [], []
        for l in lines:
            a = vACC + 16 * l
            addr = blocks[f"H0_{l}"]["slot"] * 8192
            for half in range(2):
                base = a + 8 * half
                if cfg.epi == 1:
                    assert cfg.hlsb
                    for k in range(8):
                        out.append(("v", f"v_mul_f32 v{base+k}, v{base+k}, |v{base+k}|"))
                    for k in range(4):
                        out.append(("v", f"v_cvt_pk_bf16_f32 v{base+k}, v{base+2*k}, v{base+2*k+1}"))
                    for k in range(4):
                        out.append(("v", f"v_pk_max_i16 v{base+k}, v{base+k}, 0"))
                else:
                    for k in range(8):
                        out.append(("v", f"v_max_f32 v{base+k}, 0, v{base+k}"))
                    for k in range(0, 8, 2):
                        out.append(("v", f"v_pk_mul_f32 v[{base+k}:{base+k+1}], v[{base+k}:{base+k+1}], v[{base+k}:{base+k+1}]"))
                    for k in range(4):
                        out.append(("v", f"v_cvt_pk_bf16_f32 v{base+k}, v{base+2*k}, v{base+2*k+1}"))
                for k in range(4):
                    out.append(("v", f"v_bfi_b32 v{base+4+k}, s{sML}, v{vTG+k}, v{base+k}" if cfg.hlsb else
                                f"v_and_or_b32 v{base+4+k}, v{vTG+k}, s{sMS}, v{base+k}"))
                out.append(("v", f"buffer_store_dwordx4 v[{base+4}:{base+7}], v{vHW[0]}, s[{SRD1}:{SRD1+3}], s{sHS[l]} offen offset:{1024*half} {cfg.hsf}"))
                out.append(("w", f"ds_write_b128 v{vHW[addr >> 16]}, v[{base}:{base+3}] offset:{(addr & 0xffff) + 1024*half}"))
                t = ("v", f"buffer_load_dword v255, v{vHW[0]}, s[{SRD1}:{SRD1+3}], s{sHS[l]} offen offset:{1024*half} {cfg.stf}")
                if cfg.stouch == 1:
                    out.append(t)
                elif cfg.stouch == 2:
                    late.append(t)
                elif cfg.stouch == 3:
                    post.append(t)
        return out + late

    def epi2_instrs(lines):
        out = []
        for l in lines:
            for u in range(2):
                base = vACC + 8 * (2 * l + u)
                if l in aux_used:
                    ab = accbase(l + 3) + 8 * u
                    for k in range(0, 8, 2):
                        out.append(("v", f"v_pk_add_f32 v[{base+k}:{base+k+1}], v[{base+k}:{base+k+1}], v[{ab+k}:{ab+k+1}]"))
                for k in range(4):
                    out.append(("v", f"v_cvt_pk_bf16_f32 v{base+k}, v{base+2*k}, v{base+2*k+1}"))
                out.append(("v", "s_nop 1"))
                out.append(("v", f"v_permlane32_swap_b32 v{base}, v{base+2}"))
                out.append(("v", f"v_permlane32_swap_b32 v{base+1}, v{base+3}"))
                for k in (0, 2, 1, 3):
                    out.append(("v", f"v_bfi_b32 v{base+k}, s{sML}, v{vTG+k}, v{base+k}"))
                out.append(("v", f"buffer_store_dwordx4 v[{base}:{base+3}], v{vL16}, s[{SRD1}:{SRD1+3}], s{sIL[l]} offen offset:{256*u} {cfg.psf}"))
        return out

    fillers = []
    fill_start = 0
    fill_tiles = set()
    mfma_pos = {}
    fill_fresh = [False]

    def states_since(pos):
        c = 0
        for ln in A.L[pos + 1:]:
            t = ln.strip()
            if t.endswith(":") or t.startswith(";") or t.startswith("@@"):
                continue
            c += int(t.split()[1]) + 1 if t.startswith("s_nop") else 1
        return c

    late_w = []

    def emit(kind, t):
        if kind == "mark":
            have = min(states_since(mfma_pos[tl]) for tl in t[0])
            if have < 12:
                A(f"s_nop {12 - have - 1}")
        elif kind == "w":
            ds_issue(t, "hw")
        else:
            A(t)

    def flush_fillers():
        nonlocal fillers
        for (kind, t) in fillers + late_w:
            emit(kind, t)
        fillers = []
        late_w.clear()
        fill_tiles.clear()

    trig = {}
    for l in range(3):
        trig[max(n for n, it in enumerate(items) if it["q"] < n_g1 and it["tile"] == l)] = (1, l)
        trig[max(n for n, it in enumerate(items) if it["q"] >= n_g1 and it["tile"] % 3 == l)] = (2, l)

    nread = 0
    for n in range(NI):
        it = items[n]
        lim = min(NI - 1, n + D)
        while nread <= lim:
            nx = items[nread]
            if nx["q"] > checked[0]:
                if nx["q"] in cfg.drain and last_item[nx["q"] - 1] - cfg.dkeep >= n:
                    break
                due = [l for l, v in hown_vis.items() if v == nx["q"]]
                if due:
                    if last_item[hown_w[due[0]]] >= n:
                        break
                    flush_fillers()
            key = (nx["q"], nx["kb"])
            if key in bread_of and (key, nx["sp"]) not in bdone:
                if any(items[m]["kb"] == nx["kb"] and items[m]["sp"] == nx["sp"] for m in range(n, nread)):
                    break
            issue_reads(nread)
            nread += 1
        assert nread > n
        if it["tile"] in fill_tiles:
            flush_fillers()
            A("s_nop 1")
        clean(n)
        ds_need({("A", n), ("B", it["kb"], it["sp"])})
        if it["first"]:
            ds_need({"hw"})
        if n in clean_pos and states_since(clean_pos[n]) < 2:
            A(f"s_nop {1 - states_since(clean_pos[n])}")
        ra = vAB + 4 * (n % nAB)
        rb = vXB + 16 * it["kb"] + 4 * it["sp"]
        acc = accbase(it["tile"])
        c = "0" if it["first"] else f"v[{acc}:{acc+15}]"
        if cfg.m16test == 1:
            for hh in range(2):
                a4 = acc + 8 * (it["sp"] & 1) + 4 * hh
                rb2 = vXB + 16 * it["kb"] + 4 * (it["sp"] if hh == 0 else max(it["sp"] - 1, 0))
                A(f"v_mfma_f32_16x16x32_bf16 v[{a4}:{a4+3}], v[{ra}:{ra+3}], v[{rb2}:{rb2+3}], v[{a4}:{a4+3}]")
        elif cfg.m16test == 2:
            A("s_nop 7")
        else:
            A(f"v_mfma_f32_32x32x16_bf16 v[{acc}:{acc+15}], v[{ra}:{ra+3}], v[{rb}:{rb+3}], {c}")
        mfma_pos[it["tile"]] = len(A.L) - 1
        if cfg.numa and n == last_item[n_g1 - 1]:
            flag_fin(sT0, sT1, sT2)
            lg.clear()
            for l in range(3):
                A(f"s_add_u32 s{sHS[l]}, s{sHS[l]}, s{sSIDE}")
        if n + 1 < nread:
            clean(n + 1)
        k = 0
        while fillers and k < (cfg.fill1 if it["q"] < n_g1 else cfg.fill):
            if fillers[0][0] == "mark" and n < fillers[0][1][1]:
                break
            kind, t = fillers.pop(0)
            emit(kind, t)
            k += kind != "mark"
        if not fillers and not late_w:
            fill_tiles.clear()
        if n == last_item[it["q"]] and (it["q"] in epi_after or it["q"] in epi2_after):
            stamp()
        if n in trig:
            g, l = trig[n]
            tl = [l] + ([l + 3] if (g == 2 and l in aux_used) else [])
            new = epi1_instrs(0, [l]) if g == 1 else epi2_instrs([l])
            if cfg.wlast:
                late_w.extend(x for x in new if x[0] == "w")
                new = [x for x in new if x[0] != "w"]
            fillers += [("mark", (tl, n + cfg.fdel))] + new
            fill_tiles.update(tl)
    flush_fillers()
    stamp()
    if cfg.rnb >= 1 and not cfg.rlate:
        A("s_barrier")
    reduce_code(1, 0)
    if TS:
        A("s_waitcnt vmcnt(0)")
        A("s_memrealtime s[98:99]")
        A("s_waitcnt lgkmcnt(0)")
        assert tsn[0] <= 14, tsn[0]
        A(f"s_mov_b32 s{sTS+28}, s98"); A(f"s_mov_b32 s{sTS+30}, s{sCNT}")
        tsn[0] = 16
        stamp_flush()
    if cfg.enc and cfg.encw < 4:
        A("s_branch L_noep")
    A("s_branch L_end")

    A.head("hl")
    A.label("L_helper")
    sG = 38
    A(f"s_lshl_b32 s{sG}, s{sWV}, 3")
    A(f"s_add_u32 s{sG}, s{sG}, s{sR}")
    A("v_mul_u32_u24 v8, 9216, v1")
    A("v_mul_u32_u24 v9, 1152, v1")
    A(f"s_mul_i32 s39, s{sJ}, 1152")
    NWT = 64
    if cfg.numa:
        NWT = 56
        A(f"s_cmp_eq_u32 s{sWV}, 7")
        A("s_cbranch_scc1 L_probe")
    if cfg.hw:
        NWT = 8 * cfg.hw
        A(f"s_cmp_ge_u32 s{sWV}, {cfg.hw}")
        A("s_cbranch_scc1 L_end")

    def thr(rnd):
        hq = cfg.hq2 if (rnd == 99 and cfg.hq2 >= 0) else cfg.hq
        if cfg.hw and rnd > hq and hq < 60:
            A(f"s_waitcnt vmcnt({hq})")
    A("s_waitcnt lgkmcnt(0)")

    def sdiv(dst, src, d):
        A(f"s_mul_i32 s{dst}, s{src}, {(65536 + d - 1) // d}")
        A(f"s_lshr_b32 s{dst}, s{dst}, 16")

    w2base = 0
    if cfg.touch and any(ROT):
        srd(SRD0, sW1, 5308416)
        srd(SRD1, sX, 589824)
        need = {kk: min((kk - r) % 9 for r in ROT) for kk in range(9)}
        kks = sorted([kk for kk in range(9) if need[kk] >= cfg.skipw], key=lambda kk: need[kk])
        KT = sum(kk << (4 * u) for u, kk in enumerate(kks))
        nW = 9 * len(kks)
        x0 = cfg.skipx
        nX = 8 * (9 - x0)
        tot = nW + nX
        for rnd in range((tot + NWT - 1) // NWT):
            if rnd == 1:
                A.tail("hl")
            k = A.uid()
            A(f"s_add_u32 s{sT0}, s{sG}, {NWT*rnd}")
            if NWT * rnd < nW:
                if NWT * rnd + NWT > nW:
                    A(f"s_cmp_ge_u32 s{sT0}, {nW}")
                    A(f"s_cbranch_scc1 L_hx{k}")
                sdiv(sT1, sT0, 9)
                A(f"s_mul_i32 s{sT2}, s{sT1}, 9")
                A(f"s_sub_u32 s{sT2}, s{sT0}, s{sT2}")
                A(f"s_lshl_b32 s{sT1}, s{sT1}, 2")
                A(f"s_lshr_b32 s{sT1}, {KT}, s{sT1}")
                A(f"s_and_b32 s{sT1}, s{sT1}, 15")
                A(f"s_mul_i32 s{sT1}, s{sT1}, {64*9216}")
                A(f"s_lshl_b32 s{sT2}, s{sT2}, 7")
                A(f"s_add_u32 s{sT1}, s{sT1}, s{sT2}")
                A(f"s_add_u32 s{sT1}, s{sT1}, s39")
                A(f"buffer_load_dword v255, v8, s[{SRD0}:{SRD0+3}], s{sT1} offen {cfg.tfl}")
                if NWT * rnd + NWT > nW:
                    A(f"s_branch L_ht{k}")
            if NWT * rnd + NWT > nW:
                A.label(f"L_hx{k}")
                if NWT * rnd + NWT > tot:
                    A(f"s_cmp_ge_u32 s{sT0}, {tot}")
                    A(f"s_cbranch_scc1 L_ht{k}")
                A(f"s_sub_u32 s{sT0}, s{sT0}, {nW - 8*x0}")
                A(f"s_and_b32 s{sT2}, s{sT0}, 7")
                A(f"s_lshr_b32 s{sT1}, s{sT0}, 3")
                A(f"s_lshl_b32 s{sT3}, s{sT2}, 2")
                A(f"s_lshr_b32 s{sT3}, {ROTTAB}, s{sT3}")
                A(f"s_and_b32 s{sT3}, s{sT3}, 15")
                A(f"s_add_u32 s{sT1}, s{sT1}, s{sT3}")
                A(f"s_cmp_ge_u32 s{sT1}, 9")
                A(f"s_cselect_b32 s{sT3}, 9, 0")
                A(f"s_sub_u32 s{sT1}, s{sT1}, s{sT3}")
                A(f"s_mul_i32 s{sT2}, s{sT2}, {64*1152}")
                A(f"s_lshl_b32 s{sT1}, s{sT1}, 7")
                A(f"s_add_u32 s{sT1}, s{sT1}, s{sT2}")
                A(f"buffer_load_dword v255, v9, s[{SRD1}:{SRD1+3}], s{sT1} offen")
            A.label(f"L_ht{k}")
        w2base = (NWT - tot % NWT) % NWT
    elif cfg.touch and cfg.xa >= 0:
        srd(SRD0, sW1, 5308416)
        srd(SRD1, sX, 589824)
        CS = cfg.cs
        tot = 9 * CS - cfg.hskip
        w2base = (NWT - tot % NWT) % NWT
        for rnd in range((tot + NWT - 1) // NWT):
            if rnd == 1:
                A.tail("hl")
            k = A.uid()
            A(f"s_add_u32 s{sT0}, s{sG}, {NWT*rnd + cfg.hskip}")
            if NWT * rnd + NWT > tot:
                A(f"s_cmp_ge_u32 s{sT0}, {9*CS}")
                A(f"s_cbranch_scc1 L_ht{k}")
            sdiv(sT1, sT0, CS)
            A(f"s_mul_i32 s{sT2}, s{sT1}, {CS}")
            A(f"s_sub_u32 s{sT2}, s{sT0}, s{sT2}")
            A(f"s_sub_u32 s{sT3}, s{sT2}, {cfg.xa}")
            A(f"s_cmp_lt_u32 s{sT3}, 8")
            A(f"s_cbranch_scc1 L_hx{k}")
            A(f"s_cmp_ge_u32 s{sT2}, {cfg.xa}")
            A(f"s_cselect_b32 s{sT3}, 8, 0")
            A(f"s_sub_u32 s{sT2}, s{sT2}, s{sT3}")
            if cfg.rev:
                A(f"s_sub_u32 s{sT2}, 8, s{sT2}")
            sdiv(sT3, sT2, 3)
            A(f"s_mul_i32 s{sT2}, s{sT2}, 384")
            A(f"s_lshl_b32 s{sT3}, s{sT3}, 10")
            A(f"s_sub_u32 s{sT2}, s{sT2}, s{sT3}")
            A(f"s_mul_i32 s{sT1}, s{sT1}, {64*9216}")
            A(f"s_add_u32 s{sT1}, s{sT1}, s{sT2}")
            A(f"s_add_u32 s{sT1}, s{sT1}, s39")
            A(f"buffer_load_dword v255, v8, s[{SRD0}:{SRD0+3}], s{sT1} offen {cfg.tfl}")
            A(f"s_branch L_ht{k}")
            A.label(f"L_hx{k}")
            A(f"s_mul_i32 s{sT2}, s{sT3}, {64*1152}")
            A(f"s_lshl_b32 s{sT1}, s{sT1}, 7")
            A(f"s_add_u32 s{sT1}, s{sT1}, s{sT2}")
            A(f"buffer_load_dword v255, v9, s[{SRD1}:{SRD1+3}], s{sT1} offen")
            A.label(f"L_ht{k}")
    elif cfg.touch:
        srd(SRD0, sW1, 5308416)
        srd(SRD1, sX, 589824)
        phases, base = [], 0
        for pi, ls in enumerate(passes):
            t0 = cfg.ht0 if pi == 0 else 0
            c = 3 * len(ls) + (8 if pi == 0 else 0)
            phases.append((base, (9 - t0 - cfg.tn) * c, t0, c, ls))
            base += (9 - t0 - cfg.tn) * c
        w2base = (NWT - base % NWT) % NWT if cfg.w2rot else 0
        for rnd in range((base + NWT - 1) // NWT):
            if rnd == 1:
                A.tail("hl")
            k = A.uid()
            A(f"s_add_u32 s{sT0}, s{sG}, {NWT*rnd}")
            for (pb, cnt, t0, c, ls) in phases:
                if pb + cnt <= NWT * rnd or pb >= NWT * rnd + NWT:
                    continue
                k2 = A.uid()
                A(f"s_cmp_ge_u32 s{sT0}, {pb+cnt}")
                A(f"s_cbranch_scc1 L_hp{k2}")
                if pb:
                    A(f"s_sub_u32 s{sT0}, s{sT0}, {pb}")
                sdiv(sT1, sT0, c)
                A(f"s_mul_i32 s{sT2}, s{sT1}, {c}")
                A(f"s_sub_u32 s{sT2}, s{sT0}, s{sT2}")
                if t0:
                    A(f"s_add_u32 s{sT1}, s{sT1}, {t0}")
                if cfg.tn:
                    A(f"s_cmp_ge_u32 s{sT1}, {cfg.ta}")
                    A(f"s_cselect_b32 s{sT3}, {cfg.tn}, 0")
                    A(f"s_add_u32 s{sT1}, s{sT1}, s{sT3}")
                nw = 3 * len(ls)
                if c > nw:
                    A(f"s_cmp_ge_u32 s{sT2}, {nw}")
                    A(f"s_cbranch_scc1 L_hx{k2}")
                if len(ls) != 3:
                    if len(ls) == 1:
                        A(f"s_mul_i32 s{sT2}, s{sT2}, 3")
                    else:
                        A(f"s_lshr_b32 s{sT3}, s{sT2}, 1")
                        A(f"s_add_u32 s{sT2}, s{sT2}, s{sT3}")
                    if ls[0]:
                        A(f"s_add_u32 s{sT2}, s{sT2}, {ls[0]}")
                A(f"s_mul_i32 s{sT1}, s{sT1}, {64*9216}")
                A(f"s_lshl_b32 s{sT2}, s{sT2}, 7")
                A(f"s_add_u32 s{sT1}, s{sT1}, s{sT2}")
                A(f"s_add_u32 s{sT1}, s{sT1}, s39")
                thr(rnd)
                A(f"buffer_load_dword v255, v8, s[{SRD0}:{SRD0+3}], s{sT1} offen {cfg.tfl}")
                A(f"s_branch L_ht{k}")
                if c > nw:
                    A.label(f"L_hx{k2}")
                    A(f"s_sub_u32 s{sT2}, s{sT2}, {nw}")
                    A(f"s_mul_i32 s{sT2}, s{sT2}, {64*1152}")
                    A(f"s_lshl_b32 s{sT1}, s{sT1}, 7")
                    A(f"s_add_u32 s{sT1}, s{sT1}, s{sT2}")
                    thr(rnd)
                    A(f"buffer_load_dword v255, v9, s[{SRD1}:{SRD1+3}], s{sT1} offen")
                    A(f"s_branch L_ht{k}")
                A.label(f"L_hp{k2}")
            A.label(f"L_ht{k}")
    def h_pretouch():
        srd(SRD1, sWS, 0x10000000)
        A("v_lshlrev_b32 v10, 7, v1")
        A(f"s_mul_i32 s{sT1}, s{sJ}, 589824")
        A(f"s_add_u32 s{sT1}, s{sT1}, {WS_IN if cfg.hpin else WS_H}")
        for rnd in range(2):
            k = A.uid()
            A(f"s_add_u32 s{sT0}, s{sG}, {NWT*rnd}")
            A(f"s_cmp_ge_u32 s{sT0}, 72")
            A(f"s_cbranch_scc1 L_ht{k}")
            A(f"s_lshl_b32 s{sT0}, s{sT0}, 13")
            A(f"s_add_u32 s{sT0}, s{sT0}, s{sT1}")
            A(f"buffer_load_dword v255, v10, s[{SRD1}:{SRD1+3}], s{sT0} offen {cfg.hpf}")
            A.label(f"L_ht{k}")
    if cfg.hpre == 1:
        h_pretouch()
    if cfg.touch:
        srd(SRD0, sW2, 5308416)
        A(f"s_mul_i32 s39, s{sJ}, 663552")
        vord = [blocks[nm] for nm in order if blocks[nm]["kind"] == "W2"]
        if not cfg.vneed:
            vord.sort(key=lambda b: (kbidx[(b["d"], b["lk"])], b["l"]))
        for reg, key in ((60, "d"), (62, "lk"), (44, "l")):
            tab = sum(b[key] << (2 * u) for u, b in enumerate(vord))
            A(f"s_mov_b32 s{reg}, {tab & 0xffffffff}")
            A(f"s_mov_b32 s{reg+1}, {tab >> 32}")
        if w2base:
            A(f"s_add_u32 s{sG}, s{sG}, {w2base}")
            A(f"s_cmp_ge_u32 s{sG}, {NWT}")
            A(f"s_cselect_b32 s{sT0}, {NWT}, 0")
            A(f"s_sub_u32 s{sG}, s{sG}, s{sT0}")
        for rnd in range((81 + NWT - 1) // NWT):
            k = A.uid()
            A(f"s_add_u32 s{sT0}, s{sG}, {NWT*rnd}")
            A(f"s_cmp_ge_u32 s{sT0}, {81 - 18*cfg.vt}")
            A(f"s_cbranch_scc1 L_ht{k}")
            sdiv(sT1, sT0, 3)
            A(f"s_mul_i32 s{sT2}, s{sT1}, 3")
            A(f"s_sub_u32 s{sT2}, s{sT0}, s{sT2}")
            A(f"s_lshl_b32 s{sT1}, s{sT1}, 1")
            A(f"s_lshr_b64 s[46:47], s[60:61], s{sT1}")
            A(f"s_and_b32 s{sT0}, s46, 3")
            A(f"s_add_u32 s{sT0}, s{sT0}, s{sT2}")
            A(f"s_cmp_ge_u32 s{sT0}, 3")
            A(f"s_cselect_b32 s{sT3}, 3, 0")
            A(f"s_sub_u32 s{sT0}, s{sT0}, s{sT3}")
            A(f"s_lshr_b64 s[46:47], s[62:63], s{sT1}")
            A(f"s_and_b32 s{sT3}, s46, 3")
            A(f"s_mul_i32 s{sT0}, s{sT0}, {192*1152}")
            A(f"s_mul_i32 s{sT3}, s{sT3}, {64*1152}")
            A(f"s_add_u32 s{sT0}, s{sT0}, s{sT3}")
            A(f"s_lshr_b64 s[46:47], s[44:45], s{sT1}")
            A(f"s_and_b32 s{sT3}, s46, 3")
            A(f"s_mul_i32 s{sT2}, s{sT2}, 3")
            A(f"s_add_u32 s{sT2}, s{sT2}, s{sT3}")
            A(f"s_lshl_b32 s{sT2}, s{sT2}, 7")
            A(f"s_add_u32 s{sT0}, s{sT0}, s{sT2}")
            A(f"s_add_u32 s{sT0}, s{sT0}, s39")
            thr(99)
            A(f"buffer_load_dword v255, v9, s[{SRD0}:{SRD0+3}], s{sT0} offen {cfg.tfl}")
            A.label(f"L_ht{k}")
    if cfg.hpre == 2:
        h_pretouch()
    dummy(cfg.dumh, "h")
    if TS:
        tsn[0] = 1
        A("s_waitcnt vmcnt(0)")
        stamp()
        stamp()
        stamp_flush()
    A("s_branch L_end")
    if cfg.numa:
        A.tail("pr")
        A.label("L_probe")
        A(f"s_mov_b32 s{sMT}, s{sR}")
        sO1, sO2, sEV, sRD = 53, 54, 55, 56
        gbase(sO1, 58)
        A(f"s_add_u32 s{sO1}, s{sO1}, {cfg.wsb + 18*16384}")
        A(f"s_mov_b32 s{sRD}, 0")
        A("v_mov_b32 v2, 0")
        A("s_waitcnt lgkmcnt(0)")
        epoch_load(sMT)
        srd(SRD1, sWS, 0x10000000)
        A(f"s_lshl_b32 s57, s{sMT}, 3")
        A(f"s_add_u32 s57, s57, s{sJ}")
        A("s_lshl_b32 s57, s57, 7")
        A(f"s_add_u32 s57, s57, {WS_FL}")
        A("s_waitcnt lgkmcnt(0)")
        A(f"s_not_b32 s3, s{sTAG}")
        A(f"s_add_u32 s{sTAG}, s{sTAG}, 1")
        A(f"v_mov_b32 v4, s{sTAG}")
        A.label("L_pl")
        A(f"s_xor_b32 s{sO2}, s{sO1}, 8192")
        A("s_mov_b32 s61, s3")
        A(f"s_load_dword s60, s[{sWS}:{sWS+1}], s{sO1}")
        A(f"s_load_dword s61, s[{sWS}:{sWS+1}], s{sO2}")
        A("s_waitcnt lgkmcnt(1)")
        for _ in range(cfg.rd):
            A("s_nop 7")
        A("s_cmp_eq_u32 s61, s3")
        A("s_cbranch_scc1 L_pub")
        A(f"s_add_u32 s{sO1}, s{sO2}, 128")
        A(f"s_add_u32 s{sRD}, s{sRD}, 1")
        A("s_waitcnt lgkmcnt(0)")
        A(f"s_cmp_lt_u32 s{sRD}, {cfg.nrd}")
        A("s_cbranch_scc1 L_pl")
        A.label("L_pub")
        A(f"s_bfe_u32 s58, s{sO1}, 0x1000d")
        if cfg.numa == 2:
            A("s_xor_b32 s58, s58, 1")
        if TS:
            A(f"s_mov_b32 s{sTS+6}, s58")
            A(f"s_mov_b32 s{sTS+8}, s{sRD}")
        A(f"s_xnor_b32 s58, s{sTAG}, s58")
        A("v_mov_b32 v5, s58")
        A("s_mov_b64 exec, 1")
        A(f"buffer_store_dwordx2 v[4:5], v2, s[{SRD1}:{SRD1+3}], s57 offen sc1")
        A.label("L_pend")
        A("s_mov_b64 exec, -1")
        if TS:
            tsn[0] = 1
            stamp()
            A("s_waitcnt vmcnt(0)")
            stamp()
            tsn[0] = 5
            stamp_flush()
        A("s_waitcnt lgkmcnt(0)")
        A("s_branch L_end")
    A.tail("late")
    A.L.extend(late_code)
    A.tail("end")
    A.label("L_end")

    hdr = f"""; Fused MLP (x@w1+b1 -> relu^2 -> @w2+b2), generated by a python script (work/gen9.py)
; @launch grid=(256,1,1) block=(512,1,1) lds=163840
.amdgcn_target "amdgcn-amd-amdhsa--gfx950"
.text
.globl {KN}
.p2align 8
.type {KN},@function
{KN}:
"""
    ftr = f"""
    s_endpgm
.section .rodata,"a"
.p2align 6
.amdhsa_kernel {KN}
  .amdhsa_next_free_vgpr 256
  .amdhsa_next_free_sgpr 102
  .amdhsa_accum_offset 256
  .amdhsa_group_segment_fixed_size 0
  .amdhsa_kernarg_size 64
  .amdhsa_user_sgpr_count 2
  .amdhsa_user_sgpr_kernarg_segment_ptr 1
  .amdhsa_system_sgpr_workgroup_id_x 1
.end_amdhsa_kernel
"""
    return hdr + A.text(cfg.horder.split(","), (["pr"] if cfg.numa else []) + cfg.torder.split(",") + ["late", "end"]) + ftr


def parse_g2(s):
    out = []
    for stg in s.split(","):
        us = []
        for u in stg.split("+"):
            a, b = u.split(":")
            us.append((int(a[0]), int(a[1]), [int(c) for c in b]))
        out.append(us)
    return out


def ilist(s):
    return [int(x) for x in s.split(",")] if s else []


def main():
    ap = argparse.ArgumentParser()
    ap.add_argument("-o", default="k8.s")
    ap.add_argument("--ts", action="store_true")
    ap.add_argument("--passes", default="012")
    ap.add_argument("--depth", type=int, default=5)
    ap.add_argument("--fill", type=int, default=4)
    ap.add_argument("--grp1", type=int, default=3)
    ap.add_argument("--hres", type=float, default=2.5)
    ap.add_argument("--hearly", type=float, default=1.5)
    ap.add_argument("--hdel", type=int, default=1)
    ap.add_argument("--xfree", type=int, default=11)
    ap.add_argument("--g2", default="00:012,01:012,02:012,10:012,20:012,11:012,21:012,12:012,22:012")
    ap.add_argument("--tsq", default="")
    ap.add_argument("--verbose", action="store_true")
    ap.add_argument("--ahead", type=int, default=8)
    ap.add_argument("--ahead0", type=int, default=8)
    ap.add_argument("--capfrom", type=int, default=8)
    ap.add_argument("--capw", type=int, default=4)
    ap.add_argument("--capx", type=int, default=3)
    ap.add_argument("--burst", default="")
    ap.add_argument("--pause", default="")
    ap.add_argument("--go2lead", type=int, default=3)
    ap.add_argument("--sa", type=int, default=0)
    ap.add_argument("--ctouch", type=int, default=1)
    ap.add_argument("--wfl", default="")
    ap.add_argument("--tfl", default="")
    ap.add_argument("--rfl", default="sc1")
    ap.add_argument("--rsleep", type=int, default=0)
    ap.add_argument("--touch", type=int, default=1)
    ap.add_argument("--clrq", type=int, default=-1)
    ap.add_argument("--cdq", type=int, default=9)
    ap.add_argument("--rbar", type=int, default=0)
    ap.add_argument("--hsf", default="sc1")
    ap.add_argument("--hlf", default="sc1")
    ap.add_argument("--ofl", default="")
    ap.add_argument("--hpre", type=int, default=0)
    ap.add_argument("--rot", default="00000000")
    ap.add_argument("--ts0", type=int, default=0)
    ap.add_argument("--hlsb", type=int, default=1)
    ap.add_argument("--dual", type=int, default=0)
    ap.add_argument("--drain", default="")
    ap.add_argument("--dkeep", type=int, default=0)
    ap.add_argument("--hq2", type=int, default=-1)
    ap.add_argument("--cs", type=int, default=17)
    ap.add_argument("--rev", type=int, default=0)
    ap.add_argument("--xa", type=int, default=-1)
    ap.add_argument("--hskip", type=int, default=0)
    ap.add_argument("--hw", type=int, default=0)
    ap.add_argument("--hq", type=int, default=0)
    ap.add_argument("--numa", type=int, default=0)
    ap.add_argument("--flq", type=int, default=5)
    ap.add_argument("--nev", type=int, default=2)
    ap.add_argument("--nrd", type=int, default=7)
    ap.add_argument("--rr", type=int, default=0)
    ap.add_argument("--rd", type=int, default=2)
    ap.add_argument("--rn", type=int, default=12)
    ap.add_argument("--rq", type=int, default=0)
    ap.add_argument("--hside", type=int, default=-1)
    ap.add_argument("--iside", type=int, default=-1)
    ap.add_argument("--obox", type=int, default=0)
    ap.add_argument("--probe", type=int, default=0)
    ap.add_argument("--vt", type=int, default=0)
    ap.add_argument("--vtq", type=int, default=10)
    ap.add_argument("--xpre", type=int, default=0)
    ap.add_argument("--m16test", type=int, default=0)
    ap.add_argument("--vneed", type=int, default=1)
    ap.add_argument("--tsreal", type=int, default=0)
    ap.add_argument("--vpipe", type=int, default=0)
    ap.add_argument("--ahead2", type=int, default=-1)
    ap.add_argument("--chain", type=int, default=1)
    ap.add_argument("--owide", type=int, default=0)
    ap.add_argument("--dum1", type=int, default=0)
    ap.add_argument("--dum2", type=int, default=0)
    ap.add_argument("--dumh", type=int, default=0)
    ap.add_argument("--encc", type=int, default=0)
    ap.add_argument("--encm", type=int, default=2)
    ap.add_argument("--slots", type=int, default=0)
    ap.add_argument("--rlate", type=int, default=0)
    ap.add_argument("--epi", type=int, default=0)
    ap.add_argument("--tm", default="")
    ap.add_argument("--wlast", type=int, default=0)
    ap.add_argument("--fdel", type=int, default=3)
    ap.add_argument("--fill1", type=int, default=5)
    ap.add_argument("--priow", type=int, default=0)
    ap.add_argument("--prioh", type=int, default=0)
    ap.add_argument("--r0early", type=int, default=0)
    ap.add_argument("--psf", default="sc1")
    ap.add_argument("--rw1", type=int, default=0)
    ap.add_argument("--ofl1", default="")
    ap.add_argument("--rpq", type=int, default=10)
    ap.add_argument("--rb2", type=int, default=1)
    ap.add_argument("--rb4", type=int, default=0)
    ap.add_argument("--rearly", type=int, default=0)
    ap.add_argument("--hpf", default="")
    ap.add_argument("--hpin", type=int, default=0)
    ap.add_argument("--wsb", type=lambda x: int(x, 0), default=0)
    ap.add_argument("--enc", default="")
    ap.add_argument("--encw", type=int, default=4)
    ap.add_argument("--hfree", type=int, default=2)
    ap.add_argument("--stouch", type=int, default=0)
    ap.add_argument("--stdel", type=int, default=1)
    ap.add_argument("--stf", default="")
    ap.add_argument("--ta", type=int, default=0)
    ap.add_argument("--tn", type=int, default=0)
    ap.add_argument("--tpos", type=int, default=0)
    ap.add_argument("--w2rot", type=int, default=1)
    ap.add_argument("--rfast", type=int, default=1)
    ap.add_argument("--wt", type=int, default=0)
    ap.add_argument("--horder", default="w,x,h2,hl,c")
    ap.add_argument("--ht0", type=int, default=1)
    ap.add_argument("--first", type=int, default=4)
    ap.add_argument("--torder", default="hl,w,x,h2,c,red")
    ap.add_argument("--skipw", type=int, default=1)
    ap.add_argument("--skipx", type=int, default=1)
    cfg = ap.parse_args()
    cfg.passes = [[int(c) for c in p] for p in cfg.passes.split(",")]
    cfg.g2 = parse_g2(cfg.g2)
    cfg.drain = ilist(cfg.drain)
    cfg.rnb = cfg.rb2
    cfg.tsq, cfg.burst, cfg.pause = ilist(cfg.tsq), ilist(cfg.burst), ilist(cfg.pause)
    open(cfg.o, "w").write(build(cfg))


main()
```
